```python
import torch

def _softmax(x, axis=-1):
    return torch.softmax(x, dim=axis)
def _gelu(x):
    return torch.nn.functional.gelu(x, approximate="tanh")
def _silu(x):
    return torch.nn.functional.silu(x)
def _sigmoid(x):
    return torch.sigmoid(x)
def _layernorm(x, axis=-1, eps=1e-5):
    m = x.mean(dim=axis, keepdim=True)
    v = x.var(dim=axis, keepdim=True, unbiased=False)
    return (x - m) / torch.sqrt(v + eps)
def _scatter_add(tgt, idx, src, axis=0):
    return tgt.clone().index_add_(axis, idx, src)
def _segment_sum(src, seg, n):
    out = torch.zeros((n,) + src.shape[1:], dtype=src.dtype)
    return out.index_add_(0, seg, src)
def _pad(x, pw):
    flat = tuple(v for pair in reversed(pw) for v in pair)
    return torch.nn.functional.pad(x, flat)

kernel_name = 'standalone__modern_conv_block_replknet__vision'

def setup_inputs():

    _w = (lambda a: (lambda t: t.to(torch.bfloat16) if t.is_floating_point() else t)(torch.as_tensor(a)))
    H = W = 224
    C = 96
    K = 3
    return {
        "x": _w((lambda *s: torch.randn(*s, dtype=torch.bfloat16) * 0.05)(1, H, W, C)),
        "dw_large": _w((lambda *s: torch.randn(*s, dtype=torch.bfloat16) * 0.4)(K, K, C) * (1.0 / K)),
        "dw_small": _w((lambda *s: torch.randn(*s, dtype=torch.bfloat16) * 0.4)(5, 5, C) * 0.2),
        "w1": _w((lambda *s: torch.randn(*s, dtype=torch.bfloat16) * 0.4)(C, 4 * C) * (C ** -0.5)),
        "w2": _w((lambda *s: torch.randn(*s, dtype=torch.bfloat16) * 0.1)(4 * C, C) * ((4 * C) ** -0.5)),
    }

def reference(x, dw_large, dw_small, w1, w2):
    B, H, W, C = x.shape
    Kl = dw_large.shape[0]
    pl = (Kl - 1) // 2
    xpl = _pad(x, ((0,0),(pl,pl),(pl,pl),(0,0)))
    out = torch.zeros_like(x)
    for i in range(Kl):
        for j in range(Kl):
            out = out + xpl[:, i:i+H, j:j+W, :] * dw_large[i, j][None, None, None, :]
    Ks = dw_small.shape[0]
    ps = (Ks - 1) // 2
    xps = _pad(x, ((0,0),(ps,ps),(ps,ps),(0,0)))
    for i in range(Ks):
        for j in range(Ks):
            out = out + xps[:, i:i+H, j:j+W, :] * dw_small[i, j][None, None, None, :]
    h = _layernorm(out, axis=-1)
    h = _gelu(torch.einsum('bhwc,ce->bhwe', h, w1))
    h = torch.einsum('bhwe,ec->bhwc', h, w2)
    return x + h
```

```python
import re

def _regs(tok):
    tok = tok.strip()
    neg = tok.lstrip('-')
    m = re.fullmatch(r'abs\((.*)\)', neg)
    if m: neg = m.group(1)
    neg = neg.strip('|')
    m = re.fullmatch(r'([vsa])(\d+)', neg)
    if m: return {(m.group(1), int(m.group(2)))}
    m = re.fullmatch(r'([vsa])\[(\d+):(\d+)\]', neg)
    if m: return {(m.group(1), i) for i in range(int(m.group(2)), int(m.group(3)) + 1)}
    if neg in ('vcc', 'vcc_lo', 'vcc_hi'): return {('vcc', 0)}
    if neg in ('exec', 'exec_lo', 'exec_hi'): return {('exec', 0)}
    if neg == 'm0': return {('m0', 0)}
    return set()

TRANS = ('v_exp_f32', 'v_log_f32', 'v_rcp_f32', 'v_rsq_f32', 'v_sqrt_f32', 'v_sin_f32', 'v_cos_f32', 'v_rcp_iflag_f32')

class Ins:
    def __init__(self, text):
        self.text = text
        t = text.split(';')[0].strip()
        self.label = t.endswith(':')
        self.op = ''
        self.rd = set(); self.wr = set()
        self.cls = 'other'
        self.passes = 0
        self.srcC = set(); self.srcAB = set()
        if not t or self.label or t.startswith('.'):
            self.cls = 'none'
            return
        parts = t.split(None, 1)
        op = parts[0]; self.op = op
        rest = parts[1] if len(parts) > 1 else ''
        ops = []; cur = ''; depth = 0
        for ch in rest:
            if ch in '[(': depth += 1
            if ch in '])': depth -= 1
            if ch == ',' and depth == 0:
                ops.append(cur.strip()); cur = ''
            else:
                cur += ch
        if cur.strip(): ops.append(cur.strip())
        mods = ''
        if ops:
            sp = ops[-1].split(None, 1)
            ops[-1] = sp[0]
            mods = sp[1] if len(sp) > 1 else ''
        self.mods = mods
        R = [_regs(o) for o in ops]
        self.ops = ops
        if op.startswith('v_mfma') or op.startswith('v_smfmac'):
            self.cls = 'mfma'
            self.passes = 8 if '32x32' in op else 4
            self.wr = set(R[0])
            self.srcAB = R[1] | R[2]
            if op.startswith('v_smfmac'):
                self.srcAB |= R[3]
                self.srcC = set(R[0])
            else:
                self.srcC = set(R[3])
            self.rd = self.srcAB | self.srcC
        elif op.startswith('v_'):
            self.cls = 'valu'
            base = re.sub(r'_(e32|e64|sdwa|dpp)$', '', op)
            self.base = base
            if base.startswith('v_cmpx'):
                self.wr = R[0] | {('exec', 0)}
                for r in R[1:]: self.rd |= r
            elif base.startswith('v_permlane') and 'swap' in base:
                self.wr = R[0] | R[1]; self.rd = R[0] | R[1]
            elif base in ('v_add_co_u32', 'v_sub_co_u32', 'v_addc_co_u32', 'v_subb_co_u32', 'v_mad_u64_u32'):
                self.wr = R[0] | R[1]
                for r in R[2:]: self.rd |= r
            else:
                self.wr = set(R[0])
                for r in R[1:]: self.rd |= r
                if base in ('v_fmac_f32', 'v_dot2c_f32_bf16', 'v_pk_fmac_f16', 'v_writelane_b32') or 'UNUSED_PRESERVE' in mods:
                    self.rd |= R[0]
            self.trans = base in TRANS
            self.dot = base.startswith('v_dot')
            self.dpp = op.endswith('_dpp') or 'row_' in mods or 'quad_perm' in mods
        elif op.startswith('ds_'):
            self.cls = 'ds'
            if op.startswith('ds_read') or op.startswith('ds_bpermute') or op.startswith('ds_permute') or op.startswith('ds_swizzle'):
                self.wr = set(R[0])
                for r in R[1:]: self.rd |= r
            else:
                for r in R: self.rd |= r
        elif op.startswith('buffer_') or op.startswith('global_'):
            self.cls = 'vmem'
            self.lds = (' lds' in (' ' + mods)) or 'load_lds' in op
            if 'load' in op and not self.lds:
                self.wr = set(R[0])
                for r in R[1:]: self.rd |= r
            else:
                for r in R: self.rd |= r
                if self.lds: self.rd |= {('m0', 0)}
            self.widestore = ('store' in op) and (op.endswith('x3') or op.endswith('x4'))
            if self.widestore:
                self.sdata = R[0] if op.startswith('buffer_') else R[1]
        elif op.startswith('s_'):
            self.cls = 'salu'
            if op in ('s_nop', 's_waitcnt', 's_barrier', 's_endpgm', 's_branch', 's_setprio', 's_sleep') or op.startswith('s_cbranch') or op.startswith('s_cmp'):
                for r in R: self.rd |= r
            else:
                self.wr = set(R[0]) if R else set()
                for r in R[1:]: self.rd |= r
                if 'saveexec' in op: self.wr |= {('exec', 0)}
    def states(self):
        if self.cls == 'none': return 0
        if self.op == 's_nop': return int(self.ops[0], 0) + 1
        return 1

def vonly(s): return {r for r in s if r[0] in 'va' and r[0] != 'vcc'}
def sonly(s): return {r for r in s if r[0] == 's' or r[0] == 'vcc'}

def need(p, c):
    n = 0
    if p.cls == 'valu':
        pw = {r for r in p.wr if r[0] in ('v', 'a')}
        ps = {r for r in p.wr if r[0] in ('s', 'vcc')}
        if c.cls == 'mfma' and pw & c.rd: n = max(n, 3 if p.dot else 2)
        if c.cls == 'mfma' and ('exec', 0) in p.wr: n = max(n, 4)
        if c.cls == 'valu':
            if p.trans and not c.trans and pw & c.rd: n = max(n, 1)
            if c.base.startswith('v_permlane') and pw & c.rd: n = max(n, 2)
            if c.base in ('v_readfirstlane_b32', 'v_readlane_b32') and pw & c.rd: n = max(n, 1)
            if c.dpp and pw & c.rd: n = max(n, 2)
            if ps & c.rd: n = max(n, 4 if c.base in ('v_readlane_b32', 'v_writelane_b32') else 2)
            if c.base == 'v_cndmask_b32' and ('vcc', 0) in ps: n = max(n, 2)
            if p.dot and (pw & (c.rd | c.wr)):
                if c.op == p.op and len(c.ops) == 4 and not (pw & (_regs(c.ops[1]) | _regs(c.ops[2]))): pass
                else: n = max(n, 3)
            if ('sdwa' in p.op or 'op_sel' in p.mods and not p.op.startswith('v_pk')) and pw & (c.rd | c.wr): n = max(n, 1)
            if ('exec', 0) in p.wr: n = max(n, 5 if c.dpp else 4)
        if p.dot and c.cls in ('ds', 'vmem') and pw & c.rd: n = max(n, 3)
        if c.cls == 'vmem' and ps & c.rd: n = max(n, 5)
        if c.cls == 'salu' and ps & c.rd: n = max(n, 1)
    if p.cls == 'mfma':
        D = p.wr
        big = 12 if p.passes == 8 else 8
        if c.cls == 'mfma':
            if D & c.srcAB: n = max(n, big)
            if D & c.srcC:
                if c.srcC == D and c.passes == p.passes: pass
                else: n = max(n, 10 if p.passes == 8 else 6)
            elif D & c.wr:
                n = max(n, 10 if p.passes == 8 else 6)
        elif c.cls in ('valu', 'ds', 'vmem'):
            if D & (c.rd | c.wr): n = max(n, big)
            if c.cls == 'valu' and p.srcC & c.wr: n = max(n, 7 if p.passes == 8 else 3)
    if p.cls == 'salu':
        if ('m0', 0) in p.wr and c.cls == 'vmem' and getattr(c, 'lds', False): n = max(n, 1)
    if p.cls == 'vmem' and getattr(p, 'widestore', False):
        if c.cls in ('valu', 'mfma') and p.sdata & c.wr: n = max(n, 2)
        elif p.sdata & c.wr: n = max(n, 1)
    return n

class Asm:
    def __init__(self):
        self.lines = []
    def __call__(self, text):
        for l in text.split('\n'):
            l = l.strip()
            if l: self.lines.append(l)
    def label(self, name): self.lines.append(name + ':')
    def finalize(self, verbose=False):
        out = []; hist = []
        pos = 0; added = 0
        for l in self.lines:
            ins = Ins(l)
            if ins.cls == 'none':
                out.append(l); continue
            req = 0
            for p, ppos in hist[-24:]:
                k = need(p, ins)
                if k:
                    have = pos - ppos
                    if k - have > req: req = k - have
            while req > 0:
                k = min(req, 16)
                out.append(f's_nop {k-1}')
                pos += k; req -= k; added += k
            out.append(l)
            pos += ins.states()
            hist.append((ins, pos))
        if verbose: print(f'; inserted {added} wait states')
        return out
```

```python
import sys, struct, math
from asmlib import Asm

NAME = "standalone__modern_conv_block_replknet__vision"
def fbits(x): return struct.unpack('<I', struct.pack('<f', x))[0]

STAMP = '--stamp' in sys.argv
DUMP = [a for a in sys.argv if a.startswith('--dump=')]
DUMP = DUMP[0].split('=')[1] if DUMP else None

XROW = 3840
G0, XB, G1, G2, SCR = 0, 49152, 49152, 98304, 147456
GB = [G0, G1, G2]
MARK = 0x40000000
NP = 8

k0 = math.sqrt(2.0 / math.pi); k1 = 0.044715
c0 = 2 * k0 / math.log(2.0); c1 = c0 * k1
ga = c1 ** (1.0 / 3.0)
gc = -c0 / ga

sX, sDL, sDS, sW1, sW2, sOUT = 16, 20, 24, 28, 32, 36
sWV, sPY, sPX, sT0, sT1, sT2, sT3 = 40, 41, 42, 43, 44, 45, 46
sG16 = 47
sCA, sCC = 48, 50
sWS = 52
sST = 56
def srd(b): return f's[{b}:{b+3}]'
vO, vL, vY, vK, vG, vF1, vF2 = 0, 48, [72, 88], [104, 120], 136, 144, 168
vAW1, vAW2, vOUT = 192, 193, 194
vAF, vAF2, vAE, vAO, vAL0, vAL1, vAR0, vAR1, vIDX, vM0, vM1 = 195, 196, 197, 198, 199, 200, 201, 202, 203, 204, 205
vDW1, vDW2 = 206, 207
vB = 208
vID = 240
vT = [248, 249, 250, 251, 252, 253]
vLN, vTID = 254, 255
vACC = 72
vAFR = 144
def vr(b, n): return f'v[{b}:{b+n-1}]'

a = Asm()
nstamp = 0
def stamp():
    global nstamp
    if STAMP:
        a(f's_memrealtime s[{sST+2*nstamp}:{sST+2*nstamp+1}]')
        nstamp += 1

a(f's_cmp_ge_u32 s2, 196')
a('s_cbranch_scc1 L_end')
stamp()
a(f'''
s_load_dwordx4 s[4:7], s[0:1], 0
s_load_dwordx4 s[8:11], s[0:1], 16
s_load_dwordx4 s[12:15], s[0:1], 32
''')
if STAMP or DUMP:
    a(f's_load_dwordx2 s[{sWS}:{sWS+1}], s[0:1], 56')
a(f'''
v_mov_b32 v{vTID}, v0
v_lshrrev_b32 v{vT[0]}, 6, v0
v_and_b32 v{vLN}, 63, v0
s_mul_i32 s{sPY}, s2, 4682
s_lshr_b32 s{sPY}, s{sPY}, 16
v_readfirstlane_b32 s{sWV}, v{vT[0]}
s_mul_i32 s{sT0}, s{sPY}, 14
s_sub_u32 s{sPX}, s2, s{sT0}
s_lshl_b32 s{sPY}, s{sPY}, 4
s_lshl_b32 s{sPX}, s{sPX}, 4
v_mul_u32_u24 v{vT[0]}, 43, v{vLN}
v_lshrrev_b32 v{vT[0]}, 9, v{vT[0]}
v_mul_u32_u24 v{vT[1]}, 12, v{vT[0]}
v_sub_u32 v{vT[1]}, v{vLN}, v{vT[1]}
s_and_b32 s{sT0}, s{sWV}, 3
s_mul_i32 s{sT1}, s{sT0}, 5
v_add_u32 v{vT[0]}, s{sT1}, v{vT[0]}
v_bfe_u32 v{vT[2]}, v{vT[0]}, 2, 2
v_xor_b32 v{vT[1]}, v{vT[1]}, v{vT[2]}
s_sub_u32 s{sT1}, s{sPX}, 2
v_add_u32 v{vT[0]}, s{sT1}, v{vT[0]}
v_mul_u32_u24 v{vT[2]}, 192, v{vT[0]}
v_lshl_add_u32 v{vT[2]}, v{vT[1]}, 4, v{vT[2]}
v_mov_b32 v{vT[3]}, {MARK}
v_cmp_gt_u32 vcc, 224, v{vT[0]}
v_cndmask_b32 v{vT[2]}, v{vT[3]}, v{vT[2]}, vcc
s_lshr_b32 s{sT1}, s{sWV}, 2
s_mul_i32 s{sT2}, s{sT0}, 960
s_mul_i32 s{sT3}, s{sT1}, {XROW}
s_add_u32 s{sT2}, s{sT2}, s{sT3}
s_add_u32 s{sT2}, s{sT2}, {XB}
s_add_u32 s{sT1}, s{sT1}, s{sPY}
s_sub_u32 s{sT1}, s{sT1}, 2
s_waitcnt lgkmcnt(0)
s_mov_b32 s{sX}, s4
s_mov_b32 s{sX+1}, s5
s_mov_b32 s{sX+2}, {224*224*192}
s_mov_b32 s{sX+3}, 0x00020000
s_mov_b32 exec_hi, 0x0fffffff
''')
for t in range(10):
    a(f'''
    s_mul_i32 s{sT3}, s{sT1}, 43008
    s_cmp_lt_u32 s{sT1}, 224
    s_cselect_b32 s{sT3}, s{sT3}, {MARK}
    s_mov_b32 m0, s{sT2}
    v_add_u32 v{vT[3 + (t & 1)]}, s{sT3}, v{vT[2]}
    s_add_u32 s{sT1}, s{sT1}, 2
    s_add_u32 s{sT2}, s{sT2}, {2*XROW}
    buffer_load_dwordx4 v{vT[3 + (t & 1)]}, {srd(sX)}, 0 offen lds
    ''')
a('s_mov_b32 exec_hi, -1')
for (b, lo, n) in ((sDL, 6, 1728), (sDS, 8, 4800), (sW1, 10, 73728), (sW2, 12, 73728), (sOUT, 14, 224*224*192)):
    a(f'''
    s_mov_b32 s{b}, s{lo}
    s_mov_b32 s{b+1}, s{lo+1}
    s_mov_b32 s{b+2}, {n}
    s_mov_b32 s{b+3}, 0x00020000
    ''')
if STAMP or DUMP:
    a(f'''
    s_mov_b32 s{sWS+2}, 0x10000000
    s_mov_b32 s{sWS+3}, 0x00020000
    ''')
T = vT
o5a, o5b, oE = vL + 0, vL + 1, [vL + 2, vL + 3, vL + 4, vL + 5]
o3 = [vL + 6, vL + 7, vL + 8, vL + 9]
c2 = vL + 10
a(f'''
; g = (w&3) + (w>=4 ? 8 : 0);  sG16 = 16*g
s_and_b32 s{sT0}, s{sWV}, 3
s_and_b32 s{sT1}, s{sWV}, 4
s_lshl_b32 s{sT1}, s{sT1}, 1
s_add_u32 s{sG16}, s{sT0}, s{sT1}
s_lshl_b32 s{sG16}, s{sG16}, 4
s_add_u32 s{sT3}, s{sG16}, 64
v_and_b32 v{T[0]}, 3, v{vLN}
v_bfe_u32 v{T[1]}, v{vLN}, 3, 1
v_lshl_add_u32 v{c2}, v{T[1]}, 2, v{T[0]}
v_lshlrev_b32 v{c2}, 1, v{c2}
v_mul_u32_u24 v{vIDX}, 0x5555, v{T[0]}
v_sub_u32 v{vM1}, 0, v{T[1]}
v_not_b32 v{vM0}, v{vM1}
v_bfe_u32 v{T[0]}, v{vLN}, 2, 1
v_lshrrev_b32 v{T[1]}, 5, v{vLN}
v_sub_u32 v{T[1]}, v{T[1]}, v{T[0]}
v_bfe_u32 v{T[2]}, v{vLN}, 4, 1
v_mul_i32_i24 v{T[3]}, 960, v{T[1]}
v_mul_u32_u24 v{T[4]}, 384, v{T[2]}
v_add3_u32 v{o5a}, v{T[3]}, v{T[4]}, v{c2}
v_add_u32 v{o5b}, 1920, v{o5a}
v_mul_i32_i24 v{T[3]}, 576, v{T[1]}
v_add3_u32 v{T[3]}, v{T[3]}, v{T[4]}, v{c2}
v_subrev_u32 v{T[3]}, 768, v{T[3]}
v_xor_b32 v{T[2]}, 1, v{T[2]}
v_lshlrev_b32 v{T[2]}, 30, v{T[2]}
v_add_u32 v{o3[0]}, v{T[3]}, v{T[2]}
v_add_u32 v{o3[1]}, 192, v{T[3]}
v_add_u32 v{o3[2]}, 1152, v{o3[0]}
v_add_u32 v{o3[3]}, 1344, v{T[3]}
v_lshrrev_b32 v{T[1]}, 4, v{vLN}
v_lshlrev_b32 v{T[1]}, 1, v{T[1]}
v_sub_u32 v{T[1]}, v{T[1]}, v{T[0]}
v_mul_i32_i24 v{T[1]}, 960, v{T[1]}
v_add_u32 v{T[1]}, v{T[1]}, v{c2}
v_add_u32 v{oE[0]}, 768, v{T[1]}
v_add_u32 v{oE[1]}, 1728, v{T[1]}
v_subrev_u32 v{oE[2]}, 1152, v{T[1]}
v_subrev_u32 v{oE[3]}, 192, v{T[1]}
''')
def convw_loads(gi, sg):
    R = vB + 16 * gi
    a(f'''
    buffer_load_ushort v{R+0}, v{o5a}, {srd(sDS)}, s{sg} offen
    buffer_load_ushort v{R+1}, v{o5a}, {srd(sDS)}, s{sg} offen offset:192
    buffer_load_ushort v{R+2}, v{o5b}, {srd(sDS)}, s{sg} offen
    buffer_load_ushort v{R+3}, v{o5b}, {srd(sDS)}, s{sg} offen offset:192
    buffer_load_ushort v{R+4}, v{o5b}, {srd(sDS)}, s{sg} offen offset:1920
    buffer_load_ushort v{R+5}, v{o5b}, {srd(sDS)}, s{sg} offen offset:2112
    buffer_load_ushort v{R+6}, v{oE[0]}, {srd(sDS)}, s{sg} offen
    buffer_load_ushort v{R+7}, v{oE[1]}, {srd(sDS)}, s{sg} offen
    buffer_load_ushort v{R+8}, v{oE[2]}, {srd(sDS)}, s{sg} offen
    buffer_load_ushort v{R+9}, v{oE[3]}, {srd(sDS)}, s{sg} offen
    buffer_load_ushort v{R+10}, v{o3[0]}, {srd(sDL)}, s{sg} offen
    buffer_load_ushort v{R+11}, v{o3[1]}, {srd(sDL)}, s{sg} offen
    buffer_load_ushort v{R+12}, v{o3[2]}, {srd(sDL)}, s{sg} offen
    buffer_load_ushort v{R+13}, v{o3[3]}, {srd(sDL)}, s{sg} offen
    buffer_load_ushort v{R+14}, v{o3[2]}, {srd(sDL)}, s{sg} offen offset:1152
    buffer_load_ushort v{R+15}, v{o3[3]}, {srd(sDL)}, s{sg} offen offset:1152
    ''')
convw_loads(0, sG16)
a(f'''
s_cmp_ge_u32 s{sWV}, 4
s_cselect_b32 s{sT3}, s{sG16}, s{sT3}
''')
convw_loads(1, sT3)
a(f'''
v_lshrrev_b32 v{T[0]}, 2, v{vLN}
v_mul_u32_u24 v{T[0]}, 768, v{T[0]}
v_and_b32 v{T[1]}, 3, v{vLN}
v_lshl_add_u32 v{vDW1}, v{T[1]}, 4, v{T[0]}
v_lshlrev_b32 v{vDW2}, 4, v{vLN}
''')
def wdma(gam):
    a(f'''
    s_and_b32 s{sT0}, s{sWV}, 3
    s_lshr_b32 s{sT1}, s{sWV}, 2
    s_mul_i32 s{sT2}, s{sT1}, {3*12288}
    s_lshl_b32 s{sT3}, s{sT0}, 6
    s_add_u32 s{sT2}, s{sT2}, s{sT3}
    s_add_u32 s{sT2}, s{sT2}, {gam*256}
    s_mul_i32 s{sT0}, s{sT0}, 6144
    s_mul_i32 s{sT1}, s{sT1}, 3072
    s_add_u32 s{sT0}, s{sT0}, s{sT1}
    s_add_u32 m0, s{sT0}, {GB[gam]}
    ''')
    for i in range(3):
        a(f'buffer_load_dwordx4 v{vDW1}, {srd(sW1)}, s{sT2} offen lds')
        if i < 2:
            a(f'''
            s_add_u32 s{sT2}, s{sT2}, 12288
            s_add_u32 m0, m0, 1024
            ''')
    a(f'''
    s_mul_i32 s{sT0}, s{sWV}, 3072
    s_add_u32 m0, s{sT0}, {GB[gam] + 24576}
    s_add_u32 s{sT0}, s{sT0}, {gam*24576}
    ''')
    for i in range(3):
        a(f'buffer_load_dwordx4 v{vDW2}, {srd(sW2)}, s{sT0} offen offset:{1024*i} lds')
wdma(0)
a(f'''
s_mov_b32 s{sCA}, {fbits(ga):#x}
s_mov_b32 s{sCA+1}, {fbits(ga):#x}
s_mov_b32 s{sCC}, {fbits(gc):#x}
s_mov_b32 s{sCC+1}, {fbits(gc):#x}
s_lshr_b32 s{sT0}, s{sG16}, 4
v_and_b32 v{T[0]}, 15, v{vLN}
v_lshrrev_b32 v{T[1]}, 4, v{vLN}
v_add_u32 v{T[2]}, v{T[0]}, v{T[1]}
v_bfe_u32 v{T[3]}, v{T[2]}, 2, 2
v_xor_b32 v{T[3]}, s{sT0}, v{T[3]}
v_mul_u32_u24 v{T[2]}, 192, v{T[2]}
v_lshl_add_u32 v{vAF}, v{T[3]}, 4, v{T[2]}
v_add_u32 v{vAF}, {XB}, v{vAF}
v_add_u32 v{vAF2}, {10*XROW}, v{vAF}
v_add_u32 v{T[2]}, 4, v{T[0]}
v_bfe_u32 v{T[3]}, v{T[2]}, 2, 2
v_xor_b32 v{T[3]}, s{sT0}, v{T[3]}
v_mul_u32_u24 v{T[2]}, 192, v{T[2]}
v_lshl_add_u32 v{vAE}, v{T[3]}, 4, v{T[2]}
v_mul_u32_u24 v{T[2]}, {XROW}, v{T[1]}
v_add_u32 v{T[2]}, {XB}, v{T[2]}
v_add_u32 v{vAE}, v{vAE}, v{T[2]}
v_bfe_u32 v{T[3]}, v{T[0]}, 2, 2
v_xor_b32 v{T[4]}, s{sT0}, v{T[3]}
v_mul_u32_u24 v{T[2]}, 192, v{T[0]}
v_bfe_u32 v{T[1]}, v{vLN}, 4, 1
v_mul_u32_u24 v{T[1]}, {XROW}, v{T[1]}
v_add_u32 v{T[2]}, v{T[2]}, v{T[1]}
v_add_u32 v{T[2]}, {XB}, v{T[2]}
v_lshrrev_b32 v{T[5]}, 5, v{vLN}
v_lshl_add_u32 v{vAO}, v{T[4]}, 4, v{T[2]}
v_lshl_add_u32 v{vAO}, v{T[5]}, 3, v{vAO}
s_mul_i32 s{sT1}, s{sWV}, {2*XROW}
v_xor_b32 v{T[3]}, v{T[5]}, v{T[3]}
v_lshl_add_u32 v{vAL0}, v{T[3]}, 4, v{T[2]}
v_add_u32 v{vAL0}, s{sT1}, v{vAL0}
v_xor_b32 v{vAL1}, 32, v{vAL0}
v_add_u32 v{T[3]}, 2, v{T[0]}
v_bfe_u32 v{T[3]}, v{T[3]}, 2, 2
v_xor_b32 v{T[3]}, v{T[5]}, v{T[3]}
v_lshl_add_u32 v{vAR0}, v{T[3]}, 4, v{T[2]}
s_add_u32 s{sT1}, s{sT1}, {2*XROW + 384}
v_add_u32 v{vAR0}, s{sT1}, v{vAR0}
v_xor_b32 v{vAR1}, 32, v{vAR0}
s_lshl_b32 s{sT1}, s{sWV}, 1
s_add_u32 s{sT1}, s{sT1}, s{sPY}
s_mul_i32 s{sT1}, s{sT1}, 224
s_add_u32 s{sT1}, s{sT1}, s{sPX}
s_mul_i32 s{sT1}, s{sT1}, 192
v_bfe_u32 v{T[1]}, v{vLN}, 4, 1
v_mul_u32_u24 v{T[1]}, 43008, v{T[1]}
v_mul_u32_u24 v{T[2]}, 192, v{T[0]}
v_add3_u32 v{vOUT}, v{T[1]}, v{T[2]}, s{sT1}
v_lshl_add_u32 v{vOUT}, v{T[5]}, 5, v{vOUT}
v_bfe_u32 v{T[0]}, v{vLN}, 2, 2
v_bfe_u32 v{T[1]}, v{vLN}, 4, 1
v_and_b32 v{T[2]}, 3, v{vLN}
v_lshl_add_u32 v{T[3]}, v{T[5]}, 3, v{T[0]}
v_lshlrev_b32 v{T[3]}, 6, v{T[3]}
v_lshl_add_u32 v{T[3]}, v{T[1]}, 5, v{T[3]}
v_lshl_add_u32 v{vAW1}, v{T[2]}, 3, v{T[3]}
v_lshl_add_u32 v{T[3]}, v{T[5]}, 2, v{T[0]}
v_mul_u32_u24 v{T[3]}, 192, v{T[3]}
v_lshl_add_u32 v{T[3]}, v{T[1]}, 4, v{T[3]}
v_and_b32 v{T[0]}, 1, v{vLN}
v_lshl_add_u32 v{T[3]}, v{T[0]}, 5, v{T[3]}
v_bfe_u32 v{T[0]}, v{vLN}, 1, 1
v_lshl_add_u32 v{vAW2}, v{T[0]}, 3, v{T[3]}
v_add_u32 v{vAW2}, 24576, v{vAW2}
v_bfe_u32 v{T[0]}, v{vLN}, 2, 1
v_bfe_u32 v{T[1]}, v{vLN}, 1, 1
v_bfe_u32 v{T[2]}, v{vLN}, 3, 1
v_lshl_add_u32 v{T[0]}, v{T[0]}, 2, v{T[1]}
v_lshl_add_u32 v{T[0]}, v{T[2]}, 1, v{T[0]}
v_bfe_u32 v{T[1]}, v{vLN}, 4, 1
v_xor_b32 v{T[1]}, v{T[1]}, v{T[5]}
v_lshl_add_u32 v{T[0]}, v{T[1]}, 3, v{T[0]}
v_and_b32 v{T[1]}, 1, v{vLN}
v_lshlrev_b32 v{T[1]}, 4, v{T[1]}
v_mov_b32 v{T[2]}, 0x3f80
v_lshlrev_b32 v{T[1]}, v{T[1]}, v{T[2]}
''')
for i in range(8):
    a(f'''
    v_cmp_eq_u32 vcc, {i}, v{T[0]}
    v_cndmask_b32 v{vID+i}, 0, v{T[1]}, vcc
    ''')
for i in range(64):
    a(f'v_mov_b32 v{vACC+i}, 0')
a('s_waitcnt vmcnt(6)')
for gi in range(2):
    R = vB + 16 * gi
    A = vAFR + 20 * gi
    for i in range(6):
        a(f'v_lshl_or_b32 v{R+i}, v{R+10+i}, 16, v{R+i}')
    for i in range(10):
        a(f'''
        v_and_b32 v{A+2*i}, v{vM0}, v{R+i}
        v_and_b32 v{A+2*i+1}, v{vM1}, v{R+i}
        ''')
a('s_barrier')
stamp()
for ks in range(6):
    a(f'ds_read_b128 {vr(vL+4*ks,4)}, v{vAR1 if ks&1 else vAR0} offset:{64*(ks>>1)}')

def conv_group(gi, first):
    A = vAFR + 20 * gi
    ACC = vACC + 32 * gi
    go = 64 * gi
    seq = [('F', 0), ('E', 0), ('F', 1), ('F', 2), ('E', 2), ('F', 3), ('F', 4), ('E', 4), ('F', 5), ('F', 6), ('E', 6), ('F', 7), ('F', 8), ('F', 9)]
    def issue(i):
        kind, idx = seq[i]
        B = vB + 8 * (i % 4)
        if kind == 'F':
            for rho in range(2):
                row = 2 * idx + rho
                if row < 10: a(f'ds_read_b128 {vr(B+4*rho,4)}, v{vAF} offset:{row*XROW+go}')
                else: a(f'ds_read_b128 {vr(B+4*rho,4)}, v{vAF2} offset:{(row-10)*XROW+go}')
        else:
            for hf in range(2):
                a(f'ds_read_b128 {vr(B+4*hf,4)}, v{vAE} offset:{(2*idx+4*hf)*XROW+go}')
    for i in range(3): issue(i)
    if first:
        a('s_waitcnt lgkmcnt(6)')
        for ks in range(6):
            mt = ks >> 1
            c = '0' if (ks & 1) == 0 else vr(vO+16*mt, 16)
            a(f'v_mfma_f32_32x32x16_bf16 {vr(vO+16*mt,16)}, {vr(vID+4*(ks&1),4)}, {vr(vL+4*ks,4)}, {c}')
    for i in range(len(seq)):
        if i + 3 < len(seq):
            issue(i + 3)
            a('s_waitcnt lgkmcnt(6)')
        else:
            a(f's_waitcnt lgkmcnt({2*(len(seq)-1-i)})')
        kind, idx = seq[i]
        B = vB + 8 * (i % 4)
        if kind == 'F':
            for d in range(3):
                k = idx - d
                if 0 <= k < NP:
                    a(f'v_smfmac_f32_16x16x64_bf16 {vr(ACC+4*k,4)}, {vr(A+4*d,4)}, {vr(B,8)}, v{vIDX}')
        else:
            for par in range(2):
                a(f'v_smfmac_f32_16x16x64_bf16 {vr(ACC+4*(idx+par),4)}, {vr(A+12+4*par,4)}, {vr(B,8)}, v{vIDX}')
    if first:
        a('s_barrier')
    for k in range(NP):
        a(f'''
        v_cvt_pk_bf16_f32 v{ACC+4*k}, v{ACC+4*k}, v{ACC+4*k+1}
        v_cvt_pk_bf16_f32 v{ACC+4*k+1}, v{ACC+4*k+2}, v{ACC+4*k+3}
        ds_write_b64 v{vAO}, {vr(ACC+4*k,2)} offset:{2*k*XROW+go}
        ''')
conv_group(0, True)
a(f'''
s_cmp_ge_u32 s{sWV}, 4
s_cbranch_scc1 L_convdone
s_waitcnt lgkmcnt(0)
''')
conv_group(1, False)
a.label('L_convdone')
a('''
s_waitcnt lgkmcnt(0)
s_barrier
''')
stamp()
for ks in range(6):
    a(f'ds_read_b128 {vr(vL+4*ks,4)}, v{vAL1 if ks&1 else vAL0} offset:{64*(ks>>1)}')
a(f'''
v_mov_b32 v{T[0]}, 0
v_mov_b32 v{T[1]}, 0
v_mov_b32 v{T[2]}, 0x3f803f80
s_waitcnt vmcnt(0) lgkmcnt(0)
s_barrier
''')
wdma(1)
wdma(2)
def w1read(c, ks):
    off = (c & 3) * 6144 + ks * 1024
    a(f'ds_read_b64_tr_b16 {vr(vF1+4*ks,2)}, v{vAW1} offset:{off}')
    a(f'ds_read_b64_tr_b16 {vr(vF1+4*ks+2,2)}, v{vAW1} offset:{off+256}')
def w2read(c, i):
    ks2, mt = i // 3, i % 3
    off = (c & 3) * 6144 + ks2 * 3072 + mt * 64
    a(f'ds_read_b64_tr_b16 {vr(vF2+4*i,2)}, v{vAW2} offset:{off}')
    a(f'ds_read_b64_tr_b16 {vr(vF2+4*i+2,2)}, v{vAW2} offset:{off+1536}')
for ks in range(6): w1read(0, ks)
U = 72
if DUMP == 'conv':
    a(f's_lshl_b32 s{sT0}, s2, 9')
    a(f'v_add_u32 v{T[3]}, s{sT0}, v{vTID}')
    a(f'v_mul_u32_u24 v{T[3]}, 96, v{T[3]}')
    for ks in range(6):
        a(f'buffer_store_dwordx4 {vr(vL+4*ks,4)}, v{T[3]}, {srd(sWS)}, 0 offen offset:{16*ks}')
for i in range(24):
    a(f'v_dot2_f32_bf16 v{T[0]}, v{vL+i}, v{T[2]}, v{T[0]}')
    a(f'v_dot2_f32_bf16 v{T[1]}, v{vL+i}, v{vL+i}, v{T[1]}')
for i in range(24):
    a(f'v_lshlrev_b32 v{U+2*i}, 16, v{vL+i}')
    a(f'v_and_b32 v{U+2*i+1}, 0xffff0000, v{vL+i}')
a(f'''
v_permlane32_swap_b32 v{T[0]}, v{T[1]}
v_add_f32 v{T[0]}, v{T[0]}, v{T[1]}
v_mov_b32 v{T[1]}, v{T[0]}
v_permlane32_swap_b32 v{T[0]}, v{T[1]}
v_mul_f32 v{T[0]}, {fbits(1.0/96):#x}, v{T[0]}
v_mul_f32 v{T[1]}, {fbits(1.0/96):#x}, v{T[1]}
v_fma_f32 v{T[1]}, -v{T[0]}, v{T[0]}, v{T[1]}
v_max_f32 v{T[1]}, 0, v{T[1]}
v_add_f32 v{T[1]}, {fbits(1e-5):#x}, v{T[1]}
v_rsq_f32 v{T[1]}, v{T[1]}
v_mul_f32 v{T[2]}, s{sCA}, v{T[1]}
v_mul_f32 v{T[4]}, v{T[0]}, v{T[2]}
v_sub_f32 v{T[4]}, 0, v{T[4]}
''')
for i in range(24):
    a(f'v_pk_fma_f32 {vr(U+2*i,2)}, {vr(U+2*i,2)}, {vr(T[2],2)}, {vr(T[4],2)} op_sel_hi:[1,0,0]')
for i in range(24):
    a(f'v_cvt_pk_bf16_f32 v{vL+i}, v{U+2*i}, v{U+2*i+1}')
if DUMP == 'ln':
    a(f's_lshl_b32 s{sT0}, s2, 9')
    a(f'v_add_u32 v{T[3]}, s{sT0}, v{vTID}')
    a(f'v_mul_u32_u24 v{T[3]}, 96, v{T[3]}')
    for ks in range(6):
        a(f'buffer_store_dwordx4 {vr(vL+4*ks,4)}, v{T[3]}, {srd(sWS)}, 0 offen offset:{16*ks}')
stamp()
def g1(c, ks):
    Y = vY[c & 1]
    cc = '0' if ks == 0 else vr(Y, 16)
    a(f'v_mfma_f32_32x32x16_bf16 {vr(Y,16)}, {vr(vF1+4*ks,4)}, {vr(vL+4*ks,4)}, {cc}')
def g2(i):
    ks2, mt = i // 3, i % 3
    a(f'v_mfma_f32_32x32x16_bf16 {vr(vO+16*mt,16)}, {vr(vF2+4*i,4)}, {vr(vG+4*ks2,4)}, {vr(vO+16*mt,16)}')
NCH = 12
def sync_group(c):
    pass
a('s_waitcnt lgkmcnt(0)')
for ks in range(6):
    g1(0, ks)
    w1read(1, ks)
for i in range(6): w2read(0, i)
for c in range(NCH + 1):
    Y, K = vY[c & 1], vK[c & 1]
    Yp, Kp = vY[(c - 1) & 1], vK[(c - 1) & 1]
    if c >= 1:
        for i in range(8):
            a(f'v_pk_mul_f32 {vr(Kp+2*i,2)}, {vr(Yp+2*i,2)}, {vr(Kp+2*i,2)}')
    if c < NCH:
        for i in range(8):
            a(f'v_pk_fma_f32 {vr(K+2*i,2)}, {vr(Y+2*i,2)}, {vr(Y+2*i,2)}, s[{sCC}:{sCC+1}] neg_lo:[1,0,0] neg_hi:[1,0,0]')
        for i in range(8):
            a(f'v_pk_mul_f32 {vr(K+2*i,2)}, {vr(Y+2*i,2)}, {vr(K+2*i,2)}')
    if c == 2:
        a('s_waitcnt vmcnt(0)')
        a('s_barrier')
    if c + 2 < NCH and (c + 2) % 4 == 0:
        a(f'v_add_u32 v{vAW1}, 49152, v{vAW1}')
    if c < NCH and c >= 1 and c % 4 == 0:
        a(f'v_add_u32 v{vAW2}, 49152, v{vAW2}')
    fill = []
    if c >= 1:
        fill += [(4, f'v_cvt_pk_bf16_f32 v{vG+i}, v{Kp+2*i}, v{Kp+2*i+1}') for i in range(8)]
    ex = [(8, f'v_exp_f32 v{K+i}, v{K+i}') for i in range(16)] if c < NCH else []
    gaps = []
    if c >= 1 and c < NCH:
        gaps = [fill[0:4] + ex[0:1], fill[4:8] + ex[1:2], ex[2:5], ex[5:8], ex[8:11], ex[11:14], ex[14:16]]
    elif c == 0:
        gaps = [ex[0:3], ex[3:6], ex[6:9], ex[9:12], ex[12:15], ex[15:16], []]
    a('s_waitcnt lgkmcnt(0)')
    if c < NCH:
        for j in range(7):
            if j < 6:
                if c + 1 < NCH:
                    g1(c + 1, j)
                    if c + 2 < NCH: w1read(c + 2, j)
            elif c >= 1:
                g2(0)
                w2read(c, 0)
            for _, t in gaps[j]: a(t)
        for i in range(8):
            a(f'v_pk_fma_f32 {vr(K+2*i,2)}, {vr(K+2*i,2)}, s[{sCA}:{sCA+1}], s[{sCA}:{sCA+1}]')
        rc = [f'v_rcp_f32 v{K+i}, v{K+i}' for i in range(16)]
        gp = [rc[0:3], rc[3:6], rc[6:9], rc[9:12], rc[12:16]]
        for j in range(5):
            if c >= 1:
                g2(j + 1)
                w2read(c, j + 1)
            for t in gp[j]: a(t)
    else:
        for _, t in fill: a(t)
        for i in range(6): g2(i)
stamp()
for mt in range(3):
    for i in range(8):
        a(f'v_cvt_pk_bf16_f32 v{vL+8*mt+i}, v{vO+16*mt+2*i}, v{vO+16*mt+2*i+1}')
    a(f'buffer_store_dwordx4 {vr(vL+8*mt,4)}, v{vOUT}, {srd(sOUT)}, 0 offen offset:{64*mt}')
    a(f'buffer_store_dwordx4 {vr(vL+8*mt+4,4)}, v{vOUT}, {srd(sOUT)}, 0 offen offset:{64*mt+16}')
if STAMP:
    a('s_waitcnt vmcnt(0)')
    stamp()
    a('s_waitcnt lgkmcnt(0)')
    a(f'''
    s_lshl_b32 s{sT0}, s2, 3
    s_add_u32 s{sT0}, s{sT0}, s{sWV}
    s_lshl_b32 s{sT0}, s{sT0}, 5
    v_mov_b32 v{T[1]}, s{sT0}
    s_mov_b64 exec, 1
    ''')
    for i in range(nstamp):
        a(f'v_mov_b32 v{T[0]}, s{sST+2*i}')
        a(f'buffer_store_dword v{T[0]}, v{T[1]}, {srd(sWS)}, 0 offen offset:{4*i}')
a.label('L_end')
a('s_endpgm')

body = a.finalize()
hdr = open('cdna_kernels/' + NAME + '.s.ref').read().split('\n')
out = []
for l in hdr:
    if l.startswith('; @launch'):
        out.append('; @launch grid=(196,1,1) block=(512,1,1) lds=163840')
    elif l.startswith(';'):
        out.append(l)
    else:
        break
out.append('.amdgcn_target "amdgcn-amd-amdhsa--gfx950"')
out.append('.text')
out.append(f'.globl {NAME}_kernel')
out.append('.p2align 8')
out.append(f'.type {NAME}_kernel,@function')
out.append(f'{NAME}_kernel:')
for l in body:
    out.append(l if l.endswith(':') else '    ' + l)
out.append(f'''.section .rodata,"a"
.p2align 6
.amdhsa_kernel {NAME}_kernel
  .amdhsa_next_free_vgpr 256
  .amdhsa_next_free_sgpr 102
  .amdhsa_accum_offset 256
  .amdhsa_group_segment_fixed_size 0
  .amdhsa_kernarg_size 64
  .amdhsa_user_sgpr_count 2
  .amdhsa_user_sgpr_kernarg_segment_ptr 1
  .amdhsa_system_sgpr_workgroup_id_x 1
.end_amdhsa_kernel''')
print('\n'.join(out))
```

```python
import sys, struct, math
from asmlib import Asm

NAME = "standalone__modern_conv_block_replknet__vision"
def fbits(x): return struct.unpack('<I', struct.pack('<f', x))[0]
def opt(name, default=None):
    for x in sys.argv:
        if x == '--' + name: return True
        if x.startswith('--' + name + '='): return x.split('=', 1)[1]
    return default
STAMP = opt('stamp'); CYC = opt('cyc')
STPOL = ' ' + opt('stpol', 'sc1').replace('_', ' ') if opt('stpol', 'sc1') != 'none' else ''

XPOL = ' ' + opt('xpol').replace('_', ' ') if opt('xpol') else ''
XROW = 3840
XB = 73728
PB = [0, 24576, 49152, 139264, 73728, 98304]
TB = 139264
MARK = 0x40000000
S_P = 0
S_R = 24576
S_IY = 49152
S_IX = 73728

k0 = math.sqrt(2.0 / math.pi); k1 = 0.044715
c0 = 2 * k0 / math.log(2.0); c1 = c0 * k1
ga = c1 ** (1.0 / 3.0)
gc = -c0 / ga

sX, sDL, sDS, sW1, sW2, sOUT = 16, 20, 24, 28, 32, 36
sWV, sY0, sX0, sT0, sT1, sT2, sT3 = 40, 41, 42, 43, 44, 45, 46
sH13, sWI = 47, 3
sCA, sCC = 48, 50
sWS = 52
sGY, sXM = 56, 57
sWA, sWBm = 58, 59
sO0, sO1 = 60, 61
sRD1, sRD2 = 62, 63
sST = 64
def srd(b): return f's[{b}:{b+3}]'
vO, vL, vY, vK, vG, vF1, vF2 = 0, 48, [72, 88], [104, 120], 136, 144, 168
vLR, vRES, vID = 192, 204, 228
vAW1 = [236, 237]; vAW2 = 238
vSW = [239, 240]; vSR = [241, 242, 243]
vL16 = 244; vDW1 = 245
vAL = [246, 247]
vARL = 248; vAW1R, vAW2R = 249, 237
T = [250, 251, 252, 253, 254]
vLN = 255
vXO = [192, 193, 194]
vAF, vAE, vAO, vIDX, vM0, vM1, vTF, vTE = 192, 193, 194, 195, 196, 197, 198, 199
vT2 = [200, 201, 202, 203]
vACC, vAFR, vB = 0, 84, 144
def vr(b, n): return f'v[{b}:{b+n-1}]'

a = Asm()
PRO = opt('pro')
def pstamp(i):
    if STAMP and PRO:
        a(f'{"s_memtime" if CYC else "s_memrealtime"} s[{sST+2*i}:{sST+2*i+1}]')
def stamp(i):
    if STAMP and not (PRO and 5 <= i <= 14):
        a(f'{"s_memtime" if CYC else "s_memrealtime"} s[{sST+2*i}:{sST+2*i+1}]')
NST = 16
def mksrd(b, lo, n):
    a(f'''
    s_mov_b32 s{b}, s{lo}
    s_mov_b32 s{b+1}, s{lo+1}
    s_mov_b32 s{b+2}, {n}
    s_mov_b32 s{b+3}, 0x00020000
    ''')

a(f'''
s_load_dwordx4 s[4:7], s[0:1], 0
s_load_dwordx4 s[8:11], s[0:1], 16
s_load_dwordx4 s[12:15], s[0:1], 32
''')
if STAMP:
    a(f's_load_dwordx2 s[{sWS}:{sWS+1}], s[0:1], 56')
    for i in range(NST): a(f's_mov_b32 s{sST+2*i}, 0')
stamp(0)
a(f'''
s_cmp_ge_u32 s2, 256
s_cbranch_scc1 L_end
''')
if opt('nomap'):
    a('''
    s_and_b32 s3, s2, 31
    s_lshl_b32 s3, s3, 3
    s_lshr_b32 s2, s2, 5
    s_add_u32 s2, s2, s3
    ''')
a(f'''
v_lshrrev_b32 v{T[0]}, 6, v0
v_and_b32 v{vLN}, 63, v0
s_and_b32 s{sT0}, s2, 3
s_lshr_b32 s{sT1}, s2, 3
v_readfirstlane_b32 s{sWV}, v{T[0]}
s_and_b32 s{sT2}, s2, 1
s_add_u32 s{sT2}, s{sT2}, s{sT1}
s_cmp_ge_u32 s{sT2}, 32
s_cbranch_scc1 L_end
s_mul_i32 s{sT0}, s{sT0}, 63
s_add_u32 s{sT0}, s{sT0}, 1
s_lshr_b32 s{sT0}, s{sT0}, 1
s_add_u32 s{sT0}, s{sT0}, s{sT1}
s_mul_i32 s{sT1}, s{sT0}, 9363
s_lshr_b32 s{sT1}, s{sT1}, 16
s_mul_i32 s{sT2}, s{sT1}, 7
s_sub_u32 s{sT0}, s{sT0}, s{sT2}
s_bfe_u32 s{sT2}, s2, 0x10002
s_mul_i32 s{sT2}, s{sT2}, 7
s_add_u32 s{sT0}, s{sT0}, s{sT2}
s_lshl_b32 s{sX0}, s{sT0}, 4
s_mul_i32 s{sY0}, s{sT1}, {112*7282}
s_add_u32 s{sH13}, s{sY0}, {112*7282}
s_lshr_b32 s{sY0}, s{sY0}, 16
s_lshr_b32 s{sH13}, s{sH13}, 16
s_sub_u32 s{sH13}, s{sH13}, s{sY0}
s_and_b32 s{sWI}, s{sWV}, 3
s_cmp_ge_u32 s{sWV}, 4
s_cbranch_scc1 L_Y
''')

def consts():
    a(f'''
    s_mov_b32 s{sCA}, {fbits(ga):#x}
    s_mov_b32 s{sCA+1}, {fbits(ga):#x}
    s_mov_b32 s{sCC}, {fbits(gc):#x}
    s_mov_b32 s{sCC+1}, {fbits(gc):#x}
    ''')
    if STAMP:
        a(f'''
        s_mov_b32 s{sWS+2}, 0x10000000
        s_mov_b32 s{sWS+3}, 0x00020000
        ''')
def wdma_setup():
    a(f'''
    v_lshrrev_b32 v{T[0]}, 3, v{vLN}
    v_mul_u32_u24 v{T[0]}, 768, v{T[0]}
    v_bfe_u32 v{T[1]}, v{vLN}, 4, 1
    v_lshlrev_b32 v{T[1]}, 2, v{T[1]}
    v_and_b32 v{T[2]}, 7, v{vLN}
    v_xor_b32 v{T[1]}, v{T[1]}, v{T[2]}
    v_lshl_add_u32 v{vDW1}, v{T[1]}, 4, v{T[0]}
    v_lshlrev_b32 v{vL16}, 4, v{vLN}
    s_mul_i32 s{sWA}, s{sWI}, {3*6144}
    s_mul_i32 s{sWBm}, s{sWI}, 3072
    ''')
def wdma(p):
    for i in range(3):
        a(f'''
        s_add_u32 m0, s{sWBm}, {PB[p] + 1024*i}
        s_add_u32 s{sT0}, s{sWA}, {6144*i + 128*p}
        buffer_load_dwordx4 v{vDW1}, {srd(sW1)}, s{sT0} offen lds
        ''')
    a(f'''
    s_add_u32 m0, s{sWBm}, {PB[p] + 12288}
    s_add_u32 s{sT0}, s{sWBm}, {12288*p}
    ''')
    for i in range(3):
        a(f'buffer_load_dwordx4 v{vL16}, {srd(sW2)}, s{sT0} offen offset:{1024*i} lds')

def mlp_addr_setup(tile_row_sgpr, img_sgpr, parity_sgpr):
    a(f'''
    v_lshrrev_b32 v{T[4]}, 5, v{vLN}
    v_bfe_u32 v{T[0]}, v{vLN}, 2, 2
    v_bfe_u32 v{T[1]}, v{vLN}, 4, 1
    v_and_b32 v{T[2]}, 3, v{vLN}
    v_lshl_add_u32 v{T[3]}, v{T[4]}, 3, v{T[0]}
    v_lshlrev_b32 v{T[3]}, 7, v{T[3]}
    v_lshl_add_u32 v{T[3]}, v{T[1]}, 5, v{T[3]}
    v_lshl_add_u32 v{T[3]}, v{T[2]}, 3, v{T[3]}
    v_bfe_u32 v{T[2]}, v{vLN}, 3, 1
    v_lshl_add_u32 v{vAW1[0]}, v{T[2]}, 6, v{T[3]}
    v_lshl_add_u32 v{T[3]}, v{T[4]}, 2, v{T[0]}
    v_mul_u32_u24 v{T[3]}, 192, v{T[3]}
    v_lshl_add_u32 v{T[3]}, v{T[1]}, 4, v{T[3]}
    v_and_b32 v{T[0]}, 1, v{vLN}
    v_lshl_add_u32 v{T[3]}, v{T[0]}, 5, v{T[3]}
    v_bfe_u32 v{T[0]}, v{vLN}, 1, 1
    v_lshl_add_u32 v{vAW2}, v{T[0]}, 3, v{T[3]}
    v_add_u32 v{vAW2}, 12288, v{vAW2}
    ''')
    if parity_sgpr is None:
        a(f'v_xor_b32 v{vAW1[1]}, 64, v{vAW1[0]}')
    else:
        a(f'''
        s_lshl_b32 s{sT0}, s{parity_sgpr}, 6
        v_xor_b32 v{vAW1[0]}, s{sT0}, v{vAW1[0]}
        s_mul_i32 s{sT0}, s{parity_sgpr}, 6144
        v_add_u32 v{vAW2}, s{sT0}, v{vAW2}
        ''')
    a(f'''
    v_and_b32 v{T[0]}, 15, v{vLN}
    v_bfe_u32 v{T[2]}, v{vLN}, 2, 2
    v_xor_b32 v{T[2]}, v{T[4]}, v{T[2]}
    v_mul_u32_u24 v{T[3]}, 192, v{T[0]}
    v_lshl_add_u32 v{T[3]}, v{T[2]}, 4, v{T[3]}
    v_mul_u32_u24 v{T[2]}, {XROW}, v{T[1]}
    s_mul_i32 s{sT0}, s{tile_row_sgpr}, {XROW}
    s_add_u32 s{sT0}, s{sT0}, {XB}
    v_add3_u32 v{vAL[0]}, v{T[3]}, v{T[2]}, s{sT0}
    v_xor_b32 v{vAL[1]}, 32, v{vAL[0]}
    s_add_u32 s{sT0}, s{tile_row_sgpr}, s{sY0}
    s_mul_i32 s{sT0}, s{sT0}, 224
    s_add_u32 s{sT0}, s{sT0}, s{sX0}
    s_mul_i32 s{sO0}, s{sT0}, 192
    s_add_u32 s{sO1}, s{sO0}, 43008
    v_and_b32 v{T[0]}, 31, v{vLN}
    v_bfe_u32 v{T[2]}, v{vLN}, 1, 2
    v_lshlrev_b32 v{T[3]}, 1, v{T[4]}
    v_xor_b32 v{T[2]}, v{T[3]}, v{T[2]}
    v_mul_u32_u24 v{T[3]}, 192, v{T[0]}
    v_lshl_add_u32 v{T[3]}, v{T[2]}, 4, v{T[3]}
    v_add_u32 v{vSW[0]}, s{img_sgpr}, v{T[3]}
    v_xor_b32 v{vSW[1]}, 16, v{vSW[0]}
    ''')
    for j in range(3):
        a(f'''
        v_add_u32 v{T[0]}, {64*j}, v{vLN}
        v_mul_u32_u24 v{T[2]}, 171, v{T[0]}
        v_bfe_u32 v{T[2]}, v{T[2]}, 12, 2
        v_xor_b32 v{T[0]}, v{T[0]}, v{T[2]}
        v_lshlrev_b32 v{T[0]}, 4, v{T[0]}
        v_add_u32 v{vSR[j]}, s{img_sgpr}, v{T[0]}
        ''')
    a(f'''
    v_bfe_u32 v{T[0]}, v{vLN}, 2, 1
    v_bfe_u32 v{T[1]}, v{vLN}, 1, 1
    v_bfe_u32 v{T[2]}, v{vLN}, 3, 1
    v_lshl_add_u32 v{T[0]}, v{T[0]}, 2, v{T[1]}
    v_lshl_add_u32 v{T[0]}, v{T[2]}, 1, v{T[0]}
    v_bfe_u32 v{T[1]}, v{vLN}, 4, 1
    v_xor_b32 v{T[1]}, v{T[1]}, v{T[4]}
    v_lshl_add_u32 v{T[0]}, v{T[1]}, 3, v{T[0]}
    v_and_b32 v{T[1]}, 1, v{vLN}
    v_lshlrev_b32 v{T[1]}, 4, v{T[1]}
    v_mov_b32 v{T[2]}, 0x3f80
    v_lshlrev_b32 v{T[1]}, v{T[1]}, v{T[2]}
    ''')
    for i in range(8):
        a(f'''
        v_cmp_eq_u32 vcc, {i}, v{T[0]}
        v_cndmask_b32 v{vID+i}, 0, v{T[1]}, vcc
        ''')
def res_loads(extra_sgpr=None):
    a(f'''
    v_bfe_u32 v{T[1]}, v{vLN}, 4, 1
    v_mul_u32_u24 v{T[1]}, 43008, v{T[1]}
    v_and_b32 v{T[0]}, 15, v{vLN}
    v_mul_u32_u24 v{T[0]}, 192, v{T[0]}
    v_lshrrev_b32 v{T[2]}, 5, v{vLN}
    v_lshl_add_u32 v{T[0]}, v{T[2]}, 4, v{T[0]}
    v_add_u32 v{T[0]}, v{T[0]}, v{T[1]}
    ''')
    if extra_sgpr is not None:
        a(f'v_add_u32 v{T[0]}, s{extra_sgpr}, v{T[0]}')
    for ks in range(6):
        a(f'buffer_load_dwordx4 {vr(vRES+4*ks,4)}, v{T[0]}, {srd(sX)}, s{sO0} offen offset:{32*ks}')

def ln_finish(S, Q, sc, bi):
    a(f'''
    v_mul_f32 v{S}, {fbits(1.0/96):#x}, v{S}
    v_mul_f32 v{Q}, {fbits(1.0/96):#x}, v{Q}
    v_fma_f32 v{Q}, -v{S}, v{S}, v{Q}
    v_max_f32 v{Q}, 0, v{Q}
    v_add_f32 v{Q}, {fbits(1e-5):#x}, v{Q}
    v_rsq_f32 v{Q}, v{Q}
    v_mul_f32 v{sc}, {fbits(ga):#x}, v{Q}
    v_mul_f32 v{bi}, -v{S}, v{sc}
    ''')
def ln(raw, n, U, dst, rows16):
    S, Q, ONE = T[1], T[3], T[4]
    sc, bi = T[0], T[2]
    a(f'v_mov_b32 v{ONE}, 0x3f803f80')
    for i in range(n):
        a(f'v_dot2_f32_bf16 v{S}, v{raw+i}, v{ONE}, {"0" if i == 0 else f"v{S}"}')
        a(f'v_dot2_f32_bf16 v{Q}, v{raw+i}, v{raw+i}, {"0" if i == 0 else f"v{Q}"}')
    un = []
    for i in range(n):
        un.append(f'v_lshlrev_b32 v{U+2*i}, 16, v{raw+i}')
        un.append(f'v_and_b32 v{U+2*i+1}, 0xffff0000, v{raw+i}')
    def fill(k):
        for _ in range(k):
            if un: a(un.pop(0))
    fill(3)
    a(f'v_permlane32_swap_b32 v{S}, v{Q}')
    a(f'v_add_f32 v{S}, v{S}, v{Q}')
    a(f'v_mov_b32 v{Q}, v{S}')
    fill(2)
    if rows16:
        a(f'v_permlane16_swap_b32 v{S}, v{Q}')
        a(f'v_add_f32 v{S}, v{S}, v{Q}')
        a(f'v_mov_b32 v{Q}, v{S}')
        fill(2)
    a(f'v_permlane32_swap_b32 v{S}, v{Q}')
    ln_finish(S, Q, sc, bi)
    fill(1000)
    for i in range(n):
        a(f'v_pk_fma_f32 {vr(U+2*i,2)}, {vr(U+2*i,2)}, {vr(sc,2)}, {vr(bi,2)} op_sel_hi:[1,0,0]')
    for i in range(n):
        a(f'v_cvt_pk_bf16_f32 v{dst+i}, v{U+2*i}, v{U+2*i+1}')

def region(p): return 0 if p < 3 else (139264 if p == 3 else 73728)

def mlp(chunks, hooks, xmode):
    N = len(chunks)
    cur = {'w1': 0, 'w2': 0}
    def move(kind, p):
        d = region(p) - cur[kind]
        if d:
            regs = (vAW1 if xmode else vAW1[:1]) if kind == 'w1' else [vAW2]
            for r in regs:
                if d > 0: a(f'v_add_u32 v{r}, {d}, v{r}')
                else: a(f'v_subrev_u32 v{r}, {-d}, v{r}')
            cur[kind] = region(p)
    def w1reads(c):
        p, cc = chunks[c]
        for ks in range(6):
            off = PB[p] - region(p) + ks * 2048
            a(f'ds_read_b64_tr_b16 {vr(vF1+4*ks,2)}, v{vAW1[cc]} offset:{off}')
            a(f'ds_read_b64_tr_b16 {vr(vF1+4*ks+2,2)}, v{vAW1[cc]} offset:{off+512}')
    def w2reads(c):
        p, cc = chunks[c]
        for i in range(6):
            ks2, mt = i // 3, i % 3
            off = PB[p] - region(p) + cc * 6144 + ks2 * 3072 + mt * 64
            a(f'ds_read_b64_tr_b16 {vr(vF2+4*i,2)}, v{vAW2} offset:{off}')
            a(f'ds_read_b64_tr_b16 {vr(vF2+4*i+2,2)}, v{vAW2} offset:{off+1536}')
    def g1(c, ks):
        Y = vY[c & 1]
        a(f'v_mfma_f32_32x32x16_bf16 {vr(Y,16)}, {vr(vF1+4*ks,4)}, {vr(vL+4*ks,4)}, {"0" if ks == 0 else vr(Y,16)}')
    def g2(i):
        ks2, mt = i // 3, i % 3
        a(f'v_mfma_f32_32x32x16_bf16 {vr(vO+16*mt,16)}, {vr(vF2+4*i,4)}, {vr(vG+4*ks2,4)}, {vr(vO+16*mt,16)}')
    def resm(ks):
        j, mt = ks // 3, ks % 3
        a(f'v_mfma_f32_32x32x16_bf16 {vr(vO+16*mt,16)}, {vr(vID+4*j,4)}, {vr(vRES+4*(2*mt+j),4)}, {"0" if j == 0 else vr(vO+16*mt,16)}')
    def hook(k):
        if k in hooks: hooks[k]()
    w1reads(0)
    hook('start')
    a('s_waitcnt lgkmcnt(0)')
    for ks in range(6): g1(0, ks)
    move('w1', chunks[1][0])
    w1reads(1)
    w2reads(0)
    for c in range(N + 1):
        Y, K = vY[c & 1], vK[c & 1]
        Yp, Kp = vY[(c - 1) & 1], vK[(c - 1) & 1]
        if c >= 1:
            for i in range(8):
                a(f'v_pk_mul_f32 {vr(Kp+2*i,2)}, {vr(Yp+2*i,2)}, {vr(Kp+2*i,2)}')
        if c < N:
            for i in range(8):
                a(f'v_pk_fma_f32 {vr(K+2*i,2)}, {vr(Y+2*i,2)}, {vr(Y+2*i,2)}, s[{sCC}:{sCC+1}] neg_lo:[1,0,0] neg_hi:[1,0,0]')
            for i in range(8):
                a(f'v_pk_mul_f32 {vr(K+2*i,2)}, {vr(Y+2*i,2)}, {vr(K+2*i,2)}')
        cv = [f'v_cvt_pk_bf16_f32 v{vG+i}, v{Kp+2*i}, v{Kp+2*i+1}' for i in range(8)] if c >= 1 else []
        if c == N:
            for t in cv: a(t)
            a('s_waitcnt lgkmcnt(0)')
            for i in range(6): g2(i)
            break
        ex = [f'v_exp_f32 v{K+i}, v{K+i}' for i in range(16)]
        rc = [f'v_rcp_f32 v{K+i}, v{K+i}' for i in range(16)]
        last = c + 1 >= N
        if c + 2 < N: move('w1', chunks[c + 2][0])
        if c >= 1: move('w2', chunks[c][0])
        if c == 0:
            gaps = [ex[0:3], ex[3:6], ex[6:9], ex[9:12], ex[12:15], ex[15:16]]
            a('s_waitcnt lgkmcnt(12)')
            for j in range(6):
                g1(1, j)
                for t in gaps[j]: a(t)
        elif not last:
            gaps = [cv[0:4] + ex[0:1], cv[4:8] + ex[1:2], ex[2:5], ex[5:8], ex[8:11], ex[11:14], ex[14:16]]
            a('s_waitcnt lgkmcnt(12)' if c >= 2 else 's_waitcnt lgkmcnt(0)')
            for j in range(7):
                if j < 6: g1(c + 1, j)
                else: g2(0)
                if j == 5: a('s_waitcnt lgkmcnt(0)')
                for t in gaps[j]: a(t)
        else:
            for t in cv: a(t)
            for t in ex[0:4]: a(t)
            a('s_waitcnt lgkmcnt(0)')
            gaps = [ex[4:8], ex[8:12], ex[12:16]]
            for j in range(3):
                g2(j)
                for t in gaps[j]: a(t)
        hook(('preW1', c))
        if c + 2 < N: w1reads(c + 2)
        for i in range(8):
            a(f'v_pk_fma_f32 {vr(K+2*i,2)}, {vr(K+2*i,2)}, s[{sCA}:{sCA+1}], s[{sCA}:{sCA+1}]')
        if c == 0:
            gp = [rc[0:3], rc[3:6], rc[6:9], rc[9:12], rc[12:14], rc[14:16]]
            for j in range(6):
                resm(j)
                for t in gp[j]: a(t)
        elif not last:
            gp = [rc[0:3], rc[3:6], rc[6:9], rc[9:12], rc[12:16]]
            for j in range(5):
                g2(j + 1)
                for t in gp[j]: a(t)
        else:
            gp = [rc[0:3], rc[3:6], rc[6:16]]
            for j in range(3):
                g2(j + 3)
                if j == 2: w2reads(c)
                for t in gp[j]: a(t)
        if c >= 1 and not last: w2reads(c)
        hook(('end', c))

def tile_epilogue():
    P = vY[0]
    for mt in range(3):
        for i in range(8):
            a(f'v_cvt_pk_bf16_f32 v{P+8*mt+i}, v{vO+16*mt+2*i}, v{vO+16*mt+2*i+1}')
        a(f'ds_write_b128 v{vSW[0]}, {vr(P+8*mt,4)} offset:{64*mt}')
        a(f'ds_write_b128 v{vSW[1]}, {vr(P+8*mt+4,4)} offset:{64*mt}')
    a('s_waitcnt lgkmcnt(0)')
    Q = vK[0]
    for s in range(2):
        for j in range(3):
            a(f'ds_read_b128 {vr(Q+4*(3*s+j),4)}, v{vSR[j]} offset:{3072*s}')
    for s in range(2):
        for j in range(3):
            a(f's_waitcnt lgkmcnt({5-(3*s+j)})')
            a(f'buffer_store_dwordx4 {vr(Q+4*(3*s+j),4)}, v{vL16}, {srd(sOUT)}, s{sO1 if s else sO0} offen offset:{1024*j}{STPOL}')

def finish():
    if STAMP:
        a('s_waitcnt vmcnt(0)')
        stamp(15)
        a('s_waitcnt lgkmcnt(0)')
        a(f'''
        s_lshl_b32 s{sT0}, s2, 3
        s_add_u32 s{sT0}, s{sT0}, s{sWV}
        s_lshl_b32 s{sT0}, s{sT0}, 6
        v_mov_b32 v{T[1]}, s{sT0}
        s_mov_b64 exec, 1
        ''')
        for i in range(NST):
            a(f'v_mov_b32 v{T[0]}, s{sST+2*i}')
            a(f'buffer_store_dword v{T[0]}, v{T[1]}, {srd(sWS)}, 0 offen offset:{4*i}')
    a('s_endpgm')

def bar(i=None):
    a('s_barrier')
    if i is not None: stamp(i)

a(f'''
v_mul_u32_u24 v{T[0]}, 43, v{vLN}
v_lshrrev_b32 v{T[0]}, 9, v{T[0]}
v_mul_u32_u24 v{T[1]}, 12, v{T[0]}
v_sub_u32 v{T[1]}, v{vLN}, v{T[1]}
s_mul_i32 s{sT1}, s{sWI}, 5
v_add_u32 v{T[0]}, s{sT1}, v{T[0]}
v_bfe_u32 v{T[2]}, v{T[0]}, 2, 2
v_xor_b32 v{T[1]}, v{T[1]}, v{T[2]}
s_sub_u32 s{sT1}, s{sX0}, 2
v_add_u32 v{T[0]}, s{sT1}, v{T[0]}
v_mul_u32_u24 v{T[2]}, 192, v{T[0]}
v_lshl_add_u32 v{T[2]}, v{T[1]}, 4, v{T[2]}
v_mov_b32 v{T[3]}, {MARK}
v_cmp_gt_u32 vcc, 224, v{T[0]}
v_cndmask_b32 v{vXO[0]}, v{T[3]}, v{T[2]}, vcc
s_mul_i32 s{sXM}, s{sWI}, 960
s_add_u32 s{sXM}, s{sXM}, {XB}
s_sub_u32 s{sGY}, s{sY0}, 2
v_mov_b32 v{vXO[1]}, v{T[3]}
v_mov_b32 v{vXO[2]}, v{T[3]}
s_waitcnt lgkmcnt(0)
''')
pstamp(5)
mksrd(sX, 4, 224*224*192)
xr = [0]
def xrows(n):
    a('s_mov_b32 exec_hi, 0x0fffffff')
    for _ in range(n):
        t = xr[0]; xr[0] += 1
        a(f'''
        s_mul_i32 s{sT3}, s{sGY}, 43008
        s_cmp_lt_u32 s{sGY}, 224
        s_cselect_b32 s{sT3}, s{sT3}, {MARK}
        s_add_u32 m0, s{sXM}, {t*XROW}
        v_add_u32 v{vXO[1 + (t & 1)]}, s{sT3}, v{vXO[0]}
        s_add_u32 s{sGY}, s{sGY}, 1
        buffer_load_dwordx4 v{vXO[1 + (t & 1)]}, {srd(sX)}, 0 offen{XPOL} lds
        ''')
    a('s_mov_b32 exec_hi, -1')
xrows(12)
stamp(1)
mksrd(sW1, 10, 73728); mksrd(sW2, 12, 73728); mksrd(sOUT, 14, 224*224*192)
consts()
wdma_setup()
a(f'''
s_lshl_b32 s{sT3}, s{sWI}, 1
s_mul_i32 s{sT2}, s{sWI}, 6144
s_add_u32 s{sT2}, s{sT2}, {S_IX}
''')
mlp_addr_setup(sT3, sT2, None)
pstamp(6)
a('s_waitcnt vmcnt(11)')
pstamp(8)
a('s_waitcnt vmcnt(8)')
pstamp(9)
a('s_waitcnt vmcnt(4)')
pstamp(7)
if PRO:
    a('s_waitcnt vmcnt(0)')
    pstamp(10)
bar(2)
wdma(0)
xrows(5)
a('s_waitcnt vmcnt(11)')
bar(3)
wdma(1); wdma(2); wdma(3)
res_loads()
bar(4)
for ks in range(6):
    a(f'ds_read_b128 {vr(vL+4*ks,4)}, v{vAL[ks&1]} offset:{64*(ks>>1)}')
a('s_waitcnt lgkmcnt(0)')
ln(vL, 24, 72, vL, False)
stamp(5)
a('s_waitcnt vmcnt(24)')
bar(6)
def hx_b4():
    a('s_waitcnt vmcnt(6)'); bar(7)
def hx_b5():
    a('s_waitcnt vmcnt(0)'); bar(8)
XH = {'start': lambda: wdma(4), ('preW1', 0): hx_b4, ('preW1', 1): hx_b5, ('end', 1): lambda: bar(9),
      ('end', int(opt('b7', 4))): lambda: bar(10), ('end', 9): lambda: (a('s_waitcnt lgkmcnt(0)'), bar(11)), ('end', 10): lambda: bar(12)}
mlp([(c >> 1, c & 1) for c in range(12)], XH, True)
stamp(13)
tile_epilogue()
finish()

a.label('L_Y')
pstamp(8)
a(f'''
; table DMA offsets: Z5: (lane-15)*192 ; Z3: i=lane/5-3, j=lane%5 valid 1..3
v_subrev_u32 v{T[0]}, 15, v{vLN}
v_mul_i32_i24 v{vT2[0]}, 192, v{T[0]}
v_mul_u32_u24 v{T[0]}, 52, v{vLN}
v_lshrrev_b32 v{T[0]}, 8, v{T[0]}
v_mul_u32_u24 v{T[1]}, 5, v{T[0]}
v_sub_u32 v{T[1]}, v{vLN}, v{T[1]}
v_subrev_u32 v{T[0]}, 4, v{T[0]}
v_subrev_u32 v{T[1]}, 1, v{T[1]}
v_max_u32 v{T[2]}, v{T[0]}, v{T[1]}
v_mul_i32_i24 v{T[0]}, 3, v{T[0]}
v_add_u32 v{T[0]}, v{T[0]}, v{T[1]}
v_mul_i32_i24 v{T[0]}, 192, v{T[0]}
v_mov_b32 v{T[3]}, {MARK}
v_cmp_gt_u32 vcc, 3, v{T[2]}
v_cndmask_b32 v{vT2[1]}, v{T[3]}, v{T[0]}, vcc
s_mul_i32 s{sT2}, s{sWI}, 6144
s_add_u32 s{sT2}, s{sT2}, {TB}
s_lshl_b32 s{sT1}, s{sWI}, 4
s_waitcnt lgkmcnt(0)
''')
pstamp(5)
mksrd(sDS, 8, 4800); mksrd(sDL, 6, 1728)
for gi in range(3):
    a(f'''
    s_add_u32 m0, s{sT2}, {2048*gi}
    s_add_u32 s{sT0}, s{sT1}, {64*gi}
    buffer_load_dwordx4 v{vT2[0]}, {srd(sDS)}, s{sT0} offen lds
    s_add_u32 m0, s{sT2}, {2048*gi + 1024}
    s_nop 0
    buffer_load_dwordx4 v{vT2[1]}, {srd(sDL)}, s{sT0} offen lds
    ''')
stamp(1)
mksrd(sX, 4, 224*224*192); mksrd(sW1, 10, 73728); mksrd(sW2, 12, 73728); mksrd(sOUT, 14, 224*224*192)
consts()
wdma_setup()
a(f'''
v_and_b32 v{T[0]}, 3, v{vLN}
v_bfe_u32 v{T[1]}, v{vLN}, 3, 1
v_lshl_add_u32 v{T[4]}, v{T[1]}, 2, v{T[0]}
v_lshlrev_b32 v{T[4]}, 1, v{T[4]}
v_add_u32 v{T[4]}, s{sT2}, v{T[4]}
v_mul_u32_u24 v{vIDX}, 0x5555, v{T[0]}
v_sub_u32 v{vM1}, 0, v{T[1]}
v_not_b32 v{vM0}, v{vM1}
v_bfe_u32 v{T[0]}, v{vLN}, 2, 1
v_lshrrev_b32 v{T[1]}, 5, v{vLN}
v_sub_u32 v{T[1]}, v{T[1]}, v{T[0]}
v_add_u32 v{T[1]}, 3, v{T[1]}
v_mul_u32_u24 v{T[1]}, 80, v{T[1]}
v_bfe_u32 v{T[2]}, v{vLN}, 4, 1
v_lshl_add_u32 v{T[1]}, v{T[2]}, 5, v{T[1]}
v_add_u32 v{vTF}, v{T[1]}, v{T[4]}
v_lshrrev_b32 v{T[1]}, 4, v{vLN}
v_lshlrev_b32 v{T[1]}, 1, v{T[1]}
v_sub_u32 v{T[1]}, v{T[1]}, v{T[0]}
v_add_u32 v{T[1]}, 1, v{T[1]}
v_mul_u32_u24 v{T[1]}, 80, v{T[1]}
v_add3_u32 v{vTE}, v{T[1]}, v{T[4]}, 64
v_and_b32 v{T[0]}, 15, v{vLN}
v_lshrrev_b32 v{T[1]}, 4, v{vLN}
v_add_u32 v{T[2]}, v{T[0]}, v{T[1]}
v_bfe_u32 v{T[3]}, v{T[2]}, 2, 2
v_xor_b32 v{T[3]}, s{sWI}, v{T[3]}
v_mul_u32_u24 v{T[2]}, 192, v{T[2]}
v_lshl_add_u32 v{vAF}, v{T[3]}, 4, v{T[2]}
v_add_u32 v{vAF}, {XB}, v{vAF}
v_add_u32 v{T[2]}, 4, v{T[0]}
v_bfe_u32 v{T[3]}, v{T[2]}, 2, 2
v_xor_b32 v{T[3]}, s{sWI}, v{T[3]}
v_mul_u32_u24 v{T[2]}, 192, v{T[2]}
v_lshl_add_u32 v{vAE}, v{T[3]}, 4, v{T[2]}
v_add_u32 v{vT2[2]}, {XB}, v{vAE}
v_mul_u32_u24 v{T[2]}, {XROW}, v{T[1]}
v_add_u32 v{vAE}, v{vT2[2]}, v{T[2]}
v_bfe_u32 v{T[3]}, v{T[0]}, 2, 2
v_xor_b32 v{T[4]}, s{sWI}, v{T[3]}
v_mul_u32_u24 v{T[2]}, 192, v{T[0]}
v_add_u32 v{T[2]}, {XB}, v{T[2]}
v_lshl_add_u32 v{vAO}, v{T[4]}, 4, v{T[2]}
v_xor_b32 v{T[3]}, v{T[1]}, v{T[3]}
v_lshl_add_u32 v{vARL}, v{T[3]}, 4, v{T[2]}
v_bfe_u32 v{T[1]}, v{vLN}, 4, 1
v_mul_u32_u24 v{T[1]}, {XROW}, v{T[1]}
v_lshrrev_b32 v{T[3]}, 5, v{vLN}
v_lshl_add_u32 v{T[1]}, v{T[3]}, 3, v{T[1]}
v_add_u32 v{vAO}, v{vAO}, v{T[1]}
s_mul_i32 s{sT0}, s{sWI}, {XROW}
v_add_u32 v{vT2[3]}, s{sT0}, v{vARL}
''')
a(f'''
s_and_b32 s{sT3}, s{sWI}, 2
s_add_u32 s{sT3}, s{sT3}, 8
s_lshr_b32 s{sT2}, s{sWI}, 1
s_mul_i32 s{sT2}, s{sT2}, 6144
s_add_u32 s{sT2}, s{sT2}, {S_IY}
s_and_b32 s{sT1}, s{sWI}, 1
''')
mlp_addr_setup(sT3, sT2, sT1)
a(f'''
v_lshrrev_b32 v{T[4]}, 4, v{vLN}
v_bfe_u32 v{T[0]}, v{vLN}, 2, 2
v_and_b32 v{T[2]}, 3, v{vLN}
v_lshl_add_u32 v{T[3]}, v{T[4]}, 3, v{T[0]}
v_lshlrev_b32 v{T[3]}, 7, v{T[3]}
v_lshl_add_u32 v{T[3]}, v{T[2]}, 3, v{T[3]}
v_bfe_u32 v{T[1]}, v{vLN}, 3, 1
v_xor_b32 v{T[1]}, s{sT1}, v{T[1]}
v_lshl_add_u32 v{vAW1R}, v{T[1]}, 6, v{T[3]}
v_lshl_add_u32 v{T[3]}, v{T[4]}, 2, v{T[0]}
v_mul_u32_u24 v{T[3]}, 192, v{T[3]}
v_mul_u32_u24 v{T[2]}, 48, v{T[2]}
s_mul_i32 s{sT0}, s{sT1}, 6144
s_add_u32 s{sT0}, s{sT0}, 12288
v_add3_u32 v{vAW2R}, v{T[3]}, v{T[2]}, s{sT0}
s_cmp_ge_u32 s{sWI}, 2
s_cselect_b32 s{sT0}, {PB[4]}, 0
v_add_u32 v{vAW1R}, s{sT0}, v{vAW1R}
v_add_u32 v{vAW2R}, s{sT0}, v{vAW2R}
s_cselect_b32 s{sRD2}, {PB[3]-PB[4]-PB[2]}, 0
s_add_u32 s{sRD2}, s{sRD2}, {PB[2]}
''')
for i in range(84):
    a(f'v_mov_b32 v{vACC+i}, 0')
pstamp(6)
a('s_waitcnt vmcnt(0)')
pstamp(7)
for gi in range(3):
    R = vB + 16 * gi
    o = 2048 * gi
    for d in range(3):
        for pp in range(2):
            a(f'ds_read_u16 v{R+2*d+pp}, v{vTF} offset:{o + 160*d + 16*pp}')
    for par in range(2):
        for pp in range(2):
            a(f'ds_read_u16 v{R+6+2*par+pp}, v{vTE} offset:{o + 80*(pp - 2*par + 2)}')
    for d in range(3):
        for pp in range(2):
            a(f'ds_read_u16 v{R+10+2*d+pp}, v{vTF} offset:{o + 1024 + 160*d + 16*pp}')
    a('s_waitcnt lgkmcnt(0)')
    A = vAFR + 20 * gi
    for i in range(6):
        a(f'v_lshl_or_b32 v{R+i}, v{R+10+i}, 16, v{R+i}')
    for i in range(10):
        a(f'v_and_b32 v{A+2*i}, v{vM0}, v{R+i}')
        a(f'v_and_b32 v{A+2*i+1}, v{vM1}, v{R+i}')

RING = 6
def conv_stage(frags, writes):
    seq = [(gi,) + f for gi in range(3) for f in frags]
    def issue(i):
        gi, kind, idx, outs = seq[i]
        B = vB + 8 * (i % RING); go = 64 * gi
        if kind == 'F':
            r0, r1 = 2 * idx, min(2 * idx + 1, 16)
            a(f'ds_read_b128 {vr(B,4)}, v{vAF} offset:{r0*XROW+go}')
            a(f'ds_read_b128 {vr(B+4,4)}, v{vAF} offset:{r1*XROW+go}')
        elif kind == 'E':
            a(f'ds_read_b128 {vr(B,4)}, v{vAE} offset:{2*idx*XROW+go}')
            a(f'ds_read_b128 {vr(B+4,4)}, v{vAE} offset:{(2*idx+4)*XROW+go}')
        else:
            a(f'ds_read_b128 {vr(B,4)}, v{vAE} offset:{12*XROW+go}')
            a(f'ds_read_b128 {vr(B+4,4)}, v{vT2[2]} offset:{16*XROW+go}')
    D = RING - 1
    n = len(seq)
    for i in range(min(D, n)): issue(i)
    for i in range(n):
        if i + D < n:
            issue(i + D)
        a(f's_waitcnt lgkmcnt({2*min(D, n-1-i)})')
        gi, kind, idx, outs = seq[i]
        B = vB + 8 * (i % RING); A = vAFR + 20 * gi; ACC = vACC + 28 * gi
        for k in outs:
            fr = (idx - k) if kind == 'F' else 3 + (k - idx)
            a(f'v_smfmac_f32_16x16x64_bf16 {vr(ACC+4*k,4)}, {vr(A+4*fr,4)}, {vr(B,8)}, v{vIDX}')
    for gi in range(3):
        ACC = vACC + 28 * gi
        for k in writes:
            a(f'v_cvt_pk_bf16_f32 v{ACC+4*k}, v{ACC+4*k}, v{ACC+4*k+1}')
            a(f'v_cvt_pk_bf16_f32 v{ACC+4*k+1}, v{ACC+4*k+2}, v{ACC+4*k+3}')
        for k in writes:
            a(f'ds_write_b64 v{vAO}, {vr(ACC+4*k,2)} offset:{2*k*XROW+64*gi}')
    if writes: a('s_waitcnt lgkmcnt(0)')
pstamp(9)
bar(2)
conv_stage([('F',0,[0]), ('F',1,[0,1]), ('F',2,[0,1,2]), ('F',3,[1,2,3]), ('E',0,[0,1])], [0, 1])
bar(3)
conv_stage([('F',4,[2,3]), ('F',5,[3]), ('E',2,[2,3])], [2, 3])
bar(4)
conv_stage([('F',4,[4]), ('F',5,[4,5])], [])
a(f'''
s_and_b32 s{sT1}, s{sWI}, 1
s_lshl_b32 s{sT1}, s{sT1}, 30
''')
res_loads(sT1)
stamp(5)
bar(6)
a(f'''
s_cmp_eq_u32 s{sH13}, 13
s_cbranch_scc1 L_Y13a
''')
conv_stage([('F',6,[4,5]), ('F',7,[5]), ('E',4,[4,5])], [4, 5])
a('s_branch L_Y3done')
a.label('L_Y13a')
conv_stage([('F',6,[4,5,6]), ('F',7,[5,6]), ('E',4,[4,5]), ('F',8,[6]), ('L',6,[6])], [4, 5, 6])
a.label('L_Y3done')
bar(7)
RAW = 48
for ks in range(3):
    a(f'ds_read_b128 {vr(RAW+4*ks,4)}, v{vT2[3]} offset:{8*XROW+64*ks}')
for ks in range(3):
    a(f'ds_read_b128 {vr(RAW+12+4*ks,4)}, v{vARL} offset:{12*XROW+64*ks}')
a('s_waitcnt lgkmcnt(3)')
ln(RAW, 12, 72, RAW, True)
for ks in range(3):
    a(f'ds_write_b128 v{vT2[3]}, {vr(RAW+4*ks,4)} offset:{8*XROW+64*ks}')
a(f'''
s_cmp_lg_u32 s{sH13}, 13
s_cbranch_scc1 L_Ynoln
''')
ln(RAW + 12, 12, 72, vLR, True)
a.label('L_Ynoln')
a('s_waitcnt lgkmcnt(0)')
bar(8)
for ks in range(6):
    a(f'ds_read_b128 {vr(vL+4*ks,4)}, v{vAL[ks&1]} offset:{64*(ks>>1)}')
def hy_start():
    a('s_waitcnt vmcnt(0) lgkmcnt(0)')
    bar(9)
    wdma(5)
def hy_b7():
    a('s_waitcnt vmcnt(0)'); bar(10)
YH = {'start': hy_start, ('end', 2): hy_b7}
mlp([(p, 0) for p in range(6)], YH, False)
stamp(13)
vOR = vL
a(f'''
s_cmp_lg_u32 s{sH13}, 13
s_cbranch_scc1 L_Ynorem
''')
def rem():
    RY = [72, 80, 88]; RK = [104, 112, 120]; RG = [136, 140, 128]
    def w1r(c):
        o = 24576 if c == 1 else 0
        if c == 2: a(f'v_add_u32 v{vAW1R}, s{sRD2}, v{vAW1R}')
        for i in range(6):
            mt2, ks3 = i // 3, i % 3
            off = o + ks3 * 4096 + mt2 * 32
            a(f'ds_read_b64_tr_b16 {vr(vF1+4*i,2)}, v{vAW1R} offset:{off}')
            a(f'ds_read_b64_tr_b16 {vr(vF1+4*i+2,2)}, v{vAW1R} offset:{off+512}')
    def w2r(c):
        o = 24576 if c == 1 else 0
        if c == 2: a(f'v_add_u32 v{vAW2R}, s{sRD2}, v{vAW2R}')
        for i in range(6):
            off = o + 8 * i
            a(f'ds_read_b64_tr_b16 {vr(vF2+4*i,2)}, v{vAW2R} offset:{off}')
            a(f'ds_read_b64_tr_b16 {vr(vF2+4*i+2,2)}, v{vAW2R} offset:{off+3072}')
    def g1(c, j):
        mt2, ks3 = j & 1, j >> 1
        i = mt2 * 3 + ks3
        Y = RY[c] + 4 * mt2
        a(f'v_mfma_f32_16x16x32_bf16 {vr(Y,4)}, {vr(vF1+4*i,4)}, {vr(vLR+4*ks3,4)}, {"0" if ks3 == 0 else vr(Y,4)}')
    def g2(c, i):
        a(f'v_mfma_f32_16x16x32_bf16 {vr(vOR+4*i,4)}, {vr(vF2+4*i,4)}, {vr(RG[c],4)}, {"0" if c == 0 else vr(vOR+4*i,4)}')
    w1r(0)
    a('s_waitcnt lgkmcnt(0)')
    for j in range(6): g1(0, j)
    w1r(1); w2r(0)
    for c in range(4):
        if c >= 1:
            for i in range(4):
                a(f'v_pk_mul_f32 {vr(RK[c-1]+2*i,2)}, {vr(RY[c-1]+2*i,2)}, {vr(RK[c-1]+2*i,2)}')
        if c < 3:
            Y, K = RY[c], RK[c]
            for i in range(4):
                a(f'v_pk_fma_f32 {vr(K+2*i,2)}, {vr(Y+2*i,2)}, {vr(Y+2*i,2)}, s[{sCC}:{sCC+1}] neg_lo:[1,0,0] neg_hi:[1,0,0]')
            for i in range(4):
                a(f'v_pk_mul_f32 {vr(K+2*i,2)}, {vr(Y+2*i,2)}, {vr(K+2*i,2)}')
        cv = [f'v_cvt_pk_bf16_f32 v{RG[c-1]+i}, v{RK[c-1]+2*i}, v{RK[c-1]+2*i+1}' for i in range(4)] if c >= 1 else []
        if c == 3:
            for t in cv: a(t)
            a('s_waitcnt lgkmcnt(0)')
            for i in range(6): g2(2, i)
            break
        ex = [f'v_exp_f32 v{K+i}, v{K+i}' for i in range(8)]
        rc = [f'v_rcp_f32 v{K+i}, v{K+i}' for i in range(8)]
        fl = cv + ex
        a('s_waitcnt lgkmcnt(0)')
        for j in range(6):
            if c + 1 < 3: g1(c + 1, j)
            k = 2 if j < len(fl) - 6 else 1
            k = (len(fl) + (5 - j)) // (6 - j)
            for t in fl[:k]: a(t)
            fl = fl[k:]
        if c + 2 < 3: w1r(c + 2)
        for i in range(4):
            a(f'v_pk_fma_f32 {vr(K+2*i,2)}, {vr(K+2*i,2)}, s[{sCA}:{sCA+1}], s[{sCA}:{sCA+1}]')
        fl = rc
        for j in range(6):
            if c >= 1: g2(c - 1, j)
            k = 1 if j < 4 else 2
            for t in fl[:k]: a(t)
            fl = fl[k:]
        if c >= 1: w2r(c)
rem()
a.label('L_Ynorem')
a('s_nop 7')
a('s_nop 3')
stamp(14)
bar(11)
a(f'''
s_and_b32 s{sT1}, s{sWI}, 1
s_cmp_eq_u32 s{sT1}, 0
s_cbranch_scc1 L_Ypub2
s_lshr_b32 s{sT0}, s{sWI}, 1
s_mul_i32 s{sT0}, s{sT0}, 12288
v_add_u32 v{T[0]}, s{sT0}, v{vL16}
''')
for i in range(12):
    a(f'ds_write_b128 v{T[0]}, {vr(vO+4*i,4)} offset:{S_P + 1024*i}')
a.label('L_Ypub2')
a(f'''
s_cmp_lg_u32 s{sH13}, 13
s_cbranch_scc1 L_Ypub3
s_mul_i32 s{sT0}, s{sWI}, 6144
v_add_u32 v{T[0]}, s{sT0}, v{vL16}
''')
for i in range(6):
    a(f'ds_write_b128 v{T[0]}, {vr(vOR+4*i,4)} offset:{S_R + 1024*i}')
a.label('L_Ypub3')
a('s_waitcnt lgkmcnt(0)')
bar(12)
a(f'''
s_cmp_lg_u32 s{sT1}, 0
s_cbranch_scc1 L_Yodd
s_lshr_b32 s{sT0}, s{sWI}, 1
s_mul_i32 s{sT0}, s{sT0}, 12288
v_add_u32 v{T[0]}, s{sT0}, v{vL16}
''')
for i in range(12):
    a(f'ds_read_b128 {vr(144+4*i,4)}, v{T[0]} offset:{S_P + 1024*i}')
for i in range(12):
    a(f's_waitcnt lgkmcnt({11-i})')
    a(f'v_pk_add_f32 {vr(vO+4*i,2)}, {vr(vO+4*i,2)}, {vr(144+4*i,2)}')
    a(f'v_pk_add_f32 {vr(vO+4*i+2,2)}, {vr(vO+4*i+2,2)}, {vr(144+4*i+2,2)}')
tile_epilogue()
finish()
a.label('L_Yodd')
a(f'''
s_cmp_lg_u32 s{sH13}, 13
s_cbranch_scc1 L_Yfin
s_cmp_lg_u32 s{sWI}, 1
s_cbranch_scc1 L_Yfin
s_add_u32 s{sT0}, s{sY0}, 12
s_mul_i32 s{sT0}, s{sT0}, 224
s_add_u32 s{sT0}, s{sT0}, s{sX0}
s_mul_i32 s{sT0}, s{sT0}, 192
v_and_b32 v{T[0]}, 15, v{vLN}
v_mul_u32_u24 v{T[0]}, 192, v{T[0]}
v_lshrrev_b32 v{T[1]}, 4, v{vLN}
v_mul_u32_u24 v{T[1]}, 48, v{T[1]}
v_add_u32 v{T[0]}, v{T[0]}, v{T[1]}
''')
for i in range(3):
    a(f'buffer_load_dwordx4 {vr(0+4*i,4)}, v{T[0]}, {srd(sX)}, s{sT0} offen offset:{16*i}')
for n, w in enumerate((0, 2, 3)):
    for i in range(6):
        a(f'ds_read_b128 {vr(72+24*n+4*i,4)}, v{vL16} offset:{S_R + 6144*w + 1024*i}')
    a('s_waitcnt lgkmcnt(0)')
    for i in range(12):
        a(f'v_pk_add_f32 {vr(vOR+2*i,2)}, {vr(vOR+2*i,2)}, {vr(72+24*n+2*i,2)}')
a('s_waitcnt vmcnt(0)')
for i in range(12):
    a(f'v_lshlrev_b32 v{72+2*i}, 16, v{i}')
    a(f'v_and_b32 v{72+2*i+1}, 0xffff0000, v{i}')
for i in range(12):
    a(f'v_pk_add_f32 {vr(vOR+2*i,2)}, {vr(vOR+2*i,2)}, {vr(72+2*i,2)}')
for i in range(12):
    a(f'v_cvt_pk_bf16_f32 v{16+i}, v{vOR+2*i}, v{vOR+2*i+1}')
for i in range(3):
    a(f'buffer_store_dwordx4 {vr(16+4*i,4)}, v{T[0]}, {srd(sOUT)}, s{sT0} offen offset:{16*i}')
a.label('L_Yfin')
finish()
a.label('L_end')
a('s_endpgm')

body = a.finalize()
hdr = open('cdna_kernels/' + NAME + '.s.ref').read().split('\n')
out = []
for l in hdr:
    if l.startswith('; @launch'):
        out.append('; @launch grid=(256,1,1) block=(512,1,1) lds=163840')
    elif l.startswith(';'):
        out.append(l)
    else:
        break
out.append('.amdgcn_target "amdgcn-amd-amdhsa--gfx950"')
out.append('.text')
out.append(f'.globl {NAME}_kernel')
out.append('.p2align 8')
out.append(f'.type {NAME}_kernel,@function')
out.append(f'{NAME}_kernel:')
for l in body:
    out.append(l if l.endswith(':') else '    ' + l)
out.append(f'''.section .rodata,"a"
.p2align 6
.amdhsa_kernel {NAME}_kernel
  .amdhsa_next_free_vgpr 256
  .amdhsa_next_free_sgpr 102
  .amdhsa_accum_offset 256
  .amdhsa_group_segment_fixed_size 0
  .amdhsa_kernarg_size 64
  .amdhsa_user_sgpr_count 2
  .amdhsa_user_sgpr_kernarg_segment_ptr 1
  .amdhsa_system_sgpr_workgroup_id_x 1
.end_amdhsa_kernel''')
print('\n'.join(out))
```

```python
import sys, struct, math, copy
from asmlib import Asm

NAME = "standalone__modern_conv_block_replknet__vision"
def fbits(x): return struct.unpack('<I', struct.pack('<f', x))[0]
def opt(name, default=None):
    for x in sys.argv:
        if x == '--' + name: return True
        if x.startswith('--' + name + '='): return x.split('=', 1)[1]
    return default
STAMP = opt('stamp'); CYC = opt('cyc'); PRO = opt('pro')
STPOL = ' ' + opt('stpol', 'sc1').replace('_', ' ') if opt('stpol', 'sc1') != 'none' else ''
FOLD = opt('fold', '1') == '1'
GL, GF = (1, 0) if FOLD else (0, 1)

XROW = 3840
XB = 73728
PS = 24576
TB, TP = 139264, 976
EXTRA = 155136
L12 = 147456
FL = 163584
S_IF, S_R, S_IL = 0, 24576, 150528
MARK = 0x40000000
XBYTES = 224 * 224 * 192

k0 = math.sqrt(2.0 / math.pi); k1 = 0.044715
c0 = 2 * k0 / math.log(2.0); c1 = c0 * k1
ga = c1 ** (1.0 / 3.0)
gc = -c0 / ga

sX, sDL, sDS, sW1, sW2, sOUT = 16, 20, 24, 28, 32, 36
sWV, sY0, sX0, sT0, sT1, sT2, sT3 = 40, 41, 42, 43, 44, 45, 46
sH13, sWI = 47, 3
sCA, sCC = 48, 50
sWS = 52
sXM, sIMG = 56, 57
sWA, sWBm = 58, 59
sO0, sO1 = 60, 61
sST = 64
NST = 16
def srd(b): return f's[{b}:{b+3}]'
vO, vL, vY, vK, vG, vF1, vF2 = 0, 48, [72, 88], [104, 120], 136, 144, 168
vRES, vID = 204, 228
vAW1 = [236, 237, 245, 249]; vAW2 = 238
vLW1 = 204; vLW2 = 212
vDW1 = [220, 221]; vDW2 = [222, 223, 224]
vARL = 225
vSW = [239, 240]; vSR = [241, 242, 243]
vL16 = 244
vFA, vFW, vFP = 246, 247, 248
T = [250, 251, 252, 253, 254]
vLN = 255
vXO = 203; vPF = 227
vAF, vAE, vAO, vIDX, vTF0, vTF1, vTE, vAR, vAE16, vAO1 = 192, 193, 194, 195, 196, 197, 198, [199, 200], 201, 202
vACC, vAFR, vB = 0, 84, 144
def vr(b, n): return f'v[{b}:{b+n-1}]'

a = Asm()
def _st(i): a(f'{"s_memtime" if CYC else "s_memrealtime"} s[{sST+2*i}:{sST+2*i+1}]')
def pstamp(i):
    if STAMP and PRO: _st(i)
def stamp(i):
    if STAMP and not (PRO and 9 <= i <= 14): _st(i)
def mksrd(b, lo, n):
    a(f's_mov_b64 s[{b}:{b+1}], s[{lo}:{lo+1}]\ns_mov_b32 s{b+2}, {n}\ns_mov_b32 s{b+3}, 0x00020000')
def bar(i=None):
    a('s_barrier')
    if i is not None: stamp(i)
def setexec(lo, hi):
    a(f's_mov_b32 exec_lo, {lo:#x}\ns_mov_b32 exec_hi, {hi:#x}')

nlab = [0]; slow = []
def guard():
    if opt('safe'): a('s_sub_u32 s98, s98, 1\ns_cbranch_scc1 L_end')
def signal(v, emit=None):
    a(f'v_mov_b32 v{T[4]}, {v}')
    (emit or a)(f'ds_write_b32 v{vFW}, v{T[4]}')
def poll(grp, v):
    lab = f'L_poll{nlab[0]}'; nlab[0] += 1
    a.label(lab)
    guard()
    a(f'ds_read_b32 v{vFP}, v{vFA} offset:{16*grp}\ns_waitcnt lgkmcnt(0)\nv_cmp_gt_u32 vcc, {v}, v{vFP}\ns_cbranch_vccnz {lab}')
def peek(grp): a(f'ds_read_b32 v{vFP}, v{vFA} offset:{16*grp}')
def check(grp, v):
    n = nlab[0]; nlab[0] += 1
    a(f'v_cmp_gt_u32 vcc, {v}, v{vFP}\ns_cbranch_vccnz L_slow{n}')
    a.label(f'L_back{n}')
    slow.append((n, grp, v))
def emit_slow():
    for n, grp, v in slow:
        a.label(f'L_slow{n}')
        guard()
        a(f'ds_read_b32 v{vFP}, v{vFA} offset:{16*grp}\ns_waitcnt lgkmcnt(0)\nv_cmp_gt_u32 vcc, {v}, v{vFP}\ns_cbranch_vccnz L_slow{n}\ns_branch L_back{n}')
    slow.clear()
def landed(n, v):
    a(f's_waitcnt vmcnt({n})'); signal(v)

def wdma(p, parts=range(6)):
    for i in parts:
        if i < 3:
            a(f'''
            s_add_u32 m0, s{sWBm}, {PS*p + 1024*i}
            s_add_u32 s{sT0}, s{sWA}, {6144*i + 128*p}
            buffer_load_dwordx4 v{vDW1[i & 1]}, {srd(sW1)}, s{sT0} offen lds
            ''')
        else:
            if i == 3 or i - 1 not in parts:
                a(f's_add_u32 m0, s{sWBm}, {PS*p + 12288}\ns_add_u32 s{sT0}, s{sWBm}, {12288*p}')
            a(f'buffer_load_dwordx4 v{vDW2[i-3]}, {srd(sW2)}, s{sT0} offen offset:{1024*(i-3)} lds')

def ln(raw, U, dst, rows16):
    n = len(dst)
    S, Q, ONE = T[1], T[3], T[4]
    sc, bi = T[0], T[2]
    a(f'v_mov_b32 v{ONE}, 0x3f803f80')
    for i in range(n):
        a(f'v_dot2_f32_bf16 v{S}, v{raw+i}, v{ONE}, {"0" if i == 0 else f"v{S}"}')
        a(f'v_dot2_f32_bf16 v{Q}, v{raw+i}, v{raw+i}, {"0" if i == 0 else f"v{Q}"}')
    un = []
    for i in range(n):
        un.append(f'v_lshlrev_b32 v{U+2*i}, 16, v{raw+i}')
        un.append(f'v_and_b32 v{U+2*i+1}, 0xffff0000, v{raw+i}')
    def fill(k):
        for _ in range(k):
            if un: a(un.pop(0))
    fill(3)
    a(f'v_permlane32_swap_b32 v{S}, v{Q}')
    a(f'v_add_f32 v{S}, v{S}, v{Q}')
    if rows16:
        a(f'v_mov_b32 v{Q}, v{S}')
        fill(2)
        a(f'v_permlane16_swap_b32 v{S}, v{Q}')
        a(f'v_add_f32 v{S}, v{S}, v{Q}')
    a(f'v_mul_f32 v{S}, {fbits(1.0/96):#x}, v{S}')
    a(f'v_mov_b32 v{Q}, v{S}')
    fill(2)
    a(f'v_permlane32_swap_b32 v{S}, v{Q}')
    a(f'''
    v_fma_f32 v{Q}, -v{S}, v{S}, v{Q}
    v_max_f32 v{Q}, 0, v{Q}
    v_add_f32 v{Q}, {fbits(1e-5):#x}, v{Q}
    v_rsq_f32 v{Q}, v{Q}
    ''')
    fill(1)
    a(f'v_mul_f32 v{sc}, {fbits(ga):#x}, v{Q}')
    a(f'v_mul_f32 v{bi}, -v{S}, v{sc}')
    fill(1000)
    for i in range(n):
        if opt('lnplain'):
            a(f'v_fma_f32 v{U+2*i}, v{U+2*i}, v{sc}, v{bi}\nv_fma_f32 v{U+2*i+1}, v{U+2*i+1}, v{sc}, v{bi}')
        else:
            a(f'v_pk_fma_f32 {vr(U+2*i,2)}, {vr(U+2*i,2)}, {vr(sc,2)}, {vr(bi,2)} op_sel_hi:[1,0,0]')
    for i in range(n):
        a(f'v_cvt_pk_bf16_f32 v{dst[i]}, v{U+2*i}, v{U+2*i+1}')

def pk_t(Y, K, n):
    return [f'v_pk_fma_f32 {vr(K+2*i,2)}, {vr(Y+2*i,2)}, {vr(Y+2*i,2)}, s[{sCC}:{sCC+1}] neg_lo:[1,0,0] neg_hi:[1,0,0]' for i in range(n//2)] + pk_m(Y, K, n)
def pk_m(Y, K, n): return [f'v_pk_mul_f32 {vr(K+2*i,2)}, {vr(Y+2*i,2)}, {vr(K+2*i,2)}' for i in range(n//2)]
def pk_d(K, n): return [f'v_pk_fma_f32 {vr(K+2*i,2)}, {vr(K+2*i,2)}, s[{sCA}:{sCA+1}], s[{sCA}:{sCA+1}]' for i in range(n//2)]
def emit(l):
    for t in l: a(t)

def mlp32(hooks, prio):
    N = 12
    moved = {'w1': False, 'w2': False}
    def move(kind, c):
        if c >= 6 and not moved[kind]:
            for r in (vAW1 if kind == 'w1' else [vAW2]): a(f'v_add_u32 v{r}, {3*PS}, v{r}')
            moved[kind] = True
    def w1reads(c):
        for ks in range(6):
            off = ((c >> 1) % 3) * PS + (ks >> 1) * 4096 + (ks & 1) * 1024
            r = vAW1[(c & 1) + 2 * (ks & 1)]
            a(f'ds_read_b64_tr_b16 {vr(vF1+4*ks,2)}, v{r} offset:{off}')
            a(f'ds_read_b64_tr_b16 {vr(vF1+4*ks+2,2)}, v{r} offset:{off+512}')
    def w2reads(c):
        for i in range(6):
            ks2, mt = i // 3, i % 3
            off = ((c >> 1) % 3) * PS + (c & 1) * 6144 + ks2 * 3072 + mt * 64
            a(f'ds_read_b64_tr_b16 {vr(vF2+4*i,2)}, v{vAW2} offset:{off}')
            a(f'ds_read_b64_tr_b16 {vr(vF2+4*i+2,2)}, v{vAW2} offset:{off+1536}')
    def g1(c, ks):
        Y = vY[c & 1]
        a(f'v_mfma_f32_32x32x16_bf16 {vr(Y,16)}, {vr(vF1+4*ks,4)}, {vr(vL+4*ks,4)}, {"0" if ks == 0 else vr(Y,16)}')
    def g2(i):
        ks2, mt = i // 3, i % 3
        a(f'v_mfma_f32_32x32x16_bf16 {vr(vO+16*mt,16)}, {vr(vF2+4*i,4)}, {vr(vG+4*ks2,4)}, {vr(vO+16*mt,16)}')
    def resm(ks):
        j, mt = ks // 3, ks % 3
        a(f'v_mfma_f32_32x32x16_bf16 {vr(vO+16*mt,16)}, {vr(vID+4*j,4)}, {vr(vRES+4*(2*mt+j),4)}, {"0" if j == 0 else vr(vO+16*mt,16)}')
    def hook(k):
        for f in hooks.get(k, []): f()
    def pr(c, v):
        if prio(c) is not None: a(f's_setprio {prio(c)[v]}')
    hook('pre')
    a('s_waitcnt lgkmcnt(0)')
    for ks in range(6): g1(0, ks)
    w1reads(1)
    hook('start3')
    for c in range(N + 1):
        Y, K = vY[c & 1], vK[c & 1]
        Yp, Kp = vY[(c - 1) & 1], vK[(c - 1) & 1]
        pr(c, 1)
        if c >= 1: emit(pk_m(Yp, Kp, 16))
        if c < N: emit(pk_t(Y, K, 16))
        cv = [f'v_cvt_pk_bf16_f32 v{vG+i}, v{Kp+2*i}, v{Kp+2*i+1}' for i in range(8)] if c >= 1 else []
        if c == N:
            emit(cv)
            a('s_waitcnt lgkmcnt(0)')
            for i in (0, 3, 1, 4, 2, 5): g2(i)
            break
        ex = [f'v_exp_f32 v{K+i}, v{K+i}' for i in range(16)]
        rc = [f'v_rcp_f32 v{K+i}, v{K+i}' for i in range(16)]
        last = c + 1 >= N
        if c + 2 < N: move('w1', c + 2)
        move('w2', c)
        if c == 0:
            gaps = [ex[0:3], ex[3:6], ex[6:9], ex[9:12], ex[12:15], ex[15:16]]
            a('s_waitcnt lgkmcnt(0)')
            for j in range(6):
                g1(1, j); emit(gaps[j])
        elif not last:
            gaps = [cv[0:4] + ex[0:1], cv[4:8] + ex[1:2], ex[2:5], ex[5:8], ex[8:11], ex[11:14], ex[14:16]]
            for j in range(7):
                if j < 6: g1(c + 1, j)
                else: g2(0)
                if j == 5: a('s_waitcnt lgkmcnt(0)')
                emit(gaps[j])
        else:
            emit(cv); emit(ex[0:4])
            a('s_waitcnt lgkmcnt(0)')
            gaps = [ex[4:8], ex[8:12], ex[12:16]]
            for j in range(3):
                g2(j); emit(gaps[j])
        hook(('preT1', c))
        pr(c, 0)
        if c + 2 < N: w1reads(c + 2)
        hook(('T1', c))
        pr(c, 1)
        emit(pk_d(K, 16))
        if c == 0:
            gp = [rc[0:3], rc[3:6], rc[6:9], rc[9:12], rc[12:14], rc[14:16]]
            for j in range(6):
                resm(j)
                if j == 5: a('s_waitcnt lgkmcnt(0)')
                emit(gp[j])
        elif not last:
            gp = [rc[0:3], rc[3:6], rc[6:9], rc[9:12], rc[12:16]]
            for j in range(5):
                g2(j + 1)
                if j == 4: a('s_waitcnt lgkmcnt(0)')
                emit(gp[j])
        else:
            gp = [rc[0:3], rc[3:6], rc[6:16]]
            for j in range(3):
                g2(j + 3)
                if j == 2: w2reads(c)
                emit(gp[j])
        hook(('preT2', c))
        pr(c, 0)
        if not last: w2reads(c)
        hook(('T2', c))
    return w1reads

def f_w1reads0():
    for ks in range(6):
        off = (ks >> 1) * 4096 + (ks & 1) * 1024
        r = vAW1[2 * (ks & 1)]
        a(f'ds_read_b64_tr_b16 {vr(vF1+4*ks,2)}, v{r} offset:{off}')
        a(f'ds_read_b64_tr_b16 {vr(vF1+4*ks+2,2)}, v{r} offset:{off+512}')

def l_w1reads(s):
    for i in range(6):
        mt2, ks3 = i // 3, i % 3
        off = ((s >> 2) & 1) * 2 * PS + ks3 * 4096
        r = vLW1 + mt2 + 2 * (s & 3)
        a(f'ds_read_b64_tr_b16 {vr(vF1+4*i,2)}, v{r} offset:{off}')
        a(f'ds_read_b64_tr_b16 {vr(vF1+4*i+2,2)}, v{r} offset:{off+512}')

def mlp16(doubles, hooks, prio):
    N = 12
    def wid(s): return 0 if (s < 0 or s >= N) else (2 if s in doubles else 1)
    def move(base):
        for r in range(8): a(f'v_add_u32 v{base+r}, {4*PS}, v{base+r}')
    def w2reads(s):
        for i in range(6):
            off = ((s >> 2) & 1) * 2 * PS + 64 * (i >> 1)
            r = vLW2 + (i & 1) + 2 * (s & 3)
            a(f'ds_read_b64_tr_b16 {vr(vF2+4*i,2)}, v{r} offset:{off}')
            a(f'ds_read_b64_tr_b16 {vr(vF2+4*i+2,2)}, v{r} offset:{off+3072}')
    def m1(s):
        l = []
        for t in range(wid(s)):
            for j in range(6):
                mt2, ks3 = j & 1, j >> 1
                D = vY[s & 1] + 8 * t + 4 * mt2
                l.append(f'v_mfma_f32_16x16x32_bf16 {vr(D,4)}, {vr(vF1+4*(mt2*3+ks3),4)}, {vr(vL+12*t+4*ks3,4)}, {"0" if ks3 == 0 else vr(D,4)}')
        return l
    def m2(s):
        return [f'v_mfma_f32_16x16x32_bf16 {vr(vO+24*t+4*i,4)}, {vr(vF2+4*i,4)}, {vr(vG+4*t,4)}, {vr(vO+24*t+4*i,4)}' for t in range(wid(s)) for i in range(6)]
    def weave(ms, fl):
        fl = list(fl)
        if not ms:
            emit(fl); a('s_waitcnt lgkmcnt(0)'); return
        for j, m in enumerate(ms):
            a(m)
            if j == len(ms) - 1: a('s_waitcnt lgkmcnt(0)')
            k = -(-len(fl) // (len(ms) - j))
            emit(fl[:k]); fl = fl[k:]
    def hook(k):
        for f in hooks.get(k, []): f()
    def pr(c, v):
        if prio(c) is not None: a(f's_setprio {prio(c)[v]}')
    hook('pre')
    a('s_waitcnt lgkmcnt(0)')
    emit(m1(0))
    l_w1reads(1)
    hook('start3')
    for s in range(N + 1):
        Y, K = vY[s & 1], vK[s & 1]
        Yp, Kp = vY[(s - 1) & 1], vK[(s - 1) & 1]
        n, np_ = 8 * wid(s), 8 * wid(s - 1)
        pr(s, 1)
        emit(pk_m(Yp, Kp, np_))
        emit(pk_t(Y, K, n))
        cv = [f'v_cvt_pk_bf16_f32 v{vG+i}, v{Kp+2*i}, v{Kp+2*i+1}' for i in range(np_ // 2)]
        if s == N:
            emit(cv)
            a('s_waitcnt lgkmcnt(0)')
            emit(m2(N - 1))
            break
        ex = [f'v_exp_f32 v{K+i}, v{K+i}' for i in range(n)]
        rc = [f'v_rcp_f32 v{K+i}, v{K+i}' for i in range(n)]
        if s + 2 == 8: move(vLW1)
        if s == 8: move(vLW2)
        if s == 0: a('s_waitcnt lgkmcnt(0)')
        weave(m1(s + 1), cv + ex)
        hook(('preT1', s))
        pr(s, 0)
        if s + 2 < N: l_w1reads(s + 2)
        hook(('T1', s))
        pr(s, 1)
        emit(pk_d(K, n))
        weave(m2(s - 1), rc)
        hook(('preT2', s))
        pr(s, 0)
        w2reads(s)
        hook(('T2', s))

def finish():
    if STAMP:
        stamp(14)
        a('s_waitcnt vmcnt(0)')
        stamp(15)
        a('s_waitcnt lgkmcnt(0)')
        a(f'''
        s_lshl_b32 s{sT0}, s2, 3
        s_add_u32 s{sT0}, s{sT0}, s{sWV}
        s_lshl_b32 s{sT0}, s{sT0}, 6
        v_mov_b32 v{T[1]}, s{sT0}
        s_mov_b64 exec, 1
        ''')
        for i in range(NST):
            a(f'v_mov_b32 v{T[0]}, s{sST+2*i}')
            a(f'buffer_store_dword v{T[0]}, v{T[1]}, {srd(sWS)}, 0 offen offset:{4*i}')
    a('s_endpgm')

def tab_reads(gi, em):
    A = vAFR + 20 * gi; o = 64 * gi
    for d in range(3):
        em(f'ds_read_b64_tr_b16 {vr(A+4*d,2)}, v{vTF0} offset:{o + 2*d*TP}')
        em(f'ds_read_b64_tr_b16 {vr(A+4*d+2,2)}, v{vTF1} offset:{o + 2*d*TP}')
    for par in range(2):
        for pp in range(2):
            em(f'ds_read_b64_tr_b16 {vr(A+12+4*par+2*pp,2)}, v{vTE} offset:{o + (pp - 2*par + 2)*TP}')
RING = 6
class Conv:
    def __init__(self, k0): self.n = 0; self.slot = 0; self.k0 = k0
    def acc(self, gi, k): return vACC + 16 * gi + 4 * (k - self.k0)
    def ds(self, t): a(t); self.n += 1; return self.n
    def wait(self, seq): a(f's_waitcnt lgkmcnt({min(15, self.n - seq)})')
    def reads(self, it):
        B = it['B']; go = 64 * it['gi']; idx = it['idx']; kind = it['kind']
        if kind == 'F':
            r0, r1 = 2 * idx, min(2 * idx + 1, 16)
            return [f'ds_read_b128 {vr(B,4)}, v{vAF} offset:{r0*XROW+go}', f'ds_read_b128 {vr(B+4,4)}, v{vAF} offset:{r1*XROW+go}']
        if kind == 'E':
            return [f'ds_read_b128 {vr(B,4)}, v{vAE} offset:{2*idx*XROW+go}', f'ds_read_b128 {vr(B+4,4)}, v{vAE} offset:{(2*idx+4)*XROW+go}']
        return [f'ds_read_b128 {vr(B,4)}, v{vAE} offset:{12*XROW+go}', f'ds_read_b128 {vr(B+4,4)}, v{vAE16} offset:{16*XROW+go}']
    def cvt(self, lst):
        for gi, k in lst:
            A = self.acc(gi, k)
            a(f'v_cvt_pk_bf16_f32 v{A}, v{A}, v{A+1}\nv_cvt_pk_bf16_f32 v{A+1}, v{A+2}, v{A+3}')
    def write(self, lst):
        for gi, k in lst:
            A = self.acc(gi, k)
            if k == 1: self.ds(f'ds_write_b64 v{vAO1}, {vr(A,2)} offset:{64*gi}')
            else: self.ds(f'ds_write_b64 v{vAO}, {vr(A,2)} offset:{(0 if k in (0, 6) else 2*k-2)*XROW+64*gi}')
    def run(self, items, stop_at=None):
        D = RING - 1
        nxt = 0
        while nxt < len(items) and 'seq' in items[nxt]: nxt += 1
        def start(j):
            items[j]['B'] = vB + 8 * (self.slot % RING); self.slot += 1
            return self.reads(items[j])
        while nxt < min(D, len(items)):
            for t in start(nxt): items[nxt]['seq'] = self.ds(t)
            nxt += 1
        end = len(items) if stop_at is None else stop_at
        for i in range(end):
            it = items[i]
            self.wait(it['seq'])
            pend = start(nxt) if nxt < len(items) else []
            A = vAFR + 20 * it['gi']
            had = bool(pend)
            for k in it['outs']:
                fr = (it['idx'] - k) if it['kind'] == 'F' else 3 + (k - it['idx'])
                a(f'v_smfmac_f32_16x16x64_bf16 {vr(self.acc(it["gi"], k),4)}, {vr(A+4*fr,4)}, {vr(it["B"],8)}, v{vIDX}')
                if pend: items[nxt]['seq'] = self.ds(pend.pop(0))
            for t in pend: items[nxt]['seq'] = self.ds(t)
            if had: nxt += 1
            if it.get('pub'):
                self.cvt(it['pub'])
                if not it.get('nowrite'): self.write(it['pub'])
            if it.get('post'): it['post']()
        return items[end:]
def stage(frags): return [dict(gi=gi, kind=k, idx=i, outs=list(o)) for gi in range(3) for (k, i, o) in frags]
def add_pub(items, base, nfr, pairs, nowrite=False):
    for gi in range(3):
        j = min(base + nfr * (gi + 1), len(items) - 1)
        items[j].setdefault('pub', []).extend((gi, k) for k in pairs)
        items[j]['nowrite'] = nowrite

isF = 's_cmp_lt_u32' if FOLD else 's_cmp_ge_u32'
a(f'''
s_load_dwordx4 s[4:7], s[0:1], 0
s_load_dwordx4 s[8:11], s[0:1], 16
s_load_dwordx4 s[12:15], s[0:1], 32
s_getpc_b64 s[100:101]
L_pc:
''')
if STAMP: a(f's_load_dwordx2 s[{sWS}:{sWS+1}], s[0:1], 56')
stamp(0)
a(f'''
s_cmp_ge_u32 s2, 256
s_cbranch_scc1 L_end
v_lshrrev_b32 v{T[0]}, 6, v0
v_and_b32 v{vLN}, 63, v0
''')
PFM = opt('pf', 'first')
if PFM == 'first':
    a(f'''
    s_bfe_u32 s{sT3}, s2, 0x20003
    s_mul_i32 s{sT3}, s{sT3}, {80*128}
    v_mul_u32_u24 v{T[1]}, 10, v{T[0]}
    v_add_u32 v{T[1]}, v{T[1]}, v{vLN}
    v_lshl_add_u32 v{T[1]}, v{T[1]}, 7, s{sT3}
    v_min_u32 v{T[1]}, L_end-L_pc, v{T[1]}
    s_mov_b64 exec, 0x3ff
    global_load_dword v{vPF}, v{T[1]}, s[100:101]
    s_mov_b64 exec, -1
    ''')
a(f'''
s_lshr_b32 s{sT1}, s2, 3
v_readfirstlane_b32 s{sWV}, v{T[0]}
s_and_b32 s{sT2}, s2, 1
s_add_u32 s{sT2}, s{sT2}, s{sT1}
s_cmp_ge_u32 s{sT2}, 32
s_cbranch_scc1 L_end
s_and_b32 s{sT0}, s2, 3
v_mul_u32_u24 v{T[0]}, 43, v{vLN}
s_mul_i32 s{sT0}, s{sT0}, 63
s_add_u32 s{sT0}, s{sT0}, 1
v_lshrrev_b32 v{T[0]}, 9, v{T[0]}
s_lshr_b32 s{sT0}, s{sT0}, 1
s_add_u32 s{sT0}, s{sT0}, s{sT1}
v_mul_u32_u24 v{T[1]}, 12, v{T[0]}
s_mul_i32 s{sT1}, s{sT0}, 9363
s_lshr_b32 s{sT1}, s{sT1}, 16
v_sub_u32 v{T[1]}, v{vLN}, v{T[1]}
s_mul_i32 s{sT2}, s{sT1}, 7
s_sub_u32 s{sT0}, s{sT0}, s{sT2}
s_bfe_u32 s{sT2}, s2, 0x10002
s_mul_i32 s{sT2}, s{sT2}, 7
s_add_u32 s{sT0}, s{sT0}, s{sT2}
s_lshl_b32 s{sX0}, s{sT0}, 4
s_mul_i32 s{sY0}, s{sT1}, {112*7282}
s_add_u32 s{sH13}, s{sY0}, {112*7282}
s_lshr_b32 s{sY0}, s{sY0}, 16
s_and_b32 s{sWI}, s{sWV}, 3
v_mov_b32 v{T[4]}, {MARK}
v_lshlrev_b32 v{vL16}, 4, v{vLN}
{isF} s{sWV}, 4
s_cbranch_scc1 L_F0
; ---- L: x rows
s_setprio {opt('lprio0', 3)}
s_mul_i32 s{sT1}, s{sWI}, 5
v_add_u32 v{T[0]}, s{sT1}, v{T[0]}
v_bfe_u32 v{T[2]}, v{T[0]}, 2, 2
v_xor_b32 v{T[1]}, v{T[1]}, v{T[2]}
s_sub_u32 s{sT1}, s{sX0}, 2
v_add_u32 v{T[0]}, s{sT1}, v{T[0]}
v_mul_u32_u24 v{T[2]}, 192, v{T[0]}
v_cmp_gt_u32 vcc, 224, v{T[0]}
v_lshl_add_u32 v{T[2]}, v{T[1]}, 4, v{T[2]}
s_mul_i32 s{sXM}, s{sWI}, 960
s_add_u32 s{sXM}, s{sXM}, {XB}
v_cndmask_b32 v{vXO}, v{T[4]}, v{T[2]}, vcc
s_sub_u32 s{sT1}, s{sY0}, 2
s_mul_i32 s{sT1}, s{sT1}, 43008
v_add_u32 v{vXO}, s{sT1}, v{vXO}
s_mov_b32 s{sX+2}, {XBYTES}
s_mov_b32 s{sX+3}, 0x00020000
s_mov_b32 exec_hi, 0x0fffffff
s_waitcnt lgkmcnt(0)
s_mov_b64 s[{sX}:{sX+1}], s[4:5]
''')
xl = [0]
def xrows(n):
    for _ in range(n):
        t = xl[0]; xl[0] += 1
        a(f's_add_u32 m0, s{sXM}, {t*XROW}')
        if t: a(f'v_add_u32 v{vXO}, 43008, v{vXO}')
        a(f'buffer_load_dwordx4 v{vXO}, {srd(sX)}, 0 offen lds')
NX0 = int(opt('nx0', 12))
xrows(NX0)
stamp(1)
a(f'''
s_setprio 0
s_mov_b32 exec_hi, -1
s_mul_i32 s{sIMG}, s{sWI}, 3072
s_add_u32 s{sIMG}, s{sIMG}, {S_IL}
s_branch L_setup
L_F0:
; ---- F: conv weight tables, rows w and w+4 of both
s_setprio {opt("fprio", 2)}
s_mul_i32 s{sT3}, s{sWI}, 960
v_add_u32 v{T[2]}, s{sT3}, v{vL16}
s_mul_i32 s{sT3}, s{sWI}, 576
s_sub_u32 s{sT3}, s{sT3}, {2*576 + 192}
v_mov_b32 v{T[3]}, {MARK}
s_mov_b32 exec_lo, 0xfffff000
s_mov_b32 exec_hi, 0xffff
v_add_u32 v{T[3]}, s{sT3}, v{vL16}
v_add_u32 v{T[4]}, {4*576}, v{T[3]}
s_mov_b32 exec_lo, -1
s_mov_b32 exec_hi, 0x0fffffff
v_add_u32 v{T[1]}, {4*960}, v{T[2]}
s_mul_i32 s{sT3}, s{sWI}, {TP}
s_mov_b32 s{sDS+2}, 4800
s_mov_b32 s{sDS+3}, 0x00020000
s_mov_b32 s{sDL+2}, 1728
s_mov_b32 s{sDL+3}, 0x00020000
s_add_u32 m0, s{sT3}, {TB + 8*TP}
s_waitcnt lgkmcnt(0)
s_mov_b64 s[{sDS}:{sDS+1}], s[8:9]
s_mov_b64 s[{sDL}:{sDL+1}], s[6:7]
buffer_load_dwordx4 v{T[2]}, {srd(sDS)}, 0 offen lds
s_add_u32 m0, s{sT3}, {TB}
s_mul_i32 s{sIMG}, s{sWI}, 6144
buffer_load_dwordx4 v{T[3]}, {srd(sDL)}, 0 offen lds
s_add_u32 m0, s{sT3}, {TB + 12*TP}
s_nop 0
buffer_load_dwordx4 v{T[1]}, {srd(sDS)}, 0 offen lds
s_add_u32 m0, s{sT3}, {TB + 4*TP}
s_nop 0
buffer_load_dwordx4 v{T[4]}, {srd(sDL)}, 0 offen lds
s_mov_b32 exec_hi, -1
''')
WPF = opt('wpf', '0') == '1'
if PFM == 'f':
    a(f'''
    s_bfe_u32 s{sT3}, s2, 0x20003
    s_lshl_b32 s{sT3}, s{sT3}, 2
    s_add_u32 s{sT3}, s{sT3}, s{sWI}
    s_mul_i32 s{sT3}, s{sT3}, {20*128}
    v_lshl_add_u32 v{T[1]}, v{vLN}, 7, s{sT3}
    v_min_u32 v{T[1]}, L_end-L_pc, v{T[1]}
    s_mov_b64 exec, 0xfffff
    global_load_dword v{vPF}, v{T[1]}, s[100:101]
    s_mov_b64 exec, -1
    ''')
if WPF:
    a(f'''
    s_and_b32 s{sT0}, s{sWI}, 1
    s_cselect_b64 s[{sT1}:{sT2}], s[12:13], s[10:11]
    s_lshr_b32 s{sT0}, s2, 3
    s_lshl_b32 s{sT0}, s{sT0}, 1
    s_lshr_b32 s{sT3}, s{sWI}, 1
    s_add_u32 s{sT0}, s{sT0}, s{sT3}
    s_mul_i32 s{sT0}, s{sT0}, {10*128}
    v_lshl_add_u32 v{T[0]}, v{vLN}, 7, s{sT0}
    v_min_u32 v{T[0]}, {73728-128}, v{T[0]}
    s_mov_b64 exec, 0x3ff
    global_load_dword v{vPF-1}, v{T[0]}, s[{sT1}:{sT2}]
    s_mov_b64 exec, -1
    ''')
a.label('L_setup')
a(f'''
v_and_b32 v{T[0]}, 3, v{vLN}
v_mul_u32_u24 v{vIDX}, 0x5555, v{T[0]}
v_lshlrev_b32 v{vFA}, 2, v{T[0]}
v_add_u32 v{vFA}, {FL}, v{vFA}
s_lshl_b32 s{sT0}, s{sWV}, 2
s_add_u32 s{sT0}, s{sT0}, {FL}
v_mov_b32 v{vFW}, s{sT0}
v_mov_b32 v{vFP}, 0
ds_write_b32 v{vFW}, v{vFP}
s_lshl_b32 s{sT2}, s{sWI}, 4
s_add_u32 s{sT2}, s{sT2}, {TB}
v_bfe_u32 v{T[1]}, v{vLN}, 1, 1
v_lshl_add_u32 v{T[4]}, v{T[1]}, 3, s{sT2}
v_and_b32 v{T[0]}, 1, v{vLN}
v_lshrrev_b32 v{T[1]}, 5, v{vLN}
v_mul_u32_u24 v{vTE}, {TP}, v{T[1]}
v_sub_u32 v{T[1]}, v{T[1]}, v{T[0]}
v_bfe_u32 v{T[2]}, v{vLN}, 2, 1
v_mul_u32_u24 v{T[2]}, 7, v{T[2]}
v_sub_u32 v{T[1]}, v{T[1]}, v{T[2]}
v_add_u32 v{T[1]}, 8, v{T[1]}
v_mul_u32_u24 v{T[1]}, {TP}, v{T[1]}
v_bfe_u32 v{T[2]}, v{vLN}, 4, 1
v_mul_u32_u24 v{T[2]}, 192, v{T[2]}
v_add3_u32 v{T[3]}, v{T[1]}, v{T[2]}, v{T[4]}
v_lshrrev_b32 v{T[1]}, 4, v{vLN}
v_lshlrev_b32 v{T[2]}, 1, v{T[1]}
v_sub_u32 v{T[2]}, v{T[2]}, v{T[0]}
v_add_u32 v{T[2]}, 6, v{T[2]}
v_mul_u32_u24 v{T[2]}, {TP}, v{T[2]}
v_add_u32 v{vTF0}, s{sT2}, v{vTE}
v_add_u32 v{vTF1}, {TP}, v{vTF0}
v_mov_b32 v{vTE}, s{sT2}
s_mov_b32 exec_lo, 0xcc33cc33
s_mov_b32 exec_hi, 0xcc33cc33
v_mov_b32 v{vTF0}, v{T[3]}
v_add_u32 v{vTF1}, 384, v{T[3]}
s_mov_b32 exec_lo, 0x0c030c03
s_mov_b32 exec_hi, 0x0c030c03
v_add_u32 v{T[2]}, 768, v{T[2]}
v_add_u32 v{vTE}, v{T[2]}, v{T[4]}
s_mov_b64 exec, -1
v_and_b32 v{T[0]}, 15, v{vLN}
v_bfe_u32 v{T[2]}, v{vLN}, 4, 1
v_lshrrev_b32 v{T[3]}, 5, v{vLN}
v_lshl_add_u32 v{T[2]}, v{T[2]}, 1, v{T[3]}
v_add_u32 v{T[2]}, v{T[0]}, v{T[2]}
v_bfe_u32 v{T[3]}, v{T[2]}, 2, 2
v_xor_b32 v{T[3]}, s{sWI}, v{T[3]}
v_mul_u32_u24 v{T[2]}, 192, v{T[2]}
v_lshl_add_u32 v{vAF}, v{T[3]}, 4, v{T[2]}
v_add_u32 v{vAF}, {XB}, v{vAF}
v_add_u32 v{T[2]}, 4, v{T[0]}
v_bfe_u32 v{T[3]}, v{T[2]}, 2, 2
v_xor_b32 v{T[3]}, s{sWI}, v{T[3]}
v_mul_u32_u24 v{T[2]}, 192, v{T[2]}
v_lshl_add_u32 v{vAE}, v{T[3]}, 4, v{T[2]}
v_add_u32 v{vAE16}, {XB}, v{vAE}
v_mul_u32_u24 v{T[2]}, {XROW}, v{T[1]}
v_add_u32 v{vAE}, v{vAE16}, v{T[2]}
v_bfe_u32 v{T[3]}, v{T[0]}, 2, 2
v_xor_b32 v{T[4]}, s{sWI}, v{T[3]}
v_mul_u32_u24 v{T[2]}, 192, v{T[0]}
v_lshl_add_u32 v{T[2]}, v{T[4]}, 4, v{T[2]}
v_bfe_u32 v{T[1]}, v{vLN}, 4, 1
v_mul_u32_u24 v{T[1]}, {XROW}, v{T[1]}
v_lshrrev_b32 v{T[3]}, 5, v{vLN}
v_bfe_u32 v{T[4]}, v{vLN}, 1, 1
v_xor_b32 v{T[3]}, v{T[3]}, v{T[4]}
v_lshl_add_u32 v{T[1]}, v{T[3]}, 3, v{T[1]}
v_add_u32 v{T[2]}, v{T[2]}, v{T[1]}
v_add_u32 v{vAO}, {XB}, v{T[2]}
v_add_u32 v{vAO1}, {EXTRA}, v{T[2]}
''')
for i in range(24):
    a(f'v_mov_b64 {vr(vACC+2*i,2)}, 0')
mksrd(sOUT, 14, XBYTES)
if opt('safe'): a('s_mov_b32 s98, 20000')
a(f'''
s_lshr_b32 s{sH13}, s{sH13}, 16
s_sub_u32 s{sH13}, s{sH13}, s{sY0}
s_mov_b32 s{sCA}, {fbits(ga):#x}
s_mov_b32 s{sCA+1}, {fbits(ga):#x}
s_mov_b32 s{sCC}, {fbits(gc):#x}
s_mov_b32 s{sCC+1}, {fbits(gc):#x}
s_add_u32 s{sT0}, s{sWI}, s{sY0}
s_mul_i32 s{sT0}, s{sT0}, 224
s_add_u32 s{sT0}, s{sT0}, s{sX0}
s_mul_i32 s{sO0}, s{sT0}, 192
''')
if STAMP:
    a(f's_mov_b32 s{sWS+2}, 0x10000000\ns_mov_b32 s{sWS+3}, 0x00020000')
    for i in (6, 11, 12, 13, 14): a(f's_mov_b32 s{sST+2*i}, 0')
for j in range(3):
    a(f'''
    v_add_u32 v{T[0]}, {64*j}, v{vLN}
    v_mul_u32_u24 v{T[2]}, 171, v{T[0]}
    v_bfe_u32 v{T[2]}, v{T[2]}, 12, 2
    v_xor_b32 v{T[0]}, v{T[0]}, v{T[2]}
    v_lshl_add_u32 v{vSR[j]}, v{T[0]}, 4, s{sIMG}
    ''')
a(f'''
{isF} s{sWV}, 4
s_cbranch_scc1 L_F
''')
pstamp(14)
a(f's_waitcnt vmcnt({NX0 - 4}) lgkmcnt(0)')
pstamp(9)
bar(2)
a('s_branch L_L')

a.label('L_F')
vFR = [48, 49, 50, 51]
a(f'''
s_add_u32 s{sO1}, s{sO0}, {4*43008}
v_lshrrev_b32 v{T[4]}, 5, v{vLN}
v_bfe_u32 v{T[0]}, v{vLN}, 2, 2
v_bfe_u32 v{T[1]}, v{vLN}, 4, 1
v_and_b32 v{T[2]}, 3, v{vLN}
v_lshl_add_u32 v{T[3]}, v{T[4]}, 4, v{T[0]}
v_lshlrev_b32 v{T[3]}, 7, v{T[3]}
v_lshl_add_u32 v{T[3]}, v{T[1]}, 5, v{T[3]}
v_lshl_add_u32 v{T[3]}, v{T[2]}, 3, v{T[3]}
v_bfe_u32 v{T[2]}, v{vLN}, 3, 1
v_lshl_add_u32 v{vAW1[0]}, v{T[2]}, 6, v{T[3]}
v_xor_b32 v{vAW1[1]}, 64, v{vAW1[0]}
v_xor_b32 v{vAW1[2]}, 32, v{vAW1[0]}
v_xor_b32 v{vAW1[3]}, 0x60, v{vAW1[0]}
v_lshl_add_u32 v{T[3]}, v{T[4]}, 2, v{T[0]}
v_mul_u32_u24 v{T[3]}, 192, v{T[3]}
v_lshl_add_u32 v{T[3]}, v{T[1]}, 4, v{T[3]}
v_and_b32 v{T[2]}, 1, v{vLN}
v_xor_b32 v{T[2]}, v{T[2]}, v{T[4]}
v_lshl_add_u32 v{T[3]}, v{T[2]}, 5, v{T[3]}
v_bfe_u32 v{T[2]}, v{vLN}, 1, 1
v_lshl_add_u32 v{T[3]}, v{T[2]}, 3, v{T[3]}
v_add_u32 v{vAW2}, 12288, v{T[3]}
s_mul_i32 s{sT1}, s{sWI}, {XROW}
s_cmp_ge_u32 s{sWI}, 2
s_cselect_b32 s{sT2}, {EXTRA - 2*XROW - XB}, 0
s_add_u32 s{sT1}, s{sT1}, {XB}
s_add_u32 s{sT2}, s{sT2}, s{sT1}
s_add_u32 s{sT1}, s{sT1}, {2*XROW}
v_lshlrev_b32 v{T[4]}, 1, v{T[4]}
v_xor_b32 v{T[0]}, v{T[4]}, v{T[0]}
v_and_b32 v{T[3]}, 15, v{vLN}
v_mul_u32_u24 v{T[3]}, 192, v{T[3]}
v_lshl_add_u32 v{T[0]}, v{T[0]}, 4, v{T[3]}
v_lshl_add_u32 v{T[0]}, v{T[2]}, 3, v{T[0]}
v_add_u32 v{vFR[0]}, s{sT2}, v{T[0]}
s_mov_b32 exec_lo, 0xffff0000
s_mov_b32 exec_hi, 0xffff0000
v_add_u32 v{vFR[0]}, s{sT1}, v{T[0]}
s_mov_b64 exec, -1
v_xor_b32 v{vFR[1]}, 8, v{vFR[0]}
v_xor_b32 v{vFR[2]}, 16, v{vFR[0]}
v_xor_b32 v{vFR[3]}, 24, v{vFR[0]}
v_add_u32 v{T[0]}, 2, v{vLN}
v_bfe_u32 v{T[0]}, v{T[0]}, 2, 2
v_xor_b32 v{T[0]}, v{T[4]}, v{T[0]}
v_lshl_add_u32 v{T[0]}, v{T[0]}, 4, v{T[3]}
v_mul_u32_u24 v{T[2]}, {4*XROW}, v{T[1]}
s_add_u32 s{sT1}, s{sT1}, 384
v_add3_u32 v{vAR[0]}, v{T[0]}, v{T[2]}, s{sT1}
v_xor_b32 v{vAR[1]}, 16, v{vAR[0]}
v_bfe_u32 v{T[0]}, v{vLN}, 1, 2
v_xor_b32 v{T[0]}, v{T[4]}, v{T[0]}
v_lshl_add_u32 v{T[0]}, v{T[0]}, 4, v{T[3]}
v_mul_u32_u24 v{T[2]}, 3072, v{T[1]}
v_add3_u32 v{vSW[0]}, v{T[0]}, v{T[2]}, s{sIMG}
v_xor_b32 v{vSW[1]}, 16, v{vSW[0]}
v_and_b32 v{T[1]}, 1, v{vLN}
v_lshlrev_b32 v{T[1]}, 4, v{T[1]}
v_mov_b32 v{T[2]}, 0x3f80
v_lshlrev_b32 v{T[1]}, v{T[1]}, v{T[2]}
''')
for i in range(4): a(f'v_mov_b64 {vr(vID+2*i,2)}, 0')
for i in range(8):
    pos = 16 * (i >> 2) + 8 * ((i >> 1) & 1) + 2 * (i & 1)
    setexec(3 << pos, 3 << (pos + 4))
    a(f'v_mov_b32 v{vID+i}, v{T[1]}')
a('s_mov_b64 exec, -1')
stamp(1)
a(f's_waitcnt vmcnt({(1 if WPF else 0) + (1 if PFM == "f" else 0)}) lgkmcnt(0)')
pstamp(9)
bar(2)
cv = Conv(0)
for gi in range(3): tab_reads(gi, cv.ds)
def res_half(s):
    m = 0xffff0000 if s else 0xffff
    setexec(m, m)
    for ks in range(6):
        cv.ds(f'ds_read_b128 {vr(vRES+4*ks,4)}, v{vAR[ks&1]} offset:{64*(ks>>1)}')
    a('s_mov_b64 exec, -1')
def run_stage(left, frags, pairs, keep=0, mid=None):
    its = left + stage(frags)
    if pairs: add_pub(its, len(left), len(frags), pairs)
    if mid: its[mid[0]]['post'] = mid[1]
    return cv.run(its, len(its) - keep)
left = run_stage([], [('F',0,[0]), ('F',1,[0,1])], [], int(opt('keep0', 2)))
a('s_waitcnt vmcnt(0)')
pstamp(10)
bar(3)
left = run_stage(left, [('F',2,[0,1,2]), ('F',3,[1,2,3]), ('E',0,[0,1])], [0, 1], 0, (-4, lambda: res_half(0)))
a('s_waitcnt lgkmcnt(0)')
pstamp(11)
bar(4)
a(f's_setprio {opt("fprio2", 3)}')
left = run_stage(left, [('F',4,[2,3]), ('F',5,[3]), ('E',2,[2,3])], [2, 3], 0, (-4, lambda: res_half(1)))
signal(1)
stamp(5)
poll(GF, 1)
RA = 168
for ks in range(6):
    a(f'ds_read_b64 {vr(RA+4*ks,2)}, v{vFR[2*(ks&1)]} offset:{64*(ks>>1)}')
    a(f'ds_read_b64 {vr(RA+4*ks+2,2)}, v{vFR[2*(ks&1)+1]} offset:{64*(ks>>1)}')
signal(2)
peek(GL)
a(f's_setprio {opt("fprio3", 1)}')
a('s_waitcnt lgkmcnt(0)')
stamp(6)
check(GL, 1)
f_w1reads0()
ln(RA, 72, [vL + i for i in range(24)], False)
stamp(8)
XH = {
  ('T1', 1): [lambda: stamp(9)],
  ('T2', 1): [lambda: peek(GL)],
  ('preT1', 2): [lambda: check(GL, 4)],
  ('preT1', 4): [lambda: signal(3)],
  ('T2', 5): [lambda: peek(GL)],
  ('preT1', 6): [lambda: check(GL, 5), lambda: stamp(10)],
  ('preT1', 8): [lambda: stamp(11)],
  ('T2', 8): [lambda: peek(GF)],
  ('preT1', 9): [lambda: check(GF, 3)],
  ('T2', 9): [lambda: peek(GL)],
  ('preT1', 10): [lambda: check(GL, 6), lambda: stamp(12)],
}
FP = opt('fp', 'n')
def fprio(c):
    if FP == 'n': return (0, 0) if c == 0 else None
    if FP == 's': return (1, 1) if c == 0 else None
    return (0, int(FP))
mlp32(XH, fprio)
stamp(13)
P = vY[0]; Q = vK[0]
for mt in range(3):
    for i in range(8):
        a(f'v_cvt_pk_bf16_f32 v{P+8*mt+i}, v{vO+16*mt+2*i}, v{vO+16*mt+2*i+1}')
    a(f'ds_write_b128 v{vSW[0]}, {vr(P+8*mt,4)} offset:{64*mt}')
    a(f'ds_write_b128 v{vSW[1]}, {vr(P+8*mt+4,4)} offset:{64*mt}')
for s in range(2):
    for j in range(3):
        a(f'ds_read_b128 {vr(Q+4*(3*s+j),4)}, v{vSR[j]} offset:{3072*s}')
for s in range(2):
    for j in range(3):
        a(f's_waitcnt lgkmcnt({5-(3*s+j)})')
        a(f'buffer_store_dwordx4 {vr(Q+4*(3*s+j),4)}, v{vL16}, {srd(sOUT)}, s{sO1 if s else sO0} offen offset:{1024*j}{STPOL}')
finish()
emit_slow()

a.label('L_L')
cv = Conv(4)
if NX0 < 17:
    a('s_mov_b32 exec_hi, 0x0fffffff')
    xrows(17 - NX0)
    a('s_mov_b32 exec_hi, -1')
for gi in range(3): tab_reads(gi, cv.ds)
mksrd(sW1, 10, 73728); mksrd(sW2, 12, 73728)
a(f'''
v_lshrrev_b32 v{T[0]}, 3, v{vLN}
v_mul_u32_u24 v{T[0]}, 768, v{T[0]}
v_bfe_u32 v{T[1]}, v{vLN}, 4, 1
v_lshlrev_b32 v{T[1]}, 2, v{T[1]}
v_and_b32 v{T[2]}, 7, v{vLN}
v_xor_b32 v{T[1]}, v{T[1]}, v{T[2]}
v_lshl_add_u32 v{T[0]}, v{T[1]}, 4, v{T[0]}
s_and_b32 s{sT1}, s{sWI}, 1
s_lshl_b32 s{sT0}, s{sT1}, 5
v_xor_b32 v{vDW1[0]}, s{sT0}, v{T[0]}
v_xor_b32 v{vDW1[1]}, 32, v{vDW1[0]}
v_mov_b32 v{vDW2[0]}, v{vL16}
v_mov_b32 v{vDW2[1]}, v{vL16}
v_mov_b32 v{vDW2[2]}, v{vL16}
s_mov_b32 exec_lo, 0xffff0000
v_xor_b32 v{vDW2[2]}, 32, v{vL16}
s_mov_b32 exec_lo, 0
s_mov_b32 exec_hi, 0xffff0000
v_xor_b32 v{vDW2[0]}, 32, v{vL16}
s_mov_b32 exec_lo, -1
s_mov_b32 exec_hi, 0
v_xor_b32 v{vDW2[1]}, 32, v{vL16}
s_mov_b64 exec, -1
s_mul_i32 s{sWA}, s{sWI}, {3*6144}
s_mul_i32 s{sWBm}, s{sWI}, 3072
''')
pstamp(10)
a('s_waitcnt vmcnt(9)')
pstamp(11)
bar(3)
wdma(0)
W1P = int(opt('w1p', 1))
vA0, vA2 = 48, 50
RR = 60
a(f'''
s_add_u32 s{sO0}, s{sO0}, {8*43008}
v_lshrrev_b32 v{T[4]}, 4, v{vLN}
v_bfe_u32 v{T[0]}, v{vLN}, 2, 2
v_and_b32 v{T[2]}, 3, v{vLN}
v_bfe_u32 v{T[1]}, v{vLN}, 4, 1
v_lshlrev_b32 v{T[2]}, 3, v{T[2]}
v_lshl_add_u32 v{T[2]}, v{T[1]}, 5, v{T[2]}
v_lshl_add_u32 v{T[3]}, v{T[4]}, 3, v{T[0]}
v_lshl_add_u32 v{T[3]}, v{T[3]}, 7, v{T[2]}
v_bfe_u32 v{T[1]}, v{vLN}, 3, 1
v_xor_b32 v{T[1]}, s{sT1}, v{T[1]}
v_lshl_add_u32 v{T[3]}, v{T[1]}, 6, v{T[3]}
s_lshr_b32 s{sT2}, s{sWI}, 1
s_mul_i32 s{sT2}, s{sT2}, {PS}
s_sub_u32 s{sT3}, {PS}, s{sT2}
v_add_u32 v{vLW1}, s{sT2}, v{T[3]}
v_add_u32 v{vLW1+4}, s{sT3}, v{T[3]}
v_xor_b32 v{vLW1+1}, 32, v{vLW1}
v_xor_b32 v{vLW1+2}, 64, v{vLW1}
v_xor_b32 v{vLW1+3}, 0x60, v{vLW1}
v_xor_b32 v{vLW1+5}, 32, v{vLW1+4}
v_xor_b32 v{vLW1+6}, 64, v{vLW1+4}
v_xor_b32 v{vLW1+7}, 0x60, v{vLW1+4}
v_lshl_add_u32 v{T[3]}, v{T[4]}, 2, v{T[0]}
v_mul_u32_u24 v{T[3]}, 192, v{T[3]}
v_add_u32 v{T[3]}, v{T[3]}, v{T[2]}
s_mul_i32 s{sT1}, s{sT1}, 6144
s_add_u32 s{sT2}, s{sT2}, 12288
s_add_u32 s{sT3}, s{sT3}, 12288
s_add_u32 s{sT0}, s{sT2}, s{sT1}
v_add_u32 v{vLW2}, s{sT0}, v{T[3]}
s_add_u32 s{sT0}, s{sT3}, s{sT1}
v_add_u32 v{vLW2+4}, s{sT0}, v{T[3]}
s_sub_u32 s{sT1}, 6144, s{sT1}
s_add_u32 s{sT0}, s{sT2}, s{sT1}
v_add_u32 v{vLW2+2}, s{sT0}, v{T[3]}
s_add_u32 s{sT0}, s{sT3}, s{sT1}
v_add_u32 v{vLW2+6}, s{sT0}, v{T[3]}
v_xor_b32 v{vLW2+1}, 32, v{vLW2}
v_xor_b32 v{vLW2+3}, 32, v{vLW2+2}
v_xor_b32 v{vLW2+5}, 32, v{vLW2+4}
v_xor_b32 v{vLW2+7}, 32, v{vLW2+6}
v_xor_b32 v{T[0]}, v{T[4]}, v{T[0]}
v_and_b32 v{T[3]}, 15, v{vLN}
v_mul_u32_u24 v{T[3]}, 192, v{T[3]}
v_lshl_add_u32 v{T[0]}, v{T[0]}, 4, v{T[3]}
v_add_u32 v{vARL}, {L12}, v{T[0]}
v_bfe_u32 v{T[1]}, v{vLN}, 1, 1
v_lshl_add_u32 v{T[0]}, v{T[1]}, 3, v{T[0]}
v_add_u32 v{vA2}, {XB}, v{T[0]}
v_xor_b32 v{vA2+1}, 8, v{vA2}
s_mul_i32 s{sT0}, s{sWI}, {XROW}
v_add_u32 v{vA0}, s{sT0}, v{vA2}
v_xor_b32 v{vA0+1}, 8, v{vA0}
v_bfe_u32 v{T[1]}, v{vLN}, 4, 1
v_lshl_add_u32 v{T[3]}, v{T[1]}, 3, v{T[3]}
v_lshrrev_b32 v{T[4]}, 5, v{vLN}
v_bfe_u32 v{T[0]}, v{vLN}, 1, 2
v_xor_b32 v{T[0]}, v{T[4]}, v{T[0]}
v_lshl_add_u32 v{T[0]}, v{T[0]}, 4, v{T[3]}
v_add_u32 v{vSW[0]}, s{sIMG}, v{T[0]}
v_xor_b32 v{vSW[1]}, 32, v{vSW[0]}
v_add_u32 v{T[0]}, 2, v{vLN}
v_bfe_u32 v{T[0]}, v{T[0]}, 2, 2
v_xor_b32 v{T[0]}, v{T[4]}, v{T[0]}
v_lshl_add_u32 v{T[0]}, v{T[0]}, 4, v{T[3]}
s_add_u32 s{sT0}, s{sT0}, {XB + 384}
v_add_u32 v{vAR[0]}, s{sT0}, v{T[0]}
v_xor_b32 v{vAR[1]}, 32, v{vAR[0]}
''')
if W1P == 1: wdma(1)
pstamp(12)
a(f's_waitcnt vmcnt({12 if W1P == 1 else 6}) lgkmcnt(0)')
pstamp(13)
bar(4)
a(f's_setprio {opt("lprio", 2)}')
RED, LNW = 1, 3
def raw_reads(R, ad, off=0):
    for ks in range(3):
        a(f'ds_read_b64 {vr(R+4*ks,2)}, v{ad} offset:{off+64*ks}')
        a(f'ds_read_b64 {vr(R+4*ks+2,2)}, v{ad+1} offset:{off+64*ks}')
def row_store(O, soff):
    P = vY[0]; Q = vK[0]
    for i in range(12):
        a(f'v_cvt_pk_bf16_f32 v{P+i}, v{O+2*i}, v{O+2*i+1}')
    for i in range(6):
        a(f'ds_write_b64 v{vSW[i&1]}, {vr(P+2*i,2)} offset:{64*(i>>1)}')
    for j in range(3):
        a(f'ds_read_b128 {vr(Q+4*j,4)}, v{vSR[j]}')
    for j in range(3):
        a(f's_waitcnt lgkmcnt({2-j})')
        a(f'buffer_store_dwordx4 {vr(Q+4*j,4)}, v{vL16}, {srd(sOUT)}, s{soff} offen offset:{1024*j}{STPOL}')
LP = opt('lp', 'k')
def lprio(c):
    if LP == 'n': return (0, 0) if c == 0 else None
    if LP == 's': return (1, 1) if c == 0 else None
    if LP == 'k':
        lo, hi = [int(x) for x in opt('lk', '0,6').split(',')]
        if lo <= c < hi: return (0, 1)
        return (0, 0) if c in (0, hi) else None
    return (0, int(LP))
def l_body(h13):
    global cv
    keep = cv
    cv = copy.copy(keep)
    sfx = 'a' if h13 else 'b'
    if h13:
        frags = [('F',4,[4]), ('F',5,[4,5]), ('F',6,[4,5,6]), ('F',7,[5,6]), ('E',4,[4,5]), ('F',8,[6]), ('L',6,[6])]; pairs = [4, 5, 6]
    else:
        frags = [('F',4,[4]), ('F',5,[4,5]), ('F',6,[4,5]), ('F',7,[5]), ('E',4,[4,5])]; pairs = [4, 5]
    its = stage(frags)
    add_pub(its, 0, len(frags), pairs, True)
    def resr():
        for i in range(6):
            cv.ds(f'ds_read_b64 {vr(RR+2*i,2)}, v{vAR[i&1]} offset:{10*XROW+64*(i>>1)}')
        if h13:
            for i in range(6):
                cv.ds(f'ds_read_b64 {vr(RR+12+2*i,2)}, v{vAR[i&1]} offset:{(14-RED)*XROW+64*(i>>1)}')
    its[-4]['post'] = resr
    def wl():
        a('s_waitcnt vmcnt(0)')
        signal(1, cv.ds)
    its[int(opt('wlpos', 6))]['post'] = wl
    if W1P != 1:
        for j in range(3): its[j]['post'] = lambda j=j: wdma(1, [2*j, 2*j+1])
    cv.run(its)
    poll(GF, 2)
    cv.write([(gi, k) for gi in range(3) for k in pairs])
    signal(2)
    wdma(2, [0, 1, 2])
    for i in range(12):
        a(f'v_lshlrev_b32 v{vO+2*i}, 16, v{RR+i}\nv_and_b32 v{vO+2*i+1}, 0xffff0000, v{RR+i}')
    if h13:
        a(f's_cmp_eq_u32 s{sWI}, {RED}\ns_cbranch_scc1 L_ri{sfx}')
        for i in range(12): a(f'v_mov_b64 {vr(vO+24+2*i,2)}, 0')
        a(f's_branch L_rj{sfx}')
        a.label(f'L_ri{sfx}')
        for i in range(12):
            a(f'v_lshlrev_b32 v{vO+24+2*i}, 16, v{RR+12+i}\nv_and_b32 v{vO+24+2*i+1}, 0xffff0000, v{RR+12+i}')
        a.label(f'L_rj{sfx}')
    stamp(5)
    poll(GL, 2)
    stamp(7)
    RAW = 168
    raw_reads(RAW, vA0, 6 * XROW)
    if h13: raw_reads(RAW + 12, vA2)
    l_w1reads(0)
    wdma(2, [3, 4, 5])
    if h13:
        a(f's_cmp_lg_u32 s{sWI}, {LNW}\ns_cbranch_scc1 L_nl12\ns_waitcnt lgkmcnt(12)')
        ln(RAW + 12, 72, [RAW + 12 + i for i in range(12)], True)
        for ks in range(3):
            a(f'ds_write_b128 v{vARL}, {vr(RAW+12+4*ks,4)} offset:{64*ks}')
        a.label('L_nl12')
    signal(3)
    a('s_waitcnt lgkmcnt(13)')
    ln(RAW, 72, [vL + i for i in range(12)], True)
    stamp(8)
    def l12r():
        for ks in range(3):
            a(f'ds_read_b128 {vr(vL+12+4*ks,4)}, v{vARL} offset:{64*ks}')
    def pub_rem():
        a(f's_cmp_eq_u32 s{sWI}, {RED}\ns_cbranch_scc1 L_np\ns_mul_i32 s{sT0}, s{sWI}, 6144\nv_add_u32 v{T[0]}, s{sT0}, v{vL16}')
        for i in range(6):
            a(f'ds_write_b128 v{T[0]}, {vr(vO+24+4*i,4)} offset:{S_R + 1024*i}')
        a.label('L_np')
        signal(7)
    H = {
      'start3': [lambda: peek(GL)],
      ('preT1', 0): [lambda: check(GL, 3)],
      ('T1', 0): [lambda: wdma(3, [0, 1, 2])],
      ('T2', 0): [lambda: wdma(3, [3, 4, 5])],
      ('T1', 1): [lambda: wdma(4, [0, 1, 2]), lambda: stamp(9)] + ([l12r] if h13 else []),
      ('preT2', 1): [lambda: landed(3, 4)],
      ('T2', 1): [lambda: wdma(4, [3, 4, 5]), lambda: peek(GL)],
      ('preT1', 2): [lambda: check(GL, 4)],
      ('T1', 2): [lambda: wdma(5, [0, 1, 2])],
      ('T2', 2): [lambda: wdma(5, [3, 4, 5])],
      ('preT1', 4): [lambda: landed(0, 6)],
      ('T2', 5): [lambda: peek(GL)],
      ('preT1', 6): [lambda: check(GL, 6), lambda: stamp(10)],
      ('preT1', 8): [lambda: stamp(11)],
      ('preT1', 10): [lambda: stamp(12)],
    }
    if h13:
        H[('T2', 9)] = [lambda: peek(GF)]
        H[('preT1', 10)] = H[('preT1', 10)] + [lambda: check(GF, 3), pub_rem]
    mlp16([3, 5, 8] if h13 else [], H, lprio)
    stamp(13)
    row_store(vO, sO0)
    if h13:
        a(f's_cmp_lg_u32 s{sWI}, {RED}\ns_cbranch_scc1 L_fin{sfx}')
        poll(GL, 7)
        others = [w for w in range(4) if w != RED]
        for n, w in enumerate(others):
            for i in range(6):
                a(f'ds_read_b128 {vr(144+24*n+4*i,4)}, v{vL16} offset:{S_R + 6144*w + 1024*i}')
        for n in range(3):
            a(f's_waitcnt lgkmcnt({12 - 6*n})')
            for i in range(12):
                a(f'v_pk_add_f32 {vr(vO+24+2*i,2)}, {vr(vO+24+2*i,2)}, {vr(144+24*n+2*i,2)}')
        a(f's_add_u32 s{sO1}, s{sO0}, {(4-RED)*43008}')
        row_store(vO + 24, sO1)
        a.label(f'L_fin{sfx}')
    finish()
    emit_slow()
    cv = keep
a(f's_cmp_lg_u32 s{sH13}, 13\ns_cbranch_scc1 L_L12')
l_body(True)
a.label('L_L12')
l_body(False)
a.label('L_end')
a('s_endpgm')

body = a.finalize()
hdr = open('cdna_kernels/' + NAME + '.s.ref').read().split('\n')
out = []
for l in hdr:
    if l.startswith('; @launch'):
        out.append('; @launch grid=(256,1,1) block=(512,1,1) lds=163840')
    elif l.startswith(';'):
        out.append(l)
    else:
        break
out.append('.amdgcn_target "amdgcn-amd-amdhsa--gfx950"')
out.append('.text')
out.append(f'.globl {NAME}_kernel')
out.append('.p2align 8')
out.append(f'.type {NAME}_kernel,@function')
out.append(f'{NAME}_kernel:')
for l in body:
    out.append(l if l.endswith(':') else '    ' + l)
out.append(f'''.section .rodata,"a"
.p2align 6
.amdhsa_kernel {NAME}_kernel
  .amdhsa_next_free_vgpr 256
  .amdhsa_next_free_sgpr 102
  .amdhsa_accum_offset 256
  .amdhsa_group_segment_fixed_size 0
  .amdhsa_kernarg_size 64
  .amdhsa_user_sgpr_count 2
  .amdhsa_user_sgpr_kernarg_segment_ptr 1
  .amdhsa_system_sgpr_workgroup_id_x 1
.end_amdhsa_kernel''')
print('\n'.join(out))
```

```python
import sys, struct, math, copy
from asmlib import Asm

NAME = "standalone__modern_conv_block_replknet__vision"
def fbits(x): return struct.unpack('<I', struct.pack('<f', x))[0]
def opt(name, default=None):
    for x in sys.argv:
        if x == '--' + name: return True
        if x.startswith('--' + name + '='): return x.split('=', 1)[1]
    return default
STAMP = opt('stamp'); CYC = opt('cyc'); PRO = opt('pro')
STPOL = ' ' + opt('stpol', 'sc1').replace('_', ' ') if opt('stpol', 'sc1') != 'none' else ''
FOLD = opt('fold', '1') == '1'
GL, GF = (1, 0) if FOLD else (0, 1)

XROW = 3840
XB = 73728
PS = 24576
TB, TP = 139264, 976
EXTRA = 155136
L12 = 147456
FL = 163584
S_IF, S_R, S_IL = 0, 24576, 150528
MARK = 0x40000000
XBYTES = 224 * 224 * 192

k0 = math.sqrt(2.0 / math.pi); k1 = 0.044715
c0 = 2 * k0 / math.log(2.0); c1 = c0 * k1
ga = c1 ** (1.0 / 3.0)
gc = -c0 / ga

sX, sDL, sDS, sW1, sW2, sOUT = 16, 20, 24, 28, 32, 36
sWV, sY0, sX0, sT0, sT1, sT2, sT3 = 40, 41, 42, 43, 44, 45, 46
sH13, sWI = 47, 3
sCA, sCC = 48, 50
sWS = 52
sXM, sIMG = 56, 57
sWA, sWBm = 58, 59
sO0, sO1 = 60, 61
sST = 64
NST = 16
def srd(b): return f's[{b}:{b+3}]'
vO, vL, vY, vK, vG, vF1, vF2 = 0, 48, [72, 88], [104, 120], 136, 144, 168
vRES, vID = 204, 228
vAW1 = [236, 237, 245, 249]; vAW2 = 238
vLW1 = 204; vLW2 = 212
vDW1 = [220, 221]; vDW2 = [222, 223, 224]
vARL = 225
vSW = [239, 240]; vSR = [241, 242, 243]
vL16 = 244
vFA, vFW, vFP = 246, 247, 248
T = [250, 251, 252, 253, 254]
vLN = 255
vXO = 203; vPF = 227
vAF, vAE, vAO, vIDX, vTF0, vTF1, vTE, vAR, vAE16, vAO1 = 192, 193, 194, 195, 196, 197, 198, [199, 200], 201, 202
vACC, vAFR, vB = 0, 84, 144
def vr(b, n): return f'v[{b}:{b+n-1}]'

a = Asm()
def _st(i): a(f'{"s_memtime" if CYC else "s_memrealtime"} s[{sST+2*i}:{sST+2*i+1}]')
def pstamp(i):
    if STAMP and PRO: _st(i)
def stamp(i):
    if STAMP and not (PRO and 9 <= i <= 14): _st(i)
def mksrd(b, lo, n):
    a(f's_mov_b64 s[{b}:{b+1}], s[{lo}:{lo+1}]\ns_mov_b32 s{b+2}, {n}\ns_mov_b32 s{b+3}, 0x00020000')
def bar(i=None):
    a('s_barrier')
    if i is not None: stamp(i)
def setexec(lo, hi):
    a(f's_mov_b32 exec_lo, {lo:#x}\ns_mov_b32 exec_hi, {hi:#x}')

nlab = [0]; slow = []
def guard():
    if opt('safe'): a('s_sub_u32 s98, s98, 1\ns_cbranch_scc1 L_end')
def signal(v, emit=None):
    a(f'v_mov_b32 v{T[4]}, {v}')
    (emit or a)(f'ds_write_b32 v{vFW}, v{T[4]}')
def poll(grp, v):
    lab = f'L_poll{nlab[0]}'; nlab[0] += 1
    a.label(lab)
    guard()
    a(f'ds_read_b32 v{vFP}, v{vFA} offset:{16*grp}\ns_waitcnt lgkmcnt(0)\nv_cmp_gt_u32 vcc, {v}, v{vFP}\ns_cbranch_vccnz {lab}')
def peek(grp): a(f'ds_read_b32 v{vFP}, v{vFA} offset:{16*grp}')
def check(grp, v):
    n = nlab[0]; nlab[0] += 1
    a(f'v_cmp_gt_u32 vcc, {v}, v{vFP}\ns_cbranch_vccnz L_slow{n}')
    a.label(f'L_back{n}')
    slow.append((n, grp, v))
def emit_slow():
    for n, grp, v in slow:
        a.label(f'L_slow{n}')
        guard()
        a(f'ds_read_b32 v{vFP}, v{vFA} offset:{16*grp}\ns_waitcnt lgkmcnt(0)\nv_cmp_gt_u32 vcc, {v}, v{vFP}\ns_cbranch_vccnz L_slow{n}\ns_branch L_back{n}')
    slow.clear()
def landed(n, v):
    a(f's_waitcnt vmcnt({n})'); signal(v)

def wdma(p, parts=range(6)):
    for i in parts:
        if i < 3:
            a(f'''
            s_add_u32 m0, s{sWBm}, {PS*p + 1024*i}
            s_add_u32 s{sT0}, s{sWA}, {6144*i + 128*p}
            buffer_load_dwordx4 v{vDW1[i & 1]}, {srd(sW1)}, s{sT0} offen lds
            ''')
        else:
            if i == 3 or i - 1 not in parts:
                a(f's_add_u32 m0, s{sWBm}, {PS*p + 12288}\ns_add_u32 s{sT0}, s{sWBm}, {12288*p}')
            a(f'buffer_load_dwordx4 v{vDW2[i-3]}, {srd(sW2)}, s{sT0} offen offset:{1024*(i-3)} lds')

def ln(raw, U, dst, rows16):
    n = len(dst)
    S, Q, ONE = T[1], T[3], T[4]
    sc, bi = T[0], T[2]
    a(f'v_mov_b32 v{ONE}, 0x3f803f80')
    for i in range(n):
        a(f'v_dot2_f32_bf16 v{S}, v{raw+i}, v{ONE}, {"0" if i == 0 else f"v{S}"}')
        a(f'v_dot2_f32_bf16 v{Q}, v{raw+i}, v{raw+i}, {"0" if i == 0 else f"v{Q}"}')
    un = []
    for i in range(n):
        un.append(f'v_lshlrev_b32 v{U+2*i}, 16, v{raw+i}')
        un.append(f'v_and_b32 v{U+2*i+1}, 0xffff0000, v{raw+i}')
    def fill(k):
        for _ in range(k):
            if un: a(un.pop(0))
    fill(3)
    a(f'v_permlane32_swap_b32 v{S}, v{Q}')
    a(f'v_add_f32 v{S}, v{S}, v{Q}')
    if rows16:
        a(f'v_mov_b32 v{Q}, v{S}')
        fill(2)
        a(f'v_permlane16_swap_b32 v{S}, v{Q}')
        a(f'v_add_f32 v{S}, v{S}, v{Q}')
    a(f'v_mul_f32 v{S}, {fbits(1.0/96):#x}, v{S}')
    a(f'v_mov_b32 v{Q}, v{S}')
    fill(2)
    a(f'v_permlane32_swap_b32 v{S}, v{Q}')
    a(f'''
    v_fma_f32 v{Q}, -v{S}, v{S}, v{Q}
    v_max_f32 v{Q}, 0, v{Q}
    v_add_f32 v{Q}, {fbits(1e-5):#x}, v{Q}
    v_rsq_f32 v{Q}, v{Q}
    ''')
    fill(1)
    a(f'v_mul_f32 v{sc}, {fbits(ga):#x}, v{Q}')
    a(f'v_mul_f32 v{bi}, -v{S}, v{sc}')
    fill(1000)
    for i in range(n):
        if opt('lnplain'):
            a(f'v_fma_f32 v{U+2*i}, v{U+2*i}, v{sc}, v{bi}\nv_fma_f32 v{U+2*i+1}, v{U+2*i+1}, v{sc}, v{bi}')
        else:
            a(f'v_pk_fma_f32 {vr(U+2*i,2)}, {vr(U+2*i,2)}, {vr(sc,2)}, {vr(bi,2)} op_sel_hi:[1,0,0]')
    for i in range(n):
        a(f'v_cvt_pk_bf16_f32 v{dst[i]}, v{U+2*i}, v{U+2*i+1}')

def pk_t(Y, K, n):
    return [f'v_pk_fma_f32 {vr(K+2*i,2)}, {vr(Y+2*i,2)}, {vr(Y+2*i,2)}, s[{sCC}:{sCC+1}] neg_lo:[1,0,0] neg_hi:[1,0,0]' for i in range(n//2)] + pk_m(Y, K, n)
def pk_m(Y, K, n): return [f'v_pk_mul_f32 {vr(K+2*i,2)}, {vr(Y+2*i,2)}, {vr(K+2*i,2)}' for i in range(n//2)]
def pk_d(K, n): return [f'v_pk_fma_f32 {vr(K+2*i,2)}, {vr(K+2*i,2)}, s[{sCA}:{sCA+1}], s[{sCA}:{sCA+1}]' for i in range(n//2)]
def emit(l):
    for t in l: a(t)

def mlp32(hooks, prio):
    N = 12
    moved = {'w1': False, 'w2': False}
    def move(kind, c):
        if c >= 6 and not moved[kind]:
            for r in (vAW1 if kind == 'w1' else [vAW2]): a(f'v_add_u32 v{r}, {3*PS}, v{r}')
            moved[kind] = True
    def w1reads(c):
        for ks in range(6):
            off = ((c >> 1) % 3) * PS + (ks >> 1) * 4096 + (ks & 1) * 1024
            r = vAW1[(c & 1) + 2 * (ks & 1)]
            a(f'ds_read_b64_tr_b16 {vr(vF1+4*ks,2)}, v{r} offset:{off}')
            a(f'ds_read_b64_tr_b16 {vr(vF1+4*ks+2,2)}, v{r} offset:{off+512}')
    def w2reads(c):
        for i in range(6):
            ks2, mt = i // 3, i % 3
            off = ((c >> 1) % 3) * PS + (c & 1) * 6144 + ks2 * 3072 + mt * 64
            a(f'ds_read_b64_tr_b16 {vr(vF2+4*i,2)}, v{vAW2} offset:{off}')
            a(f'ds_read_b64_tr_b16 {vr(vF2+4*i+2,2)}, v{vAW2} offset:{off+1536}')
    def g1(c, ks):
        Y = vY[c & 1]
        a(f'v_mfma_f32_32x32x16_bf16 {vr(Y,16)}, {vr(vF1+4*ks,4)}, {vr(vL+4*ks,4)}, {"0" if ks == 0 else vr(Y,16)}')
    def g2(i):
        ks2, mt = i // 3, i % 3
        a(f'v_mfma_f32_32x32x16_bf16 {vr(vO+16*mt,16)}, {vr(vF2+4*i,4)}, {vr(vG+4*ks2,4)}, {vr(vO+16*mt,16)}')
    def resm(ks):
        j, mt = ks // 3, ks % 3
        a(f'v_mfma_f32_32x32x16_bf16 {vr(vO+16*mt,16)}, {vr(vID+4*j,4)}, {vr(vRES+4*(2*mt+j),4)}, {"0" if j == 0 else vr(vO+16*mt,16)}')
    def hook(k):
        for f in hooks.get(k, []): f()
    def pr(c, v):
        if prio(c) is not None: a(f's_setprio {prio(c)[v]}')
    hook('pre')
    a('s_waitcnt lgkmcnt(0)')
    for ks in range(6): g1(0, ks)
    w1reads(1)
    hook('start3')
    for c in range(N + 1):
        Y, K = vY[c & 1], vK[c & 1]
        Yp, Kp = vY[(c - 1) & 1], vK[(c - 1) & 1]
        pr(c, 1)
        if c >= 1: emit(pk_m(Yp, Kp, 16))
        if c < N: emit(pk_t(Y, K, 16))
        cv = [f'v_cvt_pk_bf16_f32 v{vG+i}, v{Kp+2*i}, v{Kp+2*i+1}' for i in range(8)] if c >= 1 else []
        if c == N:
            emit(cv)
            a('s_waitcnt lgkmcnt(0)')
            for i in (0, 3, 1, 4, 2, 5): g2(i)
            break
        ex = [f'v_exp_f32 v{K+i}, v{K+i}' for i in range(16)]
        rc = [f'v_rcp_f32 v{K+i}, v{K+i}' for i in range(16)]
        last = c + 1 >= N
        if c + 2 < N: move('w1', c + 2)
        move('w2', c)
        if c == 0:
            gaps = [ex[0:3], ex[3:6], ex[6:9], ex[9:12], ex[12:15], ex[15:16]]
            a('s_waitcnt lgkmcnt(0)')
            for j in range(6):
                g1(1, j); emit(gaps[j])
        elif not last:
            gaps = [cv[0:4] + ex[0:1], cv[4:8] + ex[1:2], ex[2:5], ex[5:8], ex[8:11], ex[11:14], ex[14:16]]
            for j in range(7):
                if j < 6: g1(c + 1, j)
                else: g2(0)
                if j == 5: a('s_waitcnt lgkmcnt(0)')
                emit(gaps[j])
        else:
            emit(cv); emit(ex[0:4])
            a('s_waitcnt lgkmcnt(0)')
            gaps = [ex[4:8], ex[8:12], ex[12:16]]
            for j in range(3):
                g2(j); emit(gaps[j])
        hook(('preT1', c))
        pr(c, 0)
        if c + 2 < N: w1reads(c + 2)
        hook(('T1', c))
        pr(c, 1)
        emit(pk_d(K, 16))
        if c == 0:
            gp = [rc[0:3], rc[3:6], rc[6:9], rc[9:12], rc[12:14], rc[14:16]]
            for j in range(6):
                resm(j)
                if j == 5: a('s_waitcnt lgkmcnt(0)')
                emit(gp[j])
        elif not last:
            gp = [rc[0:3], rc[3:6], rc[6:9], rc[9:12], rc[12:16]]
            for j in range(5):
                g2(j + 1)
                if j == 4: a('s_waitcnt lgkmcnt(0)')
                emit(gp[j])
        else:
            gp = [rc[0:3], rc[3:6], rc[6:16]]
            for j in range(3):
                g2(j + 3)
                if j == 2: w2reads(c)
                emit(gp[j])
        hook(('preT2', c))
        pr(c, 0)
        if not last: w2reads(c)
        hook(('T2', c))
    return w1reads

def f_w1reads0():
    for ks in range(6):
        off = (ks >> 1) * 4096 + (ks & 1) * 1024
        r = vAW1[2 * (ks & 1)]
        a(f'ds_read_b64_tr_b16 {vr(vF1+4*ks,2)}, v{r} offset:{off}')
        a(f'ds_read_b64_tr_b16 {vr(vF1+4*ks+2,2)}, v{r} offset:{off+512}')

def l_w1reads(s):
    for i in range(6):
        mt2, ks3 = i // 3, i % 3
        off = ((s >> 2) & 1) * 2 * PS + ks3 * 4096
        r = vLW1 + mt2 + 2 * (s & 3)
        a(f'ds_read_b64_tr_b16 {vr(vF1+4*i,2)}, v{r} offset:{off}')
        a(f'ds_read_b64_tr_b16 {vr(vF1+4*i+2,2)}, v{r} offset:{off+512}')

def mlp16(doubles, hooks, prio):
    N = 12
    def wid(s): return 0 if (s < 0 or s >= N) else (2 if s in doubles else 1)
    def move(base):
        for r in range(8): a(f'v_add_u32 v{base+r}, {4*PS}, v{base+r}')
    def w2reads(s):
        for i in range(6):
            off = ((s >> 2) & 1) * 2 * PS + 64 * (i >> 1)
            r = vLW2 + (i & 1) + 2 * (s & 3)
            a(f'ds_read_b64_tr_b16 {vr(vF2+4*i,2)}, v{r} offset:{off}')
            a(f'ds_read_b64_tr_b16 {vr(vF2+4*i+2,2)}, v{r} offset:{off+3072}')
    def m1(s):
        l = []
        for t in range(wid(s)):
            for j in range(6):
                mt2, ks3 = j & 1, j >> 1
                D = vY[s & 1] + 8 * t + 4 * mt2
                l.append(f'v_mfma_f32_16x16x32_bf16 {vr(D,4)}, {vr(vF1+4*(mt2*3+ks3),4)}, {vr(vL+12*t+4*ks3,4)}, {"0" if ks3 == 0 else vr(D,4)}')
        return l
    def m2(s):
        return [f'v_mfma_f32_16x16x32_bf16 {vr(vO+24*t+4*i,4)}, {vr(vF2+4*i,4)}, {vr(vG+4*t,4)}, {vr(vO+24*t+4*i,4)}' for t in range(wid(s)) for i in range(6)]
    def weave(ms, fl):
        fl = list(fl)
        if not ms:
            emit(fl); a('s_waitcnt lgkmcnt(0)'); return
        for j, m in enumerate(ms):
            a(m)
            if j == len(ms) - 1: a('s_waitcnt lgkmcnt(0)')
            k = -(-len(fl) // (len(ms) - j))
            emit(fl[:k]); fl = fl[k:]
    def hook(k):
        for f in hooks.get(k, []): f()
    def pr(c, v):
        if prio(c) is not None: a(f's_setprio {prio(c)[v]}')
    hook('pre')
    a('s_waitcnt lgkmcnt(0)')
    emit(m1(0))
    l_w1reads(1)
    hook('start3')
    for s in range(N + 1):
        Y, K = vY[s & 1], vK[s & 1]
        Yp, Kp = vY[(s - 1) & 1], vK[(s - 1) & 1]
        n, np_ = 8 * wid(s), 8 * wid(s - 1)
        pr(s, 1)
        emit(pk_m(Yp, Kp, np_))
        emit(pk_t(Y, K, n))
        cv = [f'v_cvt_pk_bf16_f32 v{vG+i}, v{Kp+2*i}, v{Kp+2*i+1}' for i in range(np_ // 2)]
        if s == N:
            emit(cv)
            a('s_waitcnt lgkmcnt(0)')
            emit(m2(N - 1))
            break
        ex = [f'v_exp_f32 v{K+i}, v{K+i}' for i in range(n)]
        rc = [f'v_rcp_f32 v{K+i}, v{K+i}' for i in range(n)]
        if s + 2 == 8: move(vLW1)
        if s == 8: move(vLW2)
        if s == 0: a('s_waitcnt lgkmcnt(0)')
        weave(m1(s + 1), cv + ex)
        hook(('preT1', s))
        pr(s, 0)
        if s + 2 < N: l_w1reads(s + 2)
        hook(('T1', s))
        pr(s, 1)
        emit(pk_d(K, n))
        weave(m2(s - 1), rc)
        hook(('preT2', s))
        pr(s, 0)
        w2reads(s)
        hook(('T2', s))

def finish():
    if STAMP:
        stamp(14)
        a('s_waitcnt vmcnt(0)')
        stamp(15)
        a('s_waitcnt lgkmcnt(0)')
        if opt('dbg'):
            n = nlab[0]; nlab[0] += 1
            a(f's_cmp_lg_u32 s2, {opt("dbg")}\ns_cbranch_scc1 L_nd{n}\ns_cmp_lg_u32 s{sWI}, 0\ns_cbranch_scc1 L_nd{n}')
            a(f's_lshl_b32 s{sT0}, s{sWV}, 3\nv_mov_b32 v{T[1]}, s{sT0}\ns_mov_b64 exec, 1')
            for k, i in enumerate((1, 2, 3, 4, 8, 10, 13, 15)):
                a(f's_sub_u32 s{sT0}, s{sST+2*i}, s{sST}\nv_mov_b32 v{T[0]}, s{sT0}')
                a(f'buffer_store_dword v{T[0]}, v{T[1]}, {srd(sWS)}, 0 offen offset:{4*k}')
            a.label(f'L_nd{n}')
            a('s_endpgm')
            return
        a(f'''
        s_lshl_b32 s{sT0}, s2, 3
        s_add_u32 s{sT0}, s{sT0}, s{sWV}
        s_lshl_b32 s{sT0}, s{sT0}, 6
        v_mov_b32 v{T[1]}, s{sT0}
        s_mov_b64 exec, 1
        ''')
        for i in range(NST):
            a(f'v_mov_b32 v{T[0]}, s{sST+2*i}')
            a(f'buffer_store_dword v{T[0]}, v{T[1]}, {srd(sWS)}, 0 offen offset:{4*i}')
    a('s_endpgm')

def tab_reads(gi, em):
    A = vAFR + 20 * gi; o = 64 * gi
    for d in range(3):
        em(f'ds_read_b64_tr_b16 {vr(A+4*d,2)}, v{vTF0} offset:{o + 2*d*TP}')
        em(f'ds_read_b64_tr_b16 {vr(A+4*d+2,2)}, v{vTF1} offset:{o + 2*d*TP}')
    for par in range(2):
        for pp in range(2):
            em(f'ds_read_b64_tr_b16 {vr(A+12+4*par+2*pp,2)}, v{vTE} offset:{o + (pp - 2*par + 2)*TP}')
RING = 6
class Conv:
    def __init__(self, k0): self.n = 0; self.slot = 0; self.k0 = k0
    def acc(self, gi, k): return vACC + 16 * gi + 4 * (k - self.k0)
    def ds(self, t): a(t); self.n += 1; return self.n
    def wait(self, seq): a(f's_waitcnt lgkmcnt({min(15, self.n - seq)})')
    def reads(self, it):
        B = it['B']; go = 64 * it['gi']; idx = it['idx']; kind = it['kind']
        if kind == 'F':
            r0, r1 = 2 * idx, min(2 * idx + 1, 16)
            return [f'ds_read_b128 {vr(B,4)}, v{vAF} offset:{r0*XROW+go}', f'ds_read_b128 {vr(B+4,4)}, v{vAF} offset:{r1*XROW+go}']
        if kind == 'E':
            return [f'ds_read_b128 {vr(B,4)}, v{vAE} offset:{2*idx*XROW+go}', f'ds_read_b128 {vr(B+4,4)}, v{vAE} offset:{(2*idx+4)*XROW+go}']
        return [f'ds_read_b128 {vr(B,4)}, v{vAE} offset:{12*XROW+go}', f'ds_read_b128 {vr(B+4,4)}, v{vAE16} offset:{16*XROW+go}']
    def cvt(self, lst):
        for gi, k in lst:
            A = self.acc(gi, k)
            a(f'v_cvt_pk_bf16_f32 v{A}, v{A}, v{A+1}\nv_cvt_pk_bf16_f32 v{A+1}, v{A+2}, v{A+3}')
    def write(self, lst):
        for gi, k in lst:
            A = self.acc(gi, k)
            if k == 1: self.ds(f'ds_write_b64 v{vAO1}, {vr(A,2)} offset:{64*gi}')
            else: self.ds(f'ds_write_b64 v{vAO}, {vr(A,2)} offset:{(0 if k in (0, 6) else 2*k-2)*XROW+64*gi}')
    def run(self, items, stop_at=None):
        D = RING - 1
        nxt = 0
        while nxt < len(items) and 'seq' in items[nxt]: nxt += 1
        def start(j):
            items[j]['B'] = vB + 8 * (self.slot % RING); self.slot += 1
            return self.reads(items[j])
        while nxt < min(D, len(items)):
            for t in start(nxt): items[nxt]['seq'] = self.ds(t)
            nxt += 1
        end = len(items) if stop_at is None else stop_at
        for i in range(end):
            it = items[i]
            self.wait(it['seq'])
            pend = start(nxt) if nxt < len(items) else []
            A = vAFR + 20 * it['gi']
            had = bool(pend)
            for k in it['outs']:
                fr = (it['idx'] - k) if it['kind'] == 'F' else 3 + (k - it['idx'])
                a(f'v_smfmac_f32_16x16x64_bf16 {vr(self.acc(it["gi"], k),4)}, {vr(A+4*fr,4)}, {vr(it["B"],8)}, v{vIDX}')
                if pend: items[nxt]['seq'] = self.ds(pend.pop(0))
            for t in pend: items[nxt]['seq'] = self.ds(t)
            if had: nxt += 1
            if it.get('pub'):
                self.cvt(it['pub'])
                if not it.get('nowrite'): self.write(it['pub'])
            if it.get('post'): it['post']()
        return items[end:]
def stage(frags): return [dict(gi=gi, kind=k, idx=i, outs=list(o)) for gi in range(3) for (k, i, o) in frags]
def add_pub(items, base, nfr, pairs, nowrite=False):
    for gi in range(3):
        j = min(base + nfr * (gi + 1), len(items) - 1)
        items[j].setdefault('pub', []).extend((gi, k) for k in pairs)
        items[j]['nowrite'] = nowrite

isF = 's_cmp_lt_u32' if FOLD else 's_cmp_ge_u32'
a(f'''
s_load_dwordx4 s[4:7], s[0:1], 0
s_load_dwordx4 s[8:11], s[0:1], 16
s_load_dwordx4 s[12:15], s[0:1], 32
s_getpc_b64 s[100:101]
L_pc:
''')
if STAMP: a(f's_load_dwordx2 s[{sWS}:{sWS+1}], s[0:1], {48 if opt("dbg") else 56}')
stamp(0)
a(f'''
s_cmp_ge_u32 s2, 256
s_cbranch_scc1 L_end
v_lshrrev_b32 v{T[0]}, 6, v0
v_and_b32 v{vLN}, 63, v0
''')
PFM = opt('pf', 'f')
if PFM == 'first':
    a(f'''
    s_bfe_u32 s{sT3}, s2, 0x20003
    s_mul_i32 s{sT3}, s{sT3}, {80*128}
    v_mul_u32_u24 v{T[1]}, 10, v{T[0]}
    v_add_u32 v{T[1]}, v{T[1]}, v{vLN}
    v_lshl_add_u32 v{T[1]}, v{T[1]}, 7, s{sT3}
    v_min_u32 v{T[1]}, L_end-L_pc, v{T[1]}
    s_mov_b64 exec, 0x3ff
    global_load_dword v{vPF}, v{T[1]}, s[100:101]
    s_mov_b64 exec, -1
    ''')
a(f'''
s_lshr_b32 s{sT1}, s2, 3
v_readfirstlane_b32 s{sWV}, v{T[0]}
s_and_b32 s{sT2}, s2, 1
s_add_u32 s{sT2}, s{sT2}, s{sT1}
s_cmp_ge_u32 s{sT2}, 32
s_cbranch_scc1 L_end
s_and_b32 s{sT0}, s2, 3
v_mul_u32_u24 v{T[0]}, 43, v{vLN}
s_mul_i32 s{sT0}, s{sT0}, 63
s_add_u32 s{sT0}, s{sT0}, 1
v_lshrrev_b32 v{T[0]}, 9, v{T[0]}
s_lshr_b32 s{sT0}, s{sT0}, 1
s_add_u32 s{sT0}, s{sT0}, s{sT1}
v_mul_u32_u24 v{T[1]}, 12, v{T[0]}
s_mul_i32 s{sT1}, s{sT0}, 9363
s_lshr_b32 s{sT1}, s{sT1}, 16
v_sub_u32 v{T[1]}, v{vLN}, v{T[1]}
s_mul_i32 s{sT2}, s{sT1}, 7
s_sub_u32 s{sT0}, s{sT0}, s{sT2}
s_bfe_u32 s{sT2}, s2, 0x10002
s_mul_i32 s{sT2}, s{sT2}, 7
s_add_u32 s{sT0}, s{sT0}, s{sT2}
s_lshl_b32 s{sX0}, s{sT0}, 4
s_mul_i32 s{sY0}, s{sT1}, {112*7282}
s_add_u32 s{sH13}, s{sY0}, {112*7282}
s_lshr_b32 s{sY0}, s{sY0}, 16
s_and_b32 s{sWI}, s{sWV}, 3
v_mov_b32 v{T[4]}, {MARK}
v_lshlrev_b32 v{vL16}, 4, v{vLN}
{isF} s{sWV}, 4
s_cbranch_scc1 L_F0
; ---- L: x rows
s_setprio {opt('lprio0', 0)}
s_mul_i32 s{sT1}, s{sWI}, 5
v_add_u32 v{T[0]}, s{sT1}, v{T[0]}
v_bfe_u32 v{T[2]}, v{T[0]}, 2, 2
v_xor_b32 v{T[1]}, v{T[1]}, v{T[2]}
s_sub_u32 s{sT1}, s{sX0}, 2
v_add_u32 v{T[0]}, s{sT1}, v{T[0]}
v_mul_u32_u24 v{T[2]}, 192, v{T[0]}
v_cmp_gt_u32 vcc, 224, v{T[0]}
v_lshl_add_u32 v{T[2]}, v{T[1]}, 4, v{T[2]}
s_mul_i32 s{sXM}, s{sWI}, 960
s_add_u32 s{sXM}, s{sXM}, {XB}
v_cndmask_b32 v{vXO}, v{T[4]}, v{T[2]}, vcc
s_sub_u32 s{sT1}, s{sY0}, 2
s_mul_i32 s{sT1}, s{sT1}, 43008
v_add_u32 v{vXO}, s{sT1}, v{vXO}
s_mov_b32 s{sX+2}, {XBYTES}
s_mov_b32 s{sX+3}, 0x00020000
s_mov_b32 exec_hi, 0x0fffffff
s_waitcnt lgkmcnt(0)
s_mov_b64 s[{sX}:{sX+1}], s[4:5]
''')
xl = [0]
def xrows(n):
    for _ in range(n):
        t = xl[0]; xl[0] += 1
        a(f's_add_u32 m0, s{sXM}, {t*XROW}')
        if t: a(f'v_add_u32 v{vXO}, 43008, v{vXO}')
        a(f'buffer_load_dwordx4 v{vXO}, {srd(sX)}, 0 offen lds')
NX0 = int(opt('nx0', 12))
xrows(NX0)
stamp(1)
a(f'''
s_setprio 0
s_mov_b32 exec_hi, -1
s_mul_i32 s{sIMG}, s{sWI}, 3072
s_add_u32 s{sIMG}, s{sIMG}, {S_IL}
s_branch L_setup
L_F0:
; ---- F: conv weight tables, rows w and w+4 of both
s_setprio {opt("fprio", 2)}
s_mul_i32 s{sT3}, s{sWI}, 960
v_add_u32 v{T[2]}, s{sT3}, v{vL16}
s_mul_i32 s{sT3}, s{sWI}, 576
s_sub_u32 s{sT3}, s{sT3}, {2*576 + 192}
v_mov_b32 v{T[3]}, {MARK}
s_mov_b32 exec_lo, 0xfffff000
s_mov_b32 exec_hi, 0xffff
v_add_u32 v{T[3]}, s{sT3}, v{vL16}
v_add_u32 v{T[4]}, {4*576}, v{T[3]}
s_mov_b32 exec_lo, -1
s_mov_b32 exec_hi, 0x0fffffff
v_add_u32 v{T[1]}, {4*960}, v{T[2]}
s_mul_i32 s{sT3}, s{sWI}, {TP}
s_mov_b32 s{sDS+2}, 4800
s_mov_b32 s{sDS+3}, 0x00020000
s_mov_b32 s{sDL+2}, 1728
s_mov_b32 s{sDL+3}, 0x00020000
s_add_u32 m0, s{sT3}, {TB + 8*TP}
s_waitcnt lgkmcnt(0)
s_mov_b64 s[{sDS}:{sDS+1}], s[8:9]
s_mov_b64 s[{sDL}:{sDL+1}], s[6:7]
buffer_load_dwordx4 v{T[2]}, {srd(sDS)}, 0 offen lds
s_add_u32 m0, s{sT3}, {TB}
s_mul_i32 s{sIMG}, s{sWI}, 6144
buffer_load_dwordx4 v{T[3]}, {srd(sDL)}, 0 offen lds
s_add_u32 m0, s{sT3}, {TB + 12*TP}
s_nop 0
buffer_load_dwordx4 v{T[1]}, {srd(sDS)}, 0 offen lds
s_add_u32 m0, s{sT3}, {TB + 4*TP}
s_nop 0
buffer_load_dwordx4 v{T[4]}, {srd(sDL)}, 0 offen lds
s_mov_b32 exec_hi, -1
''')
WPF = opt('wpf', '0') == '1'
if PFM == 'f':
    a(f'''
    s_bfe_u32 s{sT3}, s2, 0x20003
    s_lshl_b32 s{sT3}, s{sT3}, 2
    s_add_u32 s{sT3}, s{sT3}, s{sWI}
    s_mul_i32 s{sT3}, s{sT3}, {20*128}
    v_lshl_add_u32 v{T[1]}, v{vLN}, 7, s{sT3}
    v_min_u32 v{T[1]}, L_end-L_pc, v{T[1]}
    s_mov_b64 exec, 0xfffff
    global_load_dword v{vPF}, v{T[1]}, s[100:101]
    s_mov_b64 exec, -1
    ''')
if WPF:
    a(f'''
    s_and_b32 s{sT0}, s{sWI}, 1
    s_cselect_b64 s[{sT1}:{sT2}], s[12:13], s[10:11]
    s_lshr_b32 s{sT0}, s2, 3
    s_lshl_b32 s{sT0}, s{sT0}, 1
    s_lshr_b32 s{sT3}, s{sWI}, 1
    s_add_u32 s{sT0}, s{sT0}, s{sT3}
    s_mul_i32 s{sT0}, s{sT0}, {10*128}
    v_lshl_add_u32 v{T[0]}, v{vLN}, 7, s{sT0}
    v_min_u32 v{T[0]}, {73728-128}, v{T[0]}
    s_mov_b64 exec, 0x3ff
    global_load_dword v{vPF-1}, v{T[0]}, s[{sT1}:{sT2}]
    s_mov_b64 exec, -1
    ''')
a.label('L_setup')
a(f'''
v_and_b32 v{T[0]}, 3, v{vLN}
v_mul_u32_u24 v{vIDX}, 0x5555, v{T[0]}
v_lshlrev_b32 v{vFA}, 2, v{T[0]}
v_add_u32 v{vFA}, {FL}, v{vFA}
s_lshl_b32 s{sT0}, s{sWV}, 2
s_add_u32 s{sT0}, s{sT0}, {FL}
v_mov_b32 v{vFW}, s{sT0}
v_mov_b32 v{vFP}, 0
ds_write_b32 v{vFW}, v{vFP}
s_lshl_b32 s{sT2}, s{sWI}, 4
s_add_u32 s{sT2}, s{sT2}, {TB}
v_bfe_u32 v{T[1]}, v{vLN}, 1, 1
v_lshl_add_u32 v{T[4]}, v{T[1]}, 3, s{sT2}
v_and_b32 v{T[0]}, 1, v{vLN}
v_lshrrev_b32 v{T[1]}, 5, v{vLN}
v_mul_u32_u24 v{vTE}, {TP}, v{T[1]}
v_sub_u32 v{T[1]}, v{T[1]}, v{T[0]}
v_bfe_u32 v{T[2]}, v{vLN}, 2, 1
v_mul_u32_u24 v{T[2]}, 7, v{T[2]}
v_sub_u32 v{T[1]}, v{T[1]}, v{T[2]}
v_add_u32 v{T[1]}, 8, v{T[1]}
v_mul_u32_u24 v{T[1]}, {TP}, v{T[1]}
v_bfe_u32 v{T[2]}, v{vLN}, 4, 1
v_mul_u32_u24 v{T[2]}, 192, v{T[2]}
v_add3_u32 v{T[3]}, v{T[1]}, v{T[2]}, v{T[4]}
v_lshrrev_b32 v{T[1]}, 4, v{vLN}
v_lshlrev_b32 v{T[2]}, 1, v{T[1]}
v_sub_u32 v{T[2]}, v{T[2]}, v{T[0]}
v_add_u32 v{T[2]}, 6, v{T[2]}
v_mul_u32_u24 v{T[2]}, {TP}, v{T[2]}
v_add_u32 v{vTF0}, s{sT2}, v{vTE}
v_add_u32 v{vTF1}, {TP}, v{vTF0}
v_mov_b32 v{vTE}, s{sT2}
s_mov_b32 exec_lo, 0xcc33cc33
s_mov_b32 exec_hi, 0xcc33cc33
v_mov_b32 v{vTF0}, v{T[3]}
v_add_u32 v{vTF1}, 384, v{T[3]}
s_mov_b32 exec_lo, 0x0c030c03
s_mov_b32 exec_hi, 0x0c030c03
v_add_u32 v{T[2]}, 768, v{T[2]}
v_add_u32 v{vTE}, v{T[2]}, v{T[4]}
s_mov_b64 exec, -1
v_and_b32 v{T[0]}, 15, v{vLN}
v_bfe_u32 v{T[2]}, v{vLN}, 4, 1
v_lshrrev_b32 v{T[3]}, 5, v{vLN}
v_lshl_add_u32 v{T[2]}, v{T[2]}, 1, v{T[3]}
v_add_u32 v{T[2]}, v{T[0]}, v{T[2]}
v_bfe_u32 v{T[3]}, v{T[2]}, 2, 2
v_xor_b32 v{T[3]}, s{sWI}, v{T[3]}
v_mul_u32_u24 v{T[2]}, 192, v{T[2]}
v_lshl_add_u32 v{vAF}, v{T[3]}, 4, v{T[2]}
v_add_u32 v{vAF}, {XB}, v{vAF}
v_add_u32 v{T[2]}, 4, v{T[0]}
v_bfe_u32 v{T[3]}, v{T[2]}, 2, 2
v_xor_b32 v{T[3]}, s{sWI}, v{T[3]}
v_mul_u32_u24 v{T[2]}, 192, v{T[2]}
v_lshl_add_u32 v{vAE}, v{T[3]}, 4, v{T[2]}
v_add_u32 v{vAE16}, {XB}, v{vAE}
v_mul_u32_u24 v{T[2]}, {XROW}, v{T[1]}
v_add_u32 v{vAE}, v{vAE16}, v{T[2]}
v_bfe_u32 v{T[3]}, v{T[0]}, 2, 2
v_xor_b32 v{T[4]}, s{sWI}, v{T[3]}
v_mul_u32_u24 v{T[2]}, 192, v{T[0]}
v_lshl_add_u32 v{T[2]}, v{T[4]}, 4, v{T[2]}
v_bfe_u32 v{T[1]}, v{vLN}, 4, 1
v_mul_u32_u24 v{T[1]}, {XROW}, v{T[1]}
v_lshrrev_b32 v{T[3]}, 5, v{vLN}
v_bfe_u32 v{T[4]}, v{vLN}, 1, 1
v_xor_b32 v{T[3]}, v{T[3]}, v{T[4]}
v_lshl_add_u32 v{T[1]}, v{T[3]}, 3, v{T[1]}
v_add_u32 v{T[2]}, v{T[2]}, v{T[1]}
v_add_u32 v{vAO}, {XB}, v{T[2]}
v_add_u32 v{vAO1}, {EXTRA}, v{T[2]}
''')
for i in range(24):
    a(f'v_mov_b64 {vr(vACC+2*i,2)}, 0')
mksrd(sOUT, 14, XBYTES)
if opt('safe'): a('s_mov_b32 s98, 20000')
a(f'''
s_lshr_b32 s{sH13}, s{sH13}, 16
s_sub_u32 s{sH13}, s{sH13}, s{sY0}
s_mov_b32 s{sCA}, {fbits(ga):#x}
s_mov_b32 s{sCA+1}, {fbits(ga):#x}
s_mov_b32 s{sCC}, {fbits(gc):#x}
s_mov_b32 s{sCC+1}, {fbits(gc):#x}
s_add_u32 s{sT0}, s{sWI}, s{sY0}
s_mul_i32 s{sT0}, s{sT0}, 224
s_add_u32 s{sT0}, s{sT0}, s{sX0}
s_mul_i32 s{sO0}, s{sT0}, 192
''')
if STAMP:
    a(f's_mov_b32 s{sWS+2}, {256 if opt("dbg") else 0x10000000}\ns_mov_b32 s{sWS+3}, 0x00020000')
    for i in (6, 11, 12, 13, 14): a(f's_mov_b32 s{sST+2*i}, 0')
for j in range(3):
    a(f'''
    v_add_u32 v{T[0]}, {64*j}, v{vLN}
    v_mul_u32_u24 v{T[2]}, 171, v{T[0]}
    v_bfe_u32 v{T[2]}, v{T[2]}, 12, 2
    v_xor_b32 v{T[0]}, v{T[0]}, v{T[2]}
    v_lshl_add_u32 v{vSR[j]}, v{T[0]}, 4, s{sIMG}
    ''')
a(f'''
{isF} s{sWV}, 4
s_cbranch_scc1 L_F
''')
pstamp(14)
a(f's_waitcnt vmcnt({NX0 - 4}) lgkmcnt(0)')
pstamp(9)
bar(2)
a('s_branch L_L')

a.label('L_F')
vFR = [48, 49, 50, 51]
a(f'''
s_add_u32 s{sO1}, s{sO0}, {4*43008}
v_lshrrev_b32 v{T[4]}, 5, v{vLN}
v_bfe_u32 v{T[0]}, v{vLN}, 2, 2
v_bfe_u32 v{T[1]}, v{vLN}, 4, 1
v_and_b32 v{T[2]}, 3, v{vLN}
v_lshl_add_u32 v{T[3]}, v{T[4]}, 4, v{T[0]}
v_lshlrev_b32 v{T[3]}, 7, v{T[3]}
v_lshl_add_u32 v{T[3]}, v{T[1]}, 5, v{T[3]}
v_lshl_add_u32 v{T[3]}, v{T[2]}, 3, v{T[3]}
v_bfe_u32 v{T[2]}, v{vLN}, 3, 1
v_lshl_add_u32 v{vAW1[0]}, v{T[2]}, 6, v{T[3]}
v_xor_b32 v{vAW1[1]}, 64, v{vAW1[0]}
v_xor_b32 v{vAW1[2]}, 32, v{vAW1[0]}
v_xor_b32 v{vAW1[3]}, 0x60, v{vAW1[0]}
v_lshl_add_u32 v{T[3]}, v{T[4]}, 2, v{T[0]}
v_mul_u32_u24 v{T[3]}, 192, v{T[3]}
v_lshl_add_u32 v{T[3]}, v{T[1]}, 4, v{T[3]}
v_and_b32 v{T[2]}, 1, v{vLN}
v_xor_b32 v{T[2]}, v{T[2]}, v{T[4]}
v_lshl_add_u32 v{T[3]}, v{T[2]}, 5, v{T[3]}
v_bfe_u32 v{T[2]}, v{vLN}, 1, 1
v_lshl_add_u32 v{T[3]}, v{T[2]}, 3, v{T[3]}
v_add_u32 v{vAW2}, 12288, v{T[3]}
s_mul_i32 s{sT1}, s{sWI}, {XROW}
s_cmp_ge_u32 s{sWI}, 2
s_cselect_b32 s{sT2}, {EXTRA - 2*XROW - XB}, 0
s_add_u32 s{sT1}, s{sT1}, {XB}
s_add_u32 s{sT2}, s{sT2}, s{sT1}
s_add_u32 s{sT1}, s{sT1}, {2*XROW}
v_lshlrev_b32 v{T[4]}, 1, v{T[4]}
v_xor_b32 v{T[0]}, v{T[4]}, v{T[0]}
v_and_b32 v{T[3]}, 15, v{vLN}
v_mul_u32_u24 v{T[3]}, 192, v{T[3]}
v_lshl_add_u32 v{T[0]}, v{T[0]}, 4, v{T[3]}
v_lshl_add_u32 v{T[0]}, v{T[2]}, 3, v{T[0]}
v_add_u32 v{vFR[0]}, s{sT2}, v{T[0]}
s_mov_b32 exec_lo, 0xffff0000
s_mov_b32 exec_hi, 0xffff0000
v_add_u32 v{vFR[0]}, s{sT1}, v{T[0]}
s_mov_b64 exec, -1
v_xor_b32 v{vFR[1]}, 8, v{vFR[0]}
v_xor_b32 v{vFR[2]}, 16, v{vFR[0]}
v_xor_b32 v{vFR[3]}, 24, v{vFR[0]}
v_add_u32 v{T[0]}, 2, v{vLN}
v_bfe_u32 v{T[0]}, v{T[0]}, 2, 2
v_xor_b32 v{T[0]}, v{T[4]}, v{T[0]}
v_lshl_add_u32 v{T[0]}, v{T[0]}, 4, v{T[3]}
v_mul_u32_u24 v{T[2]}, {4*XROW}, v{T[1]}
s_add_u32 s{sT1}, s{sT1}, 384
v_add3_u32 v{vAR[0]}, v{T[0]}, v{T[2]}, s{sT1}
v_xor_b32 v{vAR[1]}, 16, v{vAR[0]}
v_bfe_u32 v{T[0]}, v{vLN}, 1, 2
v_xor_b32 v{T[0]}, v{T[4]}, v{T[0]}
v_lshl_add_u32 v{T[0]}, v{T[0]}, 4, v{T[3]}
v_mul_u32_u24 v{T[2]}, 3072, v{T[1]}
v_add3_u32 v{vSW[0]}, v{T[0]}, v{T[2]}, s{sIMG}
v_xor_b32 v{vSW[1]}, 16, v{vSW[0]}
v_and_b32 v{T[1]}, 1, v{vLN}
v_lshlrev_b32 v{T[1]}, 4, v{T[1]}
v_mov_b32 v{T[2]}, 0x3f80
v_lshlrev_b32 v{T[1]}, v{T[1]}, v{T[2]}
''')
for i in range(4): a(f'v_mov_b64 {vr(vID+2*i,2)}, 0')
for i in range(8):
    pos = 16 * (i >> 2) + 8 * ((i >> 1) & 1) + 2 * (i & 1)
    setexec(3 << pos, 3 << (pos + 4))
    a(f'v_mov_b32 v{vID+i}, v{T[1]}')
a('s_mov_b64 exec, -1')
stamp(1)
a(f's_waitcnt vmcnt({(1 if WPF else 0) + (1 if PFM == "f" else 0)}) lgkmcnt(0)')
pstamp(9)
bar(2)
cv = Conv(0)
for gi in range(3): tab_reads(gi, cv.ds)
def res_half(s):
    m = 0xffff0000 if s else 0xffff
    setexec(m, m)
    for ks in range(6):
        cv.ds(f'ds_read_b128 {vr(vRES+4*ks,4)}, v{vAR[ks&1]} offset:{64*(ks>>1)}')
    a('s_mov_b64 exec, -1')
def run_stage(left, frags, pairs, keep=0, mid=None):
    its = left + stage(frags)
    if pairs: add_pub(its, len(left), len(frags), pairs)
    if mid: its[mid[0]]['post'] = mid[1]
    return cv.run(its, len(its) - keep)
left = run_stage([], [('F',0,[0]), ('F',1,[0,1])], [], int(opt('keep0', 2)))
a('s_waitcnt vmcnt(0)')
pstamp(10)
bar(3)
left = run_stage(left, [('F',2,[0,1,2]), ('F',3,[1,2,3]), ('E',0,[0,1])], [0, 1], 0, (-4, lambda: res_half(0)))
a('s_waitcnt lgkmcnt(0)')
pstamp(11)
bar(4)
a(f's_setprio {opt("fprio2", 3)}')
left = run_stage(left, [('F',4,[2,3]), ('F',5,[3]), ('E',2,[2,3])], [2, 3], 0, (-4, lambda: res_half(1)))
signal(1)
stamp(5)
poll(GF, 1)
RA = 168
for ks in range(6):
    a(f'ds_read_b64 {vr(RA+4*ks,2)}, v{vFR[2*(ks&1)]} offset:{64*(ks>>1)}')
    a(f'ds_read_b64 {vr(RA+4*ks+2,2)}, v{vFR[2*(ks&1)+1]} offset:{64*(ks>>1)}')
signal(2)
peek(GL)
a(f's_setprio {opt("fprio3", 1)}')
a('s_waitcnt lgkmcnt(0)')
stamp(6)
check(GL, 1)
f_w1reads0()
ln(RA, 72, [vL + i for i in range(24)], False)
stamp(8)
XH = {
  ('T1', 1): [lambda: stamp(9)],
  ('T2', 1): [lambda: peek(GL)],
  ('preT1', 2): [lambda: check(GL, 4)],
  ('preT1', 4): [lambda: signal(3)],
  ('T2', 5): [lambda: peek(GL)],
  ('preT1', 6): [lambda: check(GL, 5), lambda: stamp(10)],
  ('preT1', 8): [lambda: stamp(11)],
  ('T2', 8): [lambda: peek(GF)],
  ('preT1', 9): [lambda: check(GF, 3)],
  ('T2', 9): [lambda: peek(GL)],
  ('preT1', 10): [lambda: check(GL, 6), lambda: stamp(12)],
}
FP = opt('fp', 'n')
def fprio(c):
    if FP == 'n': return (0, 0) if c == 0 else None
    if FP == 's': return (1, 1) if c == 0 else None
    return (0, int(FP))
mlp32(XH, fprio)
stamp(13)
P = vY[0]; Q = vK[0]
for mt in range(3):
    for i in range(8):
        a(f'v_cvt_pk_bf16_f32 v{P+8*mt+i}, v{vO+16*mt+2*i}, v{vO+16*mt+2*i+1}')
    a(f'ds_write_b128 v{vSW[0]}, {vr(P+8*mt,4)} offset:{64*mt}')
    a(f'ds_write_b128 v{vSW[1]}, {vr(P+8*mt+4,4)} offset:{64*mt}')
for s in range(2):
    for j in range(3):
        a(f'ds_read_b128 {vr(Q+4*(3*s+j),4)}, v{vSR[j]} offset:{3072*s}')
for s in range(2):
    for j in range(3):
        a(f's_waitcnt lgkmcnt({5-(3*s+j)})')
        a(f'buffer_store_dwordx4 {vr(Q+4*(3*s+j),4)}, v{vL16}, {srd(sOUT)}, s{sO1 if s else sO0} offen offset:{1024*j}{STPOL}')
finish()
emit_slow()

a.label('L_L')
cv = Conv(4)
if NX0 < 17:
    a('s_mov_b32 exec_hi, 0x0fffffff')
    xrows(17 - NX0)
    a('s_mov_b32 exec_hi, -1')
for gi in range(3): tab_reads(gi, cv.ds)
mksrd(sW1, 10, 73728); mksrd(sW2, 12, 73728)
a(f'''
v_lshrrev_b32 v{T[0]}, 3, v{vLN}
v_mul_u32_u24 v{T[0]}, 768, v{T[0]}
v_bfe_u32 v{T[1]}, v{vLN}, 4, 1
v_lshlrev_b32 v{T[1]}, 2, v{T[1]}
v_and_b32 v{T[2]}, 7, v{vLN}
v_xor_b32 v{T[1]}, v{T[1]}, v{T[2]}
v_lshl_add_u32 v{T[0]}, v{T[1]}, 4, v{T[0]}
s_and_b32 s{sT1}, s{sWI}, 1
s_lshl_b32 s{sT0}, s{sT1}, 5
v_xor_b32 v{vDW1[0]}, s{sT0}, v{T[0]}
v_xor_b32 v{vDW1[1]}, 32, v{vDW1[0]}
v_mov_b32 v{vDW2[0]}, v{vL16}
v_mov_b32 v{vDW2[1]}, v{vL16}
v_mov_b32 v{vDW2[2]}, v{vL16}
s_mov_b32 exec_lo, 0xffff0000
v_xor_b32 v{vDW2[2]}, 32, v{vL16}
s_mov_b32 exec_lo, 0
s_mov_b32 exec_hi, 0xffff0000
v_xor_b32 v{vDW2[0]}, 32, v{vL16}
s_mov_b32 exec_lo, -1
s_mov_b32 exec_hi, 0
v_xor_b32 v{vDW2[1]}, 32, v{vL16}
s_mov_b64 exec, -1
s_mul_i32 s{sWA}, s{sWI}, {3*6144}
s_mul_i32 s{sWBm}, s{sWI}, 3072
''')
pstamp(10)
a('s_waitcnt vmcnt(9)')
pstamp(11)
bar(3)
wdma(0)
W1P = int(opt('w1p', 1))
vA0, vA2 = 48, 50
RR = 60
a(f'''
s_add_u32 s{sO0}, s{sO0}, {8*43008}
v_lshrrev_b32 v{T[4]}, 4, v{vLN}
v_bfe_u32 v{T[0]}, v{vLN}, 2, 2
v_and_b32 v{T[2]}, 3, v{vLN}
v_bfe_u32 v{T[1]}, v{vLN}, 4, 1
v_lshlrev_b32 v{T[2]}, 3, v{T[2]}
v_lshl_add_u32 v{T[2]}, v{T[1]}, 5, v{T[2]}
v_lshl_add_u32 v{T[3]}, v{T[4]}, 3, v{T[0]}
v_lshl_add_u32 v{T[3]}, v{T[3]}, 7, v{T[2]}
v_bfe_u32 v{T[1]}, v{vLN}, 3, 1
v_xor_b32 v{T[1]}, s{sT1}, v{T[1]}
v_lshl_add_u32 v{T[3]}, v{T[1]}, 6, v{T[3]}
s_lshr_b32 s{sT2}, s{sWI}, 1
s_mul_i32 s{sT2}, s{sT2}, {PS}
s_sub_u32 s{sT3}, {PS}, s{sT2}
v_add_u32 v{vLW1}, s{sT2}, v{T[3]}
v_add_u32 v{vLW1+4}, s{sT3}, v{T[3]}
v_xor_b32 v{vLW1+1}, 32, v{vLW1}
v_xor_b32 v{vLW1+2}, 64, v{vLW1}
v_xor_b32 v{vLW1+3}, 0x60, v{vLW1}
v_xor_b32 v{vLW1+5}, 32, v{vLW1+4}
v_xor_b32 v{vLW1+6}, 64, v{vLW1+4}
v_xor_b32 v{vLW1+7}, 0x60, v{vLW1+4}
v_lshl_add_u32 v{T[3]}, v{T[4]}, 2, v{T[0]}
v_mul_u32_u24 v{T[3]}, 192, v{T[3]}
v_add_u32 v{T[3]}, v{T[3]}, v{T[2]}
s_mul_i32 s{sT1}, s{sT1}, 6144
s_add_u32 s{sT2}, s{sT2}, 12288
s_add_u32 s{sT3}, s{sT3}, 12288
s_add_u32 s{sT0}, s{sT2}, s{sT1}
v_add_u32 v{vLW2}, s{sT0}, v{T[3]}
s_add_u32 s{sT0}, s{sT3}, s{sT1}
v_add_u32 v{vLW2+4}, s{sT0}, v{T[3]}
s_sub_u32 s{sT1}, 6144, s{sT1}
s_add_u32 s{sT0}, s{sT2}, s{sT1}
v_add_u32 v{vLW2+2}, s{sT0}, v{T[3]}
s_add_u32 s{sT0}, s{sT3}, s{sT1}
v_add_u32 v{vLW2+6}, s{sT0}, v{T[3]}
v_xor_b32 v{vLW2+1}, 32, v{vLW2}
v_xor_b32 v{vLW2+3}, 32, v{vLW2+2}
v_xor_b32 v{vLW2+5}, 32, v{vLW2+4}
v_xor_b32 v{vLW2+7}, 32, v{vLW2+6}
v_xor_b32 v{T[0]}, v{T[4]}, v{T[0]}
v_and_b32 v{T[3]}, 15, v{vLN}
v_mul_u32_u24 v{T[3]}, 192, v{T[3]}
v_lshl_add_u32 v{T[0]}, v{T[0]}, 4, v{T[3]}
v_add_u32 v{vARL}, {L12}, v{T[0]}
v_bfe_u32 v{T[1]}, v{vLN}, 1, 1
v_lshl_add_u32 v{T[0]}, v{T[1]}, 3, v{T[0]}
v_add_u32 v{vA2}, {XB}, v{T[0]}
v_xor_b32 v{vA2+1}, 8, v{vA2}
s_mul_i32 s{sT0}, s{sWI}, {XROW}
v_add_u32 v{vA0}, s{sT0}, v{vA2}
v_xor_b32 v{vA0+1}, 8, v{vA0}
v_bfe_u32 v{T[1]}, v{vLN}, 4, 1
v_lshl_add_u32 v{T[3]}, v{T[1]}, 3, v{T[3]}
v_lshrrev_b32 v{T[4]}, 5, v{vLN}
v_bfe_u32 v{T[0]}, v{vLN}, 1, 2
v_xor_b32 v{T[0]}, v{T[4]}, v{T[0]}
v_lshl_add_u32 v{T[0]}, v{T[0]}, 4, v{T[3]}
v_add_u32 v{vSW[0]}, s{sIMG}, v{T[0]}
v_xor_b32 v{vSW[1]}, 32, v{vSW[0]}
v_add_u32 v{T[0]}, 2, v{vLN}
v_bfe_u32 v{T[0]}, v{T[0]}, 2, 2
v_xor_b32 v{T[0]}, v{T[4]}, v{T[0]}
v_lshl_add_u32 v{T[0]}, v{T[0]}, 4, v{T[3]}
s_add_u32 s{sT0}, s{sT0}, {XB + 384}
v_add_u32 v{vAR[0]}, s{sT0}, v{T[0]}
v_xor_b32 v{vAR[1]}, 32, v{vAR[0]}
''')
if W1P == 1: wdma(1)
pstamp(12)
a(f's_waitcnt vmcnt({12 if W1P == 1 else 6}) lgkmcnt(0)')
pstamp(13)
bar(4)
a(f's_setprio {opt("lprio", 2)}')
RED, LNW = 1, 3
def raw_reads(R, ad, off=0):
    for ks in range(3):
        a(f'ds_read_b64 {vr(R+4*ks,2)}, v{ad} offset:{off+64*ks}')
        a(f'ds_read_b64 {vr(R+4*ks+2,2)}, v{ad+1} offset:{off+64*ks}')
def row_store(O, soff):
    P = vY[0]; Q = vK[0]
    for i in range(12):
        a(f'v_cvt_pk_bf16_f32 v{P+i}, v{O+2*i}, v{O+2*i+1}')
    for i in range(6):
        a(f'ds_write_b64 v{vSW[i&1]}, {vr(P+2*i,2)} offset:{64*(i>>1)}')
    for j in range(3):
        a(f'ds_read_b128 {vr(Q+4*j,4)}, v{vSR[j]}')
    for j in range(3):
        a(f's_waitcnt lgkmcnt({2-j})')
        a(f'buffer_store_dwordx4 {vr(Q+4*j,4)}, v{vL16}, {srd(sOUT)}, s{soff} offen offset:{1024*j}{STPOL}')
LP = opt('lp', 'k')
def lprio(c):
    if LP == 'n': return (0, 0) if c == 0 else None
    if LP == 's': return (1, 1) if c == 0 else None
    if LP == 'k':
        lo, hi = [int(x) for x in opt('lk', '0,6').split(',')]
        if lo <= c < hi: return (0, 1)
        return (0, 0) if c in (0, hi) else None
    return (0, int(LP))
def l_body(h13):
    global cv
    keep = cv
    cv = copy.copy(keep)
    sfx = 'a' if h13 else 'b'
    if h13:
        frags = [('F',4,[4]), ('F',5,[4,5]), ('F',6,[4,5,6]), ('F',7,[5,6]), ('E',4,[4,5]), ('F',8,[6]), ('L',6,[6])]; pairs = [4, 5, 6]
    else:
        frags = [('F',4,[4]), ('F',5,[4,5]), ('F',6,[4,5]), ('F',7,[5]), ('E',4,[4,5])]; pairs = [4, 5]
    its = stage(frags)
    add_pub(its, 0, len(frags), pairs, True)
    def resr():
        for i in range(6):
            cv.ds(f'ds_read_b64 {vr(RR+2*i,2)}, v{vAR[i&1]} offset:{10*XROW+64*(i>>1)}')
        if h13:
            for i in range(6):
                cv.ds(f'ds_read_b64 {vr(RR+12+2*i,2)}, v{vAR[i&1]} offset:{(14-RED)*XROW+64*(i>>1)}')
    its[-4]['post'] = resr
    def wl():
        a('s_waitcnt vmcnt(0)')
        signal(1, cv.ds)
    its[int(opt('wlpos', 6))]['post'] = wl
    if W1P != 1:
        for j in range(3): its[j]['post'] = lambda j=j: wdma(1, [2*j, 2*j+1])
    cv.run(its)
    poll(GF, 2)
    cv.write([(gi, k) for gi in range(3) for k in pairs])
    signal(2)
    wdma(2, [0, 1, 2])
    for i in range(12):
        a(f'v_lshlrev_b32 v{vO+2*i}, 16, v{RR+i}\nv_and_b32 v{vO+2*i+1}, 0xffff0000, v{RR+i}')
    if h13:
        a(f's_cmp_eq_u32 s{sWI}, {RED}\ns_cbranch_scc1 L_ri{sfx}')
        for i in range(12): a(f'v_mov_b64 {vr(vO+24+2*i,2)}, 0')
        a(f's_branch L_rj{sfx}')
        a.label(f'L_ri{sfx}')
        for i in range(12):
            a(f'v_lshlrev_b32 v{vO+24+2*i}, 16, v{RR+12+i}\nv_and_b32 v{vO+24+2*i+1}, 0xffff0000, v{RR+12+i}')
        a.label(f'L_rj{sfx}')
    stamp(5)
    poll(GL, 2)
    stamp(7)
    RAW = 168
    raw_reads(RAW, vA0, 6 * XROW)
    if h13: raw_reads(RAW + 12, vA2)
    l_w1reads(0)
    wdma(2, [3, 4, 5])
    if h13:
        a(f's_cmp_lg_u32 s{sWI}, {LNW}\ns_cbranch_scc1 L_nl12\ns_waitcnt lgkmcnt(12)')
        ln(RAW + 12, 72, [RAW + 12 + i for i in range(12)], True)
        for ks in range(3):
            a(f'ds_write_b128 v{vARL}, {vr(RAW+12+4*ks,4)} offset:{64*ks}')
        a.label('L_nl12')
    signal(3)
    a('s_waitcnt lgkmcnt(13)')
    ln(RAW, 72, [vL + i for i in range(12)], True)
    stamp(8)
    def l12r():
        for ks in range(3):
            a(f'ds_read_b128 {vr(vL+12+4*ks,4)}, v{vARL} offset:{64*ks}')
    def pub_rem():
        a(f's_cmp_eq_u32 s{sWI}, {RED}\ns_cbranch_scc1 L_np\ns_mul_i32 s{sT0}, s{sWI}, 6144\nv_add_u32 v{T[0]}, s{sT0}, v{vL16}')
        for i in range(6):
            a(f'ds_write_b128 v{T[0]}, {vr(vO+24+4*i,4)} offset:{S_R + 1024*i}')
        a.label('L_np')
        signal(7)
    H = {
      'start3': [lambda: peek(GL)],
      ('preT1', 0): [lambda: check(GL, 3)],
      ('T1', 0): [lambda: wdma(3, [0, 1, 2])],
      ('T2', 0): [lambda: wdma(3, [3, 4, 5])],
      ('T1', 1): [lambda: wdma(4, [0, 1, 2]), lambda: stamp(9)] + ([l12r] if h13 else []),
      ('preT2', 1): [lambda: landed(3, 4)],
      ('T2', 1): [lambda: wdma(4, [3, 4, 5]), lambda: peek(GL)],
      ('preT1', 2): [lambda: check(GL, 4)],
      ('T1', 2): [lambda: wdma(5, [0, 1, 2])],
      ('T2', 2): [lambda: wdma(5, [3, 4, 5])],
      ('preT1', 4): [lambda: landed(0, 6)],
      ('T2', 5): [lambda: peek(GL)],
      ('preT1', 6): [lambda: check(GL, 6), lambda: stamp(10)],
      ('preT1', 8): [lambda: stamp(11)],
      ('preT1', 10): [lambda: stamp(12)],
    }
    if h13:
        H[('T2', 9)] = [lambda: peek(GF)]
        H[('preT1', 10)] = H[('preT1', 10)] + [lambda: check(GF, 3), pub_rem]
    mlp16([3, 5, 8] if h13 else [], H, lprio)
    stamp(13)
    row_store(vO, sO0)
    if h13:
        a(f's_cmp_lg_u32 s{sWI}, {RED}\ns_cbranch_scc1 L_fin{sfx}')
        poll(GL, 7)
        others = [w for w in range(4) if w != RED]
        for n, w in enumerate(others):
            for i in range(6):
                a(f'ds_read_b128 {vr(144+24*n+4*i,4)}, v{vL16} offset:{S_R + 6144*w + 1024*i}')
        for n in range(3):
            a(f's_waitcnt lgkmcnt({12 - 6*n})')
            for i in range(12):
                a(f'v_pk_add_f32 {vr(vO+24+2*i,2)}, {vr(vO+24+2*i,2)}, {vr(144+24*n+2*i,2)}')
        a(f's_add_u32 s{sO1}, s{sO0}, {(4-RED)*43008}')
        row_store(vO + 24, sO1)
        a.label(f'L_fin{sfx}')
    finish()
    emit_slow()
    cv = keep
a(f's_cmp_lg_u32 s{sH13}, 13\ns_cbranch_scc1 L_L12')
l_body(True)
a.label('L_L12')
l_body(False)
a.label('L_end')
a('s_endpgm')

body = a.finalize()
hdr = open('cdna_kernels/' + NAME + '.s.ref').read().split('\n')
out = []
for l in hdr:
    if l.startswith('; @launch'):
        out.append('; @launch grid=(256,1,1) block=(512,1,1) lds=163840')
    elif l.startswith(';'):
        out.append(l)
    else:
        break
out.append('.amdgcn_target "amdgcn-amd-amdhsa--gfx950"')
out.append('.text')
out.append(f'.globl {NAME}_kernel')
out.append('.p2align 8')
out.append(f'.type {NAME}_kernel,@function')
out.append(f'{NAME}_kernel:')
for l in body:
    out.append(l if l.endswith(':') else '    ' + l)
out.append(f'''.section .rodata,"a"
.p2align 6
.amdhsa_kernel {NAME}_kernel
  .amdhsa_next_free_vgpr 256
  .amdhsa_next_free_sgpr 102
  .amdhsa_accum_offset 256
  .amdhsa_group_segment_fixed_size 0
  .amdhsa_kernarg_size 64
  .amdhsa_user_sgpr_count 2
  .amdhsa_user_sgpr_kernarg_segment_ptr 1
  .amdhsa_system_sgpr_workgroup_id_x 1
.end_amdhsa_kernel''')
print('\n'.join(out))
```

```python
import sys, struct, math, copy
from asmlib import Asm

NAME = "standalone__modern_conv_block_replknet__vision"
def fbits(x): return struct.unpack('<I', struct.pack('<f', x))[0]
def opt(name, default=None):
    for x in sys.argv:
        if x == '--' + name: return True
        if x.startswith('--' + name + '='): return x.split('=', 1)[1]
    return default
STAMP = opt('stamp'); CYC = opt('cyc'); PRO = opt('pro')
STPOL = ' ' + opt('stpol', 'sc1').replace('_', ' ') if opt('stpol', 'sc1') != 'none' else ''
FOLD = opt('fold', '1') == '1'
GL, GF = (1, 0) if FOLD else (0, 1)

XROW = 3840
XB = 73728
PS = 24576
TB, TP = 139264, 976
EXTRA = 155136
L12 = 147456
FL = 163584
S_IF, S_R, S_IL = 0, 24576, 150528
MARK = 0x40000000
XBYTES = 224 * 224 * 192

k0 = math.sqrt(2.0 / math.pi); k1 = 0.044715
c0 = 2 * k0 / math.log(2.0); c1 = c0 * k1
ga = c1 ** (1.0 / 3.0)
gc = -c0 / ga

sX, sDL, sDS, sW1, sW2, sOUT = 16, 20, 24, 28, 32, 36
sWV, sY0, sX0, sT0, sT1, sT2, sT3 = 40, 41, 42, 43, 44, 45, 46
sH13, sWI = 47, 3
sCA, sCC = 48, 50
sWS = 52
sXM, sIMG = 56, 57
sWA, sWBm = 58, 59
sO0, sO1 = 60, 61
sST = 64
NST = 16
def srd(b): return f's[{b}:{b+3}]'
vO, vL, vY, vK, vG, vF1, vF2 = 0, 48, [72, 88], [104, 120], 136, 144, 168
vRES, vID = 204, 228
vAW1 = [236, 237, 245, 249]; vAW2 = 238
vLW1 = 204; vLW2 = 212
vDW1 = [220, 221]; vDW2 = [222, 223, 224]
vARL = 225
vSW = [239, 240]; vSR = [241, 242, 243]
vL16 = 244
vFA, vFW, vFP = 246, 247, 248
T = [250, 251, 252, 253, 254]
vLN = 255
vXO = 203; vPF = 54
vAF, vAE, vAO, vIDX, vTF0, vTF1, vTE, vAR, vAE16, vAO1 = 192, 193, 194, 195, 196, 197, 198, [199, 200], 201, 202
vACC, vAFR, vB = 0, 84, 144
def vr(b, n): return f'v[{b}:{b+n-1}]'

a = Asm()
def _st(i): a(f'{"s_memtime" if CYC else "s_memrealtime"} s[{sST+2*i}:{sST+2*i+1}]')
def pstamp(i):
    if STAMP and PRO: _st(i)
def stamp(i):
    if STAMP and not (PRO and 9 <= i <= 14): _st(i)
def mksrd(b, lo, n):
    a(f's_mov_b64 s[{b}:{b+1}], s[{lo}:{lo+1}]\ns_mov_b32 s{b+2}, {n}\ns_mov_b32 s{b+3}, 0x00020000')
def bar(i=None):
    a('s_barrier')
    if i is not None: stamp(i)
def setexec(lo, hi):
    a(f's_mov_b32 exec_lo, {lo:#x}\ns_mov_b32 exec_hi, {hi:#x}')

nlab = [0]; slow = []
def guard():
    if opt('safe'): a('s_sub_u32 s98, s98, 1\ns_cbranch_scc1 L_end')
def signal(v, emit=None):
    a(f'v_mov_b32 v{T[4]}, {v}')
    (emit or a)(f'ds_write_b32 v{vFW}, v{T[4]}')
def poll(grp, v):
    lab = f'L_poll{nlab[0]}'; nlab[0] += 1
    a.label(lab)
    guard()
    a(f'ds_read_b32 v{vFP}, v{vFA} offset:{16*grp}\ns_waitcnt lgkmcnt(0)\nv_cmp_gt_u32 vcc, {v}, v{vFP}\ns_cbranch_vccnz {lab}')
def peek(grp): a(f'ds_read_b32 v{vFP}, v{vFA} offset:{16*grp}')
def check(grp, v):
    n = nlab[0]; nlab[0] += 1
    a(f'v_cmp_gt_u32 vcc, {v}, v{vFP}\ns_cbranch_vccnz L_slow{n}')
    a.label(f'L_back{n}')
    slow.append((n, grp, v))
def emit_slow():
    for n, grp, v in slow:
        a.label(f'L_slow{n}')
        guard()
        a(f'ds_read_b32 v{vFP}, v{vFA} offset:{16*grp}\ns_waitcnt lgkmcnt(0)\nv_cmp_gt_u32 vcc, {v}, v{vFP}\ns_cbranch_vccnz L_slow{n}\ns_branch L_back{n}')
    slow.clear()
def landed(n, v):
    a(f's_waitcnt vmcnt({n})'); signal(v)

def wdma(p, parts=range(6)):
    for i in parts:
        if i < 3:
            a(f'''
            s_add_u32 m0, s{sWBm}, {PS*p + 1024*i}
            s_add_u32 s{sT0}, s{sWA}, {6144*i + 128*p}
            buffer_load_dwordx4 v{vDW1[i & 1]}, {srd(sW1)}, s{sT0} offen lds
            ''')
        else:
            if i == 3 or i - 1 not in parts:
                a(f's_add_u32 m0, s{sWBm}, {PS*p + 12288}\ns_add_u32 s{sT0}, s{sWBm}, {12288*p}')
            a(f'buffer_load_dwordx4 v{vDW2[i-3]}, {srd(sW2)}, s{sT0} offen offset:{1024*(i-3)} lds')

def ln(raw, U, dst, rows16):
    n = len(dst)
    S, Q, ONE = T[1], T[3], T[4]
    sc, bi = T[0], T[2]
    a(f'v_mov_b32 v{ONE}, 0x3f803f80')
    for i in range(n):
        a(f'v_dot2_f32_bf16 v{S}, v{raw+i}, v{ONE}, {"0" if i == 0 else f"v{S}"}')
        a(f'v_dot2_f32_bf16 v{Q}, v{raw+i}, v{raw+i}, {"0" if i == 0 else f"v{Q}"}')
    un = []
    for i in range(n):
        un.append(f'v_lshlrev_b32 v{U+2*i}, 16, v{raw+i}')
        un.append(f'v_and_b32 v{U+2*i+1}, 0xffff0000, v{raw+i}')
    def fill(k):
        for _ in range(k):
            if un: a(un.pop(0))
    fill(3)
    a(f'v_permlane32_swap_b32 v{S}, v{Q}')
    a(f'v_add_f32 v{S}, v{S}, v{Q}')
    if rows16:
        a(f'v_mov_b32 v{Q}, v{S}')
        fill(2)
        a(f'v_permlane16_swap_b32 v{S}, v{Q}')
        a(f'v_add_f32 v{S}, v{S}, v{Q}')
    a(f'v_mul_f32 v{S}, {fbits(1.0/96):#x}, v{S}')
    a(f'v_mov_b32 v{Q}, v{S}')
    fill(2)
    a(f'v_permlane32_swap_b32 v{S}, v{Q}')
    a(f'''
    v_fma_f32 v{Q}, -v{S}, v{S}, v{Q}
    v_max_f32 v{Q}, 0, v{Q}
    v_add_f32 v{Q}, {fbits(1e-5):#x}, v{Q}
    v_rsq_f32 v{Q}, v{Q}
    ''')
    fill(1)
    a(f'v_mul_f32 v{sc}, {fbits(ga):#x}, v{Q}')
    a(f'v_mul_f32 v{bi}, -v{S}, v{sc}')
    fill(1000)
    for i in range(n):
        if opt('lnplain'):
            a(f'v_fma_f32 v{U+2*i}, v{U+2*i}, v{sc}, v{bi}\nv_fma_f32 v{U+2*i+1}, v{U+2*i+1}, v{sc}, v{bi}')
        else:
            a(f'v_pk_fma_f32 {vr(U+2*i,2)}, {vr(U+2*i,2)}, {vr(sc,2)}, {vr(bi,2)} op_sel_hi:[1,0,0]')
    for i in range(n):
        a(f'v_cvt_pk_bf16_f32 v{dst[i]}, v{U+2*i}, v{U+2*i+1}')

def pk_t(Y, K, n):
    return [f'v_pk_fma_f32 {vr(K+2*i,2)}, {vr(Y+2*i,2)}, {vr(Y+2*i,2)}, s[{sCC}:{sCC+1}] neg_lo:[1,0,0] neg_hi:[1,0,0]' for i in range(n//2)] + pk_m(Y, K, n)
def pk_m(Y, K, n): return [f'v_pk_mul_f32 {vr(K+2*i,2)}, {vr(Y+2*i,2)}, {vr(K+2*i,2)}' for i in range(n//2)]
def pk_d(K, n): return [f'v_pk_fma_f32 {vr(K+2*i,2)}, {vr(K+2*i,2)}, s[{sCA}:{sCA+1}], s[{sCA}:{sCA+1}]' for i in range(n//2)]
def emit(l):
    for t in l: a(t)

def mlp32(hooks, prio):
    N = 12
    moved = {'w1': False, 'w2': False}
    def move(kind, c):
        if c >= 6 and not moved[kind]:
            for r in (vAW1 if kind == 'w1' else [vAW2]): a(f'v_add_u32 v{r}, {3*PS}, v{r}')
            moved[kind] = True
    def w1reads(c):
        for ks in range(6):
            off = ((c >> 1) % 3) * PS + (ks >> 1) * 4096 + (ks & 1) * 1024
            r = vAW1[(c & 1) + 2 * (ks & 1)]
            a(f'ds_read_b64_tr_b16 {vr(vF1+4*ks,2)}, v{r} offset:{off}')
            a(f'ds_read_b64_tr_b16 {vr(vF1+4*ks+2,2)}, v{r} offset:{off+512}')
    def w2reads(c):
        for i in range(6):
            ks2, mt = i // 3, i % 3
            off = ((c >> 1) % 3) * PS + (c & 1) * 6144 + ks2 * 3072 + mt * 64
            a(f'ds_read_b64_tr_b16 {vr(vF2+4*i,2)}, v{vAW2} offset:{off}')
            a(f'ds_read_b64_tr_b16 {vr(vF2+4*i+2,2)}, v{vAW2} offset:{off+1536}')
    def g1(c, ks):
        Y = vY[c & 1]
        a(f'v_mfma_f32_32x32x16_bf16 {vr(Y,16)}, {vr(vF1+4*ks,4)}, {vr(vL+4*ks,4)}, {"0" if ks == 0 else vr(Y,16)}')
    def g2(i):
        ks2, mt = i // 3, i % 3
        a(f'v_mfma_f32_32x32x16_bf16 {vr(vO+16*mt,16)}, {vr(vF2+4*i,4)}, {vr(vG+4*ks2,4)}, {vr(vO+16*mt,16)}')
    def resm(ks):
        j, mt = ks // 3, ks % 3
        a(f'v_mfma_f32_32x32x16_bf16 {vr(vO+16*mt,16)}, {vr(vID+4*j,4)}, {vr(vRES+4*(2*mt+j),4)}, {"0" if j == 0 else vr(vO+16*mt,16)}')
    def hook(k):
        for f in hooks.get(k, []): f()
    def pr(c, v):
        if prio(c) is not None: a(f's_setprio {prio(c)[v]}')
    hook('pre')
    a('s_waitcnt lgkmcnt(0)')
    for ks in range(6): g1(0, ks)
    w1reads(1)
    hook('start3')
    for c in range(N + 1):
        Y, K = vY[c & 1], vK[c & 1]
        Yp, Kp = vY[(c - 1) & 1], vK[(c - 1) & 1]
        pr(c, 1)
        if c >= 1: emit(pk_m(Yp, Kp, 16))
        if c < N: emit(pk_t(Y, K, 16))
        cv = [f'v_cvt_pk_bf16_f32 v{vG+i}, v{Kp+2*i}, v{Kp+2*i+1}' for i in range(8)] if c >= 1 else []
        if c == N:
            emit(cv)
            a('s_waitcnt lgkmcnt(0)')
            for i in (0, 3, 1, 4, 2, 5): g2(i)
            break
        ex = [f'v_exp_f32 v{K+i}, v{K+i}' for i in range(16)]
        rc = [f'v_rcp_f32 v{K+i}, v{K+i}' for i in range(16)]
        last = c + 1 >= N
        if c + 2 < N: move('w1', c + 2)
        move('w2', c)
        if c == 0:
            gaps = [ex[0:3], ex[3:6], ex[6:9], ex[9:12], ex[12:15], ex[15:16]]
            a('s_waitcnt lgkmcnt(0)')
            for j in range(6):
                g1(1, j); emit(gaps[j])
        elif not last:
            gaps = [cv[0:4] + ex[0:1], cv[4:8] + ex[1:2], ex[2:5], ex[5:8], ex[8:11], ex[11:14], ex[14:16]]
            for j in range(7):
                if j < 6: g1(c + 1, j)
                else: g2(0)
                if j == 5: a('s_waitcnt lgkmcnt(0)')
                emit(gaps[j])
        else:
            emit(cv); emit(ex[0:4])
            a('s_waitcnt lgkmcnt(0)')
            gaps = [ex[4:8], ex[8:12], ex[12:16]]
            for j in range(3):
                g2(j); emit(gaps[j])
        hook(('preT1', c))
        pr(c, 0)
        if c + 2 < N: w1reads(c + 2)
        hook(('T1', c))
        pr(c, 1)
        emit(pk_d(K, 16))
        if c == 0:
            gp = [rc[0:3], rc[3:6], rc[6:9], rc[9:12], rc[12:14], rc[14:16]]
            for j in range(6):
                resm(j)
                if j == 5: a('s_waitcnt lgkmcnt(0)')
                emit(gp[j])
        elif not last:
            gp = [rc[0:3], rc[3:6], rc[6:9], rc[9:12], rc[12:16]]
            for j in range(5):
                g2(j + 1)
                if j == 4: a('s_waitcnt lgkmcnt(0)')
                emit(gp[j])
        else:
            gp = [rc[0:3], rc[3:6], rc[6:16]]
            for j in range(3):
                g2(j + 3)
                if j == 2: w2reads(c)
                emit(gp[j])
        hook(('preT2', c))
        pr(c, 0)
        if not last: w2reads(c)
        hook(('T2', c))
    return w1reads

def f_w1reads0():
    for ks in range(6):
        off = (ks >> 1) * 4096 + (ks & 1) * 1024
        r = vAW1[2 * (ks & 1)]
        a(f'ds_read_b64_tr_b16 {vr(vF1+4*ks,2)}, v{r} offset:{off}')
        a(f'ds_read_b64_tr_b16 {vr(vF1+4*ks+2,2)}, v{r} offset:{off+512}')

def l_w1reads(s):
    for i in range(6):
        mt2, ks3 = i // 3, i % 3
        off = ((s >> 2) & 1) * 2 * PS + ks3 * 4096
        r = vLW1 + mt2 + 2 * (s & 3)
        a(f'ds_read_b64_tr_b16 {vr(vF1+4*i,2)}, v{r} offset:{off}')
        a(f'ds_read_b64_tr_b16 {vr(vF1+4*i+2,2)}, v{r} offset:{off+512}')

def mlp16(doubles, hooks, prio):
    N = 12
    def wid(s): return 0 if (s < 0 or s >= N) else (2 if s in doubles else 1)
    def move(base):
        for r in range(8): a(f'v_add_u32 v{base+r}, {4*PS}, v{base+r}')
    def w2reads(s):
        for i in range(6):
            off = ((s >> 2) & 1) * 2 * PS + 64 * (i >> 1)
            r = vLW2 + (i & 1) + 2 * (s & 3)
            a(f'ds_read_b64_tr_b16 {vr(vF2+4*i,2)}, v{r} offset:{off}')
            a(f'ds_read_b64_tr_b16 {vr(vF2+4*i+2,2)}, v{r} offset:{off+3072}')
    def m1(s):
        l = []
        for t in range(wid(s)):
            for j in range(6):
                mt2, ks3 = j & 1, j >> 1
                D = vY[s & 1] + 8 * t + 4 * mt2
                l.append(f'v_mfma_f32_16x16x32_bf16 {vr(D,4)}, {vr(vF1+4*(mt2*3+ks3),4)}, {vr(vL+12*t+4*ks3,4)}, {"0" if ks3 == 0 else vr(D,4)}')
        return l
    def m2(s):
        return [f'v_mfma_f32_16x16x32_bf16 {vr(vO+24*t+4*i,4)}, {vr(vF2+4*i,4)}, {vr(vG+4*t,4)}, {vr(vO+24*t+4*i,4)}' for t in range(wid(s)) for i in range(6)]
    def weave(ms, fl):
        fl = list(fl)
        if not ms:
            emit(fl); a('s_waitcnt lgkmcnt(0)'); return
        for j, m in enumerate(ms):
            a(m)
            if j == len(ms) - 1: a('s_waitcnt lgkmcnt(0)')
            k = -(-len(fl) // (len(ms) - j))
            emit(fl[:k]); fl = fl[k:]
    def hook(k):
        for f in hooks.get(k, []): f()
    def pr(c, v):
        if prio(c) is not None: a(f's_setprio {prio(c)[v]}')
    hook('pre')
    a('s_waitcnt lgkmcnt(0)')
    emit(m1(0))
    l_w1reads(1)
    hook('start3')
    for s in range(N + 1):
        Y, K = vY[s & 1], vK[s & 1]
        Yp, Kp = vY[(s - 1) & 1], vK[(s - 1) & 1]
        n, np_ = 8 * wid(s), 8 * wid(s - 1)
        pr(s, 1)
        emit(pk_m(Yp, Kp, np_))
        emit(pk_t(Y, K, n))
        cv = [f'v_cvt_pk_bf16_f32 v{vG+i}, v{Kp+2*i}, v{Kp+2*i+1}' for i in range(np_ // 2)]
        if s == N:
            emit(cv)
            a('s_waitcnt lgkmcnt(0)')
            emit(m2(N - 1))
            break
        ex = [f'v_exp_f32 v{K+i}, v{K+i}' for i in range(n)]
        rc = [f'v_rcp_f32 v{K+i}, v{K+i}' for i in range(n)]
        if s + 2 == 8: move(vLW1)
        if s == 8: move(vLW2)
        if s == 0: a('s_waitcnt lgkmcnt(0)')
        weave(m1(s + 1), cv + ex)
        hook(('preT1', s))
        pr(s, 0)
        if s + 2 < N: l_w1reads(s + 2)
        hook(('T1', s))
        pr(s, 1)
        emit(pk_d(K, n))
        weave(m2(s - 1), rc)
        hook(('preT2', s))
        pr(s, 0)
        w2reads(s)
        hook(('T2', s))

def finish():
    if STAMP:
        stamp(14)
        a('s_waitcnt vmcnt(0)')
        stamp(15)
        a('s_waitcnt lgkmcnt(0)')
        if opt('dbg'):
            n = nlab[0]; nlab[0] += 1
            a(f's_cmp_lg_u32 s2, {opt("dbg")}\ns_cbranch_scc1 L_nd{n}\ns_cmp_lg_u32 s{sWI}, 0\ns_cbranch_scc1 L_nd{n}')
            a(f's_lshl_b32 s{sT0}, s{sWV}, 3\nv_mov_b32 v{T[1]}, s{sT0}\ns_mov_b64 exec, 1')
            for k, i in enumerate((1, 2, 3, 4, 8, 10, 13, 15)):
                a(f's_sub_u32 s{sT0}, s{sST+2*i}, s{sST}\nv_mov_b32 v{T[0]}, s{sT0}')
                a(f'buffer_store_dword v{T[0]}, v{T[1]}, {srd(sWS)}, 0 offen offset:{4*k}')
            a.label(f'L_nd{n}')
            a('s_endpgm')
            return
        a(f'''
        s_lshl_b32 s{sT0}, s2, 3
        s_add_u32 s{sT0}, s{sT0}, s{sWV}
        s_lshl_b32 s{sT0}, s{sT0}, 6
        v_mov_b32 v{T[1]}, s{sT0}
        s_mov_b64 exec, 1
        ''')
        for i in range(NST):
            a(f'v_mov_b32 v{T[0]}, s{sST+2*i}')
            a(f'buffer_store_dword v{T[0]}, v{T[1]}, {srd(sWS)}, 0 offen offset:{4*i}')
    a('s_endpgm')

def tab_reads(gi, em):
    A = vAFR + 20 * gi; o = 64 * gi
    for d in range(3):
        em(f'ds_read_b64_tr_b16 {vr(A+4*d,2)}, v{vTF0} offset:{o + 2*d*TP}')
        em(f'ds_read_b64_tr_b16 {vr(A+4*d+2,2)}, v{vTF1} offset:{o + 2*d*TP}')
    for par in range(2):
        for pp in range(2):
            em(f'ds_read_b64_tr_b16 {vr(A+12+4*par+2*pp,2)}, v{vTE} offset:{o + (pp - 2*par + 2)*TP}')
RING = 6
class Conv:
    def __init__(self, k0): self.n = 0; self.slot = 0; self.k0 = k0
    def acc(self, gi, k): return vACC + 16 * gi + 4 * (k - self.k0)
    def ds(self, t): a(t); self.n += 1; return self.n
    def wait(self, seq): a(f's_waitcnt lgkmcnt({min(15, self.n - seq)})')
    def reads(self, it):
        B = it['B']; go = 64 * it['gi']; idx = it['idx']; kind = it['kind']
        if kind == 'F':
            r0, r1 = 2 * idx, min(2 * idx + 1, 16)
            return [f'ds_read_b128 {vr(B,4)}, v{vAF} offset:{r0*XROW+go}', f'ds_read_b128 {vr(B+4,4)}, v{vAF} offset:{r1*XROW+go}']
        if kind == 'E':
            return [f'ds_read_b128 {vr(B,4)}, v{vAE} offset:{2*idx*XROW+go}', f'ds_read_b128 {vr(B+4,4)}, v{vAE} offset:{(2*idx+4)*XROW+go}']
        return [f'ds_read_b128 {vr(B,4)}, v{vAE} offset:{12*XROW+go}', f'ds_read_b128 {vr(B+4,4)}, v{vAE16} offset:{16*XROW+go}']
    def cvt(self, lst):
        for gi, k in lst:
            A = self.acc(gi, k)
            a(f'v_cvt_pk_bf16_f32 v{A}, v{A}, v{A+1}\nv_cvt_pk_bf16_f32 v{A+1}, v{A+2}, v{A+3}')
    def write(self, lst):
        for gi, k in lst:
            A = self.acc(gi, k)
            if k == 1: self.ds(f'ds_write_b64 v{vAO1}, {vr(A,2)} offset:{64*gi}')
            else: self.ds(f'ds_write_b64 v{vAO}, {vr(A,2)} offset:{(0 if k in (0, 6) else 2*k-2)*XROW+64*gi}')
    def run(self, items, stop_at=None):
        D = RING - 1
        nxt = 0
        while nxt < len(items) and 'seq' in items[nxt]: nxt += 1
        def start(j):
            items[j]['B'] = vB + 8 * (self.slot % RING); self.slot += 1
            return self.reads(items[j])
        while nxt < min(D, len(items)):
            for t in start(nxt): items[nxt]['seq'] = self.ds(t)
            nxt += 1
        end = len(items) if stop_at is None else stop_at
        for i in range(end):
            it = items[i]
            self.wait(it['seq'])
            pend = start(nxt) if nxt < len(items) else []
            A = vAFR + 20 * it['gi']
            had = bool(pend)
            for k in it['outs']:
                fr = (it['idx'] - k) if it['kind'] == 'F' else 3 + (k - it['idx'])
                a(f'v_smfmac_f32_16x16x64_bf16 {vr(self.acc(it["gi"], k),4)}, {vr(A+4*fr,4)}, {vr(it["B"],8)}, v{vIDX}')
                if pend: items[nxt]['seq'] = self.ds(pend.pop(0))
            for t in pend: items[nxt]['seq'] = self.ds(t)
            if had: nxt += 1
            if it.get('pub'):
                self.cvt(it['pub'])
                if not it.get('nowrite'): self.write(it['pub'])
            if it.get('post'): it['post']()
        return items[end:]
def stage(frags): return [dict(gi=gi, kind=k, idx=i, outs=list(o)) for gi in range(3) for (k, i, o) in frags]
def add_pub(items, base, nfr, pairs, nowrite=False):
    for gi in range(3):
        j = min(base + nfr * (gi + 1), len(items) - 1)
        items[j].setdefault('pub', []).extend((gi, k) for k in pairs)
        items[j]['nowrite'] = nowrite

isF = 's_cmp_lt_u32' if FOLD else 's_cmp_ge_u32'
a(f'''
s_load_dwordx4 s[4:7], s[0:1], 0
s_load_dwordx4 s[8:11], s[0:1], 16
s_load_dwordx4 s[12:15], s[0:1], 32
s_getpc_b64 s[100:101]
L_pc:
''')
if STAMP: a(f's_load_dwordx2 s[{sWS}:{sWS+1}], s[0:1], {48 if opt("dbg") else 56}')
stamp(0)
a(f'''
s_cmp_ge_u32 s2, 256
s_cbranch_scc1 L_end
v_lshrrev_b32 v{T[0]}, 6, v0
v_and_b32 v{vLN}, 63, v0
''')
PFM = opt('pf', 'f')
if PFM == 'first':
    a(f'''
    s_bfe_u32 s{sT3}, s2, 0x20003
    s_mul_i32 s{sT3}, s{sT3}, {80*128}
    v_mul_u32_u24 v{T[1]}, 10, v{T[0]}
    v_add_u32 v{T[1]}, v{T[1]}, v{vLN}
    v_lshl_add_u32 v{T[1]}, v{T[1]}, 7, s{sT3}
    v_min_u32 v{T[1]}, L_end-L_pc, v{T[1]}
    s_mov_b64 exec, 0x3ff
    global_load_dword v{vPF}, v{T[1]}, s[100:101]
    s_mov_b64 exec, -1
    ''')
a(f'''
s_lshr_b32 s{sT1}, s2, 3
v_readfirstlane_b32 s{sWV}, v{T[0]}
s_and_b32 s{sT2}, s2, 1
s_add_u32 s{sT2}, s{sT2}, s{sT1}
s_cmp_ge_u32 s{sT2}, 32
s_cbranch_scc1 L_end
s_and_b32 s{sT0}, s2, 3
v_mul_u32_u24 v{T[0]}, 43, v{vLN}
s_mul_i32 s{sT0}, s{sT0}, 63
s_add_u32 s{sT0}, s{sT0}, 1
v_lshrrev_b32 v{T[0]}, 9, v{T[0]}
s_lshr_b32 s{sT0}, s{sT0}, 1
s_add_u32 s{sT0}, s{sT0}, s{sT1}
v_mul_u32_u24 v{T[1]}, 12, v{T[0]}
s_mul_i32 s{sT1}, s{sT0}, 9363
s_lshr_b32 s{sT1}, s{sT1}, 16
v_sub_u32 v{T[1]}, v{vLN}, v{T[1]}
s_mul_i32 s{sT2}, s{sT1}, 7
s_sub_u32 s{sT0}, s{sT0}, s{sT2}
s_bfe_u32 s{sT2}, s2, 0x10002
s_mul_i32 s{sT2}, s{sT2}, 7
s_add_u32 s{sT0}, s{sT0}, s{sT2}
s_lshl_b32 s{sX0}, s{sT0}, 4
s_mul_i32 s{sY0}, s{sT1}, {112*7282}
s_add_u32 s{sH13}, s{sY0}, {112*7282}
s_lshr_b32 s{sY0}, s{sY0}, 16
s_and_b32 s{sWI}, s{sWV}, 3
v_mov_b32 v{T[4]}, {MARK}
v_lshlrev_b32 v{vL16}, 4, v{vLN}
{isF} s{sWV}, 4
s_cbranch_scc1 L_F0
; ---- L: x rows
s_setprio {opt('lprio0', 0)}
s_mul_i32 s{sT1}, s{sWI}, 5
v_add_u32 v{T[0]}, s{sT1}, v{T[0]}
v_bfe_u32 v{T[2]}, v{T[0]}, 2, 2
v_xor_b32 v{T[1]}, v{T[1]}, v{T[2]}
s_sub_u32 s{sT1}, s{sX0}, 2
v_add_u32 v{T[0]}, s{sT1}, v{T[0]}
v_mul_u32_u24 v{T[2]}, 192, v{T[0]}
v_cmp_gt_u32 vcc, 224, v{T[0]}
v_lshl_add_u32 v{T[2]}, v{T[1]}, 4, v{T[2]}
s_mul_i32 s{sXM}, s{sWI}, 960
s_add_u32 s{sXM}, s{sXM}, {XB}
v_cndmask_b32 v{vXO}, v{T[4]}, v{T[2]}, vcc
s_sub_u32 s{sT1}, s{sY0}, 2
s_mul_i32 s{sT1}, s{sT1}, 43008
v_add_u32 v{vXO}, s{sT1}, v{vXO}
s_mov_b32 s{sX+2}, {XBYTES}
s_mov_b32 s{sX+3}, 0x00020000
s_mov_b32 exec_hi, 0x0fffffff
s_waitcnt lgkmcnt(0)
s_mov_b64 s[{sX}:{sX+1}], s[4:5]
''')
xl = [0]
def xrows(n):
    for _ in range(n):
        t = xl[0]; xl[0] += 1
        a(f's_add_u32 m0, s{sXM}, {t*XROW}')
        if t: a(f'v_add_u32 v{vXO}, 43008, v{vXO}')
        a(f'buffer_load_dwordx4 v{vXO}, {srd(sX)}, 0 offen lds')
NX0 = int(opt('nx0', 12))
xrows(NX0)
stamp(1)
a(f'''
s_setprio 0
s_mov_b32 exec_hi, -1
s_mul_i32 s{sIMG}, s{sWI}, 3072
s_add_u32 s{sIMG}, s{sIMG}, {S_IL}
s_branch L_setup
L_F0:
; ---- F: conv weight tables, rows w and w+4 of both
s_setprio {opt("fprio", 2)}
s_mul_i32 s{sT3}, s{sWI}, 960
v_add_u32 v{T[2]}, s{sT3}, v{vL16}
s_mul_i32 s{sT3}, s{sWI}, 576
s_sub_u32 s{sT3}, s{sT3}, {2*576 + 192}
v_mov_b32 v{T[3]}, {MARK}
s_mov_b32 exec_lo, 0xfffff000
s_mov_b32 exec_hi, 0xffff
v_add_u32 v{T[3]}, s{sT3}, v{vL16}
v_add_u32 v{T[4]}, {4*576}, v{T[3]}
s_mov_b32 exec_lo, -1
s_mov_b32 exec_hi, 0x0fffffff
v_add_u32 v{T[1]}, {4*960}, v{T[2]}
s_mul_i32 s{sT3}, s{sWI}, {TP}
s_mov_b32 s{sDS+2}, 4800
s_mov_b32 s{sDS+3}, 0x00020000
s_mov_b32 s{sDL+2}, 1728
s_mov_b32 s{sDL+3}, 0x00020000
s_add_u32 m0, s{sT3}, {TB + 8*TP}
s_waitcnt lgkmcnt(0)
s_mov_b64 s[{sDS}:{sDS+1}], s[8:9]
s_mov_b64 s[{sDL}:{sDL+1}], s[6:7]
buffer_load_dwordx4 v{T[2]}, {srd(sDS)}, 0 offen lds
s_add_u32 m0, s{sT3}, {TB}
s_mul_i32 s{sIMG}, s{sWI}, 6144
buffer_load_dwordx4 v{T[3]}, {srd(sDL)}, 0 offen lds
s_add_u32 m0, s{sT3}, {TB + 12*TP}
s_nop 0
buffer_load_dwordx4 v{T[1]}, {srd(sDS)}, 0 offen lds
s_add_u32 m0, s{sT3}, {TB + 4*TP}
s_nop 0
buffer_load_dwordx4 v{T[4]}, {srd(sDL)}, 0 offen lds
s_mov_b32 exec_hi, -1
''')
WPF = opt('wpf', '0') == '1'
if PFM == 'f':
    a(f'''
    s_bfe_u32 s{sT3}, s2, 0x20003
    s_lshl_b32 s{sT3}, s{sT3}, 2
    s_add_u32 s{sT3}, s{sT3}, s{sWI}
    s_mul_i32 s{sT3}, s{sT3}, {20*128}
    v_lshl_add_u32 v{T[1]}, v{vLN}, 7, s{sT3}
    v_min_u32 v{T[1]}, L_end-L_pc, v{T[1]}
    s_mov_b64 exec, 0xfffff
    global_load_dword v{vPF}, v{T[1]}, s[100:101]
    s_mov_b64 exec, -1
    ''')
if WPF:
    a(f'''
    s_and_b32 s{sT0}, s{sWI}, 1
    s_cselect_b64 s[{sT1}:{sT2}], s[12:13], s[10:11]
    s_lshr_b32 s{sT0}, s2, 3
    s_lshl_b32 s{sT0}, s{sT0}, 1
    s_lshr_b32 s{sT3}, s{sWI}, 1
    s_add_u32 s{sT0}, s{sT0}, s{sT3}
    s_mul_i32 s{sT0}, s{sT0}, {10*128}
    v_lshl_add_u32 v{T[0]}, v{vLN}, 7, s{sT0}
    v_min_u32 v{T[0]}, {73728-128}, v{T[0]}
    s_mov_b64 exec, 0x3ff
    global_load_dword v{vPF-1}, v{T[0]}, s[{sT1}:{sT2}]
    s_mov_b64 exec, -1
    ''')
a.label('L_setup')
a(f'''
v_and_b32 v{T[0]}, 3, v{vLN}
v_mul_u32_u24 v{vIDX}, 0x5555, v{T[0]}
v_lshlrev_b32 v{vFA}, 2, v{T[0]}
v_add_u32 v{vFA}, {FL}, v{vFA}
s_lshl_b32 s{sT0}, s{sWV}, 2
s_add_u32 s{sT0}, s{sT0}, {FL}
v_mov_b32 v{vFW}, s{sT0}
v_mov_b32 v{vFP}, 0
ds_write_b32 v{vFW}, v{vFP}
s_lshl_b32 s{sT2}, s{sWI}, 4
s_add_u32 s{sT2}, s{sT2}, {TB}
v_bfe_u32 v{T[1]}, v{vLN}, 1, 1
v_lshl_add_u32 v{T[4]}, v{T[1]}, 3, s{sT2}
v_and_b32 v{T[0]}, 1, v{vLN}
v_lshrrev_b32 v{T[1]}, 5, v{vLN}
v_mul_u32_u24 v{vTE}, {TP}, v{T[1]}
v_sub_u32 v{T[1]}, v{T[1]}, v{T[0]}
v_bfe_u32 v{T[2]}, v{vLN}, 2, 1
v_mul_u32_u24 v{T[2]}, 7, v{T[2]}
v_sub_u32 v{T[1]}, v{T[1]}, v{T[2]}
v_add_u32 v{T[1]}, 8, v{T[1]}
v_mul_u32_u24 v{T[1]}, {TP}, v{T[1]}
v_bfe_u32 v{T[2]}, v{vLN}, 4, 1
v_mul_u32_u24 v{T[2]}, 192, v{T[2]}
v_add3_u32 v{T[3]}, v{T[1]}, v{T[2]}, v{T[4]}
v_lshrrev_b32 v{T[1]}, 4, v{vLN}
v_lshlrev_b32 v{T[2]}, 1, v{T[1]}
v_sub_u32 v{T[2]}, v{T[2]}, v{T[0]}
v_add_u32 v{T[2]}, 6, v{T[2]}
v_mul_u32_u24 v{T[2]}, {TP}, v{T[2]}
v_add_u32 v{vTF0}, s{sT2}, v{vTE}
v_add_u32 v{vTF1}, {TP}, v{vTF0}
v_mov_b32 v{vTE}, s{sT2}
s_mov_b32 exec_lo, 0xcc33cc33
s_mov_b32 exec_hi, 0xcc33cc33
v_mov_b32 v{vTF0}, v{T[3]}
v_add_u32 v{vTF1}, 384, v{T[3]}
s_mov_b32 exec_lo, 0x0c030c03
s_mov_b32 exec_hi, 0x0c030c03
v_add_u32 v{T[2]}, 768, v{T[2]}
v_add_u32 v{vTE}, v{T[2]}, v{T[4]}
s_mov_b64 exec, -1
v_and_b32 v{T[0]}, 15, v{vLN}
v_bfe_u32 v{T[2]}, v{vLN}, 4, 1
v_lshrrev_b32 v{T[3]}, 5, v{vLN}
v_lshl_add_u32 v{T[2]}, v{T[2]}, 1, v{T[3]}
v_add_u32 v{T[2]}, v{T[0]}, v{T[2]}
v_bfe_u32 v{T[3]}, v{T[2]}, 2, 2
v_xor_b32 v{T[3]}, s{sWI}, v{T[3]}
v_mul_u32_u24 v{T[2]}, 192, v{T[2]}
v_lshl_add_u32 v{vAF}, v{T[3]}, 4, v{T[2]}
v_add_u32 v{vAF}, {XB}, v{vAF}
v_add_u32 v{T[2]}, 4, v{T[0]}
v_bfe_u32 v{T[3]}, v{T[2]}, 2, 2
v_xor_b32 v{T[3]}, s{sWI}, v{T[3]}
v_mul_u32_u24 v{T[2]}, 192, v{T[2]}
v_lshl_add_u32 v{vAE}, v{T[3]}, 4, v{T[2]}
v_add_u32 v{vAE16}, {XB}, v{vAE}
v_mul_u32_u24 v{T[2]}, {XROW}, v{T[1]}
v_add_u32 v{vAE}, v{vAE16}, v{T[2]}
v_bfe_u32 v{T[3]}, v{T[0]}, 2, 2
v_xor_b32 v{T[4]}, s{sWI}, v{T[3]}
v_mul_u32_u24 v{T[2]}, 192, v{T[0]}
v_lshl_add_u32 v{T[2]}, v{T[4]}, 4, v{T[2]}
v_bfe_u32 v{T[1]}, v{vLN}, 4, 1
v_mul_u32_u24 v{T[1]}, {XROW}, v{T[1]}
v_lshrrev_b32 v{T[3]}, 5, v{vLN}
v_bfe_u32 v{T[4]}, v{vLN}, 1, 1
v_xor_b32 v{T[3]}, v{T[3]}, v{T[4]}
v_lshl_add_u32 v{T[1]}, v{T[3]}, 3, v{T[1]}
v_add_u32 v{T[2]}, v{T[2]}, v{T[1]}
v_add_u32 v{vAO}, {XB}, v{T[2]}
v_add_u32 v{vAO1}, {EXTRA}, v{T[2]}
''')
for i in range(24):
    a(f'v_mov_b64 {vr(vACC+2*i,2)}, 0')
mksrd(sOUT, 14, XBYTES)
if opt('safe'): a('s_mov_b32 s98, 20000')
a(f'''
s_lshr_b32 s{sH13}, s{sH13}, 16
s_sub_u32 s{sH13}, s{sH13}, s{sY0}
s_mov_b32 s{sCA}, {fbits(ga):#x}
s_mov_b32 s{sCA+1}, {fbits(ga):#x}
s_mov_b32 s{sCC}, {fbits(gc):#x}
s_mov_b32 s{sCC+1}, {fbits(gc):#x}
s_add_u32 s{sT0}, s{sWI}, s{sY0}
s_mul_i32 s{sT0}, s{sT0}, 224
s_add_u32 s{sT0}, s{sT0}, s{sX0}
s_mul_i32 s{sO0}, s{sT0}, 192
''')
if STAMP:
    a(f's_mov_b32 s{sWS+2}, {256 if opt("dbg") else 0x10000000}\ns_mov_b32 s{sWS+3}, 0x00020000')
    for i in (6, 11, 12, 13, 14): a(f's_mov_b32 s{sST+2*i}, 0')
for j in range(3):
    a(f'''
    v_add_u32 v{T[0]}, {64*j}, v{vLN}
    v_mul_u32_u24 v{T[2]}, 171, v{T[0]}
    v_bfe_u32 v{T[2]}, v{T[2]}, 12, 2
    v_xor_b32 v{T[0]}, v{T[0]}, v{T[2]}
    v_lshl_add_u32 v{vSR[j]}, v{T[0]}, 4, s{sIMG}
    ''')
a(f'''
{isF} s{sWV}, 4
s_cbranch_scc1 L_F
''')
pstamp(14)
a(f's_waitcnt vmcnt({NX0 - 4}) lgkmcnt(0)')
pstamp(9)
bar(2)
a('s_branch L_L')

a.label('L_F')
OPF = opt('opf', '0') == '1'
if OPF:
    a(f'''
    s_mov_b64 exec, 1
    buffer_load_dword v{vPF-2}, v{vL16}, {srd(sOUT)}, s{sO0} offen
    s_mov_b64 exec, -1
    ''')
vFR = [48, 49, 50, 51]
a(f'''
s_add_u32 s{sO1}, s{sO0}, {4*43008}
v_lshrrev_b32 v{T[4]}, 5, v{vLN}
v_bfe_u32 v{T[0]}, v{vLN}, 2, 2
v_bfe_u32 v{T[1]}, v{vLN}, 4, 1
v_and_b32 v{T[2]}, 3, v{vLN}
v_lshl_add_u32 v{T[3]}, v{T[4]}, 4, v{T[0]}
v_lshlrev_b32 v{T[3]}, 7, v{T[3]}
v_lshl_add_u32 v{T[3]}, v{T[1]}, 5, v{T[3]}
v_lshl_add_u32 v{T[3]}, v{T[2]}, 3, v{T[3]}
v_bfe_u32 v{T[2]}, v{vLN}, 3, 1
v_lshl_add_u32 v{vAW1[0]}, v{T[2]}, 6, v{T[3]}
v_xor_b32 v{vAW1[1]}, 64, v{vAW1[0]}
v_xor_b32 v{vAW1[2]}, 32, v{vAW1[0]}
v_xor_b32 v{vAW1[3]}, 0x60, v{vAW1[0]}
v_lshl_add_u32 v{T[3]}, v{T[4]}, 2, v{T[0]}
v_mul_u32_u24 v{T[3]}, 192, v{T[3]}
v_lshl_add_u32 v{T[3]}, v{T[1]}, 4, v{T[3]}
v_and_b32 v{T[2]}, 1, v{vLN}
v_xor_b32 v{T[2]}, v{T[2]}, v{T[4]}
v_lshl_add_u32 v{T[3]}, v{T[2]}, 5, v{T[3]}
v_bfe_u32 v{T[2]}, v{vLN}, 1, 1
v_lshl_add_u32 v{T[3]}, v{T[2]}, 3, v{T[3]}
v_add_u32 v{vAW2}, 12288, v{T[3]}
s_mul_i32 s{sT1}, s{sWI}, {XROW}
s_cmp_ge_u32 s{sWI}, 2
s_cselect_b32 s{sT2}, {EXTRA - 2*XROW - XB}, 0
s_add_u32 s{sT1}, s{sT1}, {XB}
s_add_u32 s{sT2}, s{sT2}, s{sT1}
s_add_u32 s{sT1}, s{sT1}, {2*XROW}
v_lshlrev_b32 v{T[4]}, 1, v{T[4]}
v_xor_b32 v{T[0]}, v{T[4]}, v{T[0]}
v_and_b32 v{T[3]}, 15, v{vLN}
v_mul_u32_u24 v{T[3]}, 192, v{T[3]}
v_lshl_add_u32 v{T[0]}, v{T[0]}, 4, v{T[3]}
v_lshl_add_u32 v{T[0]}, v{T[2]}, 3, v{T[0]}
v_add_u32 v{vFR[0]}, s{sT2}, v{T[0]}
s_mov_b32 exec_lo, 0xffff0000
s_mov_b32 exec_hi, 0xffff0000
v_add_u32 v{vFR[0]}, s{sT1}, v{T[0]}
s_mov_b64 exec, -1
v_xor_b32 v{vFR[1]}, 8, v{vFR[0]}
v_xor_b32 v{vFR[2]}, 16, v{vFR[0]}
v_xor_b32 v{vFR[3]}, 24, v{vFR[0]}
v_add_u32 v{T[0]}, 2, v{vLN}
v_bfe_u32 v{T[0]}, v{T[0]}, 2, 2
v_xor_b32 v{T[0]}, v{T[4]}, v{T[0]}
v_lshl_add_u32 v{T[0]}, v{T[0]}, 4, v{T[3]}
v_mul_u32_u24 v{T[2]}, {4*XROW}, v{T[1]}
s_add_u32 s{sT1}, s{sT1}, 384
v_add3_u32 v{vAR[0]}, v{T[0]}, v{T[2]}, s{sT1}
v_xor_b32 v{vAR[1]}, 16, v{vAR[0]}
v_bfe_u32 v{T[0]}, v{vLN}, 1, 2
v_xor_b32 v{T[0]}, v{T[4]}, v{T[0]}
v_lshl_add_u32 v{T[0]}, v{T[0]}, 4, v{T[3]}
v_mul_u32_u24 v{T[2]}, 3072, v{T[1]}
v_add3_u32 v{vSW[0]}, v{T[0]}, v{T[2]}, s{sIMG}
v_xor_b32 v{vSW[1]}, 16, v{vSW[0]}
v_and_b32 v{T[1]}, 1, v{vLN}
v_lshlrev_b32 v{T[1]}, 4, v{T[1]}
v_mov_b32 v{T[2]}, 0x3f80
v_lshlrev_b32 v{T[1]}, v{T[1]}, v{T[2]}
''')
for i in range(4): a(f'v_mov_b64 {vr(vID+2*i,2)}, 0')
for i in range(8):
    pos = 16 * (i >> 2) + 8 * ((i >> 1) & 1) + 2 * (i & 1)
    setexec(3 << pos, 3 << (pos + 4))
    a(f'v_mov_b32 v{vID+i}, v{T[1]}')
a('s_mov_b64 exec, -1')
stamp(1)
a(f's_waitcnt vmcnt({(1 if WPF else 0) + (1 if PFM == "f" else 0) + (1 if OPF else 0)}) lgkmcnt(0)')
pstamp(9)
bar(2)
cv = Conv(0)
for gi in range(3): tab_reads(gi, cv.ds)
def res_half(s):
    m = 0xffff0000 if s else 0xffff
    setexec(m, m)
    for ks in range(6):
        cv.ds(f'ds_read_b128 {vr(vRES+4*ks,4)}, v{vAR[ks&1]} offset:{64*(ks>>1)}')
    a('s_mov_b64 exec, -1')
def run_stage(left, frags, pairs, keep=0, mid=None):
    its = left + stage(frags)
    if pairs: add_pub(its, len(left), len(frags), pairs)
    if mid: its[mid[0]]['post'] = mid[1]
    return cv.run(its, len(its) - keep)
left = run_stage([], [('F',0,[0]), ('F',1,[0,1])], [], int(opt('keep0', 2)))
pstamp(10)
bar(3)
left = run_stage(left, [('F',2,[0,1,2]), ('F',3,[1,2,3]), ('E',0,[0,1])], [0, 1], 0, (-4, lambda: res_half(0)))
a('s_waitcnt lgkmcnt(0)')
pstamp(11)
bar(4)
a(f's_setprio {opt("fprio2", 3)}')
left = run_stage(left, [('F',4,[2,3]), ('F',5,[3]), ('E',2,[2,3])], [2, 3], 0, (-4, lambda: res_half(1)))
signal(1)
stamp(5)
poll(GF, 1)
RA = 168
for ks in range(6):
    a(f'ds_read_b64 {vr(RA+4*ks,2)}, v{vFR[2*(ks&1)]} offset:{64*(ks>>1)}')
    a(f'ds_read_b64 {vr(RA+4*ks+2,2)}, v{vFR[2*(ks&1)+1]} offset:{64*(ks>>1)}')
signal(2)
peek(GL)
a(f's_setprio {opt("fprio3", 1)}')
a('s_waitcnt lgkmcnt(0)')
stamp(6)
a('s_waitcnt vmcnt(0)')
check(GL, 1)
f_w1reads0()
ln(RA, 72, [vL + i for i in range(24)], False)
stamp(8)
XH = {
  ('T1', 1): [lambda: stamp(9)],
  ('T2', 1): [lambda: peek(GL)],
  ('preT1', 2): [lambda: check(GL, 4)],
  ('preT1', 4): [lambda: signal(3)],
  ('T2', 5): [lambda: peek(GL)],
  ('preT1', 6): [lambda: check(GL, 5), lambda: stamp(10)],
  ('preT1', 8): [lambda: stamp(11)],
  ('T2', 8): [lambda: peek(GF)],
  ('preT1', 9): [lambda: check(GF, 3)],
  ('T2', 9): [lambda: peek(GL)],
  ('preT1', 10): [lambda: check(GL, 6), lambda: stamp(12)],
}
FP = opt('fp', 'n')
def fprio(c):
    if FP == 'n': return (0, 0) if c == 0 else None
    if FP == 's': return (1, 1) if c == 0 else None
    return (0, int(FP))
mlp32(XH, fprio)
stamp(13)
P = vY[0]; Q = vK[0]
for mt in range(3):
    for i in range(8):
        a(f'v_cvt_pk_bf16_f32 v{P+8*mt+i}, v{vO+16*mt+2*i}, v{vO+16*mt+2*i+1}')
    a(f'ds_write_b128 v{vSW[0]}, {vr(P+8*mt,4)} offset:{64*mt}')
    a(f'ds_write_b128 v{vSW[1]}, {vr(P+8*mt+4,4)} offset:{64*mt}')
for s in range(2):
    for j in range(3):
        a(f'ds_read_b128 {vr(Q+4*(3*s+j),4)}, v{vSR[j]} offset:{3072*s}')
for s in range(2):
    for j in range(3):
        a(f's_waitcnt lgkmcnt({5-(3*s+j)})')
        a(f'buffer_store_dwordx4 {vr(Q+4*(3*s+j),4)}, v{vL16}, {srd(sOUT)}, s{sO1 if s else sO0} offen offset:{1024*j}{STPOL}')
finish()
emit_slow()

a.label('L_L')
cv = Conv(4)
if NX0 < 17:
    a('s_mov_b32 exec_hi, 0x0fffffff')
    xrows(17 - NX0)
    a('s_mov_b32 exec_hi, -1')
for gi in range(3): tab_reads(gi, cv.ds)
mksrd(sW1, 10, 73728); mksrd(sW2, 12, 73728)
a(f'''
v_lshrrev_b32 v{T[0]}, 3, v{vLN}
v_mul_u32_u24 v{T[0]}, 768, v{T[0]}
v_bfe_u32 v{T[1]}, v{vLN}, 4, 1
v_lshlrev_b32 v{T[1]}, 2, v{T[1]}
v_and_b32 v{T[2]}, 7, v{vLN}
v_xor_b32 v{T[1]}, v{T[1]}, v{T[2]}
v_lshl_add_u32 v{T[0]}, v{T[1]}, 4, v{T[0]}
s_and_b32 s{sT1}, s{sWI}, 1
s_lshl_b32 s{sT0}, s{sT1}, 5
v_xor_b32 v{vDW1[0]}, s{sT0}, v{T[0]}
v_xor_b32 v{vDW1[1]}, 32, v{vDW1[0]}
v_mov_b32 v{vDW2[0]}, v{vL16}
v_mov_b32 v{vDW2[1]}, v{vL16}
v_mov_b32 v{vDW2[2]}, v{vL16}
s_mov_b32 exec_lo, 0xffff0000
v_xor_b32 v{vDW2[2]}, 32, v{vL16}
s_mov_b32 exec_lo, 0
s_mov_b32 exec_hi, 0xffff0000
v_xor_b32 v{vDW2[0]}, 32, v{vL16}
s_mov_b32 exec_lo, -1
s_mov_b32 exec_hi, 0
v_xor_b32 v{vDW2[1]}, 32, v{vL16}
s_mov_b64 exec, -1
s_mul_i32 s{sWA}, s{sWI}, {3*6144}
s_mul_i32 s{sWBm}, s{sWI}, 3072
''')
pstamp(10)
a('s_waitcnt vmcnt(9)')
pstamp(11)
bar(3)
wdma(0)
W1P = int(opt('w1p', 1))
vA0, vA2 = 48, 50
RR = 60
a(f'''
s_add_u32 s{sO0}, s{sO0}, {8*43008}
v_lshrrev_b32 v{T[4]}, 4, v{vLN}
v_bfe_u32 v{T[0]}, v{vLN}, 2, 2
v_and_b32 v{T[2]}, 3, v{vLN}
v_bfe_u32 v{T[1]}, v{vLN}, 4, 1
v_lshlrev_b32 v{T[2]}, 3, v{T[2]}
v_lshl_add_u32 v{T[2]}, v{T[1]}, 5, v{T[2]}
v_lshl_add_u32 v{T[3]}, v{T[4]}, 3, v{T[0]}
v_lshl_add_u32 v{T[3]}, v{T[3]}, 7, v{T[2]}
v_bfe_u32 v{T[1]}, v{vLN}, 3, 1
v_xor_b32 v{T[1]}, s{sT1}, v{T[1]}
v_lshl_add_u32 v{T[3]}, v{T[1]}, 6, v{T[3]}
s_lshr_b32 s{sT2}, s{sWI}, 1
s_mul_i32 s{sT2}, s{sT2}, {PS}
s_sub_u32 s{sT3}, {PS}, s{sT2}
v_add_u32 v{vLW1}, s{sT2}, v{T[3]}
v_add_u32 v{vLW1+4}, s{sT3}, v{T[3]}
v_xor_b32 v{vLW1+1}, 32, v{vLW1}
v_xor_b32 v{vLW1+2}, 64, v{vLW1}
v_xor_b32 v{vLW1+3}, 0x60, v{vLW1}
v_xor_b32 v{vLW1+5}, 32, v{vLW1+4}
v_xor_b32 v{vLW1+6}, 64, v{vLW1+4}
v_xor_b32 v{vLW1+7}, 0x60, v{vLW1+4}
v_lshl_add_u32 v{T[3]}, v{T[4]}, 2, v{T[0]}
v_mul_u32_u24 v{T[3]}, 192, v{T[3]}
v_add_u32 v{T[3]}, v{T[3]}, v{T[2]}
s_mul_i32 s{sT1}, s{sT1}, 6144
s_add_u32 s{sT2}, s{sT2}, 12288
s_add_u32 s{sT3}, s{sT3}, 12288
s_add_u32 s{sT0}, s{sT2}, s{sT1}
v_add_u32 v{vLW2}, s{sT0}, v{T[3]}
s_add_u32 s{sT0}, s{sT3}, s{sT1}
v_add_u32 v{vLW2+4}, s{sT0}, v{T[3]}
s_sub_u32 s{sT1}, 6144, s{sT1}
s_add_u32 s{sT0}, s{sT2}, s{sT1}
v_add_u32 v{vLW2+2}, s{sT0}, v{T[3]}
s_add_u32 s{sT0}, s{sT3}, s{sT1}
v_add_u32 v{vLW2+6}, s{sT0}, v{T[3]}
v_xor_b32 v{vLW2+1}, 32, v{vLW2}
v_xor_b32 v{vLW2+3}, 32, v{vLW2+2}
v_xor_b32 v{vLW2+5}, 32, v{vLW2+4}
v_xor_b32 v{vLW2+7}, 32, v{vLW2+6}
v_xor_b32 v{T[0]}, v{T[4]}, v{T[0]}
v_and_b32 v{T[3]}, 15, v{vLN}
v_mul_u32_u24 v{T[3]}, 192, v{T[3]}
v_lshl_add_u32 v{T[0]}, v{T[0]}, 4, v{T[3]}
v_add_u32 v{vARL}, {L12}, v{T[0]}
v_bfe_u32 v{T[1]}, v{vLN}, 1, 1
v_lshl_add_u32 v{T[0]}, v{T[1]}, 3, v{T[0]}
v_add_u32 v{vA2}, {XB}, v{T[0]}
v_xor_b32 v{vA2+1}, 8, v{vA2}
s_mul_i32 s{sT0}, s{sWI}, {XROW}
v_add_u32 v{vA0}, s{sT0}, v{vA2}
v_xor_b32 v{vA0+1}, 8, v{vA0}
v_bfe_u32 v{T[1]}, v{vLN}, 4, 1
v_lshl_add_u32 v{T[3]}, v{T[1]}, 3, v{T[3]}
v_lshrrev_b32 v{T[4]}, 5, v{vLN}
v_bfe_u32 v{T[0]}, v{vLN}, 1, 2
v_xor_b32 v{T[0]}, v{T[4]}, v{T[0]}
v_lshl_add_u32 v{T[0]}, v{T[0]}, 4, v{T[3]}
v_add_u32 v{vSW[0]}, s{sIMG}, v{T[0]}
v_xor_b32 v{vSW[1]}, 32, v{vSW[0]}
v_add_u32 v{T[0]}, 2, v{vLN}
v_bfe_u32 v{T[0]}, v{T[0]}, 2, 2
v_xor_b32 v{T[0]}, v{T[4]}, v{T[0]}
v_lshl_add_u32 v{T[0]}, v{T[0]}, 4, v{T[3]}
s_add_u32 s{sT0}, s{sT0}, {XB + 384}
v_add_u32 v{vAR[0]}, s{sT0}, v{T[0]}
v_xor_b32 v{vAR[1]}, 32, v{vAR[0]}
''')
if W1P == 1: wdma(1)
pstamp(12)
a(f's_waitcnt vmcnt({12 if W1P == 1 else 6}) lgkmcnt(0)')
pstamp(13)
bar(4)
a(f's_setprio {opt("lprio", 2)}')
RED, LNW = 1, 3
def raw_reads(R, ad, off=0):
    for ks in range(3):
        a(f'ds_read_b64 {vr(R+4*ks,2)}, v{ad} offset:{off+64*ks}')
        a(f'ds_read_b64 {vr(R+4*ks+2,2)}, v{ad+1} offset:{off+64*ks}')
def row_store(O, soff):
    P = vY[0]; Q = vK[0]
    for i in range(12):
        a(f'v_cvt_pk_bf16_f32 v{P+i}, v{O+2*i}, v{O+2*i+1}')
    for i in range(6):
        a(f'ds_write_b64 v{vSW[i&1]}, {vr(P+2*i,2)} offset:{64*(i>>1)}')
    for j in range(3):
        a(f'ds_read_b128 {vr(Q+4*j,4)}, v{vSR[j]}')
    for j in range(3):
        a(f's_waitcnt lgkmcnt({2-j})')
        a(f'buffer_store_dwordx4 {vr(Q+4*j,4)}, v{vL16}, {srd(sOUT)}, s{soff} offen offset:{1024*j}{STPOL}')
LP = opt('lp', 'k')
def lprio(c):
    if LP == 'n': return (0, 0) if c == 0 else None
    if LP == 's': return (1, 1) if c == 0 else None
    if LP == 'k':
        lo, hi = [int(x) for x in opt('lk', '0,6').split(',')]
        if lo <= c < hi: return (0, 1)
        return (0, 0) if c in (0, hi) else None
    return (0, int(LP))
def l_body(h13):
    global cv
    keep = cv
    cv = copy.copy(keep)
    sfx = 'a' if h13 else 'b'
    if h13:
        frags = [('F',4,[4]), ('F',5,[4,5]), ('F',6,[4,5,6]), ('F',7,[5,6]), ('E',4,[4,5]), ('F',8,[6]), ('L',6,[6])]; pairs = [4, 5, 6]
    else:
        frags = [('F',4,[4]), ('F',5,[4,5]), ('F',6,[4,5]), ('F',7,[5]), ('E',4,[4,5])]; pairs = [4, 5]
    its = stage(frags)
    add_pub(its, 0, len(frags), pairs, True)
    def resr():
        for i in range(6):
            cv.ds(f'ds_read_b64 {vr(RR+2*i,2)}, v{vAR[i&1]} offset:{10*XROW+64*(i>>1)}')
        if h13:
            for i in range(6):
                cv.ds(f'ds_read_b64 {vr(RR+12+2*i,2)}, v{vAR[i&1]} offset:{(14-RED)*XROW+64*(i>>1)}')
    its[-4]['post'] = resr
    def wl():
        a('s_waitcnt vmcnt(0)')
        signal(1, cv.ds)
    its[int(opt('wlpos', 6))]['post'] = wl
    if W1P != 1:
        for j in range(3): its[j]['post'] = lambda j=j: wdma(1, [2*j, 2*j+1])
    cv.run(its)
    poll(GF, 2)
    cv.write([(gi, k) for gi in range(3) for k in pairs])
    signal(2)
    wdma(2, [0, 1, 2])
    for i in range(12):
        a(f'v_lshlrev_b32 v{vO+2*i}, 16, v{RR+i}\nv_and_b32 v{vO+2*i+1}, 0xffff0000, v{RR+i}')
    if h13:
        a(f's_cmp_eq_u32 s{sWI}, {RED}\ns_cbranch_scc1 L_ri{sfx}')
        for i in range(12): a(f'v_mov_b64 {vr(vO+24+2*i,2)}, 0')
        a(f's_branch L_rj{sfx}')
        a.label(f'L_ri{sfx}')
        for i in range(12):
            a(f'v_lshlrev_b32 v{vO+24+2*i}, 16, v{RR+12+i}\nv_and_b32 v{vO+24+2*i+1}, 0xffff0000, v{RR+12+i}')
        a.label(f'L_rj{sfx}')
    stamp(5)
    poll(GL, 2)
    stamp(7)
    RAW = 168
    raw_reads(RAW, vA0, 6 * XROW)
    if h13: raw_reads(RAW + 12, vA2)
    l_w1reads(0)
    wdma(2, [3, 4, 5])
    if h13:
        a(f's_cmp_lg_u32 s{sWI}, {LNW}\ns_cbranch_scc1 L_nl12\ns_waitcnt lgkmcnt(12)')
        ln(RAW + 12, 72, [RAW + 12 + i for i in range(12)], True)
        for ks in range(3):
            a(f'ds_write_b128 v{vARL}, {vr(RAW+12+4*ks,4)} offset:{64*ks}')
        a.label('L_nl12')
    signal(3)
    a('s_waitcnt lgkmcnt(13)')
    ln(RAW, 72, [vL + i for i in range(12)], True)
    stamp(8)
    def l12r():
        for ks in range(3):
            a(f'ds_read_b128 {vr(vL+12+4*ks,4)}, v{vARL} offset:{64*ks}')
    def pub_rem():
        a(f's_cmp_eq_u32 s{sWI}, {RED}\ns_cbranch_scc1 L_np\ns_mul_i32 s{sT0}, s{sWI}, 6144\nv_add_u32 v{T[0]}, s{sT0}, v{vL16}')
        for i in range(6):
            a(f'ds_write_b128 v{T[0]}, {vr(vO+24+4*i,4)} offset:{S_R + 1024*i}')
        a.label('L_np')
        signal(7)
    H = {
      'start3': [lambda: peek(GL)],
      ('preT1', 0): [lambda: check(GL, 3)],
      ('T1', 0): [lambda: wdma(3, [0, 1, 2])],
      ('T2', 0): [lambda: wdma(3, [3, 4, 5])],
      ('T1', 1): [lambda: wdma(4, [0, 1, 2]), lambda: stamp(9)] + ([l12r] if h13 else []),
      ('preT2', 1): [lambda: landed(3, 4)],
      ('T2', 1): [lambda: wdma(4, [3, 4, 5]), lambda: peek(GL)],
      ('preT1', 2): [lambda: check(GL, 4)],
      ('T1', 2): [lambda: wdma(5, [0, 1, 2])],
      ('T2', 2): [lambda: wdma(5, [3, 4, 5])],
      ('preT1', 4): [lambda: landed(0, 6)],
      ('T2', 5): [lambda: peek(GL)],
      ('preT1', 6): [lambda: check(GL, 6), lambda: stamp(10)],
      ('preT1', 8): [lambda: stamp(11)],
      ('preT1', 10): [lambda: stamp(12)],
    }
    if h13:
        H[('T2', 9)] = [lambda: peek(GF)]
        H[('preT1', 10)] = H[('preT1', 10)] + [lambda: check(GF, 3), pub_rem]
    mlp16([3, 5, 8] if h13 else [], H, lprio)
    stamp(13)
    row_store(vO, sO0)
    if h13:
        a(f's_cmp_lg_u32 s{sWI}, {RED}\ns_cbranch_scc1 L_fin{sfx}')
        poll(GL, 7)
        others = [w for w in range(4) if w != RED]
        for n, w in enumerate(others):
            for i in range(6):
                a(f'ds_read_b128 {vr(144+24*n+4*i,4)}, v{vL16} offset:{S_R + 6144*w + 1024*i}')
        for n in range(3):
            a(f's_waitcnt lgkmcnt({12 - 6*n})')
            for i in range(12):
                a(f'v_pk_add_f32 {vr(vO+24+2*i,2)}, {vr(vO+24+2*i,2)}, {vr(144+24*n+2*i,2)}')
        a(f's_add_u32 s{sO1}, s{sO0}, {(4-RED)*43008}')
        row_store(vO + 24, sO1)
        a.label(f'L_fin{sfx}')
    finish()
    emit_slow()
    cv = keep
a(f's_cmp_lg_u32 s{sH13}, 13\ns_cbranch_scc1 L_L12')
l_body(True)
a.label('L_L12')
l_body(False)
a.label('L_end')
a('s_endpgm')

body = a.finalize()
hdr = open('cdna_kernels/' + NAME + '.s.ref').read().split('\n')
out = []
for l in hdr:
    if l.startswith('; @launch'):
        out.append('; @launch grid=(256,1,1) block=(512,1,1) lds=163840')
    elif l.startswith(';'):
        out.append(l)
    else:
        break
out.append('.amdgcn_target "amdgcn-amd-amdhsa--gfx950"')
out.append('.text')
out.append(f'.globl {NAME}_kernel')
out.append('.p2align 8')
out.append(f'.type {NAME}_kernel,@function')
out.append(f'{NAME}_kernel:')
for l in body:
    out.append(l if l.endswith(':') else '    ' + l)
out.append(f'''.section .rodata,"a"
.p2align 6
.amdhsa_kernel {NAME}_kernel
  .amdhsa_next_free_vgpr 256
  .amdhsa_next_free_sgpr 102
  .amdhsa_accum_offset 256
  .amdhsa_group_segment_fixed_size 0
  .amdhsa_kernarg_size 64
  .amdhsa_user_sgpr_count 2
  .amdhsa_user_sgpr_kernarg_segment_ptr 1
  .amdhsa_system_sgpr_workgroup_id_x 1
.end_amdhsa_kernel''')
print('\n'.join(out))
```

```python
import sys, struct, math, copy
from asmlib import Asm

NAME = "standalone__modern_conv_block_replknet__vision"
def fbits(x): return struct.unpack('<I', struct.pack('<f', x))[0]
def opt(name, default=None):
    for x in sys.argv:
        if x == '--' + name: return True
        if x.startswith('--' + name + '='): return x.split('=', 1)[1]
    return default
STAMP = opt('stamp'); CYC = opt('cyc'); PRO = opt('pro')
STPOL = ' ' + opt('stpol', 'sc1').replace('_', ' ') if opt('stpol', 'sc1') != 'none' else ''
FOLD = opt('fold', '1') == '1'
GL, GF = (1, 0) if FOLD else (0, 1)

XROW = 3840
XB = 73728
PS = 24576
TB, TP = 139264, 976
EXTRA = 155136
L12 = 147456
FL = 163584
S_IF, S_R, S_IL = 0, 24576, 150528
MARK = 0x40000000
XBYTES = 224 * 224 * 192

k0 = math.sqrt(2.0 / math.pi); k1 = 0.044715
c0 = 2 * k0 / math.log(2.0); c1 = c0 * k1
ga = c1 ** (1.0 / 3.0)
gc = -c0 / ga

sX, sDL, sDS, sW1, sW2, sOUT = 16, 20, 24, 28, 32, 36
sWV, sY0, sX0, sT0, sT1, sT2, sT3 = 40, 41, 42, 43, 44, 45, 46
sH13, sWI = 47, 3
sCA, sCC = 48, 50
sWS = 52
sXM, sIMG = 56, 57
sWA, sWBm = 58, 59
sO0, sO1 = 60, 61
sST = 64
NST = 16
def srd(b): return f's[{b}:{b+3}]'
vO, vL, vY, vK, vG, vF1, vF2 = 0, 48, [72, 88], [104, 120], 136, 144, 168
vRES, vID = 204, 228
vAW1 = [236, 237, 245, 249]; vAW2 = 238
vLW1 = 204; vLW2 = 212
vDW1 = [220, 221]; vDW2 = [222, 223, 224]
vARL = 225
vSW = [239, 240]; vSR = [241, 242, 243]
vL16 = 244
vFA, vFW, vFP = 246, 247, 248
T = [250, 251, 252, 253, 254]
vLN = 255
vXO = 203; vPF = 54
vAF, vAE, vAO, vIDX, vTF0, vTF1, vTE, vAR, vAE16, vAO1 = 192, 193, 194, 195, 196, 197, 198, [199, 200], 201, 202
vACC, vAFR, vB = 0, 84, 144
def vr(b, n): return f'v[{b}:{b+n-1}]'

a = Asm()
def _st(i): a(f'{"s_memtime" if CYC else "s_memrealtime"} s[{sST+2*i}:{sST+2*i+1}]')
def pstamp(i):
    if STAMP and PRO: _st(i)
def stamp(i):
    if STAMP and not (PRO and 9 <= i <= 14): _st(i)
def mksrd(b, lo, n):
    a(f's_mov_b64 s[{b}:{b+1}], s[{lo}:{lo+1}]\ns_mov_b32 s{b+2}, {n}\ns_mov_b32 s{b+3}, 0x00020000')
def bar(i=None):
    a('s_barrier')
    if i is not None: stamp(i)
def setexec(lo, hi):
    a(f's_mov_b32 exec_lo, {lo:#x}\ns_mov_b32 exec_hi, {hi:#x}')

nlab = [0]; slow = []
def guard():
    if opt('safe'): a('s_sub_u32 s98, s98, 1\ns_cbranch_scc1 L_end')
def signal(v, emit=None):
    a(f'v_mov_b32 v{T[4]}, {v}')
    (emit or a)(f'ds_write_b32 v{vFW}, v{T[4]}')
def poll(grp, v):
    lab = f'L_poll{nlab[0]}'; nlab[0] += 1
    a.label(lab)
    guard()
    a(f'ds_read_b32 v{vFP}, v{vFA} offset:{16*grp}\ns_waitcnt lgkmcnt(0)\nv_cmp_gt_u32 vcc, {v}, v{vFP}\ns_cbranch_vccnz {lab}')
def peek(grp): a(f'ds_read_b32 v{vFP}, v{vFA} offset:{16*grp}')
def check(grp, v):
    n = nlab[0]; nlab[0] += 1
    a(f'v_cmp_gt_u32 vcc, {v}, v{vFP}\ns_cbranch_vccnz L_slow{n}')
    a.label(f'L_back{n}')
    slow.append((n, grp, v))
def emit_slow():
    for n, grp, v in slow:
        a.label(f'L_slow{n}')
        guard()
        a(f'ds_read_b32 v{vFP}, v{vFA} offset:{16*grp}\ns_waitcnt lgkmcnt(0)\nv_cmp_gt_u32 vcc, {v}, v{vFP}\ns_cbranch_vccnz L_slow{n}\ns_branch L_back{n}')
    slow.clear()
def landed(n, v):
    a(f's_waitcnt vmcnt({n})'); signal(v)

def wdma(p, parts=range(6)):
    for i in parts:
        if i < 3:
            a(f'''
            s_add_u32 m0, s{sWBm}, {PS*p + 1024*i}
            s_add_u32 s{sT0}, s{sWA}, {6144*i + 128*p}
            buffer_load_dwordx4 v{vDW1[i & 1]}, {srd(sW1)}, s{sT0} offen lds
            ''')
        else:
            if i == 3 or i - 1 not in parts:
                a(f's_add_u32 m0, s{sWBm}, {PS*p + 12288}\ns_add_u32 s{sT0}, s{sWBm}, {12288*p}')
            a(f'buffer_load_dwordx4 v{vDW2[i-3]}, {srd(sW2)}, s{sT0} offen offset:{1024*(i-3)} lds')

def ln(raw, U, dst, rows16):
    n = len(dst)
    S, Q, ONE = T[1], T[3], T[4]
    sc, bi = T[0], T[2]
    a(f'v_mov_b32 v{ONE}, 0x3f803f80')
    for i in range(n):
        a(f'v_dot2_f32_bf16 v{S}, v{raw+i}, v{ONE}, {"0" if i == 0 else f"v{S}"}')
        a(f'v_dot2_f32_bf16 v{Q}, v{raw+i}, v{raw+i}, {"0" if i == 0 else f"v{Q}"}')
    un = []
    for i in range(n):
        un.append(f'v_lshlrev_b32 v{U+2*i}, 16, v{raw+i}')
        un.append(f'v_and_b32 v{U+2*i+1}, 0xffff0000, v{raw+i}')
    def fill(k):
        for _ in range(k):
            if un: a(un.pop(0))
    fill(3)
    a(f'v_permlane32_swap_b32 v{S}, v{Q}')
    a(f'v_add_f32 v{S}, v{S}, v{Q}')
    if rows16:
        a(f'v_mov_b32 v{Q}, v{S}')
        fill(2)
        a(f'v_permlane16_swap_b32 v{S}, v{Q}')
        a(f'v_add_f32 v{S}, v{S}, v{Q}')
    a(f'v_mul_f32 v{S}, {fbits(1.0/96):#x}, v{S}')
    a(f'v_mov_b32 v{Q}, v{S}')
    fill(2)
    a(f'v_permlane32_swap_b32 v{S}, v{Q}')
    a(f'''
    v_fma_f32 v{Q}, -v{S}, v{S}, v{Q}
    v_max_f32 v{Q}, 0, v{Q}
    v_add_f32 v{Q}, {fbits(1e-5):#x}, v{Q}
    v_rsq_f32 v{Q}, v{Q}
    ''')
    fill(1)
    a(f'v_mul_f32 v{sc}, {fbits(ga):#x}, v{Q}')
    a(f'v_mul_f32 v{bi}, -v{S}, v{sc}')
    fill(1000)
    for i in range(n):
        if opt('lnplain'):
            a(f'v_fma_f32 v{U+2*i}, v{U+2*i}, v{sc}, v{bi}\nv_fma_f32 v{U+2*i+1}, v{U+2*i+1}, v{sc}, v{bi}')
        else:
            a(f'v_pk_fma_f32 {vr(U+2*i,2)}, {vr(U+2*i,2)}, {vr(sc,2)}, {vr(bi,2)} op_sel_hi:[1,0,0]')
    for i in range(n):
        a(f'v_cvt_pk_bf16_f32 v{dst[i]}, v{U+2*i}, v{U+2*i+1}')

def pk_t(Y, K, n):
    return [f'v_pk_fma_f32 {vr(K+2*i,2)}, {vr(Y+2*i,2)}, {vr(Y+2*i,2)}, s[{sCC}:{sCC+1}] neg_lo:[1,0,0] neg_hi:[1,0,0]' for i in range(n//2)] + pk_m(Y, K, n)
def pk_m(Y, K, n): return [f'v_pk_mul_f32 {vr(K+2*i,2)}, {vr(Y+2*i,2)}, {vr(K+2*i,2)}' for i in range(n//2)]
def pk_d(K, n): return [f'v_pk_fma_f32 {vr(K+2*i,2)}, {vr(K+2*i,2)}, s[{sCA}:{sCA+1}], s[{sCA}:{sCA+1}]' for i in range(n//2)]
def emit(l):
    for t in l: a(t)

def mlp32(hooks, prio):
    N = 12
    moved = {'w1': False, 'w2': False}
    def move(kind, c):
        if c >= 6 and not moved[kind]:
            for r in (vAW1 if kind == 'w1' else [vAW2]): a(f'v_add_u32 v{r}, {3*PS}, v{r}')
            moved[kind] = True
    def w1reads(c):
        for ks in range(6):
            off = ((c >> 1) % 3) * PS + (ks >> 1) * 4096 + (ks & 1) * 1024
            r = vAW1[(c & 1) + 2 * (ks & 1)]
            a(f'ds_read_b64_tr_b16 {vr(vF1+4*ks,2)}, v{r} offset:{off}')
            a(f'ds_read_b64_tr_b16 {vr(vF1+4*ks+2,2)}, v{r} offset:{off+512}')
    def w2reads(c):
        for i in range(6):
            ks2, mt = i // 3, i % 3
            off = ((c >> 1) % 3) * PS + (c & 1) * 6144 + ks2 * 3072 + mt * 64
            a(f'ds_read_b64_tr_b16 {vr(vF2+4*i,2)}, v{vAW2} offset:{off}')
            a(f'ds_read_b64_tr_b16 {vr(vF2+4*i+2,2)}, v{vAW2} offset:{off+1536}')
    def g1(c, ks):
        Y = vY[c & 1]
        a(f'v_mfma_f32_32x32x16_bf16 {vr(Y,16)}, {vr(vF1+4*ks,4)}, {vr(vL+4*ks,4)}, {"0" if ks == 0 else vr(Y,16)}')
    def g2(i):
        ks2, mt = i // 3, i % 3
        a(f'v_mfma_f32_32x32x16_bf16 {vr(vO+16*mt,16)}, {vr(vF2+4*i,4)}, {vr(vG+4*ks2,4)}, {vr(vO+16*mt,16)}')
    def resm(ks):
        j, mt = ks // 3, ks % 3
        a(f'v_mfma_f32_32x32x16_bf16 {vr(vO+16*mt,16)}, {vr(vID+4*j,4)}, {vr(vRES+4*(2*mt+j),4)}, {"0" if j == 0 else vr(vO+16*mt,16)}')
    def hook(k):
        for f in hooks.get(k, []): f()
    def pr(c, v):
        if prio(c) is not None: a(f's_setprio {prio(c)[v]}')
    hook('pre')
    a('s_waitcnt lgkmcnt(0)')
    for ks in range(6): g1(0, ks)
    w1reads(1)
    hook('start3')
    for c in range(N + 1):
        Y, K = vY[c & 1], vK[c & 1]
        Yp, Kp = vY[(c - 1) & 1], vK[(c - 1) & 1]
        pr(c, 1)
        if c >= 1: emit(pk_m(Yp, Kp, 16))
        if c < N: emit(pk_t(Y, K, 16))
        cv = [f'v_cvt_pk_bf16_f32 v{vG+i}, v{Kp+2*i}, v{Kp+2*i+1}' for i in range(8)] if c >= 1 else []
        if c == N:
            emit(cv)
            a('s_waitcnt lgkmcnt(0)')
            for i in (0, 3, 1, 4, 2, 5): g2(i)
            break
        ex = [f'v_exp_f32 v{K+i}, v{K+i}' for i in range(16)]
        rc = [f'v_rcp_f32 v{K+i}, v{K+i}' for i in range(16)]
        last = c + 1 >= N
        if c + 2 < N: move('w1', c + 2)
        move('w2', c)
        if c == 0:
            gaps = [ex[0:3], ex[3:6], ex[6:9], ex[9:12], ex[12:15], ex[15:16]]
            a('s_waitcnt lgkmcnt(0)')
            for j in range(6):
                g1(1, j); emit(gaps[j])
        elif not last:
            gaps = [cv[0:4] + ex[0:1], cv[4:8] + ex[1:2], ex[2:5], ex[5:8], ex[8:11], ex[11:14], ex[14:16]]
            for j in range(7):
                if j < 6: g1(c + 1, j)
                else: g2(0)
                if j == 5: a('s_waitcnt lgkmcnt(0)')
                emit(gaps[j])
        else:
            emit(cv); emit(ex[0:4])
            a('s_waitcnt lgkmcnt(0)')
            gaps = [ex[4:8], ex[8:12], ex[12:16]]
            for j in range(3):
                g2(j); emit(gaps[j])
        hook(('preT1', c))
        pr(c, 0)
        if c + 2 < N: w1reads(c + 2)
        hook(('T1', c))
        pr(c, 1)
        emit(pk_d(K, 16))
        if c == 0:
            gp = [rc[0:3], rc[3:6], rc[6:9], rc[9:12], rc[12:14], rc[14:16]]
            for j in range(6):
                resm(j)
                if j == 5: a('s_waitcnt lgkmcnt(0)')
                emit(gp[j])
        elif not last:
            gp = [rc[0:3], rc[3:6], rc[6:9], rc[9:12], rc[12:16]]
            for j in range(5):
                g2(j + 1)
                if j == 4: a('s_waitcnt lgkmcnt(0)')
                emit(gp[j])
        else:
            gp = [rc[0:3], rc[3:6], rc[6:16]]
            for j in range(3):
                g2(j + 3)
                if j == 2: w2reads(c)
                emit(gp[j])
        hook(('preT2', c))
        pr(c, 0)
        if not last: w2reads(c)
        hook(('T2', c))
    return w1reads

def f_w1reads0():
    for ks in range(6):
        off = (ks >> 1) * 4096 + (ks & 1) * 1024
        r = vAW1[2 * (ks & 1)]
        a(f'ds_read_b64_tr_b16 {vr(vF1+4*ks,2)}, v{r} offset:{off}')
        a(f'ds_read_b64_tr_b16 {vr(vF1+4*ks+2,2)}, v{r} offset:{off+512}')

def l_w1reads(s):
    for i in range(6):
        mt2, ks3 = i // 3, i % 3
        off = ((s >> 2) & 1) * 2 * PS + ks3 * 4096
        r = vLW1 + mt2 + 2 * (s & 3)
        a(f'ds_read_b64_tr_b16 {vr(vF1+4*i,2)}, v{r} offset:{off}')
        a(f'ds_read_b64_tr_b16 {vr(vF1+4*i+2,2)}, v{r} offset:{off+512}')

def mlp16(doubles, hooks, prio):
    N = 12
    def wid(s): return 0 if (s < 0 or s >= N) else (2 if s in doubles else 1)
    def move(base):
        for r in range(8): a(f'v_add_u32 v{base+r}, {4*PS}, v{base+r}')
    def w2reads(s):
        for i in range(6):
            off = ((s >> 2) & 1) * 2 * PS + 64 * (i >> 1)
            r = vLW2 + (i & 1) + 2 * (s & 3)
            a(f'ds_read_b64_tr_b16 {vr(vF2+4*i,2)}, v{r} offset:{off}')
            a(f'ds_read_b64_tr_b16 {vr(vF2+4*i+2,2)}, v{r} offset:{off+3072}')
    def m1(s):
        l = []
        for t in range(wid(s)):
            for j in range(6):
                mt2, ks3 = j & 1, j >> 1
                D = vY[s & 1] + 8 * t + 4 * mt2
                l.append(f'v_mfma_f32_16x16x32_bf16 {vr(D,4)}, {vr(vF1+4*(mt2*3+ks3),4)}, {vr(vL+12*t+4*ks3,4)}, {"0" if ks3 == 0 else vr(D,4)}')
        return l
    def m2(s):
        return [f'v_mfma_f32_16x16x32_bf16 {vr(vO+24*t+4*i,4)}, {vr(vF2+4*i,4)}, {vr(vG+4*t,4)}, {vr(vO+24*t+4*i,4)}' for t in range(wid(s)) for i in range(6)]
    def weave(ms, fl):
        fl = list(fl)
        if not ms:
            emit(fl); a('s_waitcnt lgkmcnt(0)'); return
        for j, m in enumerate(ms):
            a(m)
            if j == len(ms) - 1: a('s_waitcnt lgkmcnt(0)')
            k = -(-len(fl) // (len(ms) - j))
            emit(fl[:k]); fl = fl[k:]
    def hook(k):
        for f in hooks.get(k, []): f()
    def pr(c, v):
        if prio(c) is not None: a(f's_setprio {prio(c)[v]}')
    hook('pre')
    a('s_waitcnt lgkmcnt(0)')
    emit(m1(0))
    l_w1reads(1)
    hook('start3')
    for s in range(N + 1):
        Y, K = vY[s & 1], vK[s & 1]
        Yp, Kp = vY[(s - 1) & 1], vK[(s - 1) & 1]
        n, np_ = 8 * wid(s), 8 * wid(s - 1)
        pr(s, 1)
        emit(pk_m(Yp, Kp, np_))
        emit(pk_t(Y, K, n))
        cv = [f'v_cvt_pk_bf16_f32 v{vG+i}, v{Kp+2*i}, v{Kp+2*i+1}' for i in range(np_ // 2)]
        if s == N:
            emit(cv)
            a('s_waitcnt lgkmcnt(0)')
            emit(m2(N - 1))
            break
        ex = [f'v_exp_f32 v{K+i}, v{K+i}' for i in range(n)]
        rc = [f'v_rcp_f32 v{K+i}, v{K+i}' for i in range(n)]
        if s + 2 == 8: move(vLW1)
        if s == 8: move(vLW2)
        if s == 0: a('s_waitcnt lgkmcnt(0)')
        weave(m1(s + 1), cv + ex)
        hook(('preT1', s))
        pr(s, 0)
        if s + 2 < N: l_w1reads(s + 2)
        hook(('T1', s))
        pr(s, 1)
        emit(pk_d(K, n))
        weave(m2(s - 1), rc)
        hook(('preT2', s))
        pr(s, 0)
        w2reads(s)
        hook(('T2', s))

def finish():
    if STAMP:
        stamp(14)
        a('s_waitcnt vmcnt(0)')
        stamp(15)
        a('s_waitcnt lgkmcnt(0)')
        if opt('dbg'):
            n = nlab[0]; nlab[0] += 1
            a(f's_cmp_lg_u32 s2, {opt("dbg")}\ns_cbranch_scc1 L_nd{n}\ns_cmp_lg_u32 s{sWI}, 0\ns_cbranch_scc1 L_nd{n}')
            a(f's_lshl_b32 s{sT0}, s{sWV}, 3\nv_mov_b32 v{T[1]}, s{sT0}\ns_mov_b64 exec, 1')
            for k, i in enumerate((1, 2, 3, 4, 8, 10, 13, 15)):
                a(f's_sub_u32 s{sT0}, s{sST+2*i}, s{sST}\nv_mov_b32 v{T[0]}, s{sT0}')
                a(f'buffer_store_dword v{T[0]}, v{T[1]}, {srd(sWS)}, 0 offen offset:{4*k}')
            a.label(f'L_nd{n}')
            a('s_endpgm')
            return
        a(f'''
        s_lshl_b32 s{sT0}, s2, 3
        s_add_u32 s{sT0}, s{sT0}, s{sWV}
        s_lshl_b32 s{sT0}, s{sT0}, 6
        v_mov_b32 v{T[1]}, s{sT0}
        s_mov_b64 exec, 1
        ''')
        for i in range(NST):
            a(f'v_mov_b32 v{T[0]}, s{sST+2*i}')
            a(f'buffer_store_dword v{T[0]}, v{T[1]}, {srd(sWS)}, 0 offen offset:{4*i}')
    a('s_endpgm')

def tab_reads(gi, em):
    A = vAFR + 20 * gi; o = 64 * gi
    for d in range(3):
        em(f'ds_read_b64_tr_b16 {vr(A+4*d,2)}, v{vTF0} offset:{o + 2*d*TP}')
        em(f'ds_read_b64_tr_b16 {vr(A+4*d+2,2)}, v{vTF1} offset:{o + 2*d*TP}')
    for par in range(2):
        for pp in range(2):
            em(f'ds_read_b64_tr_b16 {vr(A+12+4*par+2*pp,2)}, v{vTE} offset:{o + (pp - 2*par + 2)*TP}')
RING = 6
class Conv:
    def __init__(self, k0): self.n = 0; self.slot = 0; self.k0 = k0
    def acc(self, gi, k): return vACC + 16 * gi + 4 * (k - self.k0)
    def ds(self, t): a(t); self.n += 1; return self.n
    def wait(self, seq): a(f's_waitcnt lgkmcnt({min(15, self.n - seq)})')
    def reads(self, it):
        B = it['B']; go = 64 * it['gi']; idx = it['idx']; kind = it['kind']
        if kind == 'F':
            r0, r1 = 2 * idx, min(2 * idx + 1, 16)
            return [f'ds_read_b128 {vr(B,4)}, v{vAF} offset:{r0*XROW+go}', f'ds_read_b128 {vr(B+4,4)}, v{vAF} offset:{r1*XROW+go}']
        if kind == 'E':
            return [f'ds_read_b128 {vr(B,4)}, v{vAE} offset:{2*idx*XROW+go}', f'ds_read_b128 {vr(B+4,4)}, v{vAE} offset:{(2*idx+4)*XROW+go}']
        return [f'ds_read_b128 {vr(B,4)}, v{vAE} offset:{12*XROW+go}', f'ds_read_b128 {vr(B+4,4)}, v{vAE16} offset:{16*XROW+go}']
    def cvt(self, lst):
        for gi, k in lst:
            A = self.acc(gi, k)
            a(f'v_cvt_pk_bf16_f32 v{A}, v{A}, v{A+1}\nv_cvt_pk_bf16_f32 v{A+1}, v{A+2}, v{A+3}')
    def write(self, lst):
        for gi, k in lst:
            A = self.acc(gi, k)
            if k == 1: self.ds(f'ds_write_b64 v{vAO1}, {vr(A,2)} offset:{64*gi}')
            else: self.ds(f'ds_write_b64 v{vAO}, {vr(A,2)} offset:{(0 if k in (0, 6) else 2*k-2)*XROW+64*gi}')
    def run(self, items, stop_at=None):
        D = RING - 1
        nxt = 0
        while nxt < len(items) and 'seq' in items[nxt]: nxt += 1
        def start(j):
            items[j]['B'] = vB + 8 * (self.slot % RING); self.slot += 1
            return self.reads(items[j])
        while nxt < min(D, len(items)):
            for t in start(nxt): items[nxt]['seq'] = self.ds(t)
            nxt += 1
        end = len(items) if stop_at is None else stop_at
        for i in range(end):
            it = items[i]
            self.wait(it['seq'])
            pend = start(nxt) if nxt < len(items) else []
            A = vAFR + 20 * it['gi']
            had = bool(pend)
            for k in it['outs']:
                fr = (it['idx'] - k) if it['kind'] == 'F' else 3 + (k - it['idx'])
                a(f'v_smfmac_f32_16x16x64_bf16 {vr(self.acc(it["gi"], k),4)}, {vr(A+4*fr,4)}, {vr(it["B"],8)}, v{vIDX}')
                if pend: items[nxt]['seq'] = self.ds(pend.pop(0))
            for t in pend: items[nxt]['seq'] = self.ds(t)
            if had: nxt += 1
            if it.get('pub'):
                self.cvt(it['pub'])
                if not it.get('nowrite'): self.write(it['pub'])
            if it.get('post'): it['post']()
        return items[end:]
def stage(frags): return [dict(gi=gi, kind=k, idx=i, outs=list(o)) for gi in range(3) for (k, i, o) in frags]
def add_pub(items, base, nfr, pairs, nowrite=False):
    for gi in range(3):
        j = min(base + nfr * (gi + 1), len(items) - 1)
        items[j].setdefault('pub', []).extend((gi, k) for k in pairs)
        items[j]['nowrite'] = nowrite

isF = 's_cmp_lt_u32' if FOLD else 's_cmp_ge_u32'
a(f'''
s_load_dwordx4 s[4:7], s[0:1], 0
s_load_dwordx4 s[8:11], s[0:1], 16
s_load_dwordx4 s[12:15], s[0:1], 32
s_getpc_b64 s[100:101]
L_pc:
''')
if STAMP: a(f's_load_dwordx2 s[{sWS}:{sWS+1}], s[0:1], {48 if opt("dbg") else 56}')
stamp(0)
a(f'''
s_cmp_ge_u32 s2, 256
s_cbranch_scc1 L_end
v_lshrrev_b32 v{T[0]}, 6, v0
v_and_b32 v{vLN}, 63, v0
''')
PFM = opt('pf', 'f')
if PFM == 'first':
    a(f'''
    s_bfe_u32 s{sT3}, s2, 0x20003
    s_mul_i32 s{sT3}, s{sT3}, {80*128}
    v_mul_u32_u24 v{T[1]}, 10, v{T[0]}
    v_add_u32 v{T[1]}, v{T[1]}, v{vLN}
    v_lshl_add_u32 v{T[1]}, v{T[1]}, 7, s{sT3}
    v_min_u32 v{T[1]}, L_end-L_pc, v{T[1]}
    s_mov_b64 exec, 0x3ff
    global_load_dword v{vPF}, v{T[1]}, s[100:101]
    s_mov_b64 exec, -1
    ''')
a(f'''
s_lshr_b32 s{sT1}, s2, 3
v_readfirstlane_b32 s{sWV}, v{T[0]}
s_and_b32 s{sT2}, s2, 1
s_add_u32 s{sT2}, s{sT2}, s{sT1}
s_cmp_ge_u32 s{sT2}, 32
s_cbranch_scc1 L_end
s_and_b32 s{sT0}, s2, 3
v_mul_u32_u24 v{T[0]}, 43, v{vLN}
s_mul_i32 s{sT0}, s{sT0}, 63
s_add_u32 s{sT0}, s{sT0}, 1
v_lshrrev_b32 v{T[0]}, 9, v{T[0]}
s_lshr_b32 s{sT0}, s{sT0}, 1
s_add_u32 s{sT0}, s{sT0}, s{sT1}
v_mul_u32_u24 v{T[1]}, 12, v{T[0]}
s_mul_i32 s{sT1}, s{sT0}, 9363
s_lshr_b32 s{sT1}, s{sT1}, 16
v_sub_u32 v{T[1]}, v{vLN}, v{T[1]}
s_mul_i32 s{sT2}, s{sT1}, 7
s_sub_u32 s{sT0}, s{sT0}, s{sT2}
s_bfe_u32 s{sT2}, s2, 0x10002
s_mul_i32 s{sT2}, s{sT2}, 7
s_add_u32 s{sT0}, s{sT0}, s{sT2}
s_lshl_b32 s{sX0}, s{sT0}, 4
s_mul_i32 s{sY0}, s{sT1}, {112*7282}
s_add_u32 s{sH13}, s{sY0}, {112*7282}
s_lshr_b32 s{sY0}, s{sY0}, 16
s_lshr_b32 s{sH13}, s{sH13}, 16
s_sub_u32 s{sH13}, s{sH13}, s{sY0}
s_and_b32 s{sWI}, s{sWV}, 3
''')
if PFM == 'h':
    a(f'''
    s_cmp_eq_u32 s{sH13}, 13
    s_cbranch_scc1 L_nopf
    s_bfe_u32 s{sT3}, s2, 0x20003
    s_lshl_b32 s{sT3}, s{sT3}, 3
    s_add_u32 s{sT3}, s{sT3}, s{sWV}
    s_mul_i32 s{sT3}, s{sT3}, {10*128}
    v_lshl_add_u32 v{T[2]}, v{vLN}, 7, s{sT3}
    v_min_u32 v{T[2]}, L_end-L_pc, v{T[2]}
    s_mov_b64 exec, 0x3ff
    global_load_dword v{vPF}, v{T[2]}, s[100:101]
    s_mov_b64 exec, -1
    L_nopf:
    ''')
a(f'''
v_mov_b32 v{T[4]}, {MARK}
v_lshlrev_b32 v{vL16}, 4, v{vLN}
{isF} s{sWV}, 4
s_cbranch_scc1 L_F0
; ---- L: x rows
s_setprio {opt('lprio0', 0)}
s_mul_i32 s{sT1}, s{sWI}, 5
v_add_u32 v{T[0]}, s{sT1}, v{T[0]}
v_bfe_u32 v{T[2]}, v{T[0]}, 2, 2
v_xor_b32 v{T[1]}, v{T[1]}, v{T[2]}
s_sub_u32 s{sT1}, s{sX0}, 2
v_add_u32 v{T[0]}, s{sT1}, v{T[0]}
v_mul_u32_u24 v{T[2]}, 192, v{T[0]}
v_cmp_gt_u32 vcc, 224, v{T[0]}
v_lshl_add_u32 v{T[2]}, v{T[1]}, 4, v{T[2]}
s_mul_i32 s{sXM}, s{sWI}, 960
s_add_u32 s{sXM}, s{sXM}, {XB}
v_cndmask_b32 v{vXO}, v{T[4]}, v{T[2]}, vcc
s_sub_u32 s{sT1}, s{sY0}, 2
s_mul_i32 s{sT1}, s{sT1}, 43008
v_add_u32 v{vXO}, s{sT1}, v{vXO}
s_mov_b32 s{sX+2}, {XBYTES}
s_mov_b32 s{sX+3}, 0x00020000
s_mov_b32 exec_hi, 0x0fffffff
s_waitcnt lgkmcnt(0)
s_mov_b64 s[{sX}:{sX+1}], s[4:5]
''')
xl = [0]
def xrows(n):
    for _ in range(n):
        t = xl[0]; xl[0] += 1
        a(f's_add_u32 m0, s{sXM}, {t*XROW}')
        if t: a(f'v_add_u32 v{vXO}, 43008, v{vXO}')
        a(f'buffer_load_dwordx4 v{vXO}, {srd(sX)}, 0 offen lds')
NX0 = int(opt('nx0', 12))
xrows(NX0)
stamp(1)
a(f'''
s_setprio 0
s_mov_b32 exec_hi, -1
s_mul_i32 s{sIMG}, s{sWI}, 3072
s_add_u32 s{sIMG}, s{sIMG}, {S_IL}
s_branch L_setup
L_F0:
; ---- F: conv weight tables, rows w and w+4 of both
s_setprio {opt("fprio", 2)}
s_mul_i32 s{sT3}, s{sWI}, 960
v_add_u32 v{T[2]}, s{sT3}, v{vL16}
s_mul_i32 s{sT3}, s{sWI}, 576
s_sub_u32 s{sT3}, s{sT3}, {2*576 + 192}
v_mov_b32 v{T[3]}, {MARK}
s_mov_b32 exec_lo, 0xfffff000
s_mov_b32 exec_hi, 0xffff
v_add_u32 v{T[3]}, s{sT3}, v{vL16}
v_add_u32 v{T[4]}, {4*576}, v{T[3]}
s_mov_b32 exec_lo, -1
s_mov_b32 exec_hi, 0x0fffffff
v_add_u32 v{T[1]}, {4*960}, v{T[2]}
s_mul_i32 s{sT3}, s{sWI}, {TP}
s_mov_b32 s{sDS+2}, 4800
s_mov_b32 s{sDS+3}, 0x00020000
s_mov_b32 s{sDL+2}, 1728
s_mov_b32 s{sDL+3}, 0x00020000
s_add_u32 m0, s{sT3}, {TB + 8*TP}
s_waitcnt lgkmcnt(0)
s_mov_b64 s[{sDS}:{sDS+1}], s[8:9]
s_mov_b64 s[{sDL}:{sDL+1}], s[6:7]
buffer_load_dwordx4 v{T[2]}, {srd(sDS)}, 0 offen lds
s_add_u32 m0, s{sT3}, {TB}
s_mul_i32 s{sIMG}, s{sWI}, 6144
buffer_load_dwordx4 v{T[3]}, {srd(sDL)}, 0 offen lds
s_add_u32 m0, s{sT3}, {TB + 12*TP}
s_nop 0
buffer_load_dwordx4 v{T[1]}, {srd(sDS)}, 0 offen lds
s_add_u32 m0, s{sT3}, {TB + 4*TP}
s_nop 0
buffer_load_dwordx4 v{T[4]}, {srd(sDL)}, 0 offen lds
s_mov_b32 exec_hi, -1
''')
WPF = opt('wpf', '0') == '1'
if PFM in ('f', 'g'):
    if PFM == 'g': a(f's_cmp_eq_u32 s{sH13}, 13\ns_cselect_b32 s99, 1, 0xfffff')
    a(f'''
    s_bfe_u32 s{sT3}, s2, 0x20003
    s_lshl_b32 s{sT3}, s{sT3}, 2
    s_add_u32 s{sT3}, s{sT3}, s{sWI}
    s_mul_i32 s{sT3}, s{sT3}, {20*128}
    v_lshl_add_u32 v{T[1]}, v{vLN}, 7, s{sT3}
    v_min_u32 v{T[1]}, L_end-L_pc, v{T[1]}
    {'s_mov_b64 exec, 0xfffff' if PFM == 'f' else f's_cmp_eq_u32 s{sH13}, 13'+chr(10)+f's_cselect_b32 s{sT3}, 0, -1'+chr(10)+f'v_and_b32 v{T[1]}, s{sT3}, v{T[1]}'+chr(10)+'s_mov_b32 exec_lo, s99'+chr(10)+'s_mov_b32 exec_hi, 0'}
    global_load_dword v{vPF}, v{T[1]}, s[100:101]
    s_mov_b64 exec, -1
    ''')
if WPF:
    a(f'''
    s_and_b32 s{sT0}, s{sWI}, 1
    s_cselect_b64 s[{sT1}:{sT2}], s[12:13], s[10:11]
    s_lshr_b32 s{sT0}, s2, 3
    s_lshl_b32 s{sT0}, s{sT0}, 1
    s_lshr_b32 s{sT3}, s{sWI}, 1
    s_add_u32 s{sT0}, s{sT0}, s{sT3}
    s_mul_i32 s{sT0}, s{sT0}, {10*128}
    v_lshl_add_u32 v{T[0]}, v{vLN}, 7, s{sT0}
    v_min_u32 v{T[0]}, {73728-128}, v{T[0]}
    s_mov_b64 exec, 0x3ff
    global_load_dword v{vPF-1}, v{T[0]}, s[{sT1}:{sT2}]
    s_mov_b64 exec, -1
    ''')
a.label('L_setup')
a(f'''
v_and_b32 v{T[0]}, 3, v{vLN}
v_mul_u32_u24 v{vIDX}, 0x5555, v{T[0]}
v_lshlrev_b32 v{vFA}, 2, v{T[0]}
v_add_u32 v{vFA}, {FL}, v{vFA}
s_lshl_b32 s{sT0}, s{sWV}, 2
s_add_u32 s{sT0}, s{sT0}, {FL}
v_mov_b32 v{vFW}, s{sT0}
v_mov_b32 v{vFP}, 0
ds_write_b32 v{vFW}, v{vFP}
s_lshl_b32 s{sT2}, s{sWI}, 4
s_add_u32 s{sT2}, s{sT2}, {TB}
v_bfe_u32 v{T[1]}, v{vLN}, 1, 1
v_lshl_add_u32 v{T[4]}, v{T[1]}, 3, s{sT2}
v_and_b32 v{T[0]}, 1, v{vLN}
v_lshrrev_b32 v{T[1]}, 5, v{vLN}
v_mul_u32_u24 v{vTE}, {TP}, v{T[1]}
v_sub_u32 v{T[1]}, v{T[1]}, v{T[0]}
v_bfe_u32 v{T[2]}, v{vLN}, 2, 1
v_mul_u32_u24 v{T[2]}, 7, v{T[2]}
v_sub_u32 v{T[1]}, v{T[1]}, v{T[2]}
v_add_u32 v{T[1]}, 8, v{T[1]}
v_mul_u32_u24 v{T[1]}, {TP}, v{T[1]}
v_bfe_u32 v{T[2]}, v{vLN}, 4, 1
v_mul_u32_u24 v{T[2]}, 192, v{T[2]}
v_add3_u32 v{T[3]}, v{T[1]}, v{T[2]}, v{T[4]}
v_lshrrev_b32 v{T[1]}, 4, v{vLN}
v_lshlrev_b32 v{T[2]}, 1, v{T[1]}
v_sub_u32 v{T[2]}, v{T[2]}, v{T[0]}
v_add_u32 v{T[2]}, 6, v{T[2]}
v_mul_u32_u24 v{T[2]}, {TP}, v{T[2]}
v_add_u32 v{vTF0}, s{sT2}, v{vTE}
v_add_u32 v{vTF1}, {TP}, v{vTF0}
v_mov_b32 v{vTE}, s{sT2}
s_mov_b32 exec_lo, 0xcc33cc33
s_mov_b32 exec_hi, 0xcc33cc33
v_mov_b32 v{vTF0}, v{T[3]}
v_add_u32 v{vTF1}, 384, v{T[3]}
s_mov_b32 exec_lo, 0x0c030c03
s_mov_b32 exec_hi, 0x0c030c03
v_add_u32 v{T[2]}, 768, v{T[2]}
v_add_u32 v{vTE}, v{T[2]}, v{T[4]}
s_mov_b64 exec, -1
v_and_b32 v{T[0]}, 15, v{vLN}
v_bfe_u32 v{T[2]}, v{vLN}, 4, 1
v_lshrrev_b32 v{T[3]}, 5, v{vLN}
v_lshl_add_u32 v{T[2]}, v{T[2]}, 1, v{T[3]}
v_add_u32 v{T[2]}, v{T[0]}, v{T[2]}
v_bfe_u32 v{T[3]}, v{T[2]}, 2, 2
v_xor_b32 v{T[3]}, s{sWI}, v{T[3]}
v_mul_u32_u24 v{T[2]}, 192, v{T[2]}
v_lshl_add_u32 v{vAF}, v{T[3]}, 4, v{T[2]}
v_add_u32 v{vAF}, {XB}, v{vAF}
v_add_u32 v{T[2]}, 4, v{T[0]}
v_bfe_u32 v{T[3]}, v{T[2]}, 2, 2
v_xor_b32 v{T[3]}, s{sWI}, v{T[3]}
v_mul_u32_u24 v{T[2]}, 192, v{T[2]}
v_lshl_add_u32 v{vAE}, v{T[3]}, 4, v{T[2]}
v_add_u32 v{vAE16}, {XB}, v{vAE}
v_mul_u32_u24 v{T[2]}, {XROW}, v{T[1]}
v_add_u32 v{vAE}, v{vAE16}, v{T[2]}
v_bfe_u32 v{T[3]}, v{T[0]}, 2, 2
v_xor_b32 v{T[4]}, s{sWI}, v{T[3]}
v_mul_u32_u24 v{T[2]}, 192, v{T[0]}
v_lshl_add_u32 v{T[2]}, v{T[4]}, 4, v{T[2]}
v_bfe_u32 v{T[1]}, v{vLN}, 4, 1
v_mul_u32_u24 v{T[1]}, {XROW}, v{T[1]}
v_lshrrev_b32 v{T[3]}, 5, v{vLN}
v_bfe_u32 v{T[4]}, v{vLN}, 1, 1
v_xor_b32 v{T[3]}, v{T[3]}, v{T[4]}
v_lshl_add_u32 v{T[1]}, v{T[3]}, 3, v{T[1]}
v_add_u32 v{T[2]}, v{T[2]}, v{T[1]}
v_add_u32 v{vAO}, {XB}, v{T[2]}
v_add_u32 v{vAO1}, {EXTRA}, v{T[2]}
''')
for i in range(24):
    a(f'v_mov_b64 {vr(vACC+2*i,2)}, 0')
mksrd(sOUT, 14, XBYTES)
if opt('safe'): a('s_mov_b32 s98, 20000')
a(f'''
s_mov_b32 s{sCA}, {fbits(ga):#x}
s_mov_b32 s{sCA+1}, {fbits(ga):#x}
s_mov_b32 s{sCC}, {fbits(gc):#x}
s_mov_b32 s{sCC+1}, {fbits(gc):#x}
s_add_u32 s{sT0}, s{sWI}, s{sY0}
s_mul_i32 s{sT0}, s{sT0}, 224
s_add_u32 s{sT0}, s{sT0}, s{sX0}
s_mul_i32 s{sO0}, s{sT0}, 192
''')
if STAMP:
    a(f's_mov_b32 s{sWS+2}, {256 if opt("dbg") else 0x10000000}\ns_mov_b32 s{sWS+3}, 0x00020000')
    for i in (6, 11, 12, 13, 14): a(f's_mov_b32 s{sST+2*i}, 0')
for j in range(3):
    a(f'''
    v_add_u32 v{T[0]}, {64*j}, v{vLN}
    v_mul_u32_u24 v{T[2]}, 171, v{T[0]}
    v_bfe_u32 v{T[2]}, v{T[2]}, 12, 2
    v_xor_b32 v{T[0]}, v{T[0]}, v{T[2]}
    v_lshl_add_u32 v{vSR[j]}, v{T[0]}, 4, s{sIMG}
    ''')
a(f'''
{isF} s{sWV}, 4
s_cbranch_scc1 L_F
''')
pstamp(14)
a(f's_waitcnt vmcnt({NX0 - 4}) lgkmcnt(0)')
pstamp(9)
bar(2)
a('s_branch L_L')

a.label('L_F')
OPF = opt('opf', '0') == '1'
if OPF:
    a(f'''
    s_mov_b64 exec, 1
    buffer_load_dword v{vPF-2}, v{vL16}, {srd(sOUT)}, s{sO0} offen
    s_mov_b64 exec, -1
    ''')
vFR = [48, 49, 50, 51]
a(f'''
s_add_u32 s{sO1}, s{sO0}, {4*43008}
v_lshrrev_b32 v{T[4]}, 5, v{vLN}
v_bfe_u32 v{T[0]}, v{vLN}, 2, 2
v_bfe_u32 v{T[1]}, v{vLN}, 4, 1
v_and_b32 v{T[2]}, 3, v{vLN}
v_lshl_add_u32 v{T[3]}, v{T[4]}, 4, v{T[0]}
v_lshlrev_b32 v{T[3]}, 7, v{T[3]}
v_lshl_add_u32 v{T[3]}, v{T[1]}, 5, v{T[3]}
v_lshl_add_u32 v{T[3]}, v{T[2]}, 3, v{T[3]}
v_bfe_u32 v{T[2]}, v{vLN}, 3, 1
v_lshl_add_u32 v{vAW1[0]}, v{T[2]}, 6, v{T[3]}
v_xor_b32 v{vAW1[1]}, 64, v{vAW1[0]}
v_xor_b32 v{vAW1[2]}, 32, v{vAW1[0]}
v_xor_b32 v{vAW1[3]}, 0x60, v{vAW1[0]}
v_lshl_add_u32 v{T[3]}, v{T[4]}, 2, v{T[0]}
v_mul_u32_u24 v{T[3]}, 192, v{T[3]}
v_lshl_add_u32 v{T[3]}, v{T[1]}, 4, v{T[3]}
v_and_b32 v{T[2]}, 1, v{vLN}
v_xor_b32 v{T[2]}, v{T[2]}, v{T[4]}
v_lshl_add_u32 v{T[3]}, v{T[2]}, 5, v{T[3]}
v_bfe_u32 v{T[2]}, v{vLN}, 1, 1
v_lshl_add_u32 v{T[3]}, v{T[2]}, 3, v{T[3]}
v_add_u32 v{vAW2}, 12288, v{T[3]}
s_mul_i32 s{sT1}, s{sWI}, {XROW}
s_cmp_ge_u32 s{sWI}, 2
s_cselect_b32 s{sT2}, {EXTRA - 2*XROW - XB}, 0
s_add_u32 s{sT1}, s{sT1}, {XB}
s_add_u32 s{sT2}, s{sT2}, s{sT1}
s_add_u32 s{sT1}, s{sT1}, {2*XROW}
v_lshlrev_b32 v{T[4]}, 1, v{T[4]}
v_xor_b32 v{T[0]}, v{T[4]}, v{T[0]}
v_and_b32 v{T[3]}, 15, v{vLN}
v_mul_u32_u24 v{T[3]}, 192, v{T[3]}
v_lshl_add_u32 v{T[0]}, v{T[0]}, 4, v{T[3]}
v_lshl_add_u32 v{T[0]}, v{T[2]}, 3, v{T[0]}
v_add_u32 v{vFR[0]}, s{sT2}, v{T[0]}
s_mov_b32 exec_lo, 0xffff0000
s_mov_b32 exec_hi, 0xffff0000
v_add_u32 v{vFR[0]}, s{sT1}, v{T[0]}
s_mov_b64 exec, -1
v_xor_b32 v{vFR[1]}, 8, v{vFR[0]}
v_xor_b32 v{vFR[2]}, 16, v{vFR[0]}
v_xor_b32 v{vFR[3]}, 24, v{vFR[0]}
v_add_u32 v{T[0]}, 2, v{vLN}
v_bfe_u32 v{T[0]}, v{T[0]}, 2, 2
v_xor_b32 v{T[0]}, v{T[4]}, v{T[0]}
v_lshl_add_u32 v{T[0]}, v{T[0]}, 4, v{T[3]}
v_mul_u32_u24 v{T[2]}, {4*XROW}, v{T[1]}
s_add_u32 s{sT1}, s{sT1}, 384
v_add3_u32 v{vAR[0]}, v{T[0]}, v{T[2]}, s{sT1}
v_xor_b32 v{vAR[1]}, 16, v{vAR[0]}
v_bfe_u32 v{T[0]}, v{vLN}, 1, 2
v_xor_b32 v{T[0]}, v{T[4]}, v{T[0]}
v_lshl_add_u32 v{T[0]}, v{T[0]}, 4, v{T[3]}
v_mul_u32_u24 v{T[2]}, 3072, v{T[1]}
v_add3_u32 v{vSW[0]}, v{T[0]}, v{T[2]}, s{sIMG}
v_xor_b32 v{vSW[1]}, 16, v{vSW[0]}
v_and_b32 v{T[1]}, 1, v{vLN}
v_lshlrev_b32 v{T[1]}, 4, v{T[1]}
v_mov_b32 v{T[2]}, 0x3f80
v_lshlrev_b32 v{T[1]}, v{T[1]}, v{T[2]}
''')
for i in range(4): a(f'v_mov_b64 {vr(vID+2*i,2)}, 0')
for i in range(8):
    pos = 16 * (i >> 2) + 8 * ((i >> 1) & 1) + 2 * (i & 1)
    setexec(3 << pos, 3 << (pos + 4))
    a(f'v_mov_b32 v{vID+i}, v{T[1]}')
a('s_mov_b64 exec, -1')
stamp(1)
a(f's_waitcnt vmcnt({(1 if WPF else 0) + (1 if PFM in "fg" else 0) + (1 if OPF else 0)}) lgkmcnt(0)')
pstamp(9)
bar(2)
cv = Conv(0)
for gi in range(3): tab_reads(gi, cv.ds)
def res_half(s):
    m = 0xffff0000 if s else 0xffff
    setexec(m, m)
    for ks in range(6):
        cv.ds(f'ds_read_b128 {vr(vRES+4*ks,4)}, v{vAR[ks&1]} offset:{64*(ks>>1)}')
    a('s_mov_b64 exec, -1')
def run_stage(left, frags, pairs, keep=0, mid=None):
    its = left + stage(frags)
    if pairs: add_pub(its, len(left), len(frags), pairs)
    if mid: its[mid[0]]['post'] = mid[1]
    return cv.run(its, len(its) - keep)
left = run_stage([], [('F',0,[0]), ('F',1,[0,1])], [], int(opt('keep0', 2)))
pstamp(10)
bar(3)
left = run_stage(left, [('F',2,[0,1,2]), ('F',3,[1,2,3]), ('E',0,[0,1])], [0, 1], 0, (-4, lambda: res_half(0)))
a('s_waitcnt lgkmcnt(0)')
pstamp(11)
bar(4)
a(f's_setprio {opt("fprio2", 3)}')
left = run_stage(left, [('F',4,[2,3]), ('F',5,[3]), ('E',2,[2,3])], [2, 3], 0, (-4, lambda: res_half(1)))
signal(1)
stamp(5)
poll(GF, 1)
RA = 168
for ks in range(6):
    a(f'ds_read_b64 {vr(RA+4*ks,2)}, v{vFR[2*(ks&1)]} offset:{64*(ks>>1)}')
    a(f'ds_read_b64 {vr(RA+4*ks+2,2)}, v{vFR[2*(ks&1)+1]} offset:{64*(ks>>1)}')
signal(2)
peek(GL)
a(f's_setprio {opt("fprio3", 1)}')
a('s_waitcnt lgkmcnt(0)')
stamp(6)
a('s_waitcnt vmcnt(0)')
check(GL, 1)
f_w1reads0()
ln(RA, 72, [vL + i for i in range(24)], False)
stamp(8)
XH = {
  ('T1', 1): [lambda: stamp(9)],
  ('T2', 1): [lambda: peek(GL)],
  ('preT1', 2): [lambda: check(GL, 4)],
  ('preT1', 4): [lambda: signal(3)],
  ('T2', 5): [lambda: peek(GL)],
  ('preT1', 6): [lambda: check(GL, 5), lambda: stamp(10)],
  ('preT1', 8): [lambda: stamp(11)],
  ('T2', 8): [lambda: peek(GF)],
  ('preT1', 9): [lambda: check(GF, 3)],
  ('T2', 9): [lambda: peek(GL)],
  ('preT1', 10): [lambda: check(GL, 6), lambda: stamp(12)],
}
FP = opt('fp', 'n')
def fprio(c):
    if FP == 'n': return (0, 0) if c == 0 else None
    if FP == 's': return (1, 1) if c == 0 else None
    return (0, int(FP))
mlp32(XH, fprio)
stamp(13)
P = vY[0]; Q = vK[0]
for mt in range(3):
    for i in range(8):
        a(f'v_cvt_pk_bf16_f32 v{P+8*mt+i}, v{vO+16*mt+2*i}, v{vO+16*mt+2*i+1}')
    a(f'ds_write_b128 v{vSW[0]}, {vr(P+8*mt,4)} offset:{64*mt}')
    a(f'ds_write_b128 v{vSW[1]}, {vr(P+8*mt+4,4)} offset:{64*mt}')
for s in range(2):
    for j in range(3):
        a(f'ds_read_b128 {vr(Q+4*(3*s+j),4)}, v{vSR[j]} offset:{3072*s}')
for s in range(2):
    for j in range(3):
        a(f's_waitcnt lgkmcnt({5-(3*s+j)})')
        a(f'buffer_store_dwordx4 {vr(Q+4*(3*s+j),4)}, v{vL16}, {srd(sOUT)}, s{sO1 if s else sO0} offen offset:{1024*j}{STPOL}')
finish()
emit_slow()

a.label('L_L')
cv = Conv(4)
if NX0 < 17:
    a('s_mov_b32 exec_hi, 0x0fffffff')
    xrows(17 - NX0)
    a('s_mov_b32 exec_hi, -1')
for gi in range(3): tab_reads(gi, cv.ds)
mksrd(sW1, 10, 73728); mksrd(sW2, 12, 73728)
a(f'''
v_lshrrev_b32 v{T[0]}, 3, v{vLN}
v_mul_u32_u24 v{T[0]}, 768, v{T[0]}
v_bfe_u32 v{T[1]}, v{vLN}, 4, 1
v_lshlrev_b32 v{T[1]}, 2, v{T[1]}
v_and_b32 v{T[2]}, 7, v{vLN}
v_xor_b32 v{T[1]}, v{T[1]}, v{T[2]}
v_lshl_add_u32 v{T[0]}, v{T[1]}, 4, v{T[0]}
s_and_b32 s{sT1}, s{sWI}, 1
s_lshl_b32 s{sT0}, s{sT1}, 5
v_xor_b32 v{vDW1[0]}, s{sT0}, v{T[0]}
v_xor_b32 v{vDW1[1]}, 32, v{vDW1[0]}
v_mov_b32 v{vDW2[0]}, v{vL16}
v_mov_b32 v{vDW2[1]}, v{vL16}
v_mov_b32 v{vDW2[2]}, v{vL16}
s_mov_b32 exec_lo, 0xffff0000
v_xor_b32 v{vDW2[2]}, 32, v{vL16}
s_mov_b32 exec_lo, 0
s_mov_b32 exec_hi, 0xffff0000
v_xor_b32 v{vDW2[0]}, 32, v{vL16}
s_mov_b32 exec_lo, -1
s_mov_b32 exec_hi, 0
v_xor_b32 v{vDW2[1]}, 32, v{vL16}
s_mov_b64 exec, -1
s_mul_i32 s{sWA}, s{sWI}, {3*6144}
s_mul_i32 s{sWBm}, s{sWI}, 3072
''')
pstamp(10)
a('s_waitcnt vmcnt(9)')
pstamp(11)
bar(3)
wdma(0)
W1P = int(opt('w1p', 1))
vA0, vA2 = 48, 50
RR = 60
a(f'''
s_add_u32 s{sO0}, s{sO0}, {8*43008}
v_lshrrev_b32 v{T[4]}, 4, v{vLN}
v_bfe_u32 v{T[0]}, v{vLN}, 2, 2
v_and_b32 v{T[2]}, 3, v{vLN}
v_bfe_u32 v{T[1]}, v{vLN}, 4, 1
v_lshlrev_b32 v{T[2]}, 3, v{T[2]}
v_lshl_add_u32 v{T[2]}, v{T[1]}, 5, v{T[2]}
v_lshl_add_u32 v{T[3]}, v{T[4]}, 3, v{T[0]}
v_lshl_add_u32 v{T[3]}, v{T[3]}, 7, v{T[2]}
v_bfe_u32 v{T[1]}, v{vLN}, 3, 1
v_xor_b32 v{T[1]}, s{sT1}, v{T[1]}
v_lshl_add_u32 v{T[3]}, v{T[1]}, 6, v{T[3]}
s_lshr_b32 s{sT2}, s{sWI}, 1
s_mul_i32 s{sT2}, s{sT2}, {PS}
s_sub_u32 s{sT3}, {PS}, s{sT2}
v_add_u32 v{vLW1}, s{sT2}, v{T[3]}
v_add_u32 v{vLW1+4}, s{sT3}, v{T[3]}
v_xor_b32 v{vLW1+1}, 32, v{vLW1}
v_xor_b32 v{vLW1+2}, 64, v{vLW1}
v_xor_b32 v{vLW1+3}, 0x60, v{vLW1}
v_xor_b32 v{vLW1+5}, 32, v{vLW1+4}
v_xor_b32 v{vLW1+6}, 64, v{vLW1+4}
v_xor_b32 v{vLW1+7}, 0x60, v{vLW1+4}
v_lshl_add_u32 v{T[3]}, v{T[4]}, 2, v{T[0]}
v_mul_u32_u24 v{T[3]}, 192, v{T[3]}
v_add_u32 v{T[3]}, v{T[3]}, v{T[2]}
s_mul_i32 s{sT1}, s{sT1}, 6144
s_add_u32 s{sT2}, s{sT2}, 12288
s_add_u32 s{sT3}, s{sT3}, 12288
s_add_u32 s{sT0}, s{sT2}, s{sT1}
v_add_u32 v{vLW2}, s{sT0}, v{T[3]}
s_add_u32 s{sT0}, s{sT3}, s{sT1}
v_add_u32 v{vLW2+4}, s{sT0}, v{T[3]}
s_sub_u32 s{sT1}, 6144, s{sT1}
s_add_u32 s{sT0}, s{sT2}, s{sT1}
v_add_u32 v{vLW2+2}, s{sT0}, v{T[3]}
s_add_u32 s{sT0}, s{sT3}, s{sT1}
v_add_u32 v{vLW2+6}, s{sT0}, v{T[3]}
v_xor_b32 v{vLW2+1}, 32, v{vLW2}
v_xor_b32 v{vLW2+3}, 32, v{vLW2+2}
v_xor_b32 v{vLW2+5}, 32, v{vLW2+4}
v_xor_b32 v{vLW2+7}, 32, v{vLW2+6}
v_xor_b32 v{T[0]}, v{T[4]}, v{T[0]}
v_and_b32 v{T[3]}, 15, v{vLN}
v_mul_u32_u24 v{T[3]}, 192, v{T[3]}
v_lshl_add_u32 v{T[0]}, v{T[0]}, 4, v{T[3]}
v_add_u32 v{vARL}, {L12}, v{T[0]}
v_bfe_u32 v{T[1]}, v{vLN}, 1, 1
v_lshl_add_u32 v{T[0]}, v{T[1]}, 3, v{T[0]}
v_add_u32 v{vA2}, {XB}, v{T[0]}
v_xor_b32 v{vA2+1}, 8, v{vA2}
s_mul_i32 s{sT0}, s{sWI}, {XROW}
v_add_u32 v{vA0}, s{sT0}, v{vA2}
v_xor_b32 v{vA0+1}, 8, v{vA0}
v_bfe_u32 v{T[1]}, v{vLN}, 4, 1
v_lshl_add_u32 v{T[3]}, v{T[1]}, 3, v{T[3]}
v_lshrrev_b32 v{T[4]}, 5, v{vLN}
v_bfe_u32 v{T[0]}, v{vLN}, 1, 2
v_xor_b32 v{T[0]}, v{T[4]}, v{T[0]}
v_lshl_add_u32 v{T[0]}, v{T[0]}, 4, v{T[3]}
v_add_u32 v{vSW[0]}, s{sIMG}, v{T[0]}
v_xor_b32 v{vSW[1]}, 32, v{vSW[0]}
v_add_u32 v{T[0]}, 2, v{vLN}
v_bfe_u32 v{T[0]}, v{T[0]}, 2, 2
v_xor_b32 v{T[0]}, v{T[4]}, v{T[0]}
v_lshl_add_u32 v{T[0]}, v{T[0]}, 4, v{T[3]}
s_add_u32 s{sT0}, s{sT0}, {XB + 384}
v_add_u32 v{vAR[0]}, s{sT0}, v{T[0]}
v_xor_b32 v{vAR[1]}, 32, v{vAR[0]}
''')
if W1P == 1: wdma(1)
pstamp(12)
a(f's_waitcnt vmcnt({12 if W1P == 1 else 6}) lgkmcnt(0)')
pstamp(13)
bar(4)
a(f's_setprio {opt("lprio", 2)}')
RED, LNW = 1, 3
def raw_reads(R, ad, off=0):
    for ks in range(3):
        a(f'ds_read_b64 {vr(R+4*ks,2)}, v{ad} offset:{off+64*ks}')
        a(f'ds_read_b64 {vr(R+4*ks+2,2)}, v{ad+1} offset:{off+64*ks}')
def row_store(O, soff):
    P = vY[0]; Q = vK[0]
    for i in range(12):
        a(f'v_cvt_pk_bf16_f32 v{P+i}, v{O+2*i}, v{O+2*i+1}')
    for i in range(6):
        a(f'ds_write_b64 v{vSW[i&1]}, {vr(P+2*i,2)} offset:{64*(i>>1)}')
    for j in range(3):
        a(f'ds_read_b128 {vr(Q+4*j,4)}, v{vSR[j]}')
    for j in range(3):
        a(f's_waitcnt lgkmcnt({2-j})')
        a(f'buffer_store_dwordx4 {vr(Q+4*j,4)}, v{vL16}, {srd(sOUT)}, s{soff} offen offset:{1024*j}{STPOL}')
LP = opt('lp', 'k')
def lprio(c):
    if LP == 'n': return (0, 0) if c == 0 else None
    if LP == 's': return (1, 1) if c == 0 else None
    if LP == 'k':
        lo, hi = [int(x) for x in opt('lk', '0,6').split(',')]
        if lo <= c < hi: return (0, 1)
        return (0, 0) if c in (0, hi) else None
    return (0, int(LP))
def l_body(h13):
    global cv
    keep = cv
    cv = copy.copy(keep)
    sfx = 'a' if h13 else 'b'
    if h13:
        frags = [('F',4,[4]), ('F',5,[4,5]), ('F',6,[4,5,6]), ('F',7,[5,6]), ('E',4,[4,5]), ('F',8,[6]), ('L',6,[6])]; pairs = [4, 5, 6]
    else:
        frags = [('F',4,[4]), ('F',5,[4,5]), ('F',6,[4,5]), ('F',7,[5]), ('E',4,[4,5])]; pairs = [4, 5]
    its = stage(frags)
    add_pub(its, 0, len(frags), pairs, True)
    def resr():
        for i in range(6):
            cv.ds(f'ds_read_b64 {vr(RR+2*i,2)}, v{vAR[i&1]} offset:{10*XROW+64*(i>>1)}')
        if h13:
            for i in range(6):
                cv.ds(f'ds_read_b64 {vr(RR+12+2*i,2)}, v{vAR[i&1]} offset:{(14-RED)*XROW+64*(i>>1)}')
    its[-4]['post'] = resr
    def wl():
        a('s_waitcnt vmcnt(0)')
        signal(1, cv.ds)
    its[int(opt('wlpos', 6))]['post'] = wl
    if W1P != 1:
        for j in range(3): its[j]['post'] = lambda j=j: wdma(1, [2*j, 2*j+1])
    cv.run(its)
    poll(GF, 2)
    cv.write([(gi, k) for gi in range(3) for k in pairs])
    signal(2)
    wdma(2, [0, 1, 2])
    for i in range(12):
        a(f'v_lshlrev_b32 v{vO+2*i}, 16, v{RR+i}\nv_and_b32 v{vO+2*i+1}, 0xffff0000, v{RR+i}')
    if h13:
        a(f's_cmp_eq_u32 s{sWI}, {RED}\ns_cbranch_scc1 L_ri{sfx}')
        for i in range(12): a(f'v_mov_b64 {vr(vO+24+2*i,2)}, 0')
        a(f's_branch L_rj{sfx}')
        a.label(f'L_ri{sfx}')
        for i in range(12):
            a(f'v_lshlrev_b32 v{vO+24+2*i}, 16, v{RR+12+i}\nv_and_b32 v{vO+24+2*i+1}, 0xffff0000, v{RR+12+i}')
        a.label(f'L_rj{sfx}')
    stamp(5)
    poll(GL, 2)
    stamp(7)
    RAW = 168
    raw_reads(RAW, vA0, 6 * XROW)
    if h13: raw_reads(RAW + 12, vA2)
    l_w1reads(0)
    wdma(2, [3, 4, 5])
    if h13:
        a(f's_cmp_lg_u32 s{sWI}, {LNW}\ns_cbranch_scc1 L_nl12\ns_waitcnt lgkmcnt(12)')
        ln(RAW + 12, 72, [RAW + 12 + i for i in range(12)], True)
        for ks in range(3):
            a(f'ds_write_b128 v{vARL}, {vr(RAW+12+4*ks,4)} offset:{64*ks}')
        a.label('L_nl12')
    signal(3)
    a('s_waitcnt lgkmcnt(13)')
    ln(RAW, 72, [vL + i for i in range(12)], True)
    stamp(8)
    def l12r():
        for ks in range(3):
            a(f'ds_read_b128 {vr(vL+12+4*ks,4)}, v{vARL} offset:{64*ks}')
    def pub_rem():
        a(f's_cmp_eq_u32 s{sWI}, {RED}\ns_cbranch_scc1 L_np\ns_mul_i32 s{sT0}, s{sWI}, 6144\nv_add_u32 v{T[0]}, s{sT0}, v{vL16}')
        for i in range(6):
            a(f'ds_write_b128 v{T[0]}, {vr(vO+24+4*i,4)} offset:{S_R + 1024*i}')
        a.label('L_np')
        signal(7)
    H = {
      'start3': [lambda: peek(GL)],
      ('preT1', 0): [lambda: check(GL, 3)],
      ('T1', 0): [lambda: wdma(3, [0, 1, 2])],
      ('T2', 0): [lambda: wdma(3, [3, 4, 5])],
      ('T1', 1): [lambda: wdma(4, [0, 1, 2]), lambda: stamp(9)] + ([l12r] if h13 else []),
      ('preT2', 1): [lambda: landed(3, 4)],
      ('T2', 1): [lambda: wdma(4, [3, 4, 5]), lambda: peek(GL)],
      ('preT1', 2): [lambda: check(GL, 4)],
      ('T1', 2): [lambda: wdma(5, [0, 1, 2])],
      ('T2', 2): [lambda: wdma(5, [3, 4, 5])],
      ('preT1', 4): [lambda: landed(0, 6)],
      ('T2', 5): [lambda: peek(GL)],
      ('preT1', 6): [lambda: check(GL, 6), lambda: stamp(10)],
      ('preT1', 8): [lambda: stamp(11)],
      ('preT1', 10): [lambda: stamp(12)],
    }
    if h13:
        H[('T2', 9)] = [lambda: peek(GF)]
        H[('preT1', 10)] = H[('preT1', 10)] + [lambda: check(GF, 3), pub_rem]
    mlp16([3, 5, 8] if h13 else [], H, lprio)
    stamp(13)
    row_store(vO, sO0)
    if h13:
        a(f's_cmp_lg_u32 s{sWI}, {RED}\ns_cbranch_scc1 L_fin{sfx}')
        poll(GL, 7)
        others = [w for w in range(4) if w != RED]
        for n, w in enumerate(others):
            for i in range(6):
                a(f'ds_read_b128 {vr(144+24*n+4*i,4)}, v{vL16} offset:{S_R + 6144*w + 1024*i}')
        for n in range(3):
            a(f's_waitcnt lgkmcnt({12 - 6*n})')
            for i in range(12):
                a(f'v_pk_add_f32 {vr(vO+24+2*i,2)}, {vr(vO+24+2*i,2)}, {vr(144+24*n+2*i,2)}')
        a(f's_add_u32 s{sO1}, s{sO0}, {(4-RED)*43008}')
        row_store(vO + 24, sO1)
        a.label(f'L_fin{sfx}')
    finish()
    emit_slow()
    cv = keep
a(f's_cmp_lg_u32 s{sH13}, 13\ns_cbranch_scc1 L_L12')
l_body(True)
a.label('L_L12')
l_body(False)
a.label('L_end')
a('s_endpgm')

body = a.finalize()
hdr = open('cdna_kernels/' + NAME + '.s.ref').read().split('\n')
out = []
for l in hdr:
    if l.startswith('; @launch'):
        out.append('; @launch grid=(256,1,1) block=(512,1,1) lds=163840')
    elif l.startswith(';'):
        out.append(l)
    else:
        break
out.append('.amdgcn_target "amdgcn-amd-amdhsa--gfx950"')
out.append('.text')
out.append(f'.globl {NAME}_kernel')
out.append('.p2align 8')
out.append(f'.type {NAME}_kernel,@function')
out.append(f'{NAME}_kernel:')
for l in body:
    out.append(l if l.endswith(':') else '    ' + l)
out.append(f'''.section .rodata,"a"
.p2align 6
.amdhsa_kernel {NAME}_kernel
  .amdhsa_next_free_vgpr 256
  .amdhsa_next_free_sgpr 102
  .amdhsa_accum_offset 256
  .amdhsa_group_segment_fixed_size 0
  .amdhsa_kernarg_size 64
  .amdhsa_user_sgpr_count 2
  .amdhsa_user_sgpr_kernarg_segment_ptr 1
  .amdhsa_system_sgpr_workgroup_id_x 1
.end_amdhsa_kernel''')
print('\n'.join(out))
```

```python
import sys, struct, math, copy
from asmlib import Asm

NAME = "standalone__modern_conv_block_replknet__vision"
def fbits(x): return struct.unpack('<I', struct.pack('<f', x))[0]
def opt(name, default=None):
    for x in sys.argv:
        if x == '--' + name: return True
        if x.startswith('--' + name + '='): return x.split('=', 1)[1]
    return default
STAMP = opt('stamp'); CYC = opt('cyc'); PRO = opt('pro')
STPOL = ' ' + opt('stpol', 'sc1').replace('_', ' ') if opt('stpol', 'sc1') != 'none' else ''
FOLD = opt('fold', '1') == '1'
GL, GF = (1, 0) if FOLD else (0, 1)

XROW = 3840
XB = 73728
PS = 24576
TB, TP = 139264, 976
OUTF, OUTL = 49152, 147456
L12 = OUTL + 4*3072
FL = 163584
S_IF, S_R, S_IL = 0, 24576, OUTL
MARK = 0x40000000
XBYTES = 224 * 224 * 192

k0 = math.sqrt(2.0 / math.pi); k1 = 0.044715
c0 = 2 * k0 / math.log(2.0); c1 = c0 * k1
ga = c1 ** (1.0 / 3.0)
gc = -c0 / ga

sX, sDL, sDS, sW1, sW2, sOUT = 16, 20, 24, 28, 32, 36
sWV, sY0, sX0, sT0, sT1, sT2, sT3 = 40, 41, 42, 43, 44, 45, 46
sH13, sWI = 47, 3
sCA, sCC = 48, 50
sWS = 52
sXM, sIMG, sOB = 56, 57, 62
sWA, sWBm = 58, 59
sO0, sO1 = 60, 61
sST = 64
NST = 16
def srd(b): return f's[{b}:{b+3}]'
vO, vL, vY, vK, vG, vF1, vF2 = 0, 48, [72, 88], [104, 120], 136, 144, 168
vRES, vID = 204, 228
vAW1 = [236, 237, 245, 249]; vAW2 = 238
vLW1 = 204; vLW2 = 212
vDW1 = [220, 221]; vDW2 = [222, 223, 224]
vARL = 225
vSW = [239, 240]; vSR = [241, 242, 243]
vL16 = 244
vFA, vFW, vFP = 246, 247, 248
T = [250, 251, 252, 253, 254]
vLN = 255
vXO = 203; vPF = 54
vAF, vAE, vAO, vIDX, vTF0, vTF1, vTE, vAR, vAE16, vAO1 = 192, 193, 194, 195, 196, 197, 198, [199, 200], 201, 202
vACC, vAFR, vB = 0, 84, 144
def vr(b, n): return f'v[{b}:{b+n-1}]'

a = Asm()
def _st(i): a(f'{"s_memtime" if CYC else "s_memrealtime"} s[{sST+2*i}:{sST+2*i+1}]')
def pstamp(i):
    if STAMP and PRO: _st(i)
def stamp(i):
    if STAMP and not (PRO and 9 <= i <= 14): _st(i)
def mksrd(b, lo, n):
    a(f's_mov_b64 s[{b}:{b+1}], s[{lo}:{lo+1}]\ns_mov_b32 s{b+2}, {n}\ns_mov_b32 s{b+3}, 0x00020000')
def bar(i=None):
    a('s_barrier')
    if i is not None: stamp(i)
def setexec(lo, hi):
    a(f's_mov_b32 exec_lo, {lo:#x}\ns_mov_b32 exec_hi, {hi:#x}')

nlab = [0]; slow = []
def guard():
    if opt('safe'): a('s_sub_u32 s98, s98, 1\ns_cbranch_scc1 L_end')
def signal(v, emit=None):
    a(f'v_mov_b32 v{T[4]}, {v}')
    (emit or a)(f'ds_write_b32 v{vFW}, v{T[4]}')
def poll(grp, v):
    lab = f'L_poll{nlab[0]}'; nlab[0] += 1
    a.label(lab)
    guard()
    a(f'ds_read_b32 v{vFP}, v{vFA} offset:{16*grp}\ns_waitcnt lgkmcnt(0)\nv_cmp_gt_u32 vcc, {v}, v{vFP}\ns_cbranch_vccnz {lab}')
def peek(grp): a(f'ds_read_b32 v{vFP}, v{vFA} offset:{16*grp}')
def check(grp, v):
    n = nlab[0]; nlab[0] += 1
    a(f'v_cmp_gt_u32 vcc, {v}, v{vFP}\ns_cbranch_vccnz L_slow{n}')
    a.label(f'L_back{n}')
    slow.append((n, grp, v))
def emit_slow():
    for n, grp, v in slow:
        a.label(f'L_slow{n}')
        guard()
        a(f'ds_read_b32 v{vFP}, v{vFA} offset:{16*grp}\ns_waitcnt lgkmcnt(0)\nv_cmp_gt_u32 vcc, {v}, v{vFP}\ns_cbranch_vccnz L_slow{n}\ns_branch L_back{n}')
    slow.clear()
def landed(n, v):
    a(f's_waitcnt vmcnt({n})'); signal(v)

def wdma(p, parts=range(6)):
    for i in parts:
        if i < 3:
            a(f'''
            s_add_u32 m0, s{sWBm}, {PS*p + 1024*i}
            s_add_u32 s{sT0}, s{sWA}, {6144*i + 128*p}
            buffer_load_dwordx4 v{vDW1[i & 1]}, {srd(sW1)}, s{sT0} offen lds
            ''')
        else:
            if i == 3 or i - 1 not in parts:
                a(f's_add_u32 m0, s{sWBm}, {PS*p + 12288}\ns_add_u32 s{sT0}, s{sWBm}, {12288*p}')
            a(f'buffer_load_dwordx4 v{vDW2[i-3]}, {srd(sW2)}, s{sT0} offen offset:{1024*(i-3)} lds')

def ln(raw, U, dst, rows16):
    n = len(dst)
    S, Q, ONE = T[1], T[3], T[4]
    sc, bi = T[0], T[2]
    a(f'v_mov_b32 v{ONE}, 0x3f803f80')
    un = []
    for i in range(n):
        un.append(f'v_lshlrev_b32 v{U+2*i}, 16, v{raw+i}')
        un.append(f'v_and_b32 v{U+2*i+1}, 0xffff0000, v{raw+i}')
    while len(un) > 8: a(un.pop(0))
    for i in range(n):
        a(f'v_dot2_f32_bf16 v{S}, v{raw+i}, v{ONE}, {"0" if i == 0 else f"v{S}"}')
        a(f'v_dot2_f32_bf16 v{Q}, v{raw+i}, v{raw+i}, {"0" if i == 0 else f"v{Q}"}')
    def fill(k):
        for _ in range(k):
            if un: a(un.pop(0))
    fill(3)
    a(f'v_permlane32_swap_b32 v{S}, v{Q}')
    a(f'v_add_f32 v{S}, v{S}, v{Q}')
    if rows16:
        a(f'v_mov_b32 v{Q}, v{S}')
        fill(2)
        a(f'v_permlane16_swap_b32 v{S}, v{Q}')
        a(f'v_add_f32 v{S}, v{S}, v{Q}')
    a(f'v_mul_f32 v{S}, {fbits(1.0/96):#x}, v{S}')
    a(f'v_mov_b32 v{Q}, v{S}')
    fill(2)
    a(f'v_permlane32_swap_b32 v{S}, v{Q}')
    a(f'''
    v_fma_f32 v{Q}, -v{S}, v{S}, v{Q}
    v_max_f32 v{Q}, 0, v{Q}
    v_add_f32 v{Q}, {fbits(1e-5):#x}, v{Q}
    v_rsq_f32 v{Q}, v{Q}
    ''')
    fill(1)
    a(f'v_mul_f32 v{sc}, {fbits(ga):#x}, v{Q}')
    a(f'v_mul_f32 v{bi}, -v{S}, v{sc}')
    fill(1000)
    for i in range(n):
        if opt('lnplain'):
            a(f'v_fma_f32 v{U+2*i}, v{U+2*i}, v{sc}, v{bi}\nv_fma_f32 v{U+2*i+1}, v{U+2*i+1}, v{sc}, v{bi}')
        else:
            a(f'v_pk_fma_f32 {vr(U+2*i,2)}, {vr(U+2*i,2)}, {vr(sc,2)}, {vr(bi,2)} op_sel_hi:[1,0,0]')
    for i in range(n):
        a(f'v_cvt_pk_bf16_f32 v{dst[i]}, v{U+2*i}, v{U+2*i+1}')

def pk_t(Y, K, n):
    return [f'v_pk_fma_f32 {vr(K+2*i,2)}, {vr(Y+2*i,2)}, {vr(Y+2*i,2)}, s[{sCC}:{sCC+1}] neg_lo:[1,0,0] neg_hi:[1,0,0]' for i in range(n//2)] + pk_m(Y, K, n)
def pk_m(Y, K, n): return [f'v_pk_mul_f32 {vr(K+2*i,2)}, {vr(Y+2*i,2)}, {vr(K+2*i,2)}' for i in range(n//2)]
def pk_d(K, n): return [f'v_pk_fma_f32 {vr(K+2*i,2)}, {vr(K+2*i,2)}, s[{sCA}:{sCA+1}], s[{sCA}:{sCA+1}]' for i in range(n//2)]
def emit(l):
    for t in l: a(t)

def mlp32(hooks, prio):
    N = 12
    moved = {'w1': False, 'w2': False}
    def move(kind, c):
        if c >= 6 and not moved[kind]:
            for r in (vAW1 if kind == 'w1' else [vAW2]): a(f'v_add_u32 v{r}, {3*PS}, v{r}')
            moved[kind] = True
    def w1reads(c):
        for ks in range(6):
            off = ((c >> 1) % 3) * PS + (ks >> 1) * 4096 + (ks & 1) * 1024
            r = vAW1[(c & 1) + 2 * (ks & 1)]
            a(f'ds_read_b64_tr_b16 {vr(vF1+4*ks,2)}, v{r} offset:{off}')
            a(f'ds_read_b64_tr_b16 {vr(vF1+4*ks+2,2)}, v{r} offset:{off+512}')
    def w2reads(c):
        for i in range(6):
            ks2, mt = i // 3, i % 3
            off = ((c >> 1) % 3) * PS + (c & 1) * 6144 + ks2 * 3072 + mt * 64
            a(f'ds_read_b64_tr_b16 {vr(vF2+4*i,2)}, v{vAW2} offset:{off}')
            a(f'ds_read_b64_tr_b16 {vr(vF2+4*i+2,2)}, v{vAW2} offset:{off+1536}')
    def g1(c, ks):
        Y = vY[c & 1]
        a(f'v_mfma_f32_32x32x16_bf16 {vr(Y,16)}, {vr(vF1+4*ks,4)}, {vr(vL+4*ks,4)}, {"0" if ks == 0 else vr(Y,16)}')
    def g2(i):
        ks2, mt = i // 3, i % 3
        a(f'v_mfma_f32_32x32x16_bf16 {vr(vO+16*mt,16)}, {vr(vF2+4*i,4)}, {vr(vG+4*ks2,4)}, {vr(vO+16*mt,16)}')
    def resm(ks):
        j, mt = ks // 3, ks % 3
        a(f'v_mfma_f32_32x32x16_bf16 {vr(vO+16*mt,16)}, {vr(vID+4*j,4)}, {vr(vRES+4*(2*mt+j),4)}, {"0" if j == 0 else vr(vO+16*mt,16)}')
    def hook(k):
        for f in hooks.get(k, []): f()
    def pr(c, v):
        if prio(c) is not None: a(f's_setprio {prio(c)[v]}')
    hook('pre')
    a('s_waitcnt lgkmcnt(0)')
    for ks in range(6): g1(0, ks)
    w1reads(1)
    hook('start3')
    for c in range(N + 1):
        Y, K = vY[c & 1], vK[c & 1]
        Yp, Kp = vY[(c - 1) & 1], vK[(c - 1) & 1]
        pr(c, 1)
        if c >= 1: emit(pk_m(Yp, Kp, 16))
        if c < N: emit(pk_t(Y, K, 16))
        cv = [f'v_cvt_pk_bf16_f32 v{vG+i}, v{Kp+2*i}, v{Kp+2*i+1}' for i in range(8)] if c >= 1 else []
        if c == N:
            emit(cv)
            a('s_waitcnt lgkmcnt(0)')
            for i in (0, 3, 1, 4, 2, 5): g2(i)
            break
        ex = [f'v_exp_f32 v{K+i}, v{K+i}' for i in range(16)]
        rc = [f'v_rcp_f32 v{K+i}, v{K+i}' for i in range(16)]
        last = c + 1 >= N
        if c + 2 < N: move('w1', c + 2)
        move('w2', c)
        if c == 0:
            gaps = [ex[0:3], ex[3:6], ex[6:9], ex[9:12], ex[12:15], ex[15:16]]
            a('s_waitcnt lgkmcnt(0)')
            for j in range(6):
                g1(1, j); emit(gaps[j])
        elif not last:
            gaps = [cv[0:4] + ex[0:1], cv[4:8] + ex[1:2], ex[2:5], ex[5:8], ex[8:11], ex[11:14], ex[14:16]]
            for j in range(7):
                if j < 6: g1(c + 1, j)
                else: g2(0)
                if j == 5: a('s_waitcnt lgkmcnt(0)')
                emit(gaps[j])
        else:
            emit(cv); emit(ex[0:4])
            a('s_waitcnt lgkmcnt(0)')
            gaps = [ex[4:8], ex[8:12], ex[12:16]]
            for j in range(3):
                g2(j); emit(gaps[j])
        hook(('preT1', c))
        pr(c, 0)
        if c + 2 < N: w1reads(c + 2)
        hook(('T1', c))
        pr(c, 1)
        emit(pk_d(K, 16))
        if c == 0:
            gp = [rc[0:3], rc[3:6], rc[6:9], rc[9:12], rc[12:14], rc[14:16]]
            for j in range(6):
                resm(j)
                if j == 5: a('s_waitcnt lgkmcnt(0)')
                emit(gp[j])
        elif not last:
            gp = [rc[0:3], rc[3:6], rc[6:9], rc[9:12], rc[12:16]]
            for j in range(5):
                g2(j + 1)
                if j == 4: a('s_waitcnt lgkmcnt(0)')
                emit(gp[j])
        else:
            gp = [rc[0:3], rc[3:6], rc[6:16]]
            for j in range(3):
                g2(j + 3)
                if j == 2: w2reads(c)
                emit(gp[j])
        hook(('preT2', c))
        pr(c, 0)
        if not last: w2reads(c)
        hook(('T2', c))
    return w1reads

def f_w1reads0():
    for ks in range(6):
        off = (ks >> 1) * 4096 + (ks & 1) * 1024
        r = vAW1[2 * (ks & 1)]
        a(f'ds_read_b64_tr_b16 {vr(vF1+4*ks,2)}, v{r} offset:{off}')
        a(f'ds_read_b64_tr_b16 {vr(vF1+4*ks+2,2)}, v{r} offset:{off+512}')

def l_w1reads(s):
    for i in range(6):
        mt2, ks3 = i // 3, i % 3
        off = ((s >> 2) & 1) * 2 * PS + ks3 * 4096
        r = vLW1 + mt2 + 2 * (s & 3)
        a(f'ds_read_b64_tr_b16 {vr(vF1+4*i,2)}, v{r} offset:{off}')
        a(f'ds_read_b64_tr_b16 {vr(vF1+4*i+2,2)}, v{r} offset:{off+512}')

def mlp16(doubles, hooks, prio):
    N = 12
    def wid(s): return 0 if (s < 0 or s >= N) else (2 if s in doubles else 1)
    def move(base):
        for r in range(8): a(f'v_add_u32 v{base+r}, {4*PS}, v{base+r}')
    def w2reads(s):
        for i in range(6):
            off = ((s >> 2) & 1) * 2 * PS + 64 * (i >> 1)
            r = vLW2 + (i & 1) + 2 * (s & 3)
            a(f'ds_read_b64_tr_b16 {vr(vF2+4*i,2)}, v{r} offset:{off}')
            a(f'ds_read_b64_tr_b16 {vr(vF2+4*i+2,2)}, v{r} offset:{off+3072}')
    def m1(s):
        l = []
        for t in range(wid(s)):
            for j in range(6):
                mt2, ks3 = j & 1, j >> 1
                D = vY[s & 1] + 8 * t + 4 * mt2
                l.append(f'v_mfma_f32_16x16x32_bf16 {vr(D,4)}, {vr(vF1+4*(mt2*3+ks3),4)}, {vr(vL+12*t+4*ks3,4)}, {"0" if ks3 == 0 else vr(D,4)}')
        return l
    def m2(s):
        return [f'v_mfma_f32_16x16x32_bf16 {vr(vO+24*t+4*i,4)}, {vr(vF2+4*i,4)}, {vr(vG+4*t,4)}, {vr(vO+24*t+4*i,4)}' for t in range(wid(s)) for i in range(6)]
    def weave(ms, fl):
        fl = list(fl)
        if not ms:
            emit(fl); a('s_waitcnt lgkmcnt(0)'); return
        for j, m in enumerate(ms):
            a(m)
            if j == len(ms) - 1: a('s_waitcnt lgkmcnt(0)')
            k = -(-len(fl) // (len(ms) - j))
            emit(fl[:k]); fl = fl[k:]
    def hook(k):
        for f in hooks.get(k, []): f()
    def pr(c, v):
        if prio(c) is not None: a(f's_setprio {prio(c)[v]}')
    hook('pre')
    a('s_waitcnt lgkmcnt(0)')
    emit(m1(0))
    l_w1reads(1)
    hook('start3')
    for s in range(N + 1):
        Y, K = vY[s & 1], vK[s & 1]
        Yp, Kp = vY[(s - 1) & 1], vK[(s - 1) & 1]
        n, np_ = 8 * wid(s), 8 * wid(s - 1)
        pr(s, 1)
        emit(pk_m(Yp, Kp, np_))
        emit(pk_t(Y, K, n))
        cv = [f'v_cvt_pk_bf16_f32 v{vG+i}, v{Kp+2*i}, v{Kp+2*i+1}' for i in range(np_ // 2)]
        if s == N:
            emit(cv)
            a('s_waitcnt lgkmcnt(0)')
            emit(m2(N - 1))
            break
        ex = [f'v_exp_f32 v{K+i}, v{K+i}' for i in range(n)]
        rc = [f'v_rcp_f32 v{K+i}, v{K+i}' for i in range(n)]
        if s + 2 == 8: move(vLW1)
        if s == 8: move(vLW2)
        if s == 0: a('s_waitcnt lgkmcnt(0)')
        weave(m1(s + 1), cv + ex)
        hook(('preT1', s))
        pr(s, 0)
        if s + 2 < N: l_w1reads(s + 2)
        hook(('T1', s))
        pr(s, 1)
        emit(pk_d(K, n))
        weave(m2(s - 1), rc)
        hook(('preT2', s))
        pr(s, 0)
        w2reads(s)
        hook(('T2', s))

def finish():
    if STAMP:
        stamp(14)
        a('s_waitcnt vmcnt(0)')
        stamp(15)
        a('s_waitcnt lgkmcnt(0)')
        if opt('dbg'):
            n = nlab[0]; nlab[0] += 1
            a(f's_cmp_lg_u32 s2, {opt("dbg")}\ns_cbranch_scc1 L_nd{n}\ns_cmp_lg_u32 s{sWI}, 0\ns_cbranch_scc1 L_nd{n}')
            a(f's_lshl_b32 s{sT0}, s{sWV}, 3\nv_mov_b32 v{T[1]}, s{sT0}\ns_mov_b64 exec, 1')
            for k, i in enumerate((1, 2, 3, 4, 8, 10, 13, 15)):
                a(f's_sub_u32 s{sT0}, s{sST+2*i}, s{sST}\nv_mov_b32 v{T[0]}, s{sT0}')
                a(f'buffer_store_dword v{T[0]}, v{T[1]}, {srd(sWS)}, 0 offen offset:{4*k}')
            a.label(f'L_nd{n}')
            a('s_endpgm')
            return
        a(f'''
        s_lshl_b32 s{sT0}, s2, 3
        s_add_u32 s{sT0}, s{sT0}, s{sWV}
        s_lshl_b32 s{sT0}, s{sT0}, 6
        v_mov_b32 v{T[1]}, s{sT0}
        s_mov_b64 exec, 1
        ''')
        for i in range(NST):
            a(f'v_mov_b32 v{T[0]}, s{sST+2*i}')
            a(f'buffer_store_dword v{T[0]}, v{T[1]}, {srd(sWS)}, 0 offen offset:{4*i}')
    a('s_endpgm')

def tab_reads(gi, em):
    A = vAFR + 20 * gi; o = 64 * gi
    for d in range(3):
        em(f'ds_read_b64_tr_b16 {vr(A+4*d,2)}, v{vTF0} offset:{o + 2*d*TP}')
        em(f'ds_read_b64_tr_b16 {vr(A+4*d+2,2)}, v{vTF1} offset:{o + 2*d*TP}')
    for par in range(2):
        for pp in range(2):
            em(f'ds_read_b64_tr_b16 {vr(A+12+4*par+2*pp,2)}, v{vTE} offset:{o + (pp - 2*par + 2)*TP}')
RING = 6
class Conv:
    def __init__(self, k0): self.n = 0; self.slot = 0; self.k0 = k0
    def acc(self, gi, k): return vACC + 16 * gi + 4 * (k - self.k0)
    def ds(self, t): a(t); self.n += 1; return self.n
    def wait(self, seq): a(f's_waitcnt lgkmcnt({min(15, self.n - seq)})')
    def reads(self, it):
        B = it['B']; go = 64 * it['gi']; idx = it['idx']; kind = it['kind']
        if kind == 'F':
            r0, r1 = 2 * idx, min(2 * idx + 1, 16)
            return [f'ds_read_b128 {vr(B,4)}, v{vAF} offset:{r0*XROW+go}', f'ds_read_b128 {vr(B+4,4)}, v{vAF} offset:{r1*XROW+go}']
        if kind == 'E':
            return [f'ds_read_b128 {vr(B,4)}, v{vAE} offset:{2*idx*XROW+go}', f'ds_read_b128 {vr(B+4,4)}, v{vAE} offset:{(2*idx+4)*XROW+go}']
        return [f'ds_read_b128 {vr(B,4)}, v{vAE} offset:{12*XROW+go}', f'ds_read_b128 {vr(B+4,4)}, v{vAE16} offset:{16*XROW+go}']
    def cvt(self, lst):
        for gi, k in lst:
            A = self.acc(gi, k)
            a(f'v_cvt_pk_bf16_f32 v{A}, v{A}, v{A+1}\nv_cvt_pk_bf16_f32 v{A+1}, v{A+2}, v{A+3}')
    def write(self, lst):
        for gi, k in lst:
            A = self.acc(gi, k)
            if k == 6: setexec(0xffff, 0xffff)
            self.ds(f'ds_write_b64 v{vAO}, {vr(A,2)} offset:{(k-self.k0)*6144+64*gi}')
            if k == 6: a('s_mov_b64 exec, -1')
    def run(self, items, stop_at=None):
        D = RING - 1
        nxt = 0
        while nxt < len(items) and 'seq' in items[nxt]: nxt += 1
        def start(j):
            items[j]['B'] = vB + 8 * (self.slot % RING); self.slot += 1
            return self.reads(items[j])
        while nxt < min(D, len(items)):
            for t in start(nxt): items[nxt]['seq'] = self.ds(t)
            nxt += 1
        end = len(items) if stop_at is None else stop_at
        for i in range(end):
            it = items[i]
            self.wait(it['seq'])
            pend = start(nxt) if nxt < len(items) else []
            A = vAFR + 20 * it['gi']
            had = bool(pend)
            for k in it['outs']:
                fr = (it['idx'] - k) if it['kind'] == 'F' else 3 + (k - it['idx'])
                a(f'v_smfmac_f32_16x16x64_bf16 {vr(self.acc(it["gi"], k),4)}, {vr(A+4*fr,4)}, {vr(it["B"],8)}, v{vIDX}')
                if pend: items[nxt]['seq'] = self.ds(pend.pop(0))
            for t in pend: items[nxt]['seq'] = self.ds(t)
            if had: nxt += 1
            if it.get('pub'):
                self.cvt(it['pub'])
                if not it.get('nowrite'): self.write(it['pub'])
            if it.get('post'): it['post']()
        return items[end:]
def stage(frags): return [dict(gi=gi, kind=k, idx=i, outs=list(o)) for gi in range(3) for (k, i, o) in frags]
def add_pub(items, base, nfr, pairs, nowrite=False):
    for gi in range(3):
        j = min(base + nfr * (gi + 1), len(items) - 1)
        items[j].setdefault('pub', []).extend((gi, k) for k in pairs)
        items[j]['nowrite'] = nowrite

def late_setup():
    mksrd(sOUT, 14, XBYTES)
    if opt('safe'): a('s_mov_b32 s98, 20000')
    a(f'''
    s_mov_b32 s{sCA}, {fbits(ga):#x}
    s_mov_b32 s{sCA+1}, {fbits(ga):#x}
    s_mov_b32 s{sCC}, {fbits(gc):#x}
    s_mov_b32 s{sCC+1}, {fbits(gc):#x}
    s_add_u32 s{sT0}, s{sWI}, s{sY0}
    s_mul_i32 s{sT0}, s{sT0}, 224
    s_add_u32 s{sT0}, s{sT0}, s{sX0}
    s_mul_i32 s{sO0}, s{sT0}, 192
    ''')
    if STAMP:
        a(f's_mov_b32 s{sWS+2}, {256 if opt("dbg") else 0x10000000}\ns_mov_b32 s{sWS+3}, 0x00020000')
        for i in (7,): a(f's_mov_b32 s{sST+2*i}, 0')
    for j in range(3):
        a(f'''
        v_add_u32 v{T[0]}, {64*j}, v{vLN}
        v_mul_u32_u24 v{T[2]}, 171, v{T[0]}
        v_bfe_u32 v{T[2]}, v{T[2]}, 12, 2
        v_xor_b32 v{T[0]}, v{T[0]}, v{T[2]}
        v_lshl_add_u32 v{vSR[j]}, v{T[0]}, 4, s{sIMG}
        ''')

def conv_setup1():
    a(f'''
v_and_b32 v{T[0]}, 3, v{vLN}
v_mul_u32_u24 v{vIDX}, 0x5555, v{T[0]}
s_lshl_b32 s{sT2}, s{sWI}, 4
s_add_u32 s{sT2}, s{sT2}, {TB}
v_bfe_u32 v{T[1]}, v{vLN}, 1, 1
v_lshl_add_u32 v{T[4]}, v{T[1]}, 3, s{sT2}
v_and_b32 v{T[0]}, 1, v{vLN}
v_lshrrev_b32 v{T[1]}, 5, v{vLN}
v_mul_u32_u24 v{vTE}, {TP}, v{T[1]}
v_sub_u32 v{T[1]}, v{T[1]}, v{T[0]}
v_bfe_u32 v{T[2]}, v{vLN}, 2, 1
v_mul_u32_u24 v{T[2]}, 7, v{T[2]}
v_sub_u32 v{T[1]}, v{T[1]}, v{T[2]}
v_add_u32 v{T[1]}, 8, v{T[1]}
v_mul_u32_u24 v{T[1]}, {TP}, v{T[1]}
v_bfe_u32 v{T[2]}, v{vLN}, 4, 1
v_mul_u32_u24 v{T[2]}, 192, v{T[2]}
v_add3_u32 v{T[3]}, v{T[1]}, v{T[2]}, v{T[4]}
v_lshrrev_b32 v{T[1]}, 4, v{vLN}
v_lshlrev_b32 v{T[2]}, 1, v{T[1]}
v_sub_u32 v{T[2]}, v{T[2]}, v{T[0]}
v_add_u32 v{T[2]}, 6, v{T[2]}
v_mul_u32_u24 v{T[2]}, {TP}, v{T[2]}
v_add_u32 v{vTF0}, s{sT2}, v{vTE}
v_add_u32 v{vTF1}, {TP}, v{vTF0}
v_mov_b32 v{vTE}, s{sT2}
s_mov_b32 exec_lo, 0xcc33cc33
s_mov_b32 exec_hi, 0xcc33cc33
v_mov_b32 v{vTF0}, v{T[3]}
v_add_u32 v{vTF1}, 384, v{T[3]}
s_mov_b32 exec_lo, 0x0c030c03
s_mov_b32 exec_hi, 0x0c030c03
v_add_u32 v{T[2]}, 768, v{T[2]}
v_add_u32 v{vTE}, v{T[2]}, v{T[4]}
s_mov_b64 exec, -1
v_and_b32 v{T[0]}, 15, v{vLN}
v_bfe_u32 v{T[2]}, v{vLN}, 4, 1
v_lshrrev_b32 v{T[3]}, 5, v{vLN}
v_lshl_add_u32 v{T[2]}, v{T[2]}, 1, v{T[3]}
v_add_u32 v{T[2]}, v{T[0]}, v{T[2]}
v_bfe_u32 v{T[3]}, v{T[2]}, 2, 2
v_xor_b32 v{T[3]}, s{sWI}, v{T[3]}
v_mul_u32_u24 v{T[2]}, 192, v{T[2]}
v_lshl_add_u32 v{vAF}, v{T[3]}, 4, v{T[2]}
v_add_u32 v{vAF}, {XB}, v{vAF}
''')
def conv_setup2(em=None):
    for i in range(24): a(f'v_mov_b64 {vr(vACC+2*i,2)}, 0')
    a(f'''
v_and_b32 v{T[0]}, 3, v{vLN}
v_lshlrev_b32 v{vFA}, 2, v{T[0]}
v_add_u32 v{vFA}, {FL}, v{vFA}
s_lshl_b32 s{sT0}, s{sWV}, 2
s_add_u32 s{sT0}, s{sT0}, {FL}
v_mov_b32 v{vFW}, s{sT0}
v_mov_b32 v{vFP}, 0
ds_write_b32 v{vFW}, v{vFP}
v_and_b32 v{T[0]}, 15, v{vLN}
v_lshrrev_b32 v{T[1]}, 4, v{vLN}
v_add_u32 v{T[2]}, 4, v{T[0]}
v_bfe_u32 v{T[3]}, v{T[2]}, 2, 2
v_xor_b32 v{T[3]}, s{sWI}, v{T[3]}
v_mul_u32_u24 v{T[2]}, 192, v{T[2]}
v_lshl_add_u32 v{vAE}, v{T[3]}, 4, v{T[2]}
v_add_u32 v{vAE16}, {XB}, v{vAE}
v_mul_u32_u24 v{T[2]}, {XROW}, v{T[1]}
v_add_u32 v{vAE}, v{vAE16}, v{T[2]}
; conv write address: s=(lane>>4)&1, half = (lane>>5) ^ bit1(n)
v_bfe_u32 v{T[3]}, v{T[0]}, 2, 2
v_xor_b32 v{T[4]}, s{sWI}, v{T[3]}
v_mul_u32_u24 v{T[2]}, 192, v{T[0]}
v_lshl_add_u32 v{T[2]}, v{T[4]}, 4, v{T[2]}
v_bfe_u32 v{T[1]}, v{vLN}, 4, 1
v_mul_u32_u24 v{T[1]}, 3072, v{T[1]}
v_lshrrev_b32 v{T[3]}, 5, v{vLN}
v_bfe_u32 v{T[4]}, v{vLN}, 1, 1
v_xor_b32 v{T[3]}, v{T[3]}, v{T[4]}
v_lshl_add_u32 v{T[1]}, v{T[3]}, 3, v{T[1]}
v_add3_u32 v{vAO}, v{T[2]}, v{T[1]}, s{sOB}
''')

isF = 's_cmp_lt_u32' if FOLD else 's_cmp_ge_u32'
a(f'''
s_load_dwordx4 s[4:7], s[0:1], 0
s_load_dwordx4 s[8:11], s[0:1], 16
s_load_dwordx4 s[12:15], s[0:1], 32
s_getpc_b64 s[100:101]
L_pc:
''')
if STAMP: a(f's_load_dwordx2 s[{sWS}:{sWS+1}], s[0:1], {48 if opt("dbg") else 56}')
stamp(0)
a(f'''
s_cmp_ge_u32 s2, 256
s_cbranch_scc1 L_end
v_lshrrev_b32 v{T[0]}, 6, v0
v_and_b32 v{vLN}, 63, v0
''')
PFM = opt('pf', 'g')
if PFM == 'first':
    a(f'''
    s_bfe_u32 s{sT3}, s2, 0x20003
    s_mul_i32 s{sT3}, s{sT3}, {80*128}
    v_mul_u32_u24 v{T[1]}, 10, v{T[0]}
    v_add_u32 v{T[1]}, v{T[1]}, v{vLN}
    v_lshl_add_u32 v{T[1]}, v{T[1]}, 7, s{sT3}
    v_min_u32 v{T[1]}, L_end-L_pc, v{T[1]}
    s_mov_b64 exec, 0x3ff
    global_load_dword v{vPF}, v{T[1]}, s[100:101]
    s_mov_b64 exec, -1
    ''')
a(f'''
s_lshr_b32 s{sT1}, s2, 3
v_readfirstlane_b32 s{sWV}, v{T[0]}
s_and_b32 s{sT2}, s2, 1
s_add_u32 s{sT2}, s{sT2}, s{sT1}
s_cmp_ge_u32 s{sT2}, 32
s_cbranch_scc1 L_end
s_and_b32 s{sT0}, s2, 3
v_mul_u32_u24 v{T[0]}, 43, v{vLN}
s_mul_i32 s{sT0}, s{sT0}, 63
s_add_u32 s{sT0}, s{sT0}, 1
v_lshrrev_b32 v{T[0]}, 9, v{T[0]}
s_lshr_b32 s{sT0}, s{sT0}, 1
s_add_u32 s{sT0}, s{sT0}, s{sT1}
v_mul_u32_u24 v{T[1]}, 12, v{T[0]}
s_mul_i32 s{sT1}, s{sT0}, 9363
s_lshr_b32 s{sT1}, s{sT1}, 16
v_sub_u32 v{T[1]}, v{vLN}, v{T[1]}
s_mul_i32 s{sT2}, s{sT1}, 7
s_sub_u32 s{sT0}, s{sT0}, s{sT2}
s_bfe_u32 s{sT2}, s2, 0x10002
s_mul_i32 s{sT2}, s{sT2}, 7
s_add_u32 s{sT0}, s{sT0}, s{sT2}
s_lshl_b32 s{sX0}, s{sT0}, 4
s_mul_i32 s{sY0}, s{sT1}, {112*7282}
s_add_u32 s{sH13}, s{sY0}, {112*7282}
s_lshr_b32 s{sY0}, s{sY0}, 16
s_lshr_b32 s{sH13}, s{sH13}, 16
s_sub_u32 s{sH13}, s{sH13}, s{sY0}
s_and_b32 s{sWI}, s{sWV}, 3
''')
if PFM == 'h':
    a(f'''
    s_cmp_eq_u32 s{sH13}, 13
    s_cbranch_scc1 L_nopf
    s_bfe_u32 s{sT3}, s2, 0x20003
    s_lshl_b32 s{sT3}, s{sT3}, 3
    s_add_u32 s{sT3}, s{sT3}, s{sWV}
    s_mul_i32 s{sT3}, s{sT3}, {10*128}
    v_lshl_add_u32 v{T[2]}, v{vLN}, 7, s{sT3}
    v_min_u32 v{T[2]}, L_end-L_pc, v{T[2]}
    s_mov_b64 exec, 0x3ff
    global_load_dword v{vPF}, v{T[2]}, s[100:101]
    s_mov_b64 exec, -1
    L_nopf:
    ''')
a(f'''
v_mov_b32 v{T[4]}, {MARK}
v_lshlrev_b32 v{vL16}, 4, v{vLN}
{isF} s{sWV}, 4
s_cbranch_scc1 L_F0
; ---- L: x rows
s_mul_i32 s{sT1}, s{sWI}, 5
v_add_u32 v{T[0]}, s{sT1}, v{T[0]}
v_bfe_u32 v{T[2]}, v{T[0]}, 2, 2
v_xor_b32 v{T[1]}, v{T[1]}, v{T[2]}
s_sub_u32 s{sT1}, s{sX0}, 2
v_add_u32 v{T[0]}, s{sT1}, v{T[0]}
v_mul_u32_u24 v{T[2]}, 192, v{T[0]}
v_cmp_gt_u32 vcc, 224, v{T[0]}
v_lshl_add_u32 v{T[2]}, v{T[1]}, 4, v{T[2]}
s_mul_i32 s{sXM}, s{sWI}, 960
s_add_u32 m0, s{sXM}, {XB}
s_movk_i32 s{sXM}, {XROW}
s_mov_b32 s99, 43008
v_cndmask_b32 v{vXO}, v{T[4]}, v{T[2]}, vcc
s_sub_u32 s{sT1}, s{sY0}, 2
s_mul_i32 s{sT1}, s{sT1}, s99
v_add_u32 v{vXO}, s{sT1}, v{vXO}
s_mov_b32 s{sX+2}, {XBYTES}
s_mov_b32 s{sX+3}, 0x00020000
s_mov_b32 exec_hi, 0x0fffffff
s_waitcnt lgkmcnt(0)
s_mov_b64 s[{sX}:{sX+1}], s[4:5]
''')
xl = [0]
def xrows(n):
    for _ in range(n):
        t = xl[0]; xl[0] += 1
        if t:
            a(f's_add_u32 m0, m0, s{sXM}')
            a(f'v_add_u32 v{vXO}, s99, v{vXO}')
        a(f'buffer_load_dwordx4 v{vXO}, {srd(sX)}, 0 offen lds')
NX0 = int(opt('nx0', 12))
xrows(NX0)
stamp(1)
a(f's_waitcnt vmcnt({NX0 - 4})')
pstamp(9)
bar(2)
a(f'''
s_branch L_L
L_F0:
; ---- F: conv weight tables, rows w and w+4 of both
s_setprio {opt("fprio", 2)}
s_mul_i32 s{sT3}, s{sWI}, 960
v_add_u32 v{T[2]}, s{sT3}, v{vL16}
s_mul_i32 s{sT3}, s{sWI}, 576
s_sub_u32 s{sT3}, s{sT3}, {2*576 + 192}
v_mov_b32 v{T[3]}, {MARK}
s_mov_b32 exec_lo, 0xfffff000
s_mov_b32 exec_hi, 0xffff
v_add_u32 v{T[3]}, s{sT3}, v{vL16}
v_add_u32 v{T[4]}, {4*576}, v{T[3]}
s_mov_b32 exec_lo, -1
s_mov_b32 exec_hi, 0x0fffffff
v_add_u32 v{T[1]}, {4*960}, v{T[2]}
s_mul_i32 s{sT3}, s{sWI}, {TP}
s_mov_b32 s{sDS+2}, 4800
s_mov_b32 s{sDS+3}, 0x00020000
s_mov_b32 s{sDL+2}, 1728
s_mov_b32 s{sDL+3}, 0x00020000
s_add_u32 m0, s{sT3}, {TB + 8*TP}
s_waitcnt lgkmcnt(0)
s_mov_b64 s[{sDS}:{sDS+1}], s[8:9]
s_mov_b64 s[{sDL}:{sDL+1}], s[6:7]
buffer_load_dwordx4 v{T[2]}, {srd(sDS)}, 0 offen lds
s_add_u32 m0, s{sT3}, {TB}
s_mul_i32 s{sIMG}, s{sWI}, 6144
buffer_load_dwordx4 v{T[3]}, {srd(sDL)}, 0 offen lds
s_add_u32 m0, s{sT3}, {TB + 12*TP}
s_mov_b32 s{sOB}, {OUTF}
buffer_load_dwordx4 v{T[1]}, {srd(sDS)}, 0 offen lds
s_add_u32 m0, s{sT3}, {TB + 4*TP}
s_nop 0
buffer_load_dwordx4 v{T[4]}, {srd(sDL)}, 0 offen lds
s_mov_b32 exec_hi, -1
''')
WPF = opt('wpf', '0') == '1'
if PFM in ('f', 'g'):
    if PFM == 'g': a(f's_cmp_eq_u32 s{sH13}, 13\ns_cselect_b32 s97, 1, 0xfffff')
    a(f'''
    s_bfe_u32 s{sT3}, s2, 0x20003
    s_lshl_b32 s{sT3}, s{sT3}, 2
    s_add_u32 s{sT3}, s{sT3}, s{sWI}
    s_mul_i32 s{sT3}, s{sT3}, {20*128}
    v_lshl_add_u32 v{T[1]}, v{vLN}, 7, s{sT3}
    v_min_u32 v{T[1]}, L_end-L_pc, v{T[1]}
    {'s_mov_b64 exec, 0xfffff' if PFM == 'f' else f's_cmp_eq_u32 s{sH13}, 13'+chr(10)+f's_cselect_b32 s{sT3}, 0, -1'+chr(10)+f'v_and_b32 v{T[1]}, s{sT3}, v{T[1]}'+chr(10)+'s_mov_b32 exec_lo, s97'+chr(10)+'s_mov_b32 exec_hi, 0'}
    global_load_dword v{vPF}, v{T[1]}, s[100:101]
    s_mov_b64 exec, -1
    ''')
if WPF:
    a(f'''
    s_and_b32 s{sT0}, s{sWI}, 1
    s_cselect_b64 s[{sT1}:{sT2}], s[12:13], s[10:11]
    s_lshr_b32 s{sT0}, s2, 3
    s_lshl_b32 s{sT0}, s{sT0}, 1
    s_lshr_b32 s{sT3}, s{sWI}, 1
    s_add_u32 s{sT0}, s{sT0}, s{sT3}
    s_mul_i32 s{sT0}, s{sT0}, {10*128}
    v_lshl_add_u32 v{T[0]}, v{vLN}, 7, s{sT0}
    v_min_u32 v{T[0]}, {73728-128}, v{T[0]}
    s_mov_b64 exec, 0x3ff
    global_load_dword v{vPF-1}, v{T[0]}, s[{sT1}:{sT2}]
    s_mov_b64 exec, -1
    ''')
conv_setup1()
OPF = opt('opf', '0') == '1'
if OPF:
    a(f'''
    s_mov_b64 exec, 1
    buffer_load_dword v{vPF-2}, v{vL16}, {srd(sOUT)}, s{sO0} offen
    s_mov_b64 exec, -1
    ''')
vFR = [48, 49, 50, 51]
def f_setup1():
    a(f'''
    s_add_u32 s{sO1}, s{sO0}, {4*43008}
    v_lshrrev_b32 v{T[4]}, 5, v{vLN}
    v_bfe_u32 v{T[0]}, v{vLN}, 2, 2
    v_bfe_u32 v{T[1]}, v{vLN}, 4, 1
    v_and_b32 v{T[2]}, 3, v{vLN}
    v_lshl_add_u32 v{T[3]}, v{T[4]}, 4, v{T[0]}
    v_lshlrev_b32 v{T[3]}, 7, v{T[3]}
    v_lshl_add_u32 v{T[3]}, v{T[1]}, 5, v{T[3]}
    v_lshl_add_u32 v{T[3]}, v{T[2]}, 3, v{T[3]}
    v_bfe_u32 v{T[2]}, v{vLN}, 3, 1
    v_lshl_add_u32 v{vAW1[0]}, v{T[2]}, 6, v{T[3]}
    v_xor_b32 v{vAW1[1]}, 64, v{vAW1[0]}
    v_xor_b32 v{vAW1[2]}, 32, v{vAW1[0]}
    v_xor_b32 v{vAW1[3]}, 0x60, v{vAW1[0]}
    v_lshl_add_u32 v{T[3]}, v{T[4]}, 2, v{T[0]}
    v_mul_u32_u24 v{T[3]}, 192, v{T[3]}
    v_lshl_add_u32 v{T[3]}, v{T[1]}, 4, v{T[3]}
    v_and_b32 v{T[2]}, 1, v{vLN}
    v_xor_b32 v{T[2]}, v{T[2]}, v{T[4]}
    v_lshl_add_u32 v{T[3]}, v{T[2]}, 5, v{T[3]}
    v_bfe_u32 v{T[2]}, v{vLN}, 1, 1
    v_lshl_add_u32 v{T[3]}, v{T[2]}, 3, v{T[3]}
    v_add_u32 v{vAW2}, 12288, v{T[3]}
    s_mul_i32 s{sT2}, s{sWI}, 3072
    s_add_u32 s{sT2}, s{sT2}, {OUTF}
    s_mul_i32 s{sT1}, s{sWI}, {XROW}
    s_add_u32 s{sT1}, s{sT1}, {XB + 2*XROW + 384}
    v_lshlrev_b32 v{T[4]}, 1, v{T[4]}
    v_xor_b32 v{T[0]}, v{T[4]}, v{T[0]}
    v_and_b32 v{T[3]}, 15, v{vLN}
    v_mul_u32_u24 v{T[3]}, 192, v{T[3]}
    v_lshl_add_u32 v{T[0]}, v{T[0]}, 4, v{T[3]}
    v_lshl_add_u32 v{T[0]}, v{T[2]}, 3, v{T[0]}
    v_mul_u32_u24 v{T[2]}, {4*3072}, v{T[1]}
    v_add3_u32 v{vFR[0]}, v{T[0]}, v{T[2]}, s{sT2}
    v_xor_b32 v{vFR[1]}, 8, v{vFR[0]}
    v_xor_b32 v{vFR[2]}, 16, v{vFR[0]}
    v_xor_b32 v{vFR[3]}, 24, v{vFR[0]}
    v_add_u32 v{T[0]}, 2, v{vLN}
    v_bfe_u32 v{T[0]}, v{T[0]}, 2, 2
    v_xor_b32 v{T[0]}, v{T[4]}, v{T[0]}
    v_lshl_add_u32 v{T[0]}, v{T[0]}, 4, v{T[3]}
    v_mul_u32_u24 v{T[2]}, {4*XROW}, v{T[1]}
    v_add3_u32 v{vAR[0]}, v{T[0]}, v{T[2]}, s{sT1}
    v_xor_b32 v{vAR[1]}, 16, v{vAR[0]}
    v_bfe_u32 v{T[0]}, v{vLN}, 1, 2
    v_xor_b32 v{T[0]}, v{T[4]}, v{T[0]}
    v_lshl_add_u32 v{T[0]}, v{T[0]}, 4, v{T[3]}
    v_mul_u32_u24 v{T[2]}, 3072, v{T[1]}
    v_add3_u32 v{vSW[0]}, v{T[0]}, v{T[2]}, s{sIMG}
    v_xor_b32 v{vSW[1]}, 16, v{vSW[0]}
    ''')
def f_setup2():
    a(f'''
    v_and_b32 v{T[1]}, 1, v{vLN}
    v_lshlrev_b32 v{T[1]}, 4, v{T[1]}
    v_mov_b32 v{T[2]}, 0x3f80
    v_lshlrev_b32 v{T[1]}, v{T[1]}, v{T[2]}
    ''')
    for i in range(4): a(f'v_mov_b64 {vr(vID+2*i,2)}, 0')
    for i in range(8):
        pos = 16 * (i >> 2) + 8 * ((i >> 1) & 1) + 2 * (i & 1)
        setexec(3 << pos, 3 << (pos + 4))
        a(f'v_mov_b32 v{vID+i}, v{T[1]}')
    a('s_mov_b64 exec, -1')
FS = opt('fs', '0011')
fsl = [conv_setup2, late_setup, f_setup2, f_setup1]
def fsetup(k):
    for f, c in zip(fsl, FS):
        if int(c) == k: f()
fsetup(0)
stamp(1)
a(f's_waitcnt vmcnt({(1 if WPF else 0) + (1 if PFM in "fg" else 0) + (1 if OPF else 0)}) lgkmcnt(0)')
pstamp(9)
bar(2)
cv = Conv(0)
for gi in range(3): tab_reads(gi, cv.ds)
S0 = stage([('F',0,[0]), ('F',1,[0,1])])
cv.run(S0, 0)
def res_half(s):
    m = 0xffff0000 if s else 0xffff
    setexec(m, m)
    for ks in range(6):
        cv.ds(f'ds_read_b128 {vr(vRES+4*ks,4)}, v{vAR[ks&1]} offset:{64*(ks>>1)}')
    a('s_mov_b64 exec, -1')
def run_stage(left, frags, pairs, keep=0, mid=None):
    its = left + stage(frags)
    if pairs: add_pub(its, len(left), len(frags), pairs)
    if mid: its[mid[0]]['post'] = mid[1]
    return cv.run(its, len(its) - keep)
left = cv.run(S0, len(S0) - int(opt('keep0', 2)))
fsetup(1)
pstamp(10)
bar(3)
left = run_stage(left, [('F',2,[0,1,2]), ('F',3,[1,2,3]), ('E',0,[0,1])], [0, 1])
fsetup(2)
pstamp(11)
bar(4)
a(f's_setprio {opt("fprio2", 3)}')
left = run_stage(left, [('F',4,[2,3]), ('F',5,[3]), ('E',2,[2,3])], [2, 3])
signal(1)
stamp(5)
poll(GF, 1)
RA = 168
for ks in range(6):
    a(f'ds_read_b64 {vr(RA+4*ks,2)}, v{vFR[2*(ks&1)]} offset:{64*(ks>>1)}')
    a(f'ds_read_b64 {vr(RA+4*ks+2,2)}, v{vFR[2*(ks&1)+1]} offset:{64*(ks>>1)}')
peek(GL)
a(f's_setprio {opt("fprio3", 1)}')
a('s_waitcnt lgkmcnt(0)')
stamp(6)
a('s_waitcnt vmcnt(0)')
check(GL, 1)
f_w1reads0()
for ks in range(6):
    a(f'ds_read_b128 {vr(vRES+4*ks,4)}, v{vAR[ks&1]} offset:{64*(ks>>1)}')
signal(2)
ln(RA, 72, [vL + i for i in range(24)], False)
stamp(8)
XH = {
  ('T1', 0): [lambda: peek(GL)],
  ('preT2', 0): [lambda: check(GL, 3)],
  ('T1', 1): [lambda: stamp(9)],
  ('T2', 1): [lambda: peek(GL)],
  ('preT1', 2): [lambda: check(GL, 4)],
  ('preT1', 4): [lambda: signal(3)],
  ('T1', 4): [lambda: peek(GL)],
  ('preT2', 4): [lambda: check(GL, 5)],
  ('T2', 5): [lambda: peek(GL)],
  ('preT1', 6): [lambda: check(GL, 6), lambda: stamp(10)],
  ('preT1', 8): [lambda: stamp(11)],
  ('T2', 8): [lambda: peek(GF)],
  ('preT1', 9): [lambda: check(GF, 3)],
  ('preT1', 10): [lambda: stamp(12)],
}
FP = opt('fp', 'n')
def fprio(c):
    if FP == 'n': return (0, 0) if c == 0 else None
    if FP == 's': return (1, 1) if c == 0 else None
    return (0, int(FP))
mlp32(XH, fprio)
stamp(13)
P = vY[0]; Q = vK[0]
for mt in range(3):
    for i in range(8):
        a(f'v_cvt_pk_bf16_f32 v{P+8*mt+i}, v{vO+16*mt+2*i}, v{vO+16*mt+2*i+1}')
    a(f'ds_write_b128 v{vSW[0]}, {vr(P+8*mt,4)} offset:{64*mt}')
    a(f'ds_write_b128 v{vSW[1]}, {vr(P+8*mt+4,4)} offset:{64*mt}')
for s in range(2):
    for j in range(3):
        a(f'ds_read_b128 {vr(Q+4*(3*s+j),4)}, v{vSR[j]} offset:{3072*s}')
for s in range(2):
    for j in range(3):
        a(f's_waitcnt lgkmcnt({5-(3*s+j)})')
        a(f'buffer_store_dwordx4 {vr(Q+4*(3*s+j),4)}, v{vL16}, {srd(sOUT)}, s{sO1 if s else sO0} offen offset:{1024*j}{STPOL}')
finish()
emit_slow()

a.label('L_L')
cv = Conv(4)
pstamp(14)
if NX0 < 17: xrows(17 - NX0)
a(f'''
s_mov_b32 exec_hi, -1
s_mul_i32 s{sIMG}, s{sWI}, 3072
s_add_u32 s{sIMG}, s{sIMG}, {S_IL}
s_mov_b32 s{sOB}, {OUTL}
''')
conv_setup1()
TS = int(opt('ts', 3))
for gi in range(TS): tab_reads(gi, cv.ds)
pstamp(10)
a('s_waitcnt vmcnt(9)')
pstamp(11)
bar(3)
mksrd(sW1, 10, 73728); mksrd(sW2, 12, 73728)
a(f'''
v_lshrrev_b32 v{T[0]}, 3, v{vLN}
v_mul_u32_u24 v{T[0]}, 768, v{T[0]}
v_bfe_u32 v{T[1]}, v{vLN}, 4, 1
v_lshlrev_b32 v{T[1]}, 2, v{T[1]}
v_and_b32 v{T[2]}, 7, v{vLN}
v_xor_b32 v{T[1]}, v{T[1]}, v{T[2]}
v_lshl_add_u32 v{T[0]}, v{T[1]}, 4, v{T[0]}
s_and_b32 s{sT1}, s{sWI}, 1
s_lshl_b32 s{sT0}, s{sT1}, 5
v_xor_b32 v{vDW1[0]}, s{sT0}, v{T[0]}
v_xor_b32 v{vDW1[1]}, 32, v{vDW1[0]}
v_mov_b32 v{vDW2[0]}, v{vL16}
v_mov_b32 v{vDW2[1]}, v{vL16}
v_mov_b32 v{vDW2[2]}, v{vL16}
s_mov_b32 exec_lo, 0xffff0000
v_xor_b32 v{vDW2[2]}, 32, v{vL16}
s_mov_b32 exec_lo, 0
s_mov_b32 exec_hi, 0xffff0000
v_xor_b32 v{vDW2[0]}, 32, v{vL16}
s_mov_b32 exec_lo, -1
s_mov_b32 exec_hi, 0
v_xor_b32 v{vDW2[1]}, 32, v{vL16}
s_mov_b64 exec, -1
s_mul_i32 s{sWA}, s{sWI}, {3*6144}
s_mul_i32 s{sWBm}, s{sWI}, 3072
''')
wdma(0, [0, 1, 2]); wdma(1, [0, 1, 2])
for gi in range(TS, 3): tab_reads(gi, cv.ds)
vA0, vA2 = 48, 50
RR = 60
def l_setup():
    a(f'''
    s_add_u32 s{sO0}, s{sO0}, {8*43008}
    v_lshrrev_b32 v{T[4]}, 4, v{vLN}
    v_bfe_u32 v{T[0]}, v{vLN}, 2, 2
    v_and_b32 v{T[2]}, 3, v{vLN}
    v_bfe_u32 v{T[1]}, v{vLN}, 4, 1
    v_lshlrev_b32 v{T[2]}, 3, v{T[2]}
    v_lshl_add_u32 v{T[2]}, v{T[1]}, 5, v{T[2]}
    v_lshl_add_u32 v{T[3]}, v{T[4]}, 3, v{T[0]}
    v_lshl_add_u32 v{T[3]}, v{T[3]}, 7, v{T[2]}
    v_bfe_u32 v{T[1]}, v{vLN}, 3, 1
    v_xor_b32 v{T[1]}, s{sT1}, v{T[1]}
    v_lshl_add_u32 v{T[3]}, v{T[1]}, 6, v{T[3]}
    s_lshr_b32 s{sT2}, s{sWI}, 1
    s_mul_i32 s{sT2}, s{sT2}, {PS}
    s_sub_u32 s{sT3}, {PS}, s{sT2}
    v_add_u32 v{vLW1}, s{sT2}, v{T[3]}
    v_add_u32 v{vLW1+4}, s{sT3}, v{T[3]}
    v_xor_b32 v{vLW1+1}, 32, v{vLW1}
    v_xor_b32 v{vLW1+2}, 64, v{vLW1}
    v_xor_b32 v{vLW1+3}, 0x60, v{vLW1}
    v_xor_b32 v{vLW1+5}, 32, v{vLW1+4}
    v_xor_b32 v{vLW1+6}, 64, v{vLW1+4}
    v_xor_b32 v{vLW1+7}, 0x60, v{vLW1+4}
    v_lshl_add_u32 v{T[3]}, v{T[4]}, 2, v{T[0]}
    v_mul_u32_u24 v{T[3]}, 192, v{T[3]}
    v_add_u32 v{T[3]}, v{T[3]}, v{T[2]}
    s_mul_i32 s{sT1}, s{sT1}, 6144
    s_add_u32 s{sT2}, s{sT2}, 12288
    s_add_u32 s{sT3}, s{sT3}, 12288
    s_add_u32 s{sT0}, s{sT2}, s{sT1}
    v_add_u32 v{vLW2}, s{sT0}, v{T[3]}
    s_add_u32 s{sT0}, s{sT3}, s{sT1}
    v_add_u32 v{vLW2+4}, s{sT0}, v{T[3]}
    s_sub_u32 s{sT1}, 6144, s{sT1}
    s_add_u32 s{sT0}, s{sT2}, s{sT1}
    v_add_u32 v{vLW2+2}, s{sT0}, v{T[3]}
    s_add_u32 s{sT0}, s{sT3}, s{sT1}
    v_add_u32 v{vLW2+6}, s{sT0}, v{T[3]}
    v_xor_b32 v{vLW2+1}, 32, v{vLW2}
    v_xor_b32 v{vLW2+3}, 32, v{vLW2+2}
    v_xor_b32 v{vLW2+5}, 32, v{vLW2+4}
    v_xor_b32 v{vLW2+7}, 32, v{vLW2+6}
    v_xor_b32 v{T[0]}, v{T[4]}, v{T[0]}
    v_and_b32 v{T[3]}, 15, v{vLN}
    v_mul_u32_u24 v{T[3]}, 192, v{T[3]}
    v_lshl_add_u32 v{T[0]}, v{T[0]}, 4, v{T[3]}
    v_add_u32 v{vARL}, {L12}, v{T[0]}
    v_bfe_u32 v{T[1]}, v{vLN}, 1, 1
    v_lshl_add_u32 v{T[0]}, v{T[1]}, 3, v{T[0]}
    v_add_u32 v{vA2}, {L12}, v{T[0]}
    v_xor_b32 v{vA2+1}, 8, v{vA2}
    v_add_u32 v{vA0}, s{sIMG}, v{T[0]}
    v_xor_b32 v{vA0+1}, 8, v{vA0}
    s_mul_i32 s{sT0}, s{sWI}, {XROW}
    v_bfe_u32 v{T[1]}, v{vLN}, 4, 1
    v_lshl_add_u32 v{T[3]}, v{T[1]}, 3, v{T[3]}
    v_lshrrev_b32 v{T[4]}, 5, v{vLN}
    v_bfe_u32 v{T[0]}, v{vLN}, 1, 2
    v_xor_b32 v{T[0]}, v{T[4]}, v{T[0]}
    v_lshl_add_u32 v{T[0]}, v{T[0]}, 4, v{T[3]}
    v_add_u32 v{vSW[0]}, s{sIMG}, v{T[0]}
    v_xor_b32 v{vSW[1]}, 32, v{vSW[0]}
    v_add_u32 v{T[0]}, 2, v{vLN}
    v_bfe_u32 v{T[0]}, v{T[0]}, 2, 2
    v_xor_b32 v{T[0]}, v{T[4]}, v{T[0]}
    v_lshl_add_u32 v{T[0]}, v{T[0]}, 4, v{T[3]}
    s_add_u32 s{sT0}, s{sT0}, {XB + 384}
    v_add_u32 v{vAR[0]}, s{sT0}, v{T[0]}
    v_xor_b32 v{vAR[1]}, 32, v{vAR[0]}
    ''')
conv_setup2()
late_setup()
LSP = opt('lsp', 'conv')
if LSP == 'b1': l_setup()
pstamp(12)
a('s_waitcnt vmcnt(6) lgkmcnt(0)')
pstamp(13)
bar(4)
a(f's_setprio {opt("lprio", 2)}')
RED, LNW = 1, 3
def raw_reads(R, ad, off=0):
    for ks in range(3):
        a(f'ds_read_b64 {vr(R+4*ks,2)}, v{ad} offset:{off+64*ks}')
        a(f'ds_read_b64 {vr(R+4*ks+2,2)}, v{ad+1} offset:{off+64*ks}')
def row_store(O, soff):
    P = vY[0]; Q = vK[0]
    for i in range(12):
        a(f'v_cvt_pk_bf16_f32 v{P+i}, v{O+2*i}, v{O+2*i+1}')
    for i in range(6):
        a(f'ds_write_b64 v{vSW[i&1]}, {vr(P+2*i,2)} offset:{64*(i>>1)}')
    for j in range(3):
        a(f'ds_read_b128 {vr(Q+4*j,4)}, v{vSR[j]}')
    for j in range(3):
        a(f's_waitcnt lgkmcnt({2-j})')
        a(f'buffer_store_dwordx4 {vr(Q+4*j,4)}, v{vL16}, {srd(sOUT)}, s{soff} offen offset:{1024*j}{STPOL}')
LP = opt('lp', 'k')
def lprio(c):
    if LP == 'n': return (0, 0) if c == 0 else None
    if LP == 's': return (1, 1) if c == 0 else None
    if LP == 'k':
        lo, hi = [int(x) for x in opt('lk', '0,6').split(',')]
        if lo <= c < hi: return (0, 1)
        return (0, 0) if c in (0, hi) else None
    return (0, int(LP))
def l_body(h13):
    global cv
    keep = cv
    cv = copy.copy(keep)
    sfx = 'a' if h13 else 'b'
    if h13:
        frags = [('F',4,[4]), ('F',5,[4,5]), ('F',6,[4,5,6]), ('F',7,[5,6]), ('E',4,[4,5]), ('F',8,[6]), ('L',6,[6])]; pairs = [4, 5, 6]
    else:
        frags = [('F',4,[4]), ('F',5,[4,5]), ('F',6,[4,5]), ('F',7,[5]), ('E',4,[4,5])]; pairs = [4, 5]
    its = stage(frags)
    add_pub(its, 0, len(frags), pairs)
    def resr():
        for i in range(6):
            cv.ds(f'ds_read_b64 {vr(RR+2*i,2)}, v{vAR[i&1]} offset:{10*XROW+64*(i>>1)}')
        if h13:
            for i in range(6):
                cv.ds(f'ds_read_b64 {vr(RR+12+2*i,2)}, v{vAR[i&1]} offset:{(14-RED)*XROW+64*(i>>1)}')
    its[-4]['post'] = resr
    def wl():
        a('s_waitcnt vmcnt(0)')
        signal(1, cv.ds)
    its[int(opt('wlpos', 3))]['post'] = wl
    if LSP == 'conv':
        cv.run(its, 0)
        l_setup()
    cv.run(its)
    stamp(6)
    signal(2)
    wdma(0, [3, 4, 5])
    wdma(1, [3, 4, 5])
    for i in range(12):
        a(f'v_lshlrev_b32 v{vO+2*i}, 16, v{RR+i}\nv_and_b32 v{vO+2*i+1}, 0xffff0000, v{RR+i}')
    if h13:
        a(f's_cmp_eq_u32 s{sWI}, {RED}\ns_cbranch_scc1 L_ri{sfx}')
        for i in range(12): a(f'v_mov_b64 {vr(vO+24+2*i,2)}, 0')
        a(f's_branch L_rj{sfx}')
        a.label(f'L_ri{sfx}')
        for i in range(12):
            a(f'v_lshlrev_b32 v{vO+24+2*i}, 16, v{RR+12+i}\nv_and_b32 v{vO+24+2*i+1}, 0xffff0000, v{RR+12+i}')
        a.label(f'L_rj{sfx}')
    stamp(5)
    poll(GL, 2)
    stamp(7)
    RAW = 168
    raw_reads(RAW, vA0)
    l_w1reads(0)
    if h13:
        a(f's_cmp_lg_u32 s{sWI}, {LNW}\ns_cbranch_scc1 L_nl12')
        raw_reads(RAW + 12, vA2)
        a('s_waitcnt lgkmcnt(0)')
        ln(RAW + 12, 72, [RAW + 12 + i for i in range(12)], True)
        for ks in range(3):
            a(f'ds_write_b128 v{vARL}, {vr(RAW+12+4*ks,4)} offset:{64*ks}')
        a.label('L_nl12')
    a('s_waitcnt lgkmcnt(12)')
    ln(RAW, 72, [vL + i for i in range(12)], True)
    landed(0, 3)
    stamp(8)
    def l12r():
        for ks in range(3):
            a(f'ds_read_b128 {vr(vL+12+4*ks,4)}, v{vARL} offset:{64*ks}')
    def pub_rem():
        a(f's_cmp_eq_u32 s{sWI}, {RED}\ns_cbranch_scc1 L_np\ns_mul_i32 s{sT0}, s{sWI}, 6144\nv_add_u32 v{T[0]}, s{sT0}, v{vL16}')
        for i in range(6):
            a(f'ds_write_b128 v{T[0]}, {vr(vO+24+4*i,4)} offset:{S_R + 1024*i}')
        a.label('L_np')
        signal(7)
    H = {
      'start3': [lambda: peek(GF)],
      ('preT1', 0): [lambda: check(GF, 2)],
      ('T1', 0): [lambda: wdma(2, [0, 1, 2]), lambda: wdma(3, [0, 1, 2]), lambda: peek(GL)],
      ('preT2', 0): [lambda: check(GL, 3)],
      ('T2', 0): [lambda: wdma(2, [3, 4, 5])],
      ('T1', 1): [lambda: wdma(3, [3, 4, 5]), lambda: stamp(9)] + ([l12r] if h13 else []),
      ('preT2', 1): [lambda: landed(6, 4)],
      ('T2', 1): [lambda: wdma(4, [0, 1, 2]), lambda: peek(GL)],
      ('preT1', 2): [lambda: check(GL, 4)],
      ('T1', 2): [lambda: wdma(4, [3, 4, 5])],
      ('T2', 2): [lambda: wdma(5, [0, 1, 2])],
      ('preT1', 3): [lambda: landed(9, 5)],
      ('T1', 3): [lambda: wdma(5, [3, 4, 5])],
      ('T1', 4): [lambda: peek(GL)],
      ('preT2', 4): [lambda: check(GL, 5), lambda: landed(0, 6)],
      ('T2', 5): [lambda: peek(GL)],
      ('preT1', 6): [lambda: check(GL, 6), lambda: stamp(10)],
      ('preT1', 8): [lambda: stamp(11)],
      ('preT1', 10): [lambda: stamp(12)],
    }
    if h13:
        H[('T2', 9)] = [lambda: peek(GF)]
        H[('preT1', 10)] = H[('preT1', 10)] + [lambda: check(GF, 3), pub_rem]
    mlp16([3, 5, 8] if h13 else [], H, lprio)
    stamp(13)
    row_store(vO, sO0)
    if h13:
        a(f's_cmp_lg_u32 s{sWI}, {RED}\ns_cbranch_scc1 L_fin{sfx}')
        poll(GL, 7)
        others = [w for w in range(4) if w != RED]
        for n, w in enumerate(others):
            for i in range(6):
                a(f'ds_read_b128 {vr(144+24*n+4*i,4)}, v{vL16} offset:{S_R + 6144*w + 1024*i}')
        for n in range(3):
            a(f's_waitcnt lgkmcnt({12 - 6*n})')
            for i in range(12):
                a(f'v_pk_add_f32 {vr(vO+24+2*i,2)}, {vr(vO+24+2*i,2)}, {vr(144+24*n+2*i,2)}')
        a(f's_add_u32 s{sO1}, s{sO0}, {(4-RED)*43008}')
        row_store(vO + 24, sO1)
        a.label(f'L_fin{sfx}')
    finish()
    emit_slow()
    cv = keep
a(f's_cmp_lg_u32 s{sH13}, 13\ns_cbranch_scc1 L_L12')
l_body(True)
a.label('L_L12')
l_body(False)
a.label('L_end')
a('s_endpgm')

body = a.finalize()
hdr = open('cdna_kernels/' + NAME + '.s.ref').read().split('\n')
out = []
for l in hdr:
    if l.startswith('; @launch'):
        out.append('; @launch grid=(256,1,1) block=(512,1,1) lds=163840')
    elif l.startswith(';'):
        out.append(l)
    else:
        break
out.append('.amdgcn_target "amdgcn-amd-amdhsa--gfx950"')
out.append('.text')
out.append(f'.globl {NAME}_kernel')
out.append('.p2align 8')
out.append(f'.type {NAME}_kernel,@function')
out.append(f'{NAME}_kernel:')
for l in body:
    out.append(l if l.endswith(':') else '    ' + l)
out.append(f'''.section .rodata,"a"
.p2align 6
.amdhsa_kernel {NAME}_kernel
  .amdhsa_next_free_vgpr 256
  .amdhsa_next_free_sgpr 102
  .amdhsa_accum_offset 256
  .amdhsa_group_segment_fixed_size 0
  .amdhsa_kernarg_size 64
  .amdhsa_user_sgpr_count 2
  .amdhsa_user_sgpr_kernarg_segment_ptr 1
  .amdhsa_system_sgpr_workgroup_id_x 1
.end_amdhsa_kernel''')
print('\n'.join(out))
```

```python
import sys, struct, math, copy
from asmlib import Asm

NAME = "standalone__modern_conv_block_replknet__vision"
def fbits(x): return struct.unpack('<I', struct.pack('<f', x))[0]
def opt(name, default=None):
    for x in sys.argv:
        if x == '--' + name: return True
        if x.startswith('--' + name + '='): return x.split('=', 1)[1]
    return default
STAMP = opt('stamp'); CYC = opt('cyc'); PRO = opt('pro')
STPOL = ' ' + opt('stpol', 'sc1').replace('_', ' ') if opt('stpol', 'sc1') != 'none' else ''
FOLD = opt('fold', '1') == '1'
GL, GF = (1, 0) if FOLD else (0, 1)

XROW = 3840
XB = 73728
PS = 24576
TB, TP = 139264, 976
OUTF, OUTL = 49152, 147456
L12 = OUTL + 4*3072
FL = 163584
S_IF, S_R, S_IL = 0, 24576, OUTL
MARK = 0x40000000
XBYTES = 224 * 224 * 192

k0 = math.sqrt(2.0 / math.pi); k1 = 0.044715
c0 = 2 * k0 / math.log(2.0); c1 = c0 * k1
ga = c1 ** (1.0 / 3.0)
gc = -c0 / ga

sX, sDL, sDS, sW1, sW2, sOUT = 16, 20, 24, 28, 32, 36
sWV, sY0, sX0, sT0, sT1, sT2, sT3 = 40, 41, 42, 43, 44, 45, 46
sH13, sWI = 47, 3
sCA, sCC = 48, 50
sWS = 52
sXM, sIMG, sOB = 56, 57, 62
sWA, sWBm = 58, 59
sO0, sO1 = 60, 61
sST = 64
NST = 16
def srd(b): return f's[{b}:{b+3}]'
vO, vL, vY, vK, vG, vF1, vF2 = 0, 48, [72, 88], [104, 120], 136, 144, 168
vRES, vID = 204, 228
vAW1 = [236, 237, 245, 249]; vAW2 = 238
vLW1 = 204; vLW2 = 212
vDW1 = [220, 221]; vDW2 = [222, 223, 224]
vARL = 225
vSW = [239, 240]; vSR = [241, 242, 243]
vL16 = 244
vFA, vFW, vFP = 246, 247, 248
T = [250, 251, 252, 253, 254]
vLN = 255
vXO = 203; vPF = 54
vAF, vAE, vAO, vIDX, vTF0, vTF1, vTE, vAR, vAE16, vAO1 = 192, 193, 194, 195, 196, 197, 198, [199, 200], 201, 202
vACC, vAFR, vB = 0, 84, 144
def vr(b, n): return f'v[{b}:{b+n-1}]'

a = Asm()
def _st(i): a(f'{"s_memtime" if CYC else "s_memrealtime"} s[{sST+2*i}:{sST+2*i+1}]')
def pstamp(i):
    if STAMP and PRO and not opt('lc'): _st(i)
def stamp(i):
    if STAMP and not (PRO and 9 <= i <= 14): _st(i)
def mksrd(b, lo, n):
    a(f's_mov_b64 s[{b}:{b+1}], s[{lo}:{lo+1}]\ns_mov_b32 s{b+2}, {n}\ns_mov_b32 s{b+3}, 0x00020000')
def bar(i=None):
    a('s_barrier')
    if i is not None: stamp(i)
def setexec(lo, hi):
    a(f's_mov_b32 exec_lo, {lo:#x}\ns_mov_b32 exec_hi, {hi:#x}')

nlab = [0]; slow = []
def guard():
    if opt('safe'): a('s_sub_u32 s98, s98, 1\ns_cbranch_scc1 L_end')
def signal(v, emit=None):
    a(f'v_mov_b32 v{T[4]}, {v}')
    (emit or a)(f'ds_write_b32 v{vFW}, v{T[4]}')
def poll(grp, v):
    lab = f'L_poll{nlab[0]}'; nlab[0] += 1
    a.label(lab)
    guard()
    a(f'ds_read_b32 v{vFP}, v{vFA} offset:{16*grp}\ns_waitcnt lgkmcnt(0)\nv_cmp_gt_u32 vcc, {v}, v{vFP}\ns_cbranch_vccnz {lab}')
def peek(grp): a(f'ds_read_b32 v{vFP}, v{vFA} offset:{16*grp}')
def check(grp, v):
    n = nlab[0]; nlab[0] += 1
    a(f'v_cmp_gt_u32 vcc, {v}, v{vFP}\ns_cbranch_vccnz L_slow{n}')
    a.label(f'L_back{n}')
    slow.append((n, grp, v))
def emit_slow():
    for n, grp, v in slow:
        a.label(f'L_slow{n}')
        guard()
        a(f'ds_read_b32 v{vFP}, v{vFA} offset:{16*grp}\ns_waitcnt lgkmcnt(0)\nv_cmp_gt_u32 vcc, {v}, v{vFP}\ns_cbranch_vccnz L_slow{n}\ns_branch L_back{n}')
    slow.clear()
def landed(n, v):
    a(f's_waitcnt vmcnt({n})'); signal(v)

def wdma(p, parts=range(6)):
    for i in parts:
        if i < 3:
            a(f'''
            s_add_u32 m0, s{sWBm}, {PS*p + 1024*i}
            s_add_u32 s{sT0}, s{sWA}, {6144*i + 128*p}
            buffer_load_dwordx4 v{vDW1[i & 1]}, {srd(sW1)}, s{sT0} offen lds
            ''')
        else:
            if i == 3 or i - 1 not in parts:
                a(f's_add_u32 m0, s{sWBm}, {PS*p + 12288}\ns_add_u32 s{sT0}, s{sWBm}, {12288*p}')
            a(f'buffer_load_dwordx4 v{vDW2[i-3]}, {srd(sW2)}, s{sT0} offen offset:{1024*(i-3)} lds')

def ln(raw, U, dst, rows16, mid=None, mid2=None):
    n = len(dst)
    S, Q, ONE = T[1], T[3], T[4]
    sc, bi = T[0], T[2]
    a(f'v_mov_b32 v{ONE}, 0x3f803f80')
    un = []
    for i in range(n):
        un.append(f'v_lshlrev_b32 v{U+2*i}, 16, v{raw+i}')
        un.append(f'v_and_b32 v{U+2*i+1}, 0xffff0000, v{raw+i}')
    while len(un) > 8: a(un.pop(0))
    for i in range(n):
        a(f'v_dot2_f32_bf16 v{S}, v{raw+i}, v{ONE}, {"0" if i == 0 else f"v{S}"}')
        a(f'v_dot2_f32_bf16 v{Q}, v{raw+i}, v{raw+i}, {"0" if i == 0 else f"v{Q}"}')
    def fill(k):
        for _ in range(k):
            if un: a(un.pop(0))
    fill(3)
    a(f'v_permlane32_swap_b32 v{S}, v{Q}')
    a(f'v_add_f32 v{S}, v{S}, v{Q}')
    if rows16:
        a(f'v_mov_b32 v{Q}, v{S}')
        fill(2)
        a(f'v_permlane16_swap_b32 v{S}, v{Q}')
        a(f'v_add_f32 v{S}, v{S}, v{Q}')
    a(f'v_mul_f32 v{S}, {fbits(1.0/96):#x}, v{S}')
    a(f'v_mov_b32 v{Q}, v{S}')
    fill(2)
    a(f'v_permlane32_swap_b32 v{S}, v{Q}')
    a(f'''
    v_fma_f32 v{Q}, -v{S}, v{S}, v{Q}
    v_max_f32 v{Q}, 0, v{Q}
    v_add_f32 v{Q}, {fbits(1e-5):#x}, v{Q}
    v_rsq_f32 v{Q}, v{Q}
    ''')
    fill(1)
    a(f'v_mul_f32 v{sc}, {fbits(ga):#x}, v{Q}')
    a(f'v_mul_f32 v{bi}, -v{S}, v{sc}')
    fill(1000)
    if mid: mid()
    for i in range(n):
        if opt('lnplain'):
            a(f'v_fma_f32 v{U+2*i}, v{U+2*i}, v{sc}, v{bi}\nv_fma_f32 v{U+2*i+1}, v{U+2*i+1}, v{sc}, v{bi}')
        else:
            a(f'v_pk_fma_f32 {vr(U+2*i,2)}, {vr(U+2*i,2)}, {vr(sc,2)}, {vr(bi,2)} op_sel_hi:[1,0,0]')
    if mid2: mid2()
    for i in range(n):
        a(f'v_cvt_pk_bf16_f32 v{dst[i]}, v{U+2*i}, v{U+2*i+1}')

def pk_t(Y, K, n):
    return [f'v_pk_fma_f32 {vr(K+2*i,2)}, {vr(Y+2*i,2)}, {vr(Y+2*i,2)}, s[{sCC}:{sCC+1}] neg_lo:[1,0,0] neg_hi:[1,0,0]' for i in range(n//2)] + pk_m(Y, K, n)
def pk_m(Y, K, n): return [f'v_pk_mul_f32 {vr(K+2*i,2)}, {vr(Y+2*i,2)}, {vr(K+2*i,2)}' for i in range(n//2)]
def pk_d(K, n): return [f'v_pk_fma_f32 {vr(K+2*i,2)}, {vr(K+2*i,2)}, s[{sCA}:{sCA+1}], s[{sCA}:{sCA+1}]' for i in range(n//2)]
def emit(l):
    for t in l: a(t)

def mlp32(hooks, prio):
    N = 12
    moved = {'w1': False, 'w2': False}
    def move(kind, c):
        if c >= 6 and not moved[kind]:
            for r in (vAW1 if kind == 'w1' else [vAW2]): a(f'v_add_u32 v{r}, {3*PS}, v{r}')
            moved[kind] = True
    def w1reads(c):
        for ks in range(6):
            off = ((c >> 1) % 3) * PS + (ks >> 1) * 4096 + (ks & 1) * 1024
            r = vAW1[(c & 1) + 2 * (ks & 1)]
            a(f'ds_read_b64_tr_b16 {vr(vF1+4*ks,2)}, v{r} offset:{off}')
            a(f'ds_read_b64_tr_b16 {vr(vF1+4*ks+2,2)}, v{r} offset:{off+512}')
    def w2reads(c):
        for i in range(6):
            ks2, mt = i // 3, i % 3
            off = ((c >> 1) % 3) * PS + (c & 1) * 6144 + ks2 * 3072 + mt * 64
            a(f'ds_read_b64_tr_b16 {vr(vF2+4*i,2)}, v{vAW2} offset:{off}')
            a(f'ds_read_b64_tr_b16 {vr(vF2+4*i+2,2)}, v{vAW2} offset:{off+1536}')
    def g1(c, ks):
        Y = vY[c & 1]
        a(f'v_mfma_f32_32x32x16_bf16 {vr(Y,16)}, {vr(vF1+4*ks,4)}, {vr(vL+4*ks,4)}, {"0" if ks == 0 else vr(Y,16)}')
    def g2(i):
        ks2, mt = i // 3, i % 3
        a(f'v_mfma_f32_32x32x16_bf16 {vr(vO+16*mt,16)}, {vr(vF2+4*i,4)}, {vr(vG+4*ks2,4)}, {vr(vO+16*mt,16)}')
    def resm(ks):
        j, mt = ks // 3, ks % 3
        a(f'v_mfma_f32_32x32x16_bf16 {vr(vO+16*mt,16)}, {vr(vID+4*j,4)}, {vr(vRES+4*(2*mt+j),4)}, {"0" if j == 0 else vr(vO+16*mt,16)}')
    def hook(k):
        for f in hooks.get(k, []): f()
    def pr(c, v):
        if prio(c) is not None: a(f's_setprio {prio(c)[v]}')
    hook('pre')
    a('s_waitcnt lgkmcnt(0)')
    for ks in range(6): g1(0, ks)
    w1reads(1)
    hook('start3')
    for c in range(N + 1):
        Y, K = vY[c & 1], vK[c & 1]
        Yp, Kp = vY[(c - 1) & 1], vK[(c - 1) & 1]
        pr(c, 1)
        if c >= 1: emit(pk_m(Yp, Kp, 16))
        if c < N: emit(pk_t(Y, K, 16))
        cv = [f'v_cvt_pk_bf16_f32 v{vG+i}, v{Kp+2*i}, v{Kp+2*i+1}' for i in range(8)] if c >= 1 else []
        if c == N:
            emit(cv)
            a('s_waitcnt lgkmcnt(0)')
            for i in (0, 3, 1, 4, 2, 5): g2(i)
            break
        ex = [f'v_exp_f32 v{K+i}, v{K+i}' for i in range(16)]
        rc = [f'v_rcp_f32 v{K+i}, v{K+i}' for i in range(16)]
        last = c + 1 >= N
        if c + 2 < N: move('w1', c + 2)
        move('w2', c)
        if c == 0:
            gaps = [ex[0:3], ex[3:6], ex[6:9], ex[9:12], ex[12:15], ex[15:16]]
            a('s_waitcnt lgkmcnt(0)')
            for j in range(6):
                g1(1, j); emit(gaps[j])
        elif not last:
            gaps = [cv[0:4] + ex[0:1], cv[4:8] + ex[1:2], ex[2:5], ex[5:8], ex[8:11], ex[11:14], ex[14:16]]
            for j in range(7):
                if j < 6: g1(c + 1, j)
                else: g2(0)
                if j == 5: a('s_waitcnt lgkmcnt(0)')
                emit(gaps[j])
        else:
            emit(cv); emit(ex[0:4])
            a('s_waitcnt lgkmcnt(0)')
            gaps = [ex[4:8], ex[8:12], ex[12:16]]
            for j in range(3):
                g2(j); emit(gaps[j])
        hook(('preT1', c))
        pr(c, 0)
        if c + 2 < N: w1reads(c + 2)
        hook(('T1', c))
        pr(c, 1)
        emit(pk_d(K, 16))
        if c == 0:
            gp = [rc[0:3], rc[3:6], rc[6:9], rc[9:12], rc[12:14], rc[14:16]]
            for j in range(6):
                resm(j)
                if j == 5: a('s_waitcnt lgkmcnt(0)')
                emit(gp[j])
        elif not last:
            gp = [rc[0:3], rc[3:6], rc[6:9], rc[9:12], rc[12:16]]
            for j in range(5):
                g2(j + 1)
                if j == 4: a('s_waitcnt lgkmcnt(0)')
                emit(gp[j])
        else:
            gp = [rc[0:3], rc[3:6], rc[6:16]]
            for j in range(3):
                g2(j + 3)
                if j == 2: w2reads(c)
                emit(gp[j])
        hook(('preT2', c))
        pr(c, 0)
        if not last: w2reads(c)
        hook(('T2', c))
    return w1reads

def f_w1reads0():
    for ks in range(6):
        off = (ks >> 1) * 4096 + (ks & 1) * 1024
        r = vAW1[2 * (ks & 1)]
        a(f'ds_read_b64_tr_b16 {vr(vF1+4*ks,2)}, v{r} offset:{off}')
        a(f'ds_read_b64_tr_b16 {vr(vF1+4*ks+2,2)}, v{r} offset:{off+512}')

def l_w1reads(s):
    for i in range(6):
        mt2, ks3 = i // 3, i % 3
        off = ((s >> 2) & 1) * 2 * PS + ks3 * 4096
        r = vLW1 + mt2 + 2 * (s & 3)
        a(f'ds_read_b64_tr_b16 {vr(vF1+4*i,2)}, v{r} offset:{off}')
        a(f'ds_read_b64_tr_b16 {vr(vF1+4*i+2,2)}, v{r} offset:{off+512}')

def mlp16(doubles, hooks, prio):
    N = 12
    def wid(s): return 0 if (s < 0 or s >= N) else (2 if s in doubles else 1)
    def move(base):
        for r in range(8): a(f'v_add_u32 v{base+r}, {4*PS}, v{base+r}')
    def w2reads(s):
        for i in range(6):
            off = ((s >> 2) & 1) * 2 * PS + 64 * (i >> 1)
            r = vLW2 + (i & 1) + 2 * (s & 3)
            a(f'ds_read_b64_tr_b16 {vr(vF2+4*i,2)}, v{r} offset:{off}')
            a(f'ds_read_b64_tr_b16 {vr(vF2+4*i+2,2)}, v{r} offset:{off+3072}')
    def m1(s):
        l = []
        for t in range(wid(s)):
            for j in range(6):
                mt2, ks3 = j & 1, j >> 1
                D = vY[s & 1] + 8 * t + 4 * mt2
                l.append(f'v_mfma_f32_16x16x32_bf16 {vr(D,4)}, {vr(vF1+4*(mt2*3+ks3),4)}, {vr(vL+12*t+4*ks3,4)}, {"0" if ks3 == 0 else vr(D,4)}')
        return l
    def m2(s):
        return [f'v_mfma_f32_16x16x32_bf16 {vr(vO+24*t+4*i,4)}, {vr(vF2+4*i,4)}, {vr(vG+4*t,4)}, {vr(vO+24*t+4*i,4)}' for t in range(wid(s)) for i in range(6)]
    def weave(ms, fl):
        fl = list(fl)
        if not ms:
            emit(fl); a('s_waitcnt lgkmcnt(0)'); return
        for j, m in enumerate(ms):
            a(m)
            if j == len(ms) - 1: a('s_waitcnt lgkmcnt(0)')
            k = -(-len(fl) // (len(ms) - j))
            emit(fl[:k]); fl = fl[k:]
    def hook(k):
        for f in hooks.get(k, []): f()
    def pr(c, v):
        if prio(c) is not None: a(f's_setprio {prio(c)[v]}')
    hook('pre')
    a('s_waitcnt lgkmcnt(0)')
    emit(m1(0))
    l_w1reads(1)
    hook('start3')
    for s in range(N + 1):
        Y, K = vY[s & 1], vK[s & 1]
        Yp, Kp = vY[(s - 1) & 1], vK[(s - 1) & 1]
        n, np_ = 8 * wid(s), 8 * wid(s - 1)
        pr(s, 1)
        emit(pk_m(Yp, Kp, np_))
        emit(pk_t(Y, K, n))
        cv = [f'v_cvt_pk_bf16_f32 v{vG+i}, v{Kp+2*i}, v{Kp+2*i+1}' for i in range(np_ // 2)]
        if s == N:
            emit(cv)
            a('s_waitcnt lgkmcnt(0)')
            emit(m2(N - 1))
            break
        ex = [f'v_exp_f32 v{K+i}, v{K+i}' for i in range(n)]
        rc = [f'v_rcp_f32 v{K+i}, v{K+i}' for i in range(n)]
        if s + 2 == 8: move(vLW1)
        if s == 8: move(vLW2)
        if s == 0: a('s_waitcnt lgkmcnt(0)')
        weave(m1(s + 1), cv + ex)
        hook(('preT1', s))
        pr(s, 0)
        if s + 2 < N: l_w1reads(s + 2)
        hook(('T1', s))
        pr(s, 1)
        emit(pk_d(K, n))
        weave(m2(s - 1), rc)
        hook(('preT2', s))
        pr(s, 0)
        w2reads(s)
        hook(('T2', s))

def finish():
    if STAMP:
        stamp(14)
        a('s_waitcnt vmcnt(0)')
        stamp(15)
        a('s_waitcnt lgkmcnt(0)')
        if opt('dbg'):
            n = nlab[0]; nlab[0] += 1
            a(f's_cmp_lg_u32 s2, {opt("dbg")}\ns_cbranch_scc1 L_nd{n}\ns_cmp_lg_u32 s{sWI}, 0\ns_cbranch_scc1 L_nd{n}')
            a(f's_lshl_b32 s{sT0}, s{sWV}, 3\nv_mov_b32 v{T[1]}, s{sT0}\ns_mov_b64 exec, 1')
            for k, i in enumerate((1, 2, 3, 4, 8, 10, 13, 15)):
                a(f's_sub_u32 s{sT0}, s{sST+2*i}, s{sST}\nv_mov_b32 v{T[0]}, s{sT0}')
                a(f'buffer_store_dword v{T[0]}, v{T[1]}, {srd(sWS)}, 0 offen offset:{4*k}')
            a.label(f'L_nd{n}')
            a('s_endpgm')
            return
        a(f'''
        s_lshl_b32 s{sT0}, s2, 3
        s_add_u32 s{sT0}, s{sT0}, s{sWV}
        s_lshl_b32 s{sT0}, s{sT0}, 6
        v_mov_b32 v{T[1]}, s{sT0}
        s_mov_b64 exec, 1
        ''')
        for i in range(NST):
            a(f'v_mov_b32 v{T[0]}, s{sST+2*i}')
            a(f'buffer_store_dword v{T[0]}, v{T[1]}, {srd(sWS)}, 0 offen offset:{4*i}')
    a('s_endpgm')

def tab_reads(gi, em):
    A = vAFR + 20 * gi; o = 64 * gi
    for d in range(3):
        em(f'ds_read_b64_tr_b16 {vr(A+4*d,2)}, v{vTF0} offset:{o + 2*d*TP}')
        em(f'ds_read_b64_tr_b16 {vr(A+4*d+2,2)}, v{vTF1} offset:{o + 2*d*TP}')
    for par in range(2):
        for pp in range(2):
            em(f'ds_read_b64_tr_b16 {vr(A+12+4*par+2*pp,2)}, v{vTE} offset:{o + (pp - 2*par + 2)*TP}')
RING = 6
class Conv:
    def __init__(self, k0): self.n = 0; self.slot = 0; self.k0 = k0
    def acc(self, gi, k): return vACC + 16 * gi + 4 * (k - self.k0)
    def ds(self, t): a(t); self.n += 1; return self.n
    def wait(self, seq): a(f's_waitcnt lgkmcnt({min(15, self.n - seq)})')
    def reads(self, it):
        B = it['B']; go = 64 * it['gi']; idx = it['idx']; kind = it['kind']
        if kind == 'F':
            r0, r1 = 2 * idx, min(2 * idx + 1, 16)
            return [f'ds_read_b128 {vr(B,4)}, v{vAF} offset:{r0*XROW+go}', f'ds_read_b128 {vr(B+4,4)}, v{vAF} offset:{r1*XROW+go}']
        if kind == 'E':
            return [f'ds_read_b128 {vr(B,4)}, v{vAE} offset:{2*idx*XROW+go}', f'ds_read_b128 {vr(B+4,4)}, v{vAE} offset:{(2*idx+4)*XROW+go}']
        return [f'ds_read_b128 {vr(B,4)}, v{vAE} offset:{12*XROW+go}', f'ds_read_b128 {vr(B+4,4)}, v{vAE16} offset:{16*XROW+go}']
    def cvt(self, lst):
        for gi, k in lst:
            A = self.acc(gi, k)
            a(f'v_cvt_pk_bf16_f32 v{A}, v{A}, v{A+1}\nv_cvt_pk_bf16_f32 v{A+1}, v{A+2}, v{A+3}')
    def write(self, lst):
        for gi, k in lst:
            A = self.acc(gi, k)
            if k == 6: setexec(0xffff, 0xffff)
            self.ds(f'ds_write_b64 v{vAO}, {vr(A,2)} offset:{(k-self.k0)*6144+64*gi}')
            if k == 6: a('s_mov_b64 exec, -1')
    def run(self, items, stop_at=None):
        D = RING - 1
        nxt = 0
        while nxt < len(items) and 'seq' in items[nxt]: nxt += 1
        def start(j):
            items[j]['B'] = vB + 8 * (self.slot % RING); self.slot += 1
            return self.reads(items[j])
        while nxt < min(D, len(items)):
            for t in start(nxt): items[nxt]['seq'] = self.ds(t)
            nxt += 1
        end = len(items) if stop_at is None else stop_at
        for i in range(end):
            it = items[i]
            self.wait(it['seq'])
            pend = start(nxt) if nxt < len(items) else []
            A = vAFR + 20 * it['gi']
            had = bool(pend)
            for k in it['outs']:
                fr = (it['idx'] - k) if it['kind'] == 'F' else 3 + (k - it['idx'])
                a(f'v_smfmac_f32_16x16x64_bf16 {vr(self.acc(it["gi"], k),4)}, {vr(A+4*fr,4)}, {vr(it["B"],8)}, v{vIDX}')
                if pend: items[nxt]['seq'] = self.ds(pend.pop(0))
            for t in pend: items[nxt]['seq'] = self.ds(t)
            if had: nxt += 1
            if it.get('pub'):
                self.cvt(it['pub'])
                if not it.get('nowrite'): self.write(it['pub'])
            if it.get('post'): it['post']()
        return items[end:]
def stage(frags): return [dict(gi=gi, kind=k, idx=i, outs=list(o)) for gi in range(3) for (k, i, o) in frags]
def add_pub(items, base, nfr, pairs, nowrite=False):
    for gi in range(3):
        j = min(base + nfr * (gi + 1), len(items) - 1)
        items[j].setdefault('pub', []).extend((gi, k) for k in pairs)
        items[j]['nowrite'] = nowrite

def late_setup():
    mksrd(sOUT, 14, XBYTES)
    if opt('safe'): a('s_mov_b32 s98, 20000')
    a(f'''
    s_mov_b32 s{sCA}, {fbits(ga):#x}
    s_mov_b32 s{sCA+1}, {fbits(ga):#x}
    s_mov_b32 s{sCC}, {fbits(gc):#x}
    s_mov_b32 s{sCC+1}, {fbits(gc):#x}
    s_add_u32 s{sT0}, s{sWI}, s{sY0}
    s_mul_i32 s{sT0}, s{sT0}, 224
    s_add_u32 s{sT0}, s{sT0}, s{sX0}
    s_mul_i32 s{sO0}, s{sT0}, 192
    ''')
    if STAMP:
        a(f's_mov_b32 s{sWS+2}, {256 if opt("dbg") else 0x10000000}\ns_mov_b32 s{sWS+3}, 0x00020000')
        for i in (7,): a(f's_mov_b32 s{sST+2*i}, 0')
    for j in range(3):
        a(f'''
        v_add_u32 v{T[0]}, {64*j}, v{vLN}
        v_mul_u32_u24 v{T[2]}, 171, v{T[0]}
        v_bfe_u32 v{T[2]}, v{T[2]}, 12, 2
        v_xor_b32 v{T[0]}, v{T[0]}, v{T[2]}
        v_lshl_add_u32 v{vSR[j]}, v{T[0]}, 4, s{sIMG}
        ''')

def conv_setup1():
    a(f'''
v_and_b32 v{T[0]}, 3, v{vLN}
v_mul_u32_u24 v{vIDX}, 0x5555, v{T[0]}
s_lshl_b32 s{sT2}, s{sWI}, 4
s_add_u32 s{sT2}, s{sT2}, {TB}
v_bfe_u32 v{T[1]}, v{vLN}, 1, 1
v_lshl_add_u32 v{T[4]}, v{T[1]}, 3, s{sT2}
v_and_b32 v{T[0]}, 1, v{vLN}
v_lshrrev_b32 v{T[1]}, 5, v{vLN}
v_mul_u32_u24 v{vTE}, {TP}, v{T[1]}
v_sub_u32 v{T[1]}, v{T[1]}, v{T[0]}
v_bfe_u32 v{T[2]}, v{vLN}, 2, 1
v_mul_u32_u24 v{T[2]}, 7, v{T[2]}
v_sub_u32 v{T[1]}, v{T[1]}, v{T[2]}
v_add_u32 v{T[1]}, 8, v{T[1]}
v_mul_u32_u24 v{T[1]}, {TP}, v{T[1]}
v_bfe_u32 v{T[2]}, v{vLN}, 4, 1
v_mul_u32_u24 v{T[2]}, 192, v{T[2]}
v_add3_u32 v{T[3]}, v{T[1]}, v{T[2]}, v{T[4]}
v_lshrrev_b32 v{T[1]}, 4, v{vLN}
v_lshlrev_b32 v{T[2]}, 1, v{T[1]}
v_sub_u32 v{T[2]}, v{T[2]}, v{T[0]}
v_add_u32 v{T[2]}, 6, v{T[2]}
v_mul_u32_u24 v{T[2]}, {TP}, v{T[2]}
v_add_u32 v{vTF0}, s{sT2}, v{vTE}
v_add_u32 v{vTF1}, {TP}, v{vTF0}
v_mov_b32 v{vTE}, s{sT2}
s_mov_b32 exec_lo, 0xcc33cc33
s_mov_b32 exec_hi, 0xcc33cc33
v_mov_b32 v{vTF0}, v{T[3]}
v_add_u32 v{vTF1}, 384, v{T[3]}
s_mov_b32 exec_lo, 0x0c030c03
s_mov_b32 exec_hi, 0x0c030c03
v_add_u32 v{T[2]}, 768, v{T[2]}
v_add_u32 v{vTE}, v{T[2]}, v{T[4]}
s_mov_b64 exec, -1
v_and_b32 v{T[0]}, 15, v{vLN}
v_bfe_u32 v{T[2]}, v{vLN}, 4, 1
v_lshrrev_b32 v{T[3]}, 5, v{vLN}
v_lshl_add_u32 v{T[2]}, v{T[2]}, 1, v{T[3]}
v_add_u32 v{T[2]}, v{T[0]}, v{T[2]}
v_bfe_u32 v{T[3]}, v{T[2]}, 2, 2
v_xor_b32 v{T[3]}, s{sWI}, v{T[3]}
v_mul_u32_u24 v{T[2]}, 192, v{T[2]}
v_lshl_add_u32 v{vAF}, v{T[3]}, 4, v{T[2]}
v_add_u32 v{vAF}, {XB}, v{vAF}
''')
def conv_setup2(em=None):
    for i in range(24): a(f'v_mov_b64 {vr(vACC+2*i,2)}, 0')
    a(f'''
v_and_b32 v{T[0]}, 3, v{vLN}
v_lshlrev_b32 v{vFA}, 2, v{T[0]}
v_add_u32 v{vFA}, {FL}, v{vFA}
s_lshl_b32 s{sT0}, s{sWV}, 2
s_add_u32 s{sT0}, s{sT0}, {FL}
v_mov_b32 v{vFW}, s{sT0}
v_mov_b32 v{vFP}, 0
ds_write_b32 v{vFW}, v{vFP}
v_and_b32 v{T[0]}, 15, v{vLN}
v_lshrrev_b32 v{T[1]}, 4, v{vLN}
v_add_u32 v{T[2]}, 4, v{T[0]}
v_bfe_u32 v{T[3]}, v{T[2]}, 2, 2
v_xor_b32 v{T[3]}, s{sWI}, v{T[3]}
v_mul_u32_u24 v{T[2]}, 192, v{T[2]}
v_lshl_add_u32 v{vAE}, v{T[3]}, 4, v{T[2]}
v_add_u32 v{vAE16}, {XB}, v{vAE}
v_mul_u32_u24 v{T[2]}, {XROW}, v{T[1]}
v_add_u32 v{vAE}, v{vAE16}, v{T[2]}
v_bfe_u32 v{T[3]}, v{T[0]}, 2, 2
v_xor_b32 v{T[4]}, s{sWI}, v{T[3]}
v_mul_u32_u24 v{T[2]}, 192, v{T[0]}
v_lshl_add_u32 v{T[2]}, v{T[4]}, 4, v{T[2]}
v_bfe_u32 v{T[1]}, v{vLN}, 4, 1
v_mul_u32_u24 v{T[1]}, 3072, v{T[1]}
v_lshrrev_b32 v{T[3]}, 5, v{vLN}
v_bfe_u32 v{T[4]}, v{vLN}, 1, 1
v_xor_b32 v{T[3]}, v{T[3]}, v{T[4]}
v_lshl_add_u32 v{T[1]}, v{T[3]}, 3, v{T[1]}
v_add3_u32 v{vAO}, v{T[2]}, v{T[1]}, s{sOB}
''')

def dma_setup():
    mksrd(sW1, 10, 73728); mksrd(sW2, 12, 73728)
    a(f'''
    v_lshrrev_b32 v{T[0]}, 3, v{vLN}
    v_mul_u32_u24 v{T[0]}, 768, v{T[0]}
    v_bfe_u32 v{T[1]}, v{vLN}, 4, 1
    v_lshlrev_b32 v{T[1]}, 2, v{T[1]}
    v_and_b32 v{T[2]}, 7, v{vLN}
    v_xor_b32 v{T[1]}, v{T[1]}, v{T[2]}
    v_lshl_add_u32 v{T[0]}, v{T[1]}, 4, v{T[0]}
    s_and_b32 s{sT1}, s{sWI}, 1
    s_lshl_b32 s{sT0}, s{sT1}, 5
    v_xor_b32 v{vDW1[0]}, s{sT0}, v{T[0]}
    v_xor_b32 v{vDW1[1]}, 32, v{vDW1[0]}
    v_mov_b32 v{vDW2[0]}, v{vL16}
    v_mov_b32 v{vDW2[1]}, v{vL16}
    v_mov_b32 v{vDW2[2]}, v{vL16}
    s_mov_b32 exec_lo, 0xffff0000
    v_xor_b32 v{vDW2[2]}, 32, v{vL16}
    s_mov_b32 exec_lo, 0
    s_mov_b32 exec_hi, 0xffff0000
    v_xor_b32 v{vDW2[0]}, 32, v{vL16}
    s_mov_b32 exec_lo, -1
    s_mov_b32 exec_hi, 0
    v_xor_b32 v{vDW2[1]}, 32, v{vL16}
    s_mov_b64 exec, -1
    s_mul_i32 s{sWA}, s{sWI}, {3*6144}
    s_mul_i32 s{sWBm}, s{sWI}, 3072
    ''')

isF = 's_cmp_lt_u32' if FOLD else 's_cmp_ge_u32'
a(f'''
s_load_dwordx4 s[4:7], s[0:1], 0
s_load_dwordx4 s[8:11], s[0:1], 16
s_load_dwordx4 s[12:15], s[0:1], 32
s_getpc_b64 s[100:101]
L_pc:
''')
if STAMP: a(f's_load_dwordx2 s[{sWS}:{sWS+1}], s[0:1], {48 if opt("dbg") else 56}')
stamp(0)
a(f'''
s_cmp_ge_u32 s2, 256
s_cbranch_scc1 L_end
v_lshrrev_b32 v{T[0]}, 6, v0
v_and_b32 v{vLN}, 63, v0
''')
PFM = opt('pf', 'h')
if PFM == 'first':
    a(f'''
    s_bfe_u32 s{sT3}, s2, 0x20003
    s_mul_i32 s{sT3}, s{sT3}, {80*128}
    v_mul_u32_u24 v{T[1]}, 10, v{T[0]}
    v_add_u32 v{T[1]}, v{T[1]}, v{vLN}
    v_lshl_add_u32 v{T[1]}, v{T[1]}, 7, s{sT3}
    v_min_u32 v{T[1]}, L_end-L_pc, v{T[1]}
    s_mov_b64 exec, 0x3ff
    global_load_dword v{vPF}, v{T[1]}, s[100:101]
    s_mov_b64 exec, -1
    ''')
a(f'''
s_lshr_b32 s{sT1}, s2, 3
v_readfirstlane_b32 s{sWV}, v{T[0]}
s_and_b32 s{sT2}, s2, 1
s_add_u32 s{sT2}, s{sT2}, s{sT1}
s_cmp_ge_u32 s{sT2}, 32
s_cbranch_scc1 L_end
s_and_b32 s{sT0}, s2, 3
v_mul_u32_u24 v{T[0]}, 43, v{vLN}
s_mul_i32 s{sT0}, s{sT0}, 63
s_add_u32 s{sT0}, s{sT0}, 1
v_lshrrev_b32 v{T[0]}, 9, v{T[0]}
s_lshr_b32 s{sT0}, s{sT0}, 1
s_add_u32 s{sT0}, s{sT0}, s{sT1}
v_mul_u32_u24 v{T[1]}, 12, v{T[0]}
s_mul_i32 s{sT1}, s{sT0}, 9363
s_lshr_b32 s{sT1}, s{sT1}, 16
v_sub_u32 v{T[1]}, v{vLN}, v{T[1]}
s_mul_i32 s{sT2}, s{sT1}, 7
s_sub_u32 s{sT0}, s{sT0}, s{sT2}
s_bfe_u32 s{sT2}, s2, 0x10002
s_mul_i32 s{sT2}, s{sT2}, 7
s_add_u32 s{sT0}, s{sT0}, s{sT2}
s_lshl_b32 s{sX0}, s{sT0}, 4
s_mul_i32 s{sY0}, s{sT1}, {112*7282}
s_add_u32 s{sH13}, s{sY0}, {112*7282}
s_lshr_b32 s{sY0}, s{sY0}, 16
s_lshr_b32 s{sH13}, s{sH13}, 16
s_sub_u32 s{sH13}, s{sH13}, s{sY0}
s_and_b32 s{sWI}, s{sWV}, 3
''')
if PFM == 'h':
    a(f'''
    s_cmp_eq_u32 s{sH13}, 13
    s_cbranch_scc1 L_nopf
    s_bfe_u32 s{sT3}, s2, 0x20003
    s_lshl_b32 s{sT3}, s{sT3}, 3
    s_add_u32 s{sT3}, s{sT3}, s{sWV}
    s_mul_i32 s{sT3}, s{sT3}, {10*128}
    v_lshl_add_u32 v{T[2]}, v{vLN}, 7, s{sT3}
    v_min_u32 v{T[2]}, L_end-L_pc, v{T[2]}
    s_mov_b64 exec, 0x3ff
    global_load_dword v{vPF}, v{T[2]}, s[100:101]
    s_mov_b64 exec, -1
    L_nopf:
    ''')
a(f'''
v_mov_b32 v{T[4]}, {MARK}
v_lshlrev_b32 v{vL16}, 4, v{vLN}
{isF} s{sWV}, 4
s_cbranch_scc1 L_F0
; ---- L: x rows
s_mul_i32 s{sT1}, s{sWI}, 5
v_add_u32 v{T[0]}, s{sT1}, v{T[0]}
v_bfe_u32 v{T[2]}, v{T[0]}, 2, 2
v_xor_b32 v{T[1]}, v{T[1]}, v{T[2]}
s_sub_u32 s{sT1}, s{sX0}, 2
v_add_u32 v{T[0]}, s{sT1}, v{T[0]}
v_mul_u32_u24 v{T[2]}, 192, v{T[0]}
v_cmp_gt_u32 vcc, 224, v{T[0]}
v_lshl_add_u32 v{T[2]}, v{T[1]}, 4, v{T[2]}
s_mul_i32 s{sXM}, s{sWI}, 960
s_add_u32 m0, s{sXM}, {XB}
s_movk_i32 s{sXM}, {XROW}
s_mov_b32 s99, 43008
v_cndmask_b32 v{vXO}, v{T[4]}, v{T[2]}, vcc
s_sub_u32 s{sT1}, s{sY0}, 2
s_mul_i32 s{sT1}, s{sT1}, s99
v_add_u32 v{vXO}, s{sT1}, v{vXO}
s_mov_b32 s{sX+2}, {XBYTES}
s_mov_b32 s{sX+3}, 0x00020000
s_mov_b32 exec_hi, 0x0fffffff
s_waitcnt lgkmcnt(0)
s_mov_b64 s[{sX}:{sX+1}], s[4:5]
''')
xl = [0]
def xrows(n):
    for _ in range(n):
        t = xl[0]; xl[0] += 1
        if t:
            a(f's_add_u32 m0, m0, s{sXM}')
            a(f'v_add_u32 v{vXO}, s99, v{vXO}')
        a(f'buffer_load_dwordx4 v{vXO}, {srd(sX)}, 0 offen lds')
NX0 = int(opt('nx0', 12))
xrows(NX0)
stamp(1)
a(f'''
s_branch L_L
L_F0:
; ---- F: conv weight tables, rows w and w+4 of both
s_setprio {opt("fprio", 2)}
s_mul_i32 s{sT3}, s{sWI}, 960
v_add_u32 v{T[2]}, s{sT3}, v{vL16}
s_mul_i32 s{sT3}, s{sWI}, 576
s_sub_u32 s{sT3}, s{sT3}, {2*576 + 192}
v_mov_b32 v{T[3]}, {MARK}
s_mov_b32 exec_lo, 0xfffff000
s_mov_b32 exec_hi, 0xffff
v_add_u32 v{T[3]}, s{sT3}, v{vL16}
v_add_u32 v{T[4]}, {4*576}, v{T[3]}
s_mov_b32 exec_lo, -1
s_mov_b32 exec_hi, 0x0fffffff
v_add_u32 v{T[1]}, {4*960}, v{T[2]}
s_mul_i32 s{sT3}, s{sWI}, {TP}
s_mov_b32 s{sDS+2}, 4800
s_mov_b32 s{sDS+3}, 0x00020000
s_mov_b32 s{sDL+2}, 1728
s_mov_b32 s{sDL+3}, 0x00020000
s_add_u32 m0, s{sT3}, {TB + 8*TP}
s_waitcnt lgkmcnt(0)
s_mov_b64 s[{sDS}:{sDS+1}], s[8:9]
s_mov_b64 s[{sDL}:{sDL+1}], s[6:7]
buffer_load_dwordx4 v{T[2]}, {srd(sDS)}, 0 offen lds
s_add_u32 m0, s{sT3}, {TB}
s_mul_i32 s{sIMG}, s{sWI}, 6144
buffer_load_dwordx4 v{T[3]}, {srd(sDL)}, 0 offen lds
s_add_u32 m0, s{sT3}, {TB + 12*TP}
s_mov_b32 s{sOB}, {OUTF}
buffer_load_dwordx4 v{T[1]}, {srd(sDS)}, 0 offen lds
s_add_u32 m0, s{sT3}, {TB + 4*TP}
s_nop 0
buffer_load_dwordx4 v{T[4]}, {srd(sDL)}, 0 offen lds
s_mov_b32 exec_hi, -1
''')
WPF = opt('wpf', '0') == '1'
if PFM in ('f', 'g'):
    if PFM == 'g': a(f's_cmp_eq_u32 s{sH13}, 13\ns_cselect_b32 s97, 1, 0xfffff')
    a(f'''
    s_bfe_u32 s{sT3}, s2, 0x20003
    s_lshl_b32 s{sT3}, s{sT3}, 2
    s_add_u32 s{sT3}, s{sT3}, s{sWI}
    s_mul_i32 s{sT3}, s{sT3}, {20*128}
    v_lshl_add_u32 v{T[1]}, v{vLN}, 7, s{sT3}
    v_min_u32 v{T[1]}, L_end-L_pc, v{T[1]}
    {'s_mov_b64 exec, 0xfffff' if PFM == 'f' else f's_cmp_eq_u32 s{sH13}, 13'+chr(10)+f's_cselect_b32 s{sT3}, 0, -1'+chr(10)+f'v_and_b32 v{T[1]}, s{sT3}, v{T[1]}'+chr(10)+'s_mov_b32 exec_lo, s97'+chr(10)+'s_mov_b32 exec_hi, 0'}
    global_load_dword v{vPF}, v{T[1]}, s[100:101]
    s_mov_b64 exec, -1
    ''')
if WPF:
    a(f'''
    s_and_b32 s{sT0}, s{sWI}, 1
    s_cselect_b64 s[{sT1}:{sT2}], s[12:13], s[10:11]
    s_lshr_b32 s{sT0}, s2, 3
    s_lshl_b32 s{sT0}, s{sT0}, 1
    s_lshr_b32 s{sT3}, s{sWI}, 1
    s_add_u32 s{sT0}, s{sT0}, s{sT3}
    s_mul_i32 s{sT0}, s{sT0}, {10*128}
    v_lshl_add_u32 v{T[0]}, v{vLN}, 7, s{sT0}
    v_min_u32 v{T[0]}, {73728-128}, v{T[0]}
    s_mov_b64 exec, 0x3ff
    global_load_dword v{vPF-1}, v{T[0]}, s[{sT1}:{sT2}]
    s_mov_b64 exec, -1
    ''')
conv_setup1()
OPF = opt('opf', '0') == '1'
if OPF:
    a(f'''
    s_mov_b64 exec, 1
    buffer_load_dword v{vPF-2}, v{vL16}, {srd(sOUT)}, s{sO0} offen
    s_mov_b64 exec, -1
    ''')
vFR = [48, 49, 50, 51]
vDW1[:] = [56, 57]; vDW2[:] = [58, 59, 60]
def f_setup1():
    a(f'''
    s_add_u32 s{sO1}, s{sO0}, {4*43008}
    v_lshrrev_b32 v{T[4]}, 5, v{vLN}
    v_bfe_u32 v{T[0]}, v{vLN}, 2, 2
    v_bfe_u32 v{T[1]}, v{vLN}, 4, 1
    v_and_b32 v{T[2]}, 3, v{vLN}
    v_lshl_add_u32 v{T[3]}, v{T[4]}, 4, v{T[0]}
    v_lshlrev_b32 v{T[3]}, 7, v{T[3]}
    v_lshl_add_u32 v{T[3]}, v{T[1]}, 5, v{T[3]}
    v_lshl_add_u32 v{T[3]}, v{T[2]}, 3, v{T[3]}
    v_bfe_u32 v{T[2]}, v{vLN}, 3, 1
    v_lshl_add_u32 v{vAW1[0]}, v{T[2]}, 6, v{T[3]}
    v_xor_b32 v{vAW1[1]}, 64, v{vAW1[0]}
    v_xor_b32 v{vAW1[2]}, 32, v{vAW1[0]}
    v_xor_b32 v{vAW1[3]}, 0x60, v{vAW1[0]}
    v_lshl_add_u32 v{T[3]}, v{T[4]}, 2, v{T[0]}
    v_mul_u32_u24 v{T[3]}, 192, v{T[3]}
    v_lshl_add_u32 v{T[3]}, v{T[1]}, 4, v{T[3]}
    v_and_b32 v{T[2]}, 1, v{vLN}
    v_xor_b32 v{T[2]}, v{T[2]}, v{T[4]}
    v_lshl_add_u32 v{T[3]}, v{T[2]}, 5, v{T[3]}
    v_bfe_u32 v{T[2]}, v{vLN}, 1, 1
    v_lshl_add_u32 v{T[3]}, v{T[2]}, 3, v{T[3]}
    v_add_u32 v{vAW2}, 12288, v{T[3]}
    s_mul_i32 s{sT2}, s{sWI}, 3072
    s_add_u32 s{sT2}, s{sT2}, {OUTF}
    s_mul_i32 s{sT1}, s{sWI}, {XROW}
    s_add_u32 s{sT1}, s{sT1}, {XB + 2*XROW + 384}
    v_lshlrev_b32 v{T[4]}, 1, v{T[4]}
    v_xor_b32 v{T[0]}, v{T[4]}, v{T[0]}
    v_and_b32 v{T[3]}, 15, v{vLN}
    v_mul_u32_u24 v{T[3]}, 192, v{T[3]}
    v_lshl_add_u32 v{T[0]}, v{T[0]}, 4, v{T[3]}
    v_lshl_add_u32 v{T[0]}, v{T[2]}, 3, v{T[0]}
    v_mul_u32_u24 v{T[2]}, {4*3072}, v{T[1]}
    v_add3_u32 v{vFR[0]}, v{T[0]}, v{T[2]}, s{sT2}
    v_xor_b32 v{vFR[1]}, 8, v{vFR[0]}
    v_xor_b32 v{vFR[2]}, 16, v{vFR[0]}
    v_xor_b32 v{vFR[3]}, 24, v{vFR[0]}
    v_add_u32 v{T[0]}, 2, v{vLN}
    v_bfe_u32 v{T[0]}, v{T[0]}, 2, 2
    v_xor_b32 v{T[0]}, v{T[4]}, v{T[0]}
    v_lshl_add_u32 v{T[0]}, v{T[0]}, 4, v{T[3]}
    v_mul_u32_u24 v{T[2]}, {4*XROW}, v{T[1]}
    v_add3_u32 v{vAR[0]}, v{T[0]}, v{T[2]}, s{sT1}
    v_xor_b32 v{vAR[1]}, 16, v{vAR[0]}
    v_bfe_u32 v{T[0]}, v{vLN}, 1, 2
    v_xor_b32 v{T[0]}, v{T[4]}, v{T[0]}
    v_lshl_add_u32 v{T[0]}, v{T[0]}, 4, v{T[3]}
    v_mul_u32_u24 v{T[2]}, 3072, v{T[1]}
    v_add3_u32 v{vSW[0]}, v{T[0]}, v{T[2]}, s{sIMG}
    v_xor_b32 v{vSW[1]}, 16, v{vSW[0]}
    ''')
def f_setup2():
    a(f'''
    v_and_b32 v{T[1]}, 1, v{vLN}
    v_lshlrev_b32 v{T[1]}, 4, v{T[1]}
    v_mov_b32 v{T[2]}, 0x3f80
    v_lshlrev_b32 v{T[1]}, v{T[1]}, v{T[2]}
    ''')
    for i in range(4): a(f'v_mov_b64 {vr(vID+2*i,2)}, 0')
    for i in range(8):
        pos = 16 * (i >> 2) + 8 * ((i >> 1) & 1) + 2 * (i & 1)
        setexec(3 << pos, 3 << (pos + 4))
        a(f'v_mov_b32 v{vID+i}, v{T[1]}')
    a('s_mov_b64 exec, -1')
FS = opt('fs', '00001')
fsl = [conv_setup2, late_setup, f_setup2, f_setup1, dma_setup]
def fsetup(k):
    for f, c in zip(fsl, FS):
        if int(c) == k: f()
fsetup(0)
stamp(1)
a(f's_waitcnt vmcnt({(1 if WPF else 0) + (1 if PFM in "fg" else 0) + (1 if OPF else 0)}) lgkmcnt(0)')
pstamp(9)
bar(2)
cv = Conv(0)
for gi in range(3): tab_reads(gi, cv.ds)
S0 = stage([('F',0,[0]), ('F',1,[0,1])])
cv.run(S0, 0)
def res_half(s):
    m = 0xffff0000 if s else 0xffff
    setexec(m, m)
    for ks in range(6):
        cv.ds(f'ds_read_b128 {vr(vRES+4*ks,4)}, v{vAR[ks&1]} offset:{64*(ks>>1)}')
    a('s_mov_b64 exec, -1')
def run_stage(left, frags, pairs, keep=0, mid=None):
    its = left + stage(frags)
    if pairs: add_pub(its, len(left), len(frags), pairs)
    if mid: its[mid[0]]['post'] = mid[1]
    return cv.run(its, len(its) - keep)
left = cv.run(S0, len(S0) - int(opt('keep0', 0)))
fsetup(1)
pstamp(10)
bar(3)
left = run_stage(left, [('F',2,[0,1,2]), ('F',3,[1,2,3]), ('E',0,[0,1])], [0, 1])
fsetup(2)
pstamp(11)
bar(4)
a(f's_setprio {opt("fprio2", 3)}')
left = run_stage(left, [('F',4,[2,3]), ('F',5,[3]), ('E',2,[2,3])], [2, 3])
signal(1)
a('s_waitcnt vmcnt(0)')
wdma(0, [0, 1, 2])
stamp(5)
poll(GF, 1)
RA = 168
for ks in range(6):
    a(f'ds_read_b64 {vr(RA+4*ks,2)}, v{vFR[2*(ks&1)]} offset:{64*(ks>>1)}')
    a(f'ds_read_b64 {vr(RA+4*ks+2,2)}, v{vFR[2*(ks&1)+1]} offset:{64*(ks>>1)}')
a(f's_setprio {opt("fprio3", 1)}')
wdma(1, [0, 1, 2])
a('s_waitcnt lgkmcnt(0)')
stamp(6)
def f_mid():
    for ks in range(6):
        a(f'ds_read_b128 {vr(vRES+4*ks,4)}, v{vAR[ks&1]} offset:{64*(ks>>1)}')
    landed(0, 2)
    wdma(0, [3, 4, 5]); wdma(1, [3, 4, 5])
    peek(GF)
def f_mid2():
    a('s_waitcnt lgkmcnt(0)')
    check(GF, 2)
    f_w1reads0()
ln(RA, 72, [vL + i for i in range(24)], False, f_mid, f_mid2)
stamp(8)
XH = {
  'start3': [lambda: landed(0, 3)],
  ('T1', 0): [lambda: peek(GF)],
  ('preT2', 0): [lambda: check(GF, 3)],
  ('T1', 1): [lambda: stamp(9)],
  ('T2', 1): [lambda: peek(GL)],
  ('preT1', 2): [lambda: check(GL, 6)],
  ('preT1', 4): [lambda: signal(4)],
  ('T1', 4): [lambda: peek(GL)],
  ('preT2', 4): [lambda: check(GL, 7)],
  ('T2', 5): [lambda: peek(GL)],
  ('preT1', 6): [lambda: check(GL, 8), lambda: stamp(10)],
  ('preT1', 8): [lambda: stamp(11)],
  ('T2', 8): [lambda: peek(GF)],
  ('preT1', 9): [lambda: check(GF, 4)],
  ('preT1', 10): [lambda: stamp(12)],
}
FP = opt('fp', 'n')
def fprio(c):
    if FP == 'n': return (0, 0) if c == 0 else None
    if FP == 's': return (1, 1) if c == 0 else None
    return (0, int(FP))
mlp32(XH, fprio)
stamp(13)
P = vY[0]; Q = vK[0]
for mt in range(3):
    for i in range(8):
        a(f'v_cvt_pk_bf16_f32 v{P+8*mt+i}, v{vO+16*mt+2*i}, v{vO+16*mt+2*i+1}')
    a(f'ds_write_b128 v{vSW[0]}, {vr(P+8*mt,4)} offset:{64*mt}')
    a(f'ds_write_b128 v{vSW[1]}, {vr(P+8*mt+4,4)} offset:{64*mt}')
for s in range(2):
    for j in range(3):
        a(f'ds_read_b128 {vr(Q+4*(3*s+j),4)}, v{vSR[j]} offset:{3072*s}')
for s in range(2):
    for j in range(3):
        a(f's_waitcnt lgkmcnt({5-(3*s+j)})')
        a(f'buffer_store_dwordx4 {vr(Q+4*(3*s+j),4)}, v{vL16}, {srd(sOUT)}, s{sO1 if s else sO0} offen offset:{1024*j}{STPOL}')
finish()
emit_slow()

a.label('L_L')
cv = Conv(4)
vDW1[:] = [220, 221]; vDW2[:] = [222, 223, 224]
vA0, vA2 = 48, 50
RR = 60
def l_setup():
    a(f'''
    s_add_u32 s{sO0}, s{sO0}, {8*43008}
    s_and_b32 s{sT1}, s{sWI}, 1
    v_lshrrev_b32 v{T[4]}, 4, v{vLN}
    v_bfe_u32 v{T[0]}, v{vLN}, 2, 2
    v_and_b32 v{T[2]}, 3, v{vLN}
    v_bfe_u32 v{T[1]}, v{vLN}, 4, 1
    v_lshlrev_b32 v{T[2]}, 3, v{T[2]}
    v_lshl_add_u32 v{T[2]}, v{T[1]}, 5, v{T[2]}
    v_lshl_add_u32 v{T[3]}, v{T[4]}, 3, v{T[0]}
    v_lshl_add_u32 v{T[3]}, v{T[3]}, 7, v{T[2]}
    v_bfe_u32 v{T[1]}, v{vLN}, 3, 1
    v_xor_b32 v{T[1]}, s{sT1}, v{T[1]}
    v_lshl_add_u32 v{T[3]}, v{T[1]}, 6, v{T[3]}
    s_lshr_b32 s{sT2}, s{sWI}, 1
    s_mul_i32 s{sT2}, s{sT2}, {PS}
    s_sub_u32 s{sT3}, {PS}, s{sT2}
    v_add_u32 v{vLW1}, s{sT2}, v{T[3]}
    v_add_u32 v{vLW1+4}, s{sT3}, v{T[3]}
    v_xor_b32 v{vLW1+1}, 32, v{vLW1}
    v_xor_b32 v{vLW1+2}, 64, v{vLW1}
    v_xor_b32 v{vLW1+3}, 0x60, v{vLW1}
    v_xor_b32 v{vLW1+5}, 32, v{vLW1+4}
    v_xor_b32 v{vLW1+6}, 64, v{vLW1+4}
    v_xor_b32 v{vLW1+7}, 0x60, v{vLW1+4}
    v_lshl_add_u32 v{T[3]}, v{T[4]}, 2, v{T[0]}
    v_mul_u32_u24 v{T[3]}, 192, v{T[3]}
    v_add_u32 v{T[3]}, v{T[3]}, v{T[2]}
    s_mul_i32 s{sT1}, s{sT1}, 6144
    s_add_u32 s{sT2}, s{sT2}, 12288
    s_add_u32 s{sT3}, s{sT3}, 12288
    s_add_u32 s{sT0}, s{sT2}, s{sT1}
    v_add_u32 v{vLW2}, s{sT0}, v{T[3]}
    s_add_u32 s{sT0}, s{sT3}, s{sT1}
    v_add_u32 v{vLW2+4}, s{sT0}, v{T[3]}
    s_sub_u32 s{sT1}, 6144, s{sT1}
    s_add_u32 s{sT0}, s{sT2}, s{sT1}
    v_add_u32 v{vLW2+2}, s{sT0}, v{T[3]}
    s_add_u32 s{sT0}, s{sT3}, s{sT1}
    v_add_u32 v{vLW2+6}, s{sT0}, v{T[3]}
    v_xor_b32 v{vLW2+1}, 32, v{vLW2}
    v_xor_b32 v{vLW2+3}, 32, v{vLW2+2}
    v_xor_b32 v{vLW2+5}, 32, v{vLW2+4}
    v_xor_b32 v{vLW2+7}, 32, v{vLW2+6}
    v_xor_b32 v{T[0]}, v{T[4]}, v{T[0]}
    v_and_b32 v{T[3]}, 15, v{vLN}
    v_mul_u32_u24 v{T[3]}, 192, v{T[3]}
    v_lshl_add_u32 v{T[0]}, v{T[0]}, 4, v{T[3]}
    v_add_u32 v{vARL}, {L12}, v{T[0]}
    v_bfe_u32 v{T[1]}, v{vLN}, 1, 1
    v_lshl_add_u32 v{T[0]}, v{T[1]}, 3, v{T[0]}
    v_add_u32 v{vA2}, {L12}, v{T[0]}
    v_xor_b32 v{vA2+1}, 8, v{vA2}
    v_add_u32 v{vA0}, s{sIMG}, v{T[0]}
    v_xor_b32 v{vA0+1}, 8, v{vA0}
    s_mul_i32 s{sT0}, s{sWI}, {XROW}
    v_bfe_u32 v{T[1]}, v{vLN}, 4, 1
    v_lshl_add_u32 v{T[3]}, v{T[1]}, 3, v{T[3]}
    v_lshrrev_b32 v{T[4]}, 5, v{vLN}
    v_bfe_u32 v{T[0]}, v{vLN}, 1, 2
    v_xor_b32 v{T[0]}, v{T[4]}, v{T[0]}
    v_lshl_add_u32 v{T[0]}, v{T[0]}, 4, v{T[3]}
    v_add_u32 v{vSW[0]}, s{sIMG}, v{T[0]}
    v_xor_b32 v{vSW[1]}, 32, v{vSW[0]}
    v_add_u32 v{T[0]}, 2, v{vLN}
    v_bfe_u32 v{T[0]}, v{T[0]}, 2, 2
    v_xor_b32 v{T[0]}, v{T[4]}, v{T[0]}
    v_lshl_add_u32 v{T[0]}, v{T[0]}, 4, v{T[3]}
    s_add_u32 s{sT0}, s{sT0}, {XB + 384}
    v_add_u32 v{vAR[0]}, s{sT0}, v{T[0]}
    v_xor_b32 v{vAR[1]}, 32, v{vAR[0]}
    ''')

a(f'''
s_mov_b32 exec_hi, -1
s_mul_i32 s{sIMG}, s{sWI}, 3072
s_add_u32 s{sIMG}, s{sIMG}, {S_IL}
s_mov_b32 s{sOB}, {OUTL}
''')
LS = opt('ls', '02002')
lsl = [conv_setup1, dma_setup, conv_setup2, late_setup, l_setup]
def lsetup(k):
    for f, c in zip(lsl, LS):
        if int(c) == k: f()
lsetup(0)
pstamp(14)
a(f's_waitcnt vmcnt({NX0 - 4})')
pstamp(9)
bar(2)
if NX0 < 17:
    a('s_mov_b32 exec_hi, 0x0fffffff')
    xrows(17 - NX0)
    a('s_mov_b32 exec_hi, -1')
lsetup(1)
for gi in range(3): tab_reads(gi, cv.ds)
pstamp(10)
a('s_waitcnt vmcnt(9)')
pstamp(11)
bar(3)
lsetup(2)
pstamp(12)
a('s_waitcnt vmcnt(0) lgkmcnt(0)')
pstamp(13)
bar(4)
a(f's_setprio {opt("lprio", 2)}')
RED, LNW = 1, 3
def raw_reads(R, ad, off=0):
    for ks in range(3):
        a(f'ds_read_b64 {vr(R+4*ks,2)}, v{ad} offset:{off+64*ks}')
        a(f'ds_read_b64 {vr(R+4*ks+2,2)}, v{ad+1} offset:{off+64*ks}')
def row_store(O, soff, P=vY[0], Q=vK[0]):
    for i in range(12):
        a(f'v_cvt_pk_bf16_f32 v{P+i}, v{O+2*i}, v{O+2*i+1}')
    for i in range(6):
        a(f'ds_write_b64 v{vSW[i&1]}, {vr(P+2*i,2)} offset:{64*(i>>1)}')
    for j in range(3):
        a(f'ds_read_b128 {vr(Q+4*j,4)}, v{vSR[j]}')
    for j in range(3):
        a(f's_waitcnt lgkmcnt({2-j})')
        a(f'buffer_store_dwordx4 {vr(Q+4*j,4)}, v{vL16}, {srd(sOUT)}, s{soff} offen offset:{1024*j}{STPOL}')
LP = opt('lp', 'k')
def lprio(c):
    if LP == 'n': return (0, 0) if c == 0 else None
    if LP == 's': return (1, 1) if c == 0 else None
    if LP == 'k':
        lo, hi = [int(x) for x in opt('lk', '0,8').split(',')]
        if lo <= c < hi: return (0, 1)
        return (0, 0) if c in (0, hi) else None
    return (0, int(LP))
def l_body(h13):
    global cv
    keep = cv
    cv = copy.copy(keep)
    sfx = 'a' if h13 else 'b'
    if h13:
        frags = [('F',4,[4]), ('F',5,[4,5]), ('F',6,[4,5,6]), ('F',7,[5,6]), ('E',4,[4,5]), ('F',8,[6]), ('L',6,[6])]; pairs = [4, 5, 6]
    else:
        frags = [('F',4,[4]), ('F',5,[4,5]), ('F',6,[4,5]), ('F',7,[5]), ('E',4,[4,5])]; pairs = [4, 5]
    its = stage(frags)
    add_pub(its, 0, len(frags), pairs)
    def resr():
        for i in range(6):
            cv.ds(f'ds_read_b64 {vr(RR+2*i,2)}, v{vAR[i&1]} offset:{10*XROW+64*(i>>1)}')
        if h13:
            for i in range(6):
                cv.ds(f'ds_read_b64 {vr(RR+12+2*i,2)}, v{vAR[i&1]} offset:{(14-RED)*XROW+64*(i>>1)}')
    if opt('lc'):
        nf = len(frags)
        for j, idx in ((9, 0), (10, nf - 1), (11, nf), (12, 2 * nf - 1), (13, 2 * nf)):
            its[idx]['post'] = lambda j=j: _st(j)
    if '3' in LS:
        cv.run(its, 0)
        lsetup(3)
    cv.run(its)
    stamp(6)
    signal(2)
    resr()
    stamp(5)
    poll(GL, 2)
    stamp(7)
    RAW = 168
    raw_reads(RAW, vA0)
    for i in range(12):
        a(f'v_lshlrev_b32 v{vO+2*i}, 16, v{RR+i}\nv_and_b32 v{vO+2*i+1}, 0xffff0000, v{RR+i}')
    if h13:
        a(f's_cmp_eq_u32 s{sWI}, {RED}\ns_cbranch_scc1 L_ri{sfx}')
        for i in range(12): a(f'v_mov_b64 {vr(vO+24+2*i,2)}, 0')
        a(f's_branch L_rj{sfx}')
        a.label(f'L_ri{sfx}')
        for i in range(12):
            a(f'v_lshlrev_b32 v{vO+24+2*i}, 16, v{RR+12+i}\nv_and_b32 v{vO+24+2*i+1}, 0xffff0000, v{RR+12+i}')
        a.label(f'L_rj{sfx}')
    signal(3)
    if h13: raw_reads(RAW + 12, vA2)
    a(f's_waitcnt lgkmcnt({7 if h13 else 1})')
    def l_mid2():
        a('s_waitcnt lgkmcnt(0)')
        check(GF, 2)
        l_w1reads(0)
    ln(RAW, 72, [vL + i for i in range(12)], True, lambda: peek(GF), l_mid2)
    if h13:
        a(f's_cmp_lg_u32 s{sWI}, {LNW}\ns_cbranch_scc1 L_nl12')
        ln(RAW + 12, 72, [RAW + 12 + i for i in range(12)], True)
        for ks in range(3):
            a(f'ds_write_b128 v{vARL}, {vr(RAW+12+4*ks,4)} offset:{64*ks}')
        a.label('L_nl12')
        signal(5)
    stamp(8)
    def l12r():
        for ks in range(3):
            a(f'ds_read_b128 {vr(vL+12+4*ks,4)}, v{vARL} offset:{64*ks}')
    def pub_rem():
        a(f's_cmp_eq_u32 s{sWI}, {RED}\ns_cbranch_scc1 L_np\ns_mul_i32 s{sT0}, s{sWI}, 6144\nv_add_u32 v{T[0]}, s{sT0}, v{vL16}')
        for i in range(6):
            a(f'ds_write_b128 v{T[0]}, {vr(vO+24+4*i,4)} offset:{S_R + 1024*i}')
        a.label('L_np')
        signal(9)
    H = {
      'start3': [lambda: peek(GL)],
      ('preT1', 0): [lambda: check(GL, 3)],
      ('T1', 0): [lambda: wdma(2, [0, 1, 2]), lambda: wdma(3, [0, 1, 2]), lambda: peek(GF)],
      ('preT2', 0): [lambda: check(GF, 3)],
      ('T2', 0): [lambda: wdma(2, [3, 4, 5])] + ([lambda: peek(GL)] if h13 else []),
      ('preT1', 1): [lambda: check(GL, 5)] if h13 else [],
      ('T1', 1): [lambda: wdma(3, [3, 4, 5]), lambda: stamp(9)] + ([l12r] if h13 else []),
      ('preT2', 1): [lambda: landed(6, 6)],
      ('T2', 1): [lambda: wdma(4, [0, 1, 2]), lambda: peek(GL)],
      ('preT1', 2): [lambda: check(GL, 6)],
      ('T1', 2): [lambda: wdma(4, [3, 4, 5])],
      ('T2', 2): [lambda: wdma(5, [0, 1, 2])],
      ('preT1', 3): [lambda: landed(9, 7)],
      ('T1', 3): [lambda: wdma(5, [3, 4, 5])],
      ('T1', 4): [lambda: peek(GL)],
      ('preT2', 4): [lambda: check(GL, 7), lambda: landed(0, 8)],
      ('T2', 5): [lambda: peek(GL)],
      ('preT1', 6): [lambda: check(GL, 8), lambda: stamp(10)],
      ('preT1', 8): [lambda: stamp(11)],
      ('preT1', 10): [lambda: stamp(12)],
    }
    if h13:
        H[('T2', 9)] = [lambda: peek(GF)]
        H[('preT1', 10)] = H[('preT1', 10)] + [lambda: check(GF, 4), pub_rem]
        def reduce12():
            a(f's_cmp_lg_u32 s{sWI}, {RED}\ns_cbranch_scc1 L_nored')
            poll(GL, 9)
            others = [w for w in range(4) if w != RED]
            R = [144, 48, 144]
            def rd(n):
                for i in range(6):
                    a(f'ds_read_b128 {vr(R[n]+4*i,4)}, v{vL16} offset:{S_R + 6144*others[n] + 1024*i}')
            def ad(n):
                for i in range(24):
                    a(f'v_add_f32 v{vO+24+i}, v{vO+24+i}, v{R[n]+i}')
            rd(0); rd(1)
            a('s_waitcnt lgkmcnt(6)'); ad(0); rd(2)
            a('s_waitcnt lgkmcnt(6)'); ad(1)
            a('s_waitcnt lgkmcnt(0)'); ad(2)
            a(f's_add_u32 s{sO1}, s{sO0}, {(4-RED)*43008}')
            row_store(vO + 24, sO1, 48, 144)
            a.label('L_nored')
        H[('T1', 11)] = [reduce12]
    mlp16([3, 5, 8] if h13 else [], H, lprio)
    stamp(13)
    row_store(vO, sO0)
    finish()
    emit_slow()
    cv = keep
a(f's_cmp_lg_u32 s{sH13}, 13\ns_cbranch_scc1 L_L12')
l_body(True)
a.label('L_L12')
l_body(False)
a.label('L_end')
a('s_endpgm')

body = a.finalize()
hdr = open('cdna_kernels/' + NAME + '.s.ref').read().split('\n')
out = []
for l in hdr:
    if l.startswith('; @launch'):
        out.append('; @launch grid=(256,1,1) block=(512,1,1) lds=163840')
    elif l.startswith(';'):
        out.append(l)
    else:
        break
out.append('.amdgcn_target "amdgcn-amd-amdhsa--gfx950"')
out.append('.text')
out.append(f'.globl {NAME}_kernel')
out.append('.p2align 8')
out.append(f'.type {NAME}_kernel,@function')
out.append(f'{NAME}_kernel:')
for l in body:
    out.append(l if l.endswith(':') else '    ' + l)
out.append(f'''.section .rodata,"a"
.p2align 6
.amdhsa_kernel {NAME}_kernel
  .amdhsa_next_free_vgpr 256
  .amdhsa_next_free_sgpr 102
  .amdhsa_accum_offset 256
  .amdhsa_group_segment_fixed_size 0
  .amdhsa_kernarg_size 64
  .amdhsa_user_sgpr_count 2
  .amdhsa_user_sgpr_kernarg_segment_ptr 1
  .amdhsa_system_sgpr_workgroup_id_x 1
.end_amdhsa_kernel''')
print('\n'.join(out))
```

```python
import sys, struct, math, copy
from asmlib import Asm

NAME = "standalone__modern_conv_block_replknet__vision"
def fbits(x): return struct.unpack('<I', struct.pack('<f', x))[0]
def opt(name, default=None):
    for x in sys.argv:
        if x == '--' + name: return True
        if x.startswith('--' + name + '='): return x.split('=', 1)[1]
    return default
STAMP = opt('stamp'); CYC = opt('cyc'); PRO = opt('pro')
STPOL = ' ' + opt('stpol', 'sc1').replace('_', ' ') if opt('stpol', 'sc1') != 'none' else ''
FOLD = opt('fold', '1') == '1'
GL, GF = (1, 0) if FOLD else (0, 1)

XROW = 3840
XB = 73728
PS = 24576
TB, TP = 139264, 976
OUTF, OUTL = 49152, 147456
L12 = OUTL + 4*3072
FL = 163584
S_IF, S_R, S_IL = 0, 24576, OUTL
MARK = 0x40000000
XBYTES = 224 * 224 * 192

k0 = math.sqrt(2.0 / math.pi); k1 = 0.044715
c0 = 2 * k0 / math.log(2.0); c1 = c0 * k1
ga = c1 ** (1.0 / 3.0)
gc = -c0 / ga

sX, sDL, sDS, sW1, sW2, sOUT = 16, 20, 24, 28, 32, 36
sWV, sY0, sX0, sT0, sT1, sT2, sT3 = 40, 41, 42, 43, 44, 45, 46
sH13, sWI = 47, 3
sCA, sCC = 48, 50
sWS = 52
sXM, sIMG, sOB = 56, 57, 62
sWA, sWBm = 58, 59
sO0, sO1 = 60, 61
sST = 64
NST = 16
def srd(b): return f's[{b}:{b+3}]'
vO, vL, vY, vK, vG, vF1, vF2 = 0, 48, [72, 88], [104, 120], 136, 144, 168
vRES, vID = 204, 228
vAW1 = [236, 237, 245, 249]; vAW2 = 238
vLW1 = 204; vLW2 = 212
vDW1 = [220, 221]; vDW2 = [222, 223, 224]
vARL = 225
vSW = [239, 240]; vSR = [241, 242, 243]
vL16 = 244
vFA, vFW, vFP = 246, 247, 248
T = [250, 251, 252, 253, 254]
vLN = 255
vXO = 203; vPF = 54
vAF, vAE, vAO, vIDX, vTF0, vTF1, vTE, vAR, vAE16, vAO1 = 192, 193, 194, 195, 196, 197, 198, [199, 200], 201, 202
vACC, vAFR, vB = 0, 84, 144
def vr(b, n): return f'v[{b}:{b+n-1}]'

a = Asm()
def _st(i): a(f'{"s_memtime" if CYC else "s_memrealtime"} s[{sST+2*i}:{sST+2*i+1}]')
def pstamp(i):
    if STAMP and PRO and not opt('lc'): _st(i)
def stamp(i):
    if i in (8, 13): hold(i)
    if STAMP and not (PRO and 9 <= i <= 14): _st(i)
def mksrd(b, lo, n):
    a(f's_mov_b64 s[{b}:{b+1}], s[{lo}:{lo+1}]\ns_mov_b32 s{b+2}, {n}\ns_mov_b32 s{b+3}, 0x00020000')
def hold(tag):
    h = opt('hold')
    if h and h.split(':')[0] == str(tag):
        n = nlab[0]; nlab[0] += 1
        a(f's_waitcnt lgkmcnt(0)\ns_add_u32 s92, s94, {h.split(":")[1]}')
        a.label(f'L_hold{n}')
        a(f's_memrealtime s[90:91]\ns_waitcnt lgkmcnt(0)\ns_sub_u32 s93, s92, s90\ns_cmp_gt_i32 s93, 0\ns_cbranch_scc1 L_hold{n}')
def bar(i=None):
    a('s_barrier')
    hold(i)
    if i is not None: stamp(i)
def setexec(lo, hi):
    a(f's_mov_b32 exec_lo, {lo:#x}\ns_mov_b32 exec_hi, {hi:#x}')

nlab = [0]; slow = []
def guard():
    if opt('safe'): a('s_sub_u32 s98, s98, 1\ns_cbranch_scc1 L_end')
def signal(v, emit=None):
    a(f'v_mov_b32 v{T[4]}, {v}')
    (emit or a)(f'ds_write_b32 v{vFW}, v{T[4]}')
def poll(grp, v):
    lab = f'L_poll{nlab[0]}'; nlab[0] += 1
    a.label(lab)
    guard()
    a(f'ds_read_b32 v{vFP}, v{vFA} offset:{16*grp}\ns_waitcnt lgkmcnt(0)\nv_cmp_gt_u32 vcc, {v}, v{vFP}\ns_cbranch_vccnz {lab}')
def peek(grp): a(f'ds_read_b32 v{vFP}, v{vFA} offset:{16*grp}')
def check(grp, v):
    n = nlab[0]; nlab[0] += 1
    a(f'v_cmp_gt_u32 vcc, {v}, v{vFP}\ns_cbranch_vccnz L_slow{n}')
    a.label(f'L_back{n}')
    slow.append((n, grp, v))
def emit_slow():
    for n, grp, v in slow:
        a.label(f'L_slow{n}')
        guard()
        a(f'ds_read_b32 v{vFP}, v{vFA} offset:{16*grp}\ns_waitcnt lgkmcnt(0)\nv_cmp_gt_u32 vcc, {v}, v{vFP}\ns_cbranch_vccnz L_slow{n}\ns_branch L_back{n}')
    slow.clear()
def landed(n, v):
    a(f's_waitcnt vmcnt({n})'); signal(v)

def wdma(p, parts=range(6)):
    for i in parts:
        if i < 3:
            a(f'''
            s_add_u32 m0, s{sWBm}, {PS*p + 1024*i}
            s_add_u32 s{sT0}, s{sWA}, {6144*i + 128*p}
            buffer_load_dwordx4 v{vDW1[i & 1]}, {srd(sW1)}, s{sT0} offen lds
            ''')
        else:
            if i == 3 or i - 1 not in parts:
                a(f's_add_u32 m0, s{sWBm}, {PS*p + 12288}\ns_add_u32 s{sT0}, s{sWBm}, {12288*p}')
            a(f'buffer_load_dwordx4 v{vDW2[i-3]}, {srd(sW2)}, s{sT0} offen offset:{1024*(i-3)} lds')

def ln(raw, U, dst, rows16, mid=None, mid2=None):
    n = len(dst)
    S, Q, ONE = T[1], T[3], T[4]
    sc, bi = T[0], T[2]
    a(f'v_mov_b32 v{ONE}, 0x3f803f80')
    un = []
    for i in range(n):
        un.append(f'v_lshlrev_b32 v{U+2*i}, 16, v{raw+i}')
        un.append(f'v_and_b32 v{U+2*i+1}, 0xffff0000, v{raw+i}')
    while len(un) > 8: a(un.pop(0))
    for i in range(n):
        a(f'v_dot2_f32_bf16 v{S}, v{raw+i}, v{ONE}, {"0" if i == 0 else f"v{S}"}')
        a(f'v_dot2_f32_bf16 v{Q}, v{raw+i}, v{raw+i}, {"0" if i == 0 else f"v{Q}"}')
    def fill(k):
        for _ in range(k):
            if un: a(un.pop(0))
    fill(3)
    a(f'v_permlane32_swap_b32 v{S}, v{Q}')
    a(f'v_add_f32 v{S}, v{S}, v{Q}')
    if rows16:
        a(f'v_mov_b32 v{Q}, v{S}')
        fill(2)
        a(f'v_permlane16_swap_b32 v{S}, v{Q}')
        a(f'v_add_f32 v{S}, v{S}, v{Q}')
    a(f'v_mul_f32 v{S}, {fbits(1.0/96):#x}, v{S}')
    a(f'v_mov_b32 v{Q}, v{S}')
    fill(2)
    a(f'v_permlane32_swap_b32 v{S}, v{Q}')
    a(f'''
    v_fma_f32 v{Q}, -v{S}, v{S}, v{Q}
    v_max_f32 v{Q}, 0, v{Q}
    v_add_f32 v{Q}, {fbits(1e-5):#x}, v{Q}
    v_rsq_f32 v{Q}, v{Q}
    ''')
    fill(1)
    a(f'v_mul_f32 v{sc}, {fbits(ga):#x}, v{Q}')
    a(f'v_mul_f32 v{bi}, -v{S}, v{sc}')
    fill(1000)
    if mid: mid()
    for i in range(n):
        if opt('lnplain'):
            a(f'v_fma_f32 v{U+2*i}, v{U+2*i}, v{sc}, v{bi}\nv_fma_f32 v{U+2*i+1}, v{U+2*i+1}, v{sc}, v{bi}')
        else:
            a(f'v_pk_fma_f32 {vr(U+2*i,2)}, {vr(U+2*i,2)}, {vr(sc,2)}, {vr(bi,2)} op_sel_hi:[1,0,0]')
    if mid2: mid2()
    for i in range(n):
        a(f'v_cvt_pk_bf16_f32 v{dst[i]}, v{U+2*i}, v{U+2*i+1}')

def pk_t(Y, K, n):
    return [f'v_pk_fma_f32 {vr(K+2*i,2)}, {vr(Y+2*i,2)}, {vr(Y+2*i,2)}, s[{sCC}:{sCC+1}] neg_lo:[1,0,0] neg_hi:[1,0,0]' for i in range(n//2)] + pk_m(Y, K, n)
def pk_m(Y, K, n): return [f'v_pk_mul_f32 {vr(K+2*i,2)}, {vr(Y+2*i,2)}, {vr(K+2*i,2)}' for i in range(n//2)]
def pk_d(K, n): return [f'v_pk_fma_f32 {vr(K+2*i,2)}, {vr(K+2*i,2)}, s[{sCA}:{sCA+1}], s[{sCA}:{sCA+1}]' for i in range(n//2)]
def emit(l):
    for t in l: a(t)

def mlp32(hooks, prio):
    N = 12
    moved = {'w1': False, 'w2': False}
    def move(kind, c):
        if c >= 6 and not moved[kind]:
            for r in (vAW1 if kind == 'w1' else [vAW2]): a(f'v_add_u32 v{r}, {3*PS}, v{r}')
            moved[kind] = True
    def w1reads(c):
        for ks in range(6):
            off = ((c >> 1) % 3) * PS + (ks >> 1) * 4096 + (ks & 1) * 1024
            r = vAW1[(c & 1) + 2 * (ks & 1)]
            a(f'ds_read_b64_tr_b16 {vr(vF1+4*ks,2)}, v{r} offset:{off}')
            a(f'ds_read_b64_tr_b16 {vr(vF1+4*ks+2,2)}, v{r} offset:{off+512}')
    def w2reads(c):
        for i in range(6):
            ks2, mt = i // 3, i % 3
            off = ((c >> 1) % 3) * PS + (c & 1) * 6144 + ks2 * 3072 + mt * 64
            a(f'ds_read_b64_tr_b16 {vr(vF2+4*i,2)}, v{vAW2} offset:{off}')
            a(f'ds_read_b64_tr_b16 {vr(vF2+4*i+2,2)}, v{vAW2} offset:{off+1536}')
    def g1(c, ks):
        Y = vY[c & 1]
        a(f'v_mfma_f32_32x32x16_bf16 {vr(Y,16)}, {vr(vF1+4*ks,4)}, {vr(vL+4*ks,4)}, {"0" if ks == 0 else vr(Y,16)}')
    def g2(i):
        ks2, mt = i // 3, i % 3
        a(f'v_mfma_f32_32x32x16_bf16 {vr(vO+16*mt,16)}, {vr(vF2+4*i,4)}, {vr(vG+4*ks2,4)}, {vr(vO+16*mt,16)}')
    def resm(ks):
        j, mt = ks // 3, ks % 3
        a(f'v_mfma_f32_32x32x16_bf16 {vr(vO+16*mt,16)}, {vr(vID+4*j,4)}, {vr(vRES+4*(2*mt+j),4)}, {"0" if j == 0 else vr(vO+16*mt,16)}')
    def hook(k):
        for f in hooks.get(k, []): f()
    def pr(c, v):
        if prio(c) is not None: a(f's_setprio {prio(c)[v]}')
    hook('pre')
    a('s_waitcnt lgkmcnt(0)')
    for ks in range(6): g1(0, ks)
    w1reads(1)
    hook('start3')
    for c in range(N + 1):
        Y, K = vY[c & 1], vK[c & 1]
        Yp, Kp = vY[(c - 1) & 1], vK[(c - 1) & 1]
        pr(c, 1)
        if c >= 1: emit(pk_m(Yp, Kp, 16))
        if c < N: emit(pk_t(Y, K, 16))
        cv = [f'v_cvt_pk_bf16_f32 v{vG+i}, v{Kp+2*i}, v{Kp+2*i+1}' for i in range(8)] if c >= 1 else []
        if c == N:
            emit(cv)
            a('s_waitcnt lgkmcnt(0)')
            for i in (0, 3, 1, 4, 2, 5): g2(i)
            break
        ex = [f'v_exp_f32 v{K+i}, v{K+i}' for i in range(16)]
        rc = [f'v_rcp_f32 v{K+i}, v{K+i}' for i in range(16)]
        last = c + 1 >= N
        if c + 2 < N: move('w1', c + 2)
        move('w2', c)
        if c == 0:
            gaps = [ex[0:3], ex[3:6], ex[6:9], ex[9:12], ex[12:15], ex[15:16]]
            a('s_waitcnt lgkmcnt(0)')
            for j in range(6):
                g1(1, j); emit(gaps[j])
        elif not last:
            gaps = [cv[0:4] + ex[0:1], cv[4:8] + ex[1:2], ex[2:5], ex[5:8], ex[8:11], ex[11:14], ex[14:16]]
            for j in range(7):
                if j < 6: g1(c + 1, j)
                else: g2(0)
                if j == 5: a('s_waitcnt lgkmcnt(0)')
                emit(gaps[j])
        else:
            emit(cv); emit(ex[0:4])
            a('s_waitcnt lgkmcnt(0)')
            gaps = [ex[4:8], ex[8:12], ex[12:16]]
            for j in range(3):
                g2(j); emit(gaps[j])
        hook(('preT1', c))
        pr(c, 0)
        if c + 2 < N: w1reads(c + 2)
        hook(('T1', c))
        pr(c, 1)
        emit(pk_d(K, 16))
        if c == 0:
            gp = [rc[0:3], rc[3:6], rc[6:9], rc[9:12], rc[12:14], rc[14:16]]
            for j in range(6):
                resm(j)
                if j == 5: a('s_waitcnt lgkmcnt(0)')
                emit(gp[j])
        elif not last:
            gp = [rc[0:3], rc[3:6], rc[6:9], rc[9:12], rc[12:16]]
            for j in range(5):
                g2(j + 1)
                if j == 4: a('s_waitcnt lgkmcnt(0)')
                emit(gp[j])
        else:
            gp = [rc[0:3], rc[3:6], rc[6:16]]
            for j in range(3):
                g2(j + 3)
                if j == 2: w2reads(c)
                emit(gp[j])
        hook(('preT2', c))
        pr(c, 0)
        if not last: w2reads(c)
        hook(('T2', c))
    return w1reads

def f_w1reads0():
    for ks in range(6):
        off = (ks >> 1) * 4096 + (ks & 1) * 1024
        r = vAW1[2 * (ks & 1)]
        a(f'ds_read_b64_tr_b16 {vr(vF1+4*ks,2)}, v{r} offset:{off}')
        a(f'ds_read_b64_tr_b16 {vr(vF1+4*ks+2,2)}, v{r} offset:{off+512}')

def l_w1reads(s):
    for i in range(6):
        mt2, ks3 = i // 3, i % 3
        off = ((s >> 2) & 1) * 2 * PS + ks3 * 4096
        r = vLW1 + mt2 + 2 * (s & 3)
        a(f'ds_read_b64_tr_b16 {vr(vF1+4*i,2)}, v{r} offset:{off}')
        a(f'ds_read_b64_tr_b16 {vr(vF1+4*i+2,2)}, v{r} offset:{off+512}')

def mlp16(doubles, hooks, prio):
    N = 12
    def wid(s): return 0 if (s < 0 or s >= N) else (2 if s in doubles else 1)
    def move(base):
        for r in range(8): a(f'v_add_u32 v{base+r}, {4*PS}, v{base+r}')
    def w2reads(s):
        for i in range(6):
            off = ((s >> 2) & 1) * 2 * PS + 64 * (i >> 1)
            r = vLW2 + (i & 1) + 2 * (s & 3)
            a(f'ds_read_b64_tr_b16 {vr(vF2+4*i,2)}, v{r} offset:{off}')
            a(f'ds_read_b64_tr_b16 {vr(vF2+4*i+2,2)}, v{r} offset:{off+3072}')
    def m1(s):
        l = []
        for t in range(wid(s)):
            for j in range(6):
                mt2, ks3 = j & 1, j >> 1
                D = vY[s & 1] + 8 * t + 4 * mt2
                l.append(f'v_mfma_f32_16x16x32_bf16 {vr(D,4)}, {vr(vF1+4*(mt2*3+ks3),4)}, {vr(vL+12*t+4*ks3,4)}, {"0" if ks3 == 0 else vr(D,4)}')
        return l
    def m2(s):
        return [f'v_mfma_f32_16x16x32_bf16 {vr(vO+24*t+4*i,4)}, {vr(vF2+4*i,4)}, {vr(vG+4*t,4)}, {vr(vO+24*t+4*i,4)}' for t in range(wid(s)) for i in range(6)]
    def weave(ms, fl):
        fl = list(fl)
        if not ms:
            emit(fl); a('s_waitcnt lgkmcnt(0)'); return
        for j, m in enumerate(ms):
            a(m)
            if j == len(ms) - 1: a('s_waitcnt lgkmcnt(0)')
            k = -(-len(fl) // (len(ms) - j))
            emit(fl[:k]); fl = fl[k:]
    def hook(k):
        for f in hooks.get(k, []): f()
    def pr(c, v):
        if prio(c) is not None: a(f's_setprio {prio(c)[v]}')
    hook('pre')
    a('s_waitcnt lgkmcnt(0)')
    emit(m1(0))
    l_w1reads(1)
    hook('start3')
    for s in range(N + 1):
        Y, K = vY[s & 1], vK[s & 1]
        Yp, Kp = vY[(s - 1) & 1], vK[(s - 1) & 1]
        n, np_ = 8 * wid(s), 8 * wid(s - 1)
        pr(s, 1)
        emit(pk_m(Yp, Kp, np_))
        emit(pk_t(Y, K, n))
        cv = [f'v_cvt_pk_bf16_f32 v{vG+i}, v{Kp+2*i}, v{Kp+2*i+1}' for i in range(np_ // 2)]
        if s == N:
            emit(cv)
            a('s_waitcnt lgkmcnt(0)')
            emit(m2(N - 1))
            break
        ex = [f'v_exp_f32 v{K+i}, v{K+i}' for i in range(n)]
        rc = [f'v_rcp_f32 v{K+i}, v{K+i}' for i in range(n)]
        if s + 2 == 8: move(vLW1)
        if s == 8: move(vLW2)
        if s == 0: a('s_waitcnt lgkmcnt(0)')
        weave(m1(s + 1), cv + ex)
        hook(('preT1', s))
        pr(s, 0)
        if s + 2 < N: l_w1reads(s + 2)
        hook(('T1', s))
        pr(s, 1)
        emit(pk_d(K, n))
        weave(m2(s - 1), rc)
        hook(('preT2', s))
        pr(s, 0)
        w2reads(s)
        hook(('T2', s))

def finish():
    if STAMP:
        stamp(14)
        a('s_waitcnt vmcnt(0)')
        stamp(15)
        a('s_waitcnt lgkmcnt(0)')
        if opt('dbg'):
            n = nlab[0]; nlab[0] += 1
            a(f's_cmp_lg_u32 s2, {opt("dbg")}\ns_cbranch_scc1 L_nd{n}\ns_cmp_lg_u32 s{sWI}, 0\ns_cbranch_scc1 L_nd{n}')
            a(f's_lshl_b32 s{sT0}, s{sWV}, 3\nv_mov_b32 v{T[1]}, s{sT0}\ns_mov_b64 exec, 1')
            for k, i in enumerate((1, 2, 3, 4, 8, 10, 13, 15)):
                a(f's_sub_u32 s{sT0}, s{sST+2*i}, s{sST}\nv_mov_b32 v{T[0]}, s{sT0}')
                a(f'buffer_store_dword v{T[0]}, v{T[1]}, {srd(sWS)}, 0 offen offset:{4*k}')
            a.label(f'L_nd{n}')
            a('s_endpgm')
            return
        a(f'''
        s_lshl_b32 s{sT0}, s2, 3
        s_add_u32 s{sT0}, s{sT0}, s{sWV}
        s_lshl_b32 s{sT0}, s{sT0}, 6
        v_mov_b32 v{T[1]}, s{sT0}
        s_mov_b64 exec, 1
        ''')
        for i in range(NST):
            a(f'v_mov_b32 v{T[0]}, s{sST+2*i}')
            a(f'buffer_store_dword v{T[0]}, v{T[1]}, {srd(sWS)}, 0 offen offset:{4*i}')
    a('s_endpgm')

def tab_reads(gi, em):
    A = vAFR + 20 * gi; o = 64 * gi
    for d in range(3):
        em(f'ds_read_b64_tr_b16 {vr(A+4*d,2)}, v{vTF0} offset:{o + 2*d*TP}')
        em(f'ds_read_b64_tr_b16 {vr(A+4*d+2,2)}, v{vTF1} offset:{o + 2*d*TP}')
    for par in range(2):
        for pp in range(2):
            em(f'ds_read_b64_tr_b16 {vr(A+12+4*par+2*pp,2)}, v{vTE} offset:{o + (pp - 2*par + 2)*TP}')
RING = 6
class Conv:
    def __init__(self, k0): self.n = 0; self.slot = 0; self.k0 = k0
    def acc(self, gi, k): return vACC + 16 * gi + 4 * (k - self.k0)
    def ds(self, t): a(t); self.n += 1; return self.n
    def wait(self, seq): a(f's_waitcnt lgkmcnt({min(15, self.n - seq)})')
    def reads(self, it):
        B = it['B']; go = 64 * it['gi']; idx = it['idx']; kind = it['kind']
        if kind == 'F':
            r0, r1 = 2 * idx, min(2 * idx + 1, 16)
            return [f'ds_read_b128 {vr(B,4)}, v{vAF} offset:{r0*XROW+go}', f'ds_read_b128 {vr(B+4,4)}, v{vAF} offset:{r1*XROW+go}']
        if kind == 'E':
            return [f'ds_read_b128 {vr(B,4)}, v{vAE} offset:{2*idx*XROW+go}', f'ds_read_b128 {vr(B+4,4)}, v{vAE} offset:{(2*idx+4)*XROW+go}']
        return [f'ds_read_b128 {vr(B,4)}, v{vAE} offset:{12*XROW+go}', f'ds_read_b128 {vr(B+4,4)}, v{vAE16} offset:{16*XROW+go}']
    def cvt(self, lst):
        for gi, k in lst:
            A = self.acc(gi, k)
            a(f'v_cvt_pk_bf16_f32 v{A}, v{A}, v{A+1}\nv_cvt_pk_bf16_f32 v{A+1}, v{A+2}, v{A+3}')
    def write(self, lst):
        for gi, k in lst:
            A = self.acc(gi, k)
            if k == 6: setexec(0xffff, 0xffff)
            self.ds(f'ds_write_b64 v{vAO}, {vr(A,2)} offset:{(k-self.k0)*6144+64*gi}')
            if k == 6: a('s_mov_b64 exec, -1')
    def run(self, items, stop_at=None):
        D = RING - 1
        nxt = 0
        while nxt < len(items) and 'seq' in items[nxt]: nxt += 1
        def start(j):
            items[j]['B'] = vB + 8 * (self.slot % RING); self.slot += 1
            return self.reads(items[j])
        while nxt < min(D, len(items)):
            for t in start(nxt): items[nxt]['seq'] = self.ds(t)
            nxt += 1
        end = len(items) if stop_at is None else stop_at
        for i in range(end):
            it = items[i]
            self.wait(it['seq'])
            pend = start(nxt) if nxt < len(items) else []
            A = vAFR + 20 * it['gi']
            had = bool(pend)
            for k in it['outs']:
                fr = (it['idx'] - k) if it['kind'] == 'F' else 3 + (k - it['idx'])
                a(f'v_smfmac_f32_16x16x64_bf16 {vr(self.acc(it["gi"], k),4)}, {vr(A+4*fr,4)}, {vr(it["B"],8)}, v{vIDX}')
                if pend: items[nxt]['seq'] = self.ds(pend.pop(0))
            for t in pend: items[nxt]['seq'] = self.ds(t)
            if had: nxt += 1
            if it.get('pub'):
                self.cvt(it['pub'])
                if not it.get('nowrite'): self.write(it['pub'])
            if it.get('post'): it['post']()
        return items[end:]
def stage(frags): return [dict(gi=gi, kind=k, idx=i, outs=list(o)) for gi in range(3) for (k, i, o) in frags]
def add_pub(items, base, nfr, pairs, nowrite=False):
    for gi in range(3):
        j = min(base + nfr * (gi + 1), len(items) - 1)
        items[j].setdefault('pub', []).extend((gi, k) for k in pairs)
        items[j]['nowrite'] = nowrite

def late_setup():
    mksrd(sOUT, 14, XBYTES)
    if opt('safe'): a('s_mov_b32 s98, 20000')
    a(f'''
    s_mov_b32 s{sCA}, {fbits(ga):#x}
    s_mov_b32 s{sCA+1}, {fbits(ga):#x}
    s_mov_b32 s{sCC}, {fbits(gc):#x}
    s_mov_b32 s{sCC+1}, {fbits(gc):#x}
    s_add_u32 s{sT0}, s{sWI}, s{sY0}
    s_mul_i32 s{sT0}, s{sT0}, 224
    s_add_u32 s{sT0}, s{sT0}, s{sX0}
    s_mul_i32 s{sO0}, s{sT0}, 192
    ''')
    if STAMP:
        a(f's_mov_b32 s{sWS+2}, {256 if opt("dbg") else 0x10000000}\ns_mov_b32 s{sWS+3}, 0x00020000')
        for i in (7,): a(f's_mov_b32 s{sST+2*i}, 0')
    for j in range(3):
        a(f'''
        v_add_u32 v{T[0]}, {64*j}, v{vLN}
        v_mul_u32_u24 v{T[2]}, 171, v{T[0]}
        v_bfe_u32 v{T[2]}, v{T[2]}, 12, 2
        v_xor_b32 v{T[0]}, v{T[0]}, v{T[2]}
        v_lshl_add_u32 v{vSR[j]}, v{T[0]}, 4, s{sIMG}
        ''')

def conv_setup1():
    a(f'''
v_and_b32 v{T[0]}, 3, v{vLN}
v_mul_u32_u24 v{vIDX}, 0x5555, v{T[0]}
s_lshl_b32 s{sT2}, s{sWI}, 4
s_add_u32 s{sT2}, s{sT2}, {TB}
v_bfe_u32 v{T[1]}, v{vLN}, 1, 1
v_lshl_add_u32 v{T[4]}, v{T[1]}, 3, s{sT2}
v_and_b32 v{T[0]}, 1, v{vLN}
v_lshrrev_b32 v{T[1]}, 5, v{vLN}
v_mul_u32_u24 v{vTE}, {TP}, v{T[1]}
v_sub_u32 v{T[1]}, v{T[1]}, v{T[0]}
v_bfe_u32 v{T[2]}, v{vLN}, 2, 1
v_mul_u32_u24 v{T[2]}, 7, v{T[2]}
v_sub_u32 v{T[1]}, v{T[1]}, v{T[2]}
v_add_u32 v{T[1]}, 8, v{T[1]}
v_mul_u32_u24 v{T[1]}, {TP}, v{T[1]}
v_bfe_u32 v{T[2]}, v{vLN}, 4, 1
v_mul_u32_u24 v{T[2]}, 192, v{T[2]}
v_add3_u32 v{T[3]}, v{T[1]}, v{T[2]}, v{T[4]}
v_lshrrev_b32 v{T[1]}, 4, v{vLN}
v_lshlrev_b32 v{T[2]}, 1, v{T[1]}
v_sub_u32 v{T[2]}, v{T[2]}, v{T[0]}
v_add_u32 v{T[2]}, 6, v{T[2]}
v_mul_u32_u24 v{T[2]}, {TP}, v{T[2]}
v_add_u32 v{vTF0}, s{sT2}, v{vTE}
v_add_u32 v{vTF1}, {TP}, v{vTF0}
v_mov_b32 v{vTE}, s{sT2}
s_mov_b32 exec_lo, 0xcc33cc33
s_mov_b32 exec_hi, 0xcc33cc33
v_mov_b32 v{vTF0}, v{T[3]}
v_add_u32 v{vTF1}, 384, v{T[3]}
s_mov_b32 exec_lo, 0x0c030c03
s_mov_b32 exec_hi, 0x0c030c03
v_add_u32 v{T[2]}, 768, v{T[2]}
v_add_u32 v{vTE}, v{T[2]}, v{T[4]}
s_mov_b64 exec, -1
v_and_b32 v{T[0]}, 15, v{vLN}
v_bfe_u32 v{T[2]}, v{vLN}, 4, 1
v_lshrrev_b32 v{T[3]}, 5, v{vLN}
v_lshl_add_u32 v{T[2]}, v{T[2]}, 1, v{T[3]}
v_add_u32 v{T[2]}, v{T[0]}, v{T[2]}
v_bfe_u32 v{T[3]}, v{T[2]}, 2, 2
v_xor_b32 v{T[3]}, s{sWI}, v{T[3]}
v_mul_u32_u24 v{T[2]}, 192, v{T[2]}
v_lshl_add_u32 v{vAF}, v{T[3]}, 4, v{T[2]}
v_add_u32 v{vAF}, {XB}, v{vAF}
''')
def conv_setup2(em=None):
    for i in range(24): a(f'v_mov_b64 {vr(vACC+2*i,2)}, 0')
    a(f'''
v_and_b32 v{T[0]}, 3, v{vLN}
v_lshlrev_b32 v{vFA}, 2, v{T[0]}
v_add_u32 v{vFA}, {FL}, v{vFA}
s_lshl_b32 s{sT0}, s{sWV}, 2
s_add_u32 s{sT0}, s{sT0}, {FL}
v_mov_b32 v{vFW}, s{sT0}
v_mov_b32 v{vFP}, 0
ds_write_b32 v{vFW}, v{vFP}
v_and_b32 v{T[0]}, 15, v{vLN}
v_lshrrev_b32 v{T[1]}, 4, v{vLN}
v_add_u32 v{T[2]}, 4, v{T[0]}
v_bfe_u32 v{T[3]}, v{T[2]}, 2, 2
v_xor_b32 v{T[3]}, s{sWI}, v{T[3]}
v_mul_u32_u24 v{T[2]}, 192, v{T[2]}
v_lshl_add_u32 v{vAE}, v{T[3]}, 4, v{T[2]}
v_add_u32 v{vAE16}, {XB}, v{vAE}
v_mul_u32_u24 v{T[2]}, {XROW}, v{T[1]}
v_add_u32 v{vAE}, v{vAE16}, v{T[2]}
v_bfe_u32 v{T[3]}, v{T[0]}, 2, 2
v_xor_b32 v{T[4]}, s{sWI}, v{T[3]}
v_mul_u32_u24 v{T[2]}, 192, v{T[0]}
v_lshl_add_u32 v{T[2]}, v{T[4]}, 4, v{T[2]}
v_bfe_u32 v{T[1]}, v{vLN}, 4, 1
v_mul_u32_u24 v{T[1]}, 3072, v{T[1]}
v_lshrrev_b32 v{T[3]}, 5, v{vLN}
v_bfe_u32 v{T[4]}, v{vLN}, 1, 1
v_xor_b32 v{T[3]}, v{T[3]}, v{T[4]}
v_lshl_add_u32 v{T[1]}, v{T[3]}, 3, v{T[1]}
v_add3_u32 v{vAO}, v{T[2]}, v{T[1]}, s{sOB}
''')

def dma_setup():
    mksrd(sW1, 10, 73728); mksrd(sW2, 12, 73728)
    a(f'''
    v_lshrrev_b32 v{T[0]}, 3, v{vLN}
    v_mul_u32_u24 v{T[0]}, 768, v{T[0]}
    v_bfe_u32 v{T[1]}, v{vLN}, 4, 1
    v_lshlrev_b32 v{T[1]}, 2, v{T[1]}
    v_and_b32 v{T[2]}, 7, v{vLN}
    v_xor_b32 v{T[1]}, v{T[1]}, v{T[2]}
    v_lshl_add_u32 v{T[0]}, v{T[1]}, 4, v{T[0]}
    s_and_b32 s{sT1}, s{sWI}, 1
    s_lshl_b32 s{sT0}, s{sT1}, 5
    v_xor_b32 v{vDW1[0]}, s{sT0}, v{T[0]}
    v_xor_b32 v{vDW1[1]}, 32, v{vDW1[0]}
    v_mov_b32 v{vDW2[0]}, v{vL16}
    v_mov_b32 v{vDW2[1]}, v{vL16}
    v_mov_b32 v{vDW2[2]}, v{vL16}
    s_mov_b32 exec_lo, 0xffff0000
    v_xor_b32 v{vDW2[2]}, 32, v{vL16}
    s_mov_b32 exec_lo, 0
    s_mov_b32 exec_hi, 0xffff0000
    v_xor_b32 v{vDW2[0]}, 32, v{vL16}
    s_mov_b32 exec_lo, -1
    s_mov_b32 exec_hi, 0
    v_xor_b32 v{vDW2[1]}, 32, v{vL16}
    s_mov_b64 exec, -1
    s_mul_i32 s{sWA}, s{sWI}, {3*6144}
    s_mul_i32 s{sWBm}, s{sWI}, 3072
    ''')

isF = 's_cmp_lt_u32' if FOLD else 's_cmp_ge_u32'
a(f'''
s_load_dwordx4 s[4:7], s[0:1], 0
s_load_dwordx4 s[8:11], s[0:1], 16
s_load_dwordx4 s[12:15], s[0:1], 32
s_getpc_b64 s[100:101]
L_pc:
''')
if STAMP: a(f's_load_dwordx2 s[{sWS}:{sWS+1}], s[0:1], {48 if opt("dbg") else 56}')
stamp(0)
if opt('hold'): a('s_memrealtime s[94:95]')
a(f'''
s_cmp_ge_u32 s2, 256
s_cbranch_scc1 L_end
v_lshrrev_b32 v{T[0]}, 6, v0
v_and_b32 v{vLN}, 63, v0
''')
PFM = opt('pf', 'h')
if PFM == 'first':
    a(f'''
    s_bfe_u32 s{sT3}, s2, 0x20003
    s_mul_i32 s{sT3}, s{sT3}, {80*128}
    v_mul_u32_u24 v{T[1]}, 10, v{T[0]}
    v_add_u32 v{T[1]}, v{T[1]}, v{vLN}
    v_lshl_add_u32 v{T[1]}, v{T[1]}, 7, s{sT3}
    v_min_u32 v{T[1]}, L_end-L_pc, v{T[1]}
    s_mov_b64 exec, 0x3ff
    global_load_dword v{vPF}, v{T[1]}, s[100:101]
    s_mov_b64 exec, -1
    ''')
a(f'''
s_lshr_b32 s{sT1}, s2, 3
v_readfirstlane_b32 s{sWV}, v{T[0]}
s_and_b32 s{sT2}, s2, 1
s_add_u32 s{sT2}, s{sT2}, s{sT1}
s_cmp_ge_u32 s{sT2}, 32
s_cbranch_scc1 L_end
s_and_b32 s{sT0}, s2, 3
v_mul_u32_u24 v{T[0]}, 43, v{vLN}
s_mul_i32 s{sT0}, s{sT0}, 63
s_add_u32 s{sT0}, s{sT0}, 1
v_lshrrev_b32 v{T[0]}, 9, v{T[0]}
s_lshr_b32 s{sT0}, s{sT0}, 1
s_add_u32 s{sT0}, s{sT0}, s{sT1}
v_mul_u32_u24 v{T[1]}, 12, v{T[0]}
s_mul_i32 s{sT1}, s{sT0}, 9363
s_lshr_b32 s{sT1}, s{sT1}, 16
v_sub_u32 v{T[1]}, v{vLN}, v{T[1]}
s_mul_i32 s{sT2}, s{sT1}, 7
s_sub_u32 s{sT0}, s{sT0}, s{sT2}
s_bfe_u32 s{sT2}, s2, 0x10002
s_mul_i32 s{sT2}, s{sT2}, 7
s_add_u32 s{sT0}, s{sT0}, s{sT2}
s_lshl_b32 s{sX0}, s{sT0}, 4
s_mul_i32 s{sY0}, s{sT1}, {112*7282}
s_add_u32 s{sH13}, s{sY0}, {112*7282}
s_lshr_b32 s{sY0}, s{sY0}, 16
s_lshr_b32 s{sH13}, s{sH13}, 16
s_sub_u32 s{sH13}, s{sH13}, s{sY0}
s_and_b32 s{sWI}, s{sWV}, 3
''')
if PFM == 'h':
    a(f'''
    s_cmp_eq_u32 s{sH13}, 13
    s_cbranch_scc1 L_nopf
    s_bfe_u32 s{sT3}, s2, 0x20003
    s_lshl_b32 s{sT3}, s{sT3}, 3
    s_add_u32 s{sT3}, s{sT3}, s{sWV}
    s_mul_i32 s{sT3}, s{sT3}, {10*128}
    v_lshl_add_u32 v{T[2]}, v{vLN}, 7, s{sT3}
    v_min_u32 v{T[2]}, L_end-L_pc, v{T[2]}
    s_mov_b64 exec, 0x3ff
    global_load_dword v{vPF}, v{T[2]}, s[100:101]
    s_mov_b64 exec, -1
    L_nopf:
    ''')
a(f'''
v_mov_b32 v{T[4]}, {MARK}
v_lshlrev_b32 v{vL16}, 4, v{vLN}
{isF} s{sWV}, 4
s_cbranch_scc1 L_F0
; ---- L: x rows
s_mul_i32 s{sT1}, s{sWI}, 5
v_add_u32 v{T[0]}, s{sT1}, v{T[0]}
v_bfe_u32 v{T[2]}, v{T[0]}, 2, 2
v_xor_b32 v{T[1]}, v{T[1]}, v{T[2]}
s_sub_u32 s{sT1}, s{sX0}, 2
v_add_u32 v{T[0]}, s{sT1}, v{T[0]}
v_mul_u32_u24 v{T[2]}, 192, v{T[0]}
v_cmp_gt_u32 vcc, 224, v{T[0]}
v_lshl_add_u32 v{T[2]}, v{T[1]}, 4, v{T[2]}
s_mul_i32 s{sXM}, s{sWI}, 960
s_add_u32 m0, s{sXM}, {XB}
s_movk_i32 s{sXM}, {XROW}
s_mov_b32 s99, 43008
v_cndmask_b32 v{vXO}, v{T[4]}, v{T[2]}, vcc
s_sub_u32 s{sT1}, s{sY0}, 2
s_mul_i32 s{sT1}, s{sT1}, s99
v_add_u32 v{vXO}, s{sT1}, v{vXO}
s_mov_b32 s{sX+2}, {XBYTES}
s_mov_b32 s{sX+3}, 0x00020000
s_mov_b32 exec_hi, 0x0fffffff
s_waitcnt lgkmcnt(0)
s_mov_b64 s[{sX}:{sX+1}], s[4:5]
''')
xl = [0]
def xrows(n):
    for _ in range(n):
        t = xl[0]; xl[0] += 1
        if t:
            a(f's_add_u32 m0, m0, s{sXM}')
            a(f'v_add_u32 v{vXO}, s99, v{vXO}')
        a(f'buffer_load_dwordx4 v{vXO}, {srd(sX)}, 0 offen lds')
NX0 = int(opt('nx0', 12))
xrows(NX0)
stamp(1)
a(f'''
s_branch L_L
L_F0:
; ---- F: conv weight tables, rows w and w+4 of both
s_setprio {opt("fprio", 2)}
s_mul_i32 s{sT3}, s{sWI}, 960
v_add_u32 v{T[2]}, s{sT3}, v{vL16}
s_mul_i32 s{sT3}, s{sWI}, 576
s_sub_u32 s{sT3}, s{sT3}, {2*576 + 192}
v_mov_b32 v{T[3]}, {MARK}
s_mov_b32 exec_lo, 0xfffff000
s_mov_b32 exec_hi, 0xffff
v_add_u32 v{T[3]}, s{sT3}, v{vL16}
v_add_u32 v{T[4]}, {4*576}, v{T[3]}
s_mov_b32 exec_lo, -1
s_mov_b32 exec_hi, 0x0fffffff
v_add_u32 v{T[1]}, {4*960}, v{T[2]}
s_mul_i32 s{sT3}, s{sWI}, {TP}
s_mov_b32 s{sDS+2}, 4800
s_mov_b32 s{sDS+3}, 0x00020000
s_mov_b32 s{sDL+2}, 1728
s_mov_b32 s{sDL+3}, 0x00020000
s_add_u32 m0, s{sT3}, {TB + 8*TP}
s_waitcnt lgkmcnt(0)
s_mov_b64 s[{sDS}:{sDS+1}], s[8:9]
s_mov_b64 s[{sDL}:{sDL+1}], s[6:7]
buffer_load_dwordx4 v{T[2]}, {srd(sDS)}, 0 offen lds
s_add_u32 m0, s{sT3}, {TB}
s_mul_i32 s{sIMG}, s{sWI}, 6144
buffer_load_dwordx4 v{T[3]}, {srd(sDL)}, 0 offen lds
s_add_u32 m0, s{sT3}, {TB + 12*TP}
s_mov_b32 s{sOB}, {OUTF}
buffer_load_dwordx4 v{T[1]}, {srd(sDS)}, 0 offen lds
s_add_u32 m0, s{sT3}, {TB + 4*TP}
s_nop 0
buffer_load_dwordx4 v{T[4]}, {srd(sDL)}, 0 offen lds
s_mov_b32 exec_hi, -1
''')
WPF = opt('wpf', '0') == '1'
if PFM in ('f', 'g'):
    if PFM == 'g': a(f's_cmp_eq_u32 s{sH13}, 13\ns_cselect_b32 s97, 1, 0xfffff')
    a(f'''
    s_bfe_u32 s{sT3}, s2, 0x20003
    s_lshl_b32 s{sT3}, s{sT3}, 2
    s_add_u32 s{sT3}, s{sT3}, s{sWI}
    s_mul_i32 s{sT3}, s{sT3}, {20*128}
    v_lshl_add_u32 v{T[1]}, v{vLN}, 7, s{sT3}
    v_min_u32 v{T[1]}, L_end-L_pc, v{T[1]}
    {'s_mov_b64 exec, 0xfffff' if PFM == 'f' else f's_cmp_eq_u32 s{sH13}, 13'+chr(10)+f's_cselect_b32 s{sT3}, 0, -1'+chr(10)+f'v_and_b32 v{T[1]}, s{sT3}, v{T[1]}'+chr(10)+'s_mov_b32 exec_lo, s97'+chr(10)+'s_mov_b32 exec_hi, 0'}
    global_load_dword v{vPF}, v{T[1]}, s[100:101]
    s_mov_b64 exec, -1
    ''')
if WPF:
    a(f'''
    s_and_b32 s{sT0}, s{sWI}, 1
    s_cselect_b64 s[{sT1}:{sT2}], s[12:13], s[10:11]
    s_lshr_b32 s{sT0}, s2, 3
    s_lshl_b32 s{sT0}, s{sT0}, 1
    s_lshr_b32 s{sT3}, s{sWI}, 1
    s_add_u32 s{sT0}, s{sT0}, s{sT3}
    s_mul_i32 s{sT0}, s{sT0}, {10*128}
    v_lshl_add_u32 v{T[0]}, v{vLN}, 7, s{sT0}
    v_min_u32 v{T[0]}, {73728-128}, v{T[0]}
    s_mov_b64 exec, 0x3ff
    global_load_dword v{vPF-1}, v{T[0]}, s[{sT1}:{sT2}]
    s_mov_b64 exec, -1
    ''')
conv_setup1()
OPF = opt('opf', '0') == '1'
if OPF:
    a(f'''
    s_mov_b64 exec, 1
    buffer_load_dword v{vPF-2}, v{vL16}, {srd(sOUT)}, s{sO0} offen
    s_mov_b64 exec, -1
    ''')
vFR = [48, 49, 50, 51]
vDW1[:] = [56, 57]; vDW2[:] = [58, 59, 60]
def f_setup1():
    a(f'''
    s_add_u32 s{sO1}, s{sO0}, {4*43008}
    v_lshrrev_b32 v{T[4]}, 5, v{vLN}
    v_bfe_u32 v{T[0]}, v{vLN}, 2, 2
    v_bfe_u32 v{T[1]}, v{vLN}, 4, 1
    v_and_b32 v{T[2]}, 3, v{vLN}
    v_lshl_add_u32 v{T[3]}, v{T[4]}, 4, v{T[0]}
    v_lshlrev_b32 v{T[3]}, 7, v{T[3]}
    v_lshl_add_u32 v{T[3]}, v{T[1]}, 5, v{T[3]}
    v_lshl_add_u32 v{T[3]}, v{T[2]}, 3, v{T[3]}
    v_bfe_u32 v{T[2]}, v{vLN}, 3, 1
    v_lshl_add_u32 v{vAW1[0]}, v{T[2]}, 6, v{T[3]}
    v_xor_b32 v{vAW1[1]}, 64, v{vAW1[0]}
    v_xor_b32 v{vAW1[2]}, 32, v{vAW1[0]}
    v_xor_b32 v{vAW1[3]}, 0x60, v{vAW1[0]}
    v_lshl_add_u32 v{T[3]}, v{T[4]}, 2, v{T[0]}
    v_mul_u32_u24 v{T[3]}, 192, v{T[3]}
    v_lshl_add_u32 v{T[3]}, v{T[1]}, 4, v{T[3]}
    v_and_b32 v{T[2]}, 1, v{vLN}
    v_xor_b32 v{T[2]}, v{T[2]}, v{T[4]}
    v_lshl_add_u32 v{T[3]}, v{T[2]}, 5, v{T[3]}
    v_bfe_u32 v{T[2]}, v{vLN}, 1, 1
    v_lshl_add_u32 v{T[3]}, v{T[2]}, 3, v{T[3]}
    v_add_u32 v{vAW2}, 12288, v{T[3]}
    s_mul_i32 s{sT2}, s{sWI}, 3072
    s_add_u32 s{sT2}, s{sT2}, {OUTF}
    s_mul_i32 s{sT1}, s{sWI}, {XROW}
    s_add_u32 s{sT1}, s{sT1}, {XB + 2*XROW + 384}
    v_lshlrev_b32 v{T[4]}, 1, v{T[4]}
    v_xor_b32 v{T[0]}, v{T[4]}, v{T[0]}
    v_and_b32 v{T[3]}, 15, v{vLN}
    v_mul_u32_u24 v{T[3]}, 192, v{T[3]}
    v_lshl_add_u32 v{T[0]}, v{T[0]}, 4, v{T[3]}
    v_lshl_add_u32 v{T[0]}, v{T[2]}, 3, v{T[0]}
    v_mul_u32_u24 v{T[2]}, {4*3072}, v{T[1]}
    v_add3_u32 v{vFR[0]}, v{T[0]}, v{T[2]}, s{sT2}
    v_xor_b32 v{vFR[1]}, 8, v{vFR[0]}
    v_xor_b32 v{vFR[2]}, 16, v{vFR[0]}
    v_xor_b32 v{vFR[3]}, 24, v{vFR[0]}
    v_add_u32 v{T[0]}, 2, v{vLN}
    v_bfe_u32 v{T[0]}, v{T[0]}, 2, 2
    v_xor_b32 v{T[0]}, v{T[4]}, v{T[0]}
    v_lshl_add_u32 v{T[0]}, v{T[0]}, 4, v{T[3]}
    v_mul_u32_u24 v{T[2]}, {4*XROW}, v{T[1]}
    v_add3_u32 v{vAR[0]}, v{T[0]}, v{T[2]}, s{sT1}
    v_xor_b32 v{vAR[1]}, 16, v{vAR[0]}
    v_bfe_u32 v{T[0]}, v{vLN}, 1, 2
    v_xor_b32 v{T[0]}, v{T[4]}, v{T[0]}
    v_lshl_add_u32 v{T[0]}, v{T[0]}, 4, v{T[3]}
    v_mul_u32_u24 v{T[2]}, 3072, v{T[1]}
    v_add3_u32 v{vSW[0]}, v{T[0]}, v{T[2]}, s{sIMG}
    v_xor_b32 v{vSW[1]}, 16, v{vSW[0]}
    ''')
def f_setup2():
    a(f'''
    v_and_b32 v{T[1]}, 1, v{vLN}
    v_lshlrev_b32 v{T[1]}, 4, v{T[1]}
    v_mov_b32 v{T[2]}, 0x3f80
    v_lshlrev_b32 v{T[1]}, v{T[1]}, v{T[2]}
    ''')
    for i in range(4): a(f'v_mov_b64 {vr(vID+2*i,2)}, 0')
    for i in range(8):
        pos = 16 * (i >> 2) + 8 * ((i >> 1) & 1) + 2 * (i & 1)
        setexec(3 << pos, 3 << (pos + 4))
        a(f'v_mov_b32 v{vID+i}, v{T[1]}')
    a('s_mov_b64 exec, -1')
FS = opt('fs', '00001')
fsl = [conv_setup2, late_setup, f_setup2, f_setup1, dma_setup]
def fsetup(k):
    for f, c in zip(fsl, FS):
        if int(c) == k: f()
fsetup(0)
stamp(1)
a(f's_waitcnt vmcnt({(1 if WPF else 0) + (1 if PFM in "fg" else 0) + (1 if OPF else 0)}) lgkmcnt(0)')
pstamp(9)
bar(2)
cv = Conv(0)
for gi in range(3): tab_reads(gi, cv.ds)
S0 = stage([('F',0,[0]), ('F',1,[0,1])])
cv.run(S0, 0)
def res_half(s):
    m = 0xffff0000 if s else 0xffff
    setexec(m, m)
    for ks in range(6):
        cv.ds(f'ds_read_b128 {vr(vRES+4*ks,4)}, v{vAR[ks&1]} offset:{64*(ks>>1)}')
    a('s_mov_b64 exec, -1')
def run_stage(left, frags, pairs, keep=0, mid=None):
    its = left + stage(frags)
    if pairs: add_pub(its, len(left), len(frags), pairs)
    if mid: its[mid[0]]['post'] = mid[1]
    return cv.run(its, len(its) - keep)
left = cv.run(S0, len(S0) - int(opt('keep0', 0)))
fsetup(1)
pstamp(10)
bar(3)
left = run_stage(left, [('F',2,[0,1,2]), ('F',3,[1,2,3]), ('E',0,[0,1])], [0, 1])
fsetup(2)
pstamp(11)
bar(4)
a(f's_setprio {opt("fprio2", 3)}')
left = run_stage(left, [('F',4,[2,3]), ('F',5,[3]), ('E',2,[2,3])], [2, 3])
signal(1)
a('s_waitcnt vmcnt(0)')
wdma(0, [0, 1, 2])
stamp(5)
poll(GF, 1)
RA = 168
for ks in range(6):
    a(f'ds_read_b64 {vr(RA+4*ks,2)}, v{vFR[2*(ks&1)]} offset:{64*(ks>>1)}')
    a(f'ds_read_b64 {vr(RA+4*ks+2,2)}, v{vFR[2*(ks&1)+1]} offset:{64*(ks>>1)}')
a(f's_setprio {opt("fprio3", 1)}')
wdma(1, [0, 1, 2])
a('s_waitcnt lgkmcnt(0)')
stamp(6)
def f_mid():
    for ks in range(6):
        a(f'ds_read_b128 {vr(vRES+4*ks,4)}, v{vAR[ks&1]} offset:{64*(ks>>1)}')
    landed(0, 2)
    wdma(0, [3, 4, 5]); wdma(1, [3, 4, 5])
    peek(GF)
def f_mid2():
    a('s_waitcnt lgkmcnt(0)')
    check(GF, 2)
    f_w1reads0()
ln(RA, 72, [vL + i for i in range(24)], False, f_mid, f_mid2)
stamp(8)
XH = {
  'start3': [lambda: landed(0, 3)],
  ('T1', 0): [lambda: peek(GF)],
  ('preT2', 0): [lambda: check(GF, 3)],
  ('T1', 1): [lambda: stamp(9)],
  ('T2', 1): [lambda: peek(GL)],
  ('preT1', 2): [lambda: check(GL, 6)],
  ('preT1', 4): [lambda: signal(4)],
  ('T1', 4): [lambda: peek(GL)],
  ('preT2', 4): [lambda: check(GL, 7)],
  ('T2', 5): [lambda: peek(GL)],
  ('preT1', 6): [lambda: check(GL, 8), lambda: stamp(10)],
  ('preT1', 8): [lambda: stamp(11)],
  ('T2', 8): [lambda: peek(GF)],
  ('preT1', 9): [lambda: check(GF, 4)],
  ('preT1', 10): [lambda: stamp(12)],
}
FP = opt('fp', 'n')
def fprio(c):
    if FP == 'n': return (0, 0) if c == 0 else None
    if FP == 's': return (1, 1) if c == 0 else None
    return (0, int(FP))
mlp32(XH, fprio)
stamp(13)
P = vY[0]; Q = vK[0]
for mt in range(3):
    for i in range(8):
        a(f'v_cvt_pk_bf16_f32 v{P+8*mt+i}, v{vO+16*mt+2*i}, v{vO+16*mt+2*i+1}')
    a(f'ds_write_b128 v{vSW[0]}, {vr(P+8*mt,4)} offset:{64*mt}')
    a(f'ds_write_b128 v{vSW[1]}, {vr(P+8*mt+4,4)} offset:{64*mt}')
for s in range(2):
    for j in range(3):
        a(f'ds_read_b128 {vr(Q+4*(3*s+j),4)}, v{vSR[j]} offset:{3072*s}')
for s in range(2):
    for j in range(3):
        a(f's_waitcnt lgkmcnt({5-(3*s+j)})')
        a(f'buffer_store_dwordx4 {vr(Q+4*(3*s+j),4)}, v{vL16}, {srd(sOUT)}, s{sO1 if s else sO0} offen offset:{1024*j}{STPOL}')
finish()
emit_slow()

a.label('L_L')
cv = Conv(4)
vDW1[:] = [220, 221]; vDW2[:] = [222, 223, 224]
vA0, vA2 = 48, 50
RR = 60
def l_setup():
    a(f'''
    s_add_u32 s{sO0}, s{sO0}, {8*43008}
    s_and_b32 s{sT1}, s{sWI}, 1
    v_lshrrev_b32 v{T[4]}, 4, v{vLN}
    v_bfe_u32 v{T[0]}, v{vLN}, 2, 2
    v_and_b32 v{T[2]}, 3, v{vLN}
    v_bfe_u32 v{T[1]}, v{vLN}, 4, 1
    v_lshlrev_b32 v{T[2]}, 3, v{T[2]}
    v_lshl_add_u32 v{T[2]}, v{T[1]}, 5, v{T[2]}
    v_lshl_add_u32 v{T[3]}, v{T[4]}, 3, v{T[0]}
    v_lshl_add_u32 v{T[3]}, v{T[3]}, 7, v{T[2]}
    v_bfe_u32 v{T[1]}, v{vLN}, 3, 1
    v_xor_b32 v{T[1]}, s{sT1}, v{T[1]}
    v_lshl_add_u32 v{T[3]}, v{T[1]}, 6, v{T[3]}
    s_lshr_b32 s{sT2}, s{sWI}, 1
    s_mul_i32 s{sT2}, s{sT2}, {PS}
    s_sub_u32 s{sT3}, {PS}, s{sT2}
    v_add_u32 v{vLW1}, s{sT2}, v{T[3]}
    v_add_u32 v{vLW1+4}, s{sT3}, v{T[3]}
    v_xor_b32 v{vLW1+1}, 32, v{vLW1}
    v_xor_b32 v{vLW1+2}, 64, v{vLW1}
    v_xor_b32 v{vLW1+3}, 0x60, v{vLW1}
    v_xor_b32 v{vLW1+5}, 32, v{vLW1+4}
    v_xor_b32 v{vLW1+6}, 64, v{vLW1+4}
    v_xor_b32 v{vLW1+7}, 0x60, v{vLW1+4}
    v_lshl_add_u32 v{T[3]}, v{T[4]}, 2, v{T[0]}
    v_mul_u32_u24 v{T[3]}, 192, v{T[3]}
    v_add_u32 v{T[3]}, v{T[3]}, v{T[2]}
    s_mul_i32 s{sT1}, s{sT1}, 6144
    s_add_u32 s{sT2}, s{sT2}, 12288
    s_add_u32 s{sT3}, s{sT3}, 12288
    s_add_u32 s{sT0}, s{sT2}, s{sT1}
    v_add_u32 v{vLW2}, s{sT0}, v{T[3]}
    s_add_u32 s{sT0}, s{sT3}, s{sT1}
    v_add_u32 v{vLW2+4}, s{sT0}, v{T[3]}
    s_sub_u32 s{sT1}, 6144, s{sT1}
    s_add_u32 s{sT0}, s{sT2}, s{sT1}
    v_add_u32 v{vLW2+2}, s{sT0}, v{T[3]}
    s_add_u32 s{sT0}, s{sT3}, s{sT1}
    v_add_u32 v{vLW2+6}, s{sT0}, v{T[3]}
    v_xor_b32 v{vLW2+1}, 32, v{vLW2}
    v_xor_b32 v{vLW2+3}, 32, v{vLW2+2}
    v_xor_b32 v{vLW2+5}, 32, v{vLW2+4}
    v_xor_b32 v{vLW2+7}, 32, v{vLW2+6}
    v_xor_b32 v{T[0]}, v{T[4]}, v{T[0]}
    v_and_b32 v{T[3]}, 15, v{vLN}
    v_mul_u32_u24 v{T[3]}, 192, v{T[3]}
    v_lshl_add_u32 v{T[0]}, v{T[0]}, 4, v{T[3]}
    v_add_u32 v{vARL}, {L12}, v{T[0]}
    v_bfe_u32 v{T[1]}, v{vLN}, 1, 1
    v_lshl_add_u32 v{T[0]}, v{T[1]}, 3, v{T[0]}
    v_add_u32 v{vA2}, {L12}, v{T[0]}
    v_xor_b32 v{vA2+1}, 8, v{vA2}
    v_add_u32 v{vA0}, s{sIMG}, v{T[0]}
    v_xor_b32 v{vA0+1}, 8, v{vA0}
    s_mul_i32 s{sT0}, s{sWI}, {XROW}
    v_bfe_u32 v{T[1]}, v{vLN}, 4, 1
    v_lshl_add_u32 v{T[3]}, v{T[1]}, 3, v{T[3]}
    v_lshrrev_b32 v{T[4]}, 5, v{vLN}
    v_bfe_u32 v{T[0]}, v{vLN}, 1, 2
    v_xor_b32 v{T[0]}, v{T[4]}, v{T[0]}
    v_lshl_add_u32 v{T[0]}, v{T[0]}, 4, v{T[3]}
    v_add_u32 v{vSW[0]}, s{sIMG}, v{T[0]}
    v_xor_b32 v{vSW[1]}, 32, v{vSW[0]}
    v_add_u32 v{T[0]}, 2, v{vLN}
    v_bfe_u32 v{T[0]}, v{T[0]}, 2, 2
    v_xor_b32 v{T[0]}, v{T[4]}, v{T[0]}
    v_lshl_add_u32 v{T[0]}, v{T[0]}, 4, v{T[3]}
    s_add_u32 s{sT0}, s{sT0}, {XB + 384}
    v_add_u32 v{vAR[0]}, s{sT0}, v{T[0]}
    v_xor_b32 v{vAR[1]}, 32, v{vAR[0]}
    ''')

a(f'''
s_mov_b32 exec_hi, -1
s_mul_i32 s{sIMG}, s{sWI}, 3072
s_add_u32 s{sIMG}, s{sIMG}, {S_IL}
s_mov_b32 s{sOB}, {OUTL}
''')
LS = opt('ls', '02002')
lsl = [conv_setup1, dma_setup, conv_setup2, late_setup, l_setup]
def lsetup(k):
    for f, c in zip(lsl, LS):
        if int(c) == k: f()
lsetup(0)
pstamp(14)
a(f's_waitcnt vmcnt({NX0 - 4})')
pstamp(9)
bar(2)
if NX0 < 17:
    a('s_mov_b32 exec_hi, 0x0fffffff')
    xrows(17 - NX0)
    a('s_mov_b32 exec_hi, -1')
lsetup(1)
for gi in range(3): tab_reads(gi, cv.ds)
pstamp(10)
a('s_waitcnt vmcnt(9)')
pstamp(11)
bar(3)
lsetup(2)
pstamp(12)
a('s_waitcnt vmcnt(0) lgkmcnt(0)')
pstamp(13)
bar(4)
a(f's_setprio {opt("lprio", 2)}')
RED, LNW = 1, 3
def raw_reads(R, ad, off=0):
    for ks in range(3):
        a(f'ds_read_b64 {vr(R+4*ks,2)}, v{ad} offset:{off+64*ks}')
        a(f'ds_read_b64 {vr(R+4*ks+2,2)}, v{ad+1} offset:{off+64*ks}')
def row_store(O, soff, P=vY[0], Q=vK[0]):
    for i in range(12):
        a(f'v_cvt_pk_bf16_f32 v{P+i}, v{O+2*i}, v{O+2*i+1}')
    for i in range(6):
        a(f'ds_write_b64 v{vSW[i&1]}, {vr(P+2*i,2)} offset:{64*(i>>1)}')
    for j in range(3):
        a(f'ds_read_b128 {vr(Q+4*j,4)}, v{vSR[j]}')
    for j in range(3):
        a(f's_waitcnt lgkmcnt({2-j})')
        a(f'buffer_store_dwordx4 {vr(Q+4*j,4)}, v{vL16}, {srd(sOUT)}, s{soff} offen offset:{1024*j}{STPOL}')
LP = opt('lp', 'k')
def lprio(c):
    if LP == 'n': return (0, 0) if c == 0 else None
    if LP == 's': return (1, 1) if c == 0 else None
    if LP == 'k':
        lo, hi = [int(x) for x in opt('lk', '0,9').split(',')]
        if lo <= c < hi: return (0, 1)
        return (0, 0) if c in (0, hi) else None
    return (0, int(LP))
def l_body(h13):
    global cv
    keep = cv
    cv = copy.copy(keep)
    sfx = 'a' if h13 else 'b'
    if h13:
        frags = [('F',4,[4]), ('F',5,[4,5]), ('F',6,[4,5,6]), ('F',7,[5,6]), ('E',4,[4,5]), ('F',8,[6]), ('L',6,[6])]; pairs = [4, 5, 6]
    else:
        frags = [('F',4,[4]), ('F',5,[4,5]), ('F',6,[4,5]), ('F',7,[5]), ('E',4,[4,5])]; pairs = [4, 5]
    its = stage(frags)
    add_pub(its, 0, len(frags), pairs)
    def resr():
        for i in range(6):
            cv.ds(f'ds_read_b64 {vr(RR+2*i,2)}, v{vAR[i&1]} offset:{10*XROW+64*(i>>1)}')
        if h13:
            for i in range(6):
                cv.ds(f'ds_read_b64 {vr(RR+12+2*i,2)}, v{vAR[i&1]} offset:{(14-RED)*XROW+64*(i>>1)}')
    if opt('lc'):
        nf = len(frags)
        for j, idx in ((9, 0), (10, nf - 1), (11, nf), (12, 2 * nf - 1), (13, 2 * nf)):
            its[idx]['post'] = lambda j=j: _st(j)
    if '3' in LS:
        cv.run(its, 0)
        lsetup(3)
    cv.run(its)
    stamp(6)
    signal(2)
    resr()
    stamp(5)
    poll(GL, 2)
    stamp(7)
    RAW = 168
    raw_reads(RAW, vA0)
    for i in range(12):
        a(f'v_lshlrev_b32 v{vO+2*i}, 16, v{RR+i}\nv_and_b32 v{vO+2*i+1}, 0xffff0000, v{RR+i}')
    if h13:
        a(f's_cmp_eq_u32 s{sWI}, {RED}\ns_cbranch_scc1 L_ri{sfx}')
        for i in range(12): a(f'v_mov_b64 {vr(vO+24+2*i,2)}, 0')
        a(f's_branch L_rj{sfx}')
        a.label(f'L_ri{sfx}')
        for i in range(12):
            a(f'v_lshlrev_b32 v{vO+24+2*i}, 16, v{RR+12+i}\nv_and_b32 v{vO+24+2*i+1}, 0xffff0000, v{RR+12+i}')
        a.label(f'L_rj{sfx}')
    signal(3)
    if h13: raw_reads(RAW + 12, vA2)
    a(f's_waitcnt lgkmcnt({7 if h13 else 1})')
    def l_mid2():
        a('s_waitcnt lgkmcnt(0)')
        check(GF, 2)
        l_w1reads(0)
    ln(RAW, 72, [vL + i for i in range(12)], True, lambda: peek(GF), l_mid2)
    if h13:
        a(f's_cmp_lg_u32 s{sWI}, {LNW}\ns_cbranch_scc1 L_nl12')
        ln(RAW + 12, 72, [RAW + 12 + i for i in range(12)], True)
        for ks in range(3):
            a(f'ds_write_b128 v{vARL}, {vr(RAW+12+4*ks,4)} offset:{64*ks}')
        a.label('L_nl12')
        signal(5)
    stamp(8)
    def l12r():
        for ks in range(3):
            a(f'ds_read_b128 {vr(vL+12+4*ks,4)}, v{vARL} offset:{64*ks}')
    def pub_rem():
        a(f's_cmp_eq_u32 s{sWI}, {RED}\ns_cbranch_scc1 L_np\ns_mul_i32 s{sT0}, s{sWI}, 6144\nv_add_u32 v{T[0]}, s{sT0}, v{vL16}')
        for i in range(6):
            a(f'ds_write_b128 v{T[0]}, {vr(vO+24+4*i,4)} offset:{S_R + 1024*i}')
        a.label('L_np')
        signal(9)
    H = {
      'start3': [lambda: peek(GL)],
      ('preT1', 0): [lambda: check(GL, 3)],
      ('T1', 0): [lambda: wdma(2, [0, 1, 2]), lambda: wdma(3, [0, 1, 2]), lambda: peek(GF)],
      ('preT2', 0): [lambda: check(GF, 3)],
      ('T2', 0): [lambda: wdma(2, [3, 4, 5])] + ([lambda: peek(GL)] if h13 else []),
      ('preT1', 1): [lambda: check(GL, 5)] if h13 else [],
      ('T1', 1): [lambda: wdma(3, [3, 4, 5]), lambda: stamp(9)] + ([l12r] if h13 else []),
      ('preT2', 1): [lambda: landed(6, 6)],
      ('T2', 1): [lambda: wdma(4, [0, 1, 2]), lambda: peek(GL)],
      ('preT1', 2): [lambda: check(GL, 6)],
      ('T1', 2): [lambda: wdma(4, [3, 4, 5])],
      ('T2', 2): [lambda: wdma(5, [0, 1, 2])],
      ('preT1', 3): [lambda: landed(9, 7)],
      ('T1', 3): [lambda: wdma(5, [3, 4, 5])],
      ('T1', 4): [lambda: peek(GL)],
      ('preT2', 4): [lambda: check(GL, 7), lambda: landed(0, 8)],
      ('T2', 5): [lambda: peek(GL)],
      ('preT1', 6): [lambda: check(GL, 8), lambda: stamp(10)],
      ('preT1', 8): [lambda: stamp(11)],
      ('preT1', 10): [lambda: stamp(12)],
    }
    if h13:
        H[('T2', 9)] = [lambda: peek(GF)]
        H[('preT1', 10)] = H[('preT1', 10)] + [lambda: check(GF, 4), pub_rem]
        def reduce12():
            a(f's_cmp_lg_u32 s{sWI}, {RED}\ns_cbranch_scc1 L_nored')
            poll(GL, 9)
            others = [w for w in range(4) if w != RED]
            R = [144, 48, 144]
            def rd(n):
                for i in range(6):
                    a(f'ds_read_b128 {vr(R[n]+4*i,4)}, v{vL16} offset:{S_R + 6144*others[n] + 1024*i}')
            def ad(n):
                for i in range(24):
                    a(f'v_add_f32 v{vO+24+i}, v{vO+24+i}, v{R[n]+i}')
            rd(0); rd(1)
            a('s_waitcnt lgkmcnt(6)'); ad(0); rd(2)
            a('s_waitcnt lgkmcnt(6)'); ad(1)
            a('s_waitcnt lgkmcnt(0)'); ad(2)
            a(f's_add_u32 s{sO1}, s{sO0}, {(4-RED)*43008}')
            row_store(vO + 24, sO1, 48, 144)
            a.label('L_nored')
        H[('T1', 11)] = [reduce12]
    mlp16([3, 5, 8] if h13 else [], H, lprio)
    stamp(13)
    row_store(vO, sO0)
    finish()
    emit_slow()
    cv = keep
a(f's_cmp_lg_u32 s{sH13}, 13\ns_cbranch_scc1 L_L12')
l_body(True)
a.label('L_L12')
l_body(False)
a.label('L_end')
a('s_endpgm')

body = a.finalize()
hdr = open('cdna_kernels/' + NAME + '.s.ref').read().split('\n')
out = []
for l in hdr:
    if l.startswith('; @launch'):
        out.append('; @launch grid=(256,1,1) block=(512,1,1) lds=163840')
    elif l.startswith(';'):
        out.append(l)
    else:
        break
out.append('.amdgcn_target "amdgcn-amd-amdhsa--gfx950"')
out.append('.text')
out.append(f'.globl {NAME}_kernel')
out.append('.p2align 8')
out.append(f'.type {NAME}_kernel,@function')
out.append(f'{NAME}_kernel:')
for l in body:
    out.append(l if l.endswith(':') else '    ' + l)
out.append(f'''.section .rodata,"a"
.p2align 6
.amdhsa_kernel {NAME}_kernel
  .amdhsa_next_free_vgpr 256
  .amdhsa_next_free_sgpr 102
  .amdhsa_accum_offset 256
  .amdhsa_group_segment_fixed_size 0
  .amdhsa_kernarg_size 64
  .amdhsa_user_sgpr_count 2
  .amdhsa_user_sgpr_kernarg_segment_ptr 1
  .amdhsa_system_sgpr_workgroup_id_x 1
.end_amdhsa_kernel''')
print('\n'.join(out))
```

```python
import sys, struct, math, copy
from asmlib import Asm

NAME = "standalone__modern_conv_block_replknet__vision"
def fbits(x): return struct.unpack('<I', struct.pack('<f', x))[0]
def opt(name, default=None):
    for x in sys.argv:
        if x == '--' + name: return True
        if x.startswith('--' + name + '='): return x.split('=', 1)[1]
    return default
STAMP = opt('stamp'); CYC = opt('cyc'); PRO = opt('pro')
STPOL = ' ' + opt('stpol', 'sc1').replace('_', ' ') if opt('stpol', 'sc1') != 'none' else ''
FOLD = opt('fold', '1') == '1'
GL, GF = (1, 0) if FOLD else (0, 1)

XPOL = ' ' + opt('xpol').replace('_', ' ') if opt('xpol') else ''
XROW = 3840
XB = 73728
PS = 24576
TB, TP = 139264, 976
OUTF, OUTL = 49152, 147456
L12 = OUTL + 4*3072
FL = 163584
S_IF, S_R, S_IL = 0, 24576, OUTL
MARK = 0x40000000
XBYTES = 224 * 224 * 192

k0 = math.sqrt(2.0 / math.pi); k1 = 0.044715
c0 = 2 * k0 / math.log(2.0); c1 = c0 * k1
ga = c1 ** (1.0 / 3.0)
gc = -c0 / ga

sX, sDL, sDS, sW1, sW2, sOUT = 16, 20, 24, 28, 32, 36
sWV, sY0, sX0, sT0, sT1, sT2, sT3 = 40, 41, 42, 43, 44, 45, 46
sH13, sWI = 47, 3
sCA, sCC = 48, 50
sWS = 52
sXM, sIMG, sOB = 56, 57, 62
sWA, sWBm = 58, 59
sO0, sO1 = 60, 61
sST = 64
NST = 16
def srd(b): return f's[{b}:{b+3}]'
vO, vL, vY, vK, vG, vF1, vF2 = 0, 48, [72, 88], [104, 120], 136, 144, 168
vRES, vID = 204, 228
vAW1 = [236, 237, 245, 249]; vAW2 = 238
vLW1 = 204; vLW2 = 212
vDW1 = [220, 221]; vDW2 = [222, 223, 224]
vARL = 225
vSW = [239, 240]; vSR = [241, 242, 243]
vL16 = 244
vFA, vFW, vFP = 246, 247, 248
T = [250, 251, 252, 253, 254]
vLN = 255
vXO = 203; vPF = 54
vAF, vAE, vAO, vIDX, vTF0, vTF1, vTE, vAR, vAE16, vAO1 = 192, 193, 194, 195, 196, 197, 198, [199, 200], 201, 202
vACC, vAFR, vB = 0, 84, 144
def vr(b, n): return f'v[{b}:{b+n-1}]'

a = Asm()
def _st(i): a(f'{"s_memtime" if CYC else "s_memrealtime"} s[{sST+2*i}:{sST+2*i+1}]')
def pstamp(i):
    if STAMP and PRO and not opt('lc'): _st(i)
def stamp(i):
    if opt('amp') and int(opt('amp')) == i: a('s_memrealtime s[88:89]')
    if i in (8, 13): hold(i)
    if STAMP and not (PRO and 9 <= i <= 14): _st(i)
def mksrd(b, lo, n):
    a(f's_mov_b64 s[{b}:{b+1}], s[{lo}:{lo+1}]\ns_mov_b32 s{b+2}, {n}\ns_mov_b32 s{b+3}, 0x00020000')
def hold(tag):
    h = opt('hold')
    if h and h.split(':')[0] == str(tag):
        n = nlab[0]; nlab[0] += 1
        a(f's_waitcnt lgkmcnt(0)\ns_add_u32 s92, s94, {h.split(":")[1]}')
        a.label(f'L_hold{n}')
        a(f's_memrealtime s[90:91]\ns_waitcnt lgkmcnt(0)\ns_sub_u32 s93, s92, s90\ns_cmp_gt_i32 s93, 0\ns_cbranch_scc1 L_hold{n}')
def bar(i=None):
    a('s_barrier')
    hold(i)
    if i is not None: stamp(i)
def setexec(lo, hi):
    a(f's_mov_b32 exec_lo, {lo:#x}\ns_mov_b32 exec_hi, {hi:#x}')

nlab = [0]; slow = []
def guard():
    if opt('safe'): a('s_sub_u32 s98, s98, 1\ns_cbranch_scc1 L_end')
def signal(v, emit=None):
    a(f'v_mov_b32 v{T[4]}, {v}')
    (emit or a)(f'ds_write_b32 v{vFW}, v{T[4]}')
def poll(grp, v):
    lab = f'L_poll{nlab[0]}'; nlab[0] += 1
    a.label(lab)
    guard()
    a(f'ds_read_b32 v{vFP}, v{vFA} offset:{16*grp}\ns_waitcnt lgkmcnt(0)\nv_cmp_gt_u32 vcc, {v}, v{vFP}\ns_cbranch_vccnz {lab}')
def peek(grp): a(f'ds_read_b32 v{vFP}, v{vFA} offset:{16*grp}')
def check(grp, v):
    n = nlab[0]; nlab[0] += 1
    a(f'v_cmp_gt_u32 vcc, {v}, v{vFP}\ns_cbranch_vccnz L_slow{n}')
    a.label(f'L_back{n}')
    slow.append((n, grp, v))
def emit_slow():
    for n, grp, v in slow:
        a.label(f'L_slow{n}')
        guard()
        a(f'ds_read_b32 v{vFP}, v{vFA} offset:{16*grp}\ns_waitcnt lgkmcnt(0)\nv_cmp_gt_u32 vcc, {v}, v{vFP}\ns_cbranch_vccnz L_slow{n}\ns_branch L_back{n}')
    slow.clear()
def landed(n, v):
    a(f's_waitcnt vmcnt({n})'); signal(v)

def wdma(p, parts=range(6)):
    for i in parts:
        if i < 3:
            a(f'''
            s_add_u32 m0, s{sWBm}, {PS*p + 1024*i}
            s_add_u32 s{sT0}, s{sWA}, {6144*i + 128*p}
            buffer_load_dwordx4 v{vDW1[i & 1]}, {srd(sW1)}, s{sT0} offen lds
            ''')
        else:
            if i == 3 or i - 1 not in parts:
                a(f's_add_u32 m0, s{sWBm}, {PS*p + 12288}\ns_add_u32 s{sT0}, s{sWBm}, {12288*p}')
            a(f'buffer_load_dwordx4 v{vDW2[i-3]}, {srd(sW2)}, s{sT0} offen offset:{1024*(i-3)} lds')

def ln(raw, U, dst, rows16, mid=None, mid2=None):
    n = len(dst)
    S, Q, ONE = T[1], T[3], T[4]
    sc, bi = T[0], T[2]
    a(f'v_mov_b32 v{ONE}, 0x3f803f80')
    un = []
    for i in range(n):
        un.append(f'v_lshlrev_b32 v{U+2*i}, 16, v{raw+i}')
        un.append(f'v_and_b32 v{U+2*i+1}, 0xffff0000, v{raw+i}')
    while len(un) > 8: a(un.pop(0))
    for i in range(n):
        a(f'v_dot2_f32_bf16 v{S}, v{raw+i}, v{ONE}, {"0" if i == 0 else f"v{S}"}')
        a(f'v_dot2_f32_bf16 v{Q}, v{raw+i}, v{raw+i}, {"0" if i == 0 else f"v{Q}"}')
    def fill(k):
        for _ in range(k):
            if un: a(un.pop(0))
    fill(3)
    a(f'v_permlane32_swap_b32 v{S}, v{Q}')
    a(f'v_add_f32 v{S}, v{S}, v{Q}')
    if rows16:
        a(f'v_mov_b32 v{Q}, v{S}')
        fill(2)
        a(f'v_permlane16_swap_b32 v{S}, v{Q}')
        a(f'v_add_f32 v{S}, v{S}, v{Q}')
    a(f'v_mul_f32 v{S}, {fbits(1.0/96):#x}, v{S}')
    a(f'v_mov_b32 v{Q}, v{S}')
    fill(2)
    a(f'v_permlane32_swap_b32 v{S}, v{Q}')
    a(f'''
    v_fma_f32 v{Q}, -v{S}, v{S}, v{Q}
    v_max_f32 v{Q}, 0, v{Q}
    v_add_f32 v{Q}, {fbits(1e-5):#x}, v{Q}
    v_rsq_f32 v{Q}, v{Q}
    ''')
    fill(1)
    a(f'v_mul_f32 v{sc}, {fbits(ga):#x}, v{Q}')
    a(f'v_mul_f32 v{bi}, -v{S}, v{sc}')
    fill(1000)
    if mid: mid()
    for i in range(n):
        if opt('lnplain'):
            a(f'v_fma_f32 v{U+2*i}, v{U+2*i}, v{sc}, v{bi}\nv_fma_f32 v{U+2*i+1}, v{U+2*i+1}, v{sc}, v{bi}')
        else:
            a(f'v_pk_fma_f32 {vr(U+2*i,2)}, {vr(U+2*i,2)}, {vr(sc,2)}, {vr(bi,2)} op_sel_hi:[1,0,0]')
    if mid2: mid2()
    for i in range(n):
        a(f'v_cvt_pk_bf16_f32 v{dst[i]}, v{U+2*i}, v{U+2*i+1}')

def pk_t(Y, K, n):
    return [f'v_pk_fma_f32 {vr(K+2*i,2)}, {vr(Y+2*i,2)}, {vr(Y+2*i,2)}, s[{sCC}:{sCC+1}] neg_lo:[1,0,0] neg_hi:[1,0,0]' for i in range(n//2)] + pk_m(Y, K, n)
def pk_m(Y, K, n): return [f'v_pk_mul_f32 {vr(K+2*i,2)}, {vr(Y+2*i,2)}, {vr(K+2*i,2)}' for i in range(n//2)]
def pk_d(K, n): return [f'v_pk_fma_f32 {vr(K+2*i,2)}, {vr(K+2*i,2)}, s[{sCA}:{sCA+1}], s[{sCA}:{sCA+1}]' for i in range(n//2)]
def emit(l):
    for t in l: a(t)

def mlp32(hooks, prio):
    N = 12
    moved = {'w1': False, 'w2': False}
    def move(kind, c):
        if c >= 6 and not moved[kind]:
            for r in (vAW1 if kind == 'w1' else [vAW2]): a(f'v_add_u32 v{r}, {3*PS}, v{r}')
            moved[kind] = True
    def w1reads(c):
        for ks in range(6):
            off = ((c >> 1) % 3) * PS + (ks >> 1) * 4096 + (ks & 1) * 1024
            r = vAW1[(c & 1) + 2 * (ks & 1)]
            a(f'ds_read_b64_tr_b16 {vr(vF1+4*ks,2)}, v{r} offset:{off}')
            a(f'ds_read_b64_tr_b16 {vr(vF1+4*ks+2,2)}, v{r} offset:{off+512}')
    def w2reads(c):
        for i in range(6):
            ks2, mt = i // 3, i % 3
            off = ((c >> 1) % 3) * PS + (c & 1) * 6144 + ks2 * 3072 + mt * 64
            a(f'ds_read_b64_tr_b16 {vr(vF2+4*i,2)}, v{vAW2} offset:{off}')
            a(f'ds_read_b64_tr_b16 {vr(vF2+4*i+2,2)}, v{vAW2} offset:{off+1536}')
    def g1(c, ks):
        Y = vY[c & 1]
        a(f'v_mfma_f32_32x32x16_bf16 {vr(Y,16)}, {vr(vF1+4*ks,4)}, {vr(vL+4*ks,4)}, {"0" if ks == 0 else vr(Y,16)}')
    def g2(i):
        ks2, mt = i // 3, i % 3
        a(f'v_mfma_f32_32x32x16_bf16 {vr(vO+16*mt,16)}, {vr(vF2+4*i,4)}, {vr(vG+4*ks2,4)}, {vr(vO+16*mt,16)}')
    def resm(ks):
        j, mt = ks // 3, ks % 3
        a(f'v_mfma_f32_32x32x16_bf16 {vr(vO+16*mt,16)}, {vr(vID+4*j,4)}, {vr(vRES+4*(2*mt+j),4)}, {"0" if j == 0 else vr(vO+16*mt,16)}')
    def hook(k):
        for f in hooks.get(k, []): f()
    def pr(c, v):
        if prio(c) is not None: a(f's_setprio {prio(c)[v]}')
    hook('pre')
    a('s_waitcnt lgkmcnt(0)')
    for ks in range(6): g1(0, ks)
    w1reads(1)
    hook('start3')
    for c in range(N + 1):
        Y, K = vY[c & 1], vK[c & 1]
        Yp, Kp = vY[(c - 1) & 1], vK[(c - 1) & 1]
        pr(c, 1)
        if c >= 1: emit(pk_m(Yp, Kp, 16))
        if c < N: emit(pk_t(Y, K, 16))
        cv = [f'v_cvt_pk_bf16_f32 v{vG+i}, v{Kp+2*i}, v{Kp+2*i+1}' for i in range(8)] if c >= 1 else []
        if c == N:
            emit(cv)
            a('s_waitcnt lgkmcnt(0)')
            for i in (0, 3, 1, 4, 2, 5): g2(i)
            break
        ex = [f'v_exp_f32 v{K+i}, v{K+i}' for i in range(16)]
        rc = [f'v_rcp_f32 v{K+i}, v{K+i}' for i in range(16)]
        last = c + 1 >= N
        if c + 2 < N: move('w1', c + 2)
        move('w2', c)
        if c == 0:
            gaps = [ex[0:3], ex[3:6], ex[6:9], ex[9:12], ex[12:15], ex[15:16]]
            a('s_waitcnt lgkmcnt(0)')
            for j in range(6):
                g1(1, j); emit(gaps[j])
        elif not last:
            gaps = [cv[0:4] + ex[0:1], cv[4:8] + ex[1:2], ex[2:5], ex[5:8], ex[8:11], ex[11:14], ex[14:16]]
            for j in range(7):
                if j < 6: g1(c + 1, j)
                else: g2(0)
                if j == 5: a('s_waitcnt lgkmcnt(0)')
                emit(gaps[j])
        else:
            emit(cv); emit(ex[0:4])
            a('s_waitcnt lgkmcnt(0)')
            gaps = [ex[4:8], ex[8:12], ex[12:16]]
            for j in range(3):
                g2(j); emit(gaps[j])
        hook(('preT1', c))
        pr(c, 0)
        if c + 2 < N: w1reads(c + 2)
        hook(('T1', c))
        pr(c, 1)
        emit(pk_d(K, 16))
        if c == 0:
            gp = [rc[0:3], rc[3:6], rc[6:9], rc[9:12], rc[12:14], rc[14:16]]
            for j in range(6):
                resm(j)
                if j == 5: a('s_waitcnt lgkmcnt(0)')
                emit(gp[j])
        elif not last:
            gp = [rc[0:3], rc[3:6], rc[6:9], rc[9:12], rc[12:16]]
            for j in range(5):
                g2(j + 1)
                if j == 4: a('s_waitcnt lgkmcnt(0)')
                emit(gp[j])
        else:
            gp = [rc[0:3], rc[3:6], rc[6:16]]
            for j in range(3):
                g2(j + 3)
                if j == 2: w2reads(c)
                emit(gp[j])
        hook(('preT2', c))
        pr(c, 0)
        if not last: w2reads(c)
        hook(('T2', c))
    return w1reads

def f_w1reads0():
    for ks in range(6):
        off = (ks >> 1) * 4096 + (ks & 1) * 1024
        r = vAW1[2 * (ks & 1)]
        a(f'ds_read_b64_tr_b16 {vr(vF1+4*ks,2)}, v{r} offset:{off}')
        a(f'ds_read_b64_tr_b16 {vr(vF1+4*ks+2,2)}, v{r} offset:{off+512}')

def l_w1reads(s):
    for i in range(6):
        mt2, ks3 = i // 3, i % 3
        off = ((s >> 2) & 1) * 2 * PS + ks3 * 4096
        r = vLW1 + mt2 + 2 * (s & 3)
        a(f'ds_read_b64_tr_b16 {vr(vF1+4*i,2)}, v{r} offset:{off}')
        a(f'ds_read_b64_tr_b16 {vr(vF1+4*i+2,2)}, v{r} offset:{off+512}')

def mlp16(doubles, hooks, prio):
    N = 12
    def wid(s): return 0 if (s < 0 or s >= N) else (2 if s in doubles else 1)
    def move(base):
        for r in range(8): a(f'v_add_u32 v{base+r}, {4*PS}, v{base+r}')
    def w2reads(s):
        for i in range(6):
            off = ((s >> 2) & 1) * 2 * PS + 64 * (i >> 1)
            r = vLW2 + (i & 1) + 2 * (s & 3)
            a(f'ds_read_b64_tr_b16 {vr(vF2+4*i,2)}, v{r} offset:{off}')
            a(f'ds_read_b64_tr_b16 {vr(vF2+4*i+2,2)}, v{r} offset:{off+3072}')
    def m1(s):
        l = []
        for t in range(wid(s)):
            for j in range(6):
                mt2, ks3 = j & 1, j >> 1
                D = vY[s & 1] + 8 * t + 4 * mt2
                l.append(f'v_mfma_f32_16x16x32_bf16 {vr(D,4)}, {vr(vF1+4*(mt2*3+ks3),4)}, {vr(vL+12*t+4*ks3,4)}, {"0" if ks3 == 0 else vr(D,4)}')
        return l
    def m2(s):
        return [f'v_mfma_f32_16x16x32_bf16 {vr(vO+24*t+4*i,4)}, {vr(vF2+4*i,4)}, {vr(vG+4*t,4)}, {vr(vO+24*t+4*i,4)}' for t in range(wid(s)) for i in range(6)]
    def weave(ms, fl):
        fl = list(fl)
        if not ms:
            emit(fl); a('s_waitcnt lgkmcnt(0)'); return
        for j, m in enumerate(ms):
            a(m)
            if j == len(ms) - 1: a('s_waitcnt lgkmcnt(0)')
            k = -(-len(fl) // (len(ms) - j))
            emit(fl[:k]); fl = fl[k:]
    def hook(k):
        for f in hooks.get(k, []): f()
    def pr(c, v):
        if prio(c) is not None: a(f's_setprio {prio(c)[v]}')
    hook('pre')
    a('s_waitcnt lgkmcnt(0)')
    emit(m1(0))
    l_w1reads(1)
    hook('start3')
    for s in range(N + 1):
        Y, K = vY[s & 1], vK[s & 1]
        Yp, Kp = vY[(s - 1) & 1], vK[(s - 1) & 1]
        n, np_ = 8 * wid(s), 8 * wid(s - 1)
        pr(s, 1)
        emit(pk_m(Yp, Kp, np_))
        emit(pk_t(Y, K, n))
        cv = [f'v_cvt_pk_bf16_f32 v{vG+i}, v{Kp+2*i}, v{Kp+2*i+1}' for i in range(np_ // 2)]
        if s == N:
            emit(cv)
            a('s_waitcnt lgkmcnt(0)')
            emit(m2(N - 1))
            break
        ex = [f'v_exp_f32 v{K+i}, v{K+i}' for i in range(n)]
        rc = [f'v_rcp_f32 v{K+i}, v{K+i}' for i in range(n)]
        if s + 2 == 8: move(vLW1)
        if s == 8: move(vLW2)
        if s == 0: a('s_waitcnt lgkmcnt(0)')
        weave(m1(s + 1), cv + ex)
        hook(('preT1', s))
        pr(s, 0)
        if s + 2 < N: l_w1reads(s + 2)
        hook(('T1', s))
        pr(s, 1)
        emit(pk_d(K, n))
        weave(m2(s - 1), rc)
        hook(('preT2', s))
        pr(s, 0)
        w2reads(s)
        hook(('T2', s))

def finish():
    if opt('amp'):
        n = nlab[0]; nlab[0] += 1
        a(f's_waitcnt vmcnt(0) lgkmcnt(0)\ns_sub_u32 s92, s88, s94\ns_lshl_b32 s92, s92, 2')
        a(f's_cmp_eq_u32 s{sH13}, {opt("amprows", 13)}\ns_cselect_b32 s92, s92, 0\ns_add_u32 s92, s92, 1400\ns_add_u32 s92, s92, s94')
        a.label(f'L_amp{n}')
        a(f's_memrealtime s[90:91]\ns_waitcnt lgkmcnt(0)\ns_sub_u32 s93, s92, s90\ns_cmp_gt_i32 s93, 0\ns_cbranch_scc1 L_amp{n}')
    if STAMP:
        stamp(14)
        a('s_waitcnt vmcnt(0)')
        stamp(15)
        a('s_waitcnt lgkmcnt(0)')
        if opt('dbg'):
            n = nlab[0]; nlab[0] += 1
            a(f's_cmp_lg_u32 s2, {opt("dbg")}\ns_cbranch_scc1 L_nd{n}\ns_cmp_lg_u32 s{sWI}, 0\ns_cbranch_scc1 L_nd{n}')
            a(f's_lshl_b32 s{sT0}, s{sWV}, 3\nv_mov_b32 v{T[1]}, s{sT0}\ns_mov_b64 exec, 1')
            for k, i in enumerate((1, 2, 3, 4, 8, 10, 13, 15)):
                a(f's_sub_u32 s{sT0}, s{sST+2*i}, s{sST}\nv_mov_b32 v{T[0]}, s{sT0}')
                a(f'buffer_store_dword v{T[0]}, v{T[1]}, {srd(sWS)}, 0 offen offset:{4*k}')
            a.label(f'L_nd{n}')
            a('s_endpgm')
            return
        a(f'''
        s_lshl_b32 s{sT0}, s2, 3
        s_add_u32 s{sT0}, s{sT0}, s{sWV}
        s_lshl_b32 s{sT0}, s{sT0}, 6
        v_mov_b32 v{T[1]}, s{sT0}
        s_mov_b64 exec, 1
        ''')
        for i in range(NST):
            a(f'v_mov_b32 v{T[0]}, s{sST+2*i}')
            a(f'buffer_store_dword v{T[0]}, v{T[1]}, {srd(sWS)}, 0 offen offset:{4*i}')
    a('s_endpgm')

def tab_reads(gi, em):
    A = vAFR + 20 * gi; o = 64 * gi
    for d in range(3):
        em(f'ds_read_b64_tr_b16 {vr(A+4*d,2)}, v{vTF0} offset:{o + 2*d*TP}')
        em(f'ds_read_b64_tr_b16 {vr(A+4*d+2,2)}, v{vTF1} offset:{o + 2*d*TP}')
    for par in range(2):
        for pp in range(2):
            em(f'ds_read_b64_tr_b16 {vr(A+12+4*par+2*pp,2)}, v{vTE} offset:{o + (pp - 2*par + 2)*TP}')
RING = 6
class Conv:
    def __init__(self, k0): self.n = 0; self.slot = 0; self.k0 = k0
    def acc(self, gi, k): return vACC + 16 * gi + 4 * (k - self.k0)
    def ds(self, t): a(t); self.n += 1; return self.n
    def wait(self, seq): a(f's_waitcnt lgkmcnt({min(15, self.n - seq)})')
    def reads(self, it):
        B = it['B']; go = 64 * it['gi']; idx = it['idx']; kind = it['kind']
        if kind == 'F':
            r0, r1 = 2 * idx, min(2 * idx + 1, 16)
            return [f'ds_read_b128 {vr(B,4)}, v{vAF} offset:{r0*XROW+go}', f'ds_read_b128 {vr(B+4,4)}, v{vAF} offset:{r1*XROW+go}']
        if kind == 'E':
            return [f'ds_read_b128 {vr(B,4)}, v{vAE} offset:{2*idx*XROW+go}', f'ds_read_b128 {vr(B+4,4)}, v{vAE} offset:{(2*idx+4)*XROW+go}']
        return [f'ds_read_b128 {vr(B,4)}, v{vAE} offset:{12*XROW+go}', f'ds_read_b128 {vr(B+4,4)}, v{vAE16} offset:{16*XROW+go}']
    def cvt(self, lst):
        for gi, k in lst:
            A = self.acc(gi, k)
            a(f'v_cvt_pk_bf16_f32 v{A}, v{A}, v{A+1}\nv_cvt_pk_bf16_f32 v{A+1}, v{A+2}, v{A+3}')
    def write(self, lst):
        for gi, k in lst:
            A = self.acc(gi, k)
            if k == 6: setexec(0xffff, 0xffff)
            self.ds(f'ds_write_b64 v{vAO}, {vr(A,2)} offset:{(k-self.k0)*6144+64*gi}')
            if k == 6: a('s_mov_b64 exec, -1')
    def run(self, items, stop_at=None):
        D = RING - 1
        nxt = 0
        while nxt < len(items) and 'seq' in items[nxt]: nxt += 1
        def start(j):
            items[j]['B'] = vB + 8 * (self.slot % RING); self.slot += 1
            return self.reads(items[j])
        while nxt < min(D, len(items)):
            for t in start(nxt): items[nxt]['seq'] = self.ds(t)
            nxt += 1
        end = len(items) if stop_at is None else stop_at
        for i in range(end):
            it = items[i]
            self.wait(it['seq'])
            pend = start(nxt) if nxt < len(items) else []
            A = vAFR + 20 * it['gi']
            had = bool(pend)
            for k in it['outs']:
                fr = (it['idx'] - k) if it['kind'] == 'F' else 3 + (k - it['idx'])
                a(f'v_smfmac_f32_16x16x64_bf16 {vr(self.acc(it["gi"], k),4)}, {vr(A+4*fr,4)}, {vr(it["B"],8)}, v{vIDX}')
                if pend: items[nxt]['seq'] = self.ds(pend.pop(0))
            for t in pend: items[nxt]['seq'] = self.ds(t)
            if had: nxt += 1
            if it.get('pub'):
                self.cvt(it['pub'])
                if not it.get('nowrite'): self.write(it['pub'])
            if it.get('post'): it['post']()
        return items[end:]
def stage(frags): return [dict(gi=gi, kind=k, idx=i, outs=list(o)) for gi in range(3) for (k, i, o) in frags]
def add_pub(items, base, nfr, pairs, nowrite=False):
    for gi in range(3):
        j = min(base + nfr * (gi + 1), len(items) - 1)
        items[j].setdefault('pub', []).extend((gi, k) for k in pairs)
        items[j]['nowrite'] = nowrite

def late_setup():
    mksrd(sOUT, 14, XBYTES)
    if opt('safe'): a('s_mov_b32 s98, 20000')
    a(f'''
    s_mov_b32 s{sCA}, {fbits(ga):#x}
    s_mov_b32 s{sCA+1}, {fbits(ga):#x}
    s_mov_b32 s{sCC}, {fbits(gc):#x}
    s_mov_b32 s{sCC+1}, {fbits(gc):#x}
    s_add_u32 s{sT0}, s{sWI}, s{sY0}
    s_mul_i32 s{sT0}, s{sT0}, 224
    s_add_u32 s{sT0}, s{sT0}, s{sX0}
    s_mul_i32 s{sO0}, s{sT0}, 192
    ''')
    if STAMP:
        a(f's_mov_b32 s{sWS+2}, {256 if opt("dbg") else 0x10000000}\ns_mov_b32 s{sWS+3}, 0x00020000')
        for i in (7,): a(f's_mov_b32 s{sST+2*i}, 0')
    for j in range(3):
        a(f'''
        v_add_u32 v{T[0]}, {64*j}, v{vLN}
        v_mul_u32_u24 v{T[2]}, 171, v{T[0]}
        v_bfe_u32 v{T[2]}, v{T[2]}, 12, 2
        v_xor_b32 v{T[0]}, v{T[0]}, v{T[2]}
        v_lshl_add_u32 v{vSR[j]}, v{T[0]}, 4, s{sIMG}
        ''')

def conv_setup1():
    a(f'''
v_and_b32 v{T[0]}, 3, v{vLN}
v_mul_u32_u24 v{vIDX}, 0x5555, v{T[0]}
s_lshl_b32 s{sT2}, s{sWI}, 4
s_add_u32 s{sT2}, s{sT2}, {TB}
v_bfe_u32 v{T[1]}, v{vLN}, 1, 1
v_lshl_add_u32 v{T[4]}, v{T[1]}, 3, s{sT2}
v_and_b32 v{T[0]}, 1, v{vLN}
v_lshrrev_b32 v{T[1]}, 5, v{vLN}
v_mul_u32_u24 v{vTE}, {TP}, v{T[1]}
v_sub_u32 v{T[1]}, v{T[1]}, v{T[0]}
v_bfe_u32 v{T[2]}, v{vLN}, 2, 1
v_mul_u32_u24 v{T[2]}, 7, v{T[2]}
v_sub_u32 v{T[1]}, v{T[1]}, v{T[2]}
v_add_u32 v{T[1]}, 8, v{T[1]}
v_mul_u32_u24 v{T[1]}, {TP}, v{T[1]}
v_bfe_u32 v{T[2]}, v{vLN}, 4, 1
v_mul_u32_u24 v{T[2]}, 192, v{T[2]}
v_add3_u32 v{T[3]}, v{T[1]}, v{T[2]}, v{T[4]}
v_lshrrev_b32 v{T[1]}, 4, v{vLN}
v_lshlrev_b32 v{T[2]}, 1, v{T[1]}
v_sub_u32 v{T[2]}, v{T[2]}, v{T[0]}
v_add_u32 v{T[2]}, 6, v{T[2]}
v_mul_u32_u24 v{T[2]}, {TP}, v{T[2]}
v_add_u32 v{vTF0}, s{sT2}, v{vTE}
v_add_u32 v{vTF1}, {TP}, v{vTF0}
v_mov_b32 v{vTE}, s{sT2}
s_mov_b32 exec_lo, 0xcc33cc33
s_mov_b32 exec_hi, 0xcc33cc33
v_mov_b32 v{vTF0}, v{T[3]}
v_add_u32 v{vTF1}, 384, v{T[3]}
s_mov_b32 exec_lo, 0x0c030c03
s_mov_b32 exec_hi, 0x0c030c03
v_add_u32 v{T[2]}, 768, v{T[2]}
v_add_u32 v{vTE}, v{T[2]}, v{T[4]}
s_mov_b64 exec, -1
v_and_b32 v{T[0]}, 15, v{vLN}
v_bfe_u32 v{T[2]}, v{vLN}, 4, 1
v_lshrrev_b32 v{T[3]}, 5, v{vLN}
v_lshl_add_u32 v{T[2]}, v{T[2]}, 1, v{T[3]}
v_add_u32 v{T[2]}, v{T[0]}, v{T[2]}
v_bfe_u32 v{T[3]}, v{T[2]}, 2, 2
v_xor_b32 v{T[3]}, s{sWI}, v{T[3]}
v_mul_u32_u24 v{T[2]}, 192, v{T[2]}
v_lshl_add_u32 v{vAF}, v{T[3]}, 4, v{T[2]}
v_add_u32 v{vAF}, {XB}, v{vAF}
''')
def conv_setup2(em=None):
    for i in range(24): a(f'v_mov_b64 {vr(vACC+2*i,2)}, 0')
    a(f'''
v_and_b32 v{T[0]}, 3, v{vLN}
v_lshlrev_b32 v{vFA}, 2, v{T[0]}
v_add_u32 v{vFA}, {FL}, v{vFA}
s_lshl_b32 s{sT0}, s{sWV}, 2
s_add_u32 s{sT0}, s{sT0}, {FL}
v_mov_b32 v{vFW}, s{sT0}
v_mov_b32 v{vFP}, 0
ds_write_b32 v{vFW}, v{vFP}
v_and_b32 v{T[0]}, 15, v{vLN}
v_lshrrev_b32 v{T[1]}, 4, v{vLN}
v_add_u32 v{T[2]}, 4, v{T[0]}
v_bfe_u32 v{T[3]}, v{T[2]}, 2, 2
v_xor_b32 v{T[3]}, s{sWI}, v{T[3]}
v_mul_u32_u24 v{T[2]}, 192, v{T[2]}
v_lshl_add_u32 v{vAE}, v{T[3]}, 4, v{T[2]}
v_add_u32 v{vAE16}, {XB}, v{vAE}
v_mul_u32_u24 v{T[2]}, {XROW}, v{T[1]}
v_add_u32 v{vAE}, v{vAE16}, v{T[2]}
v_bfe_u32 v{T[3]}, v{T[0]}, 2, 2
v_xor_b32 v{T[4]}, s{sWI}, v{T[3]}
v_mul_u32_u24 v{T[2]}, 192, v{T[0]}
v_lshl_add_u32 v{T[2]}, v{T[4]}, 4, v{T[2]}
v_bfe_u32 v{T[1]}, v{vLN}, 4, 1
v_mul_u32_u24 v{T[1]}, 3072, v{T[1]}
v_lshrrev_b32 v{T[3]}, 5, v{vLN}
v_bfe_u32 v{T[4]}, v{vLN}, 1, 1
v_xor_b32 v{T[3]}, v{T[3]}, v{T[4]}
v_lshl_add_u32 v{T[1]}, v{T[3]}, 3, v{T[1]}
v_add3_u32 v{vAO}, v{T[2]}, v{T[1]}, s{sOB}
''')

def dma_setup():
    mksrd(sW1, 10, 73728); mksrd(sW2, 12, 73728)
    a(f'''
    v_lshrrev_b32 v{T[0]}, 3, v{vLN}
    v_mul_u32_u24 v{T[0]}, 768, v{T[0]}
    v_bfe_u32 v{T[1]}, v{vLN}, 4, 1
    v_lshlrev_b32 v{T[1]}, 2, v{T[1]}
    v_and_b32 v{T[2]}, 7, v{vLN}
    v_xor_b32 v{T[1]}, v{T[1]}, v{T[2]}
    v_lshl_add_u32 v{T[0]}, v{T[1]}, 4, v{T[0]}
    s_and_b32 s{sT1}, s{sWI}, 1
    s_lshl_b32 s{sT0}, s{sT1}, 5
    v_xor_b32 v{vDW1[0]}, s{sT0}, v{T[0]}
    v_xor_b32 v{vDW1[1]}, 32, v{vDW1[0]}
    v_mov_b32 v{vDW2[0]}, v{vL16}
    v_mov_b32 v{vDW2[1]}, v{vL16}
    v_mov_b32 v{vDW2[2]}, v{vL16}
    s_mov_b32 exec_lo, 0xffff0000
    v_xor_b32 v{vDW2[2]}, 32, v{vL16}
    s_mov_b32 exec_lo, 0
    s_mov_b32 exec_hi, 0xffff0000
    v_xor_b32 v{vDW2[0]}, 32, v{vL16}
    s_mov_b32 exec_lo, -1
    s_mov_b32 exec_hi, 0
    v_xor_b32 v{vDW2[1]}, 32, v{vL16}
    s_mov_b64 exec, -1
    s_mul_i32 s{sWA}, s{sWI}, {3*6144}
    s_mul_i32 s{sWBm}, s{sWI}, 3072
    ''')

isF = 's_cmp_lt_u32' if FOLD else 's_cmp_ge_u32'
a(f'''
s_load_dwordx4 s[4:7], s[0:1], 0
s_load_dwordx4 s[8:11], s[0:1], 16
s_load_dwordx4 s[12:15], s[0:1], 32
s_getpc_b64 s[100:101]
L_pc:
''')
if STAMP: a(f's_load_dwordx2 s[{sWS}:{sWS+1}], s[0:1], {48 if opt("dbg") else 56}')
stamp(0)
if opt('hold') or opt('amp'): a('s_memrealtime s[94:95]')
a(f'''
s_cmp_ge_u32 s2, 256
s_cbranch_scc1 L_end
v_lshrrev_b32 v{T[0]}, 6, v0
v_and_b32 v{vLN}, 63, v0
''')
PFM = opt('pf', 'h')
if PFM == 'first':
    a(f'''
    s_bfe_u32 s{sT3}, s2, 0x20003
    s_mul_i32 s{sT3}, s{sT3}, {80*128}
    v_mul_u32_u24 v{T[1]}, 10, v{T[0]}
    v_add_u32 v{T[1]}, v{T[1]}, v{vLN}
    v_lshl_add_u32 v{T[1]}, v{T[1]}, 7, s{sT3}
    v_min_u32 v{T[1]}, L_end-L_pc, v{T[1]}
    s_mov_b64 exec, 0x3ff
    global_load_dword v{vPF}, v{T[1]}, s[100:101]
    s_mov_b64 exec, -1
    ''')
a(f'''
s_lshr_b32 s{sT1}, s2, 3
v_readfirstlane_b32 s{sWV}, v{T[0]}
s_and_b32 s{sT2}, s2, 1
s_add_u32 s{sT2}, s{sT2}, s{sT1}
s_cmp_ge_u32 s{sT2}, 32
s_cbranch_scc1 L_end
s_and_b32 s{sT0}, s2, 3
v_mul_u32_u24 v{T[0]}, 43, v{vLN}
s_mul_i32 s{sT0}, s{sT0}, 63
s_add_u32 s{sT0}, s{sT0}, 1
v_lshrrev_b32 v{T[0]}, 9, v{T[0]}
s_lshr_b32 s{sT0}, s{sT0}, 1
s_add_u32 s{sT0}, s{sT0}, s{sT1}
v_mul_u32_u24 v{T[1]}, 12, v{T[0]}
s_mul_i32 s{sT1}, s{sT0}, 9363
s_lshr_b32 s{sT1}, s{sT1}, 16
v_sub_u32 v{T[1]}, v{vLN}, v{T[1]}
s_mul_i32 s{sT2}, s{sT1}, 7
s_sub_u32 s{sT0}, s{sT0}, s{sT2}
s_bfe_u32 s{sT2}, s2, 0x10002
s_mul_i32 s{sT2}, s{sT2}, 7
s_add_u32 s{sT0}, s{sT0}, s{sT2}
s_lshl_b32 s{sX0}, s{sT0}, 4
s_mul_i32 s{sY0}, s{sT1}, {112*7282}
s_add_u32 s{sH13}, s{sY0}, {112*7282}
s_lshr_b32 s{sY0}, s{sY0}, 16
s_lshr_b32 s{sH13}, s{sH13}, 16
s_sub_u32 s{sH13}, s{sH13}, s{sY0}
s_and_b32 s{sWI}, s{sWV}, 3
''')
if PFM == 'h':
    a(f'''
    s_cmp_eq_u32 s{sH13}, 13
    s_cbranch_scc1 L_nopf
    s_bfe_u32 s{sT3}, s2, 0x20003
    s_lshl_b32 s{sT3}, s{sT3}, 3
    s_add_u32 s{sT3}, s{sT3}, s{sWV}
    s_mul_i32 s{sT3}, s{sT3}, {10*128}
    v_lshl_add_u32 v{T[2]}, v{vLN}, 7, s{sT3}
    v_min_u32 v{T[2]}, L_end-L_pc, v{T[2]}
    s_mov_b64 exec, 0x3ff
    global_load_dword v{vPF}, v{T[2]}, s[100:101]
    s_mov_b64 exec, -1
    L_nopf:
    ''')
a(f'''
v_mov_b32 v{T[4]}, {MARK}
v_lshlrev_b32 v{vL16}, 4, v{vLN}
{isF} s{sWV}, 4
s_cbranch_scc1 L_F0
; ---- L: x rows
s_mul_i32 s{sT1}, s{sWI}, 5
v_add_u32 v{T[0]}, s{sT1}, v{T[0]}
v_bfe_u32 v{T[2]}, v{T[0]}, 2, 2
v_xor_b32 v{T[1]}, v{T[1]}, v{T[2]}
s_sub_u32 s{sT1}, s{sX0}, 2
v_add_u32 v{T[0]}, s{sT1}, v{T[0]}
v_mul_u32_u24 v{T[2]}, 192, v{T[0]}
v_cmp_gt_u32 vcc, 224, v{T[0]}
v_lshl_add_u32 v{T[2]}, v{T[1]}, 4, v{T[2]}
s_mul_i32 s{sXM}, s{sWI}, 960
s_add_u32 m0, s{sXM}, {XB}
s_movk_i32 s{sXM}, {XROW}
s_mov_b32 s99, 43008
v_cndmask_b32 v{vXO}, v{T[4]}, v{T[2]}, vcc
s_sub_u32 s{sT1}, s{sY0}, 2
s_mul_i32 s{sT1}, s{sT1}, s99
v_add_u32 v{vXO}, s{sT1}, v{vXO}
s_mov_b32 s{sX+2}, {XBYTES}
s_mov_b32 s{sX+3}, 0x00020000
s_mov_b32 exec_hi, 0x0fffffff
s_waitcnt lgkmcnt(0)
s_mov_b64 s[{sX}:{sX+1}], s[4:5]
''')
xl = [0]
def xrows(n):
    for _ in range(n):
        t = xl[0]; xl[0] += 1
        if t:
            a(f's_add_u32 m0, m0, s{sXM}')
            a(f'v_add_u32 v{vXO}, s99, v{vXO}')
        a(f'buffer_load_dwordx4 v{vXO}, {srd(sX)}, 0 offen{XPOL} lds')
NX0 = int(opt('nx0', 12))
xrows(NX0)
stamp(1)
a(f'''
s_branch L_L
L_F0:
; ---- F: conv weight tables, rows w and w+4 of both
s_setprio {opt("fprio", 2)}
s_mul_i32 s{sT3}, s{sWI}, 960
v_add_u32 v{T[2]}, s{sT3}, v{vL16}
s_mul_i32 s{sT3}, s{sWI}, 576
s_sub_u32 s{sT3}, s{sT3}, {2*576 + 192}
v_mov_b32 v{T[3]}, {MARK}
s_mov_b32 exec_lo, 0xfffff000
s_mov_b32 exec_hi, 0xffff
v_add_u32 v{T[3]}, s{sT3}, v{vL16}
v_add_u32 v{T[4]}, {4*576}, v{T[3]}
s_mov_b32 exec_lo, -1
s_mov_b32 exec_hi, 0x0fffffff
v_add_u32 v{T[1]}, {4*960}, v{T[2]}
s_mul_i32 s{sT3}, s{sWI}, {TP}
s_mov_b32 s{sDS+2}, 4800
s_mov_b32 s{sDS+3}, 0x00020000
s_mov_b32 s{sDL+2}, 1728
s_mov_b32 s{sDL+3}, 0x00020000
s_add_u32 m0, s{sT3}, {TB + 8*TP}
s_waitcnt lgkmcnt(0)
s_mov_b64 s[{sDS}:{sDS+1}], s[8:9]
s_mov_b64 s[{sDL}:{sDL+1}], s[6:7]
buffer_load_dwordx4 v{T[2]}, {srd(sDS)}, 0 offen lds
s_add_u32 m0, s{sT3}, {TB}
s_mul_i32 s{sIMG}, s{sWI}, 6144
buffer_load_dwordx4 v{T[3]}, {srd(sDL)}, 0 offen lds
s_add_u32 m0, s{sT3}, {TB + 12*TP}
s_mov_b32 s{sOB}, {OUTF}
buffer_load_dwordx4 v{T[1]}, {srd(sDS)}, 0 offen lds
s_add_u32 m0, s{sT3}, {TB + 4*TP}
s_nop 0
buffer_load_dwordx4 v{T[4]}, {srd(sDL)}, 0 offen lds
s_mov_b32 exec_hi, -1
''')
WPF = opt('wpf', '0') == '1'
if PFM in ('f', 'g'):
    if PFM == 'g': a(f's_cmp_eq_u32 s{sH13}, 13\ns_cselect_b32 s97, 1, 0xfffff')
    a(f'''
    s_bfe_u32 s{sT3}, s2, 0x20003
    s_lshl_b32 s{sT3}, s{sT3}, 2
    s_add_u32 s{sT3}, s{sT3}, s{sWI}
    s_mul_i32 s{sT3}, s{sT3}, {20*128}
    v_lshl_add_u32 v{T[1]}, v{vLN}, 7, s{sT3}
    v_min_u32 v{T[1]}, L_end-L_pc, v{T[1]}
    {'s_mov_b64 exec, 0xfffff' if PFM == 'f' else f's_cmp_eq_u32 s{sH13}, 13'+chr(10)+f's_cselect_b32 s{sT3}, 0, -1'+chr(10)+f'v_and_b32 v{T[1]}, s{sT3}, v{T[1]}'+chr(10)+'s_mov_b32 exec_lo, s97'+chr(10)+'s_mov_b32 exec_hi, 0'}
    global_load_dword v{vPF}, v{T[1]}, s[100:101]
    s_mov_b64 exec, -1
    ''')
if WPF:
    a(f'''
    s_and_b32 s{sT0}, s{sWI}, 1
    s_cselect_b64 s[{sT1}:{sT2}], s[12:13], s[10:11]
    s_lshr_b32 s{sT0}, s2, 3
    s_lshl_b32 s{sT0}, s{sT0}, 1
    s_lshr_b32 s{sT3}, s{sWI}, 1
    s_add_u32 s{sT0}, s{sT0}, s{sT3}
    s_mul_i32 s{sT0}, s{sT0}, {10*128}
    v_lshl_add_u32 v{T[0]}, v{vLN}, 7, s{sT0}
    v_min_u32 v{T[0]}, {73728-128}, v{T[0]}
    s_mov_b64 exec, 0x3ff
    global_load_dword v{vPF-1}, v{T[0]}, s[{sT1}:{sT2}]
    s_mov_b64 exec, -1
    ''')
conv_setup1()
OPF = opt('opf', '0') == '1'
if OPF:
    a(f'''
    s_mov_b64 exec, 1
    buffer_load_dword v{vPF-2}, v{vL16}, {srd(sOUT)}, s{sO0} offen
    s_mov_b64 exec, -1
    ''')
vFR = [48, 49, 50, 51]
vDW1[:] = [56, 57]; vDW2[:] = [58, 59, 60]
def f_setup1():
    a(f'''
    s_add_u32 s{sO1}, s{sO0}, {4*43008}
    v_lshrrev_b32 v{T[4]}, 5, v{vLN}
    v_bfe_u32 v{T[0]}, v{vLN}, 2, 2
    v_bfe_u32 v{T[1]}, v{vLN}, 4, 1
    v_and_b32 v{T[2]}, 3, v{vLN}
    v_lshl_add_u32 v{T[3]}, v{T[4]}, 4, v{T[0]}
    v_lshlrev_b32 v{T[3]}, 7, v{T[3]}
    v_lshl_add_u32 v{T[3]}, v{T[1]}, 5, v{T[3]}
    v_lshl_add_u32 v{T[3]}, v{T[2]}, 3, v{T[3]}
    v_bfe_u32 v{T[2]}, v{vLN}, 3, 1
    v_lshl_add_u32 v{vAW1[0]}, v{T[2]}, 6, v{T[3]}
    v_xor_b32 v{vAW1[1]}, 64, v{vAW1[0]}
    v_xor_b32 v{vAW1[2]}, 32, v{vAW1[0]}
    v_xor_b32 v{vAW1[3]}, 0x60, v{vAW1[0]}
    v_lshl_add_u32 v{T[3]}, v{T[4]}, 2, v{T[0]}
    v_mul_u32_u24 v{T[3]}, 192, v{T[3]}
    v_lshl_add_u32 v{T[3]}, v{T[1]}, 4, v{T[3]}
    v_and_b32 v{T[2]}, 1, v{vLN}
    v_xor_b32 v{T[2]}, v{T[2]}, v{T[4]}
    v_lshl_add_u32 v{T[3]}, v{T[2]}, 5, v{T[3]}
    v_bfe_u32 v{T[2]}, v{vLN}, 1, 1
    v_lshl_add_u32 v{T[3]}, v{T[2]}, 3, v{T[3]}
    v_add_u32 v{vAW2}, 12288, v{T[3]}
    s_mul_i32 s{sT2}, s{sWI}, 3072
    s_add_u32 s{sT2}, s{sT2}, {OUTF}
    s_mul_i32 s{sT1}, s{sWI}, {XROW}
    s_add_u32 s{sT1}, s{sT1}, {XB + 2*XROW + 384}
    v_lshlrev_b32 v{T[4]}, 1, v{T[4]}
    v_xor_b32 v{T[0]}, v{T[4]}, v{T[0]}
    v_and_b32 v{T[3]}, 15, v{vLN}
    v_mul_u32_u24 v{T[3]}, 192, v{T[3]}
    v_lshl_add_u32 v{T[0]}, v{T[0]}, 4, v{T[3]}
    v_lshl_add_u32 v{T[0]}, v{T[2]}, 3, v{T[0]}
    v_mul_u32_u24 v{T[2]}, {4*3072}, v{T[1]}
    v_add3_u32 v{vFR[0]}, v{T[0]}, v{T[2]}, s{sT2}
    v_xor_b32 v{vFR[1]}, 8, v{vFR[0]}
    v_xor_b32 v{vFR[2]}, 16, v{vFR[0]}
    v_xor_b32 v{vFR[3]}, 24, v{vFR[0]}
    v_add_u32 v{T[0]}, 2, v{vLN}
    v_bfe_u32 v{T[0]}, v{T[0]}, 2, 2
    v_xor_b32 v{T[0]}, v{T[4]}, v{T[0]}
    v_lshl_add_u32 v{T[0]}, v{T[0]}, 4, v{T[3]}
    v_mul_u32_u24 v{T[2]}, {4*XROW}, v{T[1]}
    v_add3_u32 v{vAR[0]}, v{T[0]}, v{T[2]}, s{sT1}
    v_xor_b32 v{vAR[1]}, 16, v{vAR[0]}
    v_bfe_u32 v{T[0]}, v{vLN}, 1, 2
    v_xor_b32 v{T[0]}, v{T[4]}, v{T[0]}
    v_lshl_add_u32 v{T[0]}, v{T[0]}, 4, v{T[3]}
    v_mul_u32_u24 v{T[2]}, 3072, v{T[1]}
    v_add3_u32 v{vSW[0]}, v{T[0]}, v{T[2]}, s{sIMG}
    v_xor_b32 v{vSW[1]}, 16, v{vSW[0]}
    ''')
def f_setup2():
    a(f'''
    v_and_b32 v{T[1]}, 1, v{vLN}
    v_lshlrev_b32 v{T[1]}, 4, v{T[1]}
    v_mov_b32 v{T[2]}, 0x3f80
    v_lshlrev_b32 v{T[1]}, v{T[1]}, v{T[2]}
    ''')
    for i in range(4): a(f'v_mov_b64 {vr(vID+2*i,2)}, 0')
    for i in range(8):
        pos = 16 * (i >> 2) + 8 * ((i >> 1) & 1) + 2 * (i & 1)
        setexec(3 << pos, 3 << (pos + 4))
        a(f'v_mov_b32 v{vID+i}, v{T[1]}')
    a('s_mov_b64 exec, -1')
FS = opt('fs', '00001')
fsl = [conv_setup2, late_setup, f_setup2, f_setup1, dma_setup]
def fsetup(k):
    for f, c in zip(fsl, FS):
        if int(c) == k: f()
fsetup(0)
stamp(1)
a(f's_waitcnt vmcnt({(1 if WPF else 0) + (1 if PFM in "fg" else 0) + (1 if OPF else 0)}) lgkmcnt(0)')
pstamp(9)
bar(2)
cv = Conv(0)
for gi in range(3): tab_reads(gi, cv.ds)
S0 = stage([('F',0,[0]), ('F',1,[0,1])])
cv.run(S0, 0)
def res_half(s):
    m = 0xffff0000 if s else 0xffff
    setexec(m, m)
    for ks in range(6):
        cv.ds(f'ds_read_b128 {vr(vRES+4*ks,4)}, v{vAR[ks&1]} offset:{64*(ks>>1)}')
    a('s_mov_b64 exec, -1')
def run_stage(left, frags, pairs, keep=0, mid=None):
    its = left + stage(frags)
    if pairs: add_pub(its, len(left), len(frags), pairs)
    if mid: its[mid[0]]['post'] = mid[1]
    return cv.run(its, len(its) - keep)
left = cv.run(S0, len(S0) - int(opt('keep0', 0)))
fsetup(1)
pstamp(10)
bar(3)
left = run_stage(left, [('F',2,[0,1,2]), ('F',3,[1,2,3]), ('E',0,[0,1])], [0, 1])
fsetup(2)
pstamp(11)
bar(4)
a(f's_setprio {opt("fprio2", 3)}')
left = run_stage(left, [('F',4,[2,3]), ('F',5,[3]), ('E',2,[2,3])], [2, 3])
signal(1)
a('s_waitcnt vmcnt(0)')
wdma(0, [0, 1, 2])
stamp(5)
poll(GF, 1)
RA = 168
for ks in range(6):
    a(f'ds_read_b64 {vr(RA+4*ks,2)}, v{vFR[2*(ks&1)]} offset:{64*(ks>>1)}')
    a(f'ds_read_b64 {vr(RA+4*ks+2,2)}, v{vFR[2*(ks&1)+1]} offset:{64*(ks>>1)}')
a(f's_setprio {opt("fprio3", 1)}')
wdma(1, [0, 1, 2])
a('s_waitcnt lgkmcnt(0)')
stamp(6)
def f_mid():
    for ks in range(6):
        a(f'ds_read_b128 {vr(vRES+4*ks,4)}, v{vAR[ks&1]} offset:{64*(ks>>1)}')
    landed(0, 2)
    wdma(0, [3, 4, 5]); wdma(1, [3, 4, 5])
    peek(GF)
def f_mid2():
    a('s_waitcnt lgkmcnt(0)')
    check(GF, 2)
    f_w1reads0()
ln(RA, 72, [vL + i for i in range(24)], False, f_mid, f_mid2)
stamp(8)
XH = {
  'start3': [lambda: landed(0, 3)],
  ('T1', 0): [lambda: peek(GF)],
  ('preT2', 0): [lambda: check(GF, 3)],
  ('T1', 1): [lambda: stamp(9)],
  ('T2', 1): [lambda: peek(GL)],
  ('preT1', 2): [lambda: check(GL, 6)],
  ('preT1', 4): [lambda: signal(4)],
  ('T1', 4): [lambda: peek(GL)],
  ('preT2', 4): [lambda: check(GL, 7)],
  ('T2', 5): [lambda: peek(GL)],
  ('preT1', 6): [lambda: check(GL, 8), lambda: stamp(10)],
  ('preT1', 8): [lambda: stamp(11)],
  ('T2', 8): [lambda: peek(GF)],
  ('preT1', 9): [lambda: check(GF, 4)],
  ('preT1', 10): [lambda: stamp(12)],
}
FP = opt('fp', 'n')
def fprio(c):
    if FP == 'n': return (0, 0) if c == 0 else None
    if FP == 's': return (1, 1) if c == 0 else None
    return (0, int(FP))
mlp32(XH, fprio)
stamp(13)
P = vY[0]; Q = vK[0]
for mt in range(3):
    for i in range(8):
        a(f'v_cvt_pk_bf16_f32 v{P+8*mt+i}, v{vO+16*mt+2*i}, v{vO+16*mt+2*i+1}')
    a(f'ds_write_b128 v{vSW[0]}, {vr(P+8*mt,4)} offset:{64*mt}')
    a(f'ds_write_b128 v{vSW[1]}, {vr(P+8*mt+4,4)} offset:{64*mt}')
for s in range(2):
    for j in range(3):
        a(f'ds_read_b128 {vr(Q+4*(3*s+j),4)}, v{vSR[j]} offset:{3072*s}')
for s in range(2):
    for j in range(3):
        a(f's_waitcnt lgkmcnt({5-(3*s+j)})')
        a(f'buffer_store_dwordx4 {vr(Q+4*(3*s+j),4)}, v{vL16}, {srd(sOUT)}, s{sO1 if s else sO0} offen offset:{1024*j}{STPOL}')
finish()
emit_slow()

a.label('L_L')
cv = Conv(4)
vDW1[:] = [220, 221]; vDW2[:] = [222, 223, 224]
vA0, vA2 = 48, 50
RR = 60
def l_setup():
    a(f'''
    s_add_u32 s{sO0}, s{sO0}, {8*43008}
    s_and_b32 s{sT1}, s{sWI}, 1
    v_lshrrev_b32 v{T[4]}, 4, v{vLN}
    v_bfe_u32 v{T[0]}, v{vLN}, 2, 2
    v_and_b32 v{T[2]}, 3, v{vLN}
    v_bfe_u32 v{T[1]}, v{vLN}, 4, 1
    v_lshlrev_b32 v{T[2]}, 3, v{T[2]}
    v_lshl_add_u32 v{T[2]}, v{T[1]}, 5, v{T[2]}
    v_lshl_add_u32 v{T[3]}, v{T[4]}, 3, v{T[0]}
    v_lshl_add_u32 v{T[3]}, v{T[3]}, 7, v{T[2]}
    v_bfe_u32 v{T[1]}, v{vLN}, 3, 1
    v_xor_b32 v{T[1]}, s{sT1}, v{T[1]}
    v_lshl_add_u32 v{T[3]}, v{T[1]}, 6, v{T[3]}
    s_lshr_b32 s{sT2}, s{sWI}, 1
    s_mul_i32 s{sT2}, s{sT2}, {PS}
    s_sub_u32 s{sT3}, {PS}, s{sT2}
    v_add_u32 v{vLW1}, s{sT2}, v{T[3]}
    v_add_u32 v{vLW1+4}, s{sT3}, v{T[3]}
    v_xor_b32 v{vLW1+1}, 32, v{vLW1}
    v_xor_b32 v{vLW1+2}, 64, v{vLW1}
    v_xor_b32 v{vLW1+3}, 0x60, v{vLW1}
    v_xor_b32 v{vLW1+5}, 32, v{vLW1+4}
    v_xor_b32 v{vLW1+6}, 64, v{vLW1+4}
    v_xor_b32 v{vLW1+7}, 0x60, v{vLW1+4}
    v_lshl_add_u32 v{T[3]}, v{T[4]}, 2, v{T[0]}
    v_mul_u32_u24 v{T[3]}, 192, v{T[3]}
    v_add_u32 v{T[3]}, v{T[3]}, v{T[2]}
    s_mul_i32 s{sT1}, s{sT1}, 6144
    s_add_u32 s{sT2}, s{sT2}, 12288
    s_add_u32 s{sT3}, s{sT3}, 12288
    s_add_u32 s{sT0}, s{sT2}, s{sT1}
    v_add_u32 v{vLW2}, s{sT0}, v{T[3]}
    s_add_u32 s{sT0}, s{sT3}, s{sT1}
    v_add_u32 v{vLW2+4}, s{sT0}, v{T[3]}
    s_sub_u32 s{sT1}, 6144, s{sT1}
    s_add_u32 s{sT0}, s{sT2}, s{sT1}
    v_add_u32 v{vLW2+2}, s{sT0}, v{T[3]}
    s_add_u32 s{sT0}, s{sT3}, s{sT1}
    v_add_u32 v{vLW2+6}, s{sT0}, v{T[3]}
    v_xor_b32 v{vLW2+1}, 32, v{vLW2}
    v_xor_b32 v{vLW2+3}, 32, v{vLW2+2}
    v_xor_b32 v{vLW2+5}, 32, v{vLW2+4}
    v_xor_b32 v{vLW2+7}, 32, v{vLW2+6}
    v_xor_b32 v{T[0]}, v{T[4]}, v{T[0]}
    v_and_b32 v{T[3]}, 15, v{vLN}
    v_mul_u32_u24 v{T[3]}, 192, v{T[3]}
    v_lshl_add_u32 v{T[0]}, v{T[0]}, 4, v{T[3]}
    v_add_u32 v{vARL}, {L12}, v{T[0]}
    v_bfe_u32 v{T[1]}, v{vLN}, 1, 1
    v_lshl_add_u32 v{T[0]}, v{T[1]}, 3, v{T[0]}
    v_add_u32 v{vA2}, {L12}, v{T[0]}
    v_xor_b32 v{vA2+1}, 8, v{vA2}
    v_add_u32 v{vA0}, s{sIMG}, v{T[0]}
    v_xor_b32 v{vA0+1}, 8, v{vA0}
    s_mul_i32 s{sT0}, s{sWI}, {XROW}
    v_bfe_u32 v{T[1]}, v{vLN}, 4, 1
    v_lshl_add_u32 v{T[3]}, v{T[1]}, 3, v{T[3]}
    v_lshrrev_b32 v{T[4]}, 5, v{vLN}
    v_bfe_u32 v{T[0]}, v{vLN}, 1, 2
    v_xor_b32 v{T[0]}, v{T[4]}, v{T[0]}
    v_lshl_add_u32 v{T[0]}, v{T[0]}, 4, v{T[3]}
    v_add_u32 v{vSW[0]}, s{sIMG}, v{T[0]}
    v_xor_b32 v{vSW[1]}, 32, v{vSW[0]}
    v_add_u32 v{T[0]}, 2, v{vLN}
    v_bfe_u32 v{T[0]}, v{T[0]}, 2, 2
    v_xor_b32 v{T[0]}, v{T[4]}, v{T[0]}
    v_lshl_add_u32 v{T[0]}, v{T[0]}, 4, v{T[3]}
    s_add_u32 s{sT0}, s{sT0}, {XB + 384}
    v_add_u32 v{vAR[0]}, s{sT0}, v{T[0]}
    v_xor_b32 v{vAR[1]}, 32, v{vAR[0]}
    ''')

a(f'''
s_mov_b32 exec_hi, -1
s_mul_i32 s{sIMG}, s{sWI}, 3072
s_add_u32 s{sIMG}, s{sIMG}, {S_IL}
s_mov_b32 s{sOB}, {OUTL}
''')
LS = opt('ls', '02002')
lsl = [conv_setup1, dma_setup, conv_setup2, late_setup, l_setup]
def lsetup(k):
    for f, c in zip(lsl, LS):
        if int(c) == k: f()
lsetup(0)
pstamp(14)
a(f's_waitcnt vmcnt({NX0 - 4})')
pstamp(9)
bar(2)
if NX0 < 17:
    a('s_mov_b32 exec_hi, 0x0fffffff')
    xrows(17 - NX0)
    a('s_mov_b32 exec_hi, -1')
lsetup(1)
for gi in range(3): tab_reads(gi, cv.ds)
pstamp(10)
a('s_waitcnt vmcnt(9)')
pstamp(11)
bar(3)
lsetup(2)
pstamp(12)
a('s_waitcnt vmcnt(0) lgkmcnt(0)')
pstamp(13)
bar(4)
a(f's_setprio {opt("lprio", 2)}')
RED, LNW = 1, 3
def raw_reads(R, ad, off=0):
    for ks in range(3):
        a(f'ds_read_b64 {vr(R+4*ks,2)}, v{ad} offset:{off+64*ks}')
        a(f'ds_read_b64 {vr(R+4*ks+2,2)}, v{ad+1} offset:{off+64*ks}')
def row_store(O, soff, P=vY[0], Q=vK[0]):
    for i in range(12):
        a(f'v_cvt_pk_bf16_f32 v{P+i}, v{O+2*i}, v{O+2*i+1}')
    for i in range(6):
        a(f'ds_write_b64 v{vSW[i&1]}, {vr(P+2*i,2)} offset:{64*(i>>1)}')
    for j in range(3):
        a(f'ds_read_b128 {vr(Q+4*j,4)}, v{vSR[j]}')
    for j in range(3):
        a(f's_waitcnt lgkmcnt({2-j})')
        a(f'buffer_store_dwordx4 {vr(Q+4*j,4)}, v{vL16}, {srd(sOUT)}, s{soff} offen offset:{1024*j}{STPOL}')
LP = opt('lp', 'k')
def lprio(c):
    if LP == 'n': return (0, 0) if c == 0 else None
    if LP == 's': return (1, 1) if c == 0 else None
    if LP == 'k':
        lo, hi = [int(x) for x in opt('lk', '0,9').split(',')]
        if lo <= c < hi: return (0, 1)
        return (0, 0) if c in (0, hi) else None
    return (0, int(LP))
def l_body(h13):
    global cv
    keep = cv
    cv = copy.copy(keep)
    sfx = 'a' if h13 else 'b'
    if h13:
        frags = [('F',4,[4]), ('F',5,[4,5]), ('F',6,[4,5,6]), ('F',7,[5,6]), ('E',4,[4,5]), ('F',8,[6]), ('L',6,[6])]; pairs = [4, 5, 6]
    else:
        frags = [('F',4,[4]), ('F',5,[4,5]), ('F',6,[4,5]), ('F',7,[5]), ('E',4,[4,5])]; pairs = [4, 5]
    its = stage(frags)
    add_pub(its, 0, len(frags), pairs)
    def resr():
        for i in range(6):
            cv.ds(f'ds_read_b64 {vr(RR+2*i,2)}, v{vAR[i&1]} offset:{10*XROW+64*(i>>1)}')
        if h13:
            for i in range(6):
                cv.ds(f'ds_read_b64 {vr(RR+12+2*i,2)}, v{vAR[i&1]} offset:{(14-RED)*XROW+64*(i>>1)}')
    if opt('lc'):
        nf = len(frags)
        for j, idx in ((9, 0), (10, nf - 1), (11, nf), (12, 2 * nf - 1), (13, 2 * nf)):
            its[idx]['post'] = lambda j=j: _st(j)
    if '3' in LS:
        cv.run(its, 0)
        lsetup(3)
    cv.run(its)
    stamp(6)
    signal(2)
    resr()
    stamp(5)
    poll(GL, 2)
    stamp(7)
    RAW = 168
    raw_reads(RAW, vA0)
    for i in range(12):
        a(f'v_lshlrev_b32 v{vO+2*i}, 16, v{RR+i}\nv_and_b32 v{vO+2*i+1}, 0xffff0000, v{RR+i}')
    if h13:
        a(f's_cmp_eq_u32 s{sWI}, {RED}\ns_cbranch_scc1 L_ri{sfx}')
        for i in range(12): a(f'v_mov_b64 {vr(vO+24+2*i,2)}, 0')
        a(f's_branch L_rj{sfx}')
        a.label(f'L_ri{sfx}')
        for i in range(12):
            a(f'v_lshlrev_b32 v{vO+24+2*i}, 16, v{RR+12+i}\nv_and_b32 v{vO+24+2*i+1}, 0xffff0000, v{RR+12+i}')
        a.label(f'L_rj{sfx}')
    signal(3)
    if h13: raw_reads(RAW + 12, vA2)
    a(f's_waitcnt lgkmcnt({7 if h13 else 1})')
    def l_mid2():
        a('s_waitcnt lgkmcnt(0)')
        check(GF, 2)
        l_w1reads(0)
    ln(RAW, 72, [vL + i for i in range(12)], True, lambda: peek(GF), l_mid2)
    if h13:
        a(f's_cmp_lg_u32 s{sWI}, {LNW}\ns_cbranch_scc1 L_nl12')
        ln(RAW + 12, 72, [RAW + 12 + i for i in range(12)], True)
        for ks in range(3):
            a(f'ds_write_b128 v{vARL}, {vr(RAW+12+4*ks,4)} offset:{64*ks}')
        a.label('L_nl12')
        signal(5)
    stamp(8)
    def l12r():
        for ks in range(3):
            a(f'ds_read_b128 {vr(vL+12+4*ks,4)}, v{vARL} offset:{64*ks}')
    def pub_rem():
        a(f's_cmp_eq_u32 s{sWI}, {RED}\ns_cbranch_scc1 L_np\ns_mul_i32 s{sT0}, s{sWI}, 6144\nv_add_u32 v{T[0]}, s{sT0}, v{vL16}')
        for i in range(6):
            a(f'ds_write_b128 v{T[0]}, {vr(vO+24+4*i,4)} offset:{S_R + 1024*i}')
        a.label('L_np')
        signal(9)
    H = {
      'start3': [lambda: peek(GL)],
      ('preT1', 0): [lambda: check(GL, 3)],
      ('T1', 0): [lambda: wdma(2, [0, 1, 2]), lambda: wdma(3, [0, 1, 2]), lambda: peek(GF)],
      ('preT2', 0): [lambda: check(GF, 3)],
      ('T2', 0): [lambda: wdma(2, [3, 4, 5])] + ([lambda: peek(GL)] if h13 else []),
      ('preT1', 1): [lambda: check(GL, 5)] if h13 else [],
      ('T1', 1): [lambda: wdma(3, [3, 4, 5]), lambda: stamp(9)] + ([l12r] if h13 else []),
      ('preT2', 1): [lambda: landed(6, 6)],
      ('T2', 1): [lambda: wdma(4, [0, 1, 2]), lambda: peek(GL)],
      ('preT1', 2): [lambda: check(GL, 6)],
      ('T1', 2): [lambda: wdma(4, [3, 4, 5])],
      ('T2', 2): [lambda: wdma(5, [0, 1, 2])],
      ('preT1', 3): [lambda: landed(9, 7)],
      ('T1', 3): [lambda: wdma(5, [3, 4, 5])],
      ('T1', 4): [lambda: peek(GL)],
      ('preT2', 4): [lambda: check(GL, 7), lambda: landed(0, 8)],
      ('T2', 5): [lambda: peek(GL)],
      ('preT1', 6): [lambda: check(GL, 8), lambda: stamp(10)],
      ('preT1', 8): [lambda: stamp(11)],
      ('preT1', 10): [lambda: stamp(12)],
    }
    if h13:
        H[('T2', 9)] = [lambda: peek(GF)]
        H[('preT1', 10)] = H[('preT1', 10)] + [lambda: check(GF, 4), pub_rem]
        def reduce12():
            a(f's_cmp_lg_u32 s{sWI}, {RED}\ns_cbranch_scc1 L_nored')
            poll(GL, 9)
            others = [w for w in range(4) if w != RED]
            R = [144, 48, 144]
            def rd(n):
                for i in range(6):
                    a(f'ds_read_b128 {vr(R[n]+4*i,4)}, v{vL16} offset:{S_R + 6144*others[n] + 1024*i}')
            def ad(n):
                for i in range(24):
                    a(f'v_add_f32 v{vO+24+i}, v{vO+24+i}, v{R[n]+i}')
            rd(0); rd(1)
            a('s_waitcnt lgkmcnt(6)'); ad(0); rd(2)
            a('s_waitcnt lgkmcnt(6)'); ad(1)
            a('s_waitcnt lgkmcnt(0)'); ad(2)
            a(f's_add_u32 s{sO1}, s{sO0}, {(4-RED)*43008}')
            row_store(vO + 24, sO1, 48, 144)
            a.label('L_nored')
        H[('T1', 11)] = [reduce12]
    mlp16([3, 5, 8] if h13 else [], H, lprio)
    stamp(13)
    row_store(vO, sO0)
    finish()
    emit_slow()
    cv = keep
a(f's_cmp_lg_u32 s{sH13}, 13\ns_cbranch_scc1 L_L12')
l_body(True)
a.label('L_L12')
l_body(False)
a.label('L_end')
a('s_endpgm')

body = a.finalize()
hdr = open('cdna_kernels/' + NAME + '.s.ref').read().split('\n')
out = []
for l in hdr:
    if l.startswith('; @launch'):
        out.append('; @launch grid=(256,1,1) block=(512,1,1) lds=163840')
    elif l.startswith(';'):
        out.append(l)
    else:
        break
out.append('.amdgcn_target "amdgcn-amd-amdhsa--gfx950"')
out.append('.text')
out.append(f'.globl {NAME}_kernel')
out.append('.p2align 8')
out.append(f'.type {NAME}_kernel,@function')
out.append(f'{NAME}_kernel:')
for l in body:
    out.append(l if l.endswith(':') else '    ' + l)
out.append(f'''.section .rodata,"a"
.p2align 6
.amdhsa_kernel {NAME}_kernel
  .amdhsa_next_free_vgpr 256
  .amdhsa_next_free_sgpr 102
  .amdhsa_accum_offset 256
  .amdhsa_group_segment_fixed_size 0
  .amdhsa_kernarg_size 64
  .amdhsa_user_sgpr_count 2
  .amdhsa_user_sgpr_kernarg_segment_ptr 1
  .amdhsa_system_sgpr_workgroup_id_x 1
.end_amdhsa_kernel''')
print('\n'.join(out))
```

```python
import sys, struct, math, copy
from asmlib import Asm

NAME = "standalone__modern_conv_block_replknet__vision"
def fbits(x): return struct.unpack('<I', struct.pack('<f', x))[0]
def opt(name, default=None):
    for x in sys.argv:
        if x == '--' + name: return True
        if x.startswith('--' + name + '='): return x.split('=', 1)[1]
    return default
STAMP = opt('stamp'); CYC = opt('cyc'); PRO = opt('pro')
STPOL = ' ' + opt('stpol', 'sc1').replace('_', ' ') if opt('stpol', 'sc1') != 'none' else ''
FOLD = opt('fold', '1') == '1'
GL, GF = (1, 0) if FOLD else (0, 1)

XPOL = ' ' + opt('xpol').replace('_', ' ') if opt('xpol') else ''
XROW = 3840
XB = 73728
PS = 24576
TB, TP = 139264, 976
OUTF, OUTL = 49152, 147456
L12 = OUTL + 4*3072
FL = 163584
S_IF, S_R, S_IL = 0, 24576, OUTL
MARK = 0x40000000
XBYTES = 224 * 224 * 192

k0 = math.sqrt(2.0 / math.pi); k1 = 0.044715
c0 = 2 * k0 / math.log(2.0); c1 = c0 * k1
ga = c1 ** (1.0 / 3.0)
gc = -c0 / ga

sX, sDL, sDS, sW1, sW2, sOUT = 16, 20, 24, 28, 32, 36
sWV, sY0, sX0, sT0, sT1, sT2, sT3 = 40, 41, 42, 43, 44, 45, 46
sH13, sWI = 47, 3
sCA, sCC = 48, 50
sWS = 52
sXM, sIMG, sOB = 56, 57, 62
sWA, sWBm = 58, 59
sO0, sO1 = 60, 61
sST = 64
NST = 16
def srd(b): return f's[{b}:{b+3}]'
vO, vL, vY, vK, vG, vF1, vF2 = 0, 48, [72, 88], [104, 120], 136, 144, 168
vRES, vID = 204, 228
vAW1 = [236, 237, 245, 249]; vAW2 = 238
vLW1 = 204; vLW2 = 212
vDW1 = [220, 221]; vDW2 = [222, 223, 224]
vARL = 225
vSW = [239, 240]; vSR = [241, 242, 243]
vL16 = 244
vFA, vFW, vFP = 246, 247, 248
T = [250, 251, 252, 253, 254]
vLN = 255
vXO = 203; vPF = 54
vAF, vAE, vAO, vIDX, vTF0, vTF1, vTE, vAR, vAE16, vAO1 = 192, 193, 194, 195, 196, 197, 198, [199, 200], 201, 202
vACC, vAFR, vB = 0, 84, 144
def vr(b, n): return f'v[{b}:{b+n-1}]'

a = Asm()
def _st(i): a(f'{"s_memtime" if CYC else "s_memrealtime"} s[{sST+2*i}:{sST+2*i+1}]')
def pstamp(i):
    if STAMP and PRO and not opt('lc'): _st(i)
def ap(n):
    return 's_memrealtime s[88:89]' if opt('amp') == n else ''
def stamp(i):
    a(ap(str(i)))
    if i in (8, 13): hold(i)
    if STAMP and not (PRO and 9 <= i <= 14): _st(i)
def mksrd(b, lo, n):
    a(f's_mov_b64 s[{b}:{b+1}], s[{lo}:{lo+1}]\ns_mov_b32 s{b+2}, {n}\ns_mov_b32 s{b+3}, 0x00020000')
def hold(tag):
    h = opt('hold')
    if h and h.split(':')[0] == str(tag):
        n = nlab[0]; nlab[0] += 1
        a(f's_waitcnt lgkmcnt(0)\ns_add_u32 s92, s94, {h.split(":")[1]}')
        a.label(f'L_hold{n}')
        a(f's_memrealtime s[90:91]\ns_waitcnt lgkmcnt(0)\ns_sub_u32 s93, s92, s90\ns_cmp_gt_i32 s93, 0\ns_cbranch_scc1 L_hold{n}')
def bar(i=None):
    a('s_barrier')
    hold(i)
    if i is not None: stamp(i)
def setexec(lo, hi):
    a(f's_mov_b32 exec_lo, {lo:#x}\ns_mov_b32 exec_hi, {hi:#x}')

nlab = [0]; slow = []
def guard():
    if opt('safe'): a('s_sub_u32 s98, s98, 1\ns_cbranch_scc1 L_end')
def signal(v, emit=None):
    a(f'v_mov_b32 v{T[4]}, {v}')
    (emit or a)(f'ds_write_b32 v{vFW}, v{T[4]}')
def poll(grp, v):
    lab = f'L_poll{nlab[0]}'; nlab[0] += 1
    a.label(lab)
    guard()
    a(f'ds_read_b32 v{vFP}, v{vFA} offset:{16*grp}\ns_waitcnt lgkmcnt(0)\nv_cmp_gt_u32 vcc, {v}, v{vFP}\ns_cbranch_vccnz {lab}')
def peek(grp): a(f'ds_read_b32 v{vFP}, v{vFA} offset:{16*grp}')
def check(grp, v):
    n = nlab[0]; nlab[0] += 1
    a(f'v_cmp_gt_u32 vcc, {v}, v{vFP}\ns_cbranch_vccnz L_slow{n}')
    a.label(f'L_back{n}')
    slow.append((n, grp, v))
def emit_slow():
    for n, grp, v in slow:
        a.label(f'L_slow{n}')
        guard()
        a(f'ds_read_b32 v{vFP}, v{vFA} offset:{16*grp}\ns_waitcnt lgkmcnt(0)\nv_cmp_gt_u32 vcc, {v}, v{vFP}\ns_cbranch_vccnz L_slow{n}\ns_branch L_back{n}')
    slow.clear()
def landed(n, v):
    a(f's_waitcnt vmcnt({n})'); signal(v)

def wdma(p, parts=range(6)):
    for i in parts:
        if i < 3:
            a(f'''
            s_add_u32 m0, s{sWBm}, {PS*p + 1024*i}
            s_add_u32 s{sT0}, s{sWA}, {6144*i + 128*p}
            buffer_load_dwordx4 v{vDW1[i & 1]}, {srd(sW1)}, s{sT0} offen lds
            ''')
        else:
            if i == 3 or i - 1 not in parts:
                a(f's_add_u32 m0, s{sWBm}, {PS*p + 12288}\ns_add_u32 s{sT0}, s{sWBm}, {12288*p}')
            a(f'buffer_load_dwordx4 v{vDW2[i-3]}, {srd(sW2)}, s{sT0} offen offset:{1024*(i-3)} lds')

def ln(raw, U, dst, rows16, mid=None, mid2=None):
    n = len(dst)
    S, Q, ONE = T[1], T[3], T[4]
    sc, bi = T[0], T[2]
    a(f'v_mov_b32 v{ONE}, 0x3f803f80')
    un = []
    for i in range(n):
        un.append(f'v_lshlrev_b32 v{U+2*i}, 16, v{raw+i}')
        un.append(f'v_and_b32 v{U+2*i+1}, 0xffff0000, v{raw+i}')
    while len(un) > 8: a(un.pop(0))
    for i in range(n):
        a(f'v_dot2_f32_bf16 v{S}, v{raw+i}, v{ONE}, {"0" if i == 0 else f"v{S}"}')
        a(f'v_dot2_f32_bf16 v{Q}, v{raw+i}, v{raw+i}, {"0" if i == 0 else f"v{Q}"}')
    def fill(k):
        for _ in range(k):
            if un: a(un.pop(0))
    fill(3)
    a(f'v_permlane32_swap_b32 v{S}, v{Q}')
    a(f'v_add_f32 v{S}, v{S}, v{Q}')
    if rows16:
        a(f'v_mov_b32 v{Q}, v{S}')
        fill(2)
        a(f'v_permlane16_swap_b32 v{S}, v{Q}')
        a(f'v_add_f32 v{S}, v{S}, v{Q}')
    a(f'v_mul_f32 v{S}, {fbits(1.0/96):#x}, v{S}')
    a(f'v_mov_b32 v{Q}, v{S}')
    fill(2)
    a(f'v_permlane32_swap_b32 v{S}, v{Q}')
    a(f'''
    v_fma_f32 v{Q}, -v{S}, v{S}, v{Q}
    v_max_f32 v{Q}, 0, v{Q}
    v_add_f32 v{Q}, {fbits(1e-5):#x}, v{Q}
    v_rsq_f32 v{Q}, v{Q}
    ''')
    fill(1)
    a(f'v_mul_f32 v{sc}, {fbits(ga):#x}, v{Q}')
    a(f'v_mul_f32 v{bi}, -v{S}, v{sc}')
    fill(1000)
    if mid: mid()
    for i in range(n):
        if opt('lnplain'):
            a(f'v_fma_f32 v{U+2*i}, v{U+2*i}, v{sc}, v{bi}\nv_fma_f32 v{U+2*i+1}, v{U+2*i+1}, v{sc}, v{bi}')
        else:
            a(f'v_pk_fma_f32 {vr(U+2*i,2)}, {vr(U+2*i,2)}, {vr(sc,2)}, {vr(bi,2)} op_sel_hi:[1,0,0]')
    if mid2: mid2()
    for i in range(n):
        a(f'v_cvt_pk_bf16_f32 v{dst[i]}, v{U+2*i}, v{U+2*i+1}')

def pk_t(Y, K, n):
    return [f'v_pk_fma_f32 {vr(K+2*i,2)}, {vr(Y+2*i,2)}, {vr(Y+2*i,2)}, s[{sCC}:{sCC+1}] neg_lo:[1,0,0] neg_hi:[1,0,0]' for i in range(n//2)] + pk_m(Y, K, n)
def pk_m(Y, K, n): return [f'v_pk_mul_f32 {vr(K+2*i,2)}, {vr(Y+2*i,2)}, {vr(K+2*i,2)}' for i in range(n//2)]
def pk_d(K, n): return [f'v_pk_fma_f32 {vr(K+2*i,2)}, {vr(K+2*i,2)}, s[{sCA}:{sCA+1}], s[{sCA}:{sCA+1}]' for i in range(n//2)]
def emit(l):
    for t in l: a(t)

def mlp32(hooks, prio):
    N = 12
    moved = {'w1': False, 'w2': False}
    def move(kind, c):
        if c >= 6 and not moved[kind]:
            for r in (vAW1 if kind == 'w1' else [vAW2]): a(f'v_add_u32 v{r}, {3*PS}, v{r}')
            moved[kind] = True
    def w1reads(c):
        for ks in range(6):
            off = ((c >> 1) % 3) * PS + (ks >> 1) * 4096 + (ks & 1) * 1024
            r = vAW1[(c & 1) + 2 * (ks & 1)]
            a(f'ds_read_b64_tr_b16 {vr(vF1+4*ks,2)}, v{r} offset:{off}')
            a(f'ds_read_b64_tr_b16 {vr(vF1+4*ks+2,2)}, v{r} offset:{off+512}')
    def w2reads(c):
        for i in range(6):
            ks2, mt = i // 3, i % 3
            off = ((c >> 1) % 3) * PS + (c & 1) * 6144 + ks2 * 3072 + mt * 64
            a(f'ds_read_b64_tr_b16 {vr(vF2+4*i,2)}, v{vAW2} offset:{off}')
            a(f'ds_read_b64_tr_b16 {vr(vF2+4*i+2,2)}, v{vAW2} offset:{off+1536}')
    def g1(c, ks):
        Y = vY[c & 1]
        a(f'v_mfma_f32_32x32x16_bf16 {vr(Y,16)}, {vr(vF1+4*ks,4)}, {vr(vL+4*ks,4)}, {"0" if ks == 0 else vr(Y,16)}')
    def g2(i):
        ks2, mt = i // 3, i % 3
        a(f'v_mfma_f32_32x32x16_bf16 {vr(vO+16*mt,16)}, {vr(vF2+4*i,4)}, {vr(vG+4*ks2,4)}, {vr(vO+16*mt,16)}')
    def resm(ks):
        j, mt = ks // 3, ks % 3
        a(f'v_mfma_f32_32x32x16_bf16 {vr(vO+16*mt,16)}, {vr(vID+4*j,4)}, {vr(vRES+4*(2*mt+j),4)}, {"0" if j == 0 else vr(vO+16*mt,16)}')
    def hook(k):
        for f in hooks.get(k, []): f()
    def pr(c, v):
        if prio(c) is not None: a(f's_setprio {prio(c)[v]}')
    hook('pre')
    a('s_waitcnt lgkmcnt(0)')
    for ks in range(6): g1(0, ks)
    w1reads(1)
    hook('start3')
    for c in range(N + 1):
        Y, K = vY[c & 1], vK[c & 1]
        Yp, Kp = vY[(c - 1) & 1], vK[(c - 1) & 1]
        pr(c, 1)
        if c >= 1: emit(pk_m(Yp, Kp, 16))
        if c < N: emit(pk_t(Y, K, 16))
        cv = [f'v_cvt_pk_bf16_f32 v{vG+i}, v{Kp+2*i}, v{Kp+2*i+1}' for i in range(8)] if c >= 1 else []
        if c == N:
            emit(cv)
            a('s_waitcnt lgkmcnt(0)')
            for i in (0, 3, 1, 4, 2, 5): g2(i)
            break
        ex = [f'v_exp_f32 v{K+i}, v{K+i}' for i in range(16)]
        rc = [f'v_rcp_f32 v{K+i}, v{K+i}' for i in range(16)]
        last = c + 1 >= N
        if c + 2 < N: move('w1', c + 2)
        move('w2', c)
        if c == 0:
            gaps = [ex[0:3], ex[3:6], ex[6:9], ex[9:12], ex[12:15], ex[15:16]]
            a('s_waitcnt lgkmcnt(0)')
            for j in range(6):
                g1(1, j); emit(gaps[j])
        elif not last:
            gaps = [cv[0:4] + ex[0:1], cv[4:8] + ex[1:2], ex[2:5], ex[5:8], ex[8:11], ex[11:14], ex[14:16]]
            for j in range(7):
                if j < 6: g1(c + 1, j)
                else: g2(0)
                if j == 5: a('s_waitcnt lgkmcnt(0)')
                emit(gaps[j])
        else:
            emit(cv); emit(ex[0:4])
            a('s_waitcnt lgkmcnt(0)')
            gaps = [ex[4:8], ex[8:12], ex[12:16]]
            for j in range(3):
                g2(j); emit(gaps[j])
        hook(('preT1', c))
        pr(c, 0)
        if c + 2 < N: w1reads(c + 2)
        hook(('T1', c))
        pr(c, 1)
        emit(pk_d(K, 16))
        if c == 0:
            gp = [rc[0:3], rc[3:6], rc[6:9], rc[9:12], rc[12:14], rc[14:16]]
            for j in range(6):
                resm(j)
                if j == 5: a('s_waitcnt lgkmcnt(0)')
                emit(gp[j])
        elif not last:
            gp = [rc[0:3], rc[3:6], rc[6:9], rc[9:12], rc[12:16]]
            for j in range(5):
                g2(j + 1)
                if j == 4: a('s_waitcnt lgkmcnt(0)')
                emit(gp[j])
        else:
            gp = [rc[0:3], rc[3:6], rc[6:16]]
            for j in range(3):
                g2(j + 3)
                if j == 2: w2reads(c)
                emit(gp[j])
        hook(('preT2', c))
        pr(c, 0)
        if not last: w2reads(c)
        hook(('T2', c))
    return w1reads

def f_w1reads0():
    for ks in range(6):
        off = (ks >> 1) * 4096 + (ks & 1) * 1024
        r = vAW1[2 * (ks & 1)]
        a(f'ds_read_b64_tr_b16 {vr(vF1+4*ks,2)}, v{r} offset:{off}')
        a(f'ds_read_b64_tr_b16 {vr(vF1+4*ks+2,2)}, v{r} offset:{off+512}')

def l_w1reads(s):
    for i in range(6):
        mt2, ks3 = i // 3, i % 3
        off = ((s >> 2) & 1) * 2 * PS + ks3 * 4096
        r = vLW1 + mt2 + 2 * (s & 3)
        a(f'ds_read_b64_tr_b16 {vr(vF1+4*i,2)}, v{r} offset:{off}')
        a(f'ds_read_b64_tr_b16 {vr(vF1+4*i+2,2)}, v{r} offset:{off+512}')

def mlp16(doubles, hooks, prio):
    N = 12
    def wid(s): return 0 if (s < 0 or s >= N) else (2 if s in doubles else 1)
    def move(base):
        for r in range(8): a(f'v_add_u32 v{base+r}, {4*PS}, v{base+r}')
    def w2reads(s):
        for i in range(6):
            off = ((s >> 2) & 1) * 2 * PS + 64 * (i >> 1)
            r = vLW2 + (i & 1) + 2 * (s & 3)
            a(f'ds_read_b64_tr_b16 {vr(vF2+4*i,2)}, v{r} offset:{off}')
            a(f'ds_read_b64_tr_b16 {vr(vF2+4*i+2,2)}, v{r} offset:{off+3072}')
    def m1(s):
        l = []
        for t in range(wid(s)):
            for j in range(6):
                mt2, ks3 = j & 1, j >> 1
                D = vY[s & 1] + 8 * t + 4 * mt2
                l.append(f'v_mfma_f32_16x16x32_bf16 {vr(D,4)}, {vr(vF1+4*(mt2*3+ks3),4)}, {vr(vL+12*t+4*ks3,4)}, {"0" if ks3 == 0 else vr(D,4)}')
        return l
    def m2(s):
        return [f'v_mfma_f32_16x16x32_bf16 {vr(vO+24*t+4*i,4)}, {vr(vF2+4*i,4)}, {vr(vG+4*t,4)}, {vr(vO+24*t+4*i,4)}' for t in range(wid(s)) for i in range(6)]
    def weave(ms, fl):
        fl = list(fl)
        if not ms:
            emit(fl); a('s_waitcnt lgkmcnt(0)'); return
        for j, m in enumerate(ms):
            a(m)
            if j == len(ms) - 1: a('s_waitcnt lgkmcnt(0)')
            k = -(-len(fl) // (len(ms) - j))
            emit(fl[:k]); fl = fl[k:]
    def hook(k):
        for f in hooks.get(k, []): f()
    def pr(c, v):
        if prio(c) is not None: a(f's_setprio {prio(c)[v]}')
    hook('pre')
    a('s_waitcnt lgkmcnt(0)')
    emit(m1(0))
    l_w1reads(1)
    hook('start3')
    for s in range(N + 1):
        Y, K = vY[s & 1], vK[s & 1]
        Yp, Kp = vY[(s - 1) & 1], vK[(s - 1) & 1]
        n, np_ = 8 * wid(s), 8 * wid(s - 1)
        pr(s, 1)
        emit(pk_m(Yp, Kp, np_))
        emit(pk_t(Y, K, n))
        cv = [f'v_cvt_pk_bf16_f32 v{vG+i}, v{Kp+2*i}, v{Kp+2*i+1}' for i in range(np_ // 2)]
        if s == N:
            emit(cv)
            a('s_waitcnt lgkmcnt(0)')
            emit(m2(N - 1))
            break
        ex = [f'v_exp_f32 v{K+i}, v{K+i}' for i in range(n)]
        rc = [f'v_rcp_f32 v{K+i}, v{K+i}' for i in range(n)]
        if s + 2 == 8: move(vLW1)
        if s == 8: move(vLW2)
        if s == 0: a('s_waitcnt lgkmcnt(0)')
        weave(m1(s + 1), cv + ex)
        hook(('preT1', s))
        pr(s, 0)
        if s + 2 < N: l_w1reads(s + 2)
        hook(('T1', s))
        pr(s, 1)
        emit(pk_d(K, n))
        weave(m2(s - 1), rc)
        hook(('preT2', s))
        pr(s, 0)
        w2reads(s)
        hook(('T2', s))

def finish():
    if opt('amp'):
        n = nlab[0]; nlab[0] += 1
        a(f's_waitcnt vmcnt(0) lgkmcnt(0)\ns_sub_u32 s92, s88, s94\ns_lshl_b32 s92, s92, 2\ns_cmp_eq_u32 s88, 0\ns_cselect_b32 s92, 0, s92')
        a(f's_cmp_eq_u32 s{sH13}, {opt("amprows", 13)}\ns_cselect_b32 s92, s92, 0\ns_add_u32 s92, s92, 1400\ns_add_u32 s92, s92, s94')
        a.label(f'L_amp{n}')
        a(f's_memrealtime s[90:91]\ns_waitcnt lgkmcnt(0)\ns_sub_u32 s93, s92, s90\ns_cmp_gt_i32 s93, 0\ns_cbranch_scc1 L_amp{n}')
    if STAMP:
        stamp(14)
        a('s_waitcnt vmcnt(0)')
        stamp(15)
        a('s_waitcnt lgkmcnt(0)')
        if opt('dbg'):
            n = nlab[0]; nlab[0] += 1
            a(f's_cmp_lg_u32 s2, {opt("dbg")}\ns_cbranch_scc1 L_nd{n}\ns_cmp_lg_u32 s{sWI}, 0\ns_cbranch_scc1 L_nd{n}')
            a(f's_lshl_b32 s{sT0}, s{sWV}, 3\nv_mov_b32 v{T[1]}, s{sT0}\ns_mov_b64 exec, 1')
            for k, i in enumerate((1, 2, 3, 4, 8, 10, 13, 15)):
                a(f's_sub_u32 s{sT0}, s{sST+2*i}, s{sST}\nv_mov_b32 v{T[0]}, s{sT0}')
                a(f'buffer_store_dword v{T[0]}, v{T[1]}, {srd(sWS)}, 0 offen offset:{4*k}')
            a.label(f'L_nd{n}')
            a('s_endpgm')
            return
        a(f'''
        s_lshl_b32 s{sT0}, s2, 3
        s_add_u32 s{sT0}, s{sT0}, s{sWV}
        s_lshl_b32 s{sT0}, s{sT0}, 6
        v_mov_b32 v{T[1]}, s{sT0}
        s_mov_b64 exec, 1
        ''')
        for i in range(NST):
            a(f'v_mov_b32 v{T[0]}, s{sST+2*i}')
            a(f'buffer_store_dword v{T[0]}, v{T[1]}, {srd(sWS)}, 0 offen offset:{4*i}')
    a('s_endpgm')

def tab_reads(gi, em):
    A = vAFR + 20 * gi; o = 64 * gi
    for d in range(3):
        em(f'ds_read_b64_tr_b16 {vr(A+4*d,2)}, v{vTF0} offset:{o + 2*d*TP}')
        em(f'ds_read_b64_tr_b16 {vr(A+4*d+2,2)}, v{vTF1} offset:{o + 2*d*TP}')
    for par in range(2):
        for pp in range(2):
            em(f'ds_read_b64_tr_b16 {vr(A+12+4*par+2*pp,2)}, v{vTE} offset:{o + (pp - 2*par + 2)*TP}')
RING = 6
class Conv:
    def __init__(self, k0): self.n = 0; self.slot = 0; self.k0 = k0
    def acc(self, gi, k): return vACC + 16 * gi + 4 * (k - self.k0)
    def ds(self, t): a(t); self.n += 1; return self.n
    def wait(self, seq): a(f's_waitcnt lgkmcnt({min(15, self.n - seq)})')
    def reads(self, it):
        B = it['B']; go = 64 * it['gi']; idx = it['idx']; kind = it['kind']
        if kind == 'F':
            r0, r1 = 2 * idx, min(2 * idx + 1, 16)
            return [f'ds_read_b128 {vr(B,4)}, v{vAF} offset:{r0*XROW+go}', f'ds_read_b128 {vr(B+4,4)}, v{vAF} offset:{r1*XROW+go}']
        if kind == 'E':
            return [f'ds_read_b128 {vr(B,4)}, v{vAE} offset:{2*idx*XROW+go}', f'ds_read_b128 {vr(B+4,4)}, v{vAE} offset:{(2*idx+4)*XROW+go}']
        return [f'ds_read_b128 {vr(B,4)}, v{vAE} offset:{12*XROW+go}', f'ds_read_b128 {vr(B+4,4)}, v{vAE16} offset:{16*XROW+go}']
    def cvt(self, lst):
        for gi, k in lst:
            A = self.acc(gi, k)
            a(f'v_cvt_pk_bf16_f32 v{A}, v{A}, v{A+1}\nv_cvt_pk_bf16_f32 v{A+1}, v{A+2}, v{A+3}')
    def write(self, lst):
        for gi, k in lst:
            A = self.acc(gi, k)
            if k == 6: setexec(0xffff, 0xffff)
            self.ds(f'ds_write_b64 v{vAO}, {vr(A,2)} offset:{(k-self.k0)*6144+64*gi}')
            if k == 6: a('s_mov_b64 exec, -1')
    def run(self, items, stop_at=None):
        D = RING - 1
        nxt = 0
        while nxt < len(items) and 'seq' in items[nxt]: nxt += 1
        def start(j):
            items[j]['B'] = vB + 8 * (self.slot % RING); self.slot += 1
            return self.reads(items[j])
        while nxt < min(D, len(items)):
            for t in start(nxt): items[nxt]['seq'] = self.ds(t)
            nxt += 1
        end = len(items) if stop_at is None else stop_at
        for i in range(end):
            it = items[i]
            self.wait(it['seq'])
            pend = start(nxt) if nxt < len(items) else []
            A = vAFR + 20 * it['gi']
            had = bool(pend)
            for k in it['outs']:
                fr = (it['idx'] - k) if it['kind'] == 'F' else 3 + (k - it['idx'])
                a(f'v_smfmac_f32_16x16x64_bf16 {vr(self.acc(it["gi"], k),4)}, {vr(A+4*fr,4)}, {vr(it["B"],8)}, v{vIDX}')
                if pend: items[nxt]['seq'] = self.ds(pend.pop(0))
            for t in pend: items[nxt]['seq'] = self.ds(t)
            if had: nxt += 1
            if it.get('pub'):
                self.cvt(it['pub'])
                if not it.get('nowrite'): self.write(it['pub'])
            if it.get('post'): it['post']()
        return items[end:]
def stage(frags): return [dict(gi=gi, kind=k, idx=i, outs=list(o)) for gi in range(3) for (k, i, o) in frags]
def add_pub(items, base, nfr, pairs, nowrite=False):
    for gi in range(3):
        j = min(base + nfr * (gi + 1), len(items) - 1)
        items[j].setdefault('pub', []).extend((gi, k) for k in pairs)
        items[j]['nowrite'] = nowrite

def late_setup():
    mksrd(sOUT, 14, XBYTES)
    if opt('safe'): a('s_mov_b32 s98, 20000')
    a(f'''
    s_mov_b32 s{sCA}, {fbits(ga):#x}
    s_mov_b32 s{sCA+1}, {fbits(ga):#x}
    s_mov_b32 s{sCC}, {fbits(gc):#x}
    s_mov_b32 s{sCC+1}, {fbits(gc):#x}
    s_add_u32 s{sT0}, s{sWI}, s{sY0}
    s_mul_i32 s{sT0}, s{sT0}, 224
    s_add_u32 s{sT0}, s{sT0}, s{sX0}
    s_mul_i32 s{sO0}, s{sT0}, 192
    ''')
    if STAMP:
        a(f's_mov_b32 s{sWS+2}, {256 if opt("dbg") else 0x10000000}\ns_mov_b32 s{sWS+3}, 0x00020000')
        for i in (7,): a(f's_mov_b32 s{sST+2*i}, 0')
    for j in range(3):
        a(f'''
        v_add_u32 v{T[0]}, {64*j}, v{vLN}
        v_mul_u32_u24 v{T[2]}, 171, v{T[0]}
        v_bfe_u32 v{T[2]}, v{T[2]}, 12, 2
        v_xor_b32 v{T[0]}, v{T[0]}, v{T[2]}
        v_lshl_add_u32 v{vSR[j]}, v{T[0]}, 4, s{sIMG}
        ''')

def conv_setup1():
    a(f'''
v_and_b32 v{T[0]}, 3, v{vLN}
v_mul_u32_u24 v{vIDX}, 0x5555, v{T[0]}
s_lshl_b32 s{sT2}, s{sWI}, 4
s_add_u32 s{sT2}, s{sT2}, {TB}
v_bfe_u32 v{T[1]}, v{vLN}, 1, 1
v_lshl_add_u32 v{T[4]}, v{T[1]}, 3, s{sT2}
v_and_b32 v{T[0]}, 1, v{vLN}
v_lshrrev_b32 v{T[1]}, 5, v{vLN}
v_mul_u32_u24 v{vTE}, {TP}, v{T[1]}
v_sub_u32 v{T[1]}, v{T[1]}, v{T[0]}
v_bfe_u32 v{T[2]}, v{vLN}, 2, 1
v_mul_u32_u24 v{T[2]}, 7, v{T[2]}
v_sub_u32 v{T[1]}, v{T[1]}, v{T[2]}
v_add_u32 v{T[1]}, 8, v{T[1]}
v_mul_u32_u24 v{T[1]}, {TP}, v{T[1]}
v_bfe_u32 v{T[2]}, v{vLN}, 4, 1
v_mul_u32_u24 v{T[2]}, 192, v{T[2]}
v_add3_u32 v{T[3]}, v{T[1]}, v{T[2]}, v{T[4]}
v_lshrrev_b32 v{T[1]}, 4, v{vLN}
v_lshlrev_b32 v{T[2]}, 1, v{T[1]}
v_sub_u32 v{T[2]}, v{T[2]}, v{T[0]}
v_add_u32 v{T[2]}, 6, v{T[2]}
v_mul_u32_u24 v{T[2]}, {TP}, v{T[2]}
v_add_u32 v{vTF0}, s{sT2}, v{vTE}
v_add_u32 v{vTF1}, {TP}, v{vTF0}
v_mov_b32 v{vTE}, s{sT2}
s_mov_b32 exec_lo, 0xcc33cc33
s_mov_b32 exec_hi, 0xcc33cc33
v_mov_b32 v{vTF0}, v{T[3]}
v_add_u32 v{vTF1}, 384, v{T[3]}
s_mov_b32 exec_lo, 0x0c030c03
s_mov_b32 exec_hi, 0x0c030c03
v_add_u32 v{T[2]}, 768, v{T[2]}
v_add_u32 v{vTE}, v{T[2]}, v{T[4]}
s_mov_b64 exec, -1
v_and_b32 v{T[0]}, 15, v{vLN}
v_bfe_u32 v{T[2]}, v{vLN}, 4, 1
v_lshrrev_b32 v{T[3]}, 5, v{vLN}
v_lshl_add_u32 v{T[2]}, v{T[2]}, 1, v{T[3]}
v_add_u32 v{T[2]}, v{T[0]}, v{T[2]}
v_bfe_u32 v{T[3]}, v{T[2]}, 2, 2
v_xor_b32 v{T[3]}, s{sWI}, v{T[3]}
v_mul_u32_u24 v{T[2]}, 192, v{T[2]}
v_lshl_add_u32 v{vAF}, v{T[3]}, 4, v{T[2]}
v_add_u32 v{vAF}, {XB}, v{vAF}
''')
def conv_setup2(em=None):
    for i in range(24): a(f'v_mov_b64 {vr(vACC+2*i,2)}, 0')
    a(f'''
v_and_b32 v{T[0]}, 3, v{vLN}
v_lshlrev_b32 v{vFA}, 2, v{T[0]}
v_add_u32 v{vFA}, {FL}, v{vFA}
s_lshl_b32 s{sT0}, s{sWV}, 2
s_add_u32 s{sT0}, s{sT0}, {FL}
v_mov_b32 v{vFW}, s{sT0}
v_mov_b32 v{vFP}, 0
ds_write_b32 v{vFW}, v{vFP}
v_and_b32 v{T[0]}, 15, v{vLN}
v_lshrrev_b32 v{T[1]}, 4, v{vLN}
v_add_u32 v{T[2]}, 4, v{T[0]}
v_bfe_u32 v{T[3]}, v{T[2]}, 2, 2
v_xor_b32 v{T[3]}, s{sWI}, v{T[3]}
v_mul_u32_u24 v{T[2]}, 192, v{T[2]}
v_lshl_add_u32 v{vAE}, v{T[3]}, 4, v{T[2]}
v_add_u32 v{vAE16}, {XB}, v{vAE}
v_mul_u32_u24 v{T[2]}, {XROW}, v{T[1]}
v_add_u32 v{vAE}, v{vAE16}, v{T[2]}
v_bfe_u32 v{T[3]}, v{T[0]}, 2, 2
v_xor_b32 v{T[4]}, s{sWI}, v{T[3]}
v_mul_u32_u24 v{T[2]}, 192, v{T[0]}
v_lshl_add_u32 v{T[2]}, v{T[4]}, 4, v{T[2]}
v_bfe_u32 v{T[1]}, v{vLN}, 4, 1
v_mul_u32_u24 v{T[1]}, 3072, v{T[1]}
v_lshrrev_b32 v{T[3]}, 5, v{vLN}
v_bfe_u32 v{T[4]}, v{vLN}, 1, 1
v_xor_b32 v{T[3]}, v{T[3]}, v{T[4]}
v_lshl_add_u32 v{T[1]}, v{T[3]}, 3, v{T[1]}
v_add3_u32 v{vAO}, v{T[2]}, v{T[1]}, s{sOB}
''')

def dma_setup():
    mksrd(sW1, 10, 73728); mksrd(sW2, 12, 73728)
    a(f'''
    v_lshrrev_b32 v{T[0]}, 3, v{vLN}
    v_mul_u32_u24 v{T[0]}, 768, v{T[0]}
    v_bfe_u32 v{T[1]}, v{vLN}, 4, 1
    v_lshlrev_b32 v{T[1]}, 2, v{T[1]}
    v_and_b32 v{T[2]}, 7, v{vLN}
    v_xor_b32 v{T[1]}, v{T[1]}, v{T[2]}
    v_lshl_add_u32 v{T[0]}, v{T[1]}, 4, v{T[0]}
    s_and_b32 s{sT1}, s{sWI}, 1
    s_lshl_b32 s{sT0}, s{sT1}, 5
    v_xor_b32 v{vDW1[0]}, s{sT0}, v{T[0]}
    v_xor_b32 v{vDW1[1]}, 32, v{vDW1[0]}
    v_mov_b32 v{vDW2[0]}, v{vL16}
    v_mov_b32 v{vDW2[1]}, v{vL16}
    v_mov_b32 v{vDW2[2]}, v{vL16}
    s_mov_b32 exec_lo, 0xffff0000
    v_xor_b32 v{vDW2[2]}, 32, v{vL16}
    s_mov_b32 exec_lo, 0
    s_mov_b32 exec_hi, 0xffff0000
    v_xor_b32 v{vDW2[0]}, 32, v{vL16}
    s_mov_b32 exec_lo, -1
    s_mov_b32 exec_hi, 0
    v_xor_b32 v{vDW2[1]}, 32, v{vL16}
    s_mov_b64 exec, -1
    s_mul_i32 s{sWA}, s{sWI}, {3*6144}
    s_mul_i32 s{sWBm}, s{sWI}, 3072
    ''')

isF = 's_cmp_lt_u32' if FOLD else 's_cmp_ge_u32'
a(f'''
s_load_dwordx4 s[4:7], s[0:1], 0
s_load_dwordx4 s[8:11], s[0:1], 16
s_load_dwordx4 s[12:15], s[0:1], 32
s_getpc_b64 s[100:101]
L_pc:
''')
if STAMP: a(f's_load_dwordx2 s[{sWS}:{sWS+1}], s[0:1], {48 if opt("dbg") else 56}')
stamp(0)
if opt('hold') or opt('amp'): a('s_memrealtime s[94:95]\ns_mov_b32 s88, 0')
a(f'''
s_cmp_ge_u32 s2, 256
s_cbranch_scc1 L_end
v_lshrrev_b32 v{T[0]}, 6, v0
v_and_b32 v{vLN}, 63, v0
''')
PFM = opt('pf', 'h')
if PFM == 'first':
    a(f'''
    s_bfe_u32 s{sT3}, s2, 0x20003
    s_mul_i32 s{sT3}, s{sT3}, {80*128}
    v_mul_u32_u24 v{T[1]}, 10, v{T[0]}
    v_add_u32 v{T[1]}, v{T[1]}, v{vLN}
    v_lshl_add_u32 v{T[1]}, v{T[1]}, 7, s{sT3}
    v_min_u32 v{T[1]}, L_end-L_pc, v{T[1]}
    s_mov_b64 exec, 0x3ff
    global_load_dword v{vPF}, v{T[1]}, s[100:101]
    s_mov_b64 exec, -1
    ''')
a(f'''
s_lshr_b32 s{sT1}, s2, 3
v_readfirstlane_b32 s{sWV}, v{T[0]}
s_and_b32 s{sT2}, s2, 1
s_add_u32 s{sT2}, s{sT2}, s{sT1}
s_cmp_ge_u32 s{sT2}, 32
s_cbranch_scc1 L_end
s_and_b32 s{sT0}, s2, 3
v_mul_u32_u24 v{T[0]}, 43, v{vLN}
s_mul_i32 s{sT0}, s{sT0}, 63
s_add_u32 s{sT0}, s{sT0}, 1
v_lshrrev_b32 v{T[0]}, 9, v{T[0]}
s_lshr_b32 s{sT0}, s{sT0}, 1
s_add_u32 s{sT0}, s{sT0}, s{sT1}
v_mul_u32_u24 v{T[1]}, 12, v{T[0]}
s_mul_i32 s{sT1}, s{sT0}, 9363
s_lshr_b32 s{sT1}, s{sT1}, 16
v_sub_u32 v{T[1]}, v{vLN}, v{T[1]}
s_mul_i32 s{sT2}, s{sT1}, 7
s_sub_u32 s{sT0}, s{sT0}, s{sT2}
s_bfe_u32 s{sT2}, s2, 0x10002
s_mul_i32 s{sT2}, s{sT2}, 7
s_add_u32 s{sT0}, s{sT0}, s{sT2}
s_lshl_b32 s{sX0}, s{sT0}, 4
s_mul_i32 s{sY0}, s{sT1}, {112*7282}
s_add_u32 s{sH13}, s{sY0}, {112*7282}
s_lshr_b32 s{sY0}, s{sY0}, 16
s_lshr_b32 s{sH13}, s{sH13}, 16
s_sub_u32 s{sH13}, s{sH13}, s{sY0}
s_and_b32 s{sWI}, s{sWV}, 3
''')
if PFM == 'h':
    a(f'''
    s_cmp_eq_u32 s{sH13}, 13
    s_cbranch_scc1 L_nopf
    s_bfe_u32 s{sT3}, s2, 0x20003
    s_lshl_b32 s{sT3}, s{sT3}, 3
    s_add_u32 s{sT3}, s{sT3}, s{sWV}
    s_mul_i32 s{sT3}, s{sT3}, {10*128}
    v_lshl_add_u32 v{T[2]}, v{vLN}, 7, s{sT3}
    v_min_u32 v{T[2]}, L_end-L_pc, v{T[2]}
    s_mov_b64 exec, 0x3ff
    global_load_dword v{vPF}, v{T[2]}, s[100:101]
    s_mov_b64 exec, -1
    L_nopf:
    ''')
a(f'''
v_mov_b32 v{T[4]}, {MARK}
v_lshlrev_b32 v{vL16}, 4, v{vLN}
{isF} s{sWV}, 4
s_cbranch_scc1 L_F0
; ---- L: x rows
s_mul_i32 s{sT1}, s{sWI}, 5
v_add_u32 v{T[0]}, s{sT1}, v{T[0]}
v_bfe_u32 v{T[2]}, v{T[0]}, 2, 2
v_xor_b32 v{T[1]}, v{T[1]}, v{T[2]}
s_sub_u32 s{sT1}, s{sX0}, 2
v_add_u32 v{T[0]}, s{sT1}, v{T[0]}
v_mul_u32_u24 v{T[2]}, 192, v{T[0]}
v_cmp_gt_u32 vcc, 224, v{T[0]}
v_lshl_add_u32 v{T[2]}, v{T[1]}, 4, v{T[2]}
s_mul_i32 s{sXM}, s{sWI}, 960
s_add_u32 m0, s{sXM}, {XB}
s_movk_i32 s{sXM}, {XROW}
s_mov_b32 s99, 43008
v_cndmask_b32 v{vXO}, v{T[4]}, v{T[2]}, vcc
s_sub_u32 s{sT1}, s{sY0}, 2
s_mul_i32 s{sT1}, s{sT1}, s99
v_add_u32 v{vXO}, s{sT1}, v{vXO}
s_mov_b32 s{sX+2}, {XBYTES}
s_mov_b32 s{sX+3}, 0x00020000
s_mov_b32 exec_hi, 0x0fffffff
s_waitcnt lgkmcnt(0)
{ap('Lk')}
s_mov_b64 s[{sX}:{sX+1}], s[4:5]
''')
xl = [0]
def xrows(n):
    for _ in range(n):
        t = xl[0]; xl[0] += 1
        if t:
            a(f's_add_u32 m0, m0, s{sXM}')
            a(f'v_add_u32 v{vXO}, s99, v{vXO}')
        a(f'buffer_load_dwordx4 v{vXO}, {srd(sX)}, 0 offen{XPOL} lds')
NX0 = int(opt('nx0', 12))
xrows(NX0)
a(ap('Li'))
stamp(1)
a(f'''
s_branch L_L
L_F0:
; ---- F: conv weight tables, rows w and w+4 of both
s_setprio {opt("fprio", 2)}
s_mul_i32 s{sT3}, s{sWI}, 960
v_add_u32 v{T[2]}, s{sT3}, v{vL16}
s_mul_i32 s{sT3}, s{sWI}, 576
s_sub_u32 s{sT3}, s{sT3}, {2*576 + 192}
v_mov_b32 v{T[3]}, {MARK}
s_mov_b32 exec_lo, 0xfffff000
s_mov_b32 exec_hi, 0xffff
v_add_u32 v{T[3]}, s{sT3}, v{vL16}
v_add_u32 v{T[4]}, {4*576}, v{T[3]}
s_mov_b32 exec_lo, -1
s_mov_b32 exec_hi, 0x0fffffff
v_add_u32 v{T[1]}, {4*960}, v{T[2]}
s_mul_i32 s{sT3}, s{sWI}, {TP}
s_mov_b32 s{sDS+2}, 4800
s_mov_b32 s{sDS+3}, 0x00020000
s_mov_b32 s{sDL+2}, 1728
s_mov_b32 s{sDL+3}, 0x00020000
s_add_u32 m0, s{sT3}, {TB + 8*TP}
s_waitcnt lgkmcnt(0)
s_mov_b64 s[{sDS}:{sDS+1}], s[8:9]
s_mov_b64 s[{sDL}:{sDL+1}], s[6:7]
buffer_load_dwordx4 v{T[2]}, {srd(sDS)}, 0 offen lds
s_add_u32 m0, s{sT3}, {TB}
s_mul_i32 s{sIMG}, s{sWI}, 6144
buffer_load_dwordx4 v{T[3]}, {srd(sDL)}, 0 offen lds
s_add_u32 m0, s{sT3}, {TB + 12*TP}
s_mov_b32 s{sOB}, {OUTF}
buffer_load_dwordx4 v{T[1]}, {srd(sDS)}, 0 offen lds
s_add_u32 m0, s{sT3}, {TB + 4*TP}
s_nop 0
buffer_load_dwordx4 v{T[4]}, {srd(sDL)}, 0 offen lds
s_mov_b32 exec_hi, -1
''')
WPF = opt('wpf', '0') == '1'
if PFM in ('f', 'g'):
    if PFM == 'g': a(f's_cmp_eq_u32 s{sH13}, 13\ns_cselect_b32 s97, 1, 0xfffff')
    a(f'''
    s_bfe_u32 s{sT3}, s2, 0x20003
    s_lshl_b32 s{sT3}, s{sT3}, 2
    s_add_u32 s{sT3}, s{sT3}, s{sWI}
    s_mul_i32 s{sT3}, s{sT3}, {20*128}
    v_lshl_add_u32 v{T[1]}, v{vLN}, 7, s{sT3}
    v_min_u32 v{T[1]}, L_end-L_pc, v{T[1]}
    {'s_mov_b64 exec, 0xfffff' if PFM == 'f' else f's_cmp_eq_u32 s{sH13}, 13'+chr(10)+f's_cselect_b32 s{sT3}, 0, -1'+chr(10)+f'v_and_b32 v{T[1]}, s{sT3}, v{T[1]}'+chr(10)+'s_mov_b32 exec_lo, s97'+chr(10)+'s_mov_b32 exec_hi, 0'}
    global_load_dword v{vPF}, v{T[1]}, s[100:101]
    s_mov_b64 exec, -1
    ''')
if WPF:
    a(f'''
    s_and_b32 s{sT0}, s{sWI}, 1
    s_cselect_b64 s[{sT1}:{sT2}], s[12:13], s[10:11]
    s_lshr_b32 s{sT0}, s2, 3
    s_lshl_b32 s{sT0}, s{sT0}, 1
    s_lshr_b32 s{sT3}, s{sWI}, 1
    s_add_u32 s{sT0}, s{sT0}, s{sT3}
    s_mul_i32 s{sT0}, s{sT0}, {10*128}
    v_lshl_add_u32 v{T[0]}, v{vLN}, 7, s{sT0}
    v_min_u32 v{T[0]}, {73728-128}, v{T[0]}
    s_mov_b64 exec, 0x3ff
    global_load_dword v{vPF-1}, v{T[0]}, s[{sT1}:{sT2}]
    s_mov_b64 exec, -1
    ''')
a(ap('Ft'))
conv_setup1()
a(ap('Fc'))
OPF = opt('opf', '0') == '1'
if OPF:
    a(f'''
    s_mov_b64 exec, 1
    buffer_load_dword v{vPF-2}, v{vL16}, {srd(sOUT)}, s{sO0} offen
    s_mov_b64 exec, -1
    ''')
vFR = [48, 49, 50, 51]
vDW1[:] = [56, 57]; vDW2[:] = [58, 59, 60]
def f_setup1():
    a(f'''
    s_add_u32 s{sO1}, s{sO0}, {4*43008}
    v_lshrrev_b32 v{T[4]}, 5, v{vLN}
    v_bfe_u32 v{T[0]}, v{vLN}, 2, 2
    v_bfe_u32 v{T[1]}, v{vLN}, 4, 1
    v_and_b32 v{T[2]}, 3, v{vLN}
    v_lshl_add_u32 v{T[3]}, v{T[4]}, 4, v{T[0]}
    v_lshlrev_b32 v{T[3]}, 7, v{T[3]}
    v_lshl_add_u32 v{T[3]}, v{T[1]}, 5, v{T[3]}
    v_lshl_add_u32 v{T[3]}, v{T[2]}, 3, v{T[3]}
    v_bfe_u32 v{T[2]}, v{vLN}, 3, 1
    v_lshl_add_u32 v{vAW1[0]}, v{T[2]}, 6, v{T[3]}
    v_xor_b32 v{vAW1[1]}, 64, v{vAW1[0]}
    v_xor_b32 v{vAW1[2]}, 32, v{vAW1[0]}
    v_xor_b32 v{vAW1[3]}, 0x60, v{vAW1[0]}
    v_lshl_add_u32 v{T[3]}, v{T[4]}, 2, v{T[0]}
    v_mul_u32_u24 v{T[3]}, 192, v{T[3]}
    v_lshl_add_u32 v{T[3]}, v{T[1]}, 4, v{T[3]}
    v_and_b32 v{T[2]}, 1, v{vLN}
    v_xor_b32 v{T[2]}, v{T[2]}, v{T[4]}
    v_lshl_add_u32 v{T[3]}, v{T[2]}, 5, v{T[3]}
    v_bfe_u32 v{T[2]}, v{vLN}, 1, 1
    v_lshl_add_u32 v{T[3]}, v{T[2]}, 3, v{T[3]}
    v_add_u32 v{vAW2}, 12288, v{T[3]}
    s_mul_i32 s{sT2}, s{sWI}, 3072
    s_add_u32 s{sT2}, s{sT2}, {OUTF}
    s_mul_i32 s{sT1}, s{sWI}, {XROW}
    s_add_u32 s{sT1}, s{sT1}, {XB + 2*XROW + 384}
    v_lshlrev_b32 v{T[4]}, 1, v{T[4]}
    v_xor_b32 v{T[0]}, v{T[4]}, v{T[0]}
    v_and_b32 v{T[3]}, 15, v{vLN}
    v_mul_u32_u24 v{T[3]}, 192, v{T[3]}
    v_lshl_add_u32 v{T[0]}, v{T[0]}, 4, v{T[3]}
    v_lshl_add_u32 v{T[0]}, v{T[2]}, 3, v{T[0]}
    v_mul_u32_u24 v{T[2]}, {4*3072}, v{T[1]}
    v_add3_u32 v{vFR[0]}, v{T[0]}, v{T[2]}, s{sT2}
    v_xor_b32 v{vFR[1]}, 8, v{vFR[0]}
    v_xor_b32 v{vFR[2]}, 16, v{vFR[0]}
    v_xor_b32 v{vFR[3]}, 24, v{vFR[0]}
    v_add_u32 v{T[0]}, 2, v{vLN}
    v_bfe_u32 v{T[0]}, v{T[0]}, 2, 2
    v_xor_b32 v{T[0]}, v{T[4]}, v{T[0]}
    v_lshl_add_u32 v{T[0]}, v{T[0]}, 4, v{T[3]}
    v_mul_u32_u24 v{T[2]}, {4*XROW}, v{T[1]}
    v_add3_u32 v{vAR[0]}, v{T[0]}, v{T[2]}, s{sT1}
    v_xor_b32 v{vAR[1]}, 16, v{vAR[0]}
    v_bfe_u32 v{T[0]}, v{vLN}, 1, 2
    v_xor_b32 v{T[0]}, v{T[4]}, v{T[0]}
    v_lshl_add_u32 v{T[0]}, v{T[0]}, 4, v{T[3]}
    v_mul_u32_u24 v{T[2]}, 3072, v{T[1]}
    v_add3_u32 v{vSW[0]}, v{T[0]}, v{T[2]}, s{sIMG}
    v_xor_b32 v{vSW[1]}, 16, v{vSW[0]}
    ''')
def f_setup2():
    a(f'''
    v_and_b32 v{T[1]}, 1, v{vLN}
    v_lshlrev_b32 v{T[1]}, 4, v{T[1]}
    v_mov_b32 v{T[2]}, 0x3f80
    v_lshlrev_b32 v{T[1]}, v{T[1]}, v{T[2]}
    ''')
    for i in range(4): a(f'v_mov_b64 {vr(vID+2*i,2)}, 0')
    for i in range(8):
        pos = 16 * (i >> 2) + 8 * ((i >> 1) & 1) + 2 * (i & 1)
        setexec(3 << pos, 3 << (pos + 4))
        a(f'v_mov_b32 v{vID+i}, v{T[1]}')
    a('s_mov_b64 exec, -1')
FS = opt('fs', '00001')
fsl = [conv_setup2, late_setup, f_setup2, f_setup1, dma_setup]
def fsetup(k):
    for f, c in zip(fsl, FS):
        if int(c) == k: f()
fsetup(0)
a(ap('Fs'))
stamp(1)
a(f's_waitcnt vmcnt({(1 if WPF else 0) + (1 if PFM in "fg" else 0) + (1 if OPF else 0)}) lgkmcnt(0)')
a(ap('Fl'))
pstamp(9)
bar(2)
cv = Conv(0)
for gi in range(3): tab_reads(gi, cv.ds)
S0 = stage([('F',0,[0]), ('F',1,[0,1])])
cv.run(S0, 0)
def res_half(s):
    m = 0xffff0000 if s else 0xffff
    setexec(m, m)
    for ks in range(6):
        cv.ds(f'ds_read_b128 {vr(vRES+4*ks,4)}, v{vAR[ks&1]} offset:{64*(ks>>1)}')
    a('s_mov_b64 exec, -1')
def run_stage(left, frags, pairs, keep=0, mid=None):
    its = left + stage(frags)
    if pairs: add_pub(its, len(left), len(frags), pairs)
    if mid: its[mid[0]]['post'] = mid[1]
    return cv.run(its, len(its) - keep)
left = cv.run(S0, len(S0) - int(opt('keep0', 0)))
fsetup(1)
pstamp(10)
bar(3)
left = run_stage(left, [('F',2,[0,1,2]), ('F',3,[1,2,3]), ('E',0,[0,1])], [0, 1])
fsetup(2)
pstamp(11)
bar(4)
a(f's_setprio {opt("fprio2", 3)}')
left = run_stage(left, [('F',4,[2,3]), ('F',5,[3]), ('E',2,[2,3])], [2, 3])
signal(1)
a('s_waitcnt vmcnt(0)')
wdma(0, [0, 1, 2])
stamp(5)
poll(GF, 1)
RA = 168
for ks in range(6):
    a(f'ds_read_b64 {vr(RA+4*ks,2)}, v{vFR[2*(ks&1)]} offset:{64*(ks>>1)}')
    a(f'ds_read_b64 {vr(RA+4*ks+2,2)}, v{vFR[2*(ks&1)+1]} offset:{64*(ks>>1)}')
a(f's_setprio {opt("fprio3", 1)}')
wdma(1, [0, 1, 2])
a('s_waitcnt lgkmcnt(0)')
stamp(6)
def f_mid():
    for ks in range(6):
        a(f'ds_read_b128 {vr(vRES+4*ks,4)}, v{vAR[ks&1]} offset:{64*(ks>>1)}')
    landed(0, 2)
    wdma(0, [3, 4, 5]); wdma(1, [3, 4, 5])
    peek(GF)
def f_mid2():
    a('s_waitcnt lgkmcnt(0)')
    check(GF, 2)
    f_w1reads0()
ln(RA, 72, [vL + i for i in range(24)], False, f_mid, f_mid2)
stamp(8)
XH = {
  'start3': [lambda: landed(0, 3)],
  ('T1', 0): [lambda: peek(GF)],
  ('preT2', 0): [lambda: check(GF, 3)],
  ('T1', 1): [lambda: stamp(9)],
  ('T2', 1): [lambda: peek(GL)],
  ('preT1', 2): [lambda: check(GL, 6)],
  ('preT1', 4): [lambda: signal(4)],
  ('T1', 4): [lambda: peek(GL)],
  ('preT2', 4): [lambda: check(GL, 7)],
  ('T2', 5): [lambda: peek(GL)],
  ('preT1', 6): [lambda: check(GL, 8), lambda: stamp(10)],
  ('preT1', 8): [lambda: stamp(11)],
  ('T2', 8): [lambda: peek(GF)],
  ('preT1', 9): [lambda: check(GF, 4)],
  ('preT1', 10): [lambda: stamp(12)],
}
FP = opt('fp', 'n')
def fprio(c):
    if FP == 'n': return (0, 0) if c == 0 else None
    if FP == 's': return (1, 1) if c == 0 else None
    return (0, int(FP))
mlp32(XH, fprio)
stamp(13)
P = vY[0]; Q = vK[0]
for mt in range(3):
    for i in range(8):
        a(f'v_cvt_pk_bf16_f32 v{P+8*mt+i}, v{vO+16*mt+2*i}, v{vO+16*mt+2*i+1}')
    a(f'ds_write_b128 v{vSW[0]}, {vr(P+8*mt,4)} offset:{64*mt}')
    a(f'ds_write_b128 v{vSW[1]}, {vr(P+8*mt+4,4)} offset:{64*mt}')
for s in range(2):
    for j in range(3):
        a(f'ds_read_b128 {vr(Q+4*(3*s+j),4)}, v{vSR[j]} offset:{3072*s}')
for s in range(2):
    for j in range(3):
        a(f's_waitcnt lgkmcnt({5-(3*s+j)})')
        a(f'buffer_store_dwordx4 {vr(Q+4*(3*s+j),4)}, v{vL16}, {srd(sOUT)}, s{sO1 if s else sO0} offen offset:{1024*j}{STPOL}')
finish()
emit_slow()

a.label('L_L')
cv = Conv(4)
vDW1[:] = [220, 221]; vDW2[:] = [222, 223, 224]
vA0, vA2 = 48, 50
RR = 60
def l_setup():
    a(f'''
    s_add_u32 s{sO0}, s{sO0}, {8*43008}
    s_and_b32 s{sT1}, s{sWI}, 1
    v_lshrrev_b32 v{T[4]}, 4, v{vLN}
    v_bfe_u32 v{T[0]}, v{vLN}, 2, 2
    v_and_b32 v{T[2]}, 3, v{vLN}
    v_bfe_u32 v{T[1]}, v{vLN}, 4, 1
    v_lshlrev_b32 v{T[2]}, 3, v{T[2]}
    v_lshl_add_u32 v{T[2]}, v{T[1]}, 5, v{T[2]}
    v_lshl_add_u32 v{T[3]}, v{T[4]}, 3, v{T[0]}
    v_lshl_add_u32 v{T[3]}, v{T[3]}, 7, v{T[2]}
    v_bfe_u32 v{T[1]}, v{vLN}, 3, 1
    v_xor_b32 v{T[1]}, s{sT1}, v{T[1]}
    v_lshl_add_u32 v{T[3]}, v{T[1]}, 6, v{T[3]}
    s_lshr_b32 s{sT2}, s{sWI}, 1
    s_mul_i32 s{sT2}, s{sT2}, {PS}
    s_sub_u32 s{sT3}, {PS}, s{sT2}
    v_add_u32 v{vLW1}, s{sT2}, v{T[3]}
    v_add_u32 v{vLW1+4}, s{sT3}, v{T[3]}
    v_xor_b32 v{vLW1+1}, 32, v{vLW1}
    v_xor_b32 v{vLW1+2}, 64, v{vLW1}
    v_xor_b32 v{vLW1+3}, 0x60, v{vLW1}
    v_xor_b32 v{vLW1+5}, 32, v{vLW1+4}
    v_xor_b32 v{vLW1+6}, 64, v{vLW1+4}
    v_xor_b32 v{vLW1+7}, 0x60, v{vLW1+4}
    v_lshl_add_u32 v{T[3]}, v{T[4]}, 2, v{T[0]}
    v_mul_u32_u24 v{T[3]}, 192, v{T[3]}
    v_add_u32 v{T[3]}, v{T[3]}, v{T[2]}
    s_mul_i32 s{sT1}, s{sT1}, 6144
    s_add_u32 s{sT2}, s{sT2}, 12288
    s_add_u32 s{sT3}, s{sT3}, 12288
    s_add_u32 s{sT0}, s{sT2}, s{sT1}
    v_add_u32 v{vLW2}, s{sT0}, v{T[3]}
    s_add_u32 s{sT0}, s{sT3}, s{sT1}
    v_add_u32 v{vLW2+4}, s{sT0}, v{T[3]}
    s_sub_u32 s{sT1}, 6144, s{sT1}
    s_add_u32 s{sT0}, s{sT2}, s{sT1}
    v_add_u32 v{vLW2+2}, s{sT0}, v{T[3]}
    s_add_u32 s{sT0}, s{sT3}, s{sT1}
    v_add_u32 v{vLW2+6}, s{sT0}, v{T[3]}
    v_xor_b32 v{vLW2+1}, 32, v{vLW2}
    v_xor_b32 v{vLW2+3}, 32, v{vLW2+2}
    v_xor_b32 v{vLW2+5}, 32, v{vLW2+4}
    v_xor_b32 v{vLW2+7}, 32, v{vLW2+6}
    v_xor_b32 v{T[0]}, v{T[4]}, v{T[0]}
    v_and_b32 v{T[3]}, 15, v{vLN}
    v_mul_u32_u24 v{T[3]}, 192, v{T[3]}
    v_lshl_add_u32 v{T[0]}, v{T[0]}, 4, v{T[3]}
    v_add_u32 v{vARL}, {L12}, v{T[0]}
    v_bfe_u32 v{T[1]}, v{vLN}, 1, 1
    v_lshl_add_u32 v{T[0]}, v{T[1]}, 3, v{T[0]}
    v_add_u32 v{vA2}, {L12}, v{T[0]}
    v_xor_b32 v{vA2+1}, 8, v{vA2}
    v_add_u32 v{vA0}, s{sIMG}, v{T[0]}
    v_xor_b32 v{vA0+1}, 8, v{vA0}
    s_mul_i32 s{sT0}, s{sWI}, {XROW}
    v_bfe_u32 v{T[1]}, v{vLN}, 4, 1
    v_lshl_add_u32 v{T[3]}, v{T[1]}, 3, v{T[3]}
    v_lshrrev_b32 v{T[4]}, 5, v{vLN}
    v_bfe_u32 v{T[0]}, v{vLN}, 1, 2
    v_xor_b32 v{T[0]}, v{T[4]}, v{T[0]}
    v_lshl_add_u32 v{T[0]}, v{T[0]}, 4, v{T[3]}
    v_add_u32 v{vSW[0]}, s{sIMG}, v{T[0]}
    v_xor_b32 v{vSW[1]}, 32, v{vSW[0]}
    v_add_u32 v{T[0]}, 2, v{vLN}
    v_bfe_u32 v{T[0]}, v{T[0]}, 2, 2
    v_xor_b32 v{T[0]}, v{T[4]}, v{T[0]}
    v_lshl_add_u32 v{T[0]}, v{T[0]}, 4, v{T[3]}
    s_add_u32 s{sT0}, s{sT0}, {XB + 384}
    v_add_u32 v{vAR[0]}, s{sT0}, v{T[0]}
    v_xor_b32 v{vAR[1]}, 32, v{vAR[0]}
    ''')

a(f'''
s_mov_b32 exec_hi, -1
s_mul_i32 s{sIMG}, s{sWI}, 3072
s_add_u32 s{sIMG}, s{sIMG}, {S_IL}
s_mov_b32 s{sOB}, {OUTL}
''')
LS = opt('ls', '02002')
lsl = [conv_setup1, dma_setup, conv_setup2, late_setup, l_setup]
def lsetup(k):
    for f, c in zip(lsl, LS):
        if int(c) == k: f()
lsetup(0)
a(ap('Ls'))
pstamp(14)
a(f's_waitcnt vmcnt({NX0 - 4})')
a(ap('Ll'))
pstamp(9)
bar(2)
if NX0 < 17:
    a('s_mov_b32 exec_hi, 0x0fffffff')
    xrows(17 - NX0)
    a('s_mov_b32 exec_hi, -1')
lsetup(1)
for gi in range(3): tab_reads(gi, cv.ds)
pstamp(10)
a('s_waitcnt vmcnt(9)')
pstamp(11)
bar(3)
lsetup(2)
pstamp(12)
a('s_waitcnt vmcnt(0) lgkmcnt(0)')
pstamp(13)
bar(4)
a(f's_setprio {opt("lprio", 2)}')
RED, LNW = 1, 3
def raw_reads(R, ad, off=0):
    for ks in range(3):
        a(f'ds_read_b64 {vr(R+4*ks,2)}, v{ad} offset:{off+64*ks}')
        a(f'ds_read_b64 {vr(R+4*ks+2,2)}, v{ad+1} offset:{off+64*ks}')
def row_store(O, soff, P=vY[0], Q=vK[0]):
    for i in range(12):
        a(f'v_cvt_pk_bf16_f32 v{P+i}, v{O+2*i}, v{O+2*i+1}')
    for i in range(6):
        a(f'ds_write_b64 v{vSW[i&1]}, {vr(P+2*i,2)} offset:{64*(i>>1)}')
    for j in range(3):
        a(f'ds_read_b128 {vr(Q+4*j,4)}, v{vSR[j]}')
    for j in range(3):
        a(f's_waitcnt lgkmcnt({2-j})')
        a(f'buffer_store_dwordx4 {vr(Q+4*j,4)}, v{vL16}, {srd(sOUT)}, s{soff} offen offset:{1024*j}{STPOL}')
LP = opt('lp', 'k')
def lprio(c):
    if LP == 'n': return (0, 0) if c == 0 else None
    if LP == 's': return (1, 1) if c == 0 else None
    if LP == 'k':
        lo, hi = [int(x) for x in opt('lk', '0,9').split(',')]
        if lo <= c < hi: return (0, 1)
        return (0, 0) if c in (0, hi) else None
    return (0, int(LP))
def l_body(h13):
    global cv
    keep = cv
    cv = copy.copy(keep)
    sfx = 'a' if h13 else 'b'
    if h13:
        frags = [('F',4,[4]), ('F',5,[4,5]), ('F',6,[4,5,6]), ('F',7,[5,6]), ('E',4,[4,5]), ('F',8,[6]), ('L',6,[6])]; pairs = [4, 5, 6]
    else:
        frags = [('F',4,[4]), ('F',5,[4,5]), ('F',6,[4,5]), ('F',7,[5]), ('E',4,[4,5])]; pairs = [4, 5]
    its = stage(frags)
    add_pub(its, 0, len(frags), pairs)
    def resr():
        for i in range(6):
            cv.ds(f'ds_read_b64 {vr(RR+2*i,2)}, v{vAR[i&1]} offset:{10*XROW+64*(i>>1)}')
        if h13:
            for i in range(6):
                cv.ds(f'ds_read_b64 {vr(RR+12+2*i,2)}, v{vAR[i&1]} offset:{(14-RED)*XROW+64*(i>>1)}')
    if opt('lc'):
        nf = len(frags)
        for j, idx in ((9, 0), (10, nf - 1), (11, nf), (12, 2 * nf - 1), (13, 2 * nf)):
            its[idx]['post'] = lambda j=j: _st(j)
    if '3' in LS:
        cv.run(its, 0)
        lsetup(3)
    cv.run(its)
    stamp(6)
    signal(2)
    resr()
    stamp(5)
    poll(GL, 2)
    stamp(7)
    RAW = 168
    raw_reads(RAW, vA0)
    for i in range(12):
        a(f'v_lshlrev_b32 v{vO+2*i}, 16, v{RR+i}\nv_and_b32 v{vO+2*i+1}, 0xffff0000, v{RR+i}')
    if h13:
        a(f's_cmp_eq_u32 s{sWI}, {RED}\ns_cbranch_scc1 L_ri{sfx}')
        for i in range(12): a(f'v_mov_b64 {vr(vO+24+2*i,2)}, 0')
        a(f's_branch L_rj{sfx}')
        a.label(f'L_ri{sfx}')
        for i in range(12):
            a(f'v_lshlrev_b32 v{vO+24+2*i}, 16, v{RR+12+i}\nv_and_b32 v{vO+24+2*i+1}, 0xffff0000, v{RR+12+i}')
        a.label(f'L_rj{sfx}')
    signal(3)
    if h13: raw_reads(RAW + 12, vA2)
    a(f's_waitcnt lgkmcnt({7 if h13 else 1})')
    def l_mid2():
        a('s_waitcnt lgkmcnt(0)')
        check(GF, 2)
        l_w1reads(0)
    ln(RAW, 72, [vL + i for i in range(12)], True, lambda: peek(GF), l_mid2)
    if h13:
        a(f's_cmp_lg_u32 s{sWI}, {LNW}\ns_cbranch_scc1 L_nl12')
        ln(RAW + 12, 72, [RAW + 12 + i for i in range(12)], True)
        for ks in range(3):
            a(f'ds_write_b128 v{vARL}, {vr(RAW+12+4*ks,4)} offset:{64*ks}')
        a.label('L_nl12')
        signal(5)
    stamp(8)
    def l12r():
        for ks in range(3):
            a(f'ds_read_b128 {vr(vL+12+4*ks,4)}, v{vARL} offset:{64*ks}')
    def pub_rem():
        a(f's_cmp_eq_u32 s{sWI}, {RED}\ns_cbranch_scc1 L_np\ns_mul_i32 s{sT0}, s{sWI}, 6144\nv_add_u32 v{T[0]}, s{sT0}, v{vL16}')
        for i in range(6):
            a(f'ds_write_b128 v{T[0]}, {vr(vO+24+4*i,4)} offset:{S_R + 1024*i}')
        a.label('L_np')
        signal(9)
    H = {
      'start3': [lambda: peek(GL)],
      ('preT1', 0): [lambda: check(GL, 3)],
      ('T1', 0): [lambda: wdma(2, [0, 1, 2]), lambda: wdma(3, [0, 1, 2]), lambda: peek(GF)],
      ('preT2', 0): [lambda: check(GF, 3)],
      ('T2', 0): [lambda: wdma(2, [3, 4, 5])] + ([lambda: peek(GL)] if h13 else []),
      ('preT1', 1): [lambda: check(GL, 5)] if h13 else [],
      ('T1', 1): [lambda: wdma(3, [3, 4, 5]), lambda: stamp(9)] + ([l12r] if h13 else []),
      ('preT2', 1): [lambda: landed(6, 6)],
      ('T2', 1): [lambda: wdma(4, [0, 1, 2]), lambda: peek(GL)],
      ('preT1', 2): [lambda: check(GL, 6)],
      ('T1', 2): [lambda: wdma(4, [3, 4, 5])],
      ('T2', 2): [lambda: wdma(5, [0, 1, 2])],
      ('preT1', 3): [lambda: landed(9, 7)],
      ('T1', 3): [lambda: wdma(5, [3, 4, 5])],
      ('T1', 4): [lambda: peek(GL)],
      ('preT2', 4): [lambda: check(GL, 7), lambda: landed(0, 8)],
      ('T2', 5): [lambda: peek(GL)],
      ('preT1', 6): [lambda: check(GL, 8), lambda: stamp(10)],
      ('preT1', 8): [lambda: stamp(11)],
      ('preT1', 10): [lambda: stamp(12)],
    }
    if h13:
        H[('T2', 9)] = [lambda: peek(GF)]
        H[('preT1', 10)] = H[('preT1', 10)] + [lambda: check(GF, 4), pub_rem]
        def reduce12():
            a(f's_cmp_lg_u32 s{sWI}, {RED}\ns_cbranch_scc1 L_nored')
            poll(GL, 9)
            others = [w for w in range(4) if w != RED]
            R = [144, 48, 144]
            def rd(n):
                for i in range(6):
                    a(f'ds_read_b128 {vr(R[n]+4*i,4)}, v{vL16} offset:{S_R + 6144*others[n] + 1024*i}')
            def ad(n):
                for i in range(24):
                    a(f'v_add_f32 v{vO+24+i}, v{vO+24+i}, v{R[n]+i}')
            rd(0); rd(1)
            a('s_waitcnt lgkmcnt(6)'); ad(0); rd(2)
            a('s_waitcnt lgkmcnt(6)'); ad(1)
            a('s_waitcnt lgkmcnt(0)'); ad(2)
            a(f's_add_u32 s{sO1}, s{sO0}, {(4-RED)*43008}')
            row_store(vO + 24, sO1, 48, 144)
            a.label('L_nored')
        H[('T1', 11)] = [reduce12]
    mlp16([3, 5, 8] if h13 else [], H, lprio)
    stamp(13)
    row_store(vO, sO0)
    finish()
    emit_slow()
    cv = keep
a(f's_cmp_lg_u32 s{sH13}, 13\ns_cbranch_scc1 L_L12')
l_body(True)
a.label('L_L12')
l_body(False)
a.label('L_end')
a('s_endpgm')

body = a.finalize()
hdr = open('cdna_kernels/' + NAME + '.s.ref').read().split('\n')
out = []
for l in hdr:
    if l.startswith('; @launch'):
        out.append('; @launch grid=(256,1,1) block=(512,1,1) lds=163840')
    elif l.startswith(';'):
        out.append(l)
    else:
        break
out.append('.amdgcn_target "amdgcn-amd-amdhsa--gfx950"')
out.append('.text')
out.append(f'.globl {NAME}_kernel')
out.append('.p2align 8')
out.append(f'.type {NAME}_kernel,@function')
out.append(f'{NAME}_kernel:')
for l in body:
    out.append(l if l.endswith(':') else '    ' + l)
out.append(f'''.section .rodata,"a"
.p2align 6
.amdhsa_kernel {NAME}_kernel
  .amdhsa_next_free_vgpr 256
  .amdhsa_next_free_sgpr 102
  .amdhsa_accum_offset 256
  .amdhsa_group_segment_fixed_size 0
  .amdhsa_kernarg_size 64
  .amdhsa_user_sgpr_count 2
  .amdhsa_user_sgpr_kernarg_segment_ptr 1
  .amdhsa_system_sgpr_workgroup_id_x 1
.end_amdhsa_kernel''')
print('\n'.join(out))
```

```python
import sys, struct, math, copy
from asmlib import Asm

NAME = "standalone__modern_conv_block_replknet__vision"
def fbits(x): return struct.unpack('<I', struct.pack('<f', x))[0]
def opt(name, default=None):
    for x in sys.argv:
        if x == '--' + name: return True
        if x.startswith('--' + name + '='): return x.split('=', 1)[1]
    return default
STAMP = opt('stamp'); CYC = opt('cyc'); PRO = opt('pro')
STPOL = ' ' + opt('stpol', 'sc1').replace('_', ' ') if opt('stpol', 'sc1') != 'none' else ''
FOLD = opt('fold', '1') == '1'
GL, GF = (1, 0) if FOLD else (0, 1)

XPOL = ' ' + opt('xpol').replace('_', ' ') if opt('xpol') else ''
XROW = 3840
XB = 73728
PS = 24576
TB, TP = 139264, 976
OUTF, OUTL = 49152, 147456
L12 = OUTL + 4*3072
FL = 163584
S_IF, S_R, S_IL = 0, 24576, OUTL
MARK = 0x40000000
XBYTES = 224 * 224 * 192

k0 = math.sqrt(2.0 / math.pi); k1 = 0.044715
c0 = 2 * k0 / math.log(2.0); c1 = c0 * k1
ga = c1 ** (1.0 / 3.0)
gc = -c0 / ga

sX, sDL, sDS, sW1, sW2, sOUT = 16, 20, 24, 28, 32, 36
sWV, sY0, sX0, sT0, sT1, sT2, sT3 = 40, 41, 42, 43, 44, 45, 46
sH13, sWI = 47, 3
sCA, sCC = 48, 50
sWS = 52
sXM, sIMG, sOB = 56, 57, 62
sWA, sWBm = 58, 59
sO0, sO1 = 60, 61
sST = 64
NST = 16
def srd(b): return f's[{b}:{b+3}]'
vO, vL, vY, vK, vG, vF1, vF2 = 0, 48, [72, 88], [104, 120], 136, 144, 168
vRES, vID = 204, 228
vAW1 = [236, 237, 245, 249]; vAW2 = 238
vLW1 = 204; vLW2 = 212
vDW1 = [220, 221]; vDW2 = [222, 223, 224]
vARL = 225
vSW = [239, 240]; vSR = [241, 242, 243]
vL16 = 244
vFA, vFW, vFP = 246, 247, 248
T = [250, 251, 252, 253, 254]
vLN = 255
vXO = 203; vPF = 54
vAF, vAE, vAO, vIDX, vTF0, vTF1, vTE, vAR, vAE16, vAO1 = 192, 193, 194, 195, 196, 197, 198, [199, 200], 201, 202
vACC, vAFR, vB = 0, 84, 144
def vr(b, n): return f'v[{b}:{b+n-1}]'

a = Asm()
def _st(i): a(f'{"s_memtime" if CYC else "s_memrealtime"} s[{sST+2*i}:{sST+2*i+1}]')
def pstamp(i):
    if STAMP and PRO and not opt('lc'): _st(i)
def ap(n):
    return 's_memrealtime s[88:89]' if opt('amp') == n else ''
def stamp(i):
    a(ap(str(i)))
    if i in (8, 13): hold(i)
    if STAMP and not (PRO and 9 <= i <= 14): _st(i)
def mksrd(b, lo, n):
    a(f's_mov_b64 s[{b}:{b+1}], s[{lo}:{lo+1}]\ns_mov_b32 s{b+2}, {n}\ns_mov_b32 s{b+3}, 0x00020000')
def hold(tag):
    h = opt('hold')
    if h and h.split(':')[0] == str(tag):
        n = nlab[0]; nlab[0] += 1
        a(f's_waitcnt lgkmcnt(0)\ns_add_u32 s92, s94, {h.split(":")[1]}')
        a.label(f'L_hold{n}')
        a(f's_memrealtime s[90:91]\ns_waitcnt lgkmcnt(0)\ns_sub_u32 s93, s92, s90\ns_cmp_gt_i32 s93, 0\ns_cbranch_scc1 L_hold{n}')
def bar(i=None):
    a('s_barrier')
    hold(i)
    if i is not None: stamp(i)
def setexec(lo, hi):
    a(f's_mov_b32 exec_lo, {lo:#x}\ns_mov_b32 exec_hi, {hi:#x}')

nlab = [0]; slow = []
def guard():
    if opt('safe'): a('s_sub_u32 s98, s98, 1\ns_cbranch_scc1 L_end')
def signal(v, emit=None):
    a(f'v_mov_b32 v{T[4]}, {v}')
    (emit or a)(f'ds_write_b32 v{vFW}, v{T[4]}')
def poll(grp, v):
    lab = f'L_poll{nlab[0]}'; nlab[0] += 1
    a.label(lab)
    guard()
    a(f'ds_read_b32 v{vFP}, v{vFA} offset:{16*grp}\ns_waitcnt lgkmcnt(0)\nv_cmp_gt_u32 vcc, {v}, v{vFP}\ns_cbranch_vccnz {lab}')
def peek(grp): a(f'ds_read_b32 v{vFP}, v{vFA} offset:{16*grp}')
def check(grp, v):
    n = nlab[0]; nlab[0] += 1
    a(f'v_cmp_gt_u32 vcc, {v}, v{vFP}\ns_cbranch_vccnz L_slow{n}')
    a.label(f'L_back{n}')
    slow.append((n, grp, v))
def emit_slow():
    for n, grp, v in slow:
        a.label(f'L_slow{n}')
        guard()
        a(f'ds_read_b32 v{vFP}, v{vFA} offset:{16*grp}\ns_waitcnt lgkmcnt(0)\nv_cmp_gt_u32 vcc, {v}, v{vFP}\ns_cbranch_vccnz L_slow{n}\ns_branch L_back{n}')
    slow.clear()
def landed(n, v):
    a(f's_waitcnt vmcnt({n})'); signal(v)

def wdma(p, parts=range(6)):
    for i in parts:
        if i < 3:
            a(f'''
            s_add_u32 m0, s{sWBm}, {PS*p + 1024*i}
            s_add_u32 s{sT0}, s{sWA}, {6144*i + 128*p}
            buffer_load_dwordx4 v{vDW1[i & 1]}, {srd(sW1)}, s{sT0} offen lds
            ''')
        else:
            if i == 3 or i - 1 not in parts:
                a(f's_add_u32 m0, s{sWBm}, {PS*p + 12288}\ns_add_u32 s{sT0}, s{sWBm}, {12288*p}')
            a(f'buffer_load_dwordx4 v{vDW2[i-3]}, {srd(sW2)}, s{sT0} offen offset:{1024*(i-3)} lds')

def ln(raw, U, dst, rows16, mid=None, mid2=None):
    n = len(dst)
    S, Q, ONE = T[1], T[3], T[4]
    sc, bi = T[0], T[2]
    a(f'v_mov_b32 v{ONE}, 0x3f803f80')
    un = []
    for i in range(n):
        un.append(f'v_lshlrev_b32 v{U+2*i}, 16, v{raw+i}')
        un.append(f'v_and_b32 v{U+2*i+1}, 0xffff0000, v{raw+i}')
    while len(un) > 8: a(un.pop(0))
    for i in range(n):
        a(f'v_dot2_f32_bf16 v{S}, v{raw+i}, v{ONE}, {"0" if i == 0 else f"v{S}"}')
        a(f'v_dot2_f32_bf16 v{Q}, v{raw+i}, v{raw+i}, {"0" if i == 0 else f"v{Q}"}')
    def fill(k):
        for _ in range(k):
            if un: a(un.pop(0))
    fill(3)
    a(f'v_permlane32_swap_b32 v{S}, v{Q}')
    a(f'v_add_f32 v{S}, v{S}, v{Q}')
    if rows16:
        a(f'v_mov_b32 v{Q}, v{S}')
        fill(2)
        a(f'v_permlane16_swap_b32 v{S}, v{Q}')
        a(f'v_add_f32 v{S}, v{S}, v{Q}')
    a(f'v_mul_f32 v{S}, {fbits(1.0/96):#x}, v{S}')
    a(f'v_mov_b32 v{Q}, v{S}')
    fill(2)
    a(f'v_permlane32_swap_b32 v{S}, v{Q}')
    a(f'''
    v_fma_f32 v{Q}, -v{S}, v{S}, v{Q}
    v_max_f32 v{Q}, 0, v{Q}
    v_add_f32 v{Q}, {fbits(1e-5):#x}, v{Q}
    v_rsq_f32 v{Q}, v{Q}
    ''')
    fill(1)
    a(f'v_mul_f32 v{sc}, {fbits(ga):#x}, v{Q}')
    a(f'v_mul_f32 v{bi}, -v{S}, v{sc}')
    fill(1000)
    if mid: mid()
    for i in range(n):
        if opt('lnplain'):
            a(f'v_fma_f32 v{U+2*i}, v{U+2*i}, v{sc}, v{bi}\nv_fma_f32 v{U+2*i+1}, v{U+2*i+1}, v{sc}, v{bi}')
        else:
            a(f'v_pk_fma_f32 {vr(U+2*i,2)}, {vr(U+2*i,2)}, {vr(sc,2)}, {vr(bi,2)} op_sel_hi:[1,0,0]')
    if mid2: mid2()
    for i in range(n):
        a(f'v_cvt_pk_bf16_f32 v{dst[i]}, v{U+2*i}, v{U+2*i+1}')

def pk_t(Y, K, n):
    return [f'v_pk_fma_f32 {vr(K+2*i,2)}, {vr(Y+2*i,2)}, {vr(Y+2*i,2)}, s[{sCC}:{sCC+1}] neg_lo:[1,0,0] neg_hi:[1,0,0]' for i in range(n//2)] + pk_m(Y, K, n)
def pk_m(Y, K, n): return [f'v_pk_mul_f32 {vr(K+2*i,2)}, {vr(Y+2*i,2)}, {vr(K+2*i,2)}' for i in range(n//2)]
def pk_d(K, n): return [f'v_pk_fma_f32 {vr(K+2*i,2)}, {vr(K+2*i,2)}, s[{sCA}:{sCA+1}], s[{sCA}:{sCA+1}]' for i in range(n//2)]
def emit(l):
    for t in l: a(t)

def mlp32(hooks, prio):
    N = 12
    moved = {'w1': False, 'w2': False}
    def move(kind, c):
        if c >= 6 and not moved[kind]:
            for r in (vAW1 if kind == 'w1' else [vAW2]): a(f'v_add_u32 v{r}, {3*PS}, v{r}')
            moved[kind] = True
    def w1reads(c):
        for ks in range(6):
            off = ((c >> 1) % 3) * PS + (ks >> 1) * 4096 + (ks & 1) * 1024
            r = vAW1[(c & 1) + 2 * (ks & 1)]
            a(f'ds_read_b64_tr_b16 {vr(vF1+4*ks,2)}, v{r} offset:{off}')
            a(f'ds_read_b64_tr_b16 {vr(vF1+4*ks+2,2)}, v{r} offset:{off+512}')
    def w2reads(c):
        for i in range(6):
            ks2, mt = i // 3, i % 3
            off = ((c >> 1) % 3) * PS + (c & 1) * 6144 + ks2 * 3072 + mt * 64
            a(f'ds_read_b64_tr_b16 {vr(vF2+4*i,2)}, v{vAW2} offset:{off}')
            a(f'ds_read_b64_tr_b16 {vr(vF2+4*i+2,2)}, v{vAW2} offset:{off+1536}')
    def g1(c, ks):
        Y = vY[c & 1]
        a(f'v_mfma_f32_32x32x16_bf16 {vr(Y,16)}, {vr(vF1+4*ks,4)}, {vr(vL+4*ks,4)}, {"0" if ks == 0 else vr(Y,16)}')
    def g2(i):
        ks2, mt = i // 3, i % 3
        a(f'v_mfma_f32_32x32x16_bf16 {vr(vO+16*mt,16)}, {vr(vF2+4*i,4)}, {vr(vG+4*ks2,4)}, {vr(vO+16*mt,16)}')
    def resm(ks):
        j, mt = ks // 3, ks % 3
        a(f'v_mfma_f32_32x32x16_bf16 {vr(vO+16*mt,16)}, {vr(vID+4*j,4)}, {vr(vRES+4*(2*mt+j),4)}, {"0" if j == 0 else vr(vO+16*mt,16)}')
    def hook(k):
        for f in hooks.get(k, []): f()
    def pr(c, v):
        if prio(c) is not None: a(f's_setprio {prio(c)[v]}')
    hook('pre')
    a('s_waitcnt lgkmcnt(0)')
    for ks in range(6): g1(0, ks)
    w1reads(1)
    hook('start3')
    for c in range(N + 1):
        Y, K = vY[c & 1], vK[c & 1]
        Yp, Kp = vY[(c - 1) & 1], vK[(c - 1) & 1]
        pr(c, 1)
        if c >= 1: emit(pk_m(Yp, Kp, 16))
        if c < N: emit(pk_t(Y, K, 16))
        cv = [f'v_cvt_pk_bf16_f32 v{vG+i}, v{Kp+2*i}, v{Kp+2*i+1}' for i in range(8)] if c >= 1 else []
        if c == N:
            emit(cv)
            a('s_waitcnt lgkmcnt(0)')
            for i in (0, 3, 1, 4, 2, 5): g2(i)
            break
        ex = [f'v_exp_f32 v{K+i}, v{K+i}' for i in range(16)]
        rc = [f'v_rcp_f32 v{K+i}, v{K+i}' for i in range(16)]
        last = c + 1 >= N
        if c + 2 < N: move('w1', c + 2)
        move('w2', c)
        if c == 0:
            gaps = [ex[0:3], ex[3:6], ex[6:9], ex[9:12], ex[12:15], ex[15:16]]
            a('s_waitcnt lgkmcnt(0)')
            for j in range(6):
                g1(1, j); emit(gaps[j])
        elif not last:
            gaps = [cv[0:4] + ex[0:1], cv[4:8] + ex[1:2], ex[2:5], ex[5:8], ex[8:11], ex[11:14], ex[14:16]]
            for j in range(7):
                if j < 6: g1(c + 1, j)
                else: g2(0)
                if j == 5: a('s_waitcnt lgkmcnt(0)')
                emit(gaps[j])
        else:
            emit(cv); emit(ex[0:4])
            a('s_waitcnt lgkmcnt(0)')
            gaps = [ex[4:8], ex[8:12], ex[12:16]]
            for j in range(3):
                g2(j); emit(gaps[j])
        hook(('preT1', c))
        pr(c, 0)
        if c + 2 < N: w1reads(c + 2)
        hook(('T1', c))
        pr(c, 1)
        emit(pk_d(K, 16))
        if c == 0:
            gp = [rc[0:3], rc[3:6], rc[6:9], rc[9:12], rc[12:14], rc[14:16]]
            for j in range(6):
                resm(j)
                if j == 5: a('s_waitcnt lgkmcnt(0)')
                emit(gp[j])
        elif not last:
            gp = [rc[0:3], rc[3:6], rc[6:9], rc[9:12], rc[12:16]]
            for j in range(5):
                g2(j + 1)
                if j == 4: a('s_waitcnt lgkmcnt(0)')
                emit(gp[j])
        else:
            gp = [rc[0:3], rc[3:6], rc[6:16]]
            for j in range(3):
                g2(j + 3)
                if j == 2: w2reads(c)
                emit(gp[j])
        hook(('preT2', c))
        pr(c, 0)
        if not last: w2reads(c)
        hook(('T2', c))
    return w1reads

def f_w1reads0():
    for ks in range(6):
        off = (ks >> 1) * 4096 + (ks & 1) * 1024
        r = vAW1[2 * (ks & 1)]
        a(f'ds_read_b64_tr_b16 {vr(vF1+4*ks,2)}, v{r} offset:{off}')
        a(f'ds_read_b64_tr_b16 {vr(vF1+4*ks+2,2)}, v{r} offset:{off+512}')

def l_w1reads(s):
    for i in range(6):
        mt2, ks3 = i // 3, i % 3
        off = ((s >> 2) & 1) * 2 * PS + ks3 * 4096
        r = vLW1 + mt2 + 2 * (s & 3)
        a(f'ds_read_b64_tr_b16 {vr(vF1+4*i,2)}, v{r} offset:{off}')
        a(f'ds_read_b64_tr_b16 {vr(vF1+4*i+2,2)}, v{r} offset:{off+512}')

def mlp16(doubles, hooks, prio):
    N = 12
    def wid(s): return 0 if (s < 0 or s >= N) else (2 if s in doubles else 1)
    def move(base):
        for r in range(8): a(f'v_add_u32 v{base+r}, {4*PS}, v{base+r}')
    def w2reads(s):
        for i in range(6):
            off = ((s >> 2) & 1) * 2 * PS + 64 * (i >> 1)
            r = vLW2 + (i & 1) + 2 * (s & 3)
            a(f'ds_read_b64_tr_b16 {vr(vF2+4*i,2)}, v{r} offset:{off}')
            a(f'ds_read_b64_tr_b16 {vr(vF2+4*i+2,2)}, v{r} offset:{off+3072}')
    def m1(s):
        l = []
        for t in range(wid(s)):
            for j in range(6):
                mt2, ks3 = j & 1, j >> 1
                D = vY[s & 1] + 8 * t + 4 * mt2
                l.append(f'v_mfma_f32_16x16x32_bf16 {vr(D,4)}, {vr(vF1+4*(mt2*3+ks3),4)}, {vr(vL+12*t+4*ks3,4)}, {"0" if ks3 == 0 else vr(D,4)}')
        return l
    def m2(s):
        return [f'v_mfma_f32_16x16x32_bf16 {vr(vO+24*t+4*i,4)}, {vr(vF2+4*i,4)}, {vr(vG+4*t,4)}, {vr(vO+24*t+4*i,4)}' for t in range(wid(s)) for i in range(6)]
    def weave(ms, fl):
        fl = list(fl)
        if not ms:
            emit(fl); a('s_waitcnt lgkmcnt(0)'); return
        for j, m in enumerate(ms):
            a(m)
            if j == len(ms) - 1: a('s_waitcnt lgkmcnt(0)')
            k = -(-len(fl) // (len(ms) - j))
            emit(fl[:k]); fl = fl[k:]
    def hook(k):
        for f in hooks.get(k, []): f()
    def pr(c, v):
        if prio(c) is not None: a(f's_setprio {prio(c)[v]}')
    hook('pre')
    a('s_waitcnt lgkmcnt(0)')
    emit(m1(0))
    l_w1reads(1)
    hook('start3')
    for s in range(N + 1):
        Y, K = vY[s & 1], vK[s & 1]
        Yp, Kp = vY[(s - 1) & 1], vK[(s - 1) & 1]
        n, np_ = 8 * wid(s), 8 * wid(s - 1)
        pr(s, 1)
        emit(pk_m(Yp, Kp, np_))
        emit(pk_t(Y, K, n))
        cv = [f'v_cvt_pk_bf16_f32 v{vG+i}, v{Kp+2*i}, v{Kp+2*i+1}' for i in range(np_ // 2)]
        if s == N:
            emit(cv)
            a('s_waitcnt lgkmcnt(0)')
            emit(m2(N - 1))
            break
        ex = [f'v_exp_f32 v{K+i}, v{K+i}' for i in range(n)]
        rc = [f'v_rcp_f32 v{K+i}, v{K+i}' for i in range(n)]
        if s + 2 == 8: move(vLW1)
        if s == 8: move(vLW2)
        if s == 0: a('s_waitcnt lgkmcnt(0)')
        weave(m1(s + 1), cv + ex)
        hook(('preT1', s))
        pr(s, 0)
        if s + 2 < N: l_w1reads(s + 2)
        hook(('T1', s))
        pr(s, 1)
        emit(pk_d(K, n))
        weave(m2(s - 1), rc)
        hook(('preT2', s))
        pr(s, 0)
        w2reads(s)
        hook(('T2', s))

def finish():
    if opt('amp'):
        n = nlab[0]; nlab[0] += 1
        a(f's_waitcnt vmcnt(0) lgkmcnt(0)\ns_sub_u32 s92, s88, s94\ns_lshl_b32 s92, s92, 2\ns_cmp_eq_u32 s88, 0\ns_cselect_b32 s92, 0, s92')
        a(f's_cmp_eq_u32 s{sH13}, {opt("amprows", 13)}\ns_cselect_b32 s92, s92, 0\ns_add_u32 s92, s92, 1400\ns_add_u32 s92, s92, s94')
        a.label(f'L_amp{n}')
        a(f's_memrealtime s[90:91]\ns_waitcnt lgkmcnt(0)\ns_sub_u32 s93, s92, s90\ns_cmp_gt_i32 s93, 0\ns_cbranch_scc1 L_amp{n}')
    if STAMP:
        stamp(14)
        a('s_waitcnt vmcnt(0)')
        stamp(15)
        a('s_waitcnt lgkmcnt(0)')
        if opt('dbg'):
            n = nlab[0]; nlab[0] += 1
            a(f's_cmp_lg_u32 s2, {opt("dbg")}\ns_cbranch_scc1 L_nd{n}\ns_cmp_lg_u32 s{sWI}, 0\ns_cbranch_scc1 L_nd{n}')
            a(f's_lshl_b32 s{sT0}, s{sWV}, 3\nv_mov_b32 v{T[1]}, s{sT0}\ns_mov_b64 exec, 1')
            for k, i in enumerate((1, 2, 3, 4, 8, 10, 13, 15)):
                a(f's_sub_u32 s{sT0}, s{sST+2*i}, s{sST}\nv_mov_b32 v{T[0]}, s{sT0}')
                a(f'buffer_store_dword v{T[0]}, v{T[1]}, {srd(sWS)}, 0 offen offset:{4*k}')
            a.label(f'L_nd{n}')
            a('s_endpgm')
            return
        a(f'''
        s_lshl_b32 s{sT0}, s2, 3
        s_add_u32 s{sT0}, s{sT0}, s{sWV}
        s_lshl_b32 s{sT0}, s{sT0}, 6
        v_mov_b32 v{T[1]}, s{sT0}
        s_mov_b64 exec, 1
        ''')
        for i in range(NST):
            a(f'v_mov_b32 v{T[0]}, s{sST+2*i}')
            a(f'buffer_store_dword v{T[0]}, v{T[1]}, {srd(sWS)}, 0 offen offset:{4*i}')
    a('s_endpgm')

def tab_reads(gi, em):
    A = vAFR + 20 * gi; o = 64 * gi
    for d in range(3):
        em(f'ds_read_b64_tr_b16 {vr(A+4*d,2)}, v{vTF0} offset:{o + 2*d*TP}')
        em(f'ds_read_b64_tr_b16 {vr(A+4*d+2,2)}, v{vTF1} offset:{o + 2*d*TP}')
    for par in range(2):
        for pp in range(2):
            em(f'ds_read_b64_tr_b16 {vr(A+12+4*par+2*pp,2)}, v{vTE} offset:{o + (pp - 2*par + 2)*TP}')
RING = 6
class Conv:
    def __init__(self, k0): self.n = 0; self.slot = 0; self.k0 = k0
    def acc(self, gi, k): return vACC + 16 * gi + 4 * (k - self.k0)
    def ds(self, t): a(t); self.n += 1; return self.n
    def wait(self, seq): a(f's_waitcnt lgkmcnt({min(15, self.n - seq)})')
    def reads(self, it):
        B = it['B']; go = 64 * it['gi']; idx = it['idx']; kind = it['kind']
        if kind == 'F':
            r0, r1 = 2 * idx, min(2 * idx + 1, 16)
            return [f'ds_read_b128 {vr(B,4)}, v{vAF} offset:{r0*XROW+go}', f'ds_read_b128 {vr(B+4,4)}, v{vAF} offset:{r1*XROW+go}']
        if kind == 'E':
            return [f'ds_read_b128 {vr(B,4)}, v{vAE} offset:{2*idx*XROW+go}', f'ds_read_b128 {vr(B+4,4)}, v{vAE} offset:{(2*idx+4)*XROW+go}']
        return [f'ds_read_b128 {vr(B,4)}, v{vAE} offset:{12*XROW+go}', f'ds_read_b128 {vr(B+4,4)}, v{vAE16} offset:{16*XROW+go}']
    def cvt(self, lst):
        for gi, k in lst:
            A = self.acc(gi, k)
            a(f'v_cvt_pk_bf16_f32 v{A}, v{A}, v{A+1}\nv_cvt_pk_bf16_f32 v{A+1}, v{A+2}, v{A+3}')
    def write(self, lst):
        for gi, k in lst:
            A = self.acc(gi, k)
            if k == 6: setexec(0xffff, 0xffff)
            self.ds(f'ds_write_b64 v{vAO}, {vr(A,2)} offset:{(k-self.k0)*6144+64*gi}')
            if k == 6: a('s_mov_b64 exec, -1')
    def run(self, items, stop_at=None):
        D = RING - 1
        nxt = 0
        while nxt < len(items) and 'seq' in items[nxt]: nxt += 1
        def start(j):
            items[j]['B'] = vB + 8 * (self.slot % RING); self.slot += 1
            return self.reads(items[j])
        while nxt < min(D, len(items)):
            for t in start(nxt): items[nxt]['seq'] = self.ds(t)
            nxt += 1
        end = len(items) if stop_at is None else stop_at
        for i in range(end):
            it = items[i]
            self.wait(it['seq'])
            pend = start(nxt) if nxt < len(items) else []
            A = vAFR + 20 * it['gi']
            had = bool(pend)
            for k in it['outs']:
                fr = (it['idx'] - k) if it['kind'] == 'F' else 3 + (k - it['idx'])
                a(f'v_smfmac_f32_16x16x64_bf16 {vr(self.acc(it["gi"], k),4)}, {vr(A+4*fr,4)}, {vr(it["B"],8)}, v{vIDX}')
                if pend: items[nxt]['seq'] = self.ds(pend.pop(0))
            for t in pend: items[nxt]['seq'] = self.ds(t)
            if had: nxt += 1
            if it.get('pub'):
                self.cvt(it['pub'])
                if not it.get('nowrite'): self.write(it['pub'])
            if it.get('post'): it['post']()
        return items[end:]
def stage(frags): return [dict(gi=gi, kind=k, idx=i, outs=list(o)) for gi in range(3) for (k, i, o) in frags]
def add_pub(items, base, nfr, pairs, nowrite=False):
    for gi in range(3):
        j = min(base + nfr * (gi + 1), len(items) - 1)
        items[j].setdefault('pub', []).extend((gi, k) for k in pairs)
        items[j]['nowrite'] = nowrite

def late_setup():
    mksrd(sOUT, 14, XBYTES)
    if opt('safe'): a('s_mov_b32 s98, 20000')
    a(f'''
    s_mov_b32 s{sCA}, {fbits(ga):#x}
    s_mov_b32 s{sCA+1}, {fbits(ga):#x}
    s_mov_b32 s{sCC}, {fbits(gc):#x}
    s_mov_b32 s{sCC+1}, {fbits(gc):#x}
    s_add_u32 s{sT0}, s{sWI}, s{sY0}
    s_mul_i32 s{sT0}, s{sT0}, 224
    s_add_u32 s{sT0}, s{sT0}, s{sX0}
    s_mul_i32 s{sO0}, s{sT0}, 192
    ''')
    if STAMP:
        a(f's_mov_b32 s{sWS+2}, {256 if opt("dbg") else 0x10000000}\ns_mov_b32 s{sWS+3}, 0x00020000')
        for i in (7,): a(f's_mov_b32 s{sST+2*i}, 0')
    for j in range(3):
        a(f'''
        v_add_u32 v{T[0]}, {64*j}, v{vLN}
        v_mul_u32_u24 v{T[2]}, 171, v{T[0]}
        v_bfe_u32 v{T[2]}, v{T[2]}, 12, 2
        v_xor_b32 v{T[0]}, v{T[0]}, v{T[2]}
        v_lshl_add_u32 v{vSR[j]}, v{T[0]}, 4, s{sIMG}
        ''')

def conv_setup1():
    a(f'''
v_and_b32 v{T[0]}, 3, v{vLN}
v_mul_u32_u24 v{vIDX}, 0x5555, v{T[0]}
s_lshl_b32 s{sT2}, s{sWI}, 4
s_add_u32 s{sT2}, s{sT2}, {TB}
v_bfe_u32 v{T[1]}, v{vLN}, 1, 1
v_lshl_add_u32 v{T[4]}, v{T[1]}, 3, s{sT2}
v_and_b32 v{T[0]}, 1, v{vLN}
v_lshrrev_b32 v{T[1]}, 5, v{vLN}
v_mul_u32_u24 v{vTE}, {TP}, v{T[1]}
v_sub_u32 v{T[1]}, v{T[1]}, v{T[0]}
v_bfe_u32 v{T[2]}, v{vLN}, 2, 1
v_mul_u32_u24 v{T[2]}, 7, v{T[2]}
v_sub_u32 v{T[1]}, v{T[1]}, v{T[2]}
v_add_u32 v{T[1]}, 8, v{T[1]}
v_mul_u32_u24 v{T[1]}, {TP}, v{T[1]}
v_bfe_u32 v{T[2]}, v{vLN}, 4, 1
v_mul_u32_u24 v{T[2]}, 192, v{T[2]}
v_add3_u32 v{T[3]}, v{T[1]}, v{T[2]}, v{T[4]}
v_lshrrev_b32 v{T[1]}, 4, v{vLN}
v_lshlrev_b32 v{T[2]}, 1, v{T[1]}
v_sub_u32 v{T[2]}, v{T[2]}, v{T[0]}
v_add_u32 v{T[2]}, 6, v{T[2]}
v_mul_u32_u24 v{T[2]}, {TP}, v{T[2]}
v_add_u32 v{vTF0}, s{sT2}, v{vTE}
v_add_u32 v{vTF1}, {TP}, v{vTF0}
v_mov_b32 v{vTE}, s{sT2}
s_mov_b32 exec_lo, 0xcc33cc33
s_mov_b32 exec_hi, 0xcc33cc33
v_mov_b32 v{vTF0}, v{T[3]}
v_add_u32 v{vTF1}, 384, v{T[3]}
s_mov_b32 exec_lo, 0x0c030c03
s_mov_b32 exec_hi, 0x0c030c03
v_add_u32 v{T[2]}, 768, v{T[2]}
v_add_u32 v{vTE}, v{T[2]}, v{T[4]}
s_mov_b64 exec, -1
v_and_b32 v{T[0]}, 15, v{vLN}
v_bfe_u32 v{T[2]}, v{vLN}, 4, 1
v_lshrrev_b32 v{T[3]}, 5, v{vLN}
v_lshl_add_u32 v{T[2]}, v{T[2]}, 1, v{T[3]}
v_add_u32 v{T[2]}, v{T[0]}, v{T[2]}
v_bfe_u32 v{T[3]}, v{T[2]}, 2, 2
v_xor_b32 v{T[3]}, s{sWI}, v{T[3]}
v_mul_u32_u24 v{T[2]}, 192, v{T[2]}
v_lshl_add_u32 v{vAF}, v{T[3]}, 4, v{T[2]}
v_add_u32 v{vAF}, {XB}, v{vAF}
''')
def conv_setup2(em=None):
    for i in range(24): a(f'v_mov_b64 {vr(vACC+2*i,2)}, 0')
    a(f'''
v_and_b32 v{T[0]}, 3, v{vLN}
v_lshlrev_b32 v{vFA}, 2, v{T[0]}
v_add_u32 v{vFA}, {FL}, v{vFA}
s_lshl_b32 s{sT0}, s{sWV}, 2
s_add_u32 s{sT0}, s{sT0}, {FL}
v_mov_b32 v{vFW}, s{sT0}
v_mov_b32 v{vFP}, 0
ds_write_b32 v{vFW}, v{vFP}
v_and_b32 v{T[0]}, 15, v{vLN}
v_lshrrev_b32 v{T[1]}, 4, v{vLN}
v_add_u32 v{T[2]}, 4, v{T[0]}
v_bfe_u32 v{T[3]}, v{T[2]}, 2, 2
v_xor_b32 v{T[3]}, s{sWI}, v{T[3]}
v_mul_u32_u24 v{T[2]}, 192, v{T[2]}
v_lshl_add_u32 v{vAE}, v{T[3]}, 4, v{T[2]}
v_add_u32 v{vAE16}, {XB}, v{vAE}
v_mul_u32_u24 v{T[2]}, {XROW}, v{T[1]}
v_add_u32 v{vAE}, v{vAE16}, v{T[2]}
v_bfe_u32 v{T[3]}, v{T[0]}, 2, 2
v_xor_b32 v{T[4]}, s{sWI}, v{T[3]}
v_mul_u32_u24 v{T[2]}, 192, v{T[0]}
v_lshl_add_u32 v{T[2]}, v{T[4]}, 4, v{T[2]}
v_bfe_u32 v{T[1]}, v{vLN}, 4, 1
v_mul_u32_u24 v{T[1]}, 3072, v{T[1]}
v_lshrrev_b32 v{T[3]}, 5, v{vLN}
v_bfe_u32 v{T[4]}, v{vLN}, 1, 1
v_xor_b32 v{T[3]}, v{T[3]}, v{T[4]}
v_lshl_add_u32 v{T[1]}, v{T[3]}, 3, v{T[1]}
v_add3_u32 v{vAO}, v{T[2]}, v{T[1]}, s{sOB}
''')

def dma_setup():
    mksrd(sW1, 10, 73728); mksrd(sW2, 12, 73728)
    a(f'''
    v_lshrrev_b32 v{T[0]}, 3, v{vLN}
    v_mul_u32_u24 v{T[0]}, 768, v{T[0]}
    v_bfe_u32 v{T[1]}, v{vLN}, 4, 1
    v_lshlrev_b32 v{T[1]}, 2, v{T[1]}
    v_and_b32 v{T[2]}, 7, v{vLN}
    v_xor_b32 v{T[1]}, v{T[1]}, v{T[2]}
    v_lshl_add_u32 v{T[0]}, v{T[1]}, 4, v{T[0]}
    s_and_b32 s{sT1}, s{sWI}, 1
    s_lshl_b32 s{sT0}, s{sT1}, 5
    v_xor_b32 v{vDW1[0]}, s{sT0}, v{T[0]}
    v_xor_b32 v{vDW1[1]}, 32, v{vDW1[0]}
    v_mov_b32 v{vDW2[0]}, v{vL16}
    v_mov_b32 v{vDW2[1]}, v{vL16}
    v_mov_b32 v{vDW2[2]}, v{vL16}
    s_mov_b32 exec_lo, 0xffff0000
    v_xor_b32 v{vDW2[2]}, 32, v{vL16}
    s_mov_b32 exec_lo, 0
    s_mov_b32 exec_hi, 0xffff0000
    v_xor_b32 v{vDW2[0]}, 32, v{vL16}
    s_mov_b32 exec_lo, -1
    s_mov_b32 exec_hi, 0
    v_xor_b32 v{vDW2[1]}, 32, v{vL16}
    s_mov_b64 exec, -1
    s_mul_i32 s{sWA}, s{sWI}, {3*6144}
    s_mul_i32 s{sWBm}, s{sWI}, 3072
    ''')

TM = opt('touch', 'lx12o')
TOUCH = chr(10).join(t for k, t in (('l', 's_load_dword s76, s[6:7], 0'), ('x', f's_load_dword s77, s[4:5], s{sT0}'), ('1', 's_load_dword s78, s[10:11], 0'),
        ('2', 's_load_dword s79, s[12:13], 0'), ('o', f's_load_dword s80, s[14:15], s{sT0}')) if k in TM)
isF = 's_cmp_lt_u32' if FOLD else 's_cmp_ge_u32'
a(f'''
s_load_dwordx4 s[4:7], s[0:1], 0
s_load_dwordx4 s[8:11], s[0:1], 16
s_load_dwordx4 s[12:15], s[0:1], 32
s_getpc_b64 s[100:101]
L_pc:
''')
if STAMP: a(f's_load_dwordx2 s[{sWS}:{sWS+1}], s[0:1], {48 if opt("dbg") else 56}')
stamp(0)
if opt('hold') or opt('amp'): a('s_memrealtime s[94:95]\ns_mov_b32 s88, 0')
a(f'''
s_cmp_ge_u32 s2, 256
s_cbranch_scc1 L_end
v_lshrrev_b32 v{T[0]}, 6, v0
v_and_b32 v{vLN}, 63, v0
''')
PFM = opt('pf', 'h')
if PFM == 'first':
    a(f'''
    s_bfe_u32 s{sT3}, s2, 0x20003
    s_mul_i32 s{sT3}, s{sT3}, {80*128}
    v_mul_u32_u24 v{T[1]}, 10, v{T[0]}
    v_add_u32 v{T[1]}, v{T[1]}, v{vLN}
    v_lshl_add_u32 v{T[1]}, v{T[1]}, 7, s{sT3}
    v_min_u32 v{T[1]}, L_end-L_pc, v{T[1]}
    s_mov_b64 exec, 0x3ff
    global_load_dword v{vPF}, v{T[1]}, s[100:101]
    s_mov_b64 exec, -1
    ''')
a(f'''
s_lshr_b32 s{sT1}, s2, 3
v_readfirstlane_b32 s{sWV}, v{T[0]}
s_and_b32 s{sT2}, s2, 1
s_add_u32 s{sT2}, s{sT2}, s{sT1}
s_cmp_ge_u32 s{sT2}, 32
s_cbranch_scc1 L_end
s_and_b32 s{sT0}, s2, 3
v_mul_u32_u24 v{T[0]}, 43, v{vLN}
s_mul_i32 s{sT0}, s{sT0}, 63
s_add_u32 s{sT0}, s{sT0}, 1
v_lshrrev_b32 v{T[0]}, 9, v{T[0]}
s_lshr_b32 s{sT0}, s{sT0}, 1
s_add_u32 s{sT0}, s{sT0}, s{sT1}
v_mul_u32_u24 v{T[1]}, 12, v{T[0]}
s_mul_i32 s{sT1}, s{sT0}, 9363
s_lshr_b32 s{sT1}, s{sT1}, 16
v_sub_u32 v{T[1]}, v{vLN}, v{T[1]}
s_mul_i32 s{sT2}, s{sT1}, 7
s_sub_u32 s{sT0}, s{sT0}, s{sT2}
s_bfe_u32 s{sT2}, s2, 0x10002
s_mul_i32 s{sT2}, s{sT2}, 7
s_add_u32 s{sT0}, s{sT0}, s{sT2}
s_lshl_b32 s{sX0}, s{sT0}, 4
s_mul_i32 s{sY0}, s{sT1}, {112*7282}
s_add_u32 s{sH13}, s{sY0}, {112*7282}
s_lshr_b32 s{sY0}, s{sY0}, 16
s_lshr_b32 s{sH13}, s{sH13}, 16
s_sub_u32 s{sH13}, s{sH13}, s{sY0}
s_and_b32 s{sWI}, s{sWV}, 3
''')
if PFM == 'h':
    a(f'''
    s_cmp_eq_u32 s{sH13}, 13
    s_cbranch_scc1 L_nopf
    s_bfe_u32 s{sT3}, s2, 0x20003
    s_lshl_b32 s{sT3}, s{sT3}, 3
    s_add_u32 s{sT3}, s{sT3}, s{sWV}
    s_mul_i32 s{sT3}, s{sT3}, {10*128}
    v_lshl_add_u32 v{T[2]}, v{vLN}, 7, s{sT3}
    v_min_u32 v{T[2]}, L_end-L_pc, v{T[2]}
    s_mov_b64 exec, 0x3ff
    global_load_dword v{vPF}, v{T[2]}, s[100:101]
    s_mov_b64 exec, -1
    L_nopf:
    ''')
a(f'''
v_mov_b32 v{T[4]}, {MARK}
v_lshlrev_b32 v{vL16}, 4, v{vLN}
{isF} s{sWV}, 4
s_cbranch_scc1 L_F0
; ---- L: x rows
s_mul_i32 s{sT1}, s{sWI}, 5
v_add_u32 v{T[0]}, s{sT1}, v{T[0]}
v_bfe_u32 v{T[2]}, v{T[0]}, 2, 2
v_xor_b32 v{T[1]}, v{T[1]}, v{T[2]}
s_sub_u32 s{sT1}, s{sX0}, 2
v_add_u32 v{T[0]}, s{sT1}, v{T[0]}
v_mul_u32_u24 v{T[2]}, 192, v{T[0]}
v_cmp_gt_u32 vcc, 224, v{T[0]}
v_lshl_add_u32 v{T[2]}, v{T[1]}, 4, v{T[2]}
s_mul_i32 s{sXM}, s{sWI}, 960
s_add_u32 m0, s{sXM}, {XB}
s_movk_i32 s{sXM}, {XROW}
s_mov_b32 s99, 43008
v_cndmask_b32 v{vXO}, v{T[4]}, v{T[2]}, vcc
s_sub_u32 s{sT1}, s{sY0}, 2
s_mul_i32 s{sT1}, s{sT1}, s99
v_add_u32 v{vXO}, s{sT1}, v{vXO}
s_mov_b32 s{sX+2}, {XBYTES}
s_mov_b32 s{sX+3}, 0x00020000
s_mov_b32 exec_hi, 0x0fffffff
s_waitcnt lgkmcnt(0)
{ap('Lk')}
s_mov_b64 s[{sX}:{sX+1}], s[4:5]
''')
xl = [0]
def xrows(n):
    for _ in range(n):
        t = xl[0]; xl[0] += 1
        if t:
            a(f's_add_u32 m0, m0, s{sXM}')
            a(f'v_add_u32 v{vXO}, s99, v{vXO}')
        a(f'buffer_load_dwordx4 v{vXO}, {srd(sX)}, 0 offen{XPOL} lds')
NX0 = int(opt('nx0', 12))
xrows(NX0)
a(ap('Li'))
stamp(1)
a(f'''
s_branch L_L
L_F0:
; ---- F: conv weight tables, rows w and w+4 of both
s_setprio {opt("fprio", 2)}
s_mul_i32 s{sT3}, s{sWI}, 960
v_add_u32 v{T[2]}, s{sT3}, v{vL16}
s_mul_i32 s{sT3}, s{sWI}, 576
s_sub_u32 s{sT3}, s{sT3}, {2*576 + 192}
v_mov_b32 v{T[3]}, {MARK}
s_mov_b32 exec_lo, 0xfffff000
s_mov_b32 exec_hi, 0xffff
v_add_u32 v{T[3]}, s{sT3}, v{vL16}
v_add_u32 v{T[4]}, {4*576}, v{T[3]}
s_mov_b32 exec_lo, -1
s_mov_b32 exec_hi, 0x0fffffff
v_add_u32 v{T[1]}, {4*960}, v{T[2]}
s_mul_i32 s{sT3}, s{sWI}, {TP}
s_mov_b32 s{sDS+2}, 4800
s_mov_b32 s{sDS+3}, 0x00020000
s_mov_b32 s{sDL+2}, 1728
s_mov_b32 s{sDL+3}, 0x00020000
s_add_u32 m0, s{sT3}, {TB + 8*TP}
s_mul_i32 s{sT0}, s{sY0}, 43008
s_waitcnt lgkmcnt(0)
{TOUCH}
s_mov_b64 s[{sDS}:{sDS+1}], s[8:9]
s_mov_b64 s[{sDL}:{sDL+1}], s[6:7]
buffer_load_dwordx4 v{T[2]}, {srd(sDS)}, 0 offen lds
s_add_u32 m0, s{sT3}, {TB}
s_mul_i32 s{sIMG}, s{sWI}, 6144
buffer_load_dwordx4 v{T[3]}, {srd(sDL)}, 0 offen lds
s_add_u32 m0, s{sT3}, {TB + 12*TP}
s_mov_b32 s{sOB}, {OUTF}
buffer_load_dwordx4 v{T[1]}, {srd(sDS)}, 0 offen lds
s_add_u32 m0, s{sT3}, {TB + 4*TP}
s_nop 0
buffer_load_dwordx4 v{T[4]}, {srd(sDL)}, 0 offen lds
s_mov_b32 exec_hi, -1
''')
WPF = opt('wpf', '0') == '1'
if PFM in ('f', 'g'):
    if PFM == 'g': a(f's_cmp_eq_u32 s{sH13}, 13\ns_cselect_b32 s97, 1, 0xfffff')
    a(f'''
    s_bfe_u32 s{sT3}, s2, 0x20003
    s_lshl_b32 s{sT3}, s{sT3}, 2
    s_add_u32 s{sT3}, s{sT3}, s{sWI}
    s_mul_i32 s{sT3}, s{sT3}, {20*128}
    v_lshl_add_u32 v{T[1]}, v{vLN}, 7, s{sT3}
    v_min_u32 v{T[1]}, L_end-L_pc, v{T[1]}
    {'s_mov_b64 exec, 0xfffff' if PFM == 'f' else f's_cmp_eq_u32 s{sH13}, 13'+chr(10)+f's_cselect_b32 s{sT3}, 0, -1'+chr(10)+f'v_and_b32 v{T[1]}, s{sT3}, v{T[1]}'+chr(10)+'s_mov_b32 exec_lo, s97'+chr(10)+'s_mov_b32 exec_hi, 0'}
    global_load_dword v{vPF}, v{T[1]}, s[100:101]
    s_mov_b64 exec, -1
    ''')
if WPF:
    a(f'''
    s_and_b32 s{sT0}, s{sWI}, 1
    s_cselect_b64 s[{sT1}:{sT2}], s[12:13], s[10:11]
    s_lshr_b32 s{sT0}, s2, 3
    s_lshl_b32 s{sT0}, s{sT0}, 1
    s_lshr_b32 s{sT3}, s{sWI}, 1
    s_add_u32 s{sT0}, s{sT0}, s{sT3}
    s_mul_i32 s{sT0}, s{sT0}, {10*128}
    v_lshl_add_u32 v{T[0]}, v{vLN}, 7, s{sT0}
    v_min_u32 v{T[0]}, {73728-128}, v{T[0]}
    s_mov_b64 exec, 0x3ff
    global_load_dword v{vPF-1}, v{T[0]}, s[{sT1}:{sT2}]
    s_mov_b64 exec, -1
    ''')
a(ap('Ft'))
conv_setup1()
a(ap('Fc'))
OPF = opt('opf', '0') == '1'
if OPF:
    a(f'''
    s_mov_b64 exec, 1
    buffer_load_dword v{vPF-2}, v{vL16}, {srd(sOUT)}, s{sO0} offen
    s_mov_b64 exec, -1
    ''')
vFR = [48, 49, 50, 51]
vDW1[:] = [56, 57]; vDW2[:] = [58, 59, 60]
def f_setup1():
    a(f'''
    s_add_u32 s{sO1}, s{sO0}, {4*43008}
    v_lshrrev_b32 v{T[4]}, 5, v{vLN}
    v_bfe_u32 v{T[0]}, v{vLN}, 2, 2
    v_bfe_u32 v{T[1]}, v{vLN}, 4, 1
    v_and_b32 v{T[2]}, 3, v{vLN}
    v_lshl_add_u32 v{T[3]}, v{T[4]}, 4, v{T[0]}
    v_lshlrev_b32 v{T[3]}, 7, v{T[3]}
    v_lshl_add_u32 v{T[3]}, v{T[1]}, 5, v{T[3]}
    v_lshl_add_u32 v{T[3]}, v{T[2]}, 3, v{T[3]}
    v_bfe_u32 v{T[2]}, v{vLN}, 3, 1
    v_lshl_add_u32 v{vAW1[0]}, v{T[2]}, 6, v{T[3]}
    v_xor_b32 v{vAW1[1]}, 64, v{vAW1[0]}
    v_xor_b32 v{vAW1[2]}, 32, v{vAW1[0]}
    v_xor_b32 v{vAW1[3]}, 0x60, v{vAW1[0]}
    v_lshl_add_u32 v{T[3]}, v{T[4]}, 2, v{T[0]}
    v_mul_u32_u24 v{T[3]}, 192, v{T[3]}
    v_lshl_add_u32 v{T[3]}, v{T[1]}, 4, v{T[3]}
    v_and_b32 v{T[2]}, 1, v{vLN}
    v_xor_b32 v{T[2]}, v{T[2]}, v{T[4]}
    v_lshl_add_u32 v{T[3]}, v{T[2]}, 5, v{T[3]}
    v_bfe_u32 v{T[2]}, v{vLN}, 1, 1
    v_lshl_add_u32 v{T[3]}, v{T[2]}, 3, v{T[3]}
    v_add_u32 v{vAW2}, 12288, v{T[3]}
    s_mul_i32 s{sT2}, s{sWI}, 3072
    s_add_u32 s{sT2}, s{sT2}, {OUTF}
    s_mul_i32 s{sT1}, s{sWI}, {XROW}
    s_add_u32 s{sT1}, s{sT1}, {XB + 2*XROW + 384}
    v_lshlrev_b32 v{T[4]}, 1, v{T[4]}
    v_xor_b32 v{T[0]}, v{T[4]}, v{T[0]}
    v_and_b32 v{T[3]}, 15, v{vLN}
    v_mul_u32_u24 v{T[3]}, 192, v{T[3]}
    v_lshl_add_u32 v{T[0]}, v{T[0]}, 4, v{T[3]}
    v_lshl_add_u32 v{T[0]}, v{T[2]}, 3, v{T[0]}
    v_mul_u32_u24 v{T[2]}, {4*3072}, v{T[1]}
    v_add3_u32 v{vFR[0]}, v{T[0]}, v{T[2]}, s{sT2}
    v_xor_b32 v{vFR[1]}, 8, v{vFR[0]}
    v_xor_b32 v{vFR[2]}, 16, v{vFR[0]}
    v_xor_b32 v{vFR[3]}, 24, v{vFR[0]}
    v_add_u32 v{T[0]}, 2, v{vLN}
    v_bfe_u32 v{T[0]}, v{T[0]}, 2, 2
    v_xor_b32 v{T[0]}, v{T[4]}, v{T[0]}
    v_lshl_add_u32 v{T[0]}, v{T[0]}, 4, v{T[3]}
    v_mul_u32_u24 v{T[2]}, {4*XROW}, v{T[1]}
    v_add3_u32 v{vAR[0]}, v{T[0]}, v{T[2]}, s{sT1}
    v_xor_b32 v{vAR[1]}, 16, v{vAR[0]}
    v_bfe_u32 v{T[0]}, v{vLN}, 1, 2
    v_xor_b32 v{T[0]}, v{T[4]}, v{T[0]}
    v_lshl_add_u32 v{T[0]}, v{T[0]}, 4, v{T[3]}
    v_mul_u32_u24 v{T[2]}, 3072, v{T[1]}
    v_add3_u32 v{vSW[0]}, v{T[0]}, v{T[2]}, s{sIMG}
    v_xor_b32 v{vSW[1]}, 16, v{vSW[0]}
    ''')
def f_setup2():
    a(f'''
    v_and_b32 v{T[1]}, 1, v{vLN}
    v_lshlrev_b32 v{T[1]}, 4, v{T[1]}
    v_mov_b32 v{T[2]}, 0x3f80
    v_lshlrev_b32 v{T[1]}, v{T[1]}, v{T[2]}
    ''')
    for i in range(4): a(f'v_mov_b64 {vr(vID+2*i,2)}, 0')
    for i in range(8):
        pos = 16 * (i >> 2) + 8 * ((i >> 1) & 1) + 2 * (i & 1)
        setexec(3 << pos, 3 << (pos + 4))
        a(f'v_mov_b32 v{vID+i}, v{T[1]}')
    a('s_mov_b64 exec, -1')
FS = opt('fs', '00001')
fsl = [conv_setup2, late_setup, f_setup2, f_setup1, dma_setup]
def fsetup(k):
    for f, c in zip(fsl, FS):
        if int(c) == k: f()
fsetup(0)
a(ap('Fs'))
stamp(1)
a(f's_waitcnt vmcnt({(1 if WPF else 0) + (1 if PFM in "fg" else 0) + (1 if OPF else 0)}) lgkmcnt(0)')
a(ap('Fl'))
pstamp(9)
bar(2)
cv = Conv(0)
for gi in range(3): tab_reads(gi, cv.ds)
S0 = stage([('F',0,[0]), ('F',1,[0,1])])
cv.run(S0, 0)
def res_half(s):
    m = 0xffff0000 if s else 0xffff
    setexec(m, m)
    for ks in range(6):
        cv.ds(f'ds_read_b128 {vr(vRES+4*ks,4)}, v{vAR[ks&1]} offset:{64*(ks>>1)}')
    a('s_mov_b64 exec, -1')
def run_stage(left, frags, pairs, keep=0, mid=None):
    its = left + stage(frags)
    if pairs: add_pub(its, len(left), len(frags), pairs)
    if mid: its[mid[0]]['post'] = mid[1]
    return cv.run(its, len(its) - keep)
left = cv.run(S0, len(S0) - int(opt('keep0', 0)))
fsetup(1)
pstamp(10)
bar(3)
left = run_stage(left, [('F',2,[0,1,2]), ('F',3,[1,2,3]), ('E',0,[0,1])], [0, 1])
fsetup(2)
pstamp(11)
bar(4)
a(f's_setprio {opt("fprio2", 3)}')
left = run_stage(left, [('F',4,[2,3]), ('F',5,[3]), ('E',2,[2,3])], [2, 3])
signal(1)
a('s_waitcnt vmcnt(0)')
wdma(0, [0, 1, 2])
stamp(5)
poll(GF, 1)
RA = 168
for ks in range(6):
    a(f'ds_read_b64 {vr(RA+4*ks,2)}, v{vFR[2*(ks&1)]} offset:{64*(ks>>1)}')
    a(f'ds_read_b64 {vr(RA+4*ks+2,2)}, v{vFR[2*(ks&1)+1]} offset:{64*(ks>>1)}')
a(f's_setprio {opt("fprio3", 1)}')
wdma(1, [0, 1, 2])
a('s_waitcnt lgkmcnt(0)')
stamp(6)
def f_mid():
    for ks in range(6):
        a(f'ds_read_b128 {vr(vRES+4*ks,4)}, v{vAR[ks&1]} offset:{64*(ks>>1)}')
    landed(0, 2)
    wdma(0, [3, 4, 5]); wdma(1, [3, 4, 5])
    peek(GF)
def f_mid2():
    a('s_waitcnt lgkmcnt(0)')
    check(GF, 2)
    f_w1reads0()
ln(RA, 72, [vL + i for i in range(24)], False, f_mid, f_mid2)
stamp(8)
XH = {
  'start3': [lambda: landed(0, 3)],
  ('T1', 0): [lambda: peek(GF)],
  ('preT2', 0): [lambda: check(GF, 3)],
  ('T1', 1): [lambda: stamp(9)],
  ('T2', 1): [lambda: peek(GL)],
  ('preT1', 2): [lambda: check(GL, 6)],
  ('preT1', 4): [lambda: signal(4)],
  ('T1', 4): [lambda: peek(GL)],
  ('preT2', 4): [lambda: check(GL, 7)],
  ('T2', 5): [lambda: peek(GL)],
  ('preT1', 6): [lambda: check(GL, 8), lambda: stamp(10)],
  ('preT1', 8): [lambda: stamp(11)],
  ('T2', 8): [lambda: peek(GF)],
  ('preT1', 9): [lambda: check(GF, 4)],
  ('preT1', 10): [lambda: stamp(12)],
}
FP = opt('fp', 'n')
def fprio(c):
    if FP == 'n': return (0, 0) if c == 0 else None
    if FP == 's': return (1, 1) if c == 0 else None
    return (0, int(FP))
mlp32(XH, fprio)
stamp(13)
P = vY[0]; Q = vK[0]
for mt in range(3):
    for i in range(8):
        a(f'v_cvt_pk_bf16_f32 v{P+8*mt+i}, v{vO+16*mt+2*i}, v{vO+16*mt+2*i+1}')
    a(f'ds_write_b128 v{vSW[0]}, {vr(P+8*mt,4)} offset:{64*mt}')
    a(f'ds_write_b128 v{vSW[1]}, {vr(P+8*mt+4,4)} offset:{64*mt}')
for s in range(2):
    for j in range(3):
        a(f'ds_read_b128 {vr(Q+4*(3*s+j),4)}, v{vSR[j]} offset:{3072*s}')
for s in range(2):
    for j in range(3):
        a(f's_waitcnt lgkmcnt({5-(3*s+j)})')
        a(f'buffer_store_dwordx4 {vr(Q+4*(3*s+j),4)}, v{vL16}, {srd(sOUT)}, s{sO1 if s else sO0} offen offset:{1024*j}{STPOL}')
finish()
emit_slow()

a.label('L_L')
cv = Conv(4)
vDW1[:] = [220, 221]; vDW2[:] = [222, 223, 224]
vA0, vA2 = 48, 50
RR = 60
def l_setup():
    a(f'''
    s_add_u32 s{sO0}, s{sO0}, {8*43008}
    s_and_b32 s{sT1}, s{sWI}, 1
    v_lshrrev_b32 v{T[4]}, 4, v{vLN}
    v_bfe_u32 v{T[0]}, v{vLN}, 2, 2
    v_and_b32 v{T[2]}, 3, v{vLN}
    v_bfe_u32 v{T[1]}, v{vLN}, 4, 1
    v_lshlrev_b32 v{T[2]}, 3, v{T[2]}
    v_lshl_add_u32 v{T[2]}, v{T[1]}, 5, v{T[2]}
    v_lshl_add_u32 v{T[3]}, v{T[4]}, 3, v{T[0]}
    v_lshl_add_u32 v{T[3]}, v{T[3]}, 7, v{T[2]}
    v_bfe_u32 v{T[1]}, v{vLN}, 3, 1
    v_xor_b32 v{T[1]}, s{sT1}, v{T[1]}
    v_lshl_add_u32 v{T[3]}, v{T[1]}, 6, v{T[3]}
    s_lshr_b32 s{sT2}, s{sWI}, 1
    s_mul_i32 s{sT2}, s{sT2}, {PS}
    s_sub_u32 s{sT3}, {PS}, s{sT2}
    v_add_u32 v{vLW1}, s{sT2}, v{T[3]}
    v_add_u32 v{vLW1+4}, s{sT3}, v{T[3]}
    v_xor_b32 v{vLW1+1}, 32, v{vLW1}
    v_xor_b32 v{vLW1+2}, 64, v{vLW1}
    v_xor_b32 v{vLW1+3}, 0x60, v{vLW1}
    v_xor_b32 v{vLW1+5}, 32, v{vLW1+4}
    v_xor_b32 v{vLW1+6}, 64, v{vLW1+4}
    v_xor_b32 v{vLW1+7}, 0x60, v{vLW1+4}
    v_lshl_add_u32 v{T[3]}, v{T[4]}, 2, v{T[0]}
    v_mul_u32_u24 v{T[3]}, 192, v{T[3]}
    v_add_u32 v{T[3]}, v{T[3]}, v{T[2]}
    s_mul_i32 s{sT1}, s{sT1}, 6144
    s_add_u32 s{sT2}, s{sT2}, 12288
    s_add_u32 s{sT3}, s{sT3}, 12288
    s_add_u32 s{sT0}, s{sT2}, s{sT1}
    v_add_u32 v{vLW2}, s{sT0}, v{T[3]}
    s_add_u32 s{sT0}, s{sT3}, s{sT1}
    v_add_u32 v{vLW2+4}, s{sT0}, v{T[3]}
    s_sub_u32 s{sT1}, 6144, s{sT1}
    s_add_u32 s{sT0}, s{sT2}, s{sT1}
    v_add_u32 v{vLW2+2}, s{sT0}, v{T[3]}
    s_add_u32 s{sT0}, s{sT3}, s{sT1}
    v_add_u32 v{vLW2+6}, s{sT0}, v{T[3]}
    v_xor_b32 v{vLW2+1}, 32, v{vLW2}
    v_xor_b32 v{vLW2+3}, 32, v{vLW2+2}
    v_xor_b32 v{vLW2+5}, 32, v{vLW2+4}
    v_xor_b32 v{vLW2+7}, 32, v{vLW2+6}
    v_xor_b32 v{T[0]}, v{T[4]}, v{T[0]}
    v_and_b32 v{T[3]}, 15, v{vLN}
    v_mul_u32_u24 v{T[3]}, 192, v{T[3]}
    v_lshl_add_u32 v{T[0]}, v{T[0]}, 4, v{T[3]}
    v_add_u32 v{vARL}, {L12}, v{T[0]}
    v_bfe_u32 v{T[1]}, v{vLN}, 1, 1
    v_lshl_add_u32 v{T[0]}, v{T[1]}, 3, v{T[0]}
    v_add_u32 v{vA2}, {L12}, v{T[0]}
    v_xor_b32 v{vA2+1}, 8, v{vA2}
    v_add_u32 v{vA0}, s{sIMG}, v{T[0]}
    v_xor_b32 v{vA0+1}, 8, v{vA0}
    s_mul_i32 s{sT0}, s{sWI}, {XROW}
    v_bfe_u32 v{T[1]}, v{vLN}, 4, 1
    v_lshl_add_u32 v{T[3]}, v{T[1]}, 3, v{T[3]}
    v_lshrrev_b32 v{T[4]}, 5, v{vLN}
    v_bfe_u32 v{T[0]}, v{vLN}, 1, 2
    v_xor_b32 v{T[0]}, v{T[4]}, v{T[0]}
    v_lshl_add_u32 v{T[0]}, v{T[0]}, 4, v{T[3]}
    v_add_u32 v{vSW[0]}, s{sIMG}, v{T[0]}
    v_xor_b32 v{vSW[1]}, 32, v{vSW[0]}
    v_add_u32 v{T[0]}, 2, v{vLN}
    v_bfe_u32 v{T[0]}, v{T[0]}, 2, 2
    v_xor_b32 v{T[0]}, v{T[4]}, v{T[0]}
    v_lshl_add_u32 v{T[0]}, v{T[0]}, 4, v{T[3]}
    s_add_u32 s{sT0}, s{sT0}, {XB + 384}
    v_add_u32 v{vAR[0]}, s{sT0}, v{T[0]}
    v_xor_b32 v{vAR[1]}, 32, v{vAR[0]}
    ''')

a(f'''
s_mov_b32 exec_hi, -1
s_mul_i32 s{sIMG}, s{sWI}, 3072
s_add_u32 s{sIMG}, s{sIMG}, {S_IL}
s_mov_b32 s{sOB}, {OUTL}
''')
LS = opt('ls', '02002')
lsl = [conv_setup1, dma_setup, conv_setup2, late_setup, l_setup]
def lsetup(k):
    for f, c in zip(lsl, LS):
        if int(c) == k: f()
lsetup(0)
a(ap('Ls'))
pstamp(14)
a(f's_waitcnt vmcnt({NX0 - 4})')
a(ap('Ll'))
pstamp(9)
bar(2)
if NX0 < 17:
    a('s_mov_b32 exec_hi, 0x0fffffff')
    xrows(17 - NX0)
    a('s_mov_b32 exec_hi, -1')
lsetup(1)
for gi in range(3): tab_reads(gi, cv.ds)
pstamp(10)
a('s_waitcnt vmcnt(9)')
pstamp(11)
bar(3)
lsetup(2)
pstamp(12)
a('s_waitcnt vmcnt(0) lgkmcnt(0)')
pstamp(13)
bar(4)
a(f's_setprio {opt("lprio", 2)}')
RED, LNW = 1, 3
def raw_reads(R, ad, off=0):
    for ks in range(3):
        a(f'ds_read_b64 {vr(R+4*ks,2)}, v{ad} offset:{off+64*ks}')
        a(f'ds_read_b64 {vr(R+4*ks+2,2)}, v{ad+1} offset:{off+64*ks}')
def row_store(O, soff, P=vY[0], Q=vK[0]):
    for i in range(12):
        a(f'v_cvt_pk_bf16_f32 v{P+i}, v{O+2*i}, v{O+2*i+1}')
    for i in range(6):
        a(f'ds_write_b64 v{vSW[i&1]}, {vr(P+2*i,2)} offset:{64*(i>>1)}')
    for j in range(3):
        a(f'ds_read_b128 {vr(Q+4*j,4)}, v{vSR[j]}')
    for j in range(3):
        a(f's_waitcnt lgkmcnt({2-j})')
        a(f'buffer_store_dwordx4 {vr(Q+4*j,4)}, v{vL16}, {srd(sOUT)}, s{soff} offen offset:{1024*j}{STPOL}')
LP = opt('lp', 'k')
def lprio(c):
    if LP == 'n': return (0, 0) if c == 0 else None
    if LP == 's': return (1, 1) if c == 0 else None
    if LP == 'k':
        lo, hi = [int(x) for x in opt('lk', '0,9').split(',')]
        if lo <= c < hi: return (0, 1)
        return (0, 0) if c in (0, hi) else None
    return (0, int(LP))
def l_body(h13):
    global cv
    keep = cv
    cv = copy.copy(keep)
    sfx = 'a' if h13 else 'b'
    if h13:
        frags = [('F',4,[4]), ('F',5,[4,5]), ('F',6,[4,5,6]), ('F',7,[5,6]), ('E',4,[4,5]), ('F',8,[6]), ('L',6,[6])]; pairs = [4, 5, 6]
    else:
        frags = [('F',4,[4]), ('F',5,[4,5]), ('F',6,[4,5]), ('F',7,[5]), ('E',4,[4,5])]; pairs = [4, 5]
    its = stage(frags)
    add_pub(its, 0, len(frags), pairs)
    def resr():
        for i in range(6):
            cv.ds(f'ds_read_b64 {vr(RR+2*i,2)}, v{vAR[i&1]} offset:{10*XROW+64*(i>>1)}')
        if h13:
            for i in range(6):
                cv.ds(f'ds_read_b64 {vr(RR+12+2*i,2)}, v{vAR[i&1]} offset:{(14-RED)*XROW+64*(i>>1)}')
    if opt('lc'):
        nf = len(frags)
        for j, idx in ((9, 0), (10, nf - 1), (11, nf), (12, 2 * nf - 1), (13, 2 * nf)):
            its[idx]['post'] = lambda j=j: _st(j)
    if '3' in LS:
        cv.run(its, 0)
        lsetup(3)
    cv.run(its)
    stamp(6)
    signal(2)
    resr()
    stamp(5)
    poll(GL, 2)
    stamp(7)
    RAW = 168
    raw_reads(RAW, vA0)
    for i in range(12):
        a(f'v_lshlrev_b32 v{vO+2*i}, 16, v{RR+i}\nv_and_b32 v{vO+2*i+1}, 0xffff0000, v{RR+i}')
    if h13:
        a(f's_cmp_eq_u32 s{sWI}, {RED}\ns_cbranch_scc1 L_ri{sfx}')
        for i in range(12): a(f'v_mov_b64 {vr(vO+24+2*i,2)}, 0')
        a(f's_branch L_rj{sfx}')
        a.label(f'L_ri{sfx}')
        for i in range(12):
            a(f'v_lshlrev_b32 v{vO+24+2*i}, 16, v{RR+12+i}\nv_and_b32 v{vO+24+2*i+1}, 0xffff0000, v{RR+12+i}')
        a.label(f'L_rj{sfx}')
    signal(3)
    if h13: raw_reads(RAW + 12, vA2)
    a(f's_waitcnt lgkmcnt({7 if h13 else 1})')
    def l_mid2():
        a('s_waitcnt lgkmcnt(0)')
        check(GF, 2)
        l_w1reads(0)
    ln(RAW, 72, [vL + i for i in range(12)], True, lambda: peek(GF), l_mid2)
    if h13:
        a(f's_cmp_lg_u32 s{sWI}, {LNW}\ns_cbranch_scc1 L_nl12')
        ln(RAW + 12, 72, [RAW + 12 + i for i in range(12)], True)
        for ks in range(3):
            a(f'ds_write_b128 v{vARL}, {vr(RAW+12+4*ks,4)} offset:{64*ks}')
        a.label('L_nl12')
        signal(5)
    stamp(8)
    def l12r():
        for ks in range(3):
            a(f'ds_read_b128 {vr(vL+12+4*ks,4)}, v{vARL} offset:{64*ks}')
    def pub_rem():
        a(f's_cmp_eq_u32 s{sWI}, {RED}\ns_cbranch_scc1 L_np\ns_mul_i32 s{sT0}, s{sWI}, 6144\nv_add_u32 v{T[0]}, s{sT0}, v{vL16}')
        for i in range(6):
            a(f'ds_write_b128 v{T[0]}, {vr(vO+24+4*i,4)} offset:{S_R + 1024*i}')
        a.label('L_np')
        signal(9)
    H = {
      'start3': [lambda: peek(GL)],
      ('preT1', 0): [lambda: check(GL, 3)],
      ('T1', 0): [lambda: wdma(2, [0, 1, 2]), lambda: wdma(3, [0, 1, 2]), lambda: peek(GF)],
      ('preT2', 0): [lambda: check(GF, 3)],
      ('T2', 0): [lambda: wdma(2, [3, 4, 5])] + ([lambda: peek(GL)] if h13 else []),
      ('preT1', 1): [lambda: check(GL, 5)] if h13 else [],
      ('T1', 1): [lambda: wdma(3, [3, 4, 5]), lambda: stamp(9)] + ([l12r] if h13 else []),
      ('preT2', 1): [lambda: landed(6, 6)],
      ('T2', 1): [lambda: wdma(4, [0, 1, 2]), lambda: peek(GL)],
      ('preT1', 2): [lambda: check(GL, 6)],
      ('T1', 2): [lambda: wdma(4, [3, 4, 5])],
      ('T2', 2): [lambda: wdma(5, [0, 1, 2])],
      ('preT1', 3): [lambda: landed(9, 7)],
      ('T1', 3): [lambda: wdma(5, [3, 4, 5])],
      ('T1', 4): [lambda: peek(GL)],
      ('preT2', 4): [lambda: check(GL, 7), lambda: landed(0, 8)],
      ('T2', 5): [lambda: peek(GL)],
      ('preT1', 6): [lambda: check(GL, 8), lambda: stamp(10)],
      ('preT1', 8): [lambda: stamp(11)],
      ('preT1', 10): [lambda: stamp(12)],
    }
    if h13:
        H[('T2', 9)] = [lambda: peek(GF)]
        H[('preT1', 10)] = H[('preT1', 10)] + [lambda: check(GF, 4), pub_rem]
        def reduce12():
            a(f's_cmp_lg_u32 s{sWI}, {RED}\ns_cbranch_scc1 L_nored')
            poll(GL, 9)
            others = [w for w in range(4) if w != RED]
            R = [144, 48, 144]
            def rd(n):
                for i in range(6):
                    a(f'ds_read_b128 {vr(R[n]+4*i,4)}, v{vL16} offset:{S_R + 6144*others[n] + 1024*i}')
            def ad(n):
                for i in range(24):
                    a(f'v_add_f32 v{vO+24+i}, v{vO+24+i}, v{R[n]+i}')
            rd(0); rd(1)
            a('s_waitcnt lgkmcnt(6)'); ad(0); rd(2)
            a('s_waitcnt lgkmcnt(6)'); ad(1)
            a('s_waitcnt lgkmcnt(0)'); ad(2)
            a(f's_add_u32 s{sO1}, s{sO0}, {(4-RED)*43008}')
            row_store(vO + 24, sO1, 48, 144)
            a.label('L_nored')
        H[('T1', 11)] = [reduce12]
    mlp16([3, 5, 8] if h13 else [], H, lprio)
    stamp(13)
    row_store(vO, sO0)
    finish()
    emit_slow()
    cv = keep
a(f's_cmp_lg_u32 s{sH13}, 13\ns_cbranch_scc1 L_L12')
l_body(True)
a.label('L_L12')
l_body(False)
a.label('L_end')
a('s_endpgm')

body = a.finalize()
hdr = open('cdna_kernels/' + NAME + '.s.ref').read().split('\n')
out = []
for l in hdr:
    if l.startswith('; @launch'):
        out.append('; @launch grid=(256,1,1) block=(512,1,1) lds=163840')
    elif l.startswith(';'):
        out.append(l)
    else:
        break
out.append('.amdgcn_target "amdgcn-amd-amdhsa--gfx950"')
out.append('.text')
out.append(f'.globl {NAME}_kernel')
out.append('.p2align 8')
out.append(f'.type {NAME}_kernel,@function')
out.append(f'{NAME}_kernel:')
for l in body:
    out.append(l if l.endswith(':') else '    ' + l)
out.append(f'''.section .rodata,"a"
.p2align 6
.amdhsa_kernel {NAME}_kernel
  .amdhsa_next_free_vgpr 256
  .amdhsa_next_free_sgpr 102
  .amdhsa_accum_offset 256
  .amdhsa_group_segment_fixed_size 0
  .amdhsa_kernarg_size 64
  .amdhsa_user_sgpr_count 2
  .amdhsa_user_sgpr_kernarg_segment_ptr 1
  .amdhsa_system_sgpr_workgroup_id_x 1
.end_amdhsa_kernel''')
print('\n'.join(out))
```

```python
import sys, struct, math, copy
from asmlib import Asm

NAME = "standalone__modern_conv_block_replknet__vision"
def fbits(x): return struct.unpack('<I', struct.pack('<f', x))[0]
def opt(name, default=None):
    for x in sys.argv:
        if x == '--' + name: return True
        if x.startswith('--' + name + '='): return x.split('=', 1)[1]
    return default
STAMP = opt('stamp'); CYC = opt('cyc'); PRO = opt('pro')
STPOL = ' ' + opt('stpol', 'sc1').replace('_', ' ') if opt('stpol', 'sc1') != 'none' else ''
FOLD = opt('fold', '1') == '1'
GL, GF = (1, 0) if FOLD else (0, 1)

XPOL = ' ' + opt('xpol').replace('_', ' ') if opt('xpol') else ''
XROW = 3840
XB = 73728
PS = 24576
TB, TP = 139264, 976
OUTF, OUTL = 49152, 147456
L12 = OUTL + 4*3072
FL = 163584
S_IF, S_R, S_IL = 0, 24576, OUTL
MARK = 0x40000000
XBYTES = 224 * 224 * 192

k0 = math.sqrt(2.0 / math.pi); k1 = 0.044715
c0 = 2 * k0 / math.log(2.0); c1 = c0 * k1
ga = c1 ** (1.0 / 3.0)
gc = -c0 / ga

sX, sDL, sDS, sW1, sW2, sOUT = 16, 20, 24, 28, 32, 36
sWV, sY0, sX0, sT0, sT1, sT2, sT3 = 40, 41, 42, 43, 44, 45, 46
sH13, sWI = 47, 3
sCA, sCC = 48, 50
sWS = 52
sXM, sIMG, sOB = 56, 57, 62
sWA, sWBm = 58, 59
sO0, sO1 = 60, 61
sST = 64
NST = 16
def srd(b): return f's[{b}:{b+3}]'
vO, vL, vY, vK, vG, vF1, vF2 = 0, 48, [72, 88], [104, 120], 136, 144, 168
vRES, vID = 204, 228
vAW1 = [236, 237, 245, 249]; vAW2 = 238
vLW1 = 204; vLW2 = 212
vDW1 = [220, 221]; vDW2 = [222, 223, 224]
vARL = 225
vSW = [239, 240]; vSR = [241, 242, 243]
vL16 = 244
vFA, vFW, vFP = 246, 247, 248
T = [250, 251, 252, 253, 254]
vLN = 255
vXO = 203; vPF = 54
vAF, vAE, vAO, vIDX, vTF0, vTF1, vTE, vAR, vAE16, vAO1 = 192, 193, 194, 195, 196, 197, 198, [199, 200], 201, 202
vACC, vAFR, vB = 0, 84, 144
def vr(b, n): return f'v[{b}:{b+n-1}]'

a = Asm()
def _st(i): a(f'{"s_memtime" if CYC else "s_memrealtime"} s[{sST+2*i}:{sST+2*i+1}]')
def pstamp(i):
    if STAMP and PRO and not opt('lc'): _st(i)
def ap(n):
    return 's_memrealtime s[88:89]' if opt('amp') == n else ''
def stamp(i):
    a(ap(str(i)))
    if i in (8, 13): hold(i)
    if STAMP and not (PRO and 9 <= i <= 14): _st(i)
def mksrd(b, lo, n):
    a(f's_mov_b64 s[{b}:{b+1}], s[{lo}:{lo+1}]\ns_mov_b32 s{b+2}, {n}\ns_mov_b32 s{b+3}, 0x00020000')
def hold(tag):
    h = opt('hold')
    if h and h.split(':')[0] == str(tag):
        n = nlab[0]; nlab[0] += 1
        a(f's_waitcnt lgkmcnt(0)\ns_add_u32 s92, s94, {h.split(":")[1]}')
        a.label(f'L_hold{n}')
        a(f's_memrealtime s[90:91]\ns_waitcnt lgkmcnt(0)\ns_sub_u32 s93, s92, s90\ns_cmp_gt_i32 s93, 0\ns_cbranch_scc1 L_hold{n}')
def bar(i=None):
    a('s_barrier')
    hold(i)
    if i is not None: stamp(i)
def setexec(lo, hi):
    a(f's_mov_b32 exec_lo, {lo:#x}\ns_mov_b32 exec_hi, {hi:#x}')

nlab = [0]; slow = []
def guard():
    if opt('safe'): a('s_sub_u32 s98, s98, 1\ns_cbranch_scc1 L_end')
def signal(v, emit=None):
    a(f'v_mov_b32 v{T[4]}, {v}')
    (emit or a)(f'ds_write_b32 v{vFW}, v{T[4]}')
def poll(grp, v):
    lab = f'L_poll{nlab[0]}'; nlab[0] += 1
    a.label(lab)
    guard()
    a(f'ds_read_b32 v{vFP}, v{vFA} offset:{16*grp}\ns_waitcnt lgkmcnt(0)\nv_cmp_gt_u32 vcc, {v}, v{vFP}\ns_cbranch_vccnz {lab}')
def peek(grp): a(f'ds_read_b32 v{vFP}, v{vFA} offset:{16*grp}')
def check(grp, v):
    n = nlab[0]; nlab[0] += 1
    a(f'v_cmp_gt_u32 vcc, {v}, v{vFP}\ns_cbranch_vccnz L_slow{n}')
    a.label(f'L_back{n}')
    slow.append((n, grp, v))
def emit_slow():
    for n, grp, v in slow:
        a.label(f'L_slow{n}')
        guard()
        a(f'ds_read_b32 v{vFP}, v{vFA} offset:{16*grp}\ns_waitcnt lgkmcnt(0)\nv_cmp_gt_u32 vcc, {v}, v{vFP}\ns_cbranch_vccnz L_slow{n}\ns_branch L_back{n}')
    slow.clear()
def landed(n, v):
    a(f's_waitcnt vmcnt({n})'); signal(v)

def wdma(p, parts=range(6)):
    for i in parts:
        if i < 3:
            a(f'''
            s_add_u32 m0, s{sWBm}, {PS*p + 1024*i}
            s_add_u32 s{sT0}, s{sWA}, {6144*i + 128*p}
            buffer_load_dwordx4 v{vDW1[i & 1]}, {srd(sW1)}, s{sT0} offen lds
            ''')
        else:
            if i == 3 or i - 1 not in parts:
                a(f's_add_u32 m0, s{sWBm}, {PS*p + 12288}\ns_add_u32 s{sT0}, s{sWBm}, {12288*p}')
            a(f'buffer_load_dwordx4 v{vDW2[i-3]}, {srd(sW2)}, s{sT0} offen offset:{1024*(i-3)} lds')

def ln(raw, U, dst, rows16, mid=None, mid2=None):
    n = len(dst)
    S, Q, ONE = T[1], T[3], T[4]
    sc, bi = T[0], T[2]
    a(f'v_mov_b32 v{ONE}, 0x3f803f80')
    un = []
    for i in range(n):
        un.append(f'v_lshlrev_b32 v{U+2*i}, 16, v{raw+i}')
        un.append(f'v_and_b32 v{U+2*i+1}, 0xffff0000, v{raw+i}')
    while len(un) > 8: a(un.pop(0))
    for i in range(n):
        a(f'v_dot2_f32_bf16 v{S}, v{raw+i}, v{ONE}, {"0" if i == 0 else f"v{S}"}')
        a(f'v_dot2_f32_bf16 v{Q}, v{raw+i}, v{raw+i}, {"0" if i == 0 else f"v{Q}"}')
    def fill(k):
        for _ in range(k):
            if un: a(un.pop(0))
    fill(3)
    a(f'v_permlane32_swap_b32 v{S}, v{Q}')
    a(f'v_add_f32 v{S}, v{S}, v{Q}')
    if rows16:
        a(f'v_mov_b32 v{Q}, v{S}')
        fill(2)
        a(f'v_permlane16_swap_b32 v{S}, v{Q}')
        a(f'v_add_f32 v{S}, v{S}, v{Q}')
    a(f'v_mul_f32 v{S}, {fbits(1.0/96):#x}, v{S}')
    a(f'v_mov_b32 v{Q}, v{S}')
    fill(2)
    a(f'v_permlane32_swap_b32 v{S}, v{Q}')
    a(f'''
    v_fma_f32 v{Q}, -v{S}, v{S}, v{Q}
    v_max_f32 v{Q}, 0, v{Q}
    v_add_f32 v{Q}, {fbits(1e-5):#x}, v{Q}
    v_rsq_f32 v{Q}, v{Q}
    ''')
    fill(1)
    a(f'v_mul_f32 v{sc}, {fbits(ga):#x}, v{Q}')
    a(f'v_mul_f32 v{bi}, -v{S}, v{sc}')
    fill(1000)
    if mid: mid()
    for i in range(n):
        if opt('lnplain'):
            a(f'v_fma_f32 v{U+2*i}, v{U+2*i}, v{sc}, v{bi}\nv_fma_f32 v{U+2*i+1}, v{U+2*i+1}, v{sc}, v{bi}')
        else:
            a(f'v_pk_fma_f32 {vr(U+2*i,2)}, {vr(U+2*i,2)}, {vr(sc,2)}, {vr(bi,2)} op_sel_hi:[1,0,0]')
    if mid2: mid2()
    for i in range(n):
        a(f'v_cvt_pk_bf16_f32 v{dst[i]}, v{U+2*i}, v{U+2*i+1}')

def pk_t(Y, K, n):
    return [f'v_pk_fma_f32 {vr(K+2*i,2)}, {vr(Y+2*i,2)}, {vr(Y+2*i,2)}, s[{sCC}:{sCC+1}] neg_lo:[1,0,0] neg_hi:[1,0,0]' for i in range(n//2)] + pk_m(Y, K, n)
def pk_m(Y, K, n): return [f'v_pk_mul_f32 {vr(K+2*i,2)}, {vr(Y+2*i,2)}, {vr(K+2*i,2)}' for i in range(n//2)]
def pk_d(K, n): return [f'v_pk_fma_f32 {vr(K+2*i,2)}, {vr(K+2*i,2)}, s[{sCA}:{sCA+1}], s[{sCA}:{sCA+1}]' for i in range(n//2)]
def emit(l):
    for t in l: a(t)

def mlp32(hooks, prio):
    N = 12
    moved = {'w1': False, 'w2': False}
    def move(kind, c):
        if c >= 6 and not moved[kind]:
            for r in (vAW1 if kind == 'w1' else [vAW2]): a(f'v_add_u32 v{r}, {3*PS}, v{r}')
            moved[kind] = True
    def w1reads(c):
        for ks in range(6):
            off = ((c >> 1) % 3) * PS + (ks >> 1) * 4096 + (ks & 1) * 1024
            r = vAW1[(c & 1) + 2 * (ks & 1)]
            a(f'ds_read_b64_tr_b16 {vr(vF1+4*ks,2)}, v{r} offset:{off}')
            a(f'ds_read_b64_tr_b16 {vr(vF1+4*ks+2,2)}, v{r} offset:{off+512}')
    def w2reads(c):
        for i in range(6):
            ks2, mt = i // 3, i % 3
            off = ((c >> 1) % 3) * PS + (c & 1) * 6144 + ks2 * 3072 + mt * 64
            a(f'ds_read_b64_tr_b16 {vr(vF2+4*i,2)}, v{vAW2} offset:{off}')
            a(f'ds_read_b64_tr_b16 {vr(vF2+4*i+2,2)}, v{vAW2} offset:{off+1536}')
    def g1(c, ks):
        Y = vY[c & 1]
        a(f'v_mfma_f32_32x32x16_bf16 {vr(Y,16)}, {vr(vF1+4*ks,4)}, {vr(vL+4*ks,4)}, {"0" if ks == 0 else vr(Y,16)}')
    def g2(i):
        ks2, mt = i // 3, i % 3
        a(f'v_mfma_f32_32x32x16_bf16 {vr(vO+16*mt,16)}, {vr(vF2+4*i,4)}, {vr(vG+4*ks2,4)}, {vr(vO+16*mt,16)}')
    def resm(ks):
        j, mt = ks // 3, ks % 3
        a(f'v_mfma_f32_32x32x16_bf16 {vr(vO+16*mt,16)}, {vr(vID+4*j,4)}, {vr(vRES+4*(2*mt+j),4)}, {"0" if j == 0 else vr(vO+16*mt,16)}')
    def hook(k):
        for f in hooks.get(k, []): f()
    def pr(c, v):
        if prio(c) is not None: a(f's_setprio {prio(c)[v]}')
    hook('pre')
    a('s_waitcnt lgkmcnt(0)')
    for ks in range(6): g1(0, ks)
    w1reads(1)
    hook('start3')
    for c in range(N + 1):
        Y, K = vY[c & 1], vK[c & 1]
        Yp, Kp = vY[(c - 1) & 1], vK[(c - 1) & 1]
        pr(c, 1)
        if c >= 1: emit(pk_m(Yp, Kp, 16))
        if c < N: emit(pk_t(Y, K, 16))
        cv = [f'v_cvt_pk_bf16_f32 v{vG+i}, v{Kp+2*i}, v{Kp+2*i+1}' for i in range(8)] if c >= 1 else []
        if c == N:
            emit(cv)
            a('s_waitcnt lgkmcnt(0)')
            for i in (0, 3, 1, 4, 2, 5): g2(i)
            break
        ex = [f'v_exp_f32 v{K+i}, v{K+i}' for i in range(16)]
        rc = [f'v_rcp_f32 v{K+i}, v{K+i}' for i in range(16)]
        last = c + 1 >= N
        if c + 2 < N: move('w1', c + 2)
        move('w2', c)
        if c == 0:
            gaps = [ex[0:3], ex[3:6], ex[6:9], ex[9:12], ex[12:15], ex[15:16]]
            a('s_waitcnt lgkmcnt(0)')
            for j in range(6):
                g1(1, j); emit(gaps[j])
        elif not last:
            gaps = [cv[0:4] + ex[0:1], cv[4:8] + ex[1:2], ex[2:5], ex[5:8], ex[8:11], ex[11:14], ex[14:16]]
            for j in range(7):
                if j < 6: g1(c + 1, j)
                else: g2(0)
                if j == 5: a('s_waitcnt lgkmcnt(0)')
                emit(gaps[j])
        else:
            emit(cv); emit(ex[0:4])
            a('s_waitcnt lgkmcnt(0)')
            gaps = [ex[4:8], ex[8:12], ex[12:16]]
            for j in range(3):
                g2(j); emit(gaps[j])
        hook(('preT1', c))
        pr(c, 0)
        if c + 2 < N: w1reads(c + 2)
        hook(('T1', c))
        pr(c, 1)
        emit(pk_d(K, 16))
        if c == 0:
            gp = [rc[0:3], rc[3:6], rc[6:9], rc[9:12], rc[12:14], rc[14:16]]
            for j in range(6):
                resm(j)
                if j == 5: a('s_waitcnt lgkmcnt(0)')
                emit(gp[j])
        elif not last:
            gp = [rc[0:3], rc[3:6], rc[6:9], rc[9:12], rc[12:16]]
            for j in range(5):
                g2(j + 1)
                if j == 4: a('s_waitcnt lgkmcnt(0)')
                emit(gp[j])
        else:
            gp = [rc[0:3], rc[3:6], rc[6:16]]
            for j in range(3):
                g2(j + 3)
                if j == 2: w2reads(c)
                emit(gp[j])
        hook(('preT2', c))
        pr(c, 0)
        if not last: w2reads(c)
        hook(('T2', c))
    return w1reads

def f_w1reads0():
    for ks in range(6):
        off = (ks >> 1) * 4096 + (ks & 1) * 1024
        r = vAW1[2 * (ks & 1)]
        a(f'ds_read_b64_tr_b16 {vr(vF1+4*ks,2)}, v{r} offset:{off}')
        a(f'ds_read_b64_tr_b16 {vr(vF1+4*ks+2,2)}, v{r} offset:{off+512}')

def l_w1reads(s):
    for i in range(6):
        mt2, ks3 = i // 3, i % 3
        off = ((s >> 2) & 1) * 2 * PS + ks3 * 4096
        r = vLW1 + mt2 + 2 * (s & 3)
        a(f'ds_read_b64_tr_b16 {vr(vF1+4*i,2)}, v{r} offset:{off}')
        a(f'ds_read_b64_tr_b16 {vr(vF1+4*i+2,2)}, v{r} offset:{off+512}')

def mlp16(doubles, hooks, prio):
    N = 12
    def wid(s): return 0 if (s < 0 or s >= N) else (2 if s in doubles else 1)
    def move(base):
        for r in range(8): a(f'v_add_u32 v{base+r}, {4*PS}, v{base+r}')
    def w2reads(s):
        for i in range(6):
            off = ((s >> 2) & 1) * 2 * PS + 64 * (i >> 1)
            r = vLW2 + (i & 1) + 2 * (s & 3)
            a(f'ds_read_b64_tr_b16 {vr(vF2+4*i,2)}, v{r} offset:{off}')
            a(f'ds_read_b64_tr_b16 {vr(vF2+4*i+2,2)}, v{r} offset:{off+3072}')
    def m1(s):
        l = []
        for t in range(wid(s)):
            for j in range(6):
                mt2, ks3 = j & 1, j >> 1
                D = vY[s & 1] + 8 * t + 4 * mt2
                l.append(f'v_mfma_f32_16x16x32_bf16 {vr(D,4)}, {vr(vF1+4*(mt2*3+ks3),4)}, {vr(vL+12*t+4*ks3,4)}, {"0" if ks3 == 0 else vr(D,4)}')
        return l
    def m2(s):
        return [f'v_mfma_f32_16x16x32_bf16 {vr(vO+24*t+4*i,4)}, {vr(vF2+4*i,4)}, {vr(vG+4*t,4)}, {vr(vO+24*t+4*i,4)}' for t in range(wid(s)) for i in range(6)]
    def weave(ms, fl):
        fl = list(fl)
        if not ms:
            emit(fl); a('s_waitcnt lgkmcnt(0)'); return
        for j, m in enumerate(ms):
            a(m)
            if j == len(ms) - 1: a('s_waitcnt lgkmcnt(0)')
            k = -(-len(fl) // (len(ms) - j))
            emit(fl[:k]); fl = fl[k:]
    def hook(k):
        for f in hooks.get(k, []): f()
    def pr(c, v):
        if prio(c) is not None: a(f's_setprio {prio(c)[v]}')
    hook('pre')
    a('s_waitcnt lgkmcnt(0)')
    emit(m1(0))
    l_w1reads(1)
    hook('start3')
    for s in range(N + 1):
        Y, K = vY[s & 1], vK[s & 1]
        Yp, Kp = vY[(s - 1) & 1], vK[(s - 1) & 1]
        n, np_ = 8 * wid(s), 8 * wid(s - 1)
        pr(s, 1)
        emit(pk_m(Yp, Kp, np_))
        emit(pk_t(Y, K, n))
        cv = [f'v_cvt_pk_bf16_f32 v{vG+i}, v{Kp+2*i}, v{Kp+2*i+1}' for i in range(np_ // 2)]
        if s == N:
            emit(cv)
            a('s_waitcnt lgkmcnt(0)')
            emit(m2(N - 1))
            break
        ex = [f'v_exp_f32 v{K+i}, v{K+i}' for i in range(n)]
        rc = [f'v_rcp_f32 v{K+i}, v{K+i}' for i in range(n)]
        if s + 2 == 8: move(vLW1)
        if s == 8: move(vLW2)
        if s == 0: a('s_waitcnt lgkmcnt(0)')
        weave(m1(s + 1), cv + ex)
        hook(('preT1', s))
        pr(s, 0)
        if s + 2 < N: l_w1reads(s + 2)
        hook(('T1', s))
        pr(s, 1)
        emit(pk_d(K, n))
        weave(m2(s - 1), rc)
        hook(('preT2', s))
        pr(s, 0)
        w2reads(s)
        hook(('T2', s))

def finish():
    if opt('amp'):
        n = nlab[0]; nlab[0] += 1
        a(f's_waitcnt vmcnt(0) lgkmcnt(0)\ns_sub_u32 s92, s88, s94\ns_lshl_b32 s92, s92, 2\ns_cmp_eq_u32 s88, 0\ns_cselect_b32 s92, 0, s92')
        a(f's_cmp_eq_u32 s{sH13}, {opt("amprows", 13)}\ns_cselect_b32 s92, s92, 0\ns_add_u32 s92, s92, 1400\ns_add_u32 s92, s92, s94')
        a.label(f'L_amp{n}')
        a(f's_memrealtime s[90:91]\ns_waitcnt lgkmcnt(0)\ns_sub_u32 s93, s92, s90\ns_cmp_gt_i32 s93, 0\ns_cbranch_scc1 L_amp{n}')
    if STAMP:
        stamp(14)
        a('s_waitcnt vmcnt(0)')
        stamp(15)
        a('s_waitcnt lgkmcnt(0)')
        if opt('dbg'):
            n = nlab[0]; nlab[0] += 1
            a(f's_cmp_lg_u32 s2, {opt("dbg")}\ns_cbranch_scc1 L_nd{n}\ns_cmp_lg_u32 s{sWI}, 0\ns_cbranch_scc1 L_nd{n}')
            a(f's_lshl_b32 s{sT0}, s{sWV}, 3\nv_mov_b32 v{T[1]}, s{sT0}\ns_mov_b64 exec, 1')
            for k, i in enumerate((1, 2, 3, 4, 8, 10, 13, 15)):
                a(f's_sub_u32 s{sT0}, s{sST+2*i}, s{sST}\nv_mov_b32 v{T[0]}, s{sT0}')
                a(f'buffer_store_dword v{T[0]}, v{T[1]}, {srd(sWS)}, 0 offen offset:{4*k}')
            a.label(f'L_nd{n}')
            a('s_endpgm')
            return
        a(f'''
        s_lshl_b32 s{sT0}, s2, 3
        s_add_u32 s{sT0}, s{sT0}, s{sWV}
        s_lshl_b32 s{sT0}, s{sT0}, 6
        v_mov_b32 v{T[1]}, s{sT0}
        s_mov_b64 exec, 1
        ''')
        for i in range(NST):
            a(f'v_mov_b32 v{T[0]}, s{sST+2*i}')
            a(f'buffer_store_dword v{T[0]}, v{T[1]}, {srd(sWS)}, 0 offen offset:{4*i}')
    a('s_endpgm')

def tab_reads(gi, em):
    A = vAFR + 20 * gi; o = 64 * gi
    for d in range(3):
        em(f'ds_read_b64_tr_b16 {vr(A+4*d,2)}, v{vTF0} offset:{o + 2*d*TP}')
        em(f'ds_read_b64_tr_b16 {vr(A+4*d+2,2)}, v{vTF1} offset:{o + 2*d*TP}')
    for par in range(2):
        for pp in range(2):
            em(f'ds_read_b64_tr_b16 {vr(A+12+4*par+2*pp,2)}, v{vTE} offset:{o + (pp - 2*par + 2)*TP}')
RING = 6
class Conv:
    def __init__(self, k0): self.n = 0; self.slot = 0; self.k0 = k0
    def acc(self, gi, k): return vACC + 16 * gi + 4 * (k - self.k0)
    def ds(self, t): a(t); self.n += 1; return self.n
    def wait(self, seq): a(f's_waitcnt lgkmcnt({min(15, self.n - seq)})')
    def reads(self, it):
        B = it['B']; go = 64 * it['gi']; idx = it['idx']; kind = it['kind']
        if kind == 'F':
            r0, r1 = 2 * idx, min(2 * idx + 1, 16)
            return [f'ds_read_b128 {vr(B,4)}, v{vAF} offset:{r0*XROW+go}', f'ds_read_b128 {vr(B+4,4)}, v{vAF} offset:{r1*XROW+go}']
        if kind == 'E':
            return [f'ds_read_b128 {vr(B,4)}, v{vAE} offset:{2*idx*XROW+go}', f'ds_read_b128 {vr(B+4,4)}, v{vAE} offset:{(2*idx+4)*XROW+go}']
        return [f'ds_read_b128 {vr(B,4)}, v{vAE} offset:{12*XROW+go}', f'ds_read_b128 {vr(B+4,4)}, v{vAE16} offset:{16*XROW+go}']
    def cvt(self, lst):
        for gi, k in lst:
            A = self.acc(gi, k)
            a(f'v_cvt_pk_bf16_f32 v{A}, v{A}, v{A+1}\nv_cvt_pk_bf16_f32 v{A+1}, v{A+2}, v{A+3}')
    def write(self, lst):
        for gi, k in lst:
            A = self.acc(gi, k)
            if k == 6: setexec(0xffff, 0xffff)
            self.ds(f'ds_write_b64 v{vAO}, {vr(A,2)} offset:{(k-self.k0)*6144+64*gi}')
            if k == 6: a('s_mov_b64 exec, -1')
    def run(self, items, stop_at=None):
        D = RING - 1
        nxt = 0
        while nxt < len(items) and 'seq' in items[nxt]: nxt += 1
        def start(j):
            items[j]['B'] = vB + 8 * (self.slot % RING); self.slot += 1
            return self.reads(items[j])
        while nxt < min(D, len(items)):
            for t in start(nxt): items[nxt]['seq'] = self.ds(t)
            nxt += 1
        end = len(items) if stop_at is None else stop_at
        for i in range(end):
            it = items[i]
            self.wait(it['seq'])
            pend = start(nxt) if nxt < len(items) else []
            A = vAFR + 20 * it['gi']
            had = bool(pend)
            for k in it['outs']:
                fr = (it['idx'] - k) if it['kind'] == 'F' else 3 + (k - it['idx'])
                a(f'v_smfmac_f32_16x16x64_bf16 {vr(self.acc(it["gi"], k),4)}, {vr(A+4*fr,4)}, {vr(it["B"],8)}, v{vIDX}')
                if pend: items[nxt]['seq'] = self.ds(pend.pop(0))
            for t in pend: items[nxt]['seq'] = self.ds(t)
            if had: nxt += 1
            if it.get('pub'):
                self.cvt(it['pub'])
                if not it.get('nowrite'): self.write(it['pub'])
            if it.get('post'): it['post']()
        return items[end:]
def stage(frags): return [dict(gi=gi, kind=k, idx=i, outs=list(o)) for gi in range(3) for (k, i, o) in frags]
def add_pub(items, base, nfr, pairs, nowrite=False):
    for gi in range(3):
        j = min(base + nfr * (gi + 1), len(items) - 1)
        items[j].setdefault('pub', []).extend((gi, k) for k in pairs)
        items[j]['nowrite'] = nowrite

def late_setup():
    mksrd(sOUT, 14, XBYTES)
    if opt('safe'): a('s_mov_b32 s98, 20000')
    a(f'''
    s_mov_b32 s{sCA}, {fbits(ga):#x}
    s_mov_b32 s{sCA+1}, {fbits(ga):#x}
    s_mov_b32 s{sCC}, {fbits(gc):#x}
    s_mov_b32 s{sCC+1}, {fbits(gc):#x}
    s_add_u32 s{sT0}, s{sWI}, s{sY0}
    s_mul_i32 s{sT0}, s{sT0}, 224
    s_add_u32 s{sT0}, s{sT0}, s{sX0}
    s_mul_i32 s{sO0}, s{sT0}, 192
    ''')
    if STAMP:
        a(f's_mov_b32 s{sWS+2}, {256 if opt("dbg") else 0x10000000}\ns_mov_b32 s{sWS+3}, 0x00020000')
        for i in (7,): a(f's_mov_b32 s{sST+2*i}, 0')
    for j in range(3):
        a(f'''
        v_add_u32 v{T[0]}, {64*j}, v{vLN}
        v_mul_u32_u24 v{T[2]}, 171, v{T[0]}
        v_bfe_u32 v{T[2]}, v{T[2]}, 12, 2
        v_xor_b32 v{T[0]}, v{T[0]}, v{T[2]}
        v_lshl_add_u32 v{vSR[j]}, v{T[0]}, 4, s{sIMG}
        ''')

def conv_setup1():
    a(f'''
; table read: source lane r=(l>>2)&3, chalf=(l>>1)&1, s=l&1, qa=l>>4; tbl=r&1; valid iff (r>>1)==chalf
v_and_b32 v{T[0]}, 3, v{vLN}
v_mul_u32_u24 v{vIDX}, 0x5555, v{T[0]}
s_lshl_b32 s{sT2}, s{sWI}, 4
s_add_u32 s{sT2}, s{sT2}, {TB}
v_bfe_u32 v{T[1]}, v{vLN}, 1, 1
v_lshl_add_u32 v{T[4]}, v{T[1]}, 3, s{sT2}
v_and_b32 v{T[0]}, 1, v{vLN}
v_lshrrev_b32 v{T[1]}, 5, v{vLN}
v_mul_u32_u24 v{vTE}, {TP}, v{T[1]}
v_sub_u32 v{T[1]}, v{T[1]}, v{T[0]}
v_bfe_u32 v{T[2]}, v{vLN}, 2, 1
v_mul_u32_u24 v{T[2]}, 7, v{T[2]}
v_sub_u32 v{T[1]}, v{T[1]}, v{T[2]}
v_add_u32 v{T[1]}, 8, v{T[1]}
v_mul_u32_u24 v{T[1]}, {TP}, v{T[1]}
v_bfe_u32 v{T[2]}, v{vLN}, 4, 1
v_mul_u32_u24 v{T[2]}, 192, v{T[2]}
v_add3_u32 v{T[3]}, v{T[1]}, v{T[2]}, v{T[4]}
v_lshrrev_b32 v{T[1]}, 4, v{vLN}
v_lshlrev_b32 v{T[2]}, 1, v{T[1]}
v_sub_u32 v{T[2]}, v{T[2]}, v{T[0]}
v_add_u32 v{T[2]}, 6, v{T[2]}
v_mul_u32_u24 v{T[2]}, {TP}, v{T[2]}
v_add_u32 v{vTF0}, s{sT2}, v{vTE}
v_add_u32 v{vTF1}, {TP}, v{vTF0}
v_mov_b32 v{vTE}, s{sT2}
s_mov_b32 exec_lo, 0xcc33cc33
s_mov_b32 exec_hi, 0xcc33cc33
v_mov_b32 v{vTF0}, v{T[3]}
v_add_u32 v{vTF1}, 384, v{T[3]}
s_mov_b32 exec_lo, 0x0c030c03
s_mov_b32 exec_hi, 0x0c030c03
v_add_u32 v{T[2]}, 768, v{T[2]}
v_add_u32 v{vTE}, v{T[2]}, v{T[4]}
s_mov_b64 exec, -1
v_and_b32 v{T[0]}, 15, v{vLN}
v_bfe_u32 v{T[2]}, v{vLN}, 4, 1
v_lshrrev_b32 v{T[3]}, 5, v{vLN}
v_lshl_add_u32 v{T[2]}, v{T[2]}, 1, v{T[3]}
v_add_u32 v{T[2]}, v{T[0]}, v{T[2]}
v_bfe_u32 v{T[3]}, v{T[2]}, 2, 2
v_xor_b32 v{T[3]}, s{sWI}, v{T[3]}
v_mul_u32_u24 v{T[2]}, 192, v{T[2]}
v_lshl_add_u32 v{vAF}, v{T[3]}, 4, v{T[2]}
v_add_u32 v{vAF}, {XB}, v{vAF}
''')
def conv_setup2(em=None):
    for i in range(24): a(f'v_mov_b64 {vr(vACC+2*i,2)}, 0')
    a(f'''
v_and_b32 v{T[0]}, 3, v{vLN}
v_lshlrev_b32 v{vFA}, 2, v{T[0]}
v_add_u32 v{vFA}, {FL}, v{vFA}
s_lshl_b32 s{sT0}, s{sWV}, 2
s_add_u32 s{sT0}, s{sT0}, {FL}
v_mov_b32 v{vFW}, s{sT0}
v_mov_b32 v{vFP}, 0
ds_write_b32 v{vFW}, v{vFP}
v_and_b32 v{T[0]}, 15, v{vLN}
v_lshrrev_b32 v{T[1]}, 4, v{vLN}
v_add_u32 v{T[2]}, 4, v{T[0]}
v_bfe_u32 v{T[3]}, v{T[2]}, 2, 2
v_xor_b32 v{T[3]}, s{sWI}, v{T[3]}
v_mul_u32_u24 v{T[2]}, 192, v{T[2]}
v_lshl_add_u32 v{vAE}, v{T[3]}, 4, v{T[2]}
v_add_u32 v{vAE16}, {XB}, v{vAE}
v_mul_u32_u24 v{T[2]}, {XROW}, v{T[1]}
v_add_u32 v{vAE}, v{vAE16}, v{T[2]}
v_bfe_u32 v{T[3]}, v{T[0]}, 2, 2
v_xor_b32 v{T[4]}, s{sWI}, v{T[3]}
v_mul_u32_u24 v{T[2]}, 192, v{T[0]}
v_lshl_add_u32 v{T[2]}, v{T[4]}, 4, v{T[2]}
v_bfe_u32 v{T[1]}, v{vLN}, 4, 1
v_mul_u32_u24 v{T[1]}, 3072, v{T[1]}
v_lshrrev_b32 v{T[3]}, 5, v{vLN}
v_bfe_u32 v{T[4]}, v{vLN}, 1, 1
v_xor_b32 v{T[3]}, v{T[3]}, v{T[4]}
v_lshl_add_u32 v{T[1]}, v{T[3]}, 3, v{T[1]}
v_add3_u32 v{vAO}, v{T[2]}, v{T[1]}, s{sOB}
''')

def dma_setup():
    mksrd(sW1, 10, 73728); mksrd(sW2, 12, 73728)
    a(f'''
    v_lshrrev_b32 v{T[0]}, 3, v{vLN}
    v_mul_u32_u24 v{T[0]}, 768, v{T[0]}
    v_bfe_u32 v{T[1]}, v{vLN}, 4, 1
    v_lshlrev_b32 v{T[1]}, 2, v{T[1]}
    v_and_b32 v{T[2]}, 7, v{vLN}
    v_xor_b32 v{T[1]}, v{T[1]}, v{T[2]}
    v_lshl_add_u32 v{T[0]}, v{T[1]}, 4, v{T[0]}
    s_and_b32 s{sT1}, s{sWI}, 1
    s_lshl_b32 s{sT0}, s{sT1}, 5
    v_xor_b32 v{vDW1[0]}, s{sT0}, v{T[0]}
    v_xor_b32 v{vDW1[1]}, 32, v{vDW1[0]}
    v_mov_b32 v{vDW2[0]}, v{vL16}
    v_mov_b32 v{vDW2[1]}, v{vL16}
    v_mov_b32 v{vDW2[2]}, v{vL16}
    s_mov_b32 exec_lo, 0xffff0000
    v_xor_b32 v{vDW2[2]}, 32, v{vL16}
    s_mov_b32 exec_lo, 0
    s_mov_b32 exec_hi, 0xffff0000
    v_xor_b32 v{vDW2[0]}, 32, v{vL16}
    s_mov_b32 exec_lo, -1
    s_mov_b32 exec_hi, 0
    v_xor_b32 v{vDW2[1]}, 32, v{vL16}
    s_mov_b64 exec, -1
    s_mul_i32 s{sWA}, s{sWI}, {3*6144}
    s_mul_i32 s{sWBm}, s{sWI}, 3072
    ''')

TM = opt('touch', 'lx12o')
TOUCH = chr(10).join(t for k, t in (('l', 's_load_dword s76, s[6:7], 0'), ('x', f's_load_dword s77, s[4:5], s{sT0}'), ('1', 's_load_dword s78, s[10:11], 0'),
        ('2', 's_load_dword s79, s[12:13], 0'), ('o', f's_load_dword s80, s[14:15], s{sT0}')) if k in TM)
isF = 's_cmp_lt_u32' if FOLD else 's_cmp_ge_u32'
a(f'''
s_load_dwordx4 s[4:7], s[0:1], 0
s_load_dwordx4 s[8:11], s[0:1], 16
s_load_dwordx4 s[12:15], s[0:1], 32
s_getpc_b64 s[100:101]
L_pc:
''')
if STAMP: a(f's_load_dwordx2 s[{sWS}:{sWS+1}], s[0:1], {48 if opt("dbg") else 56}')
stamp(0)
if opt('hold') or opt('amp'): a('s_memrealtime s[94:95]\ns_mov_b32 s88, 0')
a(f'''
s_cmp_ge_u32 s2, 256
s_cbranch_scc1 L_end
v_lshrrev_b32 v{T[0]}, 6, v0
v_and_b32 v{vLN}, 63, v0
''')
PFM = opt('pf', 'h')
if PFM == 'first':
    a(f'''
    s_bfe_u32 s{sT3}, s2, 0x20003
    s_mul_i32 s{sT3}, s{sT3}, {80*128}
    v_mul_u32_u24 v{T[1]}, 10, v{T[0]}
    v_add_u32 v{T[1]}, v{T[1]}, v{vLN}
    v_lshl_add_u32 v{T[1]}, v{T[1]}, 7, s{sT3}
    v_min_u32 v{T[1]}, L_end-L_pc, v{T[1]}
    s_mov_b64 exec, 0x3ff
    global_load_dword v{vPF}, v{T[1]}, s[100:101]
    s_mov_b64 exec, -1
    ''')
a(f'''
s_lshr_b32 s{sT1}, s2, 3
v_readfirstlane_b32 s{sWV}, v{T[0]}
s_and_b32 s{sT2}, s2, 1
s_add_u32 s{sT2}, s{sT2}, s{sT1}
s_cmp_ge_u32 s{sT2}, 32
s_cbranch_scc1 L_end
s_and_b32 s{sT0}, s2, 3
v_mul_u32_u24 v{T[0]}, 43, v{vLN}
s_mul_i32 s{sT0}, s{sT0}, 63
s_add_u32 s{sT0}, s{sT0}, 1
v_lshrrev_b32 v{T[0]}, 9, v{T[0]}
s_lshr_b32 s{sT0}, s{sT0}, 1
s_add_u32 s{sT0}, s{sT0}, s{sT1}
v_mul_u32_u24 v{T[1]}, 12, v{T[0]}
s_mul_i32 s{sT1}, s{sT0}, 9363
s_lshr_b32 s{sT1}, s{sT1}, 16
v_sub_u32 v{T[1]}, v{vLN}, v{T[1]}
s_mul_i32 s{sT2}, s{sT1}, 7
s_sub_u32 s{sT0}, s{sT0}, s{sT2}
s_bfe_u32 s{sT2}, s2, 0x10002
s_mul_i32 s{sT2}, s{sT2}, 7
s_add_u32 s{sT0}, s{sT0}, s{sT2}
s_lshl_b32 s{sX0}, s{sT0}, 4
s_mul_i32 s{sY0}, s{sT1}, {112*7282}
s_add_u32 s{sH13}, s{sY0}, {112*7282}
s_lshr_b32 s{sY0}, s{sY0}, 16
s_lshr_b32 s{sH13}, s{sH13}, 16
s_sub_u32 s{sH13}, s{sH13}, s{sY0}
s_and_b32 s{sWI}, s{sWV}, 3
''')
if PFM == 'h':
    a(f'''
    s_cmp_eq_u32 s{sH13}, 13
    s_cbranch_scc1 L_nopf
    s_bfe_u32 s{sT3}, s2, 0x20003
    s_lshl_b32 s{sT3}, s{sT3}, 3
    s_add_u32 s{sT3}, s{sT3}, s{sWV}
    s_mul_i32 s{sT3}, s{sT3}, {10*128}
    v_lshl_add_u32 v{T[2]}, v{vLN}, 7, s{sT3}
    v_min_u32 v{T[2]}, L_end-L_pc, v{T[2]}
    s_mov_b64 exec, 0x3ff
    global_load_dword v{vPF}, v{T[2]}, s[100:101]
    s_mov_b64 exec, -1
    L_nopf:
    ''')
a(f'''
v_mov_b32 v{T[4]}, {MARK}
v_lshlrev_b32 v{vL16}, 4, v{vLN}
{isF} s{sWV}, 4
s_cbranch_scc1 L_F0
; ---- L: x rows
s_mul_i32 s{sT1}, s{sWI}, 5
v_add_u32 v{T[0]}, s{sT1}, v{T[0]}
v_bfe_u32 v{T[2]}, v{T[0]}, 2, 2
v_xor_b32 v{T[1]}, v{T[1]}, v{T[2]}
s_sub_u32 s{sT1}, s{sX0}, 2
v_add_u32 v{T[0]}, s{sT1}, v{T[0]}
v_mul_u32_u24 v{T[2]}, 192, v{T[0]}
v_cmp_gt_u32 vcc, 224, v{T[0]}
v_lshl_add_u32 v{T[2]}, v{T[1]}, 4, v{T[2]}
s_mul_i32 s{sXM}, s{sWI}, 960
s_add_u32 m0, s{sXM}, {XB}
s_movk_i32 s{sXM}, {XROW}
s_mov_b32 s99, 43008
v_cndmask_b32 v{vXO}, v{T[4]}, v{T[2]}, vcc
s_sub_u32 s{sT1}, s{sY0}, 2
s_mul_i32 s{sT1}, s{sT1}, s99
v_add_u32 v{vXO}, s{sT1}, v{vXO}
s_mov_b32 s{sX+2}, {XBYTES}
s_mov_b32 s{sX+3}, 0x00020000
s_mov_b32 exec_hi, 0x0fffffff
s_waitcnt lgkmcnt(0)
{ap('Lk')}
s_mov_b64 s[{sX}:{sX+1}], s[4:5]
''')
xl = [0]
def xrows(n):
    for _ in range(n):
        t = xl[0]; xl[0] += 1
        if t:
            a(f's_add_u32 m0, m0, s{sXM}')
            a(f'v_add_u32 v{vXO}, s99, v{vXO}')
        a(f'buffer_load_dwordx4 v{vXO}, {srd(sX)}, 0 offen{XPOL} lds')
NX0 = int(opt('nx0', 12))
if opt('amp') == 'x1':
    xrows(1); a('s_waitcnt vmcnt(0)'); a(ap('x1')); xrows(NX0 - 1)
else:
    xrows(NX0)
for k_ in (4, 8, 12, 17):
    if opt('amp') == f'x{k_}': a(f's_waitcnt vmcnt({NX0 - k_})'); a(ap(f'x{k_}'))
a(ap('Li'))
stamp(1)
a(f'''
s_branch L_L
L_F0:
; ---- F: conv weight tables, rows w and w+4 of both
s_setprio {opt("fprio", 2)}
s_mul_i32 s{sT3}, s{sWI}, 960
v_add_u32 v{T[2]}, s{sT3}, v{vL16}
s_mul_i32 s{sT3}, s{sWI}, 576
s_sub_u32 s{sT3}, s{sT3}, {2*576 + 192}
v_mov_b32 v{T[3]}, {MARK}
s_mov_b32 exec_lo, 0xfffff000
s_mov_b32 exec_hi, 0xffff
v_add_u32 v{T[3]}, s{sT3}, v{vL16}
v_add_u32 v{T[4]}, {4*576}, v{T[3]}
s_mov_b32 exec_lo, -1
s_mov_b32 exec_hi, 0x0fffffff
v_add_u32 v{T[1]}, {4*960}, v{T[2]}
s_mul_i32 s{sT3}, s{sWI}, {TP}
s_mov_b32 s{sDS+2}, 4800
s_mov_b32 s{sDS+3}, 0x00020000
s_mov_b32 s{sDL+2}, 1728
s_mov_b32 s{sDL+3}, 0x00020000
s_add_u32 m0, s{sT3}, {TB + 8*TP}
s_mul_i32 s{sT0}, s{sY0}, 43008
s_waitcnt lgkmcnt(0)
{TOUCH}
s_mov_b64 s[{sDS}:{sDS+1}], s[8:9]
s_mov_b64 s[{sDL}:{sDL+1}], s[6:7]
buffer_load_dwordx4 v{T[2]}, {srd(sDS)}, 0 offen lds
s_add_u32 m0, s{sT3}, {TB}
s_mul_i32 s{sIMG}, s{sWI}, 6144
buffer_load_dwordx4 v{T[3]}, {srd(sDL)}, 0 offen lds
s_add_u32 m0, s{sT3}, {TB + 12*TP}
s_mov_b32 s{sOB}, {OUTF}
buffer_load_dwordx4 v{T[1]}, {srd(sDS)}, 0 offen lds
s_add_u32 m0, s{sT3}, {TB + 4*TP}
s_nop 0
buffer_load_dwordx4 v{T[4]}, {srd(sDL)}, 0 offen lds
s_mov_b32 exec_hi, -1
''')
WPF = opt('wpf', '0') == '1'
if PFM in ('f', 'g'):
    if PFM == 'g': a(f's_cmp_eq_u32 s{sH13}, 13\ns_cselect_b32 s97, 1, 0xfffff')
    a(f'''
    s_bfe_u32 s{sT3}, s2, 0x20003
    s_lshl_b32 s{sT3}, s{sT3}, 2
    s_add_u32 s{sT3}, s{sT3}, s{sWI}
    s_mul_i32 s{sT3}, s{sT3}, {20*128}
    v_lshl_add_u32 v{T[1]}, v{vLN}, 7, s{sT3}
    v_min_u32 v{T[1]}, L_end-L_pc, v{T[1]}
    {'s_mov_b64 exec, 0xfffff' if PFM == 'f' else f's_cmp_eq_u32 s{sH13}, 13'+chr(10)+f's_cselect_b32 s{sT3}, 0, -1'+chr(10)+f'v_and_b32 v{T[1]}, s{sT3}, v{T[1]}'+chr(10)+'s_mov_b32 exec_lo, s97'+chr(10)+'s_mov_b32 exec_hi, 0'}
    global_load_dword v{vPF}, v{T[1]}, s[100:101]
    s_mov_b64 exec, -1
    ''')
if WPF:
    a(f'''
    s_and_b32 s{sT0}, s{sWI}, 1
    s_cselect_b64 s[{sT1}:{sT2}], s[12:13], s[10:11]
    s_lshr_b32 s{sT0}, s2, 3
    s_lshl_b32 s{sT0}, s{sT0}, 1
    s_lshr_b32 s{sT3}, s{sWI}, 1
    s_add_u32 s{sT0}, s{sT0}, s{sT3}
    s_mul_i32 s{sT0}, s{sT0}, {10*128}
    v_lshl_add_u32 v{T[0]}, v{vLN}, 7, s{sT0}
    v_min_u32 v{T[0]}, {73728-128}, v{T[0]}
    s_mov_b64 exec, 0x3ff
    global_load_dword v{vPF-1}, v{T[0]}, s[{sT1}:{sT2}]
    s_mov_b64 exec, -1
    ''')
a(ap('Ft'))
if opt('amp') == 'tab': a('s_waitcnt vmcnt(0)'); a(ap('tab'))
conv_setup1()
a(ap('Fc'))
OPF = opt('opf', '0') == '1'
if OPF:
    a(f'''
    s_mov_b64 exec, 1
    buffer_load_dword v{vPF-2}, v{vL16}, {srd(sOUT)}, s{sO0} offen
    s_mov_b64 exec, -1
    ''')
vFR = [48, 49, 50, 51]
vDW1[:] = [56, 57]; vDW2[:] = [58, 59, 60]
def f_setup1():
    a(f'''
    s_add_u32 s{sO1}, s{sO0}, {4*43008}
    v_lshrrev_b32 v{T[4]}, 5, v{vLN}
    v_bfe_u32 v{T[0]}, v{vLN}, 2, 2
    v_bfe_u32 v{T[1]}, v{vLN}, 4, 1
    v_and_b32 v{T[2]}, 3, v{vLN}
    v_lshl_add_u32 v{T[3]}, v{T[4]}, 4, v{T[0]}
    v_lshlrev_b32 v{T[3]}, 7, v{T[3]}
    v_lshl_add_u32 v{T[3]}, v{T[1]}, 5, v{T[3]}
    v_lshl_add_u32 v{T[3]}, v{T[2]}, 3, v{T[3]}
    v_bfe_u32 v{T[2]}, v{vLN}, 3, 1
    v_lshl_add_u32 v{vAW1[0]}, v{T[2]}, 6, v{T[3]}
    v_xor_b32 v{vAW1[1]}, 64, v{vAW1[0]}
    v_xor_b32 v{vAW1[2]}, 32, v{vAW1[0]}
    v_xor_b32 v{vAW1[3]}, 0x60, v{vAW1[0]}
    v_lshl_add_u32 v{T[3]}, v{T[4]}, 2, v{T[0]}
    v_mul_u32_u24 v{T[3]}, 192, v{T[3]}
    v_lshl_add_u32 v{T[3]}, v{T[1]}, 4, v{T[3]}
    v_and_b32 v{T[2]}, 1, v{vLN}
    v_xor_b32 v{T[2]}, v{T[2]}, v{T[4]}
    v_lshl_add_u32 v{T[3]}, v{T[2]}, 5, v{T[3]}
    v_bfe_u32 v{T[2]}, v{vLN}, 1, 1
    v_lshl_add_u32 v{T[3]}, v{T[2]}, 3, v{T[3]}
    v_add_u32 v{vAW2}, 12288, v{T[3]}
    s_mul_i32 s{sT2}, s{sWI}, 3072
    s_add_u32 s{sT2}, s{sT2}, {OUTF}
    s_mul_i32 s{sT1}, s{sWI}, {XROW}
    s_add_u32 s{sT1}, s{sT1}, {XB + 2*XROW + 384}
    v_lshlrev_b32 v{T[4]}, 1, v{T[4]}
    v_xor_b32 v{T[0]}, v{T[4]}, v{T[0]}
    v_and_b32 v{T[3]}, 15, v{vLN}
    v_mul_u32_u24 v{T[3]}, 192, v{T[3]}
    v_lshl_add_u32 v{T[0]}, v{T[0]}, 4, v{T[3]}
    v_lshl_add_u32 v{T[0]}, v{T[2]}, 3, v{T[0]}
    v_mul_u32_u24 v{T[2]}, {4*3072}, v{T[1]}
    v_add3_u32 v{vFR[0]}, v{T[0]}, v{T[2]}, s{sT2}
    v_xor_b32 v{vFR[1]}, 8, v{vFR[0]}
    v_xor_b32 v{vFR[2]}, 16, v{vFR[0]}
    v_xor_b32 v{vFR[3]}, 24, v{vFR[0]}
    v_add_u32 v{T[0]}, 2, v{vLN}
    v_bfe_u32 v{T[0]}, v{T[0]}, 2, 2
    v_xor_b32 v{T[0]}, v{T[4]}, v{T[0]}
    v_lshl_add_u32 v{T[0]}, v{T[0]}, 4, v{T[3]}
    v_mul_u32_u24 v{T[2]}, {4*XROW}, v{T[1]}
    v_add3_u32 v{vAR[0]}, v{T[0]}, v{T[2]}, s{sT1}
    v_xor_b32 v{vAR[1]}, 16, v{vAR[0]}
    v_bfe_u32 v{T[0]}, v{vLN}, 1, 2
    v_xor_b32 v{T[0]}, v{T[4]}, v{T[0]}
    v_lshl_add_u32 v{T[0]}, v{T[0]}, 4, v{T[3]}
    v_mul_u32_u24 v{T[2]}, 3072, v{T[1]}
    v_add3_u32 v{vSW[0]}, v{T[0]}, v{T[2]}, s{sIMG}
    v_xor_b32 v{vSW[1]}, 16, v{vSW[0]}
    ''')
def f_setup2():
    a(f'''
    v_and_b32 v{T[1]}, 1, v{vLN}
    v_lshlrev_b32 v{T[1]}, 4, v{T[1]}
    v_mov_b32 v{T[2]}, 0x3f80
    v_lshlrev_b32 v{T[1]}, v{T[1]}, v{T[2]}
    ''')
    for i in range(4): a(f'v_mov_b64 {vr(vID+2*i,2)}, 0')
    for i in range(8):
        pos = 16 * (i >> 2) + 8 * ((i >> 1) & 1) + 2 * (i & 1)
        setexec(3 << pos, 3 << (pos + 4))
        a(f'v_mov_b32 v{vID+i}, v{T[1]}')
    a('s_mov_b64 exec, -1')
FS = opt('fs', '00001')
fsl = [conv_setup2, late_setup, f_setup2, f_setup1, dma_setup]
def fsetup(k):
    for f, c in zip(fsl, FS):
        if int(c) == k: f()
fsetup(0)
a(ap('Fs'))
stamp(1)
a(f's_waitcnt vmcnt({(1 if WPF else 0) + (1 if PFM in "fg" else 0) + (1 if OPF else 0)}) lgkmcnt(0)')
a(ap('Fl'))
pstamp(9)
bar(2)
cv = Conv(0)
for gi in range(3): tab_reads(gi, cv.ds)
S0 = stage([('F',0,[0]), ('F',1,[0,1])])
cv.run(S0, 0)
def res_half(s):
    m = 0xffff0000 if s else 0xffff
    setexec(m, m)
    for ks in range(6):
        cv.ds(f'ds_read_b128 {vr(vRES+4*ks,4)}, v{vAR[ks&1]} offset:{64*(ks>>1)}')
    a('s_mov_b64 exec, -1')
def run_stage(left, frags, pairs, keep=0, mid=None):
    its = left + stage(frags)
    if pairs: add_pub(its, len(left), len(frags), pairs)
    if mid: its[mid[0]]['post'] = mid[1]
    return cv.run(its, len(its) - keep)
left = cv.run(S0, len(S0) - int(opt('keep0', 0)))
fsetup(1)
pstamp(10)
bar(3)
left = run_stage(left, [('F',2,[0,1,2]), ('F',3,[1,2,3]), ('E',0,[0,1])], [0, 1])
fsetup(2)
pstamp(11)
bar(4)
a(f's_setprio {opt("fprio2", 3)}')
left = run_stage(left, [('F',4,[2,3]), ('F',5,[3]), ('E',2,[2,3])], [2, 3])
signal(1)
a('s_waitcnt vmcnt(0)')
wdma(0, [0, 1, 2])
stamp(5)
poll(GF, 1)
RA = 168
for ks in range(6):
    a(f'ds_read_b64 {vr(RA+4*ks,2)}, v{vFR[2*(ks&1)]} offset:{64*(ks>>1)}')
    a(f'ds_read_b64 {vr(RA+4*ks+2,2)}, v{vFR[2*(ks&1)+1]} offset:{64*(ks>>1)}')
a(f's_setprio {opt("fprio3", 1)}')
wdma(1, [0, 1, 2])
a('s_waitcnt lgkmcnt(0)')
stamp(6)
def f_mid():
    for ks in range(6):
        a(f'ds_read_b128 {vr(vRES+4*ks,4)}, v{vAR[ks&1]} offset:{64*(ks>>1)}')
    landed(0, 2)
    wdma(0, [3, 4, 5]); wdma(1, [3, 4, 5])
    peek(GF)
def f_mid2():
    a('s_waitcnt lgkmcnt(0)')
    check(GF, 2)
    f_w1reads0()
ln(RA, 72, [vL + i for i in range(24)], False, f_mid, f_mid2)
stamp(8)
XH = {
  'start3': [lambda: landed(0, 3)],
  ('T1', 0): [lambda: peek(GF)],
  ('preT2', 0): [lambda: check(GF, 3)],
  ('T1', 1): [lambda: stamp(9)],
  ('T2', 1): [lambda: peek(GL)],
  ('preT1', 2): [lambda: check(GL, 6)],
  ('preT1', 4): [lambda: signal(4)],
  ('T1', 4): [lambda: peek(GL)],
  ('preT2', 4): [lambda: check(GL, 7)],
  ('T2', 5): [lambda: peek(GL)],
  ('preT1', 6): [lambda: check(GL, 8), lambda: stamp(10)],
  ('preT1', 8): [lambda: stamp(11)],
  ('T2', 8): [lambda: peek(GF)],
  ('preT1', 9): [lambda: check(GF, 4)],
  ('preT1', 10): [lambda: stamp(12)],
}
FP = opt('fp', 'n')
def fprio(c):
    if FP == 'n': return (0, 0) if c == 0 else None
    if FP == 's': return (1, 1) if c == 0 else None
    return (0, int(FP))
mlp32(XH, fprio)
stamp(13)
P = vY[0]; Q = vK[0]
for mt in range(3):
    for i in range(8):
        a(f'v_cvt_pk_bf16_f32 v{P+8*mt+i}, v{vO+16*mt+2*i}, v{vO+16*mt+2*i+1}')
    a(f'ds_write_b128 v{vSW[0]}, {vr(P+8*mt,4)} offset:{64*mt}')
    a(f'ds_write_b128 v{vSW[1]}, {vr(P+8*mt+4,4)} offset:{64*mt}')
for s in range(2):
    for j in range(3):
        a(f'ds_read_b128 {vr(Q+4*(3*s+j),4)}, v{vSR[j]} offset:{3072*s}')
for s in range(2):
    for j in range(3):
        a(f's_waitcnt lgkmcnt({5-(3*s+j)})')
        a(f'buffer_store_dwordx4 {vr(Q+4*(3*s+j),4)}, v{vL16}, {srd(sOUT)}, s{sO1 if s else sO0} offen offset:{1024*j}{STPOL}')
finish()
emit_slow()

a.label('L_L')
cv = Conv(4)
vDW1[:] = [220, 221]; vDW2[:] = [222, 223, 224]
vA0, vA2 = 48, 50
RR = 60
def l_setup():
    a(f'''
    s_add_u32 s{sO0}, s{sO0}, {8*43008}
    s_and_b32 s{sT1}, s{sWI}, 1
    v_lshrrev_b32 v{T[4]}, 4, v{vLN}
    v_bfe_u32 v{T[0]}, v{vLN}, 2, 2
    v_and_b32 v{T[2]}, 3, v{vLN}
    v_bfe_u32 v{T[1]}, v{vLN}, 4, 1
    v_lshlrev_b32 v{T[2]}, 3, v{T[2]}
    v_lshl_add_u32 v{T[2]}, v{T[1]}, 5, v{T[2]}
    v_lshl_add_u32 v{T[3]}, v{T[4]}, 3, v{T[0]}
    v_lshl_add_u32 v{T[3]}, v{T[3]}, 7, v{T[2]}
    v_bfe_u32 v{T[1]}, v{vLN}, 3, 1
    v_xor_b32 v{T[1]}, s{sT1}, v{T[1]}
    v_lshl_add_u32 v{T[3]}, v{T[1]}, 6, v{T[3]}
    s_lshr_b32 s{sT2}, s{sWI}, 1
    s_mul_i32 s{sT2}, s{sT2}, {PS}
    s_sub_u32 s{sT3}, {PS}, s{sT2}
    v_add_u32 v{vLW1}, s{sT2}, v{T[3]}
    v_add_u32 v{vLW1+4}, s{sT3}, v{T[3]}
    v_xor_b32 v{vLW1+1}, 32, v{vLW1}
    v_xor_b32 v{vLW1+2}, 64, v{vLW1}
    v_xor_b32 v{vLW1+3}, 0x60, v{vLW1}
    v_xor_b32 v{vLW1+5}, 32, v{vLW1+4}
    v_xor_b32 v{vLW1+6}, 64, v{vLW1+4}
    v_xor_b32 v{vLW1+7}, 0x60, v{vLW1+4}
    v_lshl_add_u32 v{T[3]}, v{T[4]}, 2, v{T[0]}
    v_mul_u32_u24 v{T[3]}, 192, v{T[3]}
    v_add_u32 v{T[3]}, v{T[3]}, v{T[2]}
    s_mul_i32 s{sT1}, s{sT1}, 6144
    s_add_u32 s{sT2}, s{sT2}, 12288
    s_add_u32 s{sT3}, s{sT3}, 12288
    s_add_u32 s{sT0}, s{sT2}, s{sT1}
    v_add_u32 v{vLW2}, s{sT0}, v{T[3]}
    s_add_u32 s{sT0}, s{sT3}, s{sT1}
    v_add_u32 v{vLW2+4}, s{sT0}, v{T[3]}
    s_sub_u32 s{sT1}, 6144, s{sT1}
    s_add_u32 s{sT0}, s{sT2}, s{sT1}
    v_add_u32 v{vLW2+2}, s{sT0}, v{T[3]}
    s_add_u32 s{sT0}, s{sT3}, s{sT1}
    v_add_u32 v{vLW2+6}, s{sT0}, v{T[3]}
    v_xor_b32 v{vLW2+1}, 32, v{vLW2}
    v_xor_b32 v{vLW2+3}, 32, v{vLW2+2}
    v_xor_b32 v{vLW2+5}, 32, v{vLW2+4}
    v_xor_b32 v{vLW2+7}, 32, v{vLW2+6}
    v_xor_b32 v{T[0]}, v{T[4]}, v{T[0]}
    v_and_b32 v{T[3]}, 15, v{vLN}
    v_mul_u32_u24 v{T[3]}, 192, v{T[3]}
    v_lshl_add_u32 v{T[0]}, v{T[0]}, 4, v{T[3]}
    v_add_u32 v{vARL}, {L12}, v{T[0]}
    v_bfe_u32 v{T[1]}, v{vLN}, 1, 1
    v_lshl_add_u32 v{T[0]}, v{T[1]}, 3, v{T[0]}
    v_add_u32 v{vA2}, {L12}, v{T[0]}
    v_xor_b32 v{vA2+1}, 8, v{vA2}
    v_add_u32 v{vA0}, s{sIMG}, v{T[0]}
    v_xor_b32 v{vA0+1}, 8, v{vA0}
    s_mul_i32 s{sT0}, s{sWI}, {XROW}
    v_bfe_u32 v{T[1]}, v{vLN}, 4, 1
    v_lshl_add_u32 v{T[3]}, v{T[1]}, 3, v{T[3]}
    v_lshrrev_b32 v{T[4]}, 5, v{vLN}
    v_bfe_u32 v{T[0]}, v{vLN}, 1, 2
    v_xor_b32 v{T[0]}, v{T[4]}, v{T[0]}
    v_lshl_add_u32 v{T[0]}, v{T[0]}, 4, v{T[3]}
    v_add_u32 v{vSW[0]}, s{sIMG}, v{T[0]}
    v_xor_b32 v{vSW[1]}, 32, v{vSW[0]}
    v_add_u32 v{T[0]}, 2, v{vLN}
    v_bfe_u32 v{T[0]}, v{T[0]}, 2, 2
    v_xor_b32 v{T[0]}, v{T[4]}, v{T[0]}
    v_lshl_add_u32 v{T[0]}, v{T[0]}, 4, v{T[3]}
    s_add_u32 s{sT0}, s{sT0}, {XB + 384}
    v_add_u32 v{vAR[0]}, s{sT0}, v{T[0]}
    v_xor_b32 v{vAR[1]}, 32, v{vAR[0]}
    ''')

a(f'''
s_mov_b32 exec_hi, -1
s_mul_i32 s{sIMG}, s{sWI}, 3072
s_add_u32 s{sIMG}, s{sIMG}, {S_IL}
s_mov_b32 s{sOB}, {OUTL}
''')
LS = opt('ls', '02002')
lsl = [conv_setup1, dma_setup, conv_setup2, late_setup, l_setup]
def lsetup(k):
    for f, c in zip(lsl, LS):
        if int(c) == k: f()
lsetup(0)
a(ap('Ls'))
pstamp(14)
a(f's_waitcnt vmcnt({NX0 - 4})')
a(ap('Ll'))
pstamp(9)
bar(2)
if NX0 < 17:
    a('s_mov_b32 exec_hi, 0x0fffffff')
    xrows(17 - NX0)
    a('s_mov_b32 exec_hi, -1')
lsetup(1)
for gi in range(3): tab_reads(gi, cv.ds)
pstamp(10)
a('s_waitcnt vmcnt(9)')
pstamp(11)
bar(3)
lsetup(2)
pstamp(12)
a('s_waitcnt vmcnt(0) lgkmcnt(0)')
pstamp(13)
bar(4)
a(f's_setprio {opt("lprio", 2)}')
RED, LNW = 1, 3
def raw_reads(R, ad, off=0):
    for ks in range(3):
        a(f'ds_read_b64 {vr(R+4*ks,2)}, v{ad} offset:{off+64*ks}')
        a(f'ds_read_b64 {vr(R+4*ks+2,2)}, v{ad+1} offset:{off+64*ks}')
def row_store(O, soff, P=vY[0], Q=vK[0]):
    for i in range(12):
        a(f'v_cvt_pk_bf16_f32 v{P+i}, v{O+2*i}, v{O+2*i+1}')
    for i in range(6):
        a(f'ds_write_b64 v{vSW[i&1]}, {vr(P+2*i,2)} offset:{64*(i>>1)}')
    for j in range(3):
        a(f'ds_read_b128 {vr(Q+4*j,4)}, v{vSR[j]}')
    for j in range(3):
        a(f's_waitcnt lgkmcnt({2-j})')
        a(f'buffer_store_dwordx4 {vr(Q+4*j,4)}, v{vL16}, {srd(sOUT)}, s{soff} offen offset:{1024*j}{STPOL}')
LP = opt('lp', 'k')
def lprio(c):
    if LP == 'n': return (0, 0) if c == 0 else None
    if LP == 's': return (1, 1) if c == 0 else None
    if LP == 'k':
        lo, hi = [int(x) for x in opt('lk', '0,9').split(',')]
        if lo <= c < hi: return (0, 1)
        return (0, 0) if c in (0, hi) else None
    return (0, int(LP))
def l_body(h13):
    global cv
    keep = cv
    cv = copy.copy(keep)
    sfx = 'a' if h13 else 'b'
    if h13:
        frags = [('F',4,[4]), ('F',5,[4,5]), ('F',6,[4,5,6]), ('F',7,[5,6]), ('E',4,[4,5]), ('F',8,[6]), ('L',6,[6])]; pairs = [4, 5, 6]
    else:
        frags = [('F',4,[4]), ('F',5,[4,5]), ('F',6,[4,5]), ('F',7,[5]), ('E',4,[4,5])]; pairs = [4, 5]
    its = stage(frags)
    add_pub(its, 0, len(frags), pairs)
    def resr():
        for i in range(6):
            cv.ds(f'ds_read_b64 {vr(RR+2*i,2)}, v{vAR[i&1]} offset:{10*XROW+64*(i>>1)}')
        if h13:
            for i in range(6):
                cv.ds(f'ds_read_b64 {vr(RR+12+2*i,2)}, v{vAR[i&1]} offset:{(14-RED)*XROW+64*(i>>1)}')
    if opt('lc'):
        nf = len(frags)
        for j, idx in ((9, 0), (10, nf - 1), (11, nf), (12, 2 * nf - 1), (13, 2 * nf)):
            its[idx]['post'] = lambda j=j: _st(j)
    if '3' in LS:
        cv.run(its, 0)
        lsetup(3)
    cv.run(its)
    stamp(6)
    signal(2)
    resr()
    stamp(5)
    poll(GL, 2)
    stamp(7)
    RAW = 168
    raw_reads(RAW, vA0)
    for i in range(12):
        a(f'v_lshlrev_b32 v{vO+2*i}, 16, v{RR+i}\nv_and_b32 v{vO+2*i+1}, 0xffff0000, v{RR+i}')
    if h13:
        a(f's_cmp_eq_u32 s{sWI}, {RED}\ns_cbranch_scc1 L_ri{sfx}')
        for i in range(12): a(f'v_mov_b64 {vr(vO+24+2*i,2)}, 0')
        a(f's_branch L_rj{sfx}')
        a.label(f'L_ri{sfx}')
        for i in range(12):
            a(f'v_lshlrev_b32 v{vO+24+2*i}, 16, v{RR+12+i}\nv_and_b32 v{vO+24+2*i+1}, 0xffff0000, v{RR+12+i}')
        a.label(f'L_rj{sfx}')
    signal(3)
    if h13: raw_reads(RAW + 12, vA2)
    a(f's_waitcnt lgkmcnt({7 if h13 else 1})')
    def l_mid2():
        a('s_waitcnt lgkmcnt(0)')
        check(GF, 2)
        l_w1reads(0)
    ln(RAW, 72, [vL + i for i in range(12)], True, lambda: peek(GF), l_mid2)
    if h13:
        a(f's_cmp_lg_u32 s{sWI}, {LNW}\ns_cbranch_scc1 L_nl12')
        ln(RAW + 12, 72, [RAW + 12 + i for i in range(12)], True)
        for ks in range(3):
            a(f'ds_write_b128 v{vARL}, {vr(RAW+12+4*ks,4)} offset:{64*ks}')
        a.label('L_nl12')
        signal(5)
    stamp(8)
    def l12r():
        for ks in range(3):
            a(f'ds_read_b128 {vr(vL+12+4*ks,4)}, v{vARL} offset:{64*ks}')
    def pub_rem():
        a(f's_cmp_eq_u32 s{sWI}, {RED}\ns_cbranch_scc1 L_np\ns_mul_i32 s{sT0}, s{sWI}, 6144\nv_add_u32 v{T[0]}, s{sT0}, v{vL16}')
        for i in range(6):
            a(f'ds_write_b128 v{T[0]}, {vr(vO+24+4*i,4)} offset:{S_R + 1024*i}')
        a.label('L_np')
        signal(9)
    H = {
      'start3': [lambda: peek(GL)],
      ('preT1', 0): [lambda: check(GL, 3)],
      ('T1', 0): [lambda: wdma(2, [0, 1, 2]), lambda: wdma(3, [0, 1, 2]), lambda: peek(GF)],
      ('preT2', 0): [lambda: check(GF, 3)],
      ('T2', 0): [lambda: wdma(2, [3, 4, 5])] + ([lambda: peek(GL)] if h13 else []),
      ('preT1', 1): [lambda: check(GL, 5)] if h13 else [],
      ('T1', 1): [lambda: wdma(3, [3, 4, 5]), lambda: stamp(9)] + ([l12r] if h13 else []),
      ('preT2', 1): [lambda: landed(6, 6)],
      ('T2', 1): [lambda: wdma(4, [0, 1, 2]), lambda: peek(GL)],
      ('preT1', 2): [lambda: check(GL, 6)],
      ('T1', 2): [lambda: wdma(4, [3, 4, 5])],
      ('T2', 2): [lambda: wdma(5, [0, 1, 2])],
      ('preT1', 3): [lambda: landed(9, 7)],
      ('T1', 3): [lambda: wdma(5, [3, 4, 5])],
      ('T1', 4): [lambda: peek(GL)],
      ('preT2', 4): [lambda: check(GL, 7), lambda: landed(0, 8)],
      ('T2', 5): [lambda: peek(GL)],
      ('preT1', 6): [lambda: check(GL, 8), lambda: stamp(10)],
      ('preT1', 8): [lambda: stamp(11)],
      ('preT1', 10): [lambda: stamp(12)],
    }
    if h13:
        H[('T2', 9)] = [lambda: peek(GF)]
        H[('preT1', 10)] = H[('preT1', 10)] + [lambda: check(GF, 4), pub_rem]
        def reduce12():
            a(f's_cmp_lg_u32 s{sWI}, {RED}\ns_cbranch_scc1 L_nored')
            poll(GL, 9)
            others = [w for w in range(4) if w != RED]
            R = [144, 48, 144]
            def rd(n):
                for i in range(6):
                    a(f'ds_read_b128 {vr(R[n]+4*i,4)}, v{vL16} offset:{S_R + 6144*others[n] + 1024*i}')
            def ad(n):
                for i in range(24):
                    a(f'v_add_f32 v{vO+24+i}, v{vO+24+i}, v{R[n]+i}')
            rd(0); rd(1)
            a('s_waitcnt lgkmcnt(6)'); ad(0); rd(2)
            a('s_waitcnt lgkmcnt(6)'); ad(1)
            a('s_waitcnt lgkmcnt(0)'); ad(2)
            a(f's_add_u32 s{sO1}, s{sO0}, {(4-RED)*43008}')
            row_store(vO + 24, sO1, 48, 144)
            a.label('L_nored')
        H[('T1', 11)] = [reduce12]
    mlp16([3, 5, 8] if h13 else [], H, lprio)
    stamp(13)
    row_store(vO, sO0)
    finish()
    emit_slow()
    cv = keep
a(f's_cmp_lg_u32 s{sH13}, 13\ns_cbranch_scc1 L_L12')
l_body(True)
a.label('L_L12')
l_body(False)
a.label('L_end')
a('s_endpgm')

body = a.finalize()
hdr = open('cdna_kernels/' + NAME + '.s.ref').read().split('\n')
out = []
for l in hdr:
    if l.startswith('; @launch'):
        out.append('; @launch grid=(256,1,1) block=(512,1,1) lds=163840')
    elif l.startswith(';'):
        out.append(l)
    else:
        break
out.append('.amdgcn_target "amdgcn-amd-amdhsa--gfx950"')
out.append('.text')
out.append(f'.globl {NAME}_kernel')
out.append('.p2align 8')
out.append(f'.type {NAME}_kernel,@function')
out.append(f'{NAME}_kernel:')
for l in body:
    out.append(l if l.endswith(':') else '    ' + l)
out.append(f'''.section .rodata,"a"
.p2align 6
.amdhsa_kernel {NAME}_kernel
  .amdhsa_next_free_vgpr 256
  .amdhsa_next_free_sgpr 102
  .amdhsa_accum_offset 256
  .amdhsa_group_segment_fixed_size 0
  .amdhsa_kernarg_size 64
  .amdhsa_user_sgpr_count 2
  .amdhsa_user_sgpr_kernarg_segment_ptr 1
  .amdhsa_system_sgpr_workgroup_id_x 1
.end_amdhsa_kernel''')
print('\n'.join(out))
```

```python
import sys, struct, math, copy
from asmlib import Asm

NAME = "standalone__modern_conv_block_replknet__vision"
def fbits(x): return struct.unpack('<I', struct.pack('<f', x))[0]
def opt(name, default=None):
    for x in sys.argv:
        if x == '--' + name: return True
        if x.startswith('--' + name + '='): return x.split('=', 1)[1]
    return default
STAMP = opt('stamp'); CYC = opt('cyc'); PRO = opt('pro')
STPOL = ' ' + opt('stpol', 'sc1').replace('_', ' ') if opt('stpol', 'sc1') != 'none' else ''
FOLD = opt('fold', '1') == '1'
GL, GF = (1, 0) if FOLD else (0, 1)

XPOL = ' ' + opt('xpol').replace('_', ' ') if opt('xpol') else ''
XROW = 3840
XB = 73728
PS = 24576
TB, TP = 139264, 976
OUTF, OUTL = 49152, 147456
L12 = OUTL + 4*3072
FL = 163584
S_IF, S_R, S_IL = 0, 24576, OUTL
MARK = 0x40000000
XBYTES = 224 * 224 * 192

k0 = math.sqrt(2.0 / math.pi); k1 = 0.044715
c0 = 2 * k0 / math.log(2.0); c1 = c0 * k1
ga = c1 ** (1.0 / 3.0)
gc = -c0 / ga

sX, sDL, sDS, sW1, sW2, sOUT = 16, 20, 24, 28, 32, 36
sWV, sY0, sX0, sT0, sT1, sT2, sT3 = 40, 41, 42, 43, 44, 45, 46
sH13, sWI = 47, 3
sCA, sCC = 48, 50
sWS = 52
sXM, sIMG, sOB = 56, 57, 62
sWA, sWBm = 58, 59
sO0, sO1 = 60, 61
sST = 64
NST = 16
def srd(b): return f's[{b}:{b+3}]'
vO, vL, vY, vK, vG, vF1, vF2 = 0, 48, [72, 88], [104, 120], 136, 144, 168
vRES, vID = 204, 228
vAW1 = [236, 237, 245, 249]; vAW2 = 238
vLW1 = 204; vLW2 = 212
vDW1 = [220, 221]; vDW2 = [222, 223, 224]
vARL = 225
vSW = [239, 240]; vSR = [241, 242, 243]
vL16 = 244
vFA, vFW, vFP = 246, 247, 248
T = [250, 251, 252, 253, 254]
vLN = 255
vXO = 203; vPF = 54
vAF, vAE, vAO, vIDX, vTF0, vTF1, vTE, vAR, vAE16, vAO1 = 192, 193, 194, 195, 196, 197, 198, [199, 200], 201, 202
vACC, vAFR, vB = 0, 84, 144
def vr(b, n): return f'v[{b}:{b+n-1}]'

a = Asm()
def _st(i): a(f'{"s_memtime" if CYC else "s_memrealtime"} s[{sST+2*i}:{sST+2*i+1}]')
def pstamp(i):
    if STAMP and PRO and not opt('lc'): _st(i)
def ap(n):
    return 's_memrealtime s[88:89]' if opt('amp') == n else ''
def stamp(i):
    a(ap(str(i)))
    if i in (8, 13): hold(i)
    if STAMP and not (PRO and 9 <= i <= 14): _st(i)
def mksrd(b, lo, n):
    a(f's_mov_b64 s[{b}:{b+1}], s[{lo}:{lo+1}]\ns_mov_b32 s{b+2}, {n}\ns_mov_b32 s{b+3}, 0x00020000')
def hold(tag):
    h = opt('hold')
    if h and h.split(':')[0] == str(tag):
        n = nlab[0]; nlab[0] += 1
        a(f's_waitcnt lgkmcnt(0)\ns_add_u32 s92, s94, {h.split(":")[1]}')
        a.label(f'L_hold{n}')
        a(f's_memrealtime s[90:91]\ns_waitcnt lgkmcnt(0)\ns_sub_u32 s93, s92, s90\ns_cmp_gt_i32 s93, 0\ns_cbranch_scc1 L_hold{n}')
def bar(i=None):
    a('s_barrier')
    hold(i)
    if i is not None: stamp(i)
def setexec(lo, hi):
    a(f's_mov_b32 exec_lo, {lo:#x}\ns_mov_b32 exec_hi, {hi:#x}')

nlab = [0]; slow = []
def guard():
    if opt('safe'): a('s_sub_u32 s98, s98, 1\ns_cbranch_scc1 L_end')
def signal(v, emit=None):
    a(f'v_mov_b32 v{T[4]}, {v}')
    (emit or a)(f'ds_write_b32 v{vFW}, v{T[4]}')
def poll(grp, v):
    lab = f'L_poll{nlab[0]}'; nlab[0] += 1
    a.label(lab)
    guard()
    a(f'ds_read_b32 v{vFP}, v{vFA} offset:{16*grp}\ns_waitcnt lgkmcnt(0)\nv_cmp_gt_u32 vcc, {v}, v{vFP}\ns_cbranch_vccnz {lab}')
def peek(grp): a(f'ds_read_b32 v{vFP}, v{vFA} offset:{16*grp}')
def check(grp, v):
    n = nlab[0]; nlab[0] += 1
    a(f'v_cmp_gt_u32 vcc, {v}, v{vFP}\ns_cbranch_vccnz L_slow{n}')
    a.label(f'L_back{n}')
    slow.append((n, grp, v))
def emit_slow():
    for n, grp, v in slow:
        a.label(f'L_slow{n}')
        guard()
        a(f'ds_read_b32 v{vFP}, v{vFA} offset:{16*grp}\ns_waitcnt lgkmcnt(0)\nv_cmp_gt_u32 vcc, {v}, v{vFP}\ns_cbranch_vccnz L_slow{n}\ns_branch L_back{n}')
    slow.clear()
def landed(n, v):
    a(f's_waitcnt vmcnt({n})'); signal(v)

def wdma(p, parts=range(6)):
    for i in parts:
        if i < 3:
            a(f'''
            s_add_u32 m0, s{sWBm}, {PS*p + 1024*i}
            s_add_u32 s{sT0}, s{sWA}, {6144*i + 128*p}
            buffer_load_dwordx4 v{vDW1[i & 1]}, {srd(sW1)}, s{sT0} offen lds
            ''')
        else:
            if i == 3 or i - 1 not in parts:
                a(f's_add_u32 m0, s{sWBm}, {PS*p + 12288}\ns_add_u32 s{sT0}, s{sWBm}, {12288*p}')
            a(f'buffer_load_dwordx4 v{vDW2[i-3]}, {srd(sW2)}, s{sT0} offen offset:{1024*(i-3)} lds')

def ln(raw, U, dst, rows16, mid=None, mid2=None):
    n = len(dst)
    S, Q, ONE = T[1], T[3], T[4]
    sc, bi = T[0], T[2]
    a(f'v_mov_b32 v{ONE}, 0x3f803f80')
    un = []
    for i in range(n):
        un.append(f'v_lshlrev_b32 v{U+2*i}, 16, v{raw+i}')
        un.append(f'v_and_b32 v{U+2*i+1}, 0xffff0000, v{raw+i}')
    while len(un) > 8: a(un.pop(0))
    for i in range(n):
        a(f'v_dot2_f32_bf16 v{S}, v{raw+i}, v{ONE}, {"0" if i == 0 else f"v{S}"}')
        a(f'v_dot2_f32_bf16 v{Q}, v{raw+i}, v{raw+i}, {"0" if i == 0 else f"v{Q}"}')
    def fill(k):
        for _ in range(k):
            if un: a(un.pop(0))
    fill(3)
    a(f'v_permlane32_swap_b32 v{S}, v{Q}')
    a(f'v_add_f32 v{S}, v{S}, v{Q}')
    if rows16:
        a(f'v_mov_b32 v{Q}, v{S}')
        fill(2)
        a(f'v_permlane16_swap_b32 v{S}, v{Q}')
        a(f'v_add_f32 v{S}, v{S}, v{Q}')
    a(f'v_mul_f32 v{S}, {fbits(1.0/96):#x}, v{S}')
    a(f'v_mov_b32 v{Q}, v{S}')
    fill(2)
    a(f'v_permlane32_swap_b32 v{S}, v{Q}')
    a(f'''
    v_fma_f32 v{Q}, -v{S}, v{S}, v{Q}
    v_max_f32 v{Q}, 0, v{Q}
    v_add_f32 v{Q}, {fbits(1e-5):#x}, v{Q}
    v_rsq_f32 v{Q}, v{Q}
    ''')
    fill(1)
    a(f'v_mul_f32 v{sc}, {fbits(ga):#x}, v{Q}')
    a(f'v_mul_f32 v{bi}, -v{S}, v{sc}')
    fill(1000)
    if mid: mid()
    for i in range(n):
        if opt('lnplain'):
            a(f'v_fma_f32 v{U+2*i}, v{U+2*i}, v{sc}, v{bi}\nv_fma_f32 v{U+2*i+1}, v{U+2*i+1}, v{sc}, v{bi}')
        else:
            a(f'v_pk_fma_f32 {vr(U+2*i,2)}, {vr(U+2*i,2)}, {vr(sc,2)}, {vr(bi,2)} op_sel_hi:[1,0,0]')
    if mid2: mid2()
    for i in range(n):
        a(f'v_cvt_pk_bf16_f32 v{dst[i]}, v{U+2*i}, v{U+2*i+1}')

def pk_t(Y, K, n):
    return [f'v_pk_fma_f32 {vr(K+2*i,2)}, {vr(Y+2*i,2)}, {vr(Y+2*i,2)}, s[{sCC}:{sCC+1}] neg_lo:[1,0,0] neg_hi:[1,0,0]' for i in range(n//2)] + pk_m(Y, K, n)
def pk_m(Y, K, n): return [f'v_pk_mul_f32 {vr(K+2*i,2)}, {vr(Y+2*i,2)}, {vr(K+2*i,2)}' for i in range(n//2)]
def pk_d(K, n): return [f'v_pk_fma_f32 {vr(K+2*i,2)}, {vr(K+2*i,2)}, s[{sCA}:{sCA+1}], s[{sCA}:{sCA+1}]' for i in range(n//2)]
def emit(l):
    for t in l: a(t)

def mlp32(hooks, prio):
    N = 12
    moved = {'w1': False, 'w2': False}
    def move(kind, c):
        if c >= 6 and not moved[kind]:
            for r in (vAW1 if kind == 'w1' else [vAW2]): a(f'v_add_u32 v{r}, {3*PS}, v{r}')
            moved[kind] = True
    def w1reads(c):
        for ks in range(6):
            off = ((c >> 1) % 3) * PS + (ks >> 1) * 4096 + (ks & 1) * 1024
            r = vAW1[(c & 1) + 2 * (ks & 1)]
            a(f'ds_read_b64_tr_b16 {vr(vF1+4*ks,2)}, v{r} offset:{off}')
            a(f'ds_read_b64_tr_b16 {vr(vF1+4*ks+2,2)}, v{r} offset:{off+512}')
    def w2reads(c):
        for i in range(6):
            ks2, mt = i // 3, i % 3
            off = ((c >> 1) % 3) * PS + (c & 1) * 6144 + ks2 * 3072 + mt * 64
            a(f'ds_read_b64_tr_b16 {vr(vF2+4*i,2)}, v{vAW2} offset:{off}')
            a(f'ds_read_b64_tr_b16 {vr(vF2+4*i+2,2)}, v{vAW2} offset:{off+1536}')
    def g1(c, ks):
        Y = vY[c & 1]
        a(f'v_mfma_f32_32x32x16_bf16 {vr(Y,16)}, {vr(vF1+4*ks,4)}, {vr(vL+4*ks,4)}, {"0" if ks == 0 else vr(Y,16)}')
    def g2(i):
        ks2, mt = i // 3, i % 3
        a(f'v_mfma_f32_32x32x16_bf16 {vr(vO+16*mt,16)}, {vr(vF2+4*i,4)}, {vr(vG+4*ks2,4)}, {vr(vO+16*mt,16)}')
    def resm(ks):
        j, mt = ks // 3, ks % 3
        a(f'v_mfma_f32_32x32x16_bf16 {vr(vO+16*mt,16)}, {vr(vID+4*j,4)}, {vr(vRES+4*(2*mt+j),4)}, {"0" if j == 0 else vr(vO+16*mt,16)}')
    def hook(k):
        for f in hooks.get(k, []): f()
    def pr(c, v):
        if prio(c) is not None: a(f's_setprio {prio(c)[v]}')
    hook('pre')
    a('s_waitcnt lgkmcnt(0)')
    for ks in range(6): g1(0, ks)
    w1reads(1)
    hook('start3')
    for c in range(N + 1):
        Y, K = vY[c & 1], vK[c & 1]
        Yp, Kp = vY[(c - 1) & 1], vK[(c - 1) & 1]
        pr(c, 1)
        if c >= 1: emit(pk_m(Yp, Kp, 16))
        if c < N: emit(pk_t(Y, K, 16))
        cv = [f'v_cvt_pk_bf16_f32 v{vG+i}, v{Kp+2*i}, v{Kp+2*i+1}' for i in range(8)] if c >= 1 else []
        if c == N:
            emit(cv)
            a('s_waitcnt lgkmcnt(0)')
            for i in (0, 3, 1, 4, 2, 5): g2(i)
            break
        ex = [f'v_exp_f32 v{K+i}, v{K+i}' for i in range(16)]
        rc = [f'v_rcp_f32 v{K+i}, v{K+i}' for i in range(16)]
        last = c + 1 >= N
        if c + 2 < N: move('w1', c + 2)
        move('w2', c)
        if c == 0:
            gaps = [ex[0:3], ex[3:6], ex[6:9], ex[9:12], ex[12:15], ex[15:16]]
            a('s_waitcnt lgkmcnt(0)')
            for j in range(6):
                g1(1, j); emit(gaps[j])
        elif not last:
            gaps = [cv[0:4] + ex[0:1], cv[4:8] + ex[1:2], ex[2:5], ex[5:8], ex[8:11], ex[11:14], ex[14:16]]
            for j in range(7):
                if j < 6: g1(c + 1, j)
                else: g2(0)
                if j == 5: a('s_waitcnt lgkmcnt(0)')
                emit(gaps[j])
        else:
            emit(cv); emit(ex[0:4])
            a('s_waitcnt lgkmcnt(0)')
            gaps = [ex[4:8], ex[8:12], ex[12:16]]
            for j in range(3):
                g2(j); emit(gaps[j])
        hook(('preT1', c))
        pr(c, 0)
        if c + 2 < N: w1reads(c + 2)
        hook(('T1', c))
        pr(c, 1)
        emit(pk_d(K, 16))
        if c == 0:
            gp = [rc[0:3], rc[3:6], rc[6:9], rc[9:12], rc[12:14], rc[14:16]]
            for j in range(6):
                resm(j)
                if j == 5: a('s_waitcnt lgkmcnt(0)')
                emit(gp[j])
        elif not last:
            gp = [rc[0:3], rc[3:6], rc[6:9], rc[9:12], rc[12:16]]
            for j in range(5):
                g2(j + 1)
                if j == 4: a('s_waitcnt lgkmcnt(0)')
                emit(gp[j])
        else:
            gp = [rc[0:3], rc[3:6], rc[6:16]]
            for j in range(3):
                g2(j + 3)
                if j == 2: w2reads(c)
                emit(gp[j])
        hook(('preT2', c))
        pr(c, 0)
        if not last: w2reads(c)
        hook(('T2', c))
    return w1reads

def f_w1reads0():
    for ks in range(6):
        off = (ks >> 1) * 4096 + (ks & 1) * 1024
        r = vAW1[2 * (ks & 1)]
        a(f'ds_read_b64_tr_b16 {vr(vF1+4*ks,2)}, v{r} offset:{off}')
        a(f'ds_read_b64_tr_b16 {vr(vF1+4*ks+2,2)}, v{r} offset:{off+512}')

def l_w1reads(s):
    for i in range(6):
        mt2, ks3 = i // 3, i % 3
        off = ((s >> 2) & 1) * 2 * PS + ks3 * 4096
        r = vLW1 + mt2 + 2 * (s & 3)
        a(f'ds_read_b64_tr_b16 {vr(vF1+4*i,2)}, v{r} offset:{off}')
        a(f'ds_read_b64_tr_b16 {vr(vF1+4*i+2,2)}, v{r} offset:{off+512}')

def mlp16(doubles, hooks, prio):
    N = 12
    def wid(s): return 0 if (s < 0 or s >= N) else (2 if s in doubles else 1)
    def move(base):
        for r in range(8): a(f'v_add_u32 v{base+r}, {4*PS}, v{base+r}')
    def w2reads(s):
        for i in range(6):
            off = ((s >> 2) & 1) * 2 * PS + 64 * (i >> 1)
            r = vLW2 + (i & 1) + 2 * (s & 3)
            a(f'ds_read_b64_tr_b16 {vr(vF2+4*i,2)}, v{r} offset:{off}')
            a(f'ds_read_b64_tr_b16 {vr(vF2+4*i+2,2)}, v{r} offset:{off+3072}')
    def m1(s):
        l = []
        for t in range(wid(s)):
            for j in range(6):
                mt2, ks3 = j & 1, j >> 1
                D = vY[s & 1] + 8 * t + 4 * mt2
                l.append(f'v_mfma_f32_16x16x32_bf16 {vr(D,4)}, {vr(vF1+4*(mt2*3+ks3),4)}, {vr(vL+12*t+4*ks3,4)}, {"0" if ks3 == 0 else vr(D,4)}')
        return l
    def m2(s):
        return [f'v_mfma_f32_16x16x32_bf16 {vr(vO+24*t+4*i,4)}, {vr(vF2+4*i,4)}, {vr(vG+4*t,4)}, {vr(vO+24*t+4*i,4)}' for t in range(wid(s)) for i in range(6)]
    def weave(ms, fl):
        fl = list(fl)
        if not ms:
            emit(fl); a('s_waitcnt lgkmcnt(0)'); return
        for j, m in enumerate(ms):
            a(m)
            if j == len(ms) - 1: a('s_waitcnt lgkmcnt(0)')
            k = -(-len(fl) // (len(ms) - j))
            emit(fl[:k]); fl = fl[k:]
    def hook(k):
        for f in hooks.get(k, []): f()
    def pr(c, v):
        if prio(c) is not None: a(f's_setprio {prio(c)[v]}')
    hook('pre')
    a('s_waitcnt lgkmcnt(0)')
    emit(m1(0))
    l_w1reads(1)
    hook('start3')
    for s in range(N + 1):
        Y, K = vY[s & 1], vK[s & 1]
        Yp, Kp = vY[(s - 1) & 1], vK[(s - 1) & 1]
        n, np_ = 8 * wid(s), 8 * wid(s - 1)
        pr(s, 1)
        emit(pk_m(Yp, Kp, np_))
        emit(pk_t(Y, K, n))
        cv = [f'v_cvt_pk_bf16_f32 v{vG+i}, v{Kp+2*i}, v{Kp+2*i+1}' for i in range(np_ // 2)]
        if s == N:
            emit(cv)
            a('s_waitcnt lgkmcnt(0)')
            emit(m2(N - 1))
            break
        ex = [f'v_exp_f32 v{K+i}, v{K+i}' for i in range(n)]
        rc = [f'v_rcp_f32 v{K+i}, v{K+i}' for i in range(n)]
        if s + 2 == 8: move(vLW1)
        if s == 8: move(vLW2)
        if s == 0: a('s_waitcnt lgkmcnt(0)')
        weave(m1(s + 1), cv + ex)
        hook(('preT1', s))
        pr(s, 0)
        if s + 2 < N: l_w1reads(s + 2)
        hook(('T1', s))
        pr(s, 1)
        emit(pk_d(K, n))
        weave(m2(s - 1), rc)
        hook(('preT2', s))
        pr(s, 0)
        w2reads(s)
        hook(('T2', s))

def finish():
    if opt('amp'):
        n = nlab[0]; nlab[0] += 1
        a(f's_waitcnt vmcnt(0) lgkmcnt(0)\ns_sub_u32 s92, s88, s94\ns_lshl_b32 s92, s92, 2\ns_cmp_eq_u32 s88, 0\ns_cselect_b32 s92, 0, s92')
        a(f's_cmp_eq_u32 s{sH13}, {opt("amprows", 13)}\ns_cselect_b32 s92, s92, 0\ns_add_u32 s92, s92, 1400\ns_add_u32 s92, s92, s94')
        a.label(f'L_amp{n}')
        a(f's_memrealtime s[90:91]\ns_waitcnt lgkmcnt(0)\ns_sub_u32 s93, s92, s90\ns_cmp_gt_i32 s93, 0\ns_cbranch_scc1 L_amp{n}')
    if STAMP:
        stamp(14)
        a('s_waitcnt vmcnt(0)')
        stamp(15)
        a('s_waitcnt lgkmcnt(0)')
        if opt('dbg'):
            n = nlab[0]; nlab[0] += 1
            a(f's_cmp_lg_u32 s2, {opt("dbg")}\ns_cbranch_scc1 L_nd{n}\ns_cmp_lg_u32 s{sWI}, 0\ns_cbranch_scc1 L_nd{n}')
            a(f's_lshl_b32 s{sT0}, s{sWV}, 3\nv_mov_b32 v{T[1]}, s{sT0}\ns_mov_b64 exec, 1')
            for k, i in enumerate((1, 2, 3, 4, 8, 10, 13, 15)):
                a(f's_sub_u32 s{sT0}, s{sST+2*i}, s{sST}\nv_mov_b32 v{T[0]}, s{sT0}')
                a(f'buffer_store_dword v{T[0]}, v{T[1]}, {srd(sWS)}, 0 offen offset:{4*k}')
            a.label(f'L_nd{n}')
            a('s_endpgm')
            return
        a(f'''
        s_lshl_b32 s{sT0}, s2, 3
        s_add_u32 s{sT0}, s{sT0}, s{sWV}
        s_lshl_b32 s{sT0}, s{sT0}, 6
        v_mov_b32 v{T[1]}, s{sT0}
        s_mov_b64 exec, 1
        ''')
        for i in range(NST):
            a(f'v_mov_b32 v{T[0]}, s{sST+2*i}')
            a(f'buffer_store_dword v{T[0]}, v{T[1]}, {srd(sWS)}, 0 offen offset:{4*i}')
    a('s_endpgm')

def tab_reads(gi, em):
    A = vAFR + 20 * gi; o = 64 * gi
    for d in range(3):
        em(f'ds_read_b64_tr_b16 {vr(A+4*d,2)}, v{vTF0} offset:{o + 2*d*TP}')
        em(f'ds_read_b64_tr_b16 {vr(A+4*d+2,2)}, v{vTF1} offset:{o + 2*d*TP}')
    for par in range(2):
        for pp in range(2):
            em(f'ds_read_b64_tr_b16 {vr(A+12+4*par+2*pp,2)}, v{vTE} offset:{o + (pp - 2*par + 2)*TP}')
RING = 6
class Conv:
    def __init__(self, k0): self.n = 0; self.slot = 0; self.k0 = k0
    def acc(self, gi, k): return vACC + 16 * gi + 4 * (k - self.k0)
    def ds(self, t): a(t); self.n += 1; return self.n
    def wait(self, seq): a(f's_waitcnt lgkmcnt({min(15, self.n - seq)})')
    def reads(self, it):
        B = it['B']; go = 64 * it['gi']; idx = it['idx']; kind = it['kind']
        if kind == 'F':
            r0, r1 = 2 * idx, min(2 * idx + 1, 16)
            return [f'ds_read_b128 {vr(B,4)}, v{vAF} offset:{r0*XROW+go}', f'ds_read_b128 {vr(B+4,4)}, v{vAF} offset:{r1*XROW+go}']
        if kind == 'E':
            return [f'ds_read_b128 {vr(B,4)}, v{vAE} offset:{2*idx*XROW+go}', f'ds_read_b128 {vr(B+4,4)}, v{vAE} offset:{(2*idx+4)*XROW+go}']
        return [f'ds_read_b128 {vr(B,4)}, v{vAE} offset:{12*XROW+go}', f'ds_read_b128 {vr(B+4,4)}, v{vAE16} offset:{16*XROW+go}']
    def cvt(self, lst):
        for gi, k in lst:
            A = self.acc(gi, k)
            a(f'v_cvt_pk_bf16_f32 v{A}, v{A}, v{A+1}\nv_cvt_pk_bf16_f32 v{A+1}, v{A+2}, v{A+3}')
    def write(self, lst):
        for gi, k in lst:
            A = self.acc(gi, k)
            if k == 6: setexec(0xffff, 0xffff)
            self.ds(f'ds_write_b64 v{vAO}, {vr(A,2)} offset:{(k-self.k0)*6144+64*gi}')
            if k == 6: a('s_mov_b64 exec, -1')
    def run(self, items, stop_at=None):
        D = RING - 1
        nxt = 0
        while nxt < len(items) and 'seq' in items[nxt]: nxt += 1
        def start(j):
            items[j]['B'] = vB + 8 * (self.slot % RING); self.slot += 1
            return self.reads(items[j])
        while nxt < min(D, len(items)):
            for t in start(nxt): items[nxt]['seq'] = self.ds(t)
            nxt += 1
        end = len(items) if stop_at is None else stop_at
        for i in range(end):
            it = items[i]
            self.wait(it['seq'])
            pend = start(nxt) if nxt < len(items) else []
            A = vAFR + 20 * it['gi']
            had = bool(pend)
            for k in it['outs']:
                fr = (it['idx'] - k) if it['kind'] == 'F' else 3 + (k - it['idx'])
                a(f'v_smfmac_f32_16x16x64_bf16 {vr(self.acc(it["gi"], k),4)}, {vr(A+4*fr,4)}, {vr(it["B"],8)}, v{vIDX}')
                if pend: items[nxt]['seq'] = self.ds(pend.pop(0))
            for t in pend: items[nxt]['seq'] = self.ds(t)
            if had: nxt += 1
            if it.get('pub'):
                self.cvt(it['pub'])
                if not it.get('nowrite'): self.write(it['pub'])
            if it.get('post'): it['post']()
        return items[end:]
def stage(frags): return [dict(gi=gi, kind=k, idx=i, outs=list(o)) for gi in range(3) for (k, i, o) in frags]
def add_pub(items, base, nfr, pairs, nowrite=False):
    for gi in range(3):
        j = min(base + nfr * (gi + 1), len(items) - 1)
        items[j].setdefault('pub', []).extend((gi, k) for k in pairs)
        items[j]['nowrite'] = nowrite

def late_setup():
    mksrd(sOUT, 14, XBYTES)
    if opt('safe'): a('s_mov_b32 s98, 20000')
    a(f'''
    s_mov_b32 s{sCA}, {fbits(ga):#x}
    s_mov_b32 s{sCA+1}, {fbits(ga):#x}
    s_mov_b32 s{sCC}, {fbits(gc):#x}
    s_mov_b32 s{sCC+1}, {fbits(gc):#x}
    s_add_u32 s{sT0}, s{sWI}, s{sY0}
    s_mul_i32 s{sT0}, s{sT0}, 224
    s_add_u32 s{sT0}, s{sT0}, s{sX0}
    s_mul_i32 s{sO0}, s{sT0}, 192
    ''')
    if STAMP:
        a(f's_mov_b32 s{sWS+2}, {256 if opt("dbg") else 0x10000000}\ns_mov_b32 s{sWS+3}, 0x00020000')
        for i in (7,): a(f's_mov_b32 s{sST+2*i}, 0')
    for j in range(3):
        a(f'''
        v_add_u32 v{T[0]}, {64*j}, v{vLN}
        v_mul_u32_u24 v{T[2]}, 171, v{T[0]}
        v_bfe_u32 v{T[2]}, v{T[2]}, 12, 2
        v_xor_b32 v{T[0]}, v{T[0]}, v{T[2]}
        v_lshl_add_u32 v{vSR[j]}, v{T[0]}, 4, s{sIMG}
        ''')

def conv_setup1():
    a(f'''
; table read: source lane r=(l>>2)&3, chalf=(l>>1)&1, s=l&1, qa=l>>4; tbl=r&1; valid iff (r>>1)==chalf
v_and_b32 v{T[0]}, 3, v{vLN}
v_mul_u32_u24 v{vIDX}, 0x5555, v{T[0]}
s_lshl_b32 s{sT2}, s{sWI}, 4
s_add_u32 s{sT2}, s{sT2}, {TB}
v_bfe_u32 v{T[1]}, v{vLN}, 1, 1
v_lshl_add_u32 v{T[4]}, v{T[1]}, 3, s{sT2}
v_and_b32 v{T[0]}, 1, v{vLN}
v_lshrrev_b32 v{T[1]}, 5, v{vLN}
v_mul_u32_u24 v{vTE}, {TP}, v{T[1]}
v_sub_u32 v{T[1]}, v{T[1]}, v{T[0]}
v_bfe_u32 v{T[2]}, v{vLN}, 2, 1
v_mul_u32_u24 v{T[2]}, 7, v{T[2]}
v_sub_u32 v{T[1]}, v{T[1]}, v{T[2]}
v_add_u32 v{T[1]}, 8, v{T[1]}
v_mul_u32_u24 v{T[1]}, {TP}, v{T[1]}
v_bfe_u32 v{T[2]}, v{vLN}, 4, 1
v_mul_u32_u24 v{T[2]}, 192, v{T[2]}
v_add3_u32 v{T[3]}, v{T[1]}, v{T[2]}, v{T[4]}
v_lshrrev_b32 v{T[1]}, 4, v{vLN}
v_lshlrev_b32 v{T[2]}, 1, v{T[1]}
v_sub_u32 v{T[2]}, v{T[2]}, v{T[0]}
v_add_u32 v{T[2]}, 6, v{T[2]}
v_mul_u32_u24 v{T[2]}, {TP}, v{T[2]}
v_add_u32 v{vTF0}, s{sT2}, v{vTE}
v_add_u32 v{vTF1}, {TP}, v{vTF0}
v_mov_b32 v{vTE}, s{sT2}
s_mov_b32 exec_lo, 0xcc33cc33
s_mov_b32 exec_hi, 0xcc33cc33
v_mov_b32 v{vTF0}, v{T[3]}
v_add_u32 v{vTF1}, 384, v{T[3]}
s_mov_b32 exec_lo, 0x0c030c03
s_mov_b32 exec_hi, 0x0c030c03
v_add_u32 v{T[2]}, 768, v{T[2]}
v_add_u32 v{vTE}, v{T[2]}, v{T[4]}
s_mov_b64 exec, -1
v_and_b32 v{T[0]}, 15, v{vLN}
v_bfe_u32 v{T[2]}, v{vLN}, 4, 1
v_lshrrev_b32 v{T[3]}, 5, v{vLN}
v_lshl_add_u32 v{T[2]}, v{T[2]}, 1, v{T[3]}
v_add_u32 v{T[2]}, v{T[0]}, v{T[2]}
v_bfe_u32 v{T[3]}, v{T[2]}, 2, 2
v_xor_b32 v{T[3]}, s{sWI}, v{T[3]}
v_mul_u32_u24 v{T[2]}, 192, v{T[2]}
v_lshl_add_u32 v{vAF}, v{T[3]}, 4, v{T[2]}
v_add_u32 v{vAF}, {XB}, v{vAF}
''')
def conv_setup2(em=None):
    for i in range(24): a(f'v_mov_b64 {vr(vACC+2*i,2)}, 0')
    a(f'''
v_and_b32 v{T[0]}, 3, v{vLN}
v_lshlrev_b32 v{vFA}, 2, v{T[0]}
v_add_u32 v{vFA}, {FL}, v{vFA}
s_lshl_b32 s{sT0}, s{sWV}, 2
s_add_u32 s{sT0}, s{sT0}, {FL}
v_mov_b32 v{vFW}, s{sT0}
v_mov_b32 v{vFP}, 0
ds_write_b32 v{vFW}, v{vFP}
v_and_b32 v{T[0]}, 15, v{vLN}
v_lshrrev_b32 v{T[1]}, 4, v{vLN}
v_add_u32 v{T[2]}, 4, v{T[0]}
v_bfe_u32 v{T[3]}, v{T[2]}, 2, 2
v_xor_b32 v{T[3]}, s{sWI}, v{T[3]}
v_mul_u32_u24 v{T[2]}, 192, v{T[2]}
v_lshl_add_u32 v{vAE}, v{T[3]}, 4, v{T[2]}
v_add_u32 v{vAE16}, {XB}, v{vAE}
v_mul_u32_u24 v{T[2]}, {XROW}, v{T[1]}
v_add_u32 v{vAE}, v{vAE16}, v{T[2]}
v_bfe_u32 v{T[3]}, v{T[0]}, 2, 2
v_xor_b32 v{T[4]}, s{sWI}, v{T[3]}
v_mul_u32_u24 v{T[2]}, 192, v{T[0]}
v_lshl_add_u32 v{T[2]}, v{T[4]}, 4, v{T[2]}
v_bfe_u32 v{T[1]}, v{vLN}, 4, 1
v_mul_u32_u24 v{T[1]}, 3072, v{T[1]}
v_lshrrev_b32 v{T[3]}, 5, v{vLN}
v_bfe_u32 v{T[4]}, v{vLN}, 1, 1
v_xor_b32 v{T[3]}, v{T[3]}, v{T[4]}
v_lshl_add_u32 v{T[1]}, v{T[3]}, 3, v{T[1]}
v_add3_u32 v{vAO}, v{T[2]}, v{T[1]}, s{sOB}
''')

def dma_setup():
    mksrd(sW1, 10, 73728); mksrd(sW2, 12, 73728)
    a(f'''
    v_lshrrev_b32 v{T[0]}, 3, v{vLN}
    v_mul_u32_u24 v{T[0]}, 768, v{T[0]}
    v_bfe_u32 v{T[1]}, v{vLN}, 4, 1
    v_lshlrev_b32 v{T[1]}, 2, v{T[1]}
    v_and_b32 v{T[2]}, 7, v{vLN}
    v_xor_b32 v{T[1]}, v{T[1]}, v{T[2]}
    v_lshl_add_u32 v{T[0]}, v{T[1]}, 4, v{T[0]}
    s_and_b32 s{sT1}, s{sWI}, 1
    s_lshl_b32 s{sT0}, s{sT1}, 5
    v_xor_b32 v{vDW1[0]}, s{sT0}, v{T[0]}
    v_xor_b32 v{vDW1[1]}, 32, v{vDW1[0]}
    v_mov_b32 v{vDW2[0]}, v{vL16}
    v_mov_b32 v{vDW2[1]}, v{vL16}
    v_mov_b32 v{vDW2[2]}, v{vL16}
    s_mov_b32 exec_lo, 0xffff0000
    v_xor_b32 v{vDW2[2]}, 32, v{vL16}
    s_mov_b32 exec_lo, 0
    s_mov_b32 exec_hi, 0xffff0000
    v_xor_b32 v{vDW2[0]}, 32, v{vL16}
    s_mov_b32 exec_lo, -1
    s_mov_b32 exec_hi, 0
    v_xor_b32 v{vDW2[1]}, 32, v{vL16}
    s_mov_b64 exec, -1
    s_mul_i32 s{sWA}, s{sWI}, {3*6144}
    s_mul_i32 s{sWBm}, s{sWI}, 3072
    ''')

TM = opt('touch', '12o')
TOUCH = chr(10).join(t for k, t in (('l', 's_load_dword s76, s[6:7], 0'), ('x', f's_load_dword s77, s[4:5], s{sT0}'), ('1', 's_load_dword s78, s[10:11], 0'),
        ('2', 's_load_dword s79, s[12:13], 0'), ('o', f's_load_dword s80, s[14:15], s{sT0}')) if k in TM)
isF = 's_cmp_lt_u32' if FOLD else 's_cmp_ge_u32'
a(f'''
s_load_dwordx4 s[4:7], s[0:1], 0
s_load_dwordx4 s[8:11], s[0:1], 16
s_load_dwordx4 s[12:15], s[0:1], 32
s_getpc_b64 s[100:101]
L_pc:
''')
if STAMP: a(f's_load_dwordx2 s[{sWS}:{sWS+1}], s[0:1], {48 if opt("dbg") else 56}')
stamp(0)
if opt('hold') or opt('amp'): a('s_memrealtime s[94:95]\ns_mov_b32 s88, 0')
a(f'''
s_cmp_ge_u32 s2, 256
s_cbranch_scc1 L_end
v_lshrrev_b32 v{T[0]}, 6, v0
v_and_b32 v{vLN}, 63, v0
''')
PFM = opt('pf', 'h')
if PFM == 'first':
    a(f'''
    s_bfe_u32 s{sT3}, s2, 0x20003
    s_mul_i32 s{sT3}, s{sT3}, {80*128}
    v_mul_u32_u24 v{T[1]}, 10, v{T[0]}
    v_add_u32 v{T[1]}, v{T[1]}, v{vLN}
    v_lshl_add_u32 v{T[1]}, v{T[1]}, 7, s{sT3}
    v_min_u32 v{T[1]}, L_end-L_pc, v{T[1]}
    s_mov_b64 exec, 0x3ff
    global_load_dword v{vPF}, v{T[1]}, s[100:101]
    s_mov_b64 exec, -1
    ''')
a(f'''
s_lshr_b32 s{sT1}, s2, 3
v_readfirstlane_b32 s{sWV}, v{T[0]}
s_and_b32 s{sT2}, s2, 1
s_add_u32 s{sT2}, s{sT2}, s{sT1}
s_cmp_ge_u32 s{sT2}, 32
s_cbranch_scc1 L_end
s_and_b32 s{sT0}, s2, 3
v_mul_u32_u24 v{T[0]}, 43, v{vLN}
s_mul_i32 s{sT0}, s{sT0}, 63
s_add_u32 s{sT0}, s{sT0}, 1
v_lshrrev_b32 v{T[0]}, 9, v{T[0]}
s_lshr_b32 s{sT0}, s{sT0}, 1
s_add_u32 s{sT0}, s{sT0}, s{sT1}
v_mul_u32_u24 v{T[1]}, 12, v{T[0]}
s_mul_i32 s{sT1}, s{sT0}, 9363
s_lshr_b32 s{sT1}, s{sT1}, 16
v_sub_u32 v{T[1]}, v{vLN}, v{T[1]}
s_mul_i32 s{sT2}, s{sT1}, 7
s_sub_u32 s{sT0}, s{sT0}, s{sT2}
s_bfe_u32 s{sT2}, s2, 0x10002
s_mul_i32 s{sT2}, s{sT2}, 7
s_add_u32 s{sT0}, s{sT0}, s{sT2}
s_lshl_b32 s{sX0}, s{sT0}, 4
s_mul_i32 s{sY0}, s{sT1}, {112*7282}
s_add_u32 s{sH13}, s{sY0}, {112*7282}
s_lshr_b32 s{sY0}, s{sY0}, 16
s_lshr_b32 s{sH13}, s{sH13}, 16
s_sub_u32 s{sH13}, s{sH13}, s{sY0}
s_and_b32 s{sWI}, s{sWV}, 3
''')
if PFM == 'h':
    a(f'''
    s_cmp_eq_u32 s{sH13}, 13
    s_cbranch_scc1 L_nopf
    s_bfe_u32 s{sT3}, s2, 0x20003
    s_lshl_b32 s{sT3}, s{sT3}, 3
    s_add_u32 s{sT3}, s{sT3}, s{sWV}
    s_mul_i32 s{sT3}, s{sT3}, {10*128}
    v_lshl_add_u32 v{T[2]}, v{vLN}, 7, s{sT3}
    v_min_u32 v{T[2]}, L_end-L_pc, v{T[2]}
    s_mov_b64 exec, 0x3ff
    global_load_dword v{vPF}, v{T[2]}, s[100:101]
    s_mov_b64 exec, -1
    L_nopf:
    ''')
a(f'''
v_mov_b32 v{T[4]}, {MARK}
v_lshlrev_b32 v{vL16}, 4, v{vLN}
{isF} s{sWV}, 4
s_cbranch_scc1 L_F0
; ---- L: x rows
s_mul_i32 s{sT1}, s{sWI}, 5
v_add_u32 v{T[0]}, s{sT1}, v{T[0]}
v_bfe_u32 v{T[2]}, v{T[0]}, 2, 2
v_xor_b32 v{T[1]}, v{T[1]}, v{T[2]}
s_sub_u32 s{sT1}, s{sX0}, 2
v_add_u32 v{T[0]}, s{sT1}, v{T[0]}
v_mul_u32_u24 v{T[2]}, 192, v{T[0]}
v_cmp_gt_u32 vcc, 224, v{T[0]}
v_lshl_add_u32 v{T[2]}, v{T[1]}, 4, v{T[2]}
s_mul_i32 s{sXM}, s{sWI}, 960
s_mov_b32 s99, 43008
v_cndmask_b32 v{vXO}, v{T[4]}, v{T[2]}, vcc
s_sub_u32 s{sT1}, s{sY0}, 2
s_mul_i32 s{sT1}, s{sT1}, s99
v_add_u32 v{vXO}, s{sT1}, v{vXO}
s_mov_b32 s{sX+2}, {XBYTES}
s_mov_b32 s{sX+3}, 0x00020000
; tables: A = 5x5 row i ; B = 3x3 row i (i<3, lanes 12..47) or 5x5 row 4 (i==3)
s_mov_b32 s{sDS+2}, 4800
s_mov_b32 s{sDS+3}, 0x00020000
s_mov_b32 s{sDL+3}, 0x00020000
s_mul_i32 s{sT3}, s{sWI}, {TP}
s_mul_i32 s{sT2}, s{sWI}, 576
s_sub_u32 s{sT2}, s{sT2}, 192
s_add_u32 s{sT1}, s{sT3}, {TB + 2*TP}
s_cmp_eq_u32 s{sWI}, 3
s_cselect_b32 s{sDL+2}, s{sDS+2}, 1728
s_cselect_b32 s{sT2}, 3840, s{sT2}
s_cselect_b32 s{sT1}, {TB + 12*TP}, s{sT1}
s_cselect_b32 exec_lo, -1, 0xfffff000
s_cselect_b32 exec_hi, -1, 0xffff
v_add_u32 v{T[4]}, s{sT2}, v{vL16}
s_mov_b32 exec_lo, -1
s_mov_b32 exec_hi, 0x0fffffff
s_add_u32 m0, s{sT3}, {TB + 8*TP}
s_cmp_eq_u32 s{sWI}, 3
s_waitcnt lgkmcnt(0)
{ap('Lk')}
s_mov_b64 s[{sDS}:{sDS+1}], s[8:9]
s_cselect_b64 s[{sDL}:{sDL+1}], s[8:9], s[6:7]
buffer_load_dwordx4 v{vL16}, {srd(sDS)}, s{sXM} offen lds
s_mov_b32 m0, s{sT1}
s_mov_b64 s[{sX}:{sX+1}], s[4:5]
buffer_load_dwordx4 v{T[4]}, {srd(sDL)}, 0 offen lds
s_add_u32 m0, s{sXM}, {XB}
s_movk_i32 s{sXM}, {XROW}
''')
xl = [0]
def xrows(n):
    for _ in range(n):
        t = xl[0]; xl[0] += 1
        if t:
            a(f's_add_u32 m0, m0, s{sXM}')
            a(f'v_add_u32 v{vXO}, s99, v{vXO}')
        a(f'buffer_load_dwordx4 v{vXO}, {srd(sX)}, 0 offen{XPOL} lds')
NX0 = int(opt('nx0', 12))
if opt('amp') == 'x1':
    xrows(1); a('s_waitcnt vmcnt(0)'); a(ap('x1')); xrows(NX0 - 1)
else:
    xrows(NX0)
for k_ in (4, 8, 12, 17):
    if opt('amp') == f'x{k_}': a(f's_waitcnt vmcnt({NX0 - k_})'); a(ap(f'x{k_}'))
a(ap('Li'))
stamp(1)
a(f'''
s_branch L_L
L_F0:
; ---- F: conv weight tables, rows w and w+4 of both
s_setprio {opt("fprio", 2)}
s_mul_i32 s{sIMG}, s{sWI}, 6144
s_mov_b32 s{sOB}, {OUTF}
s_mul_i32 s{sT0}, s{sY0}, 43008
s_cmp_lg_u32 s{sWI}, 0
s_cbranch_scc1 L_nozero
v_add_u32 v{T[0]}, {TB}, v{vL16}
v_mov_b64 v[0:1], 0
v_mov_b64 v[2:3], 0
''')
for off in (0, 2*TP - 1024, 5*TP, 5*TP + 1024, 8*TP - 1024, 13*TP, 13*TP + 1024, 16*TP - 1024):
    a(f'ds_write_b128 v{T[0]}, v[0:3] offset:{off}')
a(f'''
L_nozero:
s_waitcnt lgkmcnt(0)
{TOUCH}
''')
WPF = opt('wpf', '0') == '1'
if PFM in ('f', 'g'):
    if PFM == 'g': a(f's_cmp_eq_u32 s{sH13}, 13\ns_cselect_b32 s97, 1, 0xfffff')
    a(f'''
    s_bfe_u32 s{sT3}, s2, 0x20003
    s_lshl_b32 s{sT3}, s{sT3}, 2
    s_add_u32 s{sT3}, s{sT3}, s{sWI}
    s_mul_i32 s{sT3}, s{sT3}, {20*128}
    v_lshl_add_u32 v{T[1]}, v{vLN}, 7, s{sT3}
    v_min_u32 v{T[1]}, L_end-L_pc, v{T[1]}
    {'s_mov_b64 exec, 0xfffff' if PFM == 'f' else f's_cmp_eq_u32 s{sH13}, 13'+chr(10)+f's_cselect_b32 s{sT3}, 0, -1'+chr(10)+f'v_and_b32 v{T[1]}, s{sT3}, v{T[1]}'+chr(10)+'s_mov_b32 exec_lo, s97'+chr(10)+'s_mov_b32 exec_hi, 0'}
    global_load_dword v{vPF}, v{T[1]}, s[100:101]
    s_mov_b64 exec, -1
    ''')
if WPF:
    a(f'''
    s_and_b32 s{sT0}, s{sWI}, 1
    s_cselect_b64 s[{sT1}:{sT2}], s[12:13], s[10:11]
    s_lshr_b32 s{sT0}, s2, 3
    s_lshl_b32 s{sT0}, s{sT0}, 1
    s_lshr_b32 s{sT3}, s{sWI}, 1
    s_add_u32 s{sT0}, s{sT0}, s{sT3}
    s_mul_i32 s{sT0}, s{sT0}, {10*128}
    v_lshl_add_u32 v{T[0]}, v{vLN}, 7, s{sT0}
    v_min_u32 v{T[0]}, {73728-128}, v{T[0]}
    s_mov_b64 exec, 0x3ff
    global_load_dword v{vPF-1}, v{T[0]}, s[{sT1}:{sT2}]
    s_mov_b64 exec, -1
    ''')
a(ap('Ft'))
if opt('amp') == 'tab': a('s_waitcnt vmcnt(0)'); a(ap('tab'))
conv_setup1()
a(ap('Fc'))
OPF = opt('opf', '0') == '1'
if OPF:
    a(f'''
    s_mov_b64 exec, 1
    buffer_load_dword v{vPF-2}, v{vL16}, {srd(sOUT)}, s{sO0} offen
    s_mov_b64 exec, -1
    ''')
vFR = [48, 49, 50, 51]
vDW1[:] = [56, 57]; vDW2[:] = [58, 59, 60]
def f_setup1():
    a(f'''
    s_add_u32 s{sO1}, s{sO0}, {4*43008}
    v_lshrrev_b32 v{T[4]}, 5, v{vLN}
    v_bfe_u32 v{T[0]}, v{vLN}, 2, 2
    v_bfe_u32 v{T[1]}, v{vLN}, 4, 1
    v_and_b32 v{T[2]}, 3, v{vLN}
    v_lshl_add_u32 v{T[3]}, v{T[4]}, 4, v{T[0]}
    v_lshlrev_b32 v{T[3]}, 7, v{T[3]}
    v_lshl_add_u32 v{T[3]}, v{T[1]}, 5, v{T[3]}
    v_lshl_add_u32 v{T[3]}, v{T[2]}, 3, v{T[3]}
    v_bfe_u32 v{T[2]}, v{vLN}, 3, 1
    v_lshl_add_u32 v{vAW1[0]}, v{T[2]}, 6, v{T[3]}
    v_xor_b32 v{vAW1[1]}, 64, v{vAW1[0]}
    v_xor_b32 v{vAW1[2]}, 32, v{vAW1[0]}
    v_xor_b32 v{vAW1[3]}, 0x60, v{vAW1[0]}
    v_lshl_add_u32 v{T[3]}, v{T[4]}, 2, v{T[0]}
    v_mul_u32_u24 v{T[3]}, 192, v{T[3]}
    v_lshl_add_u32 v{T[3]}, v{T[1]}, 4, v{T[3]}
    v_and_b32 v{T[2]}, 1, v{vLN}
    v_xor_b32 v{T[2]}, v{T[2]}, v{T[4]}
    v_lshl_add_u32 v{T[3]}, v{T[2]}, 5, v{T[3]}
    v_bfe_u32 v{T[2]}, v{vLN}, 1, 1
    v_lshl_add_u32 v{T[3]}, v{T[2]}, 3, v{T[3]}
    v_add_u32 v{vAW2}, 12288, v{T[3]}
    s_mul_i32 s{sT2}, s{sWI}, 3072
    s_add_u32 s{sT2}, s{sT2}, {OUTF}
    s_mul_i32 s{sT1}, s{sWI}, {XROW}
    s_add_u32 s{sT1}, s{sT1}, {XB + 2*XROW + 384}
    v_lshlrev_b32 v{T[4]}, 1, v{T[4]}
    v_xor_b32 v{T[0]}, v{T[4]}, v{T[0]}
    v_and_b32 v{T[3]}, 15, v{vLN}
    v_mul_u32_u24 v{T[3]}, 192, v{T[3]}
    v_lshl_add_u32 v{T[0]}, v{T[0]}, 4, v{T[3]}
    v_lshl_add_u32 v{T[0]}, v{T[2]}, 3, v{T[0]}
    v_mul_u32_u24 v{T[2]}, {4*3072}, v{T[1]}
    v_add3_u32 v{vFR[0]}, v{T[0]}, v{T[2]}, s{sT2}
    v_xor_b32 v{vFR[1]}, 8, v{vFR[0]}
    v_xor_b32 v{vFR[2]}, 16, v{vFR[0]}
    v_xor_b32 v{vFR[3]}, 24, v{vFR[0]}
    v_add_u32 v{T[0]}, 2, v{vLN}
    v_bfe_u32 v{T[0]}, v{T[0]}, 2, 2
    v_xor_b32 v{T[0]}, v{T[4]}, v{T[0]}
    v_lshl_add_u32 v{T[0]}, v{T[0]}, 4, v{T[3]}
    v_mul_u32_u24 v{T[2]}, {4*XROW}, v{T[1]}
    v_add3_u32 v{vAR[0]}, v{T[0]}, v{T[2]}, s{sT1}
    v_xor_b32 v{vAR[1]}, 16, v{vAR[0]}
    v_bfe_u32 v{T[0]}, v{vLN}, 1, 2
    v_xor_b32 v{T[0]}, v{T[4]}, v{T[0]}
    v_lshl_add_u32 v{T[0]}, v{T[0]}, 4, v{T[3]}
    v_mul_u32_u24 v{T[2]}, 3072, v{T[1]}
    v_add3_u32 v{vSW[0]}, v{T[0]}, v{T[2]}, s{sIMG}
    v_xor_b32 v{vSW[1]}, 16, v{vSW[0]}
    ''')
def f_setup2():
    a(f'''
    v_and_b32 v{T[1]}, 1, v{vLN}
    v_lshlrev_b32 v{T[1]}, 4, v{T[1]}
    v_mov_b32 v{T[2]}, 0x3f80
    v_lshlrev_b32 v{T[1]}, v{T[1]}, v{T[2]}
    ''')
    for i in range(4): a(f'v_mov_b64 {vr(vID+2*i,2)}, 0')
    for i in range(8):
        pos = 16 * (i >> 2) + 8 * ((i >> 1) & 1) + 2 * (i & 1)
        setexec(3 << pos, 3 << (pos + 4))
        a(f'v_mov_b32 v{vID+i}, v{T[1]}')
    a('s_mov_b64 exec, -1')
FS = opt('fs', '00001')
fsl = [conv_setup2, late_setup, f_setup2, f_setup1, dma_setup]
def fsetup(k):
    for f, c in zip(fsl, FS):
        if int(c) == k: f()
fsetup(0)
a(ap('Fs'))
stamp(1)
a(f's_waitcnt vmcnt({(1 if WPF else 0) + (1 if PFM in "fg" else 0) + (1 if OPF else 0)}) lgkmcnt(0)')
a(ap('Fl'))
pstamp(9)
bar(2)
cv = Conv(0)
for gi in range(3): tab_reads(gi, cv.ds)
S0 = stage([('F',0,[0]), ('F',1,[0,1])])
cv.run(S0, 0)
def res_half(s):
    m = 0xffff0000 if s else 0xffff
    setexec(m, m)
    for ks in range(6):
        cv.ds(f'ds_read_b128 {vr(vRES+4*ks,4)}, v{vAR[ks&1]} offset:{64*(ks>>1)}')
    a('s_mov_b64 exec, -1')
def run_stage(left, frags, pairs, keep=0, mid=None):
    its = left + stage(frags)
    if pairs: add_pub(its, len(left), len(frags), pairs)
    if mid: its[mid[0]]['post'] = mid[1]
    return cv.run(its, len(its) - keep)
left = cv.run(S0, len(S0) - int(opt('keep0', 0)))
fsetup(1)
pstamp(10)
bar(3)
left = run_stage(left, [('F',2,[0,1,2]), ('F',3,[1,2,3]), ('E',0,[0,1])], [0, 1])
fsetup(2)
pstamp(11)
bar(4)
a(f's_setprio {opt("fprio2", 3)}')
left = run_stage(left, [('F',4,[2,3]), ('F',5,[3]), ('E',2,[2,3])], [2, 3])
signal(1)
a('s_waitcnt vmcnt(0)')
wdma(0, [0, 1, 2])
stamp(5)
poll(GF, 1)
RA = 168
for ks in range(6):
    a(f'ds_read_b64 {vr(RA+4*ks,2)}, v{vFR[2*(ks&1)]} offset:{64*(ks>>1)}')
    a(f'ds_read_b64 {vr(RA+4*ks+2,2)}, v{vFR[2*(ks&1)+1]} offset:{64*(ks>>1)}')
a(f's_setprio {opt("fprio3", 1)}')
wdma(1, [0, 1, 2])
a('s_waitcnt lgkmcnt(0)')
stamp(6)
def f_mid():
    for ks in range(6):
        a(f'ds_read_b128 {vr(vRES+4*ks,4)}, v{vAR[ks&1]} offset:{64*(ks>>1)}')
    landed(0, 2)
    wdma(0, [3, 4, 5]); wdma(1, [3, 4, 5])
    peek(GF)
def f_mid2():
    a('s_waitcnt lgkmcnt(0)')
    check(GF, 2)
    f_w1reads0()
ln(RA, 72, [vL + i for i in range(24)], False, f_mid, f_mid2)
stamp(8)
XH = {
  'start3': [lambda: landed(0, 3)],
  ('T1', 0): [lambda: peek(GF)],
  ('preT2', 0): [lambda: check(GF, 3)],
  ('T1', 1): [lambda: stamp(9)],
  ('T2', 1): [lambda: peek(GL)],
  ('preT1', 2): [lambda: check(GL, 6)],
  ('preT1', 4): [lambda: signal(4)],
  ('T1', 4): [lambda: peek(GL)],
  ('preT2', 4): [lambda: check(GL, 7)],
  ('T2', 5): [lambda: peek(GL)],
  ('preT1', 6): [lambda: check(GL, 8), lambda: stamp(10)],
  ('preT1', 8): [lambda: stamp(11)],
  ('T2', 8): [lambda: peek(GF)],
  ('preT1', 9): [lambda: check(GF, 4)],
  ('preT1', 10): [lambda: stamp(12)],
}
FP = opt('fp', 'n')
def fprio(c):
    if FP == 'n': return (0, 0) if c == 0 else None
    if FP == 's': return (1, 1) if c == 0 else None
    return (0, int(FP))
mlp32(XH, fprio)
stamp(13)
P = vY[0]; Q = vK[0]
for mt in range(3):
    for i in range(8):
        a(f'v_cvt_pk_bf16_f32 v{P+8*mt+i}, v{vO+16*mt+2*i}, v{vO+16*mt+2*i+1}')
    a(f'ds_write_b128 v{vSW[0]}, {vr(P+8*mt,4)} offset:{64*mt}')
    a(f'ds_write_b128 v{vSW[1]}, {vr(P+8*mt+4,4)} offset:{64*mt}')
for s in range(2):
    for j in range(3):
        a(f'ds_read_b128 {vr(Q+4*(3*s+j),4)}, v{vSR[j]} offset:{3072*s}')
for s in range(2):
    for j in range(3):
        a(f's_waitcnt lgkmcnt({5-(3*s+j)})')
        a(f'buffer_store_dwordx4 {vr(Q+4*(3*s+j),4)}, v{vL16}, {srd(sOUT)}, s{sO1 if s else sO0} offen offset:{1024*j}{STPOL}')
finish()
emit_slow()

a.label('L_L')
cv = Conv(4)
vDW1[:] = [220, 221]; vDW2[:] = [222, 223, 224]
vA0, vA2 = 48, 50
RR = 60
def l_setup():
    a(f'''
    s_add_u32 s{sO0}, s{sO0}, {8*43008}
    s_and_b32 s{sT1}, s{sWI}, 1
    v_lshrrev_b32 v{T[4]}, 4, v{vLN}
    v_bfe_u32 v{T[0]}, v{vLN}, 2, 2
    v_and_b32 v{T[2]}, 3, v{vLN}
    v_bfe_u32 v{T[1]}, v{vLN}, 4, 1
    v_lshlrev_b32 v{T[2]}, 3, v{T[2]}
    v_lshl_add_u32 v{T[2]}, v{T[1]}, 5, v{T[2]}
    v_lshl_add_u32 v{T[3]}, v{T[4]}, 3, v{T[0]}
    v_lshl_add_u32 v{T[3]}, v{T[3]}, 7, v{T[2]}
    v_bfe_u32 v{T[1]}, v{vLN}, 3, 1
    v_xor_b32 v{T[1]}, s{sT1}, v{T[1]}
    v_lshl_add_u32 v{T[3]}, v{T[1]}, 6, v{T[3]}
    s_lshr_b32 s{sT2}, s{sWI}, 1
    s_mul_i32 s{sT2}, s{sT2}, {PS}
    s_sub_u32 s{sT3}, {PS}, s{sT2}
    v_add_u32 v{vLW1}, s{sT2}, v{T[3]}
    v_add_u32 v{vLW1+4}, s{sT3}, v{T[3]}
    v_xor_b32 v{vLW1+1}, 32, v{vLW1}
    v_xor_b32 v{vLW1+2}, 64, v{vLW1}
    v_xor_b32 v{vLW1+3}, 0x60, v{vLW1}
    v_xor_b32 v{vLW1+5}, 32, v{vLW1+4}
    v_xor_b32 v{vLW1+6}, 64, v{vLW1+4}
    v_xor_b32 v{vLW1+7}, 0x60, v{vLW1+4}
    v_lshl_add_u32 v{T[3]}, v{T[4]}, 2, v{T[0]}
    v_mul_u32_u24 v{T[3]}, 192, v{T[3]}
    v_add_u32 v{T[3]}, v{T[3]}, v{T[2]}
    s_mul_i32 s{sT1}, s{sT1}, 6144
    s_add_u32 s{sT2}, s{sT2}, 12288
    s_add_u32 s{sT3}, s{sT3}, 12288
    s_add_u32 s{sT0}, s{sT2}, s{sT1}
    v_add_u32 v{vLW2}, s{sT0}, v{T[3]}
    s_add_u32 s{sT0}, s{sT3}, s{sT1}
    v_add_u32 v{vLW2+4}, s{sT0}, v{T[3]}
    s_sub_u32 s{sT1}, 6144, s{sT1}
    s_add_u32 s{sT0}, s{sT2}, s{sT1}
    v_add_u32 v{vLW2+2}, s{sT0}, v{T[3]}
    s_add_u32 s{sT0}, s{sT3}, s{sT1}
    v_add_u32 v{vLW2+6}, s{sT0}, v{T[3]}
    v_xor_b32 v{vLW2+1}, 32, v{vLW2}
    v_xor_b32 v{vLW2+3}, 32, v{vLW2+2}
    v_xor_b32 v{vLW2+5}, 32, v{vLW2+4}
    v_xor_b32 v{vLW2+7}, 32, v{vLW2+6}
    v_xor_b32 v{T[0]}, v{T[4]}, v{T[0]}
    v_and_b32 v{T[3]}, 15, v{vLN}
    v_mul_u32_u24 v{T[3]}, 192, v{T[3]}
    v_lshl_add_u32 v{T[0]}, v{T[0]}, 4, v{T[3]}
    v_add_u32 v{vARL}, {L12}, v{T[0]}
    v_bfe_u32 v{T[1]}, v{vLN}, 1, 1
    v_lshl_add_u32 v{T[0]}, v{T[1]}, 3, v{T[0]}
    v_add_u32 v{vA2}, {L12}, v{T[0]}
    v_xor_b32 v{vA2+1}, 8, v{vA2}
    v_add_u32 v{vA0}, s{sIMG}, v{T[0]}
    v_xor_b32 v{vA0+1}, 8, v{vA0}
    s_mul_i32 s{sT0}, s{sWI}, {XROW}
    v_bfe_u32 v{T[1]}, v{vLN}, 4, 1
    v_lshl_add_u32 v{T[3]}, v{T[1]}, 3, v{T[3]}
    v_lshrrev_b32 v{T[4]}, 5, v{vLN}
    v_bfe_u32 v{T[0]}, v{vLN}, 1, 2
    v_xor_b32 v{T[0]}, v{T[4]}, v{T[0]}
    v_lshl_add_u32 v{T[0]}, v{T[0]}, 4, v{T[3]}
    v_add_u32 v{vSW[0]}, s{sIMG}, v{T[0]}
    v_xor_b32 v{vSW[1]}, 32, v{vSW[0]}
    v_add_u32 v{T[0]}, 2, v{vLN}
    v_bfe_u32 v{T[0]}, v{T[0]}, 2, 2
    v_xor_b32 v{T[0]}, v{T[4]}, v{T[0]}
    v_lshl_add_u32 v{T[0]}, v{T[0]}, 4, v{T[3]}
    s_add_u32 s{sT0}, s{sT0}, {XB + 384}
    v_add_u32 v{vAR[0]}, s{sT0}, v{T[0]}
    v_xor_b32 v{vAR[1]}, 32, v{vAR[0]}
    ''')

a(f'''
s_mov_b32 exec_hi, -1
s_mul_i32 s{sIMG}, s{sWI}, 3072
s_add_u32 s{sIMG}, s{sIMG}, {S_IL}
s_mov_b32 s{sOB}, {OUTL}
''')
LS = opt('ls', '02002')
lsl = [conv_setup1, dma_setup, conv_setup2, late_setup, l_setup]
def lsetup(k):
    for f, c in zip(lsl, LS):
        if int(c) == k: f()
lsetup(0)
a(ap('Ls'))
pstamp(14)
a(f's_waitcnt vmcnt({NX0 - 4})')
a(ap('Ll'))
pstamp(9)
bar(2)
if NX0 < 17:
    a('s_mov_b32 exec_hi, 0x0fffffff')
    xrows(17 - NX0)
    a('s_mov_b32 exec_hi, -1')
lsetup(1)
for gi in range(3): tab_reads(gi, cv.ds)
pstamp(10)
a('s_waitcnt vmcnt(9)')
pstamp(11)
bar(3)
lsetup(2)
pstamp(12)
SPLIT = opt('split', '1') == '1'
a(f's_waitcnt vmcnt({5 if SPLIT else 0}) lgkmcnt(0)')
pstamp(13)
bar(4)
a(f's_setprio {opt("lprio", 2)}')
RED, LNW = 1, 3
def raw_reads(R, ad, off=0):
    for ks in range(3):
        a(f'ds_read_b64 {vr(R+4*ks,2)}, v{ad} offset:{off+64*ks}')
        a(f'ds_read_b64 {vr(R+4*ks+2,2)}, v{ad+1} offset:{off+64*ks}')
def row_store(O, soff, P=vY[0], Q=vK[0]):
    for i in range(12):
        a(f'v_cvt_pk_bf16_f32 v{P+i}, v{O+2*i}, v{O+2*i+1}')
    for i in range(6):
        a(f'ds_write_b64 v{vSW[i&1]}, {vr(P+2*i,2)} offset:{64*(i>>1)}')
    for j in range(3):
        a(f'ds_read_b128 {vr(Q+4*j,4)}, v{vSR[j]}')
    for j in range(3):
        a(f's_waitcnt lgkmcnt({2-j})')
        a(f'buffer_store_dwordx4 {vr(Q+4*j,4)}, v{vL16}, {srd(sOUT)}, s{soff} offen offset:{1024*j}{STPOL}')
LP = opt('lp', 'k')
def lprio(c):
    if LP == 'n': return (0, 0) if c == 0 else None
    if LP == 's': return (1, 1) if c == 0 else None
    if LP == 'k':
        lo, hi = [int(x) for x in opt('lk', '0,9').split(',')]
        if lo <= c < hi: return (0, 1)
        return (0, 0) if c in (0, hi) else None
    return (0, int(LP))
def l_body(h13):
    global cv
    keep = cv
    cv = copy.copy(keep)
    sfx = 'a' if h13 else 'b'
    if h13:
        frags = [('F',4,[4]), ('F',5,[4,5]), ('F',6,[4,5,6]), ('F',7,[5,6]), ('E',4,[4,5]), ('F',8,[6]), ('L',6,[6])]; pairs = [4, 5, 6]
    else:
        frags = [('F',4,[4]), ('F',5,[4,5]), ('F',6,[4,5]), ('F',7,[5]), ('E',4,[4,5])]; pairs = [4, 5]
    if SPLIT:
        pre = stage(frags[:2])
        cv.run(pre, 0)
        a('s_waitcnt vmcnt(0)')
        signal(1, cv.ds)
        pre = cv.run(pre, len(pre) - int(opt('keepl', 2)))
        poll(GL, 1)
        frags = frags[2:]
    else:
        pre = []
    its = pre + stage(frags)
    add_pub(its, len(pre), len(frags), pairs)
    def resr():
        for i in range(6):
            cv.ds(f'ds_read_b64 {vr(RR+2*i,2)}, v{vAR[i&1]} offset:{10*XROW+64*(i>>1)}')
        if h13:
            for i in range(6):
                cv.ds(f'ds_read_b64 {vr(RR+12+2*i,2)}, v{vAR[i&1]} offset:{(14-RED)*XROW+64*(i>>1)}')
    if opt('lc'):
        nf = len(frags)
        for j, idx in ((9, 0), (10, nf - 1), (11, nf), (12, 2 * nf - 1), (13, 2 * nf)):
            its[idx]['post'] = lambda j=j: _st(j)
    if '3' in LS:
        cv.run(its, 0)
        lsetup(3)
    cv.run(its)
    stamp(6)
    signal(2)
    resr()
    stamp(5)
    poll(GL, 2)
    stamp(7)
    RAW = 168
    raw_reads(RAW, vA0)
    for i in range(12):
        a(f'v_lshlrev_b32 v{vO+2*i}, 16, v{RR+i}\nv_and_b32 v{vO+2*i+1}, 0xffff0000, v{RR+i}')
    if h13:
        a(f's_cmp_eq_u32 s{sWI}, {RED}\ns_cbranch_scc1 L_ri{sfx}')
        for i in range(12): a(f'v_mov_b64 {vr(vO+24+2*i,2)}, 0')
        a(f's_branch L_rj{sfx}')
        a.label(f'L_ri{sfx}')
        for i in range(12):
            a(f'v_lshlrev_b32 v{vO+24+2*i}, 16, v{RR+12+i}\nv_and_b32 v{vO+24+2*i+1}, 0xffff0000, v{RR+12+i}')
        a.label(f'L_rj{sfx}')
    signal(3)
    if h13: raw_reads(RAW + 12, vA2)
    a(f's_waitcnt lgkmcnt({7 if h13 else 1})')
    def l_mid2():
        a('s_waitcnt lgkmcnt(0)')
        check(GF, 2)
        l_w1reads(0)
    ln(RAW, 72, [vL + i for i in range(12)], True, lambda: peek(GF), l_mid2)
    if h13:
        a(f's_cmp_lg_u32 s{sWI}, {LNW}\ns_cbranch_scc1 L_nl12')
        ln(RAW + 12, 72, [RAW + 12 + i for i in range(12)], True)
        for ks in range(3):
            a(f'ds_write_b128 v{vARL}, {vr(RAW+12+4*ks,4)} offset:{64*ks}')
        a.label('L_nl12')
        signal(5)
    stamp(8)
    def l12r():
        for ks in range(3):
            a(f'ds_read_b128 {vr(vL+12+4*ks,4)}, v{vARL} offset:{64*ks}')
    def pub_rem():
        a(f's_cmp_eq_u32 s{sWI}, {RED}\ns_cbranch_scc1 L_np\ns_mul_i32 s{sT0}, s{sWI}, 6144\nv_add_u32 v{T[0]}, s{sT0}, v{vL16}')
        for i in range(6):
            a(f'ds_write_b128 v{T[0]}, {vr(vO+24+4*i,4)} offset:{S_R + 1024*i}')
        a.label('L_np')
        signal(9)
    H = {
      'start3': [lambda: peek(GL)],
      ('preT1', 0): [lambda: check(GL, 3)],
      ('T1', 0): [lambda: wdma(2, [0, 1, 2]), lambda: wdma(3, [0, 1, 2]), lambda: peek(GF)],
      ('preT2', 0): [lambda: check(GF, 3)],
      ('T2', 0): [lambda: wdma(2, [3, 4, 5])] + ([lambda: peek(GL)] if h13 else []),
      ('preT1', 1): [lambda: check(GL, 5)] if h13 else [],
      ('T1', 1): [lambda: wdma(3, [3, 4, 5]), lambda: stamp(9)] + ([l12r] if h13 else []),
      ('preT2', 1): [lambda: landed(6, 6)],
      ('T2', 1): [lambda: wdma(4, [0, 1, 2]), lambda: peek(GL)],
      ('preT1', 2): [lambda: check(GL, 6)],
      ('T1', 2): [lambda: wdma(4, [3, 4, 5])],
      ('T2', 2): [lambda: wdma(5, [0, 1, 2])],
      ('preT1', 3): [lambda: landed(9, 7)],
      ('T1', 3): [lambda: wdma(5, [3, 4, 5])],
      ('T1', 4): [lambda: peek(GL)],
      ('preT2', 4): [lambda: check(GL, 7), lambda: landed(0, 8)],
      ('T2', 5): [lambda: peek(GL)],
      ('preT1', 6): [lambda: check(GL, 8), lambda: stamp(10)],
      ('preT1', 8): [lambda: stamp(11)],
      ('preT1', 10): [lambda: stamp(12)],
    }
    if h13:
        H[('T2', 9)] = [lambda: peek(GF)]
        H[('preT1', 10)] = H[('preT1', 10)] + [lambda: check(GF, 4), pub_rem]
        def reduce12():
            a(f's_cmp_lg_u32 s{sWI}, {RED}\ns_cbranch_scc1 L_nored')
            poll(GL, 9)
            others = [w for w in range(4) if w != RED]
            R = [144, 48, 144]
            def rd(n):
                for i in range(6):
                    a(f'ds_read_b128 {vr(R[n]+4*i,4)}, v{vL16} offset:{S_R + 6144*others[n] + 1024*i}')
            def ad(n):
                for i in range(24):
                    a(f'v_add_f32 v{vO+24+i}, v{vO+24+i}, v{R[n]+i}')
            rd(0); rd(1)
            a('s_waitcnt lgkmcnt(6)'); ad(0); rd(2)
            a('s_waitcnt lgkmcnt(6)'); ad(1)
            a('s_waitcnt lgkmcnt(0)'); ad(2)
            a(f's_add_u32 s{sO1}, s{sO0}, {(4-RED)*43008}')
            row_store(vO + 24, sO1, 48, 144)
            a.label('L_nored')
        H[('T1', 11)] = [reduce12]
    mlp16([3, 5, 8] if h13 else [], H, lprio)
    stamp(13)
    row_store(vO, sO0)
    finish()
    emit_slow()
    cv = keep
a(f's_cmp_lg_u32 s{sH13}, 13\ns_cbranch_scc1 L_L12')
l_body(True)
a.label('L_L12')
l_body(False)
a.label('L_end')
a('s_endpgm')

body = a.finalize()
hdr = open('cdna_kernels/' + NAME + '.s.ref').read().split('\n')
out = []
for l in hdr:
    if l.startswith('; @launch'):
        out.append('; @launch grid=(256,1,1) block=(512,1,1) lds=163840')
    elif l.startswith(';'):
        out.append(l)
    else:
        break
out.append('.amdgcn_target "amdgcn-amd-amdhsa--gfx950"')
out.append('.text')
out.append(f'.globl {NAME}_kernel')
out.append('.p2align 8')
out.append(f'.type {NAME}_kernel,@function')
out.append(f'{NAME}_kernel:')
for l in body:
    out.append(l if l.endswith(':') else '    ' + l)
out.append(f'''.section .rodata,"a"
.p2align 6
.amdhsa_kernel {NAME}_kernel
  .amdhsa_next_free_vgpr 256
  .amdhsa_next_free_sgpr 102
  .amdhsa_accum_offset 256
  .amdhsa_group_segment_fixed_size 0
  .amdhsa_kernarg_size 64
  .amdhsa_user_sgpr_count 2
  .amdhsa_user_sgpr_kernarg_segment_ptr 1
  .amdhsa_system_sgpr_workgroup_id_x 1
.end_amdhsa_kernel''')
print('\n'.join(out))
```

```python
import sys, struct, math, copy
from asmlib import Asm

NAME = "standalone__modern_conv_block_replknet__vision"
def fbits(x): return struct.unpack('<I', struct.pack('<f', x))[0]
def opt(name, default=None):
    for x in sys.argv:
        if x == '--' + name: return True
        if x.startswith('--' + name + '='): return x.split('=', 1)[1]
    return default
STAMP = opt('stamp'); CYC = opt('cyc'); PRO = opt('pro')
STPOL = ' ' + opt('stpol', 'sc1').replace('_', ' ') if opt('stpol', 'sc1') != 'none' else ''
FOLD = opt('fold', '1') == '1'
GL, GF = (1, 0) if FOLD else (0, 1)

XPOL = ' ' + opt('xpol').replace('_', ' ') if opt('xpol') else ''
XROW = 3840
XB = 73728
PS = 24576
TB, TP = 139264, 976
OUTF, OUTL = 49152, 147456
L12 = OUTL + 4*3072
FL = 163584
S_IF, S_R, S_IL = 0, 24576, OUTL
MARK = 0x40000000
XBYTES = 224 * 224 * 192

k0 = math.sqrt(2.0 / math.pi); k1 = 0.044715
c0 = 2 * k0 / math.log(2.0); c1 = c0 * k1
ga = c1 ** (1.0 / 3.0)
gc = -c0 / ga

sX, sDL, sDS, sW1, sW2, sOUT = 16, 20, 24, 28, 32, 36
sWV, sY0, sX0, sT0, sT1, sT2, sT3 = 40, 41, 42, 43, 44, 45, 46
sH13, sWI = 47, 3
sCA, sCC = 48, 50
sWS = 52
sXM, sIMG, sOB = 56, 57, 62
sWA, sWBm = 58, 59
sO0, sO1 = 60, 61
sST = 64
NST = 16
def srd(b): return f's[{b}:{b+3}]'
vO, vL, vY, vK, vG, vF1, vF2 = 0, 48, [72, 88], [104, 120], 136, 144, 168
vRES, vID = 204, 228
vAW1 = [236, 237, 245, 249]; vAW2 = 238
vLW1 = 204; vLW2 = 212
vDW1 = [220, 221]; vDW2 = [222, 223, 224]
vARL = 225
vSW = [239, 240]; vSR = [241, 242, 243]
vL16 = 244
vFA, vFW, vFP = 246, 247, 248
T = [250, 251, 252, 253, 254]
vLN = 255
vXO = 203; vPF = 54
vAF, vAE, vAO, vIDX, vTF0, vTF1, vTE, vAR, vAE16, vAO1 = 192, 193, 194, 195, 196, 197, 198, [199, 200], 201, 202
vACC, vAFR, vB = 0, 84, 144
def vr(b, n): return f'v[{b}:{b+n-1}]'

a = Asm()
def _st(i): a(f'{"s_memtime" if CYC else "s_memrealtime"} s[{sST+2*i}:{sST+2*i+1}]')
def pstamp(i):
    if STAMP and PRO and not opt('lc'): _st(i)
def ap(n):
    return 's_memrealtime s[88:89]' if opt('amp') == n else ''
def stamp(i):
    a(ap(str(i)))
    if i in (8, 13): hold(i)
    if STAMP and not (PRO and 9 <= i <= 14): _st(i)
def mksrd(b, lo, n):
    a(f's_mov_b64 s[{b}:{b+1}], s[{lo}:{lo+1}]\ns_mov_b32 s{b+2}, {n}\ns_mov_b32 s{b+3}, 0x00020000')
def hold(tag):
    h = opt('hold')
    if h and h.split(':')[0] == str(tag):
        n = nlab[0]; nlab[0] += 1
        a(f's_waitcnt lgkmcnt(0)\ns_add_u32 s92, s94, {h.split(":")[1]}')
        a.label(f'L_hold{n}')
        a(f's_memrealtime s[90:91]\ns_waitcnt lgkmcnt(0)\ns_sub_u32 s93, s92, s90\ns_cmp_gt_i32 s93, 0\ns_cbranch_scc1 L_hold{n}')
def bar(i=None):
    a('s_barrier')
    hold(i)
    if i is not None: stamp(i)
def setexec(lo, hi):
    a(f's_mov_b32 exec_lo, {lo:#x}\ns_mov_b32 exec_hi, {hi:#x}')

nlab = [0]; slow = []
def guard():
    if opt('safe'): a('s_sub_u32 s98, s98, 1\ns_cbranch_scc1 L_end')
def signal(v, emit=None):
    a(f'v_mov_b32 v{T[4]}, {v}')
    (emit or a)(f'ds_write_b32 v{vFW}, v{T[4]}')
def poll(grp, v):
    lab = f'L_poll{nlab[0]}'; nlab[0] += 1
    a.label(lab)
    guard()
    a(f'ds_read_b32 v{vFP}, v{vFA} offset:{16*grp}\ns_waitcnt lgkmcnt(0)\nv_cmp_gt_u32 vcc, {v}, v{vFP}\ns_cbranch_vccnz {lab}')
def peek(grp): a(f'ds_read_b32 v{vFP}, v{vFA} offset:{16*grp}')
def check(grp, v):
    n = nlab[0]; nlab[0] += 1
    a(f'v_cmp_gt_u32 vcc, {v}, v{vFP}\ns_cbranch_vccnz L_slow{n}')
    a.label(f'L_back{n}')
    slow.append((n, grp, v))
def emit_slow():
    for n, grp, v in slow:
        a.label(f'L_slow{n}')
        guard()
        a(f'ds_read_b32 v{vFP}, v{vFA} offset:{16*grp}\ns_waitcnt lgkmcnt(0)\nv_cmp_gt_u32 vcc, {v}, v{vFP}\ns_cbranch_vccnz L_slow{n}\ns_branch L_back{n}')
    slow.clear()
def landed(n, v):
    a(f's_waitcnt vmcnt({n})'); signal(v)

def wdma(p, parts=range(6)):
    for i in parts:
        if i < 3:
            a(f'''
            s_add_u32 m0, s{sWBm}, {PS*p + 1024*i}
            s_add_u32 s{sT0}, s{sWA}, {6144*i + 128*p}
            buffer_load_dwordx4 v{vDW1[i & 1]}, {srd(sW1)}, s{sT0} offen lds
            ''')
        else:
            if i == 3 or i - 1 not in parts:
                a(f's_add_u32 m0, s{sWBm}, {PS*p + 12288}\ns_add_u32 s{sT0}, s{sWBm}, {12288*p}')
            a(f'buffer_load_dwordx4 v{vDW2[i-3]}, {srd(sW2)}, s{sT0} offen offset:{1024*(i-3)} lds')

def ln(raw, U, dst, rows16, mid=None, mid2=None):
    n = len(dst)
    S, Q, ONE = T[1], T[3], T[4]
    sc, bi = T[0], T[2]
    a(f'v_mov_b32 v{ONE}, 0x3f803f80')
    un = []
    for i in range(n):
        un.append(f'v_lshlrev_b32 v{U+2*i}, 16, v{raw+i}')
        un.append(f'v_and_b32 v{U+2*i+1}, 0xffff0000, v{raw+i}')
    while len(un) > 8: a(un.pop(0))
    for i in range(n):
        a(f'v_dot2_f32_bf16 v{S}, v{raw+i}, v{ONE}, {"0" if i == 0 else f"v{S}"}')
        a(f'v_dot2_f32_bf16 v{Q}, v{raw+i}, v{raw+i}, {"0" if i == 0 else f"v{Q}"}')
    def fill(k):
        for _ in range(k):
            if un: a(un.pop(0))
    fill(3)
    a(f'v_permlane32_swap_b32 v{S}, v{Q}')
    a(f'v_add_f32 v{S}, v{S}, v{Q}')
    if rows16:
        a(f'v_mov_b32 v{Q}, v{S}')
        fill(2)
        a(f'v_permlane16_swap_b32 v{S}, v{Q}')
        a(f'v_add_f32 v{S}, v{S}, v{Q}')
    a(f'v_mul_f32 v{S}, {fbits(1.0/96):#x}, v{S}')
    a(f'v_mov_b32 v{Q}, v{S}')
    fill(2)
    a(f'v_permlane32_swap_b32 v{S}, v{Q}')
    a(f'''
    v_fma_f32 v{Q}, -v{S}, v{S}, v{Q}
    v_max_f32 v{Q}, 0, v{Q}
    v_add_f32 v{Q}, {fbits(1e-5):#x}, v{Q}
    v_rsq_f32 v{Q}, v{Q}
    ''')
    fill(1)
    a(f'v_mul_f32 v{sc}, {fbits(ga):#x}, v{Q}')
    a(f'v_mul_f32 v{bi}, -v{S}, v{sc}')
    fill(1000)
    if mid: mid()
    for i in range(n):
        if opt('lnplain'):
            a(f'v_fma_f32 v{U+2*i}, v{U+2*i}, v{sc}, v{bi}\nv_fma_f32 v{U+2*i+1}, v{U+2*i+1}, v{sc}, v{bi}')
        else:
            a(f'v_pk_fma_f32 {vr(U+2*i,2)}, {vr(U+2*i,2)}, {vr(sc,2)}, {vr(bi,2)} op_sel_hi:[1,0,0]')
    if mid2: mid2()
    for i in range(n):
        a(f'v_cvt_pk_bf16_f32 v{dst[i]}, v{U+2*i}, v{U+2*i+1}')

def pk_t(Y, K, n):
    return [f'v_pk_fma_f32 {vr(K+2*i,2)}, {vr(Y+2*i,2)}, {vr(Y+2*i,2)}, s[{sCC}:{sCC+1}] neg_lo:[1,0,0] neg_hi:[1,0,0]' for i in range(n//2)] + pk_m(Y, K, n)
def pk_m(Y, K, n): return [f'v_pk_mul_f32 {vr(K+2*i,2)}, {vr(Y+2*i,2)}, {vr(K+2*i,2)}' for i in range(n//2)]
def pk_d(K, n): return [f'v_pk_fma_f32 {vr(K+2*i,2)}, {vr(K+2*i,2)}, s[{sCA}:{sCA+1}], s[{sCA}:{sCA+1}]' for i in range(n//2)]
def emit(l):
    for t in l: a(t)

def mlp32(hooks, prio):
    N = 12
    moved = {'w1': False, 'w2': False}
    def move(kind, c):
        if c >= 6 and not moved[kind]:
            for r in (vAW1 if kind == 'w1' else [vAW2]): a(f'v_add_u32 v{r}, {3*PS}, v{r}')
            moved[kind] = True
    def w1reads(c):
        for ks in range(6):
            off = ((c >> 1) % 3) * PS + (ks >> 1) * 4096 + (ks & 1) * 1024
            r = vAW1[(c & 1) + 2 * (ks & 1)]
            a(f'ds_read_b64_tr_b16 {vr(vF1+4*ks,2)}, v{r} offset:{off}')
            a(f'ds_read_b64_tr_b16 {vr(vF1+4*ks+2,2)}, v{r} offset:{off+512}')
    def w2reads(c):
        for i in range(6):
            ks2, mt = i // 3, i % 3
            off = ((c >> 1) % 3) * PS + (c & 1) * 6144 + ks2 * 3072 + mt * 64
            a(f'ds_read_b64_tr_b16 {vr(vF2+4*i,2)}, v{vAW2} offset:{off}')
            a(f'ds_read_b64_tr_b16 {vr(vF2+4*i+2,2)}, v{vAW2} offset:{off+1536}')
    def g1(c, ks):
        Y = vY[c & 1]
        a(f'v_mfma_f32_32x32x16_bf16 {vr(Y,16)}, {vr(vF1+4*ks,4)}, {vr(vL+4*ks,4)}, {"0" if ks == 0 else vr(Y,16)}')
    def g2(i):
        ks2, mt = i // 3, i % 3
        a(f'v_mfma_f32_32x32x16_bf16 {vr(vO+16*mt,16)}, {vr(vF2+4*i,4)}, {vr(vG+4*ks2,4)}, {vr(vO+16*mt,16)}')
    def resm(ks):
        j, mt = ks // 3, ks % 3
        a(f'v_mfma_f32_32x32x16_bf16 {vr(vO+16*mt,16)}, {vr(vID+4*j,4)}, {vr(vRES+4*(2*mt+j),4)}, {"0" if j == 0 else vr(vO+16*mt,16)}')
    def hook(k):
        for f in hooks.get(k, []): f()
    def pr(c, v):
        if prio(c) is not None: a(f's_setprio {prio(c)[v]}')
    hook('pre')
    a('s_waitcnt lgkmcnt(0)')
    for ks in range(6): g1(0, ks)
    w1reads(1)
    hook('start3')
    for c in range(N + 1):
        Y, K = vY[c & 1], vK[c & 1]
        Yp, Kp = vY[(c - 1) & 1], vK[(c - 1) & 1]
        pr(c, 1)
        if c >= 1: emit(pk_m(Yp, Kp, 16))
        if c < N: emit(pk_t(Y, K, 16))
        cv = [f'v_cvt_pk_bf16_f32 v{vG+i}, v{Kp+2*i}, v{Kp+2*i+1}' for i in range(8)] if c >= 1 else []
        if c == N:
            emit(cv)
            a('s_waitcnt lgkmcnt(0)')
            for i in (0, 3, 1, 4, 2, 5): g2(i)
            break
        ex = [f'v_exp_f32 v{K+i}, v{K+i}' for i in range(16)]
        rc = [f'v_rcp_f32 v{K+i}, v{K+i}' for i in range(16)]
        last = c + 1 >= N
        if c + 2 < N: move('w1', c + 2)
        move('w2', c)
        if c == 0:
            gaps = [ex[0:3], ex[3:6], ex[6:9], ex[9:12], ex[12:15], ex[15:16]]
            a('s_waitcnt lgkmcnt(0)')
            for j in range(6):
                g1(1, j); emit(gaps[j])
        elif not last:
            gaps = [cv[0:4] + ex[0:1], cv[4:8] + ex[1:2], ex[2:5], ex[5:8], ex[8:11], ex[11:14], ex[14:16]]
            for j in range(7):
                if j < 6: g1(c + 1, j)
                else: g2(0)
                if j == 5: a('s_waitcnt lgkmcnt(0)')
                emit(gaps[j])
        else:
            emit(cv); emit(ex[0:4])
            a('s_waitcnt lgkmcnt(0)')
            gaps = [ex[4:8], ex[8:12], ex[12:16]]
            for j in range(3):
                g2(j); emit(gaps[j])
        hook(('preT1', c))
        pr(c, 0)
        if c + 2 < N: w1reads(c + 2)
        hook(('T1', c))
        pr(c, 1)
        emit(pk_d(K, 16))
        if c == 0:
            gp = [rc[0:3], rc[3:6], rc[6:9], rc[9:12], rc[12:14], rc[14:16]]
            for j in range(6):
                resm(j)
                if j == 5: a('s_waitcnt lgkmcnt(0)')
                emit(gp[j])
        elif not last:
            gp = [rc[0:3], rc[3:6], rc[6:9], rc[9:12], rc[12:16]]
            for j in range(5):
                g2(j + 1)
                if j == 4: a('s_waitcnt lgkmcnt(0)')
                emit(gp[j])
        else:
            gp = [rc[0:3], rc[3:6], rc[6:16]]
            for j in range(3):
                g2(j + 3)
                if j == 2: w2reads(c)
                emit(gp[j])
        hook(('preT2', c))
        pr(c, 0)
        if not last: w2reads(c)
        hook(('T2', c))
    return w1reads

def f_w1reads0():
    for ks in range(6):
        off = (ks >> 1) * 4096 + (ks & 1) * 1024
        r = vAW1[2 * (ks & 1)]
        a(f'ds_read_b64_tr_b16 {vr(vF1+4*ks,2)}, v{r} offset:{off}')
        a(f'ds_read_b64_tr_b16 {vr(vF1+4*ks+2,2)}, v{r} offset:{off+512}')

def l_w1reads(s):
    for i in range(6):
        mt2, ks3 = i // 3, i % 3
        off = ((s >> 2) & 1) * 2 * PS + ks3 * 4096
        r = vLW1 + mt2 + 2 * (s & 3)
        a(f'ds_read_b64_tr_b16 {vr(vF1+4*i,2)}, v{r} offset:{off}')
        a(f'ds_read_b64_tr_b16 {vr(vF1+4*i+2,2)}, v{r} offset:{off+512}')

def mlp16(doubles, hooks, prio):
    N = 12
    def wid(s): return 0 if (s < 0 or s >= N) else (2 if s in doubles else 1)
    def move(base):
        for r in range(8): a(f'v_add_u32 v{base+r}, {4*PS}, v{base+r}')
    def w2reads(s):
        for i in range(6):
            off = ((s >> 2) & 1) * 2 * PS + 64 * (i >> 1)
            r = vLW2 + (i & 1) + 2 * (s & 3)
            a(f'ds_read_b64_tr_b16 {vr(vF2+4*i,2)}, v{r} offset:{off}')
            a(f'ds_read_b64_tr_b16 {vr(vF2+4*i+2,2)}, v{r} offset:{off+3072}')
    def m1(s):
        l = []
        for t in range(wid(s)):
            for j in range(6):
                mt2, ks3 = j & 1, j >> 1
                D = vY[s & 1] + 8 * t + 4 * mt2
                l.append(f'v_mfma_f32_16x16x32_bf16 {vr(D,4)}, {vr(vF1+4*(mt2*3+ks3),4)}, {vr(vL+12*t+4*ks3,4)}, {"0" if ks3 == 0 else vr(D,4)}')
        return l
    def m2(s):
        return [f'v_mfma_f32_16x16x32_bf16 {vr(vO+24*t+4*i,4)}, {vr(vF2+4*i,4)}, {vr(vG+4*t,4)}, {vr(vO+24*t+4*i,4)}' for t in range(wid(s)) for i in range(6)]
    def weave(ms, fl):
        fl = list(fl)
        if not ms:
            emit(fl); a('s_waitcnt lgkmcnt(0)'); return
        for j, m in enumerate(ms):
            a(m)
            if j == len(ms) - 1: a('s_waitcnt lgkmcnt(0)')
            k = -(-len(fl) // (len(ms) - j))
            emit(fl[:k]); fl = fl[k:]
    def hook(k):
        for f in hooks.get(k, []): f()
    def pr(c, v):
        if prio(c) is not None: a(f's_setprio {prio(c)[v]}')
    hook('pre')
    a('s_waitcnt lgkmcnt(0)')
    emit(m1(0))
    l_w1reads(1)
    hook('start3')
    for s in range(N + 1):
        Y, K = vY[s & 1], vK[s & 1]
        Yp, Kp = vY[(s - 1) & 1], vK[(s - 1) & 1]
        n, np_ = 8 * wid(s), 8 * wid(s - 1)
        pr(s, 1)
        emit(pk_m(Yp, Kp, np_))
        emit(pk_t(Y, K, n))
        cv = [f'v_cvt_pk_bf16_f32 v{vG+i}, v{Kp+2*i}, v{Kp+2*i+1}' for i in range(np_ // 2)]
        if s == N:
            emit(cv)
            a('s_waitcnt lgkmcnt(0)')
            emit(m2(N - 1))
            break
        ex = [f'v_exp_f32 v{K+i}, v{K+i}' for i in range(n)]
        rc = [f'v_rcp_f32 v{K+i}, v{K+i}' for i in range(n)]
        if s + 2 == 8: move(vLW1)
        if s == 8: move(vLW2)
        if s == 0: a('s_waitcnt lgkmcnt(0)')
        weave(m1(s + 1), cv + ex)
        hook(('preT1', s))
        pr(s, 0)
        if s + 2 < N: l_w1reads(s + 2)
        hook(('T1', s))
        pr(s, 1)
        emit(pk_d(K, n))
        weave(m2(s - 1), rc)
        hook(('preT2', s))
        pr(s, 0)
        w2reads(s)
        hook(('T2', s))

def finish():
    if opt('amp'):
        n = nlab[0]; nlab[0] += 1
        a(f's_waitcnt vmcnt(0) lgkmcnt(0)\ns_sub_u32 s92, s88, s94\ns_lshl_b32 s92, s92, 2\ns_cmp_eq_u32 s88, 0\ns_cselect_b32 s92, 0, s92')
        a(f's_cmp_eq_u32 s{sH13}, {opt("amprows", 13)}\ns_cselect_b32 s92, s92, 0\ns_add_u32 s92, s92, 1400\ns_add_u32 s92, s92, s94')
        a.label(f'L_amp{n}')
        a(f's_memrealtime s[90:91]\ns_waitcnt lgkmcnt(0)\ns_sub_u32 s93, s92, s90\ns_cmp_gt_i32 s93, 0\ns_cbranch_scc1 L_amp{n}')
    if STAMP:
        stamp(14)
        a('s_waitcnt vmcnt(0)')
        stamp(15)
        a('s_waitcnt lgkmcnt(0)')
        if opt('dbg'):
            n = nlab[0]; nlab[0] += 1
            a(f's_cmp_lg_u32 s2, {opt("dbg")}\ns_cbranch_scc1 L_nd{n}\ns_cmp_lg_u32 s{sWI}, 0\ns_cbranch_scc1 L_nd{n}')
            a(f's_lshl_b32 s{sT0}, s{sWV}, 3\nv_mov_b32 v{T[1]}, s{sT0}\ns_mov_b64 exec, 1')
            for k, i in enumerate((1, 2, 3, 4, 8, 10, 13, 15)):
                a(f's_sub_u32 s{sT0}, s{sST+2*i}, s{sST}\nv_mov_b32 v{T[0]}, s{sT0}')
                a(f'buffer_store_dword v{T[0]}, v{T[1]}, {srd(sWS)}, 0 offen offset:{4*k}')
            a.label(f'L_nd{n}')
            a('s_endpgm')
            return
        a(f'''
        s_lshl_b32 s{sT0}, s2, 3
        s_add_u32 s{sT0}, s{sT0}, s{sWV}
        s_lshl_b32 s{sT0}, s{sT0}, 6
        v_mov_b32 v{T[1]}, s{sT0}
        s_mov_b64 exec, 1
        ''')
        for i in range(NST):
            a(f'v_mov_b32 v{T[0]}, s{sST+2*i}')
            a(f'buffer_store_dword v{T[0]}, v{T[1]}, {srd(sWS)}, 0 offen offset:{4*i}')
    a('s_endpgm')

def tab_reads(gi, em):
    A = vAFR + 20 * gi; o = 64 * gi
    for d in range(3):
        em(f'ds_read_b64_tr_b16 {vr(A+4*d,2)}, v{vTF0} offset:{o + 2*d*TP}')
        em(f'ds_read_b64_tr_b16 {vr(A+4*d+2,2)}, v{vTF1} offset:{o + 2*d*TP}')
    for par in range(2):
        for pp in range(2):
            em(f'ds_read_b64_tr_b16 {vr(A+12+4*par+2*pp,2)}, v{vTE} offset:{o + (pp - 2*par + 2)*TP}')
RING = 6
class Conv:
    def __init__(self, k0): self.n = 0; self.slot = 0; self.k0 = k0
    def acc(self, gi, k): return vACC + 16 * gi + 4 * (k - self.k0)
    def ds(self, t): a(t); self.n += 1; return self.n
    def wait(self, seq): a(f's_waitcnt lgkmcnt({min(15, self.n - seq)})')
    def reads(self, it):
        B = it['B']; go = 64 * it['gi']; idx = it['idx']; kind = it['kind']
        if kind == 'F':
            r0, r1 = 2 * idx, min(2 * idx + 1, 16)
            return [f'ds_read_b128 {vr(B,4)}, v{vAF} offset:{r0*XROW+go}', f'ds_read_b128 {vr(B+4,4)}, v{vAF} offset:{r1*XROW+go}']
        if kind == 'E':
            return [f'ds_read_b128 {vr(B,4)}, v{vAE} offset:{2*idx*XROW+go}', f'ds_read_b128 {vr(B+4,4)}, v{vAE} offset:{(2*idx+4)*XROW+go}']
        return [f'ds_read_b128 {vr(B,4)}, v{vAE} offset:{12*XROW+go}', f'ds_read_b128 {vr(B+4,4)}, v{vAE16} offset:{16*XROW+go}']
    def cvt(self, lst):
        for gi, k in lst:
            A = self.acc(gi, k)
            a(f'v_cvt_pk_bf16_f32 v{A}, v{A}, v{A+1}\nv_cvt_pk_bf16_f32 v{A+1}, v{A+2}, v{A+3}')
    def write(self, lst):
        for gi, k in lst:
            A = self.acc(gi, k)
            if k == 6: setexec(0xffff, 0xffff)
            self.ds(f'ds_write_b64 v{vAO}, {vr(A,2)} offset:{(k-self.k0)*6144+64*gi}')
            if k == 6: a('s_mov_b64 exec, -1')
    def run(self, items, stop_at=None):
        D = RING - 1
        nxt = 0
        while nxt < len(items) and 'seq' in items[nxt]: nxt += 1
        def start(j):
            items[j]['B'] = vB + 8 * (self.slot % RING); self.slot += 1
            return self.reads(items[j])
        while nxt < min(D, len(items)):
            for t in start(nxt): items[nxt]['seq'] = self.ds(t)
            nxt += 1
        end = len(items) if stop_at is None else stop_at
        for i in range(end):
            it = items[i]
            self.wait(it['seq'])
            pend = start(nxt) if nxt < len(items) else []
            A = vAFR + 20 * it['gi']
            had = bool(pend)
            for k in it['outs']:
                fr = (it['idx'] - k) if it['kind'] == 'F' else 3 + (k - it['idx'])
                a(f'v_smfmac_f32_16x16x64_bf16 {vr(self.acc(it["gi"], k),4)}, {vr(A+4*fr,4)}, {vr(it["B"],8)}, v{vIDX}')
                if pend: items[nxt]['seq'] = self.ds(pend.pop(0))
            for t in pend: items[nxt]['seq'] = self.ds(t)
            if had: nxt += 1
            if it.get('pub'):
                self.cvt(it['pub'])
                if not it.get('nowrite'): self.write(it['pub'])
            if it.get('post'): it['post']()
        return items[end:]
def stage(frags): return [dict(gi=gi, kind=k, idx=i, outs=list(o)) for gi in range(3) for (k, i, o) in frags]
def add_pub(items, base, nfr, pairs, nowrite=False):
    for gi in range(3):
        j = min(base + nfr * (gi + 1), len(items) - 1)
        items[j].setdefault('pub', []).extend((gi, k) for k in pairs)
        items[j]['nowrite'] = nowrite

def late_setup():
    mksrd(sOUT, 14, XBYTES)
    if opt('safe'): a('s_mov_b32 s98, 20000')
    a(f'''
    s_mov_b32 s{sCA}, {fbits(ga):#x}
    s_mov_b32 s{sCA+1}, {fbits(ga):#x}
    s_mov_b32 s{sCC}, {fbits(gc):#x}
    s_mov_b32 s{sCC+1}, {fbits(gc):#x}
    s_add_u32 s{sT0}, s{sWI}, s{sY0}
    s_mul_i32 s{sT0}, s{sT0}, 224
    s_add_u32 s{sT0}, s{sT0}, s{sX0}
    s_mul_i32 s{sO0}, s{sT0}, 192
    ''')
    if STAMP:
        a(f's_mov_b32 s{sWS+2}, {256 if opt("dbg") else 0x10000000}\ns_mov_b32 s{sWS+3}, 0x00020000')
        for i in (7,): a(f's_mov_b32 s{sST+2*i}, 0')
    for j in range(3):
        a(f'''
        v_add_u32 v{T[0]}, {64*j}, v{vLN}
        v_mul_u32_u24 v{T[2]}, 171, v{T[0]}
        v_bfe_u32 v{T[2]}, v{T[2]}, 12, 2
        v_xor_b32 v{T[0]}, v{T[0]}, v{T[2]}
        v_lshl_add_u32 v{vSR[j]}, v{T[0]}, 4, s{sIMG}
        ''')

def conv_setup1():
    a(f'''
; table read: source lane r=(l>>2)&3, chalf=(l>>1)&1, s=l&1, qa=l>>4; tbl=r&1; valid iff (r>>1)==chalf
v_and_b32 v{T[0]}, 3, v{vLN}
v_mul_u32_u24 v{vIDX}, 0x5555, v{T[0]}
s_lshl_b32 s{sT2}, s{sWI}, 4
s_add_u32 s{sT2}, s{sT2}, {TB}
v_bfe_u32 v{T[1]}, v{vLN}, 1, 1
v_lshl_add_u32 v{T[4]}, v{T[1]}, 3, s{sT2}
v_and_b32 v{T[0]}, 1, v{vLN}
v_lshrrev_b32 v{T[1]}, 5, v{vLN}
v_mul_u32_u24 v{vTE}, {TP}, v{T[1]}
v_sub_u32 v{T[1]}, v{T[1]}, v{T[0]}
v_bfe_u32 v{T[2]}, v{vLN}, 2, 1
v_mul_u32_u24 v{T[2]}, 7, v{T[2]}
v_sub_u32 v{T[1]}, v{T[1]}, v{T[2]}
v_add_u32 v{T[1]}, 8, v{T[1]}
v_mul_u32_u24 v{T[1]}, {TP}, v{T[1]}
v_bfe_u32 v{T[2]}, v{vLN}, 4, 1
v_mul_u32_u24 v{T[2]}, 192, v{T[2]}
v_add3_u32 v{T[3]}, v{T[1]}, v{T[2]}, v{T[4]}
v_lshrrev_b32 v{T[1]}, 4, v{vLN}
v_lshlrev_b32 v{T[2]}, 1, v{T[1]}
v_sub_u32 v{T[2]}, v{T[2]}, v{T[0]}
v_add_u32 v{T[2]}, 6, v{T[2]}
v_mul_u32_u24 v{T[2]}, {TP}, v{T[2]}
v_add_u32 v{vTF0}, s{sT2}, v{vTE}
v_add_u32 v{vTF1}, {TP}, v{vTF0}
v_mov_b32 v{vTE}, s{sT2}
s_mov_b32 exec_lo, 0xcc33cc33
s_mov_b32 exec_hi, 0xcc33cc33
v_mov_b32 v{vTF0}, v{T[3]}
v_add_u32 v{vTF1}, 384, v{T[3]}
s_mov_b32 exec_lo, 0x0c030c03
s_mov_b32 exec_hi, 0x0c030c03
v_add_u32 v{T[2]}, 768, v{T[2]}
v_add_u32 v{vTE}, v{T[2]}, v{T[4]}
s_mov_b64 exec, -1
v_and_b32 v{T[0]}, 15, v{vLN}
v_bfe_u32 v{T[2]}, v{vLN}, 4, 1
v_lshrrev_b32 v{T[3]}, 5, v{vLN}
v_lshl_add_u32 v{T[2]}, v{T[2]}, 1, v{T[3]}
v_add_u32 v{T[2]}, v{T[0]}, v{T[2]}
v_bfe_u32 v{T[3]}, v{T[2]}, 2, 2
v_xor_b32 v{T[3]}, s{sWI}, v{T[3]}
v_mul_u32_u24 v{T[2]}, 192, v{T[2]}
v_lshl_add_u32 v{vAF}, v{T[3]}, 4, v{T[2]}
v_add_u32 v{vAF}, {XB}, v{vAF}
''')
def conv_setup2(em=None):
    for i in range(24): a(f'v_mov_b64 {vr(vACC+2*i,2)}, 0')
    a(f'''
v_and_b32 v{T[0]}, 3, v{vLN}
v_lshlrev_b32 v{vFA}, 2, v{T[0]}
v_add_u32 v{vFA}, {FL}, v{vFA}
s_lshl_b32 s{sT0}, s{sWV}, 2
s_add_u32 s{sT0}, s{sT0}, {FL}
v_mov_b32 v{vFW}, s{sT0}
v_mov_b32 v{vFP}, 0
ds_write_b32 v{vFW}, v{vFP}
v_and_b32 v{T[0]}, 15, v{vLN}
v_lshrrev_b32 v{T[1]}, 4, v{vLN}
v_add_u32 v{T[2]}, 4, v{T[0]}
v_bfe_u32 v{T[3]}, v{T[2]}, 2, 2
v_xor_b32 v{T[3]}, s{sWI}, v{T[3]}
v_mul_u32_u24 v{T[2]}, 192, v{T[2]}
v_lshl_add_u32 v{vAE}, v{T[3]}, 4, v{T[2]}
v_add_u32 v{vAE16}, {XB}, v{vAE}
v_mul_u32_u24 v{T[2]}, {XROW}, v{T[1]}
v_add_u32 v{vAE}, v{vAE16}, v{T[2]}
v_bfe_u32 v{T[3]}, v{T[0]}, 2, 2
v_xor_b32 v{T[4]}, s{sWI}, v{T[3]}
v_mul_u32_u24 v{T[2]}, 192, v{T[0]}
v_lshl_add_u32 v{T[2]}, v{T[4]}, 4, v{T[2]}
v_bfe_u32 v{T[1]}, v{vLN}, 4, 1
v_mul_u32_u24 v{T[1]}, 3072, v{T[1]}
v_lshrrev_b32 v{T[3]}, 5, v{vLN}
v_bfe_u32 v{T[4]}, v{vLN}, 1, 1
v_xor_b32 v{T[3]}, v{T[3]}, v{T[4]}
v_lshl_add_u32 v{T[1]}, v{T[3]}, 3, v{T[1]}
v_add3_u32 v{vAO}, v{T[2]}, v{T[1]}, s{sOB}
''')

def dma_setup():
    mksrd(sW1, 10, 73728); mksrd(sW2, 12, 73728)
    a(f'''
    v_lshrrev_b32 v{T[0]}, 3, v{vLN}
    v_mul_u32_u24 v{T[0]}, 768, v{T[0]}
    v_bfe_u32 v{T[1]}, v{vLN}, 4, 1
    v_lshlrev_b32 v{T[1]}, 2, v{T[1]}
    v_and_b32 v{T[2]}, 7, v{vLN}
    v_xor_b32 v{T[1]}, v{T[1]}, v{T[2]}
    v_lshl_add_u32 v{T[0]}, v{T[1]}, 4, v{T[0]}
    s_and_b32 s{sT1}, s{sWI}, 1
    s_lshl_b32 s{sT0}, s{sT1}, 5
    v_xor_b32 v{vDW1[0]}, s{sT0}, v{T[0]}
    v_xor_b32 v{vDW1[1]}, 32, v{vDW1[0]}
    v_mov_b32 v{vDW2[0]}, v{vL16}
    v_mov_b32 v{vDW2[1]}, v{vL16}
    v_mov_b32 v{vDW2[2]}, v{vL16}
    s_mov_b32 exec_lo, 0xffff0000
    v_xor_b32 v{vDW2[2]}, 32, v{vL16}
    s_mov_b32 exec_lo, 0
    s_mov_b32 exec_hi, 0xffff0000
    v_xor_b32 v{vDW2[0]}, 32, v{vL16}
    s_mov_b32 exec_lo, -1
    s_mov_b32 exec_hi, 0
    v_xor_b32 v{vDW2[1]}, 32, v{vL16}
    s_mov_b64 exec, -1
    s_mul_i32 s{sWA}, s{sWI}, {3*6144}
    s_mul_i32 s{sWBm}, s{sWI}, 3072
    ''')

TM = opt('touch', '12o')
TOUCH = chr(10).join(t for k, t in (('l', 's_load_dword s76, s[6:7], 0'), ('x', f's_load_dword s77, s[4:5], s{sT0}'), ('1', 's_load_dword s78, s[10:11], 0'),
        ('2', 's_load_dword s79, s[12:13], 0'), ('o', f's_load_dword s80, s[14:15], s{sT0}')) if k in TM)
isF = 's_cmp_lt_u32' if FOLD else 's_cmp_ge_u32'
a(f'''
s_load_dwordx4 s[4:7], s[0:1], 0
s_load_dwordx4 s[8:11], s[0:1], 16
s_load_dwordx4 s[12:15], s[0:1], 32
s_getpc_b64 s[100:101]
L_pc:
''')
if STAMP: a(f's_load_dwordx2 s[{sWS}:{sWS+1}], s[0:1], {48 if opt("dbg") else 56}')
stamp(0)
if opt('hold') or opt('amp'): a('s_memrealtime s[94:95]\ns_mov_b32 s88, 0')
a(f'''
s_cmp_ge_u32 s2, 256
s_cbranch_scc1 L_end
v_lshrrev_b32 v{T[0]}, 6, v0
v_and_b32 v{vLN}, 63, v0
''')
PFM = opt('pf', 'h')
if PFM == 'first':
    a(f'''
    s_bfe_u32 s{sT3}, s2, 0x20003
    s_mul_i32 s{sT3}, s{sT3}, {80*128}
    v_mul_u32_u24 v{T[1]}, 10, v{T[0]}
    v_add_u32 v{T[1]}, v{T[1]}, v{vLN}
    v_lshl_add_u32 v{T[1]}, v{T[1]}, 7, s{sT3}
    v_min_u32 v{T[1]}, L_end-L_pc, v{T[1]}
    s_mov_b64 exec, 0x3ff
    global_load_dword v{vPF}, v{T[1]}, s[100:101]
    s_mov_b64 exec, -1
    ''')
a(f'''
s_lshr_b32 s{sT1}, s2, 3
v_readfirstlane_b32 s{sWV}, v{T[0]}
s_and_b32 s{sT2}, s2, 1
s_add_u32 s{sT2}, s{sT2}, s{sT1}
s_cmp_ge_u32 s{sT2}, 32
s_cbranch_scc1 L_end
s_and_b32 s{sT0}, s2, 3
v_mul_u32_u24 v{T[0]}, 43, v{vLN}
s_mul_i32 s{sT0}, s{sT0}, 63
s_add_u32 s{sT0}, s{sT0}, 1
v_lshrrev_b32 v{T[0]}, 9, v{T[0]}
s_lshr_b32 s{sT0}, s{sT0}, 1
s_add_u32 s{sT0}, s{sT0}, s{sT1}
v_mul_u32_u24 v{T[1]}, 12, v{T[0]}
s_mul_i32 s{sT1}, s{sT0}, 9363
s_lshr_b32 s{sT1}, s{sT1}, 16
v_sub_u32 v{T[1]}, v{vLN}, v{T[1]}
s_mul_i32 s{sT2}, s{sT1}, 7
s_sub_u32 s{sT0}, s{sT0}, s{sT2}
s_bfe_u32 s{sT2}, s2, 0x10002
s_mul_i32 s{sT2}, s{sT2}, 7
s_add_u32 s{sT0}, s{sT0}, s{sT2}
s_lshl_b32 s{sX0}, s{sT0}, 4
s_mul_i32 s{sY0}, s{sT1}, {112*7282}
s_add_u32 s{sH13}, s{sY0}, {112*7282}
s_lshr_b32 s{sY0}, s{sY0}, 16
s_lshr_b32 s{sH13}, s{sH13}, 16
s_sub_u32 s{sH13}, s{sH13}, s{sY0}
s_and_b32 s{sWI}, s{sWV}, 3
''')
if PFM == 'h':
    a(f'''
    s_cmp_eq_u32 s{sH13}, 13
    s_cbranch_scc1 L_nopf
    s_bfe_u32 s{sT3}, s2, 0x20003
    s_lshl_b32 s{sT3}, s{sT3}, 3
    s_add_u32 s{sT3}, s{sT3}, s{sWV}
    s_mul_i32 s{sT3}, s{sT3}, {10*128}
    v_lshl_add_u32 v{T[2]}, v{vLN}, 7, s{sT3}
    v_min_u32 v{T[2]}, L_end-L_pc, v{T[2]}
    s_mov_b64 exec, 0x3ff
    global_load_dword v{vPF}, v{T[2]}, s[100:101]
    s_mov_b64 exec, -1
    L_nopf:
    ''')
a(f'''
v_mov_b32 v{T[4]}, {MARK}
v_lshlrev_b32 v{vL16}, 4, v{vLN}
s_mul_i32 s{sT1}, s{sWI}, 5
v_add_u32 v{T[0]}, s{sT1}, v{T[0]}
v_bfe_u32 v{T[2]}, v{T[0]}, 2, 2
v_xor_b32 v{T[1]}, v{T[1]}, v{T[2]}
s_sub_u32 s{sT1}, s{sX0}, 2
v_add_u32 v{T[0]}, s{sT1}, v{T[0]}
v_mul_u32_u24 v{T[2]}, 192, v{T[0]}
v_cmp_gt_u32 vcc, 224, v{T[0]}
v_lshl_add_u32 v{T[2]}, v{T[1]}, 4, v{T[2]}
s_mul_i32 s{sXM}, s{sWI}, 960
s_mov_b32 s99, 43008
v_cndmask_b32 v{vXO}, v{T[4]}, v{T[2]}, vcc
s_sub_u32 s{sT1}, s{sY0}, 2
s_mul_i32 s{sT1}, s{sT1}, s99
v_add_u32 v{vXO}, s{sT1}, v{vXO}
s_mov_b32 s{sX+2}, {XBYTES}
s_mov_b32 s{sX+3}, 0x00020000
{isF} s{sWV}, 4
s_cbranch_scc1 L_F0
; tables: A = 5x5 row i ; B = 3x3 row i (i<3, lanes 12..47) or 5x5 row 4 (i==3)
s_mov_b32 s{sDS+2}, 4800
s_mov_b32 s{sDS+3}, 0x00020000
s_mov_b32 s{sDL+3}, 0x00020000
s_mul_i32 s{sT3}, s{sWI}, {TP}
s_mul_i32 s{sT2}, s{sWI}, 576
s_sub_u32 s{sT2}, s{sT2}, 192
s_add_u32 s{sT1}, s{sT3}, {TB + 2*TP}
s_cmp_eq_u32 s{sWI}, 3
s_cselect_b32 s{sDL+2}, s{sDS+2}, 1728
s_cselect_b32 s{sT2}, 3840, s{sT2}
s_cselect_b32 s{sT1}, {TB + 12*TP}, s{sT1}
s_cselect_b32 exec_lo, -1, 0xfffff000
s_cselect_b32 exec_hi, -1, 0xffff
v_add_u32 v{T[4]}, s{sT2}, v{vL16}
s_mov_b32 exec_lo, -1
s_mov_b32 exec_hi, 0x0fffffff
s_add_u32 m0, s{sT3}, {TB + 8*TP}
s_cmp_eq_u32 s{sWI}, 3
s_waitcnt lgkmcnt(0)
{ap('Lk')}
s_mov_b64 s[{sDS}:{sDS+1}], s[8:9]
s_cselect_b64 s[{sDL}:{sDL+1}], s[8:9], s[6:7]
buffer_load_dwordx4 v{vL16}, {srd(sDS)}, s{sXM} offen lds
s_mov_b32 m0, s{sT1}
s_mov_b64 s[{sX}:{sX+1}], s[4:5]
buffer_load_dwordx4 v{T[4]}, {srd(sDL)}, 0 offen lds
s_add_u32 m0, s{sXM}, {XB}
s_movk_i32 s{sXM}, {XROW}
''')
xl = [0]
def xrows(n):
    for _ in range(n):
        t = xl[0]; xl[0] += 1
        if t:
            a(f's_add_u32 m0, m0, s{sXM}')
            a(f'v_add_u32 v{vXO}, s99, v{vXO}')
        a(f'buffer_load_dwordx4 v{vXO}, {srd(sX)}, 0 offen{XPOL} lds')
NX0 = int(opt('nx0', 8))
if opt('amp') == 'x1':
    xrows(1); a('s_waitcnt vmcnt(0)'); a(ap('x1')); xrows(NX0 - 1)
else:
    xrows(NX0)
for k_ in (4, 8, 12, 17):
    if opt('amp') == f'x{k_}': a(f's_waitcnt vmcnt({NX0 - k_})'); a(ap(f'x{k_}'))
a(ap('Li'))
stamp(1)
a(f'''
s_branch L_L
L_F0:
; ---- F: conv weight tables, rows w and w+4 of both
s_setprio {opt("fprio", 2)}
s_mul_i32 s{sIMG}, s{sWI}, 6144
s_mov_b32 s{sOB}, {OUTF}
s_mul_i32 s{sT0}, s{sY0}, 43008
s_cmp_lg_u32 s{sWI}, 0
s_cbranch_scc1 L_nozero
v_add_u32 v{T[0]}, {TB}, v{vL16}
v_mov_b64 v[0:1], 0
v_mov_b64 v[2:3], 0
''')
for off in (0, 2*TP - 1024, 5*TP, 5*TP + 1024, 8*TP - 1024, 13*TP, 13*TP + 1024, 16*TP - 1024):
    a(f'ds_write_b128 v{T[0]}, v[0:3] offset:{off}')
a(f'''
L_nozero:
s_waitcnt lgkmcnt(0)
{TOUCH}
''')
WPF = opt('wpf', '0') == '1'
if PFM in ('f', 'g'):
    if PFM == 'g': a(f's_cmp_eq_u32 s{sH13}, 13\ns_cselect_b32 s97, 1, 0xfffff')
    a(f'''
    s_bfe_u32 s{sT3}, s2, 0x20003
    s_lshl_b32 s{sT3}, s{sT3}, 2
    s_add_u32 s{sT3}, s{sT3}, s{sWI}
    s_mul_i32 s{sT3}, s{sT3}, {20*128}
    v_lshl_add_u32 v{T[1]}, v{vLN}, 7, s{sT3}
    v_min_u32 v{T[1]}, L_end-L_pc, v{T[1]}
    {'s_mov_b64 exec, 0xfffff' if PFM == 'f' else f's_cmp_eq_u32 s{sH13}, 13'+chr(10)+f's_cselect_b32 s{sT3}, 0, -1'+chr(10)+f'v_and_b32 v{T[1]}, s{sT3}, v{T[1]}'+chr(10)+'s_mov_b32 exec_lo, s97'+chr(10)+'s_mov_b32 exec_hi, 0'}
    global_load_dword v{vPF}, v{T[1]}, s[100:101]
    s_mov_b64 exec, -1
    ''')
if WPF:
    a(f'''
    s_and_b32 s{sT0}, s{sWI}, 1
    s_cselect_b64 s[{sT1}:{sT2}], s[12:13], s[10:11]
    s_lshr_b32 s{sT0}, s2, 3
    s_lshl_b32 s{sT0}, s{sT0}, 1
    s_lshr_b32 s{sT3}, s{sWI}, 1
    s_add_u32 s{sT0}, s{sT0}, s{sT3}
    s_mul_i32 s{sT0}, s{sT0}, {10*128}
    v_lshl_add_u32 v{T[0]}, v{vLN}, 7, s{sT0}
    v_min_u32 v{T[0]}, {73728-128}, v{T[0]}
    s_mov_b64 exec, 0x3ff
    global_load_dword v{vPF-1}, v{T[0]}, s[{sT1}:{sT2}]
    s_mov_b64 exec, -1
    ''')
a(ap('Ft'))
if opt('amp') == 'tab': a('s_waitcnt vmcnt(0)'); a(ap('tab'))
conv_setup1()
a(ap('Fc'))
OPF = opt('opf', '0') == '1'
if OPF:
    a(f'''
    s_mov_b64 exec, 1
    buffer_load_dword v{vPF-2}, v{vL16}, {srd(sOUT)}, s{sO0} offen
    s_mov_b64 exec, -1
    ''')
vFR = [48, 49, 50, 51]
vDW1[:] = [56, 57]; vDW2[:] = [58, 59, 60]
def f_setup1():
    a(f'''
    s_add_u32 s{sO1}, s{sO0}, {4*43008}
    v_lshrrev_b32 v{T[4]}, 5, v{vLN}
    v_bfe_u32 v{T[0]}, v{vLN}, 2, 2
    v_bfe_u32 v{T[1]}, v{vLN}, 4, 1
    v_and_b32 v{T[2]}, 3, v{vLN}
    v_lshl_add_u32 v{T[3]}, v{T[4]}, 4, v{T[0]}
    v_lshlrev_b32 v{T[3]}, 7, v{T[3]}
    v_lshl_add_u32 v{T[3]}, v{T[1]}, 5, v{T[3]}
    v_lshl_add_u32 v{T[3]}, v{T[2]}, 3, v{T[3]}
    v_bfe_u32 v{T[2]}, v{vLN}, 3, 1
    v_lshl_add_u32 v{vAW1[0]}, v{T[2]}, 6, v{T[3]}
    v_xor_b32 v{vAW1[1]}, 64, v{vAW1[0]}
    v_xor_b32 v{vAW1[2]}, 32, v{vAW1[0]}
    v_xor_b32 v{vAW1[3]}, 0x60, v{vAW1[0]}
    v_lshl_add_u32 v{T[3]}, v{T[4]}, 2, v{T[0]}
    v_mul_u32_u24 v{T[3]}, 192, v{T[3]}
    v_lshl_add_u32 v{T[3]}, v{T[1]}, 4, v{T[3]}
    v_and_b32 v{T[2]}, 1, v{vLN}
    v_xor_b32 v{T[2]}, v{T[2]}, v{T[4]}
    v_lshl_add_u32 v{T[3]}, v{T[2]}, 5, v{T[3]}
    v_bfe_u32 v{T[2]}, v{vLN}, 1, 1
    v_lshl_add_u32 v{T[3]}, v{T[2]}, 3, v{T[3]}
    v_add_u32 v{vAW2}, 12288, v{T[3]}
    s_mul_i32 s{sT2}, s{sWI}, 3072
    s_add_u32 s{sT2}, s{sT2}, {OUTF}
    s_mul_i32 s{sT1}, s{sWI}, {XROW}
    s_add_u32 s{sT1}, s{sT1}, {XB + 2*XROW + 384}
    v_lshlrev_b32 v{T[4]}, 1, v{T[4]}
    v_xor_b32 v{T[0]}, v{T[4]}, v{T[0]}
    v_and_b32 v{T[3]}, 15, v{vLN}
    v_mul_u32_u24 v{T[3]}, 192, v{T[3]}
    v_lshl_add_u32 v{T[0]}, v{T[0]}, 4, v{T[3]}
    v_lshl_add_u32 v{T[0]}, v{T[2]}, 3, v{T[0]}
    v_mul_u32_u24 v{T[2]}, {4*3072}, v{T[1]}
    v_add3_u32 v{vFR[0]}, v{T[0]}, v{T[2]}, s{sT2}
    v_xor_b32 v{vFR[1]}, 8, v{vFR[0]}
    v_xor_b32 v{vFR[2]}, 16, v{vFR[0]}
    v_xor_b32 v{vFR[3]}, 24, v{vFR[0]}
    v_add_u32 v{T[0]}, 2, v{vLN}
    v_bfe_u32 v{T[0]}, v{T[0]}, 2, 2
    v_xor_b32 v{T[0]}, v{T[4]}, v{T[0]}
    v_lshl_add_u32 v{T[0]}, v{T[0]}, 4, v{T[3]}
    v_mul_u32_u24 v{T[2]}, {4*XROW}, v{T[1]}
    v_add3_u32 v{vAR[0]}, v{T[0]}, v{T[2]}, s{sT1}
    v_xor_b32 v{vAR[1]}, 16, v{vAR[0]}
    v_bfe_u32 v{T[0]}, v{vLN}, 1, 2
    v_xor_b32 v{T[0]}, v{T[4]}, v{T[0]}
    v_lshl_add_u32 v{T[0]}, v{T[0]}, 4, v{T[3]}
    v_mul_u32_u24 v{T[2]}, 3072, v{T[1]}
    v_add3_u32 v{vSW[0]}, v{T[0]}, v{T[2]}, s{sIMG}
    v_xor_b32 v{vSW[1]}, 16, v{vSW[0]}
    ''')
def f_setup2():
    a(f'''
    v_and_b32 v{T[1]}, 1, v{vLN}
    v_lshlrev_b32 v{T[1]}, 4, v{T[1]}
    v_mov_b32 v{T[2]}, 0x3f80
    v_lshlrev_b32 v{T[1]}, v{T[1]}, v{T[2]}
    ''')
    for i in range(4): a(f'v_mov_b64 {vr(vID+2*i,2)}, 0')
    for i in range(8):
        pos = 16 * (i >> 2) + 8 * ((i >> 1) & 1) + 2 * (i & 1)
        setexec(3 << pos, 3 << (pos + 4))
        a(f'v_mov_b32 v{vID+i}, v{T[1]}')
    a('s_mov_b64 exec, -1')
FS = opt('fs', '00000')
fsl = [conv_setup2, late_setup, f_setup2, f_setup1, dma_setup]
def fsetup(k):
    for f, c in zip(fsl, FS):
        if int(c) == k: f()
FXP = int(opt('fxp', 5))
def f_rows():
    a(f'''
    s_add_u32 m0, s{sXM}, {XB + (NX0-1)*XROW}
    s_movk_i32 s{sXM}, {XROW}
    v_add_u32 v{vXO}, {(NX0-1)*43008}, v{vXO}
    s_mov_b64 s[{sX}:{sX+1}], s[4:5]
    s_mov_b32 exec_hi, 0x0fffffff
    ''')
    xrows(17 - NX0)
    a('s_mov_b32 exec_hi, -1')
FRP = opt('frp', 'a')
if FRP == 'b':
    fsl.insert(FXP, f_rows); FS = FS[:FXP] + '0' + FS[FXP:]
fsetup(0)
a(ap('Fs'))
stamp(1)
a('s_waitcnt lgkmcnt(0)')
a(ap('Fl'))
pstamp(9)
bar()
a(ap('Bt'))
cv = Conv(0)
for gi in range(3): tab_reads(gi, cv.ds)
if FRP == 'a': f_rows()
fsetup(3)
bar(2)
S0 = stage([('F',0,[0]), ('F',1,[0,1])])
cv.run(S0, 0)
def res_half(s):
    m = 0xffff0000 if s else 0xffff
    setexec(m, m)
    for ks in range(6):
        cv.ds(f'ds_read_b128 {vr(vRES+4*ks,4)}, v{vAR[ks&1]} offset:{64*(ks>>1)}')
    a('s_mov_b64 exec, -1')
def run_stage(left, frags, pairs, keep=0, mid=None):
    its = left + stage(frags)
    if pairs: add_pub(its, len(left), len(frags), pairs)
    if mid: its[mid[0]]['post'] = mid[1]
    return cv.run(its, len(its) - keep)
left = cv.run(S0, len(S0) - int(opt('keep0', 0)))
fsetup(1)
pstamp(10)
bar(3)
left = run_stage(left, [('F',2,[0,1,2]), ('F',3,[1,2,3]), ('E',0,[0,1])], [0, 1])
fsetup(2)
SPLIT = opt('split', '1') == '1'
a(f's_waitcnt vmcnt({5 if SPLIT else 0})')
pstamp(11)
bar(4)
a(f's_setprio {opt("fprio2", 3)}')
left = run_stage(left, [('F',4,[2,3]), ('F',5,[3]), ('E',2,[2,3])], [2, 3])
a('s_waitcnt vmcnt(0)')
signal(1)
wdma(0, [0, 1, 2])
stamp(5)
poll(GF, 1)
RA = 168
for ks in range(6):
    a(f'ds_read_b64 {vr(RA+4*ks,2)}, v{vFR[2*(ks&1)]} offset:{64*(ks>>1)}')
    a(f'ds_read_b64 {vr(RA+4*ks+2,2)}, v{vFR[2*(ks&1)+1]} offset:{64*(ks>>1)}')
a(f's_setprio {opt("fprio3", 1)}')
wdma(1, [0, 1, 2])
a('s_waitcnt lgkmcnt(0)')
stamp(6)
def f_mid():
    for ks in range(6):
        a(f'ds_read_b128 {vr(vRES+4*ks,4)}, v{vAR[ks&1]} offset:{64*(ks>>1)}')
    landed(0, 2)
    wdma(0, [3, 4, 5]); wdma(1, [3, 4, 5])
    peek(GF)
def f_mid2():
    a('s_waitcnt lgkmcnt(0)')
    check(GF, 2)
    f_w1reads0()
ln(RA, 72, [vL + i for i in range(24)], False, f_mid, f_mid2)
stamp(8)
XH = {
  'start3': [lambda: landed(0, 3)],
  ('T1', 0): [lambda: peek(GF)],
  ('preT2', 0): [lambda: check(GF, 3)],
  ('T1', 1): [lambda: stamp(9)],
  ('T2', 1): [lambda: peek(GL)],
  ('preT1', 2): [lambda: check(GL, 6)],
  ('preT1', 4): [lambda: signal(4)],
  ('T1', 4): [lambda: peek(GL)],
  ('preT2', 4): [lambda: check(GL, 7)],
  ('T2', 5): [lambda: peek(GL)],
  ('preT1', 6): [lambda: check(GL, 8), lambda: stamp(10)],
  ('preT1', 8): [lambda: stamp(11)],
  ('T2', 8): [lambda: peek(GF)],
  ('preT1', 9): [lambda: check(GF, 4)],
  ('preT1', 10): [lambda: stamp(12)],
}
FP = opt('fp', 'n')
def fprio(c):
    if FP == 'n': return (0, 0) if c == 0 else None
    if FP == 's': return (1, 1) if c == 0 else None
    return (0, int(FP))
mlp32(XH, fprio)
stamp(13)
P = vY[0]; Q = vK[0]
for mt in range(3):
    for i in range(8):
        a(f'v_cvt_pk_bf16_f32 v{P+8*mt+i}, v{vO+16*mt+2*i}, v{vO+16*mt+2*i+1}')
    a(f'ds_write_b128 v{vSW[0]}, {vr(P+8*mt,4)} offset:{64*mt}')
    a(f'ds_write_b128 v{vSW[1]}, {vr(P+8*mt+4,4)} offset:{64*mt}')
for s in range(2):
    for j in range(3):
        a(f'ds_read_b128 {vr(Q+4*(3*s+j),4)}, v{vSR[j]} offset:{3072*s}')
for s in range(2):
    for j in range(3):
        a(f's_waitcnt lgkmcnt({5-(3*s+j)})')
        a(f'buffer_store_dwordx4 {vr(Q+4*(3*s+j),4)}, v{vL16}, {srd(sOUT)}, s{sO1 if s else sO0} offen offset:{1024*j}{STPOL}')
finish()
emit_slow()

a.label('L_L')
cv = Conv(4)
vDW1[:] = [220, 221]; vDW2[:] = [222, 223, 224]
vA0, vA2 = 48, 50
RR = 60
def l_setup():
    a(f'''
    s_add_u32 s{sO0}, s{sO0}, {8*43008}
    s_and_b32 s{sT1}, s{sWI}, 1
    v_lshrrev_b32 v{T[4]}, 4, v{vLN}
    v_bfe_u32 v{T[0]}, v{vLN}, 2, 2
    v_and_b32 v{T[2]}, 3, v{vLN}
    v_bfe_u32 v{T[1]}, v{vLN}, 4, 1
    v_lshlrev_b32 v{T[2]}, 3, v{T[2]}
    v_lshl_add_u32 v{T[2]}, v{T[1]}, 5, v{T[2]}
    v_lshl_add_u32 v{T[3]}, v{T[4]}, 3, v{T[0]}
    v_lshl_add_u32 v{T[3]}, v{T[3]}, 7, v{T[2]}
    v_bfe_u32 v{T[1]}, v{vLN}, 3, 1
    v_xor_b32 v{T[1]}, s{sT1}, v{T[1]}
    v_lshl_add_u32 v{T[3]}, v{T[1]}, 6, v{T[3]}
    s_lshr_b32 s{sT2}, s{sWI}, 1
    s_mul_i32 s{sT2}, s{sT2}, {PS}
    s_sub_u32 s{sT3}, {PS}, s{sT2}
    v_add_u32 v{vLW1}, s{sT2}, v{T[3]}
    v_add_u32 v{vLW1+4}, s{sT3}, v{T[3]}
    v_xor_b32 v{vLW1+1}, 32, v{vLW1}
    v_xor_b32 v{vLW1+2}, 64, v{vLW1}
    v_xor_b32 v{vLW1+3}, 0x60, v{vLW1}
    v_xor_b32 v{vLW1+5}, 32, v{vLW1+4}
    v_xor_b32 v{vLW1+6}, 64, v{vLW1+4}
    v_xor_b32 v{vLW1+7}, 0x60, v{vLW1+4}
    v_lshl_add_u32 v{T[3]}, v{T[4]}, 2, v{T[0]}
    v_mul_u32_u24 v{T[3]}, 192, v{T[3]}
    v_add_u32 v{T[3]}, v{T[3]}, v{T[2]}
    s_mul_i32 s{sT1}, s{sT1}, 6144
    s_add_u32 s{sT2}, s{sT2}, 12288
    s_add_u32 s{sT3}, s{sT3}, 12288
    s_add_u32 s{sT0}, s{sT2}, s{sT1}
    v_add_u32 v{vLW2}, s{sT0}, v{T[3]}
    s_add_u32 s{sT0}, s{sT3}, s{sT1}
    v_add_u32 v{vLW2+4}, s{sT0}, v{T[3]}
    s_sub_u32 s{sT1}, 6144, s{sT1}
    s_add_u32 s{sT0}, s{sT2}, s{sT1}
    v_add_u32 v{vLW2+2}, s{sT0}, v{T[3]}
    s_add_u32 s{sT0}, s{sT3}, s{sT1}
    v_add_u32 v{vLW2+6}, s{sT0}, v{T[3]}
    v_xor_b32 v{vLW2+1}, 32, v{vLW2}
    v_xor_b32 v{vLW2+3}, 32, v{vLW2+2}
    v_xor_b32 v{vLW2+5}, 32, v{vLW2+4}
    v_xor_b32 v{vLW2+7}, 32, v{vLW2+6}
    v_xor_b32 v{T[0]}, v{T[4]}, v{T[0]}
    v_and_b32 v{T[3]}, 15, v{vLN}
    v_mul_u32_u24 v{T[3]}, 192, v{T[3]}
    v_lshl_add_u32 v{T[0]}, v{T[0]}, 4, v{T[3]}
    v_add_u32 v{vARL}, {L12}, v{T[0]}
    v_bfe_u32 v{T[1]}, v{vLN}, 1, 1
    v_lshl_add_u32 v{T[0]}, v{T[1]}, 3, v{T[0]}
    v_add_u32 v{vA2}, {L12}, v{T[0]}
    v_xor_b32 v{vA2+1}, 8, v{vA2}
    v_add_u32 v{vA0}, s{sIMG}, v{T[0]}
    v_xor_b32 v{vA0+1}, 8, v{vA0}
    s_mul_i32 s{sT0}, s{sWI}, {XROW}
    v_bfe_u32 v{T[1]}, v{vLN}, 4, 1
    v_lshl_add_u32 v{T[3]}, v{T[1]}, 3, v{T[3]}
    v_lshrrev_b32 v{T[4]}, 5, v{vLN}
    v_bfe_u32 v{T[0]}, v{vLN}, 1, 2
    v_xor_b32 v{T[0]}, v{T[4]}, v{T[0]}
    v_lshl_add_u32 v{T[0]}, v{T[0]}, 4, v{T[3]}
    v_add_u32 v{vSW[0]}, s{sIMG}, v{T[0]}
    v_xor_b32 v{vSW[1]}, 32, v{vSW[0]}
    v_add_u32 v{T[0]}, 2, v{vLN}
    v_bfe_u32 v{T[0]}, v{T[0]}, 2, 2
    v_xor_b32 v{T[0]}, v{T[4]}, v{T[0]}
    v_lshl_add_u32 v{T[0]}, v{T[0]}, 4, v{T[3]}
    s_add_u32 s{sT0}, s{sT0}, {XB + 384}
    v_add_u32 v{vAR[0]}, s{sT0}, v{T[0]}
    v_xor_b32 v{vAR[1]}, 32, v{vAR[0]}
    ''')

a(f'''
s_mov_b32 exec_hi, -1
s_mul_i32 s{sIMG}, s{sWI}, 3072
s_add_u32 s{sIMG}, s{sIMG}, {S_IL}
s_mov_b32 s{sOB}, {OUTL}
''')
LS = opt('ls', '01002')
lsl = [conv_setup1, dma_setup, conv_setup2, late_setup, l_setup]
def lsetup(k):
    for f, c in zip(lsl, LS):
        if int(c) == k: f()
lsetup(0)
a(ap('Ls'))
pstamp(14)
a(f's_waitcnt vmcnt({NX0})')
bar()
for gi in range(3): tab_reads(gi, cv.ds)
lsetup(4)
a(f's_waitcnt vmcnt({NX0 - 4})')
a(ap('Ll'))
pstamp(9)
bar(2)
lsetup(1)
pstamp(10)
a(f's_waitcnt vmcnt({NX0 - 8})')
pstamp(11)
bar(3)
lsetup(2)
pstamp(12)
a('s_waitcnt vmcnt(0) lgkmcnt(0)')
pstamp(13)
bar(4)
a(f's_setprio {opt("lprio", 2)}')
RED, LNW = 1, 3
def raw_reads(R, ad, off=0):
    for ks in range(3):
        a(f'ds_read_b64 {vr(R+4*ks,2)}, v{ad} offset:{off+64*ks}')
        a(f'ds_read_b64 {vr(R+4*ks+2,2)}, v{ad+1} offset:{off+64*ks}')
def row_store(O, soff, P=vY[0], Q=vK[0]):
    for i in range(12):
        a(f'v_cvt_pk_bf16_f32 v{P+i}, v{O+2*i}, v{O+2*i+1}')
    for i in range(6):
        a(f'ds_write_b64 v{vSW[i&1]}, {vr(P+2*i,2)} offset:{64*(i>>1)}')
    for j in range(3):
        a(f'ds_read_b128 {vr(Q+4*j,4)}, v{vSR[j]}')
    for j in range(3):
        a(f's_waitcnt lgkmcnt({2-j})')
        a(f'buffer_store_dwordx4 {vr(Q+4*j,4)}, v{vL16}, {srd(sOUT)}, s{soff} offen offset:{1024*j}{STPOL}')
LP = opt('lp', 'k')
def lprio(c):
    if LP == 'n': return (0, 0) if c == 0 else None
    if LP == 's': return (1, 1) if c == 0 else None
    if LP == 'k':
        lo, hi = [int(x) for x in opt('lk', '0,9').split(',')]
        if lo <= c < hi: return (0, 1)
        return (0, 0) if c in (0, hi) else None
    return (0, int(LP))
def l_body(h13):
    global cv
    keep = cv
    cv = copy.copy(keep)
    sfx = 'a' if h13 else 'b'
    if h13:
        frags = [('F',4,[4]), ('F',5,[4,5]), ('F',6,[4,5,6]), ('F',7,[5,6]), ('E',4,[4,5]), ('F',8,[6]), ('L',6,[6])]; pairs = [4, 5, 6]
    else:
        frags = [('F',4,[4]), ('F',5,[4,5]), ('F',6,[4,5]), ('F',7,[5]), ('E',4,[4,5])]; pairs = [4, 5]
    if SPLIT:
        pre = stage(frags[:2])
        pre = cv.run(pre, len(pre) - int(opt('keepl', 2)))
        poll(GF, 1)
        frags = frags[2:]
    else:
        pre = []
    its = pre + stage(frags)
    add_pub(its, len(pre), len(frags), pairs)
    def resr():
        for i in range(6):
            cv.ds(f'ds_read_b64 {vr(RR+2*i,2)}, v{vAR[i&1]} offset:{10*XROW+64*(i>>1)}')
        if h13:
            for i in range(6):
                cv.ds(f'ds_read_b64 {vr(RR+12+2*i,2)}, v{vAR[i&1]} offset:{(14-RED)*XROW+64*(i>>1)}')
    if opt('lc'):
        nf = len(frags)
        for j, idx in ((9, 0), (10, nf - 1), (11, nf), (12, 2 * nf - 1), (13, 2 * nf)):
            its[idx]['post'] = lambda j=j: _st(j)
    if '3' in LS:
        cv.run(its, 0)
        lsetup(3)
    cv.run(its)
    stamp(6)
    signal(2)
    resr()
    stamp(5)
    poll(GL, 2)
    stamp(7)
    RAW = 168
    raw_reads(RAW, vA0)
    for i in range(12):
        a(f'v_lshlrev_b32 v{vO+2*i}, 16, v{RR+i}\nv_and_b32 v{vO+2*i+1}, 0xffff0000, v{RR+i}')
    if h13:
        a(f's_cmp_eq_u32 s{sWI}, {RED}\ns_cbranch_scc1 L_ri{sfx}')
        for i in range(12): a(f'v_mov_b64 {vr(vO+24+2*i,2)}, 0')
        a(f's_branch L_rj{sfx}')
        a.label(f'L_ri{sfx}')
        for i in range(12):
            a(f'v_lshlrev_b32 v{vO+24+2*i}, 16, v{RR+12+i}\nv_and_b32 v{vO+24+2*i+1}, 0xffff0000, v{RR+12+i}')
        a.label(f'L_rj{sfx}')
    signal(3)
    if h13: raw_reads(RAW + 12, vA2)
    a(f's_waitcnt lgkmcnt({7 if h13 else 1})')
    def l_mid2():
        a('s_waitcnt lgkmcnt(0)')
        check(GF, 2)
        l_w1reads(0)
    ln(RAW, 72, [vL + i for i in range(12)], True, lambda: peek(GF), l_mid2)
    if h13:
        a(f's_cmp_lg_u32 s{sWI}, {LNW}\ns_cbranch_scc1 L_nl12')
        ln(RAW + 12, 72, [RAW + 12 + i for i in range(12)], True)
        for ks in range(3):
            a(f'ds_write_b128 v{vARL}, {vr(RAW+12+4*ks,4)} offset:{64*ks}')
        a.label('L_nl12')
        signal(5)
    stamp(8)
    def l12r():
        for ks in range(3):
            a(f'ds_read_b128 {vr(vL+12+4*ks,4)}, v{vARL} offset:{64*ks}')
    def pub_rem():
        a(f's_cmp_eq_u32 s{sWI}, {RED}\ns_cbranch_scc1 L_np\ns_mul_i32 s{sT0}, s{sWI}, 6144\nv_add_u32 v{T[0]}, s{sT0}, v{vL16}')
        for i in range(6):
            a(f'ds_write_b128 v{T[0]}, {vr(vO+24+4*i,4)} offset:{S_R + 1024*i}')
        a.label('L_np')
        signal(9)
    H = {
      'start3': [lambda: peek(GL)],
      ('preT1', 0): [lambda: check(GL, 3)],
      ('T1', 0): [lambda: wdma(2, [0, 1, 2]), lambda: wdma(3, [0, 1, 2]), lambda: peek(GF)],
      ('preT2', 0): [lambda: check(GF, 3)],
      ('T2', 0): [lambda: wdma(2, [3, 4, 5])] + ([lambda: peek(GL)] if h13 else []),
      ('preT1', 1): [lambda: check(GL, 5)] if h13 else [],
      ('T1', 1): [lambda: wdma(3, [3, 4, 5]), lambda: stamp(9)] + ([l12r] if h13 else []),
      ('preT2', 1): [lambda: landed(6, 6)],
      ('T2', 1): [lambda: wdma(4, [0, 1, 2]), lambda: peek(GL)],
      ('preT1', 2): [lambda: check(GL, 6)],
      ('T1', 2): [lambda: wdma(4, [3, 4, 5])],
      ('T2', 2): [lambda: wdma(5, [0, 1, 2])],
      ('preT1', 3): [lambda: landed(9, 7)],
      ('T1', 3): [lambda: wdma(5, [3, 4, 5])],
      ('T1', 4): [lambda: peek(GL)],
      ('preT2', 4): [lambda: check(GL, 7), lambda: landed(0, 8)],
      ('T2', 5): [lambda: peek(GL)],
      ('preT1', 6): [lambda: check(GL, 8), lambda: stamp(10)],
      ('preT1', 8): [lambda: stamp(11)],
      ('preT1', 10): [lambda: stamp(12)],
    }
    if h13:
        H[('T2', 9)] = [lambda: peek(GF)]
        H[('preT1', 10)] = H[('preT1', 10)] + [lambda: check(GF, 4), pub_rem]
        def reduce12():
            a(f's_cmp_lg_u32 s{sWI}, {RED}\ns_cbranch_scc1 L_nored')
            poll(GL, 9)
            others = [w for w in range(4) if w != RED]
            R = [144, 48, 144]
            def rd(n):
                for i in range(6):
                    a(f'ds_read_b128 {vr(R[n]+4*i,4)}, v{vL16} offset:{S_R + 6144*others[n] + 1024*i}')
            def ad(n):
                for i in range(24):
                    a(f'v_add_f32 v{vO+24+i}, v{vO+24+i}, v{R[n]+i}')
            rd(0); rd(1)
            a('s_waitcnt lgkmcnt(6)'); ad(0); rd(2)
            a('s_waitcnt lgkmcnt(6)'); ad(1)
            a('s_waitcnt lgkmcnt(0)'); ad(2)
            a(f's_add_u32 s{sO1}, s{sO0}, {(4-RED)*43008}')
            row_store(vO + 24, sO1, 48, 144)
            a.label('L_nored')
        H[('T1', 11)] = [reduce12]
    mlp16([3, 5, 8] if h13 else [], H, lprio)
    stamp(13)
    row_store(vO, sO0)
    finish()
    emit_slow()
    cv = keep
a(f's_cmp_lg_u32 s{sH13}, 13\ns_cbranch_scc1 L_L12')
l_body(True)
a.label('L_L12')
l_body(False)
a.label('L_end')
a('s_endpgm')

body = a.finalize()
hdr = open('cdna_kernels/' + NAME + '.s.ref').read().split('\n')
out = []
for l in hdr:
    if l.startswith('; @launch'):
        out.append('; @launch grid=(256,1,1) block=(512,1,1) lds=163840')
    elif l.startswith(';'):
        out.append(l)
    else:
        break
out.append('.amdgcn_target "amdgcn-amd-amdhsa--gfx950"')
out.append('.text')
out.append(f'.globl {NAME}_kernel')
out.append('.p2align 8')
out.append(f'.type {NAME}_kernel,@function')
out.append(f'{NAME}_kernel:')
for l in body:
    out.append(l if l.endswith(':') else '    ' + l)
out.append(f'''.section .rodata,"a"
.p2align 6
.amdhsa_kernel {NAME}_kernel
  .amdhsa_next_free_vgpr 256
  .amdhsa_next_free_sgpr 102
  .amdhsa_accum_offset 256
  .amdhsa_group_segment_fixed_size 0
  .amdhsa_kernarg_size 64
  .amdhsa_user_sgpr_count 2
  .amdhsa_user_sgpr_kernarg_segment_ptr 1
  .amdhsa_system_sgpr_workgroup_id_x 1
.end_amdhsa_kernel''')
print('\n'.join(out))
```

```python
import sys, struct, math, copy
from asmlib import Asm

NAME = "standalone__modern_conv_block_replknet__vision"
def fbits(x): return struct.unpack('<I', struct.pack('<f', x))[0]
def opt(name, default=None):
    for x in sys.argv:
        if x == '--' + name: return True
        if x.startswith('--' + name + '='): return x.split('=', 1)[1]
    return default
STAMP = opt('stamp'); CYC = opt('cyc'); PRO = opt('pro')
STPOL = ' ' + opt('stpol', 'sc1').replace('_', ' ') if opt('stpol', 'sc1') != 'none' else ''
FOLD = opt('fold', '1') == '1'
GL, GF = (1, 0) if FOLD else (0, 1)

XPOL = ' ' + opt('xpol').replace('_', ' ') if opt('xpol') else ''
XROW = 3840
XB = 73728
PS = 24576
TB, TP = 139264, 976
OUTF, OUTL = 49152, 147456
L12 = OUTL + 4*3072
FL = 163584
S_IF, S_R, S_IL = 0, 24576, OUTL
MARK = 0x40000000
XBYTES = 224 * 224 * 192

k0 = math.sqrt(2.0 / math.pi); k1 = 0.044715
c0 = 2 * k0 / math.log(2.0); c1 = c0 * k1
ga = c1 ** (1.0 / 3.0)
gc = -c0 / ga

sX, sDL, sDS, sW1, sW2, sOUT = 16, 20, 24, 28, 32, 36
sWV, sY0, sX0, sT0, sT1, sT2, sT3 = 40, 41, 42, 43, 44, 45, 46
sH13, sWI = 47, 3
sCA, sCC = 48, 50
sWS = 52
sXM, sIMG, sOB = 56, 57, 62
sWA, sWBm = 58, 59
sO0, sO1 = 60, 61
sST = 64
NST = 16
def srd(b): return f's[{b}:{b+3}]'
vO, vL, vY, vK, vG, vF1, vF2 = 0, 48, [72, 88], [104, 120], 136, 144, 168
vRES, vID = 204, 228
vAW1 = [236, 237, 245, 249]; vAW2 = 238
vLW1 = 204; vLW2 = 212
vDW1 = [220, 221]; vDW2 = [222, 223, 224]
vARL = 225
vSW = [239, 240]; vSR = [241, 242, 243]
vL16 = 244
vFA, vFW, vFP = 246, 247, 248
T = [250, 251, 252, 253, 254]
vLN = 255
vXO = 203; vPF = 54
vAF, vAE, vAO, vIDX, vTF0, vTF1, vTE, vAR, vAE16, vAO1 = 192, 193, 194, 195, 196, 197, 198, [199, 200], 201, 202
vACC, vAFR, vB = 0, 84, 144
def vr(b, n): return f'v[{b}:{b+n-1}]'

a = Asm()
def _st(i): a(f'{"s_memtime" if CYC else "s_memrealtime"} s[{sST+2*i}:{sST+2*i+1}]')
def pstamp(i):
    if STAMP and PRO and not opt('lc'): _st(i)
def ap(n):
    return 's_memrealtime s[88:89]' if opt('amp') == n else ''
def stamp(i):
    a(ap(str(i)))
    if i in (8, 13): hold(i)
    if STAMP and not (PRO and 9 <= i <= 14): _st(i)
def mksrd(b, lo, n):
    a(f's_mov_b64 s[{b}:{b+1}], s[{lo}:{lo+1}]\ns_mov_b32 s{b+2}, {n}\ns_mov_b32 s{b+3}, 0x00020000')
def hold(tag):
    h = opt('hold')
    if h and h.split(':')[0] == str(tag):
        n = nlab[0]; nlab[0] += 1
        a(f's_waitcnt lgkmcnt(0)\ns_add_u32 s92, s94, {h.split(":")[1]}')
        a.label(f'L_hold{n}')
        a(f's_memrealtime s[90:91]\ns_waitcnt lgkmcnt(0)\ns_sub_u32 s93, s92, s90\ns_cmp_gt_i32 s93, 0\ns_cbranch_scc1 L_hold{n}')
def bar(i=None):
    a('s_barrier')
    hold(i)
    if i is not None: stamp(i)
def setexec(lo, hi):
    a(f's_mov_b32 exec_lo, {lo:#x}\ns_mov_b32 exec_hi, {hi:#x}')

nlab = [0]; slow = []
def guard():
    if opt('safe'): a('s_sub_u32 s98, s98, 1\ns_cbranch_scc1 L_end')
def signal(v, emit=None):
    a(f'v_mov_b32 v{T[4]}, {v}')
    (emit or a)(f'ds_write_b32 v{vFW}, v{T[4]}')
def poll(grp, v):
    lab = f'L_poll{nlab[0]}'; nlab[0] += 1
    a.label(lab)
    guard()
    a(f'ds_read_b32 v{vFP}, v{vFA} offset:{16*grp}\ns_waitcnt lgkmcnt(0)\nv_cmp_gt_u32 vcc, {v}, v{vFP}\ns_cbranch_vccnz {lab}')
def peek(grp): a(f'ds_read_b32 v{vFP}, v{vFA} offset:{16*grp}')
def check(grp, v):
    n = nlab[0]; nlab[0] += 1
    a(f'v_cmp_gt_u32 vcc, {v}, v{vFP}\ns_cbranch_vccnz L_slow{n}')
    a.label(f'L_back{n}')
    slow.append((n, grp, v))
def emit_slow():
    for n, grp, v in slow:
        a.label(f'L_slow{n}')
        guard()
        a(f'ds_read_b32 v{vFP}, v{vFA} offset:{16*grp}\ns_waitcnt lgkmcnt(0)\nv_cmp_gt_u32 vcc, {v}, v{vFP}\ns_cbranch_vccnz L_slow{n}\ns_branch L_back{n}')
    slow.clear()
def landed(n, v):
    a(f's_waitcnt vmcnt({n})'); signal(v)

def wdma(p, parts=range(6)):
    for i in parts:
        if i < 3:
            a(f'''
            s_add_u32 m0, s{sWBm}, {PS*p + 1024*i}
            s_add_u32 s{sT0}, s{sWA}, {6144*i + 128*p}
            buffer_load_dwordx4 v{vDW1[i & 1]}, {srd(sW1)}, s{sT0} offen lds
            ''')
        else:
            if i == 3 or i - 1 not in parts:
                a(f's_add_u32 m0, s{sWBm}, {PS*p + 12288}\ns_add_u32 s{sT0}, s{sWBm}, {12288*p}')
            a(f'buffer_load_dwordx4 v{vDW2[i-3]}, {srd(sW2)}, s{sT0} offen offset:{1024*(i-3)} lds')

def ln(raw, U, dst, rows16, mid=None, mid2=None):
    n = len(dst)
    S, Q, ONE = T[1], T[3], T[4]
    sc, bi = T[0], T[2]
    a(f'v_mov_b32 v{ONE}, 0x3f803f80')
    un = []
    for i in range(n):
        un.append(f'v_lshlrev_b32 v{U+2*i}, 16, v{raw+i}')
        un.append(f'v_and_b32 v{U+2*i+1}, 0xffff0000, v{raw+i}')
    while len(un) > 8: a(un.pop(0))
    for i in range(n):
        a(f'v_dot2_f32_bf16 v{S}, v{raw+i}, v{ONE}, {"0" if i == 0 else f"v{S}"}')
        a(f'v_dot2_f32_bf16 v{Q}, v{raw+i}, v{raw+i}, {"0" if i == 0 else f"v{Q}"}')
    def fill(k):
        for _ in range(k):
            if un: a(un.pop(0))
    fill(3)
    a(f'v_permlane32_swap_b32 v{S}, v{Q}')
    a(f'v_add_f32 v{S}, v{S}, v{Q}')
    if rows16:
        a(f'v_mov_b32 v{Q}, v{S}')
        fill(2)
        a(f'v_permlane16_swap_b32 v{S}, v{Q}')
        a(f'v_add_f32 v{S}, v{S}, v{Q}')
    a(f'v_mul_f32 v{S}, {fbits(1.0/96):#x}, v{S}')
    a(f'v_mov_b32 v{Q}, v{S}')
    fill(2)
    a(f'v_permlane32_swap_b32 v{S}, v{Q}')
    a(f'''
    v_fma_f32 v{Q}, -v{S}, v{S}, v{Q}
    v_max_f32 v{Q}, 0, v{Q}
    v_add_f32 v{Q}, {fbits(1e-5):#x}, v{Q}
    v_rsq_f32 v{Q}, v{Q}
    ''')
    fill(1)
    a(f'v_mul_f32 v{sc}, {fbits(ga):#x}, v{Q}')
    a(f'v_mul_f32 v{bi}, -v{S}, v{sc}')
    fill(1000)
    if mid: mid()
    for i in range(n):
        if opt('lnplain'):
            a(f'v_fma_f32 v{U+2*i}, v{U+2*i}, v{sc}, v{bi}\nv_fma_f32 v{U+2*i+1}, v{U+2*i+1}, v{sc}, v{bi}')
        else:
            a(f'v_pk_fma_f32 {vr(U+2*i,2)}, {vr(U+2*i,2)}, {vr(sc,2)}, {vr(bi,2)} op_sel_hi:[1,0,0]')
    if mid2: mid2()
    for i in range(n):
        a(f'v_cvt_pk_bf16_f32 v{dst[i]}, v{U+2*i}, v{U+2*i+1}')

def pk_t(Y, K, n):
    return [f'v_pk_fma_f32 {vr(K+2*i,2)}, {vr(Y+2*i,2)}, {vr(Y+2*i,2)}, s[{sCC}:{sCC+1}] neg_lo:[1,0,0] neg_hi:[1,0,0]' for i in range(n//2)] + pk_m(Y, K, n)
def pk_m(Y, K, n): return [f'v_pk_mul_f32 {vr(K+2*i,2)}, {vr(Y+2*i,2)}, {vr(K+2*i,2)}' for i in range(n//2)]
def pk_d(K, n): return [f'v_pk_fma_f32 {vr(K+2*i,2)}, {vr(K+2*i,2)}, s[{sCA}:{sCA+1}], s[{sCA}:{sCA+1}]' for i in range(n//2)]
def emit(l):
    for t in l: a(t)

def mlp32(hooks, prio):
    N = 12
    moved = {'w1': False, 'w2': False}
    def move(kind, c):
        if c >= 6 and not moved[kind]:
            for r in (vAW1 if kind == 'w1' else [vAW2]): a(f'v_add_u32 v{r}, {3*PS}, v{r}')
            moved[kind] = True
    def w1reads(c):
        for ks in range(6):
            off = ((c >> 1) % 3) * PS + (ks >> 1) * 4096 + (ks & 1) * 1024
            r = vAW1[(c & 1) + 2 * (ks & 1)]
            a(f'ds_read_b64_tr_b16 {vr(vF1+4*ks,2)}, v{r} offset:{off}')
            a(f'ds_read_b64_tr_b16 {vr(vF1+4*ks+2,2)}, v{r} offset:{off+512}')
    def w2reads(c):
        for i in range(6):
            ks2, mt = i // 3, i % 3
            off = ((c >> 1) % 3) * PS + (c & 1) * 6144 + ks2 * 3072 + mt * 64
            a(f'ds_read_b64_tr_b16 {vr(vF2+4*i,2)}, v{vAW2} offset:{off}')
            a(f'ds_read_b64_tr_b16 {vr(vF2+4*i+2,2)}, v{vAW2} offset:{off+1536}')
    def g1(c, ks):
        Y = vY[c & 1]
        a(f'v_mfma_f32_32x32x16_bf16 {vr(Y,16)}, {vr(vF1+4*ks,4)}, {vr(vL+4*ks,4)}, {"0" if ks == 0 else vr(Y,16)}')
    def g2(i):
        ks2, mt = i // 3, i % 3
        a(f'v_mfma_f32_32x32x16_bf16 {vr(vO+16*mt,16)}, {vr(vF2+4*i,4)}, {vr(vG+4*ks2,4)}, {vr(vO+16*mt,16)}')
    def resm(ks):
        j, mt = ks // 3, ks % 3
        a(f'v_mfma_f32_32x32x16_bf16 {vr(vO+16*mt,16)}, {vr(vID+4*j,4)}, {vr(vRES+4*(2*mt+j),4)}, {"0" if j == 0 else vr(vO+16*mt,16)}')
    def hook(k):
        for f in hooks.get(k, []): f()
    def pr(c, v):
        if prio(c) is not None: a(f's_setprio {prio(c)[v]}')
    hook('pre')
    a('s_waitcnt lgkmcnt(0)')
    for ks in range(6): g1(0, ks)
    w1reads(1)
    hook('start3')
    for c in range(N + 1):
        Y, K = vY[c & 1], vK[c & 1]
        Yp, Kp = vY[(c - 1) & 1], vK[(c - 1) & 1]
        pr(c, 1)
        if c >= 1: emit(pk_m(Yp, Kp, 16))
        if c < N: emit(pk_t(Y, K, 16))
        cv = [f'v_cvt_pk_bf16_f32 v{vG+i}, v{Kp+2*i}, v{Kp+2*i+1}' for i in range(8)] if c >= 1 else []
        if c == N:
            emit(cv)
            a('s_waitcnt lgkmcnt(0)')
            for i in (0, 3, 1, 4, 2, 5): g2(i)
            break
        ex = [f'v_exp_f32 v{K+i}, v{K+i}' for i in range(16)]
        rc = [f'v_rcp_f32 v{K+i}, v{K+i}' for i in range(16)]
        last = c + 1 >= N
        if c + 2 < N: move('w1', c + 2)
        move('w2', c)
        if c == 0:
            gaps = [ex[0:3], ex[3:6], ex[6:9], ex[9:12], ex[12:15], ex[15:16]]
            a('s_waitcnt lgkmcnt(0)')
            for j in range(6):
                g1(1, j); emit(gaps[j])
        elif not last:
            gaps = [cv[0:4] + ex[0:1], cv[4:8] + ex[1:2], ex[2:5], ex[5:8], ex[8:11], ex[11:14], ex[14:16]]
            for j in range(7):
                if j < 6: g1(c + 1, j)
                else: g2(0)
                if j == 5: a('s_waitcnt lgkmcnt(0)')
                emit(gaps[j])
        else:
            emit(cv); emit(ex[0:4])
            a('s_waitcnt lgkmcnt(0)')
            gaps = [ex[4:8], ex[8:12], ex[12:16]]
            for j in range(3):
                g2(j); emit(gaps[j])
        hook(('preT1', c))
        pr(c, 0)
        if c + 2 < N: w1reads(c + 2)
        hook(('T1', c))
        pr(c, 1)
        emit(pk_d(K, 16))
        if c == 0:
            gp = [rc[0:3], rc[3:6], rc[6:9], rc[9:12], rc[12:14], rc[14:16]]
            for j in range(6):
                resm(j)
                if j == 5: a('s_waitcnt lgkmcnt(0)')
                emit(gp[j])
        elif not last:
            gp = [rc[0:3], rc[3:6], rc[6:9], rc[9:12], rc[12:16]]
            for j in range(5):
                g2(j + 1)
                if j == 4: a('s_waitcnt lgkmcnt(0)')
                emit(gp[j])
        else:
            gp = [rc[0:3], rc[3:6], rc[6:16]]
            for j in range(3):
                g2(j + 3)
                if j == 2: w2reads(c)
                emit(gp[j])
        hook(('preT2', c))
        pr(c, 0)
        if not last: w2reads(c)
        hook(('T2', c))
    return w1reads

def f_w1reads0():
    for ks in range(6):
        off = (ks >> 1) * 4096 + (ks & 1) * 1024
        r = vAW1[2 * (ks & 1)]
        a(f'ds_read_b64_tr_b16 {vr(vF1+4*ks,2)}, v{r} offset:{off}')
        a(f'ds_read_b64_tr_b16 {vr(vF1+4*ks+2,2)}, v{r} offset:{off+512}')

def l_w1reads(s):
    for i in range(6):
        mt2, ks3 = i // 3, i % 3
        off = ((s >> 2) & 1) * 2 * PS + ks3 * 4096
        r = vLW1 + mt2 + 2 * (s & 3)
        a(f'ds_read_b64_tr_b16 {vr(vF1+4*i,2)}, v{r} offset:{off}')
        a(f'ds_read_b64_tr_b16 {vr(vF1+4*i+2,2)}, v{r} offset:{off+512}')

def mlp16(doubles, hooks, prio):
    N = 12
    def wid(s): return 0 if (s < 0 or s >= N) else (2 if s in doubles else 1)
    def move(base):
        for r in range(8): a(f'v_add_u32 v{base+r}, {4*PS}, v{base+r}')
    def w2reads(s):
        for i in range(6):
            off = ((s >> 2) & 1) * 2 * PS + 64 * (i >> 1)
            r = vLW2 + (i & 1) + 2 * (s & 3)
            a(f'ds_read_b64_tr_b16 {vr(vF2+4*i,2)}, v{r} offset:{off}')
            a(f'ds_read_b64_tr_b16 {vr(vF2+4*i+2,2)}, v{r} offset:{off+3072}')
    def m1(s):
        l = []
        for t in range(wid(s)):
            for j in range(6):
                mt2, ks3 = j & 1, j >> 1
                D = vY[s & 1] + 8 * t + 4 * mt2
                l.append(f'v_mfma_f32_16x16x32_bf16 {vr(D,4)}, {vr(vF1+4*(mt2*3+ks3),4)}, {vr(vL+12*t+4*ks3,4)}, {"0" if ks3 == 0 else vr(D,4)}')
        return l
    def m2(s):
        return [f'v_mfma_f32_16x16x32_bf16 {vr(vO+24*t+4*i,4)}, {vr(vF2+4*i,4)}, {vr(vG+4*t,4)}, {vr(vO+24*t+4*i,4)}' for t in range(wid(s)) for i in range(6)]
    def weave(ms, fl):
        fl = list(fl)
        if not ms:
            emit(fl); a('s_waitcnt lgkmcnt(0)'); return
        for j, m in enumerate(ms):
            a(m)
            if j == len(ms) - 1: a('s_waitcnt lgkmcnt(0)')
            k = -(-len(fl) // (len(ms) - j))
            emit(fl[:k]); fl = fl[k:]
    def hook(k):
        for f in hooks.get(k, []): f()
    def pr(c, v):
        if prio(c) is not None: a(f's_setprio {prio(c)[v]}')
    hook('pre')
    a('s_waitcnt lgkmcnt(0)')
    emit(m1(0))
    l_w1reads(1)
    hook('start3')
    for s in range(N + 1):
        Y, K = vY[s & 1], vK[s & 1]
        Yp, Kp = vY[(s - 1) & 1], vK[(s - 1) & 1]
        n, np_ = 8 * wid(s), 8 * wid(s - 1)
        pr(s, 1)
        emit(pk_m(Yp, Kp, np_))
        emit(pk_t(Y, K, n))
        cv = [f'v_cvt_pk_bf16_f32 v{vG+i}, v{Kp+2*i}, v{Kp+2*i+1}' for i in range(np_ // 2)]
        if s == N:
            emit(cv)
            a('s_waitcnt lgkmcnt(0)')
            emit(m2(N - 1))
            break
        ex = [f'v_exp_f32 v{K+i}, v{K+i}' for i in range(n)]
        rc = [f'v_rcp_f32 v{K+i}, v{K+i}' for i in range(n)]
        if s + 2 == 8: move(vLW1)
        if s == 8: move(vLW2)
        if s == 0: a('s_waitcnt lgkmcnt(0)')
        weave(m1(s + 1), cv + ex)
        hook(('preT1', s))
        pr(s, 0)
        if s + 2 < N: l_w1reads(s + 2)
        hook(('T1', s))
        pr(s, 1)
        emit(pk_d(K, n))
        weave(m2(s - 1), rc)
        hook(('preT2', s))
        pr(s, 0)
        w2reads(s)
        hook(('T2', s))

def finish():
    if opt('amp'):
        n = nlab[0]; nlab[0] += 1
        if opt('amp') == 'end': a(f's_waitcnt vmcnt(0)\ns_memrealtime s[88:89]\ns_mov_b32 s{sH13}, 13')
        a(f's_waitcnt vmcnt(0) lgkmcnt(0)\ns_sub_u32 s92, s88, s94\ns_lshl_b32 s92, s92, 2\ns_cmp_eq_u32 s88, 0\ns_cselect_b32 s92, 0, s92')
        a(f's_cmp_eq_u32 s{sH13}, {opt("amprows", 13)}\ns_cselect_b32 s92, s92, 0\ns_add_u32 s92, s92, 1400\ns_add_u32 s92, s92, s94')
        a.label(f'L_amp{n}')
        a(f's_memrealtime s[90:91]\ns_waitcnt lgkmcnt(0)\ns_sub_u32 s93, s92, s90\ns_cmp_gt_i32 s93, 0\ns_cbranch_scc1 L_amp{n}')
    if STAMP:
        stamp(14)
        a('s_waitcnt vmcnt(0)')
        stamp(15)
        a('s_waitcnt lgkmcnt(0)')
        if opt('dbg'):
            n = nlab[0]; nlab[0] += 1
            a(f's_cmp_lg_u32 s2, {opt("dbg")}\ns_cbranch_scc1 L_nd{n}\ns_cmp_lg_u32 s{sWI}, 0\ns_cbranch_scc1 L_nd{n}')
            a(f's_lshl_b32 s{sT0}, s{sWV}, 3\nv_mov_b32 v{T[1]}, s{sT0}\ns_mov_b64 exec, 1')
            for k, i in enumerate((1, 2, 3, 4, 8, 10, 13, 15)):
                a(f's_sub_u32 s{sT0}, s{sST+2*i}, s{sST}\nv_mov_b32 v{T[0]}, s{sT0}')
                a(f'buffer_store_dword v{T[0]}, v{T[1]}, {srd(sWS)}, 0 offen offset:{4*k}')
            a.label(f'L_nd{n}')
            a('s_endpgm')
            return
        a(f'''
        s_lshl_b32 s{sT0}, s2, 3
        s_add_u32 s{sT0}, s{sT0}, s{sWV}
        s_lshl_b32 s{sT0}, s{sT0}, 6
        v_mov_b32 v{T[1]}, s{sT0}
        s_mov_b64 exec, 1
        ''')
        for i in range(NST):
            a(f'v_mov_b32 v{T[0]}, s{sST+2*i}')
            a(f'buffer_store_dword v{T[0]}, v{T[1]}, {srd(sWS)}, 0 offen offset:{4*i}')
    a('s_endpgm')

def tab_reads(gi, em):
    A = vAFR + 20 * gi; o = 64 * gi
    for d in range(3):
        em(f'ds_read_b64_tr_b16 {vr(A+4*d,2)}, v{vTF0} offset:{o + 2*d*TP}')
        em(f'ds_read_b64_tr_b16 {vr(A+4*d+2,2)}, v{vTF1} offset:{o + 2*d*TP}')
    for par in range(2):
        for pp in range(2):
            em(f'ds_read_b64_tr_b16 {vr(A+12+4*par+2*pp,2)}, v{vTE} offset:{o + (pp - 2*par + 2)*TP}')
RING = 6
class Conv:
    def __init__(self, k0): self.n = 0; self.slot = 0; self.k0 = k0
    def acc(self, gi, k): return vACC + 16 * gi + 4 * (k - self.k0)
    def ds(self, t): a(t); self.n += 1; return self.n
    def wait(self, seq): a(f's_waitcnt lgkmcnt({min(15, self.n - seq)})')
    def reads(self, it):
        B = it['B']; go = 64 * it['gi']; idx = it['idx']; kind = it['kind']
        if kind == 'F':
            r0, r1 = 2 * idx, min(2 * idx + 1, 16)
            return [f'ds_read_b128 {vr(B,4)}, v{vAF} offset:{r0*XROW+go}', f'ds_read_b128 {vr(B+4,4)}, v{vAF} offset:{r1*XROW+go}']
        if kind == 'E':
            return [f'ds_read_b128 {vr(B,4)}, v{vAE} offset:{2*idx*XROW+go}', f'ds_read_b128 {vr(B+4,4)}, v{vAE} offset:{(2*idx+4)*XROW+go}']
        return [f'ds_read_b128 {vr(B,4)}, v{vAE} offset:{12*XROW+go}', f'ds_read_b128 {vr(B+4,4)}, v{vAE16} offset:{16*XROW+go}']
    def cvt(self, lst):
        for gi, k in lst:
            A = self.acc(gi, k)
            a(f'v_cvt_pk_bf16_f32 v{A}, v{A}, v{A+1}\nv_cvt_pk_bf16_f32 v{A+1}, v{A+2}, v{A+3}')
    def write(self, lst):
        for gi, k in lst:
            A = self.acc(gi, k)
            if k == 6: setexec(0xffff, 0xffff)
            self.ds(f'ds_write_b64 v{vAO}, {vr(A,2)} offset:{(k-self.k0)*6144+64*gi}')
            if k == 6: a('s_mov_b64 exec, -1')
    def run(self, items, stop_at=None):
        D = RING - 1
        nxt = 0
        while nxt < len(items) and 'seq' in items[nxt]: nxt += 1
        def start(j):
            items[j]['B'] = vB + 8 * (self.slot % RING); self.slot += 1
            return self.reads(items[j])
        while nxt < min(D, len(items)):
            for t in start(nxt): items[nxt]['seq'] = self.ds(t)
            nxt += 1
        end = len(items) if stop_at is None else stop_at
        for i in range(end):
            it = items[i]
            self.wait(it['seq'])
            pend = start(nxt) if nxt < len(items) else []
            A = vAFR + 20 * it['gi']
            had = bool(pend)
            for k in it['outs']:
                fr = (it['idx'] - k) if it['kind'] == 'F' else 3 + (k - it['idx'])
                a(f'v_smfmac_f32_16x16x64_bf16 {vr(self.acc(it["gi"], k),4)}, {vr(A+4*fr,4)}, {vr(it["B"],8)}, v{vIDX}')
                if pend: items[nxt]['seq'] = self.ds(pend.pop(0))
            for t in pend: items[nxt]['seq'] = self.ds(t)
            if had: nxt += 1
            if it.get('pub'):
                self.cvt(it['pub'])
                if not it.get('nowrite'): self.write(it['pub'])
            if it.get('post'): it['post']()
        return items[end:]
def stage(frags): return [dict(gi=gi, kind=k, idx=i, outs=list(o)) for gi in range(3) for (k, i, o) in frags]
def add_pub(items, base, nfr, pairs, nowrite=False):
    for gi in range(3):
        j = min(base + nfr * (gi + 1), len(items) - 1)
        items[j].setdefault('pub', []).extend((gi, k) for k in pairs)
        items[j]['nowrite'] = nowrite

def late_setup():
    mksrd(sOUT, 14, XBYTES)
    if opt('safe'): a('s_mov_b32 s98, 20000')
    a(f'''
    s_mov_b32 s{sCA}, {fbits(ga):#x}
    s_mov_b32 s{sCA+1}, {fbits(ga):#x}
    s_mov_b32 s{sCC}, {fbits(gc):#x}
    s_mov_b32 s{sCC+1}, {fbits(gc):#x}
    s_add_u32 s{sT0}, s{sWI}, s{sY0}
    s_mul_i32 s{sT0}, s{sT0}, 224
    s_add_u32 s{sT0}, s{sT0}, s{sX0}
    s_mul_i32 s{sO0}, s{sT0}, 192
    ''')
    if STAMP:
        a(f's_mov_b32 s{sWS+2}, {256 if opt("dbg") else 0x10000000}\ns_mov_b32 s{sWS+3}, 0x00020000')
        for i in (7,): a(f's_mov_b32 s{sST+2*i}, 0')
    for j in range(3):
        a(f'''
        v_add_u32 v{T[0]}, {64*j}, v{vLN}
        v_mul_u32_u24 v{T[2]}, 171, v{T[0]}
        v_bfe_u32 v{T[2]}, v{T[2]}, 12, 2
        v_xor_b32 v{T[0]}, v{T[0]}, v{T[2]}
        v_lshl_add_u32 v{vSR[j]}, v{T[0]}, 4, s{sIMG}
        ''')

def conv_setup1():
    a(f'''
; table read: source lane r=(l>>2)&3, chalf=(l>>1)&1, s=l&1, qa=l>>4; tbl=r&1; valid iff (r>>1)==chalf
v_and_b32 v{T[0]}, 3, v{vLN}
v_mul_u32_u24 v{vIDX}, 0x5555, v{T[0]}
s_lshl_b32 s{sT2}, s{sWI}, 4
s_add_u32 s{sT2}, s{sT2}, {TB}
v_bfe_u32 v{T[1]}, v{vLN}, 1, 1
v_lshl_add_u32 v{T[4]}, v{T[1]}, 3, s{sT2}
v_and_b32 v{T[0]}, 1, v{vLN}
v_lshrrev_b32 v{T[1]}, 5, v{vLN}
v_mul_u32_u24 v{vTE}, {TP}, v{T[1]}
v_sub_u32 v{T[1]}, v{T[1]}, v{T[0]}
v_bfe_u32 v{T[2]}, v{vLN}, 2, 1
v_mul_u32_u24 v{T[2]}, 7, v{T[2]}
v_sub_u32 v{T[1]}, v{T[1]}, v{T[2]}
v_add_u32 v{T[1]}, 8, v{T[1]}
v_mul_u32_u24 v{T[1]}, {TP}, v{T[1]}
v_bfe_u32 v{T[2]}, v{vLN}, 4, 1
v_mul_u32_u24 v{T[2]}, 192, v{T[2]}
v_add3_u32 v{T[3]}, v{T[1]}, v{T[2]}, v{T[4]}
v_lshrrev_b32 v{T[1]}, 4, v{vLN}
v_lshlrev_b32 v{T[2]}, 1, v{T[1]}
v_sub_u32 v{T[2]}, v{T[2]}, v{T[0]}
v_add_u32 v{T[2]}, 6, v{T[2]}
v_mul_u32_u24 v{T[2]}, {TP}, v{T[2]}
v_add_u32 v{vTF0}, s{sT2}, v{vTE}
v_add_u32 v{vTF1}, {TP}, v{vTF0}
v_mov_b32 v{vTE}, s{sT2}
s_mov_b32 exec_lo, 0xcc33cc33
s_mov_b32 exec_hi, 0xcc33cc33
v_mov_b32 v{vTF0}, v{T[3]}
v_add_u32 v{vTF1}, 384, v{T[3]}
s_mov_b32 exec_lo, 0x0c030c03
s_mov_b32 exec_hi, 0x0c030c03
v_add_u32 v{T[2]}, 768, v{T[2]}
v_add_u32 v{vTE}, v{T[2]}, v{T[4]}
s_mov_b64 exec, -1
v_and_b32 v{T[0]}, 15, v{vLN}
v_bfe_u32 v{T[2]}, v{vLN}, 4, 1
v_lshrrev_b32 v{T[3]}, 5, v{vLN}
v_lshl_add_u32 v{T[2]}, v{T[2]}, 1, v{T[3]}
v_add_u32 v{T[2]}, v{T[0]}, v{T[2]}
v_bfe_u32 v{T[3]}, v{T[2]}, 2, 2
v_xor_b32 v{T[3]}, s{sWI}, v{T[3]}
v_mul_u32_u24 v{T[2]}, 192, v{T[2]}
v_lshl_add_u32 v{vAF}, v{T[3]}, 4, v{T[2]}
v_add_u32 v{vAF}, {XB}, v{vAF}
''')
def conv_setup2(em=None):
    for i in range(24): a(f'v_mov_b64 {vr(vACC+2*i,2)}, 0')
    a(f'''
v_and_b32 v{T[0]}, 3, v{vLN}
v_lshlrev_b32 v{vFA}, 2, v{T[0]}
v_add_u32 v{vFA}, {FL}, v{vFA}
s_lshl_b32 s{sT0}, s{sWV}, 2
s_add_u32 s{sT0}, s{sT0}, {FL}
v_mov_b32 v{vFW}, s{sT0}
v_mov_b32 v{vFP}, 0
ds_write_b32 v{vFW}, v{vFP}
v_and_b32 v{T[0]}, 15, v{vLN}
v_lshrrev_b32 v{T[1]}, 4, v{vLN}
v_add_u32 v{T[2]}, 4, v{T[0]}
v_bfe_u32 v{T[3]}, v{T[2]}, 2, 2
v_xor_b32 v{T[3]}, s{sWI}, v{T[3]}
v_mul_u32_u24 v{T[2]}, 192, v{T[2]}
v_lshl_add_u32 v{vAE}, v{T[3]}, 4, v{T[2]}
v_add_u32 v{vAE16}, {XB}, v{vAE}
v_mul_u32_u24 v{T[2]}, {XROW}, v{T[1]}
v_add_u32 v{vAE}, v{vAE16}, v{T[2]}
v_bfe_u32 v{T[3]}, v{T[0]}, 2, 2
v_xor_b32 v{T[4]}, s{sWI}, v{T[3]}
v_mul_u32_u24 v{T[2]}, 192, v{T[0]}
v_lshl_add_u32 v{T[2]}, v{T[4]}, 4, v{T[2]}
v_bfe_u32 v{T[1]}, v{vLN}, 4, 1
v_mul_u32_u24 v{T[1]}, 3072, v{T[1]}
v_lshrrev_b32 v{T[3]}, 5, v{vLN}
v_bfe_u32 v{T[4]}, v{vLN}, 1, 1
v_xor_b32 v{T[3]}, v{T[3]}, v{T[4]}
v_lshl_add_u32 v{T[1]}, v{T[3]}, 3, v{T[1]}
v_add3_u32 v{vAO}, v{T[2]}, v{T[1]}, s{sOB}
''')

def dma_setup():
    mksrd(sW1, 10, 73728); mksrd(sW2, 12, 73728)
    a(f'''
    v_lshrrev_b32 v{T[0]}, 3, v{vLN}
    v_mul_u32_u24 v{T[0]}, 768, v{T[0]}
    v_bfe_u32 v{T[1]}, v{vLN}, 4, 1
    v_lshlrev_b32 v{T[1]}, 2, v{T[1]}
    v_and_b32 v{T[2]}, 7, v{vLN}
    v_xor_b32 v{T[1]}, v{T[1]}, v{T[2]}
    v_lshl_add_u32 v{T[0]}, v{T[1]}, 4, v{T[0]}
    s_and_b32 s{sT1}, s{sWI}, 1
    s_lshl_b32 s{sT0}, s{sT1}, 5
    v_xor_b32 v{vDW1[0]}, s{sT0}, v{T[0]}
    v_xor_b32 v{vDW1[1]}, 32, v{vDW1[0]}
    v_mov_b32 v{vDW2[0]}, v{vL16}
    v_mov_b32 v{vDW2[1]}, v{vL16}
    v_mov_b32 v{vDW2[2]}, v{vL16}
    s_mov_b32 exec_lo, 0xffff0000
    v_xor_b32 v{vDW2[2]}, 32, v{vL16}
    s_mov_b32 exec_lo, 0
    s_mov_b32 exec_hi, 0xffff0000
    v_xor_b32 v{vDW2[0]}, 32, v{vL16}
    s_mov_b32 exec_lo, -1
    s_mov_b32 exec_hi, 0
    v_xor_b32 v{vDW2[1]}, 32, v{vL16}
    s_mov_b64 exec, -1
    s_mul_i32 s{sWA}, s{sWI}, {3*6144}
    s_mul_i32 s{sWBm}, s{sWI}, 3072
    ''')

TM = opt('touch', '12o')
TOUCH = chr(10).join(t for k, t in (('l', 's_load_dword s76, s[6:7], 0'), ('x', f's_load_dword s77, s[4:5], s{sT0}'), ('1', 's_load_dword s78, s[10:11], 0'),
        ('2', 's_load_dword s79, s[12:13], 0'), ('o', f's_load_dword s80, s[14:15], s{sT0}')) if k in TM)
isF = 's_cmp_lt_u32' if FOLD else 's_cmp_ge_u32'
a(f'''
s_load_dwordx4 s[4:7], s[0:1], 0
s_load_dwordx4 s[8:11], s[0:1], 16
s_load_dwordx4 s[12:15], s[0:1], 32
s_getpc_b64 s[100:101]
L_pc:
''')
if STAMP: a(f's_load_dwordx2 s[{sWS}:{sWS+1}], s[0:1], {48 if opt("dbg") else 56}')
stamp(0)
if opt('hold') or opt('amp'): a('s_memrealtime s[94:95]\ns_mov_b32 s88, 0')
a(f'''
s_cmp_ge_u32 s2, 256
s_cbranch_scc1 L_end
v_lshrrev_b32 v{T[0]}, 6, v0
v_and_b32 v{vLN}, 63, v0
''')
PFM = opt('pf', 'h')
if PFM == 'first':
    a(f'''
    s_bfe_u32 s{sT3}, s2, 0x20003
    s_mul_i32 s{sT3}, s{sT3}, {80*128}
    v_mul_u32_u24 v{T[1]}, 10, v{T[0]}
    v_add_u32 v{T[1]}, v{T[1]}, v{vLN}
    v_lshl_add_u32 v{T[1]}, v{T[1]}, 7, s{sT3}
    v_min_u32 v{T[1]}, L_end-L_pc, v{T[1]}
    s_mov_b64 exec, 0x3ff
    global_load_dword v{vPF}, v{T[1]}, s[100:101]
    s_mov_b64 exec, -1
    ''')
a(f'''
s_lshr_b32 s{sT1}, s2, 3
v_readfirstlane_b32 s{sWV}, v{T[0]}
s_and_b32 s{sT2}, s2, 1
s_add_u32 s{sT2}, s{sT2}, s{sT1}
s_cmp_ge_u32 s{sT2}, 32
s_cbranch_scc1 L_end
s_and_b32 s{sT0}, s2, 3
v_mul_u32_u24 v{T[0]}, 43, v{vLN}
s_mul_i32 s{sT0}, s{sT0}, 63
s_add_u32 s{sT0}, s{sT0}, 1
v_lshrrev_b32 v{T[0]}, 9, v{T[0]}
s_lshr_b32 s{sT0}, s{sT0}, 1
s_add_u32 s{sT0}, s{sT0}, s{sT1}
v_mul_u32_u24 v{T[1]}, 12, v{T[0]}
s_mul_i32 s{sT1}, s{sT0}, 9363
s_lshr_b32 s{sT1}, s{sT1}, 16
v_sub_u32 v{T[1]}, v{vLN}, v{T[1]}
s_mul_i32 s{sT2}, s{sT1}, 7
s_sub_u32 s{sT0}, s{sT0}, s{sT2}
s_bfe_u32 s{sT2}, s2, 0x10002
s_mul_i32 s{sT2}, s{sT2}, 7
s_add_u32 s{sT0}, s{sT0}, s{sT2}
s_lshl_b32 s{sX0}, s{sT0}, 4
s_mul_i32 s{sY0}, s{sT1}, {112*7282}
s_add_u32 s{sH13}, s{sY0}, {112*7282}
s_lshr_b32 s{sY0}, s{sY0}, 16
s_lshr_b32 s{sH13}, s{sH13}, 16
s_sub_u32 s{sH13}, s{sH13}, s{sY0}
s_and_b32 s{sWI}, s{sWV}, 3
''')
if PFM == 'h':
    a(f'''
    s_cmp_eq_u32 s{sH13}, 13
    s_cbranch_scc1 L_nopf
    s_bfe_u32 s{sT3}, s2, 0x20003
    s_lshl_b32 s{sT3}, s{sT3}, 3
    s_add_u32 s{sT3}, s{sT3}, s{sWV}
    s_mul_i32 s{sT3}, s{sT3}, {10*128}
    v_lshl_add_u32 v{T[2]}, v{vLN}, 7, s{sT3}
    v_min_u32 v{T[2]}, L_end-L_pc, v{T[2]}
    s_mov_b64 exec, 0x3ff
    global_load_dword v{vPF}, v{T[2]}, s[100:101]
    s_mov_b64 exec, -1
    L_nopf:
    ''')
a(f'''
v_mov_b32 v{T[4]}, {MARK}
v_lshlrev_b32 v{vL16}, 4, v{vLN}
s_mul_i32 s{sT1}, s{sWI}, 5
v_add_u32 v{T[0]}, s{sT1}, v{T[0]}
v_bfe_u32 v{T[2]}, v{T[0]}, 2, 2
v_xor_b32 v{T[1]}, v{T[1]}, v{T[2]}
s_sub_u32 s{sT1}, s{sX0}, 2
v_add_u32 v{T[0]}, s{sT1}, v{T[0]}
v_mul_u32_u24 v{T[2]}, 192, v{T[0]}
v_cmp_gt_u32 vcc, 224, v{T[0]}
v_lshl_add_u32 v{T[2]}, v{T[1]}, 4, v{T[2]}
s_mul_i32 s{sXM}, s{sWI}, 960
s_mov_b32 s99, 43008
v_cndmask_b32 v{vXO}, v{T[4]}, v{T[2]}, vcc
s_sub_u32 s{sT1}, s{sY0}, 2
s_mul_i32 s{sT1}, s{sT1}, s99
v_add_u32 v{vXO}, s{sT1}, v{vXO}
s_mov_b32 s{sX+2}, {XBYTES}
s_mov_b32 s{sX+3}, 0x00020000
{isF} s{sWV}, 4
s_cbranch_scc1 L_F0
; tables: A = 5x5 row i ; B = 3x3 row i (i<3, lanes 12..47) or 5x5 row 4 (i==3)
s_mov_b32 s{sDS+2}, 4800
s_mov_b32 s{sDS+3}, 0x00020000
s_mov_b32 s{sDL+3}, 0x00020000
s_mul_i32 s{sT3}, s{sWI}, {TP}
s_mul_i32 s{sT2}, s{sWI}, 576
s_sub_u32 s{sT2}, s{sT2}, 192
s_add_u32 s{sT1}, s{sT3}, {TB + 2*TP}
s_cmp_eq_u32 s{sWI}, 3
s_cselect_b32 s{sDL+2}, s{sDS+2}, 1728
s_cselect_b32 s{sT2}, 3840, s{sT2}
s_cselect_b32 s{sT1}, {TB + 12*TP}, s{sT1}
s_cselect_b32 exec_lo, -1, 0xfffff000
s_cselect_b32 exec_hi, -1, 0xffff
v_add_u32 v{T[4]}, s{sT2}, v{vL16}
s_mov_b32 exec_lo, -1
s_mov_b32 exec_hi, 0x0fffffff
s_add_u32 m0, s{sT3}, {TB + 8*TP}
s_cmp_eq_u32 s{sWI}, 3
s_waitcnt lgkmcnt(0)
{ap('Lk')}
s_mov_b64 s[{sDS}:{sDS+1}], s[8:9]
s_cselect_b64 s[{sDL}:{sDL+1}], s[8:9], s[6:7]
buffer_load_dwordx4 v{vL16}, {srd(sDS)}, s{sXM} offen lds
s_mov_b32 m0, s{sT1}
s_mov_b64 s[{sX}:{sX+1}], s[4:5]
buffer_load_dwordx4 v{T[4]}, {srd(sDL)}, 0 offen lds
s_add_u32 m0, s{sXM}, {XB}
s_movk_i32 s{sXM}, {XROW}
''')
xl = [0]
def xrows(n):
    for _ in range(n):
        t = xl[0]; xl[0] += 1
        if t:
            a(f's_add_u32 m0, m0, s{sXM}')
            a(f'v_add_u32 v{vXO}, s99, v{vXO}')
        a(f'buffer_load_dwordx4 v{vXO}, {srd(sX)}, 0 offen{XPOL} lds')
NX0 = int(opt('nx0', 8))
if opt('amp') == 'x1':
    xrows(1); a('s_waitcnt vmcnt(0)'); a(ap('x1')); xrows(NX0 - 1)
else:
    xrows(NX0)
for k_ in (4, 8, 12, 17):
    if opt('amp') == f'x{k_}': a(f's_waitcnt vmcnt({NX0 - k_})'); a(ap(f'x{k_}'))
a(ap('Li'))
stamp(1)
a(f'''
s_branch L_L
L_F0:
; ---- F: conv weight tables, rows w and w+4 of both
s_setprio {opt("fprio", 2)}
s_mul_i32 s{sIMG}, s{sWI}, 6144
s_mov_b32 s{sOB}, {OUTF}
s_mul_i32 s{sT0}, s{sY0}, 43008
s_cmp_lg_u32 s{sWI}, 0
s_cbranch_scc1 L_nozero
v_add_u32 v{T[0]}, {TB}, v{vL16}
v_mov_b64 v[0:1], 0
v_mov_b64 v[2:3], 0
''')
for off in (0, 2*TP - 1024, 5*TP, 5*TP + 1024, 8*TP - 1024, 13*TP, 13*TP + 1024, 16*TP - 1024):
    a(f'ds_write_b128 v{T[0]}, v[0:3] offset:{off}')
a(f'''
L_nozero:
s_waitcnt lgkmcnt(0)
{TOUCH}
''')
WPF = opt('wpf', '0') == '1'
if PFM in ('f', 'g'):
    if PFM == 'g': a(f's_cmp_eq_u32 s{sH13}, 13\ns_cselect_b32 s97, 1, 0xfffff')
    a(f'''
    s_bfe_u32 s{sT3}, s2, 0x20003
    s_lshl_b32 s{sT3}, s{sT3}, 2
    s_add_u32 s{sT3}, s{sT3}, s{sWI}
    s_mul_i32 s{sT3}, s{sT3}, {20*128}
    v_lshl_add_u32 v{T[1]}, v{vLN}, 7, s{sT3}
    v_min_u32 v{T[1]}, L_end-L_pc, v{T[1]}
    {'s_mov_b64 exec, 0xfffff' if PFM == 'f' else f's_cmp_eq_u32 s{sH13}, 13'+chr(10)+f's_cselect_b32 s{sT3}, 0, -1'+chr(10)+f'v_and_b32 v{T[1]}, s{sT3}, v{T[1]}'+chr(10)+'s_mov_b32 exec_lo, s97'+chr(10)+'s_mov_b32 exec_hi, 0'}
    global_load_dword v{vPF}, v{T[1]}, s[100:101]
    s_mov_b64 exec, -1
    ''')
if WPF:
    a(f'''
    s_and_b32 s{sT0}, s{sWI}, 1
    s_cselect_b64 s[{sT1}:{sT2}], s[12:13], s[10:11]
    s_lshr_b32 s{sT0}, s2, 3
    s_lshl_b32 s{sT0}, s{sT0}, 1
    s_lshr_b32 s{sT3}, s{sWI}, 1
    s_add_u32 s{sT0}, s{sT0}, s{sT3}
    s_mul_i32 s{sT0}, s{sT0}, {10*128}
    v_lshl_add_u32 v{T[0]}, v{vLN}, 7, s{sT0}
    v_min_u32 v{T[0]}, {73728-128}, v{T[0]}
    s_mov_b64 exec, 0x3ff
    global_load_dword v{vPF-1}, v{T[0]}, s[{sT1}:{sT2}]
    s_mov_b64 exec, -1
    ''')
a(ap('Ft'))
if opt('amp') == 'tab': a('s_waitcnt vmcnt(0)'); a(ap('tab'))
conv_setup1()
a(ap('Fc'))
OPF = opt('opf', '0') == '1'
if OPF:
    a(f'''
    s_mov_b64 exec, 1
    buffer_load_dword v{vPF-2}, v{vL16}, {srd(sOUT)}, s{sO0} offen
    s_mov_b64 exec, -1
    ''')
vFR = [48, 49, 50, 51]
vDW1[:] = [56, 57]; vDW2[:] = [58, 59, 60]
def f_setup1():
    a(f'''
    s_add_u32 s{sO1}, s{sO0}, {4*43008}
    v_lshrrev_b32 v{T[4]}, 5, v{vLN}
    v_bfe_u32 v{T[0]}, v{vLN}, 2, 2
    v_bfe_u32 v{T[1]}, v{vLN}, 4, 1
    v_and_b32 v{T[2]}, 3, v{vLN}
    v_lshl_add_u32 v{T[3]}, v{T[4]}, 4, v{T[0]}
    v_lshlrev_b32 v{T[3]}, 7, v{T[3]}
    v_lshl_add_u32 v{T[3]}, v{T[1]}, 5, v{T[3]}
    v_lshl_add_u32 v{T[3]}, v{T[2]}, 3, v{T[3]}
    v_bfe_u32 v{T[2]}, v{vLN}, 3, 1
    v_lshl_add_u32 v{vAW1[0]}, v{T[2]}, 6, v{T[3]}
    v_xor_b32 v{vAW1[1]}, 64, v{vAW1[0]}
    v_xor_b32 v{vAW1[2]}, 32, v{vAW1[0]}
    v_xor_b32 v{vAW1[3]}, 0x60, v{vAW1[0]}
    v_lshl_add_u32 v{T[3]}, v{T[4]}, 2, v{T[0]}
    v_mul_u32_u24 v{T[3]}, 192, v{T[3]}
    v_lshl_add_u32 v{T[3]}, v{T[1]}, 4, v{T[3]}
    v_and_b32 v{T[2]}, 1, v{vLN}
    v_xor_b32 v{T[2]}, v{T[2]}, v{T[4]}
    v_lshl_add_u32 v{T[3]}, v{T[2]}, 5, v{T[3]}
    v_bfe_u32 v{T[2]}, v{vLN}, 1, 1
    v_lshl_add_u32 v{T[3]}, v{T[2]}, 3, v{T[3]}
    v_add_u32 v{vAW2}, 12288, v{T[3]}
    s_mul_i32 s{sT2}, s{sWI}, 3072
    s_add_u32 s{sT2}, s{sT2}, {OUTF}
    s_mul_i32 s{sT1}, s{sWI}, {XROW}
    s_add_u32 s{sT1}, s{sT1}, {XB + 2*XROW + 384}
    v_lshlrev_b32 v{T[4]}, 1, v{T[4]}
    v_xor_b32 v{T[0]}, v{T[4]}, v{T[0]}
    v_and_b32 v{T[3]}, 15, v{vLN}
    v_mul_u32_u24 v{T[3]}, 192, v{T[3]}
    v_lshl_add_u32 v{T[0]}, v{T[0]}, 4, v{T[3]}
    v_lshl_add_u32 v{T[0]}, v{T[2]}, 3, v{T[0]}
    v_mul_u32_u24 v{T[2]}, {4*3072}, v{T[1]}
    v_add3_u32 v{vFR[0]}, v{T[0]}, v{T[2]}, s{sT2}
    v_xor_b32 v{vFR[1]}, 8, v{vFR[0]}
    v_xor_b32 v{vFR[2]}, 16, v{vFR[0]}
    v_xor_b32 v{vFR[3]}, 24, v{vFR[0]}
    v_add_u32 v{T[0]}, 2, v{vLN}
    v_bfe_u32 v{T[0]}, v{T[0]}, 2, 2
    v_xor_b32 v{T[0]}, v{T[4]}, v{T[0]}
    v_lshl_add_u32 v{T[0]}, v{T[0]}, 4, v{T[3]}
    v_mul_u32_u24 v{T[2]}, {4*XROW}, v{T[1]}
    v_add3_u32 v{vAR[0]}, v{T[0]}, v{T[2]}, s{sT1}
    v_xor_b32 v{vAR[1]}, 16, v{vAR[0]}
    v_bfe_u32 v{T[0]}, v{vLN}, 1, 2
    v_xor_b32 v{T[0]}, v{T[4]}, v{T[0]}
    v_lshl_add_u32 v{T[0]}, v{T[0]}, 4, v{T[3]}
    v_mul_u32_u24 v{T[2]}, 3072, v{T[1]}
    v_add3_u32 v{vSW[0]}, v{T[0]}, v{T[2]}, s{sIMG}
    v_xor_b32 v{vSW[1]}, 16, v{vSW[0]}
    ''')
def f_setup2():
    a(f'''
    v_and_b32 v{T[1]}, 1, v{vLN}
    v_lshlrev_b32 v{T[1]}, 4, v{T[1]}
    v_mov_b32 v{T[2]}, 0x3f80
    v_lshlrev_b32 v{T[1]}, v{T[1]}, v{T[2]}
    ''')
    for i in range(4): a(f'v_mov_b64 {vr(vID+2*i,2)}, 0')
    for i in range(8):
        pos = 16 * (i >> 2) + 8 * ((i >> 1) & 1) + 2 * (i & 1)
        setexec(3 << pos, 3 << (pos + 4))
        a(f'v_mov_b32 v{vID+i}, v{T[1]}')
    a('s_mov_b64 exec, -1')
FS = opt('fs', '00000')
fsl = [conv_setup2, late_setup, f_setup2, f_setup1, dma_setup]
def fsetup(k):
    for f, c in zip(fsl, FS):
        if int(c) == k: f()
FXP = int(opt('fxp', 5))
def f_rows():
    a(f'''
    s_add_u32 m0, s{sXM}, {XB + (NX0-1)*XROW}
    s_movk_i32 s{sXM}, {XROW}
    v_add_u32 v{vXO}, {(NX0-1)*43008}, v{vXO}
    s_mov_b64 s[{sX}:{sX+1}], s[4:5]
    s_mov_b32 exec_hi, 0x0fffffff
    ''')
    xrows(17 - NX0)
    a('s_mov_b32 exec_hi, -1')
FRP = opt('frp', 'a')
if FRP == 'b':
    fsl.insert(FXP, f_rows); FS = FS[:FXP] + '0' + FS[FXP:]
fsetup(0)
a(ap('Fs'))
stamp(1)
a('s_waitcnt lgkmcnt(0)')
a(ap('Fl'))
pstamp(9)
bar()
a(ap('Bt'))
cv = Conv(0)
for gi in range(3): tab_reads(gi, cv.ds)
if FRP == 'a': f_rows()
fsetup(3)
bar(2)
S0 = stage([('F',0,[0]), ('F',1,[0,1])])
cv.run(S0, 0)
def res_half(s):
    m = 0xffff0000 if s else 0xffff
    setexec(m, m)
    for ks in range(6):
        cv.ds(f'ds_read_b128 {vr(vRES+4*ks,4)}, v{vAR[ks&1]} offset:{64*(ks>>1)}')
    a('s_mov_b64 exec, -1')
def run_stage(left, frags, pairs, keep=0, mid=None):
    its = left + stage(frags)
    if pairs: add_pub(its, len(left), len(frags), pairs)
    if mid: its[mid[0]]['post'] = mid[1]
    return cv.run(its, len(its) - keep)
left = cv.run(S0, len(S0) - int(opt('keep0', 0)))
fsetup(1)
pstamp(10)
bar(3)
left = run_stage(left, [('F',2,[0,1,2]), ('F',3,[1,2,3]), ('E',0,[0,1])], [0, 1])
fsetup(2)
SPLIT = opt('split', '0') == '1'
a(f's_waitcnt vmcnt({5 if SPLIT else 0})')
pstamp(11)
bar(4)
a(f's_setprio {opt("fprio2", 3)}')
left = run_stage(left, [('F',4,[2,3]), ('F',5,[3]), ('E',2,[2,3])], [2, 3])
a('s_waitcnt vmcnt(0)')
signal(1)
wdma(0, [0, 1, 2])
stamp(5)
poll(GF, 1)
RA = 168
for ks in range(6):
    a(f'ds_read_b64 {vr(RA+4*ks,2)}, v{vFR[2*(ks&1)]} offset:{64*(ks>>1)}')
    a(f'ds_read_b64 {vr(RA+4*ks+2,2)}, v{vFR[2*(ks&1)+1]} offset:{64*(ks>>1)}')
a(f's_setprio {opt("fprio3", 1)}')
wdma(1, [0, 1, 2])
a('s_waitcnt lgkmcnt(0)')
stamp(6)
def f_mid():
    for ks in range(6):
        a(f'ds_read_b128 {vr(vRES+4*ks,4)}, v{vAR[ks&1]} offset:{64*(ks>>1)}')
    landed(0, 2)
    wdma(0, [3, 4, 5]); wdma(1, [3, 4, 5])
    peek(GF)
def f_mid2():
    a('s_waitcnt lgkmcnt(0)')
    check(GF, 2)
    f_w1reads0()
ln(RA, 72, [vL + i for i in range(24)], False, f_mid, f_mid2)
stamp(8)
XH = {
  'start3': [lambda: landed(0, 3)],
  ('T1', 0): [lambda: peek(GF)],
  ('preT2', 0): [lambda: check(GF, 3)],
  ('T1', 1): [lambda: stamp(9)],
  ('T2', 1): [lambda: peek(GL)],
  ('preT1', 2): [lambda: check(GL, 6)],
  ('preT1', 4): [lambda: signal(4)],
  ('T1', 4): [lambda: peek(GL)],
  ('preT2', 4): [lambda: check(GL, 7)],
  ('T2', 5): [lambda: peek(GL)],
  ('preT1', 6): [lambda: check(GL, 8), lambda: stamp(10)],
  ('preT1', 8): [lambda: stamp(11)],
  ('T2', 8): [lambda: peek(GF)],
  ('preT1', 9): [lambda: check(GF, 4)],
  ('preT1', 10): [lambda: stamp(12)],
}
FP = opt('fp', 'n')
def fprio(c):
    if FP == 'n': return (0, 0) if c == 0 else None
    if FP == 's': return (1, 1) if c == 0 else None
    return (0, int(FP))
mlp32(XH, fprio)
stamp(13)
P = vY[0]; Q = vK[0]
for mt in range(3):
    for i in range(8):
        a(f'v_cvt_pk_bf16_f32 v{P+8*mt+i}, v{vO+16*mt+2*i}, v{vO+16*mt+2*i+1}')
    a(f'ds_write_b128 v{vSW[0]}, {vr(P+8*mt,4)} offset:{64*mt}')
    a(f'ds_write_b128 v{vSW[1]}, {vr(P+8*mt+4,4)} offset:{64*mt}')
for s in range(2):
    for j in range(3):
        a(f'ds_read_b128 {vr(Q+4*(3*s+j),4)}, v{vSR[j]} offset:{3072*s}')
for s in range(2):
    for j in range(3):
        a(f's_waitcnt lgkmcnt({5-(3*s+j)})')
        a(f'buffer_store_dwordx4 {vr(Q+4*(3*s+j),4)}, v{vL16}, {srd(sOUT)}, s{sO1 if s else sO0} offen offset:{1024*j}{STPOL}')
finish()
emit_slow()

a.label('L_L')
cv = Conv(4)
vDW1[:] = [220, 221]; vDW2[:] = [222, 223, 224]
vA0, vA2 = 48, 50
RR = 60
def l_setup():
    a(f'''
    s_add_u32 s{sO0}, s{sO0}, {8*43008}
    s_and_b32 s{sT1}, s{sWI}, 1
    v_lshrrev_b32 v{T[4]}, 4, v{vLN}
    v_bfe_u32 v{T[0]}, v{vLN}, 2, 2
    v_and_b32 v{T[2]}, 3, v{vLN}
    v_bfe_u32 v{T[1]}, v{vLN}, 4, 1
    v_lshlrev_b32 v{T[2]}, 3, v{T[2]}
    v_lshl_add_u32 v{T[2]}, v{T[1]}, 5, v{T[2]}
    v_lshl_add_u32 v{T[3]}, v{T[4]}, 3, v{T[0]}
    v_lshl_add_u32 v{T[3]}, v{T[3]}, 7, v{T[2]}
    v_bfe_u32 v{T[1]}, v{vLN}, 3, 1
    v_xor_b32 v{T[1]}, s{sT1}, v{T[1]}
    v_lshl_add_u32 v{T[3]}, v{T[1]}, 6, v{T[3]}
    s_lshr_b32 s{sT2}, s{sWI}, 1
    s_mul_i32 s{sT2}, s{sT2}, {PS}
    s_sub_u32 s{sT3}, {PS}, s{sT2}
    v_add_u32 v{vLW1}, s{sT2}, v{T[3]}
    v_add_u32 v{vLW1+4}, s{sT3}, v{T[3]}
    v_xor_b32 v{vLW1+1}, 32, v{vLW1}
    v_xor_b32 v{vLW1+2}, 64, v{vLW1}
    v_xor_b32 v{vLW1+3}, 0x60, v{vLW1}
    v_xor_b32 v{vLW1+5}, 32, v{vLW1+4}
    v_xor_b32 v{vLW1+6}, 64, v{vLW1+4}
    v_xor_b32 v{vLW1+7}, 0x60, v{vLW1+4}
    v_lshl_add_u32 v{T[3]}, v{T[4]}, 2, v{T[0]}
    v_mul_u32_u24 v{T[3]}, 192, v{T[3]}
    v_add_u32 v{T[3]}, v{T[3]}, v{T[2]}
    s_mul_i32 s{sT1}, s{sT1}, 6144
    s_add_u32 s{sT2}, s{sT2}, 12288
    s_add_u32 s{sT3}, s{sT3}, 12288
    s_add_u32 s{sT0}, s{sT2}, s{sT1}
    v_add_u32 v{vLW2}, s{sT0}, v{T[3]}
    s_add_u32 s{sT0}, s{sT3}, s{sT1}
    v_add_u32 v{vLW2+4}, s{sT0}, v{T[3]}
    s_sub_u32 s{sT1}, 6144, s{sT1}
    s_add_u32 s{sT0}, s{sT2}, s{sT1}
    v_add_u32 v{vLW2+2}, s{sT0}, v{T[3]}
    s_add_u32 s{sT0}, s{sT3}, s{sT1}
    v_add_u32 v{vLW2+6}, s{sT0}, v{T[3]}
    v_xor_b32 v{vLW2+1}, 32, v{vLW2}
    v_xor_b32 v{vLW2+3}, 32, v{vLW2+2}
    v_xor_b32 v{vLW2+5}, 32, v{vLW2+4}
    v_xor_b32 v{vLW2+7}, 32, v{vLW2+6}
    v_xor_b32 v{T[0]}, v{T[4]}, v{T[0]}
    v_and_b32 v{T[3]}, 15, v{vLN}
    v_mul_u32_u24 v{T[3]}, 192, v{T[3]}
    v_lshl_add_u32 v{T[0]}, v{T[0]}, 4, v{T[3]}
    v_add_u32 v{vARL}, {L12}, v{T[0]}
    v_bfe_u32 v{T[1]}, v{vLN}, 1, 1
    v_lshl_add_u32 v{T[0]}, v{T[1]}, 3, v{T[0]}
    v_add_u32 v{vA2}, {L12}, v{T[0]}
    v_xor_b32 v{vA2+1}, 8, v{vA2}
    v_add_u32 v{vA0}, s{sIMG}, v{T[0]}
    v_xor_b32 v{vA0+1}, 8, v{vA0}
    s_mul_i32 s{sT0}, s{sWI}, {XROW}
    v_bfe_u32 v{T[1]}, v{vLN}, 4, 1
    v_lshl_add_u32 v{T[3]}, v{T[1]}, 3, v{T[3]}
    v_lshrrev_b32 v{T[4]}, 5, v{vLN}
    v_bfe_u32 v{T[0]}, v{vLN}, 1, 2
    v_xor_b32 v{T[0]}, v{T[4]}, v{T[0]}
    v_lshl_add_u32 v{T[0]}, v{T[0]}, 4, v{T[3]}
    v_add_u32 v{vSW[0]}, s{sIMG}, v{T[0]}
    v_xor_b32 v{vSW[1]}, 32, v{vSW[0]}
    v_add_u32 v{T[0]}, 2, v{vLN}
    v_bfe_u32 v{T[0]}, v{T[0]}, 2, 2
    v_xor_b32 v{T[0]}, v{T[4]}, v{T[0]}
    v_lshl_add_u32 v{T[0]}, v{T[0]}, 4, v{T[3]}
    s_add_u32 s{sT0}, s{sT0}, {XB + 384}
    v_add_u32 v{vAR[0]}, s{sT0}, v{T[0]}
    v_xor_b32 v{vAR[1]}, 32, v{vAR[0]}
    ''')

a(f'''
s_mov_b32 exec_hi, -1
s_mul_i32 s{sIMG}, s{sWI}, 3072
s_add_u32 s{sIMG}, s{sIMG}, {S_IL}
s_mov_b32 s{sOB}, {OUTL}
''')
LS = opt('ls', '01002')
lsl = [conv_setup1, dma_setup, conv_setup2, late_setup, l_setup]
def lsetup(k):
    for f, c in zip(lsl, LS):
        if int(c) == k: f()
lsetup(0)
a(ap('Ls'))
pstamp(14)
a(f's_waitcnt vmcnt({NX0})')
bar()
for gi in range(3): tab_reads(gi, cv.ds)
lsetup(4)
a(f's_waitcnt vmcnt({NX0 - 4})')
a(ap('Ll'))
pstamp(9)
bar(2)
lsetup(1)
pstamp(10)
a(f's_waitcnt vmcnt({NX0 - 8})')
pstamp(11)
bar(3)
WP2 = opt('wp2', '2')
def wpf():
    a(f'''
    s_and_b32 s{sT0}, s{sWI}, 1
    s_cselect_b64 s[{sT1}:{sT2}], s[12:13], s[10:11]
    s_lshr_b32 s{sT0}, s2, 3
    s_lshl_b32 s{sT0}, s{sT0}, 1
    s_lshr_b32 s{sT3}, s{sWI}, 1
    s_add_u32 s{sT0}, s{sT0}, s{sT3}
    s_mul_i32 s{sT0}, s{sT0}, {10*128}
    v_lshl_add_u32 v{T[0]}, v{vLN}, 7, s{sT0}
    v_min_u32 v{T[0]}, {73728-128}, v{T[0]}
    s_mov_b64 exec, 0x3ff
    global_load_dword v226, v{T[0]}, s[{sT1}:{sT2}]
    s_mov_b64 exec, -1
    ''')
if WP2 == '1': wpf()
lsetup(2)
if WP2 == '2': wpf()
pstamp(12)
assert NX0 == 8
a('s_waitcnt lgkmcnt(0)')
pstamp(13)
bar(4)
a(f's_setprio {opt("lprio", 2)}')
RED, LNW = 1, 3
def raw_reads(R, ad, off=0):
    for ks in range(3):
        a(f'ds_read_b64 {vr(R+4*ks,2)}, v{ad} offset:{off+64*ks}')
        a(f'ds_read_b64 {vr(R+4*ks+2,2)}, v{ad+1} offset:{off+64*ks}')
def row_store(O, soff, P=vY[0], Q=vK[0]):
    for i in range(12):
        a(f'v_cvt_pk_bf16_f32 v{P+i}, v{O+2*i}, v{O+2*i+1}')
    for i in range(6):
        a(f'ds_write_b64 v{vSW[i&1]}, {vr(P+2*i,2)} offset:{64*(i>>1)}')
    for j in range(3):
        a(f'ds_read_b128 {vr(Q+4*j,4)}, v{vSR[j]}')
    for j in range(3):
        a(f's_waitcnt lgkmcnt({2-j})')
        a(f'buffer_store_dwordx4 {vr(Q+4*j,4)}, v{vL16}, {srd(sOUT)}, s{soff} offen offset:{1024*j}{STPOL}')
LP = opt('lp', 'k')
def lprio(c):
    if LP == 'n': return (0, 0) if c == 0 else None
    if LP == 's': return (1, 1) if c == 0 else None
    if LP == 'k':
        lo, hi = [int(x) for x in opt('lk', '0,9').split(',')]
        if lo <= c < hi: return (0, 1)
        return (0, 0) if c in (0, hi) else None
    return (0, int(LP))
def l_body(h13):
    global cv
    keep = cv
    cv = copy.copy(keep)
    sfx = 'a' if h13 else 'b'
    if h13:
        frags = [('F',4,[4]), ('F',5,[4,5]), ('F',6,[4,5,6]), ('F',7,[5,6]), ('E',4,[4,5]), ('F',8,[6]), ('L',6,[6])]; pairs = [4, 5, 6]
    else:
        frags = [('F',4,[4]), ('F',5,[4,5]), ('F',6,[4,5]), ('F',7,[5]), ('E',4,[4,5])]; pairs = [4, 5]
    if SPLIT:
        pre = stage(frags[:2])
        pre = cv.run(pre, len(pre) - int(opt('keepl', 2)))
        poll(GF, 1)
        frags = frags[2:]
    else:
        pre = []
    its = pre + stage(frags)
    add_pub(its, len(pre), len(frags), pairs)
    def resr():
        for i in range(6):
            cv.ds(f'ds_read_b64 {vr(RR+2*i,2)}, v{vAR[i&1]} offset:{10*XROW+64*(i>>1)}')
        if h13:
            for i in range(6):
                cv.ds(f'ds_read_b64 {vr(RR+12+2*i,2)}, v{vAR[i&1]} offset:{(14-RED)*XROW+64*(i>>1)}')
    if opt('lc'):
        nf = len(frags)
        for j, idx in ((9, 0), (10, nf - 1), (11, nf), (12, 2 * nf - 1), (13, 2 * nf)):
            its[idx]['post'] = lambda j=j: _st(j)
    if '3' in LS:
        cv.run(its, 0)
        lsetup(3)
    cv.run(its)
    stamp(6)
    signal(2)
    resr()
    stamp(5)
    poll(GL, 2)
    stamp(7)
    RAW = 168
    raw_reads(RAW, vA0)
    for i in range(12):
        a(f'v_lshlrev_b32 v{vO+2*i}, 16, v{RR+i}\nv_and_b32 v{vO+2*i+1}, 0xffff0000, v{RR+i}')
    if h13:
        a(f's_cmp_eq_u32 s{sWI}, {RED}\ns_cbranch_scc1 L_ri{sfx}')
        for i in range(12): a(f'v_mov_b64 {vr(vO+24+2*i,2)}, 0')
        a(f's_branch L_rj{sfx}')
        a.label(f'L_ri{sfx}')
        for i in range(12):
            a(f'v_lshlrev_b32 v{vO+24+2*i}, 16, v{RR+12+i}\nv_and_b32 v{vO+24+2*i+1}, 0xffff0000, v{RR+12+i}')
        a.label(f'L_rj{sfx}')
    signal(3)
    if h13: raw_reads(RAW + 12, vA2)
    a(f's_waitcnt lgkmcnt({7 if h13 else 1})')
    def l_mid2():
        a('s_waitcnt lgkmcnt(0)')
        check(GF, 2)
        l_w1reads(0)
    ln(RAW, 72, [vL + i for i in range(12)], True, lambda: peek(GF), l_mid2)
    if h13:
        a(f's_cmp_lg_u32 s{sWI}, {LNW}\ns_cbranch_scc1 L_nl12')
        ln(RAW + 12, 72, [RAW + 12 + i for i in range(12)], True)
        for ks in range(3):
            a(f'ds_write_b128 v{vARL}, {vr(RAW+12+4*ks,4)} offset:{64*ks}')
        a.label('L_nl12')
        signal(5)
    stamp(8)
    def l12r():
        for ks in range(3):
            a(f'ds_read_b128 {vr(vL+12+4*ks,4)}, v{vARL} offset:{64*ks}')
    def pub_rem():
        a(f's_cmp_eq_u32 s{sWI}, {RED}\ns_cbranch_scc1 L_np\ns_mul_i32 s{sT0}, s{sWI}, 6144\nv_add_u32 v{T[0]}, s{sT0}, v{vL16}')
        for i in range(6):
            a(f'ds_write_b128 v{T[0]}, {vr(vO+24+4*i,4)} offset:{S_R + 1024*i}')
        a.label('L_np')
        signal(9)
    H = {
      'start3': [lambda: peek(GL)],
      ('preT1', 0): [lambda: check(GL, 3)],
      ('T1', 0): [lambda: wdma(2, [0, 1, 2]), lambda: wdma(3, [0, 1, 2]), lambda: peek(GF)],
      ('preT2', 0): [lambda: check(GF, 3)],
      ('T2', 0): [lambda: wdma(2, [3, 4, 5])] + ([lambda: peek(GL)] if h13 else []),
      ('preT1', 1): [lambda: check(GL, 5)] if h13 else [],
      ('T1', 1): [lambda: wdma(3, [3, 4, 5]), lambda: stamp(9)] + ([l12r] if h13 else []),
      ('preT2', 1): [lambda: landed(6, 6)],
      ('T2', 1): [lambda: wdma(4, [0, 1, 2]), lambda: peek(GL)],
      ('preT1', 2): [lambda: check(GL, 6)],
      ('T1', 2): [lambda: wdma(4, [3, 4, 5])],
      ('T2', 2): [lambda: wdma(5, [0, 1, 2])],
      ('preT1', 3): [lambda: landed(9, 7)],
      ('T1', 3): [lambda: wdma(5, [3, 4, 5])],
      ('T1', 4): [lambda: peek(GL)],
      ('preT2', 4): [lambda: check(GL, 7), lambda: landed(0, 8)],
      ('T2', 5): [lambda: peek(GL)],
      ('preT1', 6): [lambda: check(GL, 8), lambda: stamp(10)],
      ('preT1', 8): [lambda: stamp(11)],
      ('preT1', 10): [lambda: stamp(12)],
    }
    if h13:
        H[('T2', 9)] = [lambda: peek(GF)]
        H[('preT1', 10)] = H[('preT1', 10)] + [lambda: check(GF, 4), pub_rem]
        def reduce12():
            a(f's_cmp_lg_u32 s{sWI}, {RED}\ns_cbranch_scc1 L_nored')
            poll(GL, 9)
            others = [w for w in range(4) if w != RED]
            R = [144, 48, 144]
            def rd(n):
                for i in range(6):
                    a(f'ds_read_b128 {vr(R[n]+4*i,4)}, v{vL16} offset:{S_R + 6144*others[n] + 1024*i}')
            def ad(n):
                for i in range(24):
                    a(f'v_add_f32 v{vO+24+i}, v{vO+24+i}, v{R[n]+i}')
            rd(0); rd(1)
            a('s_waitcnt lgkmcnt(6)'); ad(0); rd(2)
            a('s_waitcnt lgkmcnt(6)'); ad(1)
            a('s_waitcnt lgkmcnt(0)'); ad(2)
            a(f's_add_u32 s{sO1}, s{sO0}, {(4-RED)*43008}')
            row_store(vO + 24, sO1, 48, 144)
            a.label('L_nored')
        H[('T1', 11)] = [reduce12]
    mlp16([3, 5, 8] if h13 else [], H, lprio)
    stamp(13)
    row_store(vO, sO0)
    finish()
    emit_slow()
    cv = keep
a(f's_cmp_lg_u32 s{sH13}, 13\ns_cbranch_scc1 L_L12')
l_body(True)
a.label('L_L12')
l_body(False)
a.label('L_end')
a('s_endpgm')

body = a.finalize()
hdr = open('cdna_kernels/' + NAME + '.s.ref').read().split('\n')
out = []
for l in hdr:
    if l.startswith('; @launch'):
        out.append('; @launch grid=(256,1,1) block=(512,1,1) lds=163840')
    elif l.startswith(';'):
        out.append(l)
    else:
        break
out.append('.amdgcn_target "amdgcn-amd-amdhsa--gfx950"')
out.append('.text')
out.append(f'.globl {NAME}_kernel')
out.append('.p2align 8')
out.append(f'.type {NAME}_kernel,@function')
out.append(f'{NAME}_kernel:')
for l in body:
    out.append(l if l.endswith(':') else '    ' + l)
out.append(f'''.section .rodata,"a"
.p2align 6
.amdhsa_kernel {NAME}_kernel
  .amdhsa_next_free_vgpr 256
  .amdhsa_next_free_sgpr 102
  .amdhsa_accum_offset 256
  .amdhsa_group_segment_fixed_size 0
  .amdhsa_kernarg_size 64
  .amdhsa_user_sgpr_count 2
  .amdhsa_user_sgpr_kernarg_segment_ptr 1
  .amdhsa_system_sgpr_workgroup_id_x 1
.end_amdhsa_kernel''')
print('\n'.join(out))
```

```python
import sys, struct, math, copy
from asmlib import Asm

NAME = "standalone__modern_conv_block_replknet__vision"
def fbits(x): return struct.unpack('<I', struct.pack('<f', x))[0]
def opt(name, default=None):
    for x in sys.argv:
        if x == '--' + name: return True
        if x.startswith('--' + name + '='): return x.split('=', 1)[1]
    return default
STAMP = opt('stamp'); CYC = opt('cyc'); PRO = opt('pro')
STPOL = ' ' + opt('stpol', 'sc1').replace('_', ' ') if opt('stpol', 'sc1') != 'none' else ''
FOLD = opt('fold', '1') == '1'
GL, GF = (1, 0) if FOLD else (0, 1)

XPOL = ' ' + opt('xpol').replace('_', ' ') if opt('xpol') else ''
XROW = 3840
XB = 73728
PS = 24576
TB, TP = 139264, 976
OUTF, OUTL = 49152, 147456
L12 = OUTL + 4*3072
FL = 163584
S_IF, S_R, S_IL = 0, 24576, OUTL
MARK = 0x40000000
XBYTES = 224 * 224 * 192

k0 = math.sqrt(2.0 / math.pi); k1 = 0.044715
c0 = 2 * k0 / math.log(2.0); c1 = c0 * k1
ga = c1 ** (1.0 / 3.0)
gc = -c0 / ga

sX, sDL, sDS, sW1, sW2, sOUT = 16, 20, 24, 28, 32, 36
sWV, sY0, sX0, sT0, sT1, sT2, sT3 = 40, 41, 42, 43, 44, 45, 46
sH13, sWI = 47, 3
sCA, sCC = 48, 50
sWS = 52
sXM, sIMG, sOB = 56, 57, 62
sWA, sWBm = 58, 59
sO0, sO1 = 60, 61
sST = 64
NST = 16
def srd(b): return f's[{b}:{b+3}]'
vO, vL, vY, vK, vG, vF1, vF2 = 0, 48, [72, 88], [104, 120], 136, 144, 168
vRES, vID = 204, 228
vAW1 = [236, 237, 245, 249]; vAW2 = 238
vLW1 = 204; vLW2 = 212
vDW1 = [220, 221]; vDW2 = [222, 223, 224]
vARL = 225
vSW = [239, 240]; vSR = [241, 242, 243]
vL16 = 244
vFA, vFW, vFP = 246, 247, 248
T = [250, 251, 252, 253, 254]
vLN = 255
vXO = 203; vPF = 54
vAF, vAE, vAO, vIDX, vTF0, vTF1, vTE, vAR, vAE16, vAO1 = 192, 193, 194, 195, 196, 197, 198, [199, 200], 201, 202
vACC, vAFR, vB = 0, 84, 144
def vr(b, n): return f'v[{b}:{b+n-1}]'

a = Asm()
def _st(i): a(f'{"s_memtime" if CYC else "s_memrealtime"} s[{sST+2*i}:{sST+2*i+1}]')
def pstamp(i):
    if STAMP and PRO and not opt('lc'): _st(i)
def ap(n):
    return 's_memrealtime s[88:89]' if opt('amp') == n else ''
def stamp(i):
    a(ap(str(i)))
    if i in (8, 13): hold(i)
    if STAMP and not (PRO and 9 <= i <= 14): _st(i)
def mksrd(b, lo, n):
    a(f's_mov_b64 s[{b}:{b+1}], s[{lo}:{lo+1}]\ns_mov_b32 s{b+2}, {n}\ns_mov_b32 s{b+3}, 0x00020000')
def hold(tag):
    h = opt('hold')
    if h and h.split(':')[0] == str(tag):
        n = nlab[0]; nlab[0] += 1
        a(f's_waitcnt lgkmcnt(0)\ns_add_u32 s92, s94, {h.split(":")[1]}')
        a.label(f'L_hold{n}')
        a(f's_memrealtime s[90:91]\ns_waitcnt lgkmcnt(0)\ns_sub_u32 s93, s92, s90\ns_cmp_gt_i32 s93, 0\ns_cbranch_scc1 L_hold{n}')
def bar(i=None):
    jitter()
    a('s_barrier')
    jitter()
    hold(i)
    if i is not None: stamp(i)
def setexec(lo, hi):
    a(f's_mov_b32 exec_lo, {lo:#x}\ns_mov_b32 exec_hi, {hi:#x}')

nlab = [0]; slow = []
def guard():
    if opt('safe'): a('s_sub_u32 s98, s98, 1\ns_cbranch_scc1 L_end')
def jitter():
    if opt('jitter'):
        n = nlab[0]; nlab[0] += 1
        a(f's_mul_i32 s86, s86, 1103515245\ns_add_u32 s86, s86, 12345\ns_lshr_b32 s87, s86, {opt("jitter")}')
        a.label(f'L_jit{n}')
        a(f's_sleep 2\ns_sub_u32 s87, s87, 1\ns_cbranch_scc0 L_jit{n}')
def signal(v, emit=None):
    jitter()
    a(f'v_mov_b32 v{T[4]}, {v}')
    (emit or a)(f'ds_write_b32 v{vFW}, v{T[4]}')
def poll(grp, v):
    lab = f'L_poll{nlab[0]}'; nlab[0] += 1
    a.label(lab)
    guard()
    a(f'ds_read_b32 v{vFP}, v{vFA} offset:{16*grp}\ns_waitcnt lgkmcnt(0)\nv_cmp_gt_u32 vcc, {v}, v{vFP}\ns_cbranch_vccnz {lab}')
def peek(grp): a(f'ds_read_b32 v{vFP}, v{vFA} offset:{16*grp}')
def check(grp, v):
    jitter()
    n = nlab[0]; nlab[0] += 1
    a(f'v_cmp_gt_u32 vcc, {v}, v{vFP}\ns_cbranch_vccnz L_slow{n}')
    a.label(f'L_back{n}')
    slow.append((n, grp, v))
def emit_slow():
    for n, grp, v in slow:
        a.label(f'L_slow{n}')
        guard()
        a(f'ds_read_b32 v{vFP}, v{vFA} offset:{16*grp}\ns_waitcnt lgkmcnt(0)\nv_cmp_gt_u32 vcc, {v}, v{vFP}\ns_cbranch_vccnz L_slow{n}\ns_branch L_back{n}')
    slow.clear()
def landed(n, v):
    a(f's_waitcnt vmcnt({n})'); signal(v)

def wdma(p, parts=range(6)):
    jitter()
    for i in parts:
        if i < 3:
            a(f'''
            s_add_u32 m0, s{sWBm}, {PS*p + 1024*i}
            s_add_u32 s{sT0}, s{sWA}, {6144*i + 128*p}
            buffer_load_dwordx4 v{vDW1[i & 1]}, {srd(sW1)}, s{sT0} offen lds
            ''')
        else:
            if i == 3 or i - 1 not in parts:
                a(f's_add_u32 m0, s{sWBm}, {PS*p + 12288}\ns_add_u32 s{sT0}, s{sWBm}, {12288*p}')
            a(f'buffer_load_dwordx4 v{vDW2[i-3]}, {srd(sW2)}, s{sT0} offen offset:{1024*(i-3)} lds')

def ln(raw, U, dst, rows16, mid=None, mid2=None):
    n = len(dst)
    S, Q, ONE = T[1], T[3], T[4]
    sc, bi = T[0], T[2]
    a(f'v_mov_b32 v{ONE}, 0x3f803f80')
    un = []
    for i in range(n):
        un.append(f'v_lshlrev_b32 v{U+2*i}, 16, v{raw+i}')
        un.append(f'v_and_b32 v{U+2*i+1}, 0xffff0000, v{raw+i}')
    while len(un) > 8: a(un.pop(0))
    for i in range(n):
        a(f'v_dot2_f32_bf16 v{S}, v{raw+i}, v{ONE}, {"0" if i == 0 else f"v{S}"}')
        a(f'v_dot2_f32_bf16 v{Q}, v{raw+i}, v{raw+i}, {"0" if i == 0 else f"v{Q}"}')
    def fill(k):
        for _ in range(k):
            if un: a(un.pop(0))
    fill(3)
    a(f'v_permlane32_swap_b32 v{S}, v{Q}')
    a(f'v_add_f32 v{S}, v{S}, v{Q}')
    if rows16:
        a(f'v_mov_b32 v{Q}, v{S}')
        fill(2)
        a(f'v_permlane16_swap_b32 v{S}, v{Q}')
        a(f'v_add_f32 v{S}, v{S}, v{Q}')
    a(f'v_mul_f32 v{S}, {fbits(1.0/96):#x}, v{S}')
    a(f'v_mov_b32 v{Q}, v{S}')
    fill(2)
    a(f'v_permlane32_swap_b32 v{S}, v{Q}')
    a(f'''
    v_fma_f32 v{Q}, -v{S}, v{S}, v{Q}
    v_max_f32 v{Q}, 0, v{Q}
    v_add_f32 v{Q}, {fbits(1e-5):#x}, v{Q}
    v_rsq_f32 v{Q}, v{Q}
    ''')
    fill(1)
    a(f'v_mul_f32 v{sc}, {fbits(ga):#x}, v{Q}')
    a(f'v_mul_f32 v{bi}, -v{S}, v{sc}')
    fill(1000)
    if mid: mid()
    for i in range(n):
        if opt('lnplain'):
            a(f'v_fma_f32 v{U+2*i}, v{U+2*i}, v{sc}, v{bi}\nv_fma_f32 v{U+2*i+1}, v{U+2*i+1}, v{sc}, v{bi}')
        else:
            a(f'v_pk_fma_f32 {vr(U+2*i,2)}, {vr(U+2*i,2)}, {vr(sc,2)}, {vr(bi,2)} op_sel_hi:[1,0,0]')
    if mid2: mid2()
    for i in range(n):
        a(f'v_cvt_pk_bf16_f32 v{dst[i]}, v{U+2*i}, v{U+2*i+1}')

def pk_t(Y, K, n):
    return [f'v_pk_fma_f32 {vr(K+2*i,2)}, {vr(Y+2*i,2)}, {vr(Y+2*i,2)}, s[{sCC}:{sCC+1}] neg_lo:[1,0,0] neg_hi:[1,0,0]' for i in range(n//2)] + pk_m(Y, K, n)
def pk_m(Y, K, n): return [f'v_pk_mul_f32 {vr(K+2*i,2)}, {vr(Y+2*i,2)}, {vr(K+2*i,2)}' for i in range(n//2)]
def pk_d(K, n): return [f'v_pk_fma_f32 {vr(K+2*i,2)}, {vr(K+2*i,2)}, s[{sCA}:{sCA+1}], s[{sCA}:{sCA+1}]' for i in range(n//2)]
def emit(l):
    for t in l: a(t)

def mlp32(hooks, prio):
    N = 12
    moved = {'w1': False, 'w2': False}
    def move(kind, c):
        if c >= 6 and not moved[kind]:
            for r in (vAW1 if kind == 'w1' else [vAW2]): a(f'v_add_u32 v{r}, {3*PS}, v{r}')
            moved[kind] = True
    def w1reads(c):
        for ks in range(6):
            off = ((c >> 1) % 3) * PS + (ks >> 1) * 4096 + (ks & 1) * 1024
            r = vAW1[(c & 1) + 2 * (ks & 1)]
            a(f'ds_read_b64_tr_b16 {vr(vF1+4*ks,2)}, v{r} offset:{off}')
            a(f'ds_read_b64_tr_b16 {vr(vF1+4*ks+2,2)}, v{r} offset:{off+512}')
    def w2reads(c):
        for i in range(6):
            ks2, mt = i // 3, i % 3
            off = ((c >> 1) % 3) * PS + (c & 1) * 6144 + ks2 * 3072 + mt * 64
            a(f'ds_read_b64_tr_b16 {vr(vF2+4*i,2)}, v{vAW2} offset:{off}')
            a(f'ds_read_b64_tr_b16 {vr(vF2+4*i+2,2)}, v{vAW2} offset:{off+1536}')
    def g1(c, ks):
        Y = vY[c & 1]
        a(f'v_mfma_f32_32x32x16_bf16 {vr(Y,16)}, {vr(vF1+4*ks,4)}, {vr(vL+4*ks,4)}, {"0" if ks == 0 else vr(Y,16)}')
    def g2(i):
        ks2, mt = i // 3, i % 3
        a(f'v_mfma_f32_32x32x16_bf16 {vr(vO+16*mt,16)}, {vr(vF2+4*i,4)}, {vr(vG+4*ks2,4)}, {vr(vO+16*mt,16)}')
    def resm(ks):
        j, mt = ks // 3, ks % 3
        a(f'v_mfma_f32_32x32x16_bf16 {vr(vO+16*mt,16)}, {vr(vID+4*j,4)}, {vr(vRES+4*(2*mt+j),4)}, {"0" if j == 0 else vr(vO+16*mt,16)}')
    def hook(k):
        for f in hooks.get(k, []): f()
    def pr(c, v):
        if prio(c) is not None: a(f's_setprio {prio(c)[v]}')
    hook('pre')
    a('s_waitcnt lgkmcnt(0)')
    for ks in range(6): g1(0, ks)
    w1reads(1)
    hook('start3')
    for c in range(N + 1):
        Y, K = vY[c & 1], vK[c & 1]
        Yp, Kp = vY[(c - 1) & 1], vK[(c - 1) & 1]
        pr(c, 1)
        if c >= 1: emit(pk_m(Yp, Kp, 16))
        if c < N: emit(pk_t(Y, K, 16))
        cv = [f'v_cvt_pk_bf16_f32 v{vG+i}, v{Kp+2*i}, v{Kp+2*i+1}' for i in range(8)] if c >= 1 else []
        if c == N:
            emit(cv)
            a('s_waitcnt lgkmcnt(0)')
            for i in (0, 3, 1, 4, 2, 5): g2(i)
            break
        ex = [f'v_exp_f32 v{K+i}, v{K+i}' for i in range(16)]
        rc = [f'v_rcp_f32 v{K+i}, v{K+i}' for i in range(16)]
        last = c + 1 >= N
        if c + 2 < N: move('w1', c + 2)
        move('w2', c)
        if c == 0:
            gaps = [ex[0:3], ex[3:6], ex[6:9], ex[9:12], ex[12:15], ex[15:16]]
            a('s_waitcnt lgkmcnt(0)')
            for j in range(6):
                g1(1, j); emit(gaps[j])
        elif not last:
            gaps = [cv[0:4] + ex[0:1], cv[4:8] + ex[1:2], ex[2:5], ex[5:8], ex[8:11], ex[11:14], ex[14:16]]
            for j in range(7):
                if j < 6: g1(c + 1, j)
                else: g2(0)
                if j == 5: a('s_waitcnt lgkmcnt(0)')
                emit(gaps[j])
        else:
            emit(cv); emit(ex[0:4])
            a('s_waitcnt lgkmcnt(0)')
            gaps = [ex[4:8], ex[8:12], ex[12:16]]
            for j in range(3):
                g2(j); emit(gaps[j])
        hook(('preT1', c))
        pr(c, 0)
        if c + 2 < N: w1reads(c + 2)
        hook(('T1', c))
        pr(c, 1)
        emit(pk_d(K, 16))
        if c == 0:
            gp = [rc[0:3], rc[3:6], rc[6:9], rc[9:12], rc[12:14], rc[14:16]]
            for j in range(6):
                resm(j)
                if j == 5: a('s_waitcnt lgkmcnt(0)')
                emit(gp[j])
        elif not last:
            gp = [rc[0:3], rc[3:6], rc[6:9], rc[9:12], rc[12:16]]
            for j in range(5):
                g2(j + 1)
                if j == 4: a('s_waitcnt lgkmcnt(0)')
                emit(gp[j])
        else:
            gp = [rc[0:3], rc[3:6], rc[6:16]]
            for j in range(3):
                g2(j + 3)
                if j == 2: w2reads(c)
                emit(gp[j])
        hook(('preT2', c))
        pr(c, 0)
        if not last: w2reads(c)
        hook(('T2', c))
    return w1reads

def f_w1reads0():
    for ks in range(6):
        off = (ks >> 1) * 4096 + (ks & 1) * 1024
        r = vAW1[2 * (ks & 1)]
        a(f'ds_read_b64_tr_b16 {vr(vF1+4*ks,2)}, v{r} offset:{off}')
        a(f'ds_read_b64_tr_b16 {vr(vF1+4*ks+2,2)}, v{r} offset:{off+512}')

def l_w1reads(s):
    for i in range(6):
        mt2, ks3 = i // 3, i % 3
        off = ((s >> 2) & 1) * 2 * PS + ks3 * 4096
        r = vLW1 + mt2 + 2 * (s & 3)
        a(f'ds_read_b64_tr_b16 {vr(vF1+4*i,2)}, v{r} offset:{off}')
        a(f'ds_read_b64_tr_b16 {vr(vF1+4*i+2,2)}, v{r} offset:{off+512}')

def mlp16(doubles, hooks, prio):
    N = 12
    def wid(s): return 0 if (s < 0 or s >= N) else (2 if s in doubles else 1)
    def move(base):
        for r in range(8): a(f'v_add_u32 v{base+r}, {4*PS}, v{base+r}')
    def w2reads(s):
        for i in range(6):
            off = ((s >> 2) & 1) * 2 * PS + 64 * (i >> 1)
            r = vLW2 + (i & 1) + 2 * (s & 3)
            a(f'ds_read_b64_tr_b16 {vr(vF2+4*i,2)}, v{r} offset:{off}')
            a(f'ds_read_b64_tr_b16 {vr(vF2+4*i+2,2)}, v{r} offset:{off+3072}')
    def m1(s):
        l = []
        for t in range(wid(s)):
            for j in range(6):
                mt2, ks3 = j & 1, j >> 1
                D = vY[s & 1] + 8 * t + 4 * mt2
                l.append(f'v_mfma_f32_16x16x32_bf16 {vr(D,4)}, {vr(vF1+4*(mt2*3+ks3),4)}, {vr(vL+12*t+4*ks3,4)}, {"0" if ks3 == 0 else vr(D,4)}')
        return l
    def m2(s):
        return [f'v_mfma_f32_16x16x32_bf16 {vr(vO+24*t+4*i,4)}, {vr(vF2+4*i,4)}, {vr(vG+4*t,4)}, {vr(vO+24*t+4*i,4)}' for t in range(wid(s)) for i in range(6)]
    def weave(ms, fl):
        fl = list(fl)
        if not ms:
            emit(fl); a('s_waitcnt lgkmcnt(0)'); return
        for j, m in enumerate(ms):
            a(m)
            if j == len(ms) - 1: a('s_waitcnt lgkmcnt(0)')
            k = -(-len(fl) // (len(ms) - j))
            emit(fl[:k]); fl = fl[k:]
    def hook(k):
        for f in hooks.get(k, []): f()
    def pr(c, v):
        if prio(c) is not None: a(f's_setprio {prio(c)[v]}')
    hook('pre')
    a('s_waitcnt lgkmcnt(0)')
    emit(m1(0))
    l_w1reads(1)
    hook('start3')
    for s in range(N + 1):
        Y, K = vY[s & 1], vK[s & 1]
        Yp, Kp = vY[(s - 1) & 1], vK[(s - 1) & 1]
        n, np_ = 8 * wid(s), 8 * wid(s - 1)
        pr(s, 1)
        emit(pk_m(Yp, Kp, np_))
        emit(pk_t(Y, K, n))
        cv = [f'v_cvt_pk_bf16_f32 v{vG+i}, v{Kp+2*i}, v{Kp+2*i+1}' for i in range(np_ // 2)]
        if s == N:
            emit(cv)
            a('s_waitcnt lgkmcnt(0)')
            emit(m2(N - 1))
            break
        ex = [f'v_exp_f32 v{K+i}, v{K+i}' for i in range(n)]
        rc = [f'v_rcp_f32 v{K+i}, v{K+i}' for i in range(n)]
        if s + 2 == 8: move(vLW1)
        if s == 8: move(vLW2)
        if s == 0: a('s_waitcnt lgkmcnt(0)')
        weave(m1(s + 1), cv + ex)
        hook(('preT1', s))
        pr(s, 0)
        if s + 2 < N: l_w1reads(s + 2)
        hook(('T1', s))
        pr(s, 1)
        emit(pk_d(K, n))
        weave(m2(s - 1), rc)
        hook(('preT2', s))
        pr(s, 0)
        w2reads(s)
        hook(('T2', s))

def finish():
    if opt('amp'):
        n = nlab[0]; nlab[0] += 1
        if opt('amp') == 'end': a(f's_waitcnt vmcnt(0)\ns_memrealtime s[88:89]\ns_mov_b32 s{sH13}, 13')
        a(f's_waitcnt vmcnt(0) lgkmcnt(0)\ns_sub_u32 s92, s88, s94\ns_lshl_b32 s92, s92, 2\ns_cmp_eq_u32 s88, 0\ns_cselect_b32 s92, 0, s92')
        a(f's_cmp_eq_u32 s{sH13}, {opt("amprows", 13)}\ns_cselect_b32 s92, s92, 0\ns_add_u32 s92, s92, 1400\ns_add_u32 s92, s92, s94')
        a.label(f'L_amp{n}')
        a(f's_memrealtime s[90:91]\ns_waitcnt lgkmcnt(0)\ns_sub_u32 s93, s92, s90\ns_cmp_gt_i32 s93, 0\ns_cbranch_scc1 L_amp{n}')
    if STAMP:
        stamp(14)
        a('s_waitcnt vmcnt(0)')
        stamp(15)
        a('s_waitcnt lgkmcnt(0)')
        if opt('dbg'):
            n = nlab[0]; nlab[0] += 1
            a(f's_cmp_lg_u32 s2, {opt("dbg")}\ns_cbranch_scc1 L_nd{n}\ns_cmp_lg_u32 s{sWI}, 0\ns_cbranch_scc1 L_nd{n}')
            a(f's_lshl_b32 s{sT0}, s{sWV}, 3\nv_mov_b32 v{T[1]}, s{sT0}\ns_mov_b64 exec, 1')
            for k, i in enumerate((1, 2, 3, 4, 8, 10, 13, 15)):
                a(f's_sub_u32 s{sT0}, s{sST+2*i}, s{sST}\nv_mov_b32 v{T[0]}, s{sT0}')
                a(f'buffer_store_dword v{T[0]}, v{T[1]}, {srd(sWS)}, 0 offen offset:{4*k}')
            a.label(f'L_nd{n}')
            a('s_endpgm')
            return
        a(f'''
        s_lshl_b32 s{sT0}, s2, 3
        s_add_u32 s{sT0}, s{sT0}, s{sWV}
        s_lshl_b32 s{sT0}, s{sT0}, 6
        v_mov_b32 v{T[1]}, s{sT0}
        s_mov_b64 exec, 1
        ''')
        for i in range(NST):
            a(f'v_mov_b32 v{T[0]}, s{sST+2*i}')
            a(f'buffer_store_dword v{T[0]}, v{T[1]}, {srd(sWS)}, 0 offen offset:{4*i}')
    a('s_endpgm')

def tab_reads(gi, em):
    A = vAFR + 20 * gi; o = 64 * gi
    for d in range(3):
        em(f'ds_read_b64_tr_b16 {vr(A+4*d,2)}, v{vTF0} offset:{o + 2*d*TP}')
        em(f'ds_read_b64_tr_b16 {vr(A+4*d+2,2)}, v{vTF1} offset:{o + 2*d*TP}')
    for par in range(2):
        for pp in range(2):
            em(f'ds_read_b64_tr_b16 {vr(A+12+4*par+2*pp,2)}, v{vTE} offset:{o + (pp - 2*par + 2)*TP}')
RING = 6
class Conv:
    def __init__(self, k0): self.n = 0; self.slot = 0; self.k0 = k0
    def acc(self, gi, k): return vACC + 16 * gi + 4 * (k - self.k0)
    def ds(self, t): a(t); self.n += 1; return self.n
    def wait(self, seq): a(f's_waitcnt lgkmcnt({min(15, self.n - seq)})')
    def reads(self, it):
        B = it['B']; go = 64 * it['gi']; idx = it['idx']; kind = it['kind']
        if kind == 'F':
            r0, r1 = 2 * idx, min(2 * idx + 1, 16)
            return [f'ds_read_b128 {vr(B,4)}, v{vAF} offset:{r0*XROW+go}', f'ds_read_b128 {vr(B+4,4)}, v{vAF} offset:{r1*XROW+go}']
        if kind == 'E':
            return [f'ds_read_b128 {vr(B,4)}, v{vAE} offset:{2*idx*XROW+go}', f'ds_read_b128 {vr(B+4,4)}, v{vAE} offset:{(2*idx+4)*XROW+go}']
        return [f'ds_read_b128 {vr(B,4)}, v{vAE} offset:{12*XROW+go}', f'ds_read_b128 {vr(B+4,4)}, v{vAE16} offset:{16*XROW+go}']
    def cvt(self, lst):
        for gi, k in lst:
            A = self.acc(gi, k)
            a(f'v_cvt_pk_bf16_f32 v{A}, v{A}, v{A+1}\nv_cvt_pk_bf16_f32 v{A+1}, v{A+2}, v{A+3}')
    def write(self, lst):
        for gi, k in lst:
            A = self.acc(gi, k)
            if k == 6: setexec(0xffff, 0xffff)
            self.ds(f'ds_write_b64 v{vAO}, {vr(A,2)} offset:{(k-self.k0)*6144+64*gi}')
            if k == 6: a('s_mov_b64 exec, -1')
    def run(self, items, stop_at=None):
        D = RING - 1
        nxt = 0
        while nxt < len(items) and 'seq' in items[nxt]: nxt += 1
        def start(j):
            items[j]['B'] = vB + 8 * (self.slot % RING); self.slot += 1
            return self.reads(items[j])
        while nxt < min(D, len(items)):
            for t in start(nxt): items[nxt]['seq'] = self.ds(t)
            nxt += 1
        end = len(items) if stop_at is None else stop_at
        for i in range(end):
            it = items[i]
            self.wait(it['seq'])
            pend = start(nxt) if nxt < len(items) else []
            A = vAFR + 20 * it['gi']
            had = bool(pend)
            for k in it['outs']:
                fr = (it['idx'] - k) if it['kind'] == 'F' else 3 + (k - it['idx'])
                a(f'v_smfmac_f32_16x16x64_bf16 {vr(self.acc(it["gi"], k),4)}, {vr(A+4*fr,4)}, {vr(it["B"],8)}, v{vIDX}')
                if pend: items[nxt]['seq'] = self.ds(pend.pop(0))
            for t in pend: items[nxt]['seq'] = self.ds(t)
            if had: nxt += 1
            if it.get('pub'):
                self.cvt(it['pub'])
                if not it.get('nowrite'): self.write(it['pub'])
            if it.get('post'): it['post']()
        return items[end:]
def stage(frags): return [dict(gi=gi, kind=k, idx=i, outs=list(o)) for gi in range(3) for (k, i, o) in frags]
def add_pub(items, base, nfr, pairs, nowrite=False):
    for gi in range(3):
        j = min(base + nfr * (gi + 1), len(items) - 1)
        items[j].setdefault('pub', []).extend((gi, k) for k in pairs)
        items[j]['nowrite'] = nowrite

def late_setup():
    mksrd(sOUT, 14, XBYTES)
    if opt('safe'): a('s_mov_b32 s98, 200000')
    a(f'''
    s_mov_b32 s{sCA}, {fbits(ga):#x}
    s_mov_b32 s{sCA+1}, {fbits(ga):#x}
    s_mov_b32 s{sCC}, {fbits(gc):#x}
    s_mov_b32 s{sCC+1}, {fbits(gc):#x}
    s_add_u32 s{sT0}, s{sWI}, s{sY0}
    s_mul_i32 s{sT0}, s{sT0}, 224
    s_add_u32 s{sT0}, s{sT0}, s{sX0}
    s_mul_i32 s{sO0}, s{sT0}, 192
    ''')
    if STAMP:
        a(f's_mov_b32 s{sWS+2}, {256 if opt("dbg") else 0x10000000}\ns_mov_b32 s{sWS+3}, 0x00020000')
        for i in (7,): a(f's_mov_b32 s{sST+2*i}, 0')
    for j in range(3):
        a(f'''
        v_add_u32 v{T[0]}, {64*j}, v{vLN}
        v_mul_u32_u24 v{T[2]}, 171, v{T[0]}
        v_bfe_u32 v{T[2]}, v{T[2]}, 12, 2
        v_xor_b32 v{T[0]}, v{T[0]}, v{T[2]}
        v_lshl_add_u32 v{vSR[j]}, v{T[0]}, 4, s{sIMG}
        ''')

def conv_setup1():
    a(f'''
; table read: source lane r=(l>>2)&3, chalf=(l>>1)&1, s=l&1, qa=l>>4; tbl=r&1; valid iff (r>>1)==chalf
v_and_b32 v{T[0]}, 3, v{vLN}
v_mul_u32_u24 v{vIDX}, 0x5555, v{T[0]}
s_lshl_b32 s{sT2}, s{sWI}, 4
s_add_u32 s{sT2}, s{sT2}, {TB}
v_bfe_u32 v{T[1]}, v{vLN}, 1, 1
v_lshl_add_u32 v{T[4]}, v{T[1]}, 3, s{sT2}
v_and_b32 v{T[0]}, 1, v{vLN}
v_lshrrev_b32 v{T[1]}, 5, v{vLN}
v_mul_u32_u24 v{vTE}, {TP}, v{T[1]}
v_sub_u32 v{T[1]}, v{T[1]}, v{T[0]}
v_bfe_u32 v{T[2]}, v{vLN}, 2, 1
v_mul_u32_u24 v{T[2]}, 7, v{T[2]}
v_sub_u32 v{T[1]}, v{T[1]}, v{T[2]}
v_add_u32 v{T[1]}, 8, v{T[1]}
v_mul_u32_u24 v{T[1]}, {TP}, v{T[1]}
v_bfe_u32 v{T[2]}, v{vLN}, 4, 1
v_mul_u32_u24 v{T[2]}, 192, v{T[2]}
v_add3_u32 v{T[3]}, v{T[1]}, v{T[2]}, v{T[4]}
v_lshrrev_b32 v{T[1]}, 4, v{vLN}
v_lshlrev_b32 v{T[2]}, 1, v{T[1]}
v_sub_u32 v{T[2]}, v{T[2]}, v{T[0]}
v_add_u32 v{T[2]}, 6, v{T[2]}
v_mul_u32_u24 v{T[2]}, {TP}, v{T[2]}
v_add_u32 v{vTF0}, s{sT2}, v{vTE}
v_add_u32 v{vTF1}, {TP}, v{vTF0}
v_mov_b32 v{vTE}, s{sT2}
s_mov_b32 exec_lo, 0xcc33cc33
s_mov_b32 exec_hi, 0xcc33cc33
v_mov_b32 v{vTF0}, v{T[3]}
v_add_u32 v{vTF1}, 384, v{T[3]}
s_mov_b32 exec_lo, 0x0c030c03
s_mov_b32 exec_hi, 0x0c030c03
v_add_u32 v{T[2]}, 768, v{T[2]}
v_add_u32 v{vTE}, v{T[2]}, v{T[4]}
s_mov_b64 exec, -1
v_and_b32 v{T[0]}, 15, v{vLN}
v_bfe_u32 v{T[2]}, v{vLN}, 4, 1
v_lshrrev_b32 v{T[3]}, 5, v{vLN}
v_lshl_add_u32 v{T[2]}, v{T[2]}, 1, v{T[3]}
v_add_u32 v{T[2]}, v{T[0]}, v{T[2]}
v_bfe_u32 v{T[3]}, v{T[2]}, 2, 2
v_xor_b32 v{T[3]}, s{sWI}, v{T[3]}
v_mul_u32_u24 v{T[2]}, 192, v{T[2]}
v_lshl_add_u32 v{vAF}, v{T[3]}, 4, v{T[2]}
v_add_u32 v{vAF}, {XB}, v{vAF}
''')
def conv_setup2(em=None):
    for i in range(24): a(f'v_mov_b64 {vr(vACC+2*i,2)}, 0')
    a(f'''
v_and_b32 v{T[0]}, 3, v{vLN}
v_lshlrev_b32 v{vFA}, 2, v{T[0]}
v_add_u32 v{vFA}, {FL}, v{vFA}
s_lshl_b32 s{sT0}, s{sWV}, 2
s_add_u32 s{sT0}, s{sT0}, {FL}
v_mov_b32 v{vFW}, s{sT0}
v_mov_b32 v{vFP}, 0
ds_write_b32 v{vFW}, v{vFP}
v_and_b32 v{T[0]}, 15, v{vLN}
v_lshrrev_b32 v{T[1]}, 4, v{vLN}
v_add_u32 v{T[2]}, 4, v{T[0]}
v_bfe_u32 v{T[3]}, v{T[2]}, 2, 2
v_xor_b32 v{T[3]}, s{sWI}, v{T[3]}
v_mul_u32_u24 v{T[2]}, 192, v{T[2]}
v_lshl_add_u32 v{vAE}, v{T[3]}, 4, v{T[2]}
v_add_u32 v{vAE16}, {XB}, v{vAE}
v_mul_u32_u24 v{T[2]}, {XROW}, v{T[1]}
v_add_u32 v{vAE}, v{vAE16}, v{T[2]}
v_bfe_u32 v{T[3]}, v{T[0]}, 2, 2
v_xor_b32 v{T[4]}, s{sWI}, v{T[3]}
v_mul_u32_u24 v{T[2]}, 192, v{T[0]}
v_lshl_add_u32 v{T[2]}, v{T[4]}, 4, v{T[2]}
v_bfe_u32 v{T[1]}, v{vLN}, 4, 1
v_mul_u32_u24 v{T[1]}, 3072, v{T[1]}
v_lshrrev_b32 v{T[3]}, 5, v{vLN}
v_bfe_u32 v{T[4]}, v{vLN}, 1, 1
v_xor_b32 v{T[3]}, v{T[3]}, v{T[4]}
v_lshl_add_u32 v{T[1]}, v{T[3]}, 3, v{T[1]}
v_add3_u32 v{vAO}, v{T[2]}, v{T[1]}, s{sOB}
''')

def dma_setup():
    mksrd(sW1, 10, 73728); mksrd(sW2, 12, 73728)
    a(f'''
    v_lshrrev_b32 v{T[0]}, 3, v{vLN}
    v_mul_u32_u24 v{T[0]}, 768, v{T[0]}
    v_bfe_u32 v{T[1]}, v{vLN}, 4, 1
    v_lshlrev_b32 v{T[1]}, 2, v{T[1]}
    v_and_b32 v{T[2]}, 7, v{vLN}
    v_xor_b32 v{T[1]}, v{T[1]}, v{T[2]}
    v_lshl_add_u32 v{T[0]}, v{T[1]}, 4, v{T[0]}
    s_and_b32 s{sT1}, s{sWI}, 1
    s_lshl_b32 s{sT0}, s{sT1}, 5
    v_xor_b32 v{vDW1[0]}, s{sT0}, v{T[0]}
    v_xor_b32 v{vDW1[1]}, 32, v{vDW1[0]}
    v_mov_b32 v{vDW2[0]}, v{vL16}
    v_mov_b32 v{vDW2[1]}, v{vL16}
    v_mov_b32 v{vDW2[2]}, v{vL16}
    s_mov_b32 exec_lo, 0xffff0000
    v_xor_b32 v{vDW2[2]}, 32, v{vL16}
    s_mov_b32 exec_lo, 0
    s_mov_b32 exec_hi, 0xffff0000
    v_xor_b32 v{vDW2[0]}, 32, v{vL16}
    s_mov_b32 exec_lo, -1
    s_mov_b32 exec_hi, 0
    v_xor_b32 v{vDW2[1]}, 32, v{vL16}
    s_mov_b64 exec, -1
    s_mul_i32 s{sWA}, s{sWI}, {3*6144}
    s_mul_i32 s{sWBm}, s{sWI}, 3072
    ''')

TM = opt('touch', '12o')
TOUCH = chr(10).join(t for k, t in (('l', 's_load_dword s76, s[6:7], 0'), ('x', f's_load_dword s77, s[4:5], s{sT0}'), ('1', 's_load_dword s78, s[10:11], 0'),
        ('2', 's_load_dword s79, s[12:13], 0'), ('o', f's_load_dword s80, s[14:15], s{sT0}')) if k in TM)
isF = 's_cmp_lt_u32' if FOLD else 's_cmp_ge_u32'
a(f'''
s_load_dwordx4 s[4:7], s[0:1], 0
s_load_dwordx4 s[8:11], s[0:1], 16
s_load_dwordx4 s[12:15], s[0:1], 32
s_getpc_b64 s[100:101]
L_pc:
''')
if STAMP: a(f's_load_dwordx2 s[{sWS}:{sWS+1}], s[0:1], {48 if opt("dbg") else 56}')
stamp(0)
if opt('jitter'): a('s_memtime s[86:87]\ns_waitcnt lgkmcnt(0)\nv_readfirstlane_b32 s87, v0\ns_nop 4\ns_mul_i32 s87, s87, 7919\ns_xor_b32 s86, s86, s87')
if opt('hold') or opt('amp'): a('s_memrealtime s[94:95]\ns_mov_b32 s88, 0')
a(f'''
s_cmp_ge_u32 s2, 256
s_cbranch_scc1 L_end
v_lshrrev_b32 v{T[0]}, 6, v0
v_and_b32 v{vLN}, 63, v0
''')
PFM = opt('pf', 'h')
if PFM == 'first':
    a(f'''
    s_bfe_u32 s{sT3}, s2, 0x20003
    s_mul_i32 s{sT3}, s{sT3}, {80*128}
    v_mul_u32_u24 v{T[1]}, 10, v{T[0]}
    v_add_u32 v{T[1]}, v{T[1]}, v{vLN}
    v_lshl_add_u32 v{T[1]}, v{T[1]}, 7, s{sT3}
    v_min_u32 v{T[1]}, L_end-L_pc, v{T[1]}
    s_mov_b64 exec, 0x3ff
    global_load_dword v{vPF}, v{T[1]}, s[100:101]
    s_mov_b64 exec, -1
    ''')
a(f'''
s_lshr_b32 s{sT1}, s2, 3
v_readfirstlane_b32 s{sWV}, v{T[0]}
s_and_b32 s{sT2}, s2, 1
s_add_u32 s{sT2}, s{sT2}, s{sT1}
s_cmp_ge_u32 s{sT2}, 32
s_cbranch_scc1 L_end
s_and_b32 s{sT0}, s2, 3
v_mul_u32_u24 v{T[0]}, 43, v{vLN}
s_mul_i32 s{sT0}, s{sT0}, 63
s_add_u32 s{sT0}, s{sT0}, 1
v_lshrrev_b32 v{T[0]}, 9, v{T[0]}
s_lshr_b32 s{sT0}, s{sT0}, 1
s_add_u32 s{sT0}, s{sT0}, s{sT1}
v_mul_u32_u24 v{T[1]}, 12, v{T[0]}
s_mul_i32 s{sT1}, s{sT0}, 9363
s_lshr_b32 s{sT1}, s{sT1}, 16
v_sub_u32 v{T[1]}, v{vLN}, v{T[1]}
s_mul_i32 s{sT2}, s{sT1}, 7
s_sub_u32 s{sT0}, s{sT0}, s{sT2}
s_bfe_u32 s{sT2}, s2, 0x10002
s_mul_i32 s{sT2}, s{sT2}, 7
s_add_u32 s{sT0}, s{sT0}, s{sT2}
s_lshl_b32 s{sX0}, s{sT0}, 4
s_mul_i32 s{sY0}, s{sT1}, {112*7282}
s_add_u32 s{sH13}, s{sY0}, {112*7282}
s_lshr_b32 s{sY0}, s{sY0}, 16
s_lshr_b32 s{sH13}, s{sH13}, 16
s_sub_u32 s{sH13}, s{sH13}, s{sY0}
s_and_b32 s{sWI}, s{sWV}, 3
''')
if PFM == 'h':
    a(f'''
    s_cmp_eq_u32 s{sH13}, 13
    s_cbranch_scc1 L_nopf
    s_bfe_u32 s{sT3}, s2, 0x20003
    s_lshl_b32 s{sT3}, s{sT3}, 3
    s_add_u32 s{sT3}, s{sT3}, s{sWV}
    s_mul_i32 s{sT3}, s{sT3}, {10*128}
    v_lshl_add_u32 v{T[2]}, v{vLN}, 7, s{sT3}
    v_min_u32 v{T[2]}, L_end-L_pc, v{T[2]}
    s_mov_b64 exec, 0x3ff
    global_load_dword v{vPF}, v{T[2]}, s[100:101]
    s_mov_b64 exec, -1
    L_nopf:
    ''')
a(f'''
v_mov_b32 v{T[4]}, {MARK}
v_lshlrev_b32 v{vL16}, 4, v{vLN}
s_mul_i32 s{sT1}, s{sWI}, 5
v_add_u32 v{T[0]}, s{sT1}, v{T[0]}
v_bfe_u32 v{T[2]}, v{T[0]}, 2, 2
v_xor_b32 v{T[1]}, v{T[1]}, v{T[2]}
s_sub_u32 s{sT1}, s{sX0}, 2
v_add_u32 v{T[0]}, s{sT1}, v{T[0]}
v_mul_u32_u24 v{T[2]}, 192, v{T[0]}
v_cmp_gt_u32 vcc, 224, v{T[0]}
v_lshl_add_u32 v{T[2]}, v{T[1]}, 4, v{T[2]}
s_mul_i32 s{sXM}, s{sWI}, 960
s_mov_b32 s99, 43008
v_cndmask_b32 v{vXO}, v{T[4]}, v{T[2]}, vcc
s_sub_u32 s{sT1}, s{sY0}, 2
s_mul_i32 s{sT1}, s{sT1}, s99
v_add_u32 v{vXO}, s{sT1}, v{vXO}
s_mov_b32 s{sX+2}, {XBYTES}
s_mov_b32 s{sX+3}, 0x00020000
{isF} s{sWV}, 4
s_cbranch_scc1 L_F0
; tables: A = 5x5 row i ; B = 3x3 row i (i<3, lanes 12..47) or 5x5 row 4 (i==3)
s_mov_b32 s{sDS+2}, 4800
s_mov_b32 s{sDS+3}, 0x00020000
s_mov_b32 s{sDL+3}, 0x00020000
s_mul_i32 s{sT3}, s{sWI}, {TP}
s_mul_i32 s{sT2}, s{sWI}, 576
s_sub_u32 s{sT2}, s{sT2}, 192
s_add_u32 s{sT1}, s{sT3}, {TB + 2*TP}
s_cmp_eq_u32 s{sWI}, 3
s_cselect_b32 s{sDL+2}, s{sDS+2}, 1728
s_cselect_b32 s{sT2}, 3840, s{sT2}
s_cselect_b32 s{sT1}, {TB + 12*TP}, s{sT1}
s_cselect_b32 exec_lo, -1, 0xfffff000
s_cselect_b32 exec_hi, -1, 0xffff
v_add_u32 v{T[4]}, s{sT2}, v{vL16}
s_mov_b32 exec_lo, -1
s_mov_b32 exec_hi, 0x0fffffff
s_add_u32 m0, s{sT3}, {TB + 8*TP}
s_cmp_eq_u32 s{sWI}, 3
s_waitcnt lgkmcnt(0)
{ap('Lk')}
s_mov_b64 s[{sDS}:{sDS+1}], s[8:9]
s_cselect_b64 s[{sDL}:{sDL+1}], s[8:9], s[6:7]
buffer_load_dwordx4 v{vL16}, {srd(sDS)}, s{sXM} offen lds
s_mov_b32 m0, s{sT1}
s_mov_b64 s[{sX}:{sX+1}], s[4:5]
buffer_load_dwordx4 v{T[4]}, {srd(sDL)}, 0 offen lds
s_add_u32 m0, s{sXM}, {XB}
s_movk_i32 s{sXM}, {XROW}
''')
xl = [0]
def xrows(n):
    for _ in range(n):
        t = xl[0]; xl[0] += 1
        if t:
            a(f's_add_u32 m0, m0, s{sXM}')
            a(f'v_add_u32 v{vXO}, s99, v{vXO}')
        a(f'buffer_load_dwordx4 v{vXO}, {srd(sX)}, 0 offen{XPOL} lds')
NX0 = int(opt('nx0', 8))
if opt('amp') == 'x1':
    xrows(1); a('s_waitcnt vmcnt(0)'); a(ap('x1')); xrows(NX0 - 1)
else:
    xrows(NX0)
for k_ in (4, 8, 12, 17):
    if opt('amp') == f'x{k_}': a(f's_waitcnt vmcnt({NX0 - k_})'); a(ap(f'x{k_}'))
a(ap('Li'))
stamp(1)
a(f'''
s_branch L_L
L_F0:
; ---- F: conv weight tables, rows w and w+4 of both
s_setprio {opt("fprio", 2)}
s_mul_i32 s{sIMG}, s{sWI}, 6144
s_mov_b32 s{sOB}, {OUTF}
s_mul_i32 s{sT0}, s{sY0}, 43008
s_cmp_lg_u32 s{sWI}, 0
s_cbranch_scc1 L_nozero
v_add_u32 v{T[0]}, {TB}, v{vL16}
v_mov_b64 v[0:1], 0
v_mov_b64 v[2:3], 0
''')
for off in (0, 2*TP - 1024, 5*TP, 5*TP + 1024, 8*TP - 1024, 13*TP, 13*TP + 1024, 16*TP - 1024):
    a(f'ds_write_b128 v{T[0]}, v[0:3] offset:{off}')
a(f'''
L_nozero:
s_waitcnt lgkmcnt(0)
{TOUCH}
''')
WPF = opt('wpf', '0') == '1'
if PFM in ('f', 'g'):
    if PFM == 'g': a(f's_cmp_eq_u32 s{sH13}, 13\ns_cselect_b32 s97, 1, 0xfffff')
    a(f'''
    s_bfe_u32 s{sT3}, s2, 0x20003
    s_lshl_b32 s{sT3}, s{sT3}, 2
    s_add_u32 s{sT3}, s{sT3}, s{sWI}
    s_mul_i32 s{sT3}, s{sT3}, {20*128}
    v_lshl_add_u32 v{T[1]}, v{vLN}, 7, s{sT3}
    v_min_u32 v{T[1]}, L_end-L_pc, v{T[1]}
    {'s_mov_b64 exec, 0xfffff' if PFM == 'f' else f's_cmp_eq_u32 s{sH13}, 13'+chr(10)+f's_cselect_b32 s{sT3}, 0, -1'+chr(10)+f'v_and_b32 v{T[1]}, s{sT3}, v{T[1]}'+chr(10)+'s_mov_b32 exec_lo, s97'+chr(10)+'s_mov_b32 exec_hi, 0'}
    global_load_dword v{vPF}, v{T[1]}, s[100:101]
    s_mov_b64 exec, -1
    ''')
if WPF:
    a(f'''
    s_and_b32 s{sT0}, s{sWI}, 1
    s_cselect_b64 s[{sT1}:{sT2}], s[12:13], s[10:11]
    s_lshr_b32 s{sT0}, s2, 3
    s_lshl_b32 s{sT0}, s{sT0}, 1
    s_lshr_b32 s{sT3}, s{sWI}, 1
    s_add_u32 s{sT0}, s{sT0}, s{sT3}
    s_mul_i32 s{sT0}, s{sT0}, {10*128}
    v_lshl_add_u32 v{T[0]}, v{vLN}, 7, s{sT0}
    v_min_u32 v{T[0]}, {73728-128}, v{T[0]}
    s_mov_b64 exec, 0x3ff
    global_load_dword v{vPF-1}, v{T[0]}, s[{sT1}:{sT2}]
    s_mov_b64 exec, -1
    ''')
a(ap('Ft'))
if opt('amp') == 'tab': a('s_waitcnt vmcnt(0)'); a(ap('tab'))
conv_setup1()
a(ap('Fc'))
OPF = opt('opf', '0') == '1'
if OPF:
    a(f'''
    s_mov_b64 exec, 1
    buffer_load_dword v{vPF-2}, v{vL16}, {srd(sOUT)}, s{sO0} offen
    s_mov_b64 exec, -1
    ''')
vFR = [48, 49, 50, 51]
vDW1[:] = [56, 57]; vDW2[:] = [58, 59, 60]
def f_setup1():
    a(f'''
    s_add_u32 s{sO1}, s{sO0}, {4*43008}
    v_lshrrev_b32 v{T[4]}, 5, v{vLN}
    v_bfe_u32 v{T[0]}, v{vLN}, 2, 2
    v_bfe_u32 v{T[1]}, v{vLN}, 4, 1
    v_and_b32 v{T[2]}, 3, v{vLN}
    v_lshl_add_u32 v{T[3]}, v{T[4]}, 4, v{T[0]}
    v_lshlrev_b32 v{T[3]}, 7, v{T[3]}
    v_lshl_add_u32 v{T[3]}, v{T[1]}, 5, v{T[3]}
    v_lshl_add_u32 v{T[3]}, v{T[2]}, 3, v{T[3]}
    v_bfe_u32 v{T[2]}, v{vLN}, 3, 1
    v_lshl_add_u32 v{vAW1[0]}, v{T[2]}, 6, v{T[3]}
    v_xor_b32 v{vAW1[1]}, 64, v{vAW1[0]}
    v_xor_b32 v{vAW1[2]}, 32, v{vAW1[0]}
    v_xor_b32 v{vAW1[3]}, 0x60, v{vAW1[0]}
    v_lshl_add_u32 v{T[3]}, v{T[4]}, 2, v{T[0]}
    v_mul_u32_u24 v{T[3]}, 192, v{T[3]}
    v_lshl_add_u32 v{T[3]}, v{T[1]}, 4, v{T[3]}
    v_and_b32 v{T[2]}, 1, v{vLN}
    v_xor_b32 v{T[2]}, v{T[2]}, v{T[4]}
    v_lshl_add_u32 v{T[3]}, v{T[2]}, 5, v{T[3]}
    v_bfe_u32 v{T[2]}, v{vLN}, 1, 1
    v_lshl_add_u32 v{T[3]}, v{T[2]}, 3, v{T[3]}
    v_add_u32 v{vAW2}, 12288, v{T[3]}
    s_mul_i32 s{sT2}, s{sWI}, 3072
    s_add_u32 s{sT2}, s{sT2}, {OUTF}
    s_mul_i32 s{sT1}, s{sWI}, {XROW}
    s_add_u32 s{sT1}, s{sT1}, {XB + 2*XROW + 384}
    v_lshlrev_b32 v{T[4]}, 1, v{T[4]}
    v_xor_b32 v{T[0]}, v{T[4]}, v{T[0]}
    v_and_b32 v{T[3]}, 15, v{vLN}
    v_mul_u32_u24 v{T[3]}, 192, v{T[3]}
    v_lshl_add_u32 v{T[0]}, v{T[0]}, 4, v{T[3]}
    v_lshl_add_u32 v{T[0]}, v{T[2]}, 3, v{T[0]}
    v_mul_u32_u24 v{T[2]}, {4*3072}, v{T[1]}
    v_add3_u32 v{vFR[0]}, v{T[0]}, v{T[2]}, s{sT2}
    v_xor_b32 v{vFR[1]}, 8, v{vFR[0]}
    v_xor_b32 v{vFR[2]}, 16, v{vFR[0]}
    v_xor_b32 v{vFR[3]}, 24, v{vFR[0]}
    v_add_u32 v{T[0]}, 2, v{vLN}
    v_bfe_u32 v{T[0]}, v{T[0]}, 2, 2
    v_xor_b32 v{T[0]}, v{T[4]}, v{T[0]}
    v_lshl_add_u32 v{T[0]}, v{T[0]}, 4, v{T[3]}
    v_mul_u32_u24 v{T[2]}, {4*XROW}, v{T[1]}
    v_add3_u32 v{vAR[0]}, v{T[0]}, v{T[2]}, s{sT1}
    v_xor_b32 v{vAR[1]}, 16, v{vAR[0]}
    v_bfe_u32 v{T[0]}, v{vLN}, 1, 2
    v_xor_b32 v{T[0]}, v{T[4]}, v{T[0]}
    v_lshl_add_u32 v{T[0]}, v{T[0]}, 4, v{T[3]}
    v_mul_u32_u24 v{T[2]}, 3072, v{T[1]}
    v_add3_u32 v{vSW[0]}, v{T[0]}, v{T[2]}, s{sIMG}
    v_xor_b32 v{vSW[1]}, 16, v{vSW[0]}
    ''')
def f_setup2():
    a(f'''
    v_and_b32 v{T[1]}, 1, v{vLN}
    v_lshlrev_b32 v{T[1]}, 4, v{T[1]}
    v_mov_b32 v{T[2]}, 0x3f80
    v_lshlrev_b32 v{T[1]}, v{T[1]}, v{T[2]}
    ''')
    for i in range(4): a(f'v_mov_b64 {vr(vID+2*i,2)}, 0')
    for i in range(8):
        pos = 16 * (i >> 2) + 8 * ((i >> 1) & 1) + 2 * (i & 1)
        setexec(3 << pos, 3 << (pos + 4))
        a(f'v_mov_b32 v{vID+i}, v{T[1]}')
    a('s_mov_b64 exec, -1')
FS = opt('fs', '00000')
fsl = [conv_setup2, late_setup, f_setup2, f_setup1, dma_setup]
def fsetup(k):
    for f, c in zip(fsl, FS):
        if int(c) == k: f()
FXP = int(opt('fxp', 5))
def f_rows():
    a(f'''
    s_add_u32 m0, s{sXM}, {XB + (NX0-1)*XROW}
    s_movk_i32 s{sXM}, {XROW}
    v_add_u32 v{vXO}, {(NX0-1)*43008}, v{vXO}
    s_mov_b64 s[{sX}:{sX+1}], s[4:5]
    s_mov_b32 exec_hi, 0x0fffffff
    ''')
    xrows(17 - NX0)
    a('s_mov_b32 exec_hi, -1')
FRP = opt('frp', 'a')
if FRP == 'b':
    fsl.insert(FXP, f_rows); FS = FS[:FXP] + '0' + FS[FXP:]
fsetup(0)
a(ap('Fs'))
stamp(1)
a('s_waitcnt lgkmcnt(0)')
a(ap('Fl'))
pstamp(9)
bar()
a(ap('Bt'))
cv = Conv(0)
for gi in range(3): tab_reads(gi, cv.ds)
if FRP == 'a': f_rows()
fsetup(3)
bar(2)
S0 = stage([('F',0,[0]), ('F',1,[0,1])])
cv.run(S0, 0)
def res_half(s):
    m = 0xffff0000 if s else 0xffff
    setexec(m, m)
    for ks in range(6):
        cv.ds(f'ds_read_b128 {vr(vRES+4*ks,4)}, v{vAR[ks&1]} offset:{64*(ks>>1)}')
    a('s_mov_b64 exec, -1')
def run_stage(left, frags, pairs, keep=0, mid=None):
    its = left + stage(frags)
    if pairs: add_pub(its, len(left), len(frags), pairs)
    if mid: its[mid[0]]['post'] = mid[1]
    return cv.run(its, len(its) - keep)
left = cv.run(S0, len(S0) - int(opt('keep0', 0)))
fsetup(1)
pstamp(10)
bar(3)
left = run_stage(left, [('F',2,[0,1,2]), ('F',3,[1,2,3]), ('E',0,[0,1])], [0, 1])
fsetup(2)
SPLIT = opt('split', '0') == '1'
a(f's_waitcnt vmcnt({5 if SPLIT else 0})')
pstamp(11)
bar(4)
a(f's_setprio {opt("fprio2", 3)}')
left = run_stage(left, [('F',4,[2,3]), ('F',5,[3]), ('E',2,[2,3])], [2, 3])
a(ap('Fa'))
a('s_waitcnt vmcnt(0)')
signal(1)
a(ap('F1'))
wdma(0, [0, 1, 2])
stamp(5)
poll(GF, 1)
RA = 168
for ks in range(6):
    a(f'ds_read_b64 {vr(RA+4*ks,2)}, v{vFR[2*(ks&1)]} offset:{64*(ks>>1)}')
    a(f'ds_read_b64 {vr(RA+4*ks+2,2)}, v{vFR[2*(ks&1)+1]} offset:{64*(ks>>1)}')
a(f's_setprio {opt("fprio3", 1)}')
wdma(1, [0, 1, 2])
a('s_waitcnt lgkmcnt(0)')
stamp(6)
def f_mid():
    for ks in range(6):
        a(f'ds_read_b128 {vr(vRES+4*ks,4)}, v{vAR[ks&1]} offset:{64*(ks>>1)}')
    landed(0, 2)
    wdma(0, [3, 4, 5]); wdma(1, [3, 4, 5])
    peek(GF)
def f_mid2():
    a('s_waitcnt lgkmcnt(0)')
    check(GF, 2)
    f_w1reads0()
ln(RA, 72, [vL + i for i in range(24)], False, f_mid, f_mid2)
a(ap('Fm'))
stamp(8)
XH = {
  'start3': [lambda: landed(0, 3)],
  ('T1', 0): [lambda: peek(GF)],
  ('preT2', 0): [lambda: check(GF, 3)],
  ('T1', 1): [lambda: stamp(9)],
  ('T2', 1): [lambda: peek(GL)],
  ('preT1', 2): [lambda: check(GL, 6)],
  ('preT1', 4): [lambda: signal(4)],
  ('T1', 4): [lambda: peek(GL)],
  ('preT2', 4): [lambda: check(GL, 7)],
  ('T2', 5): [lambda: peek(GL)],
  ('preT1', 6): [lambda: check(GL, 8), lambda: stamp(10)],
  ('preT1', 8): [lambda: stamp(11)],
  ('T2', 8): [lambda: peek(GF)],
  ('preT1', 9): [lambda: check(GF, 4)],
  ('preT1', 10): [lambda: stamp(12)],
}
FP = opt('fp', 'n')
def fprio(c):
    if FP == 'n': return (0, 0) if c == 0 else None
    if FP == 's': return (1, 1) if c == 0 else None
    return (0, int(FP))
mlp32(XH, fprio)
stamp(13)
P = vY[0]; Q = vK[0]
for mt in range(3):
    for i in range(8):
        a(f'v_cvt_pk_bf16_f32 v{P+8*mt+i}, v{vO+16*mt+2*i}, v{vO+16*mt+2*i+1}')
    a(f'ds_write_b128 v{vSW[0]}, {vr(P+8*mt,4)} offset:{64*mt}')
    a(f'ds_write_b128 v{vSW[1]}, {vr(P+8*mt+4,4)} offset:{64*mt}')
for s in range(2):
    for j in range(3):
        a(f'ds_read_b128 {vr(Q+4*(3*s+j),4)}, v{vSR[j]} offset:{3072*s}')
for s in range(2):
    for j in range(3):
        a(f's_waitcnt lgkmcnt({5-(3*s+j)})')
        a(f'buffer_store_dwordx4 {vr(Q+4*(3*s+j),4)}, v{vL16}, {srd(sOUT)}, s{sO1 if s else sO0} offen offset:{1024*j}{STPOL}')
finish()
emit_slow()

a.label('L_L')
cv = Conv(4)
vDW1[:] = [220, 221]; vDW2[:] = [222, 223, 224]
vA0, vA2 = 48, 50
RR = 60
def l_setup():
    a(f'''
    s_add_u32 s{sO0}, s{sO0}, {8*43008}
    s_and_b32 s{sT1}, s{sWI}, 1
    v_lshrrev_b32 v{T[4]}, 4, v{vLN}
    v_bfe_u32 v{T[0]}, v{vLN}, 2, 2
    v_and_b32 v{T[2]}, 3, v{vLN}
    v_bfe_u32 v{T[1]}, v{vLN}, 4, 1
    v_lshlrev_b32 v{T[2]}, 3, v{T[2]}
    v_lshl_add_u32 v{T[2]}, v{T[1]}, 5, v{T[2]}
    v_lshl_add_u32 v{T[3]}, v{T[4]}, 3, v{T[0]}
    v_lshl_add_u32 v{T[3]}, v{T[3]}, 7, v{T[2]}
    v_bfe_u32 v{T[1]}, v{vLN}, 3, 1
    v_xor_b32 v{T[1]}, s{sT1}, v{T[1]}
    v_lshl_add_u32 v{T[3]}, v{T[1]}, 6, v{T[3]}
    s_lshr_b32 s{sT2}, s{sWI}, 1
    s_mul_i32 s{sT2}, s{sT2}, {PS}
    s_sub_u32 s{sT3}, {PS}, s{sT2}
    v_add_u32 v{vLW1}, s{sT2}, v{T[3]}
    v_add_u32 v{vLW1+4}, s{sT3}, v{T[3]}
    v_xor_b32 v{vLW1+1}, 32, v{vLW1}
    v_xor_b32 v{vLW1+2}, 64, v{vLW1}
    v_xor_b32 v{vLW1+3}, 0x60, v{vLW1}
    v_xor_b32 v{vLW1+5}, 32, v{vLW1+4}
    v_xor_b32 v{vLW1+6}, 64, v{vLW1+4}
    v_xor_b32 v{vLW1+7}, 0x60, v{vLW1+4}
    v_lshl_add_u32 v{T[3]}, v{T[4]}, 2, v{T[0]}
    v_mul_u32_u24 v{T[3]}, 192, v{T[3]}
    v_add_u32 v{T[3]}, v{T[3]}, v{T[2]}
    s_mul_i32 s{sT1}, s{sT1}, 6144
    s_add_u32 s{sT2}, s{sT2}, 12288
    s_add_u32 s{sT3}, s{sT3}, 12288
    s_add_u32 s{sT0}, s{sT2}, s{sT1}
    v_add_u32 v{vLW2}, s{sT0}, v{T[3]}
    s_add_u32 s{sT0}, s{sT3}, s{sT1}
    v_add_u32 v{vLW2+4}, s{sT0}, v{T[3]}
    s_sub_u32 s{sT1}, 6144, s{sT1}
    s_add_u32 s{sT0}, s{sT2}, s{sT1}
    v_add_u32 v{vLW2+2}, s{sT0}, v{T[3]}
    s_add_u32 s{sT0}, s{sT3}, s{sT1}
    v_add_u32 v{vLW2+6}, s{sT0}, v{T[3]}
    v_xor_b32 v{vLW2+1}, 32, v{vLW2}
    v_xor_b32 v{vLW2+3}, 32, v{vLW2+2}
    v_xor_b32 v{vLW2+5}, 32, v{vLW2+4}
    v_xor_b32 v{vLW2+7}, 32, v{vLW2+6}
    v_xor_b32 v{T[0]}, v{T[4]}, v{T[0]}
    v_and_b32 v{T[3]}, 15, v{vLN}
    v_mul_u32_u24 v{T[3]}, 192, v{T[3]}
    v_lshl_add_u32 v{T[0]}, v{T[0]}, 4, v{T[3]}
    v_add_u32 v{vARL}, {L12}, v{T[0]}
    v_bfe_u32 v{T[1]}, v{vLN}, 1, 1
    v_lshl_add_u32 v{T[0]}, v{T[1]}, 3, v{T[0]}
    v_add_u32 v{vA2}, {L12}, v{T[0]}
    v_xor_b32 v{vA2+1}, 8, v{vA2}
    v_add_u32 v{vA0}, s{sIMG}, v{T[0]}
    v_xor_b32 v{vA0+1}, 8, v{vA0}
    s_mul_i32 s{sT0}, s{sWI}, {XROW}
    v_bfe_u32 v{T[1]}, v{vLN}, 4, 1
    v_lshl_add_u32 v{T[3]}, v{T[1]}, 3, v{T[3]}
    v_lshrrev_b32 v{T[4]}, 5, v{vLN}
    v_bfe_u32 v{T[0]}, v{vLN}, 1, 2
    v_xor_b32 v{T[0]}, v{T[4]}, v{T[0]}
    v_lshl_add_u32 v{T[0]}, v{T[0]}, 4, v{T[3]}
    v_add_u32 v{vSW[0]}, s{sIMG}, v{T[0]}
    v_xor_b32 v{vSW[1]}, 32, v{vSW[0]}
    v_add_u32 v{T[0]}, 2, v{vLN}
    v_bfe_u32 v{T[0]}, v{T[0]}, 2, 2
    v_xor_b32 v{T[0]}, v{T[4]}, v{T[0]}
    v_lshl_add_u32 v{T[0]}, v{T[0]}, 4, v{T[3]}
    s_add_u32 s{sT0}, s{sT0}, {XB + 384}
    v_add_u32 v{vAR[0]}, s{sT0}, v{T[0]}
    v_xor_b32 v{vAR[1]}, 32, v{vAR[0]}
    ''')

a(f'''
s_mov_b32 exec_hi, -1
s_mul_i32 s{sIMG}, s{sWI}, 3072
s_add_u32 s{sIMG}, s{sIMG}, {S_IL}
s_mov_b32 s{sOB}, {OUTL}
''')
LS = opt('ls', '01002')
lsl = [conv_setup1, dma_setup, conv_setup2, late_setup, l_setup]
def lsetup(k):
    for f, c in zip(lsl, LS):
        if int(c) == k: f()
lsetup(0)
a(ap('Ls'))
pstamp(14)
a(f's_waitcnt vmcnt({NX0})')
bar()
for gi in range(3): tab_reads(gi, cv.ds)
lsetup(4)
a(f's_waitcnt vmcnt({NX0 - 4})')
a(ap('Ll'))
pstamp(9)
bar(2)
lsetup(1)
pstamp(10)
a(f's_waitcnt vmcnt({NX0 - 8})')
pstamp(11)
bar(3)
WP2 = opt('wp2', '2')
def wpf():
    a(f'''
    s_and_b32 s{sT0}, s{sWI}, 1
    s_cselect_b64 s[{sT1}:{sT2}], s[12:13], s[10:11]
    s_lshr_b32 s{sT0}, s2, 3
    s_lshl_b32 s{sT0}, s{sT0}, 1
    s_lshr_b32 s{sT3}, s{sWI}, 1
    s_add_u32 s{sT0}, s{sT0}, s{sT3}
    s_mul_i32 s{sT0}, s{sT0}, {10*128}
    v_lshl_add_u32 v{T[0]}, v{vLN}, 7, s{sT0}
    v_min_u32 v{T[0]}, {73728-128}, v{T[0]}
    s_mov_b64 exec, 0x3ff
    global_load_dword v226, v{T[0]}, s[{sT1}:{sT2}]
    s_mov_b64 exec, -1
    ''')
if WP2 == '1': wpf()
lsetup(2)
if WP2 == '2': wpf()
pstamp(12)
assert NX0 == 8
a('s_waitcnt lgkmcnt(0)')
pstamp(13)
bar(4)
a(f's_setprio {opt("lprio", 2)}')
RED, LNW = 1, 3
def raw_reads(R, ad, off=0):
    for ks in range(3):
        a(f'ds_read_b64 {vr(R+4*ks,2)}, v{ad} offset:{off+64*ks}')
        a(f'ds_read_b64 {vr(R+4*ks+2,2)}, v{ad+1} offset:{off+64*ks}')
def row_store(O, soff, P=vY[0], Q=vK[0]):
    for i in range(12):
        a(f'v_cvt_pk_bf16_f32 v{P+i}, v{O+2*i}, v{O+2*i+1}')
    for i in range(6):
        a(f'ds_write_b64 v{vSW[i&1]}, {vr(P+2*i,2)} offset:{64*(i>>1)}')
    for j in range(3):
        a(f'ds_read_b128 {vr(Q+4*j,4)}, v{vSR[j]}')
    for j in range(3):
        a(f's_waitcnt lgkmcnt({2-j})')
        a(f'buffer_store_dwordx4 {vr(Q+4*j,4)}, v{vL16}, {srd(sOUT)}, s{soff} offen offset:{1024*j}{STPOL}')
LP = opt('lp', 'k')
def lprio(c):
    if LP == 'n': return (0, 0) if c == 0 else None
    if LP == 's': return (1, 1) if c == 0 else None
    if LP == 'k':
        lo, hi = [int(x) for x in opt('lk', '0,7').split(',')]
        if lo <= c < hi: return (0, 1)
        return (0, 0) if c in (0, hi) else None
    return (0, int(LP))
def l_body(h13):
    global cv
    keep = cv
    cv = copy.copy(keep)
    sfx = 'a' if h13 else 'b'
    if h13:
        frags = [('F',4,[4]), ('F',5,[4,5]), ('F',6,[4,5,6]), ('F',7,[5,6]), ('E',4,[4,5]), ('F',8,[6]), ('L',6,[6])]; pairs = [4, 5, 6]
    else:
        frags = [('F',4,[4]), ('F',5,[4,5]), ('F',6,[4,5]), ('F',7,[5]), ('E',4,[4,5])]; pairs = [4, 5]
    if SPLIT:
        pre = stage(frags[:2])
        pre = cv.run(pre, len(pre) - int(opt('keepl', 2)))
        poll(GF, 1)
        frags = frags[2:]
    else:
        pre = []
    its = pre + stage(frags)
    add_pub(its, len(pre), len(frags), pairs)
    def resr():
        for i in range(6):
            cv.ds(f'ds_read_b64 {vr(RR+2*i,2)}, v{vAR[i&1]} offset:{10*XROW+64*(i>>1)}')
        if h13:
            for i in range(6):
                cv.ds(f'ds_read_b64 {vr(RR+12+2*i,2)}, v{vAR[i&1]} offset:{(14-RED)*XROW+64*(i>>1)}')
    if opt('lc'):
        nf = len(frags)
        for j, idx in ((9, 0), (10, nf - 1), (11, nf), (12, 2 * nf - 1), (13, 2 * nf)):
            its[idx]['post'] = lambda j=j: _st(j)
    if '3' in LS:
        cv.run(its, 0)
        lsetup(3)
    cv.run(its)
    stamp(6)
    signal(2)
    resr()
    stamp(5)
    poll(GL, 2)
    stamp(7)
    RAW = 168
    raw_reads(RAW, vA0)
    for i in range(12):
        a(f'v_lshlrev_b32 v{vO+2*i}, 16, v{RR+i}\nv_and_b32 v{vO+2*i+1}, 0xffff0000, v{RR+i}')
    if h13:
        a(f's_cmp_eq_u32 s{sWI}, {RED}\ns_cbranch_scc1 L_ri{sfx}')
        for i in range(12): a(f'v_mov_b64 {vr(vO+24+2*i,2)}, 0')
        a(f's_branch L_rj{sfx}')
        a.label(f'L_ri{sfx}')
        for i in range(12):
            a(f'v_lshlrev_b32 v{vO+24+2*i}, 16, v{RR+12+i}\nv_and_b32 v{vO+24+2*i+1}, 0xffff0000, v{RR+12+i}')
        a.label(f'L_rj{sfx}')
    signal(3)
    if h13: raw_reads(RAW + 12, vA2)
    a(f's_waitcnt lgkmcnt({7 if h13 else 1})')
    def l_mid2():
        a('s_waitcnt lgkmcnt(0)')
        check(GF, 2)
        l_w1reads(0)
    ln(RAW, 72, [vL + i for i in range(12)], True, lambda: peek(GF), l_mid2)
    if h13:
        a(f's_cmp_lg_u32 s{sWI}, {LNW}\ns_cbranch_scc1 L_nl12')
        ln(RAW + 12, 72, [RAW + 12 + i for i in range(12)], True)
        for ks in range(3):
            a(f'ds_write_b128 v{vARL}, {vr(RAW+12+4*ks,4)} offset:{64*ks}')
        a.label('L_nl12')
        signal(5)
    stamp(8)
    def l12r():
        for ks in range(3):
            a(f'ds_read_b128 {vr(vL+12+4*ks,4)}, v{vARL} offset:{64*ks}')
    def pub_rem():
        a(f's_cmp_eq_u32 s{sWI}, {RED}\ns_cbranch_scc1 L_np\ns_mul_i32 s{sT0}, s{sWI}, 6144\nv_add_u32 v{T[0]}, s{sT0}, v{vL16}')
        for i in range(6):
            a(f'ds_write_b128 v{T[0]}, {vr(vO+24+4*i,4)} offset:{S_R + 1024*i}')
        a.label('L_np')
        signal(9)
    H = {
      'start3': [lambda: peek(GL)],
      ('preT1', 0): [lambda: check(GL, 3)],
      ('T1', 0): [lambda: wdma(2, [0, 1, 2]), lambda: wdma(3, [0, 1, 2]), lambda: peek(GF)],
      ('preT2', 0): [lambda: check(GF, 3)],
      ('T2', 0): [lambda: wdma(2, [3, 4, 5])] + ([lambda: peek(GL)] if h13 else []),
      ('preT1', 1): [lambda: check(GL, 5)] if h13 else [],
      ('T1', 1): [lambda: wdma(3, [3, 4, 5]), lambda: stamp(9)] + ([l12r] if h13 else []),
      ('preT2', 1): [lambda: landed(6, 6)],
      ('T2', 1): [lambda: wdma(4, [0, 1, 2]), lambda: peek(GL)],
      ('preT1', 2): [lambda: check(GL, 6)],
      ('T1', 2): [lambda: wdma(4, [3, 4, 5])],
      ('T2', 2): [lambda: wdma(5, [0, 1, 2])],
      ('preT1', 3): [lambda: landed(9, 7)],
      ('T1', 3): [lambda: wdma(5, [3, 4, 5])],
      ('T1', 4): [lambda: peek(GL)],
      ('preT2', 4): [lambda: check(GL, 7), lambda: landed(0, 8)],
      ('T2', 5): [lambda: peek(GL)],
      ('preT1', 6): [lambda: check(GL, 8), lambda: stamp(10)],
      ('preT1', 8): [lambda: stamp(11)],
      ('preT1', 10): [lambda: stamp(12)],
    }
    if h13:
        H[('T2', 9)] = [lambda: peek(GF)]
        H[('preT1', 10)] = H[('preT1', 10)] + [lambda: check(GF, 4), pub_rem]
        def reduce12():
            a(f's_cmp_lg_u32 s{sWI}, {RED}\ns_cbranch_scc1 L_nored')
            poll(GL, 9)
            others = [w for w in range(4) if w != RED]
            R = [144, 48, 144]
            def rd(n):
                for i in range(6):
                    a(f'ds_read_b128 {vr(R[n]+4*i,4)}, v{vL16} offset:{S_R + 6144*others[n] + 1024*i}')
            def ad(n):
                if opt('redpk'):
                    for i in range(12):
                        a(f'v_pk_add_f32 {vr(vO+24+2*i,2)}, {vr(vO+24+2*i,2)}, {vr(R[n]+2*i,2)}')
                    return
                for i in range(24):
                    a(f'v_add_f32 v{vO+24+i}, v{vO+24+i}, v{R[n]+i}')
            rd(0); rd(1)
            a('s_waitcnt lgkmcnt(6)'); ad(0); rd(2)
            a('s_waitcnt lgkmcnt(6)'); ad(1)
            a('s_waitcnt lgkmcnt(0)'); ad(2)
            a(f's_add_u32 s{sO1}, s{sO0}, {(4-RED)*43008}')
            row_store(vO + 24, sO1, 48, 144)
            a.label('L_nored')
        H[('T1', 11)] = [reduce12]
        OB = opt('oddb', '8,12')
        if OB != 'n':
            o0, o1 = [int(x) for x in OB.split(',')]
            def boost():
                a(f's_cmp_lg_u32 s{sWI}, {RED}\ns_cbranch_scc1 L_nb\ns_setprio 1')
                a.label('L_nb')
            H.setdefault(('T2', o0), []).append(boost)
            if o1 < 12: H.setdefault(('T2', o1), []).append(lambda: a('s_setprio 0'))
    mlp16([3, 5, 8] if h13 else [], H, lprio)
    stamp(13)
    row_store(vO, sO0)
    finish()
    emit_slow()
    cv = keep
a(f's_cmp_lg_u32 s{sH13}, 13\ns_cbranch_scc1 L_L12')
l_body(True)
a.label('L_L12')
l_body(False)
a.label('L_end')
a('s_endpgm')

body = a.finalize()
hdr = open('cdna_kernels/' + NAME + '.s.ref').read().split('\n')
out = []
for l in hdr:
    if l.startswith('; @launch'):
        out.append('; @launch grid=(256,1,1) block=(512,1,1) lds=163840')
    elif l.startswith(';'):
        out.append(l)
    else:
        break
out.append('.amdgcn_target "amdgcn-amd-amdhsa--gfx950"')
out.append('.text')
out.append(f'.globl {NAME}_kernel')
out.append('.p2align 8')
out.append(f'.type {NAME}_kernel,@function')
out.append(f'{NAME}_kernel:')
for l in body:
    out.append(l if l.endswith(':') else '    ' + l)
out.append(f'''.section .rodata,"a"
.p2align 6
.amdhsa_kernel {NAME}_kernel
  .amdhsa_next_free_vgpr 256
  .amdhsa_next_free_sgpr 102
  .amdhsa_accum_offset 256
  .amdhsa_group_segment_fixed_size 0
  .amdhsa_kernarg_size 64
  .amdhsa_user_sgpr_count 2
  .amdhsa_user_sgpr_kernarg_segment_ptr 1
  .amdhsa_system_sgpr_workgroup_id_x 1
.end_amdhsa_kernel''')
print('\n'.join(out))
```

```python
import sys, struct, math, copy
from asmlib import Asm

NAME = "standalone__modern_conv_block_replknet__vision"
def fbits(x): return struct.unpack('<I', struct.pack('<f', x))[0]
def opt(name, default=None):
    for x in sys.argv:
        if x == '--' + name: return True
        if x.startswith('--' + name + '='): return x.split('=', 1)[1]
    return default
STAMP = opt('stamp'); CYC = opt('cyc'); PRO = opt('pro')
STPOL = ' ' + opt('stpol', 'sc1').replace('_', ' ') if opt('stpol', 'sc1') != 'none' else ''
FOLD = opt('fold', '1') == '1'
GL, GF = (1, 0) if FOLD else (0, 1)

XPOL = ' ' + opt('xpol').replace('_', ' ') if opt('xpol') else ''
XROW = 3840
XB = 73728
PS = 24576
TB, TP = 139264, 976
OUTF, OUTL = 49152, 147456
L12 = OUTL + 4*3072
FL = 163584
S_IF, S_R, S_IL = 0, 24576, OUTL
MARK = 0x40000000
XBYTES = 224 * 224 * 192

k0 = math.sqrt(2.0 / math.pi); k1 = 0.044715
c0 = 2 * k0 / math.log(2.0); c1 = c0 * k1
ga = c1 ** (1.0 / 3.0)
gc = -c0 / ga

sX, sDL, sDS, sW1, sW2, sOUT = 16, 20, 24, 28, 32, 36
sWV, sY0, sX0, sT0, sT1, sT2, sT3 = 40, 41, 42, 43, 44, 45, 46
sH13, sWI = 47, 3
sCA, sCC = 48, 50
sWS = 52
sXM, sIMG, sOB = 56, 57, 62
sWA, sWBm = 58, 59
sO0, sO1 = 60, 61
sST = 64
NST = 16
def srd(b): return f's[{b}:{b+3}]'
vO, vL, vY, vK, vG, vF1, vF2 = 0, 48, [72, 88], [104, 120], 136, 144, 168
vRES, vID = 204, 228
vAW1 = [236, 237, 245, 249]; vAW2 = 238
vLW1 = 204; vLW2 = 212
vDW1 = [220, 221]; vDW2 = [222, 223, 224]
vARL = 225
vSW = [239, 240]; vSR = [241, 242, 243]
vL16 = 244
vFA, vFW, vFP = 246, 247, 248
T = [250, 251, 252, 253, 254]
vLN = 255
vXO = 203; vPF = 54
vAF, vAE, vAO, vIDX, vTF0, vTF1, vTE, vAR, vAE16, vAO1 = 192, 193, 194, 195, 196, 197, 198, [199, 200], 201, 202
vACC, vAFR, vB = 0, 84, 144
def vr(b, n): return f'v[{b}:{b+n-1}]'

a = Asm()
def _st(i): a(f'{"s_memtime" if CYC else "s_memrealtime"} s[{sST+2*i}:{sST+2*i+1}]')
def pstamp(i):
    if STAMP and PRO and not opt('lc'): _st(i)
def ap(n):
    return 's_memrealtime s[88:89]' if opt('amp') == n else ''
def stamp(i):
    a(ap(str(i)))
    if i in (8, 13): hold(i)
    if STAMP and not (PRO and 9 <= i <= 14): _st(i)
def mksrd(b, lo, n):
    a(f's_mov_b64 s[{b}:{b+1}], s[{lo}:{lo+1}]\ns_mov_b32 s{b+2}, {n}\ns_mov_b32 s{b+3}, 0x00020000')
def hold(tag):
    h = opt('hold')
    if h and h.split(':')[0] == str(tag):
        n = nlab[0]; nlab[0] += 1
        a(f's_waitcnt lgkmcnt(0)\ns_add_u32 s92, s94, {h.split(":")[1]}')
        a.label(f'L_hold{n}')
        a(f's_memrealtime s[90:91]\ns_waitcnt lgkmcnt(0)\ns_sub_u32 s93, s92, s90\ns_cmp_gt_i32 s93, 0\ns_cbranch_scc1 L_hold{n}')
def bar(i=None):
    jitter()
    a('s_barrier')
    jitter()
    hold(i)
    if i is not None: stamp(i)
def setexec(lo, hi):
    a(f's_mov_b32 exec_lo, {lo:#x}\ns_mov_b32 exec_hi, {hi:#x}')

nlab = [0]; slow = []
def guard():
    if opt('safe'): a('s_sub_u32 s98, s98, 1\ns_cbranch_scc1 L_end')
def jitter():
    if opt('jitter'):
        n = nlab[0]; nlab[0] += 1
        a(f's_mul_i32 s86, s86, 1103515245\ns_add_u32 s86, s86, 12345\ns_lshr_b32 s87, s86, {opt("jitter")}')
        a.label(f'L_jit{n}')
        a(f's_sleep 2\ns_sub_u32 s87, s87, 1\ns_cbranch_scc0 L_jit{n}')
def signal(v, emit=None):
    jitter()
    a(f'v_mov_b32 v{T[4]}, {v}')
    (emit or a)(f'ds_write_b32 v{vFW}, v{T[4]}')
def poll(grp, v):
    lab = f'L_poll{nlab[0]}'; nlab[0] += 1
    a.label(lab)
    guard()
    a(f'ds_read_b32 v{vFP}, v{vFA} offset:{16*grp}\ns_waitcnt lgkmcnt(0)\nv_cmp_gt_u32 vcc, {v}, v{vFP}\ns_cbranch_vccnz {lab}')
def peek(grp): a(f'ds_read_b32 v{vFP}, v{vFA} offset:{16*grp}')
def check(grp, v):
    jitter()
    n = nlab[0]; nlab[0] += 1
    a(f'v_cmp_gt_u32 vcc, {v}, v{vFP}\ns_cbranch_vccnz L_slow{n}')
    a.label(f'L_back{n}')
    slow.append((n, grp, v))
def emit_slow():
    for n, grp, v in slow:
        a.label(f'L_slow{n}')
        guard()
        a(f'ds_read_b32 v{vFP}, v{vFA} offset:{16*grp}\ns_waitcnt lgkmcnt(0)\nv_cmp_gt_u32 vcc, {v}, v{vFP}\ns_cbranch_vccnz L_slow{n}\ns_branch L_back{n}')
    slow.clear()
def landed(n, v):
    a(f's_waitcnt vmcnt({n})'); signal(v)

def wdma(p, parts=range(6)):
    jitter()
    for i in parts:
        if i < 3:
            a(f'''
            s_add_u32 m0, s{sWBm}, {PS*p + 1024*i}
            s_add_u32 s{sT0}, s{sWA}, {6144*i + 128*p}
            buffer_load_dwordx4 v{vDW1[i & 1]}, {srd(sW1)}, s{sT0} offen lds
            ''')
        else:
            if i == 3 or i - 1 not in parts:
                a(f's_add_u32 m0, s{sWBm}, {PS*p + 12288}\ns_add_u32 s{sT0}, s{sWBm}, {12288*p}')
            a(f'buffer_load_dwordx4 v{vDW2[i-3]}, {srd(sW2)}, s{sT0} offen offset:{1024*(i-3)} lds')

def ln(raw, U, dst, rows16, mid=None, mid2=None):
    n = len(dst)
    S, Q, ONE = T[1], T[3], T[4]
    sc, bi = T[0], T[2]
    a(f'v_mov_b32 v{ONE}, 0x3f803f80')
    un = []
    for i in range(n):
        un.append(f'v_lshlrev_b32 v{U+2*i}, 16, v{raw+i}')
        un.append(f'v_and_b32 v{U+2*i+1}, 0xffff0000, v{raw+i}')
    while len(un) > 8: a(un.pop(0))
    for i in range(n):
        a(f'v_dot2_f32_bf16 v{S}, v{raw+i}, v{ONE}, {"0" if i == 0 else f"v{S}"}')
        a(f'v_dot2_f32_bf16 v{Q}, v{raw+i}, v{raw+i}, {"0" if i == 0 else f"v{Q}"}')
    def fill(k):
        for _ in range(k):
            if un: a(un.pop(0))
    fill(3)
    a(f'v_permlane32_swap_b32 v{S}, v{Q}')
    a(f'v_add_f32 v{S}, v{S}, v{Q}')
    if rows16:
        a(f'v_mov_b32 v{Q}, v{S}')
        fill(2)
        a(f'v_permlane16_swap_b32 v{S}, v{Q}')
        a(f'v_add_f32 v{S}, v{S}, v{Q}')
    a(f'v_mul_f32 v{S}, {fbits(1.0/96):#x}, v{S}')
    a(f'v_mov_b32 v{Q}, v{S}')
    fill(2)
    a(f'v_permlane32_swap_b32 v{S}, v{Q}')
    a(f'''
    v_fma_f32 v{Q}, -v{S}, v{S}, v{Q}
    v_max_f32 v{Q}, 0, v{Q}
    v_add_f32 v{Q}, {fbits(1e-5):#x}, v{Q}
    v_rsq_f32 v{Q}, v{Q}
    ''')
    fill(1)
    a(f'v_mul_f32 v{sc}, {fbits(ga):#x}, v{Q}')
    a(f'v_mul_f32 v{bi}, -v{S}, v{sc}')
    fill(1000)
    if mid: mid()
    for i in range(n):
        if opt('lnplain'):
            a(f'v_fma_f32 v{U+2*i}, v{U+2*i}, v{sc}, v{bi}\nv_fma_f32 v{U+2*i+1}, v{U+2*i+1}, v{sc}, v{bi}')
        else:
            a(f'v_pk_fma_f32 {vr(U+2*i,2)}, {vr(U+2*i,2)}, {vr(sc,2)}, {vr(bi,2)} op_sel_hi:[1,0,0]')
    if mid2: mid2()
    for i in range(n):
        a(f'v_cvt_pk_bf16_f32 v{dst[i]}, v{U+2*i}, v{U+2*i+1}')

def pk_t(Y, K, n):
    return [f'v_pk_fma_f32 {vr(K+2*i,2)}, {vr(Y+2*i,2)}, {vr(Y+2*i,2)}, s[{sCC}:{sCC+1}] neg_lo:[1,0,0] neg_hi:[1,0,0]' for i in range(n//2)] + pk_m(Y, K, n)
def pk_m(Y, K, n): return [f'v_pk_mul_f32 {vr(K+2*i,2)}, {vr(Y+2*i,2)}, {vr(K+2*i,2)}' for i in range(n//2)]
def pk_d(K, n): return [f'v_pk_fma_f32 {vr(K+2*i,2)}, {vr(K+2*i,2)}, s[{sCA}:{sCA+1}], s[{sCA}:{sCA+1}]' for i in range(n//2)]
def emit(l):
    for t in l: a(t)

def mlp32(hooks, prio):
    N = 12
    moved = {'w1': False, 'w2': False}
    def move(kind, c):
        if c >= 6 and not moved[kind]:
            for r in (vAW1 if kind == 'w1' else [vAW2]): a(f'v_add_u32 v{r}, {3*PS}, v{r}')
            moved[kind] = True
    def w1reads(c):
        for ks in range(6):
            off = ((c >> 1) % 3) * PS + (ks >> 1) * 4096 + (ks & 1) * 1024
            r = vAW1[(c & 1) + 2 * (ks & 1)]
            a(f'ds_read_b64_tr_b16 {vr(vF1+4*ks,2)}, v{r} offset:{off}')
            a(f'ds_read_b64_tr_b16 {vr(vF1+4*ks+2,2)}, v{r} offset:{off+512}')
    def w2reads(c):
        for i in range(6):
            ks2, mt = i // 3, i % 3
            off = ((c >> 1) % 3) * PS + (c & 1) * 6144 + ks2 * 3072 + mt * 64
            a(f'ds_read_b64_tr_b16 {vr(vF2+4*i,2)}, v{vAW2} offset:{off}')
            a(f'ds_read_b64_tr_b16 {vr(vF2+4*i+2,2)}, v{vAW2} offset:{off+1536}')
    def g1(c, ks):
        Y = vY[c & 1]
        a(f'v_mfma_f32_32x32x16_bf16 {vr(Y,16)}, {vr(vF1+4*ks,4)}, {vr(vL+4*ks,4)}, {"0" if ks == 0 else vr(Y,16)}')
    def g2(i):
        ks2, mt = i // 3, i % 3
        a(f'v_mfma_f32_32x32x16_bf16 {vr(vO+16*mt,16)}, {vr(vF2+4*i,4)}, {vr(vG+4*ks2,4)}, {vr(vO+16*mt,16)}')
    def resm(ks):
        j, mt = ks // 3, ks % 3
        a(f'v_mfma_f32_32x32x16_bf16 {vr(vO+16*mt,16)}, {vr(vID+4*j,4)}, {vr(vRES+4*(2*mt+j),4)}, {"0" if j == 0 else vr(vO+16*mt,16)}')
    def hook(k):
        for f in hooks.get(k, []): f()
    def pr(c, v):
        if prio(c) is not None: a(f's_setprio {prio(c)[v]}')
    hook('pre')
    a('s_waitcnt lgkmcnt(0)')
    for ks in range(6): g1(0, ks)
    w1reads(1)
    hook('start3')
    for c in range(N + 1):
        Y, K = vY[c & 1], vK[c & 1]
        Yp, Kp = vY[(c - 1) & 1], vK[(c - 1) & 1]
        pr(c, 1)
        if c >= 1: emit(pk_m(Yp, Kp, 16))
        if c < N: emit(pk_t(Y, K, 16))
        cv = [f'v_cvt_pk_bf16_f32 v{vG+i}, v{Kp+2*i}, v{Kp+2*i+1}' for i in range(8)] if c >= 1 else []
        if c == N:
            emit(cv)
            a('s_waitcnt lgkmcnt(0)')
            for i in (0, 3, 1, 4, 2, 5): g2(i)
            break
        ex = [f'v_exp_f32 v{K+i}, v{K+i}' for i in range(16)]
        rc = [f'v_rcp_f32 v{K+i}, v{K+i}' for i in range(16)]
        last = c + 1 >= N
        if c + 2 < N: move('w1', c + 2)
        move('w2', c)
        if c == 0:
            gaps = [ex[0:3], ex[3:6], ex[6:9], ex[9:12], ex[12:15], ex[15:16]]
            a('s_waitcnt lgkmcnt(0)')
            for j in range(6):
                g1(1, j); emit(gaps[j])
        elif not last:
            gaps = [cv[0:4] + ex[0:1], cv[4:8] + ex[1:2], ex[2:5], ex[5:8], ex[8:11], ex[11:14], ex[14:16]]
            for j in range(7):
                if j < 6: g1(c + 1, j)
                else: g2(0)
                if j == 5: a('s_waitcnt lgkmcnt(0)')
                emit(gaps[j])
        else:
            emit(cv); emit(ex[0:4])
            a('s_waitcnt lgkmcnt(0)')
            gaps = [ex[4:8], ex[8:12], ex[12:16]]
            for j in range(3):
                g2(j); emit(gaps[j])
        hook(('preT1', c))
        pr(c, 0)
        if c + 2 < N: w1reads(c + 2)
        hook(('T1', c))
        pr(c, 1)
        emit(pk_d(K, 16))
        if c == 0:
            gp = [rc[0:3], rc[3:6], rc[6:9], rc[9:12], rc[12:14], rc[14:16]]
            for j in range(6):
                resm(j)
                if j == 5: a('s_waitcnt lgkmcnt(0)')
                emit(gp[j])
        elif not last:
            gp = [rc[0:3], rc[3:6], rc[6:9], rc[9:12], rc[12:16]]
            for j in range(5):
                g2(j + 1)
                if j == 4: a('s_waitcnt lgkmcnt(0)')
                emit(gp[j])
        else:
            gp = [rc[0:3], rc[3:6], rc[6:16]]
            for j in range(3):
                g2(j + 3)
                if j == 2: w2reads(c)
                emit(gp[j])
        hook(('preT2', c))
        pr(c, 0)
        if not last: w2reads(c)
        hook(('T2', c))
    return w1reads

def f_w1reads0():
    for ks in range(6):
        off = (ks >> 1) * 4096 + (ks & 1) * 1024
        r = vAW1[2 * (ks & 1)]
        a(f'ds_read_b64_tr_b16 {vr(vF1+4*ks,2)}, v{r} offset:{off}')
        a(f'ds_read_b64_tr_b16 {vr(vF1+4*ks+2,2)}, v{r} offset:{off+512}')

def l_w1reads(s):
    for i in range(6):
        mt2, ks3 = i // 3, i % 3
        off = ((s >> 2) & 1) * 2 * PS + ks3 * 4096
        r = vLW1 + mt2 + 2 * (s & 3)
        a(f'ds_read_b64_tr_b16 {vr(vF1+4*i,2)}, v{r} offset:{off}')
        a(f'ds_read_b64_tr_b16 {vr(vF1+4*i+2,2)}, v{r} offset:{off+512}')

def mlp16(doubles, hooks, prio):
    N = 12
    def wid(s): return 0 if (s < 0 or s >= N) else (2 if s in doubles else 1)
    def move(base):
        for r in range(8): a(f'v_add_u32 v{base+r}, {4*PS}, v{base+r}')
    def w2reads(s):
        for i in range(6):
            off = ((s >> 2) & 1) * 2 * PS + 64 * (i >> 1)
            r = vLW2 + (i & 1) + 2 * (s & 3)
            a(f'ds_read_b64_tr_b16 {vr(vF2+4*i,2)}, v{r} offset:{off}')
            a(f'ds_read_b64_tr_b16 {vr(vF2+4*i+2,2)}, v{r} offset:{off+3072}')
    def m1(s):
        l = []
        for t in range(wid(s)):
            for j in range(6):
                mt2, ks3 = j & 1, j >> 1
                D = vY[s & 1] + 8 * t + 4 * mt2
                l.append(f'v_mfma_f32_16x16x32_bf16 {vr(D,4)}, {vr(vF1+4*(mt2*3+ks3),4)}, {vr(vL+12*t+4*ks3,4)}, {"0" if ks3 == 0 else vr(D,4)}')
        return l
    def m2(s):
        return [f'v_mfma_f32_16x16x32_bf16 {vr(vO+24*t+4*i,4)}, {vr(vF2+4*i,4)}, {vr(vG+4*t,4)}, {vr(vO+24*t+4*i,4)}' for t in range(wid(s)) for i in range(6)]
    def weave(ms, fl):
        fl = list(fl)
        if not ms:
            emit(fl); a('s_waitcnt lgkmcnt(0)'); return
        for j, m in enumerate(ms):
            a(m)
            if j == len(ms) - 1: a('s_waitcnt lgkmcnt(0)')
            k = -(-len(fl) // (len(ms) - j))
            emit(fl[:k]); fl = fl[k:]
    def hook(k):
        for f in hooks.get(k, []): f()
    def pr(c, v):
        if prio(c) is not None: a(f's_setprio {prio(c)[v]}')
    hook('pre')
    a('s_waitcnt lgkmcnt(0)')
    emit(m1(0))
    l_w1reads(1)
    hook('start3')
    for s in range(N + 1):
        Y, K = vY[s & 1], vK[s & 1]
        Yp, Kp = vY[(s - 1) & 1], vK[(s - 1) & 1]
        n, np_ = 8 * wid(s), 8 * wid(s - 1)
        pr(s, 1)
        emit(pk_m(Yp, Kp, np_))
        emit(pk_t(Y, K, n))
        cv = [f'v_cvt_pk_bf16_f32 v{vG+i}, v{Kp+2*i}, v{Kp+2*i+1}' for i in range(np_ // 2)]
        if s == N:
            emit(cv)
            a('s_waitcnt lgkmcnt(0)')
            emit(m2(N - 1))
            break
        ex = [f'v_exp_f32 v{K+i}, v{K+i}' for i in range(n)]
        rc = [f'v_rcp_f32 v{K+i}, v{K+i}' for i in range(n)]
        if s + 2 == 8: move(vLW1)
        if s == 8: move(vLW2)
        if s == 0: a('s_waitcnt lgkmcnt(0)')
        weave(m1(s + 1), cv + ex)
        hook(('preT1', s))
        pr(s, 0)
        if s + 2 < N: l_w1reads(s + 2)
        hook(('T1', s))
        pr(s, 1)
        emit(pk_d(K, n))
        weave(m2(s - 1), rc)
        hook(('preT2', s))
        pr(s, 0)
        w2reads(s)
        hook(('T2', s))

def finish():
    if opt('amp'):
        n = nlab[0]; nlab[0] += 1
        if opt('amp') == 'end': a(f's_waitcnt vmcnt(0)\ns_memrealtime s[88:89]\ns_mov_b32 s{sH13}, 13')
        a(f's_waitcnt vmcnt(0) lgkmcnt(0)\ns_sub_u32 s92, s88, s94\ns_lshl_b32 s92, s92, 2\ns_cmp_eq_u32 s88, 0\ns_cselect_b32 s92, 0, s92')
        a(f's_cmp_eq_u32 s{sH13}, {opt("amprows", 13)}\ns_cselect_b32 s92, s92, 0\ns_add_u32 s92, s92, 1400\ns_add_u32 s92, s92, s94')
        a.label(f'L_amp{n}')
        a(f's_memrealtime s[90:91]\ns_waitcnt lgkmcnt(0)\ns_sub_u32 s93, s92, s90\ns_cmp_gt_i32 s93, 0\ns_cbranch_scc1 L_amp{n}')
    if STAMP:
        stamp(14)
        a('s_waitcnt vmcnt(0)')
        stamp(15)
        a('s_waitcnt lgkmcnt(0)')
        if opt('dbg'):
            n = nlab[0]; nlab[0] += 1
            a(f's_cmp_lg_u32 s2, {opt("dbg")}\ns_cbranch_scc1 L_nd{n}\ns_cmp_lg_u32 s{sWI}, 0\ns_cbranch_scc1 L_nd{n}')
            a(f's_lshl_b32 s{sT0}, s{sWV}, 3\nv_mov_b32 v{T[1]}, s{sT0}\ns_mov_b64 exec, 1')
            for k, i in enumerate((1, 2, 3, 4, 8, 10, 13, 15)):
                a(f's_sub_u32 s{sT0}, s{sST+2*i}, s{sST}\nv_mov_b32 v{T[0]}, s{sT0}')
                a(f'buffer_store_dword v{T[0]}, v{T[1]}, {srd(sWS)}, 0 offen offset:{4*k}')
            a.label(f'L_nd{n}')
            a('s_endpgm')
            return
        a(f'''
        s_lshl_b32 s{sT0}, s2, 3
        s_add_u32 s{sT0}, s{sT0}, s{sWV}
        s_lshl_b32 s{sT0}, s{sT0}, 6
        v_mov_b32 v{T[1]}, s{sT0}
        s_mov_b64 exec, 1
        ''')
        for i in range(NST):
            a(f'v_mov_b32 v{T[0]}, s{sST+2*i}')
            a(f'buffer_store_dword v{T[0]}, v{T[1]}, {srd(sWS)}, 0 offen offset:{4*i}')
    a('s_endpgm')

def tab_reads(gi, em):
    A = vAFR + 20 * gi; o = 64 * gi
    for d in range(3):
        em(f'ds_read_b64_tr_b16 {vr(A+4*d,2)}, v{vTF0} offset:{o + 2*d*TP}')
        em(f'ds_read_b64_tr_b16 {vr(A+4*d+2,2)}, v{vTF1} offset:{o + 2*d*TP}')
    for par in range(2):
        for pp in range(2):
            em(f'ds_read_b64_tr_b16 {vr(A+12+4*par+2*pp,2)}, v{vTE} offset:{o + (pp - 2*par + 2)*TP}')
RING = 6
class Conv:
    def __init__(self, k0): self.n = 0; self.slot = 0; self.k0 = k0
    def acc(self, gi, k): return vACC + 16 * gi + 4 * (k - self.k0)
    def ds(self, t): a(t); self.n += 1; return self.n
    def wait(self, seq): a(f's_waitcnt lgkmcnt({min(15, self.n - seq)})')
    def reads(self, it):
        B = it['B']; go = 64 * it['gi']; idx = it['idx']; kind = it['kind']
        if kind == 'F':
            r0, r1 = 2 * idx, min(2 * idx + 1, 16)
            return [f'ds_read_b128 {vr(B,4)}, v{vAF} offset:{r0*XROW+go}', f'ds_read_b128 {vr(B+4,4)}, v{vAF} offset:{r1*XROW+go}']
        if kind == 'E':
            return [f'ds_read_b128 {vr(B,4)}, v{vAE} offset:{2*idx*XROW+go}', f'ds_read_b128 {vr(B+4,4)}, v{vAE} offset:{(2*idx+4)*XROW+go}']
        return [f'ds_read_b128 {vr(B,4)}, v{vAE} offset:{12*XROW+go}', f'ds_read_b128 {vr(B+4,4)}, v{vAE16} offset:{16*XROW+go}']
    def cvt(self, lst):
        for gi, k in lst:
            A = self.acc(gi, k)
            a(f'v_cvt_pk_bf16_f32 v{A}, v{A}, v{A+1}\nv_cvt_pk_bf16_f32 v{A+1}, v{A+2}, v{A+3}')
    def write(self, lst):
        for gi, k in lst:
            A = self.acc(gi, k)
            if k == 6: setexec(0xffff, 0xffff)
            self.ds(f'ds_write_b64 v{vAO}, {vr(A,2)} offset:{(k-self.k0)*6144+64*gi}')
            if k == 6: a('s_mov_b64 exec, -1')
    def run(self, items, stop_at=None):
        D = RING - 1
        nxt = 0
        while nxt < len(items) and 'seq' in items[nxt]: nxt += 1
        def start(j):
            items[j]['B'] = vB + 8 * (self.slot % RING); self.slot += 1
            return self.reads(items[j])
        while nxt < min(D, len(items)):
            for t in start(nxt): items[nxt]['seq'] = self.ds(t)
            nxt += 1
        end = len(items) if stop_at is None else stop_at
        for i in range(end):
            it = items[i]
            self.wait(it['seq'])
            pend = start(nxt) if nxt < len(items) else []
            A = vAFR + 20 * it['gi']
            had = bool(pend)
            for k in it['outs']:
                fr = (it['idx'] - k) if it['kind'] == 'F' else 3 + (k - it['idx'])
                a(f'v_smfmac_f32_16x16x64_bf16 {vr(self.acc(it["gi"], k),4)}, {vr(A+4*fr,4)}, {vr(it["B"],8)}, v{vIDX}')
                if pend: items[nxt]['seq'] = self.ds(pend.pop(0))
            for t in pend: items[nxt]['seq'] = self.ds(t)
            if had: nxt += 1
            if it.get('pub'):
                self.cvt(it['pub'])
                if not it.get('nowrite'): self.write(it['pub'])
            if it.get('post'): it['post']()
        return items[end:]
def stage(frags): return [dict(gi=gi, kind=k, idx=i, outs=list(o)) for gi in range(3) for (k, i, o) in frags]
def add_pub(items, base, nfr, pairs, nowrite=False):
    for gi in range(3):
        j = min(base + nfr * (gi + 1), len(items) - 1)
        items[j].setdefault('pub', []).extend((gi, k) for k in pairs)
        items[j]['nowrite'] = nowrite

def late_setup():
    mksrd(sOUT, 14, XBYTES)
    if opt('safe'): a('s_mov_b32 s98, 200000')
    a(f'''
    s_mov_b32 s{sCA}, {fbits(ga):#x}
    s_mov_b32 s{sCA+1}, {fbits(ga):#x}
    s_mov_b32 s{sCC}, {fbits(gc):#x}
    s_mov_b32 s{sCC+1}, {fbits(gc):#x}
    s_add_u32 s{sT0}, s{sWI}, s{sY0}
    s_mul_i32 s{sT0}, s{sT0}, 224
    s_add_u32 s{sT0}, s{sT0}, s{sX0}
    s_mul_i32 s{sO0}, s{sT0}, 192
    ''')
    if STAMP:
        a(f's_mov_b32 s{sWS+2}, {256 if opt("dbg") else 0x10000000}\ns_mov_b32 s{sWS+3}, 0x00020000')
        for i in (7,): a(f's_mov_b32 s{sST+2*i}, 0')
    for j in range(3):
        a(f'''
        v_add_u32 v{T[0]}, {64*j}, v{vLN}
        v_mul_u32_u24 v{T[2]}, 171, v{T[0]}
        v_bfe_u32 v{T[2]}, v{T[2]}, 12, 2
        v_xor_b32 v{T[0]}, v{T[0]}, v{T[2]}
        v_lshl_add_u32 v{vSR[j]}, v{T[0]}, 4, s{sIMG}
        ''')

def conv_setup1():
    a(f'''
; table read: source lane r=(l>>2)&3, chalf=(l>>1)&1, s=l&1, qa=l>>4; tbl=r&1; valid iff (r>>1)==chalf
v_and_b32 v{T[0]}, 3, v{vLN}
v_mul_u32_u24 v{vIDX}, 0x5555, v{T[0]}
s_lshl_b32 s{sT2}, s{sWI}, 4
s_add_u32 s{sT2}, s{sT2}, {TB}
v_bfe_u32 v{T[1]}, v{vLN}, 1, 1
v_lshl_add_u32 v{T[4]}, v{T[1]}, 3, s{sT2}
v_and_b32 v{T[0]}, 1, v{vLN}
v_lshrrev_b32 v{T[1]}, 5, v{vLN}
v_mul_u32_u24 v{vTE}, {TP}, v{T[1]}
v_sub_u32 v{T[1]}, v{T[1]}, v{T[0]}
v_bfe_u32 v{T[2]}, v{vLN}, 2, 1
v_mul_u32_u24 v{T[2]}, 7, v{T[2]}
v_sub_u32 v{T[1]}, v{T[1]}, v{T[2]}
v_add_u32 v{T[1]}, 8, v{T[1]}
v_mul_u32_u24 v{T[1]}, {TP}, v{T[1]}
v_bfe_u32 v{T[2]}, v{vLN}, 4, 1
v_mul_u32_u24 v{T[2]}, 192, v{T[2]}
v_add3_u32 v{T[3]}, v{T[1]}, v{T[2]}, v{T[4]}
v_lshrrev_b32 v{T[1]}, 4, v{vLN}
v_lshlrev_b32 v{T[2]}, 1, v{T[1]}
v_sub_u32 v{T[2]}, v{T[2]}, v{T[0]}
v_add_u32 v{T[2]}, 6, v{T[2]}
v_mul_u32_u24 v{T[2]}, {TP}, v{T[2]}
v_add_u32 v{vTF0}, s{sT2}, v{vTE}
v_add_u32 v{vTF1}, {TP}, v{vTF0}
v_mov_b32 v{vTE}, s{sT2}
s_mov_b32 exec_lo, 0xcc33cc33
s_mov_b32 exec_hi, 0xcc33cc33
v_mov_b32 v{vTF0}, v{T[3]}
v_add_u32 v{vTF1}, 384, v{T[3]}
s_mov_b32 exec_lo, 0x0c030c03
s_mov_b32 exec_hi, 0x0c030c03
v_add_u32 v{T[2]}, 768, v{T[2]}
v_add_u32 v{vTE}, v{T[2]}, v{T[4]}
s_mov_b64 exec, -1
v_and_b32 v{T[0]}, 15, v{vLN}
v_bfe_u32 v{T[2]}, v{vLN}, 4, 1
v_lshrrev_b32 v{T[3]}, 5, v{vLN}
v_lshl_add_u32 v{T[2]}, v{T[2]}, 1, v{T[3]}
v_add_u32 v{T[2]}, v{T[0]}, v{T[2]}
v_bfe_u32 v{T[3]}, v{T[2]}, 2, 2
v_xor_b32 v{T[3]}, s{sWI}, v{T[3]}
v_mul_u32_u24 v{T[2]}, 192, v{T[2]}
v_lshl_add_u32 v{vAF}, v{T[3]}, 4, v{T[2]}
v_add_u32 v{vAF}, {XB}, v{vAF}
''')
def conv_setup2(em=None):
    for i in range(24): a(f'v_mov_b64 {vr(vACC+2*i,2)}, 0')
    a(f'''
v_and_b32 v{T[0]}, 3, v{vLN}
v_lshlrev_b32 v{vFA}, 2, v{T[0]}
v_add_u32 v{vFA}, {FL}, v{vFA}
s_lshl_b32 s{sT0}, s{sWV}, 2
s_add_u32 s{sT0}, s{sT0}, {FL}
v_mov_b32 v{vFW}, s{sT0}
v_mov_b32 v{vFP}, 0
ds_write_b32 v{vFW}, v{vFP}
v_and_b32 v{T[0]}, 15, v{vLN}
v_lshrrev_b32 v{T[1]}, 4, v{vLN}
v_add_u32 v{T[2]}, 4, v{T[0]}
v_bfe_u32 v{T[3]}, v{T[2]}, 2, 2
v_xor_b32 v{T[3]}, s{sWI}, v{T[3]}
v_mul_u32_u24 v{T[2]}, 192, v{T[2]}
v_lshl_add_u32 v{vAE}, v{T[3]}, 4, v{T[2]}
v_add_u32 v{vAE16}, {XB}, v{vAE}
v_mul_u32_u24 v{T[2]}, {XROW}, v{T[1]}
v_add_u32 v{vAE}, v{vAE16}, v{T[2]}
v_bfe_u32 v{T[3]}, v{T[0]}, 2, 2
v_xor_b32 v{T[4]}, s{sWI}, v{T[3]}
v_mul_u32_u24 v{T[2]}, 192, v{T[0]}
v_lshl_add_u32 v{T[2]}, v{T[4]}, 4, v{T[2]}
v_bfe_u32 v{T[1]}, v{vLN}, 4, 1
v_mul_u32_u24 v{T[1]}, 3072, v{T[1]}
v_lshrrev_b32 v{T[3]}, 5, v{vLN}
v_bfe_u32 v{T[4]}, v{vLN}, 1, 1
v_xor_b32 v{T[3]}, v{T[3]}, v{T[4]}
v_lshl_add_u32 v{T[1]}, v{T[3]}, 3, v{T[1]}
v_add3_u32 v{vAO}, v{T[2]}, v{T[1]}, s{sOB}
''')

def dma_setup():
    mksrd(sW1, 10, 73728); mksrd(sW2, 12, 73728)
    a(f'''
    v_lshrrev_b32 v{T[0]}, 3, v{vLN}
    v_mul_u32_u24 v{T[0]}, 768, v{T[0]}
    v_bfe_u32 v{T[1]}, v{vLN}, 4, 1
    v_lshlrev_b32 v{T[1]}, 2, v{T[1]}
    v_and_b32 v{T[2]}, 7, v{vLN}
    v_xor_b32 v{T[1]}, v{T[1]}, v{T[2]}
    v_lshl_add_u32 v{T[0]}, v{T[1]}, 4, v{T[0]}
    s_and_b32 s{sT1}, s{sWI}, 1
    s_lshl_b32 s{sT0}, s{sT1}, 5
    v_xor_b32 v{vDW1[0]}, s{sT0}, v{T[0]}
    v_xor_b32 v{vDW1[1]}, 32, v{vDW1[0]}
    v_mov_b32 v{vDW2[0]}, v{vL16}
    v_mov_b32 v{vDW2[1]}, v{vL16}
    v_mov_b32 v{vDW2[2]}, v{vL16}
    s_mov_b32 exec_lo, 0xffff0000
    v_xor_b32 v{vDW2[2]}, 32, v{vL16}
    s_mov_b32 exec_lo, 0
    s_mov_b32 exec_hi, 0xffff0000
    v_xor_b32 v{vDW2[0]}, 32, v{vL16}
    s_mov_b32 exec_lo, -1
    s_mov_b32 exec_hi, 0
    v_xor_b32 v{vDW2[1]}, 32, v{vL16}
    s_mov_b64 exec, -1
    s_mul_i32 s{sWA}, s{sWI}, {3*6144}
    s_mul_i32 s{sWBm}, s{sWI}, 3072
    ''')

TM = opt('touch', '12o')
TOUCH = chr(10).join(t for k, t in (('l', 's_load_dword s76, s[6:7], 0'), ('x', f's_load_dword s77, s[4:5], s{sT0}'), ('1', 's_load_dword s78, s[10:11], 0'),
        ('2', 's_load_dword s79, s[12:13], 0'), ('o', f's_load_dword s80, s[14:15], s{sT0}')) if k in TM)
isF = 's_cmp_lt_u32' if FOLD else 's_cmp_ge_u32'
a(f'''
s_load_dwordx4 s[4:7], s[0:1], 0
s_load_dwordx4 s[8:11], s[0:1], 16
s_load_dwordx4 s[12:15], s[0:1], 32
s_getpc_b64 s[100:101]
L_pc:
''')
if STAMP: a(f's_load_dwordx2 s[{sWS}:{sWS+1}], s[0:1], {48 if opt("dbg") else 56}')
stamp(0)
if opt('jitter'): a('s_memtime s[86:87]\ns_waitcnt lgkmcnt(0)\nv_readfirstlane_b32 s87, v0\ns_nop 4\ns_mul_i32 s87, s87, 7919\ns_xor_b32 s86, s86, s87')
if opt('hold') or opt('amp'): a('s_memrealtime s[94:95]\ns_mov_b32 s88, 0')
a(f'''
s_cmp_ge_u32 s2, 256
s_cbranch_scc1 L_end
v_lshrrev_b32 v{T[0]}, 6, v0
v_and_b32 v{vLN}, 63, v0
''')
PFM = opt('pf', 'h')
if PFM == 'first':
    a(f'''
    s_bfe_u32 s{sT3}, s2, 0x20003
    s_mul_i32 s{sT3}, s{sT3}, {80*128}
    v_mul_u32_u24 v{T[1]}, 10, v{T[0]}
    v_add_u32 v{T[1]}, v{T[1]}, v{vLN}
    v_lshl_add_u32 v{T[1]}, v{T[1]}, 7, s{sT3}
    v_min_u32 v{T[1]}, L_end-L_pc, v{T[1]}
    s_mov_b64 exec, 0x3ff
    global_load_dword v{vPF}, v{T[1]}, s[100:101]
    s_mov_b64 exec, -1
    ''')
a(f'''
s_lshr_b32 s{sT1}, s2, 3
v_readfirstlane_b32 s{sWV}, v{T[0]}
s_and_b32 s{sT2}, s2, 1
s_add_u32 s{sT2}, s{sT2}, s{sT1}
s_cmp_ge_u32 s{sT2}, 32
s_cbranch_scc1 L_end
s_and_b32 s{sT0}, s2, 3
v_mul_u32_u24 v{T[0]}, 43, v{vLN}
s_mul_i32 s{sT0}, s{sT0}, 63
s_add_u32 s{sT0}, s{sT0}, 1
v_lshrrev_b32 v{T[0]}, 9, v{T[0]}
s_lshr_b32 s{sT0}, s{sT0}, 1
s_add_u32 s{sT0}, s{sT0}, s{sT1}
v_mul_u32_u24 v{T[1]}, 12, v{T[0]}
s_mul_i32 s{sT1}, s{sT0}, 9363
s_lshr_b32 s{sT1}, s{sT1}, 16
v_sub_u32 v{T[1]}, v{vLN}, v{T[1]}
s_mul_i32 s{sT2}, s{sT1}, 7
s_sub_u32 s{sT0}, s{sT0}, s{sT2}
s_bfe_u32 s{sT2}, s2, 0x10002
s_mul_i32 s{sT2}, s{sT2}, 7
s_add_u32 s{sT0}, s{sT0}, s{sT2}
s_lshl_b32 s{sX0}, s{sT0}, 4
s_mul_i32 s{sY0}, s{sT1}, {112*7282}
s_add_u32 s{sH13}, s{sY0}, {112*7282}
s_lshr_b32 s{sY0}, s{sY0}, 16
s_lshr_b32 s{sH13}, s{sH13}, 16
s_sub_u32 s{sH13}, s{sH13}, s{sY0}
s_and_b32 s{sWI}, s{sWV}, 3
''')
if PFM == 'h':
    a(f'''
    s_cmp_eq_u32 s{sH13}, 13
    s_cbranch_scc1 L_nopf
    s_bfe_u32 s{sT3}, s2, 0x20003
    s_lshl_b32 s{sT3}, s{sT3}, 3
    s_add_u32 s{sT3}, s{sT3}, s{sWV}
    s_mul_i32 s{sT3}, s{sT3}, {10*128}
    v_lshl_add_u32 v{T[2]}, v{vLN}, 7, s{sT3}
    v_min_u32 v{T[2]}, L_end-L_pc, v{T[2]}
    s_mov_b64 exec, 0x3ff
    global_load_dword v{vPF}, v{T[2]}, s[100:101]
    s_mov_b64 exec, -1
    L_nopf:
    ''')
a(f'''
v_mov_b32 v{T[4]}, {MARK}
v_lshlrev_b32 v{vL16}, 4, v{vLN}
s_mul_i32 s{sT1}, s{sWI}, 5
v_add_u32 v{T[0]}, s{sT1}, v{T[0]}
v_bfe_u32 v{T[2]}, v{T[0]}, 2, 2
v_xor_b32 v{T[1]}, v{T[1]}, v{T[2]}
s_sub_u32 s{sT1}, s{sX0}, 2
v_add_u32 v{T[0]}, s{sT1}, v{T[0]}
v_mul_u32_u24 v{T[2]}, 192, v{T[0]}
v_cmp_gt_u32 vcc, 224, v{T[0]}
v_lshl_add_u32 v{T[2]}, v{T[1]}, 4, v{T[2]}
s_mul_i32 s{sXM}, s{sWI}, 960
s_mov_b32 s99, 43008
v_cndmask_b32 v{vXO}, v{T[4]}, v{T[2]}, vcc
s_sub_u32 s{sT1}, s{sY0}, 2
s_mul_i32 s{sT1}, s{sT1}, s99
v_add_u32 v{vXO}, s{sT1}, v{vXO}
s_mov_b32 s{sX+2}, {XBYTES}
s_mov_b32 s{sX+3}, 0x00020000
{isF} s{sWV}, 4
s_cbranch_scc1 L_F0
; tables: A = 5x5 row i ; B = 3x3 row i (i<3, lanes 12..47) or 5x5 row 4 (i==3)
s_mov_b32 s{sDS+2}, 4800
s_mov_b32 s{sDS+3}, 0x00020000
s_mov_b32 s{sDL+3}, 0x00020000
s_mul_i32 s{sT3}, s{sWI}, {TP}
s_mul_i32 s{sT2}, s{sWI}, 576
s_sub_u32 s{sT2}, s{sT2}, 192
s_add_u32 s{sT1}, s{sT3}, {TB + 2*TP}
s_cmp_eq_u32 s{sWI}, 3
s_cselect_b32 s{sDL+2}, s{sDS+2}, 1728
s_cselect_b32 s{sT2}, 3840, s{sT2}
s_cselect_b32 s{sT1}, {TB + 12*TP}, s{sT1}
s_cselect_b32 exec_lo, -1, 0xfffff000
s_cselect_b32 exec_hi, -1, 0xffff
v_add_u32 v{T[4]}, s{sT2}, v{vL16}
s_mov_b32 exec_lo, -1
s_mov_b32 exec_hi, 0x0fffffff
s_add_u32 m0, s{sT3}, {TB + 8*TP}
s_cmp_eq_u32 s{sWI}, 3
s_waitcnt lgkmcnt(0)
{ap('Lk')}
s_mov_b64 s[{sDS}:{sDS+1}], s[8:9]
s_cselect_b64 s[{sDL}:{sDL+1}], s[8:9], s[6:7]
buffer_load_dwordx4 v{vL16}, {srd(sDS)}, s{sXM} offen lds
s_mov_b32 m0, s{sT1}
s_mov_b64 s[{sX}:{sX+1}], s[4:5]
buffer_load_dwordx4 v{T[4]}, {srd(sDL)}, 0 offen lds
s_add_u32 m0, s{sXM}, {XB}
s_movk_i32 s{sXM}, {XROW}
''')
xl = [0]
def xrows(n):
    for _ in range(n):
        t = xl[0]; xl[0] += 1
        if t:
            a(f's_add_u32 m0, m0, s{sXM}')
            a(f'v_add_u32 v{vXO}, s99, v{vXO}')
        a(f'buffer_load_dwordx4 v{vXO}, {srd(sX)}, 0 offen{XPOL} lds')
NX0 = int(opt('nx0', 8))
if opt('amp') == 'x1':
    xrows(1); a('s_waitcnt vmcnt(0)'); a(ap('x1')); xrows(NX0 - 1)
else:
    xrows(NX0)
for k_ in (4, 8, 12, 17):
    if opt('amp') == f'x{k_}': a(f's_waitcnt vmcnt({NX0 - k_})'); a(ap(f'x{k_}'))
a(ap('Li'))
stamp(1)
a(f'''
s_branch L_L
L_F0:
; ---- F: conv weight tables, rows w and w+4 of both
s_setprio {opt("fprio", 2)}
s_mul_i32 s{sIMG}, s{sWI}, 6144
s_mov_b32 s{sOB}, {OUTF}
s_mul_i32 s{sT0}, s{sY0}, 43008
s_cmp_lg_u32 s{sWI}, 0
s_cbranch_scc1 L_nozero
v_add_u32 v{T[0]}, {TB}, v{vL16}
v_mov_b64 v[0:1], 0
v_mov_b64 v[2:3], 0
''')
for off in (0, 2*TP - 1024, 5*TP, 5*TP + 1024, 8*TP - 1024, 13*TP, 13*TP + 1024, 16*TP - 1024):
    a(f'ds_write_b128 v{T[0]}, v[0:3] offset:{off}')
a(f'''
L_nozero:
s_waitcnt lgkmcnt(0)
{TOUCH}
''')
WPF = opt('wpf', '0') == '1'
if PFM in ('f', 'g'):
    if PFM == 'g': a(f's_cmp_eq_u32 s{sH13}, 13\ns_cselect_b32 s97, 1, 0xfffff')
    a(f'''
    s_bfe_u32 s{sT3}, s2, 0x20003
    s_lshl_b32 s{sT3}, s{sT3}, 2
    s_add_u32 s{sT3}, s{sT3}, s{sWI}
    s_mul_i32 s{sT3}, s{sT3}, {20*128}
    v_lshl_add_u32 v{T[1]}, v{vLN}, 7, s{sT3}
    v_min_u32 v{T[1]}, L_end-L_pc, v{T[1]}
    {'s_mov_b64 exec, 0xfffff' if PFM == 'f' else f's_cmp_eq_u32 s{sH13}, 13'+chr(10)+f's_cselect_b32 s{sT3}, 0, -1'+chr(10)+f'v_and_b32 v{T[1]}, s{sT3}, v{T[1]}'+chr(10)+'s_mov_b32 exec_lo, s97'+chr(10)+'s_mov_b32 exec_hi, 0'}
    global_load_dword v{vPF}, v{T[1]}, s[100:101]
    s_mov_b64 exec, -1
    ''')
if WPF:
    a(f'''
    s_and_b32 s{sT0}, s{sWI}, 1
    s_cselect_b64 s[{sT1}:{sT2}], s[12:13], s[10:11]
    s_lshr_b32 s{sT0}, s2, 3
    s_lshl_b32 s{sT0}, s{sT0}, 1
    s_lshr_b32 s{sT3}, s{sWI}, 1
    s_add_u32 s{sT0}, s{sT0}, s{sT3}
    s_mul_i32 s{sT0}, s{sT0}, {10*128}
    v_lshl_add_u32 v{T[0]}, v{vLN}, 7, s{sT0}
    v_min_u32 v{T[0]}, {73728-128}, v{T[0]}
    s_mov_b64 exec, 0x3ff
    global_load_dword v{vPF-1}, v{T[0]}, s[{sT1}:{sT2}]
    s_mov_b64 exec, -1
    ''')
a(ap('Ft'))
if opt('amp') == 'tab': a('s_waitcnt vmcnt(0)'); a(ap('tab'))
conv_setup1()
a(ap('Fc'))
OPF = opt('opf', '0') == '1'
if OPF:
    a(f'''
    s_mov_b64 exec, 1
    buffer_load_dword v{vPF-2}, v{vL16}, {srd(sOUT)}, s{sO0} offen
    s_mov_b64 exec, -1
    ''')
vFR = [48, 49, 50, 51]
vDW1[:] = [56, 57]; vDW2[:] = [58, 59, 60]
def f_setup1():
    a(f'''
    s_add_u32 s{sO1}, s{sO0}, {4*43008}
    v_lshrrev_b32 v{T[4]}, 5, v{vLN}
    v_bfe_u32 v{T[0]}, v{vLN}, 2, 2
    v_bfe_u32 v{T[1]}, v{vLN}, 4, 1
    v_and_b32 v{T[2]}, 3, v{vLN}
    v_lshl_add_u32 v{T[3]}, v{T[4]}, 4, v{T[0]}
    v_lshlrev_b32 v{T[3]}, 7, v{T[3]}
    v_lshl_add_u32 v{T[3]}, v{T[1]}, 5, v{T[3]}
    v_lshl_add_u32 v{T[3]}, v{T[2]}, 3, v{T[3]}
    v_bfe_u32 v{T[2]}, v{vLN}, 3, 1
    v_lshl_add_u32 v{vAW1[0]}, v{T[2]}, 6, v{T[3]}
    v_xor_b32 v{vAW1[1]}, 64, v{vAW1[0]}
    v_xor_b32 v{vAW1[2]}, 32, v{vAW1[0]}
    v_xor_b32 v{vAW1[3]}, 0x60, v{vAW1[0]}
    v_lshl_add_u32 v{T[3]}, v{T[4]}, 2, v{T[0]}
    v_mul_u32_u24 v{T[3]}, 192, v{T[3]}
    v_lshl_add_u32 v{T[3]}, v{T[1]}, 4, v{T[3]}
    v_and_b32 v{T[2]}, 1, v{vLN}
    v_xor_b32 v{T[2]}, v{T[2]}, v{T[4]}
    v_lshl_add_u32 v{T[3]}, v{T[2]}, 5, v{T[3]}
    v_bfe_u32 v{T[2]}, v{vLN}, 1, 1
    v_lshl_add_u32 v{T[3]}, v{T[2]}, 3, v{T[3]}
    v_add_u32 v{vAW2}, 12288, v{T[3]}
    s_mul_i32 s{sT2}, s{sWI}, 3072
    s_add_u32 s{sT2}, s{sT2}, {OUTF}
    s_mul_i32 s{sT1}, s{sWI}, {XROW}
    s_add_u32 s{sT1}, s{sT1}, {XB + 2*XROW + 384}
    v_lshlrev_b32 v{T[4]}, 1, v{T[4]}
    v_xor_b32 v{T[0]}, v{T[4]}, v{T[0]}
    v_and_b32 v{T[3]}, 15, v{vLN}
    v_mul_u32_u24 v{T[3]}, 192, v{T[3]}
    v_lshl_add_u32 v{T[0]}, v{T[0]}, 4, v{T[3]}
    v_lshl_add_u32 v{T[0]}, v{T[2]}, 3, v{T[0]}
    v_mul_u32_u24 v{T[2]}, {4*3072}, v{T[1]}
    v_add3_u32 v{vFR[0]}, v{T[0]}, v{T[2]}, s{sT2}
    v_xor_b32 v{vFR[1]}, 8, v{vFR[0]}
    v_xor_b32 v{vFR[2]}, 16, v{vFR[0]}
    v_xor_b32 v{vFR[3]}, 24, v{vFR[0]}
    v_add_u32 v{T[0]}, 2, v{vLN}
    v_bfe_u32 v{T[0]}, v{T[0]}, 2, 2
    v_xor_b32 v{T[0]}, v{T[4]}, v{T[0]}
    v_lshl_add_u32 v{T[0]}, v{T[0]}, 4, v{T[3]}
    v_mul_u32_u24 v{T[2]}, {4*XROW}, v{T[1]}
    v_add3_u32 v{vAR[0]}, v{T[0]}, v{T[2]}, s{sT1}
    v_xor_b32 v{vAR[1]}, 16, v{vAR[0]}
    v_bfe_u32 v{T[0]}, v{vLN}, 1, 2
    v_xor_b32 v{T[0]}, v{T[4]}, v{T[0]}
    v_lshl_add_u32 v{T[0]}, v{T[0]}, 4, v{T[3]}
    v_mul_u32_u24 v{T[2]}, 3072, v{T[1]}
    v_add3_u32 v{vSW[0]}, v{T[0]}, v{T[2]}, s{sIMG}
    v_xor_b32 v{vSW[1]}, 16, v{vSW[0]}
    ''')
def f_setup2():
    a(f'''
    v_and_b32 v{T[1]}, 1, v{vLN}
    v_lshlrev_b32 v{T[1]}, 4, v{T[1]}
    v_mov_b32 v{T[2]}, 0x3f80
    v_lshlrev_b32 v{T[1]}, v{T[1]}, v{T[2]}
    ''')
    for i in range(4): a(f'v_mov_b64 {vr(vID+2*i,2)}, 0')
    for i in range(8):
        pos = 16 * (i >> 2) + 8 * ((i >> 1) & 1) + 2 * (i & 1)
        setexec(3 << pos, 3 << (pos + 4))
        a(f'v_mov_b32 v{vID+i}, v{T[1]}')
    a('s_mov_b64 exec, -1')
FS = opt('fs', '00000')
fsl = [conv_setup2, late_setup, f_setup2, f_setup1, dma_setup]
def fsetup(k):
    for f, c in zip(fsl, FS):
        if int(c) == k: f()
FXP = int(opt('fxp', 5))
def f_rows(n=None):
    if xl[0] >= 17: return
    if xl[0] == NX0:
        a(f'''
        s_add_u32 m0, s{sXM}, {XB + (NX0-1)*XROW}
        s_movk_i32 s{sXM}, {XROW}
        v_add_u32 v{vXO}, {(NX0-1)*43008}, v{vXO}
        s_mov_b64 s[{sX}:{sX+1}], s[4:5]
        ''')
    a('s_mov_b32 exec_hi, 0x0fffffff')
    xrows(min(17 - xl[0], n or 99))
    a('s_mov_b32 exec_hi, -1')
FRP = 'a'
for item in reversed([x for x in opt('fb', '').split(',') if x]):
    pos, cnt = [int(v) for v in item.split(':')]
    fsl.insert(pos, lambda cnt=cnt: f_rows(cnt)); FS = FS[:pos] + '0' + FS[pos:]
fsetup(0)
a(ap('Fs'))
stamp(1)
a('s_waitcnt lgkmcnt(0)')
a(ap('Fl'))
pstamp(9)
bar()
a(ap('Bt'))
cv = Conv(0)
for gi in range(3): tab_reads(gi, cv.ds)
if FRP == 'a': f_rows()
fsetup(3)
bar(2)
S0 = stage([('F',0,[0]), ('F',1,[0,1])])
cv.run(S0, 0)
def res_half(s):
    m = 0xffff0000 if s else 0xffff
    setexec(m, m)
    for ks in range(6):
        cv.ds(f'ds_read_b128 {vr(vRES+4*ks,4)}, v{vAR[ks&1]} offset:{64*(ks>>1)}')
    a('s_mov_b64 exec, -1')
def run_stage(left, frags, pairs, keep=0, mid=None):
    its = left + stage(frags)
    if pairs: add_pub(its, len(left), len(frags), pairs)
    if mid: its[mid[0]]['post'] = mid[1]
    return cv.run(its, len(its) - keep)
left = cv.run(S0, len(S0) - int(opt('keep0', 0)))
fsetup(1)
pstamp(10)
bar(3)
left = run_stage(left, [('F',2,[0,1,2]), ('F',3,[1,2,3]), ('E',0,[0,1])], [0, 1])
fsetup(2)
SPLIT = opt('split', '0') == '1'
a(f's_waitcnt vmcnt({5 if SPLIT else 0})')
pstamp(11)
bar(4)
a(f's_setprio {opt("fprio2", 3)}')
left = run_stage(left, [('F',4,[2,3]), ('F',5,[3]), ('E',2,[2,3])], [2, 3])
a(ap('Fa'))
a('s_waitcnt vmcnt(0)')
signal(1)
a(ap('F1'))
wdma(0, [0, 1, 2])
stamp(5)
poll(GF, 1)
RA = 168
for ks in range(6):
    a(f'ds_read_b64 {vr(RA+4*ks,2)}, v{vFR[2*(ks&1)]} offset:{64*(ks>>1)}')
    a(f'ds_read_b64 {vr(RA+4*ks+2,2)}, v{vFR[2*(ks&1)+1]} offset:{64*(ks>>1)}')
a(f's_setprio {opt("fprio3", 1)}')
wdma(1, [0, 1, 2])
a('s_waitcnt lgkmcnt(0)')
stamp(6)
def f_mid():
    for ks in range(6):
        a(f'ds_read_b128 {vr(vRES+4*ks,4)}, v{vAR[ks&1]} offset:{64*(ks>>1)}')
    landed(0, 2)
    wdma(0, [3, 4, 5]); wdma(1, [3, 4, 5])
    peek(GF)
def f_mid2():
    a('s_waitcnt lgkmcnt(0)')
    check(GF, 2)
    f_w1reads0()
ln(RA, 72, [vL + i for i in range(24)], False, f_mid, f_mid2)
a(ap('Fm'))
stamp(8)
XH = {
  'start3': [lambda: landed(0, 3)],
  ('T1', 0): [lambda: peek(GF)],
  ('preT2', 0): [lambda: check(GF, 3)],
  ('T1', 1): [lambda: stamp(9)],
  ('T2', 1): [lambda: peek(GL)],
  ('preT1', 2): [lambda: check(GL, 6)],
  ('preT1', 4): [lambda: signal(4)],
  ('T1', 4): [lambda: peek(GL)],
  ('preT2', 4): [lambda: check(GL, 7)],
  ('T2', 5): [lambda: peek(GL)],
  ('preT1', 6): [lambda: check(GL, 8), lambda: stamp(10)],
  ('preT1', 8): [lambda: stamp(11)],
  ('T2', 8): [lambda: peek(GF)],
  ('preT1', 9): [lambda: check(GF, 4)],
  ('preT1', 10): [lambda: stamp(12)],
}
FP = opt('fp', 'n')
def fprio(c):
    if FP == 'n': return (0, 0) if c == 0 else None
    if FP == 's': return (1, 1) if c == 0 else None
    return (0, int(FP))
mlp32(XH, fprio)
stamp(13)
P = vY[0]; Q = vK[0]
for mt in range(3):
    for i in range(8):
        a(f'v_cvt_pk_bf16_f32 v{P+8*mt+i}, v{vO+16*mt+2*i}, v{vO+16*mt+2*i+1}')
    a(f'ds_write_b128 v{vSW[0]}, {vr(P+8*mt,4)} offset:{64*mt}')
    a(f'ds_write_b128 v{vSW[1]}, {vr(P+8*mt+4,4)} offset:{64*mt}')
for s in range(2):
    for j in range(3):
        a(f'ds_read_b128 {vr(Q+4*(3*s+j),4)}, v{vSR[j]} offset:{3072*s}')
for s in range(2):
    for j in range(3):
        a(f's_waitcnt lgkmcnt({5-(3*s+j)})')
        a(f'buffer_store_dwordx4 {vr(Q+4*(3*s+j),4)}, v{vL16}, {srd(sOUT)}, s{sO1 if s else sO0} offen offset:{1024*j}{STPOL}')
finish()
emit_slow()

a.label('L_L')
cv = Conv(4)
vDW1[:] = [220, 221]; vDW2[:] = [222, 223, 224]
vA0, vA2 = 48, 50
RR = 60
def l_setup():
    a(f'''
    s_add_u32 s{sO0}, s{sO0}, {8*43008}
    s_and_b32 s{sT1}, s{sWI}, 1
    v_lshrrev_b32 v{T[4]}, 4, v{vLN}
    v_bfe_u32 v{T[0]}, v{vLN}, 2, 2
    v_and_b32 v{T[2]}, 3, v{vLN}
    v_bfe_u32 v{T[1]}, v{vLN}, 4, 1
    v_lshlrev_b32 v{T[2]}, 3, v{T[2]}
    v_lshl_add_u32 v{T[2]}, v{T[1]}, 5, v{T[2]}
    v_lshl_add_u32 v{T[3]}, v{T[4]}, 3, v{T[0]}
    v_lshl_add_u32 v{T[3]}, v{T[3]}, 7, v{T[2]}
    v_bfe_u32 v{T[1]}, v{vLN}, 3, 1
    v_xor_b32 v{T[1]}, s{sT1}, v{T[1]}
    v_lshl_add_u32 v{T[3]}, v{T[1]}, 6, v{T[3]}
    s_lshr_b32 s{sT2}, s{sWI}, 1
    s_mul_i32 s{sT2}, s{sT2}, {PS}
    s_sub_u32 s{sT3}, {PS}, s{sT2}
    v_add_u32 v{vLW1}, s{sT2}, v{T[3]}
    v_add_u32 v{vLW1+4}, s{sT3}, v{T[3]}
    v_xor_b32 v{vLW1+1}, 32, v{vLW1}
    v_xor_b32 v{vLW1+2}, 64, v{vLW1}
    v_xor_b32 v{vLW1+3}, 0x60, v{vLW1}
    v_xor_b32 v{vLW1+5}, 32, v{vLW1+4}
    v_xor_b32 v{vLW1+6}, 64, v{vLW1+4}
    v_xor_b32 v{vLW1+7}, 0x60, v{vLW1+4}
    v_lshl_add_u32 v{T[3]}, v{T[4]}, 2, v{T[0]}
    v_mul_u32_u24 v{T[3]}, 192, v{T[3]}
    v_add_u32 v{T[3]}, v{T[3]}, v{T[2]}
    s_mul_i32 s{sT1}, s{sT1}, 6144
    s_add_u32 s{sT2}, s{sT2}, 12288
    s_add_u32 s{sT3}, s{sT3}, 12288
    s_add_u32 s{sT0}, s{sT2}, s{sT1}
    v_add_u32 v{vLW2}, s{sT0}, v{T[3]}
    s_add_u32 s{sT0}, s{sT3}, s{sT1}
    v_add_u32 v{vLW2+4}, s{sT0}, v{T[3]}
    s_sub_u32 s{sT1}, 6144, s{sT1}
    s_add_u32 s{sT0}, s{sT2}, s{sT1}
    v_add_u32 v{vLW2+2}, s{sT0}, v{T[3]}
    s_add_u32 s{sT0}, s{sT3}, s{sT1}
    v_add_u32 v{vLW2+6}, s{sT0}, v{T[3]}
    v_xor_b32 v{vLW2+1}, 32, v{vLW2}
    v_xor_b32 v{vLW2+3}, 32, v{vLW2+2}
    v_xor_b32 v{vLW2+5}, 32, v{vLW2+4}
    v_xor_b32 v{vLW2+7}, 32, v{vLW2+6}
    v_xor_b32 v{T[0]}, v{T[4]}, v{T[0]}
    v_and_b32 v{T[3]}, 15, v{vLN}
    v_mul_u32_u24 v{T[3]}, 192, v{T[3]}
    v_lshl_add_u32 v{T[0]}, v{T[0]}, 4, v{T[3]}
    v_add_u32 v{vARL}, {L12}, v{T[0]}
    v_bfe_u32 v{T[1]}, v{vLN}, 1, 1
    v_lshl_add_u32 v{T[0]}, v{T[1]}, 3, v{T[0]}
    v_add_u32 v{vA2}, {L12}, v{T[0]}
    v_xor_b32 v{vA2+1}, 8, v{vA2}
    v_add_u32 v{vA0}, s{sIMG}, v{T[0]}
    v_xor_b32 v{vA0+1}, 8, v{vA0}
    s_mul_i32 s{sT0}, s{sWI}, {XROW}
    v_bfe_u32 v{T[1]}, v{vLN}, 4, 1
    v_lshl_add_u32 v{T[3]}, v{T[1]}, 3, v{T[3]}
    v_lshrrev_b32 v{T[4]}, 5, v{vLN}
    v_bfe_u32 v{T[0]}, v{vLN}, 1, 2
    v_xor_b32 v{T[0]}, v{T[4]}, v{T[0]}
    v_lshl_add_u32 v{T[0]}, v{T[0]}, 4, v{T[3]}
    v_add_u32 v{vSW[0]}, s{sIMG}, v{T[0]}
    v_xor_b32 v{vSW[1]}, 32, v{vSW[0]}
    v_add_u32 v{T[0]}, 2, v{vLN}
    v_bfe_u32 v{T[0]}, v{T[0]}, 2, 2
    v_xor_b32 v{T[0]}, v{T[4]}, v{T[0]}
    v_lshl_add_u32 v{T[0]}, v{T[0]}, 4, v{T[3]}
    s_add_u32 s{sT0}, s{sT0}, {XB + 384}
    v_add_u32 v{vAR[0]}, s{sT0}, v{T[0]}
    v_xor_b32 v{vAR[1]}, 32, v{vAR[0]}
    ''')

a(f'''
s_mov_b32 exec_hi, -1
s_mul_i32 s{sIMG}, s{sWI}, 3072
s_add_u32 s{sIMG}, s{sIMG}, {S_IL}
s_mov_b32 s{sOB}, {OUTL}
''')
LS = opt('ls', '01002')
lsl = [conv_setup1, dma_setup, conv_setup2, late_setup, l_setup]
def lsetup(k):
    for f, c in zip(lsl, LS):
        if int(c) == k: f()
lsetup(0)
a(ap('Ls'))
pstamp(14)
a(f's_waitcnt vmcnt({NX0})')
bar()
for gi in range(3): tab_reads(gi, cv.ds)
lsetup(4)
a(f's_waitcnt vmcnt({NX0 - 4})')
a(ap('Ll'))
pstamp(9)
bar(2)
lsetup(1)
pstamp(10)
a(f's_waitcnt vmcnt({NX0 - 8})')
pstamp(11)
bar(3)
WP2 = opt('wp2', '2')
def wpf():
    a(f'''
    s_and_b32 s{sT0}, s{sWI}, 1
    s_cselect_b64 s[{sT1}:{sT2}], s[12:13], s[10:11]
    s_lshr_b32 s{sT0}, s2, 3
    s_lshl_b32 s{sT0}, s{sT0}, 1
    s_lshr_b32 s{sT3}, s{sWI}, 1
    s_add_u32 s{sT0}, s{sT0}, s{sT3}
    s_mul_i32 s{sT0}, s{sT0}, {10*128}
    v_lshl_add_u32 v{T[0]}, v{vLN}, 7, s{sT0}
    v_min_u32 v{T[0]}, {73728-128}, v{T[0]}
    s_mov_b64 exec, 0x3ff
    global_load_dword v226, v{T[0]}, s[{sT1}:{sT2}]
    s_mov_b64 exec, -1
    ''')
if WP2 == '1': wpf()
lsetup(2)
if WP2 == '2': wpf()
pstamp(12)
assert NX0 == 8
a('s_waitcnt lgkmcnt(0)')
pstamp(13)
bar(4)
a(f's_setprio {opt("lprio", 2)}')
RED, LNW = 1, 3
def raw_reads(R, ad, off=0):
    for ks in range(3):
        a(f'ds_read_b64 {vr(R+4*ks,2)}, v{ad} offset:{off+64*ks}')
        a(f'ds_read_b64 {vr(R+4*ks+2,2)}, v{ad+1} offset:{off+64*ks}')
def row_store(O, soff, P=vY[0], Q=vK[0]):
    for i in range(12):
        a(f'v_cvt_pk_bf16_f32 v{P+i}, v{O+2*i}, v{O+2*i+1}')
    for i in range(6):
        a(f'ds_write_b64 v{vSW[i&1]}, {vr(P+2*i,2)} offset:{64*(i>>1)}')
    for j in range(3):
        a(f'ds_read_b128 {vr(Q+4*j,4)}, v{vSR[j]}')
    for j in range(3):
        a(f's_waitcnt lgkmcnt({2-j})')
        a(f'buffer_store_dwordx4 {vr(Q+4*j,4)}, v{vL16}, {srd(sOUT)}, s{soff} offen offset:{1024*j}{STPOL}')
LP = opt('lp', 'k')
def lprio(c):
    if LP == 'n': return (0, 0) if c == 0 else None
    if LP == 's': return (1, 1) if c == 0 else None
    if LP == 'k':
        lo, hi = [int(x) for x in opt('lk', '0,7').split(',')]
        if lo <= c < hi: return (0, 1)
        return (0, 0) if c in (0, hi) else None
    return (0, int(LP))
def l_body(h13):
    global cv
    keep = cv
    cv = copy.copy(keep)
    sfx = 'a' if h13 else 'b'
    if h13:
        frags = [('F',4,[4]), ('F',5,[4,5]), ('F',6,[4,5,6]), ('F',7,[5,6]), ('E',4,[4,5]), ('F',8,[6]), ('L',6,[6])]; pairs = [4, 5, 6]
    else:
        frags = [('F',4,[4]), ('F',5,[4,5]), ('F',6,[4,5]), ('F',7,[5]), ('E',4,[4,5])]; pairs = [4, 5]
    if SPLIT:
        pre = stage(frags[:2])
        pre = cv.run(pre, len(pre) - int(opt('keepl', 2)))
        poll(GF, 1)
        frags = frags[2:]
    else:
        pre = []
    its = pre + stage(frags)
    add_pub(its, len(pre), len(frags), pairs)
    def resr():
        for i in range(6):
            cv.ds(f'ds_read_b64 {vr(RR+2*i,2)}, v{vAR[i&1]} offset:{10*XROW+64*(i>>1)}')
        if h13:
            for i in range(6):
                cv.ds(f'ds_read_b64 {vr(RR+12+2*i,2)}, v{vAR[i&1]} offset:{(14-RED)*XROW+64*(i>>1)}')
    if opt('lc'):
        nf = len(frags)
        for j, idx in ((9, 0), (10, nf - 1), (11, nf), (12, 2 * nf - 1), (13, 2 * nf)):
            its[idx]['post'] = lambda j=j: _st(j)
    if '3' in LS:
        cv.run(its, 0)
        lsetup(3)
    cv.run(its)
    stamp(6)
    signal(2)
    resr()
    stamp(5)
    poll(GL, 2)
    stamp(7)
    RAW = 168
    raw_reads(RAW, vA0)
    for i in range(12):
        a(f'v_lshlrev_b32 v{vO+2*i}, 16, v{RR+i}\nv_and_b32 v{vO+2*i+1}, 0xffff0000, v{RR+i}')
    if h13:
        a(f's_cmp_eq_u32 s{sWI}, {RED}\ns_cbranch_scc1 L_ri{sfx}')
        for i in range(12): a(f'v_mov_b64 {vr(vO+24+2*i,2)}, 0')
        a(f's_branch L_rj{sfx}')
        a.label(f'L_ri{sfx}')
        for i in range(12):
            a(f'v_lshlrev_b32 v{vO+24+2*i}, 16, v{RR+12+i}\nv_and_b32 v{vO+24+2*i+1}, 0xffff0000, v{RR+12+i}')
        a.label(f'L_rj{sfx}')
    signal(3)
    if h13: raw_reads(RAW + 12, vA2)
    a(f's_waitcnt lgkmcnt({7 if h13 else 1})')
    def l_mid2():
        a('s_waitcnt lgkmcnt(0)')
        check(GF, 2)
        l_w1reads(0)
    ln(RAW, 72, [vL + i for i in range(12)], True, lambda: peek(GF), l_mid2)
    if h13:
        a(f's_cmp_lg_u32 s{sWI}, {LNW}\ns_cbranch_scc1 L_nl12')
        ln(RAW + 12, 72, [RAW + 12 + i for i in range(12)], True)
        for ks in range(3):
            a(f'ds_write_b128 v{vARL}, {vr(RAW+12+4*ks,4)} offset:{64*ks}')
        a.label('L_nl12')
        signal(5)
    stamp(8)
    def l12r():
        for ks in range(3):
            a(f'ds_read_b128 {vr(vL+12+4*ks,4)}, v{vARL} offset:{64*ks}')
    def pub_rem():
        a(f's_cmp_eq_u32 s{sWI}, {RED}\ns_cbranch_scc1 L_np\ns_mul_i32 s{sT0}, s{sWI}, 6144\nv_add_u32 v{T[0]}, s{sT0}, v{vL16}')
        for i in range(6):
            a(f'ds_write_b128 v{T[0]}, {vr(vO+24+4*i,4)} offset:{S_R + 1024*i}')
        a.label('L_np')
        signal(9)
    H = {
      'start3': [lambda: peek(GL)],
      ('preT1', 0): [lambda: check(GL, 3)],
      ('T1', 0): [lambda: wdma(2, [0, 1, 2]), lambda: wdma(3, [0, 1, 2]), lambda: peek(GF)],
      ('preT2', 0): [lambda: check(GF, 3)],
      ('T2', 0): [lambda: wdma(2, [3, 4, 5])] + ([lambda: peek(GL)] if h13 else []),
      ('preT1', 1): [lambda: check(GL, 5)] if h13 else [],
      ('T1', 1): [lambda: wdma(3, [3, 4, 5]), lambda: stamp(9)] + ([l12r] if h13 else []),
      ('preT2', 1): [lambda: landed(6, 6)],
      ('T2', 1): [lambda: wdma(4, [0, 1, 2]), lambda: peek(GL)],
      ('preT1', 2): [lambda: check(GL, 6)],
      ('T1', 2): [lambda: wdma(4, [3, 4, 5])],
      ('T2', 2): [lambda: wdma(5, [0, 1, 2])],
      ('preT1', 3): [lambda: landed(9, 7)],
      ('T1', 3): [lambda: wdma(5, [3, 4, 5])],
      ('T1', 4): [lambda: peek(GL)],
      ('preT2', 4): [lambda: check(GL, 7), lambda: landed(0, 8)],
      ('T2', 5): [lambda: peek(GL)],
      ('preT1', 6): [lambda: check(GL, 8), lambda: stamp(10)],
      ('preT1', 8): [lambda: stamp(11)],
      ('preT1', 10): [lambda: stamp(12)],
    }
    if h13:
        H[('T2', 9)] = [lambda: peek(GF)]
        H[('preT1', 10)] = H[('preT1', 10)] + [lambda: check(GF, 4), pub_rem]
        def reduce12():
            a(f's_cmp_lg_u32 s{sWI}, {RED}\ns_cbranch_scc1 L_nored')
            poll(GL, 9)
            others = [w for w in range(4) if w != RED]
            R = [144, 48, 144]
            def rd(n):
                for i in range(6):
                    a(f'ds_read_b128 {vr(R[n]+4*i,4)}, v{vL16} offset:{S_R + 6144*others[n] + 1024*i}')
            def ad(n):
                if opt('redpk'):
                    for i in range(12):
                        a(f'v_pk_add_f32 {vr(vO+24+2*i,2)}, {vr(vO+24+2*i,2)}, {vr(R[n]+2*i,2)}')
                    return
                for i in range(24):
                    a(f'v_add_f32 v{vO+24+i}, v{vO+24+i}, v{R[n]+i}')
            rd(0); rd(1)
            a('s_waitcnt lgkmcnt(6)'); ad(0); rd(2)
            a('s_waitcnt lgkmcnt(6)'); ad(1)
            a('s_waitcnt lgkmcnt(0)'); ad(2)
            a(f's_add_u32 s{sO1}, s{sO0}, {(4-RED)*43008}')
            row_store(vO + 24, sO1, 48, 144)
            a.label('L_nored')
        H[('T1', 11)] = [reduce12]
        OB = opt('oddb', '8,12')
        if OB != 'n':
            o0, o1 = [int(x) for x in OB.split(',')]
            def boost():
                a(f's_cmp_lg_u32 s{sWI}, {RED}\ns_cbranch_scc1 L_nb\ns_setprio 1')
                a.label('L_nb')
            H.setdefault(('T2', o0), []).append(boost)
            if o1 < 12: H.setdefault(('T2', o1), []).append(lambda: a('s_setprio 0'))
    mlp16([3, 5, 8] if h13 else [], H, lprio)
    stamp(13)
    row_store(vO, sO0)
    finish()
    emit_slow()
    cv = keep
a(f's_cmp_lg_u32 s{sH13}, 13\ns_cbranch_scc1 L_L12')
l_body(True)
a.label('L_L12')
l_body(False)
a.label('L_end')
a('s_endpgm')

body = a.finalize()
hdr = open('cdna_kernels/' + NAME + '.s.ref').read().split('\n')
out = []
for l in hdr:
    if l.startswith('; @launch'):
        out.append('; @launch grid=(256,1,1) block=(512,1,1) lds=163840')
    elif l.startswith(';'):
        out.append(l)
    else:
        break
out.append('.amdgcn_target "amdgcn-amd-amdhsa--gfx950"')
out.append('.text')
out.append(f'.globl {NAME}_kernel')
out.append('.p2align 8')
out.append(f'.type {NAME}_kernel,@function')
out.append(f'{NAME}_kernel:')
for l in body:
    out.append(l if l.endswith(':') else '    ' + l)
out.append(f'''.section .rodata,"a"
.p2align 6
.amdhsa_kernel {NAME}_kernel
  .amdhsa_next_free_vgpr 256
  .amdhsa_next_free_sgpr 102
  .amdhsa_accum_offset 256
  .amdhsa_group_segment_fixed_size 0
  .amdhsa_kernarg_size 64
  .amdhsa_user_sgpr_count 2
  .amdhsa_user_sgpr_kernarg_segment_ptr 1
  .amdhsa_system_sgpr_workgroup_id_x 1
.end_amdhsa_kernel''')
print('\n'.join(out))
```

```python
import sys, struct, math, copy
from asmlib import Asm

NAME = "standalone__modern_conv_block_replknet__vision"
def fbits(x): return struct.unpack('<I', struct.pack('<f', x))[0]
def opt(name, default=None):
    for x in sys.argv:
        if x == '--' + name: return True
        if x.startswith('--' + name + '='): return x.split('=', 1)[1]
    return default
STAMP = opt('stamp'); CYC = opt('cyc'); PRO = opt('pro')
STPOL = ' ' + opt('stpol', 'sc1').replace('_', ' ') if opt('stpol', 'sc1') != 'none' else ''
FOLD = opt('fold', '1') == '1'
GL, GF = (1, 0) if FOLD else (0, 1)

XPOL = ' ' + opt('xpol').replace('_', ' ') if opt('xpol') else ''
XROW = 3840
XB = 73728
PS = 24576
TB, TP = 139264, 976
OUTF, OUTL = 49152, 147456
L12 = OUTL + 4*3072
FL = 163584
S_IF, S_R, S_IL = 0, 24576, OUTL
MARK = 0x40000000
XBYTES = 224 * 224 * 192

k0 = math.sqrt(2.0 / math.pi); k1 = 0.044715
c0 = 2 * k0 / math.log(2.0); c1 = c0 * k1
ga = c1 ** (1.0 / 3.0)
gc = -c0 / ga

sX, sDL, sDS, sW1, sW2, sOUT = 16, 20, 24, 28, 32, 36
sWV, sY0, sX0, sT0, sT1, sT2, sT3 = 40, 41, 42, 43, 44, 45, 46
sH13, sWI = 47, 3
sCA, sCC = 48, 50
sWS = 52
sXM, sIMG, sOB = 56, 57, 62
sWA, sWBm = 58, 59
sO0, sO1 = 60, 61
sST = 64
NST = 16
def srd(b): return f's[{b}:{b+3}]'
vO, vL, vY, vK, vG, vF1, vF2 = 0, 48, [72, 88], [104, 120], 136, 144, 168
vRES, vID = 204, 228
vAW1 = [236, 237, 245, 249]; vAW2 = 238
vLW1 = 204; vLW2 = 212
vDW1 = [220, 221]; vDW2 = [222, 223, 224]
vARL = 225
vSW = [239, 240]; vSR = [241, 242, 243]
vL16 = 244
vFA, vFW, vFP = 246, 247, 248
T = [250, 251, 252, 253, 254]
vLN = 255
vXO = 203; vPF = 54
vAF, vAE, vAO, vIDX, vTF0, vTF1, vTE, vAR, vAE16, vAO1 = 192, 193, 194, 195, 196, 197, 198, [199, 200], 201, 202
vACC, vAFR, vB = 0, 84, 144
def vr(b, n): return f'v[{b}:{b+n-1}]'

a = Asm()
def _st(i): a(f'{"s_memtime" if CYC else "s_memrealtime"} s[{sST+2*i}:{sST+2*i+1}]')
def pstamp(i):
    if STAMP and PRO and not opt('lc'): _st(i)
def ap(n):
    return 's_memrealtime s[88:89]' if opt('amp') == n else ''
def stamp(i):
    a(ap(str(i)))
    if i in (8, 13): hold(i)
    if STAMP and not (PRO and 9 <= i <= 14): _st(i)
def mksrd(b, lo, n):
    a(f's_mov_b64 s[{b}:{b+1}], s[{lo}:{lo+1}]\ns_mov_b32 s{b+2}, {n}\ns_mov_b32 s{b+3}, 0x00020000')
def hold(tag):
    h = opt('hold')
    if h and h.split(':')[0] == str(tag):
        n = nlab[0]; nlab[0] += 1
        a(f's_waitcnt lgkmcnt(0)\ns_add_u32 s92, s94, {h.split(":")[1]}')
        a.label(f'L_hold{n}')
        a(f's_memrealtime s[90:91]\ns_waitcnt lgkmcnt(0)\ns_sub_u32 s93, s92, s90\ns_cmp_gt_i32 s93, 0\ns_cbranch_scc1 L_hold{n}')
def bar(i=None):
    jitter()
    a('s_barrier')
    jitter()
    hold(i)
    if i is not None: stamp(i)
def setexec(lo, hi):
    a(f's_mov_b32 exec_lo, {lo:#x}\ns_mov_b32 exec_hi, {hi:#x}')

nlab = [0]; slow = []
def guard():
    if opt('safe'): a('s_sub_u32 s98, s98, 1\ns_cbranch_scc1 L_end')
def jitter():
    if opt('jitter'):
        n = nlab[0]; nlab[0] += 1
        a(f's_mul_i32 s86, s86, 1103515245\ns_add_u32 s86, s86, 12345\ns_lshr_b32 s87, s86, {opt("jitter")}')
        a.label(f'L_jit{n}')
        a(f's_sleep 2\ns_sub_u32 s87, s87, 1\ns_cbranch_scc0 L_jit{n}')
def signal(v, emit=None):
    jitter()
    a(f'v_mov_b32 v{T[4]}, {v}')
    (emit or a)(f'ds_write_b32 v{vFW}, v{T[4]}')
def poll(grp, v):
    lab = f'L_poll{nlab[0]}'; nlab[0] += 1
    a.label(lab)
    guard()
    a(f'ds_read_b32 v{vFP}, v{vFA} offset:{16*grp}\ns_waitcnt lgkmcnt(0)\nv_cmp_gt_u32 vcc, {v}, v{vFP}\ns_cbranch_vccnz {lab}')
def peek(grp): a(f'ds_read_b32 v{vFP}, v{vFA} offset:{16*grp}')
def check(grp, v):
    jitter()
    n = nlab[0]; nlab[0] += 1
    a(f'v_cmp_gt_u32 vcc, {v}, v{vFP}\ns_cbranch_vccnz L_slow{n}')
    a.label(f'L_back{n}')
    slow.append((n, grp, v))
def emit_slow():
    for n, grp, v in slow:
        a.label(f'L_slow{n}')
        guard()
        a(f'ds_read_b32 v{vFP}, v{vFA} offset:{16*grp}\ns_waitcnt lgkmcnt(0)\nv_cmp_gt_u32 vcc, {v}, v{vFP}\ns_cbranch_vccnz L_slow{n}\ns_branch L_back{n}')
    slow.clear()
def landed(n, v):
    a(f's_waitcnt vmcnt({n})'); signal(v)

def wdma(p, parts=range(6)):
    jitter()
    for i in parts:
        if i < 3:
            a(f'''
            s_add_u32 m0, s{sWBm}, {PS*p + 1024*i}
            s_add_u32 s{sT0}, s{sWA}, {6144*i + 128*p}
            buffer_load_dwordx4 v{vDW1[i & 1]}, {srd(sW1)}, s{sT0} offen lds
            ''')
        else:
            if i == 3 or i - 1 not in parts:
                a(f's_add_u32 m0, s{sWBm}, {PS*p + 12288}\ns_add_u32 s{sT0}, s{sWBm}, {12288*p}')
            a(f'buffer_load_dwordx4 v{vDW2[i-3]}, {srd(sW2)}, s{sT0} offen offset:{1024*(i-3)} lds')

def ln(raw, U, dst, rows16, mid=None, mid2=None):
    n = len(dst)
    S, Q, ONE = T[1], T[3], T[4]
    sc, bi = T[0], T[2]
    a(f'v_mov_b32 v{ONE}, 0x3f803f80')
    un = []
    for i in range(n):
        un.append(f'v_lshlrev_b32 v{U+2*i}, 16, v{raw+i}')
        un.append(f'v_and_b32 v{U+2*i+1}, 0xffff0000, v{raw+i}')
    while len(un) > 8: a(un.pop(0))
    for i in range(n):
        a(f'v_dot2_f32_bf16 v{S}, v{raw+i}, v{ONE}, {"0" if i == 0 else f"v{S}"}')
        a(f'v_dot2_f32_bf16 v{Q}, v{raw+i}, v{raw+i}, {"0" if i == 0 else f"v{Q}"}')
    def fill(k):
        for _ in range(k):
            if un: a(un.pop(0))
    fill(3)
    a(f'v_permlane32_swap_b32 v{S}, v{Q}')
    a(f'v_add_f32 v{S}, v{S}, v{Q}')
    if rows16:
        a(f'v_mov_b32 v{Q}, v{S}')
        fill(2)
        a(f'v_permlane16_swap_b32 v{S}, v{Q}')
        a(f'v_add_f32 v{S}, v{S}, v{Q}')
    a(f'v_mul_f32 v{S}, {fbits(1.0/96):#x}, v{S}')
    a(f'v_mov_b32 v{Q}, v{S}')
    fill(2)
    a(f'v_permlane32_swap_b32 v{S}, v{Q}')
    a(f'''
    v_fma_f32 v{Q}, -v{S}, v{S}, v{Q}
    v_max_f32 v{Q}, 0, v{Q}
    v_add_f32 v{Q}, {fbits(1e-5):#x}, v{Q}
    v_rsq_f32 v{Q}, v{Q}
    ''')
    fill(1)
    a(f'v_mul_f32 v{sc}, {fbits(ga):#x}, v{Q}')
    a(f'v_mul_f32 v{bi}, -v{S}, v{sc}')
    fill(1000)
    if mid: mid()
    for i in range(n):
        if opt('lnplain'):
            a(f'v_fma_f32 v{U+2*i}, v{U+2*i}, v{sc}, v{bi}\nv_fma_f32 v{U+2*i+1}, v{U+2*i+1}, v{sc}, v{bi}')
        else:
            a(f'v_pk_fma_f32 {vr(U+2*i,2)}, {vr(U+2*i,2)}, {vr(sc,2)}, {vr(bi,2)} op_sel_hi:[1,0,0]')
    if mid2: mid2()
    for i in range(n):
        a(f'v_cvt_pk_bf16_f32 v{dst[i]}, v{U+2*i}, v{U+2*i+1}')

def pk_t(Y, K, n):
    return [f'v_pk_fma_f32 {vr(K+2*i,2)}, {vr(Y+2*i,2)}, {vr(Y+2*i,2)}, s[{sCC}:{sCC+1}] neg_lo:[1,0,0] neg_hi:[1,0,0]' for i in range(n//2)] + pk_m(Y, K, n)
def pk_m(Y, K, n): return [f'v_pk_mul_f32 {vr(K+2*i,2)}, {vr(Y+2*i,2)}, {vr(K+2*i,2)}' for i in range(n//2)]
def pk_d(K, n): return [f'v_pk_fma_f32 {vr(K+2*i,2)}, {vr(K+2*i,2)}, s[{sCA}:{sCA+1}], s[{sCA}:{sCA+1}]' for i in range(n//2)]
def emit(l):
    for t in l: a(t)

def mlp32(hooks, prio):
    N = 12
    moved = {'w1': False, 'w2': False}
    def move(kind, c):
        if c >= 6 and not moved[kind]:
            for r in (vAW1 if kind == 'w1' else [vAW2]): a(f'v_add_u32 v{r}, {3*PS}, v{r}')
            moved[kind] = True
    def w1reads(c):
        for ks in range(6):
            off = ((c >> 1) % 3) * PS + (ks >> 1) * 4096 + (ks & 1) * 1024
            r = vAW1[(c & 1) + 2 * (ks & 1)]
            a(f'ds_read_b64_tr_b16 {vr(vF1+4*ks,2)}, v{r} offset:{off}')
            a(f'ds_read_b64_tr_b16 {vr(vF1+4*ks+2,2)}, v{r} offset:{off+512}')
    def w2reads(c):
        for i in range(6):
            ks2, mt = i // 3, i % 3
            off = ((c >> 1) % 3) * PS + (c & 1) * 6144 + ks2 * 3072 + mt * 64
            a(f'ds_read_b64_tr_b16 {vr(vF2+4*i,2)}, v{vAW2} offset:{off}')
            a(f'ds_read_b64_tr_b16 {vr(vF2+4*i+2,2)}, v{vAW2} offset:{off+1536}')
    def g1(c, ks):
        Y = vY[c & 1]
        a(f'v_mfma_f32_32x32x16_bf16 {vr(Y,16)}, {vr(vF1+4*ks,4)}, {vr(vL+4*ks,4)}, {"0" if ks == 0 else vr(Y,16)}')
    def g2(i):
        ks2, mt = i // 3, i % 3
        a(f'v_mfma_f32_32x32x16_bf16 {vr(vO+16*mt,16)}, {vr(vF2+4*i,4)}, {vr(vG+4*ks2,4)}, {vr(vO+16*mt,16)}')
    def resm(ks):
        j, mt = ks // 3, ks % 3
        a(f'v_mfma_f32_32x32x16_bf16 {vr(vO+16*mt,16)}, {vr(vID+4*j,4)}, {vr(vRES+4*(2*mt+j),4)}, {"0" if j == 0 else vr(vO+16*mt,16)}')
    def hook(k):
        for f in hooks.get(k, []): f()
    def pr(c, v):
        if prio(c) is not None: a(f's_setprio {prio(c)[v]}')
    hook('pre')
    a('s_waitcnt lgkmcnt(0)')
    for ks in range(6): g1(0, ks)
    w1reads(1)
    hook('start3')
    for c in range(N + 1):
        Y, K = vY[c & 1], vK[c & 1]
        Yp, Kp = vY[(c - 1) & 1], vK[(c - 1) & 1]
        pr(c, 1)
        if c >= 1: emit(pk_m(Yp, Kp, 16))
        if c < N: emit(pk_t(Y, K, 16))
        cv = [f'v_cvt_pk_bf16_f32 v{vG+i}, v{Kp+2*i}, v{Kp+2*i+1}' for i in range(8)] if c >= 1 else []
        if c == N:
            emit(cv)
            a('s_waitcnt lgkmcnt(0)')
            for i in (0, 3, 1, 4, 2, 5): g2(i)
            break
        ex = [f'v_exp_f32 v{K+i}, v{K+i}' for i in range(16)]
        rc = [f'v_rcp_f32 v{K+i}, v{K+i}' for i in range(16)]
        last = c + 1 >= N
        if c + 2 < N: move('w1', c + 2)
        move('w2', c)
        if c == 0:
            gaps = [ex[0:3], ex[3:6], ex[6:9], ex[9:12], ex[12:15], ex[15:16]]
            a('s_waitcnt lgkmcnt(0)')
            for j in range(6):
                g1(1, j); emit(gaps[j])
        elif not last:
            gaps = [cv[0:4] + ex[0:1], cv[4:8] + ex[1:2], ex[2:5], ex[5:8], ex[8:11], ex[11:14], ex[14:16]]
            for j in range(7):
                if j < 6: g1(c + 1, j)
                else: g2(0)
                if j == 5: a('s_waitcnt lgkmcnt(0)')
                emit(gaps[j])
        else:
            emit(cv); emit(ex[0:4])
            a('s_waitcnt lgkmcnt(0)')
            gaps = [ex[4:8], ex[8:12], ex[12:16]]
            for j in range(3):
                g2(j); emit(gaps[j])
        hook(('preT1', c))
        pr(c, 0)
        if c + 2 < N: w1reads(c + 2)
        hook(('T1', c))
        pr(c, 1)
        emit(pk_d(K, 16))
        if c == 0:
            gp = [rc[0:3], rc[3:6], rc[6:9], rc[9:12], rc[12:14], rc[14:16]]
            for j in range(6):
                resm(j)
                if j == 5: a('s_waitcnt lgkmcnt(0)')
                emit(gp[j])
        elif not last:
            gp = [rc[0:3], rc[3:6], rc[6:9], rc[9:12], rc[12:16]]
            for j in range(5):
                g2(j + 1)
                if j == 4: a('s_waitcnt lgkmcnt(0)')
                emit(gp[j])
        else:
            gp = [rc[0:3], rc[3:6], rc[6:16]]
            for j in range(3):
                g2(j + 3)
                if j == 2: w2reads(c)
                emit(gp[j])
        hook(('preT2', c))
        pr(c, 0)
        if not last: w2reads(c)
        hook(('T2', c))
    return w1reads

def f_w1reads0():
    for ks in range(6):
        off = (ks >> 1) * 4096 + (ks & 1) * 1024
        r = vAW1[2 * (ks & 1)]
        a(f'ds_read_b64_tr_b16 {vr(vF1+4*ks,2)}, v{r} offset:{off}')
        a(f'ds_read_b64_tr_b16 {vr(vF1+4*ks+2,2)}, v{r} offset:{off+512}')

def l_w1reads(s):
    for i in range(6):
        mt2, ks3 = i // 3, i % 3
        off = ((s >> 2) & 1) * 2 * PS + ks3 * 4096
        r = vLW1 + mt2 + 2 * (s & 3)
        a(f'ds_read_b64_tr_b16 {vr(vF1+4*i,2)}, v{r} offset:{off}')
        a(f'ds_read_b64_tr_b16 {vr(vF1+4*i+2,2)}, v{r} offset:{off+512}')

def mlp16(doubles, hooks, prio):
    N = 12
    def wid(s): return 0 if (s < 0 or s >= N) else (2 if s in doubles else 1)
    def move(base):
        for r in range(8): a(f'v_add_u32 v{base+r}, {4*PS}, v{base+r}')
    def w2reads(s):
        for i in range(6):
            off = ((s >> 2) & 1) * 2 * PS + 64 * (i >> 1)
            r = vLW2 + (i & 1) + 2 * (s & 3)
            a(f'ds_read_b64_tr_b16 {vr(vF2+4*i,2)}, v{r} offset:{off}')
            a(f'ds_read_b64_tr_b16 {vr(vF2+4*i+2,2)}, v{r} offset:{off+3072}')
    def m1(s):
        l = []
        for t in range(wid(s)):
            for j in range(6):
                mt2, ks3 = j & 1, j >> 1
                D = vY[s & 1] + 8 * t + 4 * mt2
                l.append(f'v_mfma_f32_16x16x32_bf16 {vr(D,4)}, {vr(vF1+4*(mt2*3+ks3),4)}, {vr(vL+12*t+4*ks3,4)}, {"0" if ks3 == 0 else vr(D,4)}')
        return l
    def m2(s):
        return [f'v_mfma_f32_16x16x32_bf16 {vr(vO+24*t+4*i,4)}, {vr(vF2+4*i,4)}, {vr(vG+4*t,4)}, {vr(vO+24*t+4*i,4)}' for t in range(wid(s)) for i in range(6)]
    def weave(ms, fl):
        fl = list(fl)
        if not ms:
            emit(fl); a('s_waitcnt lgkmcnt(0)'); return
        for j, m in enumerate(ms):
            a(m)
            if j == len(ms) - 1: a('s_waitcnt lgkmcnt(0)')
            k = -(-len(fl) // (len(ms) - j))
            emit(fl[:k]); fl = fl[k:]
    def hook(k):
        for f in hooks.get(k, []): f()
    def pr(c, v):
        if prio(c) is not None: a(f's_setprio {prio(c)[v]}')
    hook('pre')
    a('s_waitcnt lgkmcnt(0)')
    emit(m1(0))
    l_w1reads(1)
    hook('start3')
    for s in range(N + 1):
        Y, K = vY[s & 1], vK[s & 1]
        Yp, Kp = vY[(s - 1) & 1], vK[(s - 1) & 1]
        n, np_ = 8 * wid(s), 8 * wid(s - 1)
        pr(s, 1)
        emit(pk_m(Yp, Kp, np_))
        emit(pk_t(Y, K, n))
        cv = [f'v_cvt_pk_bf16_f32 v{vG+i}, v{Kp+2*i}, v{Kp+2*i+1}' for i in range(np_ // 2)]
        if s == N:
            emit(cv)
            a('s_waitcnt lgkmcnt(0)')
            emit(m2(N - 1))
            break
        ex = [f'v_exp_f32 v{K+i}, v{K+i}' for i in range(n)]
        rc = [f'v_rcp_f32 v{K+i}, v{K+i}' for i in range(n)]
        if s + 2 == 8: move(vLW1)
        if s == 8: move(vLW2)
        if s == 0: a('s_waitcnt lgkmcnt(0)')
        weave(m1(s + 1), cv + ex)
        hook(('preT1', s))
        pr(s, 0)
        if s + 2 < N: l_w1reads(s + 2)
        hook(('T1', s))
        pr(s, 1)
        emit(pk_d(K, n))
        weave(m2(s - 1), rc)
        hook(('preT2', s))
        pr(s, 0)
        w2reads(s)
        hook(('T2', s))

def finish():
    if opt('amp'):
        n = nlab[0]; nlab[0] += 1
        if opt('amp') == 'end': a(f's_waitcnt vmcnt(0)\ns_memrealtime s[88:89]\ns_mov_b32 s{sH13}, 13')
        a(f's_waitcnt vmcnt(0) lgkmcnt(0)\ns_sub_u32 s92, s88, s94\ns_lshl_b32 s92, s92, 2\ns_cmp_eq_u32 s88, 0\ns_cselect_b32 s92, 0, s92')
        a(f's_cmp_eq_u32 s{sH13}, {opt("amprows", 13)}\ns_cselect_b32 s92, s92, 0\ns_add_u32 s92, s92, 1400\ns_add_u32 s92, s92, s94')
        a.label(f'L_amp{n}')
        a(f's_memrealtime s[90:91]\ns_waitcnt lgkmcnt(0)\ns_sub_u32 s93, s92, s90\ns_cmp_gt_i32 s93, 0\ns_cbranch_scc1 L_amp{n}')
    if STAMP:
        stamp(14)
        a('s_waitcnt vmcnt(0)')
        stamp(15)
        a('s_waitcnt lgkmcnt(0)')
        if opt('dbg'):
            n = nlab[0]; nlab[0] += 1
            a(f's_cmp_lg_u32 s2, {opt("dbg")}\ns_cbranch_scc1 L_nd{n}\ns_cmp_lg_u32 s{sWI}, 0\ns_cbranch_scc1 L_nd{n}')
            a(f's_lshl_b32 s{sT0}, s{sWV}, 3\nv_mov_b32 v{T[1]}, s{sT0}\ns_mov_b64 exec, 1')
            for k, i in enumerate((1, 2, 3, 4, 8, 10, 13, 15)):
                a(f's_sub_u32 s{sT0}, s{sST+2*i}, s{sST}\nv_mov_b32 v{T[0]}, s{sT0}')
                a(f'buffer_store_dword v{T[0]}, v{T[1]}, {srd(sWS)}, 0 offen offset:{4*k}')
            a.label(f'L_nd{n}')
            a('s_endpgm')
            return
        a(f'''
        s_lshl_b32 s{sT0}, s2, 3
        s_add_u32 s{sT0}, s{sT0}, s{sWV}
        s_lshl_b32 s{sT0}, s{sT0}, 6
        v_mov_b32 v{T[1]}, s{sT0}
        s_mov_b64 exec, 1
        ''')
        for i in range(NST):
            a(f'v_mov_b32 v{T[0]}, s{sST+2*i}')
            a(f'buffer_store_dword v{T[0]}, v{T[1]}, {srd(sWS)}, 0 offen offset:{4*i}')
    a('s_endpgm')

def tab_reads(gi, em):
    A = vAFR + 20 * gi; o = 64 * gi
    for d in range(3):
        em(f'ds_read_b64_tr_b16 {vr(A+4*d,2)}, v{vTF0} offset:{o + 2*d*TP}')
        em(f'ds_read_b64_tr_b16 {vr(A+4*d+2,2)}, v{vTF1} offset:{o + 2*d*TP}')
    for par in range(2):
        for pp in range(2):
            em(f'ds_read_b64_tr_b16 {vr(A+12+4*par+2*pp,2)}, v{vTE} offset:{o + (pp - 2*par + 2)*TP}')
RING = 6
class Conv:
    def __init__(self, k0): self.n = 0; self.slot = 0; self.k0 = k0
    def acc(self, gi, k): return vACC + 16 * gi + 4 * (k - self.k0)
    def ds(self, t): a(t); self.n += 1; return self.n
    def wait(self, seq): a(f's_waitcnt lgkmcnt({min(15, self.n - seq)})')
    def reads(self, it):
        B = it['B']; go = 64 * it['gi']; idx = it['idx']; kind = it['kind']
        if kind == 'F':
            r0, r1 = 2 * idx, min(2 * idx + 1, 16)
            return [f'ds_read_b128 {vr(B,4)}, v{vAF} offset:{r0*XROW+go}', f'ds_read_b128 {vr(B+4,4)}, v{vAF} offset:{r1*XROW+go}']
        if kind == 'E':
            return [f'ds_read_b128 {vr(B,4)}, v{vAE} offset:{2*idx*XROW+go}', f'ds_read_b128 {vr(B+4,4)}, v{vAE} offset:{(2*idx+4)*XROW+go}']
        return [f'ds_read_b128 {vr(B,4)}, v{vAE} offset:{12*XROW+go}', f'ds_read_b128 {vr(B+4,4)}, v{vAE16} offset:{16*XROW+go}']
    def cvt(self, lst):
        for gi, k in lst:
            A = self.acc(gi, k)
            a(f'v_cvt_pk_bf16_f32 v{A}, v{A}, v{A+1}\nv_cvt_pk_bf16_f32 v{A+1}, v{A+2}, v{A+3}')
    def write(self, lst):
        for gi, k in lst:
            A = self.acc(gi, k)
            if k == 6: setexec(0xffff, 0xffff)
            self.ds(f'ds_write_b64 v{vAO}, {vr(A,2)} offset:{(k-self.k0)*6144+64*gi}')
            if k == 6: a('s_mov_b64 exec, -1')
    def run(self, items, stop_at=None):
        D = RING - 1
        nxt = 0
        while nxt < len(items) and 'seq' in items[nxt]: nxt += 1
        def start(j):
            items[j]['B'] = vB + 8 * (self.slot % RING); self.slot += 1
            return self.reads(items[j])
        while nxt < min(D, len(items)):
            for t in start(nxt): items[nxt]['seq'] = self.ds(t)
            nxt += 1
        end = len(items) if stop_at is None else stop_at
        for i in range(end):
            it = items[i]
            self.wait(it['seq'])
            pend = start(nxt) if nxt < len(items) else []
            A = vAFR + 20 * it['gi']
            had = bool(pend)
            for k in it['outs']:
                fr = (it['idx'] - k) if it['kind'] == 'F' else 3 + (k - it['idx'])
                a(f'v_smfmac_f32_16x16x64_bf16 {vr(self.acc(it["gi"], k),4)}, {vr(A+4*fr,4)}, {vr(it["B"],8)}, v{vIDX}')
                if pend: items[nxt]['seq'] = self.ds(pend.pop(0))
            for t in pend: items[nxt]['seq'] = self.ds(t)
            if had: nxt += 1
            if it.get('pub'):
                self.cvt(it['pub'])
                if not it.get('nowrite'): self.write(it['pub'])
            if it.get('post'): it['post']()
        return items[end:]
def stage(frags): return [dict(gi=gi, kind=k, idx=i, outs=list(o)) for gi in range(3) for (k, i, o) in frags]
def add_pub(items, base, nfr, pairs, nowrite=False):
    for gi in range(3):
        j = min(base + nfr * (gi + 1), len(items) - 1)
        items[j].setdefault('pub', []).extend((gi, k) for k in pairs)
        items[j]['nowrite'] = nowrite

def late_setup():
    mksrd(sOUT, 14, XBYTES)
    if opt('safe'): a('s_mov_b32 s98, 200000')
    a(f'''
    s_mov_b32 s{sCA}, {fbits(ga):#x}
    s_mov_b32 s{sCA+1}, {fbits(ga):#x}
    s_mov_b32 s{sCC}, {fbits(gc):#x}
    s_mov_b32 s{sCC+1}, {fbits(gc):#x}
    s_add_u32 s{sT0}, s{sWI}, s{sY0}
    s_mul_i32 s{sT0}, s{sT0}, 224
    s_add_u32 s{sT0}, s{sT0}, s{sX0}
    s_mul_i32 s{sO0}, s{sT0}, 192
    ''')
    if STAMP:
        a(f's_mov_b32 s{sWS+2}, {256 if opt("dbg") else 0x10000000}\ns_mov_b32 s{sWS+3}, 0x00020000')
        for i in (7,): a(f's_mov_b32 s{sST+2*i}, 0')
    for j in range(3):
        a(f'''
        v_add_u32 v{T[0]}, {64*j}, v{vLN}
        v_mul_u32_u24 v{T[2]}, 171, v{T[0]}
        v_bfe_u32 v{T[2]}, v{T[2]}, 12, 2
        v_xor_b32 v{T[0]}, v{T[0]}, v{T[2]}
        v_lshl_add_u32 v{vSR[j]}, v{T[0]}, 4, s{sIMG}
        ''')

def conv_setup1():
    a(f'''
; table read: source lane r=(l>>2)&3, chalf=(l>>1)&1, s=l&1, qa=l>>4; tbl=r&1; valid iff (r>>1)==chalf
v_and_b32 v{T[0]}, 3, v{vLN}
v_mul_u32_u24 v{vIDX}, 0x5555, v{T[0]}
s_lshl_b32 s{sT2}, s{sWI}, 4
s_add_u32 s{sT2}, s{sT2}, {TB}
v_bfe_u32 v{T[1]}, v{vLN}, 1, 1
v_lshl_add_u32 v{T[4]}, v{T[1]}, 3, s{sT2}
v_and_b32 v{T[0]}, 1, v{vLN}
v_lshrrev_b32 v{T[1]}, 5, v{vLN}
v_mul_u32_u24 v{vTE}, {TP}, v{T[1]}
v_sub_u32 v{T[1]}, v{T[1]}, v{T[0]}
v_bfe_u32 v{T[2]}, v{vLN}, 2, 1
v_mul_u32_u24 v{T[2]}, 7, v{T[2]}
v_sub_u32 v{T[1]}, v{T[1]}, v{T[2]}
v_add_u32 v{T[1]}, 8, v{T[1]}
v_mul_u32_u24 v{T[1]}, {TP}, v{T[1]}
v_bfe_u32 v{T[2]}, v{vLN}, 4, 1
v_mul_u32_u24 v{T[2]}, 192, v{T[2]}
v_add3_u32 v{T[3]}, v{T[1]}, v{T[2]}, v{T[4]}
v_lshrrev_b32 v{T[1]}, 4, v{vLN}
v_lshlrev_b32 v{T[2]}, 1, v{T[1]}
v_sub_u32 v{T[2]}, v{T[2]}, v{T[0]}
v_add_u32 v{T[2]}, 6, v{T[2]}
v_mul_u32_u24 v{T[2]}, {TP}, v{T[2]}
v_add_u32 v{vTF0}, s{sT2}, v{vTE}
v_add_u32 v{vTF1}, {TP}, v{vTF0}
v_mov_b32 v{vTE}, s{sT2}
s_mov_b32 exec_lo, 0xcc33cc33
s_mov_b32 exec_hi, 0xcc33cc33
v_mov_b32 v{vTF0}, v{T[3]}
v_add_u32 v{vTF1}, 384, v{T[3]}
s_mov_b32 exec_lo, 0x0c030c03
s_mov_b32 exec_hi, 0x0c030c03
v_add_u32 v{T[2]}, 768, v{T[2]}
v_add_u32 v{vTE}, v{T[2]}, v{T[4]}
s_mov_b64 exec, -1
v_and_b32 v{T[0]}, 15, v{vLN}
v_bfe_u32 v{T[2]}, v{vLN}, 4, 1
v_lshrrev_b32 v{T[3]}, 5, v{vLN}
v_lshl_add_u32 v{T[2]}, v{T[2]}, 1, v{T[3]}
v_add_u32 v{T[2]}, v{T[0]}, v{T[2]}
v_bfe_u32 v{T[3]}, v{T[2]}, 2, 2
v_xor_b32 v{T[3]}, s{sWI}, v{T[3]}
v_mul_u32_u24 v{T[2]}, 192, v{T[2]}
v_lshl_add_u32 v{vAF}, v{T[3]}, 4, v{T[2]}
v_add_u32 v{vAF}, {XB}, v{vAF}
''')
def conv_setup2(em=None):
    for i in range(24): a(f'v_mov_b64 {vr(vACC+2*i,2)}, 0')
    a(f'''
v_and_b32 v{T[0]}, 3, v{vLN}
v_lshlrev_b32 v{vFA}, 2, v{T[0]}
v_add_u32 v{vFA}, {FL}, v{vFA}
s_lshl_b32 s{sT0}, s{sWV}, 2
s_add_u32 s{sT0}, s{sT0}, {FL}
v_mov_b32 v{vFW}, s{sT0}
v_mov_b32 v{vFP}, 0
ds_write_b32 v{vFW}, v{vFP}
v_and_b32 v{T[0]}, 15, v{vLN}
v_lshrrev_b32 v{T[1]}, 4, v{vLN}
v_add_u32 v{T[2]}, 4, v{T[0]}
v_bfe_u32 v{T[3]}, v{T[2]}, 2, 2
v_xor_b32 v{T[3]}, s{sWI}, v{T[3]}
v_mul_u32_u24 v{T[2]}, 192, v{T[2]}
v_lshl_add_u32 v{vAE}, v{T[3]}, 4, v{T[2]}
v_add_u32 v{vAE16}, {XB}, v{vAE}
v_mul_u32_u24 v{T[2]}, {XROW}, v{T[1]}
v_add_u32 v{vAE}, v{vAE16}, v{T[2]}
v_bfe_u32 v{T[3]}, v{T[0]}, 2, 2
v_xor_b32 v{T[4]}, s{sWI}, v{T[3]}
v_mul_u32_u24 v{T[2]}, 192, v{T[0]}
v_lshl_add_u32 v{T[2]}, v{T[4]}, 4, v{T[2]}
v_bfe_u32 v{T[1]}, v{vLN}, 4, 1
v_mul_u32_u24 v{T[1]}, 3072, v{T[1]}
v_lshrrev_b32 v{T[3]}, 5, v{vLN}
v_bfe_u32 v{T[4]}, v{vLN}, 1, 1
v_xor_b32 v{T[3]}, v{T[3]}, v{T[4]}
v_lshl_add_u32 v{T[1]}, v{T[3]}, 3, v{T[1]}
v_add3_u32 v{vAO}, v{T[2]}, v{T[1]}, s{sOB}
''')

def dma_setup():
    mksrd(sW1, 10, 73728); mksrd(sW2, 12, 73728)
    a(f'''
    v_lshrrev_b32 v{T[0]}, 3, v{vLN}
    v_mul_u32_u24 v{T[0]}, 768, v{T[0]}
    v_bfe_u32 v{T[1]}, v{vLN}, 4, 1
    v_lshlrev_b32 v{T[1]}, 2, v{T[1]}
    v_and_b32 v{T[2]}, 7, v{vLN}
    v_xor_b32 v{T[1]}, v{T[1]}, v{T[2]}
    v_lshl_add_u32 v{T[0]}, v{T[1]}, 4, v{T[0]}
    s_and_b32 s{sT1}, s{sWI}, 1
    s_lshl_b32 s{sT0}, s{sT1}, 5
    v_xor_b32 v{vDW1[0]}, s{sT0}, v{T[0]}
    v_xor_b32 v{vDW1[1]}, 32, v{vDW1[0]}
    v_mov_b32 v{vDW2[0]}, v{vL16}
    v_mov_b32 v{vDW2[1]}, v{vL16}
    v_mov_b32 v{vDW2[2]}, v{vL16}
    s_mov_b32 exec_lo, 0xffff0000
    v_xor_b32 v{vDW2[2]}, 32, v{vL16}
    s_mov_b32 exec_lo, 0
    s_mov_b32 exec_hi, 0xffff0000
    v_xor_b32 v{vDW2[0]}, 32, v{vL16}
    s_mov_b32 exec_lo, -1
    s_mov_b32 exec_hi, 0
    v_xor_b32 v{vDW2[1]}, 32, v{vL16}
    s_mov_b64 exec, -1
    s_mul_i32 s{sWA}, s{sWI}, {3*6144}
    s_mul_i32 s{sWBm}, s{sWI}, 3072
    ''')

TM = opt('touch', '12o')
TOUCH = chr(10).join(t for k, t in (('l', 's_load_dword s76, s[6:7], 0'), ('x', f's_load_dword s77, s[4:5], s{sT0}'), ('1', 's_load_dword s78, s[10:11], 0'),
        ('2', 's_load_dword s79, s[12:13], 0'), ('o', f's_load_dword s80, s[14:15], s{sT0}')) if k in TM)
isF = 's_cmp_lt_u32' if FOLD else 's_cmp_ge_u32'
a(f'''
s_load_dwordx4 s[4:7], s[0:1], 0
s_load_dwordx4 s[8:11], s[0:1], 16
s_load_dwordx4 s[12:15], s[0:1], 32
s_getpc_b64 s[100:101]
L_pc:
''')
if STAMP: a(f's_load_dwordx2 s[{sWS}:{sWS+1}], s[0:1], {48 if opt("dbg") else 56}')
stamp(0)
if opt('jitter'): a('s_memtime s[86:87]\ns_waitcnt lgkmcnt(0)\nv_readfirstlane_b32 s87, v0\ns_nop 4\ns_mul_i32 s87, s87, 7919\ns_xor_b32 s86, s86, s87')
if opt('hold') or opt('amp'): a('s_memrealtime s[94:95]\ns_mov_b32 s88, 0')
a(f'''
s_cmp_ge_u32 s2, 256
s_cbranch_scc1 L_end
v_lshrrev_b32 v{T[0]}, 6, v0
v_and_b32 v{vLN}, 63, v0
''')
PFM = opt('pf', 'h')
if PFM == 'first':
    a(f'''
    s_bfe_u32 s{sT3}, s2, 0x20003
    s_mul_i32 s{sT3}, s{sT3}, {80*128}
    v_mul_u32_u24 v{T[1]}, 10, v{T[0]}
    v_add_u32 v{T[1]}, v{T[1]}, v{vLN}
    v_lshl_add_u32 v{T[1]}, v{T[1]}, 7, s{sT3}
    v_min_u32 v{T[1]}, L_end-L_pc, v{T[1]}
    s_mov_b64 exec, 0x3ff
    global_load_dword v{vPF}, v{T[1]}, s[100:101]
    s_mov_b64 exec, -1
    ''')
a(f'''
s_lshr_b32 s{sT1}, s2, 3
v_readfirstlane_b32 s{sWV}, v{T[0]}
s_and_b32 s{sT2}, s2, 1
s_add_u32 s{sT2}, s{sT2}, s{sT1}
s_cmp_ge_u32 s{sT2}, 32
s_cbranch_scc1 L_end
s_and_b32 s{sT0}, s2, 3
v_mul_u32_u24 v{T[0]}, 43, v{vLN}
s_mul_i32 s{sT0}, s{sT0}, 63
s_add_u32 s{sT0}, s{sT0}, 1
v_lshrrev_b32 v{T[0]}, 9, v{T[0]}
s_lshr_b32 s{sT0}, s{sT0}, 1
s_add_u32 s{sT0}, s{sT0}, s{sT1}
v_mul_u32_u24 v{T[1]}, 12, v{T[0]}
s_mul_i32 s{sT1}, s{sT0}, 9363
s_lshr_b32 s{sT1}, s{sT1}, 16
v_sub_u32 v{T[1]}, v{vLN}, v{T[1]}
s_mul_i32 s{sT2}, s{sT1}, 7
s_sub_u32 s{sT0}, s{sT0}, s{sT2}
s_bfe_u32 s{sT2}, s2, 0x10002
s_mul_i32 s{sT2}, s{sT2}, 7
s_add_u32 s{sT0}, s{sT0}, s{sT2}
s_lshl_b32 s{sX0}, s{sT0}, 4
s_mul_i32 s{sY0}, s{sT1}, {112*7282}
s_add_u32 s{sH13}, s{sY0}, {112*7282}
s_lshr_b32 s{sY0}, s{sY0}, 16
s_lshr_b32 s{sH13}, s{sH13}, 16
s_sub_u32 s{sH13}, s{sH13}, s{sY0}
s_and_b32 s{sWI}, s{sWV}, 3
''')
if PFM == 'h':
    a(f'''
    s_cmp_eq_u32 s{sH13}, 13
    s_cbranch_scc1 L_nopf
    s_bfe_u32 s{sT3}, s2, 0x20003
    s_lshl_b32 s{sT3}, s{sT3}, 3
    s_add_u32 s{sT3}, s{sT3}, s{sWV}
    s_mul_i32 s{sT3}, s{sT3}, {10*128}
    v_lshl_add_u32 v{T[2]}, v{vLN}, 7, s{sT3}
    v_min_u32 v{T[2]}, L_end-L_pc, v{T[2]}
    s_mov_b64 exec, 0x3ff
    global_load_dword v{vPF}, v{T[2]}, s[100:101]
    s_mov_b64 exec, -1
    L_nopf:
    ''')
a(f'''
v_mov_b32 v{T[4]}, {MARK}
v_lshlrev_b32 v{vL16}, 4, v{vLN}
s_mul_i32 s{sT1}, s{sWI}, 5
v_add_u32 v{T[0]}, s{sT1}, v{T[0]}
v_bfe_u32 v{T[2]}, v{T[0]}, 2, 2
v_xor_b32 v{T[1]}, v{T[1]}, v{T[2]}
s_sub_u32 s{sT1}, s{sX0}, 2
v_add_u32 v{T[0]}, s{sT1}, v{T[0]}
v_mul_u32_u24 v{T[2]}, 192, v{T[0]}
v_cmp_gt_u32 vcc, 224, v{T[0]}
v_lshl_add_u32 v{T[2]}, v{T[1]}, 4, v{T[2]}
s_mul_i32 s{sXM}, s{sWI}, 960
s_mov_b32 s99, 43008
v_cndmask_b32 v{vXO}, v{T[4]}, v{T[2]}, vcc
s_sub_u32 s{sT1}, s{sY0}, 2
s_mul_i32 s{sT1}, s{sT1}, s99
v_add_u32 v{vXO}, s{sT1}, v{vXO}
s_mov_b32 s{sX+2}, {XBYTES}
s_mov_b32 s{sX+3}, 0x00020000
''')
CSE = opt('cse', '1') == '1'
if CSE: conv_setup1()
a(f'''
{isF} s{sWV}, 4
s_cbranch_scc1 L_F0
v_mov_b32 v{T[4]}, {MARK}
; tables: A = 5x5 row i ; B = 3x3 row i (i<3, lanes 12..47) or 5x5 row 4 (i==3)
s_mov_b32 s{sDS+2}, 4800
s_mov_b32 s{sDS+3}, 0x00020000
s_mov_b32 s{sDL+3}, 0x00020000
s_mul_i32 s{sT3}, s{sWI}, {TP}
s_mul_i32 s{sT2}, s{sWI}, 576
s_sub_u32 s{sT2}, s{sT2}, 192
s_add_u32 s{sT1}, s{sT3}, {TB + 2*TP}
s_cmp_eq_u32 s{sWI}, 3
s_cselect_b32 s{sDL+2}, s{sDS+2}, 1728
s_cselect_b32 s{sT2}, 3840, s{sT2}
s_cselect_b32 s{sT1}, {TB + 12*TP}, s{sT1}
s_cselect_b32 exec_lo, -1, 0xfffff000
s_cselect_b32 exec_hi, -1, 0xffff
v_add_u32 v{T[4]}, s{sT2}, v{vL16}
s_mov_b32 exec_lo, -1
s_mov_b32 exec_hi, 0x0fffffff
s_add_u32 m0, s{sT3}, {TB + 8*TP}
s_cmp_eq_u32 s{sWI}, 3
s_waitcnt lgkmcnt(0)
{ap('Lk')}
s_mov_b64 s[{sDS}:{sDS+1}], s[8:9]
s_cselect_b64 s[{sDL}:{sDL+1}], s[8:9], s[6:7]
buffer_load_dwordx4 v{vL16}, {srd(sDS)}, s{sXM} offen lds
s_mov_b32 m0, s{sT1}
s_mov_b64 s[{sX}:{sX+1}], s[4:5]
buffer_load_dwordx4 v{T[4]}, {srd(sDL)}, 0 offen lds
s_add_u32 m0, s{sXM}, {XB}
s_movk_i32 s{sXM}, {XROW}
''')
xl = [0]
def xrows(n):
    for _ in range(n):
        t = xl[0]; xl[0] += 1
        if t:
            a(f's_add_u32 m0, m0, s{sXM}')
            a(f'v_add_u32 v{vXO}, s99, v{vXO}')
        a(f'buffer_load_dwordx4 v{vXO}, {srd(sX)}, 0 offen{XPOL} lds')
NX0 = int(opt('nx0', 8))
if opt('amp') == 'x1':
    xrows(1); a('s_waitcnt vmcnt(0)'); a(ap('x1')); xrows(NX0 - 1)
else:
    xrows(NX0)
for k_ in (4, 8, 12, 17):
    if opt('amp') == f'x{k_}': a(f's_waitcnt vmcnt({NX0 - k_})'); a(ap(f'x{k_}'))
a(ap('Li'))
stamp(1)
a(f'''
s_branch L_L
L_F0:
; ---- F: conv weight tables, rows w and w+4 of both
s_setprio {opt("fprio", 2)}
s_mul_i32 s{sIMG}, s{sWI}, 6144
s_mov_b32 s{sOB}, {OUTF}
s_cmp_lg_u32 s{sWI}, 0
s_cbranch_scc1 L_nozero
v_add_u32 v{T[0]}, {TB}, v{vL16}
v_mov_b64 v[0:1], 0
v_mov_b64 v[2:3], 0
''')
for off in (0, 2*TP - 1024, 5*TP, 5*TP + 1024, 8*TP - 1024, 13*TP, 13*TP + 1024, 16*TP - 1024):
    a(f'ds_write_b128 v{T[0]}, v[0:3] offset:{off}')
a(f'''
L_nozero:
''')
def f_karg():
    a(f's_mul_i32 s{sT0}, s{sY0}, 43008\ns_waitcnt lgkmcnt(0)\n{TOUCH}')
WPF = opt('wpf', '0') == '1'
if PFM in ('f', 'g'):
    if PFM == 'g': a(f's_cmp_eq_u32 s{sH13}, 13\ns_cselect_b32 s97, 1, 0xfffff')
    a(f'''
    s_bfe_u32 s{sT3}, s2, 0x20003
    s_lshl_b32 s{sT3}, s{sT3}, 2
    s_add_u32 s{sT3}, s{sT3}, s{sWI}
    s_mul_i32 s{sT3}, s{sT3}, {20*128}
    v_lshl_add_u32 v{T[1]}, v{vLN}, 7, s{sT3}
    v_min_u32 v{T[1]}, L_end-L_pc, v{T[1]}
    {'s_mov_b64 exec, 0xfffff' if PFM == 'f' else f's_cmp_eq_u32 s{sH13}, 13'+chr(10)+f's_cselect_b32 s{sT3}, 0, -1'+chr(10)+f'v_and_b32 v{T[1]}, s{sT3}, v{T[1]}'+chr(10)+'s_mov_b32 exec_lo, s97'+chr(10)+'s_mov_b32 exec_hi, 0'}
    global_load_dword v{vPF}, v{T[1]}, s[100:101]
    s_mov_b64 exec, -1
    ''')
if WPF:
    a(f'''
    s_and_b32 s{sT0}, s{sWI}, 1
    s_cselect_b64 s[{sT1}:{sT2}], s[12:13], s[10:11]
    s_lshr_b32 s{sT0}, s2, 3
    s_lshl_b32 s{sT0}, s{sT0}, 1
    s_lshr_b32 s{sT3}, s{sWI}, 1
    s_add_u32 s{sT0}, s{sT0}, s{sT3}
    s_mul_i32 s{sT0}, s{sT0}, {10*128}
    v_lshl_add_u32 v{T[0]}, v{vLN}, 7, s{sT0}
    v_min_u32 v{T[0]}, {73728-128}, v{T[0]}
    s_mov_b64 exec, 0x3ff
    global_load_dword v{vPF-1}, v{T[0]}, s[{sT1}:{sT2}]
    s_mov_b64 exec, -1
    ''')
a(ap('Ft'))
if opt('amp') == 'tab': a('s_waitcnt vmcnt(0)'); a(ap('tab'))
if not CSE: conv_setup1()
a(ap('Fc'))
OPF = opt('opf', '0') == '1'
if OPF:
    a(f'''
    s_mov_b64 exec, 1
    buffer_load_dword v{vPF-2}, v{vL16}, {srd(sOUT)}, s{sO0} offen
    s_mov_b64 exec, -1
    ''')
vFR = [48, 49, 50, 51]
vDW1[:] = [56, 57]; vDW2[:] = [58, 59, 60]
def f_setup1():
    a(f'''
    s_add_u32 s{sO1}, s{sO0}, {4*43008}
    v_lshrrev_b32 v{T[4]}, 5, v{vLN}
    v_bfe_u32 v{T[0]}, v{vLN}, 2, 2
    v_bfe_u32 v{T[1]}, v{vLN}, 4, 1
    v_and_b32 v{T[2]}, 3, v{vLN}
    v_lshl_add_u32 v{T[3]}, v{T[4]}, 4, v{T[0]}
    v_lshlrev_b32 v{T[3]}, 7, v{T[3]}
    v_lshl_add_u32 v{T[3]}, v{T[1]}, 5, v{T[3]}
    v_lshl_add_u32 v{T[3]}, v{T[2]}, 3, v{T[3]}
    v_bfe_u32 v{T[2]}, v{vLN}, 3, 1
    v_lshl_add_u32 v{vAW1[0]}, v{T[2]}, 6, v{T[3]}
    v_xor_b32 v{vAW1[1]}, 64, v{vAW1[0]}
    v_xor_b32 v{vAW1[2]}, 32, v{vAW1[0]}
    v_xor_b32 v{vAW1[3]}, 0x60, v{vAW1[0]}
    v_lshl_add_u32 v{T[3]}, v{T[4]}, 2, v{T[0]}
    v_mul_u32_u24 v{T[3]}, 192, v{T[3]}
    v_lshl_add_u32 v{T[3]}, v{T[1]}, 4, v{T[3]}
    v_and_b32 v{T[2]}, 1, v{vLN}
    v_xor_b32 v{T[2]}, v{T[2]}, v{T[4]}
    v_lshl_add_u32 v{T[3]}, v{T[2]}, 5, v{T[3]}
    v_bfe_u32 v{T[2]}, v{vLN}, 1, 1
    v_lshl_add_u32 v{T[3]}, v{T[2]}, 3, v{T[3]}
    v_add_u32 v{vAW2}, 12288, v{T[3]}
    s_mul_i32 s{sT2}, s{sWI}, 3072
    s_add_u32 s{sT2}, s{sT2}, {OUTF}
    s_mul_i32 s{sT1}, s{sWI}, {XROW}
    s_add_u32 s{sT1}, s{sT1}, {XB + 2*XROW + 384}
    v_lshlrev_b32 v{T[4]}, 1, v{T[4]}
    v_xor_b32 v{T[0]}, v{T[4]}, v{T[0]}
    v_and_b32 v{T[3]}, 15, v{vLN}
    v_mul_u32_u24 v{T[3]}, 192, v{T[3]}
    v_lshl_add_u32 v{T[0]}, v{T[0]}, 4, v{T[3]}
    v_lshl_add_u32 v{T[0]}, v{T[2]}, 3, v{T[0]}
    v_mul_u32_u24 v{T[2]}, {4*3072}, v{T[1]}
    v_add3_u32 v{vFR[0]}, v{T[0]}, v{T[2]}, s{sT2}
    v_xor_b32 v{vFR[1]}, 8, v{vFR[0]}
    v_xor_b32 v{vFR[2]}, 16, v{vFR[0]}
    v_xor_b32 v{vFR[3]}, 24, v{vFR[0]}
    v_add_u32 v{T[0]}, 2, v{vLN}
    v_bfe_u32 v{T[0]}, v{T[0]}, 2, 2
    v_xor_b32 v{T[0]}, v{T[4]}, v{T[0]}
    v_lshl_add_u32 v{T[0]}, v{T[0]}, 4, v{T[3]}
    v_mul_u32_u24 v{T[2]}, {4*XROW}, v{T[1]}
    v_add3_u32 v{vAR[0]}, v{T[0]}, v{T[2]}, s{sT1}
    v_xor_b32 v{vAR[1]}, 16, v{vAR[0]}
    v_bfe_u32 v{T[0]}, v{vLN}, 1, 2
    v_xor_b32 v{T[0]}, v{T[4]}, v{T[0]}
    v_lshl_add_u32 v{T[0]}, v{T[0]}, 4, v{T[3]}
    v_mul_u32_u24 v{T[2]}, 3072, v{T[1]}
    v_add3_u32 v{vSW[0]}, v{T[0]}, v{T[2]}, s{sIMG}
    v_xor_b32 v{vSW[1]}, 16, v{vSW[0]}
    ''')
def f_setup2():
    a(f'''
    v_and_b32 v{T[1]}, 1, v{vLN}
    v_lshlrev_b32 v{T[1]}, 4, v{T[1]}
    v_mov_b32 v{T[2]}, 0x3f80
    v_lshlrev_b32 v{T[1]}, v{T[1]}, v{T[2]}
    ''')
    for i in range(4): a(f'v_mov_b64 {vr(vID+2*i,2)}, 0')
    for i in range(8):
        pos = 16 * (i >> 2) + 8 * ((i >> 1) & 1) + 2 * (i & 1)
        setexec(3 << pos, 3 << (pos + 4))
        a(f'v_mov_b32 v{vID+i}, v{T[1]}')
    a('s_mov_b64 exec, -1')
FS = opt('fs', '00000')
def cs2k():
    conv_setup2(); f_setup2(); f_karg()
fsl = [cs2k, late_setup, lambda: None, f_setup1, dma_setup]
def fsetup(k):
    for f, c in zip(fsl, FS):
        if int(c) == k: f()
FXP = int(opt('fxp', 5))
def f_rows(n=None):
    if xl[0] >= 17: return
    if xl[0] == NX0:
        a(f'''
        s_add_u32 m0, s{sXM}, {XB + (NX0-1)*XROW}
        s_movk_i32 s{sXM}, {XROW}
        v_add_u32 v{vXO}, {(NX0-1)*43008}, v{vXO}
        s_mov_b64 s[{sX}:{sX+1}], s[4:5]
        ''')
    a('s_mov_b32 exec_hi, 0x0fffffff')
    xrows(min(17 - xl[0], n or 99))
    a('s_mov_b32 exec_hi, -1')
FRP = 'a'
for item in reversed([x for x in opt('fb', '1:4').split(',') if x]):
    pos, cnt = [int(v) for v in item.split(':')]
    fsl.insert(pos, lambda cnt=cnt: f_rows(cnt)); FS = FS[:pos] + '0' + FS[pos:]
fsetup(0)
a(ap('Fs'))
stamp(1)
a('s_waitcnt lgkmcnt(0)')
a(ap('Fl'))
pstamp(9)
bar()
a(ap('Bt'))
cv = Conv(0)
for gi in range(3): tab_reads(gi, cv.ds)
if FRP == 'a': f_rows()
fsetup(3)
bar(2)
S0 = stage([('F',0,[0]), ('F',1,[0,1])])
cv.run(S0, 0)
def res_half(s):
    m = 0xffff0000 if s else 0xffff
    setexec(m, m)
    for ks in range(6):
        cv.ds(f'ds_read_b128 {vr(vRES+4*ks,4)}, v{vAR[ks&1]} offset:{64*(ks>>1)}')
    a('s_mov_b64 exec, -1')
def run_stage(left, frags, pairs, keep=0, mid=None):
    its = left + stage(frags)
    if pairs: add_pub(its, len(left), len(frags), pairs)
    if mid: its[mid[0]]['post'] = mid[1]
    return cv.run(its, len(its) - keep)
left = cv.run(S0, len(S0) - int(opt('keep0', 0)))
fsetup(1)
pstamp(10)
bar(3)
left = run_stage(left, [('F',2,[0,1,2]), ('F',3,[1,2,3]), ('E',0,[0,1])], [0, 1])
fsetup(2)
SPLIT = opt('split', '0') == '1'
a(f's_waitcnt vmcnt({5 if SPLIT else 0})')
pstamp(11)
bar(4)
a(f's_setprio {opt("fprio2", 3)}')
left = run_stage(left, [('F',4,[2,3]), ('F',5,[3]), ('E',2,[2,3])], [2, 3])
a(ap('Fa'))
a('s_waitcnt vmcnt(0)')
signal(1)
a(ap('F1'))
wdma(0, [0, 1, 2])
stamp(5)
poll(GF, 1)
RA = 168
for ks in range(6):
    a(f'ds_read_b64 {vr(RA+4*ks,2)}, v{vFR[2*(ks&1)]} offset:{64*(ks>>1)}')
    a(f'ds_read_b64 {vr(RA+4*ks+2,2)}, v{vFR[2*(ks&1)+1]} offset:{64*(ks>>1)}')
a(f's_setprio {opt("fprio3", 1)}')
wdma(1, [0, 1, 2])
a('s_waitcnt lgkmcnt(0)')
stamp(6)
def f_mid():
    for ks in range(6):
        a(f'ds_read_b128 {vr(vRES+4*ks,4)}, v{vAR[ks&1]} offset:{64*(ks>>1)}')
    landed(0, 2)
    wdma(0, [3, 4, 5]); wdma(1, [3, 4, 5])
    peek(GF)
def f_mid2():
    a('s_waitcnt lgkmcnt(0)')
    check(GF, 2)
    f_w1reads0()
ln(RA, 72, [vL + i for i in range(24)], False, f_mid, f_mid2)
a(ap('Fm'))
stamp(8)
XH = {
  'start3': [lambda: landed(0, 3)],
  ('T1', 0): [lambda: peek(GF)],
  ('preT2', 0): [lambda: check(GF, 3)],
  ('T1', 1): [lambda: stamp(9)],
  ('T2', 1): [lambda: peek(GL)],
  ('preT1', 2): [lambda: check(GL, 6)],
  ('preT1', 4): [lambda: signal(4)],
  ('T1', 4): [lambda: peek(GL)],
  ('preT2', 4): [lambda: check(GL, 7)],
  ('T2', 5): [lambda: peek(GL)],
  ('preT1', 6): [lambda: check(GL, 8), lambda: stamp(10)],
  ('preT1', 8): [lambda: stamp(11)],
  ('T2', 8): [lambda: peek(GF)],
  ('preT1', 9): [lambda: check(GF, 4)],
  ('preT1', 10): [lambda: stamp(12)],
}
FP = opt('fp', 'n')
def fprio(c):
    if FP == 'n': return (0, 0) if c == 0 else None
    if FP == 's': return (1, 1) if c == 0 else None
    return (0, int(FP))
mlp32(XH, fprio)
stamp(13)
P = vY[0]; Q = vK[0]
for mt in range(3):
    for i in range(8):
        a(f'v_cvt_pk_bf16_f32 v{P+8*mt+i}, v{vO+16*mt+2*i}, v{vO+16*mt+2*i+1}')
    a(f'ds_write_b128 v{vSW[0]}, {vr(P+8*mt,4)} offset:{64*mt}')
    a(f'ds_write_b128 v{vSW[1]}, {vr(P+8*mt+4,4)} offset:{64*mt}')
for s in range(2):
    for j in range(3):
        a(f'ds_read_b128 {vr(Q+4*(3*s+j),4)}, v{vSR[j]} offset:{3072*s}')
for s in range(2):
    for j in range(3):
        a(f's_waitcnt lgkmcnt({5-(3*s+j)})')
        a(f'buffer_store_dwordx4 {vr(Q+4*(3*s+j),4)}, v{vL16}, {srd(sOUT)}, s{sO1 if s else sO0} offen offset:{1024*j}{STPOL}')
finish()
emit_slow()

a.label('L_L')
cv = Conv(4)
vDW1[:] = [220, 221]; vDW2[:] = [222, 223, 224]
vA0, vA2 = 48, 50
RR = 60
def l_setup():
    a(f'''
    s_add_u32 s{sO0}, s{sO0}, {8*43008}
    s_and_b32 s{sT1}, s{sWI}, 1
    v_lshrrev_b32 v{T[4]}, 4, v{vLN}
    v_bfe_u32 v{T[0]}, v{vLN}, 2, 2
    v_and_b32 v{T[2]}, 3, v{vLN}
    v_bfe_u32 v{T[1]}, v{vLN}, 4, 1
    v_lshlrev_b32 v{T[2]}, 3, v{T[2]}
    v_lshl_add_u32 v{T[2]}, v{T[1]}, 5, v{T[2]}
    v_lshl_add_u32 v{T[3]}, v{T[4]}, 3, v{T[0]}
    v_lshl_add_u32 v{T[3]}, v{T[3]}, 7, v{T[2]}
    v_bfe_u32 v{T[1]}, v{vLN}, 3, 1
    v_xor_b32 v{T[1]}, s{sT1}, v{T[1]}
    v_lshl_add_u32 v{T[3]}, v{T[1]}, 6, v{T[3]}
    s_lshr_b32 s{sT2}, s{sWI}, 1
    s_mul_i32 s{sT2}, s{sT2}, {PS}
    s_sub_u32 s{sT3}, {PS}, s{sT2}
    v_add_u32 v{vLW1}, s{sT2}, v{T[3]}
    v_add_u32 v{vLW1+4}, s{sT3}, v{T[3]}
    v_xor_b32 v{vLW1+1}, 32, v{vLW1}
    v_xor_b32 v{vLW1+2}, 64, v{vLW1}
    v_xor_b32 v{vLW1+3}, 0x60, v{vLW1}
    v_xor_b32 v{vLW1+5}, 32, v{vLW1+4}
    v_xor_b32 v{vLW1+6}, 64, v{vLW1+4}
    v_xor_b32 v{vLW1+7}, 0x60, v{vLW1+4}
    v_lshl_add_u32 v{T[3]}, v{T[4]}, 2, v{T[0]}
    v_mul_u32_u24 v{T[3]}, 192, v{T[3]}
    v_add_u32 v{T[3]}, v{T[3]}, v{T[2]}
    s_mul_i32 s{sT1}, s{sT1}, 6144
    s_add_u32 s{sT2}, s{sT2}, 12288
    s_add_u32 s{sT3}, s{sT3}, 12288
    s_add_u32 s{sT0}, s{sT2}, s{sT1}
    v_add_u32 v{vLW2}, s{sT0}, v{T[3]}
    s_add_u32 s{sT0}, s{sT3}, s{sT1}
    v_add_u32 v{vLW2+4}, s{sT0}, v{T[3]}
    s_sub_u32 s{sT1}, 6144, s{sT1}
    s_add_u32 s{sT0}, s{sT2}, s{sT1}
    v_add_u32 v{vLW2+2}, s{sT0}, v{T[3]}
    s_add_u32 s{sT0}, s{sT3}, s{sT1}
    v_add_u32 v{vLW2+6}, s{sT0}, v{T[3]}
    v_xor_b32 v{vLW2+1}, 32, v{vLW2}
    v_xor_b32 v{vLW2+3}, 32, v{vLW2+2}
    v_xor_b32 v{vLW2+5}, 32, v{vLW2+4}
    v_xor_b32 v{vLW2+7}, 32, v{vLW2+6}
    v_xor_b32 v{T[0]}, v{T[4]}, v{T[0]}
    v_and_b32 v{T[3]}, 15, v{vLN}
    v_mul_u32_u24 v{T[3]}, 192, v{T[3]}
    v_lshl_add_u32 v{T[0]}, v{T[0]}, 4, v{T[3]}
    v_add_u32 v{vARL}, {L12}, v{T[0]}
    v_bfe_u32 v{T[1]}, v{vLN}, 1, 1
    v_lshl_add_u32 v{T[0]}, v{T[1]}, 3, v{T[0]}
    v_add_u32 v{vA2}, {L12}, v{T[0]}
    v_xor_b32 v{vA2+1}, 8, v{vA2}
    v_add_u32 v{vA0}, s{sIMG}, v{T[0]}
    v_xor_b32 v{vA0+1}, 8, v{vA0}
    s_mul_i32 s{sT0}, s{sWI}, {XROW}
    v_bfe_u32 v{T[1]}, v{vLN}, 4, 1
    v_lshl_add_u32 v{T[3]}, v{T[1]}, 3, v{T[3]}
    v_lshrrev_b32 v{T[4]}, 5, v{vLN}
    v_bfe_u32 v{T[0]}, v{vLN}, 1, 2
    v_xor_b32 v{T[0]}, v{T[4]}, v{T[0]}
    v_lshl_add_u32 v{T[0]}, v{T[0]}, 4, v{T[3]}
    v_add_u32 v{vSW[0]}, s{sIMG}, v{T[0]}
    v_xor_b32 v{vSW[1]}, 32, v{vSW[0]}
    v_add_u32 v{T[0]}, 2, v{vLN}
    v_bfe_u32 v{T[0]}, v{T[0]}, 2, 2
    v_xor_b32 v{T[0]}, v{T[4]}, v{T[0]}
    v_lshl_add_u32 v{T[0]}, v{T[0]}, 4, v{T[3]}
    s_add_u32 s{sT0}, s{sT0}, {XB + 384}
    v_add_u32 v{vAR[0]}, s{sT0}, v{T[0]}
    v_xor_b32 v{vAR[1]}, 32, v{vAR[0]}
    ''')

a(f'''
s_mov_b32 exec_hi, -1
s_mul_i32 s{sIMG}, s{sWI}, 3072
s_add_u32 s{sIMG}, s{sIMG}, {S_IL}
s_mov_b32 s{sOB}, {OUTL}
''')
LS = opt('ls', '01002')
lsl = [(lambda: None) if CSE else conv_setup1, dma_setup, conv_setup2, late_setup, l_setup]
def lsetup(k):
    for f, c in zip(lsl, LS):
        if int(c) == k: f()
lsetup(0)
a(ap('Ls'))
pstamp(14)
a(f's_waitcnt vmcnt({NX0})')
bar()
for gi in range(3): tab_reads(gi, cv.ds)
lsetup(4)
a(f's_waitcnt vmcnt({NX0 - 4})')
a(ap('Ll'))
pstamp(9)
bar(2)
lsetup(1)
pstamp(10)
a(f's_waitcnt vmcnt({NX0 - 8})')
pstamp(11)
bar(3)
WP2 = opt('wp2', '2')
def wpf():
    a(f'''
    s_and_b32 s{sT0}, s{sWI}, 1
    s_cselect_b64 s[{sT1}:{sT2}], s[12:13], s[10:11]
    s_lshr_b32 s{sT0}, s2, 3
    s_lshl_b32 s{sT0}, s{sT0}, 1
    s_lshr_b32 s{sT3}, s{sWI}, 1
    s_add_u32 s{sT0}, s{sT0}, s{sT3}
    s_mul_i32 s{sT0}, s{sT0}, {10*128}
    v_lshl_add_u32 v{T[0]}, v{vLN}, 7, s{sT0}
    v_min_u32 v{T[0]}, {73728-128}, v{T[0]}
    s_mov_b64 exec, 0x3ff
    global_load_dword v226, v{T[0]}, s[{sT1}:{sT2}]
    s_mov_b64 exec, -1
    ''')
if WP2 == '1': wpf()
lsetup(2)
if WP2 == '2': wpf()
pstamp(12)
assert NX0 == 8
a('s_waitcnt lgkmcnt(0)')
pstamp(13)
bar(4)
a(f's_setprio {opt("lprio", 2)}')
RED, LNW = 1, 3
def raw_reads(R, ad, off=0):
    for ks in range(3):
        a(f'ds_read_b64 {vr(R+4*ks,2)}, v{ad} offset:{off+64*ks}')
        a(f'ds_read_b64 {vr(R+4*ks+2,2)}, v{ad+1} offset:{off+64*ks}')
def row_store(O, soff, P=vY[0], Q=vK[0]):
    for i in range(12):
        a(f'v_cvt_pk_bf16_f32 v{P+i}, v{O+2*i}, v{O+2*i+1}')
    for i in range(6):
        a(f'ds_write_b64 v{vSW[i&1]}, {vr(P+2*i,2)} offset:{64*(i>>1)}')
    for j in range(3):
        a(f'ds_read_b128 {vr(Q+4*j,4)}, v{vSR[j]}')
    for j in range(3):
        a(f's_waitcnt lgkmcnt({2-j})')
        a(f'buffer_store_dwordx4 {vr(Q+4*j,4)}, v{vL16}, {srd(sOUT)}, s{soff} offen offset:{1024*j}{STPOL}')
LP = opt('lp', 'k')
def lprio(c):
    if LP == 'n': return (0, 0) if c == 0 else None
    if LP == 's': return (1, 1) if c == 0 else None
    if LP == 'k':
        lo, hi = [int(x) for x in opt('lk', '0,7').split(',')]
        if lo <= c < hi: return (0, 1)
        return (0, 0) if c in (0, hi) else None
    return (0, int(LP))
def l_body(h13):
    global cv
    keep = cv
    cv = copy.copy(keep)
    sfx = 'a' if h13 else 'b'
    if h13:
        frags = [('F',4,[4]), ('F',5,[4,5]), ('F',6,[4,5,6]), ('F',7,[5,6]), ('E',4,[4,5]), ('F',8,[6]), ('L',6,[6])]; pairs = [4, 5, 6]
    else:
        frags = [('F',4,[4]), ('F',5,[4,5]), ('F',6,[4,5]), ('F',7,[5]), ('E',4,[4,5])]; pairs = [4, 5]
    if SPLIT:
        pre = stage(frags[:2])
        pre = cv.run(pre, len(pre) - int(opt('keepl', 2)))
        poll(GF, 1)
        frags = frags[2:]
    else:
        pre = []
    its = pre + stage(frags)
    add_pub(its, len(pre), len(frags), pairs)
    def resr():
        for i in range(6):
            cv.ds(f'ds_read_b64 {vr(RR+2*i,2)}, v{vAR[i&1]} offset:{10*XROW+64*(i>>1)}')
        if h13:
            for i in range(6):
                cv.ds(f'ds_read_b64 {vr(RR+12+2*i,2)}, v{vAR[i&1]} offset:{(14-RED)*XROW+64*(i>>1)}')
    if opt('lc'):
        nf = len(frags)
        for j, idx in ((9, 0), (10, nf - 1), (11, nf), (12, 2 * nf - 1), (13, 2 * nf)):
            its[idx]['post'] = lambda j=j: _st(j)
    if '3' in LS:
        cv.run(its, 0)
        lsetup(3)
    cv.run(its)
    stamp(6)
    signal(2)
    resr()
    stamp(5)
    poll(GL, 2)
    stamp(7)
    RAW = 168
    raw_reads(RAW, vA0)
    for i in range(12):
        a(f'v_lshlrev_b32 v{vO+2*i}, 16, v{RR+i}\nv_and_b32 v{vO+2*i+1}, 0xffff0000, v{RR+i}')
    if h13:
        a(f's_cmp_eq_u32 s{sWI}, {RED}\ns_cbranch_scc1 L_ri{sfx}')
        for i in range(12): a(f'v_mov_b64 {vr(vO+24+2*i,2)}, 0')
        a(f's_branch L_rj{sfx}')
        a.label(f'L_ri{sfx}')
        for i in range(12):
            a(f'v_lshlrev_b32 v{vO+24+2*i}, 16, v{RR+12+i}\nv_and_b32 v{vO+24+2*i+1}, 0xffff0000, v{RR+12+i}')
        a.label(f'L_rj{sfx}')
    signal(3)
    if h13: raw_reads(RAW + 12, vA2)
    a(f's_waitcnt lgkmcnt({7 if h13 else 1})')
    def l_mid2():
        a('s_waitcnt lgkmcnt(0)')
        check(GF, 2)
        l_w1reads(0)
    ln(RAW, 72, [vL + i for i in range(12)], True, lambda: peek(GF), l_mid2)
    if h13:
        a(f's_cmp_lg_u32 s{sWI}, {LNW}\ns_cbranch_scc1 L_nl12')
        ln(RAW + 12, 72, [RAW + 12 + i for i in range(12)], True)
        for ks in range(3):
            a(f'ds_write_b128 v{vARL}, {vr(RAW+12+4*ks,4)} offset:{64*ks}')
        a.label('L_nl12')
        signal(5)
    stamp(8)
    def l12r():
        for ks in range(3):
            a(f'ds_read_b128 {vr(vL+12+4*ks,4)}, v{vARL} offset:{64*ks}')
    def pub_rem():
        a(f's_cmp_eq_u32 s{sWI}, {RED}\ns_cbranch_scc1 L_np\ns_mul_i32 s{sT0}, s{sWI}, 6144\nv_add_u32 v{T[0]}, s{sT0}, v{vL16}')
        for i in range(6):
            a(f'ds_write_b128 v{T[0]}, {vr(vO+24+4*i,4)} offset:{S_R + 1024*i}')
        a.label('L_np')
        signal(9)
    H = {
      'start3': [lambda: peek(GL)],
      ('preT1', 0): [lambda: check(GL, 3)],
      ('T1', 0): [lambda: wdma(2, [0, 1, 2]), lambda: wdma(3, [0, 1, 2]), lambda: peek(GF)],
      ('preT2', 0): [lambda: check(GF, 3)],
      ('T2', 0): [lambda: wdma(2, [3, 4, 5])] + ([lambda: peek(GL)] if h13 else []),
      ('preT1', 1): [lambda: check(GL, 5)] if h13 else [],
      ('T1', 1): [lambda: wdma(3, [3, 4, 5]), lambda: stamp(9)] + ([l12r] if h13 else []),
      ('preT2', 1): [lambda: landed(6, 6)],
      ('T2', 1): [lambda: wdma(4, [0, 1, 2]), lambda: peek(GL)],
      ('preT1', 2): [lambda: check(GL, 6)],
      ('T1', 2): [lambda: wdma(4, [3, 4, 5])],
      ('T2', 2): [lambda: wdma(5, [0, 1, 2])],
      ('preT1', 3): [lambda: landed(9, 7)],
      ('T1', 3): [lambda: wdma(5, [3, 4, 5])],
      ('T1', 4): [lambda: peek(GL)],
      ('preT2', 4): [lambda: check(GL, 7), lambda: landed(0, 8)],
      ('T2', 5): [lambda: peek(GL)],
      ('preT1', 6): [lambda: check(GL, 8), lambda: stamp(10)],
      ('preT1', 8): [lambda: stamp(11)],
      ('preT1', 10): [lambda: stamp(12)],
    }
    if h13:
        H[('T2', 9)] = [lambda: peek(GF)]
        H[('preT1', 10)] = H[('preT1', 10)] + [lambda: check(GF, 4), pub_rem]
        def reduce12():
            a(f's_cmp_lg_u32 s{sWI}, {RED}\ns_cbranch_scc1 L_nored')
            poll(GL, 9)
            others = [w for w in range(4) if w != RED]
            R = [144, 48, 144]
            def rd(n):
                for i in range(6):
                    a(f'ds_read_b128 {vr(R[n]+4*i,4)}, v{vL16} offset:{S_R + 6144*others[n] + 1024*i}')
            def ad(n):
                if opt('redpk'):
                    for i in range(12):
                        a(f'v_pk_add_f32 {vr(vO+24+2*i,2)}, {vr(vO+24+2*i,2)}, {vr(R[n]+2*i,2)}')
                    return
                for i in range(24):
                    a(f'v_add_f32 v{vO+24+i}, v{vO+24+i}, v{R[n]+i}')
            rd(0); rd(1)
            a('s_waitcnt lgkmcnt(6)'); ad(0); rd(2)
            a('s_waitcnt lgkmcnt(6)'); ad(1)
            a('s_waitcnt lgkmcnt(0)'); ad(2)
            a(f's_add_u32 s{sO1}, s{sO0}, {(4-RED)*43008}')
            row_store(vO + 24, sO1, 48, 144)
            a.label('L_nored')
        H[('T1', 11)] = [reduce12]
        OB = opt('oddb', '8,12')
        if OB != 'n':
            o0, o1 = [int(x) for x in OB.split(',')]
            def boost():
                a(f's_cmp_lg_u32 s{sWI}, {RED}\ns_cbranch_scc1 L_nb\ns_setprio 1')
                a.label('L_nb')
            H.setdefault(('T2', o0), []).append(boost)
            if o1 < 12: H.setdefault(('T2', o1), []).append(lambda: a('s_setprio 0'))
    mlp16([3, 5, 8] if h13 else [], H, lprio)
    stamp(13)
    row_store(vO, sO0)
    finish()
    emit_slow()
    cv = keep
a(f's_cmp_lg_u32 s{sH13}, 13\ns_cbranch_scc1 L_L12')
l_body(True)
a.label('L_L12')
l_body(False)
a.label('L_end')
a('s_endpgm')

body = a.finalize()
hdr = open('cdna_kernels/' + NAME + '.s.ref').read().split('\n')
out = []
for l in hdr:
    if l.startswith('; @launch'):
        out.append('; @launch grid=(256,1,1) block=(512,1,1) lds=163840')
    elif l.startswith(';'):
        out.append(l)
    else:
        break
out.append('.amdgcn_target "amdgcn-amd-amdhsa--gfx950"')
out.append('.text')
out.append(f'.globl {NAME}_kernel')
out.append('.p2align 8')
out.append(f'.type {NAME}_kernel,@function')
out.append(f'{NAME}_kernel:')
for l in body:
    out.append(l if l.endswith(':') else '    ' + l)
out.append(f'''.section .rodata,"a"
.p2align 6
.amdhsa_kernel {NAME}_kernel
  .amdhsa_next_free_vgpr 256
  .amdhsa_next_free_sgpr 102
  .amdhsa_accum_offset 256
  .amdhsa_group_segment_fixed_size 0
  .amdhsa_kernarg_size 64
  .amdhsa_user_sgpr_count 2
  .amdhsa_user_sgpr_kernarg_segment_ptr 1
  .amdhsa_system_sgpr_workgroup_id_x 1
.end_amdhsa_kernel''')
print('\n'.join(out))
```

```python
import sys, struct, math, copy
from asmlib import Asm

NAME = "standalone__modern_conv_block_replknet__vision"
def fbits(x): return struct.unpack('<I', struct.pack('<f', x))[0]
def opt(name, default=None):
    for x in sys.argv:
        if x == '--' + name: return True
        if x.startswith('--' + name + '='): return x.split('=', 1)[1]
    return default
STAMP = opt('stamp'); CYC = opt('cyc'); PRO = opt('pro')
STPOL = ' ' + opt('stpol', 'sc1').replace('_', ' ') if opt('stpol', 'sc1') != 'none' else ''
FOLD = opt('fold', '1') == '1'
GL, GF = (1, 0) if FOLD else (0, 1)

XPOL = ' ' + opt('xpol').replace('_', ' ') if opt('xpol') else ''
XROW = 3840
XB = 73728
PS = 24576
TB, TP = 139264, 976
OUTF, OUTL = 49152, 147456
L12 = OUTL + 4*3072
FL = 163584
S_IF, S_R, S_IL = 0, 24576, OUTL
MARK = 0x40000000
XBYTES = 224 * 224 * 192

k0 = math.sqrt(2.0 / math.pi); k1 = 0.044715
c0 = 2 * k0 / math.log(2.0); c1 = c0 * k1
ga = c1 ** (1.0 / 3.0)
gc = -c0 / ga

sX, sDL, sDS, sW1, sW2, sOUT = 16, 20, 24, 28, 32, 36
sWV, sY0, sX0, sT0, sT1, sT2, sT3 = 40, 41, 42, 43, 44, 45, 46
sH13, sWI = 47, 3
sCA, sCC = 48, 50
sWS = 52
sXM, sIMG, sOB = 56, 57, 62
sWA, sWBm = 58, 59
sO0, sO1 = 60, 61
sST = 64
NST = 16
def srd(b): return f's[{b}:{b+3}]'
vO, vL, vY, vK, vG, vF1, vF2 = 0, 48, [72, 88], [104, 120], 136, 144, 168
vRES, vID = 204, 228
vAW1 = [236, 237, 245, 249]; vAW2 = 238
vLW1 = 204; vLW2 = 212
vDW1 = [220, 221]; vDW2 = [222, 223, 224]
vARL = 225
vSW = [239, 240]; vSR = [241, 242, 243]
vL16 = 244
vFA, vFW, vFP = 246, 247, 248
T = [250, 251, 252, 253, 254]
vLN = 255
vXO = 203; vPF = 54
vAF, vAE, vAO, vIDX, vTF0, vTF1, vTE, vAR, vAE16, vAO1 = 192, 193, 194, 195, 196, 197, 198, [199, 200], 201, 202
vACC, vAFR, vB = 0, 84, 144
def vr(b, n): return f'v[{b}:{b+n-1}]'

a = Asm()
def _st(i): a(f'{"s_memtime" if CYC else "s_memrealtime"} s[{sST+2*i}:{sST+2*i+1}]')
def pstamp(i):
    if STAMP and PRO and not opt('lc'): _st(i)
def ap(n):
    return 's_memrealtime s[88:89]' if opt('amp') == n else ''
def stamp(i):
    a(ap(str(i)))
    if i in (8, 13): hold(i)
    if STAMP and not (PRO and 9 <= i <= 14): _st(i)
def mksrd(b, lo, n):
    a(f's_mov_b64 s[{b}:{b+1}], s[{lo}:{lo+1}]\ns_mov_b32 s{b+2}, {n}\ns_mov_b32 s{b+3}, 0x00020000')
def hold(tag):
    h = opt('hold')
    if h and h.split(':')[0] == str(tag):
        n = nlab[0]; nlab[0] += 1
        a(f's_waitcnt lgkmcnt(0)\ns_add_u32 s92, s94, {h.split(":")[1]}')
        a.label(f'L_hold{n}')
        a(f's_memrealtime s[90:91]\ns_waitcnt lgkmcnt(0)\ns_sub_u32 s93, s92, s90\ns_cmp_gt_i32 s93, 0\ns_cbranch_scc1 L_hold{n}')
def bar(i=None):
    jitter()
    a('s_barrier')
    jitter()
    hold(i)
    if i is not None: stamp(i)
def setexec(lo, hi):
    a(f's_mov_b32 exec_lo, {lo:#x}\ns_mov_b32 exec_hi, {hi:#x}')

nlab = [0]; slow = []
def guard():
    if opt('safe'): a('s_sub_u32 s98, s98, 1\ns_cbranch_scc1 L_end')
def jitter():
    if opt('jitter'):
        n = nlab[0]; nlab[0] += 1
        a(f's_mul_i32 s86, s86, 1103515245\ns_add_u32 s86, s86, 12345\ns_lshr_b32 s87, s86, {opt("jitter")}')
        a.label(f'L_jit{n}')
        a(f's_sleep 2\ns_sub_u32 s87, s87, 1\ns_cbranch_scc0 L_jit{n}')
def signal(v, emit=None):
    jitter()
    a(f'v_mov_b32 v{T[4]}, {v}')
    (emit or a)(f'ds_write_b32 v{vFW}, v{T[4]}')
def poll(grp, v):
    lab = f'L_poll{nlab[0]}'; nlab[0] += 1
    a.label(lab)
    guard()
    a(f'ds_read_b32 v{vFP}, v{vFA} offset:{16*grp}\ns_waitcnt lgkmcnt(0)\nv_cmp_gt_u32 vcc, {v}, v{vFP}\ns_cbranch_vccnz {lab}')
def peek(grp): a(f'ds_read_b32 v{vFP}, v{vFA} offset:{16*grp}')
def check(grp, v):
    jitter()
    n = nlab[0]; nlab[0] += 1
    a(f'v_cmp_gt_u32 vcc, {v}, v{vFP}\ns_cbranch_vccnz L_slow{n}')
    a.label(f'L_back{n}')
    slow.append((n, grp, v))
def emit_slow():
    for n, grp, v in slow:
        a.label(f'L_slow{n}')
        guard()
        a(f'ds_read_b32 v{vFP}, v{vFA} offset:{16*grp}\ns_waitcnt lgkmcnt(0)\nv_cmp_gt_u32 vcc, {v}, v{vFP}\ns_cbranch_vccnz L_slow{n}\ns_branch L_back{n}')
    slow.clear()
def landed(n, v):
    a(f's_waitcnt vmcnt({n})'); signal(v)

def wdma(p, parts=range(6)):
    jitter()
    for i in parts:
        if i < 3:
            a(f'''
            s_add_u32 m0, s{sWBm}, {PS*p + 1024*i}
            s_add_u32 s{sT0}, s{sWA}, {6144*i + 128*p}
            buffer_load_dwordx4 v{vDW1[i & 1]}, {srd(sW1)}, s{sT0} offen lds
            ''')
        else:
            if i == 3 or i - 1 not in parts:
                a(f's_add_u32 m0, s{sWBm}, {PS*p + 12288}\ns_add_u32 s{sT0}, s{sWBm}, {12288*p}')
            a(f'buffer_load_dwordx4 v{vDW2[i-3]}, {srd(sW2)}, s{sT0} offen offset:{1024*(i-3)} lds')

def ln(raw, U, dst, rows16, mid=None, mid2=None):
    n = len(dst)
    S, Q, ONE = T[1], T[3], T[4]
    sc, bi = T[0], T[2]
    a(f'v_mov_b32 v{ONE}, 0x3f803f80')
    un = []
    for i in range(n):
        un.append(f'v_lshlrev_b32 v{U+2*i}, 16, v{raw+i}')
        un.append(f'v_and_b32 v{U+2*i+1}, 0xffff0000, v{raw+i}')
    while len(un) > 8: a(un.pop(0))
    for i in range(n):
        a(f'v_dot2_f32_bf16 v{S}, v{raw+i}, v{ONE}, {"0" if i == 0 else f"v{S}"}')
        a(f'v_dot2_f32_bf16 v{Q}, v{raw+i}, v{raw+i}, {"0" if i == 0 else f"v{Q}"}')
    def fill(k):
        for _ in range(k):
            if un: a(un.pop(0))
    fill(3)
    a(f'v_permlane32_swap_b32 v{S}, v{Q}')
    a(f'v_add_f32 v{S}, v{S}, v{Q}')
    if rows16:
        a(f'v_mov_b32 v{Q}, v{S}')
        fill(2)
        a(f'v_permlane16_swap_b32 v{S}, v{Q}')
        a(f'v_add_f32 v{S}, v{S}, v{Q}')
    a(f'v_mul_f32 v{S}, {fbits(1.0/96):#x}, v{S}')
    a(f'v_mov_b32 v{Q}, v{S}')
    fill(2)
    a(f'v_permlane32_swap_b32 v{S}, v{Q}')
    a(f'''
    v_fma_f32 v{Q}, -v{S}, v{S}, v{Q}
    v_max_f32 v{Q}, 0, v{Q}
    v_add_f32 v{Q}, {fbits(1e-5):#x}, v{Q}
    v_rsq_f32 v{Q}, v{Q}
    ''')
    fill(1)
    a(f'v_mul_f32 v{sc}, {fbits(ga):#x}, v{Q}')
    a(f'v_mul_f32 v{bi}, -v{S}, v{sc}')
    fill(1000)
    if mid: mid()
    for i in range(n):
        if opt('lnplain'):
            a(f'v_fma_f32 v{U+2*i}, v{U+2*i}, v{sc}, v{bi}\nv_fma_f32 v{U+2*i+1}, v{U+2*i+1}, v{sc}, v{bi}')
        else:
            a(f'v_pk_fma_f32 {vr(U+2*i,2)}, {vr(U+2*i,2)}, {vr(sc,2)}, {vr(bi,2)} op_sel_hi:[1,0,0]')
    if mid2: mid2()
    for i in range(n):
        a(f'v_cvt_pk_bf16_f32 v{dst[i]}, v{U+2*i}, v{U+2*i+1}')

def pk_t(Y, K, n):
    return [f'v_pk_fma_f32 {vr(K+2*i,2)}, {vr(Y+2*i,2)}, {vr(Y+2*i,2)}, s[{sCC}:{sCC+1}] neg_lo:[1,0,0] neg_hi:[1,0,0]' for i in range(n//2)] + pk_m(Y, K, n)
def pk_m(Y, K, n): return [f'v_pk_mul_f32 {vr(K+2*i,2)}, {vr(Y+2*i,2)}, {vr(K+2*i,2)}' for i in range(n//2)]
def pk_d(K, n): return [f'v_pk_fma_f32 {vr(K+2*i,2)}, {vr(K+2*i,2)}, s[{sCA}:{sCA+1}], s[{sCA}:{sCA+1}]' for i in range(n//2)]
def emit(l):
    for t in l: a(t)

def mlp32(hooks, prio):
    N = 12
    moved = {'w1': False, 'w2': False}
    def move(kind, c):
        if c >= 6 and not moved[kind]:
            for r in (vAW1 if kind == 'w1' else [vAW2]): a(f'v_add_u32 v{r}, {3*PS}, v{r}')
            moved[kind] = True
    def w1reads(c):
        for ks in range(6):
            off = ((c >> 1) % 3) * PS + (ks >> 1) * 4096 + (ks & 1) * 1024
            r = vAW1[(c & 1) + 2 * (ks & 1)]
            a(f'ds_read_b64_tr_b16 {vr(vF1+4*ks,2)}, v{r} offset:{off}')
            a(f'ds_read_b64_tr_b16 {vr(vF1+4*ks+2,2)}, v{r} offset:{off+512}')
    def w2reads(c):
        for i in range(6):
            ks2, mt = i // 3, i % 3
            off = ((c >> 1) % 3) * PS + (c & 1) * 6144 + ks2 * 3072 + mt * 64
            a(f'ds_read_b64_tr_b16 {vr(vF2+4*i,2)}, v{vAW2} offset:{off}')
            a(f'ds_read_b64_tr_b16 {vr(vF2+4*i+2,2)}, v{vAW2} offset:{off+1536}')
    def g1(c, ks):
        Y = vY[c & 1]
        a(f'v_mfma_f32_32x32x16_bf16 {vr(Y,16)}, {vr(vF1+4*ks,4)}, {vr(vL+4*ks,4)}, {"0" if ks == 0 else vr(Y,16)}')
    def g2(i):
        ks2, mt = i // 3, i % 3
        a(f'v_mfma_f32_32x32x16_bf16 {vr(vO+16*mt,16)}, {vr(vF2+4*i,4)}, {vr(vG+4*ks2,4)}, {vr(vO+16*mt,16)}')
    def resm(ks):
        j, mt = ks // 3, ks % 3
        a(f'v_mfma_f32_32x32x16_bf16 {vr(vO+16*mt,16)}, {vr(vID+4*j,4)}, {vr(vRES+4*(2*mt+j),4)}, {"0" if j == 0 else vr(vO+16*mt,16)}')
    def hook(k):
        for f in hooks.get(k, []): f()
    def pr(c, v):
        if prio(c) is not None: a(f's_setprio {prio(c)[v]}')
    hook('pre')
    a('s_waitcnt lgkmcnt(0)')
    for ks in range(6): g1(0, ks)
    w1reads(1)
    hook('start3')
    for c in range(N + 1):
        Y, K = vY[c & 1], vK[c & 1]
        Yp, Kp = vY[(c - 1) & 1], vK[(c - 1) & 1]
        pr(c, 1)
        if c >= 1: emit(pk_m(Yp, Kp, 16))
        if c < N: emit(pk_t(Y, K, 16))
        cv = [f'v_cvt_pk_bf16_f32 v{vG+i}, v{Kp+2*i}, v{Kp+2*i+1}' for i in range(8)] if c >= 1 else []
        if c == N:
            emit(cv)
            a('s_waitcnt lgkmcnt(0)')
            for i in (0, 3, 1, 4, 2, 5): g2(i)
            break
        ex = [f'v_exp_f32 v{K+i}, v{K+i}' for i in range(16)]
        rc = [f'v_rcp_f32 v{K+i}, v{K+i}' for i in range(16)]
        last = c + 1 >= N
        if c + 2 < N: move('w1', c + 2)
        move('w2', c)
        if c == 0:
            gaps = [ex[0:3], ex[3:6], ex[6:9], ex[9:12], ex[12:15], ex[15:16]]
            a('s_waitcnt lgkmcnt(0)')
            for j in range(6):
                g1(1, j); emit(gaps[j])
        elif not last:
            gaps = [cv[0:4] + ex[0:1], cv[4:8] + ex[1:2], ex[2:5], ex[5:8], ex[8:11], ex[11:14], ex[14:16]]
            for j in range(7):
                if j < 6: g1(c + 1, j)
                else: g2(0)
                if j == 5: a('s_waitcnt lgkmcnt(0)')
                emit(gaps[j])
        else:
            emit(cv); emit(ex[0:4])
            a('s_waitcnt lgkmcnt(0)')
            gaps = [ex[4:8], ex[8:12], ex[12:16]]
            for j in range(3):
                g2(j); emit(gaps[j])
        hook(('preT1', c))
        pr(c, 0)
        if c + 2 < N: w1reads(c + 2)
        hook(('T1', c))
        pr(c, 1)
        emit(pk_d(K, 16))
        if c == 0:
            gp = [rc[0:3], rc[3:6], rc[6:9], rc[9:12], rc[12:14], rc[14:16]]
            for j in range(6):
                resm(j)
                if j == 5: a('s_waitcnt lgkmcnt(0)')
                emit(gp[j])
        elif not last:
            gp = [rc[0:3], rc[3:6], rc[6:9], rc[9:12], rc[12:16]]
            for j in range(5):
                g2(j + 1)
                if j == 4: a('s_waitcnt lgkmcnt(0)')
                emit(gp[j])
        else:
            gp = [rc[0:3], rc[3:6], rc[6:16]]
            for j in range(3):
                g2(j + 3)
                if j == 2: w2reads(c)
                emit(gp[j])
        hook(('preT2', c))
        pr(c, 0)
        if not last: w2reads(c)
        hook(('T2', c))
    return w1reads

def f_w1reads0():
    for ks in range(6):
        off = (ks >> 1) * 4096 + (ks & 1) * 1024
        r = vAW1[2 * (ks & 1)]
        a(f'ds_read_b64_tr_b16 {vr(vF1+4*ks,2)}, v{r} offset:{off}')
        a(f'ds_read_b64_tr_b16 {vr(vF1+4*ks+2,2)}, v{r} offset:{off+512}')

def l_w1reads(s):
    for i in range(6):
        mt2, ks3 = i // 3, i % 3
        off = ((s >> 2) & 1) * 2 * PS + ks3 * 4096
        r = vLW1 + mt2 + 2 * (s & 3)
        a(f'ds_read_b64_tr_b16 {vr(vF1+4*i,2)}, v{r} offset:{off}')
        a(f'ds_read_b64_tr_b16 {vr(vF1+4*i+2,2)}, v{r} offset:{off+512}')

def mlp16(doubles, hooks, prio):
    N = 12
    def wid(s): return 0 if (s < 0 or s >= N) else (2 if s in doubles else 1)
    def move(base):
        for r in range(8): a(f'v_add_u32 v{base+r}, {4*PS}, v{base+r}')
    def w2reads(s):
        for i in range(6):
            off = ((s >> 2) & 1) * 2 * PS + 64 * (i >> 1)
            r = vLW2 + (i & 1) + 2 * (s & 3)
            a(f'ds_read_b64_tr_b16 {vr(vF2+4*i,2)}, v{r} offset:{off}')
            a(f'ds_read_b64_tr_b16 {vr(vF2+4*i+2,2)}, v{r} offset:{off+3072}')
    def m1(s):
        l = []
        for t in range(wid(s)):
            for j in range(6):
                mt2, ks3 = j & 1, j >> 1
                D = vY[s & 1] + 8 * t + 4 * mt2
                l.append(f'v_mfma_f32_16x16x32_bf16 {vr(D,4)}, {vr(vF1+4*(mt2*3+ks3),4)}, {vr(vL+12*t+4*ks3,4)}, {"0" if ks3 == 0 else vr(D,4)}')
        return l
    def m2(s):
        return [f'v_mfma_f32_16x16x32_bf16 {vr(vO+24*t+4*i,4)}, {vr(vF2+4*i,4)}, {vr(vG+4*t,4)}, {vr(vO+24*t+4*i,4)}' for t in range(wid(s)) for i in range(6)]
    def weave(ms, fl):
        fl = list(fl)
        if not ms:
            emit(fl); a('s_waitcnt lgkmcnt(0)'); return
        for j, m in enumerate(ms):
            a(m)
            if j == len(ms) - 1: a('s_waitcnt lgkmcnt(0)')
            k = -(-len(fl) // (len(ms) - j))
            emit(fl[:k]); fl = fl[k:]
    def hook(k):
        for f in hooks.get(k, []): f()
    def pr(c, v):
        if prio(c) is not None: a(f's_setprio {prio(c)[v]}')
    hook('pre')
    a('s_waitcnt lgkmcnt(0)')
    emit(m1(0))
    l_w1reads(1)
    hook('start3')
    for s in range(N + 1):
        Y, K = vY[s & 1], vK[s & 1]
        Yp, Kp = vY[(s - 1) & 1], vK[(s - 1) & 1]
        n, np_ = 8 * wid(s), 8 * wid(s - 1)
        pr(s, 1)
        emit(pk_m(Yp, Kp, np_))
        emit(pk_t(Y, K, n))
        cv = [f'v_cvt_pk_bf16_f32 v{vG+i}, v{Kp+2*i}, v{Kp+2*i+1}' for i in range(np_ // 2)]
        if s == N:
            emit(cv)
            a('s_waitcnt lgkmcnt(0)')
            emit(m2(N - 1))
            break
        ex = [f'v_exp_f32 v{K+i}, v{K+i}' for i in range(n)]
        rc = [f'v_rcp_f32 v{K+i}, v{K+i}' for i in range(n)]
        if s + 2 == 8: move(vLW1)
        if s == 8: move(vLW2)
        if s == 0: a('s_waitcnt lgkmcnt(0)')
        weave(m1(s + 1), cv + ex)
        hook(('preT1', s))
        pr(s, 0)
        if s + 2 < N: l_w1reads(s + 2)
        hook(('T1', s))
        pr(s, 1)
        emit(pk_d(K, n))
        weave(m2(s - 1), rc)
        hook(('preT2', s))
        pr(s, 0)
        w2reads(s)
        hook(('T2', s))

def finish():
    if opt('amp'):
        n = nlab[0]; nlab[0] += 1
        if opt('amp') == 'end': a(f's_waitcnt vmcnt(0)\ns_memrealtime s[88:89]\ns_mov_b32 s{sH13}, 13')
        a(f's_waitcnt vmcnt(0) lgkmcnt(0)\ns_sub_u32 s92, s88, s94\ns_lshl_b32 s92, s92, 2\ns_cmp_eq_u32 s88, 0\ns_cselect_b32 s92, 0, s92')
        a(f's_cmp_eq_u32 s{sH13}, {opt("amprows", 13)}\ns_cselect_b32 s92, s92, 0\ns_add_u32 s92, s92, 1400\ns_add_u32 s92, s92, s94')
        a.label(f'L_amp{n}')
        a(f's_memrealtime s[90:91]\ns_waitcnt lgkmcnt(0)\ns_sub_u32 s93, s92, s90\ns_cmp_gt_i32 s93, 0\ns_cbranch_scc1 L_amp{n}')
    if STAMP:
        stamp(14)
        a('s_waitcnt vmcnt(0)')
        stamp(15)
        a('s_waitcnt lgkmcnt(0)')
        if opt('dbg'):
            n = nlab[0]; nlab[0] += 1
            a(f's_cmp_lg_u32 s2, {opt("dbg")}\ns_cbranch_scc1 L_nd{n}\ns_cmp_lg_u32 s{sWI}, 0\ns_cbranch_scc1 L_nd{n}')
            a(f's_lshl_b32 s{sT0}, s{sWV}, 3\nv_mov_b32 v{T[1]}, s{sT0}\ns_mov_b64 exec, 1')
            for k, i in enumerate((1, 2, 3, 4, 8, 10, 13, 15)):
                a(f's_sub_u32 s{sT0}, s{sST+2*i}, s{sST}\nv_mov_b32 v{T[0]}, s{sT0}')
                a(f'buffer_store_dword v{T[0]}, v{T[1]}, {srd(sWS)}, 0 offen offset:{4*k}')
            a.label(f'L_nd{n}')
            a('s_endpgm')
            return
        a(f'''
        s_lshl_b32 s{sT0}, s2, 3
        s_add_u32 s{sT0}, s{sT0}, s{sWV}
        s_lshl_b32 s{sT0}, s{sT0}, 6
        v_mov_b32 v{T[1]}, s{sT0}
        s_mov_b64 exec, 1
        ''')
        for i in range(NST):
            a(f'v_mov_b32 v{T[0]}, s{sST+2*i}')
            a(f'buffer_store_dword v{T[0]}, v{T[1]}, {srd(sWS)}, 0 offen offset:{4*i}')
    a('s_endpgm')

def tab_reads(gi, em):
    A = vAFR + 20 * gi; o = 64 * gi
    for d in range(3):
        em(f'ds_read_b64_tr_b16 {vr(A+4*d,2)}, v{vTF0} offset:{o + 2*d*TP}')
        em(f'ds_read_b64_tr_b16 {vr(A+4*d+2,2)}, v{vTF1} offset:{o + 2*d*TP}')
    for par in range(2):
        for pp in range(2):
            em(f'ds_read_b64_tr_b16 {vr(A+12+4*par+2*pp,2)}, v{vTE} offset:{o + (pp - 2*par + 2)*TP}')
RING = 6
class Conv:
    def __init__(self, k0): self.n = 0; self.slot = 0; self.k0 = k0
    def acc(self, gi, k): return vACC + 16 * gi + 4 * (k - self.k0)
    def ds(self, t): a(t); self.n += 1; return self.n
    def wait(self, seq): a(f's_waitcnt lgkmcnt({min(15, self.n - seq)})')
    def reads(self, it):
        B = it['B']; go = 64 * it['gi']; idx = it['idx']; kind = it['kind']
        if kind == 'F':
            r0, r1 = 2 * idx, min(2 * idx + 1, 16)
            return [f'ds_read_b128 {vr(B,4)}, v{vAF} offset:{r0*XROW+go}', f'ds_read_b128 {vr(B+4,4)}, v{vAF} offset:{r1*XROW+go}']
        if kind == 'E':
            return [f'ds_read_b128 {vr(B,4)}, v{vAE} offset:{2*idx*XROW+go}', f'ds_read_b128 {vr(B+4,4)}, v{vAE} offset:{(2*idx+4)*XROW+go}']
        return [f'ds_read_b128 {vr(B,4)}, v{vAE} offset:{12*XROW+go}', f'ds_read_b128 {vr(B+4,4)}, v{vAE16} offset:{16*XROW+go}']
    def cvt(self, lst):
        for gi, k in lst:
            A = self.acc(gi, k)
            a(f'v_cvt_pk_bf16_f32 v{A}, v{A}, v{A+1}\nv_cvt_pk_bf16_f32 v{A+1}, v{A+2}, v{A+3}')
    def write(self, lst):
        for gi, k in lst:
            A = self.acc(gi, k)
            if k == 6: setexec(0xffff, 0xffff)
            self.ds(f'ds_write_b64 v{vAO}, {vr(A,2)} offset:{(k-self.k0)*6144+64*gi}')
            if k == 6: a('s_mov_b64 exec, -1')
    def run(self, items, stop_at=None):
        D = RING - 1
        nxt = 0
        while nxt < len(items) and 'seq' in items[nxt]: nxt += 1
        def start(j):
            items[j]['B'] = vB + 8 * (self.slot % RING); self.slot += 1
            return self.reads(items[j])
        while nxt < min(D, len(items)):
            for t in start(nxt): items[nxt]['seq'] = self.ds(t)
            nxt += 1
        end = len(items) if stop_at is None else stop_at
        for i in range(end):
            it = items[i]
            self.wait(it['seq'])
            pend = start(nxt) if nxt < len(items) else []
            A = vAFR + 20 * it['gi']
            had = bool(pend)
            for k in it['outs']:
                fr = (it['idx'] - k) if it['kind'] == 'F' else 3 + (k - it['idx'])
                a(f'v_smfmac_f32_16x16x64_bf16 {vr(self.acc(it["gi"], k),4)}, {vr(A+4*fr,4)}, {vr(it["B"],8)}, v{vIDX}')
                if pend: items[nxt]['seq'] = self.ds(pend.pop(0))
            for t in pend: items[nxt]['seq'] = self.ds(t)
            if had: nxt += 1
            if it.get('pub'):
                self.cvt(it['pub'])
                if not it.get('nowrite'): self.write(it['pub'])
            if it.get('post'): it['post']()
        return items[end:]
def stage(frags): return [dict(gi=gi, kind=k, idx=i, outs=list(o)) for gi in range(3) for (k, i, o) in frags]
def add_pub(items, base, nfr, pairs, nowrite=False):
    for gi in range(3):
        j = min(base + nfr * (gi + 1), len(items) - 1)
        items[j].setdefault('pub', []).extend((gi, k) for k in pairs)
        items[j]['nowrite'] = nowrite

def late_setup():
    mksrd(sOUT, 14, XBYTES)
    if opt('safe'): a('s_mov_b32 s98, 200000')
    a(f'''
    s_mov_b32 s{sCA}, {fbits(ga):#x}
    s_mov_b32 s{sCA+1}, {fbits(ga):#x}
    s_mov_b32 s{sCC}, {fbits(gc):#x}
    s_mov_b32 s{sCC+1}, {fbits(gc):#x}
    s_add_u32 s{sT0}, s{sWI}, s{sY0}
    s_mul_i32 s{sT0}, s{sT0}, 224
    s_add_u32 s{sT0}, s{sT0}, s{sX0}
    s_mul_i32 s{sO0}, s{sT0}, 192
    ''')
    if STAMP:
        a(f's_mov_b32 s{sWS+2}, {256 if opt("dbg") else 0x10000000}\ns_mov_b32 s{sWS+3}, 0x00020000')
        for i in (7,): a(f's_mov_b32 s{sST+2*i}, 0')
    for j in range(3):
        a(f'''
        v_add_u32 v{T[0]}, {64*j}, v{vLN}
        v_mul_u32_u24 v{T[2]}, 171, v{T[0]}
        v_bfe_u32 v{T[2]}, v{T[2]}, 12, 2
        v_xor_b32 v{T[0]}, v{T[0]}, v{T[2]}
        v_lshl_add_u32 v{vSR[j]}, v{T[0]}, 4, s{sIMG}
        ''')

def conv_setup1():
    a(f'''
; table read: source lane r=(l>>2)&3, chalf=(l>>1)&1, s=l&1, qa=l>>4; tbl=r&1; valid iff (r>>1)==chalf
v_and_b32 v{T[0]}, 3, v{vLN}
v_mul_u32_u24 v{vIDX}, 0x5555, v{T[0]}
s_lshl_b32 s{sT2}, s{sWI}, 4
s_add_u32 s{sT2}, s{sT2}, {TB}
v_bfe_u32 v{T[1]}, v{vLN}, 1, 1
v_lshl_add_u32 v{T[4]}, v{T[1]}, 3, s{sT2}
v_and_b32 v{T[0]}, 1, v{vLN}
v_lshrrev_b32 v{T[1]}, 5, v{vLN}
v_mul_u32_u24 v{vTE}, {TP}, v{T[1]}
v_sub_u32 v{T[1]}, v{T[1]}, v{T[0]}
v_bfe_u32 v{T[2]}, v{vLN}, 2, 1
v_mul_u32_u24 v{T[2]}, 7, v{T[2]}
v_sub_u32 v{T[1]}, v{T[1]}, v{T[2]}
v_add_u32 v{T[1]}, 8, v{T[1]}
v_mul_u32_u24 v{T[1]}, {TP}, v{T[1]}
v_bfe_u32 v{T[2]}, v{vLN}, 4, 1
v_mul_u32_u24 v{T[2]}, 192, v{T[2]}
v_add3_u32 v{T[3]}, v{T[1]}, v{T[2]}, v{T[4]}
v_lshrrev_b32 v{T[1]}, 4, v{vLN}
v_lshlrev_b32 v{T[2]}, 1, v{T[1]}
v_sub_u32 v{T[2]}, v{T[2]}, v{T[0]}
v_add_u32 v{T[2]}, 6, v{T[2]}
v_mul_u32_u24 v{T[2]}, {TP}, v{T[2]}
v_add_u32 v{vTF0}, s{sT2}, v{vTE}
v_add_u32 v{vTF1}, {TP}, v{vTF0}
v_mov_b32 v{vTE}, s{sT2}
s_mov_b32 exec_lo, 0xcc33cc33
s_mov_b32 exec_hi, 0xcc33cc33
v_mov_b32 v{vTF0}, v{T[3]}
v_add_u32 v{vTF1}, 384, v{T[3]}
s_mov_b32 exec_lo, 0x0c030c03
s_mov_b32 exec_hi, 0x0c030c03
v_add_u32 v{T[2]}, 768, v{T[2]}
v_add_u32 v{vTE}, v{T[2]}, v{T[4]}
s_mov_b64 exec, -1
v_and_b32 v{T[0]}, 15, v{vLN}
v_bfe_u32 v{T[2]}, v{vLN}, 4, 1
v_lshrrev_b32 v{T[3]}, 5, v{vLN}
v_lshl_add_u32 v{T[2]}, v{T[2]}, 1, v{T[3]}
v_add_u32 v{T[2]}, v{T[0]}, v{T[2]}
v_bfe_u32 v{T[3]}, v{T[2]}, 2, 2
v_xor_b32 v{T[3]}, s{sWI}, v{T[3]}
v_mul_u32_u24 v{T[2]}, 192, v{T[2]}
v_lshl_add_u32 v{vAF}, v{T[3]}, 4, v{T[2]}
v_add_u32 v{vAF}, {XB}, v{vAF}
''')
def conv_setup2(em=None):
    for i in range(24): a(f'v_mov_b64 {vr(vACC+2*i,2)}, 0')
    a(f'''
v_and_b32 v{T[0]}, 3, v{vLN}
v_lshlrev_b32 v{vFA}, 2, v{T[0]}
v_add_u32 v{vFA}, {FL}, v{vFA}
s_lshl_b32 s{sT0}, s{sWV}, 2
s_add_u32 s{sT0}, s{sT0}, {FL}
v_mov_b32 v{vFW}, s{sT0}
v_mov_b32 v{vFP}, 0
ds_write_b32 v{vFW}, v{vFP}
v_and_b32 v{T[0]}, 15, v{vLN}
v_lshrrev_b32 v{T[1]}, 4, v{vLN}
v_add_u32 v{T[2]}, 4, v{T[0]}
v_bfe_u32 v{T[3]}, v{T[2]}, 2, 2
v_xor_b32 v{T[3]}, s{sWI}, v{T[3]}
v_mul_u32_u24 v{T[2]}, 192, v{T[2]}
v_lshl_add_u32 v{vAE}, v{T[3]}, 4, v{T[2]}
v_add_u32 v{vAE16}, {XB}, v{vAE}
v_mul_u32_u24 v{T[2]}, {XROW}, v{T[1]}
v_add_u32 v{vAE}, v{vAE16}, v{T[2]}
v_bfe_u32 v{T[3]}, v{T[0]}, 2, 2
v_xor_b32 v{T[4]}, s{sWI}, v{T[3]}
v_mul_u32_u24 v{T[2]}, 192, v{T[0]}
v_lshl_add_u32 v{T[2]}, v{T[4]}, 4, v{T[2]}
v_bfe_u32 v{T[1]}, v{vLN}, 4, 1
v_mul_u32_u24 v{T[1]}, 3072, v{T[1]}
v_lshrrev_b32 v{T[3]}, 5, v{vLN}
v_bfe_u32 v{T[4]}, v{vLN}, 1, 1
v_xor_b32 v{T[3]}, v{T[3]}, v{T[4]}
v_lshl_add_u32 v{T[1]}, v{T[3]}, 3, v{T[1]}
v_add3_u32 v{vAO}, v{T[2]}, v{T[1]}, s{sOB}
''')

def dma_setup():
    mksrd(sW1, 10, 73728); mksrd(sW2, 12, 73728)
    a(f'''
    v_lshrrev_b32 v{T[0]}, 3, v{vLN}
    v_mul_u32_u24 v{T[0]}, 768, v{T[0]}
    v_bfe_u32 v{T[1]}, v{vLN}, 4, 1
    v_lshlrev_b32 v{T[1]}, 2, v{T[1]}
    v_and_b32 v{T[2]}, 7, v{vLN}
    v_xor_b32 v{T[1]}, v{T[1]}, v{T[2]}
    v_lshl_add_u32 v{T[0]}, v{T[1]}, 4, v{T[0]}
    s_and_b32 s{sT1}, s{sWI}, 1
    s_lshl_b32 s{sT0}, s{sT1}, 5
    v_xor_b32 v{vDW1[0]}, s{sT0}, v{T[0]}
    v_xor_b32 v{vDW1[1]}, 32, v{vDW1[0]}
    v_mov_b32 v{vDW2[0]}, v{vL16}
    v_mov_b32 v{vDW2[1]}, v{vL16}
    v_mov_b32 v{vDW2[2]}, v{vL16}
    s_mov_b32 exec_lo, 0xffff0000
    v_xor_b32 v{vDW2[2]}, 32, v{vL16}
    s_mov_b32 exec_lo, 0
    s_mov_b32 exec_hi, 0xffff0000
    v_xor_b32 v{vDW2[0]}, 32, v{vL16}
    s_mov_b32 exec_lo, -1
    s_mov_b32 exec_hi, 0
    v_xor_b32 v{vDW2[1]}, 32, v{vL16}
    s_mov_b64 exec, -1
    s_mul_i32 s{sWA}, s{sWI}, {3*6144}
    s_mul_i32 s{sWBm}, s{sWI}, 3072
    ''')

TM = opt('touch', '12o')
TOUCH = chr(10).join(t for k, t in (('l', 's_load_dword s76, s[6:7], 0'), ('x', f's_load_dword s77, s[4:5], s{sT0}'), ('1', 's_load_dword s78, s[10:11], 0'),
        ('2', 's_load_dword s79, s[12:13], 0'), ('o', f's_load_dword s80, s[14:15], s{sT0}')) if k in TM)
isF = 's_cmp_lt_u32' if FOLD else 's_cmp_ge_u32'
a(f'''
s_load_dwordx4 s[4:7], s[0:1], 0
s_load_dwordx4 s[8:11], s[0:1], 16
s_load_dwordx4 s[12:15], s[0:1], 32
s_getpc_b64 s[100:101]
L_pc:
''')
if STAMP: a(f's_load_dwordx2 s[{sWS}:{sWS+1}], s[0:1], {48 if opt("dbg") else 56}')
stamp(0)
if opt('jitter'): a('s_memtime s[86:87]\ns_waitcnt lgkmcnt(0)\nv_readfirstlane_b32 s87, v0\ns_nop 4\ns_mul_i32 s87, s87, 7919\ns_xor_b32 s86, s86, s87')
if opt('hold') or opt('amp'): a('s_memrealtime s[94:95]\ns_mov_b32 s88, 0')
PFM = opt('pf', 'h'); CSE = False
a(f"""
v_lshrrev_b32 v{T[0]}, 6, v0
s_cmp_ge_u32 s2, 256
s_cbranch_scc1 L_end
v_and_b32 v{vLN}, 63, v0
s_lshr_b32 s{sT1}, s2, 3
v_readfirstlane_b32 s{sWV}, v{T[0]}
s_and_b32 s{sT2}, s2, 1
s_add_u32 s{sT2}, s{sT2}, s{sT1}
s_cmp_ge_u32 s{sT2}, 32
s_cbranch_scc1 L_end
{isF} s{sWV}, 4
s_cbranch_scc1 L_e1
s_setprio 3
L_e1:
s_and_b32 s{sT0}, s2, 3
v_mul_u32_u24 v{T[0]}, 43, v{vLN}
s_mul_i32 s{sT0}, s{sT0}, 63
s_add_u32 s{sT0}, s{sT0}, 1
v_lshrrev_b32 v{T[0]}, 9, v{T[0]}
s_lshr_b32 s{sT0}, s{sT0}, 1
s_add_u32 s{sT0}, s{sT0}, s{sT1}
v_mad_i32_i24 v{T[1]}, v{T[0]}, -12, v{vLN}
s_mul_i32 s{sT1}, s{sT0}, 9363
s_lshr_b32 s{sT1}, s{sT1}, 16
s_and_b32 s{sWI}, s{sWV}, 3
s_bfe_u32 s{sT2}, s2, 0x10002
s_sub_u32 s{sT2}, s{sT2}, s{sT1}
s_mul_i32 s{sT2}, s{sT2}, 7
v_mad_u32_u24 v{T[0]}, s{sWI}, 5, v{T[0]}
s_add_u32 s{sT0}, s{sT0}, s{sT2}
s_lshl_b32 s{sX0}, s{sT0}, 4
v_bfe_u32 v{T[2]}, v{T[0]}, 2, 2
s_mul_i32 s{sH13}, s{sT1}, {112*7282}
v_xor_b32 v{T[1]}, v{T[1]}, v{T[2]}
s_lshr_b32 s{sY0}, s{sH13}, 16
v_add3_u32 v{T[0]}, v{T[0]}, s{sX0}, -2
s_mov_b32 s99, 43008
v_mul_u32_u24 v{T[2]}, 192, v{T[0]}
s_sub_u32 s{sT1}, s{sY0}, 2
v_cmp_gt_u32 vcc, 224, v{T[0]}
s_mul_i32 s{sT1}, s{sT1}, s99
v_lshl_add_u32 v{T[2]}, v{T[1]}, 4, v{T[2]}
v_mov_b32 v{T[4]}, {MARK}
s_mul_i32 s{sXM}, s{sWI}, 960
v_cndmask_b32 v{vXO}, v{T[4]}, v{T[2]}, vcc
s_mov_b32 s{sX+2}, {XBYTES}
s_mov_b32 s{sX+3}, 0x00020000
v_add_u32 v{vXO}, s{sT1}, v{vXO}
{isF} s{sWV}, 4
s_cbranch_scc1 L_F0
s_add_u32 m0, s{sXM}, {XB}
s_movk_i32 s97, {XROW}
s_mov_b32 exec_hi, 0x0fffffff
s_waitcnt lgkmcnt(0)
{ap('Lk')}
s_mov_b64 s[{sX}:{sX+1}], s[4:5]
""")
def h13fin():
    a(f"""
    s_add_u32 s{sH13}, s{sH13}, {112*7282}
    s_lshr_b32 s{sH13}, s{sH13}, 16
    s_sub_u32 s{sH13}, s{sH13}, s{sY0}
    """)
def l_tables():
    a(f"""
    ; tables: A = 5x5 row i ; B = 3x3 row i (i<3, lanes 12..47) or 5x5 row 4 (i==3)
    v_lshlrev_b32 v{T[3]}, 4, v{vLN}
    s_mov_b32 s96, m0
    s_mov_b32 s{sDS+2}, 4800
    s_mov_b32 s{sDS+3}, 0x00020000
    s_mul_i32 s{sT3}, s{sWI}, {TP}
    s_mov_b64 s[{sDS}:{sDS+1}], s[8:9]
    s_add_u32 m0, s{sT3}, {TB + 8*TP}
    s_mov_b32 s{sDL+3}, 0x00020000
    buffer_load_dwordx4 v{T[3]}, {srd(sDS)}, s{sXM} offen lds
    s_mul_i32 s{sT2}, s{sWI}, 576
    s_sub_u32 s{sT2}, s{sT2}, 192
    s_add_u32 s{sT1}, s{sT3}, {TB + 2*TP}
    s_cmp_eq_u32 s{sWI}, 3
    s_cselect_b32 s{sDL+2}, s{sDS+2}, 1728
    s_cselect_b32 s{sT2}, 3840, s{sT2}
    s_cselect_b32 m0, {TB + 12*TP}, s{sT1}
    s_cselect_b64 s[{sDL}:{sDL+1}], s[8:9], s[6:7]
    s_cselect_b32 exec_lo, -1, 0xfffff000
    s_cselect_b32 exec_hi, -1, 0xffff
    v_add_u32 v{T[4]}, s{sT2}, v{T[3]}
    s_mov_b32 exec_lo, -1
    s_mov_b32 exec_hi, 0x0fffffff
    buffer_load_dwordx4 v{T[4]}, {srd(sDL)}, 0 offen lds
    s_mov_b32 m0, s96
    """)
xl = [0]
def xrows(n):
    for _ in range(n):
        t = xl[0]; xl[0] += 1
        if t:
            a('s_add_u32 m0, m0, s97')
            a(f'v_add_u32 v{vXO}, s99, v{vXO}')
        a(f'buffer_load_dwordx4 v{vXO}, {srd(sX)}, 0 offen{XPOL} lds')
NX0 = int(opt('nx0', 8))
TPOS = int(opt('tpos', 2))
xrows(TPOS)
l_tables()
xrows(NX0 - TPOS)
a('s_setprio 0')
a(ap('Li'))
stamp(1)
a(f'''
s_branch L_L
L_F0:
; ---- F: conv weight tables, rows w and w+4 of both
''')
h13fin()
if PFM == 'h':
    a(f'''
    s_cmp_eq_u32 s{sH13}, 13
    s_cbranch_scc1 L_nopf
    s_bfe_u32 s{sT3}, s2, 0x20003
    s_lshl_b32 s{sT3}, s{sT3}, 2
    s_add_u32 s{sT3}, s{sT3}, s{sWI}
    s_mul_i32 s{sT3}, s{sT3}, {20*128}
    v_lshl_add_u32 v{T[2]}, v{vLN}, 7, s{sT3}
    v_min_u32 v{T[2]}, L_end-L_pc, v{T[2]}
    s_mov_b64 exec, 0xfffff
    global_load_dword v{vPF}, v{T[2]}, s[100:101]
    s_mov_b64 exec, -1
    L_nopf:
    ''')
a(f'''
s_setprio {opt("fprio", 2)}
v_lshlrev_b32 v{vL16}, 4, v{vLN}
s_mul_i32 s{sIMG}, s{sWI}, 6144
s_mov_b32 s{sOB}, {OUTF}
s_cmp_lg_u32 s{sWI}, 0
s_cbranch_scc1 L_nozero
v_add_u32 v{T[0]}, {TB}, v{vL16}
v_mov_b64 v[0:1], 0
v_mov_b64 v[2:3], 0
''')
for off in (0, 2*TP - 1024, 5*TP, 5*TP + 1024, 8*TP - 1024, 13*TP, 13*TP + 1024, 16*TP - 1024):
    a(f'ds_write_b128 v{T[0]}, v[0:3] offset:{off}')
a(f'''
L_nozero:
''')
def f_karg():
    a(f's_mul_i32 s{sT0}, s{sY0}, 43008\ns_waitcnt lgkmcnt(0)\n{TOUCH}')
WPF = opt('wpf', '0') == '1'
if PFM in ('f', 'g'):
    if PFM == 'g': a(f's_cmp_eq_u32 s{sH13}, 13\ns_cselect_b32 s97, 1, 0xfffff')
    a(f'''
    s_bfe_u32 s{sT3}, s2, 0x20003
    s_lshl_b32 s{sT3}, s{sT3}, 2
    s_add_u32 s{sT3}, s{sT3}, s{sWI}
    s_mul_i32 s{sT3}, s{sT3}, {20*128}
    v_lshl_add_u32 v{T[1]}, v{vLN}, 7, s{sT3}
    v_min_u32 v{T[1]}, L_end-L_pc, v{T[1]}
    {'s_mov_b64 exec, 0xfffff' if PFM == 'f' else f's_cmp_eq_u32 s{sH13}, 13'+chr(10)+f's_cselect_b32 s{sT3}, 0, -1'+chr(10)+f'v_and_b32 v{T[1]}, s{sT3}, v{T[1]}'+chr(10)+'s_mov_b32 exec_lo, s97'+chr(10)+'s_mov_b32 exec_hi, 0'}
    global_load_dword v{vPF}, v{T[1]}, s[100:101]
    s_mov_b64 exec, -1
    ''')
if WPF:
    a(f'''
    s_and_b32 s{sT0}, s{sWI}, 1
    s_cselect_b64 s[{sT1}:{sT2}], s[12:13], s[10:11]
    s_lshr_b32 s{sT0}, s2, 3
    s_lshl_b32 s{sT0}, s{sT0}, 1
    s_lshr_b32 s{sT3}, s{sWI}, 1
    s_add_u32 s{sT0}, s{sT0}, s{sT3}
    s_mul_i32 s{sT0}, s{sT0}, {10*128}
    v_lshl_add_u32 v{T[0]}, v{vLN}, 7, s{sT0}
    v_min_u32 v{T[0]}, {73728-128}, v{T[0]}
    s_mov_b64 exec, 0x3ff
    global_load_dword v{vPF-1}, v{T[0]}, s[{sT1}:{sT2}]
    s_mov_b64 exec, -1
    ''')
a(ap('Ft'))
if opt('amp') == 'tab': a('s_waitcnt vmcnt(0)'); a(ap('tab'))
if not CSE: conv_setup1()
a(ap('Fc'))
OPF = opt('opf', '0') == '1'
if OPF:
    a(f'''
    s_mov_b64 exec, 1
    buffer_load_dword v{vPF-2}, v{vL16}, {srd(sOUT)}, s{sO0} offen
    s_mov_b64 exec, -1
    ''')
vFR = [48, 49, 50, 51]
vDW1[:] = [56, 57]; vDW2[:] = [58, 59, 60]
def f_setup1():
    a(f'''
    s_add_u32 s{sO1}, s{sO0}, {4*43008}
    v_lshrrev_b32 v{T[4]}, 5, v{vLN}
    v_bfe_u32 v{T[0]}, v{vLN}, 2, 2
    v_bfe_u32 v{T[1]}, v{vLN}, 4, 1
    v_and_b32 v{T[2]}, 3, v{vLN}
    v_lshl_add_u32 v{T[3]}, v{T[4]}, 4, v{T[0]}
    v_lshlrev_b32 v{T[3]}, 7, v{T[3]}
    v_lshl_add_u32 v{T[3]}, v{T[1]}, 5, v{T[3]}
    v_lshl_add_u32 v{T[3]}, v{T[2]}, 3, v{T[3]}
    v_bfe_u32 v{T[2]}, v{vLN}, 3, 1
    v_lshl_add_u32 v{vAW1[0]}, v{T[2]}, 6, v{T[3]}
    v_xor_b32 v{vAW1[1]}, 64, v{vAW1[0]}
    v_xor_b32 v{vAW1[2]}, 32, v{vAW1[0]}
    v_xor_b32 v{vAW1[3]}, 0x60, v{vAW1[0]}
    v_lshl_add_u32 v{T[3]}, v{T[4]}, 2, v{T[0]}
    v_mul_u32_u24 v{T[3]}, 192, v{T[3]}
    v_lshl_add_u32 v{T[3]}, v{T[1]}, 4, v{T[3]}
    v_and_b32 v{T[2]}, 1, v{vLN}
    v_xor_b32 v{T[2]}, v{T[2]}, v{T[4]}
    v_lshl_add_u32 v{T[3]}, v{T[2]}, 5, v{T[3]}
    v_bfe_u32 v{T[2]}, v{vLN}, 1, 1
    v_lshl_add_u32 v{T[3]}, v{T[2]}, 3, v{T[3]}
    v_add_u32 v{vAW2}, 12288, v{T[3]}
    s_mul_i32 s{sT2}, s{sWI}, 3072
    s_add_u32 s{sT2}, s{sT2}, {OUTF}
    s_mul_i32 s{sT1}, s{sWI}, {XROW}
    s_add_u32 s{sT1}, s{sT1}, {XB + 2*XROW + 384}
    v_lshlrev_b32 v{T[4]}, 1, v{T[4]}
    v_xor_b32 v{T[0]}, v{T[4]}, v{T[0]}
    v_and_b32 v{T[3]}, 15, v{vLN}
    v_mul_u32_u24 v{T[3]}, 192, v{T[3]}
    v_lshl_add_u32 v{T[0]}, v{T[0]}, 4, v{T[3]}
    v_lshl_add_u32 v{T[0]}, v{T[2]}, 3, v{T[0]}
    v_mul_u32_u24 v{T[2]}, {4*3072}, v{T[1]}
    v_add3_u32 v{vFR[0]}, v{T[0]}, v{T[2]}, s{sT2}
    v_xor_b32 v{vFR[1]}, 8, v{vFR[0]}
    v_xor_b32 v{vFR[2]}, 16, v{vFR[0]}
    v_xor_b32 v{vFR[3]}, 24, v{vFR[0]}
    v_add_u32 v{T[0]}, 2, v{vLN}
    v_bfe_u32 v{T[0]}, v{T[0]}, 2, 2
    v_xor_b32 v{T[0]}, v{T[4]}, v{T[0]}
    v_lshl_add_u32 v{T[0]}, v{T[0]}, 4, v{T[3]}
    v_mul_u32_u24 v{T[2]}, {4*XROW}, v{T[1]}
    v_add3_u32 v{vAR[0]}, v{T[0]}, v{T[2]}, s{sT1}
    v_xor_b32 v{vAR[1]}, 16, v{vAR[0]}
    v_bfe_u32 v{T[0]}, v{vLN}, 1, 2
    v_xor_b32 v{T[0]}, v{T[4]}, v{T[0]}
    v_lshl_add_u32 v{T[0]}, v{T[0]}, 4, v{T[3]}
    v_mul_u32_u24 v{T[2]}, 3072, v{T[1]}
    v_add3_u32 v{vSW[0]}, v{T[0]}, v{T[2]}, s{sIMG}
    v_xor_b32 v{vSW[1]}, 16, v{vSW[0]}
    ''')
def f_setup2():
    a(f'''
    v_and_b32 v{T[1]}, 1, v{vLN}
    v_lshlrev_b32 v{T[1]}, 4, v{T[1]}
    v_mov_b32 v{T[2]}, 0x3f80
    v_lshlrev_b32 v{T[1]}, v{T[1]}, v{T[2]}
    ''')
    for i in range(4): a(f'v_mov_b64 {vr(vID+2*i,2)}, 0')
    for i in range(8):
        pos = 16 * (i >> 2) + 8 * ((i >> 1) & 1) + 2 * (i & 1)
        setexec(3 << pos, 3 << (pos + 4))
        a(f'v_mov_b32 v{vID+i}, v{T[1]}')
    a('s_mov_b64 exec, -1')
FS = opt('fs', '00000')
def cs2k():
    conv_setup2(); f_setup2(); f_karg()
fsl = [cs2k, late_setup, lambda: None, f_setup1, dma_setup]
def fsetup(k):
    for f, c in zip(fsl, FS):
        if int(c) == k: f()
FXP = int(opt('fxp', 5))
def f_rows(n=None):
    if xl[0] >= 17: return
    if xl[0] == NX0:
        a(f'''
        s_add_u32 m0, s{sXM}, {XB + (NX0-1)*XROW}
        s_movk_i32 s97, {XROW}
        v_add_u32 v{vXO}, {(NX0-1)*43008}, v{vXO}
        s_mov_b64 s[{sX}:{sX+1}], s[4:5]
        ''')
    a('s_mov_b32 exec_hi, 0x0fffffff')
    xrows(min(17 - xl[0], n or 99))
    a('s_mov_b32 exec_hi, -1')
FRP = 'a'
for item in reversed([x for x in opt('fb', '1:4').split(',') if x]):
    pos, cnt = [int(v) for v in item.split(':')]
    fsl.insert(pos, lambda cnt=cnt: f_rows(cnt)); FS = FS[:pos] + '0' + FS[pos:]
fsetup(0)
a(ap('Fs'))
stamp(1)
a('s_waitcnt lgkmcnt(0)')
a(ap('Fl'))
pstamp(9)
bar()
a(ap('Bt'))
cv = Conv(0)
for gi in range(3): tab_reads(gi, cv.ds)
if FRP == 'a': f_rows()
fsetup(3)
bar(2)
S0 = stage([('F',0,[0]), ('F',1,[0,1])])
cv.run(S0, 0)
def res_half(s):
    m = 0xffff0000 if s else 0xffff
    setexec(m, m)
    for ks in range(6):
        cv.ds(f'ds_read_b128 {vr(vRES+4*ks,4)}, v{vAR[ks&1]} offset:{64*(ks>>1)}')
    a('s_mov_b64 exec, -1')
def run_stage(left, frags, pairs, keep=0, mid=None):
    its = left + stage(frags)
    if pairs: add_pub(its, len(left), len(frags), pairs)
    if mid: its[mid[0]]['post'] = mid[1]
    return cv.run(its, len(its) - keep)
left = cv.run(S0, len(S0) - int(opt('keep0', 0)))
fsetup(1)
pstamp(10)
bar(3)
left = run_stage(left, [('F',2,[0,1,2]), ('F',3,[1,2,3]), ('E',0,[0,1])], [0, 1])
fsetup(2)
SPLIT = opt('split', '0') == '1'
a(f's_waitcnt vmcnt({5 if SPLIT else 0})')
pstamp(11)
bar(4)
a(f's_setprio {opt("fprio2", 3)}')
left = run_stage(left, [('F',4,[2,3]), ('F',5,[3]), ('E',2,[2,3])], [2, 3])
a(ap('Fa'))
a('s_waitcnt vmcnt(0)')
signal(1)
a(ap('F1'))
wdma(0, [0, 1, 2])
stamp(5)
poll(GF, 1)
RA = 168
for ks in range(6):
    a(f'ds_read_b64 {vr(RA+4*ks,2)}, v{vFR[2*(ks&1)]} offset:{64*(ks>>1)}')
    a(f'ds_read_b64 {vr(RA+4*ks+2,2)}, v{vFR[2*(ks&1)+1]} offset:{64*(ks>>1)}')
a(f's_setprio {opt("fprio3", 1)}')
wdma(1, [0, 1, 2])
a('s_waitcnt lgkmcnt(0)')
stamp(6)
def f_mid():
    for ks in range(6):
        a(f'ds_read_b128 {vr(vRES+4*ks,4)}, v{vAR[ks&1]} offset:{64*(ks>>1)}')
    landed(0, 2)
    wdma(0, [3, 4, 5]); wdma(1, [3, 4, 5])
    peek(GF)
def f_mid2():
    a('s_waitcnt lgkmcnt(0)')
    check(GF, 2)
    f_w1reads0()
ln(RA, 72, [vL + i for i in range(24)], False, f_mid, f_mid2)
a(ap('Fm'))
stamp(8)
XH = {
  'start3': [lambda: landed(0, 3)],
  ('T1', 0): [lambda: peek(GF)],
  ('preT2', 0): [lambda: check(GF, 3)],
  ('T1', 1): [lambda: stamp(9)],
  ('T2', 1): [lambda: peek(GL)],
  ('preT1', 2): [lambda: check(GL, 6)],
  ('preT1', 4): [lambda: signal(4)],
  ('T1', 4): [lambda: peek(GL)],
  ('preT2', 4): [lambda: check(GL, 7)],
  ('T2', 5): [lambda: peek(GL)],
  ('preT1', 6): [lambda: check(GL, 8), lambda: stamp(10)],
  ('preT1', 8): [lambda: stamp(11)],
  ('T2', 8): [lambda: peek(GF)],
  ('preT1', 9): [lambda: check(GF, 4)],
  ('preT1', 10): [lambda: stamp(12)],
}
FP = opt('fp', 'n')
def fprio(c):
    if FP == 'n': return (0, 0) if c == 0 else None
    if FP == 's': return (1, 1) if c == 0 else None
    return (0, int(FP))
mlp32(XH, fprio)
stamp(13)
P = vY[0]; Q = vK[0]
for mt in range(3):
    for i in range(8):
        a(f'v_cvt_pk_bf16_f32 v{P+8*mt+i}, v{vO+16*mt+2*i}, v{vO+16*mt+2*i+1}')
    a(f'ds_write_b128 v{vSW[0]}, {vr(P+8*mt,4)} offset:{64*mt}')
    a(f'ds_write_b128 v{vSW[1]}, {vr(P+8*mt+4,4)} offset:{64*mt}')
for s in range(2):
    for j in range(3):
        a(f'ds_read_b128 {vr(Q+4*(3*s+j),4)}, v{vSR[j]} offset:{3072*s}')
for s in range(2):
    for j in range(3):
        a(f's_waitcnt lgkmcnt({5-(3*s+j)})')
        a(f'buffer_store_dwordx4 {vr(Q+4*(3*s+j),4)}, v{vL16}, {srd(sOUT)}, s{sO1 if s else sO0} offen offset:{1024*j}{STPOL}')
finish()
emit_slow()

a.label('L_L')
cv = Conv(4)
vDW1[:] = [220, 221]; vDW2[:] = [222, 223, 224]
vA0, vA2 = 48, 50
RR = 60
def l_setup():
    a(f'''
    s_add_u32 s{sO0}, s{sO0}, {8*43008}
    s_and_b32 s{sT1}, s{sWI}, 1
    v_lshrrev_b32 v{T[4]}, 4, v{vLN}
    v_bfe_u32 v{T[0]}, v{vLN}, 2, 2
    v_and_b32 v{T[2]}, 3, v{vLN}
    v_bfe_u32 v{T[1]}, v{vLN}, 4, 1
    v_lshlrev_b32 v{T[2]}, 3, v{T[2]}
    v_lshl_add_u32 v{T[2]}, v{T[1]}, 5, v{T[2]}
    v_lshl_add_u32 v{T[3]}, v{T[4]}, 3, v{T[0]}
    v_lshl_add_u32 v{T[3]}, v{T[3]}, 7, v{T[2]}
    v_bfe_u32 v{T[1]}, v{vLN}, 3, 1
    v_xor_b32 v{T[1]}, s{sT1}, v{T[1]}
    v_lshl_add_u32 v{T[3]}, v{T[1]}, 6, v{T[3]}
    s_lshr_b32 s{sT2}, s{sWI}, 1
    s_mul_i32 s{sT2}, s{sT2}, {PS}
    s_sub_u32 s{sT3}, {PS}, s{sT2}
    v_add_u32 v{vLW1}, s{sT2}, v{T[3]}
    v_add_u32 v{vLW1+4}, s{sT3}, v{T[3]}
    v_xor_b32 v{vLW1+1}, 32, v{vLW1}
    v_xor_b32 v{vLW1+2}, 64, v{vLW1}
    v_xor_b32 v{vLW1+3}, 0x60, v{vLW1}
    v_xor_b32 v{vLW1+5}, 32, v{vLW1+4}
    v_xor_b32 v{vLW1+6}, 64, v{vLW1+4}
    v_xor_b32 v{vLW1+7}, 0x60, v{vLW1+4}
    v_lshl_add_u32 v{T[3]}, v{T[4]}, 2, v{T[0]}
    v_mul_u32_u24 v{T[3]}, 192, v{T[3]}
    v_add_u32 v{T[3]}, v{T[3]}, v{T[2]}
    s_mul_i32 s{sT1}, s{sT1}, 6144
    s_add_u32 s{sT2}, s{sT2}, 12288
    s_add_u32 s{sT3}, s{sT3}, 12288
    s_add_u32 s{sT0}, s{sT2}, s{sT1}
    v_add_u32 v{vLW2}, s{sT0}, v{T[3]}
    s_add_u32 s{sT0}, s{sT3}, s{sT1}
    v_add_u32 v{vLW2+4}, s{sT0}, v{T[3]}
    s_sub_u32 s{sT1}, 6144, s{sT1}
    s_add_u32 s{sT0}, s{sT2}, s{sT1}
    v_add_u32 v{vLW2+2}, s{sT0}, v{T[3]}
    s_add_u32 s{sT0}, s{sT3}, s{sT1}
    v_add_u32 v{vLW2+6}, s{sT0}, v{T[3]}
    v_xor_b32 v{vLW2+1}, 32, v{vLW2}
    v_xor_b32 v{vLW2+3}, 32, v{vLW2+2}
    v_xor_b32 v{vLW2+5}, 32, v{vLW2+4}
    v_xor_b32 v{vLW2+7}, 32, v{vLW2+6}
    v_xor_b32 v{T[0]}, v{T[4]}, v{T[0]}
    v_and_b32 v{T[3]}, 15, v{vLN}
    v_mul_u32_u24 v{T[3]}, 192, v{T[3]}
    v_lshl_add_u32 v{T[0]}, v{T[0]}, 4, v{T[3]}
    v_add_u32 v{vARL}, {L12}, v{T[0]}
    v_bfe_u32 v{T[1]}, v{vLN}, 1, 1
    v_lshl_add_u32 v{T[0]}, v{T[1]}, 3, v{T[0]}
    v_add_u32 v{vA2}, {L12}, v{T[0]}
    v_xor_b32 v{vA2+1}, 8, v{vA2}
    v_add_u32 v{vA0}, s{sIMG}, v{T[0]}
    v_xor_b32 v{vA0+1}, 8, v{vA0}
    s_mul_i32 s{sT0}, s{sWI}, {XROW}
    v_bfe_u32 v{T[1]}, v{vLN}, 4, 1
    v_lshl_add_u32 v{T[3]}, v{T[1]}, 3, v{T[3]}
    v_lshrrev_b32 v{T[4]}, 5, v{vLN}
    v_bfe_u32 v{T[0]}, v{vLN}, 1, 2
    v_xor_b32 v{T[0]}, v{T[4]}, v{T[0]}
    v_lshl_add_u32 v{T[0]}, v{T[0]}, 4, v{T[3]}
    v_add_u32 v{vSW[0]}, s{sIMG}, v{T[0]}
    v_xor_b32 v{vSW[1]}, 32, v{vSW[0]}
    v_add_u32 v{T[0]}, 2, v{vLN}
    v_bfe_u32 v{T[0]}, v{T[0]}, 2, 2
    v_xor_b32 v{T[0]}, v{T[4]}, v{T[0]}
    v_lshl_add_u32 v{T[0]}, v{T[0]}, 4, v{T[3]}
    s_add_u32 s{sT0}, s{sT0}, {XB + 384}
    v_add_u32 v{vAR[0]}, s{sT0}, v{T[0]}
    v_xor_b32 v{vAR[1]}, 32, v{vAR[0]}
    ''')

a(f'''
s_mov_b32 exec_hi, -1
v_lshlrev_b32 v{vL16}, 4, v{vLN}
s_mul_i32 s{sIMG}, s{sWI}, 3072
s_add_u32 s{sIMG}, s{sIMG}, {S_IL}
s_mov_b32 s{sOB}, {OUTL}
''')
h13fin()
LS = opt('ls', '01002')
lsl = [(lambda: None) if CSE else conv_setup1, dma_setup, conv_setup2, late_setup, l_setup]
def lsetup(k):
    for f, c in zip(lsl, LS):
        if int(c) == k: f()
lsetup(0)
a(ap('Ls'))
pstamp(14)
a(f's_waitcnt vmcnt({NX0 - TPOS})')
bar()
for gi in range(3): tab_reads(gi, cv.ds)
lsetup(4)
a(f's_waitcnt vmcnt({NX0 - 4})')
a(ap('Ll'))
pstamp(9)
bar(2)
lsetup(1)
pstamp(10)
a(f's_waitcnt vmcnt({NX0 - 8})')
pstamp(11)
bar(3)
WP2 = opt('wp2', '2')
def wpf():
    a(f'''
    s_and_b32 s{sT0}, s{sWI}, 1
    s_cselect_b64 s[{sT1}:{sT2}], s[12:13], s[10:11]
    s_lshr_b32 s{sT0}, s2, 3
    s_lshl_b32 s{sT0}, s{sT0}, 1
    s_lshr_b32 s{sT3}, s{sWI}, 1
    s_add_u32 s{sT0}, s{sT0}, s{sT3}
    s_mul_i32 s{sT0}, s{sT0}, {10*128}
    v_lshl_add_u32 v{T[0]}, v{vLN}, 7, s{sT0}
    v_min_u32 v{T[0]}, {73728-128}, v{T[0]}
    s_mov_b64 exec, 0x3ff
    global_load_dword v226, v{T[0]}, s[{sT1}:{sT2}]
    s_mov_b64 exec, -1
    ''')
if WP2 == '1': wpf()
lsetup(2)
if WP2 == '2': wpf()
pstamp(12)
assert NX0 == 8
a('s_waitcnt lgkmcnt(0)')
pstamp(13)
bar(4)
a(f's_setprio {opt("lprio", 2)}')
RED, LNW = 1, 3
def raw_reads(R, ad, off=0):
    for ks in range(3):
        a(f'ds_read_b64 {vr(R+4*ks,2)}, v{ad} offset:{off+64*ks}')
        a(f'ds_read_b64 {vr(R+4*ks+2,2)}, v{ad+1} offset:{off+64*ks}')
def row_store(O, soff, P=vY[0], Q=vK[0]):
    for i in range(12):
        a(f'v_cvt_pk_bf16_f32 v{P+i}, v{O+2*i}, v{O+2*i+1}')
    for i in range(6):
        a(f'ds_write_b64 v{vSW[i&1]}, {vr(P+2*i,2)} offset:{64*(i>>1)}')
    for j in range(3):
        a(f'ds_read_b128 {vr(Q+4*j,4)}, v{vSR[j]}')
    for j in range(3):
        a(f's_waitcnt lgkmcnt({2-j})')
        a(f'buffer_store_dwordx4 {vr(Q+4*j,4)}, v{vL16}, {srd(sOUT)}, s{soff} offen offset:{1024*j}{STPOL}')
LP = opt('lp', 'k')
def lprio(c):
    if LP == 'n': return (0, 0) if c == 0 else None
    if LP == 's': return (1, 1) if c == 0 else None
    if LP == 'k':
        lo, hi = [int(x) for x in opt('lk', '0,7').split(',')]
        if lo <= c < hi: return (0, 1)
        return (0, 0) if c in (0, hi) else None
    return (0, int(LP))
def l_body(h13):
    global cv
    keep = cv
    cv = copy.copy(keep)
    sfx = 'a' if h13 else 'b'
    if h13:
        frags = [('F',4,[4]), ('F',5,[4,5]), ('F',6,[4,5,6]), ('F',7,[5,6]), ('E',4,[4,5]), ('F',8,[6]), ('L',6,[6])]; pairs = [4, 5, 6]
    else:
        frags = [('F',4,[4]), ('F',5,[4,5]), ('F',6,[4,5]), ('F',7,[5]), ('E',4,[4,5])]; pairs = [4, 5]
    if SPLIT:
        pre = stage(frags[:2])
        pre = cv.run(pre, len(pre) - int(opt('keepl', 2)))
        poll(GF, 1)
        frags = frags[2:]
    else:
        pre = []
    its = pre + stage(frags)
    add_pub(its, len(pre), len(frags), pairs)
    def resr():
        for i in range(6):
            cv.ds(f'ds_read_b64 {vr(RR+2*i,2)}, v{vAR[i&1]} offset:{10*XROW+64*(i>>1)}')
        if h13:
            for i in range(6):
                cv.ds(f'ds_read_b64 {vr(RR+12+2*i,2)}, v{vAR[i&1]} offset:{(14-RED)*XROW+64*(i>>1)}')
    if opt('lc'):
        nf = len(frags)
        for j, idx in ((9, 0), (10, nf - 1), (11, nf), (12, 2 * nf - 1), (13, 2 * nf)):
            its[idx]['post'] = lambda j=j: _st(j)
    if '3' in LS:
        cv.run(its, 0)
        lsetup(3)
    cv.run(its)
    stamp(6)
    signal(2)
    resr()
    stamp(5)
    poll(GL, 2)
    stamp(7)
    RAW = 168
    raw_reads(RAW, vA0)
    for i in range(12):
        a(f'v_lshlrev_b32 v{vO+2*i}, 16, v{RR+i}\nv_and_b32 v{vO+2*i+1}, 0xffff0000, v{RR+i}')
    if h13:
        a(f's_cmp_eq_u32 s{sWI}, {RED}\ns_cbranch_scc1 L_ri{sfx}')
        for i in range(12): a(f'v_mov_b64 {vr(vO+24+2*i,2)}, 0')
        a(f's_branch L_rj{sfx}')
        a.label(f'L_ri{sfx}')
        for i in range(12):
            a(f'v_lshlrev_b32 v{vO+24+2*i}, 16, v{RR+12+i}\nv_and_b32 v{vO+24+2*i+1}, 0xffff0000, v{RR+12+i}')
        a.label(f'L_rj{sfx}')
    signal(3)
    if h13: raw_reads(RAW + 12, vA2)
    a(f's_waitcnt lgkmcnt({7 if h13 else 1})')
    def l_mid2():
        a('s_waitcnt lgkmcnt(0)')
        check(GF, 2)
        l_w1reads(0)
    ln(RAW, 72, [vL + i for i in range(12)], True, lambda: peek(GF), l_mid2)
    if h13:
        a(f's_cmp_lg_u32 s{sWI}, {LNW}\ns_cbranch_scc1 L_nl12')
        ln(RAW + 12, 72, [RAW + 12 + i for i in range(12)], True)
        for ks in range(3):
            a(f'ds_write_b128 v{vARL}, {vr(RAW+12+4*ks,4)} offset:{64*ks}')
        a.label('L_nl12')
        signal(5)
    stamp(8)
    def l12r():
        for ks in range(3):
            a(f'ds_read_b128 {vr(vL+12+4*ks,4)}, v{vARL} offset:{64*ks}')
    def pub_rem():
        a(f's_cmp_eq_u32 s{sWI}, {RED}\ns_cbranch_scc1 L_np\ns_mul_i32 s{sT0}, s{sWI}, 6144\nv_add_u32 v{T[0]}, s{sT0}, v{vL16}')
        for i in range(6):
            a(f'ds_write_b128 v{T[0]}, {vr(vO+24+4*i,4)} offset:{S_R + 1024*i}')
        a.label('L_np')
        signal(9)
    H = {
      'start3': [lambda: peek(GL)],
      ('preT1', 0): [lambda: check(GL, 3)],
      ('T1', 0): [lambda: wdma(2, [0, 1, 2]), lambda: wdma(3, [0, 1, 2]), lambda: peek(GF)],
      ('preT2', 0): [lambda: check(GF, 3)],
      ('T2', 0): [lambda: wdma(2, [3, 4, 5])] + ([lambda: peek(GL)] if h13 else []),
      ('preT1', 1): [lambda: check(GL, 5)] if h13 else [],
      ('T1', 1): [lambda: wdma(3, [3, 4, 5]), lambda: stamp(9)] + ([l12r] if h13 else []),
      ('preT2', 1): [lambda: landed(6, 6)],
      ('T2', 1): [lambda: wdma(4, [0, 1, 2]), lambda: peek(GL)],
      ('preT1', 2): [lambda: check(GL, 6)],
      ('T1', 2): [lambda: wdma(4, [3, 4, 5])],
      ('T2', 2): [lambda: wdma(5, [0, 1, 2])],
      ('preT1', 3): [lambda: landed(9, 7)],
      ('T1', 3): [lambda: wdma(5, [3, 4, 5])],
      ('T1', 4): [lambda: peek(GL)],
      ('preT2', 4): [lambda: check(GL, 7), lambda: landed(0, 8)],
      ('T2', 5): [lambda: peek(GL)],
      ('preT1', 6): [lambda: check(GL, 8), lambda: stamp(10)],
      ('preT1', 8): [lambda: stamp(11)],
      ('preT1', 10): [lambda: stamp(12)],
    }
    if h13:
        H[('T2', 9)] = [lambda: peek(GF)]
        H[('preT1', 10)] = H[('preT1', 10)] + [lambda: check(GF, 4), pub_rem]
        def reduce12():
            a(f's_cmp_lg_u32 s{sWI}, {RED}\ns_cbranch_scc1 L_nored')
            poll(GL, 9)
            others = [w for w in range(4) if w != RED]
            R = [144, 48, 144]
            def rd(n):
                for i in range(6):
                    a(f'ds_read_b128 {vr(R[n]+4*i,4)}, v{vL16} offset:{S_R + 6144*others[n] + 1024*i}')
            def ad(n):
                if opt('redpk'):
                    for i in range(12):
                        a(f'v_pk_add_f32 {vr(vO+24+2*i,2)}, {vr(vO+24+2*i,2)}, {vr(R[n]+2*i,2)}')
                    return
                for i in range(24):
                    a(f'v_add_f32 v{vO+24+i}, v{vO+24+i}, v{R[n]+i}')
            rd(0); rd(1)
            a('s_waitcnt lgkmcnt(6)'); ad(0); rd(2)
            a('s_waitcnt lgkmcnt(6)'); ad(1)
            a('s_waitcnt lgkmcnt(0)'); ad(2)
            a(f's_add_u32 s{sO1}, s{sO0}, {(4-RED)*43008}')
            row_store(vO + 24, sO1, 48, 144)
            a.label('L_nored')
        H[('T1', 11)] = [reduce12]
        OB = opt('oddb', '8,12')
        if OB != 'n':
            o0, o1 = [int(x) for x in OB.split(',')]
            def boost():
                a(f's_cmp_lg_u32 s{sWI}, {RED}\ns_cbranch_scc1 L_nb\ns_setprio 1')
                a.label('L_nb')
            H.setdefault(('T2', o0), []).append(boost)
            if o1 < 12: H.setdefault(('T2', o1), []).append(lambda: a('s_setprio 0'))
    mlp16([3, 5, 8] if h13 else [], H, lprio)
    stamp(13)
    row_store(vO, sO0)
    finish()
    emit_slow()
    cv = keep
a(f's_cmp_lg_u32 s{sH13}, 13\ns_cbranch_scc1 L_L12')
l_body(True)
a.label('L_L12')
l_body(False)
a.label('L_end')
a('s_endpgm')

body = a.finalize()
hdr = open('cdna_kernels/' + NAME + '.s.ref').read().split('\n')
out = []
for l in hdr:
    if l.startswith('; @launch'):
        out.append('; @launch grid=(256,1,1) block=(512,1,1) lds=163840')
    elif l.startswith(';'):
        out.append(l)
    else:
        break
out.append('.amdgcn_target "amdgcn-amd-amdhsa--gfx950"')
out.append('.text')
out.append(f'.globl {NAME}_kernel')
out.append('.p2align 8')
out.append(f'.type {NAME}_kernel,@function')
out.append(f'{NAME}_kernel:')
for l in body:
    out.append(l if l.endswith(':') else '    ' + l)
out.append(f'''.section .rodata,"a"
.p2align 6
.amdhsa_kernel {NAME}_kernel
  .amdhsa_next_free_vgpr 256
  .amdhsa_next_free_sgpr 102
  .amdhsa_accum_offset 256
  .amdhsa_group_segment_fixed_size 0
  .amdhsa_kernarg_size 64
  .amdhsa_user_sgpr_count 2
  .amdhsa_user_sgpr_kernarg_segment_ptr 1
  .amdhsa_system_sgpr_workgroup_id_x 1
.end_amdhsa_kernel''')
print('\n'.join(out))
```

```python
import sys, struct, math, copy
from asmlib import Asm

NAME = "standalone__modern_conv_block_replknet__vision"
def fbits(x): return struct.unpack('<I', struct.pack('<f', x))[0]
def opt(name, default=None):
    for x in sys.argv:
        if x == '--' + name: return True
        if x.startswith('--' + name + '='): return x.split('=', 1)[1]
    return default
STAMP = opt('stamp'); CYC = opt('cyc'); PRO = opt('pro')
STPOL = ' ' + opt('stpol', 'sc1').replace('_', ' ') if opt('stpol', 'sc1') != 'none' else ''
FOLD = opt('fold', '1') == '1'
GL, GF = (1, 0) if FOLD else (0, 1)

XPOL = ' ' + opt('xpol').replace('_', ' ') if opt('xpol') else ''
XROW = 3840
XB = 73728
PS = 24576
TB, TP = 139264, 976
OUTF, OUTL = 49152, 147456
L12 = OUTL + 4*3072
FL = 163584
S_IF, S_R, S_IL = 0, 24576, OUTL
MARK = 0x40000000
XBYTES = 224 * 224 * 192

k0 = math.sqrt(2.0 / math.pi); k1 = 0.044715
c0 = 2 * k0 / math.log(2.0); c1 = c0 * k1
ga = c1 ** (1.0 / 3.0)
gc = -c0 / ga

sX, sDL, sDS, sW1, sW2, sOUT = 16, 20, 24, 28, 32, 36
sWV, sY0, sX0, sT0, sT1, sT2, sT3 = 40, 41, 42, 43, 44, 45, 46
sH13, sWI = 47, 3
sCA, sCC = 48, 50
sWS = 52
sXM, sIMG, sOB = 56, 57, 62
sWA, sWBm = 58, 59
sO0, sO1 = 60, 61
sST = 64
NST = 16
def srd(b): return f's[{b}:{b+3}]'
vO, vL, vY, vK, vG, vF1, vF2 = 0, 48, [72, 88], [104, 120], 136, 144, 168
vRES, vID = 204, 228
vAW1 = [236, 237, 245, 249]; vAW2 = 238
vLW1 = 204; vLW2 = 212
vDW1 = [220, 221]; vDW2 = [222, 223, 224]
vARL = 225
vSW = [239, 240]; vSR = [241, 242, 243]
vL16 = 244
vFA, vFW, vFP = 246, 247, 248
T = [250, 251, 252, 253, 254]
vLN = 255
vXO = 203; vPF = 54
vAF, vAE, vAO, vIDX, vTF0, vTF1, vTE, vAR, vAE16, vAO1 = 192, 193, 194, 195, 196, 197, 198, [199, 200], 201, 202
vACC, vAFR, vB = 0, 84, 144
def vr(b, n): return f'v[{b}:{b+n-1}]'

a = Asm()
def _st(i): a(f'{"s_memtime" if CYC else "s_memrealtime"} s[{sST+2*i}:{sST+2*i+1}]')
def pstamp(i):
    if STAMP and PRO and not opt('lc'): _st(i)
def ap(n):
    return 's_memrealtime s[88:89]' if opt('amp') == n else ''
def stamp(i):
    a(ap(str(i)))
    if i in (8, 13): hold(i)
    if STAMP and not (PRO and 9 <= i <= 14): _st(i)
def mksrd(b, lo, n):
    a(f's_mov_b64 s[{b}:{b+1}], s[{lo}:{lo+1}]\ns_mov_b32 s{b+2}, {n}\ns_mov_b32 s{b+3}, 0x00020000')
def hold(tag):
    h = opt('hold')
    if h and h.split(':')[0] == str(tag):
        n = nlab[0]; nlab[0] += 1
        a(f's_waitcnt lgkmcnt(0)\ns_add_u32 s92, s94, {h.split(":")[1]}')
        a.label(f'L_hold{n}')
        a(f's_memrealtime s[90:91]\ns_waitcnt lgkmcnt(0)\ns_sub_u32 s93, s92, s90\ns_cmp_gt_i32 s93, 0\ns_cbranch_scc1 L_hold{n}')
def bar(i=None):
    jitter()
    a('s_barrier')
    jitter()
    hold(i)
    if i is not None: stamp(i)
def setexec(lo, hi):
    a(f's_mov_b32 exec_lo, {lo:#x}\ns_mov_b32 exec_hi, {hi:#x}')

nlab = [0]; slow = []
def guard():
    if opt('safe'): a('s_sub_u32 s98, s98, 1\ns_cbranch_scc1 L_end')
def jitter():
    if opt('jitter'):
        n = nlab[0]; nlab[0] += 1
        a(f's_mul_i32 s86, s86, 1103515245\ns_add_u32 s86, s86, 12345\ns_lshr_b32 s87, s86, {opt("jitter")}')
        a.label(f'L_jit{n}')
        a(f's_sleep 2\ns_sub_u32 s87, s87, 1\ns_cbranch_scc0 L_jit{n}')
def signal(v, emit=None):
    jitter()
    a(f'v_mov_b32 v{T[4]}, {v}')
    (emit or a)(f'ds_write_b32 v{vFW}, v{T[4]}')
def poll(grp, v):
    lab = f'L_poll{nlab[0]}'; nlab[0] += 1
    a.label(lab)
    guard()
    a(f'ds_read_b32 v{vFP}, v{vFA} offset:{16*grp}\ns_waitcnt lgkmcnt(0)\nv_cmp_gt_u32 vcc, {v}, v{vFP}\ns_cbranch_vccnz {lab}')
def peek(grp): a(f'ds_read_b32 v{vFP}, v{vFA} offset:{16*grp}')
def check(grp, v):
    jitter()
    n = nlab[0]; nlab[0] += 1
    a(f'v_cmp_gt_u32 vcc, {v}, v{vFP}\ns_cbranch_vccnz L_slow{n}')
    a.label(f'L_back{n}')
    slow.append((n, grp, v))
def emit_slow():
    for n, grp, v in slow:
        a.label(f'L_slow{n}')
        guard()
        a(f'ds_read_b32 v{vFP}, v{vFA} offset:{16*grp}\ns_waitcnt lgkmcnt(0)\nv_cmp_gt_u32 vcc, {v}, v{vFP}\ns_cbranch_vccnz L_slow{n}\ns_branch L_back{n}')
    slow.clear()
def landed(n, v):
    a(f's_waitcnt vmcnt({n})'); signal(v)

def wdma(p, parts=range(6)):
    jitter()
    for i in parts:
        if i < 3:
            a(f'''
            s_add_u32 m0, s{sWBm}, {PS*p + 1024*i}
            s_add_u32 s{sT0}, s{sWA}, {6144*i + 128*p}
            buffer_load_dwordx4 v{vDW1[i & 1]}, {srd(sW1)}, s{sT0} offen lds
            ''')
        else:
            if i == 3 or i - 1 not in parts:
                a(f's_add_u32 m0, s{sWBm}, {PS*p + 12288}\ns_add_u32 s{sT0}, s{sWBm}, {12288*p}')
            a(f'buffer_load_dwordx4 v{vDW2[i-3]}, {srd(sW2)}, s{sT0} offen offset:{1024*(i-3)} lds')

def ln(raw, U, dst, rows16, mid=None, mid2=None):
    n = len(dst)
    S, Q, ONE = T[1], T[3], T[4]
    sc, bi = T[0], T[2]
    a(f'v_mov_b32 v{ONE}, 0x3f803f80')
    un = []
    for i in range(n):
        un.append(f'v_lshlrev_b32 v{U+2*i}, 16, v{raw+i}')
        un.append(f'v_and_b32 v{U+2*i+1}, 0xffff0000, v{raw+i}')
    while len(un) > 8: a(un.pop(0))
    for i in range(n):
        a(f'v_dot2_f32_bf16 v{S}, v{raw+i}, v{ONE}, {"0" if i == 0 else f"v{S}"}')
        a(f'v_dot2_f32_bf16 v{Q}, v{raw+i}, v{raw+i}, {"0" if i == 0 else f"v{Q}"}')
    def fill(k):
        for _ in range(k):
            if un: a(un.pop(0))
    fill(3)
    a(f'v_permlane32_swap_b32 v{S}, v{Q}')
    a(f'v_add_f32 v{S}, v{S}, v{Q}')
    if rows16:
        a(f'v_mov_b32 v{Q}, v{S}')
        fill(2)
        a(f'v_permlane16_swap_b32 v{S}, v{Q}')
        a(f'v_add_f32 v{S}, v{S}, v{Q}')
    a(f'v_mul_f32 v{S}, {fbits(1.0/96):#x}, v{S}')
    a(f'v_mov_b32 v{Q}, v{S}')
    fill(2)
    a(f'v_permlane32_swap_b32 v{S}, v{Q}')
    a(f'''
    v_fma_f32 v{Q}, -v{S}, v{S}, v{Q}
    v_max_f32 v{Q}, 0, v{Q}
    v_add_f32 v{Q}, {fbits(1e-5):#x}, v{Q}
    v_rsq_f32 v{Q}, v{Q}
    ''')
    fill(1)
    a(f'v_mul_f32 v{sc}, {fbits(ga):#x}, v{Q}')
    a(f'v_mul_f32 v{bi}, -v{S}, v{sc}')
    fill(1000)
    if mid: mid()
    for i in range(n):
        if opt('lnplain'):
            a(f'v_fma_f32 v{U+2*i}, v{U+2*i}, v{sc}, v{bi}\nv_fma_f32 v{U+2*i+1}, v{U+2*i+1}, v{sc}, v{bi}')
        else:
            a(f'v_pk_fma_f32 {vr(U+2*i,2)}, {vr(U+2*i,2)}, {vr(sc,2)}, {vr(bi,2)} op_sel_hi:[1,0,0]')
    if mid2: mid2()
    for i in range(n):
        a(f'v_cvt_pk_bf16_f32 v{dst[i]}, v{U+2*i}, v{U+2*i+1}')

def pk_t(Y, K, n):
    return [f'v_pk_fma_f32 {vr(K+2*i,2)}, {vr(Y+2*i,2)}, {vr(Y+2*i,2)}, s[{sCC}:{sCC+1}] neg_lo:[1,0,0] neg_hi:[1,0,0]' for i in range(n//2)] + pk_m(Y, K, n)
def pk_m(Y, K, n): return [f'v_pk_mul_f32 {vr(K+2*i,2)}, {vr(Y+2*i,2)}, {vr(K+2*i,2)}' for i in range(n//2)]
def pk_d(K, n): return [f'v_pk_fma_f32 {vr(K+2*i,2)}, {vr(K+2*i,2)}, s[{sCA}:{sCA+1}], s[{sCA}:{sCA+1}]' for i in range(n//2)]
def emit(l):
    for t in l: a(t)

def mlp32(hooks, prio):
    N = 12
    moved = {'w1': False, 'w2': False}
    def move(kind, c):
        if c >= 6 and not moved[kind]:
            for r in (vAW1 if kind == 'w1' else [vAW2]): a(f'v_add_u32 v{r}, {3*PS}, v{r}')
            moved[kind] = True
    def w1reads(c):
        for ks in range(6):
            off = ((c >> 1) % 3) * PS + (ks >> 1) * 4096 + (ks & 1) * 1024
            r = vAW1[(c & 1) + 2 * (ks & 1)]
            a(f'ds_read_b64_tr_b16 {vr(vF1+4*ks,2)}, v{r} offset:{off}')
            a(f'ds_read_b64_tr_b16 {vr(vF1+4*ks+2,2)}, v{r} offset:{off+512}')
    def w2reads(c):
        for i in range(6):
            ks2, mt = i // 3, i % 3
            off = ((c >> 1) % 3) * PS + (c & 1) * 6144 + ks2 * 3072 + mt * 64
            a(f'ds_read_b64_tr_b16 {vr(vF2+4*i,2)}, v{vAW2} offset:{off}')
            a(f'ds_read_b64_tr_b16 {vr(vF2+4*i+2,2)}, v{vAW2} offset:{off+1536}')
    def g1(c, ks):
        Y = vY[c & 1]
        a(f'v_mfma_f32_32x32x16_bf16 {vr(Y,16)}, {vr(vF1+4*ks,4)}, {vr(vL+4*ks,4)}, {"0" if ks == 0 else vr(Y,16)}')
    def g2(i):
        ks2, mt = i // 3, i % 3
        a(f'v_mfma_f32_32x32x16_bf16 {vr(vO+16*mt,16)}, {vr(vF2+4*i,4)}, {vr(vG+4*ks2,4)}, {vr(vO+16*mt,16)}')
    def resm(ks):
        j, mt = ks // 3, ks % 3
        a(f'v_mfma_f32_32x32x16_bf16 {vr(vO+16*mt,16)}, {vr(vID+4*j,4)}, {vr(vRES+4*(2*mt+j),4)}, {"0" if j == 0 else vr(vO+16*mt,16)}')
    def hook(k):
        for f in hooks.get(k, []): f()
    def pr(c, v):
        if prio(c) is not None: a(f's_setprio {prio(c)[v]}')
    hook('pre')
    a('s_waitcnt lgkmcnt(0)')
    for ks in range(6): g1(0, ks)
    w1reads(1)
    hook('start3')
    for c in range(N + 1):
        Y, K = vY[c & 1], vK[c & 1]
        Yp, Kp = vY[(c - 1) & 1], vK[(c - 1) & 1]
        pr(c, 1)
        if c >= 1: emit(pk_m(Yp, Kp, 16))
        if c < N: emit(pk_t(Y, K, 16))
        cv = [f'v_cvt_pk_bf16_f32 v{vG+i}, v{Kp+2*i}, v{Kp+2*i+1}' for i in range(8)] if c >= 1 else []
        if c == N:
            emit(cv)
            a('s_waitcnt lgkmcnt(0)')
            for i in (0, 3, 1, 4, 2, 5): g2(i)
            break
        ex = [f'v_exp_f32 v{K+i}, v{K+i}' for i in range(16)]
        rc = [f'v_rcp_f32 v{K+i}, v{K+i}' for i in range(16)]
        last = c + 1 >= N
        if c + 2 < N: move('w1', c + 2)
        move('w2', c)
        if c == 0:
            gaps = [ex[0:3], ex[3:6], ex[6:9], ex[9:12], ex[12:15], ex[15:16]]
            a('s_waitcnt lgkmcnt(0)')
            for j in range(6):
                g1(1, j); emit(gaps[j])
        elif not last:
            gaps = [cv[0:4] + ex[0:1], cv[4:8] + ex[1:2], ex[2:5], ex[5:8], ex[8:11], ex[11:14], ex[14:16]]
            for j in range(7):
                if j < 6: g1(c + 1, j)
                else: g2(0)
                if j == 5: a('s_waitcnt lgkmcnt(0)')
                emit(gaps[j])
        else:
            emit(cv); emit(ex[0:4])
            a('s_waitcnt lgkmcnt(0)')
            gaps = [ex[4:8], ex[8:12], ex[12:16]]
            for j in range(3):
                g2(j); emit(gaps[j])
        hook(('preT1', c))
        pr(c, 0)
        if c + 2 < N: w1reads(c + 2)
        hook(('T1', c))
        pr(c, 1)
        emit(pk_d(K, 16))
        if c == 0:
            gp = [rc[0:3], rc[3:6], rc[6:9], rc[9:12], rc[12:14], rc[14:16]]
            for j in range(6):
                resm(j)
                if j == 5: a('s_waitcnt lgkmcnt(0)')
                emit(gp[j])
        elif not last:
            gp = [rc[0:3], rc[3:6], rc[6:9], rc[9:12], rc[12:16]]
            for j in range(5):
                g2(j + 1)
                if j == 4: a('s_waitcnt lgkmcnt(0)')
                emit(gp[j])
        else:
            gp = [rc[0:3], rc[3:6], rc[6:16]]
            for j in range(3):
                g2(j + 3)
                if j == 2: w2reads(c)
                emit(gp[j])
        hook(('preT2', c))
        pr(c, 0)
        if not last: w2reads(c)
        hook(('T2', c))
    return w1reads

def f_w1reads0():
    for ks in range(6):
        off = (ks >> 1) * 4096 + (ks & 1) * 1024
        r = vAW1[2 * (ks & 1)]
        a(f'ds_read_b64_tr_b16 {vr(vF1+4*ks,2)}, v{r} offset:{off}')
        a(f'ds_read_b64_tr_b16 {vr(vF1+4*ks+2,2)}, v{r} offset:{off+512}')

def l_w1reads(s):
    for i in range(6):
        mt2, ks3 = i // 3, i % 3
        off = ((s >> 2) & 1) * 2 * PS + ks3 * 4096
        r = vLW1 + mt2 + 2 * (s & 3)
        a(f'ds_read_b64_tr_b16 {vr(vF1+4*i,2)}, v{r} offset:{off}')
        a(f'ds_read_b64_tr_b16 {vr(vF1+4*i+2,2)}, v{r} offset:{off+512}')

def mlp16(doubles, hooks, prio):
    N = 12
    def wid(s): return 0 if (s < 0 or s >= N) else (2 if s in doubles else 1)
    def move(base):
        for r in range(8): a(f'v_add_u32 v{base+r}, {4*PS}, v{base+r}')
    def w2reads(s):
        for i in range(6):
            off = ((s >> 2) & 1) * 2 * PS + 64 * (i >> 1)
            r = vLW2 + (i & 1) + 2 * (s & 3)
            a(f'ds_read_b64_tr_b16 {vr(vF2+4*i,2)}, v{r} offset:{off}')
            a(f'ds_read_b64_tr_b16 {vr(vF2+4*i+2,2)}, v{r} offset:{off+3072}')
    def m1(s):
        l = []
        for t in range(wid(s)):
            for j in range(6):
                mt2, ks3 = j & 1, j >> 1
                D = vY[s & 1] + 8 * t + 4 * mt2
                l.append(f'v_mfma_f32_16x16x32_bf16 {vr(D,4)}, {vr(vF1+4*(mt2*3+ks3),4)}, {vr(vL+12*t+4*ks3,4)}, {"0" if ks3 == 0 else vr(D,4)}')
        return l
    def m2(s):
        return [f'v_mfma_f32_16x16x32_bf16 {vr(vO+24*t+4*i,4)}, {vr(vF2+4*i,4)}, {vr(vG+4*t,4)}, {vr(vO+24*t+4*i,4)}' for t in range(wid(s)) for i in range(6)]
    def weave(ms, fl):
        fl = list(fl)
        if not ms:
            emit(fl); a('s_waitcnt lgkmcnt(0)'); return
        for j, m in enumerate(ms):
            a(m)
            if j == len(ms) - 1: a('s_waitcnt lgkmcnt(0)')
            k = -(-len(fl) // (len(ms) - j))
            emit(fl[:k]); fl = fl[k:]
    def hook(k):
        for f in hooks.get(k, []): f()
    def pr(c, v):
        if prio(c) is not None: a(f's_setprio {prio(c)[v]}')
    hook('pre')
    a('s_waitcnt lgkmcnt(0)')
    emit(m1(0))
    l_w1reads(1)
    hook('start3')
    for s in range(N + 1):
        Y, K = vY[s & 1], vK[s & 1]
        Yp, Kp = vY[(s - 1) & 1], vK[(s - 1) & 1]
        n, np_ = 8 * wid(s), 8 * wid(s - 1)
        pr(s, 1)
        emit(pk_m(Yp, Kp, np_))
        emit(pk_t(Y, K, n))
        cv = [f'v_cvt_pk_bf16_f32 v{vG+i}, v{Kp+2*i}, v{Kp+2*i+1}' for i in range(np_ // 2)]
        if s == N:
            emit(cv)
            a('s_waitcnt lgkmcnt(0)')
            emit(m2(N - 1))
            break
        ex = [f'v_exp_f32 v{K+i}, v{K+i}' for i in range(n)]
        rc = [f'v_rcp_f32 v{K+i}, v{K+i}' for i in range(n)]
        if s + 2 == 8: move(vLW1)
        if s == 8: move(vLW2)
        if s == 0: a('s_waitcnt lgkmcnt(0)')
        weave(m1(s + 1), cv + ex)
        hook(('preT1', s))
        pr(s, 0)
        if s + 2 < N: l_w1reads(s + 2)
        hook(('T1', s))
        pr(s, 1)
        emit(pk_d(K, n))
        weave(m2(s - 1), rc)
        hook(('preT2', s))
        pr(s, 0)
        w2reads(s)
        hook(('T2', s))

def finish():
    if opt('amp'):
        n = nlab[0]; nlab[0] += 1
        if opt('amp') == 'end': a(f's_waitcnt vmcnt(0)\ns_memrealtime s[88:89]\ns_mov_b32 s{sH13}, 13')
        a(f's_waitcnt vmcnt(0) lgkmcnt(0)\ns_sub_u32 s92, s88, s94\ns_lshl_b32 s92, s92, 2\ns_cmp_eq_u32 s88, 0\ns_cselect_b32 s92, 0, s92')
        a(f's_cmp_eq_u32 s{sH13}, {opt("amprows", 13)}\ns_cselect_b32 s92, s92, 0\ns_add_u32 s92, s92, 1400\ns_add_u32 s92, s92, s94')
        a.label(f'L_amp{n}')
        a(f's_memrealtime s[90:91]\ns_waitcnt lgkmcnt(0)\ns_sub_u32 s93, s92, s90\ns_cmp_gt_i32 s93, 0\ns_cbranch_scc1 L_amp{n}')
    if STAMP:
        stamp(14)
        a('s_waitcnt vmcnt(0)')
        stamp(15)
        a('s_waitcnt lgkmcnt(0)')
        if opt('dbg'):
            n = nlab[0]; nlab[0] += 1
            a(f's_cmp_lg_u32 s2, {opt("dbg")}\ns_cbranch_scc1 L_nd{n}\ns_cmp_lg_u32 s{sWI}, 0\ns_cbranch_scc1 L_nd{n}')
            a(f's_lshl_b32 s{sT0}, s{sWV}, 3\nv_mov_b32 v{T[1]}, s{sT0}\ns_mov_b64 exec, 1')
            for k, i in enumerate((1, 2, 3, 4, 8, 10, 13, 15)):
                a(f's_sub_u32 s{sT0}, s{sST+2*i}, s{sST}\nv_mov_b32 v{T[0]}, s{sT0}')
                a(f'buffer_store_dword v{T[0]}, v{T[1]}, {srd(sWS)}, 0 offen offset:{4*k}')
            a.label(f'L_nd{n}')
            a('s_endpgm')
            return
        a(f'''
        s_lshl_b32 s{sT0}, s2, 3
        s_add_u32 s{sT0}, s{sT0}, s{sWV}
        s_lshl_b32 s{sT0}, s{sT0}, 6
        v_mov_b32 v{T[1]}, s{sT0}
        s_mov_b64 exec, 1
        ''')
        for i in range(NST):
            a(f'v_mov_b32 v{T[0]}, s{sST+2*i}')
            a(f'buffer_store_dword v{T[0]}, v{T[1]}, {srd(sWS)}, 0 offen offset:{4*i}')
    a('s_endpgm')

def tab_reads(gi, em):
    A = vAFR + 20 * gi; o = 64 * gi
    for d in range(3):
        em(f'ds_read_b64_tr_b16 {vr(A+4*d,2)}, v{vTF0} offset:{o + 2*d*TP}')
        em(f'ds_read_b64_tr_b16 {vr(A+4*d+2,2)}, v{vTF1} offset:{o + 2*d*TP}')
    for par in range(2):
        for pp in range(2):
            em(f'ds_read_b64_tr_b16 {vr(A+12+4*par+2*pp,2)}, v{vTE} offset:{o + (pp - 2*par + 2)*TP}')
RING = 6
class Conv:
    def __init__(self, k0): self.n = 0; self.slot = 0; self.k0 = k0
    def acc(self, gi, k): return vACC + 16 * gi + 4 * (k - self.k0)
    def ds(self, t): a(t); self.n += 1; return self.n
    def wait(self, seq): a(f's_waitcnt lgkmcnt({min(15, self.n - seq)})')
    def reads(self, it):
        B = it['B']; go = 64 * it['gi']; idx = it['idx']; kind = it['kind']
        if kind == 'F':
            r0, r1 = 2 * idx, min(2 * idx + 1, 16)
            return [f'ds_read_b128 {vr(B,4)}, v{vAF} offset:{r0*XROW+go}', f'ds_read_b128 {vr(B+4,4)}, v{vAF} offset:{r1*XROW+go}']
        if kind == 'E':
            return [f'ds_read_b128 {vr(B,4)}, v{vAE} offset:{2*idx*XROW+go}', f'ds_read_b128 {vr(B+4,4)}, v{vAE} offset:{(2*idx+4)*XROW+go}']
        return [f'ds_read_b128 {vr(B,4)}, v{vAE} offset:{12*XROW+go}', f'ds_read_b128 {vr(B+4,4)}, v{vAE16} offset:{16*XROW+go}']
    def cvt(self, lst):
        for gi, k in lst:
            A = self.acc(gi, k)
            a(f'v_cvt_pk_bf16_f32 v{A}, v{A}, v{A+1}\nv_cvt_pk_bf16_f32 v{A+1}, v{A+2}, v{A+3}')
    def write(self, lst):
        for gi, k in lst:
            A = self.acc(gi, k)
            if k == 6: setexec(0xffff, 0xffff)
            self.ds(f'ds_write_b64 v{vAO}, {vr(A,2)} offset:{(k-self.k0)*6144+64*gi}')
            if k == 6: a('s_mov_b64 exec, -1')
    def run(self, items, stop_at=None):
        D = RING - 1
        nxt = 0
        while nxt < len(items) and 'seq' in items[nxt]: nxt += 1
        def start(j):
            items[j]['B'] = vB + 8 * (self.slot % RING); self.slot += 1
            return self.reads(items[j])
        while nxt < min(D, len(items)):
            for t in start(nxt): items[nxt]['seq'] = self.ds(t)
            nxt += 1
        end = len(items) if stop_at is None else stop_at
        for i in range(end):
            it = items[i]
            self.wait(it['seq'])
            pend = start(nxt) if nxt < len(items) else []
            A = vAFR + 20 * it['gi']
            had = bool(pend)
            for k in it['outs']:
                fr = (it['idx'] - k) if it['kind'] == 'F' else 3 + (k - it['idx'])
                a(f'v_smfmac_f32_16x16x64_bf16 {vr(self.acc(it["gi"], k),4)}, {vr(A+4*fr,4)}, {vr(it["B"],8)}, v{vIDX}')
                if pend: items[nxt]['seq'] = self.ds(pend.pop(0))
            for t in pend: items[nxt]['seq'] = self.ds(t)
            if had: nxt += 1
            if it.get('pub'):
                self.cvt(it['pub'])
                if not it.get('nowrite'): self.write(it['pub'])
            if it.get('post'): it['post']()
        return items[end:]
def stage(frags): return [dict(gi=gi, kind=k, idx=i, outs=list(o)) for gi in range(3) for (k, i, o) in frags]
def add_pub(items, base, nfr, pairs, nowrite=False):
    for gi in range(3):
        j = min(base + nfr * (gi + 1), len(items) - 1)
        items[j].setdefault('pub', []).extend((gi, k) for k in pairs)
        items[j]['nowrite'] = nowrite

def late_setup():
    mksrd(sOUT, 14, XBYTES)
    if opt('safe'): a('s_mov_b32 s98, 200000')
    a(f'''
    s_mov_b32 s{sCA}, {fbits(ga):#x}
    s_mov_b32 s{sCA+1}, {fbits(ga):#x}
    s_mov_b32 s{sCC}, {fbits(gc):#x}
    s_mov_b32 s{sCC+1}, {fbits(gc):#x}
    s_add_u32 s{sT0}, s{sWI}, s{sY0}
    s_mul_i32 s{sT0}, s{sT0}, 224
    s_add_u32 s{sT0}, s{sT0}, s{sX0}
    s_mul_i32 s{sO0}, s{sT0}, 192
    ''')
    if STAMP:
        a(f's_mov_b32 s{sWS+2}, {256 if opt("dbg") else 0x10000000}\ns_mov_b32 s{sWS+3}, 0x00020000')
        for i in (7,): a(f's_mov_b32 s{sST+2*i}, 0')
    for j in range(3):
        a(f'''
        v_add_u32 v{T[0]}, {64*j}, v{vLN}
        v_mul_u32_u24 v{T[2]}, 171, v{T[0]}
        v_bfe_u32 v{T[2]}, v{T[2]}, 12, 2
        v_xor_b32 v{T[0]}, v{T[0]}, v{T[2]}
        v_lshl_add_u32 v{vSR[j]}, v{T[0]}, 4, s{sIMG}
        ''')

def conv_setup1():
    a(f'''
; table read: source lane r=(l>>2)&3, chalf=(l>>1)&1, s=l&1, qa=l>>4; tbl=r&1; valid iff (r>>1)==chalf
v_and_b32 v{T[0]}, 3, v{vLN}
v_mul_u32_u24 v{vIDX}, 0x5555, v{T[0]}
s_lshl_b32 s{sT2}, s{sWI}, 4
s_add_u32 s{sT2}, s{sT2}, {TB}
v_bfe_u32 v{T[1]}, v{vLN}, 1, 1
v_lshl_add_u32 v{T[4]}, v{T[1]}, 3, s{sT2}
v_and_b32 v{T[0]}, 1, v{vLN}
v_lshrrev_b32 v{T[1]}, 5, v{vLN}
v_mul_u32_u24 v{vTE}, {TP}, v{T[1]}
v_sub_u32 v{T[1]}, v{T[1]}, v{T[0]}
v_bfe_u32 v{T[2]}, v{vLN}, 2, 1
v_mul_u32_u24 v{T[2]}, 7, v{T[2]}
v_sub_u32 v{T[1]}, v{T[1]}, v{T[2]}
v_add_u32 v{T[1]}, 8, v{T[1]}
v_mul_u32_u24 v{T[1]}, {TP}, v{T[1]}
v_bfe_u32 v{T[2]}, v{vLN}, 4, 1
v_mul_u32_u24 v{T[2]}, 192, v{T[2]}
v_add3_u32 v{T[3]}, v{T[1]}, v{T[2]}, v{T[4]}
v_lshrrev_b32 v{T[1]}, 4, v{vLN}
v_lshlrev_b32 v{T[2]}, 1, v{T[1]}
v_sub_u32 v{T[2]}, v{T[2]}, v{T[0]}
v_add_u32 v{T[2]}, 6, v{T[2]}
v_mul_u32_u24 v{T[2]}, {TP}, v{T[2]}
v_add_u32 v{vTF0}, s{sT2}, v{vTE}
v_add_u32 v{vTF1}, {TP}, v{vTF0}
v_mov_b32 v{vTE}, s{sT2}
s_mov_b32 exec_lo, 0xcc33cc33
s_mov_b32 exec_hi, 0xcc33cc33
v_mov_b32 v{vTF0}, v{T[3]}
v_add_u32 v{vTF1}, 384, v{T[3]}
s_mov_b32 exec_lo, 0x0c030c03
s_mov_b32 exec_hi, 0x0c030c03
v_add_u32 v{T[2]}, 768, v{T[2]}
v_add_u32 v{vTE}, v{T[2]}, v{T[4]}
s_mov_b64 exec, -1
v_and_b32 v{T[0]}, 15, v{vLN}
v_bfe_u32 v{T[2]}, v{vLN}, 4, 1
v_lshrrev_b32 v{T[3]}, 5, v{vLN}
v_lshl_add_u32 v{T[2]}, v{T[2]}, 1, v{T[3]}
v_add_u32 v{T[2]}, v{T[0]}, v{T[2]}
v_bfe_u32 v{T[3]}, v{T[2]}, 2, 2
v_xor_b32 v{T[3]}, s{sWI}, v{T[3]}
v_mul_u32_u24 v{T[2]}, 192, v{T[2]}
v_lshl_add_u32 v{vAF}, v{T[3]}, 4, v{T[2]}
v_add_u32 v{vAF}, {XB}, v{vAF}
''')
def conv_setup2(em=None):
    for i in range(24): a(f'v_mov_b64 {vr(vACC+2*i,2)}, 0')
    a(f'''
v_and_b32 v{T[0]}, 3, v{vLN}
v_lshlrev_b32 v{vFA}, 2, v{T[0]}
v_add_u32 v{vFA}, {FL}, v{vFA}
s_lshl_b32 s{sT0}, s{sWV}, 2
s_add_u32 s{sT0}, s{sT0}, {FL}
v_mov_b32 v{vFW}, s{sT0}
v_mov_b32 v{vFP}, 0
ds_write_b32 v{vFW}, v{vFP}
v_and_b32 v{T[0]}, 15, v{vLN}
v_lshrrev_b32 v{T[1]}, 4, v{vLN}
v_add_u32 v{T[2]}, 4, v{T[0]}
v_bfe_u32 v{T[3]}, v{T[2]}, 2, 2
v_xor_b32 v{T[3]}, s{sWI}, v{T[3]}
v_mul_u32_u24 v{T[2]}, 192, v{T[2]}
v_lshl_add_u32 v{vAE}, v{T[3]}, 4, v{T[2]}
v_add_u32 v{vAE16}, {XB}, v{vAE}
v_mul_u32_u24 v{T[2]}, {XROW}, v{T[1]}
v_add_u32 v{vAE}, v{vAE16}, v{T[2]}
v_bfe_u32 v{T[3]}, v{T[0]}, 2, 2
v_xor_b32 v{T[4]}, s{sWI}, v{T[3]}
v_mul_u32_u24 v{T[2]}, 192, v{T[0]}
v_lshl_add_u32 v{T[2]}, v{T[4]}, 4, v{T[2]}
v_bfe_u32 v{T[1]}, v{vLN}, 4, 1
v_mul_u32_u24 v{T[1]}, 3072, v{T[1]}
v_lshrrev_b32 v{T[3]}, 5, v{vLN}
v_bfe_u32 v{T[4]}, v{vLN}, 1, 1
v_xor_b32 v{T[3]}, v{T[3]}, v{T[4]}
v_lshl_add_u32 v{T[1]}, v{T[3]}, 3, v{T[1]}
v_add3_u32 v{vAO}, v{T[2]}, v{T[1]}, s{sOB}
''')

def dma_setup():
    mksrd(sW1, 10, 73728); mksrd(sW2, 12, 73728)
    a(f'''
    v_lshrrev_b32 v{T[0]}, 3, v{vLN}
    v_mul_u32_u24 v{T[0]}, 768, v{T[0]}
    v_bfe_u32 v{T[1]}, v{vLN}, 4, 1
    v_lshlrev_b32 v{T[1]}, 2, v{T[1]}
    v_and_b32 v{T[2]}, 7, v{vLN}
    v_xor_b32 v{T[1]}, v{T[1]}, v{T[2]}
    v_lshl_add_u32 v{T[0]}, v{T[1]}, 4, v{T[0]}
    s_and_b32 s{sT1}, s{sWI}, 1
    s_lshl_b32 s{sT0}, s{sT1}, 5
    v_xor_b32 v{vDW1[0]}, s{sT0}, v{T[0]}
    v_xor_b32 v{vDW1[1]}, 32, v{vDW1[0]}
    v_mov_b32 v{vDW2[0]}, v{vL16}
    v_mov_b32 v{vDW2[1]}, v{vL16}
    v_mov_b32 v{vDW2[2]}, v{vL16}
    s_mov_b32 exec_lo, 0xffff0000
    v_xor_b32 v{vDW2[2]}, 32, v{vL16}
    s_mov_b32 exec_lo, 0
    s_mov_b32 exec_hi, 0xffff0000
    v_xor_b32 v{vDW2[0]}, 32, v{vL16}
    s_mov_b32 exec_lo, -1
    s_mov_b32 exec_hi, 0
    v_xor_b32 v{vDW2[1]}, 32, v{vL16}
    s_mov_b64 exec, -1
    s_mul_i32 s{sWA}, s{sWI}, {3*6144}
    s_mul_i32 s{sWBm}, s{sWI}, 3072
    ''')

TM = opt('touch', 'n')
TOUCH = chr(10).join(t for k, t in (('l', 's_load_dword s76, s[6:7], 0'), ('x', f's_load_dword s77, s[4:5], s{sT0}'), ('1', 's_load_dword s78, s[10:11], 0'),
        ('2', 's_load_dword s79, s[12:13], 0'), ('o', f's_load_dword s80, s[14:15], s{sT0}')) if k in TM)
isF = 's_cmp_lt_u32' if FOLD else 's_cmp_ge_u32'
a(f'''
s_load_dwordx4 s[4:7], s[0:1], 0
s_load_dwordx4 s[8:11], s[0:1], 16
s_load_dwordx4 s[12:15], s[0:1], 32
s_getpc_b64 s[100:101]
L_pc:
''')
if STAMP: a(f's_load_dwordx2 s[{sWS}:{sWS+1}], s[0:1], {48 if opt("dbg") else 56}')
stamp(0)
if opt('jitter'): a('s_memtime s[86:87]\ns_waitcnt lgkmcnt(0)\nv_readfirstlane_b32 s87, v0\ns_nop 4\ns_mul_i32 s87, s87, 7919\ns_xor_b32 s86, s86, s87')
if opt('hold') or opt('amp'): a('s_memrealtime s[94:95]\ns_mov_b32 s88, 0')
PFM = opt('pf', 'h'); CSE = False
a(f"""
v_lshrrev_b32 v{T[0]}, 6, v0
s_cmp_ge_u32 s2, 256
s_cbranch_scc1 L_end
v_and_b32 v{vLN}, 63, v0
s_lshr_b32 s{sT1}, s2, 3
v_readfirstlane_b32 s{sWV}, v{T[0]}
s_and_b32 s{sT2}, s2, 1
s_add_u32 s{sT2}, s{sT2}, s{sT1}
s_cmp_ge_u32 s{sT2}, 32
s_cbranch_scc1 L_end
{isF} s{sWV}, 4
s_cbranch_scc1 L_e1
s_setprio 3
L_e1:
s_and_b32 s{sT0}, s2, 3
v_mul_u32_u24 v{T[0]}, 43, v{vLN}
s_mul_i32 s{sT0}, s{sT0}, 63
s_add_u32 s{sT0}, s{sT0}, 1
v_lshrrev_b32 v{T[0]}, 9, v{T[0]}
s_lshr_b32 s{sT0}, s{sT0}, 1
s_add_u32 s{sT0}, s{sT0}, s{sT1}
v_mad_i32_i24 v{T[1]}, v{T[0]}, -12, v{vLN}
s_mul_i32 s{sT1}, s{sT0}, 9363
s_lshr_b32 s{sT1}, s{sT1}, 16
s_and_b32 s{sWI}, s{sWV}, 3
s_bfe_u32 s{sT2}, s2, 0x10002
s_sub_u32 s{sT2}, s{sT2}, s{sT1}
s_mul_i32 s{sT2}, s{sT2}, 7
v_mad_u32_u24 v{T[0]}, s{sWI}, 5, v{T[0]}
s_add_u32 s{sT0}, s{sT0}, s{sT2}
s_lshl_b32 s{sX0}, s{sT0}, 4
v_bfe_u32 v{T[2]}, v{T[0]}, 2, 2
s_mul_i32 s{sH13}, s{sT1}, {112*7282}
v_xor_b32 v{T[1]}, v{T[1]}, v{T[2]}
s_lshr_b32 s{sY0}, s{sH13}, 16
v_add3_u32 v{T[0]}, v{T[0]}, s{sX0}, -2
s_mov_b32 s99, 43008
v_mul_u32_u24 v{T[2]}, 192, v{T[0]}
s_sub_u32 s{sT1}, s{sY0}, 2
v_cmp_gt_u32 vcc, 224, v{T[0]}
s_mul_i32 s{sT1}, s{sT1}, s99
v_lshl_add_u32 v{T[2]}, v{T[1]}, 4, v{T[2]}
v_mov_b32 v{T[4]}, {MARK}
s_mul_i32 s{sXM}, s{sWI}, 960
v_cndmask_b32 v{vXO}, v{T[4]}, v{T[2]}, vcc
s_mov_b32 s{sX+2}, {XBYTES}
s_mov_b32 s{sX+3}, 0x00020000
v_add_u32 v{vXO}, s{sT1}, v{vXO}
{isF} s{sWV}, 4
s_cbranch_scc1 L_F0
s_add_u32 m0, s{sXM}, {XB}
s_movk_i32 s97, {XROW}
s_mov_b32 exec_hi, 0x0fffffff
s_waitcnt lgkmcnt(0)
{ap('Lk')}
s_mov_b64 s[{sX}:{sX+1}], s[4:5]
""")
def h13fin():
    a(f"""
    s_add_u32 s{sH13}, s{sH13}, {112*7282}
    s_lshr_b32 s{sH13}, s{sH13}, 16
    s_sub_u32 s{sH13}, s{sH13}, s{sY0}
    """)
def l_tables():
    a(f"""
    ; tables: A = 5x5 row i ; B = 3x3 row i (i<3, lanes 12..47) or 5x5 row 4 (i==3)
    v_lshlrev_b32 v{T[3]}, 4, v{vLN}
    s_mov_b32 s96, m0
    s_mov_b32 s{sDS+2}, 4800
    s_mov_b32 s{sDS+3}, 0x00020000
    s_mul_i32 s{sT3}, s{sWI}, {TP}
    s_mov_b64 s[{sDS}:{sDS+1}], s[8:9]
    s_add_u32 m0, s{sT3}, {TB + 8*TP}
    s_mov_b32 s{sDL+3}, 0x00020000
    buffer_load_dwordx4 v{T[3]}, {srd(sDS)}, s{sXM} offen lds
    s_mul_i32 s{sT2}, s{sWI}, 576
    s_sub_u32 s{sT2}, s{sT2}, 192
    s_add_u32 s{sT1}, s{sT3}, {TB + 2*TP}
    s_cmp_eq_u32 s{sWI}, 3
    s_cselect_b32 s{sDL+2}, s{sDS+2}, 1728
    s_cselect_b32 s{sT2}, 3840, s{sT2}
    s_cselect_b32 m0, {TB + 12*TP}, s{sT1}
    s_cselect_b64 s[{sDL}:{sDL+1}], s[8:9], s[6:7]
    s_cselect_b32 exec_lo, -1, 0xfffff000
    s_cselect_b32 exec_hi, -1, 0xffff
    v_add_u32 v{T[4]}, s{sT2}, v{T[3]}
    s_mov_b32 exec_lo, -1
    s_mov_b32 exec_hi, 0x0fffffff
    buffer_load_dwordx4 v{T[4]}, {srd(sDL)}, 0 offen lds
    s_mov_b32 m0, s96
    """)
xl = [0]
def xrows(n):
    for _ in range(n):
        t = xl[0]; xl[0] += 1
        if t:
            a('s_add_u32 m0, m0, s97')
            a(f'v_add_u32 v{vXO}, s99, v{vXO}')
        a(f'buffer_load_dwordx4 v{vXO}, {srd(sX)}, 0 offen{XPOL} lds')
NX0 = int(opt('nx0', 8))
TPOS = int(opt('tpos', 2))
xrows(TPOS)
l_tables()
xrows(NX0 - TPOS)
a('s_setprio 0')
a(ap('Li'))
stamp(1)
a(f'''
s_branch L_L
L_F0:
; ---- F: conv weight tables, rows w and w+4 of both
''')
h13fin()
if PFM == 'h':
    a(f'''
    s_cmp_eq_u32 s{sH13}, 13
    s_cbranch_scc1 L_nopf
    s_bfe_u32 s{sT3}, s2, 0x20003
    s_lshl_b32 s{sT3}, s{sT3}, 2
    s_add_u32 s{sT3}, s{sT3}, s{sWI}
    s_mul_i32 s{sT3}, s{sT3}, {20*128}
    v_lshl_add_u32 v{T[2]}, v{vLN}, 7, s{sT3}
    v_min_u32 v{T[2]}, L_end-L_pc, v{T[2]}
    s_mov_b64 exec, 0xfffff
    global_load_dword v{vPF}, v{T[2]}, s[100:101]
    s_mov_b64 exec, -1
    L_nopf:
    ''')
a(f'''
s_setprio {opt("fprio", 2)}
v_lshlrev_b32 v{vL16}, 4, v{vLN}
s_mul_i32 s{sIMG}, s{sWI}, 6144
s_mov_b32 s{sOB}, {OUTF}
s_cmp_lg_u32 s{sWI}, 0
s_cbranch_scc1 L_nozero
v_add_u32 v{T[0]}, {TB}, v{vL16}
v_mov_b64 v[0:1], 0
v_mov_b64 v[2:3], 0
''')
for off in (0, 2*TP - 1024, 5*TP, 5*TP + 1024, 8*TP - 1024, 13*TP, 13*TP + 1024, 16*TP - 1024):
    a(f'ds_write_b128 v{T[0]}, v[0:3] offset:{off}')
a(f'''
L_nozero:
''')
def f_karg():
    a(f's_mul_i32 s{sT0}, s{sY0}, 43008\ns_waitcnt lgkmcnt(0)\n{TOUCH}')
WPF = opt('wpf', '0') == '1'
if PFM in ('f', 'g'):
    if PFM == 'g': a(f's_cmp_eq_u32 s{sH13}, 13\ns_cselect_b32 s97, 1, 0xfffff')
    a(f'''
    s_bfe_u32 s{sT3}, s2, 0x20003
    s_lshl_b32 s{sT3}, s{sT3}, 2
    s_add_u32 s{sT3}, s{sT3}, s{sWI}
    s_mul_i32 s{sT3}, s{sT3}, {20*128}
    v_lshl_add_u32 v{T[1]}, v{vLN}, 7, s{sT3}
    v_min_u32 v{T[1]}, L_end-L_pc, v{T[1]}
    {'s_mov_b64 exec, 0xfffff' if PFM == 'f' else f's_cmp_eq_u32 s{sH13}, 13'+chr(10)+f's_cselect_b32 s{sT3}, 0, -1'+chr(10)+f'v_and_b32 v{T[1]}, s{sT3}, v{T[1]}'+chr(10)+'s_mov_b32 exec_lo, s97'+chr(10)+'s_mov_b32 exec_hi, 0'}
    global_load_dword v{vPF}, v{T[1]}, s[100:101]
    s_mov_b64 exec, -1
    ''')
if WPF:
    a(f'''
    s_and_b32 s{sT0}, s{sWI}, 1
    s_cselect_b64 s[{sT1}:{sT2}], s[12:13], s[10:11]
    s_lshr_b32 s{sT0}, s2, 3
    s_lshl_b32 s{sT0}, s{sT0}, 1
    s_lshr_b32 s{sT3}, s{sWI}, 1
    s_add_u32 s{sT0}, s{sT0}, s{sT3}
    s_mul_i32 s{sT0}, s{sT0}, {10*128}
    v_lshl_add_u32 v{T[0]}, v{vLN}, 7, s{sT0}
    v_min_u32 v{T[0]}, {73728-128}, v{T[0]}
    s_mov_b64 exec, 0x3ff
    global_load_dword v{vPF-1}, v{T[0]}, s[{sT1}:{sT2}]
    s_mov_b64 exec, -1
    ''')
a(ap('Ft'))
if opt('amp') == 'tab': a('s_waitcnt vmcnt(0)'); a(ap('tab'))
if not CSE: conv_setup1()
a(ap('Fc'))
OPF = opt('opf', '0') == '1'
if OPF:
    a(f'''
    s_mov_b64 exec, 1
    buffer_load_dword v{vPF-2}, v{vL16}, {srd(sOUT)}, s{sO0} offen
    s_mov_b64 exec, -1
    ''')
vFR = [48, 49, 50, 51]
vDW1[:] = [56, 57]; vDW2[:] = [58, 59, 60]
def f_setup1():
    a(f'''
    s_add_u32 s{sO1}, s{sO0}, {4*43008}
    v_lshrrev_b32 v{T[4]}, 5, v{vLN}
    v_bfe_u32 v{T[0]}, v{vLN}, 2, 2
    v_bfe_u32 v{T[1]}, v{vLN}, 4, 1
    v_and_b32 v{T[2]}, 3, v{vLN}
    v_lshl_add_u32 v{T[3]}, v{T[4]}, 4, v{T[0]}
    v_lshlrev_b32 v{T[3]}, 7, v{T[3]}
    v_lshl_add_u32 v{T[3]}, v{T[1]}, 5, v{T[3]}
    v_lshl_add_u32 v{T[3]}, v{T[2]}, 3, v{T[3]}
    v_bfe_u32 v{T[2]}, v{vLN}, 3, 1
    v_lshl_add_u32 v{vAW1[0]}, v{T[2]}, 6, v{T[3]}
    v_xor_b32 v{vAW1[1]}, 64, v{vAW1[0]}
    v_xor_b32 v{vAW1[2]}, 32, v{vAW1[0]}
    v_xor_b32 v{vAW1[3]}, 0x60, v{vAW1[0]}
    v_lshl_add_u32 v{T[3]}, v{T[4]}, 2, v{T[0]}
    v_mul_u32_u24 v{T[3]}, 192, v{T[3]}
    v_lshl_add_u32 v{T[3]}, v{T[1]}, 4, v{T[3]}
    v_and_b32 v{T[2]}, 1, v{vLN}
    v_xor_b32 v{T[2]}, v{T[2]}, v{T[4]}
    v_lshl_add_u32 v{T[3]}, v{T[2]}, 5, v{T[3]}
    v_bfe_u32 v{T[2]}, v{vLN}, 1, 1
    v_lshl_add_u32 v{T[3]}, v{T[2]}, 3, v{T[3]}
    v_add_u32 v{vAW2}, 12288, v{T[3]}
    s_mul_i32 s{sT2}, s{sWI}, 3072
    s_add_u32 s{sT2}, s{sT2}, {OUTF}
    s_mul_i32 s{sT1}, s{sWI}, {XROW}
    s_add_u32 s{sT1}, s{sT1}, {XB + 2*XROW + 384}
    v_lshlrev_b32 v{T[4]}, 1, v{T[4]}
    v_xor_b32 v{T[0]}, v{T[4]}, v{T[0]}
    v_and_b32 v{T[3]}, 15, v{vLN}
    v_mul_u32_u24 v{T[3]}, 192, v{T[3]}
    v_lshl_add_u32 v{T[0]}, v{T[0]}, 4, v{T[3]}
    v_lshl_add_u32 v{T[0]}, v{T[2]}, 3, v{T[0]}
    v_mul_u32_u24 v{T[2]}, {4*3072}, v{T[1]}
    v_add3_u32 v{vFR[0]}, v{T[0]}, v{T[2]}, s{sT2}
    v_xor_b32 v{vFR[1]}, 8, v{vFR[0]}
    v_xor_b32 v{vFR[2]}, 16, v{vFR[0]}
    v_xor_b32 v{vFR[3]}, 24, v{vFR[0]}
    v_add_u32 v{T[0]}, 2, v{vLN}
    v_bfe_u32 v{T[0]}, v{T[0]}, 2, 2
    v_xor_b32 v{T[0]}, v{T[4]}, v{T[0]}
    v_lshl_add_u32 v{T[0]}, v{T[0]}, 4, v{T[3]}
    v_mul_u32_u24 v{T[2]}, {4*XROW}, v{T[1]}
    v_add3_u32 v{vAR[0]}, v{T[0]}, v{T[2]}, s{sT1}
    v_xor_b32 v{vAR[1]}, 16, v{vAR[0]}
    v_bfe_u32 v{T[0]}, v{vLN}, 1, 2
    v_xor_b32 v{T[0]}, v{T[4]}, v{T[0]}
    v_lshl_add_u32 v{T[0]}, v{T[0]}, 4, v{T[3]}
    v_mul_u32_u24 v{T[2]}, 3072, v{T[1]}
    v_add3_u32 v{vSW[0]}, v{T[0]}, v{T[2]}, s{sIMG}
    v_xor_b32 v{vSW[1]}, 16, v{vSW[0]}
    ''')
def f_setup2():
    a(f'''
    v_and_b32 v{T[1]}, 1, v{vLN}
    v_lshlrev_b32 v{T[1]}, 4, v{T[1]}
    v_mov_b32 v{T[2]}, 0x3f80
    v_lshlrev_b32 v{T[1]}, v{T[1]}, v{T[2]}
    ''')
    for i in range(4): a(f'v_mov_b64 {vr(vID+2*i,2)}, 0')
    for i in range(8):
        pos = 16 * (i >> 2) + 8 * ((i >> 1) & 1) + 2 * (i & 1)
        setexec(3 << pos, 3 << (pos + 4))
        a(f'v_mov_b32 v{vID+i}, v{T[1]}')
    a('s_mov_b64 exec, -1')
FS = opt('fs', '00000')
def cs2k():
    conv_setup2(); f_setup2(); f_karg()
fsl = [cs2k, late_setup, lambda: None, f_setup1, dma_setup]
def fsetup(k):
    for f, c in zip(fsl, FS):
        if int(c) == k: f()
FXP = int(opt('fxp', 5))
def f_rows(n=None):
    if xl[0] >= 17: return
    if xl[0] == NX0:
        a(f'''
        s_add_u32 m0, s{sXM}, {XB + (NX0-1)*XROW}
        s_movk_i32 s97, {XROW}
        v_add_u32 v{vXO}, {(NX0-1)*43008}, v{vXO}
        s_mov_b64 s[{sX}:{sX+1}], s[4:5]
        ''')
    a('s_mov_b32 exec_hi, 0x0fffffff')
    xrows(min(17 - xl[0], n or 99))
    a('s_mov_b32 exec_hi, -1')
FRP = 'a'
for item in reversed([x for x in opt('fb', '2:4').split(',') if x]):
    pos, cnt = [int(v) for v in item.split(':')]
    fsl.insert(pos, lambda cnt=cnt: f_rows(cnt)); FS = FS[:pos] + '0' + FS[pos:]
fsetup(0)
a(ap('Fs'))
stamp(1)
a('s_waitcnt lgkmcnt(0)')
a(ap('Fl'))
pstamp(9)
bar()
a(ap('Bt'))
cv = Conv(0)
for gi in range(3): tab_reads(gi, cv.ds)
if FRP == 'a': f_rows()
fsetup(3)
bar(2)
S0 = stage([('F',0,[0]), ('F',1,[0,1])])
cv.run(S0, 0)
def res_half(s):
    m = 0xffff0000 if s else 0xffff
    setexec(m, m)
    for ks in range(6):
        cv.ds(f'ds_read_b128 {vr(vRES+4*ks,4)}, v{vAR[ks&1]} offset:{64*(ks>>1)}')
    a('s_mov_b64 exec, -1')
def run_stage(left, frags, pairs, keep=0, mid=None):
    its = left + stage(frags)
    if pairs: add_pub(its, len(left), len(frags), pairs)
    if mid: its[mid[0]]['post'] = mid[1]
    return cv.run(its, len(its) - keep)
left = cv.run(S0, len(S0) - int(opt('keep0', 0)))
fsetup(1)
pstamp(10)
bar(3)
left = run_stage(left, [('F',2,[0,1,2]), ('F',3,[1,2,3]), ('E',0,[0,1])], [0, 1])
fsetup(2)
SPLIT = opt('split', '0') == '1'
a(f's_waitcnt vmcnt({5 if SPLIT else 0})')
pstamp(11)
bar(4)
a(f's_setprio {opt("fprio2", 3)}')
left = run_stage(left, [('F',4,[2,3]), ('F',5,[3]), ('E',2,[2,3])], [2, 3])
a(ap('Fa'))
a('s_waitcnt vmcnt(0)')
signal(1)
a(ap('F1'))
wdma(0, [0, 1, 2])
stamp(5)
poll(GF, 1)
RA = 168
for ks in range(6):
    a(f'ds_read_b64 {vr(RA+4*ks,2)}, v{vFR[2*(ks&1)]} offset:{64*(ks>>1)}')
    a(f'ds_read_b64 {vr(RA+4*ks+2,2)}, v{vFR[2*(ks&1)+1]} offset:{64*(ks>>1)}')
a(f's_setprio {opt("fprio3", 1)}')
wdma(1, [0, 1, 2])
a('s_waitcnt lgkmcnt(0)')
stamp(6)
def f_mid():
    for ks in range(6):
        a(f'ds_read_b128 {vr(vRES+4*ks,4)}, v{vAR[ks&1]} offset:{64*(ks>>1)}')
    landed(0, 2)
    wdma(0, [3, 4, 5]); wdma(1, [3, 4, 5])
    peek(GF)
def f_mid2():
    a('s_waitcnt lgkmcnt(0)')
    check(GF, 2)
    f_w1reads0()
ln(RA, 72, [vL + i for i in range(24)], False, f_mid, f_mid2)
a(ap('Fm'))
stamp(8)
XH = {
  'start3': [lambda: landed(0, 3)],
  ('T1', 0): [lambda: peek(GF)],
  ('preT2', 0): [lambda: check(GF, 3)],
  ('T1', 1): [lambda: stamp(9)],
  ('T2', 1): [lambda: peek(GL)],
  ('preT1', 2): [lambda: check(GL, 6)],
  ('preT1', 4): [lambda: signal(4)],
  ('T1', 4): [lambda: peek(GL)],
  ('preT2', 4): [lambda: check(GL, 7)],
  ('T2', 5): [lambda: peek(GL)],
  ('preT1', 6): [lambda: check(GL, 8), lambda: stamp(10)],
  ('preT1', 8): [lambda: stamp(11)],
  ('T2', 8): [lambda: peek(GF)],
  ('preT1', 9): [lambda: check(GF, 4)],
  ('preT1', 10): [lambda: stamp(12)],
}
FP = opt('fp', 'n')
def fprio(c):
    if FP == 'n': return (0, 0) if c == 0 else None
    if FP == 's': return (1, 1) if c == 0 else None
    return (0, int(FP))
mlp32(XH, fprio)
stamp(13)
P = vY[0]; Q = vK[0]
for mt in range(3):
    for i in range(8):
        a(f'v_cvt_pk_bf16_f32 v{P+8*mt+i}, v{vO+16*mt+2*i}, v{vO+16*mt+2*i+1}')
    a(f'ds_write_b128 v{vSW[0]}, {vr(P+8*mt,4)} offset:{64*mt}')
    a(f'ds_write_b128 v{vSW[1]}, {vr(P+8*mt+4,4)} offset:{64*mt}')
for s in range(2):
    for j in range(3):
        a(f'ds_read_b128 {vr(Q+4*(3*s+j),4)}, v{vSR[j]} offset:{3072*s}')
for s in range(2):
    for j in range(3):
        a(f's_waitcnt lgkmcnt({5-(3*s+j)})')
        a(f'buffer_store_dwordx4 {vr(Q+4*(3*s+j),4)}, v{vL16}, {srd(sOUT)}, s{sO1 if s else sO0} offen offset:{1024*j}{STPOL}')
finish()
emit_slow()

a.label('L_L')
cv = Conv(4)
vDW1[:] = [220, 221]; vDW2[:] = [222, 223, 224]
vA0, vA2 = 48, 50
RR = 60
def l_setup():
    a(f'''
    s_add_u32 s{sO0}, s{sO0}, {8*43008}
    s_and_b32 s{sT1}, s{sWI}, 1
    v_lshrrev_b32 v{T[4]}, 4, v{vLN}
    v_bfe_u32 v{T[0]}, v{vLN}, 2, 2
    v_and_b32 v{T[2]}, 3, v{vLN}
    v_bfe_u32 v{T[1]}, v{vLN}, 4, 1
    v_lshlrev_b32 v{T[2]}, 3, v{T[2]}
    v_lshl_add_u32 v{T[2]}, v{T[1]}, 5, v{T[2]}
    v_lshl_add_u32 v{T[3]}, v{T[4]}, 3, v{T[0]}
    v_lshl_add_u32 v{T[3]}, v{T[3]}, 7, v{T[2]}
    v_bfe_u32 v{T[1]}, v{vLN}, 3, 1
    v_xor_b32 v{T[1]}, s{sT1}, v{T[1]}
    v_lshl_add_u32 v{T[3]}, v{T[1]}, 6, v{T[3]}
    s_lshr_b32 s{sT2}, s{sWI}, 1
    s_mul_i32 s{sT2}, s{sT2}, {PS}
    s_sub_u32 s{sT3}, {PS}, s{sT2}
    v_add_u32 v{vLW1}, s{sT2}, v{T[3]}
    v_add_u32 v{vLW1+4}, s{sT3}, v{T[3]}
    v_xor_b32 v{vLW1+1}, 32, v{vLW1}
    v_xor_b32 v{vLW1+2}, 64, v{vLW1}
    v_xor_b32 v{vLW1+3}, 0x60, v{vLW1}
    v_xor_b32 v{vLW1+5}, 32, v{vLW1+4}
    v_xor_b32 v{vLW1+6}, 64, v{vLW1+4}
    v_xor_b32 v{vLW1+7}, 0x60, v{vLW1+4}
    v_lshl_add_u32 v{T[3]}, v{T[4]}, 2, v{T[0]}
    v_mul_u32_u24 v{T[3]}, 192, v{T[3]}
    v_add_u32 v{T[3]}, v{T[3]}, v{T[2]}
    s_mul_i32 s{sT1}, s{sT1}, 6144
    s_add_u32 s{sT2}, s{sT2}, 12288
    s_add_u32 s{sT3}, s{sT3}, 12288
    s_add_u32 s{sT0}, s{sT2}, s{sT1}
    v_add_u32 v{vLW2}, s{sT0}, v{T[3]}
    s_add_u32 s{sT0}, s{sT3}, s{sT1}
    v_add_u32 v{vLW2+4}, s{sT0}, v{T[3]}
    s_sub_u32 s{sT1}, 6144, s{sT1}
    s_add_u32 s{sT0}, s{sT2}, s{sT1}
    v_add_u32 v{vLW2+2}, s{sT0}, v{T[3]}
    s_add_u32 s{sT0}, s{sT3}, s{sT1}
    v_add_u32 v{vLW2+6}, s{sT0}, v{T[3]}
    v_xor_b32 v{vLW2+1}, 32, v{vLW2}
    v_xor_b32 v{vLW2+3}, 32, v{vLW2+2}
    v_xor_b32 v{vLW2+5}, 32, v{vLW2+4}
    v_xor_b32 v{vLW2+7}, 32, v{vLW2+6}
    v_xor_b32 v{T[0]}, v{T[4]}, v{T[0]}
    v_and_b32 v{T[3]}, 15, v{vLN}
    v_mul_u32_u24 v{T[3]}, 192, v{T[3]}
    v_lshl_add_u32 v{T[0]}, v{T[0]}, 4, v{T[3]}
    v_add_u32 v{vARL}, {L12}, v{T[0]}
    v_bfe_u32 v{T[1]}, v{vLN}, 1, 1
    v_lshl_add_u32 v{T[0]}, v{T[1]}, 3, v{T[0]}
    v_add_u32 v{vA2}, {L12}, v{T[0]}
    v_xor_b32 v{vA2+1}, 8, v{vA2}
    v_add_u32 v{vA0}, s{sIMG}, v{T[0]}
    v_xor_b32 v{vA0+1}, 8, v{vA0}
    s_mul_i32 s{sT0}, s{sWI}, {XROW}
    v_bfe_u32 v{T[1]}, v{vLN}, 4, 1
    v_lshl_add_u32 v{T[3]}, v{T[1]}, 3, v{T[3]}
    v_lshrrev_b32 v{T[4]}, 5, v{vLN}
    v_bfe_u32 v{T[0]}, v{vLN}, 1, 2
    v_xor_b32 v{T[0]}, v{T[4]}, v{T[0]}
    v_lshl_add_u32 v{T[0]}, v{T[0]}, 4, v{T[3]}
    v_add_u32 v{vSW[0]}, s{sIMG}, v{T[0]}
    v_xor_b32 v{vSW[1]}, 32, v{vSW[0]}
    v_add_u32 v{T[0]}, 2, v{vLN}
    v_bfe_u32 v{T[0]}, v{T[0]}, 2, 2
    v_xor_b32 v{T[0]}, v{T[4]}, v{T[0]}
    v_lshl_add_u32 v{T[0]}, v{T[0]}, 4, v{T[3]}
    s_add_u32 s{sT0}, s{sT0}, {XB + 384}
    v_add_u32 v{vAR[0]}, s{sT0}, v{T[0]}
    v_xor_b32 v{vAR[1]}, 32, v{vAR[0]}
    ''')

a(f'''
s_mov_b32 exec_hi, -1
v_lshlrev_b32 v{vL16}, 4, v{vLN}
s_mul_i32 s{sIMG}, s{sWI}, 3072
s_add_u32 s{sIMG}, s{sIMG}, {S_IL}
s_mov_b32 s{sOB}, {OUTL}
''')
h13fin()
LS = opt('ls', '01002')
lsl = [(lambda: None) if CSE else conv_setup1, dma_setup, conv_setup2, late_setup, l_setup]
def lsetup(k):
    for f, c in zip(lsl, LS):
        if int(c) == k: f()
lsetup(0)
a(ap('Ls'))
pstamp(14)
a(f's_waitcnt vmcnt({NX0 - TPOS})')
bar()
for gi in range(3): tab_reads(gi, cv.ds)
lsetup(4)
a(f's_waitcnt vmcnt({NX0 - 4})')
a(ap('Ll'))
pstamp(9)
bar(2)
lsetup(1)
pstamp(10)
a(f's_waitcnt vmcnt({NX0 - 8})')
pstamp(11)
bar(3)
WP2 = opt('wp2', '2')
def wpf():
    a(f'''
    s_and_b32 s{sT0}, s{sWI}, 1
    s_cselect_b64 s[{sT1}:{sT2}], s[12:13], s[10:11]
    s_lshr_b32 s{sT0}, s2, 3
    s_lshl_b32 s{sT0}, s{sT0}, 1
    s_lshr_b32 s{sT3}, s{sWI}, 1
    s_add_u32 s{sT0}, s{sT0}, s{sT3}
    s_mul_i32 s{sT0}, s{sT0}, {10*128}
    v_lshl_add_u32 v{T[0]}, v{vLN}, 7, s{sT0}
    v_min_u32 v{T[0]}, {73728-128}, v{T[0]}
    s_mov_b64 exec, 0x3ff
    global_load_dword v226, v{T[0]}, s[{sT1}:{sT2}]
    s_mov_b64 exec, -1
    ''')
if WP2 == '1': wpf()
lsetup(2)
if WP2 == '2': wpf()
pstamp(12)
assert NX0 == 8
a('s_waitcnt lgkmcnt(0)')
pstamp(13)
bar(4)
a(f's_setprio {opt("lprio", 2)}')
RED, LNW = 1, 3
def raw_reads(R, ad, off=0):
    for ks in range(3):
        a(f'ds_read_b64 {vr(R+4*ks,2)}, v{ad} offset:{off+64*ks}')
        a(f'ds_read_b64 {vr(R+4*ks+2,2)}, v{ad+1} offset:{off+64*ks}')
def row_store(O, soff, P=vY[0], Q=vK[0]):
    for i in range(12):
        a(f'v_cvt_pk_bf16_f32 v{P+i}, v{O+2*i}, v{O+2*i+1}')
    for i in range(6):
        a(f'ds_write_b64 v{vSW[i&1]}, {vr(P+2*i,2)} offset:{64*(i>>1)}')
    for j in range(3):
        a(f'ds_read_b128 {vr(Q+4*j,4)}, v{vSR[j]}')
    for j in range(3):
        a(f's_waitcnt lgkmcnt({2-j})')
        a(f'buffer_store_dwordx4 {vr(Q+4*j,4)}, v{vL16}, {srd(sOUT)}, s{soff} offen offset:{1024*j}{STPOL}')
LP = opt('lp', 'k')
def lprio(c):
    if LP == 'n': return (0, 0) if c == 0 else None
    if LP == 's': return (1, 1) if c == 0 else None
    if LP == 'k':
        lo, hi = [int(x) for x in opt('lk', '0,7').split(',')]
        if lo <= c < hi: return (0, 1)
        return (0, 0) if c in (0, hi) else None
    return (0, int(LP))
def l_body(h13):
    global cv
    keep = cv
    cv = copy.copy(keep)
    sfx = 'a' if h13 else 'b'
    if h13:
        frags = [('F',4,[4]), ('F',5,[4,5]), ('F',6,[4,5,6]), ('F',7,[5,6]), ('E',4,[4,5]), ('F',8,[6]), ('L',6,[6])]; pairs = [4, 5, 6]
    else:
        frags = [('F',4,[4]), ('F',5,[4,5]), ('F',6,[4,5]), ('F',7,[5]), ('E',4,[4,5])]; pairs = [4, 5]
    if SPLIT:
        pre = stage(frags[:2])
        pre = cv.run(pre, len(pre) - int(opt('keepl', 2)))
        poll(GF, 1)
        frags = frags[2:]
    else:
        pre = []
    its = pre + stage(frags)
    add_pub(its, len(pre), len(frags), pairs)
    def resr():
        for i in range(6):
            cv.ds(f'ds_read_b64 {vr(RR+2*i,2)}, v{vAR[i&1]} offset:{10*XROW+64*(i>>1)}')
        if h13:
            for i in range(6):
                cv.ds(f'ds_read_b64 {vr(RR+12+2*i,2)}, v{vAR[i&1]} offset:{(14-RED)*XROW+64*(i>>1)}')
    if opt('lc'):
        nf = len(frags)
        for j, idx in ((9, 0), (10, nf - 1), (11, nf), (12, 2 * nf - 1), (13, 2 * nf)):
            its[idx]['post'] = lambda j=j: _st(j)
    if '3' in LS:
        cv.run(its, 0)
        lsetup(3)
    cv.run(its)
    stamp(6)
    signal(2)
    resr()
    stamp(5)
    poll(GL, 2)
    stamp(7)
    RAW = 168
    raw_reads(RAW, vA0)
    for i in range(12):
        a(f'v_lshlrev_b32 v{vO+2*i}, 16, v{RR+i}\nv_and_b32 v{vO+2*i+1}, 0xffff0000, v{RR+i}')
    if h13:
        a(f's_cmp_eq_u32 s{sWI}, {RED}\ns_cbranch_scc1 L_ri{sfx}')
        for i in range(12): a(f'v_mov_b64 {vr(vO+24+2*i,2)}, 0')
        a(f's_branch L_rj{sfx}')
        a.label(f'L_ri{sfx}')
        for i in range(12):
            a(f'v_lshlrev_b32 v{vO+24+2*i}, 16, v{RR+12+i}\nv_and_b32 v{vO+24+2*i+1}, 0xffff0000, v{RR+12+i}')
        a.label(f'L_rj{sfx}')
    signal(3)
    if h13: raw_reads(RAW + 12, vA2)
    a(f's_waitcnt lgkmcnt({7 if h13 else 1})')
    def l_mid2():
        a('s_waitcnt lgkmcnt(0)')
        check(GF, 2)
        l_w1reads(0)
    ln(RAW, 72, [vL + i for i in range(12)], True, lambda: peek(GF), l_mid2)
    if h13:
        a(f's_cmp_lg_u32 s{sWI}, {LNW}\ns_cbranch_scc1 L_nl12')
        ln(RAW + 12, 72, [RAW + 12 + i for i in range(12)], True)
        for ks in range(3):
            a(f'ds_write_b128 v{vARL}, {vr(RAW+12+4*ks,4)} offset:{64*ks}')
        a.label('L_nl12')
        signal(5)
    stamp(8)
    def l12r():
        for ks in range(3):
            a(f'ds_read_b128 {vr(vL+12+4*ks,4)}, v{vARL} offset:{64*ks}')
    def pub_rem():
        a(f's_cmp_eq_u32 s{sWI}, {RED}\ns_cbranch_scc1 L_np\ns_mul_i32 s{sT0}, s{sWI}, 6144\nv_add_u32 v{T[0]}, s{sT0}, v{vL16}')
        for i in range(6):
            a(f'ds_write_b128 v{T[0]}, {vr(vO+24+4*i,4)} offset:{S_R + 1024*i}')
        a.label('L_np')
        signal(9)
    H = {
      'start3': [lambda: peek(GL)],
      ('preT1', 0): [lambda: check(GL, 3)],
      ('T1', 0): [lambda: wdma(2, [0, 1, 2]), lambda: wdma(3, [0, 1, 2]), lambda: peek(GF)],
      ('preT2', 0): [lambda: check(GF, 3)],
      ('T2', 0): [lambda: wdma(2, [3, 4, 5])] + ([lambda: peek(GL)] if h13 else []),
      ('preT1', 1): [lambda: check(GL, 5)] if h13 else [],
      ('T1', 1): [lambda: wdma(3, [3, 4, 5]), lambda: stamp(9)] + ([l12r] if h13 else []),
      ('preT2', 1): [lambda: landed(6, 6)],
      ('T2', 1): [lambda: wdma(4, [0, 1, 2]), lambda: peek(GL)],
      ('preT1', 2): [lambda: check(GL, 6)],
      ('T1', 2): [lambda: wdma(4, [3, 4, 5])],
      ('T2', 2): [lambda: wdma(5, [0, 1, 2])],
      ('preT1', 3): [lambda: landed(9, 7)],
      ('T1', 3): [lambda: wdma(5, [3, 4, 5])],
      ('T1', 4): [lambda: peek(GL)],
      ('preT2', 4): [lambda: check(GL, 7), lambda: landed(0, 8)],
      ('T2', 5): [lambda: peek(GL)],
      ('preT1', 6): [lambda: check(GL, 8), lambda: stamp(10)],
      ('preT1', 8): [lambda: stamp(11)],
      ('preT1', 10): [lambda: stamp(12)],
    }
    if opt('otouch', '1') == '1':
        H[('T1', 6)] = [lambda: a(f's_mov_b64 exec, 1\nbuffer_load_dword v226, v{vL16}, {srd(sOUT)}, s{sO0} offen\ns_mov_b64 exec, -1')]
    if h13:
        H[('T2', 9)] = [lambda: peek(GF)]
        H[('preT1', 10)] = H[('preT1', 10)] + [lambda: check(GF, 4), pub_rem]
        def reduce12():
            a(f's_cmp_lg_u32 s{sWI}, {RED}\ns_cbranch_scc1 L_nored')
            poll(GL, 9)
            others = [w for w in range(4) if w != RED]
            R = [144, 48, 144]
            def rd(n):
                for i in range(6):
                    a(f'ds_read_b128 {vr(R[n]+4*i,4)}, v{vL16} offset:{S_R + 6144*others[n] + 1024*i}')
            def ad(n):
                if opt('redpk'):
                    for i in range(12):
                        a(f'v_pk_add_f32 {vr(vO+24+2*i,2)}, {vr(vO+24+2*i,2)}, {vr(R[n]+2*i,2)}')
                    return
                for i in range(24):
                    a(f'v_add_f32 v{vO+24+i}, v{vO+24+i}, v{R[n]+i}')
            rd(0); rd(1)
            a('s_waitcnt lgkmcnt(6)'); ad(0); rd(2)
            a('s_waitcnt lgkmcnt(6)'); ad(1)
            a('s_waitcnt lgkmcnt(0)'); ad(2)
            a(f's_add_u32 s{sO1}, s{sO0}, {(4-RED)*43008}')
            row_store(vO + 24, sO1, 48, 144)
            a.label('L_nored')
        H[('T1', 11)] = [reduce12]
        OB = opt('oddb', '8,12')
        if OB != 'n':
            o0, o1 = [int(x) for x in OB.split(',')]
            def boost():
                a(f's_cmp_lg_u32 s{sWI}, {RED}\ns_cbranch_scc1 L_nb\ns_setprio 1')
                a.label('L_nb')
            H.setdefault(('T2', o0), []).append(boost)
            if o1 < 12: H.setdefault(('T2', o1), []).append(lambda: a('s_setprio 0'))
    mlp16([3, 5, 8] if h13 else [], H, lprio)
    stamp(13)
    row_store(vO, sO0)
    finish()
    emit_slow()
    cv = keep
a(f's_cmp_lg_u32 s{sH13}, 13\ns_cbranch_scc1 L_L12')
l_body(True)
a.label('L_L12')
l_body(False)
a.label('L_end')
a('s_endpgm')

body = a.finalize()
hdr = open('cdna_kernels/' + NAME + '.s.ref').read().split('\n')
out = []
for l in hdr:
    if l.startswith('; @launch'):
        out.append('; @launch grid=(256,1,1) block=(512,1,1) lds=163840')
    elif l.startswith(';'):
        out.append(l)
    else:
        break
out.append('.amdgcn_target "amdgcn-amd-amdhsa--gfx950"')
out.append('.text')
out.append(f'.globl {NAME}_kernel')
out.append('.p2align 8')
out.append(f'.type {NAME}_kernel,@function')
out.append(f'{NAME}_kernel:')
for l in body:
    out.append(l if l.endswith(':') else '    ' + l)
out.append(f'''.section .rodata,"a"
.p2align 6
.amdhsa_kernel {NAME}_kernel
  .amdhsa_next_free_vgpr 256
  .amdhsa_next_free_sgpr 102
  .amdhsa_accum_offset 256
  .amdhsa_group_segment_fixed_size 0
  .amdhsa_kernarg_size 64
  .amdhsa_user_sgpr_count 2
  .amdhsa_user_sgpr_kernarg_segment_ptr 1
  .amdhsa_system_sgpr_workgroup_id_x 1
.end_amdhsa_kernel''')
print('\n'.join(out))
```

```python
import sys, struct, math, copy
from asmlib import Asm

NAME = "standalone__modern_conv_block_replknet__vision"
def fbits(x): return struct.unpack('<I', struct.pack('<f', x))[0]
def opt(name, default=None):
    for x in sys.argv:
        if x == '--' + name: return True
        if x.startswith('--' + name + '='): return x.split('=', 1)[1]
    return default
STAMP = opt('stamp'); CYC = opt('cyc'); PRO = opt('pro')
STPOL = ' ' + opt('stpol', 'sc1').replace('_', ' ') if opt('stpol', 'sc1') != 'none' else ''
FOLD = opt('fold', '1') == '1'
GL, GF = (1, 0) if FOLD else (0, 1)

XPOL = ' ' + opt('xpol').replace('_', ' ') if opt('xpol') else ''
XROW = 3840
XB = 73728
PS = 24576
TB, TP = 139264, 976
OUTF, OUTL = 49152, 147456
L12 = OUTL + 4*3072
FL = 163584
S_IF, S_R, S_IL = 0, 24576, OUTL
MARK = 0x40000000
XBYTES = 224 * 224 * 192

k0 = math.sqrt(2.0 / math.pi); k1 = 0.044715
c0 = 2 * k0 / math.log(2.0); c1 = c0 * k1
ga = c1 ** (1.0 / 3.0)
gc = -c0 / ga

sX, sDL, sDS, sW1, sW2, sOUT = 16, 20, 24, 28, 32, 36
sWV, sY0, sX0, sT0, sT1, sT2, sT3 = 40, 41, 42, 43, 44, 45, 46
sH13, sWI = 47, 3
sCA, sCC = 48, 50
sWS = 52
sXM, sIMG, sOB = 56, 57, 62
sWA, sWBm = 58, 59
sO0, sO1 = 60, 61
sST = 64
NST = 16
def srd(b): return f's[{b}:{b+3}]'
vO, vL, vY, vK, vG, vF1, vF2 = 0, 48, [72, 88], [104, 120], 136, 144, 168
vRES, vID = 204, 228
vAW1 = [236, 237, 238, 239]; vAW2 = 245
vLW1 = 204; vLW2 = 212
vDW1 = [220, 221]; vDW2 = [222, 223, 224]
vARL = 225
vSW = [246, 247]; vSR = [240, 241, 242]
vL16 = 244
vFA, vFW, vFP = 243, 248, 249
T = [250, 251, 252, 253, 254]
vLN = 255
vXO = 203; vPF = 202
vAF, vAE, vAE16, vAO, vTF0, vTF1, vTE, vIDX, vAR = 192, 193, 194, 195, 196, 197, 198, 199, [200, 201]
CT = 0
vACC, vAFR, vB = 0, 84, 144
def vr(b, n): return f'v[{b}:{b+n-1}]'

a = Asm()
def _st(i): a(f'{"s_memtime" if CYC else "s_memrealtime"} s[{sST+2*i}:{sST+2*i+1}]')
def pstamp(i):
    if STAMP and PRO and not opt('lc'): _st(i)
def ap(n):
    return 's_memrealtime s[88:89]' if opt('amp') == n else ''
def stamp(i):
    a(ap(str(i)))
    if i in (8, 13): hold(i)
    if STAMP and not (PRO and 9 <= i <= 14): _st(i)
def mksrd(b, lo, n):
    a(f's_mov_b64 s[{b}:{b+1}], s[{lo}:{lo+1}]\ns_mov_b32 s{b+2}, {n}\ns_mov_b32 s{b+3}, 0x00020000')
def hold(tag):
    h = opt('hold')
    if h and h.split(':')[0] == str(tag):
        n = nlab[0]; nlab[0] += 1
        a(f's_waitcnt lgkmcnt(0)\ns_add_u32 s92, s94, {h.split(":")[1]}')
        a.label(f'L_hold{n}')
        a(f's_memrealtime s[90:91]\ns_waitcnt lgkmcnt(0)\ns_sub_u32 s93, s92, s90\ns_cmp_gt_i32 s93, 0\ns_cbranch_scc1 L_hold{n}')
def bar(i=None):
    jitter()
    a('s_barrier')
    jitter()
    hold(i)
    if i is not None: stamp(i)
def setexec(lo, hi):
    a(f's_mov_b32 exec_lo, {lo:#x}\ns_mov_b32 exec_hi, {hi:#x}')

nlab = [0]; slow = []
def guard():
    if opt('safe'): a('s_sub_u32 s98, s98, 1\ns_cbranch_scc1 L_end')
def jitter():
    if opt('jitter'):
        n = nlab[0]; nlab[0] += 1
        a(f's_mul_i32 s86, s86, 1103515245\ns_add_u32 s86, s86, 12345\ns_lshr_b32 s87, s86, {opt("jitter")}')
        a.label(f'L_jit{n}')
        a(f's_sleep 2\ns_sub_u32 s87, s87, 1\ns_cbranch_scc0 L_jit{n}')
def signal(v, emit=None):
    jitter()
    a(f'v_mov_b32 v{T[4]}, {v}')
    (emit or a)(f'ds_write_b32 v{vFW}, v{T[4]}')
def poll(grp, v):
    lab = f'L_poll{nlab[0]}'; nlab[0] += 1
    a.label(lab)
    guard()
    a(f'ds_read_b32 v{vFP}, v{vFA} offset:{16*grp}\ns_waitcnt lgkmcnt(0)\nv_cmp_gt_u32 vcc, {v}, v{vFP}\ns_cbranch_vccnz {lab}')
def peek(grp): a(f'ds_read_b32 v{vFP}, v{vFA} offset:{16*grp}')
def check(grp, v):
    jitter()
    n = nlab[0]; nlab[0] += 1
    a(f'v_cmp_gt_u32 vcc, {v}, v{vFP}\ns_cbranch_vccnz L_slow{n}')
    a.label(f'L_back{n}')
    slow.append((n, grp, v))
def emit_slow():
    for n, grp, v in slow:
        a.label(f'L_slow{n}')
        guard()
        a(f'ds_read_b32 v{vFP}, v{vFA} offset:{16*grp}\ns_waitcnt lgkmcnt(0)\nv_cmp_gt_u32 vcc, {v}, v{vFP}\ns_cbranch_vccnz L_slow{n}\ns_branch L_back{n}')
    slow.clear()
def landed(n, v):
    a(f's_waitcnt vmcnt({n})'); signal(v)

def wdma(p, parts=range(6)):
    jitter()
    for i in parts:
        if i < 3:
            a(f'''
            s_add_u32 m0, s{sWBm}, {PS*p + 1024*i}
            s_add_u32 s{sT0}, s{sWA}, {6144*i + 128*p}
            buffer_load_dwordx4 v{vDW1[i & 1]}, {srd(sW1)}, s{sT0} offen lds
            ''')
        else:
            if i == 3 or i - 1 not in parts:
                a(f's_add_u32 m0, s{sWBm}, {PS*p + 12288}\ns_add_u32 s{sT0}, s{sWBm}, {12288*p}')
            a(f'buffer_load_dwordx4 v{vDW2[i-3]}, {srd(sW2)}, s{sT0} offen offset:{1024*(i-3)} lds')

def ln(raw, U, dst, rows16, mid=None, mid2=None):
    n = len(dst)
    S, Q, ONE = T[1], T[3], T[4]
    sc, bi = T[0], T[2]
    a(f'v_mov_b32 v{ONE}, 0x3f803f80')
    un = []
    for i in range(n):
        un.append(f'v_lshlrev_b32 v{U+2*i}, 16, v{raw+i}')
        un.append(f'v_and_b32 v{U+2*i+1}, 0xffff0000, v{raw+i}')
    while len(un) > 8: a(un.pop(0))
    for i in range(n):
        a(f'v_dot2_f32_bf16 v{S}, v{raw+i}, v{ONE}, {"0" if i == 0 else f"v{S}"}')
        a(f'v_dot2_f32_bf16 v{Q}, v{raw+i}, v{raw+i}, {"0" if i == 0 else f"v{Q}"}')
    def fill(k):
        for _ in range(k):
            if un: a(un.pop(0))
    fill(3)
    a(f'v_permlane32_swap_b32 v{S}, v{Q}')
    a(f'v_add_f32 v{S}, v{S}, v{Q}')
    if rows16:
        a(f'v_mov_b32 v{Q}, v{S}')
        fill(2)
        a(f'v_permlane16_swap_b32 v{S}, v{Q}')
        a(f'v_add_f32 v{S}, v{S}, v{Q}')
    a(f'v_mul_f32 v{S}, {fbits(1.0/96):#x}, v{S}')
    a(f'v_mov_b32 v{Q}, v{S}')
    fill(2)
    a(f'v_permlane32_swap_b32 v{S}, v{Q}')
    a(f'''
    v_fma_f32 v{Q}, -v{S}, v{S}, v{Q}
    v_max_f32 v{Q}, 0, v{Q}
    v_add_f32 v{Q}, {fbits(1e-5):#x}, v{Q}
    v_rsq_f32 v{Q}, v{Q}
    ''')
    fill(1)
    a(f'v_mul_f32 v{sc}, {fbits(ga):#x}, v{Q}')
    a(f'v_mul_f32 v{bi}, -v{S}, v{sc}')
    fill(1000)
    if mid: mid()
    for i in range(n):
        if opt('lnplain'):
            a(f'v_fma_f32 v{U+2*i}, v{U+2*i}, v{sc}, v{bi}\nv_fma_f32 v{U+2*i+1}, v{U+2*i+1}, v{sc}, v{bi}')
        else:
            a(f'v_pk_fma_f32 {vr(U+2*i,2)}, {vr(U+2*i,2)}, {vr(sc,2)}, {vr(bi,2)} op_sel_hi:[1,0,0]')
    if mid2: mid2()
    for i in range(n):
        a(f'v_cvt_pk_bf16_f32 v{dst[i]}, v{U+2*i}, v{U+2*i+1}')

def pk_t(Y, K, n):
    return [f'v_pk_fma_f32 {vr(K+2*i,2)}, {vr(Y+2*i,2)}, {vr(Y+2*i,2)}, s[{sCC}:{sCC+1}] neg_lo:[1,0,0] neg_hi:[1,0,0]' for i in range(n//2)] + pk_m(Y, K, n)
def pk_m(Y, K, n): return [f'v_pk_mul_f32 {vr(K+2*i,2)}, {vr(Y+2*i,2)}, {vr(K+2*i,2)}' for i in range(n//2)]
def pk_d(K, n): return [f'v_pk_fma_f32 {vr(K+2*i,2)}, {vr(K+2*i,2)}, s[{sCA}:{sCA+1}], s[{sCA}:{sCA+1}]' for i in range(n//2)]
def emit(l):
    for t in l: a(t)

def mlp32(hooks, prio):
    N = 12
    moved = {'w1': False, 'w2': False}
    def move(kind, c):
        if c >= 6 and not moved[kind]:
            for r in (vAW1 if kind == 'w1' else [vAW2]): a(f'v_add_u32 v{r}, {3*PS}, v{r}')
            moved[kind] = True
    def w1reads(c):
        for ks in range(6):
            off = ((c >> 1) % 3) * PS + (ks >> 1) * 4096 + (ks & 1) * 1024
            r = vAW1[(c & 1) + 2 * (ks & 1)]
            a(f'ds_read_b64_tr_b16 {vr(vF1+4*ks,2)}, v{r} offset:{off}')
            a(f'ds_read_b64_tr_b16 {vr(vF1+4*ks+2,2)}, v{r} offset:{off+512}')
    def w2reads(c):
        for i in range(6):
            ks2, mt = i // 3, i % 3
            off = ((c >> 1) % 3) * PS + (c & 1) * 6144 + ks2 * 3072 + mt * 64
            a(f'ds_read_b64_tr_b16 {vr(vF2+4*i,2)}, v{vAW2} offset:{off}')
            a(f'ds_read_b64_tr_b16 {vr(vF2+4*i+2,2)}, v{vAW2} offset:{off+1536}')
    def g1(c, ks):
        Y = vY[c & 1]
        a(f'v_mfma_f32_32x32x16_bf16 {vr(Y,16)}, {vr(vF1+4*ks,4)}, {vr(vL+4*ks,4)}, {"0" if ks == 0 else vr(Y,16)}')
    def g2(i):
        ks2, mt = i // 3, i % 3
        a(f'v_mfma_f32_32x32x16_bf16 {vr(vO+16*mt,16)}, {vr(vF2+4*i,4)}, {vr(vG+4*ks2,4)}, {vr(vO+16*mt,16)}')
    def resm(ks):
        j, mt = ks // 3, ks % 3
        a(f'v_mfma_f32_32x32x16_bf16 {vr(vO+16*mt,16)}, {vr(vID+4*j,4)}, {vr(vRES+4*(2*mt+j),4)}, {"0" if j == 0 else vr(vO+16*mt,16)}')
    def hook(k):
        for f in hooks.get(k, []): f()
    def pr(c, v):
        if prio(c) is not None: a(f's_setprio {prio(c)[v]}')
    hook('pre')
    a('s_waitcnt lgkmcnt(0)')
    for ks in range(6): g1(0, ks)
    w1reads(1)
    hook('start3')
    for c in range(N + 1):
        Y, K = vY[c & 1], vK[c & 1]
        Yp, Kp = vY[(c - 1) & 1], vK[(c - 1) & 1]
        pr(c, 1)
        if c >= 1: emit(pk_m(Yp, Kp, 16))
        if c < N: emit(pk_t(Y, K, 16))
        cv = [f'v_cvt_pk_bf16_f32 v{vG+i}, v{Kp+2*i}, v{Kp+2*i+1}' for i in range(8)] if c >= 1 else []
        if c == N:
            emit(cv)
            a('s_waitcnt lgkmcnt(0)')
            for i in (0, 3, 1, 4, 2, 5): g2(i)
            break
        ex = [f'v_exp_f32 v{K+i}, v{K+i}' for i in range(16)]
        rc = [f'v_rcp_f32 v{K+i}, v{K+i}' for i in range(16)]
        last = c + 1 >= N
        if c + 2 < N: move('w1', c + 2)
        move('w2', c)
        if c == 0:
            gaps = [ex[0:3], ex[3:6], ex[6:9], ex[9:12], ex[12:15], ex[15:16]]
            a('s_waitcnt lgkmcnt(0)')
            for j in range(6):
                g1(1, j); emit(gaps[j])
        elif not last:
            gaps = [cv[0:4] + ex[0:1], cv[4:8] + ex[1:2], ex[2:5], ex[5:8], ex[8:11], ex[11:14], ex[14:16]]
            for j in range(7):
                if j < 6: g1(c + 1, j)
                else: g2(0)
                if j == 5: a('s_waitcnt lgkmcnt(0)')
                emit(gaps[j])
        else:
            emit(cv); emit(ex[0:4])
            a('s_waitcnt lgkmcnt(0)')
            gaps = [ex[4:8], ex[8:12], ex[12:16]]
            for j in range(3):
                g2(j); emit(gaps[j])
        hook(('preT1', c))
        pr(c, 0)
        if c + 2 < N: w1reads(c + 2)
        hook(('T1', c))
        pr(c, 1)
        emit(pk_d(K, 16))
        if c == 0:
            gp = [rc[0:3], rc[3:6], rc[6:9], rc[9:12], rc[12:14], rc[14:16]]
            for j in range(6):
                resm(j)
                if j == 5: a('s_waitcnt lgkmcnt(0)')
                emit(gp[j])
        elif not last:
            gp = [rc[0:3], rc[3:6], rc[6:9], rc[9:12], rc[12:16]]
            for j in range(5):
                g2(j + 1)
                if j == 4: a('s_waitcnt lgkmcnt(0)')
                emit(gp[j])
        else:
            gp = [rc[0:3], rc[3:6], rc[6:16]]
            for j in range(3):
                g2(j + 3)
                if j == 2: w2reads(c)
                emit(gp[j])
        hook(('preT2', c))
        pr(c, 0)
        if not last: w2reads(c)
        hook(('T2', c))
    return w1reads

def f_w1reads0():
    for ks in range(6):
        off = (ks >> 1) * 4096 + (ks & 1) * 1024
        r = vAW1[2 * (ks & 1)]
        a(f'ds_read_b64_tr_b16 {vr(vF1+4*ks,2)}, v{r} offset:{off}')
        a(f'ds_read_b64_tr_b16 {vr(vF1+4*ks+2,2)}, v{r} offset:{off+512}')

def l_w1reads(s):
    for i in range(6):
        mt2, ks3 = i // 3, i % 3
        off = ((s >> 2) & 1) * 2 * PS + ks3 * 4096
        r = vLW1 + mt2 + 2 * (s & 3)
        a(f'ds_read_b64_tr_b16 {vr(vF1+4*i,2)}, v{r} offset:{off}')
        a(f'ds_read_b64_tr_b16 {vr(vF1+4*i+2,2)}, v{r} offset:{off+512}')

def mlp16(doubles, hooks, prio):
    N = 12
    def wid(s): return 0 if (s < 0 or s >= N) else (2 if s in doubles else 1)
    def move(base):
        for r in range(8): a(f'v_add_u32 v{base+r}, {4*PS}, v{base+r}')
    def w2reads(s):
        for i in range(6):
            off = ((s >> 2) & 1) * 2 * PS + 64 * (i >> 1)
            r = vLW2 + (i & 1) + 2 * (s & 3)
            a(f'ds_read_b64_tr_b16 {vr(vF2+4*i,2)}, v{r} offset:{off}')
            a(f'ds_read_b64_tr_b16 {vr(vF2+4*i+2,2)}, v{r} offset:{off+3072}')
    def m1(s):
        l = []
        for t in range(wid(s)):
            for j in range(6):
                mt2, ks3 = j & 1, j >> 1
                D = vY[s & 1] + 8 * t + 4 * mt2
                l.append(f'v_mfma_f32_16x16x32_bf16 {vr(D,4)}, {vr(vF1+4*(mt2*3+ks3),4)}, {vr(vL+12*t+4*ks3,4)}, {"0" if ks3 == 0 else vr(D,4)}')
        return l
    def m2(s):
        return [f'v_mfma_f32_16x16x32_bf16 {vr(vO+24*t+4*i,4)}, {vr(vF2+4*i,4)}, {vr(vG+4*t,4)}, {vr(vO+24*t+4*i,4)}' for t in range(wid(s)) for i in range(6)]
    def weave(ms, fl):
        fl = list(fl)
        if not ms:
            emit(fl); a('s_waitcnt lgkmcnt(0)'); return
        for j, m in enumerate(ms):
            a(m)
            if j == len(ms) - 1: a('s_waitcnt lgkmcnt(0)')
            k = -(-len(fl) // (len(ms) - j))
            emit(fl[:k]); fl = fl[k:]
    def hook(k):
        for f in hooks.get(k, []): f()
    def pr(c, v):
        if prio(c) is not None: a(f's_setprio {prio(c)[v]}')
    hook('pre')
    a('s_waitcnt lgkmcnt(0)')
    emit(m1(0))
    l_w1reads(1)
    hook('start3')
    for s in range(N + 1):
        Y, K = vY[s & 1], vK[s & 1]
        Yp, Kp = vY[(s - 1) & 1], vK[(s - 1) & 1]
        n, np_ = 8 * wid(s), 8 * wid(s - 1)
        pr(s, 1)
        emit(pk_m(Yp, Kp, np_))
        emit(pk_t(Y, K, n))
        cv = [f'v_cvt_pk_bf16_f32 v{vG+i}, v{Kp+2*i}, v{Kp+2*i+1}' for i in range(np_ // 2)]
        if s == N:
            emit(cv)
            a('s_waitcnt lgkmcnt(0)')
            emit(m2(N - 1))
            break
        ex = [f'v_exp_f32 v{K+i}, v{K+i}' for i in range(n)]
        rc = [f'v_rcp_f32 v{K+i}, v{K+i}' for i in range(n)]
        if s + 2 == 8: move(vLW1)
        if s == 8: move(vLW2)
        if s == 0: a('s_waitcnt lgkmcnt(0)')
        weave(m1(s + 1), cv + ex)
        hook(('preT1', s))
        pr(s, 0)
        if s + 2 < N: l_w1reads(s + 2)
        hook(('T1', s))
        pr(s, 1)
        emit(pk_d(K, n))
        weave(m2(s - 1), rc)
        hook(('preT2', s))
        pr(s, 0)
        w2reads(s)
        hook(('T2', s))

def finish():
    if opt('amp'):
        n = nlab[0]; nlab[0] += 1
        if opt('amp') == 'end': a(f's_waitcnt vmcnt(0)\ns_memrealtime s[88:89]\ns_mov_b32 s{sH13}, 13')
        a(f's_waitcnt vmcnt(0) lgkmcnt(0)\ns_sub_u32 s92, s88, s94\ns_lshl_b32 s92, s92, 2\ns_cmp_eq_u32 s88, 0\ns_cselect_b32 s92, 0, s92')
        a(f's_cmp_eq_u32 s{sH13}, {opt("amprows", 13)}\ns_cselect_b32 s92, s92, 0\ns_add_u32 s92, s92, 1400\ns_add_u32 s92, s92, s94')
        a.label(f'L_amp{n}')
        a(f's_memrealtime s[90:91]\ns_waitcnt lgkmcnt(0)\ns_sub_u32 s93, s92, s90\ns_cmp_gt_i32 s93, 0\ns_cbranch_scc1 L_amp{n}')
    if STAMP:
        stamp(14)
        a('s_waitcnt vmcnt(0)')
        stamp(15)
        a('s_waitcnt lgkmcnt(0)')
        if opt('dbg'):
            n = nlab[0]; nlab[0] += 1
            a(f's_cmp_lg_u32 s2, {opt("dbg")}\ns_cbranch_scc1 L_nd{n}\ns_cmp_lg_u32 s{sWI}, 0\ns_cbranch_scc1 L_nd{n}')
            a(f's_lshl_b32 s{sT0}, s{sWV}, 3\nv_mov_b32 v{T[1]}, s{sT0}\ns_mov_b64 exec, 1')
            for k, i in enumerate((1, 2, 3, 4, 8, 10, 13, 15)):
                a(f's_sub_u32 s{sT0}, s{sST+2*i}, s{sST}\nv_mov_b32 v{T[0]}, s{sT0}')
                a(f'buffer_store_dword v{T[0]}, v{T[1]}, {srd(sWS)}, 0 offen offset:{4*k}')
            a.label(f'L_nd{n}')
            a('s_endpgm')
            return
        a(f'''
        s_lshl_b32 s{sT0}, s2, 3
        s_add_u32 s{sT0}, s{sT0}, s{sWV}
        s_lshl_b32 s{sT0}, s{sT0}, 6
        v_mov_b32 v{T[1]}, s{sT0}
        s_mov_b64 exec, 1
        ''')
        for i in range(NST):
            a(f'v_mov_b32 v{T[0]}, s{sST+2*i}')
            a(f'buffer_store_dword v{T[0]}, v{T[1]}, {srd(sWS)}, 0 offen offset:{4*i}')
    a('s_endpgm')

def tab_reads(gi, em):
    A = vAFR + 20 * gi; o = 64 * gi
    for d in range(3):
        em(f'ds_read_b64_tr_b16 {vr(A+4*d,2)}, v{vTF0} offset:{o + 2*d*TP}')
        em(f'ds_read_b64_tr_b16 {vr(A+4*d+2,2)}, v{vTF1} offset:{o + 2*d*TP}')
    for par in range(2):
        for pp in range(2):
            em(f'ds_read_b64_tr_b16 {vr(A+12+4*par+2*pp,2)}, v{vTE} offset:{o + (pp - 2*par + 2)*TP}')
RING = 6
class Conv:
    def __init__(self, k0): self.n = 0; self.slot = 0; self.k0 = k0
    def acc(self, gi, k): return vACC + 16 * gi + 4 * (k - self.k0)
    def ds(self, t): a(t); self.n += 1; return self.n
    def wait(self, seq): a(f's_waitcnt lgkmcnt({min(15, self.n - seq)})')
    def reads(self, it):
        B = it['B']; go = 64 * it['gi']; idx = it['idx']; kind = it['kind']
        if kind == 'F':
            r0, r1 = 2 * idx, min(2 * idx + 1, 16)
            return [f'ds_read_b128 {vr(B,4)}, v{vAF} offset:{r0*XROW+go}', f'ds_read_b128 {vr(B+4,4)}, v{vAF} offset:{r1*XROW+go}']
        if kind == 'E':
            return [f'ds_read_b128 {vr(B,4)}, v{vAE} offset:{2*idx*XROW+go}', f'ds_read_b128 {vr(B+4,4)}, v{vAE} offset:{(2*idx+4)*XROW+go}']
        return [f'ds_read_b128 {vr(B,4)}, v{vAE} offset:{12*XROW+go}', f'ds_read_b128 {vr(B+4,4)}, v{vAE16} offset:{16*XROW+go}']
    def cvt(self, lst):
        for gi, k in lst:
            A = self.acc(gi, k)
            a(f'v_cvt_pk_bf16_f32 v{A}, v{A}, v{A+1}\nv_cvt_pk_bf16_f32 v{A+1}, v{A+2}, v{A+3}')
    def write(self, lst):
        for gi, k in lst:
            A = self.acc(gi, k)
            if k == 6: setexec(0xffff, 0xffff)
            self.ds(f'ds_write_b64 v{vAO}, {vr(A,2)} offset:{(k-self.k0)*6144+64*gi}')
            if k == 6: a('s_mov_b64 exec, -1')
    def run(self, items, stop_at=None):
        D = RING - 1
        nxt = 0
        while nxt < len(items) and 'seq' in items[nxt]: nxt += 1
        def start(j):
            items[j]['B'] = vB + 8 * (self.slot % RING); self.slot += 1
            return self.reads(items[j])
        while nxt < min(D, len(items)):
            for t in start(nxt): items[nxt]['seq'] = self.ds(t)
            nxt += 1
        end = len(items) if stop_at is None else stop_at
        for i in range(end):
            it = items[i]
            self.wait(it['seq'])
            pend = start(nxt) if nxt < len(items) else []
            A = vAFR + 20 * it['gi']
            had = bool(pend)
            for k in it['outs']:
                fr = (it['idx'] - k) if it['kind'] == 'F' else 3 + (k - it['idx'])
                a(f'v_smfmac_f32_16x16x64_bf16 {vr(self.acc(it["gi"], k),4)}, {vr(A+4*fr,4)}, {vr(it["B"],8)}, v{vIDX}')
                if pend: items[nxt]['seq'] = self.ds(pend.pop(0))
            for t in pend: items[nxt]['seq'] = self.ds(t)
            if had: nxt += 1
            if it.get('pub'):
                self.cvt(it['pub'])
                if not it.get('nowrite'): self.write(it['pub'])
            if it.get('post'): it['post']()
        return items[end:]
def stage(frags): return [dict(gi=gi, kind=k, idx=i, outs=list(o)) for gi in range(3) for (k, i, o) in frags]
def add_pub(items, base, nfr, pairs, nowrite=False):
    for gi in range(3):
        j = min(base + nfr * (gi + 1), len(items) - 1)
        items[j].setdefault('pub', []).extend((gi, k) for k in pairs)
        items[j]['nowrite'] = nowrite

def late_setup():
    mksrd(sOUT, 14, XBYTES)
    if opt('safe'): a('s_mov_b32 s98, 200000')
    a(f'''
    s_mov_b32 s{sCA}, {fbits(ga):#x}
    s_mov_b32 s{sCA+1}, {fbits(ga):#x}
    s_mov_b32 s{sCC}, {fbits(gc):#x}
    s_mov_b32 s{sCC+1}, {fbits(gc):#x}
    s_add_u32 s{sT0}, s{sWI}, s{sY0}
    s_mul_i32 s{sT0}, s{sT0}, 224
    s_add_u32 s{sT0}, s{sT0}, s{sX0}
    s_mul_i32 s{sO0}, s{sT0}, 192
    ''')
    if STAMP:
        a(f's_mov_b32 s{sWS+2}, {256 if opt("dbg") else 0x10000000}\ns_mov_b32 s{sWS+3}, 0x00020000')
        for i in (7,): a(f's_mov_b32 s{sST+2*i}, 0')

q = [4, 5, 6, 7]
def ctw(j, r=4): a(f'ds_write_b128 v{vL16}, {vr(r,4)} offset:{CT + 1024*j}')
def ctr(j, r, em=None): (em or a)(f'ds_read_b128 {vr(r,4)}, v{vL16} offset:{CT + 1024*j}')
def ct0():
    a(f"""
    v_and_b32 v{T[0]}, 15, v{vLN}
    v_bfe_u32 v{T[1]}, v{vLN}, 4, 1
    v_lshrrev_b32 v{T[3]}, 5, v{vLN}
    v_lshl_add_u32 v{T[2]}, v{T[1]}, 1, v{T[3]}
    v_add_u32 v{T[2]}, v{T[0]}, v{T[2]}
    v_bfe_u32 v{T[4]}, v{T[2]}, 2, 2
    v_mul_u32_u24 v{T[2]}, 192, v{T[2]}
    v_lshl_add_u32 v4, v{T[4]}, 4, v{T[2]}
    v_add_u32 v4, {XB}, v4
    v_add_u32 v{T[2]}, 4, v{T[0]}
    v_bfe_u32 v{T[4]}, v{T[2]}, 2, 2
    v_mul_u32_u24 v{T[2]}, 192, v{T[2]}
    v_lshl_add_u32 v6, v{T[4]}, 4, v{T[2]}
    v_add_u32 v6, {XB}, v6
    v_lshrrev_b32 v{T[2]}, 4, v{vLN}
    v_mul_u32_u24 v{T[2]}, {XROW}, v{T[2]}
    v_add_u32 v5, v6, v{T[2]}
    v_bfe_u32 v{T[4]}, v{vLN}, 2, 2
    v_and_b32 v{T[2]}, 31, v{vLN}
    v_mul_u32_u24 v{T[2]}, 192, v{T[2]}
    v_lshl_add_u32 v{T[2]}, v{T[4]}, 4, v{T[2]}
    v_bfe_u32 v{T[4]}, v{vLN}, 1, 1
    v_xor_b32 v{T[3]}, v{T[3]}, v{T[4]}
    v_lshl_add_u32 v7, v{T[3]}, 3, v{T[2]}
    """)
    ctw(0)
    for j in range(3):
        a(f"""
        v_add_u32 v{T[0]}, {64*j}, v{vLN}
        v_mul_u32_u24 v{T[2]}, 171, v{T[0]}
        v_bfe_u32 v{T[2]}, v{T[2]}, 12, 2
        v_xor_b32 v{T[0]}, v{T[0]}, v{T[2]}
        v_lshlrev_b32 v{8+j}, 4, v{T[0]}
        """)
    a(f'v_and_b32 v{T[0]}, 3, v{vLN}\nv_lshlrev_b32 v11, 2, v{T[0]}\nv_add_u32 v11, {FL}, v11')
    ctw(2, 8)
    a(f'v_add_u32 v{T[0]}, {TB}, v{vL16}\nv_mov_b64 v[0:1], 0\nv_mov_b64 v[2:3], 0')
    for off in (0, 2*TP - 1024, 5*TP, 5*TP + 1024, 8*TP - 1024, 13*TP, 13*TP + 1024, 16*TP - 1024):
        a(f'ds_write_b128 v{T[0]}, v[0:3] offset:{off}')
def ct1():
    a(f"""
    v_and_b32 v{T[0]}, 3, v{vLN}
    v_mul_u32_u24 v7, 0x5555, v{T[0]}
    s_mov_b32 s{sT2}, {TB}
    v_bfe_u32 v{T[1]}, v{vLN}, 1, 1
    v_lshl_add_u32 v{T[4]}, v{T[1]}, 3, s{sT2}
    v_and_b32 v{T[0]}, 1, v{vLN}
    v_lshrrev_b32 v{T[1]}, 5, v{vLN}
    v_mul_u32_u24 v6, {TP}, v{T[1]}
    v_sub_u32 v{T[1]}, v{T[1]}, v{T[0]}
    v_bfe_u32 v{T[2]}, v{vLN}, 2, 1
    v_mad_i32_i24 v{T[1]}, v{T[2]}, -7, v{T[1]}
    v_add_u32 v{T[1]}, 8, v{T[1]}
    v_mul_u32_u24 v{T[1]}, {TP}, v{T[1]}
    v_bfe_u32 v{T[2]}, v{vLN}, 4, 1
    v_mul_u32_u24 v{T[2]}, 192, v{T[2]}
    v_add3_u32 v{T[3]}, v{T[1]}, v{T[2]}, v{T[4]}
    v_lshrrev_b32 v{T[1]}, 4, v{vLN}
    v_lshlrev_b32 v{T[2]}, 1, v{T[1]}
    v_sub_u32 v{T[2]}, v{T[2]}, v{T[0]}
    v_add_u32 v{T[2]}, 6, v{T[2]}
    v_mul_u32_u24 v{T[2]}, {TP}, v{T[2]}
    v_add_u32 v4, s{sT2}, v6
    v_add_u32 v5, {TP}, v4
    v_mov_b32 v6, s{sT2}
    s_mov_b32 exec_lo, 0xcc33cc33
    s_mov_b32 exec_hi, 0xcc33cc33
    v_mov_b32 v4, v{T[3]}
    v_add_u32 v5, 384, v{T[3]}
    s_mov_b32 exec_lo, 0x0c030c03
    s_mov_b32 exec_hi, 0x0c030c03
    v_add_u32 v{T[2]}, 768, v{T[2]}
    v_add_u32 v6, v{T[2]}, v{T[4]}
    s_mov_b64 exec, -1
    """)
    ctw(1)
    a(f"""
    v_lshrrev_b32 v{T[0]}, 3, v{vLN}
    v_mul_u32_u24 v{T[0]}, 768, v{T[0]}
    v_bfe_u32 v{T[1]}, v{vLN}, 4, 1
    v_lshlrev_b32 v{T[1]}, 2, v{T[1]}
    v_and_b32 v{T[2]}, 7, v{vLN}
    v_xor_b32 v{T[1]}, v{T[1]}, v{T[2]}
    v_lshl_add_u32 v8, v{T[1]}, 4, v{T[0]}
    v_mov_b32 v9, v{vL16}
    v_mov_b32 v10, v{vL16}
    v_mov_b32 v11, v{vL16}
    s_mov_b32 exec_lo, 0xffff0000
    v_xor_b32 v11, 32, v{vL16}
    s_mov_b32 exec_lo, 0
    s_mov_b32 exec_hi, 0xffff0000
    v_xor_b32 v9, 32, v{vL16}
    s_mov_b32 exec_lo, -1
    s_mov_b32 exec_hi, 0
    v_xor_b32 v10, 32, v{vL16}
    s_mov_b64 exec, -1
    """)
    ctw(7, 8)
def ct2():
    a(f"""
    v_lshrrev_b32 v{T[4]}, 5, v{vLN}
    v_bfe_u32 v{T[0]}, v{vLN}, 2, 2
    v_bfe_u32 v{T[1]}, v{vLN}, 4, 1
    v_and_b32 v{T[2]}, 3, v{vLN}
    v_lshl_add_u32 v{T[3]}, v{T[4]}, 4, v{T[0]}
    v_lshlrev_b32 v{T[3]}, 7, v{T[3]}
    v_lshl_add_u32 v{T[3]}, v{T[1]}, 5, v{T[3]}
    v_lshl_add_u32 v{T[3]}, v{T[2]}, 3, v{T[3]}
    v_bfe_u32 v{T[2]}, v{vLN}, 3, 1
    v_lshl_add_u32 v4, v{T[2]}, 6, v{T[3]}
    v_xor_b32 v5, 64, v4
    v_xor_b32 v6, 32, v4
    v_xor_b32 v7, 0x60, v4
    """)
    ctw(3)
    a(f"""
    v_lshl_add_u32 v{T[3]}, v{T[4]}, 2, v{T[0]}
    v_mul_u32_u24 v{T[3]}, 192, v{T[3]}
    v_lshl_add_u32 v{T[3]}, v{T[1]}, 4, v{T[3]}
    v_and_b32 v{T[2]}, 1, v{vLN}
    v_xor_b32 v{T[2]}, v{T[2]}, v{T[4]}
    v_lshl_add_u32 v{T[3]}, v{T[2]}, 5, v{T[3]}
    v_bfe_u32 v{T[2]}, v{vLN}, 1, 1
    v_lshl_add_u32 v8, v{T[2]}, 3, v{T[3]}
    v_and_b32 v{T[3]}, 15, v{vLN}
    v_mul_u32_u24 v{T[3]}, 192, v{T[3]}
    v_add_u32 v16, 2, v{vLN}
    v_bfe_u32 v16, v16, 2, 2
    v_bfe_u32 v17, v{vLN}, 1, 2
    v_lshl_add_u32 v18, v{T[1]}, 3, v{T[3]}
    v_xor_b32 v12, v{T[4]}, v17
    v_lshl_add_u32 v12, v12, 4, v18
    v_xor_b32 v13, v{T[4]}, v16
    v_lshl_add_u32 v13, v13, 4, v18
    v_lshlrev_b32 v{T[4]}, 1, v{T[4]}
    v_xor_b32 v{T[0]}, v{T[4]}, v{T[0]}
    v_lshl_add_u32 v{T[0]}, v{T[0]}, 4, v{T[3]}
    v_lshl_add_u32 v{T[0]}, v{T[2]}, 3, v{T[0]}
    v_mul_u32_u24 v{T[2]}, {4*3072}, v{T[1]}
    v_add_u32 v9, v{T[0]}, v{T[2]}
    v_xor_b32 v16, v{T[4]}, v16
    v_lshl_add_u32 v16, v16, 4, v{T[3]}
    v_mul_u32_u24 v{T[2]}, {4*XROW}, v{T[1]}
    v_add_u32 v10, v16, v{T[2]}
    v_xor_b32 v17, v{T[4]}, v17
    v_lshl_add_u32 v17, v17, 4, v{T[3]}
    v_mul_u32_u24 v{T[2]}, 3072, v{T[1]}
    v_add_u32 v11, v17, v{T[2]}
    v_mov_b64 v[14:15], 0
    """)
    ctw(4, 8); ctw(9, 12)
def ct3():
    a(f"""
    v_and_b32 v{T[1]}, 1, v{vLN}
    v_lshlrev_b32 v{T[1]}, 4, v{T[1]}
    v_mov_b32 v{T[2]}, 0x3f80
    v_lshlrev_b32 v{T[1]}, v{T[1]}, v{T[2]}
    """)
    for i in range(4): a(f'v_mov_b64 {vr(4+2*i,2)}, 0')
    for i in range(8):
        pos = 16 * (i >> 2) + 8 * ((i >> 1) & 1) + 2 * (i & 1)
        setexec(3 << pos, 3 << (pos + 4))
        a(f'v_mov_b32 v{4+i}, v{T[1]}')
    a('s_mov_b64 exec, -1')
    ctw(5, 4); ctw(6, 8)
    a(f"""
    v_lshrrev_b32 v{T[4]}, 4, v{vLN}
    v_bfe_u32 v{T[0]}, v{vLN}, 2, 2
    v_and_b32 v{T[2]}, 3, v{vLN}
    v_bfe_u32 v{T[1]}, v{vLN}, 4, 1
    v_lshlrev_b32 v{T[2]}, 3, v{T[2]}
    v_lshl_add_u32 v{T[2]}, v{T[1]}, 5, v{T[2]}
    v_lshl_add_u32 v{T[3]}, v{T[4]}, 3, v{T[0]}
    v_lshl_add_u32 v{T[3]}, v{T[3]}, 7, v{T[2]}
    v_bfe_u32 v{T[1]}, v{vLN}, 3, 1
    v_lshl_add_u32 v12, v{T[1]}, 6, v{T[3]}
    v_lshl_add_u32 v{T[3]}, v{T[4]}, 2, v{T[0]}
    v_mul_u32_u24 v{T[3]}, 192, v{T[3]}
    v_add_u32 v13, v{T[3]}, v{T[2]}
    v_xor_b32 v{T[0]}, v{T[4]}, v{T[0]}
    v_and_b32 v{T[3]}, 15, v{vLN}
    v_mul_u32_u24 v{T[3]}, 192, v{T[3]}
    v_lshl_add_u32 v14, v{T[0]}, 4, v{T[3]}
    v_bfe_u32 v{T[1]}, v{vLN}, 1, 1
    v_lshl_add_u32 v15, v{T[1]}, 3, v14
    """)
    ctw(8, 12)
def pre_common():
    for i in range(24): a(f'v_mov_b64 {vr(vACC+2*i,2)}, 0')
    a(f"""
    s_lshl_b32 s{sT0}, s{sWV}, 2
    s_add_u32 s{sT0}, s{sT0}, {FL}
    v_mov_b32 v{vFW}, s{sT0}
    ds_write_b32 v{vFW}, v0
    s_mul_i32 s{sWA}, s{sWI}, {3*6144}
    s_mul_i32 s{sWBm}, s{sWI}, 3072
    """)
    mksrd(sW1, 10, 73728); mksrd(sW2, 12, 73728)
    late_setup()
def fix_conv():
    a(f"""
    s_lshl_b32 s{sT0}, s{sWI}, 4
    v_add_u32 v{vTF0}, s{sT0}, v{vTF0}
    v_add_u32 v{vTF1}, s{sT0}, v{vTF1}
    v_add_u32 v{vTE}, s{sT0}, v{vTE}
    v_xor_b32 v{vAF}, s{sT0}, v{vAF}
    v_xor_b32 v{vAE}, s{sT0}, v{vAE}
    v_xor_b32 v{vAE16}, s{sT0}, v{vAE16}
    v_xor_b32 v{vAO}, s{sT0}, v{vAO}
    v_add_u32 v{vAO}, s{sOB}, v{vAO}
    """)
def fix_common():
    a(f"""
    v_add_u32 v{vSR[0]}, s{sIMG}, v{vSR[0]}
    v_add_u32 v{vSR[1]}, s{sIMG}, v{vSR[1]}
    v_add_u32 v{vSR[2]}, s{sIMG}, v{vSR[2]}
    s_and_b32 s{sT1}, s{sWI}, 1
    s_lshl_b32 s{sT0}, s{sT1}, 5
    v_xor_b32 v{vDW1[0]}, s{sT0}, v{vDW1[0]}
    v_xor_b32 v{vDW1[1]}, 32, v{vDW1[0]}
    """)

TM = opt('touch', 'n')
TOUCH = chr(10).join(t for k, t in (('l', 's_load_dword s76, s[6:7], 0'), ('x', f's_load_dword s77, s[4:5], s{sT0}'), ('1', 's_load_dword s78, s[10:11], 0'),
        ('2', 's_load_dword s79, s[12:13], 0'), ('o', f's_load_dword s80, s[14:15], s{sT0}')) if k in TM)
isF = 's_cmp_lt_u32' if FOLD else 's_cmp_ge_u32'
a(f'''
s_load_dwordx4 s[4:7], s[0:1], 0
s_load_dwordx4 s[8:11], s[0:1], 16
s_load_dwordx4 s[12:15], s[0:1], 32
s_getpc_b64 s[100:101]
L_pc:
''')
if STAMP: a(f's_load_dwordx2 s[{sWS}:{sWS+1}], s[0:1], {48 if opt("dbg") else 56}')
stamp(0)
if opt('jitter'): a('s_memtime s[86:87]\ns_waitcnt lgkmcnt(0)\nv_readfirstlane_b32 s87, v0\ns_nop 4\ns_mul_i32 s87, s87, 7919\ns_xor_b32 s86, s86, s87')
if opt('hold') or opt('amp'): a('s_memrealtime s[94:95]\ns_mov_b32 s88, 0')
PFM = opt('pf', 'h'); CSE = False
a(f"""
v_lshrrev_b32 v{T[0]}, 6, v0
s_cmp_ge_u32 s2, 256
s_cbranch_scc1 L_end
v_and_b32 v{vLN}, 63, v0
s_lshr_b32 s{sT1}, s2, 3
v_readfirstlane_b32 s{sWV}, v{T[0]}
s_and_b32 s{sT2}, s2, 1
s_add_u32 s{sT2}, s{sT2}, s{sT1}
s_cmp_ge_u32 s{sT2}, 32
s_cbranch_scc1 L_end
{isF} s{sWV}, 4
s_cbranch_scc1 L_e1
s_setprio 3
L_e1:
s_and_b32 s{sT0}, s2, 3
v_mul_u32_u24 v{T[0]}, 43, v{vLN}
s_mul_i32 s{sT0}, s{sT0}, 63
s_add_u32 s{sT0}, s{sT0}, 1
v_lshrrev_b32 v{T[0]}, 9, v{T[0]}
s_lshr_b32 s{sT0}, s{sT0}, 1
s_add_u32 s{sT0}, s{sT0}, s{sT1}
v_mad_i32_i24 v{T[1]}, v{T[0]}, -12, v{vLN}
s_mul_i32 s{sT1}, s{sT0}, 9363
s_lshr_b32 s{sT1}, s{sT1}, 16
s_and_b32 s{sWI}, s{sWV}, 3
s_bfe_u32 s{sT2}, s2, 0x10002
s_sub_u32 s{sT2}, s{sT2}, s{sT1}
s_mul_i32 s{sT2}, s{sT2}, 7
v_mad_u32_u24 v{T[0]}, s{sWI}, 5, v{T[0]}
s_add_u32 s{sT0}, s{sT0}, s{sT2}
s_lshl_b32 s{sX0}, s{sT0}, 4
v_bfe_u32 v{T[2]}, v{T[0]}, 2, 2
s_mul_i32 s{sH13}, s{sT1}, {112*7282}
v_xor_b32 v{T[1]}, v{T[1]}, v{T[2]}
s_lshr_b32 s{sY0}, s{sH13}, 16
v_add3_u32 v{T[0]}, v{T[0]}, s{sX0}, -2
s_mov_b32 s99, 43008
v_mul_u32_u24 v{T[2]}, 192, v{T[0]}
s_sub_u32 s{sT1}, s{sY0}, 2
v_cmp_gt_u32 vcc, 224, v{T[0]}
s_mul_i32 s{sT1}, s{sT1}, s99
v_lshl_add_u32 v{T[2]}, v{T[1]}, 4, v{T[2]}
v_mov_b32 v{T[4]}, {MARK}
s_mul_i32 s{sXM}, s{sWI}, 960
v_cndmask_b32 v{vXO}, v{T[4]}, v{T[2]}, vcc
s_mov_b32 s{sX+2}, {XBYTES}
s_mov_b32 s{sX+3}, 0x00020000
v_add_u32 v{vXO}, s{sT1}, v{vXO}
{isF} s{sWV}, 4
s_cbranch_scc1 L_F0
s_add_u32 m0, s{sXM}, {XB}
s_movk_i32 s97, {XROW}
s_mov_b32 exec_hi, 0x0fffffff
s_waitcnt lgkmcnt(0)
{ap('Lk')}
s_mov_b64 s[{sX}:{sX+1}], s[4:5]
""")
def h13fin():
    a(f"""
    s_add_u32 s{sH13}, s{sH13}, {112*7282}
    s_lshr_b32 s{sH13}, s{sH13}, 16
    s_sub_u32 s{sH13}, s{sH13}, s{sY0}
    """)
def l_tables():
    a(f"""
    v_lshlrev_b32 v{T[3]}, 4, v{vLN}
    s_mov_b32 s96, m0
    s_mov_b32 s{sDS+2}, 4800
    s_mov_b32 s{sDS+3}, 0x00020000
    s_mul_i32 s{sT3}, s{sWI}, {TP}
    s_mov_b64 s[{sDS}:{sDS+1}], s[8:9]
    s_add_u32 m0, s{sT3}, {TB + 8*TP}
    s_mov_b32 s{sDL+3}, 0x00020000
    buffer_load_dwordx4 v{T[3]}, {srd(sDS)}, s{sXM} offen lds
    s_mul_i32 s{sT2}, s{sWI}, 576
    s_sub_u32 s{sT2}, s{sT2}, 192
    s_add_u32 s{sT1}, s{sT3}, {TB + 2*TP}
    s_cmp_eq_u32 s{sWI}, 3
    s_cselect_b32 s{sDL+2}, s{sDS+2}, 1728
    s_cselect_b32 s{sT2}, 3840, s{sT2}
    s_cselect_b32 m0, {TB + 12*TP}, s{sT1}
    s_cselect_b64 s[{sDL}:{sDL+1}], s[8:9], s[6:7]
    s_cselect_b32 exec_lo, -1, 0xfffff000
    s_cselect_b32 exec_hi, -1, 0xffff
    v_add_u32 v{T[4]}, s{sT2}, v{T[3]}
    s_mov_b32 exec_lo, -1
    s_mov_b32 exec_hi, 0x0fffffff
    buffer_load_dwordx4 v{T[4]}, {srd(sDL)}, 0 offen lds
    s_mov_b32 m0, s96
    """)
xl = [0]
def xrows(n):
    for _ in range(n):
        t = xl[0]; xl[0] += 1
        if t:
            a('s_add_u32 m0, m0, s97')
            a(f'v_add_u32 v{vXO}, s99, v{vXO}')
        a(f'buffer_load_dwordx4 v{vXO}, {srd(sX)}, 0 offen{XPOL} lds')
NX0 = int(opt('nx0', 8))
TPOS = int(opt('tpos', 2))
xrows(TPOS)
l_tables()
xrows(NX0 - TPOS)
a('s_setprio 0')
a(ap('Li'))
stamp(1)
a(f'''
s_branch L_L
L_F0:
; ---- F: conv weight tables, rows w and w+4 of both
''')
h13fin()
if PFM == 'h':
    a(f'''
    s_cmp_eq_u32 s{sH13}, 13
    s_cbranch_scc1 L_nopf
    s_bfe_u32 s{sT3}, s2, 0x20003
    s_lshl_b32 s{sT3}, s{sT3}, 2
    s_add_u32 s{sT3}, s{sT3}, s{sWI}
    s_mul_i32 s{sT3}, s{sT3}, {20*128}
    v_lshl_add_u32 v{T[2]}, v{vLN}, 7, s{sT3}
    v_min_u32 v{T[2]}, L_end-L_pc, v{T[2]}
    s_mov_b64 exec, 0xfffff
    global_load_dword v{vPF}, v{T[2]}, s[100:101]
    s_mov_b64 exec, -1
    L_nopf:
    ''')
a(f'''
s_setprio {opt("fprio", 2)}
v_lshlrev_b32 v{vL16}, 4, v{vLN}
s_mul_i32 s{sIMG}, s{sWI}, 6144
s_mov_b32 s{sOB}, {OUTF}
s_cmp_eq_u32 s{sWI}, 1
s_cbranch_scc1 L_ct1
s_cmp_eq_u32 s{sWI}, 2
s_cbranch_scc1 L_ct2
s_cmp_eq_u32 s{sWI}, 3
s_cbranch_scc1 L_ct3
''')
ct0(); a('s_branch L_ctj')
a.label('L_ct1'); ct1(); a('s_branch L_ctj')
a.label('L_ct2'); ct2(); a('s_branch L_ctj')
a.label('L_ct3'); ct3()
a.label('L_ctj')
a('s_waitcnt lgkmcnt(0)')
a(ap('Fc'))
vFR = [48, 49, 50, 51]
vDW1[:] = [56, 60]; vDW2[:] = [57, 58, 59]
FXP = int(opt('fxp', 5))
def f_rows(n=None):
    if xl[0] >= 17: return
    if xl[0] == NX0:
        a(f'''
        s_add_u32 m0, s{sXM}, {XB + (NX0-1)*XROW}
        s_movk_i32 s97, {XROW}
        v_add_u32 v{vXO}, {(NX0-1)*43008}, v{vXO}
        s_mov_b64 s[{sX}:{sX+1}], s[4:5]
        ''')
    a('s_mov_b32 exec_hi, 0x0fffffff')
    xrows(min(17 - xl[0], n or 99))
    a('s_mov_b32 exec_hi, -1')
FB = [int(x) for x in opt('fb', '4,0').split(',')]
if FB[0]: f_rows(FB[0])
pre_common()
if FB[1]: f_rows(FB[1])
a(ap('Fs'))
stamp(1)
a('s_waitcnt lgkmcnt(0)')
pstamp(9)
bar()
a(ap('Bt'))
ctr(1, vTF0); ctr(0, vAF); ctr(2, vSR[0]); ctr(3, vAW1[0]); ctr(4, 52); ctr(5, vID); ctr(6, vID + 4); ctr(7, 56)
a('s_waitcnt lgkmcnt(6)')
fix_conv()
cv = Conv(0)
for gi in range(3): tab_reads(gi, cv.ds)
f_rows()
a('s_waitcnt lgkmcnt(15)')
fix_common()
a(f'''
s_add_u32 s{sO1}, s{sO0}, {4*43008}
v_add_u32 v{vAW2}, 12288, v52
s_add_u32 s{sT2}, s{sWBm}, {OUTF}
v_add_u32 v{vFR[0]}, s{sT2}, v53
v_xor_b32 v{vFR[1]}, 8, v{vFR[0]}
v_xor_b32 v{vFR[2]}, 16, v{vFR[0]}
v_xor_b32 v{vFR[3]}, 24, v{vFR[0]}
s_mul_i32 s{sT1}, s{sWI}, {XROW}
s_add_u32 s{sT1}, s{sT1}, {XB + 2*XROW + 384}
v_add_u32 v{vAR[0]}, s{sT1}, v54
v_xor_b32 v{vAR[1]}, 16, v{vAR[0]}
v_add_u32 v{vSW[0]}, s{sIMG}, v55
v_xor_b32 v{vSW[1]}, 16, v{vSW[0]}
''')
bar(2)
S0 = stage([('F',0,[0]), ('F',1,[0,1])])
cv.run(S0, 0)
def res_half(s):
    m = 0xffff0000 if s else 0xffff
    setexec(m, m)
    for ks in range(6):
        cv.ds(f'ds_read_b128 {vr(vRES+4*ks,4)}, v{vAR[ks&1]} offset:{64*(ks>>1)}')
    a('s_mov_b64 exec, -1')
def run_stage(left, frags, pairs, keep=0, mid=None):
    its = left + stage(frags)
    if pairs: add_pub(its, len(left), len(frags), pairs)
    if mid: its[mid[0]]['post'] = mid[1]
    return cv.run(its, len(its) - keep)
left = cv.run(S0, len(S0) - int(opt('keep0', 0)))
pstamp(10)
bar(3)
left = run_stage(left, [('F',2,[0,1,2]), ('F',3,[1,2,3]), ('E',0,[0,1])], [0, 1])
SPLIT = opt('split', '0') == '1'
a(f's_waitcnt vmcnt({5 if SPLIT else 0})')
pstamp(11)
bar(4)
a(f's_setprio {opt("fprio2", 3)}')
left = run_stage(left, [('F',4,[2,3]), ('F',5,[3]), ('E',2,[2,3])], [2, 3])
a(ap('Fa'))
a('s_waitcnt vmcnt(0)')
signal(1)
a(ap('F1'))
wdma(0, [0, 1, 2])
stamp(5)
poll(GF, 1)
RA = 168
for ks in range(6):
    a(f'ds_read_b64 {vr(RA+4*ks,2)}, v{vFR[2*(ks&1)]} offset:{64*(ks>>1)}')
    a(f'ds_read_b64 {vr(RA+4*ks+2,2)}, v{vFR[2*(ks&1)+1]} offset:{64*(ks>>1)}')
a(f's_setprio {opt("fprio3", 1)}')
wdma(1, [0, 1, 2])
a('s_waitcnt lgkmcnt(0)')
stamp(6)
def f_mid():
    for ks in range(6):
        a(f'ds_read_b128 {vr(vRES+4*ks,4)}, v{vAR[ks&1]} offset:{64*(ks>>1)}')
    landed(0, 2)
    wdma(0, [3, 4, 5]); wdma(1, [3, 4, 5])
    peek(GF)
def f_mid2():
    a('s_waitcnt lgkmcnt(0)')
    check(GF, 2)
    f_w1reads0()
ln(RA, 72, [vL + i for i in range(24)], False, f_mid, f_mid2)
a(ap('Fm'))
stamp(8)
XH = {
  'start3': [lambda: landed(0, 3)],
  ('T1', 0): [lambda: peek(GF)],
  ('preT2', 0): [lambda: check(GF, 3)],
  ('T1', 1): [lambda: stamp(9)],
  ('T2', 1): [lambda: peek(GL)],
  ('preT1', 2): [lambda: check(GL, 6)],
  ('preT1', 4): [lambda: signal(4)],
  ('T1', 4): [lambda: peek(GL)],
  ('preT2', 4): [lambda: check(GL, 7)],
  ('T2', 5): [lambda: peek(GL)],
  ('preT1', 6): [lambda: check(GL, 8), lambda: stamp(10)],
  ('preT1', 8): [lambda: stamp(11)],
  ('T2', 8): [lambda: peek(GF)],
  ('preT1', 9): [lambda: check(GF, 4)],
  ('preT1', 10): [lambda: stamp(12)],
}
FP = opt('fp', 'n')
def fprio(c):
    if FP == 'n': return (0, 0) if c == 0 else None
    if FP == 's': return (1, 1) if c == 0 else None
    return (0, int(FP))
mlp32(XH, fprio)
stamp(13)
P = vY[0]; Q = vK[0]
for mt in range(3):
    for i in range(8):
        a(f'v_cvt_pk_bf16_f32 v{P+8*mt+i}, v{vO+16*mt+2*i}, v{vO+16*mt+2*i+1}')
    a(f'ds_write_b128 v{vSW[0]}, {vr(P+8*mt,4)} offset:{64*mt}')
    a(f'ds_write_b128 v{vSW[1]}, {vr(P+8*mt+4,4)} offset:{64*mt}')
for s in range(2):
    for j in range(3):
        a(f'ds_read_b128 {vr(Q+4*(3*s+j),4)}, v{vSR[j]} offset:{3072*s}')
for s in range(2):
    for j in range(3):
        a(f's_waitcnt lgkmcnt({5-(3*s+j)})')
        a(f'buffer_store_dwordx4 {vr(Q+4*(3*s+j),4)}, v{vL16}, {srd(sOUT)}, s{sO1 if s else sO0} offen offset:{1024*j}{STPOL}')
finish()
emit_slow()

a.label('L_L')
cv = Conv(4)
vDW1[:] = [220, 224]; vDW2[:] = [221, 222, 223]
vA0, vA2 = 48, 50
RR = 60
a(f'''
s_mov_b32 exec_hi, -1
v_lshlrev_b32 v{vL16}, 4, v{vLN}
s_mul_i32 s{sIMG}, s{sWI}, 3072
s_add_u32 s{sIMG}, s{sIMG}, {S_IL}
s_mov_b32 s{sOB}, {OUTL}
''')
h13fin()
LS = ''
pre_common()
a(ap('Ls'))
pstamp(14)
a(f's_waitcnt vmcnt({NX0 - TPOS})')
bar()
ctr(1, vTF0); ctr(0, vAF); ctr(2, vSR[0]); ctr(7, 220); ctr(8, 52); ctr(9, 56)
a('s_waitcnt lgkmcnt(4)')
fix_conv()
for gi in range(3): tab_reads(gi, cv.ds)
a(f's_waitcnt vmcnt({NX0 - 4})')
a(ap('Ll'))
pstamp(9)
bar(2)
a('s_waitcnt lgkmcnt(15)')
fix_common()
a(f'''
s_add_u32 s{sO0}, s{sO0}, {8*43008}
s_lshl_b32 s{sT0}, s{sT1}, 6
v_xor_b32 v52, s{sT0}, v52
s_lshr_b32 s{sT2}, s{sWI}, 1
s_mul_i32 s{sT2}, s{sT2}, {PS}
s_sub_u32 s{sT3}, {PS}, s{sT2}
v_add_u32 v{vLW1}, s{sT2}, v52
v_add_u32 v{vLW1+4}, s{sT3}, v52
v_xor_b32 v{vLW1+1}, 32, v{vLW1}
v_xor_b32 v{vLW1+2}, 64, v{vLW1}
v_xor_b32 v{vLW1+3}, 0x60, v{vLW1}
v_xor_b32 v{vLW1+5}, 32, v{vLW1+4}
v_xor_b32 v{vLW1+6}, 64, v{vLW1+4}
v_xor_b32 v{vLW1+7}, 0x60, v{vLW1+4}
s_mul_i32 s{sT1}, s{sT1}, 6144
s_add_u32 s{sT2}, s{sT2}, 12288
s_add_u32 s{sT3}, s{sT3}, 12288
s_add_u32 s{sT0}, s{sT2}, s{sT1}
v_add_u32 v{vLW2}, s{sT0}, v53
s_add_u32 s{sT0}, s{sT3}, s{sT1}
v_add_u32 v{vLW2+4}, s{sT0}, v53
s_sub_u32 s{sT1}, 6144, s{sT1}
s_add_u32 s{sT0}, s{sT2}, s{sT1}
v_add_u32 v{vLW2+2}, s{sT0}, v53
s_add_u32 s{sT0}, s{sT3}, s{sT1}
v_add_u32 v{vLW2+6}, s{sT0}, v53
v_xor_b32 v{vLW2+1}, 32, v{vLW2}
v_xor_b32 v{vLW2+3}, 32, v{vLW2+2}
v_xor_b32 v{vLW2+5}, 32, v{vLW2+4}
v_xor_b32 v{vLW2+7}, 32, v{vLW2+6}
v_add_u32 v{vARL}, {L12}, v54
v_add_u32 v{vA2}, {L12}, v55
v_xor_b32 v{vA2+1}, 8, v{vA2}
v_add_u32 v{vA0}, s{sIMG}, v55
v_xor_b32 v{vA0+1}, 8, v{vA0}
v_add_u32 v{vSW[0]}, s{sIMG}, v56
v_xor_b32 v{vSW[1]}, 32, v{vSW[0]}
s_mul_i32 s{sT0}, s{sWI}, {XROW}
s_add_u32 s{sT0}, s{sT0}, {XB + 384}
v_add_u32 v{vAR[0]}, s{sT0}, v57
v_xor_b32 v{vAR[1]}, 32, v{vAR[0]}
''')
pstamp(10)
a(f's_waitcnt vmcnt({NX0 - 8})')
pstamp(11)
bar(3)
WP2 = opt('wp2', '2')
def wpf():
    a(f'''
    s_and_b32 s{sT0}, s{sWI}, 1
    s_cselect_b64 s[{sT1}:{sT2}], s[12:13], s[10:11]
    s_lshr_b32 s{sT0}, s2, 3
    s_lshl_b32 s{sT0}, s{sT0}, 1
    s_lshr_b32 s{sT3}, s{sWI}, 1
    s_add_u32 s{sT0}, s{sT0}, s{sT3}
    s_mul_i32 s{sT0}, s{sT0}, {10*128}
    v_lshl_add_u32 v{T[0]}, v{vLN}, 7, s{sT0}
    v_min_u32 v{T[0]}, {73728-128}, v{T[0]}
    s_mov_b64 exec, 0x3ff
    global_load_dword v226, v{T[0]}, s[{sT1}:{sT2}]
    s_mov_b64 exec, -1
    ''')
if WP2 != '0': wpf()
pstamp(12)
assert NX0 == 8
a('s_waitcnt lgkmcnt(0)')
pstamp(13)
bar(4)
a(f's_setprio {opt("lprio", 2)}')
RED, LNW = 1, 3
def raw_reads(R, ad, off=0):
    for ks in range(3):
        a(f'ds_read_b64 {vr(R+4*ks,2)}, v{ad} offset:{off+64*ks}')
        a(f'ds_read_b64 {vr(R+4*ks+2,2)}, v{ad+1} offset:{off+64*ks}')
def row_store(O, soff, P=vY[0], Q=vK[0]):
    for i in range(12):
        a(f'v_cvt_pk_bf16_f32 v{P+i}, v{O+2*i}, v{O+2*i+1}')
    for i in range(6):
        a(f'ds_write_b64 v{vSW[i&1]}, {vr(P+2*i,2)} offset:{64*(i>>1)}')
    for j in range(3):
        a(f'ds_read_b128 {vr(Q+4*j,4)}, v{vSR[j]}')
    for j in range(3):
        a(f's_waitcnt lgkmcnt({2-j})')
        a(f'buffer_store_dwordx4 {vr(Q+4*j,4)}, v{vL16}, {srd(sOUT)}, s{soff} offen offset:{1024*j}{STPOL}')
LP = opt('lp', 'k')
def lprio(c):
    if LP == 'n': return (0, 0) if c == 0 else None
    if LP == 's': return (1, 1) if c == 0 else None
    if LP == 'k':
        lo, hi = [int(x) for x in opt('lk', '0,8').split(',')]
        if lo <= c < hi: return (0, 1)
        return (0, 0) if c in (0, hi) else None
    return (0, int(LP))
def l_body(h13):
    global cv
    keep = cv
    cv = copy.copy(keep)
    sfx = 'a' if h13 else 'b'
    if h13:
        frags = [('F',4,[4]), ('F',5,[4,5]), ('F',6,[4,5,6]), ('F',7,[5,6]), ('E',4,[4,5]), ('F',8,[6]), ('L',6,[6])]; pairs = [4, 5, 6]
    else:
        frags = [('F',4,[4]), ('F',5,[4,5]), ('F',6,[4,5]), ('F',7,[5]), ('E',4,[4,5])]; pairs = [4, 5]
    if SPLIT:
        pre = stage(frags[:2])
        pre = cv.run(pre, len(pre) - int(opt('keepl', 2)))
        poll(GF, 1)
        frags = frags[2:]
    else:
        pre = []
    its = pre + stage(frags)
    add_pub(its, len(pre), len(frags), pairs)
    def resr():
        for i in range(6):
            cv.ds(f'ds_read_b64 {vr(RR+2*i,2)}, v{vAR[i&1]} offset:{10*XROW+64*(i>>1)}')
        if h13:
            for i in range(6):
                cv.ds(f'ds_read_b64 {vr(RR+12+2*i,2)}, v{vAR[i&1]} offset:{(14-RED)*XROW+64*(i>>1)}')
    if opt('lc'):
        nf = len(frags)
        for j, idx in ((9, 0), (10, nf - 1), (11, nf), (12, 2 * nf - 1), (13, 2 * nf)):
            its[idx]['post'] = lambda j=j: _st(j)
    if '3' in LS:
        cv.run(its, 0)
        lsetup(3)
    cv.run(its)
    stamp(6)
    signal(2)
    resr()
    stamp(5)
    poll(GL, 2)
    stamp(7)
    RAW = 168
    raw_reads(RAW, vA0)
    for i in range(12):
        a(f'v_lshlrev_b32 v{vO+2*i}, 16, v{RR+i}\nv_and_b32 v{vO+2*i+1}, 0xffff0000, v{RR+i}')
    if h13:
        a(f's_cmp_eq_u32 s{sWI}, {RED}\ns_cbranch_scc1 L_ri{sfx}')
        for i in range(12): a(f'v_mov_b64 {vr(vO+24+2*i,2)}, 0')
        a(f's_branch L_rj{sfx}')
        a.label(f'L_ri{sfx}')
        for i in range(12):
            a(f'v_lshlrev_b32 v{vO+24+2*i}, 16, v{RR+12+i}\nv_and_b32 v{vO+24+2*i+1}, 0xffff0000, v{RR+12+i}')
        a.label(f'L_rj{sfx}')
    signal(3)
    if h13: raw_reads(RAW + 12, vA2)
    a(f's_waitcnt lgkmcnt({7 if h13 else 1})')
    def l_mid2():
        a('s_waitcnt lgkmcnt(0)')
        check(GF, 2)
        l_w1reads(0)
    ln(RAW, 72, [vL + i for i in range(12)], True, lambda: peek(GF), l_mid2)
    if h13:
        a(f's_cmp_lg_u32 s{sWI}, {LNW}\ns_cbranch_scc1 L_nl12')
        ln(RAW + 12, 72, [RAW + 12 + i for i in range(12)], True)
        for ks in range(3):
            a(f'ds_write_b128 v{vARL}, {vr(RAW+12+4*ks,4)} offset:{64*ks}')
        a.label('L_nl12')
        signal(5)
    stamp(8)
    def l12r():
        for ks in range(3):
            a(f'ds_read_b128 {vr(vL+12+4*ks,4)}, v{vARL} offset:{64*ks}')
    def pub_rem():
        a(f's_cmp_eq_u32 s{sWI}, {RED}\ns_cbranch_scc1 L_np\ns_mul_i32 s{sT0}, s{sWI}, 6144\nv_add_u32 v{T[0]}, s{sT0}, v{vL16}')
        for i in range(6):
            a(f'ds_write_b128 v{T[0]}, {vr(vO+24+4*i,4)} offset:{S_R + 1024*i}')
        a.label('L_np')
        signal(9)
    H = {
      'start3': [lambda: peek(GL)],
      ('preT1', 0): [lambda: check(GL, 3)],
      ('T1', 0): [lambda: wdma(2, [0, 1, 2]), lambda: wdma(3, [0, 1, 2]), lambda: peek(GF)],
      ('preT2', 0): [lambda: check(GF, 3)],
      ('T2', 0): [lambda: wdma(2, [3, 4, 5])] + ([lambda: peek(GL)] if h13 else []),
      ('preT1', 1): [lambda: check(GL, 5)] if h13 else [],
      ('T1', 1): [lambda: wdma(3, [3, 4, 5]), lambda: stamp(9)] + ([l12r] if h13 else []),
      ('preT2', 1): [lambda: landed(6, 6)],
      ('T2', 1): [lambda: wdma(4, [0, 1, 2]), lambda: peek(GL)],
      ('preT1', 2): [lambda: check(GL, 6)],
      ('T1', 2): [lambda: wdma(4, [3, 4, 5])],
      ('T2', 2): [lambda: wdma(5, [0, 1, 2])],
      ('preT1', 3): [lambda: landed(9, 7)],
      ('T1', 3): [lambda: wdma(5, [3, 4, 5])],
      ('T1', 4): [lambda: peek(GL)],
      ('preT2', 4): [lambda: check(GL, 7), lambda: landed(0, 8)],
      ('T2', 5): [lambda: peek(GL)],
      ('preT1', 6): [lambda: check(GL, 8), lambda: stamp(10)],
      ('preT1', 8): [lambda: stamp(11)],
      ('preT1', 10): [lambda: stamp(12)],
    }
    if opt('otouch', '0') == '1':
        H[('T1', 6)] = [lambda: a(f's_mov_b64 exec, 1\nbuffer_load_dword v226, v{vL16}, {srd(sOUT)}, s{sO0} offen\ns_mov_b64 exec, -1')]
    if h13:
        H[('T2', 9)] = [lambda: peek(GF)]
        H[('preT1', 10)] = H[('preT1', 10)] + [lambda: check(GF, 4), pub_rem]
        def reduce12():
            a(f's_cmp_lg_u32 s{sWI}, {RED}\ns_cbranch_scc1 L_nored')
            poll(GL, 9)
            others = [w for w in range(4) if w != RED]
            R = [144, 48, 144]
            def rd(n):
                for i in range(6):
                    a(f'ds_read_b128 {vr(R[n]+4*i,4)}, v{vL16} offset:{S_R + 6144*others[n] + 1024*i}')
            def ad(n):
                if opt('redpk'):
                    for i in range(12):
                        a(f'v_pk_add_f32 {vr(vO+24+2*i,2)}, {vr(vO+24+2*i,2)}, {vr(R[n]+2*i,2)}')
                    return
                for i in range(24):
                    a(f'v_add_f32 v{vO+24+i}, v{vO+24+i}, v{R[n]+i}')
            rd(0); rd(1)
            a('s_waitcnt lgkmcnt(6)'); ad(0); rd(2)
            a('s_waitcnt lgkmcnt(6)'); ad(1)
            a('s_waitcnt lgkmcnt(0)'); ad(2)
            a(f's_add_u32 s{sO1}, s{sO0}, {(4-RED)*43008}')
            row_store(vO + 24, sO1, 48, 144)
            a.label('L_nored')
        H[('T1', 11)] = [reduce12]
        OB = opt('oddb', '8,12')
        if OB != 'n':
            o0, o1 = [int(x) for x in OB.split(',')]
            def boost():
                a(f's_cmp_lg_u32 s{sWI}, {RED}\ns_cbranch_scc1 L_nb\ns_setprio 1')
                a.label('L_nb')
            H.setdefault(('T2', o0), []).append(boost)
            if o1 < 12: H.setdefault(('T2', o1), []).append(lambda: a('s_setprio 0'))
    mlp16([3, 5, 8] if h13 else [], H, lprio)
    stamp(13)
    row_store(vO, sO0)
    finish()
    emit_slow()
    cv = keep
a(f's_cmp_lg_u32 s{sH13}, 13\ns_cbranch_scc1 L_L12')
l_body(True)
a.label('L_L12')
l_body(False)
a.label('L_end')
a('s_endpgm')

body = a.finalize()
hdr = open('cdna_kernels/' + NAME + '.s.ref').read().split('\n')
out = []
for l in hdr:
    if l.startswith('; @launch'):
        out.append('; @launch grid=(256,1,1) block=(512,1,1) lds=163840')
    elif l.startswith(';'):
        out.append(l)
    else:
        break
out.append('.amdgcn_target "amdgcn-amd-amdhsa--gfx950"')
out.append('.text')
out.append(f'.globl {NAME}_kernel')
out.append('.p2align 8')
out.append(f'.type {NAME}_kernel,@function')
out.append(f'{NAME}_kernel:')
for l in body:
    out.append(l if l.endswith(':') else '    ' + l)
out.append(f'''.section .rodata,"a"
.p2align 6
.amdhsa_kernel {NAME}_kernel
  .amdhsa_next_free_vgpr 256
  .amdhsa_next_free_sgpr 102
  .amdhsa_accum_offset 256
  .amdhsa_group_segment_fixed_size 0
  .amdhsa_kernarg_size 64
  .amdhsa_user_sgpr_count 2
  .amdhsa_user_sgpr_kernarg_segment_ptr 1
  .amdhsa_system_sgpr_workgroup_id_x 1
.end_amdhsa_kernel''')
print('\n'.join(out))
```

```python
import sys, struct, math, copy
from asmlib import Asm

NAME = "standalone__modern_conv_block_replknet__vision"
def fbits(x): return struct.unpack('<I', struct.pack('<f', x))[0]
def opt(name, default=None):
    for x in sys.argv:
        if x == '--' + name: return True
        if x.startswith('--' + name + '='): return x.split('=', 1)[1]
    return default
STAMP = opt('stamp'); CYC = opt('cyc'); PRO = opt('pro')
STPOL = ' ' + opt('stpol', 'sc1').replace('_', ' ') if opt('stpol', 'sc1') != 'none' else ''
FOLD = opt('fold', '1') == '1'
GL, GF = (1, 0) if FOLD else (0, 1)

XPOL = ' ' + opt('xpol').replace('_', ' ') if opt('xpol') else ''
XROW = 3840
XB = 73728
PS = 24576
TB, TP = 139264, 976
OUTF, OUTL = 49152, 147456
L12 = OUTL + 4*3072
FL = 163584
S_IF, S_R, S_IL = 0, 24576, OUTL
MARK = 0x40000000
XBYTES = 224 * 224 * 192

k0 = math.sqrt(2.0 / math.pi); k1 = 0.044715
c0 = 2 * k0 / math.log(2.0); c1 = c0 * k1
ga = c1 ** (1.0 / 3.0)
gc = -c0 / ga

sX, sDL, sDS, sW1, sW2, sOUT = 16, 20, 24, 28, 32, 36
sWV, sY0, sX0, sT0, sT1, sT2, sT3 = 40, 41, 42, 43, 44, 45, 46
sH13, sWI = 47, 3
sCA, sCC = 48, 50
sWS = 52
sXM, sIMG, sOB = 56, 57, 62
sWA, sWBm = 58, 59
sO0, sO1 = 60, 61
sST = 64
NST = 16
def srd(b): return f's[{b}:{b+3}]'
vO, vL, vY, vK, vG, vF1, vF2 = 0, 48, [72, 88], [104, 120], 136, 144, 168
vRES, vID = 204, 228
vAW1 = [236, 237, 238, 239]; vAW2 = 245
vLW1 = 204; vLW2 = 212
vDW1 = [220, 221]; vDW2 = [222, 223, 224]
vARL = 225
vSW = [246, 247]; vSR = [240, 241, 242]
vL16 = 244
vFA, vFW, vFP = 243, 248, 249
T = [250, 251, 252, 253, 254]
vLN = 255
vXO = 203; vPF = 202
vAF, vAE, vAE16, vAO, vTF0, vTE, vM0, vIDX, vAR = 192, 193, 194, 195, 196, 197, 198, 199, [200, 201]
CT = 0
vACC, vAFR, vB = 0, 84, 144
def vr(b, n): return f'v[{b}:{b+n-1}]'

a = Asm()
def _st(i): a(f'{"s_memtime" if CYC else "s_memrealtime"} s[{sST+2*i}:{sST+2*i+1}]')
def pstamp(i):
    if STAMP and PRO and not opt('lc'): _st(i)
def ap(n):
    return 's_memrealtime s[88:89]' if opt('amp') == n else ''
def stamp(i):
    a(ap(str(i)))
    if i in (8, 13): hold(i)
    if STAMP and not (PRO and 9 <= i <= 14): _st(i)
def mksrd(b, lo, n):
    a(f's_mov_b64 s[{b}:{b+1}], s[{lo}:{lo+1}]\ns_mov_b32 s{b+2}, {n}\ns_mov_b32 s{b+3}, 0x00020000')
def hold(tag):
    h = opt('hold')
    if h and h.split(':')[0] == str(tag):
        n = nlab[0]; nlab[0] += 1
        a(f's_waitcnt lgkmcnt(0)\ns_add_u32 s92, s94, {h.split(":")[1]}')
        a.label(f'L_hold{n}')
        a(f's_memrealtime s[90:91]\ns_waitcnt lgkmcnt(0)\ns_sub_u32 s93, s92, s90\ns_cmp_gt_i32 s93, 0\ns_cbranch_scc1 L_hold{n}')
def bar(i=None):
    jitter()
    a('s_barrier')
    jitter()
    hold(i)
    if i is not None: stamp(i)
def setexec(lo, hi):
    a(f's_mov_b32 exec_lo, {lo:#x}\ns_mov_b32 exec_hi, {hi:#x}')

nlab = [0]; slow = []
def guard():
    if opt('safe'): a('s_sub_u32 s98, s98, 1\ns_cbranch_scc1 L_end')
def jitter():
    if opt('jitter'):
        n = nlab[0]; nlab[0] += 1
        a(f's_mul_i32 s86, s86, 1103515245\ns_add_u32 s86, s86, 12345\ns_lshr_b32 s87, s86, {opt("jitter")}')
        a.label(f'L_jit{n}')
        a(f's_sleep 2\ns_sub_u32 s87, s87, 1\ns_cbranch_scc0 L_jit{n}')
def signal(v, emit=None):
    jitter()
    a(f'v_mov_b32 v{T[4]}, {v}')
    (emit or a)(f'ds_write_b32 v{vFW}, v{T[4]}')
def poll(grp, v):
    lab = f'L_poll{nlab[0]}'; nlab[0] += 1
    a.label(lab)
    guard()
    a(f'ds_read_b32 v{vFP}, v{vFA} offset:{16*grp}\ns_waitcnt lgkmcnt(0)\nv_cmp_gt_u32 vcc, {v}, v{vFP}\ns_cbranch_vccnz {lab}')
def peek(grp): a(f'ds_read_b32 v{vFP}, v{vFA} offset:{16*grp}')
def check(grp, v):
    jitter()
    n = nlab[0]; nlab[0] += 1
    a(f'v_cmp_gt_u32 vcc, {v}, v{vFP}\ns_cbranch_vccnz L_slow{n}')
    a.label(f'L_back{n}')
    slow.append((n, grp, v))
def emit_slow():
    for n, grp, v in slow:
        a.label(f'L_slow{n}')
        guard()
        a(f'ds_read_b32 v{vFP}, v{vFA} offset:{16*grp}\ns_waitcnt lgkmcnt(0)\nv_cmp_gt_u32 vcc, {v}, v{vFP}\ns_cbranch_vccnz L_slow{n}\ns_branch L_back{n}')
    slow.clear()
def landed(n, v):
    a(f's_waitcnt vmcnt({n})'); signal(v)

def wdma(p, parts=range(6)):
    jitter()
    for i in parts:
        if i < 3:
            a(f'''
            s_add_u32 m0, s{sWBm}, {PS*p + 1024*i}
            s_add_u32 s{sT0}, s{sWA}, {6144*i + 128*p}
            buffer_load_dwordx4 v{vDW1[i & 1]}, {srd(sW1)}, s{sT0} offen lds
            ''')
        else:
            if i == 3 or i - 1 not in parts:
                a(f's_add_u32 m0, s{sWBm}, {PS*p + 12288}\ns_add_u32 s{sT0}, s{sWBm}, {12288*p}')
            a(f'buffer_load_dwordx4 v{vDW2[i-3]}, {srd(sW2)}, s{sT0} offen offset:{1024*(i-3)} lds')

def ln(raw, U, dst, rows16, mid=None, mid2=None, mid0=None):
    n = len(dst)
    S, Q, ONE = T[1], T[3], T[4]
    sc, bi = T[0], T[2]
    a(f'v_mov_b32 v{ONE}, 0x3f803f80')
    un = []
    for i in range(n):
        un.append(f'v_lshlrev_b32 v{U+2*i}, 16, v{raw+i}')
        un.append(f'v_and_b32 v{U+2*i+1}, 0xffff0000, v{raw+i}')
    while len(un) > 8: a(un.pop(0))
    if mid0: mid0()
    for i in range(n):
        a(f'v_dot2_f32_bf16 v{S}, v{raw+i}, v{ONE}, {"0" if i == 0 else f"v{S}"}')
        a(f'v_dot2_f32_bf16 v{Q}, v{raw+i}, v{raw+i}, {"0" if i == 0 else f"v{Q}"}')
    def fill(k):
        for _ in range(k):
            if un: a(un.pop(0))
    fill(3)
    a(f'v_permlane32_swap_b32 v{S}, v{Q}')
    a(f'v_add_f32 v{S}, v{S}, v{Q}')
    if rows16:
        a(f'v_mov_b32 v{Q}, v{S}')
        fill(2)
        a(f'v_permlane16_swap_b32 v{S}, v{Q}')
        a(f'v_add_f32 v{S}, v{S}, v{Q}')
    a(f'v_mul_f32 v{S}, {fbits(1.0/96):#x}, v{S}')
    a(f'v_mov_b32 v{Q}, v{S}')
    fill(2)
    a(f'v_permlane32_swap_b32 v{S}, v{Q}')
    a(f'''
    v_fma_f32 v{Q}, -v{S}, v{S}, v{Q}
    v_max_f32 v{Q}, 0, v{Q}
    v_add_f32 v{Q}, {fbits(1e-5):#x}, v{Q}
    v_rsq_f32 v{Q}, v{Q}
    ''')
    fill(1)
    a(f'v_mul_f32 v{sc}, {fbits(ga):#x}, v{Q}')
    a(f'v_mul_f32 v{bi}, -v{S}, v{sc}')
    fill(1000)
    if mid: mid()
    for i in range(n):
        if opt('lnplain'):
            a(f'v_fma_f32 v{U+2*i}, v{U+2*i}, v{sc}, v{bi}\nv_fma_f32 v{U+2*i+1}, v{U+2*i+1}, v{sc}, v{bi}')
        else:
            a(f'v_pk_fma_f32 {vr(U+2*i,2)}, {vr(U+2*i,2)}, {vr(sc,2)}, {vr(bi,2)} op_sel_hi:[1,0,0]')
    if mid2: mid2()
    for i in range(n):
        a(f'v_cvt_pk_bf16_f32 v{dst[i]}, v{U+2*i}, v{U+2*i+1}')

def pk_t(Y, K, n):
    return [f'v_pk_fma_f32 {vr(K+2*i,2)}, {vr(Y+2*i,2)}, {vr(Y+2*i,2)}, s[{sCC}:{sCC+1}] neg_lo:[1,0,0] neg_hi:[1,0,0]' for i in range(n//2)] + pk_m(Y, K, n)
def pk_m(Y, K, n): return [f'v_pk_mul_f32 {vr(K+2*i,2)}, {vr(Y+2*i,2)}, {vr(K+2*i,2)}' for i in range(n//2)]
def pk_d(K, n): return [f'v_pk_fma_f32 {vr(K+2*i,2)}, {vr(K+2*i,2)}, s[{sCA}:{sCA+1}], s[{sCA}:{sCA+1}]' for i in range(n//2)]
def emit(l):
    for t in l: a(t)

def mlp32(hooks, prio):
    N = 12
    moved = {'w1': False, 'w2': False}
    def move(kind, c):
        if c >= 6 and not moved[kind]:
            for r in (vAW1 if kind == 'w1' else [vAW2]): a(f'v_add_u32 v{r}, {3*PS}, v{r}')
            moved[kind] = True
    def w1reads(c):
        for ks in range(6):
            off = ((c >> 1) % 3) * PS + (ks >> 1) * 4096 + (ks & 1) * 1024
            r = vAW1[(c & 1) + 2 * (ks & 1)]
            a(f'ds_read_b64_tr_b16 {vr(vF1+4*ks,2)}, v{r} offset:{off}')
            a(f'ds_read_b64_tr_b16 {vr(vF1+4*ks+2,2)}, v{r} offset:{off+512}')
    def w2reads(c):
        for i in range(6):
            ks2, mt = i // 3, i % 3
            off = ((c >> 1) % 3) * PS + (c & 1) * 6144 + ks2 * 3072 + mt * 64
            a(f'ds_read_b64_tr_b16 {vr(vF2+4*i,2)}, v{vAW2} offset:{off}')
            a(f'ds_read_b64_tr_b16 {vr(vF2+4*i+2,2)}, v{vAW2} offset:{off+1536}')
    def g1(c, ks):
        Y = vY[c & 1]
        a(f'v_mfma_f32_32x32x16_bf16 {vr(Y,16)}, {vr(vF1+4*ks,4)}, {vr(vL+4*ks,4)}, {"0" if ks == 0 else vr(Y,16)}')
    def g2(i):
        ks2, mt = i // 3, i % 3
        a(f'v_mfma_f32_32x32x16_bf16 {vr(vO+16*mt,16)}, {vr(vF2+4*i,4)}, {vr(vG+4*ks2,4)}, {vr(vO+16*mt,16)}')
    def resm(ks):
        j, mt = ks // 3, ks % 3
        a(f'v_mfma_f32_32x32x16_bf16 {vr(vO+16*mt,16)}, {vr(vID+4*j,4)}, {vr(vRES+4*(2*mt+j),4)}, {"0" if j == 0 else vr(vO+16*mt,16)}')
    def hook(k):
        for f in hooks.get(k, []): f()
    def pr(c, v):
        if prio(c) is not None: a(f's_setprio {prio(c)[v]}')
    hook('pre')
    a('s_waitcnt lgkmcnt(0)')
    for ks in range(6): g1(0, ks)
    w1reads(1)
    hook('start3')
    for c in range(N + 1):
        Y, K = vY[c & 1], vK[c & 1]
        Yp, Kp = vY[(c - 1) & 1], vK[(c - 1) & 1]
        pr(c, 1)
        if c >= 1: emit(pk_m(Yp, Kp, 16))
        if c < N: emit(pk_t(Y, K, 16))
        cv = [f'v_cvt_pk_bf16_f32 v{vG+i}, v{Kp+2*i}, v{Kp+2*i+1}' for i in range(8)] if c >= 1 else []
        if c == N:
            emit(cv)
            a('s_waitcnt lgkmcnt(0)')
            for i in (0, 3, 1, 4, 2, 5): g2(i)
            break
        ex = [f'v_exp_f32 v{K+i}, v{K+i}' for i in range(16)]
        rc = [f'v_rcp_f32 v{K+i}, v{K+i}' for i in range(16)]
        last = c + 1 >= N
        if c + 2 < N: move('w1', c + 2)
        move('w2', c)
        if c == 0:
            gaps = [ex[0:3], ex[3:6], ex[6:9], ex[9:12], ex[12:15], ex[15:16]]
            a('s_waitcnt lgkmcnt(0)')
            for j in range(6):
                g1(1, j); emit(gaps[j])
        elif not last:
            gaps = [cv[0:4] + ex[0:1], cv[4:8] + ex[1:2], ex[2:5], ex[5:8], ex[8:11], ex[11:14], ex[14:16]]
            for j in range(7):
                if j < 6: g1(c + 1, j)
                else: g2(0)
                if j == 5: a('s_waitcnt lgkmcnt(0)')
                emit(gaps[j])
        else:
            emit(cv); emit(ex[0:4])
            a('s_waitcnt lgkmcnt(0)')
            gaps = [ex[4:8], ex[8:12], ex[12:16]]
            for j in range(3):
                g2(j); emit(gaps[j])
        hook(('preT1', c))
        pr(c, 0)
        if c + 2 < N: w1reads(c + 2)
        hook(('T1', c))
        pr(c, 1)
        emit(pk_d(K, 16))
        if c == 0:
            gp = [rc[0:3], rc[3:6], rc[6:9], rc[9:12], rc[12:14], rc[14:16]]
            for j in range(6):
                resm(j)
                if j == 5: a('s_waitcnt lgkmcnt(0)')
                emit(gp[j])
        elif not last:
            gp = [rc[0:3], rc[3:6], rc[6:9], rc[9:12], rc[12:16]]
            for j in range(5):
                g2(j + 1)
                if j == 4: a('s_waitcnt lgkmcnt(0)')
                emit(gp[j])
        else:
            gp = [rc[0:3], rc[3:6], rc[6:16]]
            for j in range(3):
                g2(j + 3)
                if j == 2: w2reads(c)
                emit(gp[j])
        hook(('preT2', c))
        pr(c, 0)
        if not last: w2reads(c)
        hook(('T2', c))
    return w1reads

def f_w1reads0():
    for ks in range(6):
        off = (ks >> 1) * 4096 + (ks & 1) * 1024
        r = vAW1[2 * (ks & 1)]
        a(f'ds_read_b64_tr_b16 {vr(vF1+4*ks,2)}, v{r} offset:{off}')
        a(f'ds_read_b64_tr_b16 {vr(vF1+4*ks+2,2)}, v{r} offset:{off+512}')

def l_w1reads(s):
    for i in range(6):
        mt2, ks3 = i // 3, i % 3
        off = ((s >> 2) & 1) * 2 * PS + ks3 * 4096
        r = vLW1 + mt2 + 2 * (s & 3)
        a(f'ds_read_b64_tr_b16 {vr(vF1+4*i,2)}, v{r} offset:{off}')
        a(f'ds_read_b64_tr_b16 {vr(vF1+4*i+2,2)}, v{r} offset:{off+512}')

def mlp16(doubles, hooks, prio):
    N = 12
    def wid(s): return 0 if (s < 0 or s >= N) else (2 if s in doubles else 1)
    def move(base):
        for r in range(8): a(f'v_add_u32 v{base+r}, {4*PS}, v{base+r}')
    def w2reads(s):
        for i in range(6):
            off = ((s >> 2) & 1) * 2 * PS + 64 * (i >> 1)
            r = vLW2 + (i & 1) + 2 * (s & 3)
            a(f'ds_read_b64_tr_b16 {vr(vF2+4*i,2)}, v{r} offset:{off}')
            a(f'ds_read_b64_tr_b16 {vr(vF2+4*i+2,2)}, v{r} offset:{off+3072}')
    def m1(s):
        l = []
        for t in range(wid(s)):
            for j in range(6):
                mt2, ks3 = j & 1, j >> 1
                D = vY[s & 1] + 8 * t + 4 * mt2
                l.append(f'v_mfma_f32_16x16x32_bf16 {vr(D,4)}, {vr(vF1+4*(mt2*3+ks3),4)}, {vr(vL+12*t+4*ks3,4)}, {"0" if ks3 == 0 else vr(D,4)}')
        return l
    def m2(s):
        return [f'v_mfma_f32_16x16x32_bf16 {vr(vO+24*t+4*i,4)}, {vr(vF2+4*i,4)}, {vr(vG+4*t,4)}, {vr(vO+24*t+4*i,4)}' for t in range(wid(s)) for i in range(6)]
    def weave(ms, fl):
        fl = list(fl)
        if not ms:
            emit(fl); a('s_waitcnt lgkmcnt(0)'); return
        for j, m in enumerate(ms):
            a(m)
            if j == len(ms) - 1: a('s_waitcnt lgkmcnt(0)')
            k = -(-len(fl) // (len(ms) - j))
            emit(fl[:k]); fl = fl[k:]
    def hook(k):
        for f in hooks.get(k, []): f()
    def pr(c, v):
        if prio(c) is not None: a(f's_setprio {prio(c)[v]}')
    hook('pre')
    a('s_waitcnt lgkmcnt(0)')
    emit(m1(0))
    l_w1reads(1)
    hook('start3')
    for s in range(N + 1):
        Y, K = vY[s & 1], vK[s & 1]
        Yp, Kp = vY[(s - 1) & 1], vK[(s - 1) & 1]
        n, np_ = 8 * wid(s), 8 * wid(s - 1)
        pr(s, 1)
        emit(pk_m(Yp, Kp, np_))
        emit(pk_t(Y, K, n))
        cv = [f'v_cvt_pk_bf16_f32 v{vG+i}, v{Kp+2*i}, v{Kp+2*i+1}' for i in range(np_ // 2)]
        if s == N:
            emit(cv)
            a('s_waitcnt lgkmcnt(0)')
            emit(m2(N - 1))
            break
        ex = [f'v_exp_f32 v{K+i}, v{K+i}' for i in range(n)]
        rc = [f'v_rcp_f32 v{K+i}, v{K+i}' for i in range(n)]
        if s + 2 == 8: move(vLW1)
        if s == 8: move(vLW2)
        if s == 0: a('s_waitcnt lgkmcnt(0)')
        weave(m1(s + 1), cv + ex)
        hook(('preT1', s))
        pr(s, 0)
        if s + 2 < N: l_w1reads(s + 2)
        hook(('T1', s))
        pr(s, 1)
        emit(pk_d(K, n))
        weave(m2(s - 1), rc)
        hook(('preT2', s))
        pr(s, 0)
        w2reads(s)
        hook(('T2', s))

def finish():
    if opt('amp'):
        n = nlab[0]; nlab[0] += 1
        if opt('amp') == 'end': a(f's_waitcnt vmcnt(0)\ns_memrealtime s[88:89]' + ('' if opt('amprows') else f'\ns_mov_b32 s{sH13}, 13'))
        if opt('amprole'): a(f's_waitcnt lgkmcnt(0)\ns_lshr_b32 s93, s{sWV}, 2\ns_cmp_eq_u32 s93, {opt("amprole")}\ns_cselect_b32 s88, s88, 0')
        a(f's_waitcnt vmcnt(0) lgkmcnt(0)\ns_sub_u32 s92, s88, s94\ns_lshl_b32 s92, s92, 2\ns_cmp_eq_u32 s88, 0\ns_cselect_b32 s92, 0, s92')
        a(f's_cmp_eq_u32 s{sH13}, {opt("amprows", 13)}\ns_cselect_b32 s92, s92, 0\ns_add_u32 s92, s92, 1400\ns_add_u32 s92, s92, s94')
        a.label(f'L_amp{n}')
        a(f's_memrealtime s[90:91]\ns_waitcnt lgkmcnt(0)\ns_sub_u32 s93, s92, s90\ns_cmp_gt_i32 s93, 0\ns_cbranch_scc1 L_amp{n}')
    if STAMP:
        stamp(14)
        a('s_waitcnt vmcnt(0)')
        stamp(15)
        a('s_waitcnt lgkmcnt(0)')
        if opt('dbg'):
            n = nlab[0]; nlab[0] += 1
            a(f's_cmp_lg_u32 s2, {opt("dbg")}\ns_cbranch_scc1 L_nd{n}\ns_cmp_lg_u32 s{sWI}, 0\ns_cbranch_scc1 L_nd{n}')
            a(f's_lshl_b32 s{sT0}, s{sWV}, 3\nv_mov_b32 v{T[1]}, s{sT0}\ns_mov_b64 exec, 1')
            for k, i in enumerate((1, 2, 3, 4, 8, 10, 13, 15)):
                a(f's_sub_u32 s{sT0}, s{sST+2*i}, s{sST}\nv_mov_b32 v{T[0]}, s{sT0}')
                a(f'buffer_store_dword v{T[0]}, v{T[1]}, {srd(sWS)}, 0 offen offset:{4*k}')
            a.label(f'L_nd{n}')
            a('s_endpgm')
            return
        a(f'''
        s_lshl_b32 s{sT0}, s2, 3
        s_add_u32 s{sT0}, s{sT0}, s{sWV}
        s_lshl_b32 s{sT0}, s{sT0}, 6
        v_mov_b32 v{T[1]}, s{sT0}
        s_mov_b64 exec, 1
        ''')
        for i in range(NST):
            a(f'v_mov_b32 v{T[0]}, s{sST+2*i}')
            a(f'buffer_store_dword v{T[0]}, v{T[1]}, {srd(sWS)}, 0 offen offset:{4*i}')
    a('s_endpgm')

def tab_reads(gi, em):
    A = vAFR + 20 * gi; o = 64 * gi
    for d in range(3):
        em(f'ds_read_b64_tr_b16 {vr(A+4*d+2,2)}, v{vTF0} offset:{o + 2*d*TP}')
    for par in range(2):
        em(f'ds_read_b64_tr_b16 {vr(A+12+4*par+2,2)}, v{vTE} offset:{o + (2 - 2*par)*TP}')
def tab_expand(gi):
    for f in range(5):
        A = vAFR + 20 * gi + 4 * f
        a(f'v_and_b32 v{A}, v{vM0}, v{A+2}\nv_bfi_b32 v{A+1}, v{vM0}, 0, v{A+2}\nv_and_b32 v{A+2}, v{vM0}, v{A+3}\nv_bfi_b32 v{A+3}, v{vM0}, 0, v{A+3}')
RING = 6
class Conv:
    def __init__(self, k0): self.n = 0; self.slot = 0; self.k0 = k0
    def acc(self, gi, k): return vACC + 16 * gi + 4 * (k - self.k0)
    def ds(self, t): a(t); self.n += 1; return self.n
    def wait(self, seq): a(f's_waitcnt lgkmcnt({min(15, self.n - seq)})')
    def reads(self, it):
        B = it['B']; go = 64 * it['gi']; idx = it['idx']; kind = it['kind']
        if kind == 'H':
            return [f'ds_read_b128 {vr(self.eb[it["gi"]]+4*sl,4)}, v{vAE16 if r == 16 else vAE} offset:{r*XROW+go}' for sl, r in it['rd']]
        if kind == 'F' and idx == 8:
            return [f'ds_read_b128 {vr(B,4)}, v{vAF} offset:{16*XROW+go}']
        if kind == 'F':
            r0, r1 = 2 * idx, min(2 * idx + 1, 16)
            return [f'ds_read_b128 {vr(B,4)}, v{vAF} offset:{r0*XROW+go}', f'ds_read_b128 {vr(B+4,4)}, v{vAF} offset:{r1*XROW+go}']
        if kind == 'E':
            return [f'ds_read_b128 {vr(B,4)}, v{vAE} offset:{2*idx*XROW+go}', f'ds_read_b128 {vr(B+4,4)}, v{vAE} offset:{(2*idx+4)*XROW+go}']
        return [f'ds_read_b128 {vr(B,4)}, v{vAE} offset:{12*XROW+go}', f'ds_read_b128 {vr(B+4,4)}, v{vAE16} offset:{16*XROW+go}']
    def cvt(self, lst):
        for gi, k in lst:
            A = self.acc(gi, k)
            a(f'v_cvt_pk_bf16_f32 v{A}, v{A}, v{A+1}\nv_cvt_pk_bf16_f32 v{A+1}, v{A+2}, v{A+3}')
    def write(self, lst):
        for gi, k in lst:
            A = self.acc(gi, k)
            if k == 6: setexec(0xffff, 0xffff)
            self.ds(f'ds_write_b64 v{vAO}, {vr(A,2)} offset:{(k-self.k0)*6144+64*gi}')
            if k == 6: a('s_mov_b64 exec, -1')
    def run(self, items, stop_at=None):
        D = RING - 1
        nxt = 0
        while nxt < len(items) and 'seq' in items[nxt]: nxt += 1
        def start(j):
            if items[j]['kind'] == 'H': items[j]['B'] = self.eb[items[j]['gi']] + 4 * items[j]['w']
            else:
                items[j]['B'] = vB + 8 * (self.slot % RING); self.slot += 1
            return self.reads(items[j])
        while nxt < min(D, len(items)):
            for t in start(nxt): items[nxt]['seq'] = self.ds(t)
            nxt += 1
        end = len(items) if stop_at is None else stop_at
        for i in range(end):
            it = items[i]
            if it['outs']: self.wait(it['seq'])
            pend = start(nxt) if nxt < len(items) else []
            A = vAFR + 20 * it['gi']
            had = bool(pend)
            for k in it['outs']:
                fr = (it['idx'] - k) if it['kind'] == 'F' else 3 + (k - it['idx'])
                a(f'v_smfmac_f32_16x16x64_bf16 {vr(self.acc(it["gi"], k),4)}, {vr(A+4*fr,4)}, {vr(it["B"],8)}, v{vIDX}')
                if pend: items[nxt]['seq'] = self.ds(pend.pop(0))
            for t in pend: items[nxt]['seq'] = self.ds(t)
            if had: nxt += 1
            if it.get('pub'):
                self.cvt(it['pub'])
                if not it.get('nowrite'): self.write(it['pub'])
            if it.get('post'): it['post']()
        return items[end:]
def stage(frags): return [dict(gi=gi, kind=f[0], idx=f[1], outs=list(f[2]), **(dict(w=f[3], rd=f[4]) if f[0] == 'H' else {})) for gi in range(3) for f in frags]
def add_pub(items, base, nfr, pairs, nowrite=False):
    for gi in range(3):
        j = min(base + nfr * (gi + 1), len(items) - 1)
        items[j].setdefault('pub', []).extend((gi, k) for k in pairs)
        items[j]['nowrite'] = nowrite

def late_setup():
    mksrd(sOUT, 14, XBYTES)
    if opt('safe'): a('s_mov_b32 s98, 200000')
    a(f'''
    s_mov_b32 s{sCA}, {fbits(ga):#x}
    s_mov_b32 s{sCA+1}, {fbits(ga):#x}
    s_mov_b32 s{sCC}, {fbits(gc):#x}
    s_mov_b32 s{sCC+1}, {fbits(gc):#x}
    s_add_u32 s{sT0}, s{sWI}, s{sY0}
    s_mul_i32 s{sT0}, s{sT0}, 224
    s_add_u32 s{sT0}, s{sT0}, s{sX0}
    s_mul_i32 s{sO0}, s{sT0}, 192
    ''')
    if STAMP:
        a(f's_mov_b32 s{sWS+2}, {256 if opt("dbg") else 0x10000000}\ns_mov_b32 s{sWS+3}, 0x00020000')
        for i in (7,): a(f's_mov_b32 s{sST+2*i}, 0')

q = [4, 5, 6, 7]
def ctw(j, r=4): a(f'ds_write_b128 v{vL16}, {vr(r,4)} offset:{CT + 1024*j}')
def ctr(j, r, em=None): (em or a)(f'ds_read_b128 {vr(r,4)}, v{vL16} offset:{CT + 1024*j}')
def ct0():
    a(f"""
    v_and_b32 v{T[0]}, 15, v{vLN}
    v_bfe_u32 v{T[1]}, v{vLN}, 4, 1
    v_lshrrev_b32 v{T[3]}, 5, v{vLN}
    v_lshl_add_u32 v{T[2]}, v{T[1]}, 1, v{T[3]}
    v_add_u32 v{T[2]}, v{T[0]}, v{T[2]}
    v_bfe_u32 v{T[4]}, v{T[2]}, 2, 2
    v_mul_u32_u24 v{T[2]}, 192, v{T[2]}
    v_lshl_add_u32 v4, v{T[4]}, 4, v{T[2]}
    v_add_u32 v4, {XB}, v4
    v_add_u32 v{T[2]}, 4, v{T[0]}
    v_bfe_u32 v{T[4]}, v{T[2]}, 2, 2
    v_mul_u32_u24 v{T[2]}, 192, v{T[2]}
    v_lshl_add_u32 v6, v{T[4]}, 4, v{T[2]}
    v_add_u32 v6, {XB}, v6
    v_lshrrev_b32 v{T[2]}, 4, v{vLN}
    v_mul_u32_u24 v{T[2]}, {XROW}, v{T[2]}
    v_add_u32 v5, v6, v{T[2]}
    v_bfe_u32 v{T[4]}, v{vLN}, 2, 2
    v_and_b32 v{T[2]}, 31, v{vLN}
    v_mul_u32_u24 v{T[2]}, 192, v{T[2]}
    v_lshl_add_u32 v{T[2]}, v{T[4]}, 4, v{T[2]}
    v_bfe_u32 v{T[4]}, v{vLN}, 1, 1
    v_xor_b32 v{T[3]}, v{T[3]}, v{T[4]}
    v_lshl_add_u32 v7, v{T[3]}, 3, v{T[2]}
    """)
    ctw(0)
    for j in range(3):
        a(f"""
        v_add_u32 v{T[0]}, {64*j}, v{vLN}
        v_mul_u32_u24 v{T[2]}, 171, v{T[0]}
        v_bfe_u32 v{T[2]}, v{T[2]}, 12, 2
        v_xor_b32 v{T[0]}, v{T[0]}, v{T[2]}
        v_lshlrev_b32 v{8+j}, 4, v{T[0]}
        """)
    a(f'v_and_b32 v{T[0]}, 3, v{vLN}\nv_lshlrev_b32 v11, 2, v{T[0]}\nv_add_u32 v11, {FL}, v11')
    ctw(2, 8)
    a(f'v_add_u32 v{T[0]}, {TB}, v{vL16}\nv_mov_b64 v[0:1], 0\nv_mov_b64 v[2:3], 0')
    for off in (0, 2*TP - 1024, 5*TP, 7*TP - 1024, 12*TP, 12*TP + 1024, 15*TP - 1024):
        a(f'ds_write_b128 v{T[0]}, v[0:3] offset:{off}')
def ct1():
    a(f"""
    v_and_b32 v{T[0]}, 3, v{vLN}
    v_mul_u32_u24 v7, 0x5555, v{T[0]}
    s_mov_b32 s{sT2}, {TB}
    v_bfe_u32 v{T[1]}, v{vLN}, 1, 1
    v_lshl_add_u32 v{T[4]}, v{T[1]}, 3, s{sT2}
    v_and_b32 v{T[0]}, 1, v{vLN}
    v_lshrrev_b32 v{T[1]}, 5, v{vLN}
    v_sub_u32 v{T[1]}, v{T[1]}, v{T[0]}
    v_bfe_u32 v{T[2]}, v{vLN}, 2, 1
    v_mad_i32_i24 v{T[1]}, v{T[2]}, -6, v{T[1]}
    v_add_u32 v{T[1]}, 7, v{T[1]}
    v_mul_u32_u24 v{T[1]}, {TP}, v{T[1]}
    v_bfe_u32 v{T[3]}, v{vLN}, 3, 1
    v_add_u32 v6, -1, v{T[3]}
    v_bfe_u32 v{T[2]}, v{vLN}, 4, 1
    v_lshl_add_u32 v{T[2]}, v{T[3]}, 1, v{T[2]}
    v_mul_u32_u24 v{T[2]}, 192, v{T[2]}
    v_add3_u32 v4, v{T[1]}, v{T[2]}, v{T[4]}
    v_lshrrev_b32 v{T[1]}, 4, v{vLN}
    v_lshl_add_u32 v{T[2]}, v{T[1]}, 1, v{T[3]}
    v_sub_u32 v{T[2]}, v{T[2]}, v{T[0]}
    v_add_u32 v{T[2]}, 5, v{T[2]}
    v_mul_u32_u24 v{T[2]}, {TP}, v{T[2]}
    v_mov_b32 v5, s{sT2}
    s_mov_b32 exec_lo, 0x0f0f0f0f
    s_mov_b32 exec_hi, 0x0f0f0f0f
    v_add_u32 v{T[2]}, 768, v{T[2]}
    v_add_u32 v5, v{T[2]}, v{T[4]}
    s_mov_b64 exec, -1
    """)
    ctw(1)
    a(f"""
    v_lshrrev_b32 v{T[0]}, 3, v{vLN}
    v_mul_u32_u24 v{T[0]}, 768, v{T[0]}
    v_bfe_u32 v{T[1]}, v{vLN}, 4, 1
    v_lshlrev_b32 v{T[1]}, 2, v{T[1]}
    v_and_b32 v{T[2]}, 7, v{vLN}
    v_xor_b32 v{T[1]}, v{T[1]}, v{T[2]}
    v_lshl_add_u32 v8, v{T[1]}, 4, v{T[0]}
    v_mov_b32 v9, v{vL16}
    v_mov_b32 v10, v{vL16}
    v_mov_b32 v11, v{vL16}
    s_mov_b32 exec_lo, 0xffff0000
    v_xor_b32 v11, 32, v{vL16}
    s_mov_b32 exec_lo, 0
    s_mov_b32 exec_hi, 0xffff0000
    v_xor_b32 v9, 32, v{vL16}
    s_mov_b32 exec_lo, -1
    s_mov_b32 exec_hi, 0
    v_xor_b32 v10, 32, v{vL16}
    s_mov_b64 exec, -1
    """)
    ctw(7, 8)
def ct2():
    a(f"""
    v_lshrrev_b32 v{T[4]}, 5, v{vLN}
    v_bfe_u32 v{T[0]}, v{vLN}, 2, 2
    v_bfe_u32 v{T[1]}, v{vLN}, 4, 1
    v_and_b32 v{T[2]}, 3, v{vLN}
    v_lshl_add_u32 v{T[3]}, v{T[4]}, 4, v{T[0]}
    v_lshlrev_b32 v{T[3]}, 7, v{T[3]}
    v_lshl_add_u32 v{T[3]}, v{T[1]}, 5, v{T[3]}
    v_lshl_add_u32 v{T[3]}, v{T[2]}, 3, v{T[3]}
    v_bfe_u32 v{T[2]}, v{vLN}, 3, 1
    v_lshl_add_u32 v4, v{T[2]}, 6, v{T[3]}
    v_xor_b32 v5, 64, v4
    v_xor_b32 v6, 32, v4
    v_xor_b32 v7, 0x60, v4
    """)
    ctw(3)
    a(f"""
    v_lshl_add_u32 v{T[3]}, v{T[4]}, 2, v{T[0]}
    v_mul_u32_u24 v{T[3]}, 192, v{T[3]}
    v_lshl_add_u32 v{T[3]}, v{T[1]}, 4, v{T[3]}
    v_and_b32 v{T[2]}, 1, v{vLN}
    v_xor_b32 v{T[2]}, v{T[2]}, v{T[4]}
    v_lshl_add_u32 v{T[3]}, v{T[2]}, 5, v{T[3]}
    v_bfe_u32 v{T[2]}, v{vLN}, 1, 1
    v_lshl_add_u32 v8, v{T[2]}, 3, v{T[3]}
    v_and_b32 v{T[3]}, 15, v{vLN}
    v_mul_u32_u24 v{T[3]}, 192, v{T[3]}
    v_add_u32 v16, 2, v{vLN}
    v_bfe_u32 v16, v16, 2, 2
    v_bfe_u32 v17, v{vLN}, 1, 2
    v_lshl_add_u32 v18, v{T[1]}, 3, v{T[3]}
    v_xor_b32 v12, v{T[4]}, v17
    v_lshl_add_u32 v12, v12, 4, v18
    v_xor_b32 v13, v{T[4]}, v16
    v_lshl_add_u32 v13, v13, 4, v18
    v_lshlrev_b32 v{T[4]}, 1, v{T[4]}
    v_xor_b32 v{T[0]}, v{T[4]}, v{T[0]}
    v_lshl_add_u32 v{T[0]}, v{T[0]}, 4, v{T[3]}
    v_lshl_add_u32 v{T[0]}, v{T[2]}, 3, v{T[0]}
    v_mul_u32_u24 v{T[2]}, {4*3072}, v{T[1]}
    v_add_u32 v9, v{T[0]}, v{T[2]}
    v_xor_b32 v16, v{T[4]}, v16
    v_lshl_add_u32 v16, v16, 4, v{T[3]}
    v_mul_u32_u24 v{T[2]}, {4*XROW}, v{T[1]}
    v_add_u32 v10, v16, v{T[2]}
    v_xor_b32 v17, v{T[4]}, v17
    v_lshl_add_u32 v17, v17, 4, v{T[3]}
    v_mul_u32_u24 v{T[2]}, 3072, v{T[1]}
    v_add_u32 v11, v17, v{T[2]}
    v_mov_b64 v[14:15], 0
    """)
    ctw(4, 8); ctw(9, 12)
def ct3():
    a(f"""
    v_and_b32 v{T[1]}, 1, v{vLN}
    v_lshlrev_b32 v{T[1]}, 4, v{T[1]}
    v_mov_b32 v{T[2]}, 0x3f80
    v_lshlrev_b32 v{T[1]}, v{T[1]}, v{T[2]}
    """)
    for i in range(4): a(f'v_mov_b64 {vr(4+2*i,2)}, 0')
    for i in range(8):
        pos = 16 * (i >> 2) + 8 * ((i >> 1) & 1) + 2 * (i & 1)
        setexec(3 << pos, 3 << (pos + 4))
        a(f'v_mov_b32 v{4+i}, v{T[1]}')
    a('s_mov_b64 exec, -1')
    ctw(5, 4); ctw(6, 8)
    a(f"""
    v_lshrrev_b32 v{T[4]}, 4, v{vLN}
    v_bfe_u32 v{T[0]}, v{vLN}, 2, 2
    v_and_b32 v{T[2]}, 3, v{vLN}
    v_bfe_u32 v{T[1]}, v{vLN}, 4, 1
    v_lshlrev_b32 v{T[2]}, 3, v{T[2]}
    v_lshl_add_u32 v{T[2]}, v{T[1]}, 5, v{T[2]}
    v_lshl_add_u32 v{T[3]}, v{T[4]}, 3, v{T[0]}
    v_lshl_add_u32 v{T[3]}, v{T[3]}, 7, v{T[2]}
    v_bfe_u32 v{T[1]}, v{vLN}, 3, 1
    v_lshl_add_u32 v12, v{T[1]}, 6, v{T[3]}
    v_lshl_add_u32 v{T[3]}, v{T[4]}, 2, v{T[0]}
    v_mul_u32_u24 v{T[3]}, 192, v{T[3]}
    v_add_u32 v13, v{T[3]}, v{T[2]}
    v_xor_b32 v{T[0]}, v{T[4]}, v{T[0]}
    v_and_b32 v{T[3]}, 15, v{vLN}
    v_mul_u32_u24 v{T[3]}, 192, v{T[3]}
    v_lshl_add_u32 v14, v{T[0]}, 4, v{T[3]}
    v_bfe_u32 v{T[1]}, v{vLN}, 1, 1
    v_lshl_add_u32 v15, v{T[1]}, 3, v14
    """)
    ctw(8, 12)
def pre_common():
    for i in range(24): a(f'v_mov_b64 {vr(vACC+2*i,2)}, 0')
    a(f"""
    s_lshl_b32 s{sT0}, s{sWV}, 2
    s_add_u32 s{sT0}, s{sT0}, {FL}
    v_mov_b32 v{vFW}, s{sT0}
    ds_write_b32 v{vFW}, v0
    s_mul_i32 s{sWA}, s{sWI}, {3*6144}
    s_mul_i32 s{sWBm}, s{sWI}, 3072
    """)
    mksrd(sW1, 10, 73728); mksrd(sW2, 12, 73728)
    late_setup()
def fix_conv():
    a(f"""
    s_lshl_b32 s{sT0}, s{sWI}, 4
    v_add_u32 v{vTF0}, s{sT0}, v{vTF0}
    v_add_u32 v{vTE}, s{sT0}, v{vTE}
    v_xor_b32 v{vAF}, s{sT0}, v{vAF}
    v_xor_b32 v{vAE}, s{sT0}, v{vAE}
    v_xor_b32 v{vAE16}, s{sT0}, v{vAE16}
    v_xor_b32 v{vAO}, s{sT0}, v{vAO}
    v_add_u32 v{vAO}, s{sOB}, v{vAO}
    """)
def fix_common():
    a(f"""
    v_add_u32 v{vSR[0]}, s{sIMG}, v{vSR[0]}
    v_add_u32 v{vSR[1]}, s{sIMG}, v{vSR[1]}
    v_add_u32 v{vSR[2]}, s{sIMG}, v{vSR[2]}
    s_and_b32 s{sT1}, s{sWI}, 1
    s_lshl_b32 s{sT0}, s{sT1}, 5
    v_xor_b32 v{vDW1[0]}, s{sT0}, v{vDW1[0]}
    v_xor_b32 v{vDW1[1]}, 32, v{vDW1[0]}
    """)

TM = opt('touch', 'n')
TOUCH = chr(10).join(t for k, t in (('l', 's_load_dword s76, s[6:7], 0'), ('x', f's_load_dword s77, s[4:5], s{sT0}'), ('1', 's_load_dword s78, s[10:11], 0'),
        ('2', 's_load_dword s79, s[12:13], 0'), ('o', f's_load_dword s80, s[14:15], s{sT0}')) if k in TM)
isF = 's_cmp_lt_u32' if FOLD else 's_cmp_ge_u32'
a(f'''
s_load_dwordx4 s[4:7], s[0:1], 0
s_load_dwordx4 s[8:11], s[0:1], 16
s_load_dwordx4 s[12:15], s[0:1], 32
s_getpc_b64 s[100:101]
L_pc:
''')
if STAMP: a(f's_load_dwordx2 s[{sWS}:{sWS+1}], s[0:1], {48 if opt("dbg") else 56}')
stamp(0)
if opt('jitter'): a('s_memtime s[86:87]\ns_waitcnt lgkmcnt(0)\nv_readfirstlane_b32 s87, v0\ns_nop 4\ns_mul_i32 s87, s87, 7919\ns_xor_b32 s86, s86, s87')
if opt('hold') or opt('amp'): a('s_memrealtime s[94:95]\ns_mov_b32 s88, 0')
PFM = opt('pf', 'h'); CSE = False
a(f"""
v_lshrrev_b32 v{T[0]}, 6, v0
s_cmp_ge_u32 s2, 256
s_cbranch_scc1 L_end
v_and_b32 v{vLN}, 63, v0
s_lshr_b32 s{sT1}, s2, 3
v_readfirstlane_b32 s{sWV}, v{T[0]}
s_and_b32 s{sT2}, s2, 1
s_add_u32 s{sT2}, s{sT2}, s{sT1}
s_cmp_ge_u32 s{sT2}, 32
s_cbranch_scc1 L_end
{isF} s{sWV}, 4
s_cbranch_scc1 L_e1
s_setprio 3
L_e1:
s_and_b32 s{sT0}, s2, 3
v_mul_u32_u24 v{T[0]}, 43, v{vLN}
s_mul_i32 s{sT0}, s{sT0}, 63
s_add_u32 s{sT0}, s{sT0}, 1
v_lshrrev_b32 v{T[0]}, 9, v{T[0]}
s_lshr_b32 s{sT0}, s{sT0}, 1
s_add_u32 s{sT0}, s{sT0}, s{sT1}
v_mad_i32_i24 v{T[1]}, v{T[0]}, -12, v{vLN}
s_mul_i32 s{sT1}, s{sT0}, 9363
s_lshr_b32 s{sT1}, s{sT1}, 16
s_and_b32 s{sWI}, s{sWV}, 3
s_bfe_u32 s{sT2}, s2, 0x10002
s_sub_u32 s{sT2}, s{sT2}, s{sT1}
s_mul_i32 s{sT2}, s{sT2}, 7
v_mad_u32_u24 v{T[0]}, s{sWI}, 5, v{T[0]}
s_add_u32 s{sT0}, s{sT0}, s{sT2}
s_lshl_b32 s{sX0}, s{sT0}, 4
v_bfe_u32 v{T[2]}, v{T[0]}, 2, 2
s_mul_i32 s{sH13}, s{sT1}, {112*7282}
v_xor_b32 v{T[1]}, v{T[1]}, v{T[2]}
s_lshr_b32 s{sY0}, s{sH13}, 16
v_add3_u32 v{T[0]}, v{T[0]}, s{sX0}, -2
s_mov_b32 s99, 43008
v_mul_u32_u24 v{T[2]}, 192, v{T[0]}
s_sub_u32 s{sT1}, s{sY0}, 2
v_cmp_gt_u32 vcc, 224, v{T[0]}
s_mul_i32 s{sT1}, s{sT1}, s99
v_lshl_add_u32 v{T[2]}, v{T[1]}, 4, v{T[2]}
v_mov_b32 v{T[4]}, {MARK}
s_mul_i32 s{sXM}, s{sWI}, 960
v_cndmask_b32 v{vXO}, v{T[4]}, v{T[2]}, vcc
s_mov_b32 s{sX+2}, {XBYTES}
s_mov_b32 s{sX+3}, 0x00020000
v_add_u32 v{vXO}, s{sT1}, v{vXO}
{isF} s{sWV}, 4
s_cbranch_scc1 L_F0
s_add_u32 m0, s{sXM}, {XB}
s_movk_i32 s97, {XROW}
s_mov_b32 exec_hi, 0x0fffffff
s_waitcnt lgkmcnt(0)
{ap('Lk')}
s_mov_b64 s[{sX}:{sX+1}], s[4:5]
""")
def h13fin():
    a(f"""
    s_add_u32 s{sH13}, s{sH13}, {112*7282}
    s_lshr_b32 s{sH13}, s{sH13}, 16
    s_sub_u32 s{sH13}, s{sH13}, s{sY0}
    """)
def l_tables():
    a(f"""
    v_lshlrev_b32 v{T[3]}, 4, v{vLN}
    s_mov_b32 s96, m0
    s_mov_b32 s{sDS+2}, 4800
    s_mov_b32 s{sDS+3}, 0x00020000
    s_mul_i32 s{sT3}, s{sWI}, {TP}
    s_mov_b64 s[{sDS}:{sDS+1}], s[8:9]
    s_add_u32 m0, s{sT3}, {TB + 7*TP}
    s_mov_b32 s{sDL+3}, 0x00020000
    buffer_load_dwordx4 v{T[3]}, {srd(sDS)}, s{sXM} offen lds
    s_mul_i32 s{sT2}, s{sWI}, 576
    s_sub_u32 s{sT2}, s{sT2}, 192
    s_add_u32 s{sT1}, s{sT3}, {TB + 2*TP}
    s_cmp_eq_u32 s{sWI}, 3
    s_cselect_b32 s{sDL+2}, s{sDS+2}, 1728
    s_cselect_b32 s{sT2}, 3840, s{sT2}
    s_cselect_b32 m0, {TB + 11*TP}, s{sT1}
    s_cselect_b64 s[{sDL}:{sDL+1}], s[8:9], s[6:7]
    s_cselect_b32 exec_lo, -1, 0xfffff000
    s_cselect_b32 exec_hi, -1, 0xffff
    v_add_u32 v{T[4]}, s{sT2}, v{T[3]}
    s_mov_b32 exec_lo, -1
    s_mov_b32 exec_hi, 0x0fffffff
    buffer_load_dwordx4 v{T[4]}, {srd(sDL)}, 0 offen lds
    s_mov_b32 m0, s96
    """)
xl = [0]
def xrows(n):
    for _ in range(n):
        t = xl[0]; xl[0] += 1
        if t:
            a('s_add_u32 m0, m0, s97')
            a(f'v_add_u32 v{vXO}, s99, v{vXO}')
        a(f'buffer_load_dwordx4 v{vXO}, {srd(sX)}, 0 offen{XPOL} lds')
NX0 = int(opt('nx0', 8))
TPOS = int(opt('tpos', 2))
xrows(TPOS)
l_tables()
xrows(NX0 - TPOS)
a('s_setprio 0')
a(ap('Li'))
stamp(1)
a(f'''
s_branch L_L
L_F0:
; ---- F: conv weight tables, rows w and w+4 of both
''')
h13fin()
if PFM == 'h':
    a(f'''
    s_cmp_eq_u32 s{sH13}, 13
    s_cbranch_scc1 L_nopf
    s_bfe_u32 s{sT3}, s2, 0x20003
    s_lshl_b32 s{sT3}, s{sT3}, 2
    s_add_u32 s{sT3}, s{sT3}, s{sWI}
    s_mul_i32 s{sT3}, s{sT3}, {20*128}
    v_lshl_add_u32 v{T[2]}, v{vLN}, 7, s{sT3}
    v_min_u32 v{T[2]}, L_end-L_pc, v{T[2]}
    s_mov_b64 exec, 0xfffff
    global_load_dword v{vPF}, v{T[2]}, s[100:101]
    s_mov_b64 exec, -1
    L_nopf:
    ''')
a(f'''
s_setprio {opt("fprio", 2)}
v_lshlrev_b32 v{vL16}, 4, v{vLN}
s_mul_i32 s{sIMG}, s{sWI}, 6144
s_mov_b32 s{sOB}, {OUTF}
s_cmp_eq_u32 s{sWI}, 1
s_cbranch_scc1 L_ct1
s_cmp_eq_u32 s{sWI}, 2
s_cbranch_scc1 L_ct2
s_cmp_eq_u32 s{sWI}, 3
s_cbranch_scc1 L_ct3
''')
ct0(); a('s_branch L_ctj')
a.label('L_ct1'); ct1(); a('s_branch L_ctj')
a.label('L_ct2'); ct2(); a('s_branch L_ctj')
a.label('L_ct3'); ct3()
a.label('L_ctj')
a('s_waitcnt lgkmcnt(0)')
a(ap('Fc'))
vFR = [48, 49, 50, 51]
vDW1[:] = [56, 60]; vDW2[:] = [57, 58, 59]
FXP = int(opt('fxp', 5))
def f_rows(n=None):
    if xl[0] >= 17: return
    if xl[0] == NX0:
        a(f'''
        s_add_u32 m0, s{sXM}, {XB + (NX0-1)*XROW}
        s_movk_i32 s97, {XROW}
        v_add_u32 v{vXO}, {(NX0-1)*43008}, v{vXO}
        s_mov_b64 s[{sX}:{sX+1}], s[4:5]
        ''')
    a('s_mov_b32 exec_hi, 0x0fffffff')
    xrows(min(17 - xl[0], n or 99))
    a('s_mov_b32 exec_hi, -1')
FB = [int(x) for x in opt('fb', '4,0').split(',')]
if FB[0]: f_rows(FB[0])
pre_common()
if FB[1]: f_rows(FB[1])
a(ap('Fs'))
stamp(1)
a('s_waitcnt lgkmcnt(0)')
pstamp(9)
bar()
a(ap('Bt'))
ctr(1, vTF0); ctr(0, vAF); ctr(2, vSR[0]); ctr(3, vAW1[0]); ctr(4, 52); ctr(5, vID); ctr(6, vID + 4); ctr(7, 56)
a('s_waitcnt lgkmcnt(6)')
fix_conv()
cv = Conv(0); cv.eb = [204, 216, 64]
for gi in range(3): tab_reads(gi, cv.ds)
f_rows()
a('s_waitcnt lgkmcnt(0)')
for gi in range(3): tab_expand(gi)
def f_fix():
    fix_common()
    a(f'''
    s_add_u32 s{sO1}, s{sO0}, {4*43008}
    v_add_u32 v{vAW2}, 12288, v52
    s_add_u32 s{sT2}, s{sWBm}, {OUTF}
    v_add_u32 v{vFR[0]}, s{sT2}, v53
    v_xor_b32 v{vFR[1]}, 8, v{vFR[0]}
    v_xor_b32 v{vFR[2]}, 16, v{vFR[0]}
    v_xor_b32 v{vFR[3]}, 24, v{vFR[0]}
    s_mul_i32 s{sT1}, s{sWI}, {XROW}
    s_add_u32 s{sT1}, s{sT1}, {XB + 2*XROW + 384}
    v_add_u32 v{vAR[0]}, s{sT1}, v54
    v_xor_b32 v{vAR[1]}, 16, v{vAR[0]}
    v_add_u32 v{vSW[0]}, s{sIMG}, v55
    v_xor_b32 v{vSW[1]}, 16, v{vSW[0]}
    ''')
FFX = opt('ffx', '1')
if FFX == '0': f_fix()
bar(2)
S0 = stage([('F',0,[0]), ('F',1,[0,1]), ('H',0,[],0,[(0,0)])])
cv.run(S0, 0)
def res_half(s):
    m = 0xffff0000 if s else 0xffff
    setexec(m, m)
    for ks in range(6):
        cv.ds(f'ds_read_b128 {vr(vRES+4*ks,4)}, v{vAR[ks&1]} offset:{64*(ks>>1)}')
    a('s_mov_b64 exec, -1')
def run_stage(left, frags, pairs, keep=0, mid=None):
    its = left + stage(frags)
    if pairs: add_pub(its, len(left), len(frags), pairs)
    if mid: its[mid[0]]['post'] = mid[1]
    return cv.run(its, len(its) - keep)
left = cv.run(S0, len(S0) - int(opt('keep0', 0)))
if FFX == '1': f_fix()
pstamp(10)
bar(3)
left = run_stage(left, [('F',2,[0,1,2]), ('F',3,[1,2,3]), ('H',0,[0,1],0,[(1,4)])], [0, 1])
SPLIT = opt('split', '0') == '1'
a(f's_waitcnt vmcnt({5 if SPLIT else 0})')
pstamp(11)
bar(4)
a(f's_setprio {opt("fprio2", 3)}')
left = run_stage(left, [('F',4,[2,3]), ('F',5,[3]), ('H',2,[2,3],1,[(2,8)])], [2, 3])
a(ap('Fa'))
a('s_waitcnt vmcnt(0)')
signal(1)
a(ap('F1'))
WL = opt('wl', '1') == '1'
if not WL: wdma(0, [0, 1, 2])
stamp(5)
poll(GF, 1)
RA = 168
for ks in range(6):
    a(f'ds_read_b64 {vr(RA+4*ks,2)}, v{vFR[2*(ks&1)]} offset:{64*(ks>>1)}')
    a(f'ds_read_b64 {vr(RA+4*ks+2,2)}, v{vFR[2*(ks&1)+1]} offset:{64*(ks>>1)}')
a(f's_setprio {opt("fprio3", 1)}')
if not WL: wdma(1, [0, 1, 2])
a('s_waitcnt lgkmcnt(0)')
stamp(6)
def f_mid():
    for ks in range(6):
        a(f'ds_read_b128 {vr(vRES+4*ks,4)}, v{vAR[ks&1]} offset:{64*(ks>>1)}')
    landed(0, 2)
    wdma(0, [3, 4, 5]); wdma(1, [3, 4, 5])
    peek(GF)
def f_mid2():
    a('s_waitcnt lgkmcnt(0)')
    check(GF, 2)
    f_w1reads0()
ln(RA, 72, [vL + i for i in range(24)], False, f_mid, f_mid2, (lambda: (wdma(0, [0, 1, 2]), wdma(1, [0, 1, 2]))) if WL else None)
a(ap('Fm'))
stamp(8)
XH = {
  'start3': [lambda: landed(0, 3)],
  ('T1', 0): [lambda: peek(GF)],
  ('preT2', 0): [lambda: check(GF, 3)],
  ('T1', 1): [lambda: stamp(9)],
  ('T2', 1): [lambda: peek(GL)],
  ('preT1', 2): [lambda: check(GL, 6)],
  ('preT1', 4): [lambda: signal(4)],
  ('T1', 4): [lambda: peek(GL)],
  ('preT2', 4): [lambda: check(GL, 7)],
  ('T2', 5): [lambda: peek(GL)],
  ('preT1', 6): [lambda: check(GL, 8), lambda: stamp(10)],
  ('preT1', 8): [lambda: stamp(11)],
  ('T2', 8): [lambda: peek(GF)],
  ('preT1', 9): [lambda: check(GF, 4)],
  ('preT1', 10): [lambda: stamp(12)],
}
FP = opt('fp', 'n')
def fprio(c):
    if FP == 'n': return (0, 0) if c == 0 else None
    if FP == 's': return (1, 1) if c == 0 else None
    return (0, int(FP))
mlp32(XH, fprio)
stamp(13)
P = vY[0]; Q = vK[0]
for mt in range(3):
    for i in range(8):
        a(f'v_cvt_pk_bf16_f32 v{P+8*mt+i}, v{vO+16*mt+2*i}, v{vO+16*mt+2*i+1}')
    a(f'ds_write_b128 v{vSW[0]}, {vr(P+8*mt,4)} offset:{64*mt}')
    a(f'ds_write_b128 v{vSW[1]}, {vr(P+8*mt+4,4)} offset:{64*mt}')
for s in range(2):
    for j in range(3):
        a(f'ds_read_b128 {vr(Q+4*(3*s+j),4)}, v{vSR[j]} offset:{3072*s}')
for s in range(2):
    for j in range(3):
        a(f's_waitcnt lgkmcnt({5-(3*s+j)})')
        a(f'buffer_store_dwordx4 {vr(Q+4*(3*s+j),4)}, v{vL16}, {srd(sOUT)}, s{sO1 if s else sO0} offen offset:{1024*j}{STPOL}')
finish()
emit_slow()

a.label('L_L')
cv = Conv(4); cv.eb = [60, 72, 228]
vDW1[:] = [220, 224]; vDW2[:] = [221, 222, 223]
vA0, vA2 = 48, 50
RR = 60
a(f'''
s_mov_b32 exec_hi, -1
v_lshlrev_b32 v{vL16}, 4, v{vLN}
s_mul_i32 s{sIMG}, s{sWI}, 3072
s_add_u32 s{sIMG}, s{sIMG}, {S_IL}
s_mov_b32 s{sOB}, {OUTL}
''')
h13fin()
LS = ''
pre_common()
a(ap('Ls'))
pstamp(14)
a(f's_waitcnt vmcnt({NX0 - TPOS})')
bar()
ctr(1, vTF0); ctr(0, vAF); ctr(2, vSR[0]); ctr(7, 220); ctr(8, 52); ctr(9, 56)
a('s_waitcnt lgkmcnt(4)')
fix_conv()
for gi in range(3): tab_reads(gi, cv.ds)
a(f's_waitcnt vmcnt({NX0 - 4})')
a(ap('Ll'))
pstamp(9)
bar(2)
a('s_waitcnt lgkmcnt(0)')
fix_common()
a(f'''
s_add_u32 s{sO0}, s{sO0}, {8*43008}
s_lshl_b32 s{sT0}, s{sT1}, 6
v_xor_b32 v52, s{sT0}, v52
s_lshr_b32 s{sT2}, s{sWI}, 1
s_mul_i32 s{sT2}, s{sT2}, {PS}
s_sub_u32 s{sT3}, {PS}, s{sT2}
v_add_u32 v{vLW1}, s{sT2}, v52
v_add_u32 v{vLW1+4}, s{sT3}, v52
v_xor_b32 v{vLW1+1}, 32, v{vLW1}
v_xor_b32 v{vLW1+2}, 64, v{vLW1}
v_xor_b32 v{vLW1+3}, 0x60, v{vLW1}
v_xor_b32 v{vLW1+5}, 32, v{vLW1+4}
v_xor_b32 v{vLW1+6}, 64, v{vLW1+4}
v_xor_b32 v{vLW1+7}, 0x60, v{vLW1+4}
s_mul_i32 s{sT1}, s{sT1}, 6144
s_add_u32 s{sT2}, s{sT2}, 12288
s_add_u32 s{sT3}, s{sT3}, 12288
s_add_u32 s{sT0}, s{sT2}, s{sT1}
v_add_u32 v{vLW2}, s{sT0}, v53
s_add_u32 s{sT0}, s{sT3}, s{sT1}
v_add_u32 v{vLW2+4}, s{sT0}, v53
s_sub_u32 s{sT1}, 6144, s{sT1}
s_add_u32 s{sT0}, s{sT2}, s{sT1}
v_add_u32 v{vLW2+2}, s{sT0}, v53
s_add_u32 s{sT0}, s{sT3}, s{sT1}
v_add_u32 v{vLW2+6}, s{sT0}, v53
v_xor_b32 v{vLW2+1}, 32, v{vLW2}
v_xor_b32 v{vLW2+3}, 32, v{vLW2+2}
v_xor_b32 v{vLW2+5}, 32, v{vLW2+4}
v_xor_b32 v{vLW2+7}, 32, v{vLW2+6}
v_add_u32 v{vARL}, {L12}, v54
v_add_u32 v{vA2}, {L12}, v55
v_xor_b32 v{vA2+1}, 8, v{vA2}
v_add_u32 v{vA0}, s{sIMG}, v55
v_xor_b32 v{vA0+1}, 8, v{vA0}
v_add_u32 v{vSW[0]}, s{sIMG}, v56
v_xor_b32 v{vSW[1]}, 32, v{vSW[0]}
s_mul_i32 s{sT0}, s{sWI}, {XROW}
s_add_u32 s{sT0}, s{sT0}, {XB + 384}
v_add_u32 v{vAR[0]}, s{sT0}, v57
v_xor_b32 v{vAR[1]}, 32, v{vAR[0]}
''')
pstamp(10)
a(f's_waitcnt vmcnt({NX0 - 8})')
pstamp(11)
bar(3)
WP2 = opt('wp2', '2')
def wpf():
    a(f'''
    s_and_b32 s{sT0}, s{sWI}, 1
    s_cselect_b64 s[{sT1}:{sT2}], s[12:13], s[10:11]
    s_lshr_b32 s{sT0}, s2, 3
    s_lshl_b32 s{sT0}, s{sT0}, 1
    s_lshr_b32 s{sT3}, s{sWI}, 1
    s_add_u32 s{sT0}, s{sT0}, s{sT3}
    s_mul_i32 s{sT0}, s{sT0}, {10*128}
    v_lshl_add_u32 v{T[0]}, v{vLN}, 7, s{sT0}
    v_min_u32 v{T[0]}, {73728-128}, v{T[0]}
    s_mov_b64 exec, 0x3ff
    global_load_dword v226, v{T[0]}, s[{sT1}:{sT2}]
    s_mov_b64 exec, -1
    ''')
if WP2 != '0': wpf()
for gi in range(3): tab_expand(gi)
a(f'v_mov_b64 {vr(vB+8*4+4,2)}, 0\nv_mov_b64 {vr(vB+8*4+6,2)}, 0')
pstamp(12)
assert NX0 == 8
a('s_waitcnt lgkmcnt(0)')
pstamp(13)
bar(4)
a(f's_setprio {opt("lprio", 2)}')
RED, LNW = 1, 3
def raw_reads(R, ad, off=0):
    for ks in range(3):
        a(f'ds_read_b64 {vr(R+4*ks,2)}, v{ad} offset:{off+64*ks}')
        a(f'ds_read_b64 {vr(R+4*ks+2,2)}, v{ad+1} offset:{off+64*ks}')
def row_store(O, soff, P=vY[0], Q=vK[0]):
    for i in range(12):
        a(f'v_cvt_pk_bf16_f32 v{P+i}, v{O+2*i}, v{O+2*i+1}')
    for i in range(6):
        a(f'ds_write_b64 v{vSW[i&1]}, {vr(P+2*i,2)} offset:{64*(i>>1)}')
    for j in range(3):
        a(f'ds_read_b128 {vr(Q+4*j,4)}, v{vSR[j]}')
    for j in range(3):
        a(f's_waitcnt lgkmcnt({2-j})')
        a(f'buffer_store_dwordx4 {vr(Q+4*j,4)}, v{vL16}, {srd(sOUT)}, s{soff} offen offset:{1024*j}{STPOL}')
LP = opt('lp', 'k')
CUR13 = [True]
def lprio(c):
    if LP == 'n': return (0, 0) if c == 0 else None
    if LP == 's': return (1, 1) if c == 0 else None
    if LP == 'k':
        lo, hi = [int(x) for x in (opt('lk', '0,8') if CUR13[0] else opt('lk12', '0,3')).split(',')]
        if lo <= c < hi: return (0, 1)
        return (0, 0) if c in (0, hi) else None
    return (0, int(LP))
def l_body(h13):
    global cv
    keep = cv
    cv = copy.copy(keep)
    sfx = 'a' if h13 else 'b'
    CUR13[0] = h13
    if h13:
        frags = [('F',4,[4]), ('F',5,[4,5]), ('F',6,[4,5,6]), ('F',7,[5,6]), ('H',4,[4,5],0,[(0,8),(1,12)]), ('F',8,[6]), ('H',6,[6],1,[(2,16)])]; pairs = [4, 5, 6]
    else:
        frags = [('F',4,[4]), ('F',5,[4,5]), ('F',6,[4,5]), ('F',7,[5]), ('H',4,[4,5],0,[(0,8),(1,12)])]; pairs = [4, 5]
    if SPLIT:
        pre = stage(frags[:2])
        pre = cv.run(pre, len(pre) - int(opt('keepl', 2)))
        poll(GF, 1)
        frags = frags[2:]
    else:
        pre = []
    its = pre + stage(frags)
    add_pub(its, len(pre), len(frags), pairs)
    def resr():
        for i in range(6):
            cv.ds(f'ds_read_b64 {vr(RR+2*i,2)}, v{vAR[i&1]} offset:{10*XROW+64*(i>>1)}')
        if h13:
            for i in range(6):
                cv.ds(f'ds_read_b64 {vr(RR+12+2*i,2)}, v{vAR[i&1]} offset:{(14-RED)*XROW+64*(i>>1)}')
    if opt('lc'):
        nf = len(frags)
        for j, idx in ((9, 0), (10, nf - 1), (11, nf), (12, 2 * nf - 1), (13, 2 * nf)):
            its[idx]['post'] = lambda j=j: _st(j)
    if '3' in LS:
        cv.run(its, 0)
        lsetup(3)
    cv.run(its)
    stamp(6)
    signal(2)
    resr()
    stamp(5)
    poll(GL, 2)
    stamp(7)
    RAW = 168
    raw_reads(RAW, vA0)
    for i in range(12):
        a(f'v_lshlrev_b32 v{vO+2*i}, 16, v{RR+i}\nv_and_b32 v{vO+2*i+1}, 0xffff0000, v{RR+i}')
    if h13:
        a(f's_cmp_eq_u32 s{sWI}, {RED}\ns_cbranch_scc1 L_ri{sfx}')
        for i in range(12): a(f'v_mov_b64 {vr(vO+24+2*i,2)}, 0')
        a(f's_branch L_rj{sfx}')
        a.label(f'L_ri{sfx}')
        for i in range(12):
            a(f'v_lshlrev_b32 v{vO+24+2*i}, 16, v{RR+12+i}\nv_and_b32 v{vO+24+2*i+1}, 0xffff0000, v{RR+12+i}')
        a.label(f'L_rj{sfx}')
    signal(3)
    if h13: raw_reads(RAW + 12, vA2)
    a(f's_waitcnt lgkmcnt({7 if h13 else 1})')
    def l_mid2():
        a('s_waitcnt lgkmcnt(0)')
        check(GF, 2)
        l_w1reads(0)
    ln(RAW, 72, [vL + i for i in range(12)], True, lambda: peek(GF), l_mid2)
    if h13:
        a(f's_cmp_lg_u32 s{sWI}, {LNW}\ns_cbranch_scc1 L_nl12')
        ln(RAW + 12, 72, [RAW + 12 + i for i in range(12)], True)
        for ks in range(3):
            a(f'ds_write_b128 v{vARL}, {vr(RAW+12+4*ks,4)} offset:{64*ks}')
        a.label('L_nl12')
        signal(5)
    stamp(8)
    def l12r():
        for ks in range(3):
            a(f'ds_read_b128 {vr(vL+12+4*ks,4)}, v{vARL} offset:{64*ks}')
    def pub_rem():
        a(f's_cmp_eq_u32 s{sWI}, {RED}\ns_cbranch_scc1 L_np\ns_mul_i32 s{sT0}, s{sWI}, 6144\nv_add_u32 v{T[0]}, s{sT0}, v{vL16}')
        for i in range(6):
            a(f'ds_write_b128 v{T[0]}, {vr(vO+24+4*i,4)} offset:{S_R + 1024*i}')
        a.label('L_np')
        signal(9)
    H = {
      'start3': [lambda: peek(GL)],
      ('preT1', 0): [lambda: check(GL, 3)],
      ('T1', 0): [lambda: wdma(2, [0, 1, 2]), lambda: wdma(3, [0, 1, 2]), lambda: peek(GF)],
      ('preT2', 0): [lambda: check(GF, 3)],
      ('T2', 0): [lambda: wdma(2, [3, 4, 5])] + ([lambda: peek(GL)] if h13 else []),
      ('preT1', 1): [lambda: check(GL, 5)] if h13 else [],
      ('T1', 1): [lambda: wdma(3, [3, 4, 5]), lambda: stamp(9)] + ([l12r] if h13 else []),
      ('preT2', 1): [lambda: landed(6, 6)],
      ('T2', 1): [lambda: wdma(4, [0, 1, 2]), lambda: peek(GL)],
      ('preT1', 2): [lambda: check(GL, 6)],
      ('T1', 2): [lambda: wdma(4, [3, 4, 5])],
      ('T2', 2): [lambda: wdma(5, [0, 1, 2])],
      ('preT1', 3): [lambda: landed(9, 7)],
      ('T1', 3): [lambda: wdma(5, [3, 4, 5])],
      ('T1', 4): [lambda: peek(GL)],
      ('preT2', 4): [lambda: check(GL, 7), lambda: landed(0, 8)],
      ('T2', 5): [lambda: peek(GL)],
      ('preT1', 6): [lambda: check(GL, 8), lambda: stamp(10)],
      ('preT1', 8): [lambda: stamp(11)],
      ('preT1', 10): [lambda: stamp(12)],
    }
    if opt('otouch', '0') == '1':
        H[('T1', 6)] = [lambda: a(f's_mov_b64 exec, 1\nbuffer_load_dword v226, v{vL16}, {srd(sOUT)}, s{sO0} offen\ns_mov_b64 exec, -1')]
    if h13:
        H[('T2', 9)] = [lambda: peek(GF)]
        H[('preT1', 10)] = H[('preT1', 10)] + [lambda: check(GF, 4), pub_rem]
        def reduce12():
            a(f's_cmp_lg_u32 s{sWI}, {RED}\ns_cbranch_scc1 L_nored')
            poll(GL, 9)
            others = [w for w in range(4) if w != RED]
            R = [144, 48, 144]
            def rd(n):
                for i in range(6):
                    a(f'ds_read_b128 {vr(R[n]+4*i,4)}, v{vL16} offset:{S_R + 6144*others[n] + 1024*i}')
            def ad(n):
                if opt('redpk'):
                    for i in range(12):
                        a(f'v_pk_add_f32 {vr(vO+24+2*i,2)}, {vr(vO+24+2*i,2)}, {vr(R[n]+2*i,2)}')
                    return
                for i in range(24):
                    a(f'v_add_f32 v{vO+24+i}, v{vO+24+i}, v{R[n]+i}')
            rd(0); rd(1)
            a('s_waitcnt lgkmcnt(6)'); ad(0); rd(2)
            a('s_waitcnt lgkmcnt(6)'); ad(1)
            a('s_waitcnt lgkmcnt(0)'); ad(2)
            a(f's_add_u32 s{sO1}, s{sO0}, {(4-RED)*43008}')
            row_store(vO + 24, sO1, 48, 144)
            a.label('L_nored')
        H[('T1', 11)] = [reduce12]
        OB = opt('oddb', '8,12')
        if OB != 'n':
            o0, o1 = [int(x) for x in OB.split(',')]
            def boost():
                a(f's_cmp_lg_u32 s{sWI}, {RED}\ns_cbranch_scc1 L_nb\ns_setprio 1')
                a.label('L_nb')
            H.setdefault(('T2', o0), []).append(boost)
            if o1 < 12: H.setdefault(('T2', o1), []).append(lambda: a('s_setprio 0'))
    mlp16([3, 5, 8] if h13 else [], H, lprio)
    stamp(13)
    row_store(vO, sO0)
    finish()
    emit_slow()
    cv = keep
a(f's_cmp_lg_u32 s{sH13}, 13\ns_cbranch_scc1 L_L12')
l_body(True)
a.label('L_L12')
l_body(False)
a.label('L_end')
a('s_endpgm')

body = a.finalize()
hdr = open('cdna_kernels/' + NAME + '.s.ref').read().split('\n')
out = []
for l in hdr:
    if l.startswith('; @launch'):
        out.append('; @launch grid=(256,1,1) block=(512,1,1) lds=163840')
    elif l.startswith(';'):
        out.append(l)
    else:
        break
out.append('.amdgcn_target "amdgcn-amd-amdhsa--gfx950"')
out.append('.text')
out.append(f'.globl {NAME}_kernel')
out.append('.p2align 8')
out.append(f'.type {NAME}_kernel,@function')
out.append(f'{NAME}_kernel:')
for l in body:
    out.append(l if l.endswith(':') else '    ' + l)
out.append(f'''.section .rodata,"a"
.p2align 6
.amdhsa_kernel {NAME}_kernel
  .amdhsa_next_free_vgpr 256
  .amdhsa_next_free_sgpr 102
  .amdhsa_accum_offset 256
  .amdhsa_group_segment_fixed_size 0
  .amdhsa_kernarg_size 64
  .amdhsa_user_sgpr_count 2
  .amdhsa_user_sgpr_kernarg_segment_ptr 1
  .amdhsa_system_sgpr_workgroup_id_x 1
.end_amdhsa_kernel''')
print('\n'.join(out))
```

```python
import sys
lab = "standalone__modern_conv_block_replknet__vision_kernel:\n"
def mk(srcname, name, grp=None, what='start'):
    src = open(srcname).read()
    i = src.index("\n" + lab) + 1 + len(lab)
    s = src[:i] + "    s_memrealtime s[94:95]\n" + src[i:]
    if grp is None: SEL = '    s_sub_u32 s92, s88, s90\n'
    else: SEL = f'    s_sub_u32 s92, {"s94" if what == "start" else "s88"}, s90\n    s_and_b32 s91, s2, 7\n    s_cmp_eq_u32 s91, {grp}\n    s_cselect_b32 s92, s92, 0\n    s_add_u32 s92, s92, 300\n'
    def spin(k, t): return f"""L_dd{k}{t}:
    s_memrealtime s[90:91]
    s_waitcnt lgkmcnt(0)
    s_sub_u32 s93, s92, s90
    s_cmp_gt_i32 s93, 0
    s_cbranch_scc1 L_dd{k}{t}
"""
    def dl(k): return f"""    s_waitcnt vmcnt(0) lgkmcnt(0)
    s_memrealtime s[88:89]
    s_setprio 0
    s_load_dwordx2 s[84:85], s[0:1], 48
    s_add_u32 s92, s94, 2200
""" + spin(k, 'a') + f"""    s_mov_b64 exec, 1
    s_not_b32 s90, s94
    v_mov_b32 v0, 0
    v_mov_b32 v1, s90
    global_atomic_umax v0, v1, s[84:85] sc1
    s_waitcnt vmcnt(0)
    s_add_u32 s92, s94, 6000
""" + spin(k, 'b') + f"""    global_load_dword v2, v0, s[84:85] sc0 sc1
    s_waitcnt vmcnt(0)
    v_readfirstlane_b32 s90, v2
    s_nop 4
    s_not_b32 s90, s90
{SEL}    s_min_u32 s92, s92, 4000
    s_lshl_b32 s92, s92, 2
    s_add_u32 s92, s92, s90
    s_add_u32 s92, s92, 6000
""" + spin(k, 'c')
    parts = s.split("    s_endpgm\n"); out = ""
    for k, p in enumerate(parts[:-1]):
        out += p + (dl(k) if k < len(parts) - 2 else "") + "    s_endpgm\n"
    out += parts[-1]
    open(name, 'w').write(out)
if sys.argv[1] == '-g':
    for g in range(8): mk(sys.argv[2], f'grp{g}.s', g)
else:
    for f in sys.argv[1:]: mk(f, 'abs_' + f)
```

```python
import sys, struct, math, copy
from asmlib import Asm

NAME = "standalone__modern_conv_block_replknet__vision"
def fbits(x): return struct.unpack('<I', struct.pack('<f', x))[0]
def opt(name, default=None):
    for x in sys.argv:
        if x == '--' + name: return True
        if x.startswith('--' + name + '='): return x.split('=', 1)[1]
    return default
STAMP = opt('stamp'); CYC = opt('cyc'); PRO = opt('pro')
STPOL = ' ' + opt('stpol', 'sc1').replace('_', ' ') if opt('stpol', 'sc1') != 'none' else ''
FOLD = opt('fold', '1') == '1'
GL, GF = (1, 0) if FOLD else (0, 1)

XPOL = ' ' + opt('xpol').replace('_', ' ') if opt('xpol') else ''
XROW = 3840
XB = 73728
PS = 24576
TB, TP = 139264, 976
OUTF, OUTL = 49152, 147456
L12 = OUTL + 4*3072
FL = 163584
S_IF, S_R, S_IL = 0, 24576, OUTL
MARK = 0x40000000
XBYTES = 224 * 224 * 192

k0 = math.sqrt(2.0 / math.pi); k1 = 0.044715
c0 = 2 * k0 / math.log(2.0); c1 = c0 * k1
ga = c1 ** (1.0 / 3.0)
gc = -c0 / ga

sX, sDL, sDS, sW1, sW2, sOUT = 16, 20, 24, 28, 32, 36
sWV, sY0, sX0, sT0, sT1, sT2, sT3 = 40, 41, 42, 43, 44, 45, 46
sH13, sWI = 47, 3
sCA, sCC = 48, 50
sWS = 52
sXM, sIMG, sOB = 56, 57, 62
sWA, sWBm = 58, 59
sO0, sO1 = 60, 61
sST = 64
NST = 16
def srd(b): return f's[{b}:{b+3}]'
vO, vL, vY, vK, vG, vF1, vF2 = 0, 48, [72, 88], [104, 120], 136, 144, 168
vRES, vID = 204, 228
vAW1 = [236, 237, 238, 239]; vAW2 = 245
vLW1 = 204; vLW2 = 212
vDW1 = [220, 221]; vDW2 = [222, 223, 224]
vARL = 225
vSW = [246, 247]; vSR = [240, 241, 242]
vL16 = 244
vFA, vFW, vFP = 243, 248, 249
T = [250, 251, 252, 253, 254]
vLN = 255
vXO = 203; vPF = 202
vAF, vAE, vAE16, vAO, vTF0, vTE, vM0, vIDX, vAR = 192, 193, 194, 195, 196, 197, 198, 199, [200, 201]
CT = 0
vACC, vAFR, vB = 0, 84, 144
def vr(b, n): return f'v[{b}:{b+n-1}]'

a = Asm()
def _st(i): a(f'{"s_memtime" if CYC else "s_memrealtime"} s[{sST+2*i}:{sST+2*i+1}]')
def pstamp(i):
    if STAMP and PRO and not opt('lc'): _st(i)
def ap(n):
    return 's_memrealtime s[88:89]' if opt('amp') == n else ''
def stamp(i):
    a(ap(str(i)))
    if i in (8, 13): hold(i)
    if STAMP and not (PRO and 9 <= i <= 14): _st(i)
def mksrd(b, lo, n):
    a(f's_mov_b64 s[{b}:{b+1}], s[{lo}:{lo+1}]\ns_mov_b32 s{b+2}, {n}\ns_mov_b32 s{b+3}, 0x00020000')
def hold(tag):
    h = opt('hold')
    if h and h.split(':')[0] == str(tag):
        n = nlab[0]; nlab[0] += 1
        a(f's_waitcnt lgkmcnt(0)\ns_add_u32 s92, s94, {h.split(":")[1]}')
        a.label(f'L_hold{n}')
        a(f's_memrealtime s[90:91]\ns_waitcnt lgkmcnt(0)\ns_sub_u32 s93, s92, s90\ns_cmp_gt_i32 s93, 0\ns_cbranch_scc1 L_hold{n}')
def bar(i=None):
    jitter()
    a('s_barrier')
    jitter()
    hold(i)
    if i is not None: stamp(i)
def setexec(lo, hi):
    a(f's_mov_b32 exec_lo, {lo:#x}\ns_mov_b32 exec_hi, {hi:#x}')

nlab = [0]; slow = []
def guard():
    if opt('safe'): a('s_sub_u32 s98, s98, 1\ns_cbranch_scc1 L_end')
def jitter():
    if opt('jitter'):
        n = nlab[0]; nlab[0] += 1
        a(f's_mul_i32 s86, s86, 1103515245\ns_add_u32 s86, s86, 12345\ns_lshr_b32 s87, s86, {opt("jitter")}')
        a.label(f'L_jit{n}')
        a(f's_sleep 2\ns_sub_u32 s87, s87, 1\ns_cbranch_scc0 L_jit{n}')
def signal(v, emit=None):
    jitter()
    a(f'v_mov_b32 v{T[4]}, {v}')
    (emit or a)(f'ds_write_b32 v{vFW}, v{T[4]}')
def poll(grp, v):
    lab = f'L_poll{nlab[0]}'; nlab[0] += 1
    a.label(lab)
    guard()
    a(f'ds_read_b32 v{vFP}, v{vFA} offset:{16*grp}\ns_waitcnt lgkmcnt(0)\nv_cmp_gt_u32 vcc, {v}, v{vFP}\ns_cbranch_vccnz {lab}')
def peek(grp): a(f'ds_read_b32 v{vFP}, v{vFA} offset:{16*grp}')
def check(grp, v):
    jitter()
    n = nlab[0]; nlab[0] += 1
    a(f'v_cmp_gt_u32 vcc, {v}, v{vFP}\ns_cbranch_vccnz L_slow{n}')
    a.label(f'L_back{n}')
    slow.append((n, grp, v))
def emit_slow():
    for n, grp, v in slow:
        a.label(f'L_slow{n}')
        guard()
        a(f'ds_read_b32 v{vFP}, v{vFA} offset:{16*grp}\ns_waitcnt lgkmcnt(0)\nv_cmp_gt_u32 vcc, {v}, v{vFP}\ns_cbranch_vccnz L_slow{n}\ns_branch L_back{n}')
    slow.clear()
def landed(n, v):
    a(f's_waitcnt vmcnt({n})'); signal(v)

def wdma(p, parts=range(6)):
    jitter()
    for i in parts:
        if i < 3:
            a(f'''
            s_add_u32 m0, s{sWBm}, {PS*p + 1024*i}
            s_add_u32 s{sT0}, s{sWA}, {6144*i + 128*p}
            buffer_load_dwordx4 v{vDW1[i & 1]}, {srd(sW1)}, s{sT0} offen lds
            ''')
        else:
            if i == 3 or i - 1 not in parts:
                a(f's_add_u32 m0, s{sWBm}, {PS*p + 12288}\ns_add_u32 s{sT0}, s{sWBm}, {12288*p}')
            a(f'buffer_load_dwordx4 v{vDW2[i-3]}, {srd(sW2)}, s{sT0} offen offset:{1024*(i-3)} lds')

def ln(raw, U, dst, rows16, mid=None, mid2=None, mid0=None):
    n = len(dst)
    S, Q, ONE = T[1], T[3], T[4]
    sc, bi = T[0], T[2]
    a(f'v_mov_b32 v{ONE}, 0x3f803f80')
    un = []
    for i in range(n):
        un.append(f'v_lshlrev_b32 v{U+2*i}, 16, v{raw+i}')
        un.append(f'v_and_b32 v{U+2*i+1}, 0xffff0000, v{raw+i}')
    while len(un) > 8: a(un.pop(0))
    if mid0: mid0()
    for i in range(n):
        a(f'v_dot2_f32_bf16 v{S}, v{raw+i}, v{ONE}, {"0" if i == 0 else f"v{S}"}')
        a(f'v_dot2_f32_bf16 v{Q}, v{raw+i}, v{raw+i}, {"0" if i == 0 else f"v{Q}"}')
    def fill(k):
        for _ in range(k):
            if un: a(un.pop(0))
    fill(3)
    a(f'v_permlane32_swap_b32 v{S}, v{Q}')
    a(f'v_add_f32 v{S}, v{S}, v{Q}')
    if rows16:
        a(f'v_mov_b32 v{Q}, v{S}')
        fill(2)
        a(f'v_permlane16_swap_b32 v{S}, v{Q}')
        a(f'v_add_f32 v{S}, v{S}, v{Q}')
    a(f'v_mul_f32 v{S}, {fbits(1.0/96):#x}, v{S}')
    a(f'v_mov_b32 v{Q}, v{S}')
    fill(2)
    a(f'v_permlane32_swap_b32 v{S}, v{Q}')
    a(f'''
    v_fma_f32 v{Q}, -v{S}, v{S}, v{Q}
    v_max_f32 v{Q}, 0, v{Q}
    v_add_f32 v{Q}, {fbits(1e-5):#x}, v{Q}
    v_rsq_f32 v{Q}, v{Q}
    ''')
    fill(1)
    a(f'v_mul_f32 v{sc}, {fbits(ga):#x}, v{Q}')
    a(f'v_mul_f32 v{bi}, -v{S}, v{sc}')
    fill(1000)
    if mid: mid()
    for i in range(n):
        if opt('lnplain'):
            a(f'v_fma_f32 v{U+2*i}, v{U+2*i}, v{sc}, v{bi}\nv_fma_f32 v{U+2*i+1}, v{U+2*i+1}, v{sc}, v{bi}')
        else:
            a(f'v_pk_fma_f32 {vr(U+2*i,2)}, {vr(U+2*i,2)}, {vr(sc,2)}, {vr(bi,2)} op_sel_hi:[1,0,0]')
    if mid2: mid2()
    for i in range(n):
        a(f'v_cvt_pk_bf16_f32 v{dst[i]}, v{U+2*i}, v{U+2*i+1}')

def pk_t(Y, K, n):
    return [f'v_pk_fma_f32 {vr(K+2*i,2)}, {vr(Y+2*i,2)}, {vr(Y+2*i,2)}, s[{sCC}:{sCC+1}] neg_lo:[1,0,0] neg_hi:[1,0,0]' for i in range(n//2)] + pk_m(Y, K, n)
def pk_m(Y, K, n): return [f'v_pk_mul_f32 {vr(K+2*i,2)}, {vr(Y+2*i,2)}, {vr(K+2*i,2)}' for i in range(n//2)]
def pk_d(K, n): return [f'v_pk_fma_f32 {vr(K+2*i,2)}, {vr(K+2*i,2)}, s[{sCA}:{sCA+1}], s[{sCA}:{sCA+1}]' for i in range(n//2)]
def emit(l):
    for t in l: a(t)

def mlp32(hooks, prio):
    N = 12
    moved = {'w1': False, 'w2': False}
    def move(kind, c):
        if c >= 6 and not moved[kind]:
            for r in (vAW1 if kind == 'w1' else [vAW2]): a(f'v_add_u32 v{r}, {3*PS}, v{r}')
            moved[kind] = True
    def w1reads(c):
        for ks in range(6):
            off = ((c >> 1) % 3) * PS + (ks >> 1) * 4096 + (ks & 1) * 1024
            r = vAW1[(c & 1) + 2 * (ks & 1)]
            a(f'ds_read_b64_tr_b16 {vr(vF1+4*ks,2)}, v{r} offset:{off}')
            a(f'ds_read_b64_tr_b16 {vr(vF1+4*ks+2,2)}, v{r} offset:{off+512}')
    def w2reads(c):
        for i in range(6):
            ks2, mt = i // 3, i % 3
            off = ((c >> 1) % 3) * PS + (c & 1) * 6144 + ks2 * 3072 + mt * 64
            a(f'ds_read_b64_tr_b16 {vr(vF2+4*i,2)}, v{vAW2} offset:{off}')
            a(f'ds_read_b64_tr_b16 {vr(vF2+4*i+2,2)}, v{vAW2} offset:{off+1536}')
    def g1(c, ks):
        Y = vY[c & 1]
        a(f'v_mfma_f32_32x32x16_bf16 {vr(Y,16)}, {vr(vF1+4*ks,4)}, {vr(vL+4*ks,4)}, {"0" if ks == 0 else vr(Y,16)}')
    def g2(i):
        ks2, mt = i // 3, i % 3
        a(f'v_mfma_f32_32x32x16_bf16 {vr(vO+16*mt,16)}, {vr(vF2+4*i,4)}, {vr(vG+4*ks2,4)}, {vr(vO+16*mt,16)}')
    def resm(ks):
        j, mt = ks // 3, ks % 3
        a(f'v_mfma_f32_32x32x16_bf16 {vr(vO+16*mt,16)}, {vr(vID+4*j,4)}, {vr(vRES+4*(2*mt+j),4)}, {"0" if j == 0 else vr(vO+16*mt,16)}')
    def hook(k):
        for f in hooks.get(k, []): f()
    def pr(c, v):
        if prio(c) is not None: a(f's_setprio {prio(c)[v]}')
    hook('pre')
    a('s_waitcnt lgkmcnt(0)')
    for ks in range(6): g1(0, ks)
    w1reads(1)
    hook('start3')
    for c in range(N + 1):
        Y, K = vY[c & 1], vK[c & 1]
        Yp, Kp = vY[(c - 1) & 1], vK[(c - 1) & 1]
        pr(c, 1)
        if c >= 1: emit(pk_m(Yp, Kp, 16))
        if c < N: emit(pk_t(Y, K, 16))
        cv = [f'v_cvt_pk_bf16_f32 v{vG+i}, v{Kp+2*i}, v{Kp+2*i+1}' for i in range(8)] if c >= 1 else []
        if c == N:
            emit(cv)
            a('s_waitcnt lgkmcnt(0)')
            for i in (0, 3, 1, 4, 2, 5): g2(i)
            break
        ex = [f'v_exp_f32 v{K+i}, v{K+i}' for i in range(16)]
        rc = [f'v_rcp_f32 v{K+i}, v{K+i}' for i in range(16)]
        last = c + 1 >= N
        if c + 2 < N: move('w1', c + 2)
        move('w2', c)
        if c == 0:
            gaps = [ex[0:3], ex[3:6], ex[6:9], ex[9:12], ex[12:15], ex[15:16]]
            a('s_waitcnt lgkmcnt(0)')
            for j in range(6):
                g1(1, j); emit(gaps[j])
        elif not last:
            gaps = [cv[0:4] + ex[0:1], cv[4:8] + ex[1:2], ex[2:5], ex[5:8], ex[8:11], ex[11:14], ex[14:16]]
            for j in range(7):
                if j < 6: g1(c + 1, j)
                else: g2(0)
                if j == 5: a('s_waitcnt lgkmcnt(0)')
                emit(gaps[j])
        else:
            emit(cv); emit(ex[0:4])
            a('s_waitcnt lgkmcnt(0)')
            gaps = [ex[4:8], ex[8:12], ex[12:16]]
            for j in range(3):
                g2(j); emit(gaps[j])
        hook(('preT1', c))
        pr(c, 0)
        if c + 2 < N: w1reads(c + 2)
        hook(('T1', c))
        pr(c, 1)
        emit(pk_d(K, 16))
        if c == 0:
            gp = [rc[0:3], rc[3:6], rc[6:9], rc[9:12], rc[12:14], rc[14:16]]
            for j in range(6):
                resm(j)
                if j == 5: a('s_waitcnt lgkmcnt(0)')
                emit(gp[j])
        elif not last:
            gp = [rc[0:3], rc[3:6], rc[6:9], rc[9:12], rc[12:16]]
            for j in range(5):
                g2(j + 1)
                if j == 4: a('s_waitcnt lgkmcnt(0)')
                emit(gp[j])
        else:
            gp = [rc[0:3], rc[3:6], rc[6:16]]
            for j in range(3):
                g2(j + 3)
                if j == 2: w2reads(c)
                emit(gp[j])
        hook(('preT2', c))
        pr(c, 0)
        if not last: w2reads(c)
        hook(('T2', c))
    return w1reads

def f_w1reads0():
    for ks in range(6):
        off = (ks >> 1) * 4096 + (ks & 1) * 1024
        r = vAW1[2 * (ks & 1)]
        a(f'ds_read_b64_tr_b16 {vr(vF1+4*ks,2)}, v{r} offset:{off}')
        a(f'ds_read_b64_tr_b16 {vr(vF1+4*ks+2,2)}, v{r} offset:{off+512}')

def l_w1reads(s):
    for i in range(6):
        mt2, ks3 = i // 3, i % 3
        off = ((s >> 2) & 1) * 2 * PS + ks3 * 4096
        r = vLW1 + mt2 + 2 * (s & 3)
        a(f'ds_read_b64_tr_b16 {vr(vF1+4*i,2)}, v{r} offset:{off}')
        a(f'ds_read_b64_tr_b16 {vr(vF1+4*i+2,2)}, v{r} offset:{off+512}')

def mlp16(doubles, hooks, prio):
    N = 12
    def wid(s): return 0 if (s < 0 or s >= N) else (2 if s in doubles else 1)
    def move(base):
        for r in range(8): a(f'v_add_u32 v{base+r}, {4*PS}, v{base+r}')
    def w2reads(s):
        for i in range(6):
            off = ((s >> 2) & 1) * 2 * PS + 64 * (i >> 1)
            r = vLW2 + (i & 1) + 2 * (s & 3)
            a(f'ds_read_b64_tr_b16 {vr(vF2+4*i,2)}, v{r} offset:{off}')
            a(f'ds_read_b64_tr_b16 {vr(vF2+4*i+2,2)}, v{r} offset:{off+3072}')
    def m1(s):
        l = []
        for t in range(wid(s)):
            for j in range(6):
                mt2, ks3 = j & 1, j >> 1
                D = vY[s & 1] + 8 * t + 4 * mt2
                l.append(f'v_mfma_f32_16x16x32_bf16 {vr(D,4)}, {vr(vF1+4*(mt2*3+ks3),4)}, {vr(vL+12*t+4*ks3,4)}, {"0" if ks3 == 0 else vr(D,4)}')
        return l
    def m2(s):
        return [f'v_mfma_f32_16x16x32_bf16 {vr(vO+24*t+4*i,4)}, {vr(vF2+4*i,4)}, {vr(vG+4*t,4)}, {vr(vO+24*t+4*i,4)}' for t in range(wid(s)) for i in range(6)]
    def weave(ms, fl):
        fl = list(fl)
        if not ms:
            emit(fl); a('s_waitcnt lgkmcnt(0)'); return
        for j, m in enumerate(ms):
            a(m)
            if j == len(ms) - 1: a('s_waitcnt lgkmcnt(0)')
            k = -(-len(fl) // (len(ms) - j))
            emit(fl[:k]); fl = fl[k:]
    def hook(k):
        for f in hooks.get(k, []): f()
    def pr(c, v):
        if prio(c) is not None: a(f's_setprio {prio(c)[v]}')
    hook('pre')
    a('s_waitcnt lgkmcnt(0)')
    emit(m1(0))
    l_w1reads(1)
    hook('start3')
    for s in range(N + 1):
        Y, K = vY[s & 1], vK[s & 1]
        Yp, Kp = vY[(s - 1) & 1], vK[(s - 1) & 1]
        n, np_ = 8 * wid(s), 8 * wid(s - 1)
        pr(s, 1)
        emit(pk_m(Yp, Kp, np_))
        emit(pk_t(Y, K, n))
        cv = [f'v_cvt_pk_bf16_f32 v{vG+i}, v{Kp+2*i}, v{Kp+2*i+1}' for i in range(np_ // 2)]
        if s == N:
            emit(cv)
            a('s_waitcnt lgkmcnt(0)')
            emit(m2(N - 1))
            break
        ex = [f'v_exp_f32 v{K+i}, v{K+i}' for i in range(n)]
        rc = [f'v_rcp_f32 v{K+i}, v{K+i}' for i in range(n)]
        if s + 2 == 8: move(vLW1)
        if s == 8: move(vLW2)
        if s == 0: a('s_waitcnt lgkmcnt(0)')
        weave(m1(s + 1), cv + ex)
        hook(('preT1', s))
        pr(s, 0)
        if s + 2 < N: l_w1reads(s + 2)
        hook(('T1', s))
        pr(s, 1)
        emit(pk_d(K, n))
        weave(m2(s - 1), rc)
        hook(('preT2', s))
        pr(s, 0)
        w2reads(s)
        hook(('T2', s))

def finish():
    if opt('amp'):
        n = nlab[0]; nlab[0] += 1
        if opt('amp') == 'end': a(f's_waitcnt vmcnt(0)\ns_memrealtime s[88:89]' + ('' if opt('amprows') else f'\ns_mov_b32 s{sH13}, 13'))
        if opt('amprole'): a(f's_waitcnt lgkmcnt(0)\ns_lshr_b32 s93, s{sWV}, 2\ns_cmp_eq_u32 s93, {opt("amprole")}\ns_cselect_b32 s88, s88, 0')
        a(f's_waitcnt vmcnt(0) lgkmcnt(0)\ns_sub_u32 s92, s88, s94\ns_lshl_b32 s92, s92, 2\ns_cmp_eq_u32 s88, 0\ns_cselect_b32 s92, 0, s92')
        a(f's_cmp_eq_u32 s{sH13}, {opt("amprows", 13)}\ns_cselect_b32 s92, s92, 0\ns_add_u32 s92, s92, 1400\ns_add_u32 s92, s92, s94')
        a.label(f'L_amp{n}')
        a(f's_memrealtime s[90:91]\ns_waitcnt lgkmcnt(0)\ns_sub_u32 s93, s92, s90\ns_cmp_gt_i32 s93, 0\ns_cbranch_scc1 L_amp{n}')
    if STAMP:
        stamp(14)
        a('s_waitcnt vmcnt(0)')
        stamp(15)
        a('s_waitcnt lgkmcnt(0)')
        if opt('dbg'):
            n = nlab[0]; nlab[0] += 1
            a(f's_cmp_lg_u32 s2, {opt("dbg")}\ns_cbranch_scc1 L_nd{n}\ns_cmp_lg_u32 s{sWI}, 0\ns_cbranch_scc1 L_nd{n}')
            a(f's_lshl_b32 s{sT0}, s{sWV}, 3\nv_mov_b32 v{T[1]}, s{sT0}\ns_mov_b64 exec, 1')
            for k, i in enumerate((1, 2, 3, 4, 8, 10, 13, 15)):
                a(f's_sub_u32 s{sT0}, s{sST+2*i}, s{sST}\nv_mov_b32 v{T[0]}, s{sT0}')
                a(f'buffer_store_dword v{T[0]}, v{T[1]}, {srd(sWS)}, 0 offen offset:{4*k}')
            a.label(f'L_nd{n}')
            a('s_endpgm')
            return
        a(f'''
        s_lshl_b32 s{sT0}, s2, 3
        s_add_u32 s{sT0}, s{sT0}, s{sWV}
        s_lshl_b32 s{sT0}, s{sT0}, 6
        v_mov_b32 v{T[1]}, s{sT0}
        s_mov_b64 exec, 1
        ''')
        for i in range(NST):
            a(f'v_mov_b32 v{T[0]}, s{sST+2*i}')
            a(f'buffer_store_dword v{T[0]}, v{T[1]}, {srd(sWS)}, 0 offen offset:{4*i}')
    a('s_endpgm')

def tab_reads(gi, em):
    A = vAFR + 20 * gi; o = 64 * gi
    for d in range(3):
        em(f'ds_read_b64_tr_b16 {vr(A+4*d+2,2)}, v{vTF0} offset:{o + 2*d*TP}')
    for par in range(2):
        em(f'ds_read_b64_tr_b16 {vr(A+12+4*par+2,2)}, v{vTE} offset:{o + (2 - 2*par)*TP}')
def tab_expand(gi):
    for f in range(5):
        A = vAFR + 20 * gi + 4 * f
        a(f'v_and_b32 v{A}, v{vM0}, v{A+2}\nv_bfi_b32 v{A+1}, v{vM0}, 0, v{A+2}\nv_and_b32 v{A+2}, v{vM0}, v{A+3}\nv_bfi_b32 v{A+3}, v{vM0}, 0, v{A+3}')
RING = 6
class Conv:
    def __init__(self, k0): self.n = 0; self.slot = 0; self.k0 = k0
    def acc(self, gi, k): return vACC + 16 * gi + 4 * (k - self.k0)
    def ds(self, t): a(t); self.n += 1; return self.n
    def wait(self, seq): a(f's_waitcnt lgkmcnt({min(15, self.n - seq)})')
    def reads(self, it):
        B = it['B']; go = 64 * it['gi']; idx = it['idx']; kind = it['kind']
        if kind == 'H':
            return [f'ds_read_b128 {vr(self.eb[it["gi"]]+4*sl,4)}, v{vAE16 if r == 16 else vAE} offset:{r*XROW+go}' for sl, r in it['rd']]
        if kind == 'F' and idx == 8:
            return [f'ds_read_b128 {vr(B,4)}, v{vAF} offset:{16*XROW+go}']
        if kind == 'F':
            r0, r1 = 2 * idx, min(2 * idx + 1, 16)
            return [f'ds_read_b128 {vr(B,4)}, v{vAF} offset:{r0*XROW+go}', f'ds_read_b128 {vr(B+4,4)}, v{vAF} offset:{r1*XROW+go}']
        if kind == 'E':
            return [f'ds_read_b128 {vr(B,4)}, v{vAE} offset:{2*idx*XROW+go}', f'ds_read_b128 {vr(B+4,4)}, v{vAE} offset:{(2*idx+4)*XROW+go}']
        return [f'ds_read_b128 {vr(B,4)}, v{vAE} offset:{12*XROW+go}', f'ds_read_b128 {vr(B+4,4)}, v{vAE16} offset:{16*XROW+go}']
    def cvt(self, lst):
        for gi, k in lst:
            A = self.acc(gi, k)
            a(f'v_cvt_pk_bf16_f32 v{A}, v{A}, v{A+1}\nv_cvt_pk_bf16_f32 v{A+1}, v{A+2}, v{A+3}')
    def write(self, lst):
        for gi, k in lst:
            A = self.acc(gi, k)
            if k == 6: setexec(0xffff, 0xffff)
            self.ds(f'ds_write_b64 v{vAO}, {vr(A,2)} offset:{(k-self.k0)*6144+64*gi}')
            if k == 6: a('s_mov_b64 exec, -1')
    def run(self, items, stop_at=None):
        D = RING - 1
        nxt = 0
        while nxt < len(items) and 'seq' in items[nxt]: nxt += 1
        def start(j):
            if items[j]['kind'] == 'H': items[j]['B'] = self.eb[items[j]['gi']] + 4 * items[j]['w']
            else:
                items[j]['B'] = vB + 8 * (self.slot % RING); self.slot += 1
            return self.reads(items[j])
        while nxt < min(D, len(items)):
            for t in start(nxt): items[nxt]['seq'] = self.ds(t)
            nxt += 1
        end = len(items) if stop_at is None else stop_at
        for i in range(end):
            it = items[i]
            if it['outs']: self.wait(it['seq'])
            pend = start(nxt) if nxt < len(items) else []
            A = vAFR + 20 * it['gi']
            had = bool(pend)
            for k in it['outs']:
                fr = (it['idx'] - k) if it['kind'] == 'F' else 3 + (k - it['idx'])
                a(f'v_smfmac_f32_16x16x64_bf16 {vr(self.acc(it["gi"], k),4)}, {vr(A+4*fr,4)}, {vr(it["B"],8)}, v{vIDX}')
                if pend: items[nxt]['seq'] = self.ds(pend.pop(0))
            for t in pend: items[nxt]['seq'] = self.ds(t)
            if had: nxt += 1
            if it.get('pub'):
                self.cvt(it['pub'])
                if not it.get('nowrite'): self.write(it['pub'])
            if it.get('post'): it['post']()
        return items[end:]
def stage(frags): return [dict(gi=gi, kind=f[0], idx=f[1], outs=list(f[2]), **(dict(w=f[3], rd=f[4]) if f[0] == 'H' else {})) for gi in range(3) for f in frags]
def add_pub(items, base, nfr, pairs, nowrite=False):
    for gi in range(3):
        j = min(base + nfr * (gi + 1), len(items) - 1)
        items[j].setdefault('pub', []).extend((gi, k) for k in pairs)
        items[j]['nowrite'] = nowrite

def late_setup():
    mksrd(sOUT, 14, XBYTES)
    if opt('safe'): a('s_mov_b32 s98, 200000')
    a(f'''
    s_mov_b32 s{sCA}, {fbits(ga):#x}
    s_mov_b32 s{sCA+1}, {fbits(ga):#x}
    s_mov_b32 s{sCC}, {fbits(gc):#x}
    s_mov_b32 s{sCC+1}, {fbits(gc):#x}
    s_add_u32 s{sT0}, s{sWI}, s{sY0}
    s_mul_i32 s{sT0}, s{sT0}, 224
    s_add_u32 s{sT0}, s{sT0}, s{sX0}
    s_mul_i32 s{sO0}, s{sT0}, 192
    ''')
    if STAMP:
        a(f's_mov_b32 s{sWS+2}, {256 if opt("dbg") else 0x10000000}\ns_mov_b32 s{sWS+3}, 0x00020000')
        for i in (7,): a(f's_mov_b32 s{sST+2*i}, 0')

q = [4, 5, 6, 7]
def ctw(j, r=4): a(f'ds_write_b128 v{vL16}, {vr(r,4)} offset:{CT + 1024*j}')
def ctr(j, r, em=None): (em or a)(f'ds_read_b128 {vr(r,4)}, v{vL16} offset:{CT + 1024*j}')
def ct0():
    a(f"""
    v_and_b32 v{T[0]}, 15, v{vLN}
    v_bfe_u32 v{T[1]}, v{vLN}, 4, 1
    v_lshrrev_b32 v{T[3]}, 5, v{vLN}
    v_lshl_add_u32 v{T[2]}, v{T[1]}, 1, v{T[3]}
    v_add_u32 v{T[2]}, v{T[0]}, v{T[2]}
    v_bfe_u32 v{T[4]}, v{T[2]}, 2, 2
    v_mul_u32_u24 v{T[2]}, 192, v{T[2]}
    v_lshl_add_u32 v4, v{T[4]}, 4, v{T[2]}
    v_add_u32 v4, {XB}, v4
    v_add_u32 v{T[2]}, 4, v{T[0]}
    v_bfe_u32 v{T[4]}, v{T[2]}, 2, 2
    v_mul_u32_u24 v{T[2]}, 192, v{T[2]}
    v_lshl_add_u32 v6, v{T[4]}, 4, v{T[2]}
    v_add_u32 v6, {XB}, v6
    v_lshrrev_b32 v{T[2]}, 4, v{vLN}
    v_mul_u32_u24 v{T[2]}, {XROW}, v{T[2]}
    v_add_u32 v5, v6, v{T[2]}
    v_bfe_u32 v{T[4]}, v{vLN}, 2, 2
    v_and_b32 v{T[2]}, 31, v{vLN}
    v_mul_u32_u24 v{T[2]}, 192, v{T[2]}
    v_lshl_add_u32 v{T[2]}, v{T[4]}, 4, v{T[2]}
    v_bfe_u32 v{T[4]}, v{vLN}, 1, 1
    v_xor_b32 v{T[3]}, v{T[3]}, v{T[4]}
    v_lshl_add_u32 v7, v{T[3]}, 3, v{T[2]}
    """)
    ctw(0)
    for j in range(3):
        a(f"""
        v_add_u32 v{T[0]}, {64*j}, v{vLN}
        v_mul_u32_u24 v{T[2]}, 171, v{T[0]}
        v_bfe_u32 v{T[2]}, v{T[2]}, 12, 2
        v_xor_b32 v{T[0]}, v{T[0]}, v{T[2]}
        v_lshlrev_b32 v{8+j}, 4, v{T[0]}
        """)
    a(f'v_and_b32 v{T[0]}, 3, v{vLN}\nv_lshlrev_b32 v11, 2, v{T[0]}\nv_add_u32 v11, {FL}, v11')
    ctw(2, 8)
    a(f'v_add_u32 v{T[0]}, {TB}, v{vL16}\nv_mov_b64 v[0:1], 0\nv_mov_b64 v[2:3], 0')
    for off in (0, 2*TP - 1024, 5*TP, 7*TP - 1024, 12*TP, 12*TP + 1024, 15*TP - 1024):
        a(f'ds_write_b128 v{T[0]}, v[0:3] offset:{off}')
def ct1():
    a(f"""
    v_and_b32 v{T[0]}, 3, v{vLN}
    v_mul_u32_u24 v7, 0x5555, v{T[0]}
    s_mov_b32 s{sT2}, {TB}
    v_bfe_u32 v{T[1]}, v{vLN}, 1, 1
    v_lshl_add_u32 v{T[4]}, v{T[1]}, 3, s{sT2}
    v_and_b32 v{T[0]}, 1, v{vLN}
    v_lshrrev_b32 v{T[1]}, 5, v{vLN}
    v_sub_u32 v{T[1]}, v{T[1]}, v{T[0]}
    v_bfe_u32 v{T[2]}, v{vLN}, 2, 1
    v_mad_i32_i24 v{T[1]}, v{T[2]}, -6, v{T[1]}
    v_add_u32 v{T[1]}, 7, v{T[1]}
    v_mul_u32_u24 v{T[1]}, {TP}, v{T[1]}
    v_bfe_u32 v{T[3]}, v{vLN}, 3, 1
    v_add_u32 v6, -1, v{T[3]}
    v_bfe_u32 v{T[2]}, v{vLN}, 4, 1
    v_lshl_add_u32 v{T[2]}, v{T[3]}, 1, v{T[2]}
    v_mul_u32_u24 v{T[2]}, 192, v{T[2]}
    v_add3_u32 v4, v{T[1]}, v{T[2]}, v{T[4]}
    v_lshrrev_b32 v{T[1]}, 4, v{vLN}
    v_lshl_add_u32 v{T[2]}, v{T[1]}, 1, v{T[3]}
    v_sub_u32 v{T[2]}, v{T[2]}, v{T[0]}
    v_add_u32 v{T[2]}, 5, v{T[2]}
    v_mul_u32_u24 v{T[2]}, {TP}, v{T[2]}
    v_mov_b32 v5, s{sT2}
    s_mov_b32 exec_lo, 0x0f0f0f0f
    s_mov_b32 exec_hi, 0x0f0f0f0f
    v_add_u32 v{T[2]}, 768, v{T[2]}
    v_add_u32 v5, v{T[2]}, v{T[4]}
    s_mov_b64 exec, -1
    """)
    ctw(1)
    a(f"""
    v_lshrrev_b32 v{T[0]}, 3, v{vLN}
    v_mul_u32_u24 v{T[0]}, 768, v{T[0]}
    v_bfe_u32 v{T[1]}, v{vLN}, 4, 1
    v_lshlrev_b32 v{T[1]}, 2, v{T[1]}
    v_and_b32 v{T[2]}, 7, v{vLN}
    v_xor_b32 v{T[1]}, v{T[1]}, v{T[2]}
    v_lshl_add_u32 v8, v{T[1]}, 4, v{T[0]}
    v_mov_b32 v9, v{vL16}
    v_mov_b32 v10, v{vL16}
    v_mov_b32 v11, v{vL16}
    s_mov_b32 exec_lo, 0xffff0000
    v_xor_b32 v11, 32, v{vL16}
    s_mov_b32 exec_lo, 0
    s_mov_b32 exec_hi, 0xffff0000
    v_xor_b32 v9, 32, v{vL16}
    s_mov_b32 exec_lo, -1
    s_mov_b32 exec_hi, 0
    v_xor_b32 v10, 32, v{vL16}
    s_mov_b64 exec, -1
    """)
    ctw(7, 8)
def ct2():
    a(f"""
    v_lshrrev_b32 v{T[4]}, 5, v{vLN}
    v_bfe_u32 v{T[0]}, v{vLN}, 2, 2
    v_bfe_u32 v{T[1]}, v{vLN}, 4, 1
    v_and_b32 v{T[2]}, 3, v{vLN}
    v_lshl_add_u32 v{T[3]}, v{T[4]}, 4, v{T[0]}
    v_lshlrev_b32 v{T[3]}, 7, v{T[3]}
    v_lshl_add_u32 v{T[3]}, v{T[1]}, 5, v{T[3]}
    v_lshl_add_u32 v{T[3]}, v{T[2]}, 3, v{T[3]}
    v_bfe_u32 v{T[2]}, v{vLN}, 3, 1
    v_lshl_add_u32 v4, v{T[2]}, 6, v{T[3]}
    v_xor_b32 v5, 64, v4
    v_xor_b32 v6, 32, v4
    v_xor_b32 v7, 0x60, v4
    """)
    ctw(3)
    a(f"""
    v_lshl_add_u32 v{T[3]}, v{T[4]}, 2, v{T[0]}
    v_mul_u32_u24 v{T[3]}, 192, v{T[3]}
    v_lshl_add_u32 v{T[3]}, v{T[1]}, 4, v{T[3]}
    v_and_b32 v{T[2]}, 1, v{vLN}
    v_xor_b32 v{T[2]}, v{T[2]}, v{T[4]}
    v_lshl_add_u32 v{T[3]}, v{T[2]}, 5, v{T[3]}
    v_bfe_u32 v{T[2]}, v{vLN}, 1, 1
    v_lshl_add_u32 v8, v{T[2]}, 3, v{T[3]}
    v_and_b32 v{T[3]}, 15, v{vLN}
    v_mul_u32_u24 v{T[3]}, 192, v{T[3]}
    v_add_u32 v16, 2, v{vLN}
    v_bfe_u32 v16, v16, 2, 2
    v_bfe_u32 v17, v{vLN}, 1, 2
    v_lshl_add_u32 v18, v{T[1]}, 3, v{T[3]}
    v_xor_b32 v12, v{T[4]}, v17
    v_lshl_add_u32 v12, v12, 4, v18
    v_xor_b32 v13, v{T[4]}, v16
    v_lshl_add_u32 v13, v13, 4, v18
    v_lshlrev_b32 v{T[4]}, 1, v{T[4]}
    v_xor_b32 v{T[0]}, v{T[4]}, v{T[0]}
    v_lshl_add_u32 v{T[0]}, v{T[0]}, 4, v{T[3]}
    v_lshl_add_u32 v{T[0]}, v{T[2]}, 3, v{T[0]}
    v_mul_u32_u24 v{T[2]}, {4*3072}, v{T[1]}
    v_add_u32 v9, v{T[0]}, v{T[2]}
    v_xor_b32 v16, v{T[4]}, v16
    v_lshl_add_u32 v16, v16, 4, v{T[3]}
    v_mul_u32_u24 v{T[2]}, {4*XROW}, v{T[1]}
    v_add_u32 v10, v16, v{T[2]}
    v_xor_b32 v17, v{T[4]}, v17
    v_lshl_add_u32 v17, v17, 4, v{T[3]}
    v_mul_u32_u24 v{T[2]}, 3072, v{T[1]}
    v_add_u32 v11, v17, v{T[2]}
    v_mov_b64 v[14:15], 0
    """)
    ctw(4, 8); ctw(9, 12)
def ct3():
    a(f"""
    v_and_b32 v{T[1]}, 1, v{vLN}
    v_lshlrev_b32 v{T[1]}, 4, v{T[1]}
    v_mov_b32 v{T[2]}, 0x3f80
    v_lshlrev_b32 v{T[1]}, v{T[1]}, v{T[2]}
    """)
    for i in range(4): a(f'v_mov_b64 {vr(4+2*i,2)}, 0')
    for i in range(8):
        pos = 16 * (i >> 2) + 8 * ((i >> 1) & 1) + 2 * (i & 1)
        setexec(3 << pos, 3 << (pos + 4))
        a(f'v_mov_b32 v{4+i}, v{T[1]}')
    a('s_mov_b64 exec, -1')
    ctw(5, 4); ctw(6, 8)
    a(f"""
    v_lshrrev_b32 v{T[4]}, 4, v{vLN}
    v_bfe_u32 v{T[0]}, v{vLN}, 2, 2
    v_and_b32 v{T[2]}, 3, v{vLN}
    v_bfe_u32 v{T[1]}, v{vLN}, 4, 1
    v_lshlrev_b32 v{T[2]}, 3, v{T[2]}
    v_lshl_add_u32 v{T[2]}, v{T[1]}, 5, v{T[2]}
    v_lshl_add_u32 v{T[3]}, v{T[4]}, 3, v{T[0]}
    v_lshl_add_u32 v{T[3]}, v{T[3]}, 7, v{T[2]}
    v_bfe_u32 v{T[1]}, v{vLN}, 3, 1
    v_lshl_add_u32 v12, v{T[1]}, 6, v{T[3]}
    v_lshl_add_u32 v{T[3]}, v{T[4]}, 2, v{T[0]}
    v_mul_u32_u24 v{T[3]}, 192, v{T[3]}
    v_add_u32 v13, v{T[3]}, v{T[2]}
    v_xor_b32 v{T[0]}, v{T[4]}, v{T[0]}
    v_and_b32 v{T[3]}, 15, v{vLN}
    v_mul_u32_u24 v{T[3]}, 192, v{T[3]}
    v_lshl_add_u32 v14, v{T[0]}, 4, v{T[3]}
    v_bfe_u32 v{T[1]}, v{vLN}, 1, 1
    v_lshl_add_u32 v15, v{T[1]}, 3, v14
    """)
    ctw(8, 12)
def pre_common():
    for i in range(24): a(f'v_mov_b64 {vr(vACC+2*i,2)}, 0')
    a(f"""
    s_lshl_b32 s{sT0}, s{sWV}, 2
    s_add_u32 s{sT0}, s{sT0}, {FL}
    v_mov_b32 v{vFW}, s{sT0}
    ds_write_b32 v{vFW}, v0
    s_mul_i32 s{sWA}, s{sWI}, {3*6144}
    s_mul_i32 s{sWBm}, s{sWI}, 3072
    """)
    mksrd(sW1, 10, 73728); mksrd(sW2, 12, 73728)
    late_setup()
def fix_conv():
    a(f"""
    s_lshl_b32 s{sT0}, s{sWI}, 4
    v_add_u32 v{vTF0}, s{sT0}, v{vTF0}
    v_add_u32 v{vTE}, s{sT0}, v{vTE}
    v_xor_b32 v{vAF}, s{sT0}, v{vAF}
    v_xor_b32 v{vAE}, s{sT0}, v{vAE}
    v_xor_b32 v{vAE16}, s{sT0}, v{vAE16}
    v_xor_b32 v{vAO}, s{sT0}, v{vAO}
    v_add_u32 v{vAO}, s{sOB}, v{vAO}
    """)
def fix_common():
    a(f"""
    v_add_u32 v{vSR[0]}, s{sIMG}, v{vSR[0]}
    v_add_u32 v{vSR[1]}, s{sIMG}, v{vSR[1]}
    v_add_u32 v{vSR[2]}, s{sIMG}, v{vSR[2]}
    s_and_b32 s{sT1}, s{sWI}, 1
    s_lshl_b32 s{sT0}, s{sT1}, 5
    v_xor_b32 v{vDW1[0]}, s{sT0}, v{vDW1[0]}
    v_xor_b32 v{vDW1[1]}, 32, v{vDW1[0]}
    """)

TM = opt('touch', 'n')
TOUCH = chr(10).join(t for k, t in (('l', 's_load_dword s76, s[6:7], 0'), ('x', f's_load_dword s77, s[4:5], s{sT0}'), ('1', 's_load_dword s78, s[10:11], 0'),
        ('2', 's_load_dword s79, s[12:13], 0'), ('o', f's_load_dword s80, s[14:15], s{sT0}')) if k in TM)
isF = 's_cmp_lt_u32' if FOLD else 's_cmp_ge_u32'
a(f'''
s_load_dwordx4 s[4:7], s[0:1], 0
s_load_dwordx4 s[8:11], s[0:1], 16
s_load_dwordx4 s[12:15], s[0:1], 32
s_getpc_b64 s[100:101]
L_pc:
''')
if STAMP: a(f's_load_dwordx2 s[{sWS}:{sWS+1}], s[0:1], {48 if opt("dbg") else 56}')
stamp(0)
if opt('jitter'): a('s_memtime s[86:87]\ns_waitcnt lgkmcnt(0)\nv_readfirstlane_b32 s87, v0\ns_nop 4\ns_mul_i32 s87, s87, 7919\ns_xor_b32 s86, s86, s87')
if opt('hold') or opt('amp'): a('s_memrealtime s[94:95]\ns_mov_b32 s88, 0')
PFM = opt('pf', 'h'); CSE = False
a(f"""
v_lshrrev_b32 v{T[0]}, 6, v0
s_cmp_ge_u32 s2, 256
s_cbranch_scc1 L_end
v_and_b32 v{vLN}, 63, v0
s_lshr_b32 s{sT1}, s2, 3
v_readfirstlane_b32 s{sWV}, v{T[0]}
s_and_b32 s{sT2}, s2, 1
s_add_u32 s{sT2}, s{sT2}, s{sT1}
s_cmp_ge_u32 s{sT2}, 32
s_cbranch_scc1 L_end
{isF} s{sWV}, 4
s_cbranch_scc1 L_e1
s_setprio 3
L_e1:
s_and_b32 s{sT0}, s2, 3
v_mul_u32_u24 v{T[0]}, 43, v{vLN}
s_mul_i32 s{sT0}, s{sT0}, 63
s_add_u32 s{sT0}, s{sT0}, 1
v_lshrrev_b32 v{T[0]}, 9, v{T[0]}
s_lshr_b32 s{sT0}, s{sT0}, 1
s_add_u32 s{sT0}, s{sT0}, s{sT1}
v_mad_i32_i24 v{T[1]}, v{T[0]}, -12, v{vLN}
s_mul_i32 s{sT1}, s{sT0}, 9363
s_lshr_b32 s{sT1}, s{sT1}, 16
s_and_b32 s{sWI}, s{sWV}, 3
s_bfe_u32 s{sT2}, s2, 0x10002
s_sub_u32 s{sT2}, s{sT2}, s{sT1}
s_mul_i32 s{sT2}, s{sT2}, 7
v_mad_u32_u24 v{T[0]}, s{sWI}, 5, v{T[0]}
s_add_u32 s{sT0}, s{sT0}, s{sT2}
s_lshl_b32 s{sX0}, s{sT0}, 4
v_bfe_u32 v{T[2]}, v{T[0]}, 2, 2
s_mul_i32 s{sH13}, s{sT1}, {112*7282}
v_xor_b32 v{T[1]}, v{T[1]}, v{T[2]}
s_add_u32 s{sH13}, s{sH13}, {int(opt('yc', 4))*7282}
s_lshr_b32 s{sY0}, s{sH13}, 16
v_add3_u32 v{T[0]}, v{T[0]}, s{sX0}, -2
s_mov_b32 s99, 43008
v_mul_u32_u24 v{T[2]}, 192, v{T[0]}
s_sub_u32 s{sT1}, s{sY0}, 2
v_cmp_gt_u32 vcc, 224, v{T[0]}
s_mul_i32 s{sT1}, s{sT1}, s99
v_lshl_add_u32 v{T[2]}, v{T[1]}, 4, v{T[2]}
v_mov_b32 v{T[4]}, {MARK}
s_mul_i32 s{sXM}, s{sWI}, 960
v_cndmask_b32 v{vXO}, v{T[4]}, v{T[2]}, vcc
s_mov_b32 s{sX+2}, {XBYTES}
s_mov_b32 s{sX+3}, 0x00020000
v_add_u32 v{vXO}, s{sT1}, v{vXO}
{isF} s{sWV}, 4
s_cbranch_scc1 L_F0
s_add_u32 m0, s{sXM}, {XB}
s_movk_i32 s97, {XROW}
s_mov_b32 exec_hi, 0x0fffffff
s_waitcnt lgkmcnt(0)
{ap('Lk')}
s_mov_b64 s[{sX}:{sX+1}], s[4:5]
""")
def h13fin():
    a(f"""
    s_add_u32 s{sH13}, s{sH13}, {112*7282}
    s_lshr_b32 s{sH13}, s{sH13}, 16
    s_sub_u32 s{sH13}, s{sH13}, s{sY0}
    """)
def l_tables():
    a(f"""
    v_lshlrev_b32 v{T[3]}, 4, v{vLN}
    s_mov_b32 s96, m0
    s_mov_b32 s{sDS+2}, 4800
    s_mov_b32 s{sDS+3}, 0x00020000
    s_mul_i32 s{sT3}, s{sWI}, {TP}
    s_mov_b64 s[{sDS}:{sDS+1}], s[8:9]
    s_add_u32 m0, s{sT3}, {TB + 7*TP}
    s_mov_b32 s{sDL+3}, 0x00020000
    buffer_load_dwordx4 v{T[3]}, {srd(sDS)}, s{sXM} offen lds
    s_mul_i32 s{sT2}, s{sWI}, 576
    s_sub_u32 s{sT2}, s{sT2}, 192
    s_add_u32 s{sT1}, s{sT3}, {TB + 2*TP}
    s_cmp_eq_u32 s{sWI}, 3
    s_cselect_b32 s{sDL+2}, s{sDS+2}, 1728
    s_cselect_b32 s{sT2}, 3840, s{sT2}
    s_cselect_b32 m0, {TB + 11*TP}, s{sT1}
    s_cselect_b64 s[{sDL}:{sDL+1}], s[8:9], s[6:7]
    s_cselect_b32 exec_lo, -1, 0xfffff000
    s_cselect_b32 exec_hi, -1, 0xffff
    v_add_u32 v{T[4]}, s{sT2}, v{T[3]}
    s_mov_b32 exec_lo, -1
    s_mov_b32 exec_hi, 0x0fffffff
    buffer_load_dwordx4 v{T[4]}, {srd(sDL)}, 0 offen lds
    s_mov_b32 m0, s96
    """)
xl = [0]
def xrows(n):
    for _ in range(n):
        t = xl[0]; xl[0] += 1
        if t:
            a('s_add_u32 m0, m0, s97')
            a(f'v_add_u32 v{vXO}, s99, v{vXO}')
        a(f'buffer_load_dwordx4 v{vXO}, {srd(sX)}, 0 offen{XPOL} lds')
NX0 = int(opt('nx0', 8))
TPOS = int(opt('tpos', 2))
xrows(TPOS)
l_tables()
xrows(NX0 - TPOS)
a('s_setprio 0')
a(ap('Li'))
stamp(1)
a(f'''
s_branch L_L
L_F0:
; ---- F: conv weight tables, rows w and w+4 of both
''')
h13fin()
if PFM == 'h':
    a(f'''
    s_cmp_eq_u32 s{sH13}, 13
    s_cbranch_scc1 L_nopf
    s_bfe_u32 s{sT3}, s2, 0x20003
    s_lshl_b32 s{sT3}, s{sT3}, 2
    s_add_u32 s{sT3}, s{sT3}, s{sWI}
    s_mul_i32 s{sT3}, s{sT3}, {20*128}
    v_lshl_add_u32 v{T[2]}, v{vLN}, 7, s{sT3}
    v_min_u32 v{T[2]}, L_end-L_pc, v{T[2]}
    v_mov_b32 v{T[3]}, s101
    v_add_co_u32 v{T[2]}, vcc, s100, v{T[2]}
    s_mov_b64 exec, 0xfffff
    s_nop 0
    v_addc_co_u32 v{T[3]}, vcc, 0, v{T[3]}, vcc
    global_load_dword v{vPF}, v[{T[2]}:{T[3]}], off
    s_mov_b64 exec, -1
    L_nopf:
    ''')
a(f'''
s_setprio {opt("fprio", 2)}
v_lshlrev_b32 v{vL16}, 4, v{vLN}
s_mul_i32 s{sIMG}, s{sWI}, 6144
s_mov_b32 s{sOB}, {OUTF}
s_cmp_eq_u32 s{sWI}, 1
s_cbranch_scc1 L_ct1
s_cmp_eq_u32 s{sWI}, 2
s_cbranch_scc1 L_ct2
s_cmp_eq_u32 s{sWI}, 3
s_cbranch_scc1 L_ct3
''')
ct0(); a('s_branch L_ctj')
a.label('L_ct1'); ct1(); a('s_branch L_ctj')
a.label('L_ct2'); ct2(); a('s_branch L_ctj')
a.label('L_ct3'); ct3()
a.label('L_ctj')
a('s_waitcnt lgkmcnt(0)')
a(ap('Fc'))
vFR = [48, 49, 50, 51]
vDW1[:] = [56, 60]; vDW2[:] = [57, 58, 59]
FXP = int(opt('fxp', 5))
def f_rows(n=None):
    if xl[0] >= 17: return
    if xl[0] == NX0:
        a(f'''
        s_add_u32 m0, s{sXM}, {XB + (NX0-1)*XROW}
        s_movk_i32 s97, {XROW}
        v_add_u32 v{vXO}, {(NX0-1)*43008}, v{vXO}
        s_mov_b64 s[{sX}:{sX+1}], s[4:5]
        ''')
    a('s_mov_b32 exec_hi, 0x0fffffff')
    xrows(min(17 - xl[0], n or 99))
    a('s_mov_b32 exec_hi, -1')
FB = [int(x) for x in opt('fb', '4,0').split(',')]
if FB[0]: f_rows(FB[0])
pre_common()
if FB[1]: f_rows(FB[1])
a(ap('Fs'))
stamp(1)
a('s_waitcnt lgkmcnt(0)')
pstamp(9)
bar()
a(ap('Bt'))
ctr(1, vTF0); ctr(0, vAF); ctr(2, vSR[0]); ctr(3, vAW1[0]); ctr(4, 52); ctr(5, vID); ctr(6, vID + 4); ctr(7, 56)
a('s_waitcnt lgkmcnt(6)')
fix_conv()
cv = Conv(0); cv.eb = [204, 216, 64]
for gi in range(3): tab_reads(gi, cv.ds)
f_rows()
a('s_waitcnt lgkmcnt(0)')
for gi in range(3): tab_expand(gi)
def f_fix():
    fix_common()
    a(f'''
    s_add_u32 s{sO1}, s{sO0}, {4*43008}
    v_add_u32 v{vAW2}, 12288, v52
    s_add_u32 s{sT2}, s{sWBm}, {OUTF}
    v_add_u32 v{vFR[0]}, s{sT2}, v53
    v_xor_b32 v{vFR[1]}, 8, v{vFR[0]}
    v_xor_b32 v{vFR[2]}, 16, v{vFR[0]}
    v_xor_b32 v{vFR[3]}, 24, v{vFR[0]}
    s_mul_i32 s{sT1}, s{sWI}, {XROW}
    s_add_u32 s{sT1}, s{sT1}, {XB + 2*XROW + 384}
    v_add_u32 v{vAR[0]}, s{sT1}, v54
    v_xor_b32 v{vAR[1]}, 16, v{vAR[0]}
    v_add_u32 v{vSW[0]}, s{sIMG}, v55
    v_xor_b32 v{vSW[1]}, 16, v{vSW[0]}
    ''')
FFX = opt('ffx', '1')
if FFX == '0': f_fix()
bar(2)
S0 = stage([('F',0,[0]), ('F',1,[0,1]), ('H',0,[],0,[(0,0)])])
cv.run(S0, 0)
def res_half(s):
    m = 0xffff0000 if s else 0xffff
    setexec(m, m)
    for ks in range(6):
        cv.ds(f'ds_read_b128 {vr(vRES+4*ks,4)}, v{vAR[ks&1]} offset:{64*(ks>>1)}')
    a('s_mov_b64 exec, -1')
def run_stage(left, frags, pairs, keep=0, mid=None):
    its = left + stage(frags)
    if pairs: add_pub(its, len(left), len(frags), pairs)
    if mid: its[mid[0]]['post'] = mid[1]
    return cv.run(its, len(its) - keep)
left = cv.run(S0, len(S0) - int(opt('keep0', 0)))
if FFX == '1': f_fix()
pstamp(10)
bar(3)
left = run_stage(left, [('F',2,[0,1,2]), ('F',3,[1,2,3]), ('H',0,[0,1],0,[(1,4)])], [0, 1])
SPLIT = opt('split', '0') == '1'
a(f's_waitcnt vmcnt({5 if SPLIT else 0})')
pstamp(11)
bar(4)
a(f's_setprio {opt("fprio2", 3)}')
left = run_stage(left, [('F',4,[2,3]), ('F',5,[3]), ('H',2,[2,3],1,[(2,8)])], [2, 3])
a(ap('Fa'))
a('s_waitcnt vmcnt(0)')
signal(1)
a(ap('F1'))
WL = opt('wl', '1') == '1'
if not WL: wdma(0, [0, 1, 2])
stamp(5)
poll(GF, 1)
RA = 168
for ks in range(6):
    a(f'ds_read_b64 {vr(RA+4*ks,2)}, v{vFR[2*(ks&1)]} offset:{64*(ks>>1)}')
    a(f'ds_read_b64 {vr(RA+4*ks+2,2)}, v{vFR[2*(ks&1)+1]} offset:{64*(ks>>1)}')
a(f's_setprio {opt("fprio3", 1)}')
if not WL: wdma(1, [0, 1, 2])
a('s_waitcnt lgkmcnt(0)')
stamp(6)
def f_mid():
    for ks in range(6):
        a(f'ds_read_b128 {vr(vRES+4*ks,4)}, v{vAR[ks&1]} offset:{64*(ks>>1)}')
    landed(0, 2)
    wdma(0, [3, 4, 5]); wdma(1, [3, 4, 5])
    peek(GF)
def f_mid2():
    a('s_waitcnt lgkmcnt(0)')
    check(GF, 2)
    f_w1reads0()
ln(RA, 72, [vL + i for i in range(24)], False, f_mid, f_mid2, (lambda: (wdma(0, [0, 1, 2]), wdma(1, [0, 1, 2]))) if WL else None)
a(ap('Fm'))
stamp(8)
XH = {
  'start3': [lambda: landed(0, 3)],
  ('T1', 0): [lambda: peek(GF)],
  ('preT2', 0): [lambda: check(GF, 3)],
  ('T1', 1): [lambda: stamp(9)],
  ('T2', 1): [lambda: peek(GL)],
  ('preT1', 2): [lambda: check(GL, 6)],
  ('preT1', 4): [lambda: signal(4)],
  ('T1', 4): [lambda: peek(GL)],
  ('preT2', 4): [lambda: check(GL, 7)],
  ('T2', 5): [lambda: peek(GL)],
  ('preT1', 6): [lambda: check(GL, 8), lambda: stamp(10)],
  ('preT1', 8): [lambda: stamp(11)],
  ('T2', 8): [lambda: peek(GF)],
  ('preT1', 9): [lambda: check(GF, 4)],
  ('preT1', 10): [lambda: stamp(12)],
}
FP = opt('fp', 'n')
def fprio(c):
    if FP == 'n': return (0, 0) if c == 0 else None
    if FP == 's': return (1, 1) if c == 0 else None
    return (0, int(FP))
mlp32(XH, fprio)
stamp(13)
P = vY[0]; Q = vK[0]
for mt in range(3):
    for i in range(8):
        a(f'v_cvt_pk_bf16_f32 v{P+8*mt+i}, v{vO+16*mt+2*i}, v{vO+16*mt+2*i+1}')
    a(f'ds_write_b128 v{vSW[0]}, {vr(P+8*mt,4)} offset:{64*mt}')
    a(f'ds_write_b128 v{vSW[1]}, {vr(P+8*mt+4,4)} offset:{64*mt}')
for s in range(2):
    for j in range(3):
        a(f'ds_read_b128 {vr(Q+4*(3*s+j),4)}, v{vSR[j]} offset:{3072*s}')
for s in range(2):
    for j in range(3):
        a(f's_waitcnt lgkmcnt({5-(3*s+j)})')
        a(f'buffer_store_dwordx4 {vr(Q+4*(3*s+j),4)}, v{vL16}, {srd(sOUT)}, s{sO1 if s else sO0} offen offset:{1024*j}{STPOL}')
finish()
emit_slow()

a.label('L_L')
cv = Conv(4); cv.eb = [60, 72, 228]
vDW1[:] = [220, 224]; vDW2[:] = [221, 222, 223]
vA0, vA2 = 48, 50
RR = 60
a(f'''
s_mov_b32 exec_hi, -1
v_lshlrev_b32 v{vL16}, 4, v{vLN}
s_mul_i32 s{sIMG}, s{sWI}, 3072
s_add_u32 s{sIMG}, s{sIMG}, {S_IL}
s_mov_b32 s{sOB}, {OUTL}
''')
h13fin()
LS = ''
pre_common()
a(ap('Ls'))
pstamp(14)
a(f's_waitcnt vmcnt({NX0 - TPOS})')
bar()
ctr(1, vTF0); ctr(0, vAF); ctr(2, vSR[0]); ctr(7, 220); ctr(8, 52); ctr(9, 56)
a('s_waitcnt lgkmcnt(4)')
fix_conv()
for gi in range(3): tab_reads(gi, cv.ds)
a(f's_waitcnt vmcnt({NX0 - 4})')
a(ap('Ll'))
pstamp(9)
bar(2)
a('s_waitcnt lgkmcnt(0)')
fix_common()
a(f'''
s_add_u32 s{sO0}, s{sO0}, {8*43008}
s_lshl_b32 s{sT0}, s{sT1}, 6
v_xor_b32 v52, s{sT0}, v52
s_lshr_b32 s{sT2}, s{sWI}, 1
s_mul_i32 s{sT2}, s{sT2}, {PS}
s_sub_u32 s{sT3}, {PS}, s{sT2}
v_add_u32 v{vLW1}, s{sT2}, v52
v_add_u32 v{vLW1+4}, s{sT3}, v52
v_xor_b32 v{vLW1+1}, 32, v{vLW1}
v_xor_b32 v{vLW1+2}, 64, v{vLW1}
v_xor_b32 v{vLW1+3}, 0x60, v{vLW1}
v_xor_b32 v{vLW1+5}, 32, v{vLW1+4}
v_xor_b32 v{vLW1+6}, 64, v{vLW1+4}
v_xor_b32 v{vLW1+7}, 0x60, v{vLW1+4}
s_mul_i32 s{sT1}, s{sT1}, 6144
s_add_u32 s{sT2}, s{sT2}, 12288
s_add_u32 s{sT3}, s{sT3}, 12288
s_add_u32 s{sT0}, s{sT2}, s{sT1}
v_add_u32 v{vLW2}, s{sT0}, v53
s_add_u32 s{sT0}, s{sT3}, s{sT1}
v_add_u32 v{vLW2+4}, s{sT0}, v53
s_sub_u32 s{sT1}, 6144, s{sT1}
s_add_u32 s{sT0}, s{sT2}, s{sT1}
v_add_u32 v{vLW2+2}, s{sT0}, v53
s_add_u32 s{sT0}, s{sT3}, s{sT1}
v_add_u32 v{vLW2+6}, s{sT0}, v53
v_xor_b32 v{vLW2+1}, 32, v{vLW2}
v_xor_b32 v{vLW2+3}, 32, v{vLW2+2}
v_xor_b32 v{vLW2+5}, 32, v{vLW2+4}
v_xor_b32 v{vLW2+7}, 32, v{vLW2+6}
v_add_u32 v{vARL}, {L12}, v54
v_add_u32 v{vA2}, {L12}, v55
v_xor_b32 v{vA2+1}, 8, v{vA2}
v_add_u32 v{vA0}, s{sIMG}, v55
v_xor_b32 v{vA0+1}, 8, v{vA0}
v_add_u32 v{vSW[0]}, s{sIMG}, v56
v_xor_b32 v{vSW[1]}, 32, v{vSW[0]}
s_mul_i32 s{sT0}, s{sWI}, {XROW}
s_add_u32 s{sT0}, s{sT0}, {XB + 384}
v_add_u32 v{vAR[0]}, s{sT0}, v57
v_xor_b32 v{vAR[1]}, 32, v{vAR[0]}
''')
pstamp(10)
a(f's_waitcnt vmcnt({NX0 - 8})')
pstamp(11)
bar(3)
WP2 = opt('wp2', '2')
def wpf():
    a(f'''
    s_and_b32 s{sT0}, s{sWI}, 1
    s_cselect_b64 s[{sT1}:{sT2}], s[12:13], s[10:11]
    s_lshr_b32 s{sT0}, s2, 3
    s_lshl_b32 s{sT0}, s{sT0}, 1
    s_lshr_b32 s{sT3}, s{sWI}, 1
    s_add_u32 s{sT0}, s{sT0}, s{sT3}
    s_mul_i32 s{sT0}, s{sT0}, {10*128}
    v_lshl_add_u32 v{T[0]}, v{vLN}, 7, s{sT0}
    v_min_u32 v{T[0]}, {73728-128}, v{T[0]}
    s_mov_b64 exec, 0x3ff
    global_load_dword v226, v{T[0]}, s[{sT1}:{sT2}]
    s_mov_b64 exec, -1
    ''')
if WP2 != '0': wpf()
for gi in range(3): tab_expand(gi)
a(f'v_mov_b64 {vr(vB+8*4+4,2)}, 0\nv_mov_b64 {vr(vB+8*4+6,2)}, 0')
pstamp(12)
assert NX0 == 8
a('s_waitcnt lgkmcnt(0)')
pstamp(13)
bar(4)
a(f's_setprio {opt("lprio", 2)}')
RED, LNW = 1, 3
def raw_reads(R, ad, off=0):
    for ks in range(3):
        a(f'ds_read_b64 {vr(R+4*ks,2)}, v{ad} offset:{off+64*ks}')
        a(f'ds_read_b64 {vr(R+4*ks+2,2)}, v{ad+1} offset:{off+64*ks}')
def row_store(O, soff, P=vY[0], Q=vK[0]):
    for i in range(12):
        a(f'v_cvt_pk_bf16_f32 v{P+i}, v{O+2*i}, v{O+2*i+1}')
    for i in range(6):
        a(f'ds_write_b64 v{vSW[i&1]}, {vr(P+2*i,2)} offset:{64*(i>>1)}')
    for j in range(3):
        a(f'ds_read_b128 {vr(Q+4*j,4)}, v{vSR[j]}')
    for j in range(3):
        a(f's_waitcnt lgkmcnt({2-j})')
        a(f'buffer_store_dwordx4 {vr(Q+4*j,4)}, v{vL16}, {srd(sOUT)}, s{soff} offen offset:{1024*j}{STPOL}')
LP = opt('lp', 'k')
CUR13 = [True]
def lprio(c):
    if LP == 'n': return (0, 0) if c == 0 else None
    if LP == 's': return (1, 1) if c == 0 else None
    if LP == 'k':
        lo, hi = [int(x) for x in (opt('lk', '0,8') if CUR13[0] else opt('lk12', '0,3')).split(',')]
        if lo <= c < hi: return (0, 1)
        return (0, 0) if c in (0, hi) else None
    return (0, int(LP))
def l_body(h13):
    global cv
    keep = cv
    cv = copy.copy(keep)
    sfx = 'a' if h13 else 'b'
    CUR13[0] = h13
    if h13:
        frags = [('F',4,[4]), ('F',5,[4,5]), ('F',6,[4,5,6]), ('F',7,[5,6]), ('H',4,[4,5],0,[(0,8),(1,12)]), ('F',8,[6]), ('H',6,[6],1,[(2,16)])]; pairs = [4, 5, 6]
    else:
        frags = [('F',4,[4]), ('F',5,[4,5]), ('F',6,[4,5]), ('F',7,[5]), ('H',4,[4,5],0,[(0,8),(1,12)])]; pairs = [4, 5]
    if SPLIT:
        pre = stage(frags[:2])
        pre = cv.run(pre, len(pre) - int(opt('keepl', 2)))
        poll(GF, 1)
        frags = frags[2:]
    else:
        pre = []
    its = pre + stage(frags)
    add_pub(its, len(pre), len(frags), pairs)
    def resr():
        for i in range(6):
            cv.ds(f'ds_read_b64 {vr(RR+2*i,2)}, v{vAR[i&1]} offset:{10*XROW+64*(i>>1)}')
        if h13:
            for i in range(6):
                cv.ds(f'ds_read_b64 {vr(RR+12+2*i,2)}, v{vAR[i&1]} offset:{(14-RED)*XROW+64*(i>>1)}')
    if opt('lc'):
        nf = len(frags)
        for j, idx in ((9, 0), (10, nf - 1), (11, nf), (12, 2 * nf - 1), (13, 2 * nf)):
            its[idx]['post'] = lambda j=j: _st(j)
    if '3' in LS:
        cv.run(its, 0)
        lsetup(3)
    cv.run(its)
    stamp(6)
    signal(2)
    resr()
    stamp(5)
    poll(GL, 2)
    stamp(7)
    RAW = 168
    raw_reads(RAW, vA0)
    for i in range(12):
        a(f'v_lshlrev_b32 v{vO+2*i}, 16, v{RR+i}\nv_and_b32 v{vO+2*i+1}, 0xffff0000, v{RR+i}')
    if h13:
        a(f's_cmp_eq_u32 s{sWI}, {RED}\ns_cbranch_scc1 L_ri{sfx}')
        for i in range(12): a(f'v_mov_b64 {vr(vO+24+2*i,2)}, 0')
        a(f's_branch L_rj{sfx}')
        a.label(f'L_ri{sfx}')
        for i in range(12):
            a(f'v_lshlrev_b32 v{vO+24+2*i}, 16, v{RR+12+i}\nv_and_b32 v{vO+24+2*i+1}, 0xffff0000, v{RR+12+i}')
        a.label(f'L_rj{sfx}')
    signal(3)
    if h13: raw_reads(RAW + 12, vA2)
    a(f's_waitcnt lgkmcnt({7 if h13 else 1})')
    def l_mid2():
        a('s_waitcnt lgkmcnt(0)')
        check(GF, 2)
        l_w1reads(0)
    ln(RAW, 72, [vL + i for i in range(12)], True, lambda: peek(GF), l_mid2)
    if h13:
        a(f's_cmp_lg_u32 s{sWI}, {LNW}\ns_cbranch_scc1 L_nl12')
        ln(RAW + 12, 72, [RAW + 12 + i for i in range(12)], True)
        for ks in range(3):
            a(f'ds_write_b128 v{vARL}, {vr(RAW+12+4*ks,4)} offset:{64*ks}')
        a.label('L_nl12')
        signal(5)
    stamp(8)
    def l12r():
        for ks in range(3):
            a(f'ds_read_b128 {vr(vL+12+4*ks,4)}, v{vARL} offset:{64*ks}')
    def pub_rem():
        a(f's_cmp_eq_u32 s{sWI}, {RED}\ns_cbranch_scc1 L_np\ns_mul_i32 s{sT0}, s{sWI}, 6144\nv_add_u32 v{T[0]}, s{sT0}, v{vL16}')
        for i in range(6):
            a(f'ds_write_b128 v{T[0]}, {vr(vO+24+4*i,4)} offset:{S_R + 1024*i}')
        a.label('L_np')
        signal(9)
    H = {
      'start3': [lambda: peek(GL)],
      ('preT1', 0): [lambda: check(GL, 3)],
      ('T1', 0): [lambda: wdma(2, [0, 1, 2]), lambda: wdma(3, [0, 1, 2]), lambda: peek(GF)],
      ('preT2', 0): [lambda: check(GF, 3)],
      ('T2', 0): [lambda: wdma(2, [3, 4, 5])] + ([lambda: peek(GL)] if h13 else []),
      ('preT1', 1): [lambda: check(GL, 5)] if h13 else [],
      ('T1', 1): [lambda: wdma(3, [3, 4, 5]), lambda: stamp(9)] + ([l12r] if h13 else []),
      ('preT2', 1): [lambda: landed(6, 6)],
      ('T2', 1): [lambda: wdma(4, [0, 1, 2]), lambda: peek(GL)],
      ('preT1', 2): [lambda: check(GL, 6)],
      ('T1', 2): [lambda: wdma(4, [3, 4, 5])],
      ('T2', 2): [lambda: wdma(5, [0, 1, 2])],
      ('preT1', 3): [lambda: landed(9, 7)],
      ('T1', 3): [lambda: wdma(5, [3, 4, 5])],
      ('T1', 4): [lambda: peek(GL)],
      ('preT2', 4): [lambda: check(GL, 7), lambda: landed(0, 8)],
      ('T2', 5): [lambda: peek(GL)],
      ('preT1', 6): [lambda: check(GL, 8), lambda: stamp(10)],
      ('preT1', 8): [lambda: stamp(11)],
      ('preT1', 10): [lambda: stamp(12)],
    }
    if opt('otouch', '0') == '1':
        H[('T1', 6)] = [lambda: a(f's_mov_b64 exec, 1\nbuffer_load_dword v226, v{vL16}, {srd(sOUT)}, s{sO0} offen\ns_mov_b64 exec, -1')]
    if h13:
        H[('T2', 9)] = [lambda: peek(GF)]
        H[('preT1', 10)] = H[('preT1', 10)] + [lambda: check(GF, 4), pub_rem]
        def reduce12():
            a(f's_cmp_lg_u32 s{sWI}, {RED}\ns_cbranch_scc1 L_nored')
            poll(GL, 9)
            others = [w for w in range(4) if w != RED]
            R = [144, 48, 144]
            def rd(n):
                for i in range(6):
                    a(f'ds_read_b128 {vr(R[n]+4*i,4)}, v{vL16} offset:{S_R + 6144*others[n] + 1024*i}')
            def ad(n):
                if opt('redpk'):
                    for i in range(12):
                        a(f'v_pk_add_f32 {vr(vO+24+2*i,2)}, {vr(vO+24+2*i,2)}, {vr(R[n]+2*i,2)}')
                    return
                for i in range(24):
                    a(f'v_add_f32 v{vO+24+i}, v{vO+24+i}, v{R[n]+i}')
            rd(0); rd(1)
            a('s_waitcnt lgkmcnt(6)'); ad(0); rd(2)
            a('s_waitcnt lgkmcnt(6)'); ad(1)
            a('s_waitcnt lgkmcnt(0)'); ad(2)
            a(f's_add_u32 s{sO1}, s{sO0}, {(4-RED)*43008}')
            row_store(vO + 24, sO1, 48, 144)
            a.label('L_nored')
        H[('T1', 11)] = [reduce12]
        OB = opt('oddb', '8,12')
        if OB != 'n':
            o0, o1 = [int(x) for x in OB.split(',')]
            def boost():
                a(f's_cmp_lg_u32 s{sWI}, {RED}\ns_cbranch_scc1 L_nb\ns_setprio 1')
                a.label('L_nb')
            H.setdefault(('T2', o0), []).append(boost)
            if o1 < 12: H.setdefault(('T2', o1), []).append(lambda: a('s_setprio 0'))
    mlp16([3, 5, 8] if h13 else [], H, lprio)
    stamp(13)
    row_store(vO, sO0)
    finish()
    emit_slow()
    cv = keep
a(f's_cmp_lg_u32 s{sH13}, 13\ns_cbranch_scc1 L_L12')
l_body(True)
a.label('L_L12')
l_body(False)
a.label('L_end')
a('s_endpgm')

body = a.finalize()
hdr = open('cdna_kernels/' + NAME + '.s.ref').read().split('\n')
out = []
for l in hdr:
    if l.startswith('; @launch'):
        out.append('; @launch grid=(256,1,1) block=(512,1,1) lds=163840')
    elif l.startswith(';'):
        out.append(l)
    else:
        break
out.append('.amdgcn_target "amdgcn-amd-amdhsa--gfx950"')
out.append('.text')
out.append(f'.globl {NAME}_kernel')
out.append('.p2align 8')
out.append(f'.type {NAME}_kernel,@function')
out.append(f'{NAME}_kernel:')
for l in body:
    out.append(l if l.endswith(':') else '    ' + l)
out.append(f'''.section .rodata,"a"
.p2align 6
.amdhsa_kernel {NAME}_kernel
  .amdhsa_next_free_vgpr 256
  .amdhsa_next_free_sgpr 102
  .amdhsa_accum_offset 256
  .amdhsa_group_segment_fixed_size 0
  .amdhsa_kernarg_size 64
  .amdhsa_user_sgpr_count 2
  .amdhsa_user_sgpr_kernarg_segment_ptr 1
  .amdhsa_system_sgpr_workgroup_id_x 1
.end_amdhsa_kernel''')
print('\n'.join(out))
```

```python
import sys, struct, math, copy
from asmlib import Asm

NAME = "standalone__modern_conv_block_replknet__vision"
def fbits(x): return struct.unpack('<I', struct.pack('<f', x))[0]
def opt(name, default=None):
    for x in sys.argv:
        if x == '--' + name: return True
        if x.startswith('--' + name + '='): return x.split('=', 1)[1]
    return default
STAMP = opt('stamp'); CYC = opt('cyc'); PRO = opt('pro')
STPOL = ' ' + opt('stpol', 'sc1').replace('_', ' ') if opt('stpol', 'sc1') != 'none' else ''
FOLD = opt('fold', '1') == '1'
GL, GF = (1, 0) if FOLD else (0, 1)

XPOL = ' ' + opt('xpol').replace('_', ' ') if opt('xpol') else ''
XROW = 3840
XB = 73728
PS = 24576
TB, TP = 139264, 976
OUTF, OUTL = 49152, 147456
L12 = OUTL + 4*3072
FL = 163584
S_IF, S_R, S_IL = 0, 24576, OUTL
MARK = 0x40000000
XBYTES = 224 * 224 * 192

k0 = math.sqrt(2.0 / math.pi); k1 = 0.044715
c0 = 2 * k0 / math.log(2.0); c1 = c0 * k1
ga = c1 ** (1.0 / 3.0)
gc = -c0 / ga

sX, sDL, sDS, sW1, sW2, sOUT = 16, 20, 24, 28, 32, 36
sWV, sY0, sX0, sT0, sT1, sT2, sT3 = 40, 41, 42, 43, 44, 45, 46
sH13, sWI = 47, 3
sCA, sCC = 48, 50
sWS = 52
sXM, sIMG, sOB = 56, 57, 62
sWA, sWBm = 58, 59
sO0, sO1 = 60, 61
sST = 64
NST = 16
def srd(b): return f's[{b}:{b+3}]'
vO, vL, vY, vK, vG, vF1, vF2 = 0, 48, [72, 88], [104, 120], 136, 144, 168
vRES, vID = 204, 228
vAW1 = [236, 237, 238, 239]; vAW2 = 245
vLW1 = 204; vLW2 = 212
vDW1 = [220, 221]; vDW2 = [222, 223, 224]
vARL = 225
vSW = [246, 247]; vSR = [240, 241, 242]
vL16 = 244
vFA, vFW, vFP = 243, 248, 249
T = [250, 251, 252, 253, 254]
vLN = 255
vXO = 203; vPF = 202
vAF, vAE, vAE16, vAO, vTF0, vTE, vM0, vIDX, vAR = 192, 193, 194, 195, 196, 197, 198, 199, [200, 201]
CT = 0
vACC, vAFR, vB = 0, 84, 144
def vr(b, n): return f'v[{b}:{b+n-1}]'

a = Asm()
def _st(i): a(f'{"s_memtime" if CYC else "s_memrealtime"} s[{sST+2*i}:{sST+2*i+1}]')
def pstamp(i):
    if STAMP and PRO and not opt('lc'): _st(i)
def ap(n):
    return 's_memrealtime s[88:89]' if opt('amp') == n else ''
def stamp(i):
    a(ap(str(i)))
    if i in (8, 13): hold(i)
    if STAMP and not (PRO and 9 <= i <= 14): _st(i)
def mksrd(b, lo, n):
    a(f's_mov_b64 s[{b}:{b+1}], s[{lo}:{lo+1}]\ns_mov_b32 s{b+2}, {n}\ns_mov_b32 s{b+3}, 0x00020000')
def hold(tag):
    h = opt('hold')
    if h and h.split(':')[0] == str(tag):
        n = nlab[0]; nlab[0] += 1
        a(f's_waitcnt lgkmcnt(0)\ns_add_u32 s92, s94, {h.split(":")[1]}')
        a.label(f'L_hold{n}')
        a(f's_memrealtime s[90:91]\ns_waitcnt lgkmcnt(0)\ns_sub_u32 s93, s92, s90\ns_cmp_gt_i32 s93, 0\ns_cbranch_scc1 L_hold{n}')
def bar(i=None):
    jitter()
    a('s_barrier')
    jitter()
    hold(i)
    if i is not None: stamp(i)
def setexec(lo, hi):
    a(f's_mov_b32 exec_lo, {lo:#x}\ns_mov_b32 exec_hi, {hi:#x}')

nlab = [0]; slow = []
def guard():
    if opt('safe'): a('s_sub_u32 s98, s98, 1\ns_cbranch_scc1 L_end')
def jitter():
    if opt('jitter'):
        n = nlab[0]; nlab[0] += 1
        a(f's_mul_i32 s86, s86, 1103515245\ns_add_u32 s86, s86, 12345\ns_lshr_b32 s87, s86, {opt("jitter")}')
        a.label(f'L_jit{n}')
        a(f's_sleep 2\ns_sub_u32 s87, s87, 1\ns_cbranch_scc0 L_jit{n}')
def signal(v, emit=None):
    jitter()
    a(f'v_mov_b32 v{T[4]}, {v}')
    (emit or a)(f'ds_write_b32 v{vFW}, v{T[4]}')
def poll(grp, v):
    lab = f'L_poll{nlab[0]}'; nlab[0] += 1
    a.label(lab)
    guard()
    a(f'ds_read_b32 v{vFP}, v{vFA} offset:{16*grp}\ns_waitcnt lgkmcnt(0)\nv_cmp_gt_u32 vcc, {v}, v{vFP}\ns_cbranch_vccnz {lab}')
def peek(grp): a(f'ds_read_b32 v{vFP}, v{vFA} offset:{16*grp}')
def check(grp, v):
    jitter()
    n = nlab[0]; nlab[0] += 1
    a(f'v_cmp_gt_u32 vcc, {v}, v{vFP}\ns_cbranch_vccnz L_slow{n}')
    a.label(f'L_back{n}')
    slow.append((n, grp, v))
def emit_slow():
    for n, grp, v in slow:
        a.label(f'L_slow{n}')
        guard()
        a(f'ds_read_b32 v{vFP}, v{vFA} offset:{16*grp}\ns_waitcnt lgkmcnt(0)\nv_cmp_gt_u32 vcc, {v}, v{vFP}\ns_cbranch_vccnz L_slow{n}\ns_branch L_back{n}')
    slow.clear()
def landed(n, v):
    a(f's_waitcnt vmcnt({n})'); signal(v)

def wdma(p, parts=range(6)):
    jitter()
    for i in parts:
        if i < 3:
            a(f'''
            s_add_u32 m0, s{sWBm}, {PS*p + 1024*i}
            s_add_u32 s{sT0}, s{sWA}, {6144*i + 128*p}
            buffer_load_dwordx4 v{vDW1[i & 1]}, {srd(sW1)}, s{sT0} offen lds
            ''')
        else:
            if i == 3 or i - 1 not in parts:
                a(f's_add_u32 m0, s{sWBm}, {PS*p + 12288}\ns_add_u32 s{sT0}, s{sWBm}, {12288*p}')
            a(f'buffer_load_dwordx4 v{vDW2[i-3]}, {srd(sW2)}, s{sT0} offen offset:{1024*(i-3)} lds')

def ln(raw, U, dst, rows16, mid=None, mid2=None, mid0=None):
    n = len(dst)
    S, Q, ONE = T[1], T[3], T[4]
    sc, bi = T[0], T[2]
    a(f'v_mov_b32 v{ONE}, 0x3f803f80')
    un = []
    for i in range(n):
        un.append(f'v_lshlrev_b32 v{U+2*i}, 16, v{raw+i}')
        un.append(f'v_and_b32 v{U+2*i+1}, 0xffff0000, v{raw+i}')
    while len(un) > 8: a(un.pop(0))
    if mid0: mid0()
    for i in range(n):
        a(f'v_dot2_f32_bf16 v{S}, v{raw+i}, v{ONE}, {"0" if i == 0 else f"v{S}"}')
        a(f'v_dot2_f32_bf16 v{Q}, v{raw+i}, v{raw+i}, {"0" if i == 0 else f"v{Q}"}')
    def fill(k):
        for _ in range(k):
            if un: a(un.pop(0))
    fill(3)
    a(f'v_permlane32_swap_b32 v{S}, v{Q}')
    a(f'v_add_f32 v{S}, v{S}, v{Q}')
    if rows16:
        a(f'v_mov_b32 v{Q}, v{S}')
        fill(2)
        a(f'v_permlane16_swap_b32 v{S}, v{Q}')
        a(f'v_add_f32 v{S}, v{S}, v{Q}')
    a(f'v_mul_f32 v{S}, {fbits(1.0/96):#x}, v{S}')
    a(f'v_mov_b32 v{Q}, v{S}')
    fill(2)
    a(f'v_permlane32_swap_b32 v{S}, v{Q}')
    a(f'''
    v_fma_f32 v{Q}, -v{S}, v{S}, v{Q}
    v_max_f32 v{Q}, 0, v{Q}
    v_add_f32 v{Q}, {fbits(1e-5):#x}, v{Q}
    v_rsq_f32 v{Q}, v{Q}
    ''')
    fill(1)
    a(f'v_mul_f32 v{sc}, {fbits(ga):#x}, v{Q}')
    a(f'v_mul_f32 v{bi}, -v{S}, v{sc}')
    fill(1000)
    if mid: mid()
    for i in range(n):
        if opt('lnplain'):
            a(f'v_fma_f32 v{U+2*i}, v{U+2*i}, v{sc}, v{bi}\nv_fma_f32 v{U+2*i+1}, v{U+2*i+1}, v{sc}, v{bi}')
        else:
            a(f'v_pk_fma_f32 {vr(U+2*i,2)}, {vr(U+2*i,2)}, {vr(sc,2)}, {vr(bi,2)} op_sel_hi:[1,0,0]')
    if mid2: mid2()
    for i in range(n):
        a(f'v_cvt_pk_bf16_f32 v{dst[i]}, v{U+2*i}, v{U+2*i+1}')

def pk_t(Y, K, n):
    return [f'v_pk_fma_f32 {vr(K+2*i,2)}, {vr(Y+2*i,2)}, {vr(Y+2*i,2)}, s[{sCC}:{sCC+1}] neg_lo:[1,0,0] neg_hi:[1,0,0]' for i in range(n//2)] + pk_m(Y, K, n)
def pk_m(Y, K, n): return [f'v_pk_mul_f32 {vr(K+2*i,2)}, {vr(Y+2*i,2)}, {vr(K+2*i,2)}' for i in range(n//2)]
def pk_d(K, n): return [f'v_pk_fma_f32 {vr(K+2*i,2)}, {vr(K+2*i,2)}, s[{sCA}:{sCA+1}], s[{sCA}:{sCA+1}]' for i in range(n//2)]
def emit(l):
    for t in l: a(t)

def mlp32(hooks, prio):
    N = 12
    moved = {'w1': False, 'w2': False}
    def move(kind, c):
        if c >= 6 and not moved[kind]:
            for r in (vAW1 if kind == 'w1' else [vAW2]): a(f'v_add_u32 v{r}, {3*PS}, v{r}')
            moved[kind] = True
    def w1reads(c):
        for ks in range(6):
            off = ((c >> 1) % 3) * PS + (ks >> 1) * 4096 + (ks & 1) * 1024
            r = vAW1[(c & 1) + 2 * (ks & 1)]
            a(f'ds_read_b64_tr_b16 {vr(vF1+4*ks,2)}, v{r} offset:{off}')
            a(f'ds_read_b64_tr_b16 {vr(vF1+4*ks+2,2)}, v{r} offset:{off+512}')
    def w2reads(c):
        for i in range(6):
            ks2, mt = i // 3, i % 3
            off = ((c >> 1) % 3) * PS + (c & 1) * 6144 + ks2 * 3072 + mt * 64
            a(f'ds_read_b64_tr_b16 {vr(vF2+4*i,2)}, v{vAW2} offset:{off}')
            a(f'ds_read_b64_tr_b16 {vr(vF2+4*i+2,2)}, v{vAW2} offset:{off+1536}')
    def g1(c, ks):
        Y = vY[c & 1]
        a(f'v_mfma_f32_32x32x16_bf16 {vr(Y,16)}, {vr(vF1+4*ks,4)}, {vr(vL+4*ks,4)}, {"0" if ks == 0 else vr(Y,16)}')
    def g2(i):
        ks2, mt = i // 3, i % 3
        a(f'v_mfma_f32_32x32x16_bf16 {vr(vO+16*mt,16)}, {vr(vF2+4*i,4)}, {vr(vG+4*ks2,4)}, {vr(vO+16*mt,16)}')
    def resm(ks):
        j, mt = ks // 3, ks % 3
        a(f'v_mfma_f32_32x32x16_bf16 {vr(vO+16*mt,16)}, {vr(vID+4*j,4)}, {vr(vRES+4*(2*mt+j),4)}, {"0" if j == 0 else vr(vO+16*mt,16)}')
    def hook(k):
        for f in hooks.get(k, []): f()
    def pr(c, v):
        if prio(c) is not None: a(f's_setprio {prio(c)[v]}')
    hook('pre')
    a('s_waitcnt lgkmcnt(0)')
    for ks in range(6): g1(0, ks)
    w1reads(1)
    hook('start3')
    for c in range(N + 1):
        Y, K = vY[c & 1], vK[c & 1]
        Yp, Kp = vY[(c - 1) & 1], vK[(c - 1) & 1]
        pr(c, 1)
        if c >= 1: emit(pk_m(Yp, Kp, 16))
        if c < N: emit(pk_t(Y, K, 16))
        cv = [f'v_cvt_pk_bf16_f32 v{vG+i}, v{Kp+2*i}, v{Kp+2*i+1}' for i in range(8)] if c >= 1 else []
        if c == N:
            emit(cv)
            a('s_waitcnt lgkmcnt(0)')
            for i in (0, 3, 1, 4, 2, 5): g2(i)
            break
        ex = [f'v_exp_f32 v{K+i}, v{K+i}' for i in range(16)]
        rc = [f'v_rcp_f32 v{K+i}, v{K+i}' for i in range(16)]
        last = c + 1 >= N
        if c + 2 < N: move('w1', c + 2)
        move('w2', c)
        if c == 0:
            gaps = [ex[0:3], ex[3:6], ex[6:9], ex[9:12], ex[12:15], ex[15:16]]
            a('s_waitcnt lgkmcnt(0)')
            for j in range(6):
                g1(1, j); emit(gaps[j])
        elif not last:
            gaps = [cv[0:4] + ex[0:1], cv[4:8] + ex[1:2], ex[2:5], ex[5:8], ex[8:11], ex[11:14], ex[14:16]]
            for j in range(7):
                if j < 6: g1(c + 1, j)
                else: g2(0)
                if j == 5: a('s_waitcnt lgkmcnt(0)')
                emit(gaps[j])
        else:
            emit(cv); emit(ex[0:4])
            a('s_waitcnt lgkmcnt(0)')
            gaps = [ex[4:8], ex[8:12], ex[12:16]]
            for j in range(3):
                g2(j); emit(gaps[j])
        hook(('preT1', c))
        pr(c, 0)
        if c + 2 < N: w1reads(c + 2)
        hook(('T1', c))
        pr(c, 1)
        emit(pk_d(K, 16))
        if c == 0:
            gp = [rc[0:3], rc[3:6], rc[6:9], rc[9:12], rc[12:14], rc[14:16]]
            for j in range(6):
                resm(j)
                if j == 5: a('s_waitcnt lgkmcnt(0)')
                emit(gp[j])
        elif not last:
            gp = [rc[0:3], rc[3:6], rc[6:9], rc[9:12], rc[12:16]]
            for j in range(5):
                g2(j + 1)
                if j == 4: a('s_waitcnt lgkmcnt(0)')
                emit(gp[j])
        else:
            gp = [rc[0:3], rc[3:6], rc[6:16]]
            for j in range(3):
                g2(j + 3)
                if j == 2: w2reads(c)
                emit(gp[j])
        hook(('preT2', c))
        pr(c, 0)
        if not last: w2reads(c)
        hook(('T2', c))
    return w1reads

def f_w1reads0():
    for ks in range(6):
        off = (ks >> 1) * 4096 + (ks & 1) * 1024
        r = vAW1[2 * (ks & 1)]
        a(f'ds_read_b64_tr_b16 {vr(vF1+4*ks,2)}, v{r} offset:{off}')
        a(f'ds_read_b64_tr_b16 {vr(vF1+4*ks+2,2)}, v{r} offset:{off+512}')

def l_w1reads(s):
    for i in range(6):
        mt2, ks3 = i // 3, i % 3
        off = ((s >> 2) & 1) * 2 * PS + ks3 * 4096
        r = vLW1 + mt2 + 2 * (s & 3)
        a(f'ds_read_b64_tr_b16 {vr(vF1+4*i,2)}, v{r} offset:{off}')
        a(f'ds_read_b64_tr_b16 {vr(vF1+4*i+2,2)}, v{r} offset:{off+512}')

def mlp16(doubles, hooks, prio):
    N = 12
    def wid(s): return 0 if (s < 0 or s >= N) else (2 if s in doubles else 1)
    def move(base):
        for r in range(8): a(f'v_add_u32 v{base+r}, {4*PS}, v{base+r}')
    def w2reads(s):
        for i in range(6):
            off = ((s >> 2) & 1) * 2 * PS + 64 * (i >> 1)
            r = vLW2 + (i & 1) + 2 * (s & 3)
            a(f'ds_read_b64_tr_b16 {vr(vF2+4*i,2)}, v{r} offset:{off}')
            a(f'ds_read_b64_tr_b16 {vr(vF2+4*i+2,2)}, v{r} offset:{off+3072}')
    def m1(s):
        l = []
        for t in range(wid(s)):
            for j in range(6):
                mt2, ks3 = j & 1, j >> 1
                D = vY[s & 1] + 8 * t + 4 * mt2
                l.append(f'v_mfma_f32_16x16x32_bf16 {vr(D,4)}, {vr(vF1+4*(mt2*3+ks3),4)}, {vr(vL+12*t+4*ks3,4)}, {"0" if ks3 == 0 else vr(D,4)}')
        return l
    def m2(s):
        return [f'v_mfma_f32_16x16x32_bf16 {vr(vO+24*t+4*i,4)}, {vr(vF2+4*i,4)}, {vr(vG+4*t,4)}, {vr(vO+24*t+4*i,4)}' for t in range(wid(s)) for i in range(6)]
    def weave(ms, fl):
        fl = list(fl)
        if not ms:
            emit(fl); a('s_waitcnt lgkmcnt(0)'); return
        for j, m in enumerate(ms):
            a(m)
            if j == len(ms) - 1: a('s_waitcnt lgkmcnt(0)')
            k = -(-len(fl) // (len(ms) - j))
            emit(fl[:k]); fl = fl[k:]
    def hook(k):
        for f in hooks.get(k, []): f()
    def pr(c, v):
        if prio(c) is not None: a(f's_setprio {prio(c)[v]}')
    hook('pre')
    a('s_waitcnt lgkmcnt(0)')
    emit(m1(0))
    l_w1reads(1)
    hook('start3')
    for s in range(N + 1):
        Y, K = vY[s & 1], vK[s & 1]
        Yp, Kp = vY[(s - 1) & 1], vK[(s - 1) & 1]
        n, np_ = 8 * wid(s), 8 * wid(s - 1)
        pr(s, 1)
        emit(pk_m(Yp, Kp, np_))
        emit(pk_t(Y, K, n))
        cv = [f'v_cvt_pk_bf16_f32 v{vG+i}, v{Kp+2*i}, v{Kp+2*i+1}' for i in range(np_ // 2)]
        if s == N:
            emit(cv)
            a('s_waitcnt lgkmcnt(0)')
            emit(m2(N - 1))
            break
        ex = [f'v_exp_f32 v{K+i}, v{K+i}' for i in range(n)]
        rc = [f'v_rcp_f32 v{K+i}, v{K+i}' for i in range(n)]
        if s + 2 == 8: move(vLW1)
        if s == 8: move(vLW2)
        if s == 0: a('s_waitcnt lgkmcnt(0)')
        weave(m1(s + 1), cv + ex)
        hook(('preT1', s))
        pr(s, 0)
        if s + 2 < N: l_w1reads(s + 2)
        hook(('T1', s))
        pr(s, 1)
        emit(pk_d(K, n))
        weave(m2(s - 1), rc)
        hook(('preT2', s))
        pr(s, 0)
        w2reads(s)
        hook(('T2', s))

def finish():
    if opt('amp'):
        n = nlab[0]; nlab[0] += 1
        if opt('amp') == 'end': a(f's_waitcnt vmcnt(0)\ns_memrealtime s[88:89]' + ('' if opt('amprows') else f'\ns_mov_b32 s{sH13}, 13'))
        if opt('amprole'): a(f's_waitcnt lgkmcnt(0)\ns_lshr_b32 s93, s{sWV}, 2\ns_cmp_eq_u32 s93, {opt("amprole")}\ns_cselect_b32 s88, s88, 0')
        a(f's_waitcnt vmcnt(0) lgkmcnt(0)\ns_sub_u32 s92, s88, s94\ns_lshl_b32 s92, s92, 2\ns_cmp_eq_u32 s88, 0\ns_cselect_b32 s92, 0, s92')
        a(f's_cmp_eq_u32 s{sH13}, {opt("amprows", 13)}\ns_cselect_b32 s92, s92, 0\ns_add_u32 s92, s92, 1400\ns_add_u32 s92, s92, s94')
        a.label(f'L_amp{n}')
        a(f's_memrealtime s[90:91]\ns_waitcnt lgkmcnt(0)\ns_sub_u32 s93, s92, s90\ns_cmp_gt_i32 s93, 0\ns_cbranch_scc1 L_amp{n}')
    if STAMP:
        stamp(14)
        a('s_waitcnt vmcnt(0)')
        stamp(15)
        a('s_waitcnt lgkmcnt(0)')
        if opt('dbg'):
            n = nlab[0]; nlab[0] += 1
            a(f's_cmp_lg_u32 s2, {opt("dbg")}\ns_cbranch_scc1 L_nd{n}\ns_cmp_lg_u32 s{sWI}, 0\ns_cbranch_scc1 L_nd{n}')
            a(f's_lshl_b32 s{sT0}, s{sWV}, 3\nv_mov_b32 v{T[1]}, s{sT0}\ns_mov_b64 exec, 1')
            for k, i in enumerate((1, 2, 3, 4, 8, 10, 13, 15)):
                a(f's_sub_u32 s{sT0}, s{sST+2*i}, s{sST}\nv_mov_b32 v{T[0]}, s{sT0}')
                a(f'buffer_store_dword v{T[0]}, v{T[1]}, {srd(sWS)}, 0 offen offset:{4*k}')
            a.label(f'L_nd{n}')
            a('s_endpgm')
            return
        a(f'''
        s_lshl_b32 s{sT0}, s2, 3
        s_add_u32 s{sT0}, s{sT0}, s{sWV}
        s_lshl_b32 s{sT0}, s{sT0}, 6
        v_mov_b32 v{T[1]}, s{sT0}
        s_mov_b64 exec, 1
        ''')
        for i in range(NST):
            a(f'v_mov_b32 v{T[0]}, s{sST+2*i}')
            a(f'buffer_store_dword v{T[0]}, v{T[1]}, {srd(sWS)}, 0 offen offset:{4*i}')
    a('s_endpgm')

def tab_reads(gi, em):
    A = vAFR + 20 * gi; o = 64 * gi
    for d in range(3):
        em(f'ds_read_b64_tr_b16 {vr(A+4*d+2,2)}, v{vTF0} offset:{o + 2*d*TP}')
    for par in range(2):
        em(f'ds_read_b64_tr_b16 {vr(A+12+4*par+2,2)}, v{vTE} offset:{o + (2 - 2*par)*TP}')
def tab_expand(gi):
    for f in range(5):
        A = vAFR + 20 * gi + 4 * f
        a(f'v_and_b32 v{A}, v{vM0}, v{A+2}\nv_bfi_b32 v{A+1}, v{vM0}, 0, v{A+2}\nv_and_b32 v{A+2}, v{vM0}, v{A+3}\nv_bfi_b32 v{A+3}, v{vM0}, 0, v{A+3}')
RING = 6
class Conv:
    def __init__(self, k0): self.n = 0; self.slot = 0; self.k0 = k0
    def acc(self, gi, k): return vACC + 16 * gi + 4 * (k - self.k0)
    def ds(self, t): a(t); self.n += 1; return self.n
    def wait(self, seq): a(f's_waitcnt lgkmcnt({min(15, self.n - seq)})')
    def reads(self, it):
        B = it['B']; go = 64 * it['gi']; idx = it['idx']; kind = it['kind']
        if kind == 'H':
            return [f'ds_read_b128 {vr(self.eb[it["gi"]]+4*sl,4)}, v{vAE16 if r == 16 else vAE} offset:{r*XROW+go}' for sl, r in it['rd']]
        if kind == 'F' and idx == 8:
            return [f'ds_read_b128 {vr(B,4)}, v{vAF} offset:{16*XROW+go}']
        if kind == 'F':
            r0, r1 = 2 * idx, min(2 * idx + 1, 16)
            return [f'ds_read_b128 {vr(B,4)}, v{vAF} offset:{r0*XROW+go}', f'ds_read_b128 {vr(B+4,4)}, v{vAF} offset:{r1*XROW+go}']
        if kind == 'E':
            return [f'ds_read_b128 {vr(B,4)}, v{vAE} offset:{2*idx*XROW+go}', f'ds_read_b128 {vr(B+4,4)}, v{vAE} offset:{(2*idx+4)*XROW+go}']
        return [f'ds_read_b128 {vr(B,4)}, v{vAE} offset:{12*XROW+go}', f'ds_read_b128 {vr(B+4,4)}, v{vAE16} offset:{16*XROW+go}']
    def cvt(self, lst):
        for gi, k in lst:
            A = self.acc(gi, k)
            a(f'v_cvt_pk_bf16_f32 v{A}, v{A}, v{A+1}\nv_cvt_pk_bf16_f32 v{A+1}, v{A+2}, v{A+3}')
    def write(self, lst):
        for gi, k in lst:
            A = self.acc(gi, k)
            if k == 6: setexec(0xffff, 0xffff)
            self.ds(f'ds_write_b64 v{vAO}, {vr(A,2)} offset:{(k-self.k0)*6144+64*gi}')
            if k == 6: a('s_mov_b64 exec, -1')
    def run(self, items, stop_at=None):
        D = RING - 1
        nxt = 0
        while nxt < len(items) and 'seq' in items[nxt]: nxt += 1
        def start(j):
            if items[j]['kind'] == 'H': items[j]['B'] = self.eb[items[j]['gi']] + 4 * items[j]['w']
            else:
                items[j]['B'] = vB + 8 * (self.slot % RING); self.slot += 1
            return self.reads(items[j])
        while nxt < min(D, len(items)):
            for t in start(nxt): items[nxt]['seq'] = self.ds(t)
            nxt += 1
        end = len(items) if stop_at is None else stop_at
        for i in range(end):
            it = items[i]
            if it['outs']: self.wait(it['seq'])
            pend = start(nxt) if nxt < len(items) else []
            A = vAFR + 20 * it['gi']
            had = bool(pend)
            for k in it['outs']:
                fr = (it['idx'] - k) if it['kind'] == 'F' else 3 + (k - it['idx'])
                a(f'v_smfmac_f32_16x16x64_bf16 {vr(self.acc(it["gi"], k),4)}, {vr(A+4*fr,4)}, {vr(it["B"],8)}, v{vIDX}')
                if pend: items[nxt]['seq'] = self.ds(pend.pop(0))
            for t in pend: items[nxt]['seq'] = self.ds(t)
            if had: nxt += 1
            if it.get('pub'):
                self.cvt(it['pub'])
                if not it.get('nowrite'): self.write(it['pub'])
            if it.get('post'): it['post']()
        return items[end:]
def stage(frags): return [dict(gi=gi, kind=f[0], idx=f[1], outs=list(f[2]), **(dict(w=f[3], rd=f[4]) if f[0] == 'H' else {})) for gi in range(3) for f in frags]
def add_pub(items, base, nfr, pairs, nowrite=False):
    for gi in range(3):
        j = min(base + nfr * (gi + 1), len(items) - 1)
        items[j].setdefault('pub', []).extend((gi, k) for k in pairs)
        items[j]['nowrite'] = nowrite

def late_setup():
    mksrd(sOUT, 14, XBYTES)
    if opt('safe'): a('s_mov_b32 s98, 200000')
    a(f'''
    s_mov_b32 s{sCA}, {fbits(ga):#x}
    s_mov_b32 s{sCA+1}, {fbits(ga):#x}
    s_mov_b32 s{sCC}, {fbits(gc):#x}
    s_mov_b32 s{sCC+1}, {fbits(gc):#x}
    s_add_u32 s{sT0}, s{sWI}, s{sY0}
    s_mul_i32 s{sT0}, s{sT0}, 224
    s_add_u32 s{sT0}, s{sT0}, s{sX0}
    s_mul_i32 s{sO0}, s{sT0}, 192
    ''')
    if STAMP:
        a(f's_mov_b32 s{sWS+2}, {256 if opt("dbg") else 0x10000000}\ns_mov_b32 s{sWS+3}, 0x00020000')
        for i in (7,): a(f's_mov_b32 s{sST+2*i}, 0')

q = [4, 5, 6, 7]
def ctw(j, r=4): a(f'ds_write_b128 v{vL16}, {vr(r,4)} offset:{CT + 1024*j}')
def ctr(j, r, em=None): (em or a)(f'ds_read_b128 {vr(r,4)}, v{vL16} offset:{CT + 1024*j}')
def ct0():
    a(f"""
    v_and_b32 v{T[0]}, 15, v{vLN}
    v_bfe_u32 v{T[1]}, v{vLN}, 4, 1
    v_lshrrev_b32 v{T[3]}, 5, v{vLN}
    v_lshl_add_u32 v{T[2]}, v{T[1]}, 1, v{T[3]}
    v_add_u32 v{T[2]}, v{T[0]}, v{T[2]}
    v_bfe_u32 v{T[4]}, v{T[2]}, 2, 2
    v_mul_u32_u24 v{T[2]}, 192, v{T[2]}
    v_lshl_add_u32 v4, v{T[4]}, 4, v{T[2]}
    v_add_u32 v4, {XB}, v4
    v_add_u32 v{T[2]}, 4, v{T[0]}
    v_bfe_u32 v{T[4]}, v{T[2]}, 2, 2
    v_mul_u32_u24 v{T[2]}, 192, v{T[2]}
    v_lshl_add_u32 v6, v{T[4]}, 4, v{T[2]}
    v_add_u32 v6, {XB}, v6
    v_lshrrev_b32 v{T[2]}, 4, v{vLN}
    v_mul_u32_u24 v{T[2]}, {XROW}, v{T[2]}
    v_add_u32 v5, v6, v{T[2]}
    v_bfe_u32 v{T[4]}, v{vLN}, 2, 2
    v_and_b32 v{T[2]}, 31, v{vLN}
    v_mul_u32_u24 v{T[2]}, 192, v{T[2]}
    v_lshl_add_u32 v{T[2]}, v{T[4]}, 4, v{T[2]}
    v_bfe_u32 v{T[4]}, v{vLN}, 1, 1
    v_xor_b32 v{T[3]}, v{T[3]}, v{T[4]}
    v_lshl_add_u32 v7, v{T[3]}, 3, v{T[2]}
    """)
    ctw(0)
    for j in range(3):
        a(f"""
        v_add_u32 v{T[0]}, {64*j}, v{vLN}
        v_mul_u32_u24 v{T[2]}, 171, v{T[0]}
        v_bfe_u32 v{T[2]}, v{T[2]}, 12, 2
        v_xor_b32 v{T[0]}, v{T[0]}, v{T[2]}
        v_lshlrev_b32 v{8+j}, 4, v{T[0]}
        """)
    a(f'v_and_b32 v{T[0]}, 3, v{vLN}\nv_lshlrev_b32 v11, 2, v{T[0]}\nv_add_u32 v11, {FL}, v11')
    ctw(2, 8)
    a(f'v_add_u32 v{T[0]}, {TB}, v{vL16}\nv_mov_b64 v[0:1], 0\nv_mov_b64 v[2:3], 0')
    for off in (0, 2*TP - 1024, 5*TP, 7*TP - 1024, 12*TP, 12*TP + 1024, 15*TP - 1024):
        a(f'ds_write_b128 v{T[0]}, v[0:3] offset:{off}')
def ct1():
    a(f"""
    v_and_b32 v{T[0]}, 3, v{vLN}
    v_mul_u32_u24 v7, 0x5555, v{T[0]}
    s_mov_b32 s{sT2}, {TB}
    v_bfe_u32 v{T[1]}, v{vLN}, 1, 1
    v_lshl_add_u32 v{T[4]}, v{T[1]}, 3, s{sT2}
    v_and_b32 v{T[0]}, 1, v{vLN}
    v_lshrrev_b32 v{T[1]}, 5, v{vLN}
    v_sub_u32 v{T[1]}, v{T[1]}, v{T[0]}
    v_bfe_u32 v{T[2]}, v{vLN}, 2, 1
    v_mad_i32_i24 v{T[1]}, v{T[2]}, -6, v{T[1]}
    v_add_u32 v{T[1]}, 7, v{T[1]}
    v_mul_u32_u24 v{T[1]}, {TP}, v{T[1]}
    v_bfe_u32 v{T[3]}, v{vLN}, 3, 1
    v_add_u32 v6, -1, v{T[3]}
    v_bfe_u32 v{T[2]}, v{vLN}, 4, 1
    v_lshl_add_u32 v{T[2]}, v{T[3]}, 1, v{T[2]}
    v_mul_u32_u24 v{T[2]}, 192, v{T[2]}
    v_add3_u32 v4, v{T[1]}, v{T[2]}, v{T[4]}
    v_lshrrev_b32 v{T[1]}, 4, v{vLN}
    v_lshl_add_u32 v{T[2]}, v{T[1]}, 1, v{T[3]}
    v_sub_u32 v{T[2]}, v{T[2]}, v{T[0]}
    v_add_u32 v{T[2]}, 5, v{T[2]}
    v_mul_u32_u24 v{T[2]}, {TP}, v{T[2]}
    v_mov_b32 v5, s{sT2}
    s_mov_b32 exec_lo, 0x0f0f0f0f
    s_mov_b32 exec_hi, 0x0f0f0f0f
    v_add_u32 v{T[2]}, 768, v{T[2]}
    v_add_u32 v5, v{T[2]}, v{T[4]}
    s_mov_b64 exec, -1
    """)
    ctw(1)
    a(f"""
    v_lshrrev_b32 v{T[0]}, 3, v{vLN}
    v_mul_u32_u24 v{T[0]}, 768, v{T[0]}
    v_bfe_u32 v{T[1]}, v{vLN}, 4, 1
    v_lshlrev_b32 v{T[1]}, 2, v{T[1]}
    v_and_b32 v{T[2]}, 7, v{vLN}
    v_xor_b32 v{T[1]}, v{T[1]}, v{T[2]}
    v_lshl_add_u32 v8, v{T[1]}, 4, v{T[0]}
    v_mov_b32 v9, v{vL16}
    v_mov_b32 v10, v{vL16}
    v_mov_b32 v11, v{vL16}
    s_mov_b32 exec_lo, 0xffff0000
    v_xor_b32 v11, 32, v{vL16}
    s_mov_b32 exec_lo, 0
    s_mov_b32 exec_hi, 0xffff0000
    v_xor_b32 v9, 32, v{vL16}
    s_mov_b32 exec_lo, -1
    s_mov_b32 exec_hi, 0
    v_xor_b32 v10, 32, v{vL16}
    s_mov_b64 exec, -1
    """)
    ctw(7, 8)
def ct2():
    a(f"""
    v_lshrrev_b32 v{T[4]}, 5, v{vLN}
    v_bfe_u32 v{T[0]}, v{vLN}, 2, 2
    v_bfe_u32 v{T[1]}, v{vLN}, 4, 1
    v_and_b32 v{T[2]}, 3, v{vLN}
    v_lshl_add_u32 v{T[3]}, v{T[4]}, 4, v{T[0]}
    v_lshlrev_b32 v{T[3]}, 7, v{T[3]}
    v_lshl_add_u32 v{T[3]}, v{T[1]}, 5, v{T[3]}
    v_lshl_add_u32 v{T[3]}, v{T[2]}, 3, v{T[3]}
    v_bfe_u32 v{T[2]}, v{vLN}, 3, 1
    v_lshl_add_u32 v4, v{T[2]}, 6, v{T[3]}
    v_xor_b32 v5, 64, v4
    v_xor_b32 v6, 32, v4
    v_xor_b32 v7, 0x60, v4
    """)
    ctw(3)
    a(f"""
    v_lshl_add_u32 v{T[3]}, v{T[4]}, 2, v{T[0]}
    v_mul_u32_u24 v{T[3]}, 192, v{T[3]}
    v_lshl_add_u32 v{T[3]}, v{T[1]}, 4, v{T[3]}
    v_and_b32 v{T[2]}, 1, v{vLN}
    v_xor_b32 v{T[2]}, v{T[2]}, v{T[4]}
    v_lshl_add_u32 v{T[3]}, v{T[2]}, 5, v{T[3]}
    v_bfe_u32 v{T[2]}, v{vLN}, 1, 1
    v_lshl_add_u32 v8, v{T[2]}, 3, v{T[3]}
    v_and_b32 v{T[3]}, 15, v{vLN}
    v_mul_u32_u24 v{T[3]}, 192, v{T[3]}
    v_add_u32 v16, 2, v{vLN}
    v_bfe_u32 v16, v16, 2, 2
    v_bfe_u32 v17, v{vLN}, 1, 2
    v_lshl_add_u32 v18, v{T[1]}, 3, v{T[3]}
    v_xor_b32 v12, v{T[4]}, v17
    v_lshl_add_u32 v12, v12, 4, v18
    v_xor_b32 v13, v{T[4]}, v16
    v_lshl_add_u32 v13, v13, 4, v18
    v_lshlrev_b32 v{T[4]}, 1, v{T[4]}
    v_xor_b32 v{T[0]}, v{T[4]}, v{T[0]}
    v_lshl_add_u32 v{T[0]}, v{T[0]}, 4, v{T[3]}
    v_lshl_add_u32 v{T[0]}, v{T[2]}, 3, v{T[0]}
    v_mul_u32_u24 v{T[2]}, {4*3072}, v{T[1]}
    v_add_u32 v9, v{T[0]}, v{T[2]}
    v_xor_b32 v16, v{T[4]}, v16
    v_lshl_add_u32 v16, v16, 4, v{T[3]}
    v_mul_u32_u24 v{T[2]}, {4*XROW}, v{T[1]}
    v_add_u32 v10, v16, v{T[2]}
    v_xor_b32 v17, v{T[4]}, v17
    v_lshl_add_u32 v17, v17, 4, v{T[3]}
    v_mul_u32_u24 v{T[2]}, 3072, v{T[1]}
    v_add_u32 v11, v17, v{T[2]}
    v_mov_b64 v[14:15], 0
    """)
    ctw(4, 8); ctw(9, 12)
def ct3():
    a(f"""
    v_and_b32 v{T[1]}, 1, v{vLN}
    v_lshlrev_b32 v{T[1]}, 4, v{T[1]}
    v_mov_b32 v{T[2]}, 0x3f80
    v_lshlrev_b32 v{T[1]}, v{T[1]}, v{T[2]}
    """)
    for i in range(4): a(f'v_mov_b64 {vr(4+2*i,2)}, 0')
    for i in range(8):
        pos = 16 * (i >> 2) + 8 * ((i >> 1) & 1) + 2 * (i & 1)
        setexec(3 << pos, 3 << (pos + 4))
        a(f'v_mov_b32 v{4+i}, v{T[1]}')
    a('s_mov_b64 exec, -1')
    ctw(5, 4); ctw(6, 8)
    a(f"""
    v_lshrrev_b32 v{T[4]}, 4, v{vLN}
    v_bfe_u32 v{T[0]}, v{vLN}, 2, 2
    v_and_b32 v{T[2]}, 3, v{vLN}
    v_bfe_u32 v{T[1]}, v{vLN}, 4, 1
    v_lshlrev_b32 v{T[2]}, 3, v{T[2]}
    v_lshl_add_u32 v{T[2]}, v{T[1]}, 5, v{T[2]}
    v_lshl_add_u32 v{T[3]}, v{T[4]}, 3, v{T[0]}
    v_lshl_add_u32 v{T[3]}, v{T[3]}, 7, v{T[2]}
    v_bfe_u32 v{T[1]}, v{vLN}, 3, 1
    v_lshl_add_u32 v12, v{T[1]}, 6, v{T[3]}
    v_lshl_add_u32 v{T[3]}, v{T[4]}, 2, v{T[0]}
    v_mul_u32_u24 v{T[3]}, 192, v{T[3]}
    v_add_u32 v13, v{T[3]}, v{T[2]}
    v_xor_b32 v{T[0]}, v{T[4]}, v{T[0]}
    v_and_b32 v{T[3]}, 15, v{vLN}
    v_mul_u32_u24 v{T[3]}, 192, v{T[3]}
    v_lshl_add_u32 v14, v{T[0]}, 4, v{T[3]}
    v_bfe_u32 v{T[1]}, v{vLN}, 1, 1
    v_lshl_add_u32 v15, v{T[1]}, 3, v14
    """)
    ctw(8, 12)
def pre_common():
    for i in range(24): a(f'v_mov_b64 {vr(vACC+2*i,2)}, 0')
    a(f"""
    s_lshl_b32 s{sT0}, s{sWV}, 2
    s_add_u32 s{sT0}, s{sT0}, {FL}
    v_mov_b32 v{vFW}, s{sT0}
    ds_write_b32 v{vFW}, v0
    s_mul_i32 s{sWA}, s{sWI}, {3*6144}
    s_mul_i32 s{sWBm}, s{sWI}, 3072
    """)
    mksrd(sW1, 10, 73728); mksrd(sW2, 12, 73728)
    late_setup()
def fix_conv():
    a(f"""
    s_lshl_b32 s{sT0}, s{sWI}, 4
    v_add_u32 v{vTF0}, s{sT0}, v{vTF0}
    v_add_u32 v{vTE}, s{sT0}, v{vTE}
    v_xor_b32 v{vAF}, s{sT0}, v{vAF}
    v_xor_b32 v{vAE}, s{sT0}, v{vAE}
    v_xor_b32 v{vAE16}, s{sT0}, v{vAE16}
    v_xor_b32 v{vAO}, s{sT0}, v{vAO}
    v_add_u32 v{vAO}, s{sOB}, v{vAO}
    """)
def fix_common():
    a(f"""
    v_add_u32 v{vSR[0]}, s{sIMG}, v{vSR[0]}
    v_add_u32 v{vSR[1]}, s{sIMG}, v{vSR[1]}
    v_add_u32 v{vSR[2]}, s{sIMG}, v{vSR[2]}
    s_and_b32 s{sT1}, s{sWI}, 1
    s_lshl_b32 s{sT0}, s{sT1}, 5
    v_xor_b32 v{vDW1[0]}, s{sT0}, v{vDW1[0]}
    v_xor_b32 v{vDW1[1]}, 32, v{vDW1[0]}
    """)

TM = opt('touch', 'n')
TOUCH = chr(10).join(t for k, t in (('l', 's_load_dword s76, s[6:7], 0'), ('x', f's_load_dword s77, s[4:5], s{sT0}'), ('1', 's_load_dword s78, s[10:11], 0'),
        ('2', 's_load_dword s79, s[12:13], 0'), ('o', f's_load_dword s80, s[14:15], s{sT0}')) if k in TM)
isF = 's_cmp_lt_u32' if FOLD else 's_cmp_ge_u32'
a(f'''
s_load_dwordx4 s[4:7], s[0:1], 0
s_load_dwordx4 s[8:11], s[0:1], 16
s_load_dwordx4 s[12:15], s[0:1], 32
s_getpc_b64 s[100:101]
L_pc:
''')
if STAMP: a(f's_load_dwordx2 s[{sWS}:{sWS+1}], s[0:1], {48 if opt("dbg") else 56}')
stamp(0)
if opt('jitter'): a('s_memtime s[86:87]\ns_waitcnt lgkmcnt(0)\nv_readfirstlane_b32 s87, v0\ns_nop 4\ns_mul_i32 s87, s87, 7919\ns_xor_b32 s86, s86, s87')
if opt('hold') or opt('amp'): a('s_memrealtime s[94:95]\ns_mov_b32 s88, 0')
PFM = opt('pf', 'h'); CSE = False
a(f"""
v_lshrrev_b32 v{T[0]}, 6, v0
s_cmp_ge_u32 s2, 256
s_cbranch_scc1 L_end
v_and_b32 v{vLN}, 63, v0
s_lshr_b32 s{sT1}, s2, 3
v_readfirstlane_b32 s{sWV}, v{T[0]}
s_and_b32 s{sT2}, s2, 1
s_add_u32 s{sT2}, s{sT2}, s{sT1}
s_cmp_ge_u32 s{sT2}, 32
s_cbranch_scc1 L_end
{isF} s{sWV}, 4
s_cbranch_scc1 L_e1
s_setprio 3
L_e1:
s_and_b32 s{sT0}, s2, 3
v_mul_u32_u24 v{T[0]}, 43, v{vLN}
s_mul_i32 s{sT0}, s{sT0}, 63
s_add_u32 s{sT0}, s{sT0}, 1
v_lshrrev_b32 v{T[0]}, 9, v{T[0]}
s_lshr_b32 s{sT0}, s{sT0}, 1
s_add_u32 s{sT0}, s{sT0}, s{sT1}
v_mad_i32_i24 v{T[1]}, v{T[0]}, -12, v{vLN}
s_mul_i32 s{sT1}, s{sT0}, 9363
s_lshr_b32 s{sT1}, s{sT1}, 16
s_and_b32 s{sWI}, s{sWV}, 3
s_bfe_u32 s{sT2}, s2, 0x10002
s_sub_u32 s{sT2}, s{sT2}, s{sT1}
s_mul_i32 s{sT2}, s{sT2}, 7
v_mad_u32_u24 v{T[0]}, s{sWI}, 5, v{T[0]}
s_add_u32 s{sT0}, s{sT0}, s{sT2}
s_lshl_b32 s{sX0}, s{sT0}, 4
v_bfe_u32 v{T[2]}, v{T[0]}, 2, 2
s_mul_i32 s{sH13}, s{sT1}, {112*7282}
v_xor_b32 v{T[1]}, v{T[1]}, v{T[2]}
s_add_u32 s{sH13}, s{sH13}, {int(opt('yc', 4))*7282}
s_lshr_b32 s{sY0}, s{sH13}, 16
v_add3_u32 v{T[0]}, v{T[0]}, s{sX0}, -2
s_mov_b32 s99, 43008
v_mul_u32_u24 v{T[2]}, 192, v{T[0]}
s_sub_u32 s{sT1}, s{sY0}, 2
v_cmp_gt_u32 vcc, 224, v{T[0]}
s_mul_i32 s{sT1}, s{sT1}, s99
v_lshl_add_u32 v{T[2]}, v{T[1]}, 4, v{T[2]}
v_mov_b32 v{T[4]}, {MARK}
s_mul_i32 s{sXM}, s{sWI}, 960
v_cndmask_b32 v{vXO}, v{T[4]}, v{T[2]}, vcc
s_mov_b32 s{sX+2}, {XBYTES}
s_mov_b32 s{sX+3}, 0x00020000
v_add_u32 v{vXO}, s{sT1}, v{vXO}
{isF} s{sWV}, 4
s_cbranch_scc1 L_F0
s_add_u32 m0, s{sXM}, {XB}
s_movk_i32 s97, {XROW}
s_mov_b32 exec_hi, 0x0fffffff
s_waitcnt lgkmcnt(0)
{ap('Lk')}
s_mov_b64 s[{sX}:{sX+1}], s[4:5]
""")
def h13fin():
    a(f"""
    s_add_u32 s{sH13}, s{sH13}, {112*7282}
    s_lshr_b32 s{sH13}, s{sH13}, 16
    s_sub_u32 s{sH13}, s{sH13}, s{sY0}
    """)
def l_tables():
    a(f"""
    v_lshlrev_b32 v{T[3]}, 4, v{vLN}
    s_mov_b32 s96, m0
    s_mov_b32 s{sDS+2}, 4800
    s_mov_b32 s{sDS+3}, 0x00020000
    s_mul_i32 s{sT3}, s{sWI}, {TP}
    s_mov_b64 s[{sDS}:{sDS+1}], s[8:9]
    s_add_u32 m0, s{sT3}, {TB + 7*TP}
    s_mov_b32 s{sDL+3}, 0x00020000
    buffer_load_dwordx4 v{T[3]}, {srd(sDS)}, s{sXM} offen lds
    s_mul_i32 s{sT2}, s{sWI}, 576
    s_sub_u32 s{sT2}, s{sT2}, 192
    s_add_u32 s{sT1}, s{sT3}, {TB + 2*TP}
    s_cmp_eq_u32 s{sWI}, 3
    s_cselect_b32 s{sDL+2}, s{sDS+2}, 1728
    s_cselect_b32 s{sT2}, 3840, s{sT2}
    s_cselect_b32 m0, {TB + 11*TP}, s{sT1}
    s_cselect_b64 s[{sDL}:{sDL+1}], s[8:9], s[6:7]
    s_cselect_b32 exec_lo, -1, 0xfffff000
    s_cselect_b32 exec_hi, -1, 0xffff
    v_add_u32 v{T[4]}, s{sT2}, v{T[3]}
    s_mov_b32 exec_lo, -1
    s_mov_b32 exec_hi, 0x0fffffff
    buffer_load_dwordx4 v{T[4]}, {srd(sDL)}, 0 offen lds
    s_mov_b32 m0, s96
    """)
xl = [0]
def xrows(n):
    for _ in range(n):
        t = xl[0]; xl[0] += 1
        if t:
            a('s_add_u32 m0, m0, s97')
            a(f'v_add_u32 v{vXO}, s99, v{vXO}')
        a(f'buffer_load_dwordx4 v{vXO}, {srd(sX)}, 0 offen{XPOL} lds')
NX0 = int(opt('nx0', 8))
TPOS = int(opt('tpos', 2))
xrows(TPOS)
l_tables()
xrows(NX0 - TPOS)
a('s_setprio 0')
a(ap('Li'))
stamp(1)
a(f'''
s_branch L_L
L_F0:
; ---- F: conv weight tables, rows w and w+4 of both
''')
h13fin()
if PFM == 'h':
    a(f'''
    s_cmp_eq_u32 s{sH13}, 13
    s_cbranch_scc1 L_nopf
    s_bfe_u32 s{sT3}, s2, 0x20003
    s_lshl_b32 s{sT3}, s{sT3}, 2
    s_add_u32 s{sT3}, s{sT3}, s{sWI}
    s_mul_i32 s{sT3}, s{sT3}, {20*128}
    v_lshl_add_u32 v{T[2]}, v{vLN}, 7, s{sT3}
    v_min_u32 v{T[2]}, L_end-L_pc, v{T[2]}
    s_mov_b64 exec, 0xfffff
    global_load_dword v{vPF}, v{T[2]}, s[100:101]
    s_mov_b64 exec, -1
    L_nopf:
    ''')
a(f'''
s_setprio {opt("fprio", 2)}
v_lshlrev_b32 v{vL16}, 4, v{vLN}
s_mul_i32 s{sIMG}, s{sWI}, 6144
s_mov_b32 s{sOB}, {OUTF}
s_cmp_eq_u32 s{sWI}, 1
s_cbranch_scc1 L_ct1
s_cmp_eq_u32 s{sWI}, 2
s_cbranch_scc1 L_ct2
s_cmp_eq_u32 s{sWI}, 3
s_cbranch_scc1 L_ct3
''')
ct0(); a('s_branch L_ctj')
a.label('L_ct1'); ct1(); a('s_branch L_ctj')
a.label('L_ct2'); ct2(); a('s_branch L_ctj')
a.label('L_ct3'); ct3()
a.label('L_ctj')
a('s_waitcnt lgkmcnt(0)')
a(ap('Fc'))
vFR = [48, 49, 50, 51]
vDW1[:] = [56, 60]; vDW2[:] = [57, 58, 59]
FXP = int(opt('fxp', 5))
def f_rows(n=None):
    if xl[0] >= 17: return
    if xl[0] == NX0:
        a(f'''
        s_add_u32 m0, s{sXM}, {XB + (NX0-1)*XROW}
        s_movk_i32 s97, {XROW}
        v_add_u32 v{vXO}, {(NX0-1)*43008}, v{vXO}
        s_mov_b64 s[{sX}:{sX+1}], s[4:5]
        ''')
    a('s_mov_b32 exec_hi, 0x0fffffff')
    xrows(min(17 - xl[0], n or 99))
    a('s_mov_b32 exec_hi, -1')
FB = [int(x) for x in opt('fb', '4,0').split(',')]
if FB[0]: f_rows(FB[0])
pre_common()
if FB[1]: f_rows(FB[1])
a(ap('Fs'))
stamp(1)
a('s_waitcnt lgkmcnt(0)')
pstamp(9)
bar()
a(ap('Bt'))
ctr(1, vTF0); ctr(0, vAF); ctr(2, vSR[0]); ctr(3, vAW1[0]); ctr(4, 52); ctr(5, vID); ctr(6, vID + 4); ctr(7, 56)
a('s_waitcnt lgkmcnt(6)')
fix_conv()
cv = Conv(0); cv.eb = [204, 216, 64]
for gi in range(3): tab_reads(gi, cv.ds)
f_rows()
a('s_waitcnt lgkmcnt(0)')
for gi in range(3): tab_expand(gi)
def f_fix():
    fix_common()
    a(f'''
    s_add_u32 s{sO1}, s{sO0}, {4*43008}
    v_add_u32 v{vAW2}, 12288, v52
    s_add_u32 s{sT2}, s{sWBm}, {OUTF}
    v_add_u32 v{vFR[0]}, s{sT2}, v53
    v_xor_b32 v{vFR[1]}, 8, v{vFR[0]}
    v_xor_b32 v{vFR[2]}, 16, v{vFR[0]}
    v_xor_b32 v{vFR[3]}, 24, v{vFR[0]}
    s_mul_i32 s{sT1}, s{sWI}, {XROW}
    s_add_u32 s{sT1}, s{sT1}, {XB + 2*XROW + 384}
    v_add_u32 v{vAR[0]}, s{sT1}, v54
    v_xor_b32 v{vAR[1]}, 16, v{vAR[0]}
    v_add_u32 v{vSW[0]}, s{sIMG}, v55
    v_xor_b32 v{vSW[1]}, 16, v{vSW[0]}
    ''')
FFX = opt('ffx', '1')
if FFX == '0': f_fix()
bar(2)
S0 = stage([('F',0,[0]), ('F',1,[0,1]), ('H',0,[],0,[(0,0)])])
cv.run(S0, 0)
def res_half(s):
    m = 0xffff0000 if s else 0xffff
    setexec(m, m)
    for ks in range(6):
        cv.ds(f'ds_read_b128 {vr(vRES+4*ks,4)}, v{vAR[ks&1]} offset:{64*(ks>>1)}')
    a('s_mov_b64 exec, -1')
def run_stage(left, frags, pairs, keep=0, mid=None):
    its = left + stage(frags)
    if pairs: add_pub(its, len(left), len(frags), pairs)
    if mid: its[mid[0]]['post'] = mid[1]
    return cv.run(its, len(its) - keep)
left = cv.run(S0, len(S0) - int(opt('keep0', 0)))
if FFX == '1': f_fix()
pstamp(10)
bar(3)
left = run_stage(left, [('F',2,[0,1,2]), ('F',3,[1,2,3]), ('H',0,[0,1],0,[(1,4)])], [0, 1])
SPLIT = opt('split', '0') == '1'
a(f's_waitcnt vmcnt({5 if SPLIT else 0})')
pstamp(11)
bar(4)
a(f's_setprio {opt("fprio2", 3)}')
left = run_stage(left, [('F',4,[2,3]), ('F',5,[3]), ('H',2,[2,3],1,[(2,8)])], [2, 3])
a(ap('Fa'))
a('s_waitcnt vmcnt(0)')
signal(1)
a(ap('F1'))
WL = opt('wl', '1') == '1'
if not WL: wdma(0, [0, 1, 2])
stamp(5)
poll(GF, 1)
RA = 168
for ks in range(6):
    a(f'ds_read_b64 {vr(RA+4*ks,2)}, v{vFR[2*(ks&1)]} offset:{64*(ks>>1)}')
    a(f'ds_read_b64 {vr(RA+4*ks+2,2)}, v{vFR[2*(ks&1)+1]} offset:{64*(ks>>1)}')
a(f's_setprio {opt("fprio3", 1)}')
if not WL: wdma(1, [0, 1, 2])
a('s_waitcnt lgkmcnt(0)')
stamp(6)
def f_mid():
    for ks in range(6):
        a(f'ds_read_b128 {vr(vRES+4*ks,4)}, v{vAR[ks&1]} offset:{64*(ks>>1)}')
    landed(0, 2)
    wdma(0, [3, 4, 5]); wdma(1, [3, 4, 5])
    peek(GF)
def f_mid2():
    a('s_waitcnt lgkmcnt(0)')
    check(GF, 2)
    f_w1reads0()
ln(RA, 72, [vL + i for i in range(24)], False, f_mid, f_mid2, (lambda: (wdma(0, [0, 1, 2]), wdma(1, [0, 1, 2]))) if WL else None)
a(ap('Fm'))
stamp(8)
XH = {
  'start3': [lambda: landed(0, 3)],
  ('T1', 0): [lambda: peek(GF)],
  ('preT2', 0): [lambda: check(GF, 3)],
  ('T1', 1): [lambda: stamp(9)],
  ('T2', 1): [lambda: peek(GL)],
  ('preT1', 2): [lambda: check(GL, 6)],
  ('preT1', 4): [lambda: signal(4)],
  ('T1', 4): [lambda: peek(GL)],
  ('preT2', 4): [lambda: check(GL, 7)],
  ('T2', 5): [lambda: peek(GL)],
  ('preT1', 6): [lambda: check(GL, 8), lambda: stamp(10)],
  ('preT1', 8): [lambda: stamp(11)],
  ('T2', 8): [lambda: peek(GF)],
  ('preT1', 9): [lambda: check(GF, 4)],
  ('preT1', 10): [lambda: stamp(12)],
}
FP = opt('fp', 'n')
def fprio(c):
    if FP == 'n': return (0, 0) if c == 0 else None
    if FP == 's': return (1, 1) if c == 0 else None
    return (0, int(FP))
mlp32(XH, fprio)
stamp(13)
P = vY[0]; Q = vK[0]
for mt in range(3):
    for i in range(8):
        a(f'v_cvt_pk_bf16_f32 v{P+8*mt+i}, v{vO+16*mt+2*i}, v{vO+16*mt+2*i+1}')
    a(f'ds_write_b128 v{vSW[0]}, {vr(P+8*mt,4)} offset:{64*mt}')
    a(f'ds_write_b128 v{vSW[1]}, {vr(P+8*mt+4,4)} offset:{64*mt}')
for s in range(2):
    for j in range(3):
        a(f'ds_read_b128 {vr(Q+4*(3*s+j),4)}, v{vSR[j]} offset:{3072*s}')
for s in range(2):
    for j in range(3):
        a(f's_waitcnt lgkmcnt({5-(3*s+j)})')
        a(f'buffer_store_dwordx4 {vr(Q+4*(3*s+j),4)}, v{vL16}, {srd(sOUT)}, s{sO1 if s else sO0} offen offset:{1024*j}{STPOL}')
finish()
emit_slow()

a.label('L_L')
cv = Conv(4); cv.eb = [60, 72, 228]
vDW1[:] = [220, 224]; vDW2[:] = [221, 222, 223]
vA0, vA2 = 48, 50
RR = 60
a(f'''
s_mov_b32 exec_hi, -1
v_lshlrev_b32 v{vL16}, 4, v{vLN}
s_mul_i32 s{sIMG}, s{sWI}, 3072
s_add_u32 s{sIMG}, s{sIMG}, {S_IL}
s_mov_b32 s{sOB}, {OUTL}
''')
h13fin()
LS = ''
pre_common()
a(ap('Ls'))
pstamp(14)
a(f's_waitcnt vmcnt({NX0 - TPOS})')
bar()
ctr(1, vTF0); ctr(0, vAF); ctr(2, vSR[0]); ctr(7, 220); ctr(8, 52); ctr(9, 56)
a('s_waitcnt lgkmcnt(4)')
fix_conv()
for gi in range(3): tab_reads(gi, cv.ds)
a(f's_waitcnt vmcnt({NX0 - 4})')
a(ap('Ll'))
pstamp(9)
bar(2)
a('s_waitcnt lgkmcnt(0)')
fix_common()
a(f'''
s_add_u32 s{sO0}, s{sO0}, {8*43008}
s_lshl_b32 s{sT0}, s{sT1}, 6
v_xor_b32 v52, s{sT0}, v52
s_lshr_b32 s{sT2}, s{sWI}, 1
s_mul_i32 s{sT2}, s{sT2}, {PS}
s_sub_u32 s{sT3}, {PS}, s{sT2}
v_add_u32 v{vLW1}, s{sT2}, v52
v_add_u32 v{vLW1+4}, s{sT3}, v52
v_xor_b32 v{vLW1+1}, 32, v{vLW1}
v_xor_b32 v{vLW1+2}, 64, v{vLW1}
v_xor_b32 v{vLW1+3}, 0x60, v{vLW1}
v_xor_b32 v{vLW1+5}, 32, v{vLW1+4}
v_xor_b32 v{vLW1+6}, 64, v{vLW1+4}
v_xor_b32 v{vLW1+7}, 0x60, v{vLW1+4}
s_mul_i32 s{sT1}, s{sT1}, 6144
s_add_u32 s{sT2}, s{sT2}, 12288
s_add_u32 s{sT3}, s{sT3}, 12288
s_add_u32 s{sT0}, s{sT2}, s{sT1}
v_add_u32 v{vLW2}, s{sT0}, v53
s_add_u32 s{sT0}, s{sT3}, s{sT1}
v_add_u32 v{vLW2+4}, s{sT0}, v53
s_sub_u32 s{sT1}, 6144, s{sT1}
s_add_u32 s{sT0}, s{sT2}, s{sT1}
v_add_u32 v{vLW2+2}, s{sT0}, v53
s_add_u32 s{sT0}, s{sT3}, s{sT1}
v_add_u32 v{vLW2+6}, s{sT0}, v53
v_xor_b32 v{vLW2+1}, 32, v{vLW2}
v_xor_b32 v{vLW2+3}, 32, v{vLW2+2}
v_xor_b32 v{vLW2+5}, 32, v{vLW2+4}
v_xor_b32 v{vLW2+7}, 32, v{vLW2+6}
v_add_u32 v{vARL}, {L12}, v54
v_add_u32 v{vA2}, {L12}, v55
v_xor_b32 v{vA2+1}, 8, v{vA2}
v_add_u32 v{vA0}, s{sIMG}, v55
v_xor_b32 v{vA0+1}, 8, v{vA0}
v_add_u32 v{vSW[0]}, s{sIMG}, v56
v_xor_b32 v{vSW[1]}, 32, v{vSW[0]}
s_mul_i32 s{sT0}, s{sWI}, {XROW}
s_add_u32 s{sT0}, s{sT0}, {XB + 384}
v_add_u32 v{vAR[0]}, s{sT0}, v57
v_xor_b32 v{vAR[1]}, 32, v{vAR[0]}
''')
pstamp(10)
a(f's_waitcnt vmcnt({NX0 - 8})')
pstamp(11)
bar(3)
WP2 = opt('wp2', '2')
def wpf():
    a(f'''
    s_and_b32 s{sT0}, s{sWI}, 1
    s_cselect_b64 s[{sT1}:{sT2}], s[12:13], s[10:11]
    s_lshr_b32 s{sT0}, s2, 3
    s_lshl_b32 s{sT0}, s{sT0}, 1
    s_lshr_b32 s{sT3}, s{sWI}, 1
    s_add_u32 s{sT0}, s{sT0}, s{sT3}
    s_mul_i32 s{sT0}, s{sT0}, {10*128}
    v_lshl_add_u32 v{T[0]}, v{vLN}, 7, s{sT0}
    v_min_u32 v{T[0]}, {73728-128}, v{T[0]}
    s_mov_b64 exec, 0x3ff
    global_load_dword v226, v{T[0]}, s[{sT1}:{sT2}]
    s_mov_b64 exec, -1
    ''')
if WP2 != '0': wpf()
for gi in range(3): tab_expand(gi)
a(f'v_mov_b64 {vr(vB+8*4+4,2)}, 0\nv_mov_b64 {vr(vB+8*4+6,2)}, 0')
pstamp(12)
assert NX0 == 8
a('s_waitcnt lgkmcnt(0)')
pstamp(13)
bar(4)
a(f's_setprio {opt("lprio", 2)}')
RED, LNW = 1, 3
def raw_reads(R, ad, off=0):
    for ks in range(3):
        a(f'ds_read_b64 {vr(R+4*ks,2)}, v{ad} offset:{off+64*ks}')
        a(f'ds_read_b64 {vr(R+4*ks+2,2)}, v{ad+1} offset:{off+64*ks}')
def row_store(O, soff, P=vY[0], Q=vK[0]):
    for i in range(12):
        a(f'v_cvt_pk_bf16_f32 v{P+i}, v{O+2*i}, v{O+2*i+1}')
    for i in range(6):
        a(f'ds_write_b64 v{vSW[i&1]}, {vr(P+2*i,2)} offset:{64*(i>>1)}')
    for j in range(3):
        a(f'ds_read_b128 {vr(Q+4*j,4)}, v{vSR[j]}')
    for j in range(3):
        a(f's_waitcnt lgkmcnt({2-j})')
        a(f'buffer_store_dwordx4 {vr(Q+4*j,4)}, v{vL16}, {srd(sOUT)}, s{soff} offen offset:{1024*j}{STPOL}')
LP = opt('lp', 'k')
CUR13 = [True]
def lprio(c):
    if LP == 'n': return (0, 0) if c == 0 else None
    if LP == 's': return (1, 1) if c == 0 else None
    if LP == 'k':
        lo, hi = [int(x) for x in (opt('lk', '0,8') if CUR13[0] else opt('lk12', '0,3')).split(',')]
        if lo <= c < hi: return (0, 1)
        return (0, 0) if c in (0, hi) else None
    return (0, int(LP))
def l_body(h13):
    global cv
    keep = cv
    cv = copy.copy(keep)
    sfx = 'a' if h13 else 'b'
    CUR13[0] = h13
    if h13:
        frags = [('F',4,[4]), ('F',5,[4,5]), ('F',6,[4,5,6]), ('F',7,[5,6]), ('H',4,[4,5],0,[(0,8),(1,12)]), ('F',8,[6]), ('H',6,[6],1,[(2,16)])]; pairs = [4, 5, 6]
    else:
        frags = [('F',4,[4]), ('F',5,[4,5]), ('F',6,[4,5]), ('F',7,[5]), ('H',4,[4,5],0,[(0,8),(1,12)])]; pairs = [4, 5]
    if SPLIT:
        pre = stage(frags[:2])
        pre = cv.run(pre, len(pre) - int(opt('keepl', 2)))
        poll(GF, 1)
        frags = frags[2:]
    else:
        pre = []
    its = pre + stage(frags)
    add_pub(its, len(pre), len(frags), pairs)
    def resr():
        for i in range(6):
            cv.ds(f'ds_read_b64 {vr(RR+2*i,2)}, v{vAR[i&1]} offset:{10*XROW+64*(i>>1)}')
        if h13:
            for i in range(6):
                cv.ds(f'ds_read_b64 {vr(RR+12+2*i,2)}, v{vAR[i&1]} offset:{(14-RED)*XROW+64*(i>>1)}')
    if opt('lc'):
        nf = len(frags)
        for j, idx in ((9, 0), (10, nf - 1), (11, nf), (12, 2 * nf - 1), (13, 2 * nf)):
            its[idx]['post'] = lambda j=j: _st(j)
    if '3' in LS:
        cv.run(its, 0)
        lsetup(3)
    cv.run(its)
    stamp(6)
    signal(2)
    resr()
    stamp(5)
    poll(GL, 2)
    stamp(7)
    RAW = 168
    raw_reads(RAW, vA0)
    for i in range(12):
        a(f'v_lshlrev_b32 v{vO+2*i}, 16, v{RR+i}\nv_and_b32 v{vO+2*i+1}, 0xffff0000, v{RR+i}')
    if h13:
        a(f's_cmp_eq_u32 s{sWI}, {RED}\ns_cbranch_scc1 L_ri{sfx}')
        for i in range(12): a(f'v_mov_b64 {vr(vO+24+2*i,2)}, 0')
        a(f's_branch L_rj{sfx}')
        a.label(f'L_ri{sfx}')
        for i in range(12):
            a(f'v_lshlrev_b32 v{vO+24+2*i}, 16, v{RR+12+i}\nv_and_b32 v{vO+24+2*i+1}, 0xffff0000, v{RR+12+i}')
        a.label(f'L_rj{sfx}')
    signal(3)
    if h13: raw_reads(RAW + 12, vA2)
    a(f's_waitcnt lgkmcnt({7 if h13 else 1})')
    def l_mid2():
        a('s_waitcnt lgkmcnt(0)')
        check(GF, 2)
        l_w1reads(0)
    ln(RAW, 72, [vL + i for i in range(12)], True, lambda: peek(GF), l_mid2)
    if h13:
        a(f's_cmp_lg_u32 s{sWI}, {LNW}\ns_cbranch_scc1 L_nl12')
        ln(RAW + 12, 72, [RAW + 12 + i for i in range(12)], True)
        for ks in range(3):
            a(f'ds_write_b128 v{vARL}, {vr(RAW+12+4*ks,4)} offset:{64*ks}')
        a.label('L_nl12')
        signal(5)
    stamp(8)
    def l12r():
        for ks in range(3):
            a(f'ds_read_b128 {vr(vL+12+4*ks,4)}, v{vARL} offset:{64*ks}')
    def pub_rem():
        a(f's_cmp_eq_u32 s{sWI}, {RED}\ns_cbranch_scc1 L_np\ns_mul_i32 s{sT0}, s{sWI}, 6144\nv_add_u32 v{T[0]}, s{sT0}, v{vL16}')
        for i in range(6):
            a(f'ds_write_b128 v{T[0]}, {vr(vO+24+4*i,4)} offset:{S_R + 1024*i}')
        a.label('L_np')
        signal(9)
    H = {
      'start3': [lambda: peek(GL)],
      ('preT1', 0): [lambda: check(GL, 3)],
      ('T1', 0): [lambda: wdma(2, [0, 1, 2]), lambda: wdma(3, [0, 1, 2]), lambda: peek(GF)],
      ('preT2', 0): [lambda: check(GF, 3)],
      ('T2', 0): [lambda: wdma(2, [3, 4, 5])] + ([lambda: peek(GL)] if h13 else []),
      ('preT1', 1): [lambda: check(GL, 5)] if h13 else [],
      ('T1', 1): [lambda: wdma(3, [3, 4, 5]), lambda: stamp(9)] + ([l12r] if h13 else []),
      ('preT2', 1): [lambda: landed(6, 6)],
      ('T2', 1): [lambda: wdma(4, [0, 1, 2]), lambda: peek(GL)],
      ('preT1', 2): [lambda: check(GL, 6)],
      ('T1', 2): [lambda: wdma(4, [3, 4, 5])],
      ('T2', 2): [lambda: wdma(5, [0, 1, 2])],
      ('preT1', 3): [lambda: landed(9, 7)],
      ('T1', 3): [lambda: wdma(5, [3, 4, 5])],
      ('T1', 4): [lambda: peek(GL)],
      ('preT2', 4): [lambda: check(GL, 7), lambda: landed(0, 8)],
      ('T2', 5): [lambda: peek(GL)],
      ('preT1', 6): [lambda: check(GL, 8), lambda: stamp(10)],
      ('preT1', 8): [lambda: stamp(11)],
      ('preT1', 10): [lambda: stamp(12)],
    }
    if opt('otouch', '0') == '1':
        H[('T1', 6)] = [lambda: a(f's_mov_b64 exec, 1\nbuffer_load_dword v226, v{vL16}, {srd(sOUT)}, s{sO0} offen\ns_mov_b64 exec, -1')]
    if h13:
        H[('T2', 9)] = [lambda: peek(GF)]
        H[('preT1', 10)] = H[('preT1', 10)] + [lambda: check(GF, 4), pub_rem]
        def reduce12():
            a(f's_cmp_lg_u32 s{sWI}, {RED}\ns_cbranch_scc1 L_nored')
            poll(GL, 9)
            others = [w for w in range(4) if w != RED]
            R = [144, 48, 144]
            def rd(n):
                for i in range(6):
                    a(f'ds_read_b128 {vr(R[n]+4*i,4)}, v{vL16} offset:{S_R + 6144*others[n] + 1024*i}')
            def ad(n):
                if opt('redpk'):
                    for i in range(12):
                        a(f'v_pk_add_f32 {vr(vO+24+2*i,2)}, {vr(vO+24+2*i,2)}, {vr(R[n]+2*i,2)}')
                    return
                for i in range(24):
                    a(f'v_add_f32 v{vO+24+i}, v{vO+24+i}, v{R[n]+i}')
            rd(0); rd(1)
            a('s_waitcnt lgkmcnt(6)'); ad(0); rd(2)
            a('s_waitcnt lgkmcnt(6)'); ad(1)
            a('s_waitcnt lgkmcnt(0)'); ad(2)
            a(f's_add_u32 s{sO1}, s{sO0}, {(4-RED)*43008}')
            row_store(vO + 24, sO1, 48, 144)
            a.label('L_nored')
        H[('T1', 11)] = [reduce12]
        OB = opt('oddb', '8,12')
        if OB != 'n':
            o0, o1 = [int(x) for x in OB.split(',')]
            def boost():
                a(f's_cmp_lg_u32 s{sWI}, {RED}\ns_cbranch_scc1 L_nb\ns_setprio 1')
                a.label('L_nb')
            H.setdefault(('T2', o0), []).append(boost)
            if o1 < 12: H.setdefault(('T2', o1), []).append(lambda: a('s_setprio 0'))
    mlp16([3, 5, 8] if h13 else [], H, lprio)
    stamp(13)
    row_store(vO, sO0)
    finish()
    emit_slow()
    cv = keep
a(f's_cmp_lg_u32 s{sH13}, 13\ns_cbranch_scc1 L_L12')
l_body(True)
a.label('L_L12')
l_body(False)
a.label('L_end')
a('s_endpgm')

body = a.finalize()
hdr = open('cdna_kernels/' + NAME + '.s.ref').read().split('\n')
out = []
for l in hdr:
    if l.startswith('; @launch'):
        out.append('; @launch grid=(256,1,1) block=(512,1,1) lds=163840')
    elif l.startswith(';'):
        out.append(l)
    else:
        break
out.append('.amdgcn_target "amdgcn-amd-amdhsa--gfx950"')
out.append('.text')
out.append(f'.globl {NAME}_kernel')
out.append('.p2align 8')
out.append(f'.type {NAME}_kernel,@function')
out.append(f'{NAME}_kernel:')
for l in body:
    out.append(l if l.endswith(':') else '    ' + l)
out.append(f'''.section .rodata,"a"
.p2align 6
.amdhsa_kernel {NAME}_kernel
  .amdhsa_next_free_vgpr 256
  .amdhsa_next_free_sgpr 102
  .amdhsa_accum_offset 256
  .amdhsa_group_segment_fixed_size 0
  .amdhsa_kernarg_size 64
  .amdhsa_user_sgpr_count 2
  .amdhsa_user_sgpr_kernarg_segment_ptr 1
  .amdhsa_system_sgpr_workgroup_id_x 1
.end_amdhsa_kernel''')
print('\n'.join(out))
```
